```python
import torch

def _softmax(x, axis=-1):
    return torch.softmax(x, dim=axis)
def _gelu(x):
    return torch.nn.functional.gelu(x, approximate="tanh")
def _silu(x):
    return torch.nn.functional.silu(x)
def _sigmoid(x):
    return torch.sigmoid(x)
def _layernorm(x, axis=-1, eps=1e-5):
    m = x.mean(dim=axis, keepdim=True)
    v = x.var(dim=axis, keepdim=True, unbiased=False)
    return (x - m) / torch.sqrt(v + eps)
def _scatter_add(tgt, idx, src, axis=0):
    return tgt.clone().index_add_(axis, idx, src)
def _segment_sum(src, seg, n):
    out = torch.zeros((n,) + src.shape[1:], dtype=src.dtype)
    return out.index_add_(0, seg, src)
def _pad(x, pw):
    flat = tuple(v for pair in reversed(pw) for v in pair)
    return torch.nn.functional.pad(x, flat)

kernel_name = 'sequential_preLN__ssm_conv_h3__glu_gated_swiglu__prompt'

def setup_inputs():

    _w = (lambda a: (lambda t: t.to(torch.bfloat16) if t.is_floating_point() else t)(torch.as_tensor(a)))
    def _A_setup():
        B, S, D = 1, 2048, 1024
        ks = 4
        return {
            "q": _w((lambda *s: torch.randn(*s, dtype=torch.bfloat16) * 0.05)(B, S, D)),
            "k": _w((lambda *s: torch.randn(*s, dtype=torch.bfloat16) * 0.2)(B, S, D)),
            "v": _w((lambda *s: torch.randn(*s, dtype=torch.bfloat16) * 0.2)(B, S, D)),
            "shift_k": _w((lambda *s: torch.randn(*s, dtype=torch.bfloat16) * 0.2)(D, ks) * 0.5),
            "ssm_k": _w((lambda *s: torch.randn(*s, dtype=torch.bfloat16) * 0.4)(D, S) * (1.0 / S ** 0.5)),
            "ssm_D": _w((lambda *s: torch.randn(*s, dtype=torch.bfloat16) * 0.2)(D)),
        }
    _A_in = _A_setup()

    def _B_setup():
        B, S, D, F = 1, 2048, 1024, 3584
        return {
            "x": _w((lambda *s: torch.randn(*s, dtype=torch.bfloat16) * 0.05)(B, S, D)),
            "w1": _w((lambda *s: torch.randn(*s, dtype=torch.bfloat16) * 0.2)(D, F) * (2.0 / D) ** 0.5),
            "w3": _w((lambda *s: torch.randn(*s, dtype=torch.bfloat16) * 0.2)(D, F) * (2.0 / D) ** 0.5),
            "w2": _w((lambda *s: torch.randn(*s, dtype=torch.bfloat16) * 0.2)(F, D) * (2.0 / F) ** 0.5),
        }
    _B_in = _B_setup()

    return {
        "A_q": _A_in["q"],
        "A_k": _A_in["k"],
        "A_v": _A_in["v"],
        "A_shift_k": _A_in["shift_k"],
        "A_ssm_k": _A_in["ssm_k"],
        "A_ssm_D": _A_in["ssm_D"],
        "B_x": _B_in["x"],
        "B_w1": _B_in["w1"],
        "B_w3": _B_in["w3"],
        "B_w2": _B_in["w2"],
    }

def reference(A_q, A_k, A_v, A_shift_k, A_ssm_k, A_ssm_D, B_x, B_w1, B_w3, B_w2):
    def _A_ref(q, k, v, shift_k, ssm_k, ssm_D):
        B, S, D = q.shape
        ks = shift_k.shape[-1]
        k_pad = _pad(k, ((0, 0), (ks - 1, 0), (0, 0)))
        k_shift = torch.zeros_like(k)
        for t in range(ks):
            k_shift = k_shift + k_pad[:, t:t + S, :] * shift_k[:, ks - 1 - t][None, None, :]
        kv = k_shift * v
        L = 2 * S
        kv_pad = _pad(kv, ((0, 0), (0, S), (0, 0)))
        kf_pad = _pad(ssm_k, ((0, 0), (0, S)))
        kv_f = (lambda x, axes=(-2,-1): torch.fft.rfft2(x.float(), dim=axes))(kv_pad[:, None, :, :], axes=(1, 2))
        kf_f = (lambda x, axes=(-2,-1): torch.fft.rfft2(x.float(), dim=axes))(kf_pad[:, None, :], axes=(1, 2))
        kf_f = (lambda x, *d: x.permute(*d))(kf_f, 1, 2, 0)
        y_f = kv_f * kf_f[None, :, :, :]
        y = (lambda x, s, axes=(-2,-1): torch.fft.irfft2(x, s=s, dim=axes).to(torch.bfloat16))(y_f, (1, L), axes=(1, 2))[:, 0, :S, :]
        y = y + kv * ssm_D[None, None, :]
        return q * y

    def _B_ref(x, w1, w3, w2):
        gate = torch.einsum("bsd,df->bsf", x, w1)
        up = torch.einsum("bsd,df->bsf", x, w3)
        h = _silu(gate) * up
        out = torch.einsum("bsf,fd->bsd", h, w2)
        return out

    x = A_q
    h = x + _A_ref(_layernorm(x, axis=-1), A_k, A_v, A_shift_k, A_ssm_k, A_ssm_D)
    h2 = h + _B_ref(_layernorm(h, axis=-1), B_w1, B_w3, B_w2)
    return h2
```

```python
import re

class Asm:
    def __init__(self):
        self.lines = []
    def e(self, s):
        for ln in s.split('\n'):
            ln = ln.strip()
            if ln:
                self.lines.append('    ' + ln if not ln.endswith(':') else ln)
    def c(self, s):
        self.lines.append('    ; ' + s)
    def raw(self, s):
        self.lines.append(s)
    def text(self):
        return '\n'.join(self.lines) + '\n'

REG = re.compile(r'^(-|abs\(|\|)?([vas])(\d+)\)?\|?$')
RNG = re.compile(r'^(-|abs\()?([vas])\[(\d+):(\d+)\]\)?$')
TRANS = ('v_exp_f32', 'v_log_f32', 'v_rcp_f32', 'v_rsq_f32', 'v_sqrt_f32', 'v_sin_f32', 'v_cos_f32', 'v_rcp_iflag_f32')

def regs_of(op):
    op = op.strip()
    m = REG.match(op)
    if m:
        return [(m.group(2), int(m.group(3)))]
    m = RNG.match(op)
    if m:
        return [(m.group(2), i) for i in range(int(m.group(3)), int(m.group(4)) + 1)]
    if op in ('vcc', 'vcc_lo', 'vcc_hi'):
        return [('x', 'vcc')]
    if op in ('exec', 'exec_lo', 'exec_hi'):
        return [('x', 'exec')]
    if op == 'm0':
        return [('x', 'm0')]
    return []

class Ins:
    def __init__(self, text, lineno):
        self.text = text
        self.lineno = lineno
        t = text.split(';')[0].strip()
        parts = t.split(None, 1)
        self.mn = parts[0]
        rest = parts[1] if len(parts) > 1 else ''
        ops = []
        cur = ''
        depth = 0
        for ch in rest:
            if ch in '[(':
                depth += 1
            if ch in '])':
                depth -= 1
            if ch == ',' and depth == 0:
                ops.append(cur.strip()); cur = ''
            else:
                cur += ch
        if cur.strip():
            ops.append(cur.strip())
        self.mods = ''
        if ops:
            sp = ops[-1].split(None, 1)
            ops[-1] = sp[0]
            if len(sp) > 1:
                self.mods = sp[1]
        self.ops = ops
        mn = self.mn
        self.is_mfma = mn.startswith('v_mfma')
        self.is_valu = mn.startswith('v_') and not self.is_mfma
        self.is_salu = mn.startswith('s_')
        self.is_vmem = mn.startswith(('buffer_', 'global_'))
        self.is_ds = mn.startswith('ds_')
        self.is_smem = mn.startswith(('s_load', 's_buffer_load', 's_memtime', 's_memrealtime', 's_atomic'))
        self.is_dpp = '_dpp' in mn or 'row_' in self.mods or 'quad_perm' in self.mods or 'wave_' in self.mods
        self.is_trans = any(mn.startswith(x) for x in TRANS)
        self.is_lds_dma = self.is_vmem and (' lds' in (' ' + self.mods) or 'load_lds' in mn)
        self.w = []; self.r = []
        R = lambda i: regs_of(ops[i]) if i < len(ops) else []
        allr = lambda a: [x for i in range(a, len(ops)) for x in R(i)]
        self.srcA = self.srcB = self.srcC = []
        self.stdata = []
        if self.is_mfma:
            self.w = R(0); self.srcA = R(1); self.srcB = R(2); self.srcC = R(3); self.r = allr(1)
            self.passes = 8 if '32x32x16' in mn else 4 if '16x16x32' in mn else None
            assert self.passes
        elif self.is_valu:
            if mn.startswith('v_permlane') and 'swap' in mn:
                self.w = R(0) + R(1); self.r = R(0) + R(1)
            elif mn.startswith(('v_add_co', 'v_sub_co', 'v_addc_co', 'v_subb_co', 'v_subrev_co')):
                self.w = R(0) + R(1); self.r = allr(2)
            elif mn.startswith('v_cmpx'):
                self.w = R(0) + [('x', 'exec')]; self.r = allr(1)
            elif mn.startswith(('v_fmac', 'v_dot2c', 'v_pk_fmac', 'v_writelane')):
                self.w = R(0); self.r = allr(0)
            elif mn == 'v_nop':
                pass
            else:
                self.w = R(0); self.r = allr(1)
                if self.is_dpp:
                    self.r = self.r + R(0)
                if mn.startswith('v_cndmask') and len(ops) == 3:
                    self.r.append(('x', 'vcc'))
        elif self.is_vmem:
            if self.is_lds_dma:
                self.r = allr(0) + [('x', 'm0')]
            elif 'load' in mn:
                self.w = R(0); self.r = allr(1)
            elif 'atomic' in mn:
                self.r = allr(0)
                if 'sc0' in self.mods:
                    self.w = R(0)
            elif mn.startswith(('buffer_wbl2', 'buffer_inv')):
                pass
            else:
                self.r = allr(0)
                if mn.startswith('buffer_store'):
                    self.stdata = R(0)
                else:
                    self.stdata = R(1)
        elif self.is_ds:
            if 'read' in mn or 'bpermute' in mn or 'swizzle' in mn or 'permute' in mn or '_rtn' in mn:
                self.w = R(0); self.r = allr(1)
            else:
                self.r = allr(0)
        elif self.is_salu:
            if mn.startswith(('s_cmp', 's_cbranch', 's_waitcnt', 's_barrier', 's_nop', 's_setprio', 's_endpgm', 's_branch', 's_sleep', 's_bitcmp')):
                self.r = allr(0)
            elif 'saveexec' in mn:
                self.w = R(0) + [('x', 'exec')]; self.r = allr(1) + [('x', 'exec')]
            elif mn.startswith(('s_addk', 's_mulk')):
                self.w = R(0); self.r = R(0)
            else:
                self.w = R(0); self.r = allr(1)
        else:
            raise ValueError('unknown instr ' + text)
        self.ws = 1
        if mn == 's_nop':
            self.ws = int(ops[0], 0) + 1
        self.target = None
        if mn.startswith(('s_cbranch', 's_branch')):
            self.target = ops[0]

def parse(text):
    ins = []; labels = {}
    in_code = True
    for n, ln in enumerate(text.split('\n'), 1):
        s = ln.split(';')[0].strip()
        if not s:
            continue
        if s.startswith('.'):
            if s.startswith('.section') or s.startswith('.amdhsa_kernel'):
                in_code = False
            if s.startswith('.text'):
                in_code = True
            if not s.endswith(':'):
                continue
        if not in_code:
            continue
        if s.endswith(':'):
            labels[s[:-1]] = len(ins)
            continue
        ins.append(Ins(s, n))
    return ins, labels

def inter(a, b):
    return set(a) & set(b)

def need(p, c):
    n = 0
    why = ''
    def up(k, w):
        nonlocal n, why
        if k > n:
            n = k; why = w
    pw = p.w
    pvw = [x for x in pw if x[0] in 'va']
    psw = [x for x in pw if x[0] == 's' or x == ('x', 'vcc')]
    if p.is_valu:
        if c.is_mfma and inter(pvw, c.r): up(2, 'valu->mfma src')
        if c.is_valu and c.is_dpp and inter(pvw, c.r): up(2, 'valu->dpp')
        if c.is_valu and c.mn.startswith('v_permlane') and inter(pvw, c.r): up(2, 'valu->permlane')
        if c.mn.startswith(('v_readlane', 'v_readfirstlane')) and inter(pvw, c.r): up(1, 'valu->readlane')
        if p.is_trans and c.is_valu and not c.is_trans and inter(pvw, c.r): up(1, 'trans->valu')
        if p.is_trans and c.is_mfma and inter(pvw, c.r): up(2, 'trans->mfma')
        if psw:
            if c.is_vmem and inter(psw, c.r): up(5, 'valu sgpr->vmem')
            if c.is_valu and inter(psw, c.r):
                up(2, 'valu sgpr->valu')
                if c.mn.startswith(('v_readlane', 'v_writelane')): up(4, 'valu sgpr->lane sel')
            if c.is_salu and inter(psw, c.r): up(1, 'valu sgpr->salu (pad)')
        if ('x', 'exec') in pw:
            if c.is_mfma: up(4, 'valu exec->mfma')
            if c.is_dpp: up(5, 'valu exec->dpp')
            if c.mn.startswith(('v_readlane', 'v_readfirstlane', 'v_writelane', 'v_permlane')): up(4, 'cmpx->lane')
        if ('sdwa' in p.mn or 'op_sel' in p.mods) and not p.mn.startswith('v_pk_') and c.is_valu and inter(pvw, c.r + c.w): up(1, 'opsel')
    if p.is_salu and ('x', 'm0') in pw and c.is_lds_dma: up(1, 'm0->dma')
    if p.stdata and len(p.stdata) >= 3:
        if inter(p.stdata, c.w):
            up(2 if (c.is_valu or c.is_mfma) else 1, 'store data WAR')
    if p.is_mfma:
        P = p.passes
        big = {4: 8, 8: 12}[P]
        if c.is_mfma:
            if inter(pw, c.srcA + c.srcB): up(big, 'mfma D->mfma A/B')
            if inter(pw, c.srcC):
                if not (c.srcC == pw and c.passes == P): up({4: 6, 8: 10}[P], 'mfma D->mfma C overlap')
            elif inter(pw, c.w) : up({4: 6, 8: 10}[P], 'mfma D->mfma D WAW (no C)')
        else:
            if (c.is_valu or c.is_vmem or c.is_ds) and inter(pw, c.r + c.w): up(big, 'mfma D->valu/mem')
            if c.is_valu and inter(p.srcC, c.w): up({4: 3, 8: 7}[P], 'mfma C WAR')
    return n, why

def check_hazards(text):
    ins, labels = parse(text)
    preds = [[] for _ in ins]
    for i, x in enumerate(ins):
        if i + 1 < len(ins) and x.mn not in ('s_branch', 's_endpgm'):
            preds[i + 1].append(i)
        if x.target is not None:
            t = labels[x.target]
            if t < len(ins):
                preds[t].append(i)
    errs = []
    for i, c in enumerate(ins):
        seen = {}
        stack = [(p, 0) for p in preds[i]]
        while stack:
            j, d = stack.pop()
            if d >= 20: continue
            if j in seen and seen[j] <= d: continue
            seen[j] = d
            p = ins[j]
            n, why = need(p, c)
            if n > d:
                errs.append(f'HAZARD {why}: line {p.lineno} "{p.text}" -> line {c.lineno} "{c.text}" has {d} needs {n}')
            for q in preds[j]:
                stack.append((q, d + p.ws))
    return errs

def check_waits(text, entry, loop_iters=4, take_fwd=()):
    ins, labels = parse(text)
    pc = labels[entry]
    vm = []
    lg = []
    cnt = {}
    errs = []
    steps = 0
    while True:
        x = ins[pc]; steps += 1
        assert steps < 2000000
        if x.mn == 's_endpgm': break
        if x.mn == 's_waitcnt':
            m = re.search(r'vmcnt\((\d+)\)', x.text)
            if m:
                n = int(m.group(1))
                if len(vm) > n: vm = vm[len(vm) - n:] if n else []
            m = re.search(r'lgkmcnt\((\d+)\)', x.text)
            if m:
                n = int(m.group(1))
                if n and any(o[1].is_smem for o in lg):
                    errs.append(f'WAIT lgkmcnt({n}) with SMEM outstanding line {x.lineno}')
                if len(lg) > n: lg = lg[len(lg) - n:] if n else []
        else:
            touched = set(x.r) | set(x.w)
            for q, nm in ((vm, 'vm'), (lg, 'lgkm')):
                for regs, o in q:
                    if touched & set(regs) and not (x.mn == 'buffer_load_dword' and o.mn == 'buffer_load_dword' and not set(x.r) & set(regs)):
                        errs.append(f'WAIT missing ({nm}): line {o.lineno} "{o.text}" pending at line {x.lineno} "{x.text}"')
            if x.is_vmem and not x.mn.startswith(('buffer_wbl2', 'buffer_inv')):
                vm.append((x.w, x))
                if len(vm) > 63: errs.append(f'vmcnt overflow at line {x.lineno}')
            if x.is_ds or x.is_smem:
                lg.append((x.w, x))
        if x.target is not None:
            t = labels[x.target]
            if t <= pc:
                k = cnt.get(pc, 0)
                if k < loop_iters:
                    cnt[pc] = k + 1
                    pc = t; continue
                cnt[pc] = 0
            elif x.mn == 's_branch' or x.target in take_fwd:
                pc = t; continue
        pc += 1
    return sorted(set(errs))
```

```python
from asmlib import *
OPT = dict(mimic=0)
MB = 1 << 20
WS_UB, WS_Y2, WS_H, WS_HNF, WS_HF = 0, 4 * MB, 8 * MB, 12 * MB, 16 * MB
KA_Q, KA_K, KA_V, KA_SH, KA_SSMK, KA_D, KA_X, KA_W1, KA_W3, KA_W2, KA_OUT, KA_DBG, KA_WS = [8 * i for i in range(13)]

G1_UP = 16384 + 128
G1_STG = 32768 + 256
G1_NS = 4
G1_LDS = G1_STG * G1_NS
G2_NS = 6
G2_STG = 16384
G2_LDS = G2_STG * G2_NS + 32768

def _imp():
    import gen
    return gen

def gen_g1(a):
    g = _imp()
    name = 'g1_kernel'
    g.head(a, name, 256)
    a.e(f's_load_dwordx4 s[4:7], s[0:1], {KA_W1}')
    a.e(f's_load_dwordx2 s[10:11], s[0:1], {KA_WS}')
    a.e('v_lshrrev_b32 v1, 6, v0')
    a.e('v_and_b32 v2, 63, v0')
    a.e('v_readfirstlane_b32 s12, v1')
    a.e('s_and_b32 s13, s2, 7')
    a.e('s_lshr_b32 s14, s2, 3')
    a.e('s_and_b32 s15, s13, 1')
    a.e('s_lshl_b32 s15, s15, 2')
    a.e('s_and_b32 s16, s14, 3')
    a.e('s_add_u32 s15, s15, s16')
    a.e('s_lshr_b32 s16, s13, 1')
    a.e('s_lshl_b32 s16, s16, 3')
    a.e('s_lshr_b32 s17, s14, 2')
    a.e('s_add_u32 s16, s16, s17')
    a.e('s_lshl_b32 s17, s15, 3')
    a.e('s_add_u32 s17, s17, s12')
    a.e('s_and_b32 s18, s12, 3')
    a.e('s_lshr_b32 s19, s12, 2')
    ACC, WF, TF, DV, VT, VR, VL = 16, 128, 156, 188, 192, 193, 194
    a.e('s_lshl_b32 s36, s18, 8')
    a.e('v_add_u32 v3, s36, v2')
    a.e('s_movk_i32 s37, 4682')
    a.e('s_movk_i32 s38, 7168')
    a.e('v_mov_b32 v8, 0x80000000')
    for i in range(4):
        a.e(f'v_add_u32 v4, {64*i}, v3')
        a.e('v_mul_u32_u24 v5, s37, v4')
        a.e('v_lshrrev_b32 v5, 16, v5')
        a.e('v_mul_u32_u24 v6, 14, v5')
        a.e('v_sub_u32 v6, v4, v6')
        a.e('v_mul_u32_u24 v5, s38, v5')
        a.e('v_lshl_add_u32 v5, v6, 4, v5')
        a.e(f'v_subrev_u32 v5, {1024*i}, v5')
        a.e('v_cmp_gt_u32 vcc, 896, v4')
        a.e('s_nop 1')
        a.e(f'v_cndmask_b32 v{DV+i}, v8, v5, vcc')
    a.e(f'v_lshlrev_b32 v{VT}, 4, v2')
    a.e('v_bfe_u32 v4, v2, 4, 1')
    a.e(f'v_mul_u32_u24 v4, {G1_UP}, v4')
    a.e('v_lshrrev_b32 v5, 5, v2')
    a.e('v_lshlrev_b32 v5, 3, v5')
    a.e('v_bfe_u32 v6, v2, 2, 2')
    a.e('v_add_u32 v5, v5, v6')
    a.e('v_mul_u32_u24 v5, 224, v5')
    a.e('v_and_b32 v6, 3, v2')
    a.e('v_lshl_add_u32 v5, v6, 3, v5')
    a.e(f'v_add_u32 v{VL}, v4, v5')
    a.e(f'v_mov_b32 v{VR}, v{VL}')
    a.e(f's_mul_i32 s39, s19, {G1_UP}')
    a.e('s_lshl_b32 s40, s18, 12')
    a.e('s_add_u32 s39, s39, s40')
    a.e('s_mul_i32 s41, s16, 224')
    a.e('s_lshl_b32 s42, s17, 16')
    a.e('s_mul_i32 s43, s17, 229376')
    a.e('s_mul_i32 s44, s16, 7168')
    a.e('s_add_u32 s43, s43, s44')
    a.e('s_waitcnt lgkmcnt(0)')
    a.e('s_cmp_eq_u32 s19, 0')
    a.e('s_cselect_b32 s4, s4, s6')
    a.e('s_cselect_b32 s5, s5, s7')
    g.srd(a, 20, 4, 0, 0, 41)
    a.e('s_sub_u32 s22, 7340032, s41')
    g.srd(a, 24, 10, 65536, WS_HNF, 42)
    g.srd(a, 28, 10, 7168, WS_HF, 43)
    def dma_setup():
        a.e('s_add_u32 m0, s39, s46')
    def dma(i):
        return f'buffer_load_dwordx4 v{DV+i}, s[20:23], s45 offen offset:{1024*i} lds'
    def dma_adv():
        a.e('s_add_u32 s45, s45, 458752')
        a.e(f's_add_u32 s46, s46, {G1_STG}')
        a.e(f's_cmp_eq_u32 s46, {G1_STG*G1_NS}')
        a.e('s_cselect_b32 s46, 0, s46')
    def tok(buf, j):
        return f'buffer_load_dwordx4 v[{TF+4*buf}:{TF+4*buf+3}], v{VT}, s[24:27], s47 offen offset:{1024*j}'
    def rd(j, t):
        return [f'ds_read_b64_tr_b16 v[{WF+4*t+2*h}:{WF+4*t+2*h+1}], v{VR} offset:{(16*j+4*h)*224+32*t}' for h in range(2)]
    a.e('s_mov_b32 s45, 0')
    a.e('s_mov_b32 s46, 0')
    a.e('s_mov_b32 s47, 0')
    dma_setup(); a.e('s_nop 0')
    for i in range(4): a.e(dma(i))
    dma_adv()
    for j in range(3): a.e(tok(j, j))
    dma_setup(); a.e('s_nop 0')
    for i in range(4): a.e(dma(i))
    dma_adv()
    a.e(tok(3, 3))
    a.e('s_movk_i32 s47, 4096')
    for j in range(3): a.e(tok(4 + j, j))
    for r in range(112):
        a.e(f'v_mov_b32 v{ACC+r}, 0')
    a.e('s_mov_b32 s48, 0')
    a.e('s_mov_b32 s49, 0')
    dma_setup()
    a.e('s_waitcnt vmcnt(11)')
    a.e('s_barrier')
    for t in range(7):
        for l in rd(0, t): a.e(l)
    for i in range(4): a.e(dma(i))
    dma_adv()
    a.e(tok(7, 3))
    a.e('s_movk_i32 s47, 8192')
    a.e('s_branch L_g1_B0')
    def phase(tb, jread, vm, extra=(), last=False, tokj=None):
        ex = list(extra)
        if vm is not None:
            a.e(f's_waitcnt vmcnt({vm})')
        for t in range(7):
            a.e(f's_waitcnt lgkmcnt({12 if not last else 12-2*t})')
            a.e(f'v_mfma_f32_32x32x16_bf16 v[{ACC+16*t}:{ACC+16*t+15}], v[{WF+4*t}:{WF+4*t+3}], v[{TF+4*tb}:{TF+4*tb+3}], v[{ACC+16*t}:{ACC+16*t+15}]')
            if not last:
                for l in rd(jread, t): a.e(l)
                if ex: a.e(ex.pop(0))
        if not last:
            a.e(tok(tb, tokj))
    a.e('L_g1_loop:')
    for half in range(2):
        pb = 4 * (half ^ 1) + 3
        cb = 4 * half
        if half == 1 or True:
            a.e(f's_add_u32 s48, s48, {G1_STG}')
            a.e(f's_cmp_eq_u32 s48, {G1_STG*G1_NS}')
            a.e('s_cselect_b32 s48, 0, s48')
            dma_setup()
            a.e('s_waitcnt vmcnt(11)')
            a.e('s_barrier')
            a.e(f'v_add_u32 v{VR}, s48, v{VL}')
            phase(pb, 0, None, [dma(i) for i in range(4)], tokj=3)
            dma_adv()
            a.e('s_add_u32 s47, s47, 4096')
        if half == 0:
            a.e('L_g1_B0:')
        phase(cb + 0, 1, 15, tokj=0)
        phase(cb + 1, 2, 15, tokj=1)
        phase(cb + 2, 3, 15, tokj=2)
    a.e('s_add_u32 s49, s49, 1')
    a.e('s_cmp_lt_u32 s49, 8')
    a.e('s_cbranch_scc1 L_g1_loop')
    phase(7, None, 11, last=True)
    a.e('s_mov_b32 s50, 0xbfb8aa3b')
    a.e('s_mov_b32 s51, 0xbfb8aa3b')
    a.e('s_mov_b32 s90, 0xffff0000')
    a.e('s_movk_i32 s52, 4096')
    a.e('s_nop 4')
    E = 128
    for t in range(7):
        A = ACC + 16 * t
        T = E + 8 * (t & 1)
        O = E + 16 + 4 * (t & 1)
        if OPT['mimic']:
            for q in range(8):
                a.e(f'v_cvt_pk_bf16_f32 v{T}, v{A+2*q}, v{A+2*q+1}')
                g.unpack(a, A + 2 * q, A + 2 * q + 1, T)
        for q in range(4):
            a.e(f'v_pk_mul_f32 v[{T+2*q}:{T+2*q+1}], v[{A+2*q}:{A+2*q+1}], s[50:51]')
        for q in range(8):
            a.e(f'v_exp_f32 v{T+q}, v{T+q}')
        for q in range(4):
            a.e(f'v_pk_add_f32 v[{T+2*q}:{T+2*q+1}], v[{T+2*q}:{T+2*q+1}], 1.0 op_sel_hi:[1,0]')
        for q in range(8):
            a.e(f'v_rcp_f32 v{T+q}, v{T+q}')
        if not OPT['mimic']:
            for q in range(4):
                a.e(f'v_pk_mul_f32 v[{A+2*q}:{A+2*q+1}], v[{A+2*q}:{A+2*q+1}], v[{A+8+2*q}:{A+8+2*q+1}]')
            for q in range(4):
                a.e(f'v_pk_mul_f32 v[{T+2*q}:{T+2*q+1}], v[{T+2*q}:{T+2*q+1}], v[{A+2*q}:{A+2*q+1}]')
        else:
            a.e('s_nop 0')
            for q in range(4):
                a.e(f'v_pk_mul_f32 v[{T+2*q}:{T+2*q+1}], v[{T+2*q}:{T+2*q+1}], v[{A+2*q}:{A+2*q+1}]')
            for q in range(4):
                a.e(f'v_cvt_pk_bf16_f32 v{A}, v{T+2*q}, v{T+2*q+1}')
                g.unpack(a, T + 2 * q, T + 2 * q + 1, A)
            for q in range(4):
                a.e(f'v_pk_mul_f32 v[{T+2*q}:{T+2*q+1}], v[{T+2*q}:{T+2*q+1}], v[{A+8+2*q}:{A+8+2*q+1}]')
        for q in range(4):
            a.e(f'v_cvt_pk_bf16_f32 v{O+q}, v{T+2*q}, v{T+2*q+1}')
        so = '0' if t < 4 else 's52'
        a.e(f'buffer_store_dwordx4 v[{O}:{O+3}], v{VT}, s[28:31], {so} offen offset:{1024*(t&3)}')
    g.tail(a, name)
    return g.desc(name, 196)

def gen_g2(a):
    g = _imp()
    name = 'g2_kernel'
    g.head(a, name, 256)
    a.e(f's_load_dwordx4 s[4:7], s[0:1], {KA_W2}')
    a.e(f's_load_dwordx2 s[10:11], s[0:1], {KA_WS}')
    a.e('v_lshrrev_b32 v1, 6, v0')
    a.e('v_and_b32 v2, 63, v0')
    a.e('v_readfirstlane_b32 s12, v1')
    a.e('s_and_b32 s13, s2, 7')
    a.e('s_lshr_b32 s14, s2, 3')
    a.e('s_and_b32 s15, s13, 3')
    a.e('s_lshl_b32 s15, s15, 2')
    a.e('s_and_b32 s16, s14, 3')
    a.e('s_add_u32 s15, s15, s16')
    a.e('s_lshr_b32 s16, s13, 2')
    a.e('s_lshl_b32 s16, s16, 3')
    a.e('s_lshr_b32 s17, s14, 2')
    a.e('s_add_u32 s16, s16, s17')
    a.e('s_and_b32 s18, s12, 3')
    a.e('s_lshr_b32 s19, s12, 2')
    a.e('s_lshl_b32 s17, s15, 2')
    a.e('s_add_u32 s17, s17, s18')
    A_, DP = G2_NS - 2, 4
    ACC, WF, TF, HR, DV, VT, VR, VL, VO = 16, 48, 80, 144, 152, 154, 156, 158, 160
    a.e('v_lshrrev_b32 v3, 3, v2')
    a.e('s_lshl_b32 s36, s12, 4')
    a.e('v_add_u32 v3, s36, v3')
    a.e('v_lshlrev_b32 v3, 11, v3')
    a.e('v_bfe_u32 v4, v2, 4, 1')
    a.e('v_lshlrev_b32 v4, 2, v4')
    a.e('v_and_b32 v5, 7, v2')
    a.e('v_xor_b32 v4, v4, v5')
    a.e(f'v_lshl_add_u32 v{DV}, v4, 4, v3')
    a.e(f'v_add_u32 v{DV+1}, {16384-1024}, v{DV}')
    a.e(f'v_lshlrev_b32 v{VT}, 4, v2')
    a.e('v_lshrrev_b32 v4, 5, v2')
    a.e('v_lshlrev_b32 v4, 2, v4')
    a.e('v_bfe_u32 v5, v2, 2, 2')
    a.e('v_add_u32 v4, v4, v5')
    a.e('s_lshl_b32 s36, s19, 6')
    a.e('v_add_u32 v4, s36, v4')
    a.e('v_lshlrev_b32 v4, 7, v4')
    a.e('v_bfe_u32 v5, v2, 4, 1')
    a.e('v_lshl_add_u32 v4, v5, 5, v4')
    a.e('v_and_b32 v5, 3, v2')
    a.e('v_lshl_add_u32 v4, v5, 3, v4')
    a.e('v_bfe_u32 v5, v2, 3, 1')
    a.e(f'v_lshl_add_u32 v{VL}, v5, 6, v4')
    a.e(f'v_xor_b32 v{VL+1}, 64, v{VL}')
    a.e(f'v_mov_b32 v{VR}, v{VL}')
    a.e(f'v_mov_b32 v{VR+1}, v{VL+1}')
    a.e('v_and_b32 v4, 31, v2')
    a.e('v_lshlrev_b32 v4, 11, v4')
    a.e('v_lshrrev_b32 v5, 5, v2')
    a.e(f'v_lshl_add_u32 v{VO}, v5, 3, v4')
    a.e('s_lshl_b32 s53, s17, 16')
    a.e('s_lshl_b32 s36, s16, 7')
    a.e('s_add_u32 s53, s53, s36')
    a.e('s_lshl_b32 s37, s19, 6')
    a.e('s_add_u32 s53, s53, s37')
    a.e('s_lshl_b32 s39, s12, 11')
    a.e('s_mul_i32 s42, s17, 229376')
    a.e('s_waitcnt lgkmcnt(0)')
    g.srd(a, 20, 4, 0, 0, 36)
    a.e('s_sub_u32 s22, 7340032, s36')
    g.srd(a, 24, 10, 229376, WS_HF, 42)
    g.srd(a, 28, 10, 4 * MB, WS_H)
    g.srd(a, 32, 6, 4 * MB)
    def dma_setup():
        a.e('s_add_u32 m0, s39, s46')
    def dma(i):
        return f'buffer_load_dwordx4 v{DV+i}, s[20:23], s45 offen offset:{1024*i} lds'
    def dma_adv():
        a.e('s_add_u32 s45, s45, 262144')
        a.e(f's_add_u32 s46, s46, {G2_STG}')
        a.e(f's_cmp_eq_u32 s46, {G2_STG*G2_NS}')
        a.e('s_cselect_b32 s46, 0, s46')
    def tok(buf, j):
        f = TF + 16 * buf + 4 * j
        return f'buffer_load_dwordx4 v[{f}:{f+3}], v{VT}, s[24:27], s47 offen offset:{1024*j}'
    def rd(j, t):
        f = WF + 8 * j + 4 * t
        return [f'ds_read_b64_tr_b16 v[{f+2*h}:{f+2*h+1}], v{VR+t} offset:{(16*j+8*h)*128}' for h in range(2)]
    for q in range(4):
        a.e(f'buffer_load_dwordx2 v[{HR+2*q}:{HR+2*q+1}], v{VO}, s[28:31], s53 offen offset:{16*q}')
    a.e('s_mov_b32 s45, 0')
    a.e('s_mov_b32 s46, 0')
    a.e('s_lshl_b32 s47, s19, 12')
    assert A_ == DP
    for i in range(-A_, 0):
        dma_setup(); a.e('s_nop 0')
        a.e(dma(0)); a.e(dma(1))
        dma_adv()
        if i - 1 + DP >= 0:
            for j in range(4): a.e(tok((i - 1 + DP) % DP, j))
            a.e('s_add_u32 s47, s47, 8192')
    for r in range(32):
        a.e(f'v_mov_b32 v{ACC+r}, 0')
    a.e('s_mov_b32 s48, 0')
    a.e('s_mov_b32 s49, 0')
    dma_setup()
    a.e(f's_waitcnt vmcnt({6*(A_-1)})')
    a.e('s_barrier')
    a.e(dma(0)); a.e(dma(1))
    dma_adv()
    for j in range(4):
        for t in range(2):
            for l in rd(j, t): a.e(l)
    for j in range(4): a.e(tok(DP - 1, j))
    a.e('s_add_u32 s47, s47, 8192')
    def iteration(buf, last=False):
        if not last:
            a.e(f's_add_u32 s48, s48, {G2_STG}')
            a.e(f's_cmp_eq_u32 s48, {G2_STG*G2_NS}')
            a.e('s_cselect_b32 s48, 0, s48')
            dma_setup()
            a.e(f's_waitcnt vmcnt({6*A_-2})')
            a.e('s_barrier')
            a.e(f'v_add_u32 v{VR}, s48, v{VL}')
            a.e(f'v_add_u32 v{VR+1}, s48, v{VL+1}')
            a.e(dma(0)); a.e(dma(1))
            dma_adv()
        k = 0
        for j in range(4):
            for t in range(2):
                lg = 14 if not last else 14 - 2 * k
                if t == 0:
                    vm = 6 * DP - 1 if not last else 6 * (DP - 1) + 3 - j
                    a.e(f's_waitcnt vmcnt({vm}) lgkmcnt({lg})')
                else:
                    a.e(f's_waitcnt lgkmcnt({lg})')
                k += 1
                f = WF + 8 * j + 4 * t
                tf = TF + 16 * buf + 4 * j
                a.e(f'v_mfma_f32_32x32x16_bf16 v[{ACC+16*t}:{ACC+16*t+15}], v[{f}:{f+3}], v[{tf}:{tf+3}], v[{ACC+16*t}:{ACC+16*t+15}]')
                if not last:
                    for l in rd(j, t): a.e(l)
            if not last:
                a.e(tok(buf, j))
        if not last:
            a.e('s_add_u32 s47, s47, 8192')
    a.e('s_branch L_g2_b0')
    a.e('L_g2_loop:')
    iteration(3)
    a.e('L_g2_b0:')
    for b in range(3):
        iteration(b)
    a.e('s_add_u32 s49, s49, 1')
    a.e('s_cmp_lt_u32 s49, 7')
    a.e('s_cbranch_scc1 L_g2_loop')
    iteration(3, last=True)
    XB = G2_STG * G2_NS
    a.e('s_lshl_b32 s36, s12, 12')
    a.e(f's_add_u32 s36, s36, {XB}')
    a.e(f'v_add_u32 v3, s36, v{VT}')
    a.e('s_xor_b32 s36, s36, 0x4000')
    a.e(f'v_add_u32 v4, s36, v{VT}')
    a.e('s_mov_b32 s90, 0xffff0000')
    a.e('s_cmp_eq_u32 s19, 0')
    a.e('s_nop 7')
    a.e('s_cbranch_scc1 L_g2_k0')
    for q in range(4):
        a.e(f'ds_write_b128 v3, v[{ACC+4*q}:{ACC+4*q+3}] offset:{1024*q}')
    for r in range(16):
        a.e(f'v_mov_b32 v{ACC+r}, v{ACC+16+r}')
    a.e('s_branch L_g2_k1')
    a.e('L_g2_k0:')
    for q in range(4):
        a.e(f'ds_write_b128 v3, v[{ACC+16+4*q}:{ACC+16+4*q+3}] offset:{1024*q}')
    a.e('L_g2_k1:')
    a.e('s_waitcnt lgkmcnt(0)')
    a.e('s_barrier')
    P = 48
    for q in range(4):
        a.e(f'ds_read_b128 v[{P+4*q}:{P+4*q+3}], v4 offset:{1024*q}')
    H = 64
    for q in range(8):
        g.unpack(a, H + 2 * q, H + 2 * q + 1, HR + q)
    for q in range(4):
        a.e(f's_waitcnt lgkmcnt({3-q})')
        for e in range(2):
            x = ACC + 4 * q + 2 * e; y = P + 4 * q + 2 * e; h = H + 4 * q + 2 * e
            a.e(f'v_pk_add_f32 v[{x}:{x+1}], v[{x}:{x+1}], v[{y}:{y+1}]')
            a.e(f'v_cvt_pk_bf16_f32 v{y}, v{x}, v{x+1}')
            g.unpack(a, x, x + 1, y)
            a.e(f'v_pk_add_f32 v[{x}:{x+1}], v[{x}:{x+1}], v[{h}:{h+1}]')
            a.e(f'v_cvt_pk_bf16_f32 v{8+2*q+e}, v{x}, v{x+1}')
        a.e(f'buffer_store_dwordx2 v[{8+2*q}:{8+2*q+1}], v{VO}, s[32:35], s53 offen offset:{16*q}')
    g.tail(a, name)
    return g.desc(name, 164)
```

```python
import sys
from asmlib import *

NAME = 'sequential_preLN__ssm_conv_h3__glu_gated_swiglu__prompt'
MB = 1 << 20
WS_UB, WS_Y2, WS_H, WS_HNF, WS_HF = 0, 4 * MB, 8 * MB, 12 * MB, 16 * MB
WS_SIZE = 256 * MB
KA_Q, KA_K, KA_V, KA_SH, KA_SSMK, KA_D, KA_X, KA_W1, KA_W3, KA_W2, KA_OUT, KA_DBG, KA_WS = [8 * i for i in range(13)]

OPT = dict(mimic=0)

def srd(a, d, p, size, add=0, addreg=None):
    if add or addreg is not None:
        if add:
            a.e(f's_add_u32 s{d}, s{p}, {add:#x}')
            a.e(f's_addc_u32 s{d+1}, s{p+1}, 0')
            if addreg is not None:
                a.e(f's_add_u32 s{d}, s{d}, s{addreg}')
                a.e(f's_addc_u32 s{d+1}, s{d+1}, 0')
        else:
            a.e(f's_add_u32 s{d}, s{p}, s{addreg}')
            a.e(f's_addc_u32 s{d+1}, s{p+1}, 0')
    else:
        a.e(f's_mov_b32 s{d}, s{p}')
        a.e(f's_mov_b32 s{d+1}, s{p+1}')
    a.e(f's_mov_b32 s{d+2}, {size:#x}')
    a.e(f's_mov_b32 s{d+3}, 0x20000')

def head(a, name, nwg):
    a.raw(f'.globl {name}')
    a.raw('.p2align 8')
    a.raw(f'.type {name},@function')
    a.raw(f'{name}:')
    a.e(f's_cmp_ge_u32 s2, {nwg}')
    a.e(f's_cbranch_scc1 L_{name}_end')

def tail(a, name):
    a.e(f'L_{name}_end:')
    a.e('s_endpgm')

def desc(name, vgpr, sgpr=96, agpr=0):
    acc = (vgpr + 3) // 4 * 4
    nfv = acc + agpr if agpr else vgpr
    return f'''.p2align 6
.amdhsa_kernel {name}
  .amdhsa_next_free_vgpr {nfv}
  .amdhsa_next_free_sgpr {sgpr}
  .amdhsa_accum_offset {acc}
  .amdhsa_group_segment_fixed_size 0
  .amdhsa_kernarg_size 104
  .amdhsa_user_sgpr_count 2
  .amdhsa_user_sgpr_kernarg_segment_ptr 1
  .amdhsa_system_sgpr_workgroup_id_x 1
  .amdhsa_float_denorm_mode_32 3
.end_amdhsa_kernel
'''

def unpack(a, dlo, dhi, src, mask='s90'):
    a.e(f'v_lshlrev_b32 v{dlo}, 16, v{src}')
    a.e(f'v_and_b32 v{dhi}, {mask}, v{src}')

def gen_k0(a):
    name = 'k0_kernel'
    head(a, name, 256)
    a.e(f's_load_dwordx4 s[4:7], s[0:1], {KA_K}')
    a.e(f's_load_dwordx2 s[8:9], s[0:1], {KA_SH}')
    a.e(f's_load_dwordx2 s[10:11], s[0:1], {KA_WS}')
    a.e('s_bfe_u32 s12, s2, 0x30003')
    a.e('s_and_b32 s13, s2, 7')
    a.e('s_lshr_b32 s14, s2, 6')
    a.e('s_lshl_b32 s14, s14, 3')
    a.e('s_or_b32 s13, s13, s14')
    a.e('v_and_b32 v1, 15, v0')
    a.e('v_lshrrev_b32 v2, 4, v0')
    a.e('s_lshl_b32 s15, s13, 17')
    a.e('s_lshl_b32 s16, s12, 8')
    a.e('s_add_u32 s15, s15, s16')
    a.e('v_lshlrev_b32 v3, 13, v1')
    a.e('v_lshl_add_u32 v3, v2, 4, v3')
    a.e('v_add_u32 v3, s15, v3')
    a.e('v_add_u32 v4, 0xffffe800, v3')
    a.e('v_add_u32 v5, 0xfffff800, v3')
    a.e('v_add_u32 v6, 0x1000, v3')
    a.e('s_lshl_b32 s16, s12, 10')
    a.e('v_lshlrev_b32 v7, 6, v2')
    a.e('v_add_u32 v7, s16, v7')
    a.e('s_mov_b32 s90, 0xffff0000')
    a.e('s_lshl_b32 s17, s12, 5')
    a.e('s_add_u32 s17, s17, s13')
    a.e('s_lshl_b32 s17, s17, 14')
    a.e('s_add_u32 s17, s17, 120')
    a.e('v_lshlrev_b32 v160, 10, v2')
    a.e('v_lshlrev_b32 v161, 3, v1')
    a.e('v_sub_u32 v160, v160, v161')
    a.e('v_add_u32 v160, s17, v160')
    a.e('s_waitcnt lgkmcnt(0)')
    srd(a, 20, 4, 4 * MB)
    srd(a, 24, 6, 4 * MB)
    srd(a, 28, 8, 8192)
    srd(a, 32, 10, 4 * MB, WS_UB)
    KR, VR, WR, WU, KU, ACC = 8, 36, 52, 68, 100, 164
    for j in range(4):
        a.e(f'buffer_load_dwordx4 v[{WR+4*j}:{WR+4*j+3}], v7, s[28:31], 0 offen offset:{16*j}')
    rows = [(4, 0), (4, 2048), (5, 0), (3, 0), (3, 2048), (6, 0), (6, 2048)]
    for r, (vr, off) in enumerate(rows):
        a.e(f'buffer_load_dwordx4 v[{KR+4*r}:{KR+4*r+3}], v{vr}, s[20:23], 0 offen offset:{off}')
    for r, (vr, off) in enumerate(rows[3:]):
        a.e(f'buffer_load_dwordx4 v[{VR+4*r}:{VR+4*r+3}], v{vr}, s[24:27], 0 offen offset:{off}')
    a.e('s_waitcnt vmcnt(11)')
    for e in range(8):
        unpack(a, WU + 0 * 8 + e, WU + 1 * 8 + e, WR + 2 * e)
        unpack(a, WU + 2 * 8 + e, WU + 3 * 8 + e, WR + 2 * e + 1)
    for r in range(7):
        a.e(f's_waitcnt vmcnt({10-r})')
        for q in range(4):
            unpack(a, KU + 8 * r + 2 * q, KU + 8 * r + 2 * q + 1, KR + 4 * r + q)
        if r >= 3:
            i = r - 3
            for j in range(4):
                for q in range(4):
                    d = ACC + 8 * i + 2 * q
                    k = KU + 8 * (i + 3 - j) + 2 * q
                    w = WU + 8 * j + 2 * q
                    if j == 0:
                        a.e(f'v_pk_mul_f32 v[{d}:{d+1}], v[{k}:{k+1}], v[{w}:{w+1}]')
                    else:
                        a.e(f'v_pk_fma_f32 v[{d}:{d+1}], v[{k}:{k+1}], v[{w}:{w+1}], v[{d}:{d+1}]')
    VU = 8
    for i in range(4):
        a.e(f's_waitcnt vmcnt({3-i})')
        for q in range(4):
            unpack(a, VU + 2 * q, VU + 2 * q + 1, VR + 4 * i + q)
        for q in range(4):
            d = ACC + 8 * i + 2 * q
            a.e(f'v_pk_mul_f32 v[{d}:{d+1}], v[{d}:{d+1}], v[{VU+2*q}:{VU+2*q+1}]')
    O = 52
    for e in range(8):
        a.e(f'v_cvt_pk_bf16_f32 v{O+2*e}, v{ACC+24+e}, v{ACC+16+e}')
        a.e(f'v_cvt_pk_bf16_f32 v{O+2*e+1}, v{ACC+8+e}, v{ACC+e}')
        a.e(f'buffer_store_dwordx2 v[{O+2*e}:{O+2*e+1}], v160, s[32:35], 0 offen offset:{128*e}')
    tail(a, name)
    return desc(name, 196)

KA_REG = 13056
def gen_ka(a):
    name = 'ka_kernel'
    head(a, name, 256)
    a.e(f's_load_dwordx4 s[4:7], s[0:1], {KA_SSMK}')
    a.e(f's_load_dwordx2 s[10:11], s[0:1], {KA_WS}')
    a.e('v_lshrrev_b32 v1, 6, v0')
    a.e('v_and_b32 v2, 63, v0')
    a.e('v_readfirstlane_b32 s12, v1')
    a.e('s_and_b32 s13, s2, 7')
    a.e('s_lshr_b32 s14, s2, 3')
    a.e('s_lshl_b32 s15, s14, 2')
    a.e('s_add_u32 s15, s15, s12')
    a.e('s_lshl_b32 s16, s13, 7')
    a.e('s_add_u32 s16, s16, s15')
    a.e('s_lshl_b32 s17, s13, 5')
    a.e('s_add_u32 s17, s17, s14')
    a.e(f's_mul_i32 s18, s12, {KA_REG}')
    a.e('s_mov_b32 s90, 0xffff0000')
    a.e('v_lshrrev_b32 v3, 3, v2')
    a.e('v_sub_u32 v3, 7, v3')
    a.e('v_lshlrev_b32 v3, 14, v3')
    a.e('v_and_b32 v4, 7, v2')
    a.e('v_lshl_add_u32 v3, v4, 4, v3')
    a.e('s_lshl_b32 s19, s15, 7')
    a.e('v_add_u32 v3, s19, v3')
    a.e('v_lshlrev_b32 v4, 4, v2')
    a.e('s_lshl_b32 s19, s16, 12')
    a.e('s_lshr_b32 s36, s16, 1')
    a.e('s_lshl_b32 s36, s36, 2')
    a.e('s_waitcnt lgkmcnt(0)')
    a.e('s_load_dword s37, s[6:7], s36')
    srd(a, 20, 4, 4096, 0, 19)
    srd(a, 24, 10, 4 * MB, WS_UB)
    srd(a, 28, 10, 4 * MB, WS_Y2)
    KD, KX = 8, 24
    for j in range(4):
        a.e(f'buffer_load_dwordx4 v[{KD+4*j}:{KD+4*j+3}], v4, s[20:23], 0 offen offset:{1024*j}')
        a.e(f'buffer_load_dword v{KX+j}, v4, s[20:23], 0 offen offset:{1024*j+16}')
    a.e('s_lshl_b32 s38, s13, 19')
    for i in range(4):
        a.e(f's_add_u32 s39, s38, {(24-8*i)*16384:#x}')
        a.e(f's_add_u32 m0, s18, {1024*i}')
        a.e('s_nop 0')
        a.e('buffer_load_dwordx4 v3, s[24:27], s39 offen lds')
    a.e('v_and_b32 v5, 15, v2')
    a.e('v_lshrrev_b32 v6, 4, v2')
    a.e('v_mov_b32 v28, 0')
    a.e('v_mov_b32 v29, 0')
    a.e('v_lshlrev_b32 v7, 3, v2')
    a.e('v_add_u32 v7, s18, v7')
    a.e('ds_write_b64 v7, v[28:29] offset:4096')
    a.e('v_min_u32 v30, 7, v2')
    a.e('v_lshlrev_b32 v30, 2, v30')
    a.e('v_add_u32 v30, s18, v30')
    a.e('ds_write_b32 v30, v28 offset:4608')
    a.e('v_add_u32 v31, 1, v5')
    a.e('v_and_b32 v32, 1, v31')
    a.e('v_sub_u32 v31, v31, v32')
    a.e('v_lshl_add_u32 v31, v6, 3, v31')
    a.e('v_lshlrev_b32 v31, 1, v31')
    a.e('v_mul_u32_u24 v32, 4160, v32')
    a.e('v_add3_u32 v31, v31, v32, s18')
    VA = 36
    a.e(f'v_add_u32 v{VA}, 4608, v31')
    a.e(f'v_add_u32 v{VA+1}, {4608+1024}, v31')
    a.e(f'v_add_u32 v{VA+2}, {4608+2048}, v31')
    a.e(f'v_add_u32 v{VA+3}, {4608+3072}, v31')
    VB = 40
    a.e('v_lshlrev_b32 v32, 5, v5')
    a.e('v_lshlrev_b32 v33, 4, v6')
    a.e('v_sub_u32 v33, v33, v32')
    a.e('v_add_u32 v33, s18, v33')
    a.e(f'v_add_u32 v{VB}, 480, v33')
    a.e('v_add_u32 v7, s18, v4')
    ACC = 44
    for r in range(32):
        a.e(f'v_mov_b32 v{ACC+r}, 0')
    T = 76
    for j in range(4):
        a.e(f's_waitcnt vmcnt({4+6-2*j})')
        d = KD + 4 * j
        if j == 0:
            a.e(f'v_readfirstlane_b32 s40, v{d}')
        a.e(f'ds_write_b128 v7, v[{d}:{d+3}] offset:{4608+32+1024*j}')
        for q in range(4):
            hi = d + q + 1 if q < 3 else KX + j
            a.e(f'v_alignbit_b32 v{T+4*j+q}, v{hi}, v{d+q}, 16')
        a.e(f'ds_write_b128 v7, v[{T+4*j}:{T+4*j+3}] offset:{4608+4160+32+1024*j}')
    a.e('s_lshl_b32 s40, s40, 16')
    a.e('v_cmp_le_u32 vcc, 7, v2')
    a.e('v_mov_b32 v32, s40')
    a.e('s_nop 0')
    a.e('v_cndmask_b32 v32, v28, v32, vcc')
    a.e(f'ds_write_b32 v30, v32 offset:{4608+4160}')
    FA = [96, 160]
    FB = [128, 192]
    a.e('s_waitcnt vmcnt(0) lgkmcnt(0)')
    a.e('s_bitcmp1_b32 s16, 0')
    a.e('s_cselect_b32 s41, 0, 16')
    a.e('s_lshl_b32 s37, s37, s41')
    a.e('s_and_b32 s37, s37, 0xffff0000')
    def reads(r, buf):
        L = []
        for x in range(8):
            d = x
            L.append(f'ds_read_b128 v[{FB[buf]+4*d}:{FB[buf]+4*d+3}], v{VB} offset:{512*(7-d)+64*r}')
            mq = x
            o = 128 * (mq & 1) + 16 * r
            f = FA[buf] + 4 * mq
            L.append(f'ds_read2_b32 v[{f}:{f+1}], v{VA+(mq>>1)} offset0:{o} offset1:{o+1}')
            L.append(f'ds_read2_b32 v[{f+2}:{f+3}], v{VA+(mq>>1)} offset0:{o+2} offset1:{o+3}')
        return L
    for l in reads(0, 0):
        a.e(l)
    UE = 8
    for r in range(8):
        buf = r & 1
        nxt = reads(r + 1, buf ^ 1) if r < 7 else []
        if r == 7:
            a.e('v_lshlrev_b32 v32, 5, v5')
            a.e('v_lshl_add_u32 v32, v6, 3, v32')
            a.e(f'v_sub_u32 v34, {4088-3584}, v32')
            a.e('v_add_u32 v34, s18, v34')
            a.e('v_add_u32 v35, s18, v32')
            nxt = [f'ds_read_b64 v[{UE+2*c}:{UE+2*c+1}], v34 offset:{512*(7-c)}' for c in range(8)]
        a.e('s_waitcnt lgkmcnt(0)')
        k = 0
        for mq in range(8):
            for d in range(8 - mq):
                c = mq + d
                fa = FA[buf] + 4 * mq; fb = FB[buf] + 4 * d
                a.e(f'v_mfma_f32_16x16x32_bf16 v[{ACC+4*c}:{ACC+4*c+3}], v[{fa}:{fa+3}], v[{fb}:{fb+3}], v[{ACC+4*c}:{ACC+4*c+3}]')
                if k < len(nxt):
                    a.e(nxt[k]); k += 1
    a.e('s_waitcnt lgkmcnt(0)')
    X = 96
    for c in range(8):
        unpack(a, X + 4 * c + 3, X + 4 * c + 2, UE + 2 * c)
        unpack(a, X + 4 * c + 1, X + 4 * c + 0, UE + 2 * c + 1)
    for c in range(8):
        for r in range(4):
            a.e(f'v_fma_f32 v{X+4*c+r}, v{X+4*c+r}, s37, v{ACC+4*c+r}')
        a.e(f'v_cvt_pk_bf16_f32 v{UE+2*c}, v{X+4*c}, v{X+4*c+1}')
        a.e(f'v_cvt_pk_bf16_f32 v{UE+2*c+1}, v{X+4*c+2}, v{X+4*c+3}')
        a.e(f'ds_write_b64 v35, v[{UE+2*c}:{UE+2*c+1}] offset:{4608+512*c}')
    a.e('v_lshlrev_b32 v32, 2, v0')
    a.e('v_lshrrev_b32 v33, 2, v0')
    a.e('v_lshlrev_b32 v33, 14, v33')
    a.e('v_and_b32 v34, 3, v0')
    a.e('v_lshl_add_u32 v33, v34, 4, v33')
    a.e('s_lshl_b32 s42, s17, 6')
    a.e('s_mov_b32 s43, 0x05040100')
    a.e('s_mov_b32 s44, 0x07060302')
    a.e('s_waitcnt lgkmcnt(0)')
    a.e('s_barrier')
    Y = 96
    for P in range(4):
        for ch in range(4):
            a.e(f'ds_read_b32 v{Y+4*P+ch}, v32 offset:{ch*KA_REG+4608+1024*P}')
    O = 128
    for P in range(4):
        a.e(f's_waitcnt lgkmcnt({12-4*P})')
        y = Y + 4 * P; o = O + 4 * P
        a.e(f'v_perm_b32 v{o}, v{y+1}, v{y}, s43')
        a.e(f'v_perm_b32 v{o+1}, v{y+3}, v{y+2}, s43')
        a.e(f'v_perm_b32 v{o+2}, v{y+1}, v{y}, s44')
        a.e(f'v_perm_b32 v{o+3}, v{y+3}, v{y+2}, s44')
        a.e(f'buffer_store_dwordx4 v[{o}:{o+3}], v33, s[28:31], s42 offen')
        if P < 3:
            a.e(f's_add_u32 s42, s42, {64*16384:#x}')
    tail(a, name)
    return desc(name, 224)

def wave_sum(a, v, s, tmp):
    for sh in (1, 2, 4, 8):
        a.e('s_nop 1')
        a.e(f'v_add_f32_dpp v{v}, v{v}, v{v} row_shr:{sh} row_mask:0xf bank_mask:0xf bound_ctrl:0')
    a.e('s_nop 1')
    a.e(f'v_add_f32_dpp v{v}, v{v}, v{v} row_bcast:15 row_mask:0xa bank_mask:0xf')
    a.e('s_nop 1')
    a.e(f'v_add_f32_dpp v{v}, v{v}, v{v} row_bcast:31 row_mask:0xc bank_mask:0xf')
    a.e('s_nop 0')
    a.e(f'v_readlane_b32 s{s}, v{v}, 63')

def rbf(a, v):
    a.e(f'v_cvt_pk_bf16_f32 v{v}, v{v}, v{v}')
    a.e(f'v_and_b32 v{v}, s90, v{v}')

def ln_stats(a, X, T, M, R):
    for q in range(4):
        a.e(f'v_pk_add_f32 v[{T+2*q}:{T+2*q+1}], v[{X+4*q}:{X+4*q+1}], v[{X+4*q+2}:{X+4*q+3}]')
    a.e(f'v_pk_add_f32 v[{T}:{T+1}], v[{T}:{T+1}], v[{T+2}:{T+3}]')
    a.e(f'v_pk_add_f32 v[{T+4}:{T+5}], v[{T+4}:{T+5}], v[{T+6}:{T+7}]')
    a.e(f'v_pk_add_f32 v[{T}:{T+1}], v[{T}:{T+1}], v[{T+4}:{T+5}]')
    a.e(f'v_add_f32 v{T}, v{T}, v{T+1}')
    wave_sum(a, T, 40, None)
    a.e('s_nop 1')
    a.e(f'v_mul_f32 v{M}, s40, v{M+2}')
    a.e(f'v_mov_b32 v{M+1}, v{M}')
    for q in range(8):
        a.e(f'v_pk_add_f32 v[{T+2*q}:{T+2*q+1}], v[{X+2*q}:{X+2*q+1}], v[{M}:{M+1}] neg_lo:[0,1] neg_hi:[0,1]')
    a.e(f'v_pk_mul_f32 v[{R}:{R+1}], v[{T}:{T+1}], v[{T}:{T+1}]')
    a.e(f'v_pk_mul_f32 v[{T}:{T+1}], v[{T+2}:{T+3}], v[{T+2}:{T+3}]')
    for q in range(2, 8, 2):
        a.e(f'v_pk_fma_f32 v[{R}:{R+1}], v[{T+2*q}:{T+2*q+1}], v[{T+2*q}:{T+2*q+1}], v[{R}:{R+1}]')
        a.e(f'v_pk_fma_f32 v[{T}:{T+1}], v[{T+2*q+2}:{T+2*q+3}], v[{T+2*q+2}:{T+2*q+3}], v[{T}:{T+1}]')
    a.e(f'v_pk_add_f32 v[{T}:{T+1}], v[{T}:{T+1}], v[{R}:{R+1}]')
    a.e(f'v_add_f32 v{T}, v{T}, v{T+1}')
    rbf(a, M)
    wave_sum(a, T, 41, None)
    a.e(f'v_mov_b32 v{M+1}, v{M}')
    a.e('s_nop 0')
    a.e(f'v_mul_f32 v{R}, s41, v{M+2}')
    rbf(a, R)
    a.e(f'v_add_f32 v{R}, 0x3727c5ac, v{R}')
    rbf(a, R)
    a.e(f'v_sqrt_f32 v{R}, v{R}')
    a.e('s_nop 0')
    rbf(a, R)
    a.e(f'v_rcp_f32 v{R}, v{R}')
    a.e('s_nop 0')
    a.e(f'v_mov_b32 v{R+1}, v{R}')

def gen_kb(a):
    name = 'kb_kernel'
    head(a, name, 256)
    a.e(f's_load_dwordx2 s[4:5], s[0:1], {KA_Q}')
    a.e(f's_load_dwordx2 s[10:11], s[0:1], {KA_WS}')
    a.e('v_lshrrev_b32 v1, 6, v0')
    a.e('v_and_b32 v2, 63, v0')
    a.e('v_readfirstlane_b32 s12, v1')
    a.e('s_mov_b32 s90, 0xffff0000')
    a.e('v_lshlrev_b32 v3, 4, v2')
    a.e('v_lshlrev_b32 v4, 7, v2')
    a.e('v_add_u32 v5, 0x2000, v4')
    a.e('s_lshl_b32 s13, s2, 3')
    a.e('s_add_u32 s13, s13, s12')
    a.e('s_lshl_b32 s14, s13, 11')
    a.e('s_lshl_b32 s15, s2, 14')
    a.e('s_lshl_b32 s16, s12, 3')
    a.e('s_add_u32 s15, s15, s16')
    a.e('s_lshr_b32 s16, s13, 5')
    a.e('s_lshl_b32 s16, s16, 16')
    a.e('s_and_b32 s17, s13, 31')
    a.e('s_lshl_b32 s17, s17, 4')
    a.e('s_add_u32 s16, s16, s17')
    a.e('s_add_u32 s17, s16, 0x8000')
    a.e('v_lshlrev_b32 v6, 9, v2')
    a.e('s_waitcnt lgkmcnt(0)')
    srd(a, 20, 4, 4 * MB)
    srd(a, 24, 10, 4 * MB, WS_Y2)
    srd(a, 28, 10, 4 * MB, WS_H)
    srd(a, 32, 10, 4 * MB, WS_HNF)
    XR, YR, X, Y, T, M, R = 8, 16, 24, 40, 56, 72, 76
    a.e(f'buffer_load_dwordx4 v[{XR}:{XR+3}], v3, s[20:23], s14 offen')
    a.e(f'buffer_load_dwordx4 v[{XR+4}:{XR+7}], v3, s[20:23], s14 offen offset:1024')
    a.e(f'buffer_load_dwordx2 v[{YR}:{YR+1}], v4, s[24:27], s15 offen')
    a.e(f'buffer_load_dwordx2 v[{YR+2}:{YR+3}], v4, s[24:27], s15 offen offset:64')
    a.e(f'buffer_load_dwordx2 v[{YR+4}:{YR+5}], v5, s[24:27], s15 offen')
    a.e(f'buffer_load_dwordx2 v[{YR+6}:{YR+7}], v5, s[24:27], s15 offen offset:64')
    a.e(f'v_mov_b32 v{M+2}, 0x3a800000')
    a.e('s_waitcnt vmcnt(4)')
    for q in range(8):
        unpack(a, X + 2 * q, X + 2 * q + 1, XR + q)
    ln_stats(a, X, T, M, R)
    for q in range(8):
        a.e(f'v_pk_add_f32 v[{T+2*q}:{T+2*q+1}], v[{X+2*q}:{X+2*q+1}], v[{M}:{M+1}] neg_lo:[0,1] neg_hi:[0,1]')
    for q in range(8):
        a.e(f'v_pk_mul_f32 v[{T+2*q}:{T+2*q+1}], v[{T+2*q}:{T+2*q+1}], v[{R}:{R+1}]')
    a.e('s_waitcnt vmcnt(0)')
    for q in range(8):
        unpack(a, Y + 2 * q, Y + 2 * q + 1, YR + q)
    for q in range(8):
        a.e(f'v_pk_fma_f32 v[{X+2*q}:{X+2*q+1}], v[{T+2*q}:{T+2*q+1}], v[{Y+2*q}:{Y+2*q+1}], v[{X+2*q}:{X+2*q+1}]')
    for q in range(8):
        a.e(f'v_cvt_pk_bf16_f32 v{XR+q}, v{X+2*q}, v{X+2*q+1}')
    a.e(f'buffer_store_dwordx4 v[{XR}:{XR+3}], v3, s[28:31], s14 offen')
    a.e(f'buffer_store_dwordx4 v[{XR+4}:{XR+7}], v3, s[28:31], s14 offen offset:1024')
    for q in range(8):
        unpack(a, X + 2 * q, X + 2 * q + 1, XR + q)
    ln_stats(a, X, T, M, R)
    for q in range(8):
        a.e(f'v_pk_add_f32 v[{T+2*q}:{T+2*q+1}], v[{X+2*q}:{X+2*q+1}], v[{M}:{M+1}] neg_lo:[0,1] neg_hi:[0,1]')
    for q in range(8):
        a.e(f'v_pk_mul_f32 v[{T+2*q}:{T+2*q+1}], v[{T+2*q}:{T+2*q+1}], v[{R}:{R+1}]')
    for q in range(8):
        a.e(f'v_cvt_pk_bf16_f32 v{YR+q}, v{T+2*q}, v{T+2*q+1}')
    a.e(f'buffer_store_dwordx4 v[{YR}:{YR+3}], v6, s[32:35], s16 offen')
    a.e(f'buffer_store_dwordx4 v[{YR+4}:{YR+7}], v6, s[32:35], s17 offen')
    tail(a, name)
    return desc(name, 80)

from gemms import gen_g1, gen_g2, G1_LDS, G2_LDS

def build(kernels=None):
    a = Asm()
    hdr = open('cdna_kernels/' + NAME + '.s.ref').read().split('\n')
    cm = [l for l in hdr if l.startswith(';') and '@launch' not in l and 'Override launch' not in l and 'grid=ceil' not in l]
    launches = [
        ('k0_kernel', 256, 256, 0, gen_k0),
        ('ka_kernel', 256, 256, 4 * KA_REG, gen_ka),
        ('kb_kernel', 256, 512, 0, gen_kb),
        ('g1_kernel', 256, 512, G1_LDS, gen_g1),
        ('g2_kernel', 256, 512, G2_LDS, gen_g2),
    ]
    if kernels:
        launches = [l for l in launches if l[0] in kernels]
    out = '\n'.join(cm) + '\n'
    for n, g, b, lds, _ in launches:
        out += f'; @launch kernel={n} grid=({g},1,1) block=({b},1,1) lds={lds}\n'
    a.raw('.amdgcn_target "amdgcn-amd-amdhsa--gfx950"')
    a.raw('.text')
    descs = []
    done = set()
    for n, g, b, lds, fn in launches:
        if n in done: continue
        done.add(n)
        descs.append(fn(a))
    body = a.text()
    errs = check_hazards(body)
    for n in done:
        errs += check_waits(body, n)
    for e in errs:
        print(e, file=sys.stderr)
    out += body + '.section .rodata,"a"\n' + ''.join(descs)
    return out, errs

if __name__ == '__main__':
    outp = sys.argv[1] if len(sys.argv) > 1 else 'cdna_kernels/' + NAME + '.s'
    for kv in sys.argv[2:]:
        k, v = kv.split('=')
        OPT[k] = int(v)
    import gemms
    gemms.OPT.update(OPT)
    t, errs = build()
    open(outp, 'w').write(t)
    print('written', outp, len(t), 'bytes;', len(errs), 'checker errors')
```

```python
from asmlib import *
OPT = dict(mimic=0)
MB = 1 << 20
WS_UB, WS_Y2, WS_H, WS_HNF, WS_HF = 0, 4 * MB, 8 * MB, 12 * MB, 16 * MB
KA_Q, KA_K, KA_V, KA_SH, KA_SSMK, KA_D, KA_X, KA_W1, KA_W3, KA_W2, KA_OUT, KA_DBG, KA_WS = [8 * i for i in range(13)]

G1_STG = 32768
G1_NS = 4
G1_LDS = G1_STG * G1_NS
G2_STG = 32768
G2_LDS = 163840
WS_XP, WS_FLG = 32 * MB, 40 * MB

def _imp():
    import gen
    return gen

def gen_g1(a):
    g = _imp()
    TM = OPT.get('tm', 2)
    NW = 16 // TM
    DPW = 32 // NW
    name = 'g1_kernel'
    g.head(a, name, 256)
    a.e(f's_load_dwordx4 s[4:7], s[0:1], {KA_W1}')
    a.e(f's_load_dwordx2 s[10:11], s[0:1], {KA_WS}')
    a.e('v_lshrrev_b32 v1, 6, v0')
    a.e('v_and_b32 v2, 63, v0')
    a.e('v_readfirstlane_b32 s12, v1')
    a.e('s_and_b32 s13, s2, 7')
    a.e('s_lshr_b32 s14, s2, 3')
    a.e('s_and_b32 s15, s13, 1')
    a.e('s_lshl_b32 s15, s15, 2')
    a.e('s_and_b32 s16, s14, 3')
    a.e('s_add_u32 s15, s15, s16')
    a.e('s_lshr_b32 s16, s13, 1')
    a.e('s_lshl_b32 s16, s16, 3')
    a.e('s_lshr_b32 s17, s14, 2')
    a.e('s_add_u32 s16, s16, s17')
    a.e(f's_mul_i32 s17, s15, {NW}')
    a.e('s_add_u32 s17, s17, s12')
    a.e(f's_and_b32 s18, s12, {NW//2-1}')
    a.e(f's_lshr_b32 s19, s12, {(NW//2).bit_length()-1}')
    a.e('s_and_b32 s53, s16, 1')
    a.e('s_lshl_b32 s54, s53, 1')
    if TM == 2:
        ACC, FR, WF, TF, DV, VT, VR, VL, NV = 16, 'v', 128, 156, 188, 192, 193, 194, 196
        ND = 4
        NA = 0
    else:
        ACC, FR, WF, TF, DV, VT, VR, VL, NV = 32, 'a', 0, 28, 8, 16, 17, 18, 256
        ND = 4
        NA = 28 + 16 * ND
    a.e(f'v_lshlrev_b32 v{VT}, 4, v2')
    a.e(f's_mul_i32 s42, s17, {TM*32768}')
    a.e('s_mul_i32 s41, s16, 224')
    a.e(f's_mul_i32 s36, s18, {64*DPW}')
    a.e('v_add_u32 v3, s36, v2')
    a.e('s_movk_i32 s37, 547')
    a.e('s_movk_i32 s38, 4682')
    a.e('s_movk_i32 s40, 7168')
    a.e('s_movk_i32 s55, 960')
    T0 = 24 if TM == 4 else 8
    a.e(f'v_mov_b32 v{T0}, 0x80000000')
    for i in range(DPW):
        a.e(f'v_add_u32 v4, {64*i}, v3')
        a.e('v_mul_u32_u24 v5, s37, v4')
        a.e('v_lshrrev_b32 v5, 16, v5')
        a.e('v_mul_u32_u24 v6, 120, v5')
        a.e('v_sub_u32 v6, v4, v6')
        a.e('v_mul_u32_u24 v7, s38, v6')
        a.e('v_lshrrev_b32 v7, 16, v7')
        a.e('v_lshl_add_u32 v5, v5, 3, v7')
        a.e('v_mul_u32_u24 v7, 14, v7')
        a.e('v_sub_u32 v7, v6, v7')
        a.e('v_add_u32 v7, s54, v7')
        a.e(f'v_subrev_u32 v{T0+1}, 14, v7')
        a.e(f'v_min_u32 v7, v7, v{T0+1}')
        a.e('v_mul_u32_u24 v5, s40, v5')
        a.e('v_lshl_add_u32 v5, v7, 4, v5')
        a.e(f'v_subrev_u32 v5, {1024*(i&3)}, v5')
        a.e('v_cmp_gt_u32 vcc, 112, v6')
        a.e('v_cmp_gt_u32 s[56:57], s55, v4')
        a.e('s_nop 0')
        a.e('s_and_b64 vcc, vcc, s[56:57]')
        a.e(f'v_cndmask_b32 v{DV+i}, v{T0}, v5, vcc')
    a.e('s_lshl_b32 s39, s19, 14')
    a.e(f's_mul_i32 s40, s18, {1024*DPW}')
    a.e('s_add_u32 s39, s39, s40')
    a.e('s_waitcnt lgkmcnt(0)')
    a.e('s_cmp_eq_u32 s19, 0')
    a.e('s_cselect_b32 s4, s4, s6')
    a.e('s_cselect_b32 s5, s5, s7')
    g.srd(a, 20, 4, 0, 0, 41)
    a.e('s_sub_u32 s22, 7340032, s41')
    g.srd(a, 24, 10, TM * 32768, WS_HNF, 42)
    def m0set(i):
        return f's_add_u32 m0, s46, {4096*(i//4)}' if i else 's_mov_b32 m0, s46'
    def dma(i):
        return f'buffer_load_dwordx4 v{DV+i}, s[20:23], s45 offen offset:{1024*(i&3)} lds'
    def dma_adv():
        return ['s_add_u32 s45, s45, 458752', f's_add_u32 s46, s46, {G1_STG}', f's_and_b32 s46, s46, {G1_STG*G1_NS-1:#x}']
    KB = TM * 1024
    def tok(buf, tm, j):
        f = TF + 4 * (TM * buf + tm)
        off = tm * 1024 + (j * KB if TM == 2 else 0)
        return f'buffer_load_dwordx4 {FR}[{f}:{f+3}], v{VT}, s[24:27], s47 offen offset:{off}'
    def tok_adv(j):
        if TM == 2:
            return ['s_add_u32 s47, s47, 4096'] if j == 1 else []
        return ['s_add_u32 s47, s47, 4096']
    def rd(ph, t):
        j, mat = ph >> 1, ph & 1
        return [f'ds_read_b64_tr_b16 {FR}[{WF+4*t+2*h}:{WF+4*t+2*h+1}], v{VR} offset:{7680*j+896*h+32*t+16384*mat}' for h in range(2)]
    dph = [list(range(DPW))[i*DPW//4:(i+1)*DPW//4] for i in range(4)] if OPT.get('dspread', 1) else [list(range(DPW)), [], [], []]
    tph = {0: list(range(TM//2, TM)), 1: list(range(0, TM//2)), 2: list(range(TM//2, TM)), 3: list(range(0, TM//2))}
    def kof(s_, P): return 2 * s_ + (-1, 0, 0, 1)[P]
    ev = []
    marks = {}
    for s_ in range(-4, 6):
        for P in range(4):
            marks[(s_, P)] = len(ev)
            dl = [('D', s_ + 2, i) for i in dph[P]]
            tl = [('T', kof(s_, P) + ND - 1, tm) for tm in tph[P]]
            ev += dl + tl
    def younger(tag, at):
        last = max(i for i, e in enumerate(ev) if e[:2] == tag)
        assert last < marks[at], (tag, at)
        return marks[at] - last - 1
    vm_bar = younger(('D', 4), (4, 0))
    vm_p1 = younger(('T', 8), (4, 1))
    vm_p3 = younger(('T', 9), (4, 3))
    assert vm_bar == younger(('D', 5), (5, 0))
    a.e('s_mov_b32 s45, 0')
    a.e('s_mov_b32 s46, s39')
    a.e('s_mov_b32 s47, 0')
    pro = [e for e in ev[:marks[(0, 0)]] if e[1] >= 0]
    pro0 = [e for e in ev[marks[(0, 0)]:marks[(0, 1)]]]
    def emit_ev(e):
        if e[0] == 'D':
            if e[2] % 4 == 0:
                a.e(m0set(e[2])); a.e('s_nop 0')
            a.e(dma(e[2]))
            if e[2] == DPW - 1:
                for l in dma_adv(): a.e(l)
        else:
            a.e(tok(e[1] % ND, e[2], e[1] & 1))
            if e[2] == TM - 1:
                for l in tok_adv(e[1] & 1): a.e(l)
    for e in pro: emit_ev(e)
    lastD0 = max(i for i, e in enumerate(pro) if e[:2] == ('D', 0))
    a.e('v_lshrrev_b32 v4, 4, v2')
    a.e('v_mul_u32_u24 v4, 1920, v4')
    a.e('v_bfe_u32 v6, v2, 2, 2')
    a.e('v_mul_u32_u24 v5, 224, v6')
    a.e('v_and_b32 v6, 3, v2')
    a.e('v_lshl_add_u32 v5, v6, 3, v5')
    a.e(f'v_add_u32 v{VL}, v4, v5')
    a.e(f'v_mov_b32 v{VR}, v{VL}')
    a.e('s_mul_i32 s43, s16, 7')
    a.e('s_add_u32 s43, s43, s53')
    a.e('s_lshl_b32 s43, s43, 9')
    a.e('s_movk_i32 s44, 3072')
    a.e('s_cmp_eq_u32 s53, 0')
    a.e('s_cselect_b32 s44, s44, 0xfffffc08')
    a.e('s_add_u32 s44, s44, s43')
    a.e(f's_mul_i32 s55, s17, {TM*114688}')
    g.srd(a, 28, 10, TM * 114688, WS_HF, 55)
    for r in range(56 * TM):
        a.e(f'v_mov_b32 v{ACC+r}, 0')
    a.e('s_mov_b32 s48, 0')
    a.e('s_mov_b32 s49, 0')
    g.stamp(a, 1)
    a.e(f's_waitcnt vmcnt({len(pro)-lastD0-1})')
    a.e('s_barrier')
    g.stamp(a, 2)
    for t in range(7):
        for l in rd(0, t): a.e(l)
    for e in pro0: emit_ev(e)
    a.e('s_branch L_g1_P1')
    def phase(P, kbuf, last=False):
        mat = (P + 1) & 1
        fill = []
        if not last:
            for i in dph[P]:
                if i % 4 == 0: fill.append(m0set(i))
                fill.append(dma(i))
                if i == DPW - 1: fill += dma_adv()
            par = (1, 0, 0, 1)[P]
            kj = (par + ND - 1) & 1
            for tm in tph[P]:
                fill.append(tok((kbuf - 1) % ND, tm, kj))
                if tm == TM - 1: fill += tok_adv(kj)
        per = [fill[i*len(fill)//7:(i+1)*len(fill)//7] for i in range(7)]
        for t in range(7):
            X = (rd(P, (t - 1) % 7) if False else [])
            a.e(f's_waitcnt lgkmcnt({12 if not last else 12-2*t})')
            post = (rd(P, t) if not last else [])
            pre = list(per[t])
            for tm in range(TM):
                c = ACC + 4 * ((mat * 7 + t) * TM + tm)
                tf = TF + 4 * (TM * kbuf + tm)
                a.e(f'v_mfma_f32_16x16x32_bf16 v[{c}:{c+3}], {FR}[{WF+4*t}:{WF+4*t+3}], {FR}[{tf}:{tf+3}], v[{c}:{c+3}]')
                if tm < TM - 1:
                    while pre:
                        x = pre.pop(0); a.e(x)
                        if x.startswith('buffer'): break
            for x in post: a.e(x)
            for x in pre: a.e(x)
    a.e('L_g1_loop:')
    for half in range(2):
        kb = 2 * half
        a.e(f's_add_u32 s48, s48, {G1_STG}')
        a.e(f's_and_b32 s48, s48, {G1_STG*G1_NS-1:#x}')
        a.e(f's_waitcnt vmcnt({vm_bar})')
        a.e('s_barrier')
        a.e(f'v_add_u32 v{VR}, s48, v{VL}')
        phase(0, (kb - 1) % ND)
        if half == 0:
            a.e('L_g1_P1:')
        a.e(f's_waitcnt vmcnt({vm_p1})')
        phase(1, kb)
        phase(2, kb)
        a.e(f's_waitcnt vmcnt({vm_p3})')
        phase(3, kb + 1)
    a.e('s_add_u32 s49, s49, 1')
    a.e('s_cmp_lt_u32 s49, 8')
    a.e('s_cbranch_scc1 L_g1_loop')
    phase(0, 3, last=True)
    g.stamp(a, 3)
    a.e('s_mov_b32 s50, 0xbfb8aa3b')
    a.e('s_mov_b32 s51, 0xbfb8aa3b')
    a.e('s_nop 4')
    E = 128 if TM == 2 else 0
    k = 0
    for tm in range(TM):
        for u in range(4):
            T = E + 8 * (k & 1) if TM == 2 else (0, 8)[k & 1]
            O = E + 16 + 4 * (k & 1) if TM == 2 else (20, 24)[k & 1]
            k += 1
            tiles = [2 * u, 2 * u + 1] if u < 3 else [6]
            gs = []; us = []
            for t in tiles:
                gs += [ACC + 4 * (t * TM + tm), ACC + 4 * (t * TM + tm) + 2]
                us += [ACC + 4 * ((7 + t) * TM + tm), ACC + 4 * ((7 + t) * TM + tm) + 2]
            n = len(gs)
            for q in range(n):
                a.e(f'v_pk_mul_f32 v[{T+2*q}:{T+2*q+1}], v[{gs[q]}:{gs[q]+1}], s[50:51]')
            for q in range(2 * n):
                a.e(f'v_exp_f32 v{T+q}, v{T+q}')
            for q in range(n):
                a.e(f'v_pk_add_f32 v[{T+2*q}:{T+2*q+1}], v[{T+2*q}:{T+2*q+1}], 1.0 op_sel_hi:[1,0]')
            for q in range(2 * n):
                a.e(f'v_rcp_f32 v{T+q}, v{T+q}')
            for q in range(n):
                a.e(f'v_pk_mul_f32 v[{gs[q]}:{gs[q]+1}], v[{gs[q]}:{gs[q]+1}], v[{us[q]}:{us[q]+1}]')
            for q in range(n):
                a.e(f'v_pk_mul_f32 v[{T+2*q}:{T+2*q+1}], v[{T+2*q}:{T+2*q+1}], v[{gs[q]}:{gs[q]+1}]')
            for q in range(n):
                a.e(f'v_cvt_pk_bf16_f32 v{O+q}, v{T+2*q}, v{T+2*q+1}')
            fl = OPT.get('g1st', '')
            if u < 3:
                a.e(f'buffer_store_dwordx4 v[{O}:{O+3}], v{VT}, s[28:31], s43 offen offset:{1024*u}' + g.sf())
            else:
                a.e(f'buffer_store_dwordx2 v[{O}:{O+1}], v{VT}, s[28:31], s44 offen' + g.sf())
        if tm < TM - 1:
            a.e('s_add_u32 s43, s43, 114688')
            a.e('s_add_u32 s44, s44, 114688')
    g.stamp(a, 4)
    g.stamp_out(a, 3, 6, 12)
    g.tail(a, name)
    return g.desc(name, NV, agpr=NA)

def gen_g2(a):
    g = _imp()
    name = 'g2_kernel'
    g.head(a, name, 256)
    a.e(f's_load_dwordx4 s[4:7], s[0:1], {KA_W2}')
    a.e(f's_load_dwordx2 s[10:11], s[0:1], {KA_WS}')
    a.e('v_lshrrev_b32 v1, 6, v0')
    a.e('v_and_b32 v2, 63, v0')
    a.e('v_readfirstlane_b32 s12, v1')
    a.e('s_and_b32 s13, s2, 1')
    a.e('s_lshr_b32 s14, s2, 3')
    a.e('s_bfe_u32 s15, s2, 0x20001')
    a.e('s_lshl_b32 s15, s15, 2')
    a.e('s_and_b32 s16, s14, 3')
    a.e('s_add_u32 s15, s15, s16')
    a.e('s_lshr_b32 s16, s14, 2')
    a.e('s_and_b32 s18, s12, 3')
    a.e('s_lshr_b32 s19, s12, 2')
    ND = 8
    ACC, WF, TF, R0, DV, VT, HR, VO = 16, 80, 112, 176, 192, 196, 198, 206
    a.e(f'v_lshlrev_b32 v{VT}, 4, v2')
    a.e('v_lshrrev_b32 v3, 4, v2')
    a.e('v_bfe_u32 v4, v2, 1, 3')
    a.e('v_xor_b32 v4, v4, v3')
    a.e('v_and_b32 v5, 1, v2')
    a.e('v_lshlrev_b32 v5, 4, v5')
    a.e('v_lshl_add_u32 v5, v4, 5, v5')
    a.e('s_lshl_b32 s36, s12, 4')
    a.e('v_add_u32 v6, s36, v3')
    a.e('v_lshlrev_b32 v6, 11, v6')
    a.e(f'v_add_u32 v{DV}, v5, v6')
    a.e('v_xor_b32 v5, 128, v5')
    a.e(f'v_add_u32 v{DV+2}, {16384-2048}, v{DV}')
    a.e(f'v_add_u32 v6, {8192-1024}, v6')
    a.e(f'v_add_u32 v{DV+1}, v5, v6')
    a.e(f'v_add_u32 v{DV+3}, {16384-2048}, v{DV+1}')
    a.e('s_lshl_b32 s17, s15, 3')
    a.e('s_lshl_b32 s36, s18, 1')
    a.e('s_add_u32 s17, s17, s36')
    a.e('s_add_u32 s17, s17, s19')
    a.e('s_mul_i32 s36, s13, 56')
    a.e('s_lshl_b32 s37, s19, 1')
    a.e('s_add_u32 s36, s36, s37')
    a.e('s_lshl_b32 s36, s36, 10')
    a.e('s_mul_i32 s42, s17, 114688')
    a.e('s_add_u32 s42, s42, s36')
    a.e('s_xor_b32 s37, s17, 1')
    a.e('s_mul_i32 s43, s37, 114688')
    a.e('s_add_u32 s43, s43, s36')
    a.e('s_lshl_b32 s38, s19, 11')
    a.e('s_sub_u32 s38, 57344, s38')
    a.e('s_mul_i32 s40, s13, 3670016')
    a.e('s_lshl_b32 s41, s16, 8')
    a.e('s_add_u32 s40, s40, s41')
    a.e('s_lshl_b32 s39, s12, 12')
    a.e('s_waitcnt lgkmcnt(0)')
    g.srd(a, 20, 4, 0, 0, 40)
    a.e('s_sub_u32 s22, 3670016, s41')
    g.srd(a, 24, 10, 0, WS_HF, 42)
    a.e('s_mov_b32 s26, s38')
    g.srd(a, 28, 10, 0, WS_HF, 43)
    a.e('s_mov_b32 s30, s38')
    def m0set(slot):
        return f's_add_u32 m0, s39, {G2_STG*slot}' if slot else 's_mov_b32 m0, s39'
    def dma(i):
        return f'buffer_load_dwordx4 v{DV+i}, s[20:23], s45 offen offset:{1024*i} lds'
    def tok(k, tm):
        f = TF + 8 * (k % ND) + 4 * tm
        return f'buffer_load_dwordx4 v[{f}:{f+3}], v{VT}, s[{24+4*tm}:{27+4*tm}], s47 offen offset:{1024*(k&1)}'
    def rd(slot, j, t):
        f = WF + 4 * t
        return [f'ds_read_b64_tr_b16 v[{f+2*h}:{f+2*h+1}], v{R0+8*(slot>>1)+t} offset:{32768*(slot&1)+8192*j+4096*h}' for h in range(2)]
    ev = []; marks = {}
    for s_ in range(-5, 8):
        for P in range(2):
            marks[(s_, P)] = len(ev)
            k = 2 * s_ - 1 + P
            ev += [('D', s_ + 2, 2 * P), ('T', k + ND - 1, 0), ('D', s_ + 2, 2 * P + 1), ('T', k + ND - 1, 1)]
    def younger(tag, at):
        last = max(i for i, e in enumerate(ev) if e[:2] == tag)
        assert last < marks[at], (tag, at)
        return marks[at] - last - 1
    vm_bar = min(younger(('D', 6), (6, 0)), younger(('T', 11), (6, 0)))
    vm_p1 = younger(('T', 12), (6, 1))
    def ev_ins(e):
        L = []
        if e[0] == 'D':
            if e[2] == 0: L.append(m0set(e[1] % 4))
            L.append(dma(e[2]))
            if e[2] == 3: L.append('s_add_u32 s45, s45, 262144')
        else:
            L.append(tok(e[1], e[2]))
            if e[2] == 1 and (e[1] & 1): L.append('s_add_u32 s47, s47, 4096')
        return L
    a.e('s_mov_b32 s45, 0')
    a.e('s_mov_b32 s47, 0')
    pro = [e for e in ev[:marks[(0, 0)]] if e[1] >= 0]
    pro = [e for e in pro if e[:2] == ('D', 0)] + [e for e in pro if e[:2] != ('D', 0)]
    for e in pro:
        L = ev_ins(e)
        for l in L:
            a.e(l)
            if 'm0' in l: a.e('s_nop 0')
    a.e('v_bfe_u32 v4, v2, 2, 2')
    a.e('v_lshl_add_u32 v5, v3, 2, v4')
    a.e('s_lshl_b32 s36, s19, 6')
    a.e('v_and_b32 v6, 7, v5')
    a.e('v_add_u32 v5, s36, v5')
    a.e('v_lshlrev_b32 v5, 8, v5')
    a.e('v_and_b32 v7, 3, v2')
    a.e('v_lshl_add_u32 v5, v7, 3, v5')
    a.e('s_lshl_b32 s36, s13, 2')
    a.e('v_xor_b32 v6, s36, v6')
    for t in range(8):
        a.e(f'v_xor_b32 v7, {t}, v6')
        a.e(f'v_lshl_add_u32 v{R0+t}, v7, 5, v5')
        a.e(f'v_add_u32 v{R0+8+t}, 0x10000, v{R0+t}')
    a.e('v_and_b32 v4, 15, v2')
    a.e('v_lshlrev_b32 v4, 11, v4')
    a.e(f'v_lshl_add_u32 v{VO}, v3, 3, v4')
    a.e('s_lshl_b32 s53, s17, 15')
    a.e('s_add_u32 s53, s53, s41')
    a.e('s_lshl_b32 s36, s13, 7')
    a.e('s_add_u32 s53, s53, s36')
    g.srd(a, 32, 6, 4 * MB)
    g.srd(a, 56, 10, 4 * MB, WS_H)
    for r in range(64):
        a.e(f'v_mov_b32 v{ACC+r}, 0')
    a.e('s_mov_b32 s49, 0')
    g.stamp(a, 1)
    a.e(f's_waitcnt vmcnt({len(pro)-4})')
    a.e('s_barrier')
    g.stamp(a, 2)
    for t in range(8):
        for l in rd(0, 0, t): a.e(l)
    for e in ev[marks[(0, 0)]:marks[(0, 1)]]:
        for l in ev_ins(e):
            a.e(l)
            if 'm0' in l: a.e('s_nop 0')
    act = pro + ev[marks[(0, 0)]:]
    off = len(pro) - marks[(0, 0)]
    need = -1
    for s_ in range(0, 6):
        for P, tags, N in ((0, [('D', s_), ('T', 2 * s_ - 1)], vm_bar), (1, [('T', 2 * s_)], vm_p1)):
            if (s_, P) == (0, 0): continue
            site = marks[(s_, P)] + off
            for tg in tags:
                last = max(i for i, e in enumerate(act) if e[:2] == tg)
                if site - last - 1 < N: need = max(need, last)
    if need >= 0:
        a.e(f's_waitcnt vmcnt({marks[(0, 1)] + off - need - 1})')
    a.e('s_branch L_g2_entry')
    def phase(s_, P, last=False):
        k = 2 * s_ - 1 + P
        fill = [[] for _ in range(8)]
        if not last:
            es = ev[marks[(s_, P)]:marks[(s_, P)] + 4]
            for n, e in enumerate(es):
                fill[2 * n] = ev_ins(e)
        for t in range(8):
            a.e(f's_waitcnt lgkmcnt({14 if not last else 14-2*t})')
            pre = [x for x in fill[t] if 'm0' in x]
            post = [x for x in fill[t] if 'm0' not in x]
            for x in pre: a.e(x)
            for tm in range(2):
                c = ACC + 4 * (2 * t + tm)
                tf = TF + 8 * (k % ND) + 4 * tm
                a.e(f'v_mfma_f32_16x16x32_bf16 v[{c}:{c+3}], v[{WF+4*t}:{WF+4*t+3}], v[{tf}:{tf+3}], v[{c}:{c+3}]')
                if tm == 0:
                    for x in post: a.e(x)
            if not last:
                for x in rd(s_ % 4, P, t): a.e(x)
    a.e('L_g2_loop:')
    for sm in (2, 3, 4, 5):
        a.e(f's_waitcnt vmcnt({vm_bar})')
        a.e('s_barrier')
        phase(sm, 0)
        if sm == 4:
            a.e('L_g2_entry:')
        a.e(f's_waitcnt vmcnt({vm_p1})')
        phase(sm, 1)
    a.e('s_add_u32 s49, s49, 1')
    a.e('s_cmp_lt_u32 s49, 4')
    a.e('s_cbranch_scc1 L_g2_loop')
    a.e(f's_waitcnt vmcnt({younger(("T", 11), (6, 0))})')
    phase(6, 0, last=True)
    g.stamp(a, 3)
    for q in range(4):
        a.e(f'buffer_load_dwordx2 v[{HR+2*q}:{HR+2*q+1}], v{VO}, s[56:59], s53 offen offset:{32*q}')
    a.e('s_add_u32 s36, s39, 0x20000')
    a.e(f'v_add_u32 v3, s36, v{VT}')
    a.e('v_xor_b32 v4, 0x4000, v3')
    a.e(f'v_add_u32 v5, s39, v{VT}')
    a.e('v_xor_b32 v6, 0x4000, v5')
    a.e('s_lshl_b32 s36, s2, 3')
    a.e('s_add_u32 s36, s36, s12')
    a.e('s_lshl_b32 s37, s36, 12')
    a.e('s_xor_b32 s38, s37, 0x8000')
    a.e('s_lshl_b32 s40, s36, 6')
    a.e('s_xor_b32 s41, s40, 0x200')
    g.srd(a, 20, 10, 8 * MB, WS_XP)
    g.srd(a, 24, 10, 131072, WS_FLG)
    a.e('s_mov_b32 s90, 0xffff0000')
    for q in range(4):
        c = ACC + 4 * (2 * (4 + q) + 1)
        a.e(f'ds_write_b128 v3, v[{c}:{c+3}] offset:{1024*q}')
    a.e('s_waitcnt vmcnt(4) lgkmcnt(0)')
    a.e('s_barrier')
    P1, P2 = 80, 96
    for q in range(4):
        a.e(f'ds_read_b128 v[{P1+4*q}:{P1+4*q+3}], v4 offset:{1024*q}')
    for q in range(4):
        c = ACC + 4 * (2 * q + 1)
        a.e(f'ds_write_b128 v5, v[{c}:{c+3}] offset:{1024*q}')
    for q in range(4):
        a.e(f's_waitcnt lgkmcnt({7-q})')
        c = ACC + 4 * (2 * (4 + q))
        for e in range(2):
            a.e(f'v_pk_add_f32 v[{c+2*e}:{c+2*e+1}], v[{c+2*e}:{c+2*e+1}], v[{P1+4*q+2*e}:{P1+4*q+2*e+1}]')
        a.e(f'buffer_store_dwordx4 v[{c}:{c+3}], v{VT}, s[20:23], s37 offen offset:{1024*q} sc1')
    a.e('s_waitcnt lgkmcnt(0)')
    a.e('s_barrier')
    for q in range(4):
        a.e(f'ds_read_b128 v[{P2+4*q}:{P2+4*q+3}], v6 offset:{1024*q}')
    a.e('v_mov_b32 v7, 0')
    a.e('v_mov_b32 v8, 1')
    a.e('s_mov_b64 exec, 1')
    a.e('s_waitcnt vmcnt(0)')
    a.e('buffer_store_dword v8, v7, s[24:27], s40 offen sc1')
    a.e('buffer_load_dword v9, v7, s[24:27], s41 offen sc1')
    a.e('s_mov_b64 exec, -1')
    H = 112
    for q in range(8):
        g.unpack(a, H + 2 * q, H + 2 * q + 1, HR + q)
    for q in range(4):
        a.e(f's_waitcnt lgkmcnt({3-q})')
        c = ACC + 4 * (2 * q)
        for e in range(2):
            a.e(f'v_pk_add_f32 v[{c+2*e}:{c+2*e+1}], v[{c+2*e}:{c+2*e+1}], v[{P2+4*q+2*e}:{P2+4*q+2*e+1}]')
    a.e('s_mov_b64 exec, 1')
    a.e('L_g2_poll:')
    a.e('s_waitcnt vmcnt(0)')
    a.e('v_readfirstlane_b32 s42, v9')
    a.e('s_nop 0')
    a.e('s_cmp_lg_u32 s42, 0')
    a.e('s_cbranch_scc1 L_g2_got')
    a.e('buffer_load_dword v9, v7, s[24:27], s41 offen sc1')
    a.e('s_branch L_g2_poll')
    a.e('L_g2_got:')
    a.e('s_mov_b64 exec, -1')
    g.stamp(a, 4)
    for q in range(4):
        a.e(f'buffer_load_dwordx4 v[{P1+4*q}:{P1+4*q+3}], v{VT}, s[20:23], s38 offen offset:{1024*q} sc1')
    for q in range(4):
        a.e(f's_waitcnt vmcnt({3})')
        c = ACC + 4 * (2 * q)
        for e in range(2):
            x = c + 2 * e; y = P1 + 4 * q + 2 * e; h = H + 4 * q + 2 * e
            a.e(f'v_pk_add_f32 v[{x}:{x+1}], v[{x}:{x+1}], v[{y}:{y+1}]')
            a.e(f'v_cvt_pk_bf16_f32 v{y}, v{x}, v{x+1}')
            g.unpack(a, x, x + 1, y)
            a.e(f'v_pk_add_f32 v[{x}:{x+1}], v[{x}:{x+1}], v[{h}:{h+1}]')
            a.e(f'v_cvt_pk_bf16_f32 v{8+2*q+e}, v{x}, v{x+1}')
        a.e(f'buffer_store_dwordx2 v[{8+2*q}:{8+2*q+1}], v{VO}, s[32:35], s53 offen offset:{32*q}')
    g.stamp_out(a, 4, 6, 12)
    g.tail(a, name)
    return g.desc(name, 208)
```

```python
import sys
from asmlib import *

NAME = 'sequential_preLN__ssm_conv_h3__glu_gated_swiglu__prompt'
MB = 1 << 20
WS_UB, WS_Y2, WS_H, WS_HNF, WS_HF = 0, 4 * MB, 8 * MB, 12 * MB, 16 * MB
WS_SIZE = 256 * MB
KA_Q, KA_K, KA_V, KA_SH, KA_SSMK, KA_D, KA_X, KA_W1, KA_W3, KA_W2, KA_OUT, KA_DBG, KA_WS = [8 * i for i in range(13)]

OPT = dict(mimic=0)

def srd(a, d, p, size, add=0, addreg=None):
    if add or addreg is not None:
        if add:
            a.e(f's_add_u32 s{d}, s{p}, {add:#x}')
            a.e(f's_addc_u32 s{d+1}, s{p+1}, 0')
            if addreg is not None:
                a.e(f's_add_u32 s{d}, s{d}, s{addreg}')
                a.e(f's_addc_u32 s{d+1}, s{d+1}, 0')
        else:
            a.e(f's_add_u32 s{d}, s{p}, s{addreg}')
            a.e(f's_addc_u32 s{d+1}, s{p+1}, 0')
    else:
        a.e(f's_mov_b32 s{d}, s{p}')
        a.e(f's_mov_b32 s{d+1}, s{p+1}')
    a.e(f's_mov_b32 s{d+2}, {size:#x}')
    a.e(f's_mov_b32 s{d+3}, 0x20000')

def head(a, name, nwg):
    a.raw(f'.globl {name}')
    a.raw('.p2align 8')
    a.raw(f'.type {name},@function')
    a.raw(f'{name}:')
    a.e(f's_cmp_ge_u32 s2, {nwg}')
    a.e(f's_cbranch_scc1 L_{name}_end')
    stamp(a, 0)

def tail(a, name):
    a.e(f'L_{name}_end:')
    a.e('s_endpgm')

def desc(name, vgpr, sgpr=96, agpr=0):
    acc = (vgpr + 3) // 4 * 4
    nfv = acc + agpr if agpr else vgpr
    return f'''.p2align 6
.amdhsa_kernel {name}
  .amdhsa_next_free_vgpr {nfv}
  .amdhsa_next_free_sgpr {sgpr}
  .amdhsa_accum_offset {acc}
  .amdhsa_group_segment_fixed_size 0
  .amdhsa_kernarg_size 104
  .amdhsa_user_sgpr_count 2
  .amdhsa_user_sgpr_kernarg_segment_ptr 1
  .amdhsa_system_sgpr_workgroup_id_x 1
  .amdhsa_float_denorm_mode_32 3
.end_amdhsa_kernel
'''

STAMP_BASE = 64 * MB
import gemms as _gm
def stamp(a, i):
    if not _gm.OPT.get('stamp'): return
    a.e(f's_memrealtime s[{60+2*i}:{61+2*i}]')
    if i == 0:
        a.e('s_memtime s[76:77]')
    a.e('s_waitcnt lgkmcnt(0)')

def stamp_out(a, kidx, n, wreg, wsreg=10):
    if not _gm.OPT.get('stamp'): return
    if _gm.OPT.get('drain', 1): a.e('s_waitcnt vmcnt(0)')
    a.e(f's_memrealtime s[{60+2*(n-1)}:{61+2*(n-1)}]')
    a.e('s_memtime s[78:79]')
    a.e('s_waitcnt lgkmcnt(0)')
    srd(a, 80, wsreg, 1 * MB, STAMP_BASE + kidx * 256 * 8 * 64)
    a.e('s_lshl_b32 s84, s2, 3')
    a.e(f's_add_u32 s84, s84, s{wreg}')
    a.e('s_lshl_b32 s84, s84, 6')
    a.e('v_mov_b32 v1, 0')
    for i in range(n):
        a.e(f'v_mov_b32 v2, s{60+2*i}')
        a.e(f'buffer_store_dword v2, v1, s[80:83], s84 offen offset:{4*i}')
    a.e('s_sub_u32 s78, s78, s76')
    a.e('v_mov_b32 v2, s78')
    a.e('buffer_store_dword v2, v1, s[80:83], s84 offen offset:32')
    a.e('s_getreg_b32 s78, hwreg(HW_REG_XCC_ID)')
    a.e('v_mov_b32 v2, s78')
    a.e('buffer_store_dword v2, v1, s[80:83], s84 offen offset:36')
    a.e('s_getreg_b32 s78, hwreg(HW_REG_HW_ID)')
    a.e('v_mov_b32 v2, s78')
    a.e('buffer_store_dword v2, v1, s[80:83], s84 offen offset:40')

def prefetch(a, ptr, chunk, nthr, sd, vt, vd):
    st = _gm.OPT.get('pfs', 64)
    if not _gm.OPT.get('pf', 1): return 0
    a.e(f's_mul_i32 s{sd+2}, s2, {chunk}')
    srd(a, sd, ptr, chunk, 0, sd + 2)
    n = 0
    for o in range(0, chunk, nthr * st):
        a.e(f's_mov_b32 s89, {o}')
        a.e(f'buffer_load_dword v{vd}, v{vt}, s[{sd}:{sd+3}], s89 offen')
        n += 1
    return n

def pf_shift():
    return _gm.OPT.get('pfs', 64).bit_length() - 1

def sf():
    return {0: '', 1: ' sc1', 2: ' nt', 3: ' sc0 sc1'}[_gm.OPT.get('sc1', 0)]

def unpack(a, dlo, dhi, src, mask='s90'):
    a.e(f'v_lshlrev_b32 v{dlo}, 16, v{src}')
    a.e(f'v_and_b32 v{dhi}, {mask}, v{src}')

def gen_k0(a):
    name = 'k0_kernel'
    head(a, name, 256)
    a.e(f's_load_dwordx4 s[4:7], s[0:1], {KA_K}')
    a.e(f's_load_dwordx4 s[40:43], s[0:1], {KA_SH}')
    a.e(f's_load_dwordx2 s[44:45], s[0:1], {KA_Q}')
    a.e(f's_load_dwordx2 s[10:11], s[0:1], {KA_WS}')
    a.e('s_bfe_u32 s12, s2, 0x30003')
    a.e('s_and_b32 s13, s2, 7')
    a.e('s_lshr_b32 s14, s2, 6')
    a.e('s_lshl_b32 s14, s14, 3')
    a.e('s_or_b32 s13, s13, s14')
    a.e('v_and_b32 v1, 15, v0')
    a.e('v_lshrrev_b32 v2, 4, v0')
    a.e('s_lshl_b32 s15, s13, 17')
    a.e('s_lshl_b32 s16, s12, 8')
    a.e('s_add_u32 s15, s15, s16')
    a.e('v_lshlrev_b32 v3, 13, v1')
    a.e('v_lshl_add_u32 v3, v2, 4, v3')
    a.e('v_add_u32 v3, s15, v3')
    a.e('v_add_u32 v4, 0xffffe800, v3')
    a.e('v_add_u32 v5, 0xfffff800, v3')
    a.e('v_add_u32 v6, 0x1000, v3')
    a.e('s_lshl_b32 s16, s12, 10')
    a.e('v_lshlrev_b32 v7, 6, v2')
    a.e('v_add_u32 v7, s16, v7')
    a.e('s_mov_b32 s90, 0xffff0000')
    a.e('s_lshl_b32 s17, s12, 5')
    a.e('s_add_u32 s17, s17, s13')
    a.e('s_lshl_b32 s17, s17, 14')
    a.e('s_add_u32 s17, s17, 120')
    a.e('v_lshlrev_b32 v160, 10, v2')
    a.e('v_lshlrev_b32 v161, 3, v1')
    a.e('v_sub_u32 v160, v160, v161')
    a.e('v_add_u32 v160, s17, v160')
    a.e('s_waitcnt lgkmcnt(0)')
    srd(a, 20, 4, 4 * MB)
    srd(a, 24, 6, 4 * MB)
    srd(a, 28, 40, 8192)
    srd(a, 32, 10, 4 * MB, WS_UB)
    KR, VR, WR, WU, KU, ACC = 8, 36, 52, 68, 100, 164
    for j in range(4):
        a.e(f'buffer_load_dwordx4 v[{WR+4*j}:{WR+4*j+3}], v7, s[28:31], 0 offen offset:{16*j}')
    rows = [(4, 0), (4, 2048), (5, 0), (3, 0), (3, 2048), (6, 0), (6, 2048)]
    for r, (vr, off) in enumerate(rows):
        a.e(f'buffer_load_dwordx4 v[{KR+4*r}:{KR+4*r+3}], v{vr}, s[20:23], 0 offen offset:{off}')
    for r, (vr, off) in enumerate(rows[3:]):
        a.e(f'buffer_load_dwordx4 v[{VR+4*r}:{VR+4*r+3}], v{vr}, s[24:27], 0 offen offset:{off}')
    a.e(f'v_lshlrev_b32 v162, {pf_shift()}, v0')
    npf = prefetch(a, 42, 16384, 256, 48, 162, 163) + prefetch(a, 44, 16384, 256, 52, 162, 163)
    if _gm.OPT.get('stamp'):
        a.e('v_lshrrev_b32 v200, 6, v0')
        stamp(a, 1)
        a.e('v_readfirstlane_b32 s12, v200')
    a.e(f's_waitcnt vmcnt({11+npf})')
    stamp(a, 2)
    for e in range(8):
        unpack(a, WU + 0 * 8 + e, WU + 1 * 8 + e, WR + 2 * e)
        unpack(a, WU + 2 * 8 + e, WU + 3 * 8 + e, WR + 2 * e + 1)
    for r in range(7):
        a.e(f's_waitcnt vmcnt({10-r+npf})')
        for q in range(4):
            unpack(a, KU + 8 * r + 2 * q, KU + 8 * r + 2 * q + 1, KR + 4 * r + q)
        if r >= 3:
            i = r - 3
            for j in range(4):
                for q in range(4):
                    d = ACC + 8 * i + 2 * q
                    k = KU + 8 * (i + 3 - j) + 2 * q
                    w = WU + 8 * j + 2 * q
                    if j == 0:
                        a.e(f'v_pk_mul_f32 v[{d}:{d+1}], v[{k}:{k+1}], v[{w}:{w+1}]')
                    else:
                        a.e(f'v_pk_fma_f32 v[{d}:{d+1}], v[{k}:{k+1}], v[{w}:{w+1}], v[{d}:{d+1}]')
    VU = 8
    for i in range(4):
        a.e(f's_waitcnt vmcnt({3-i+npf})')
        for q in range(4):
            unpack(a, VU + 2 * q, VU + 2 * q + 1, VR + 4 * i + q)
        for q in range(4):
            d = ACC + 8 * i + 2 * q
            a.e(f'v_pk_mul_f32 v[{d}:{d+1}], v[{d}:{d+1}], v[{VU+2*q}:{VU+2*q+1}]')
    stamp(a, 3)
    O = 52
    for e in range(8):
        a.e(f'v_cvt_pk_bf16_f32 v{O+2*e}, v{ACC+24+e}, v{ACC+16+e}')
        a.e(f'v_cvt_pk_bf16_f32 v{O+2*e+1}, v{ACC+8+e}, v{ACC+e}')
        a.e(f'buffer_store_dwordx2 v[{O+2*e}:{O+2*e+1}], v160, s[32:35], 0 offen offset:{128*e}' + sf())
    stamp_out(a, 0, 5, 12)
    tail(a, name)
    return desc(name, 204)

KA_REG = 13056
def gen_ka(a):
    name = 'ka_kernel'
    head(a, name, 256)
    a.e(f's_load_dwordx4 s[4:7], s[0:1], {KA_SSMK}')
    a.e(f's_load_dwordx4 s[48:51], s[0:1], {KA_W1}')
    a.e(f's_load_dwordx2 s[10:11], s[0:1], {KA_WS}')
    a.e('v_lshrrev_b32 v1, 6, v0')
    a.e('v_and_b32 v2, 63, v0')
    a.e('v_readfirstlane_b32 s12, v1')
    a.e('s_and_b32 s13, s2, 7')
    a.e('s_lshr_b32 s14, s2, 3')
    a.e('s_lshl_b32 s15, s14, 2')
    a.e('s_add_u32 s15, s15, s12')
    a.e('s_lshl_b32 s16, s13, 7')
    a.e('s_add_u32 s16, s16, s15')
    a.e('s_lshl_b32 s17, s13, 5')
    a.e('s_add_u32 s17, s17, s14')
    a.e(f's_mul_i32 s18, s12, {KA_REG}')
    a.e('s_mov_b32 s90, 0xffff0000')
    a.e('v_lshrrev_b32 v3, 3, v2')
    a.e('v_sub_u32 v3, 7, v3')
    a.e('v_lshlrev_b32 v3, 14, v3')
    a.e('v_and_b32 v4, 7, v2')
    a.e('v_lshl_add_u32 v3, v4, 4, v3')
    a.e('s_lshl_b32 s19, s15, 7')
    a.e('v_add_u32 v3, s19, v3')
    a.e('v_lshlrev_b32 v4, 4, v2')
    a.e('s_lshl_b32 s19, s16, 12')
    a.e('s_lshr_b32 s36, s16, 1')
    a.e('s_lshl_b32 s36, s36, 2')
    a.e('s_waitcnt lgkmcnt(0)')
    a.e('s_load_dword s37, s[6:7], s36')
    srd(a, 20, 4, 4096, 0, 19)
    srd(a, 24, 10, 4 * MB, WS_UB)
    srd(a, 28, 10, 4 * MB, WS_Y2)
    KD, KX = 8, 24
    for j in range(4):
        a.e(f'buffer_load_dwordx4 v[{KD+4*j}:{KD+4*j+3}], v4, s[20:23], 0 offen offset:{1024*j}')
        a.e(f'buffer_load_dword v{KX+j}, v4, s[20:23], 0 offen offset:{1024*j+16}')
    a.e('s_lshl_b32 s38, s13, 19')
    for i in range(4):
        a.e(f's_add_u32 s39, s38, {(24-8*i)*16384:#x}')
        a.e(f's_add_u32 m0, s18, {1024*i}')
        a.e('s_nop 0')
        a.e('buffer_load_dwordx4 v3, s[24:27], s39 offen lds')
    stamp(a, 1)
    a.e('v_and_b32 v5, 15, v2')
    a.e('v_lshrrev_b32 v6, 4, v2')
    a.e('v_mov_b32 v28, 0')
    a.e('v_mov_b32 v29, 0')
    a.e('v_lshlrev_b32 v7, 3, v2')
    a.e('v_add_u32 v7, s18, v7')
    a.e('ds_write_b64 v7, v[28:29] offset:4096')
    a.e('v_min_u32 v30, 7, v2')
    a.e('v_lshlrev_b32 v30, 2, v30')
    a.e('v_add_u32 v30, s18, v30')
    a.e('ds_write_b32 v30, v28 offset:4608')
    a.e('v_add_u32 v31, 1, v5')
    a.e('v_and_b32 v32, 1, v31')
    a.e('v_sub_u32 v31, v31, v32')
    a.e('v_lshl_add_u32 v31, v6, 3, v31')
    a.e('v_lshlrev_b32 v31, 1, v31')
    a.e('v_mul_u32_u24 v32, 4160, v32')
    a.e('v_add3_u32 v31, v31, v32, s18')
    VA = 36
    a.e(f'v_add_u32 v{VA}, 4608, v31')
    a.e(f'v_add_u32 v{VA+1}, {4608+1024}, v31')
    a.e(f'v_add_u32 v{VA+2}, {4608+2048}, v31')
    a.e(f'v_add_u32 v{VA+3}, {4608+3072}, v31')
    VB = 40
    a.e('v_lshlrev_b32 v32, 5, v5')
    a.e('v_lshlrev_b32 v33, 4, v6')
    a.e('v_sub_u32 v33, v33, v32')
    a.e('v_add_u32 v33, s18, v33')
    a.e(f'v_add_u32 v{VB}, 480, v33')
    a.e('v_add_u32 v7, s18, v4')
    ACC = 44
    for r in range(32):
        a.e(f'v_mov_b32 v{ACC+r}, 0')
    T = 76
    for j in range(4):
        a.e(f's_waitcnt vmcnt({4+6-2*j})')
        d = KD + 4 * j
        if j == 0:
            a.e(f'v_readfirstlane_b32 s40, v{d}')
        a.e(f'ds_write_b128 v7, v[{d}:{d+3}] offset:{4608+32+1024*j}')
        for q in range(4):
            hi = d + q + 1 if q < 3 else KX + j
            a.e(f'v_alignbit_b32 v{T+4*j+q}, v{hi}, v{d+q}, 16')
        a.e(f'ds_write_b128 v7, v[{T+4*j}:{T+4*j+3}] offset:{4608+4160+32+1024*j}')
    a.e('s_lshl_b32 s40, s40, 16')
    a.e('v_cmp_le_u32 vcc, 7, v2')
    a.e('v_mov_b32 v32, s40')
    a.e('s_nop 0')
    a.e('v_cndmask_b32 v32, v28, v32, vcc')
    a.e(f'ds_write_b32 v30, v32 offset:{4608+4160}')
    FA = [96, 160]
    FB = [128, 192]
    a.e('s_waitcnt vmcnt(0) lgkmcnt(0)')
    stamp(a, 2)
    a.e(f'v_lshlrev_b32 v41, {pf_shift()}, v0')
    prefetch(a, 48, 28672, 256, 52, 41, 42)
    prefetch(a, 50, 28672, 256, 56, 41, 42)
    a.e('s_bitcmp1_b32 s16, 0')
    a.e('s_cselect_b32 s41, 0, 16')
    a.e('s_lshl_b32 s37, s37, s41')
    a.e('s_and_b32 s37, s37, 0xffff0000')
    def reads(r, buf):
        L = []
        for x in range(8):
            d = x
            L.append(f'ds_read_b128 v[{FB[buf]+4*d}:{FB[buf]+4*d+3}], v{VB} offset:{512*(7-d)+64*r}')
            mq = x
            o = 128 * (mq & 1) + 16 * r
            f = FA[buf] + 4 * mq
            L.append(f'ds_read2_b32 v[{f}:{f+1}], v{VA+(mq>>1)} offset0:{o} offset1:{o+1}')
            L.append(f'ds_read2_b32 v[{f+2}:{f+3}], v{VA+(mq>>1)} offset0:{o+2} offset1:{o+3}')
        return L
    for l in reads(0, 0):
        a.e(l)
    UE = 8
    for r in range(8):
        buf = r & 1
        nxt = reads(r + 1, buf ^ 1) if r < 7 else []
        if r == 7:
            a.e('v_lshlrev_b32 v32, 5, v5')
            a.e('v_lshl_add_u32 v32, v6, 3, v32')
            a.e(f'v_sub_u32 v34, {4088-3584}, v32')
            a.e('v_add_u32 v34, s18, v34')
            a.e('v_add_u32 v35, s18, v32')
            nxt = [f'ds_read_b64 v[{UE+2*c}:{UE+2*c+1}], v34 offset:{512*(7-c)}' for c in range(8)]
        a.e('s_waitcnt lgkmcnt(0)')
        k = 0
        for mq in range(8):
            for d in range(8 - mq):
                c = mq + d
                fa = FA[buf] + 4 * mq; fb = FB[buf] + 4 * d
                a.e(f'v_mfma_f32_16x16x32_bf16 v[{ACC+4*c}:{ACC+4*c+3}], v[{fa}:{fa+3}], v[{fb}:{fb+3}], v[{ACC+4*c}:{ACC+4*c+3}]')
                if k < len(nxt):
                    a.e(nxt[k]); k += 1
    a.e('s_waitcnt lgkmcnt(0)')
    stamp(a, 3)
    X = 96
    for c in range(8):
        unpack(a, X + 4 * c + 3, X + 4 * c + 2, UE + 2 * c)
        unpack(a, X + 4 * c + 1, X + 4 * c + 0, UE + 2 * c + 1)
    for c in range(8):
        for r in range(4):
            a.e(f'v_fma_f32 v{X+4*c+r}, v{X+4*c+r}, s37, v{ACC+4*c+r}')
        a.e(f'v_cvt_pk_bf16_f32 v{UE+2*c}, v{X+4*c}, v{X+4*c+1}')
        a.e(f'v_cvt_pk_bf16_f32 v{UE+2*c+1}, v{X+4*c+2}, v{X+4*c+3}')
        a.e(f'ds_write_b64 v35, v[{UE+2*c}:{UE+2*c+1}] offset:{4608+512*c}')
    a.e('v_lshlrev_b32 v32, 2, v0')
    a.e('v_lshrrev_b32 v33, 2, v0')
    a.e('v_lshlrev_b32 v33, 14, v33')
    a.e('v_and_b32 v34, 3, v0')
    a.e('v_lshl_add_u32 v33, v34, 4, v33')
    a.e('s_lshl_b32 s42, s17, 6')
    a.e('s_mov_b32 s43, 0x05040100')
    a.e('s_mov_b32 s44, 0x07060302')
    a.e('s_waitcnt lgkmcnt(0)')
    a.e('s_barrier')
    stamp(a, 4)
    Y = 96
    for P in range(4):
        for ch in range(4):
            a.e(f'ds_read_b32 v{Y+4*P+ch}, v32 offset:{ch*KA_REG+4608+1024*P}')
    O = 128
    for P in range(4):
        a.e(f's_waitcnt lgkmcnt({12-4*P})')
        y = Y + 4 * P; o = O + 4 * P
        a.e(f'v_perm_b32 v{o}, v{y+1}, v{y}, s43')
        a.e(f'v_perm_b32 v{o+1}, v{y+3}, v{y+2}, s43')
        a.e(f'v_perm_b32 v{o+2}, v{y+1}, v{y}, s44')
        a.e(f'v_perm_b32 v{o+3}, v{y+3}, v{y+2}, s44')
        a.e(f'buffer_store_dwordx4 v[{o}:{o+3}], v33, s[28:31], s42 offen' + sf())
        if P < 3:
            a.e(f's_add_u32 s42, s42, {64*16384:#x}')
    stamp_out(a, 1, 6, 12)
    tail(a, name)
    return desc(name, 224)

def wave_sum(a, v, s, tmp):
    for sh in (1, 2, 4, 8):
        a.e('s_nop 1')
        a.e(f'v_add_f32_dpp v{v}, v{v}, v{v} row_shr:{sh} row_mask:0xf bank_mask:0xf bound_ctrl:0')
    a.e('s_nop 1')
    a.e(f'v_add_f32_dpp v{v}, v{v}, v{v} row_bcast:15 row_mask:0xa bank_mask:0xf')
    a.e('s_nop 1')
    a.e(f'v_add_f32_dpp v{v}, v{v}, v{v} row_bcast:31 row_mask:0xc bank_mask:0xf')
    a.e('s_nop 0')
    a.e(f'v_readlane_b32 s{s}, v{v}, 63')

def rbf(a, v):
    a.e(f'v_cvt_pk_bf16_f32 v{v}, v{v}, v{v}')
    a.e(f'v_and_b32 v{v}, s90, v{v}')

def ln_stats(a, X, T, M, R):
    for q in range(4):
        a.e(f'v_pk_add_f32 v[{T+2*q}:{T+2*q+1}], v[{X+4*q}:{X+4*q+1}], v[{X+4*q+2}:{X+4*q+3}]')
    a.e(f'v_pk_add_f32 v[{T}:{T+1}], v[{T}:{T+1}], v[{T+2}:{T+3}]')
    a.e(f'v_pk_add_f32 v[{T+4}:{T+5}], v[{T+4}:{T+5}], v[{T+6}:{T+7}]')
    a.e(f'v_pk_add_f32 v[{T}:{T+1}], v[{T}:{T+1}], v[{T+4}:{T+5}]')
    a.e(f'v_add_f32 v{T}, v{T}, v{T+1}')
    wave_sum(a, T, 40, None)
    a.e('s_nop 1')
    a.e(f'v_mul_f32 v{M}, s40, v{M+2}')
    a.e(f'v_mov_b32 v{M+1}, v{M}')
    for q in range(8):
        a.e(f'v_pk_add_f32 v[{T+2*q}:{T+2*q+1}], v[{X+2*q}:{X+2*q+1}], v[{M}:{M+1}] neg_lo:[0,1] neg_hi:[0,1]')
    a.e(f'v_pk_mul_f32 v[{R}:{R+1}], v[{T}:{T+1}], v[{T}:{T+1}]')
    a.e(f'v_pk_mul_f32 v[{T}:{T+1}], v[{T+2}:{T+3}], v[{T+2}:{T+3}]')
    for q in range(2, 8, 2):
        a.e(f'v_pk_fma_f32 v[{R}:{R+1}], v[{T+2*q}:{T+2*q+1}], v[{T+2*q}:{T+2*q+1}], v[{R}:{R+1}]')
        a.e(f'v_pk_fma_f32 v[{T}:{T+1}], v[{T+2*q+2}:{T+2*q+3}], v[{T+2*q+2}:{T+2*q+3}], v[{T}:{T+1}]')
    a.e(f'v_pk_add_f32 v[{T}:{T+1}], v[{T}:{T+1}], v[{R}:{R+1}]')
    a.e(f'v_add_f32 v{T}, v{T}, v{T+1}')
    rbf(a, M)
    wave_sum(a, T, 41, None)
    a.e(f'v_mov_b32 v{M+1}, v{M}')
    a.e('s_nop 0')
    a.e(f'v_mul_f32 v{R}, s41, v{M+2}')
    rbf(a, R)
    a.e(f'v_add_f32 v{R}, 0x3727c5ac, v{R}')
    rbf(a, R)
    a.e(f'v_sqrt_f32 v{R}, v{R}')
    a.e('s_nop 0')
    rbf(a, R)
    a.e(f'v_rcp_f32 v{R}, v{R}')
    a.e('s_nop 0')
    a.e(f'v_mov_b32 v{R+1}, v{R}')

def gen_kb(a):
    name = 'kb_kernel'
    head(a, name, 256)
    a.e(f's_load_dwordx2 s[4:5], s[0:1], {KA_Q}')
    a.e(f's_load_dwordx2 s[6:7], s[0:1], {KA_W2}')
    a.e(f's_load_dwordx2 s[10:11], s[0:1], {KA_WS}')
    a.e('v_lshrrev_b32 v1, 6, v0')
    a.e('v_and_b32 v2, 63, v0')
    a.e('v_readfirstlane_b32 s12, v1')
    a.e('s_mov_b32 s90, 0xffff0000')
    a.e('v_lshlrev_b32 v3, 4, v2')
    a.e('v_lshlrev_b32 v4, 7, v2')
    a.e('v_add_u32 v5, 0x2000, v4')
    a.e('s_lshl_b32 s13, s2, 3')
    a.e('s_add_u32 s13, s13, s12')
    a.e('s_lshl_b32 s14, s13, 11')
    a.e('s_lshl_b32 s15, s2, 14')
    a.e('s_lshl_b32 s16, s12, 3')
    a.e('s_add_u32 s15, s15, s16')
    TM = _gm.OPT.get('tm', 2)
    lt = TM.bit_length() - 1
    a.e(f's_lshr_b32 s16, s13, {4+lt}')
    a.e(f's_lshl_b32 s16, s16, {15+lt}')
    a.e(f's_bfe_u32 s17, s13, {(lt<<16)|4:#x}')
    a.e('s_lshl_b32 s17, s17, 10')
    a.e('s_add_u32 s16, s16, s17')
    a.e('s_and_b32 s17, s13, 15')
    a.e('s_lshl_b32 s17, s17, 4')
    a.e('s_add_u32 s16, s16, s17')
    a.e(f's_add_u32 s17, s16, {16*TM*1024}')
    a.e('v_lshrrev_b32 v6, 2, v2')
    a.e(f'v_lshlrev_b32 v6, {10+lt}, v6')
    a.e('v_and_b32 v7, 3, v2')
    a.e('v_lshl_add_u32 v6, v7, 8, v6')
    a.e('s_lshl_b32 s18, s13, 6')
    a.e('s_waitcnt lgkmcnt(0)')
    srd(a, 20, 4, 4 * MB)
    srd(a, 24, 10, 4 * MB, WS_Y2)
    srd(a, 28, 10, 4 * MB, WS_H)
    srd(a, 32, 10, 4 * MB, WS_HNF)
    XR, YR, X, Y, T, M, R = 8, 16, 24, 40, 56, 72, 76
    a.e(f'buffer_load_dwordx4 v[{XR}:{XR+3}], v3, s[20:23], s14 offen')
    a.e(f'buffer_load_dwordx4 v[{XR+4}:{XR+7}], v3, s[20:23], s14 offen offset:1024')
    a.e(f'buffer_load_dwordx2 v[{YR}:{YR+1}], v4, s[24:27], s15 offen')
    a.e(f'buffer_load_dwordx2 v[{YR+2}:{YR+3}], v4, s[24:27], s15 offen offset:64')
    a.e(f'buffer_load_dwordx2 v[{YR+4}:{YR+5}], v5, s[24:27], s15 offen')
    a.e(f'buffer_load_dwordx2 v[{YR+6}:{YR+7}], v5, s[24:27], s15 offen offset:64')
    a.e(f'v_mov_b32 v{M+2}, 0x3a800000')
    srd(a, 44, 10, 131072, _gm.WS_FLG)
    a.e('v_mov_b32 v7, 0')
    a.e('s_mov_b64 exec, 1')
    a.e('buffer_store_dword v7, v7, s[44:47], s18 offen')
    a.e('s_mov_b64 exec, -1')
    a.e(f'v_lshlrev_b32 v78, {pf_shift()}, v0')
    npf = prefetch(a, 6, 28672, 512, 48, 78, 79)
    stamp(a, 1)
    a.e(f's_waitcnt vmcnt({5+npf})')
    stamp(a, 2)
    for q in range(8):
        unpack(a, X + 2 * q, X + 2 * q + 1, XR + q)
    ln_stats(a, X, T, M, R)
    for q in range(8):
        a.e(f'v_pk_add_f32 v[{T+2*q}:{T+2*q+1}], v[{X+2*q}:{X+2*q+1}], v[{M}:{M+1}] neg_lo:[0,1] neg_hi:[0,1]')
    for q in range(8):
        a.e(f'v_pk_mul_f32 v[{T+2*q}:{T+2*q+1}], v[{T+2*q}:{T+2*q+1}], v[{R}:{R+1}]')
    a.e(f's_waitcnt vmcnt({1+npf})')
    stamp(a, 3)
    for q in range(8):
        unpack(a, Y + 2 * q, Y + 2 * q + 1, YR + q)
    for q in range(8):
        a.e(f'v_pk_fma_f32 v[{X+2*q}:{X+2*q+1}], v[{T+2*q}:{T+2*q+1}], v[{Y+2*q}:{Y+2*q+1}], v[{X+2*q}:{X+2*q+1}]')
    for q in range(8):
        a.e(f'v_cvt_pk_bf16_f32 v{XR+q}, v{X+2*q}, v{X+2*q+1}')
    a.e(f'buffer_store_dwordx4 v[{XR}:{XR+3}], v3, s[28:31], s14 offen' + sf())
    a.e(f'buffer_store_dwordx4 v[{XR+4}:{XR+7}], v3, s[28:31], s14 offen offset:1024' + sf())
    for q in range(8):
        unpack(a, X + 2 * q, X + 2 * q + 1, XR + q)
    ln_stats(a, X, T, M, R)
    for q in range(8):
        a.e(f'v_pk_add_f32 v[{T+2*q}:{T+2*q+1}], v[{X+2*q}:{X+2*q+1}], v[{M}:{M+1}] neg_lo:[0,1] neg_hi:[0,1]')
    for q in range(8):
        a.e(f'v_pk_mul_f32 v[{T+2*q}:{T+2*q+1}], v[{T+2*q}:{T+2*q+1}], v[{R}:{R+1}]')
    for q in range(8):
        a.e(f'v_cvt_pk_bf16_f32 v{YR+q}, v{T+2*q}, v{T+2*q+1}')
    stamp(a, 4)
    a.e(f'buffer_store_dwordx4 v[{YR}:{YR+3}], v6, s[32:35], s16 offen' + sf())
    a.e(f'buffer_store_dwordx4 v[{YR+4}:{YR+7}], v6, s[32:35], s17 offen' + sf())
    stamp_out(a, 2, 6, 12)
    tail(a, name)
    return desc(name, 80)

from gemms import gen_g1, gen_g2, G1_LDS, G2_LDS

def build(kernels=None):
    a = Asm()
    hdr = open('cdna_kernels/' + NAME + '.s.ref').read().split('\n')
    cm = [l for l in hdr if l.startswith(';') and '@launch' not in l and 'Override launch' not in l and 'grid=ceil' not in l]
    launches = [
        ('k0_kernel', 256, 256, 0, gen_k0),
        ('ka_kernel', 256, 256, 4 * KA_REG, gen_ka),
        ('kb_kernel', 256, 512, 0, gen_kb),
        ('g1_kernel', 256, 1024 // _gm.OPT.get('tm', 2), G1_LDS, gen_g1),
        ('g2_kernel', 256, 512, G2_LDS, gen_g2),
    ]
    if kernels:
        launches = [l for l in launches if l[0] in kernels]
    out = '\n'.join(cm) + '\n'
    for n, g, b, lds, _ in launches:
        out += f'; @launch kernel={n} grid=({g},1,1) block=({b},1,1) lds={lds}\n'
    a.raw('.amdgcn_target "amdgcn-amd-amdhsa--gfx950"')
    a.raw('.text')
    descs = []
    done = set()
    for n, g, b, lds, fn in launches:
        if n in done: continue
        done.add(n)
        descs.append(fn(a))
    body = a.text()
    errs = check_hazards(body)
    for n in done:
        errs += check_waits(body, n, take_fwd=('L_g2_got',))
    for e in errs:
        print(e, file=sys.stderr)
    out += body + '.section .rodata,"a"\n' + ''.join(descs)
    return out, errs

if __name__ == '__main__':
    outp = sys.argv[1] if len(sys.argv) > 1 else 'cdna_kernels/' + NAME + '.s'
    for kv in sys.argv[2:]:
        k, v = kv.split('=')
        OPT[k] = int(v)
    import gemms
    gemms.OPT.update(OPT)
    t, errs = build()
    open(outp, 'w').write(t)
    print('written', outp, len(t), 'bytes;', len(errs), 'checker errors')
```

```python
import sys
from asmlib import *

NAME = 'sequential_preLN__ssm_conv_h3__glu_gated_swiglu__prompt'
MB = 1 << 20
WS_UB, WS_Y2, WS_H, WS_HNF, WS_HF = 0, 4 * MB, 8 * MB, 12 * MB, 16 * MB
WS_SIZE = 256 * MB
KA_Q, KA_K, KA_V, KA_SH, KA_SSMK, KA_D, KA_X, KA_W1, KA_W3, KA_W2, KA_OUT, KA_DBG, KA_WS = [8 * i for i in range(13)]

OPT = dict(mimic=0)

def srd(a, d, p, size, add=0, addreg=None):
    if add or addreg is not None:
        if add:
            a.e(f's_add_u32 s{d}, s{p}, {add:#x}')
            a.e(f's_addc_u32 s{d+1}, s{p+1}, 0')
            if addreg is not None:
                a.e(f's_add_u32 s{d}, s{d}, s{addreg}')
                a.e(f's_addc_u32 s{d+1}, s{d+1}, 0')
        else:
            a.e(f's_add_u32 s{d}, s{p}, s{addreg}')
            a.e(f's_addc_u32 s{d+1}, s{p+1}, 0')
    else:
        a.e(f's_mov_b32 s{d}, s{p}')
        a.e(f's_mov_b32 s{d+1}, s{p+1}')
    a.e(f's_mov_b32 s{d+2}, {size:#x}')
    a.e(f's_mov_b32 s{d+3}, 0x20000')

def head(a, name, nwg):
    a.raw(f'.globl {name}')
    a.raw('.p2align 8')
    a.raw(f'.type {name},@function')
    a.raw(f'{name}:')
    a.e(f's_cmp_ge_u32 s2, {nwg}')
    a.e(f's_cbranch_scc1 L_{name}_end')
    stamp(a, 0)

def tail(a, name):
    a.e(f'L_{name}_end:')
    a.e('s_endpgm')

def desc(name, vgpr, sgpr=96, agpr=0):
    acc = (vgpr + 3) // 4 * 4
    nfv = acc + agpr if agpr else vgpr
    return f'''.p2align 6
.amdhsa_kernel {name}
  .amdhsa_next_free_vgpr {nfv}
  .amdhsa_next_free_sgpr {sgpr}
  .amdhsa_accum_offset {acc}
  .amdhsa_group_segment_fixed_size 0
  .amdhsa_kernarg_size 104
  .amdhsa_user_sgpr_count 2
  .amdhsa_user_sgpr_kernarg_segment_ptr 1
  .amdhsa_system_sgpr_workgroup_id_x 1
  .amdhsa_float_denorm_mode_32 3
.end_amdhsa_kernel
'''

STAMP_BASE = 64 * MB
import gemms as _gm
def stamp(a, i):
    if not _gm.OPT.get('stamp'): return
    a.e(f's_memrealtime s[{60+2*i}:{61+2*i}]')
    if i == 0:
        a.e('s_memtime s[76:77]')
    a.e('s_waitcnt lgkmcnt(0)')

def stamp_out(a, kidx, n, wreg, wsreg=10):
    if not _gm.OPT.get('stamp'): return
    if _gm.OPT.get('drain', 1): a.e('s_waitcnt vmcnt(0)')
    a.e(f's_memrealtime s[{60+2*(n-1)}:{61+2*(n-1)}]')
    a.e('s_memtime s[78:79]')
    a.e('s_waitcnt lgkmcnt(0)')
    srd(a, 80, wsreg, 1 * MB, STAMP_BASE + kidx * 256 * 8 * 64)
    a.e('s_lshl_b32 s84, s2, 3')
    a.e(f's_add_u32 s84, s84, s{wreg}')
    a.e('s_lshl_b32 s84, s84, 6')
    a.e('v_mov_b32 v1, 0')
    for i in range(n):
        a.e(f'v_mov_b32 v2, s{60+2*i}')
        a.e(f'buffer_store_dword v2, v1, s[80:83], s84 offen offset:{4*i}')
    a.e('s_sub_u32 s78, s78, s76')
    a.e('v_mov_b32 v2, s78')
    a.e('buffer_store_dword v2, v1, s[80:83], s84 offen offset:32')
    a.e('s_getreg_b32 s78, hwreg(HW_REG_XCC_ID)')
    a.e('v_mov_b32 v2, s78')
    a.e('buffer_store_dword v2, v1, s[80:83], s84 offen offset:36')
    a.e('s_getreg_b32 s78, hwreg(HW_REG_HW_ID)')
    a.e('v_mov_b32 v2, s78')
    a.e('buffer_store_dword v2, v1, s[80:83], s84 offen offset:40')

def prefetch(a, ptr, chunk, nthr, sd, vt, vd):
    st = _gm.OPT.get('pfs', 64)
    if not _gm.OPT.get('pf', 1): return 0
    a.e(f's_mul_i32 s{sd+2}, s2, {chunk}')
    srd(a, sd, ptr, chunk, 0, sd + 2)
    n = 0
    for o in range(0, chunk, nthr * st):
        a.e(f's_mov_b32 s89, {o}')
        a.e(f'buffer_load_dword v{vd}, v{vt}, s[{sd}:{sd+3}], s89 offen')
        n += 1
    return n

def pf_shift():
    return _gm.OPT.get('pfs', 64).bit_length() - 1

def sf():
    return {0: '', 1: ' sc1', 2: ' nt', 3: ' sc0 sc1'}[_gm.OPT.get('sc1', 0)]

def unpack(a, dlo, dhi, src, mask='s90'):
    a.e(f'v_lshlrev_b32 v{dlo}, 16, v{src}')
    a.e(f'v_and_b32 v{dhi}, {mask}, v{src}')

def gen_k0(a):
    name = 'k0_kernel'
    head(a, name, 256)
    a.e(f's_load_dwordx4 s[4:7], s[0:1], {KA_K}')
    a.e(f's_load_dwordx4 s[40:43], s[0:1], {KA_SH}')
    a.e(f's_load_dwordx2 s[44:45], s[0:1], {KA_Q}')
    a.e(f's_load_dwordx2 s[10:11], s[0:1], {KA_WS}')
    a.e('s_bfe_u32 s12, s2, 0x30003')
    a.e('s_and_b32 s13, s2, 7')
    a.e('s_lshr_b32 s14, s2, 6')
    a.e('s_lshl_b32 s14, s14, 3')
    a.e('s_or_b32 s13, s13, s14')
    a.e('v_and_b32 v1, 15, v0')
    a.e('v_lshrrev_b32 v2, 4, v0')
    a.e('s_lshl_b32 s15, s13, 17')
    a.e('s_lshl_b32 s16, s12, 8')
    a.e('s_add_u32 s15, s15, s16')
    a.e('v_lshlrev_b32 v3, 13, v1')
    a.e('v_lshl_add_u32 v3, v2, 4, v3')
    a.e('v_add_u32 v3, s15, v3')
    a.e('v_add_u32 v4, 0xffffe800, v3')
    a.e('v_add_u32 v5, 0xfffff800, v3')
    a.e('v_add_u32 v6, 0x1000, v3')
    a.e('s_lshl_b32 s16, s12, 10')
    a.e('v_lshlrev_b32 v7, 6, v2')
    a.e('v_add_u32 v7, s16, v7')
    a.e('s_mov_b32 s90, 0xffff0000')
    a.e('s_lshl_b32 s17, s12, 5')
    a.e('s_add_u32 s17, s17, s13')
    a.e('s_lshl_b32 s17, s17, 14')
    a.e('s_add_u32 s17, s17, 120')
    a.e('v_lshlrev_b32 v160, 10, v2')
    a.e('v_lshlrev_b32 v161, 3, v1')
    a.e('v_sub_u32 v160, v160, v161')
    a.e('v_add_u32 v160, s17, v160')
    a.e('s_waitcnt lgkmcnt(0)')
    srd(a, 20, 4, 4 * MB)
    srd(a, 24, 6, 4 * MB)
    srd(a, 28, 40, 8192)
    srd(a, 32, 10, 4 * MB, WS_UB)
    KR, VR, WR, WU, KU, ACC = 8, 36, 52, 68, 100, 164
    for j in range(4):
        a.e(f'buffer_load_dwordx4 v[{WR+4*j}:{WR+4*j+3}], v7, s[28:31], 0 offen offset:{16*j}')
    rows = [(4, 0), (4, 2048), (5, 0), (3, 0), (3, 2048), (6, 0), (6, 2048)]
    for r, (vr, off) in enumerate(rows):
        a.e(f'buffer_load_dwordx4 v[{KR+4*r}:{KR+4*r+3}], v{vr}, s[20:23], 0 offen offset:{off}')
    for r, (vr, off) in enumerate(rows[3:]):
        a.e(f'buffer_load_dwordx4 v[{VR+4*r}:{VR+4*r+3}], v{vr}, s[24:27], 0 offen offset:{off}')
    a.e(f'v_lshlrev_b32 v162, {pf_shift()}, v0')
    npf = prefetch(a, 42, 16384, 256, 48, 162, 163) + prefetch(a, 44, 16384, 256, 52, 162, 163)
    if _gm.OPT.get('stamp'):
        a.e('v_lshrrev_b32 v200, 6, v0')
        stamp(a, 1)
        a.e('v_readfirstlane_b32 s12, v200')
    a.e(f's_waitcnt vmcnt({11+npf})')
    stamp(a, 2)
    for e in range(8):
        unpack(a, WU + 0 * 8 + e, WU + 1 * 8 + e, WR + 2 * e)
        unpack(a, WU + 2 * 8 + e, WU + 3 * 8 + e, WR + 2 * e + 1)
    for r in range(7):
        a.e(f's_waitcnt vmcnt({10-r+npf})')
        for q in range(4):
            unpack(a, KU + 8 * r + 2 * q, KU + 8 * r + 2 * q + 1, KR + 4 * r + q)
        if r >= 3:
            i = r - 3
            for j in range(4):
                for q in range(4):
                    d = ACC + 8 * i + 2 * q
                    k = KU + 8 * (i + 3 - j) + 2 * q
                    w = WU + 8 * j + 2 * q
                    if j == 0:
                        a.e(f'v_pk_mul_f32 v[{d}:{d+1}], v[{k}:{k+1}], v[{w}:{w+1}]')
                    else:
                        a.e(f'v_pk_fma_f32 v[{d}:{d+1}], v[{k}:{k+1}], v[{w}:{w+1}], v[{d}:{d+1}]')
    VU = 8
    for i in range(4):
        a.e(f's_waitcnt vmcnt({3-i+npf})')
        for q in range(4):
            unpack(a, VU + 2 * q, VU + 2 * q + 1, VR + 4 * i + q)
        for q in range(4):
            d = ACC + 8 * i + 2 * q
            a.e(f'v_pk_mul_f32 v[{d}:{d+1}], v[{d}:{d+1}], v[{VU+2*q}:{VU+2*q+1}]')
    stamp(a, 3)
    O = 52
    for e in range(8):
        a.e(f'v_cvt_pk_bf16_f32 v{O+2*e}, v{ACC+24+e}, v{ACC+16+e}')
        a.e(f'v_cvt_pk_bf16_f32 v{O+2*e+1}, v{ACC+8+e}, v{ACC+e}')
        a.e(f'buffer_store_dwordx2 v[{O+2*e}:{O+2*e+1}], v160, s[32:35], 0 offen offset:{128*e}' + sf())
    stamp_out(a, 0, 5, 12)
    tail(a, name)
    return desc(name, 204)

KA_REG = 13056
def gen_ka(a):
    name = 'ka_kernel'
    head(a, name, 256)
    a.e(f's_load_dwordx4 s[4:7], s[0:1], {KA_SSMK}')
    a.e(f's_load_dwordx4 s[48:51], s[0:1], {KA_W1}')
    a.e(f's_load_dwordx2 s[10:11], s[0:1], {KA_WS}')
    a.e('v_lshrrev_b32 v1, 6, v0')
    a.e('v_and_b32 v2, 63, v0')
    a.e('v_readfirstlane_b32 s12, v1')
    a.e('s_and_b32 s13, s2, 7')
    a.e('s_lshr_b32 s14, s2, 3')
    a.e('s_lshl_b32 s15, s14, 2')
    a.e('s_add_u32 s15, s15, s12')
    a.e('s_lshl_b32 s16, s13, 7')
    a.e('s_add_u32 s16, s16, s15')
    a.e('s_lshl_b32 s17, s13, 5')
    a.e('s_add_u32 s17, s17, s14')
    a.e(f's_mul_i32 s18, s12, {KA_REG}')
    a.e('s_mov_b32 s90, 0xffff0000')
    a.e('v_lshrrev_b32 v3, 3, v2')
    a.e('v_sub_u32 v3, 7, v3')
    a.e('v_lshlrev_b32 v3, 14, v3')
    a.e('v_and_b32 v4, 7, v2')
    a.e('v_lshl_add_u32 v3, v4, 4, v3')
    a.e('s_lshl_b32 s19, s15, 7')
    a.e('v_add_u32 v3, s19, v3')
    a.e('v_lshlrev_b32 v4, 4, v2')
    a.e('s_lshl_b32 s19, s16, 12')
    a.e('s_lshr_b32 s36, s16, 1')
    a.e('s_lshl_b32 s36, s36, 2')
    a.e('s_waitcnt lgkmcnt(0)')
    a.e('s_load_dword s37, s[6:7], s36')
    srd(a, 20, 4, 4096, 0, 19)
    srd(a, 24, 10, 4 * MB, WS_UB)
    srd(a, 28, 10, 4 * MB, WS_Y2)
    KD, KX = 8, 24
    for j in range(4):
        a.e(f'buffer_load_dwordx4 v[{KD+4*j}:{KD+4*j+3}], v4, s[20:23], 0 offen offset:{1024*j}')
        a.e(f'buffer_load_dword v{KX+j}, v4, s[20:23], 0 offen offset:{1024*j+16}')
    a.e('s_lshl_b32 s38, s13, 19')
    for i in range(4):
        a.e(f's_add_u32 s39, s38, {(24-8*i)*16384:#x}')
        a.e(f's_add_u32 m0, s18, {1024*i}')
        a.e('s_nop 0')
        a.e('buffer_load_dwordx4 v3, s[24:27], s39 offen lds')
    stamp(a, 1)
    a.e('v_and_b32 v5, 15, v2')
    a.e('v_lshrrev_b32 v6, 4, v2')
    a.e('v_mov_b32 v28, 0')
    a.e('v_mov_b32 v29, 0')
    a.e('v_lshlrev_b32 v7, 3, v2')
    a.e('v_add_u32 v7, s18, v7')
    a.e('ds_write_b64 v7, v[28:29] offset:4096')
    a.e('v_min_u32 v30, 7, v2')
    a.e('v_lshlrev_b32 v30, 2, v30')
    a.e('v_add_u32 v30, s18, v30')
    a.e('ds_write_b32 v30, v28 offset:4608')
    a.e('v_add_u32 v31, 1, v5')
    a.e('v_and_b32 v32, 1, v31')
    a.e('v_sub_u32 v31, v31, v32')
    a.e('v_lshl_add_u32 v31, v6, 3, v31')
    a.e('v_lshlrev_b32 v31, 1, v31')
    a.e('v_mul_u32_u24 v32, 4160, v32')
    a.e('v_add3_u32 v31, v31, v32, s18')
    VA = 36
    a.e(f'v_add_u32 v{VA}, 4608, v31')
    a.e(f'v_add_u32 v{VA+1}, {4608+1024}, v31')
    a.e(f'v_add_u32 v{VA+2}, {4608+2048}, v31')
    a.e(f'v_add_u32 v{VA+3}, {4608+3072}, v31')
    VB = 40
    a.e('v_lshlrev_b32 v32, 5, v5')
    a.e('v_lshlrev_b32 v33, 4, v6')
    a.e('v_sub_u32 v33, v33, v32')
    a.e('v_add_u32 v33, s18, v33')
    a.e(f'v_add_u32 v{VB}, 480, v33')
    a.e('v_add_u32 v7, s18, v4')
    ACC = 44
    for r in range(32):
        a.e(f'v_mov_b32 v{ACC+r}, 0')
    T = 76
    for j in range(4):
        a.e(f's_waitcnt vmcnt({4+6-2*j})')
        d = KD + 4 * j
        if j == 0:
            a.e(f'v_readfirstlane_b32 s40, v{d}')
        a.e(f'ds_write_b128 v7, v[{d}:{d+3}] offset:{4608+32+1024*j}')
        for q in range(4):
            hi = d + q + 1 if q < 3 else KX + j
            a.e(f'v_alignbit_b32 v{T+4*j+q}, v{hi}, v{d+q}, 16')
        a.e(f'ds_write_b128 v7, v[{T+4*j}:{T+4*j+3}] offset:{4608+4160+32+1024*j}')
    a.e('s_lshl_b32 s40, s40, 16')
    a.e('v_cmp_le_u32 vcc, 7, v2')
    a.e('v_mov_b32 v32, s40')
    a.e('s_nop 0')
    a.e('v_cndmask_b32 v32, v28, v32, vcc')
    a.e(f'ds_write_b32 v30, v32 offset:{4608+4160}')
    FA = [96, 160]
    FB = [128, 192]
    a.e('s_waitcnt vmcnt(0) lgkmcnt(0)')
    stamp(a, 2)
    a.e(f'v_lshlrev_b32 v41, {pf_shift()}, v0')
    prefetch(a, 48, 28672, 256, 52, 41, 42)
    prefetch(a, 50, 28672, 256, 56, 41, 42)
    a.e('s_bitcmp1_b32 s16, 0')
    a.e('s_cselect_b32 s41, 0, 16')
    a.e('s_lshl_b32 s37, s37, s41')
    a.e('s_and_b32 s37, s37, 0xffff0000')
    def reads(r, buf):
        L = []
        for x in range(8):
            d = x
            L.append(f'ds_read_b128 v[{FB[buf]+4*d}:{FB[buf]+4*d+3}], v{VB} offset:{512*(7-d)+64*r}')
            mq = x
            o = 128 * (mq & 1) + 16 * r
            f = FA[buf] + 4 * mq
            L.append(f'ds_read2_b32 v[{f}:{f+1}], v{VA+(mq>>1)} offset0:{o} offset1:{o+1}')
            L.append(f'ds_read2_b32 v[{f+2}:{f+3}], v{VA+(mq>>1)} offset0:{o+2} offset1:{o+3}')
        return L
    for l in reads(0, 0):
        a.e(l)
    UE = 8
    for r in range(8):
        buf = r & 1
        nxt = reads(r + 1, buf ^ 1) if r < 7 else []
        if r == 7:
            a.e('v_lshlrev_b32 v32, 5, v5')
            a.e('v_lshl_add_u32 v32, v6, 3, v32')
            a.e(f'v_sub_u32 v34, {4088-3584}, v32')
            a.e('v_add_u32 v34, s18, v34')
            a.e('v_add_u32 v35, s18, v32')
            nxt = [f'ds_read_b64 v[{UE+2*c}:{UE+2*c+1}], v34 offset:{512*(7-c)}' for c in range(8)]
        a.e('s_waitcnt lgkmcnt(0)')
        k = 0
        for mq in range(8):
            for d in range(8 - mq):
                c = mq + d
                fa = FA[buf] + 4 * mq; fb = FB[buf] + 4 * d
                a.e(f'v_mfma_f32_16x16x32_bf16 v[{ACC+4*c}:{ACC+4*c+3}], v[{fa}:{fa+3}], v[{fb}:{fb+3}], v[{ACC+4*c}:{ACC+4*c+3}]')
                if k < len(nxt):
                    a.e(nxt[k]); k += 1
    a.e('s_waitcnt lgkmcnt(0)')
    stamp(a, 3)
    X = 96
    for c in range(8):
        unpack(a, X + 4 * c + 3, X + 4 * c + 2, UE + 2 * c)
        unpack(a, X + 4 * c + 1, X + 4 * c + 0, UE + 2 * c + 1)
    for c in range(8):
        for r in range(4):
            a.e(f'v_fma_f32 v{X+4*c+r}, v{X+4*c+r}, s37, v{ACC+4*c+r}')
        a.e(f'v_cvt_pk_bf16_f32 v{UE+2*c}, v{X+4*c}, v{X+4*c+1}')
        a.e(f'v_cvt_pk_bf16_f32 v{UE+2*c+1}, v{X+4*c+2}, v{X+4*c+3}')
        a.e(f'ds_write_b64 v35, v[{UE+2*c}:{UE+2*c+1}] offset:{4608+512*c}')
    a.e('v_lshlrev_b32 v32, 2, v0')
    a.e('v_lshrrev_b32 v33, 2, v0')
    a.e('v_lshlrev_b32 v33, 14, v33')
    a.e('v_and_b32 v34, 3, v0')
    a.e('v_lshl_add_u32 v33, v34, 4, v33')
    a.e('s_lshl_b32 s42, s17, 6')
    a.e('s_mov_b32 s43, 0x05040100')
    a.e('s_mov_b32 s44, 0x07060302')
    a.e('s_waitcnt lgkmcnt(0)')
    a.e('s_barrier')
    stamp(a, 4)
    Y = 96
    for P in range(4):
        for ch in range(4):
            a.e(f'ds_read_b32 v{Y+4*P+ch}, v32 offset:{ch*KA_REG+4608+1024*P}')
    O = 128
    for P in range(4):
        a.e(f's_waitcnt lgkmcnt({12-4*P})')
        y = Y + 4 * P; o = O + 4 * P
        a.e(f'v_perm_b32 v{o}, v{y+1}, v{y}, s43')
        a.e(f'v_perm_b32 v{o+1}, v{y+3}, v{y+2}, s43')
        a.e(f'v_perm_b32 v{o+2}, v{y+1}, v{y}, s44')
        a.e(f'v_perm_b32 v{o+3}, v{y+3}, v{y+2}, s44')
        a.e(f'buffer_store_dwordx4 v[{o}:{o+3}], v33, s[28:31], s42 offen' + sf())
        if P < 3:
            a.e(f's_add_u32 s42, s42, {64*16384:#x}')
    stamp_out(a, 1, 6, 12)
    tail(a, name)
    return desc(name, 224)

def wave_sum(a, v, s, tmp):
    for sh in (1, 2, 4, 8):
        a.e('s_nop 1')
        a.e(f'v_add_f32_dpp v{v}, v{v}, v{v} row_shr:{sh} row_mask:0xf bank_mask:0xf bound_ctrl:0')
    a.e('s_nop 1')
    a.e(f'v_add_f32_dpp v{v}, v{v}, v{v} row_bcast:15 row_mask:0xa bank_mask:0xf')
    a.e('s_nop 1')
    a.e(f'v_add_f32_dpp v{v}, v{v}, v{v} row_bcast:31 row_mask:0xc bank_mask:0xf')
    a.e('s_nop 0')
    a.e(f'v_readlane_b32 s{s}, v{v}, 63')

def rbf(a, v):
    a.e(f'v_cvt_pk_bf16_f32 v{v}, v{v}, v{v}')
    a.e(f'v_and_b32 v{v}, s90, v{v}')

def ln_stats(a, X, T, M, R):
    for q in range(4):
        a.e(f'v_pk_add_f32 v[{T+2*q}:{T+2*q+1}], v[{X+4*q}:{X+4*q+1}], v[{X+4*q+2}:{X+4*q+3}]')
    a.e(f'v_pk_add_f32 v[{T}:{T+1}], v[{T}:{T+1}], v[{T+2}:{T+3}]')
    a.e(f'v_pk_add_f32 v[{T+4}:{T+5}], v[{T+4}:{T+5}], v[{T+6}:{T+7}]')
    a.e(f'v_pk_add_f32 v[{T}:{T+1}], v[{T}:{T+1}], v[{T+4}:{T+5}]')
    a.e(f'v_add_f32 v{T}, v{T}, v{T+1}')
    wave_sum(a, T, 40, None)
    a.e('s_nop 1')
    a.e(f'v_mul_f32 v{M}, s40, v{M+2}')
    a.e(f'v_mov_b32 v{M+1}, v{M}')
    for q in range(8):
        a.e(f'v_pk_add_f32 v[{T+2*q}:{T+2*q+1}], v[{X+2*q}:{X+2*q+1}], v[{M}:{M+1}] neg_lo:[0,1] neg_hi:[0,1]')
    a.e(f'v_pk_mul_f32 v[{R}:{R+1}], v[{T}:{T+1}], v[{T}:{T+1}]')
    a.e(f'v_pk_mul_f32 v[{T}:{T+1}], v[{T+2}:{T+3}], v[{T+2}:{T+3}]')
    for q in range(2, 8, 2):
        a.e(f'v_pk_fma_f32 v[{R}:{R+1}], v[{T+2*q}:{T+2*q+1}], v[{T+2*q}:{T+2*q+1}], v[{R}:{R+1}]')
        a.e(f'v_pk_fma_f32 v[{T}:{T+1}], v[{T+2*q+2}:{T+2*q+3}], v[{T+2*q+2}:{T+2*q+3}], v[{T}:{T+1}]')
    a.e(f'v_pk_add_f32 v[{T}:{T+1}], v[{T}:{T+1}], v[{R}:{R+1}]')
    a.e(f'v_add_f32 v{T}, v{T}, v{T+1}')
    rbf(a, M)
    wave_sum(a, T, 41, None)
    a.e(f'v_mov_b32 v{M+1}, v{M}')
    a.e('s_nop 0')
    a.e(f'v_mul_f32 v{R}, s41, v{M+2}')
    rbf(a, R)
    a.e(f'v_add_f32 v{R}, 0x3727c5ac, v{R}')
    rbf(a, R)
    a.e(f'v_sqrt_f32 v{R}, v{R}')
    a.e('s_nop 0')
    rbf(a, R)
    a.e(f'v_rcp_f32 v{R}, v{R}')
    a.e('s_nop 0')
    a.e(f'v_mov_b32 v{R+1}, v{R}')

def gen_kb(a):
    name = 'kb_kernel'
    head(a, name, 256)
    a.e(f's_load_dwordx2 s[4:5], s[0:1], {KA_Q}')
    a.e(f's_load_dwordx2 s[6:7], s[0:1], {KA_W2}')
    a.e(f's_load_dwordx2 s[10:11], s[0:1], {KA_WS}')
    a.e('v_lshrrev_b32 v1, 6, v0')
    a.e('v_and_b32 v2, 63, v0')
    a.e('v_readfirstlane_b32 s12, v1')
    a.e('s_mov_b32 s90, 0xffff0000')
    a.e('v_lshlrev_b32 v3, 4, v2')
    a.e('v_lshlrev_b32 v4, 7, v2')
    a.e('v_add_u32 v5, 0x2000, v4')
    a.e('s_lshl_b32 s13, s2, 3')
    a.e('s_add_u32 s13, s13, s12')
    a.e('s_lshl_b32 s14, s13, 11')
    a.e('s_lshl_b32 s15, s2, 14')
    a.e('s_lshl_b32 s16, s12, 3')
    a.e('s_add_u32 s15, s15, s16')
    TM = _gm.OPT.get('tm', 2)
    lt = TM.bit_length() - 1
    a.e(f's_lshr_b32 s16, s13, {4+lt}')
    a.e(f's_lshl_b32 s16, s16, {15+lt}')
    a.e(f's_bfe_u32 s17, s13, {(lt<<16)|4:#x}')
    a.e('s_lshl_b32 s17, s17, 10')
    a.e('s_add_u32 s16, s16, s17')
    a.e('s_and_b32 s17, s13, 15')
    a.e('s_lshl_b32 s17, s17, 4')
    a.e('s_add_u32 s16, s16, s17')
    a.e(f's_add_u32 s17, s16, {16*TM*1024}')
    a.e('v_lshrrev_b32 v6, 2, v2')
    a.e(f'v_lshlrev_b32 v6, {10+lt}, v6')
    a.e('v_and_b32 v7, 3, v2')
    a.e('v_lshl_add_u32 v6, v7, 8, v6')
    a.e('s_lshl_b32 s18, s13, 6')
    a.e('s_waitcnt lgkmcnt(0)')
    srd(a, 20, 4, 4 * MB)
    srd(a, 24, 10, 4 * MB, WS_Y2)
    srd(a, 28, 10, 4 * MB, WS_H)
    srd(a, 32, 10, 4 * MB, WS_HNF)
    XR, YR, X, Y, T, M, R = 8, 16, 24, 40, 56, 72, 76
    a.e(f'buffer_load_dwordx4 v[{XR}:{XR+3}], v3, s[20:23], s14 offen')
    a.e(f'buffer_load_dwordx4 v[{XR+4}:{XR+7}], v3, s[20:23], s14 offen offset:1024')
    a.e(f'buffer_load_dwordx2 v[{YR}:{YR+1}], v4, s[24:27], s15 offen')
    a.e(f'buffer_load_dwordx2 v[{YR+2}:{YR+3}], v4, s[24:27], s15 offen offset:64')
    a.e(f'buffer_load_dwordx2 v[{YR+4}:{YR+5}], v5, s[24:27], s15 offen')
    a.e(f'buffer_load_dwordx2 v[{YR+6}:{YR+7}], v5, s[24:27], s15 offen offset:64')
    a.e(f'v_mov_b32 v{M+2}, 0x3a800000')
    srd(a, 44, 10, 131072, _gm.WS_FLG)
    a.e('v_mov_b32 v7, 0')
    a.e('s_mov_b64 exec, 1')
    a.e('buffer_store_dword v7, v7, s[44:47], s18 offen')
    a.e('s_mov_b64 exec, -1')
    a.e(f'v_lshlrev_b32 v78, {pf_shift()}, v0')
    npf = prefetch(a, 6, 28672, 512, 48, 78, 79)
    stamp(a, 1)
    a.e(f's_waitcnt vmcnt({5+npf})')
    stamp(a, 2)
    for q in range(8):
        unpack(a, X + 2 * q, X + 2 * q + 1, XR + q)
    ln_stats(a, X, T, M, R)
    for q in range(8):
        a.e(f'v_pk_add_f32 v[{T+2*q}:{T+2*q+1}], v[{X+2*q}:{X+2*q+1}], v[{M}:{M+1}] neg_lo:[0,1] neg_hi:[0,1]')
    for q in range(8):
        a.e(f'v_pk_mul_f32 v[{T+2*q}:{T+2*q+1}], v[{T+2*q}:{T+2*q+1}], v[{R}:{R+1}]')
    a.e(f's_waitcnt vmcnt({1+npf})')
    stamp(a, 3)
    for q in range(8):
        unpack(a, Y + 2 * q, Y + 2 * q + 1, YR + q)
    for q in range(8):
        a.e(f'v_pk_fma_f32 v[{X+2*q}:{X+2*q+1}], v[{T+2*q}:{T+2*q+1}], v[{Y+2*q}:{Y+2*q+1}], v[{X+2*q}:{X+2*q+1}]')
    for q in range(8):
        a.e(f'v_cvt_pk_bf16_f32 v{XR+q}, v{X+2*q}, v{X+2*q+1}')
    a.e(f'buffer_store_dwordx4 v[{XR}:{XR+3}], v3, s[28:31], s14 offen' + sf())
    a.e(f'buffer_store_dwordx4 v[{XR+4}:{XR+7}], v3, s[28:31], s14 offen offset:1024' + sf())
    for q in range(8):
        unpack(a, X + 2 * q, X + 2 * q + 1, XR + q)
    ln_stats(a, X, T, M, R)
    for q in range(8):
        a.e(f'v_pk_add_f32 v[{T+2*q}:{T+2*q+1}], v[{X+2*q}:{X+2*q+1}], v[{M}:{M+1}] neg_lo:[0,1] neg_hi:[0,1]')
    for q in range(8):
        a.e(f'v_pk_mul_f32 v[{T+2*q}:{T+2*q+1}], v[{T+2*q}:{T+2*q+1}], v[{R}:{R+1}]')
    for q in range(8):
        a.e(f'v_cvt_pk_bf16_f32 v{YR+q}, v{T+2*q}, v{T+2*q+1}')
    stamp(a, 4)
    a.e(f'buffer_store_dwordx4 v[{YR}:{YR+3}], v6, s[32:35], s16 offen' + sf())
    a.e(f'buffer_store_dwordx4 v[{YR+4}:{YR+7}], v6, s[32:35], s17 offen' + sf())
    stamp_out(a, 2, 6, 12)
    tail(a, name)
    return desc(name, 80)

def gen_nop(a):
    name = 'nop_kernel'
    a.raw(f'.globl {name}')
    a.raw('.p2align 8')
    a.raw(f'.type {name},@function')
    a.raw(f'{name}:')
    a.e('s_endpgm')
    return desc(name, 8)

def gen_dg(a):
    name = 'dg_kernel'
    d = str(_gm.OPT['dg']).zfill(5)
    F, ka, ja, kb, jb = [int(c) for c in d]
    a.raw(f'.globl {name}')
    a.raw('.p2align 8')
    a.raw(f'.type {name},@function')
    a.raw(f'{name}:')
    a.e(f's_load_dwordx2 s[10:11], s[0:1], {KA_WS}')
    a.e('s_memrealtime s[12:13]')
    a.e('s_waitcnt lgkmcnt(0)')
    a.e(f's_add_u32 s10, s10, {STAMP_BASE:#x}')
    a.e('s_addc_u32 s11, s11, 0')
    a.e(f's_load_dword s4, s[10:11], {ka*131072+4*ja:#x}')
    a.e(f's_load_dword s5, s[10:11], {kb*131072+4*jb:#x}')
    a.e('s_waitcnt lgkmcnt(0)')
    a.e('s_sub_u32 s4, s5, s4')
    a.e('s_min_u32 s4, s4, 5000')
    a.e(f's_mul_i32 s4, s4, {F-1}')
    a.e('L_dg:')
    a.e('s_memrealtime s[14:15]')
    a.e('s_waitcnt lgkmcnt(0)')
    a.e('s_sub_u32 s5, s14, s12')
    a.e('s_cmp_lt_u32 s5, s4')
    a.e('s_cbranch_scc1 L_dg')
    a.e('s_endpgm')
    return desc(name, 8)

from gemms import gen_g1, gen_g2, G1_LDS, G2_LDS

def build(kernels=None):
    a = Asm()
    hdr = open('cdna_kernels/' + NAME + '.s.ref').read().split('\n')
    cm = [l for l in hdr if l.startswith(';') and '@launch' not in l and 'Override launch' not in l and 'grid=ceil' not in l]
    launches = [
        ('k0_kernel', 256, 256, 0, gen_k0),
        ('ka_kernel', 256, 256, 4 * KA_REG, gen_ka),
        ('kb_kernel', 256, 512, 0, gen_kb),
        ('g1_kernel', 256, 1024 // _gm.OPT.get('tm', 2), G1_LDS, gen_g1),
        ('g2_kernel', 256, 512, G2_LDS, gen_g2),
    ]
    nn = _gm.OPT.get('nops', 0)
    pos = _gm.OPT.get('noppos', 5)
    launches = launches[:pos] + [('nop_kernel', 256, 64, 0, gen_nop)] * nn + launches[pos:]
    sq = _gm.OPT.get('seq')
    if sq:
        launches = [launches[int(c) - 1] for c in str(sq)]
    if _gm.OPT.get('dg'):
        launches.append(('dg_kernel', 1, 64, 0, gen_dg))
    if kernels:
        launches = [l for l in launches if l[0] in kernels]
    out = '\n'.join(cm) + '\n'
    for n, g, b, lds, _ in launches:
        out += f'; @launch kernel={n} grid=({g},1,1) block=({b},1,1) lds={lds}\n'
    a.raw('.amdgcn_target "amdgcn-amd-amdhsa--gfx950"')
    a.raw('.text')
    descs = []
    done = set()
    for n, g, b, lds, fn in launches:
        if n in done: continue
        done.add(n)
        descs.append(fn(a))
    body = a.text()
    errs = check_hazards(body)
    for n in done:
        errs += check_waits(body, n, take_fwd=('L_g2_got',))
    for e in errs:
        print(e, file=sys.stderr)
    out += body + '.section .rodata,"a"\n' + ''.join(descs)
    return out, errs

if __name__ == '__main__':
    outp = sys.argv[1] if len(sys.argv) > 1 else 'cdna_kernels/' + NAME + '.s'
    for kv in sys.argv[2:]:
        k, v = kv.split('=')
        OPT[k] = int(v)
    import gemms
    gemms.OPT.update(OPT)
    t, errs = build()
    open(outp, 'w').write(t)
    print('written', outp, len(t), 'bytes;', len(errs), 'checker errors')
```

```python
from asmlib import *
OPT = dict(mimic=0)
MB = 1 << 20
import os
WS0 = int(os.environ.get('WS0', '0')) * MB
WS_UB, WS_Y2, WS_H, WS_HNF, WS_HF = WS0, WS0 + 4 * MB, WS0 + 8 * MB, WS0 + 12 * MB, WS0 + 16 * MB
KA_Q, KA_K, KA_V, KA_SH, KA_SSMK, KA_D, KA_X, KA_W1, KA_W3, KA_W2, KA_OUT, KA_DBG, KA_WS = [8 * i for i in range(13)]

G1_STG = 32768
G1_NS = 4
G1_LDS = G1_STG * G1_NS
G2_STG = 32768
G2_LDS = 163840
WS_XP, WS_FLG = WS0 + 32 * MB, WS0 + 40 * MB

def _imp():
    import gen
    return gen

def gen_g1(a):
    g = _imp()
    TM = OPT.get('tm', 4)
    NW = 16 // TM
    DPW = 32 // NW
    name = 'g1_kernel'
    g.head(a, name, 256)
    a.e(f's_load_dwordx4 s[4:7], s[0:1], {KA_W1}')
    a.e(f's_load_dwordx2 s[10:11], s[0:1], {KA_WS}')
    if TM == 2:
        ACC, FR, WF, TF, DV, VT, VR, VL, NV = 16, 'v', 128, 156, 188, 192, 193, 194, 196
        NA = 0
    else:
        ACC, FR, WF, TF, DV, VT, VR, VL, NV = 32, 'a', 0, 28, 8, 16, 17, 18, 256
        NA = 28 + 64
    ND = 4
    a.e('v_lshrrev_b32 v1, 6, v0')
    a.e('v_and_b32 v2, 63, v0')
    a.e('v_readfirstlane_b32 s12, v1')
    a.e('s_bfe_u32 s53, s2, 0x10005')
    a.e('s_lshl_b32 s54, s53, 1')
    a.e('s_movk_i32 s38, 4682')
    a.e('s_movk_i32 s40, 7168')
    a.e('v_mov_b32 v19, 0x80000000')
    a.e('v_subrev_u32 v3, 8, v2')
    for src, dst, cond in ((2, 20, 'v_cmp_gt_u32 vcc, 56, v2'), (3, 21, 'v_cmp_gt_u32 vcc, 56, v3')):
        a.e(cond)
        a.e(f'v_mul_u32_u24 v5, s38, v{src}')
        a.e('v_lshrrev_b32 v5, 16, v5')
        a.e('v_mul_u32_u24 v6, 14, v5')
        a.e(f'v_sub_u32 v6, v{src}, v6')
        a.e('v_add_u32 v6, s54, v6')
        a.e('v_subrev_u32 v7, 14, v6')
        a.e('v_min_u32 v6, v6, v7')
        a.e('v_mul_u32_u24 v5, s40, v5')
        a.e('v_lshl_add_u32 v5, v6, 4, v5')
        a.e(f'v_cndmask_b32 v{dst}, v19, v5, vcc')
    a.e('s_and_b32 s13, s2, 7')
    a.e('s_lshr_b32 s14, s2, 3')
    a.e('s_and_b32 s15, s13, 1')
    a.e('s_lshl_b32 s15, s15, 2')
    a.e('s_and_b32 s16, s14, 3')
    a.e('s_add_u32 s15, s15, s16')
    a.e('s_lshr_b32 s16, s13, 1')
    a.e('s_lshl_b32 s16, s16, 3')
    a.e('s_lshr_b32 s17, s14, 2')
    a.e('s_add_u32 s16, s16, s17')
    a.e(f's_mul_i32 s17, s15, {NW}')
    a.e('s_add_u32 s17, s17, s12')
    a.e(f's_and_b32 s18, s12, {NW//2-1}')
    a.e(f's_lshr_b32 s19, s12, {(NW//2).bit_length()-1}')
    a.e(f'v_lshlrev_b32 v{VT}, 4, v2')
    a.e(f's_mul_i32 s42, s17, {TM*32768}')
    a.e('s_mul_i32 s41, s16, 224')
    a.e(f's_mul_i32 s45, s18, {DPW*4*7168}')
    for i in range(DPW):
        pat = 21 if (i >> 1) & 1 else 20
        c = i * 4 * 7168 - 1024 * (i & 3)
        a.e(f'v_add_u32 v{DV+i}, {c}, v{pat}' if c else f'v_mov_b32 v{DV+i}, v{pat}')
    a.e('s_lshl_b32 s39, s19, 14')
    a.e(f's_mul_i32 s40, s18, {1024*DPW}')
    a.e('s_add_u32 s46, s39, s40')
    a.e('s_mov_b32 s47, 0')
    a.e('s_cmp_eq_u32 s19, 0')
    a.e('s_waitcnt lgkmcnt(0)')
    a.e('s_cselect_b32 s4, s4, s6')
    a.e('s_cselect_b32 s5, s5, s7')
    g.srd(a, 20, 4, 0, 0, 41)
    a.e('s_sub_u32 s22, 7340032, s41')
    g.srd(a, 24, 10, TM * 32768, WS_HNF, 42)
    def m0set(i):
        return f's_add_u32 m0, s46, {4096*(i//4)}' if i else 's_mov_b32 m0, s46'
    def dma(i):
        return f'buffer_load_dwordx4 v{DV+i}, s[20:23], s45 offen offset:{1024*(i&3)} lds'
    def dma_adv():
        return ['s_add_u32 s45, s45, 458752', f's_add_u32 s46, s46, {G1_STG}', f's_and_b32 s46, s46, {G1_STG*G1_NS-1:#x}']
    KB = TM * 1024
    def tok(buf, tm, j):
        f = TF + 4 * (TM * buf + tm)
        off = tm * 1024 + (j * KB if TM == 2 else 0)
        return f'buffer_load_dwordx4 {FR}[{f}:{f+3}], v{VT}, s[24:27], s47 offen offset:{off}'
    def tok_adv(j):
        if TM == 2:
            return ['s_add_u32 s47, s47, 4096'] if j == 1 else []
        return ['s_add_u32 s47, s47, 4096']
    def rd(ph, t):
        j, mat = (ph & 3) >> 1, ph & 1
        return [f'ds_read_b64_tr_b16 {FR}[{WF+4*t+2*h}:{WF+4*t+2*h+1}], v{VR} offset:{8192*j+1024*h+32*t+16384*mat}' for h in range(2)]
    dph = [list(range(DPW))[i*DPW//4:(i+1)*DPW//4] for i in range(4)]
    tph = {0: list(range(TM//2, TM)), 1: list(range(0, TM//2)), 2: list(range(TM//2, TM)), 3: list(range(0, TM//2))}
    def kof(s_, P): return 2 * s_ + (-1, 0, 0, 1)[P]
    ev = []
    marks = {}
    for s_ in range(-4, 8):
        for P in range(4):
            marks[(s_, P)] = len(ev)
            dl = [('D', s_ + 2, i) for i in dph[P]]
            tl = [('T', kof(s_, P) + ND - 1, tm) for tm in tph[P]]
            L = []
            while dl or tl:
                if dl: L.append(dl.pop(0))
                if tl: L.append(tl.pop(0))
            ev += L
    def younger(tag, at):
        last = max(i for i, e in enumerate(ev) if e[:2] == tag)
        assert last < marks[at], (tag, at)
        return marks[at] - last - 1
    vm_bar = younger(('D', 4), (4, 0))
    vm_p1 = younger(('T', 8), (4, 1))
    vm_p3 = younger(('T', 9), (4, 3))
    def ev_ins(e):
        L = []
        if e[0] == 'D':
            if e[2] % 4 == 0: L.append(m0set(e[2]))
            L.append(dma(e[2]))
            if e[2] == DPW - 1: L += dma_adv()
        else:
            L.append(tok(e[1] % ND, e[2], e[1] & 1))
            if e[2] == TM - 1: L += tok_adv(e[1] & 1)
        return L
    def emit_ev(e):
        for l in ev_ins(e):
            a.e(l)
            if 'm0' in l: a.e('s_nop 0')
    pro = [e for e in ev[:marks[(0, 0)]] if e[1] >= 0]
    first = [e for e in pro if e[:2] in (('D', 0), ('T', 0))]
    first.sort(key=lambda e: e[0])
    pro = first + [e for e in pro if e not in first]
    for e in pro: emit_ev(e)
    a.e('v_lshrrev_b32 v4, 4, v2')
    a.e('v_lshlrev_b32 v4, 11, v4')
    a.e('v_bfe_u32 v5, v2, 4, 1')
    a.e('v_lshl_add_u32 v4, v5, 7, v4')
    a.e('v_bfe_u32 v6, v2, 2, 2')
    a.e('v_mul_u32_u24 v5, 224, v6')
    a.e('v_and_b32 v6, 3, v2')
    a.e('v_lshl_add_u32 v5, v6, 3, v5')
    a.e(f'v_add_u32 v{VL}, v4, v5')
    a.e(f'v_mov_b32 v{VR}, v{VL}')
    a.e('s_mul_i32 s43, s16, 7')
    a.e('s_add_u32 s43, s43, s53')
    a.e('s_lshl_b32 s43, s43, 9')
    a.e('s_movk_i32 s44, 3072')
    a.e('s_cmp_eq_u32 s53, 0')
    a.e('s_cselect_b32 s44, s44, 0xfffffc08')
    a.e('s_add_u32 s44, s44, s43')
    a.e(f's_mul_i32 s55, s17, {TM*114688}')
    g.srd(a, 28, 10, TM * 114688, WS_HF, 55)
    g.g1_extra(a)
    for r in range(56 * TM):
        a.e(f'v_mov_b32 v{ACC+r}, 0')
    a.e('s_mov_b32 s48, 0')
    a.e('s_mov_b32 s49, 0')
    g.stamp(a, 1)
    nx = g.G1_EXTRA_VM[0]
    a.e(f's_waitcnt vmcnt({len(pro)-DPW+nx})')
    a.e('s_barrier')
    g.stamp(a, 2)
    for t in range(6):
        for l in rd(0, t): a.e(l)
    for e in ev[marks[(0, 0)]:marks[(0, 1)]]: emit_ev(e)
    act = pro + [('X', 0, 0)] * nx + ev[marks[(0, 0)]:]
    off = len(pro) + nx - marks[(0, 0)]
    need = -1
    for s_ in range(0, 6):
        for P, tags, N in ((0, [('D', s_)], vm_bar), (1, [('T', 2 * s_)], vm_p1), (3, [('T', 2 * s_ + 1)], vm_p3)):
            if (s_, P) == (0, 0): continue
            site = marks[(s_, P)] + off
            for tg in tags:
                last = max(i for i, e in enumerate(act) if e[:2] == tg)
                if site - last - 1 < N: need = max(need, last)
    if need >= 0:
        a.e(f's_waitcnt vmcnt({marks[(0, 1)] + off - need - 1})')
    a.e('s_branch L_g1_P1')
    snake = [0]
    def phase(s_, P, last=False):
        kbuf = kof(s_, P) % ND
        mat = (P + 1) & 1
        items = []
        if not last:
            nxt = marks[(s_, P + 1)] if P < 3 else marks[(s_ + 1, 0)]
            items = [ev_ins(e) for e in ev[marks[(s_, P)]:nxt]]
        slots = [[] for _ in range(7)]
        pos = [1, 2, 4, 5] if len(items) == 4 else [1, 4]
        for p_, it in zip(pos, items): slots[p_] = it
        if P == 0 and not last:
            slots[0] = [f'v_add_u32 v{VR}, s48, v{VL}']
        for t in range(7):
            a.e(f's_waitcnt lgkmcnt({10 if not (last and t) else 12-2*t})')
            R = rd(P - 1, 6) if t == 0 else ([] if last else rd(P, t - 1))
            X = list(slots[t])
            pre = [x for x in X if 'm0' in x]
            X = [x for x in X if 'm0' not in x]
            gaps = [[] for _ in range(TM)]
            if TM == 4:
                if R: gaps[0] = pre + [R[0]]; gaps[1] = [R[1]]
                gaps[2] = X[:1]; gaps[3] = X[1:]
            else:
                gaps[0] = pre + R[:1]; gaps[1] = R[1:] + X
            order = list(range(TM))
            if (snake[0] & 1) and OPT.get('snake', 1): order.reverse()
            snake[0] += 1
            for n, tm in enumerate(order):
                c = ACC + 4 * ((mat * 7 + t) * TM + tm)
                tf = TF + 4 * (TM * kbuf + tm)
                a.e(f'v_mfma_f32_16x16x32_bf16 v[{c}:{c+3}], {FR}[{WF+4*t}:{WF+4*t+3}], {FR}[{tf}:{tf+3}], v[{c}:{c+3}]')
                for x in gaps[n]: a.e(x)
    a.e('L_g1_loop:')
    for s_ in (4, 5):
        a.e(f's_add_u32 s48, s48, {G1_STG}')
        a.e(f's_and_b32 s48, s48, {G1_STG*G1_NS-1:#x}')
        a.e(f's_waitcnt vmcnt({vm_bar})')
        a.e('s_barrier')
        phase(s_, 0)
        if s_ == 4:
            a.e('L_g1_P1:')
        a.e(f's_waitcnt vmcnt({vm_p1})')
        phase(s_, 1)
        phase(s_, 2)
        a.e(f's_waitcnt vmcnt({vm_p3})')
        phase(s_, 3)
    a.e('s_add_u32 s49, s49, 1')
    a.e('s_cmp_lt_u32 s49, 8')
    a.e('s_cbranch_scc1 L_g1_loop')
    phase(6, 0, last=True)
    g.stamp(a, 3)
    a.e('s_mov_b32 s50, 0xbfb8aa3b')
    a.e('s_mov_b32 s51, 0xbfb8aa3b')
    a.e('s_nop 4')
    E = 128 if TM == 2 else 0
    k = 0
    for tm in range(TM):
        for u in range(4):
            T = E + 8 * (k & 1) if TM == 2 else (0, 8)[k & 1]
            O = E + 16 + 4 * (k & 1) if TM == 2 else (20, 24)[k & 1]
            k += 1
            tiles = [2 * u, 2 * u + 1] if u < 3 else [6]
            gs = []; us = []
            for t in tiles:
                gs += [ACC + 4 * (t * TM + tm), ACC + 4 * (t * TM + tm) + 2]
                us += [ACC + 4 * ((7 + t) * TM + tm), ACC + 4 * ((7 + t) * TM + tm) + 2]
            n = len(gs)
            for q in range(n):
                a.e(f'v_pk_mul_f32 v[{T+2*q}:{T+2*q+1}], v[{gs[q]}:{gs[q]+1}], s[50:51]')
            for q in range(2 * n):
                a.e(f'v_exp_f32 v{T+q}, v{T+q}')
            for q in range(n):
                a.e(f'v_pk_add_f32 v[{T+2*q}:{T+2*q+1}], v[{T+2*q}:{T+2*q+1}], 1.0 op_sel_hi:[1,0]')
            for q in range(2 * n):
                a.e(f'v_rcp_f32 v{T+q}, v{T+q}')
            for q in range(n):
                a.e(f'v_pk_mul_f32 v[{gs[q]}:{gs[q]+1}], v[{gs[q]}:{gs[q]+1}], v[{us[q]}:{us[q]+1}]')
            for q in range(n):
                a.e(f'v_pk_mul_f32 v[{T+2*q}:{T+2*q+1}], v[{T+2*q}:{T+2*q+1}], v[{gs[q]}:{gs[q]+1}]')
            for q in range(n):
                a.e(f'v_cvt_pk_bf16_f32 v{O+q}, v{T+2*q}, v{T+2*q+1}')
            if u < 3:
                a.e(f'buffer_store_dwordx4 v[{O}:{O+3}], v{VT}, s[28:31], s43 offen offset:{1024*u}' + g.sf('g1sc'))
            else:
                a.e(f'buffer_store_dwordx2 v[{O}:{O+1}], v{VT}, s[28:31], s44 offen' + g.sf('g1sc'))
        if tm < TM - 1:
            a.e('s_add_u32 s43, s43, 114688')
            a.e('s_add_u32 s44, s44, 114688')
    g.stamp(a, 4)
    g.stamp_out(a, 3, 6, 12)
    g.tail(a, name)
    return g.desc(name, NV, agpr=NA)

def gen_g2(a):
    g = _imp()
    name = 'g2_kernel'
    g.head(a, name, 256)
    a.e(f's_load_dwordx4 s[4:7], s[0:1], {KA_W2}')
    a.e(f's_load_dwordx2 s[10:11], s[0:1], {KA_WS}')
    a.e('v_lshrrev_b32 v1, 6, v0')
    a.e('v_and_b32 v2, 63, v0')
    a.e('v_readfirstlane_b32 s12, v1')
    a.e('s_and_b32 s13, s2, 1')
    a.e('s_lshr_b32 s14, s2, 3')
    a.e('s_bfe_u32 s15, s2, 0x20001')
    a.e('s_lshl_b32 s15, s15, 2')
    a.e('s_and_b32 s16, s14, 3')
    a.e('s_add_u32 s15, s15, s16')
    a.e('s_lshr_b32 s16, s14, 2')
    a.e('s_and_b32 s18, s12, 3')
    a.e('s_lshr_b32 s19, s12, 2')
    ND = 8
    ACC, WF, TF, R0, DV, VT, HR, VO = 16, 80, 112, 176, 192, 196, 198, 206
    a.e(f'v_lshlrev_b32 v{VT}, 4, v2')
    a.e('v_lshrrev_b32 v3, 4, v2')
    a.e('v_bfe_u32 v4, v2, 1, 3')
    a.e('v_xor_b32 v4, v4, v3')
    a.e('v_and_b32 v5, 1, v2')
    a.e('v_lshlrev_b32 v5, 4, v5')
    a.e('v_lshl_add_u32 v5, v4, 5, v5')
    a.e('s_lshl_b32 s36, s12, 4')
    a.e('v_add_u32 v6, s36, v3')
    a.e('v_lshlrev_b32 v6, 11, v6')
    a.e(f'v_add_u32 v{DV}, v5, v6')
    a.e('v_xor_b32 v5, 128, v5')
    a.e(f'v_add_u32 v{DV+2}, {16384-2048}, v{DV}')
    a.e(f'v_add_u32 v6, {8192-1024}, v6')
    a.e(f'v_add_u32 v{DV+1}, v5, v6')
    a.e(f'v_add_u32 v{DV+3}, {16384-2048}, v{DV+1}')
    a.e('s_lshl_b32 s17, s15, 3')
    a.e('s_lshl_b32 s36, s18, 1')
    a.e('s_add_u32 s17, s17, s36')
    a.e('s_add_u32 s17, s17, s19')
    a.e('s_mul_i32 s36, s13, 56')
    a.e('s_lshl_b32 s37, s19, 1')
    a.e('s_add_u32 s36, s36, s37')
    a.e('s_lshl_b32 s36, s36, 10')
    a.e('s_mul_i32 s42, s17, 114688')
    a.e('s_add_u32 s42, s42, s36')
    a.e('s_xor_b32 s37, s17, 1')
    a.e('s_mul_i32 s43, s37, 114688')
    a.e('s_add_u32 s43, s43, s36')
    a.e('s_lshl_b32 s38, s19, 11')
    a.e('s_sub_u32 s38, 57344, s38')
    a.e('s_mul_i32 s40, s13, 3670016')
    a.e('s_lshl_b32 s41, s16, 8')
    a.e('s_add_u32 s40, s40, s41')
    a.e('s_lshl_b32 s39, s12, 12')
    a.e('s_waitcnt lgkmcnt(0)')
    g.srd(a, 20, 4, 0, 0, 40)
    a.e('s_sub_u32 s22, 3670016, s41')
    g.srd(a, 24, 10, 0, WS_HF, 42)
    a.e('s_mov_b32 s26, s38')
    g.srd(a, 28, 10, 0, WS_HF, 43)
    a.e('s_mov_b32 s30, s38')
    def m0set(slot):
        return f's_add_u32 m0, s39, {G2_STG*slot}' if slot else 's_mov_b32 m0, s39'
    def dma(i):
        return f'buffer_load_dwordx4 v{DV+i}, s[20:23], s45 offen offset:{1024*i} lds'
    def tok(k, tm):
        f = TF + 8 * (k % ND) + 4 * tm
        return f'buffer_load_dwordx4 v[{f}:{f+3}], v{VT}, s[{24+4*tm}:{27+4*tm}], s47 offen offset:{1024*(k&1)}'
    def rd(slot, j, t):
        f = WF + 4 * t
        return [f'ds_read_b64_tr_b16 v[{f+2*h}:{f+2*h+1}], v{R0+8*(slot>>1)+t} offset:{32768*(slot&1)+8192*j+4096*h}' for h in range(2)]
    ev = []; marks = {}
    for s_ in range(-5, 8):
        for P in range(2):
            marks[(s_, P)] = len(ev)
            k = 2 * s_ - 1 + P
            ev += [('D', s_ + 2, 2 * P), ('T', k + ND - 1, 0), ('D', s_ + 2, 2 * P + 1), ('T', k + ND - 1, 1)]
    def younger(tag, at):
        last = max(i for i, e in enumerate(ev) if e[:2] == tag)
        assert last < marks[at], (tag, at)
        return marks[at] - last - 1
    vm_bar = min(younger(('D', 6), (6, 0)), younger(('T', 11), (6, 0)))
    vm_p1 = younger(('T', 12), (6, 1))
    def ev_ins(e):
        L = []
        if e[0] == 'D':
            if e[2] == 0: L.append(m0set(e[1] % 4))
            L.append(dma(e[2]))
            if e[2] == 3: L.append('s_add_u32 s45, s45, 262144')
        else:
            L.append(tok(e[1], e[2]))
            if e[2] == 1 and (e[1] & 1): L.append('s_add_u32 s47, s47, 4096')
        return L
    a.e('s_mov_b32 s45, 0')
    a.e('s_mov_b32 s47, 0')
    pro = [e for e in ev[:marks[(0, 0)]] if e[1] >= 0]
    pro = [e for e in pro if e[:2] == ('D', 0)] + [e for e in pro if e[:2] != ('D', 0)]
    for e in pro:
        L = ev_ins(e)
        for l in L:
            a.e(l)
            if 'm0' in l: a.e('s_nop 0')
    a.e('v_bfe_u32 v4, v2, 2, 2')
    a.e('v_lshl_add_u32 v5, v3, 2, v4')
    a.e('s_lshl_b32 s36, s19, 6')
    a.e('v_and_b32 v6, 7, v5')
    a.e('v_add_u32 v5, s36, v5')
    a.e('v_lshlrev_b32 v5, 8, v5')
    a.e('v_and_b32 v7, 3, v2')
    a.e('v_lshl_add_u32 v5, v7, 3, v5')
    a.e('s_lshl_b32 s36, s13, 2')
    a.e('v_xor_b32 v6, s36, v6')
    for t in range(8):
        a.e(f'v_xor_b32 v7, {t}, v6')
        a.e(f'v_lshl_add_u32 v{R0+t}, v7, 5, v5')
        a.e(f'v_add_u32 v{R0+8+t}, 0x10000, v{R0+t}')
    a.e('v_and_b32 v4, 15, v2')
    a.e('v_lshlrev_b32 v4, 11, v4')
    a.e(f'v_lshl_add_u32 v{VO}, v3, 3, v4')
    a.e('s_lshl_b32 s53, s17, 15')
    a.e('s_add_u32 s53, s53, s41')
    a.e('s_lshl_b32 s36, s13, 7')
    a.e('s_add_u32 s53, s53, s36')
    g.srd(a, 32, 6, 4 * MB)
    g.srd(a, 56, 10, 4 * MB, WS_H)
    for r in range(64):
        a.e(f'v_mov_b32 v{ACC+r}, 0')
    a.e('s_mov_b32 s49, 0')
    g.stamp(a, 1)
    a.e(f's_waitcnt vmcnt({len(pro)-4})')
    a.e('s_barrier')
    g.stamp(a, 2)
    for t in range(8):
        for l in rd(0, 0, t): a.e(l)
    for e in ev[marks[(0, 0)]:marks[(0, 1)]]:
        for l in ev_ins(e):
            a.e(l)
            if 'm0' in l: a.e('s_nop 0')
    act = pro + ev[marks[(0, 0)]:]
    off = len(pro) - marks[(0, 0)]
    need = -1
    for s_ in range(0, 6):
        for P, tags, N in ((0, [('D', s_), ('T', 2 * s_ - 1)], vm_bar), (1, [('T', 2 * s_)], vm_p1)):
            if (s_, P) == (0, 0): continue
            site = marks[(s_, P)] + off
            for tg in tags:
                last = max(i for i, e in enumerate(act) if e[:2] == tg)
                if site - last - 1 < N: need = max(need, last)
    if need >= 0:
        a.e(f's_waitcnt vmcnt({marks[(0, 1)] + off - need - 1})')
    a.e('s_branch L_g2_entry')
    def phase(s_, P, last=False):
        k = 2 * s_ - 1 + P
        fill = [[] for _ in range(8)]
        if not last:
            es = ev[marks[(s_, P)]:marks[(s_, P)] + 4]
            for n, e in enumerate(es):
                fill[2 * n] = ev_ins(e)
        for t in range(8):
            a.e(f's_waitcnt lgkmcnt({14 if not last else 14-2*t})')
            pre = [x for x in fill[t] if 'm0' in x]
            post = [x for x in fill[t] if 'm0' not in x]
            for x in pre: a.e(x)
            for tm in range(2):
                c = ACC + 4 * (2 * t + tm)
                tf = TF + 8 * (k % ND) + 4 * tm
                a.e(f'v_mfma_f32_16x16x32_bf16 v[{c}:{c+3}], v[{WF+4*t}:{WF+4*t+3}], v[{tf}:{tf+3}], v[{c}:{c+3}]')
                if tm == 0:
                    for x in post: a.e(x)
            if not last:
                for x in rd(s_ % 4, P, t): a.e(x)
    a.e('L_g2_loop:')
    for sm in (2, 3, 4, 5):
        a.e(f's_waitcnt vmcnt({vm_bar})')
        a.e('s_barrier')
        phase(sm, 0)
        if sm == 4:
            a.e('L_g2_entry:')
        a.e(f's_waitcnt vmcnt({vm_p1})')
        phase(sm, 1)
    a.e('s_add_u32 s49, s49, 1')
    a.e('s_cmp_lt_u32 s49, 4')
    a.e('s_cbranch_scc1 L_g2_loop')
    a.e(f's_waitcnt vmcnt({younger(("T", 11), (6, 0))})')
    phase(6, 0, last=True)
    g.stamp(a, 3)
    for q in range(4):
        a.e(f'buffer_load_dwordx2 v[{HR+2*q}:{HR+2*q+1}], v{VO}, s[56:59], s53 offen offset:{32*q}')
    a.e('s_add_u32 s36, s39, 0x20000')
    a.e(f'v_add_u32 v3, s36, v{VT}')
    a.e('v_xor_b32 v4, 0x4000, v3')
    a.e(f'v_add_u32 v5, s39, v{VT}')
    a.e('v_xor_b32 v6, 0x4000, v5')
    a.e('s_lshl_b32 s36, s2, 3')
    a.e('s_add_u32 s36, s36, s12')
    a.e('s_lshl_b32 s37, s36, 12')
    a.e('s_xor_b32 s38, s37, 0x8000')
    a.e('s_lshl_b32 s40, s36, 6')
    a.e('s_xor_b32 s41, s40, 0x200')
    g.srd(a, 20, 10, 8 * MB, WS_XP)
    g.srd(a, 24, 10, 131072, WS_FLG)
    a.e('s_mov_b32 s90, 0xffff0000')
    for q in range(4):
        c = ACC + 4 * (2 * (4 + q) + 1)
        a.e(f'ds_write_b128 v3, v[{c}:{c+3}] offset:{1024*q}')
    a.e('s_waitcnt vmcnt(4) lgkmcnt(0)')
    a.e('s_barrier')
    P1, P2 = 80, 96
    for q in range(4):
        a.e(f'ds_read_b128 v[{P1+4*q}:{P1+4*q+3}], v4 offset:{1024*q}')
    for q in range(4):
        c = ACC + 4 * (2 * q + 1)
        a.e(f'ds_write_b128 v5, v[{c}:{c+3}] offset:{1024*q}')
    for q in range(4):
        a.e(f's_waitcnt lgkmcnt({7-q})')
        c = ACC + 4 * (2 * (4 + q))
        for e in range(2):
            a.e(f'v_pk_add_f32 v[{c+2*e}:{c+2*e+1}], v[{c+2*e}:{c+2*e+1}], v[{P1+4*q+2*e}:{P1+4*q+2*e+1}]')
        a.e(f'buffer_store_dwordx4 v[{c}:{c+3}], v{VT}, s[20:23], s37 offen offset:{1024*q} sc1')
    a.e('s_waitcnt lgkmcnt(0)')
    a.e('s_barrier')
    for q in range(4):
        a.e(f'ds_read_b128 v[{P2+4*q}:{P2+4*q+3}], v6 offset:{1024*q}')
    a.e('v_mov_b32 v7, 0')
    a.e('v_mov_b32 v8, 1')
    a.e('s_mov_b64 exec, 1')
    a.e('s_waitcnt vmcnt(0)')
    a.e('buffer_store_dword v8, v7, s[24:27], s40 offen sc1')
    a.e('buffer_load_dword v9, v7, s[24:27], s41 offen sc1')
    a.e('s_mov_b64 exec, -1')
    H = 112
    for q in range(8):
        g.unpack(a, H + 2 * q, H + 2 * q + 1, HR + q)
    for q in range(4):
        a.e(f's_waitcnt lgkmcnt({3-q})')
        c = ACC + 4 * (2 * q)
        for e in range(2):
            a.e(f'v_pk_add_f32 v[{c+2*e}:{c+2*e+1}], v[{c+2*e}:{c+2*e+1}], v[{P2+4*q+2*e}:{P2+4*q+2*e+1}]')
    a.e('s_mov_b64 exec, 1')
    a.e('L_g2_poll:')
    a.e('s_waitcnt vmcnt(0)')
    a.e('v_readfirstlane_b32 s42, v9')
    a.e('s_nop 0')
    a.e('s_cmp_lg_u32 s42, 0')
    a.e('s_cbranch_scc1 L_g2_got')
    a.e('buffer_load_dword v9, v7, s[24:27], s41 offen sc1')
    a.e('s_branch L_g2_poll')
    a.e('L_g2_got:')
    a.e('s_mov_b64 exec, -1')
    g.stamp(a, 4)
    for q in range(4):
        a.e(f'buffer_load_dwordx4 v[{P1+4*q}:{P1+4*q+3}], v{VT}, s[20:23], s38 offen offset:{1024*q} sc1')
    for q in range(4):
        a.e(f's_waitcnt vmcnt({3})')
        c = ACC + 4 * (2 * q)
        for e in range(2):
            x = c + 2 * e; y = P1 + 4 * q + 2 * e; h = H + 4 * q + 2 * e
            a.e(f'v_pk_add_f32 v[{x}:{x+1}], v[{x}:{x+1}], v[{y}:{y+1}]')
            a.e(f'v_cvt_pk_bf16_f32 v{y}, v{x}, v{x+1}')
            g.unpack(a, x, x + 1, y)
            a.e(f'v_pk_add_f32 v[{x}:{x+1}], v[{x}:{x+1}], v[{h}:{h+1}]')
            a.e(f'v_cvt_pk_bf16_f32 v{8+2*q+e}, v{x}, v{x+1}')
        a.e(f'buffer_store_dwordx2 v[{8+2*q}:{8+2*q+1}], v{VO}, s[32:35], s53 offen offset:{32*q}')
    g.stamp_out(a, 4, 6, 12)
    g.tail(a, name)
    return g.desc(name, 208)
```

```python
import sys
from asmlib import *

NAME = 'sequential_preLN__ssm_conv_h3__glu_gated_swiglu__prompt'
MB = 1 << 20
from gemms import WS_UB, WS_Y2, WS_H, WS_HNF, WS_HF
WS_SIZE = 256 * MB
KA_Q, KA_K, KA_V, KA_SH, KA_SSMK, KA_D, KA_X, KA_W1, KA_W3, KA_W2, KA_OUT, KA_DBG, KA_WS = [8 * i for i in range(13)]

OPT = dict(mimic=0)

def srd(a, d, p, size, add=0, addreg=None):
    if add or addreg is not None:
        if add:
            a.e(f's_add_u32 s{d}, s{p}, {add:#x}')
            a.e(f's_addc_u32 s{d+1}, s{p+1}, 0')
            if addreg is not None:
                a.e(f's_add_u32 s{d}, s{d}, s{addreg}')
                a.e(f's_addc_u32 s{d+1}, s{d+1}, 0')
        else:
            a.e(f's_add_u32 s{d}, s{p}, s{addreg}')
            a.e(f's_addc_u32 s{d+1}, s{p+1}, 0')
    else:
        a.e(f's_mov_b32 s{d}, s{p}')
        a.e(f's_mov_b32 s{d+1}, s{p+1}')
    a.e(f's_mov_b32 s{d+2}, {size:#x}')
    a.e(f's_mov_b32 s{d+3}, 0x20000')

def head(a, name, nwg):
    a.raw(f'.globl {name}')
    a.raw('.p2align 8')
    a.raw(f'.type {name},@function')
    a.raw(f'{name}:')
    a.e(f's_cmp_ge_u32 s2, {nwg}')
    a.e(f's_cbranch_scc1 L_{name}_end')
    stamp(a, 0)

def tail(a, name):
    a.e(f'L_{name}_end:')
    a.e('s_endpgm')

def desc(name, vgpr, sgpr=96, agpr=0):
    acc = (vgpr + 3) // 4 * 4
    nfv = acc + agpr if agpr else vgpr
    return f'''.p2align 6
.amdhsa_kernel {name}
  .amdhsa_next_free_vgpr {nfv}
  .amdhsa_next_free_sgpr {sgpr}
  .amdhsa_accum_offset {acc}
  .amdhsa_group_segment_fixed_size 0
  .amdhsa_kernarg_size 104
  .amdhsa_user_sgpr_count 2
  .amdhsa_user_sgpr_kernarg_segment_ptr 1
  .amdhsa_system_sgpr_workgroup_id_x 1
  .amdhsa_float_denorm_mode_32 3
.end_amdhsa_kernel
'''

STAMP_BASE = 64 * MB
import gemms as _gm
def stamp(a, i):
    if not _gm.OPT.get('stamp'): return
    a.e(f's_memrealtime s[{60+2*i}:{61+2*i}]')
    if i == 0:
        a.e('s_memtime s[76:77]')
    a.e('s_waitcnt lgkmcnt(0)')

def stamp_out(a, kidx, n, wreg, wsreg=10):
    if not _gm.OPT.get('stamp'): return
    if _gm.OPT.get('drain', 1): a.e('s_waitcnt vmcnt(0)')
    a.e(f's_memrealtime s[{60+2*(n-1)}:{61+2*(n-1)}]')
    a.e('s_memtime s[78:79]')
    a.e('s_waitcnt lgkmcnt(0)')
    srd(a, 80, wsreg, 1 * MB, STAMP_BASE + kidx * 256 * 8 * 64)
    a.e('s_lshl_b32 s84, s2, 3')
    a.e(f's_add_u32 s84, s84, s{wreg}')
    a.e('s_lshl_b32 s84, s84, 6')
    a.e('v_mov_b32 v1, 0')
    for i in range(n):
        a.e(f'v_mov_b32 v2, s{60+2*i}')
        a.e(f'buffer_store_dword v2, v1, s[80:83], s84 offen offset:{4*i}')
    a.e('s_sub_u32 s78, s78, s76')
    a.e('v_mov_b32 v2, s78')
    a.e('buffer_store_dword v2, v1, s[80:83], s84 offen offset:32')
    a.e('s_getreg_b32 s78, hwreg(HW_REG_XCC_ID)')
    a.e('v_mov_b32 v2, s78')
    a.e('buffer_store_dword v2, v1, s[80:83], s84 offen offset:36')
    a.e('s_getreg_b32 s78, hwreg(HW_REG_HW_ID)')
    a.e('v_mov_b32 v2, s78')
    a.e('buffer_store_dword v2, v1, s[80:83], s84 offen offset:40')

def prefetch(a, ptr, chunk, nthr, sd, vt, vd):
    st = _gm.OPT.get('pfs', 64)
    if not _gm.OPT.get('pf', 0): return 0
    a.e(f's_mul_i32 s{sd+2}, s2, {chunk}')
    srd(a, sd, ptr, chunk, 0, sd + 2)
    n = 0
    for o in range(0, chunk, nthr * st):
        a.e(f's_mov_b32 s89, {o}')
        a.e(f'buffer_load_dword v{vd}, v{vt}, s[{sd}:{sd+3}], s89 offen')
        n += 1
    return n

def pf_shift():
    return _gm.OPT.get('pfs', 64).bit_length() - 1

def sf(key='sc1'):
    return {0: '', 1: ' sc1', 2: ' nt', 3: ' sc0 sc1'}[_gm.OPT.get(key, 0)]

G1_EXTRA_VM = [0]
def g1_extra(a):
    G1_EXTRA_VM[0] = 0

def unpack(a, dlo, dhi, src, mask='s90'):
    a.e(f'v_lshlrev_b32 v{dlo}, 16, v{src}')
    a.e(f'v_and_b32 v{dhi}, {mask}, v{src}')

def gen_k0(a):
    name = 'k0_kernel'
    head(a, name, 256)
    a.e(f's_load_dwordx4 s[4:7], s[0:1], {KA_K}')
    a.e(f's_load_dwordx4 s[40:43], s[0:1], {KA_SH}')
    a.e(f's_load_dwordx2 s[44:45], s[0:1], {KA_Q}')
    a.e(f's_load_dwordx2 s[10:11], s[0:1], {KA_WS}')
    a.e('s_bfe_u32 s12, s2, 0x30003')
    a.e('s_and_b32 s13, s2, 7')
    a.e('s_lshr_b32 s14, s2, 6')
    a.e('s_lshl_b32 s14, s14, 3')
    a.e('s_or_b32 s13, s13, s14')
    a.e('v_and_b32 v1, 15, v0')
    a.e('v_lshrrev_b32 v2, 4, v0')
    a.e('s_lshl_b32 s15, s13, 17')
    a.e('s_lshl_b32 s16, s12, 8')
    a.e('s_add_u32 s15, s15, s16')
    a.e('v_lshlrev_b32 v3, 13, v1')
    a.e('v_lshl_add_u32 v3, v2, 4, v3')
    a.e('v_add_u32 v3, s15, v3')
    a.e('v_add_u32 v4, 0xffffe800, v3')
    a.e('v_add_u32 v5, 0xfffff800, v3')
    a.e('v_add_u32 v6, 0x1000, v3')
    a.e('s_lshl_b32 s16, s12, 10')
    a.e('v_lshlrev_b32 v7, 6, v2')
    a.e('v_add_u32 v7, s16, v7')
    a.e('s_mov_b32 s90, 0xffff0000')
    a.e('s_lshl_b32 s17, s12, 5')
    a.e('s_add_u32 s17, s17, s13')
    a.e('s_lshl_b32 s17, s17, 14')
    a.e('s_add_u32 s17, s17, 120')
    a.e('v_lshlrev_b32 v160, 10, v2')
    a.e('v_lshlrev_b32 v161, 3, v1')
    a.e('v_sub_u32 v160, v160, v161')
    a.e('v_add_u32 v160, s17, v160')
    a.e('s_waitcnt lgkmcnt(0)')
    srd(a, 20, 4, 4 * MB)
    srd(a, 24, 6, 4 * MB)
    srd(a, 28, 40, 8192)
    srd(a, 32, 10, 4 * MB, WS_UB)
    KR, VR, WR, WU, KU, ACC = 8, 36, 52, 68, 100, 164
    for j in range(4):
        a.e(f'buffer_load_dwordx4 v[{WR+4*j}:{WR+4*j+3}], v7, s[28:31], 0 offen offset:{16*j}')
    rows = [(4, 0), (4, 2048), (5, 0), (3, 0), (3, 2048), (6, 0), (6, 2048)]
    for r, (vr, off) in enumerate(rows):
        a.e(f'buffer_load_dwordx4 v[{KR+4*r}:{KR+4*r+3}], v{vr}, s[20:23], 0 offen offset:{off}')
    for r, (vr, off) in enumerate(rows[3:]):
        a.e(f'buffer_load_dwordx4 v[{VR+4*r}:{VR+4*r+3}], v{vr}, s[24:27], 0 offen offset:{off}')
    a.e(f'v_lshlrev_b32 v162, {pf_shift()}, v0')
    npf = prefetch(a, 42, 16384, 256, 48, 162, 163) + prefetch(a, 44, 16384, 256, 52, 162, 163)
    if _gm.OPT.get('stamp'):
        a.e('v_lshrrev_b32 v200, 6, v0')
        stamp(a, 1)
        a.e('v_readfirstlane_b32 s12, v200')
    a.e(f's_waitcnt vmcnt({11+npf})')
    stamp(a, 2)
    for e in range(8):
        unpack(a, WU + 0 * 8 + e, WU + 1 * 8 + e, WR + 2 * e)
        unpack(a, WU + 2 * 8 + e, WU + 3 * 8 + e, WR + 2 * e + 1)
    for r in range(7):
        a.e(f's_waitcnt vmcnt({10-r+npf})')
        for q in range(4):
            unpack(a, KU + 8 * r + 2 * q, KU + 8 * r + 2 * q + 1, KR + 4 * r + q)
        if r >= 3:
            i = r - 3
            for j in range(4):
                for q in range(4):
                    d = ACC + 8 * i + 2 * q
                    k = KU + 8 * (i + 3 - j) + 2 * q
                    w = WU + 8 * j + 2 * q
                    if j == 0:
                        a.e(f'v_pk_mul_f32 v[{d}:{d+1}], v[{k}:{k+1}], v[{w}:{w+1}]')
                    else:
                        a.e(f'v_pk_fma_f32 v[{d}:{d+1}], v[{k}:{k+1}], v[{w}:{w+1}], v[{d}:{d+1}]')
    VU = 8
    for i in range(4):
        a.e(f's_waitcnt vmcnt({3-i+npf})')
        for q in range(4):
            unpack(a, VU + 2 * q, VU + 2 * q + 1, VR + 4 * i + q)
        for q in range(4):
            d = ACC + 8 * i + 2 * q
            a.e(f'v_pk_mul_f32 v[{d}:{d+1}], v[{d}:{d+1}], v[{VU+2*q}:{VU+2*q+1}]')
    stamp(a, 3)
    O = 52
    for e in range(8):
        a.e(f'v_cvt_pk_bf16_f32 v{O+2*e}, v{ACC+24+e}, v{ACC+16+e}')
        a.e(f'v_cvt_pk_bf16_f32 v{O+2*e+1}, v{ACC+8+e}, v{ACC+e}')
        a.e(f'buffer_store_dwordx2 v[{O+2*e}:{O+2*e+1}], v160, s[32:35], 0 offen offset:{128*e}' + sf())
    stamp_out(a, 0, 5, 12)
    tail(a, name)
    return desc(name, 204)

KA_REG = 13056
def gen_ka(a):
    name = 'ka_kernel'
    head(a, name, 256)
    a.e(f's_load_dwordx4 s[4:7], s[0:1], {KA_SSMK}')
    a.e(f's_load_dwordx4 s[48:51], s[0:1], {KA_W1}')
    a.e(f's_load_dwordx2 s[10:11], s[0:1], {KA_WS}')
    a.e('v_lshrrev_b32 v1, 6, v0')
    a.e('v_and_b32 v2, 63, v0')
    a.e('v_readfirstlane_b32 s12, v1')
    a.e('s_and_b32 s13, s2, 7')
    a.e('s_lshr_b32 s14, s2, 3')
    a.e('s_lshl_b32 s15, s14, 2')
    a.e('s_add_u32 s15, s15, s12')
    a.e('s_lshl_b32 s16, s13, 7')
    a.e('s_add_u32 s16, s16, s15')
    a.e('s_lshl_b32 s17, s13, 5')
    a.e('s_add_u32 s17, s17, s14')
    a.e(f's_mul_i32 s18, s12, {KA_REG}')
    a.e('s_mov_b32 s90, 0xffff0000')
    a.e('v_lshrrev_b32 v3, 3, v2')
    a.e('v_sub_u32 v3, 7, v3')
    a.e('v_lshlrev_b32 v3, 14, v3')
    a.e('v_and_b32 v4, 7, v2')
    a.e('v_lshl_add_u32 v3, v4, 4, v3')
    a.e('s_lshl_b32 s19, s15, 7')
    a.e('v_add_u32 v3, s19, v3')
    a.e('v_lshlrev_b32 v4, 4, v2')
    a.e('s_lshl_b32 s19, s16, 12')
    a.e('s_lshr_b32 s36, s16, 1')
    a.e('s_lshl_b32 s36, s36, 2')
    a.e('s_waitcnt lgkmcnt(0)')
    a.e('s_load_dword s37, s[6:7], s36')
    srd(a, 20, 4, 4096, 0, 19)
    srd(a, 24, 10, 4 * MB, WS_UB)
    srd(a, 28, 10, 4 * MB, WS_Y2)
    KD, KX = 8, 24
    for j in range(4):
        a.e(f'buffer_load_dwordx4 v[{KD+4*j}:{KD+4*j+3}], v4, s[20:23], 0 offen offset:{1024*j}')
        a.e(f'buffer_load_dword v{KX+j}, v4, s[20:23], 0 offen offset:{1024*j+16}')
    a.e('s_lshl_b32 s38, s13, 19')
    for i in range(4):
        a.e(f's_add_u32 s39, s38, {(24-8*i)*16384:#x}')
        a.e(f's_add_u32 m0, s18, {1024*i}')
        a.e('s_nop 0')
        a.e('buffer_load_dwordx4 v3, s[24:27], s39 offen lds')
    stamp(a, 1)
    a.e('v_and_b32 v5, 15, v2')
    a.e('v_lshrrev_b32 v6, 4, v2')
    a.e('v_mov_b32 v28, 0')
    a.e('v_mov_b32 v29, 0')
    a.e('v_lshlrev_b32 v7, 3, v2')
    a.e('v_add_u32 v7, s18, v7')
    a.e('ds_write_b64 v7, v[28:29] offset:4096')
    a.e('v_min_u32 v30, 7, v2')
    a.e('v_lshlrev_b32 v30, 2, v30')
    a.e('v_add_u32 v30, s18, v30')
    a.e('ds_write_b32 v30, v28 offset:4608')
    a.e('v_add_u32 v31, 1, v5')
    a.e('v_and_b32 v32, 1, v31')
    a.e('v_sub_u32 v31, v31, v32')
    a.e('v_lshl_add_u32 v31, v6, 3, v31')
    a.e('v_lshlrev_b32 v31, 1, v31')
    a.e('v_mul_u32_u24 v32, 4160, v32')
    a.e('v_add3_u32 v31, v31, v32, s18')
    VA = 36
    a.e(f'v_add_u32 v{VA}, 4608, v31')
    a.e(f'v_add_u32 v{VA+1}, {4608+1024}, v31')
    a.e(f'v_add_u32 v{VA+2}, {4608+2048}, v31')
    a.e(f'v_add_u32 v{VA+3}, {4608+3072}, v31')
    VB = 40
    a.e('v_lshlrev_b32 v32, 5, v5')
    a.e('v_lshlrev_b32 v33, 4, v6')
    a.e('v_sub_u32 v33, v33, v32')
    a.e('v_add_u32 v33, s18, v33')
    a.e(f'v_add_u32 v{VB}, 480, v33')
    a.e('v_add_u32 v7, s18, v4')
    ACC = 44
    for r in range(32):
        a.e(f'v_mov_b32 v{ACC+r}, 0')
    T = 76
    for j in range(4):
        a.e(f's_waitcnt vmcnt({4+6-2*j})')
        d = KD + 4 * j
        if j == 0:
            a.e(f'v_readfirstlane_b32 s40, v{d}')
        a.e(f'ds_write_b128 v7, v[{d}:{d+3}] offset:{4608+32+1024*j}')
        for q in range(4):
            hi = d + q + 1 if q < 3 else KX + j
            a.e(f'v_alignbit_b32 v{T+4*j+q}, v{hi}, v{d+q}, 16')
        a.e(f'ds_write_b128 v7, v[{T+4*j}:{T+4*j+3}] offset:{4608+4160+32+1024*j}')
    a.e('s_lshl_b32 s40, s40, 16')
    a.e('v_cmp_le_u32 vcc, 7, v2')
    a.e('v_mov_b32 v32, s40')
    a.e('s_nop 0')
    a.e('v_cndmask_b32 v32, v28, v32, vcc')
    a.e(f'ds_write_b32 v30, v32 offset:{4608+4160}')
    FA = [96, 160]
    FB = [128, 192]
    a.e('s_waitcnt vmcnt(0) lgkmcnt(0)')
    stamp(a, 2)
    a.e(f'v_lshlrev_b32 v41, {pf_shift()}, v0')
    prefetch(a, 48, 28672, 256, 52, 41, 42)
    prefetch(a, 50, 28672, 256, 56, 41, 42)
    a.e('s_bitcmp1_b32 s16, 0')
    a.e('s_cselect_b32 s41, 0, 16')
    a.e('s_lshl_b32 s37, s37, s41')
    a.e('s_and_b32 s37, s37, 0xffff0000')
    def reads(r, buf):
        L = []
        for x in range(8):
            d = x
            L.append(f'ds_read_b128 v[{FB[buf]+4*d}:{FB[buf]+4*d+3}], v{VB} offset:{512*(7-d)+64*r}')
            mq = x
            o = 128 * (mq & 1) + 16 * r
            f = FA[buf] + 4 * mq
            L.append(f'ds_read2_b32 v[{f}:{f+1}], v{VA+(mq>>1)} offset0:{o} offset1:{o+1}')
            L.append(f'ds_read2_b32 v[{f+2}:{f+3}], v{VA+(mq>>1)} offset0:{o+2} offset1:{o+3}')
        return L
    for l in reads(0, 0):
        a.e(l)
    UE = 8
    for r in range(8):
        buf = r & 1
        nxt = reads(r + 1, buf ^ 1) if r < 7 else []
        if r == 7:
            a.e('v_lshlrev_b32 v32, 5, v5')
            a.e('v_lshl_add_u32 v32, v6, 3, v32')
            a.e(f'v_sub_u32 v34, {4088-3584}, v32')
            a.e('v_add_u32 v34, s18, v34')
            a.e('v_add_u32 v35, s18, v32')
            nxt = [f'ds_read_b64 v[{UE+2*c}:{UE+2*c+1}], v34 offset:{512*(7-c)}' for c in range(8)]
        a.e('s_waitcnt lgkmcnt(0)')
        k = 0
        for mq in range(8):
            for d in range(8 - mq):
                c = mq + d
                fa = FA[buf] + 4 * mq; fb = FB[buf] + 4 * d
                a.e(f'v_mfma_f32_16x16x32_bf16 v[{ACC+4*c}:{ACC+4*c+3}], v[{fa}:{fa+3}], v[{fb}:{fb+3}], v[{ACC+4*c}:{ACC+4*c+3}]')
                if k < len(nxt):
                    a.e(nxt[k]); k += 1
    a.e('s_waitcnt lgkmcnt(0)')
    stamp(a, 3)
    X = 96
    for c in range(8):
        unpack(a, X + 4 * c + 3, X + 4 * c + 2, UE + 2 * c)
        unpack(a, X + 4 * c + 1, X + 4 * c + 0, UE + 2 * c + 1)
    for c in range(8):
        for r in range(4):
            a.e(f'v_fma_f32 v{X+4*c+r}, v{X+4*c+r}, s37, v{ACC+4*c+r}')
        a.e(f'v_cvt_pk_bf16_f32 v{UE+2*c}, v{X+4*c}, v{X+4*c+1}')
        a.e(f'v_cvt_pk_bf16_f32 v{UE+2*c+1}, v{X+4*c+2}, v{X+4*c+3}')
        a.e(f'ds_write_b64 v35, v[{UE+2*c}:{UE+2*c+1}] offset:{4608+512*c}')
    a.e('v_lshlrev_b32 v32, 2, v0')
    a.e('v_lshrrev_b32 v33, 2, v0')
    a.e('v_lshlrev_b32 v33, 14, v33')
    a.e('v_and_b32 v34, 3, v0')
    a.e('v_lshl_add_u32 v33, v34, 4, v33')
    a.e('s_lshl_b32 s42, s17, 6')
    a.e('s_mov_b32 s43, 0x05040100')
    a.e('s_mov_b32 s44, 0x07060302')
    a.e('s_waitcnt lgkmcnt(0)')
    a.e('s_barrier')
    stamp(a, 4)
    Y = 96
    for P in range(4):
        for ch in range(4):
            a.e(f'ds_read_b32 v{Y+4*P+ch}, v32 offset:{ch*KA_REG+4608+1024*P}')
    O = 128
    for P in range(4):
        a.e(f's_waitcnt lgkmcnt({12-4*P})')
        y = Y + 4 * P; o = O + 4 * P
        a.e(f'v_perm_b32 v{o}, v{y+1}, v{y}, s43')
        a.e(f'v_perm_b32 v{o+1}, v{y+3}, v{y+2}, s43')
        a.e(f'v_perm_b32 v{o+2}, v{y+1}, v{y}, s44')
        a.e(f'v_perm_b32 v{o+3}, v{y+3}, v{y+2}, s44')
        a.e(f'buffer_store_dwordx4 v[{o}:{o+3}], v33, s[28:31], s42 offen' + sf())
        if P < 3:
            a.e(f's_add_u32 s42, s42, {64*16384:#x}')
    stamp_out(a, 1, 6, 12)
    tail(a, name)
    return desc(name, 224)

def wave_sum(a, v, s, tmp):
    for sh in (1, 2, 4, 8):
        a.e('s_nop 1')
        a.e(f'v_add_f32_dpp v{v}, v{v}, v{v} row_shr:{sh} row_mask:0xf bank_mask:0xf bound_ctrl:0')
    a.e('s_nop 1')
    a.e(f'v_add_f32_dpp v{v}, v{v}, v{v} row_bcast:15 row_mask:0xa bank_mask:0xf')
    a.e('s_nop 1')
    a.e(f'v_add_f32_dpp v{v}, v{v}, v{v} row_bcast:31 row_mask:0xc bank_mask:0xf')
    a.e('s_nop 0')
    a.e(f'v_readlane_b32 s{s}, v{v}, 63')

def rbf(a, v):
    a.e(f'v_cvt_pk_bf16_f32 v{v}, v{v}, v{v}')
    a.e(f'v_and_b32 v{v}, s90, v{v}')

def ln_stats(a, X, T, M, R):
    for q in range(4):
        a.e(f'v_pk_add_f32 v[{T+2*q}:{T+2*q+1}], v[{X+4*q}:{X+4*q+1}], v[{X+4*q+2}:{X+4*q+3}]')
    a.e(f'v_pk_add_f32 v[{T}:{T+1}], v[{T}:{T+1}], v[{T+2}:{T+3}]')
    a.e(f'v_pk_add_f32 v[{T+4}:{T+5}], v[{T+4}:{T+5}], v[{T+6}:{T+7}]')
    a.e(f'v_pk_add_f32 v[{T}:{T+1}], v[{T}:{T+1}], v[{T+4}:{T+5}]')
    a.e(f'v_add_f32 v{T}, v{T}, v{T+1}')
    wave_sum(a, T, 40, None)
    a.e('s_nop 1')
    a.e(f'v_mul_f32 v{M}, s40, v{M+2}')
    a.e(f'v_mov_b32 v{M+1}, v{M}')
    for q in range(8):
        a.e(f'v_pk_add_f32 v[{T+2*q}:{T+2*q+1}], v[{X+2*q}:{X+2*q+1}], v[{M}:{M+1}] neg_lo:[0,1] neg_hi:[0,1]')
    a.e(f'v_pk_mul_f32 v[{R}:{R+1}], v[{T}:{T+1}], v[{T}:{T+1}]')
    a.e(f'v_pk_mul_f32 v[{T}:{T+1}], v[{T+2}:{T+3}], v[{T+2}:{T+3}]')
    for q in range(2, 8, 2):
        a.e(f'v_pk_fma_f32 v[{R}:{R+1}], v[{T+2*q}:{T+2*q+1}], v[{T+2*q}:{T+2*q+1}], v[{R}:{R+1}]')
        a.e(f'v_pk_fma_f32 v[{T}:{T+1}], v[{T+2*q+2}:{T+2*q+3}], v[{T+2*q+2}:{T+2*q+3}], v[{T}:{T+1}]')
    a.e(f'v_pk_add_f32 v[{T}:{T+1}], v[{T}:{T+1}], v[{R}:{R+1}]')
    a.e(f'v_add_f32 v{T}, v{T}, v{T+1}')
    rbf(a, M)
    wave_sum(a, T, 41, None)
    a.e(f'v_mov_b32 v{M+1}, v{M}')
    a.e('s_nop 0')
    a.e(f'v_mul_f32 v{R}, s41, v{M+2}')
    rbf(a, R)
    a.e(f'v_add_f32 v{R}, 0x3727c5ac, v{R}')
    rbf(a, R)
    a.e(f'v_sqrt_f32 v{R}, v{R}')
    a.e('s_nop 0')
    rbf(a, R)
    a.e(f'v_rcp_f32 v{R}, v{R}')
    a.e('s_nop 0')
    a.e(f'v_mov_b32 v{R+1}, v{R}')

def gen_kb(a):
    name = 'kb_kernel'
    head(a, name, 256)
    a.e(f's_load_dwordx2 s[4:5], s[0:1], {KA_Q}')
    a.e(f's_load_dwordx2 s[6:7], s[0:1], {KA_W2}')
    a.e(f's_load_dwordx2 s[10:11], s[0:1], {KA_WS}')
    a.e('v_lshrrev_b32 v1, 6, v0')
    a.e('v_and_b32 v2, 63, v0')
    a.e('v_readfirstlane_b32 s12, v1')
    a.e('s_mov_b32 s90, 0xffff0000')
    a.e('v_lshlrev_b32 v3, 4, v2')
    a.e('v_lshlrev_b32 v4, 7, v2')
    a.e('v_add_u32 v5, 0x2000, v4')
    a.e('s_lshl_b32 s13, s2, 3')
    a.e('s_add_u32 s13, s13, s12')
    a.e('s_lshl_b32 s14, s13, 11')
    a.e('s_lshl_b32 s15, s2, 14')
    a.e('s_lshl_b32 s16, s12, 3')
    a.e('s_add_u32 s15, s15, s16')
    TM = _gm.OPT.get('tm', 4)
    lt = TM.bit_length() - 1
    a.e(f's_lshr_b32 s16, s13, {4+lt}')
    a.e(f's_lshl_b32 s16, s16, {15+lt}')
    a.e(f's_bfe_u32 s17, s13, {(lt<<16)|4:#x}')
    a.e('s_lshl_b32 s17, s17, 10')
    a.e('s_add_u32 s16, s16, s17')
    a.e('s_and_b32 s17, s13, 15')
    a.e('s_lshl_b32 s17, s17, 4')
    a.e('s_add_u32 s16, s16, s17')
    a.e(f's_add_u32 s17, s16, {16*TM*1024}')
    a.e('v_lshrrev_b32 v6, 2, v2')
    a.e(f'v_lshlrev_b32 v6, {10+lt}, v6')
    a.e('v_and_b32 v7, 3, v2')
    a.e('v_lshl_add_u32 v6, v7, 8, v6')
    a.e('s_lshl_b32 s18, s13, 6')
    a.e('s_waitcnt lgkmcnt(0)')
    srd(a, 20, 4, 4 * MB)
    srd(a, 24, 10, 4 * MB, WS_Y2)
    srd(a, 28, 10, 4 * MB, WS_H)
    srd(a, 32, 10, 4 * MB, WS_HNF)
    XR, YR, X, Y, T, M, R = 8, 16, 24, 40, 56, 72, 76
    a.e(f'buffer_load_dwordx4 v[{XR}:{XR+3}], v3, s[20:23], s14 offen')
    a.e(f'buffer_load_dwordx4 v[{XR+4}:{XR+7}], v3, s[20:23], s14 offen offset:1024')
    a.e(f'buffer_load_dwordx2 v[{YR}:{YR+1}], v4, s[24:27], s15 offen')
    a.e(f'buffer_load_dwordx2 v[{YR+2}:{YR+3}], v4, s[24:27], s15 offen offset:64')
    a.e(f'buffer_load_dwordx2 v[{YR+4}:{YR+5}], v5, s[24:27], s15 offen')
    a.e(f'buffer_load_dwordx2 v[{YR+6}:{YR+7}], v5, s[24:27], s15 offen offset:64')
    a.e(f'v_mov_b32 v{M+2}, 0x3a800000')
    srd(a, 44, 10, 131072, _gm.WS_FLG)
    a.e('v_mov_b32 v7, 0')
    a.e('s_mov_b64 exec, 1')
    a.e('buffer_store_dword v7, v7, s[44:47], s18 offen')
    a.e('s_mov_b64 exec, -1')
    a.e(f'v_lshlrev_b32 v78, {pf_shift()}, v0')
    npf = prefetch(a, 6, 28672, 512, 48, 78, 79)
    stamp(a, 1)
    a.e(f's_waitcnt vmcnt({5+npf})')
    stamp(a, 2)
    for q in range(8):
        unpack(a, X + 2 * q, X + 2 * q + 1, XR + q)
    ln_stats(a, X, T, M, R)
    for q in range(8):
        a.e(f'v_pk_add_f32 v[{T+2*q}:{T+2*q+1}], v[{X+2*q}:{X+2*q+1}], v[{M}:{M+1}] neg_lo:[0,1] neg_hi:[0,1]')
    for q in range(8):
        a.e(f'v_pk_mul_f32 v[{T+2*q}:{T+2*q+1}], v[{T+2*q}:{T+2*q+1}], v[{R}:{R+1}]')
    a.e(f's_waitcnt vmcnt({1+npf})')
    stamp(a, 3)
    for q in range(8):
        unpack(a, Y + 2 * q, Y + 2 * q + 1, YR + q)
    for q in range(8):
        a.e(f'v_pk_fma_f32 v[{X+2*q}:{X+2*q+1}], v[{T+2*q}:{T+2*q+1}], v[{Y+2*q}:{Y+2*q+1}], v[{X+2*q}:{X+2*q+1}]')
    for q in range(8):
        a.e(f'v_cvt_pk_bf16_f32 v{XR+q}, v{X+2*q}, v{X+2*q+1}')
    a.e(f'buffer_store_dwordx4 v[{XR}:{XR+3}], v3, s[28:31], s14 offen' + sf())
    a.e(f'buffer_store_dwordx4 v[{XR+4}:{XR+7}], v3, s[28:31], s14 offen offset:1024' + sf())
    for q in range(8):
        unpack(a, X + 2 * q, X + 2 * q + 1, XR + q)
    ln_stats(a, X, T, M, R)
    for q in range(8):
        a.e(f'v_pk_add_f32 v[{T+2*q}:{T+2*q+1}], v[{X+2*q}:{X+2*q+1}], v[{M}:{M+1}] neg_lo:[0,1] neg_hi:[0,1]')
    for q in range(8):
        a.e(f'v_pk_mul_f32 v[{T+2*q}:{T+2*q+1}], v[{T+2*q}:{T+2*q+1}], v[{R}:{R+1}]')
    for q in range(8):
        a.e(f'v_cvt_pk_bf16_f32 v{YR+q}, v{T+2*q}, v{T+2*q+1}')
    stamp(a, 4)
    a.e(f'buffer_store_dwordx4 v[{YR}:{YR+3}], v6, s[32:35], s16 offen' + sf())
    a.e(f'buffer_store_dwordx4 v[{YR+4}:{YR+7}], v6, s[32:35], s17 offen' + sf())
    stamp_out(a, 2, 6, 12)
    tail(a, name)
    return desc(name, 80)

def gen_nop(a):
    name = 'nop_kernel'
    a.raw(f'.globl {name}')
    a.raw('.p2align 8')
    a.raw(f'.type {name},@function')
    a.raw(f'{name}:')
    a.e('s_endpgm')
    return desc(name, 8)

def gen_dg(a):
    name = 'dg_kernel'
    d = str(_gm.OPT['dg']).zfill(5)
    F, ka, ja, kb, jb = [int(c) for c in d]
    a.raw(f'.globl {name}')
    a.raw('.p2align 8')
    a.raw(f'.type {name},@function')
    a.raw(f'{name}:')
    a.e(f's_load_dwordx2 s[10:11], s[0:1], {KA_WS}')
    a.e('s_memrealtime s[12:13]')
    a.e('s_waitcnt lgkmcnt(0)')
    a.e(f's_add_u32 s10, s10, {STAMP_BASE:#x}')
    a.e('s_addc_u32 s11, s11, 0')
    a.e(f's_load_dword s4, s[10:11], {ka*131072+4*ja:#x}')
    a.e(f's_load_dword s5, s[10:11], {kb*131072+4*jb:#x}')
    a.e('s_waitcnt lgkmcnt(0)')
    a.e('s_sub_u32 s4, s5, s4')
    a.e('s_min_u32 s4, s4, 5000')
    a.e(f's_mul_i32 s4, s4, {F-1}')
    a.e('L_dg:')
    a.e('s_memrealtime s[14:15]')
    a.e('s_waitcnt lgkmcnt(0)')
    a.e('s_sub_u32 s5, s14, s12')
    a.e('s_cmp_lt_u32 s5, s4')
    a.e('s_cbranch_scc1 L_dg')
    a.e('s_endpgm')
    return desc(name, 8)

from gemms import gen_g1, gen_g2, G1_LDS, G2_LDS

def build(kernels=None):
    a = Asm()
    hdr = open('cdna_kernels/' + NAME + '.s.ref').read().split('\n')
    cm = [l for l in hdr if l.startswith(';') and '@launch' not in l and 'Override launch' not in l and 'grid=ceil' not in l]
    launches = [
        ('k0_kernel', 256, 256, 0, gen_k0),
        ('ka_kernel', 256, 256, 4 * KA_REG, gen_ka),
        ('kb_kernel', 256, 512, 0, gen_kb),
        ('g1_kernel', 256, 1024 // _gm.OPT.get('tm', 4), G1_LDS, gen_g1),
        ('g2_kernel', 256, 512, G2_LDS, gen_g2),
    ]
    nn = _gm.OPT.get('nops', 0)
    pos = _gm.OPT.get('noppos', 5)
    launches = launches[:pos] + [('nop_kernel', 256, 64, 0, gen_nop)] * nn + launches[pos:]
    sq = _gm.OPT.get('seq')
    if sq:
        launches = [launches[int(c) - 1] for c in str(sq)]
    if _gm.OPT.get('dg'):
        launches.append(('dg_kernel', 1, 64, 0, gen_dg))
    if kernels:
        launches = [l for l in launches if l[0] in kernels]
    out = '\n'.join(cm) + '\n'
    for n, g, b, lds, _ in launches:
        out += f'; @launch kernel={n} grid=({g},1,1) block=({b},1,1) lds={lds}\n'
    a.raw('.amdgcn_target "amdgcn-amd-amdhsa--gfx950"')
    a.raw('.text')
    descs = []
    done = set()
    for n, g, b, lds, fn in launches:
        if n in done: continue
        done.add(n)
        descs.append(fn(a))
    body = a.text()
    errs = check_hazards(body)
    for n in done:
        errs += check_waits(body, n, take_fwd=('L_g2_got',))
    for e in errs:
        print(e, file=sys.stderr)
    out += body + '.section .rodata,"a"\n' + ''.join(descs)
    return out, errs

if __name__ == '__main__':
    outp = sys.argv[1] if len(sys.argv) > 1 else 'cdna_kernels/' + NAME + '.s'
    for kv in sys.argv[2:]:
        k, v = kv.split('=')
        OPT[k] = int(v)
    import gemms
    gemms.OPT.update(OPT)
    t, errs = build()
    open(outp, 'w').write(t)
    print('written', outp, len(t), 'bytes;', len(errs), 'checker errors')
```

```python
import sys, os
from asmlib import *

NAME = 'sequential_preLN__ssm_conv_h3__glu_gated_swiglu__prompt'
KNAME = NAME + '_kernel'
MB = 1 << 20
WS0 = int(os.environ.get('WS0', '0')) * MB
WS_UB, WS_Y2, WS_H, WS_HNF, WS_HF, WS_XP, WS_FLG = [WS0 + x * MB for x in (0, 4, 8, 12, 16, 32, 40)]
STAMP_BASE = 64 * MB
OPT = {}
def opt(k, d=0): return OPT.get(k, d)

P_Q, P_K, P_V, P_SH, P_SSMK, P_D, P_X, P_W1, P_W3, P_W2, P_OUT, P_DBG, P_WS = [4 + 2 * i for i in range(13)]
S_W, S_NONCE, S_MASK = 30, 31, 90
S_FLG = 92
F0, F1, F2, F3, F4 = 0, 4096, 8192, 12288, 16384
LDS_KA = 98304
KA_REG = 13056
NSTAMP = 20
AST = 128

def srd(a, d, p, size, add=0, addreg=None):
    if add or addreg is not None:
        if add:
            a.e(f's_add_u32 s{d}, s{p}, {add:#x}')
            a.e(f's_addc_u32 s{d+1}, s{p+1}, 0')
            if addreg is not None:
                a.e(f's_add_u32 s{d}, s{d}, s{addreg}')
                a.e(f's_addc_u32 s{d+1}, s{d+1}, 0')
        else:
            a.e(f's_add_u32 s{d}, s{p}, s{addreg}')
            a.e(f's_addc_u32 s{d+1}, s{p+1}, 0')
    else:
        a.e(f's_mov_b32 s{d}, s{p}')
        a.e(f's_mov_b32 s{d+1}, s{p+1}')
    if size is not None:
        a.e(f's_mov_b32 s{d+2}, {size:#x}')
    a.e(f's_mov_b32 s{d+3}, 0x20000')

def stamp(a, i):
    if not opt('stamp'): return
    a.e('s_memrealtime s[60:61]')
    if i == 0: a.e('s_memtime s[62:63]')
    a.e('s_waitcnt lgkmcnt(0)')
    a.e(f'v_accvgpr_write_b32 a{AST+i}, s60')

def stamp_out(a, n):
    if not opt('stamp'): return
    a.e('s_waitcnt vmcnt(0)')
    stamp(a, n - 1)
    a.e('s_memtime s[64:65]')
    a.e('s_waitcnt lgkmcnt(0)')
    srd(a, 32, P_WS, 1 * MB, STAMP_BASE)
    a.e('s_lshl_b32 s84, s2, 2')
    a.e(f's_add_u32 s84, s84, s{S_W}')
    a.e('s_lshl_b32 s84, s84, 7')
    a.e('v_mov_b32 v1, 0')
    for i in range(n):
        a.e(f'v_accvgpr_read_b32 v2, a{AST+i}')
        a.e(f'buffer_store_dword v2, v1, s[32:35], s84 offen offset:{4*i}')
    a.e('s_sub_u32 s64, s64, s62')
    a.e('v_mov_b32 v2, s64')
    a.e('buffer_store_dword v2, v1, s[32:35], s84 offen offset:124')

def unpack(a, dlo, dhi, src):
    a.e(f'v_lshlrev_b32 v{dlo}, 16, v{src}')
    a.e(f'v_and_b32 v{dhi}, s{S_MASK}, v{src}')

_uid = [0]
def signal(a, soff, vt):
    _uid[0] += 1
    L = f'L_sig{_uid[0]}'
    a.e(f'v_mov_b32 v{vt}, 0')
    a.e(f'v_mov_b32 v{vt+1}, s{S_NONCE}')
    a.e(f's_cmp_eq_u32 s{S_W}, 0')
    a.e('s_waitcnt vmcnt(0)')
    a.e('s_barrier')
    a.e(f's_cbranch_scc0 {L}')
    a.e('s_mov_b64 exec, 1')
    a.e(f'buffer_store_dword v{vt+1}, v{vt}, s[{S_FLG}:{S_FLG+3}], s{soff} offen sc1')
    a.e('s_mov_b64 exec, -1')
    a.e(f'{L}:')

def wait_flags(a, soff, voff, vd, wide=False):
    _uid[0] += 1
    L = f'L_poll{_uid[0]}'
    a.e(f'{L}:')
    if wide:
        a.e(f'buffer_load_dwordx4 v[{vd}:{vd+3}], v{voff}, s[{S_FLG}:{S_FLG+3}], s{soff} offen sc1')
        a.e('s_waitcnt vmcnt(0)')
        a.e(f'v_xor_b32 v{vd}, s{S_NONCE}, v{vd}')
        a.e(f'v_xor_b32 v{vd+1}, s{S_NONCE}, v{vd+1}')
        a.e(f'v_xor_b32 v{vd+2}, s{S_NONCE}, v{vd+2}')
        a.e(f'v_xor_b32 v{vd+3}, s{S_NONCE}, v{vd+3}')
        a.e(f'v_or3_b32 v{vd}, v{vd}, v{vd+1}, v{vd+2}')
        a.e(f'v_or_b32 v{vd}, v{vd}, v{vd+3}')
        a.e(f'v_cmp_ne_u32 vcc, 0, v{vd}')
    else:
        a.e(f'buffer_load_dword v{vd}, v{voff}, s[{S_FLG}:{S_FLG+3}], s{soff} offen sc1')
        a.e('s_waitcnt vmcnt(0)')
        a.e(f'v_cmp_ne_u32 vcc, s{S_NONCE}, v{vd}')
    a.e('s_add_u32 s3, s3, 1')
    a.e(f's_cmp_gt_u32 s3, {opt("spin", 200000)}')
    a.e(f's_cbranch_scc1 {L}x')
    if opt('sleep'): a.e(f's_sleep {opt("sleep")}')
    a.e(f's_cbranch_vccnz {L}')
    a.e(f'{L}x:')

def wave_sum2(a, va, vb, sa, sb):
    for mod in ('row_shr:1 row_mask:0xf bank_mask:0xf bound_ctrl:0', 'row_shr:2 row_mask:0xf bank_mask:0xf bound_ctrl:0',
                'row_shr:4 row_mask:0xf bank_mask:0xf bound_ctrl:0', 'row_shr:8 row_mask:0xf bank_mask:0xf bound_ctrl:0',
                'row_bcast:15 row_mask:0xa bank_mask:0xf', 'row_bcast:31 row_mask:0xc bank_mask:0xf'):
        a.e('s_nop 0')
        a.e(f'v_add_f32_dpp v{va}, v{va}, v{va} {mod}')
        a.e(f'v_add_f32_dpp v{vb}, v{vb}, v{vb} {mod}')
    a.e(f'v_readlane_b32 s{sa}, v{va}, 63')
    a.e(f'v_readlane_b32 s{sb}, v{vb}, 63')

def ln2(a, X, T, M, R, C):
    def both(f):
        for r in range(2): f(r)
    for q in range(4):
        both(lambda r: a.e(f'v_pk_add_f32 v[{T[r]+2*q}:{T[r]+2*q+1}], v[{X[r]+4*q}:{X[r]+4*q+1}], v[{X[r]+4*q+2}:{X[r]+4*q+3}]'))
    both(lambda r: a.e(f'v_pk_add_f32 v[{T[r]}:{T[r]+1}], v[{T[r]}:{T[r]+1}], v[{T[r]+2}:{T[r]+3}]'))
    both(lambda r: a.e(f'v_pk_add_f32 v[{T[r]+4}:{T[r]+5}], v[{T[r]+4}:{T[r]+5}], v[{T[r]+6}:{T[r]+7}]'))
    both(lambda r: a.e(f'v_pk_add_f32 v[{T[r]}:{T[r]+1}], v[{T[r]}:{T[r]+1}], v[{T[r]+4}:{T[r]+5}]'))
    both(lambda r: a.e(f'v_add_f32 v{T[r]}, v{T[r]}, v{T[r]+1}'))
    wave_sum2(a, T[0], T[1], 56, 57)
    a.e('s_nop 0')
    both(lambda r: a.e(f'v_mul_f32 v{M[r]}, s{56+r}, v{C}'))
    both(lambda r: a.e(f'v_mov_b32 v{M[r]+1}, v{M[r]}'))
    for q in range(8):
        both(lambda r: a.e(f'v_pk_add_f32 v[{T[r]+2*q}:{T[r]+2*q+1}], v[{X[r]+2*q}:{X[r]+2*q+1}], v[{M[r]}:{M[r]+1}] neg_lo:[0,1] neg_hi:[0,1]'))
    both(lambda r: a.e(f'v_pk_mul_f32 v[{R[r]}:{R[r]+1}], v[{T[r]}:{T[r]+1}], v[{T[r]}:{T[r]+1}]'))
    for q in range(1, 8):
        both(lambda r: a.e(f'v_pk_fma_f32 v[{R[r]}:{R[r]+1}], v[{T[r]+2*q}:{T[r]+2*q+1}], v[{T[r]+2*q}:{T[r]+2*q+1}], v[{R[r]}:{R[r]+1}]'))
    both(lambda r: a.e(f'v_add_f32 v{R[r]}, v{R[r]}, v{R[r]+1}'))
    def rbf(v):
        a.e(f'v_cvt_pk_bf16_f32 v{v}, v{v}, v{v}')
        a.e(f'v_and_b32 v{v}, s{S_MASK}, v{v}')
    both(lambda r: rbf(M[r]))
    wave_sum2(a, R[0], R[1], 58, 59)
    both(lambda r: a.e(f'v_mov_b32 v{M[r]+1}, v{M[r]}'))
    both(lambda r: a.e(f'v_mul_f32 v{R[r]}, s{58+r}, v{C}'))
    both(lambda r: rbf(R[r]))
    both(lambda r: a.e(f'v_add_f32 v{R[r]}, 0x3727c5ac, v{R[r]}'))
    both(lambda r: rbf(R[r]))
    both(lambda r: a.e(f'v_sqrt_f32 v{R[r]}, v{R[r]}'))
    for q in range(2):
        both(lambda r: a.e(f'v_pk_add_f32 v[{T[r]+2*q}:{T[r]+2*q+1}], v[{X[r]+2*q}:{X[r]+2*q+1}], v[{M[r]}:{M[r]+1}] neg_lo:[0,1] neg_hi:[0,1]'))
    both(lambda r: rbf(R[r]))
    both(lambda r: a.e(f'v_rcp_f32 v{R[r]}, v{R[r]}'))
    for q in range(2, 8):
        both(lambda r: a.e(f'v_pk_add_f32 v[{T[r]+2*q}:{T[r]+2*q+1}], v[{X[r]+2*q}:{X[r]+2*q+1}], v[{M[r]}:{M[r]+1}] neg_lo:[0,1] neg_hi:[0,1]'))
    both(lambda r: a.e(f'v_mov_b32 v{R[r]+1}, v{R[r]}'))
    for q in range(8):
        both(lambda r: a.e(f'v_pk_mul_f32 v[{T[r]+2*q}:{T[r]+2*q+1}], v[{T[r]+2*q}:{T[r]+2*q+1}], v[{R[r]}:{R[r]+1}]'))

class Sched:
    def __init__(self): self.ev = []; self.marks = {}
    def mark(self, k): self.marks[k] = len(self.ev)
    def add(self, L): self.ev += L
    def younger(self, tag, at):
        last = max(i for i, e in enumerate(self.ev) if e[:2] == tag)
        assert last < self.marks[at], (tag, at)
        return self.marks[at] - last - 1

def gen(a):
    a.raw(f'.globl {KNAME}')
    a.raw('.p2align 8')
    a.raw(f'.type {KNAME},@function')
    a.raw(f'{KNAME}:')
    a.e('s_cmp_ge_u32 s2, 256')
    a.e('s_cbranch_scc1 L_end')
    a.e('s_load_dwordx8 s[4:11], s[0:1], 0')
    a.e('s_load_dwordx8 s[20:27], s[0:1], 64')
    a.e('s_load_dwordx2 s[28:29], s[0:1], 96')
    a.e('s_load_dwordx8 s[12:19], s[0:1], 32')
    a.e('s_memrealtime s[56:57]')
    a.e('v_lshrrev_b32 v1, 6, v0')
    a.e('v_and_b32 v2, 63, v0')
    a.e(f'v_readfirstlane_b32 s{S_W}, v1')
    a.e(f's_mov_b32 s{S_MASK}, 0xffff0000')
    a.e('s_mov_b32 s3, 0')
    a.e('s_bfe_u32 s82, s2, 0x30003')
    a.e('s_and_b32 s83, s2, 7')
    a.e('s_lshr_b32 s84, s2, 6')
    a.e('s_lshl_b32 s84, s84, 3')
    a.e('s_or_b32 s83, s83, s84')
    a.e('v_and_b32 v1, 15, v0')
    a.e('v_lshrrev_b32 v8, 4, v0')
    a.e('s_lshl_b32 s85, s83, 17')
    a.e('s_lshl_b32 s86, s82, 8')
    a.e('s_add_u32 s85, s85, s86')
    a.e('v_lshlrev_b32 v3, 13, v1')
    a.e('v_lshl_add_u32 v3, v8, 4, v3')
    a.e('v_add_u32 v3, s85, v3')
    a.e('v_add_u32 v4, 0xffffe800, v3')
    a.e('v_add_u32 v5, 0xfffff800, v3')
    a.e('v_add_u32 v6, 0x1000, v3')
    a.e('s_lshl_b32 s86, s82, 10')
    a.e('v_lshlrev_b32 v7, 6, v8')
    a.e('v_add_u32 v7, s86, v7')
    a.e('s_lshl_b32 s87, s82, 5')
    a.e('s_add_u32 s87, s87, s83')
    a.e('s_lshl_b32 s88, s87, 14')
    a.e('s_add_u32 s88, s88, 120')
    a.e('v_lshlrev_b32 v160, 10, v8')
    a.e('v_lshlrev_b32 v161, 3, v1')
    a.e('v_sub_u32 v160, v160, v161')
    a.e('v_add_u32 v160, s88, v160')
    a.e('s_lshl_b32 s87, s87, 4')
    a.e('v_mov_b32 v162, 0')
    a.e('s_waitcnt lgkmcnt(0)')
    stamp(a, 0)
    srd(a, 32, P_K, 4 * MB)
    srd(a, 36, P_V, 4 * MB)
    srd(a, 40, P_SH, 8192)
    KR, VR_, WR, WU, KU, AC0 = 8, 36, 52, 68, 100, 164
    for j in range(4):
        a.e(f'buffer_load_dwordx4 v[{WR+4*j}:{WR+4*j+3}], v7, s[40:43], 0 offen offset:{16*j}')
    rows = [(4, 0), (4, 2048), (5, 0), (3, 0), (3, 2048), (6, 0), (6, 2048)]
    for r, (vr, off) in enumerate(rows):
        a.e(f'buffer_load_dwordx4 v[{KR+4*r}:{KR+4*r+3}], v{vr}, s[32:35], 0 offen offset:{off}')
    for r, (vr, off) in enumerate(rows[3:]):
        a.e(f'buffer_load_dwordx4 v[{VR_+4*r}:{VR_+4*r+3}], v{vr}, s[36:39], 0 offen offset:{off}')
    ncp = 0
    if opt('cpf', 0):
        a.e('s_getpc_b64 s[58:59]')
        a.e('L_pc:')
        a.e('v_lshlrev_b32 v163, 7, v0')
        a.e('v_min_u32 v163, L_end-L_pc, v163')
        a.e('global_load_dword v161, v163, s[58:59]')
        ncp = 1
    srd(a, 44, P_DBG, 256)
    a.e('s_or_b32 s56, s56, 1')
    a.e(f's_or_b32 s57, s2, s{S_W}')
    a.e('s_cmp_lg_u32 s57, 0')
    a.e('s_cbranch_scc1 L_nonce_skip')
    a.e('v_mov_b32 v163, s56')
    a.e('s_mov_b64 exec, 1')
    a.e('buffer_store_dword v163, v162, s[44:47], 0 offen sc1')
    a.e('s_mov_b64 exec, -1')
    a.e('s_waitcnt vmcnt(0)')
    a.e('L_nonce_skip:')
    srd(a, 48, P_WS, 4 * MB, WS_UB)
    srd(a, S_FLG, P_WS, 131072, WS_FLG)
    a.e(f's_waitcnt vmcnt({11+ncp})')
    for e in range(8):
        unpack(a, WU + 0 * 8 + e, WU + 1 * 8 + e, WR + 2 * e)
        unpack(a, WU + 2 * 8 + e, WU + 3 * 8 + e, WR + 2 * e + 1)
    for r in range(7):
        a.e(f's_waitcnt vmcnt({10-r+ncp})')
        for q in range(4):
            unpack(a, KU + 8 * r + 2 * q, KU + 8 * r + 2 * q + 1, KR + 4 * r + q)
        if r >= 3:
            i = r - 3
            for j in range(4):
                for q in range(4):
                    d = AC0 + 8 * i + 2 * q
                    k = KU + 8 * (i + 3 - j) + 2 * q
                    w = WU + 8 * j + 2 * q
                    if j == 0:
                        a.e(f'v_pk_mul_f32 v[{d}:{d+1}], v[{k}:{k+1}], v[{w}:{w+1}]')
                    else:
                        a.e(f'v_pk_fma_f32 v[{d}:{d+1}], v[{k}:{k+1}], v[{w}:{w+1}], v[{d}:{d+1}]')
    VU = 8
    for i in range(4):
        a.e(f's_waitcnt vmcnt({3-i+ncp})')
        if i == 3:
            a.e('buffer_load_dword v163, v162, s[44:47], 0 offen sc1')
        for q in range(4):
            unpack(a, VU + 2 * q, VU + 2 * q + 1, VR_ + 4 * i + q)
        for q in range(4):
            d = AC0 + 8 * i + 2 * q
            a.e(f'v_pk_mul_f32 v[{d}:{d+1}], v[{d}:{d+1}], v[{VU+2*q}:{VU+2*q+1}]')
    O = 52
    for e in range(8):
        a.e(f'v_cvt_pk_bf16_f32 v{O+2*e}, v{AC0+24+e}, v{AC0+16+e}')
        a.e(f'v_cvt_pk_bf16_f32 v{O+2*e+1}, v{AC0+8+e}, v{AC0+e}')
        a.e(f'buffer_store_dwordx2 v[{O+2*e}:{O+2*e+1}], v160, s[48:51], 0 offen offset:{128*e} sc1')
    stamp(a, 1)
    a.e('s_and_b32 s82, s2, 7')
    a.e('s_lshr_b32 s83, s2, 3')
    a.e('s_lshl_b32 s84, s83, 2')
    a.e(f's_add_u32 s84, s84, s{S_W}')
    a.e('s_lshl_b32 s85, s82, 7')
    a.e('s_add_u32 s85, s85, s84')
    a.e('s_lshl_b32 s86, s82, 5')
    a.e('s_add_u32 s86, s86, s83')
    a.e(f's_mul_i32 s88, s{S_W}, {KA_REG}')
    a.e(f's_add_u32 s88, s88, {LDS_KA}')
    a.e('s_lshl_b32 s56, s85, 12')
    srd(a, 32, P_SSMK, 4096, 0, 56)
    a.e('s_lshr_b32 s57, s85, 1')
    a.e('s_lshl_b32 s57, s57, 2')
    a.e(f's_load_dword s89, s[{P_D}:{P_D+1}], s57')
    a.e('v_lshlrev_b32 v4, 4, v2')
    KD, KX = 8, 24
    for j in range(4):
        a.e(f'buffer_load_dwordx4 v[{KD+4*j}:{KD+4*j+3}], v4, s[32:35], 0 offen offset:{1024*j}')
        a.e(f'buffer_load_dword v{KX+j}, v4, s[32:35], 0 offen offset:{1024*j+16}')
    a.e('s_and_b32 s80, s82, 1')
    a.e('s_lshl_b32 s80, s80, 2')
    a.e('s_and_b32 s56, s83, 3')
    a.e('s_add_u32 s80, s80, s56')
    a.e('s_lshr_b32 s81, s82, 1')
    a.e('s_lshl_b32 s81, s81, 3')
    a.e('s_lshr_b32 s56, s83, 2')
    a.e('s_add_u32 s81, s81, s56')
    a.e('s_lshl_b32 s91, s80, 5')
    a.e('s_add_u32 s91, s91, s81')
    a.e('s_lshl_b32 s56, s91, 2')
    a.e(f's_add_u32 s56, s56, s{S_W}')
    a.e('s_lshl_b32 s96, s56, 12')
    srd(a, 36, P_Q, 4 * MB)
    XP = 224
    for r in range(2):
        for hh in range(2):
            a.e(f'buffer_load_dwordx4 v[{XP+8*r+4*hh}:{XP+8*r+4*hh+3}], v4, s[36:39], s96 offen offset:{2048*r+1024*hh}')
    a.e('s_waitcnt vmcnt(20)')
    a.e('L_nonce:')
    a.e(f'v_readfirstlane_b32 s{S_NONCE}, v163')
    a.e('s_nop 0')
    a.e(f's_cmp_lg_u32 s{S_NONCE}, 0')
    a.e('s_cbranch_scc1 L_nonce_ok')
    a.e('s_add_u32 s3, s3, 1')
    a.e(f's_cmp_gt_u32 s3, {opt("spin", 200000)}')
    a.e('s_cbranch_scc1 L_nonce_ok')
    a.e('buffer_load_dword v163, v162, s[44:47], 0 offen sc1')
    a.e('s_waitcnt vmcnt(0)')
    a.e('s_branch L_nonce')
    a.e('L_nonce_ok:')
    a.e(f'v_mov_b32 v163, s{S_NONCE}')
    a.e(f's_cmp_eq_u32 s{S_W}, 0')
    a.e('s_waitcnt vmcnt(12)')
    a.e('s_barrier')
    a.e('s_cbranch_scc0 L_sig0')
    a.e('s_mov_b64 exec, 1')
    a.e(f'buffer_store_dword v163, v162, s[{S_FLG}:{S_FLG+3}], s87 offen sc1')
    a.e('s_mov_b64 exec, -1')
    a.e('L_sig0:')
    stamp(a, 2)
    a.e('v_lshrrev_b32 v3, 3, v2')
    a.e('v_sub_u32 v3, 7, v3')
    a.e('v_lshlrev_b32 v3, 14, v3')
    a.e('v_and_b32 v5, 7, v2')
    a.e('v_lshl_add_u32 v3, v5, 4, v3')
    a.e('s_lshl_b32 s56, s84, 7')
    a.e('v_add_u32 v3, s56, v3')
    a.e('v_and_b32 v5, 15, v2')
    a.e('v_lshrrev_b32 v6, 4, v2')
    a.e('v_mov_b32 v28, 0')
    a.e('v_mov_b32 v29, 0')
    a.e('v_lshlrev_b32 v7, 3, v2')
    a.e('v_add_u32 v7, s88, v7')
    a.e('ds_write_b64 v7, v[28:29] offset:4096')
    a.e('v_min_u32 v30, 7, v2')
    a.e('v_lshlrev_b32 v30, 2, v30')
    a.e('v_add_u32 v30, s88, v30')
    a.e('ds_write_b32 v30, v28 offset:4608')
    a.e('v_add_u32 v31, 1, v5')
    a.e('v_and_b32 v32, 1, v31')
    a.e('v_sub_u32 v31, v31, v32')
    a.e('v_lshl_add_u32 v31, v6, 3, v31')
    a.e('v_lshlrev_b32 v31, 1, v31')
    a.e('v_mul_u32_u24 v32, 4160, v32')
    a.e('v_add3_u32 v31, v31, v32, s88')
    VA, VB, ACC = 36, 40, 44
    for j in range(4):
        a.e(f'v_add_u32 v{VA+j}, {4608+1024*j}, v31')
    a.e('v_lshlrev_b32 v32, 5, v5')
    a.e('v_lshlrev_b32 v33, 4, v6')
    a.e('v_sub_u32 v33, v33, v32')
    a.e('v_add_u32 v33, s88, v33')
    a.e(f'v_add_u32 v{VB}, 480, v33')
    a.e('v_add_u32 v7, s88, v4')
    for r in range(32):
        a.e(f'v_mov_b32 v{ACC+r}, 0')
    T = 76
    a.e('s_waitcnt vmcnt(4)')
    for j in range(4):
        d = KD + 4 * j
        if j == 0:
            a.e(f'v_readfirstlane_b32 s56, v{d}')
        a.e(f'ds_write_b128 v7, v[{d}:{d+3}] offset:{4608+32+1024*j}')
        for q in range(4):
            hi = d + q + 1 if q < 3 else KX + j
            a.e(f'v_alignbit_b32 v{T+4*j+q}, v{hi}, v{d+q}, 16')
        a.e(f'ds_write_b128 v7, v[{T+4*j}:{T+4*j+3}] offset:{4608+4160+32+1024*j}')
    a.e('s_lshl_b32 s56, s56, 16')
    a.e('v_cmp_le_u32 vcc, 7, v2')
    a.e('v_mov_b32 v32, s56')
    a.e('s_nop 0')
    a.e('v_cndmask_b32 v32, v28, v32, vcc')
    a.e(f'ds_write_b32 v30, v32 offset:{4608+4160}')
    FA = [96, 160]; FB = [128, 192]
    def rdA(r, buf):
        L = []
        for mq in range(8):
            o = 128 * (mq & 1) + 16 * r
            f = FA[buf] + 4 * mq
            L.append(f'ds_read2_b32 v[{f}:{f+1}], v{VA+(mq>>1)} offset0:{o} offset1:{o+1}')
            L.append(f'ds_read2_b32 v[{f+2}:{f+3}], v{VA+(mq>>1)} offset0:{o+2} offset1:{o+3}')
        return L
    def rdB(r, buf):
        return [f'ds_read_b128 v[{FB[buf]+4*d}:{FB[buf]+4*d+3}], v{VB} offset:{512*(7-d)+64*r}' for d in range(8)]
    a.e('s_waitcnt lgkmcnt(0)')
    a.e('s_bitcmp1_b32 s85, 0')
    a.e('s_cselect_b32 s56, 0, 16')
    a.e('s_lshl_b32 s89, s89, s56')
    a.e('s_and_b32 s89, s89, 0xffff0000')
    for l in rdA(0, 0): a.e(l)
    a.e('v_and_b32 v34, 31, v2')
    a.e('v_lshlrev_b32 v34, 4, v34')
    a.e('s_lshl_b32 s56, s82, 9')
    wait_flags(a, 56, 34, 35)
    stamp(a, 3)
    a.e('s_lshl_b32 s56, s82, 19')
    UR = 8
    for i in range(4):
        a.e(f's_add_u32 s57, s56, {(24-8*i)*16384:#x}')
        a.e(f'buffer_load_dwordx4 v[{UR+4*i}:{UR+4*i+3}], v3, s[48:51], s57 offen sc1')
    g1 = G1(a)
    g1.setup_dma()
    for i in range(4):
        a.e(f's_waitcnt vmcnt({3-i})')
        a.e(f'ds_write_b128 v7, v[{UR+4*i}:{UR+4*i+3}] offset:{1024*i}')
    a.e('s_waitcnt lgkmcnt(0)')
    for l in rdB(0, 0): a.e(l)
    stamp(a, 4)
    early = g1.early_dma()
    UE = 8
    for r in range(8):
        buf = r & 1
        if r < 7:
            A_, B_ = rdA(r + 1, buf ^ 1), rdB(r + 1, buf ^ 1)
            nxt = []
            for x in range(8): nxt += [B_[x], A_[2 * x], A_[2 * x + 1]]
        else:
            a.e('v_lshlrev_b32 v32, 5, v5')
            a.e('v_lshl_add_u32 v32, v6, 3, v32')
            a.e(f'v_sub_u32 v34, {4088-3584}, v32')
            a.e('v_add_u32 v34, s88, v34')
            a.e('v_add_u32 v35, s88, v32')
            nxt = [f'ds_read_b64 v[{UE+2*c}:{UE+2*c+1}], v34 offset:{512*(7-c)}' for c in range(8)]
        a.e('s_waitcnt lgkmcnt(0)')
        k = 0
        for mq in range(8):
            for d in range(8 - mq):
                c = mq + d
                fa = FA[buf] + 4 * mq; fb = FB[buf] + 4 * d
                a.e(f'v_mfma_f32_16x16x32_bf16 v[{ACC+4*c}:{ACC+4*c+3}], v[{fa}:{fa+3}], v[{fb}:{fb+3}], v[{ACC+4*c}:{ACC+4*c+3}]')
                if k < len(nxt):
                    a.e(nxt[k])
                elif early and (k - len(nxt)) % 3 == 0:
                    for l in early.pop(0): a.e(l)
                k += 1
    assert not early
    a.e('s_waitcnt lgkmcnt(0)')
    stamp(a, 5)
    X = 96
    for c in range(8):
        unpack(a, X + 4 * c + 3, X + 4 * c + 2, UE + 2 * c)
        unpack(a, X + 4 * c + 1, X + 4 * c + 0, UE + 2 * c + 1)
    for c in range(8):
        for r in range(4):
            a.e(f'v_fma_f32 v{X+4*c+r}, v{X+4*c+r}, s89, v{ACC+4*c+r}')
        a.e(f'v_cvt_pk_bf16_f32 v{UE+2*c}, v{X+4*c}, v{X+4*c+1}')
        a.e(f'v_cvt_pk_bf16_f32 v{UE+2*c+1}, v{X+4*c+2}, v{X+4*c+3}')
        a.e(f'ds_write_b64 v35, v[{UE+2*c}:{UE+2*c+1}] offset:{4608+512*c}')
    a.e('v_lshlrev_b32 v32, 2, v0')
    a.e(f'v_add_u32 v32, {LDS_KA}, v32')
    a.e('v_lshrrev_b32 v33, 2, v0')
    a.e('v_lshlrev_b32 v33, 14, v33')
    a.e('v_and_b32 v34, 3, v0')
    a.e('v_lshl_add_u32 v33, v34, 4, v33')
    a.e('s_lshl_b32 s56, s86, 6')
    a.e('s_mov_b32 s57, 0x05040100')
    a.e('s_mov_b32 s58, 0x07060302')
    srd(a, 36, P_WS, 4 * MB, WS_Y2)
    a.e('s_waitcnt lgkmcnt(0)')
    a.e('s_barrier')
    Y = 96
    for P in range(4):
        for ch in range(4):
            a.e(f'ds_read_b32 v{Y+4*P+ch}, v32 offset:{ch*KA_REG+4608+1024*P}')
    O = 128
    for P in range(4):
        a.e(f's_waitcnt lgkmcnt({12-4*P})')
        y = Y + 4 * P; o = O + 4 * P
        a.e(f'v_perm_b32 v{o}, v{y+1}, v{y}, s57')
        a.e(f'v_perm_b32 v{o+1}, v{y+3}, v{y+2}, s57')
        a.e(f'v_perm_b32 v{o+2}, v{y+1}, v{y}, s58')
        a.e(f'v_perm_b32 v{o+3}, v{y+3}, v{y+2}, s58')
        a.e(f'buffer_store_dwordx4 v[{o}:{o+3}], v33, s[36:39], s56 offen sc1')
        if P < 3:
            a.e(f's_add_u32 s56, s56, {64*16384:#x}')
    stamp(a, 6)
    XU = [8, 24]; TT = [40, 56]; MM = [72, 74]; RR = [76, 78]; C = 80; YR = [84, 92]; YU = [100, 116]
    for r in range(2):
        for q in range(8):
            unpack(a, XU[r] + 2 * q, XU[r] + 2 * q + 1, XP + 8 * r + q)
    a.e(f'v_mov_b32 v{C}, 0x3a800000')
    a.e('s_lshl_b32 s87, s2, 2')
    a.e(f's_add_u32 s87, s87, {F1}')
    signal(a, 87, 82)
    ln2(a, XU, TT, MM, RR, C)
    a.e('v_lshlrev_b32 v5, 7, v2')
    a.e('v_add_u32 v6, 0x2000, v5')
    a.e('s_lshl_b32 s82, s91, 14')
    a.e(f's_lshl_b32 s83, s{S_W}, 4')
    a.e('s_add_u32 s82, s82, s83')
    srd(a, 40, P_WS, 4 * MB, WS_H)
    srd(a, 44, P_WS, 4 * MB, WS_HNF)
    a.e('v_and_b32 v7, 7, v2')
    a.e(f's_lshl_b32 s83, s{S_W}, 1')
    a.e('v_xor_b32 v132, s83, v7')
    a.e('v_lshl_add_u32 v132, v132, 4, v5')
    a.e(f'v_add_u32 v132, {LDS_KA}, v132')
    a.e('v_xor_b32 v133, 16, v132')
    a.e('v_lshrrev_b32 v134, 3, v2')
    a.e('v_xor_b32 v135, v134, v7')
    a.e('v_lshlrev_b32 v135, 4, v135')
    a.e('v_lshl_add_u32 v135, v134, 7, v135')
    a.e(f's_lshl_b32 s83, s{S_W}, 12')
    a.e(f's_add_u32 s83, s83, {LDS_KA}')
    a.e('v_add_u32 v135, s83, v135')
    a.e('v_lshrrev_b32 v136, 5, v2')
    a.e('v_lshlrev_b32 v136, 12, v136')
    a.e('v_bfe_u32 v137, v2, 3, 2')
    a.e('v_lshl_add_u32 v136, v137, 8, v136')
    a.e('v_lshl_add_u32 v136, v7, 4, v136')
    a.e('s_lshr_b32 s84, s91, 3')
    a.e('s_lshl_b32 s84, s84, 17')
    a.e('s_bfe_u32 s85, s91, 0x20001')
    a.e('s_lshl_b32 s85, s85, 10')
    a.e('s_add_u32 s84, s84, s85')
    a.e('s_and_b32 s85, s91, 1')
    a.e('s_lshl_b32 s85, s85, 7')
    a.e('s_add_u32 s84, s84, s85')
    a.e(f's_lshl_b32 s85, s{S_W}, 15')
    a.e('s_add_u32 s84, s84, s85')
    a.e(f's_mov_b32 s85, {F1}')
    stamp(a, 7)
    wait_flags(a, 85, 4, 128, wide=True)
    stamp(a, 8)
    YL = 84
    a.e(f'buffer_load_dwordx4 v[{YL}:{YL+3}], v5, s[36:39], s82 offen sc1')
    a.e(f'buffer_load_dwordx4 v[{YL+4}:{YL+7}], v5, s[36:39], s82 offen offset:64 sc1')
    a.e(f'buffer_load_dwordx4 v[{YL+8}:{YL+11}], v6, s[36:39], s82 offen sc1')
    a.e(f'buffer_load_dwordx4 v[{YL+12}:{YL+15}], v6, s[36:39], s82 offen offset:64 sc1')
    for cgi in range(4):
        a.e(f's_waitcnt vmcnt({3-cgi})')
        for r in range(2):
            for e in range(2):
                u = YU[r] + 4 * cgi + 2 * e
                unpack(a, u, u + 1, YL + 4 * cgi + 2 * r + e)
        for r in range(2):
            for e in range(2):
                u = YU[r] + 4 * cgi + 2 * e; x = XU[r] + 4 * cgi + 2 * e; t = TT[r] + 4 * cgi + 2 * e
                a.e(f'v_pk_fma_f32 v[{x}:{x+1}], v[{t}:{t+1}], v[{u}:{u+1}], v[{x}:{x+1}]')
    for r in range(2):
        for q in range(8):
            a.e(f'v_cvt_pk_bf16_f32 v{XP+8*r+q}, v{XU[r]+2*q}, v{XU[r]+2*q+1}')
    for r in range(2):
        for hh in range(2):
            a.e(f'buffer_store_dwordx4 v[{XP+8*r+4*hh}:{XP+8*r+4*hh+3}], v4, s[40:43], s96 offen offset:{2048*r+1024*hh} sc1')
    for r in range(2):
        for q in range(8):
            unpack(a, XU[r] + 2 * q, XU[r] + 2 * q + 1, XP + 8 * r + q)
    ln2(a, XU, TT, MM, RR, C)
    for r in range(2):
        for q in range(8):
            a.e(f'v_cvt_pk_bf16_f32 v{YL+8*r+q}, v{TT[r]+2*q}, v{TT[r]+2*q+1}')
        for hh in range(2):
            a.e(f'ds_write_b128 v{132+r}, v[{YL+8*r+4*hh}:{YL+8*r+4*hh+3}] offset:{8192*hh}')
    a.e('s_waitcnt lgkmcnt(0)')
    a.e('s_barrier')
    for i in range(4):
        a.e(f'ds_read_b128 v[{100+4*i}:{103+4*i}], v135 offset:{1024*i}')
    for i in range(4):
        a.e(f's_waitcnt lgkmcnt({3-i})')
        a.e(f'buffer_store_dwordx4 v[{100+4*i}:{103+4*i}], v136, s[44:47], s84 offen sc1')
        if i < 3: a.e('s_add_u32 s84, s84, 8192')
    stamp(a, 9)
    a.e('s_lshl_b32 s87, s91, 4')
    a.e(f's_add_u32 s87, s87, {F2}')
    g1.pre_setup()
    signal(a, 87, 4)
    g1.main()
    g2 = G2(a)
    g1.epilogue(g2)
    g2.main()
    stamp_out(a, NSTAMP)
    a.e('L_end:')
    a.e('s_endpgm')

G1_STG = 32768
class G1:
    TM, NW, DPW, ND = 4, 4, 8, 4
    ACC, WF, TF, DV, VT, VR, VL = 32, 0, 28, 8, 16, 17, 18
    DVE = 240
    def __init__(s, a): s.a = a
    def setup_dma(s):
        a = s.a
        a.e('s_and_b32 s56, s81, 1')
        a.e('s_lshl_b32 s56, s56, 1')
        a.e('s_movk_i32 s57, 4682')
        a.e('s_movk_i32 s58, 7168')
        a.e('v_mov_b32 v248, 0x80000000')
        a.e('v_subrev_u32 v249, 8, v2')
        for src, dst in ((2, 250), (249, 251)):
            a.e(f'v_cmp_gt_u32 vcc, 56, v{src}')
            a.e(f'v_mul_u32_u24 v252, s57, v{src}')
            a.e('v_lshrrev_b32 v252, 16, v252')
            a.e('v_mul_u32_u24 v253, 14, v252')
            a.e(f'v_sub_u32 v253, v{src}, v253')
            a.e('v_add_u32 v253, s56, v253')
            a.e('v_subrev_u32 v254, 14, v253')
            a.e('v_min_u32 v253, v253, v254')
            a.e('v_mul_u32_u24 v252, s58, v252')
            a.e('v_lshl_add_u32 v252, v253, 4, v252')
            a.e(f'v_cndmask_b32 v{dst}, v248, v252, vcc')
        for i in range(8):
            pat = 251 if (i >> 1) & 1 else 250
            c = i * 4 * 7168 - 1024 * (i & 3)
            a.e(f'v_add_u32 v{s.DVE+i}, {c}, v{pat}' if c else f'v_mov_b32 v{s.DVE+i}, v{pat}')
        a.e(f's_and_b32 s56, s{S_W}, 1')
        a.e(f's_lshr_b32 s57, s{S_W}, 1')
        a.e(f's_mul_i32 s97, s56, {8*4*7168}')
        a.e('s_lshl_b32 s98, s57, 14')
        a.e('s_lshl_b32 s56, s56, 13')
        a.e('s_add_u32 s98, s98, s56')
        a.e('s_mul_i32 s56, s81, 224')
        a.e('s_cmp_eq_u32 s57, 0')
        a.e(f's_cselect_b32 s52, s{P_W1}, s{P_W3}')
        a.e(f's_cselect_b32 s53, s{P_W1+1}, s{P_W3+1}')
        srd(a, 52, 52, None, 0, 56)
        a.e('s_sub_u32 s54, 7340032, s56')
    def m0set(s, i): return f's_add_u32 m0, s98, {4096*(i//4)}' if i else 's_mov_b32 m0, s98'
    def dma(s, i, base): return f'buffer_load_dwordx4 v{base+i}, s[52:55], s97 offen offset:{1024*(i&3)} lds'
    def dma_adv(s): return ['s_add_u32 s97, s97, 458752', f's_add_u32 s98, s98, {G1_STG}', 's_and_b32 s98, s98, 0x1ffff']
    def early_dma(s):
        out = []
        for st in range(2):
            for i in range(8):
                if i % 4 == 0: out.append([s.m0set(i)])
                out.append([s.dma(i, s.DVE)] + (s.dma_adv() if i == 7 else []))
        return out
    def tok(s, k, tm):
        f = s.TF + 4 * (4 * (k % s.ND) + tm)
        return f'buffer_load_dwordx4 a[{f}:{f+3}], v{s.VT}, s[32:35], s82 offen offset:{tm*1024}' + (' sc1' if opt('t1sc', 1) else '')
    def rd(s, ph, t):
        j, mat = (ph & 3) >> 1, ph & 1
        return [f'ds_read_b64_tr_b16 a[{s.WF+4*t+2*h}:{s.WF+4*t+2*h+1}], v{s.VR} offset:{8192*j+1024*h+32*t+16384*mat}' for h in range(2)]
    def pre_setup(s):
        a = s.a
        for i in range(8): a.e(f'v_mov_b32 v{s.DV+i}, v{s.DVE+i}')
        a.e(f'v_lshlrev_b32 v{s.VT}, 4, v2')
        a.e('v_lshrrev_b32 v4, 4, v2')
        a.e('v_lshlrev_b32 v4, 11, v4')
        a.e('v_bfe_u32 v5, v2, 4, 1')
        a.e('v_lshl_add_u32 v4, v5, 7, v4')
        a.e('v_bfe_u32 v6, v2, 2, 2')
        a.e('v_mul_u32_u24 v5, 224, v6')
        a.e('v_and_b32 v6, 3, v2')
        a.e('v_lshl_add_u32 v5, v6, 3, v5')
        a.e(f'v_add_u32 v{s.VL}, v4, v5')
        a.e(f'v_mov_b32 v{s.VR}, v{s.VL}')
        a.e('v_and_b32 v19, 31, v2')
        a.e('v_lshlrev_b32 v19, 4, v19')
        a.e('s_lshl_b32 s56, s80, 2')
        a.e(f's_add_u32 s56, s56, s{S_W}')
        a.e('s_lshl_b32 s57, s56, 17')
        srd(a, 32, P_WS, 131072, WS_HNF, 57)
        a.e(f's_mul_i32 s57, s56, {4*114688}')
        srd(a, 36, P_WS, 4 * 114688, WS_HF, 57)
        a.e('s_and_b32 s58, s81, 1')
        a.e('s_mul_i32 s85, s81, 7')
        a.e('s_add_u32 s85, s85, s58')
        a.e('s_lshl_b32 s85, s85, 9')
        a.e('s_movk_i32 s86, 3072')
        a.e('s_cmp_eq_u32 s58, 0')
        a.e('s_cselect_b32 s86, s86, 0xfffffc08')
        a.e('s_add_u32 s86, s86, s85')
        for r in range(224):
            a.e(f'v_mov_b32 v{s.ACC+r}, 0')
    def kof(s, s_, P): return 2 * s_ + (-1, 0, 0, 1)[P]
    def ev_ins(s, e):
        L = []
        if e[0] == 'D':
            if e[2] % 4 == 0: L.append(s.m0set(e[2]))
            L.append(s.dma(e[2], s.DV))
            if e[2] == 7: L += s.dma_adv()
        else:
            L.append(s.tok(e[1], e[2]))
            if e[2] == 3: L.append('s_add_u32 s82, s82, 4096')
        return L
    def main(s):
        a = s.a
        S = s.S = Sched()
        for s_ in range(-4, 8):
            for P in range(4):
                S.mark((s_, P))
                k = s.kof(s_, P) + s.ND - 1
                t0 = 2 if P in (0, 2) else 0
                S.add([('D', s_ + 2, 2 * P), ('T', k, t0), ('D', s_ + 2, 2 * P + 1), ('T', k, t0 + 1)])
        vm_bar = S.younger(('D', 4), (4, 0)); vm_p1 = S.younger(('T', 8), (4, 1)); vm_p3 = S.younger(('T', 9), (4, 3))
        a.e('s_lshl_b32 s56, s80, 9')
        a.e(f's_add_u32 s56, s56, {F2}')
        a.e('s_mov_b32 s82, 0')
        a.e('s_mov_b32 s83, 0')
        a.e('s_mov_b32 s84, 0')
        for t in range(6):
            for l in s.rd(0, t): a.e(l)
        stamp(a, 10)
        wait_flags(a, 56, 19, 20)
        stamp(a, 11)
        pro = [e for e in S.ev[:S.marks[(0, 0)]] if e[1] >= 0 and e[0] == 'T']
        for e in pro + S.ev[S.marks[(0, 0)]:S.marks[(0, 1)]]:
            for l in s.ev_ins(e):
                a.e(l)
                if 'm0' in l: a.e('s_nop 0')
        act = pro + S.ev[S.marks[(0, 0)]:]
        off = len(pro) - S.marks[(0, 0)]
        s.startup = {}
        need = -1
        for s_ in range(0, 6):
            for P, tags, N in ((0, [('D', s_)], vm_bar), (1, [('T', 2 * s_)], vm_p1), (3, [('T', 2 * s_ + 1)], vm_p3)):
                if (s_, P) == (0, 0): continue
                site = S.marks[(s_, P)] + off
                for tg in tags:
                    idx = [i for i, e in enumerate(act) if e[:2] == tg]
                    if not idx: continue
                    if site - max(idx) - 1 < N: need = max(need, max(idx))
        if need >= 0:
            a.e(f's_waitcnt vmcnt({S.marks[(0, 1)] + off - need - 1})')
        a.e('s_branch L_g1_P1')
        s.snake = 0
        a.e('L_g1_loop:')
        for s_ in (4, 5):
            a.e(f's_add_u32 s83, s83, {G1_STG}')
            a.e('s_and_b32 s83, s83, 0x1ffff')
            a.e(f's_waitcnt vmcnt({vm_bar})')
            a.e('s_barrier')
            s.phase(s_, 0)
            if s_ == 4: a.e('L_g1_P1:')
            a.e(f's_waitcnt vmcnt({vm_p1})')
            s.phase(s_, 1)
            s.phase(s_, 2)
            a.e(f's_waitcnt vmcnt({vm_p3})')
            s.phase(s_, 3)
        a.e('s_add_u32 s84, s84, 1')
        a.e('s_cmp_lt_u32 s84, 8')
        a.e('s_cbranch_scc1 L_g1_loop')
        s.phase(6, 0, last=True)
        stamp(a, 12)
    def phase(s, s_, P, last=False):
        a = s.a; S = s.S
        kbuf = s.kof(s_, P) % s.ND
        mat = (P + 1) & 1
        items = []
        if not last:
            nxt = S.marks[(s_, P + 1)] if P < 3 else S.marks[(s_ + 1, 0)]
            items = [s.ev_ins(e) for e in S.ev[S.marks[(s_, P)]:nxt]]
        slots = [[] for _ in range(7)]
        for p_, it in zip([1, 2, 4, 5], items): slots[p_] = it
        if P == 0 and not last:
            slots[0] = [f'v_add_u32 v{s.VR}, s83, v{s.VL}']
        for t in range(7):
            a.e(f's_waitcnt lgkmcnt({10 if not (last and t) else 12-2*t})')
            R = s.rd(P - 1, 6) if t == 0 else ([] if last else s.rd(P, t - 1))
            X = list(slots[t])
            pre = [x for x in X if 'm0' in x]
            X = [x for x in X if 'm0' not in x]
            gaps = [[] for _ in range(4)]
            if R: gaps[0] = pre + [R[0]]; gaps[1] = [R[1]]
            gaps[2] = X[:1]; gaps[3] = X[1:]
            order = [0, 1, 2, 3]
            if s.snake & 1: order.reverse()
            s.snake += 1
            for n, tm in enumerate(order):
                c = s.ACC + 4 * ((mat * 7 + t) * 4 + tm)
                tf = s.TF + 4 * (4 * kbuf + tm)
                a.e(f'v_mfma_f32_16x16x32_bf16 v[{c}:{c+3}], a[{s.WF+4*t}:{s.WF+4*t+3}], a[{tf}:{tf+3}], v[{c}:{c+3}]')
                for x in gaps[n]: a.e(x)
    def epilogue(s, g2):
        a = s.a
        a.e('s_mov_b32 s58, 0xbfb8aa3b')
        a.e('s_mov_b32 s59, 0xbfb8aa3b')
        extra = g2.early()
        k = 0
        for tm in range(4):
            for u in range(4):
                T = (0, 8)[k & 1]; O = (20, 24)[k & 1]
                if k == 0: T = 8
                if k == 1: T = 8
                k += 1
                T = 8 if True else T
                tiles = [2 * u, 2 * u + 1] if u < 3 else [6]
                gs = []; us = []
                for t in tiles:
                    gs += [s.ACC + 4 * (t * 4 + tm), s.ACC + 4 * (t * 4 + tm) + 2]
                    us += [s.ACC + 4 * ((7 + t) * 4 + tm), s.ACC + 4 * ((7 + t) * 4 + tm) + 2]
                n = len(gs)
                for q in range(n):
                    a.e(f'v_pk_mul_f32 v[{T+2*q}:{T+2*q+1}], v[{gs[q]}:{gs[q]+1}], s[58:59]')
                for q in range(2 * n):
                    a.e(f'v_exp_f32 v{T+q}, v{T+q}')
                for q in range(n):
                    a.e(f'v_pk_add_f32 v[{T+2*q}:{T+2*q+1}], v[{T+2*q}:{T+2*q+1}], 1.0 op_sel_hi:[1,0]')
                for q in range(2 * n):
                    a.e(f'v_rcp_f32 v{T+q}, v{T+q}')
                for q in range(n):
                    a.e(f'v_pk_mul_f32 v[{gs[q]}:{gs[q]+1}], v[{gs[q]}:{gs[q]+1}], v[{us[q]}:{us[q]+1}]')
                for q in range(n):
                    a.e(f'v_pk_mul_f32 v[{T+2*q}:{T+2*q+1}], v[{T+2*q}:{T+2*q+1}], v[{gs[q]}:{gs[q]+1}]')
                for q in range(n):
                    a.e(f'v_cvt_pk_bf16_f32 v{O+q}, v{T+2*q}, v{T+2*q+1}')
                if u < 3:
                    a.e(f'buffer_store_dwordx4 v[{O}:{O+3}], v{s.VT}, s[36:39], s85 offen offset:{1024*u} sc1')
                else:
                    a.e(f'buffer_store_dwordx2 v[{O}:{O+1}], v{s.VT}, s[36:39], s86 offen sc1')
                if extra:
                    for l in extra.pop(0): a.e(l)
            if tm < 3:
                a.e('s_add_u32 s85, s85, 114688')
                a.e('s_add_u32 s86, s86, 114688')
        for L in extra:
            for l in L: a.e(l)
        a.e('s_lshl_b32 s87, s91, 4')
        a.e(f's_add_u32 s87, s87, {F3}')
        stamp(a, 13)
        g2.pre_setup()
        signal(a, 87, 4)
        stamp(a, 18)

class G2:
    ND = 16
    ACC, WF, TF, R0, HR, VO, VT = 32, 96, 128, 0, 0, 0, 16
    DV = 28
    def __init__(s, a): s.a = a
    def early(s):
        a = s.a
        a.e('s_and_b32 s82, s2, 1')
        a.e('s_lshr_b32 s56, s2, 3')
        a.e('s_bfe_u32 s80, s2, 0x20001')
        a.e('s_lshl_b32 s80, s80, 2')
        a.e('s_and_b32 s57, s56, 3')
        a.e('s_add_u32 s80, s80, s57')
        a.e('s_lshr_b32 s81, s56, 2')
        a.e('v_lshrrev_b32 v3, 4, v2')
        a.e('v_bfe_u32 v4, v2, 1, 3')
        a.e('v_xor_b32 v4, v4, v3')
        a.e('v_and_b32 v5, 1, v2')
        a.e('v_lshlrev_b32 v5, 4, v5')
        a.e('v_lshl_add_u32 v5, v4, 5, v5')
        a.e('v_lshlrev_b32 v6, 11, v3')
        a.e(f'v_add_u32 v{s.DV}, v5, v6')
        a.e('v_xor_b32 v5, 128, v5')
        a.e(f'v_add_u32 v{s.DV+2}, {16384-2048}, v{s.DV}')
        a.e(f'v_add_u32 v6, {8192-1024}, v6')
        a.e(f'v_add_u32 v{s.DV+1}, v5, v6')
        a.e(f'v_add_u32 v{s.DV+3}, {16384-2048}, v{s.DV+1}')
        a.e('s_mul_i32 s56, s82, 3670016')
        a.e('s_lshl_b32 s57, s81, 8')
        a.e('s_add_u32 s56, s56, s57')
        srd(a, 52, P_W2, None, 0, 56)
        a.e('s_sub_u32 s54, 3670016, s57')
        a.e(f's_lshl_b32 s97, s{S_W}, 16')
        a.e('s_add_u32 s83, s97, 32768')
        a.e(f's_lshl_b32 s98, s{S_W}, 13')
        out = []
        for st in range(2):
            for i in range(8):
                out.append(s.ev_ins(('D', st, i), nop=True))
        return out
    def ev_ins(s, e, nop=False):
        L = []
        if e[0] == 'D':
            i = e[2]
            if i % 4 == 0:
                c = 32768 * (e[1] % 4) + 4096 * (i // 4)
                L.append(f's_add_u32 m0, s98, {c}' if c else 's_mov_b32 m0, s98')
                if nop: L.append('s_nop 0')
            L.append(f'buffer_load_dwordx4 v{s.DV+(i&3)}, s[52:55], s{97 if i < 4 else 83} offen offset:{1024*(i&3)} lds')
            if i == 3: L.append('s_add_u32 s97, s97, 262144')
            if i == 7: L.append('s_add_u32 s83, s83, 262144')
        else:
            k, tm = e[1], e[2]
            f = s.TF + 8 * (k % s.ND) + 4 * tm
            L.append(f'buffer_load_dwordx4 v[{f}:{f+3}], v{s.VT}, s[{32+4*tm}:{35+4*tm}], s84 offen offset:{1024*(k&3)}' + (' sc1' if opt('t2sc', 1) else ''))
            if tm == 1 and (k & 3) == 3: L.append('s_add_u32 s84, s84, 4096')
        return L
    def pre_setup(s):
        a = s.a
        a.e('v_mov_b32 v17, v2')
        a.e('v_lshrrev_b32 v18, 4, v17')
        a.e('v_bfe_u32 v19, v17, 2, 2')
        a.e('v_lshl_add_u32 v19, v18, 2, v19')
        a.e('v_and_b32 v96, 7, v19')
        a.e('v_lshlrev_b32 v19, 8, v19')
        a.e('v_and_b32 v97, 3, v17')
        a.e('v_lshl_add_u32 v19, v97, 3, v19')
        a.e('s_lshl_b32 s56, s82, 2')
        a.e('v_xor_b32 v96, s56, v96')
        for t in range(8):
            a.e(f'v_xor_b32 v97, {t}, v96')
            a.e(f'v_lshl_add_u32 v{100+t}, v97, 5, v19')
        for r in range(64):
            a.e(f'v_mov_b32 v{s.ACC+r}, 0')
        a.e('s_lshl_b32 s56, s80, 3')
        a.e(f's_lshl_b32 s57, s{S_W}, 1')
        a.e('s_add_u32 s56, s56, s57')
        a.e('s_mul_i32 s57, s56, 114688')
        a.e('s_mul_i32 s58, s82, 57344')
        a.e('s_add_u32 s57, s57, s58')
        srd(a, 32, P_WS, 57344, WS_HF, 57)
        srd(a, 36, P_WS, 57344, WS_HF + 114688, 57)
        a.e('v_and_b32 v19, 15, v17')
        a.e('v_lshlrev_b32 v19, 11, v19')
        a.e('v_lshl_add_u32 v19, v18, 3, v19')
        a.e('s_lshl_b32 s85, s56, 15')
        a.e('s_lshl_b32 s57, s81, 8')
        a.e('s_add_u32 s85, s85, s57')
        a.e('s_lshl_b32 s57, s82, 7')
        a.e('s_add_u32 s85, s85, s57')
        a.e('s_add_u32 s86, s85, 32768')
        a.e('v_and_b32 v18, 15, v17')
        a.e('v_lshlrev_b32 v18, 4, v18')
    def rd(s, slot, j, t):
        f = s.WF + 4 * t
        return [f'ds_read_b64_tr_b16 v[{f+2*h}:{f+2*h+1}], v{8*(slot>>1)+t} offset:{32768*(slot&1)+8192*j+4096*h}' for h in range(2)]
    def main(s):
        a = s.a
        for t in range(8):
            a.e(f'v_mov_b32 v{t}, v{100+t}')
            a.e(f'v_add_u32 v{8+t}, 0x10000, v{100+t}')
        S = s.S = Sched()
        for s_ in range(-6, 10):
            for P in range(4):
                S.mark((s_, P))
                k = 4 * s_ - 1 + P + s.ND - 1
                S.add([('D', s_ + 2, 2 * P), ('T', k, 0), ('D', s_ + 2, 2 * P + 1), ('T', k, 1)])
        vm = [min(S.younger(('D', 6), (6, 0)), S.younger(('T', 23), (6, 0)))] + [S.younger(('T', 23 + P), (6, P)) for P in (1, 2, 3)]
        s.vm = vm
        a.e('s_lshr_b32 s56, s80, 1')
        a.e('s_lshl_b32 s56, s56, 9')
        a.e('s_lshl_b32 s57, s82, 8')
        a.e('s_add_u32 s56, s56, s57')
        a.e(f's_add_u32 s56, s56, {F3}')
        a.e('s_mov_b32 s84, 0')
        a.e('s_mov_b32 s88, 0')
        for t in range(7):
            for l in s.rd(0, 0, t): a.e(l)
        wait_flags(a, 56, 18, 20)
        stamp(a, 14)
        pro = [e for e in S.ev[:S.marks[(0, 0)]] if e[1] >= 0 and e[0] == 'T']
        for e in pro + S.ev[S.marks[(0, 0)]:S.marks[(0, 1)]]:
            for l in s.ev_ins(e, nop=True): a.e(l)
        act = pro + S.ev[S.marks[(0, 0)]:]
        off = len(pro) - S.marks[(0, 0)]
        def site_need(s_, P):
            tags = [('T', 4 * s_ - 1 + P)] + ([('D', s_)] if P == 0 else [])
            site = S.marks[(s_, P)] + off
            n = 63
            for tg in tags:
                idx = [i for i, e in enumerate(act) if e[:2] == tg]
                if idx: n = min(n, site - max(idx) - 1)
            return n
        lax = [(s_, P) for s_ in range(2, 8) for P in range(4) if site_need(s_, P) < vm[P]]
        for s_ in (0, 1):
            for P in range(4):
                if (s_, P) == (0, 0): continue
                n = site_need(s_, P)
                if (s_, P) == (1, 3) and lax:
                    worst = -1
                    for (s2_, P2) in lax:
                        worst = max(worst, max(i for i, e in enumerate(act) if e[:2] == ('T', 4 * s2_ - 1 + P2)))
                    n = min(n, S.marks[(1, 3)] + off - worst - 1)
                a.e(f's_waitcnt vmcnt({n})')
                if P == 0: a.e('s_barrier')
                s.phase(s_, P)
        a.e('L_g2_loop:')
        for s_ in (2, 3, 4, 5):
            for P in range(4):
                a.e(f's_waitcnt vmcnt({vm[P]})')
                if P == 0: a.e('s_barrier')
                s.phase(s_, P)
        a.e('s_add_u32 s88, s88, 1')
        a.e('s_cmp_lt_u32 s88, 3')
        a.e('s_cbranch_scc1 L_g2_loop')
        a.e(f's_waitcnt vmcnt({S.younger(("T", 23), (6, 0))})')
        s.phase(6, 0, last=True)
        stamp(a, 15)
        a.e('s_lshl_b32 s56, s2, 2')
        a.e(f's_add_u32 s56, s56, s{S_W}')
        a.e('s_lshl_b32 s57, s56, 13')
        a.e('s_xor_b32 s58, s57, 0x8000')
        a.e('s_lshl_b32 s56, s56, 6')
        a.e(f's_add_u32 s56, s56, {F4}')
        a.e('s_xor_b32 s59, s56, 0x100')
        srd(a, 40, P_WS, 8 * MB, WS_XP)
        a.e('s_add_u32 s87, s57, 4096')
        for q in range(8):
            c = s.ACC + 32 + 4 * q
            a.e(f'buffer_store_dwordx4 v[{c}:{c+3}], v{s.VT}, s[40:43], s{57 if q < 4 else 87} offen offset:{1024*(q&3)} sc1')
        srd(a, 44, P_WS, 4 * MB, WS_H)
        HR = 0
        for tm in range(2):
            for t in range(4):
                r = HR + 8 * tm + 2 * t
                a.e(f'buffer_load_dwordx2 v[{r}:{r+1}], v19, s[44:47], s{85+tm} offen offset:{32*t} sc1')
        srd(a, 48, P_OUT, 4 * MB)
        a.e('v_mov_b32 v20, 0')
        a.e(f'v_mov_b32 v21, s{S_NONCE}')
        a.e('s_mov_b64 exec, 1')
        a.e('s_waitcnt vmcnt(8)')
        stamp(a, 16)
        a.e(f'buffer_store_dword v21, v20, s[{S_FLG}:{S_FLG+3}], s56 offen sc1')
        a.e('s_mov_b64 exec, -1')
        wait_flags(a, 59, 20, 22)
        stamp(a, 17)
        a.e('s_add_u32 s87, s58, 4096')
        P1 = 96
        for q in range(8):
            a.e(f'buffer_load_dwordx4 v[{P1+4*q}:{P1+4*q+3}], v{s.VT}, s[40:43], s{58 if q < 4 else 87} offen offset:{1024*(q&3)} sc1')
        H = 64
        for tm in range(2):
            for t in range(4):
                for e in range(2):
                    u = H + 4 * (2 * t + tm) + 2 * e
                    unpack(a, u, u + 1, HR + 8 * tm + 2 * t + e)
        for q in range(8):
            t, tm = q >> 1, q & 1
            a.e('s_waitcnt vmcnt(7)')
            c = s.ACC + 4 * q
            for e in range(2):
                x = c + 2 * e; y = P1 + 4 * q + 2 * e; h = H + 4 * q + 2 * e
                a.e(f'v_pk_add_f32 v[{x}:{x+1}], v[{x}:{x+1}], v[{y}:{y+1}]')
                a.e(f'v_cvt_pk_bf16_f32 v{y}, v{x}, v{x+1}')
                unpack(a, x, x + 1, y)
                a.e(f'v_pk_add_f32 v[{x}:{x+1}], v[{x}:{x+1}], v[{h}:{h+1}]')
                a.e(f'v_cvt_pk_bf16_f32 v{2*q+e}, v{x}, v{x+1}')
            a.e(f'buffer_store_dwordx2 v[{2*q}:{2*q+1}], v19, s[48:51], s{85+tm} offen offset:{32*t}')
    def phase(s, s_, P, last=False):
        a = s.a; S = s.S
        k = 4 * s_ - 1 + P
        slots = [[] for _ in range(8)]
        if not last:
            nxt = S.marks[(s_, P + 1)] if P < 3 else S.marks[(s_ + 1, 0)]
            for p_, e in zip([1, 3, 5, 7], S.ev[S.marks[(s_, P)]:nxt]): slots[p_] = s.ev_ins(e)
        for t in range(8):
            a.e(f's_waitcnt lgkmcnt({12 if not (last and t) else 14-2*t})')
            if t == 0:
                R = s.rd((s_ - 1) % 4, 3, 7) if P == 0 else s.rd(s_ % 4, P - 1, 7)
            else:
                R = [] if last else s.rd(s_ % 4, P, t - 1)
            X = list(slots[t])
            pre = [x for x in X if 'm0' in x]
            X = [x for x in X if 'm0' not in x]
            gaps = [pre + R[:1], R[1:] + X]
            order = [0, 1] if t % 2 == 0 else [1, 0]
            for n, tm in enumerate(order):
                c = s.ACC + 4 * (2 * t + tm)
                tf = s.TF + 8 * (k % s.ND) + 4 * tm
                a.e(f'v_mfma_f32_16x16x32_bf16 v[{c}:{c+3}], v[{s.WF+4*t}:{s.WF+4*t+3}], v[{tf}:{tf+3}], v[{c}:{c+3}]')
                for x in gaps[n]: a.e(x)

def build():
    a = Asm()
    hdr = open('cdna_kernels/' + NAME + '.s.ref').read().split('\n')
    cm = [l for l in hdr if l.startswith(';') and '@launch' not in l and 'Override launch' not in l and 'grid=ceil' not in l]
    out = '\n'.join(cm) + '\n'
    if opt('aslist'):
        out += f'; @launch kernel={KNAME} grid=(256,1,1) block=(256,1,1) lds=163840\n'
    else:
        out += '; @launch grid=(256,1,1) block=(256,1,1) lds=163840\n'
    a.raw('.amdgcn_target "amdgcn-amd-amdhsa--gfx950"')
    a.raw('.text')
    gen(a)
    body = a.text()
    errs = check_hazards(body)
    errs += check_waits(body, KNAME, loop_iters=2, take_fwd=('L_nonce_ok', 'L_nonce_skip') + tuple(f'L_sig{i}' for i in range(20)))
    errs += check_waits(body, KNAME, loop_iters=2, take_fwd=('L_nonce_ok',))
    for e in errs: print(e, file=sys.stderr)
    na = AST + NSTAMP if opt('stamp') else 92
    out += body + f'''.section .rodata,"a"
.p2align 6
.amdhsa_kernel {KNAME}
  .amdhsa_next_free_vgpr {256+na}
  .amdhsa_next_free_sgpr 102
  .amdhsa_accum_offset 256
  .amdhsa_group_segment_fixed_size 0
  .amdhsa_kernarg_size 104
  .amdhsa_user_sgpr_count 2
  .amdhsa_user_sgpr_kernarg_segment_ptr 1
  .amdhsa_system_sgpr_workgroup_id_x 1
  .amdhsa_float_denorm_mode_32 3
.end_amdhsa_kernel
'''
    return out, errs

if __name__ == '__main__':
    outp = sys.argv[1]
    for kv in sys.argv[2:]:
        k, v = kv.split('=')
        OPT[k] = int(v)
    t, errs = build()
    open(outp, 'w').write(t)
    print('written', outp, len(t), 'bytes;', len(errs), 'checker errors')
```

```python
import sys, os
from asmlib import *

NAME = 'sequential_preLN__ssm_conv_h3__glu_gated_swiglu__prompt'
KNAME = NAME + '_kernel'
MB = 1 << 20
WS0 = int(os.environ.get('WS0', '0')) * MB
WS_UB, WS_Y2, WS_H, WS_HNF, WS_HF, WS_XP, WS_FLG = [WS0 + x * MB for x in (0, 4, 8, 12, 16, 32, 40)]
STAMP_BASE = 64 * MB
OPT = {}
def opt(k, d=0): return OPT.get(k, d)

P_Q, P_K, P_V, P_SH, P_SSMK, P_D, P_X, P_W1, P_W3, P_W2, P_OUT, P_DBG, P_WS = [4 + 2 * i for i in range(13)]
S_W, S_NONCE, S_MASK = 30, 31, 90
S_FLG = 92
F0, F1, F2, F3, F4 = 0, 32768, 65536, 98304, 131072
FLG_SIZE = 262144
LDS_KA = 98304
KA_REG = 13056
NSTAMP = 20
AST = 128

def srd(a, d, p, size, add=0, addreg=None):
    if add or addreg is not None:
        if add:
            a.e(f's_add_u32 s{d}, s{p}, {add:#x}')
            a.e(f's_addc_u32 s{d+1}, s{p+1}, 0')
            if addreg is not None:
                a.e(f's_add_u32 s{d}, s{d}, s{addreg}')
                a.e(f's_addc_u32 s{d+1}, s{d+1}, 0')
        else:
            a.e(f's_add_u32 s{d}, s{p}, s{addreg}')
            a.e(f's_addc_u32 s{d+1}, s{p+1}, 0')
    else:
        a.e(f's_mov_b32 s{d}, s{p}')
        a.e(f's_mov_b32 s{d+1}, s{p+1}')
    if size is not None:
        a.e(f's_mov_b32 s{d+2}, {size:#x}')
    a.e(f's_mov_b32 s{d+3}, 0x20000')

def stamp(a, i):
    if not opt('stamp'): return
    a.e('s_memrealtime s[60:61]')
    if i == 0: a.e('s_memtime s[62:63]')
    cy = {11: 20, 12: 21, 14: 22, 15: 23, 4: 24, 5: 25}.get(i)
    if cy: a.e('s_memtime s[66:67]')
    a.e('s_waitcnt lgkmcnt(0)')
    a.e(f'v_accvgpr_write_b32 a{AST+i}, s60')
    if cy: a.e(f'v_accvgpr_write_b32 a{AST+cy}, s66')

def stamp_out(a, n):
    if not opt('stamp'): return
    a.e('s_waitcnt vmcnt(0)')
    stamp(a, n - 1)
    a.e('s_memtime s[64:65]')
    a.e('s_waitcnt lgkmcnt(0)')
    srd(a, 32, P_WS, 1 * MB, STAMP_BASE)
    a.e('s_lshl_b32 s84, s2, 2')
    a.e(f's_add_u32 s84, s84, s{S_W}')
    a.e('s_lshl_b32 s84, s84, 7')
    a.e('v_mov_b32 v1, 0')
    for i in range(26):
        a.e(f'v_accvgpr_read_b32 v2, a{AST+i}')
        a.e(f'buffer_store_dword v2, v1, s[32:35], s84 offen offset:{4*i}')
    a.e('s_sub_u32 s64, s64, s62')
    a.e('v_mov_b32 v2, s64')
    a.e('buffer_store_dword v2, v1, s[32:35], s84 offen offset:124')

def unpack(a, dlo, dhi, src):
    a.e(f'v_lshlrev_b32 v{dlo}, 16, v{src}')
    a.e(f'v_and_b32 v{dhi}, s{S_MASK}, v{src}')

_uid = [0]
def signal(a, soff, vt):
    _uid[0] += 1
    L = f'L_sig{_uid[0]}'
    a.e(f'v_mov_b32 v{vt}, 0')
    a.e(f'v_mov_b32 v{vt+1}, s{S_NONCE}')
    a.e(f's_cmp_eq_u32 s{S_W}, 0')
    a.e('s_waitcnt vmcnt(0)')
    a.e('s_barrier')
    a.e(f's_cbranch_scc0 {L}')
    a.e('s_mov_b64 exec, 1')
    a.e(f'buffer_store_dword v{vt+1}, v{vt}, s[{S_FLG}:{S_FLG+3}], s{soff} offen sc1')
    a.e('s_mov_b64 exec, -1')
    a.e(f'{L}:')

def fsh():
    return opt('fs', 32).bit_length() - 1
def f1sh():
    return opt('f1s', 32).bit_length() - 1

def wait_flags(a, soff, voff, vd, n=64, solo=None):
    _uid[0] += 1
    L = f'L_poll{_uid[0]}'
    if solo is None: solo = opt('solo', 1)
    if solo:
        a.e(f's_cmp_lg_u32 s{S_W}, 0')
        a.e(f's_cbranch_scc1 {L}x')
    a.e(f'{L}:')
    if n == 256:
        if f1sh() == 2:
            a.e(f'buffer_load_dwordx4 v[{vd}:{vd+3}], v{voff}, s[{S_FLG}:{S_FLG+3}], s{soff} offen sc1')
        else:
            for i in range(4):
                a.e(f's_add_u32 s89, s{soff}, {i*(64<<f1sh())}')
                a.e(f'buffer_load_dword v{vd+i}, v{voff}, s[{S_FLG}:{S_FLG+3}], s89 offen sc1')
        a.e('s_waitcnt vmcnt(0)')
        a.e(f'v_xor_b32 v{vd}, s{S_NONCE}, v{vd}')
        a.e(f'v_xor_b32 v{vd+1}, s{S_NONCE}, v{vd+1}')
        a.e(f'v_xor_b32 v{vd+2}, s{S_NONCE}, v{vd+2}')
        a.e(f'v_xor_b32 v{vd+3}, s{S_NONCE}, v{vd+3}')
        a.e(f'v_or3_b32 v{vd}, v{vd}, v{vd+1}, v{vd+2}')
        a.e(f'v_or_b32 v{vd}, v{vd}, v{vd+3}')
        a.e(f'v_cmp_ne_u32 vcc, 0, v{vd}')
    else:
        a.e(f'buffer_load_dword v{vd}, v{voff}, s[{S_FLG}:{S_FLG+3}], s{soff} offen sc1')
        a.e('s_waitcnt vmcnt(0)')
        a.e(f'v_cmp_ne_u32 vcc, s{S_NONCE}, v{vd}')
    a.e('s_add_u32 s3, s3, 1')
    a.e(f's_cmp_gt_u32 s3, {opt("spin", 200000)}')
    a.e(f's_cbranch_scc1 {L}x')
    a.e(f's_cbranch_vccz {L}x')
    if opt('sleep'): a.e(f's_sleep {opt("sleep")}')
    a.e(f's_branch {L}')
    a.e(f'{L}x:')
    if solo: a.e('s_barrier')

def wave_sum2(a, va, vb, sa, sb):
    for mod in ('row_shr:1 row_mask:0xf bank_mask:0xf bound_ctrl:0', 'row_shr:2 row_mask:0xf bank_mask:0xf bound_ctrl:0',
                'row_shr:4 row_mask:0xf bank_mask:0xf bound_ctrl:0', 'row_shr:8 row_mask:0xf bank_mask:0xf bound_ctrl:0',
                'row_bcast:15 row_mask:0xa bank_mask:0xf', 'row_bcast:31 row_mask:0xc bank_mask:0xf'):
        a.e('s_nop 0')
        a.e(f'v_add_f32_dpp v{va}, v{va}, v{va} {mod}')
        a.e(f'v_add_f32_dpp v{vb}, v{vb}, v{vb} {mod}')
    a.e(f'v_readlane_b32 s{sa}, v{va}, 63')
    a.e(f'v_readlane_b32 s{sb}, v{vb}, 63')

def ln2(a, X, T, M, R, C):
    def both(f):
        for r in range(2): f(r)
    for q in range(4):
        both(lambda r: a.e(f'v_pk_add_f32 v[{T[r]+2*q}:{T[r]+2*q+1}], v[{X[r]+4*q}:{X[r]+4*q+1}], v[{X[r]+4*q+2}:{X[r]+4*q+3}]'))
    both(lambda r: a.e(f'v_pk_add_f32 v[{T[r]}:{T[r]+1}], v[{T[r]}:{T[r]+1}], v[{T[r]+2}:{T[r]+3}]'))
    both(lambda r: a.e(f'v_pk_add_f32 v[{T[r]+4}:{T[r]+5}], v[{T[r]+4}:{T[r]+5}], v[{T[r]+6}:{T[r]+7}]'))
    both(lambda r: a.e(f'v_pk_add_f32 v[{T[r]}:{T[r]+1}], v[{T[r]}:{T[r]+1}], v[{T[r]+4}:{T[r]+5}]'))
    both(lambda r: a.e(f'v_add_f32 v{T[r]}, v{T[r]}, v{T[r]+1}'))
    wave_sum2(a, T[0], T[1], 56, 57)
    a.e('s_nop 0')
    both(lambda r: a.e(f'v_mul_f32 v{M[r]}, s{56+r}, v{C}'))
    both(lambda r: a.e(f'v_mov_b32 v{M[r]+1}, v{M[r]}'))
    for q in range(8):
        both(lambda r: a.e(f'v_pk_add_f32 v[{T[r]+2*q}:{T[r]+2*q+1}], v[{X[r]+2*q}:{X[r]+2*q+1}], v[{M[r]}:{M[r]+1}] neg_lo:[0,1] neg_hi:[0,1]'))
    both(lambda r: a.e(f'v_pk_mul_f32 v[{R[r]}:{R[r]+1}], v[{T[r]}:{T[r]+1}], v[{T[r]}:{T[r]+1}]'))
    for q in range(1, 8):
        both(lambda r: a.e(f'v_pk_fma_f32 v[{R[r]}:{R[r]+1}], v[{T[r]+2*q}:{T[r]+2*q+1}], v[{T[r]+2*q}:{T[r]+2*q+1}], v[{R[r]}:{R[r]+1}]'))
    both(lambda r: a.e(f'v_add_f32 v{R[r]}, v{R[r]}, v{R[r]+1}'))
    def rbf(v):
        a.e(f'v_cvt_pk_bf16_f32 v{v}, v{v}, v{v}')
        a.e(f'v_and_b32 v{v}, s{S_MASK}, v{v}')
    both(lambda r: rbf(M[r]))
    wave_sum2(a, R[0], R[1], 58, 59)
    both(lambda r: a.e(f'v_mov_b32 v{M[r]+1}, v{M[r]}'))
    both(lambda r: a.e(f'v_mul_f32 v{R[r]}, s{58+r}, v{C}'))
    both(lambda r: rbf(R[r]))
    both(lambda r: a.e(f'v_add_f32 v{R[r]}, 0x3727c5ac, v{R[r]}'))
    both(lambda r: rbf(R[r]))
    both(lambda r: a.e(f'v_sqrt_f32 v{R[r]}, v{R[r]}'))
    for q in range(2):
        both(lambda r: a.e(f'v_pk_add_f32 v[{T[r]+2*q}:{T[r]+2*q+1}], v[{X[r]+2*q}:{X[r]+2*q+1}], v[{M[r]}:{M[r]+1}] neg_lo:[0,1] neg_hi:[0,1]'))
    both(lambda r: rbf(R[r]))
    both(lambda r: a.e(f'v_rcp_f32 v{R[r]}, v{R[r]}'))
    for q in range(2, 8):
        both(lambda r: a.e(f'v_pk_add_f32 v[{T[r]+2*q}:{T[r]+2*q+1}], v[{X[r]+2*q}:{X[r]+2*q+1}], v[{M[r]}:{M[r]+1}] neg_lo:[0,1] neg_hi:[0,1]'))
    both(lambda r: a.e(f'v_mov_b32 v{R[r]+1}, v{R[r]}'))
    for q in range(8):
        both(lambda r: a.e(f'v_pk_mul_f32 v[{T[r]+2*q}:{T[r]+2*q+1}], v[{T[r]+2*q}:{T[r]+2*q+1}], v[{R[r]}:{R[r]+1}]'))

class Sched:
    def __init__(self): self.ev = []; self.marks = {}
    def mark(self, k): self.marks[k] = len(self.ev)
    def add(self, L): self.ev += L
    def younger(self, tag, at):
        last = max(i for i, e in enumerate(self.ev) if e[:2] == tag)
        assert last < self.marks[at], (tag, at)
        return self.marks[at] - last - 1

def gen(a):
    a.raw(f'.globl {KNAME}')
    a.raw('.p2align 8')
    a.raw(f'.type {KNAME},@function')
    a.raw(f'{KNAME}:')
    a.e('s_cmp_ge_u32 s2, 256')
    a.e('s_cbranch_scc1 L_end')
    a.e('s_load_dwordx8 s[4:11], s[0:1], 0')
    a.e('s_load_dwordx8 s[20:27], s[0:1], 64')
    a.e('s_load_dwordx2 s[28:29], s[0:1], 96')
    a.e('s_load_dwordx8 s[12:19], s[0:1], 32')
    a.e('s_memrealtime s[56:57]')
    a.e('v_lshrrev_b32 v1, 6, v0')
    a.e('v_and_b32 v2, 63, v0')
    a.e(f'v_readfirstlane_b32 s{S_W}, v1')
    a.e(f's_mov_b32 s{S_MASK}, 0xffff0000')
    a.e('s_mov_b32 s3, 0')
    a.e('s_bfe_u32 s82, s2, 0x30003')
    a.e('s_and_b32 s83, s2, 7')
    a.e('s_lshr_b32 s84, s2, 6')
    a.e('s_lshl_b32 s84, s84, 3')
    a.e('s_or_b32 s83, s83, s84')
    a.e('v_and_b32 v1, 15, v0')
    a.e('v_lshrrev_b32 v8, 4, v0')
    a.e('s_lshl_b32 s85, s83, 17')
    a.e('s_lshl_b32 s86, s82, 8')
    a.e('s_add_u32 s85, s85, s86')
    a.e('v_lshlrev_b32 v3, 13, v1')
    a.e('v_lshl_add_u32 v3, v8, 4, v3')
    a.e('v_add_u32 v3, s85, v3')
    a.e('v_add_u32 v4, 0xffffe800, v3')
    a.e('v_add_u32 v5, 0xfffff800, v3')
    a.e('v_add_u32 v6, 0x1000, v3')
    a.e('s_lshl_b32 s86, s82, 10')
    a.e('v_lshlrev_b32 v7, 6, v8')
    a.e('v_add_u32 v7, s86, v7')
    a.e('s_lshl_b32 s87, s82, 5')
    a.e('s_add_u32 s87, s87, s83')
    a.e('s_lshl_b32 s88, s87, 14')
    a.e('s_add_u32 s88, s88, 120')
    a.e('v_lshlrev_b32 v160, 10, v8')
    a.e('v_lshlrev_b32 v161, 3, v1')
    a.e('v_sub_u32 v160, v160, v161')
    a.e('v_add_u32 v160, s88, v160')
    a.e(f's_lshl_b32 s87, s87, {fsh()}')
    a.e('v_mov_b32 v162, 0')
    a.e('s_waitcnt lgkmcnt(0)')
    stamp(a, 0)
    srd(a, 32, P_K, 4 * MB)
    srd(a, 36, P_V, 4 * MB)
    srd(a, 40, P_SH, 8192)
    KR, VR_, WR, WU, KU, AC0 = 8, 36, 52, 68, 100, 164
    for j in range(4):
        a.e(f'buffer_load_dwordx4 v[{WR+4*j}:{WR+4*j+3}], v7, s[40:43], 0 offen offset:{16*j}')
    rows = [(4, 0), (4, 2048), (5, 0), (3, 0), (3, 2048), (6, 0), (6, 2048)]
    for r, (vr, off) in enumerate(rows):
        a.e(f'buffer_load_dwordx4 v[{KR+4*r}:{KR+4*r+3}], v{vr}, s[32:35], 0 offen offset:{off}')
    for r, (vr, off) in enumerate(rows[3:]):
        a.e(f'buffer_load_dwordx4 v[{VR_+4*r}:{VR_+4*r+3}], v{vr}, s[36:39], 0 offen offset:{off}')
    ncp = 0
    if opt('cpf', 0):
        a.e('s_getpc_b64 s[58:59]')
        a.e('L_pc:')
        a.e('v_lshlrev_b32 v163, 7, v0')
        a.e('v_min_u32 v163, L_end-L_pc, v163')
        a.e('global_load_dword v161, v163, s[58:59]')
        ncp = 1
    srd(a, 48, P_WS, 4 * MB, WS_UB)
    if opt('pt', 0) & 1:
        a.e('v_lshlrev_b32 v163, 6, v0')
        a.e('s_sub_u32 s58, s88, 120')
        a.e('buffer_load_dword v161, v163, s[48:51], s58 offen')
        ncp += 1
    srd(a, 44, P_DBG, 256)
    a.e('s_or_b32 s56, s56, 1')
    a.e(f's_or_b32 s57, s2, s{S_W}')
    a.e('s_cmp_lg_u32 s57, 0')
    a.e('s_cbranch_scc1 L_nonce_skip')
    a.e('v_mov_b32 v163, s56')
    a.e('s_mov_b64 exec, 1')
    a.e('buffer_store_dword v163, v162, s[44:47], 0 offen sc1')
    a.e('s_mov_b64 exec, -1')
    a.e('s_waitcnt vmcnt(0)')
    a.e('L_nonce_skip:')
    srd(a, S_FLG, P_WS, FLG_SIZE, WS_FLG)
    a.e(f's_waitcnt vmcnt({11+ncp})')
    for e in range(8):
        unpack(a, WU + 0 * 8 + e, WU + 1 * 8 + e, WR + 2 * e)
        unpack(a, WU + 2 * 8 + e, WU + 3 * 8 + e, WR + 2 * e + 1)
    for r in range(7):
        a.e(f's_waitcnt vmcnt({10-r+ncp})')
        for q in range(4):
            unpack(a, KU + 8 * r + 2 * q, KU + 8 * r + 2 * q + 1, KR + 4 * r + q)
        if r >= 3:
            i = r - 3
            for j in range(4):
                for q in range(4):
                    d = AC0 + 8 * i + 2 * q
                    k = KU + 8 * (i + 3 - j) + 2 * q
                    w = WU + 8 * j + 2 * q
                    if j == 0:
                        a.e(f'v_pk_mul_f32 v[{d}:{d+1}], v[{k}:{k+1}], v[{w}:{w+1}]')
                    else:
                        a.e(f'v_pk_fma_f32 v[{d}:{d+1}], v[{k}:{k+1}], v[{w}:{w+1}], v[{d}:{d+1}]')
    VU = 8
    for i in range(4):
        a.e(f's_waitcnt vmcnt({3-i+ncp})')
        if i == 3:
            a.e('buffer_load_dword v163, v162, s[44:47], 0 offen sc1')
        for q in range(4):
            unpack(a, VU + 2 * q, VU + 2 * q + 1, VR_ + 4 * i + q)
        for q in range(4):
            d = AC0 + 8 * i + 2 * q
            a.e(f'v_pk_mul_f32 v[{d}:{d+1}], v[{d}:{d+1}], v[{VU+2*q}:{VU+2*q+1}]')
    O = 52
    for e in range(8):
        a.e(f'v_cvt_pk_bf16_f32 v{O+2*e}, v{AC0+24+e}, v{AC0+16+e}')
        a.e(f'v_cvt_pk_bf16_f32 v{O+2*e+1}, v{AC0+8+e}, v{AC0+e}')
        a.e(f'buffer_store_dwordx2 v[{O+2*e}:{O+2*e+1}], v160, s[48:51], 0 offen offset:{128*e} sc1')
    stamp(a, 1)
    a.e('s_and_b32 s82, s2, 7')
    a.e('s_lshr_b32 s83, s2, 3')
    a.e('s_lshl_b32 s84, s83, 2')
    a.e(f's_add_u32 s84, s84, s{S_W}')
    a.e('s_lshl_b32 s85, s82, 7')
    a.e('s_add_u32 s85, s85, s84')
    a.e('s_lshl_b32 s86, s82, 5')
    a.e('s_add_u32 s86, s86, s83')
    a.e(f's_mul_i32 s88, s{S_W}, {KA_REG}')
    a.e(f's_add_u32 s88, s88, {LDS_KA}')
    a.e('s_lshl_b32 s56, s85, 12')
    srd(a, 32, P_SSMK, 4096, 0, 56)
    a.e('s_lshr_b32 s57, s85, 1')
    a.e('s_lshl_b32 s57, s57, 2')
    a.e(f's_load_dword s89, s[{P_D}:{P_D+1}], s57')
    a.e('v_lshlrev_b32 v4, 4, v2')
    KD, KX = 8, 24
    for j in range(4):
        a.e(f'buffer_load_dwordx4 v[{KD+4*j}:{KD+4*j+3}], v4, s[32:35], 0 offen offset:{1024*j}')
        a.e(f'buffer_load_dword v{KX+j}, v4, s[32:35], 0 offen offset:{1024*j+16}')
    a.e('s_and_b32 s80, s82, 1')
    a.e('s_lshl_b32 s80, s80, 2')
    a.e('s_and_b32 s56, s83, 3')
    a.e('s_add_u32 s80, s80, s56')
    a.e('s_lshr_b32 s81, s82, 1')
    a.e('s_lshl_b32 s81, s81, 3')
    a.e('s_lshr_b32 s56, s83, 2')
    a.e('s_add_u32 s81, s81, s56')
    a.e('s_lshl_b32 s91, s80, 5')
    a.e('s_add_u32 s91, s91, s81')
    a.e('s_lshl_b32 s56, s91, 2')
    a.e(f's_add_u32 s56, s56, s{S_W}')
    a.e('s_lshl_b32 s96, s56, 12')
    srd(a, 36, P_Q, 4 * MB)
    XP = 224
    for r in range(2):
        for hh in range(2):
            a.e(f'buffer_load_dwordx4 v[{XP+8*r+4*hh}:{XP+8*r+4*hh+3}], v4, s[36:39], s96 offen offset:{2048*r+1024*hh}')
    a.e('s_waitcnt vmcnt(20)')
    a.e('L_nonce:')
    a.e(f'v_readfirstlane_b32 s{S_NONCE}, v163')
    a.e('s_nop 0')
    a.e(f's_cmp_lg_u32 s{S_NONCE}, 0')
    a.e('s_cbranch_scc1 L_nonce_ok')
    a.e('s_add_u32 s3, s3, 1')
    a.e(f's_cmp_gt_u32 s3, {opt("spin", 200000)}')
    a.e('s_cbranch_scc1 L_nonce_ok')
    a.e('buffer_load_dword v163, v162, s[44:47], 0 offen sc1')
    a.e('s_waitcnt vmcnt(0)')
    a.e('s_branch L_nonce')
    a.e('L_nonce_ok:')
    a.e(f'v_mov_b32 v163, s{S_NONCE}')
    a.e(f's_cmp_eq_u32 s{S_W}, 0')
    a.e('s_waitcnt vmcnt(12)')
    a.e('s_barrier')
    a.e('s_cbranch_scc0 L_sig0')
    a.e('s_mov_b64 exec, 1')
    a.e(f'buffer_store_dword v163, v162, s[{S_FLG}:{S_FLG+3}], s87 offen sc1')
    a.e('s_mov_b64 exec, -1')
    a.e('L_sig0:')
    stamp(a, 2)
    npt = 0
    if opt('pt', 0) & 2:
        srd(a, 40, P_WS, 12 * MB, WS_Y2)
        a.e('v_lshlrev_b32 v164, 14, v0')
        a.e('s_lshl_b32 s56, s86, 6')
        a.e('buffer_load_dword v161, v164, s[40:43], s56 offen')
        a.e('v_lshlrev_b32 v164, 6, v0')
        a.e('s_lshl_b32 s56, s91, 14')
        a.e(f's_add_u32 s56, s56, {4*MB}')
        a.e('buffer_load_dword v161, v164, s[40:43], s56 offen')
        a.e('v_lshrrev_b32 v164, 3, v0')
        a.e('v_lshlrev_b32 v164, 12, v164')
        a.e('v_bfe_u32 v165, v0, 1, 2')
        a.e('v_lshl_add_u32 v164, v165, 8, v164')
        a.e('s_lshr_b32 s56, s91, 3')
        a.e('s_lshl_b32 s56, s56, 17')
        a.e('s_and_b32 s57, s91, 7')
        a.e('s_lshr_b32 s58, s57, 1')
        a.e('s_lshl_b32 s58, s58, 10')
        a.e('s_add_u32 s56, s56, s58')
        a.e('s_and_b32 s57, s57, 1')
        a.e('s_lshl_b32 s57, s57, 7')
        a.e('s_add_u32 s56, s56, s57')
        a.e(f's_add_u32 s56, s56, {8*MB}')
        a.e('buffer_load_dword v161, v164, s[40:43], s56 offen')
        npt += 3
    a.e('v_lshrrev_b32 v3, 3, v2')
    a.e('v_sub_u32 v3, 7, v3')
    a.e('v_lshlrev_b32 v3, 14, v3')
    a.e('v_and_b32 v5, 7, v2')
    a.e('v_lshl_add_u32 v3, v5, 4, v3')
    a.e('s_lshl_b32 s56, s84, 7')
    a.e('v_add_u32 v3, s56, v3')
    a.e('v_and_b32 v5, 15, v2')
    a.e('v_lshrrev_b32 v6, 4, v2')
    a.e('v_mov_b32 v28, 0')
    a.e('v_mov_b32 v29, 0')
    a.e('v_lshlrev_b32 v7, 3, v2')
    a.e('v_add_u32 v7, s88, v7')
    a.e('ds_write_b64 v7, v[28:29] offset:4096')
    a.e('v_min_u32 v30, 7, v2')
    a.e('v_lshlrev_b32 v30, 2, v30')
    a.e('v_add_u32 v30, s88, v30')
    a.e('ds_write_b32 v30, v28 offset:4608')
    a.e('v_add_u32 v31, 1, v5')
    a.e('v_and_b32 v32, 1, v31')
    a.e('v_sub_u32 v31, v31, v32')
    a.e('v_lshl_add_u32 v31, v6, 3, v31')
    a.e('v_lshlrev_b32 v31, 1, v31')
    a.e('v_mul_u32_u24 v32, 4160, v32')
    a.e('v_add3_u32 v31, v31, v32, s88')
    VA, VB, ACC = 36, 40, 44
    for j in range(4):
        a.e(f'v_add_u32 v{VA+j}, {4608+1024*j}, v31')
    a.e('v_lshlrev_b32 v32, 5, v5')
    a.e('v_lshlrev_b32 v33, 4, v6')
    a.e('v_sub_u32 v33, v33, v32')
    a.e('v_add_u32 v33, s88, v33')
    a.e(f'v_add_u32 v{VB}, 480, v33')
    a.e('v_add_u32 v7, s88, v4')
    for r in range(32):
        a.e(f'v_mov_b32 v{ACC+r}, 0')
    T = 76
    a.e(f's_waitcnt vmcnt({4+npt})')
    for j in range(4):
        d = KD + 4 * j
        if j == 0:
            a.e(f'v_readfirstlane_b32 s56, v{d}')
        a.e(f'ds_write_b128 v7, v[{d}:{d+3}] offset:{4608+32+1024*j}')
        for q in range(4):
            hi = d + q + 1 if q < 3 else KX + j
            a.e(f'v_alignbit_b32 v{T+4*j+q}, v{hi}, v{d+q}, 16')
        a.e(f'ds_write_b128 v7, v[{T+4*j}:{T+4*j+3}] offset:{4608+4160+32+1024*j}')
    a.e('s_lshl_b32 s56, s56, 16')
    a.e('v_cmp_le_u32 vcc, 7, v2')
    a.e('v_mov_b32 v32, s56')
    a.e('s_nop 0')
    a.e('v_cndmask_b32 v32, v28, v32, vcc')
    a.e(f'ds_write_b32 v30, v32 offset:{4608+4160}')
    FA = [96, 160]; FB = [128, 192]
    def rdA(r, buf):
        L = []
        for mq in range(8):
            o = 128 * (mq & 1) + 16 * r
            f = FA[buf] + 4 * mq
            L.append(f'ds_read2_b32 v[{f}:{f+1}], v{VA+(mq>>1)} offset0:{o} offset1:{o+1}')
            L.append(f'ds_read2_b32 v[{f+2}:{f+3}], v{VA+(mq>>1)} offset0:{o+2} offset1:{o+3}')
        return L
    def rdB(r, buf):
        return [f'ds_read_b128 v[{FB[buf]+4*d}:{FB[buf]+4*d+3}], v{VB} offset:{512*(7-d)+64*r}' for d in range(8)]
    a.e('s_waitcnt lgkmcnt(0)')
    a.e('s_bitcmp1_b32 s85, 0')
    a.e('s_cselect_b32 s56, 0, 16')
    a.e('s_lshl_b32 s89, s89, s56')
    a.e('s_and_b32 s89, s89, 0xffff0000')
    for l in rdA(0, 0): a.e(l)
    a.e('v_and_b32 v34, 31, v2')
    a.e(f'v_lshlrev_b32 v34, {fsh()}, v34')
    a.e(f's_lshl_b32 s56, s82, {5+fsh()}')
    wait_flags(a, 56, 34, 35)
    stamp(a, 3)
    a.e('s_lshl_b32 s56, s82, 19')
    UR = 8
    for i in range(4):
        a.e(f's_add_u32 s57, s56, {(24-8*i)*16384:#x}')
        a.e(f'buffer_load_dwordx4 v[{UR+4*i}:{UR+4*i+3}], v3, s[48:51], s57 offen sc1')
    g1 = G1(a)
    g1.setup_dma()
    for i in range(4):
        a.e(f's_waitcnt vmcnt({3-i})')
        a.e(f'ds_write_b128 v7, v[{UR+4*i}:{UR+4*i+3}] offset:{1024*i}')
    a.e('s_waitcnt lgkmcnt(0)')
    for l in rdB(0, 0): a.e(l)
    stamp(a, 4)
    early = g1.early_dma()
    if opt('pt', 0) & 4:
        srd(a, 40, P_WS, 32 * MB, WS_HF)
        a.e('v_lshrrev_b32 v248, 5, v2')
        a.e('s_mov_b32 s56, 114688')
        a.e('v_mul_lo_u32 v248, v248, s56')
        a.e('v_and_b32 v249, 31, v2')
        a.e('v_lshl_add_u32 v248, v249, 7, v248')
        a.e('s_lshl_b32 s56, s80, 2')
        a.e(f's_add_u32 s56, s56, s{S_W}')
        a.e(f's_mul_i32 s56, s56, {4*114688}')
        a.e('s_mul_i32 s57, s81, 7')
        a.e('s_lshr_b32 s57, s57, 1')
        a.e('s_lshl_b32 s57, s57, 10')
        a.e('s_add_u32 s56, s56, s57')
        a.e(f's_add_u32 s57, s56, {2*114688}')
        a.e('v_lshlrev_b32 v249, 7, v2')
        a.e('s_lshl_b32 s58, s2, 2')
        a.e(f's_add_u32 s58, s58, s{S_W}')
        a.e('s_lshl_b32 s58, s58, 13')
        a.e(f's_add_u32 s58, s58, {16*MB}')
        early += [['buffer_load_dword v250, v248, s[40:43], s56 offen'], ['buffer_load_dword v250, v248, s[40:43], s57 offen'], ['buffer_load_dword v250, v249, s[40:43], s58 offen']]
    UE = 8
    for r in range(8):
        buf = r & 1
        if r < 7:
            A_, B_ = rdA(r + 1, buf ^ 1), rdB(r + 1, buf ^ 1)
            nxt = []
            for x in range(8): nxt += [B_[x], A_[2 * x], A_[2 * x + 1]]
        else:
            a.e('v_lshlrev_b32 v32, 5, v5')
            a.e('v_lshl_add_u32 v32, v6, 3, v32')
            a.e(f'v_sub_u32 v34, {4088-3584}, v32')
            a.e('v_add_u32 v34, s88, v34')
            a.e('v_add_u32 v35, s88, v32')
            nxt = [f'ds_read_b64 v[{UE+2*c}:{UE+2*c+1}], v34 offset:{512*(7-c)}' for c in range(8)]
        a.e('s_waitcnt lgkmcnt(0)')
        k = 0
        for mq in range(8):
            for d in range(8 - mq):
                c = mq + d
                fa = FA[buf] + 4 * mq; fb = FB[buf] + 4 * d
                a.e(f'v_mfma_f32_16x16x32_bf16 v[{ACC+4*c}:{ACC+4*c+3}], v[{fa}:{fa+3}], v[{fb}:{fb+3}], v[{ACC+4*c}:{ACC+4*c+3}]')
                if k < len(nxt):
                    a.e(nxt[k])
                elif early and (k - len(nxt)) % 3 == 0:
                    for l in early.pop(0): a.e(l)
                k += 1
    assert not early
    a.e('s_waitcnt lgkmcnt(0)')
    stamp(a, 5)
    X = 96
    for c in range(8):
        unpack(a, X + 4 * c + 3, X + 4 * c + 2, UE + 2 * c)
        unpack(a, X + 4 * c + 1, X + 4 * c + 0, UE + 2 * c + 1)
    for c in range(8):
        for r in range(4):
            a.e(f'v_fma_f32 v{X+4*c+r}, v{X+4*c+r}, s89, v{ACC+4*c+r}')
        a.e(f'v_cvt_pk_bf16_f32 v{UE+2*c}, v{X+4*c}, v{X+4*c+1}')
        a.e(f'v_cvt_pk_bf16_f32 v{UE+2*c+1}, v{X+4*c+2}, v{X+4*c+3}')
        a.e(f'ds_write_b64 v35, v[{UE+2*c}:{UE+2*c+1}] offset:{4608+512*c}')
    a.e('v_lshlrev_b32 v32, 2, v0')
    a.e(f'v_add_u32 v32, {LDS_KA}, v32')
    a.e('v_lshrrev_b32 v33, 2, v0')
    a.e('v_lshlrev_b32 v33, 14, v33')
    a.e('v_and_b32 v34, 3, v0')
    a.e('v_lshl_add_u32 v33, v34, 4, v33')
    a.e('s_lshl_b32 s56, s86, 6')
    a.e('s_mov_b32 s57, 0x05040100')
    a.e('s_mov_b32 s58, 0x07060302')
    srd(a, 36, P_WS, 4 * MB, WS_Y2)
    a.e('s_waitcnt lgkmcnt(0)')
    a.e('s_barrier')
    Y = 96
    for P in range(4):
        for ch in range(4):
            a.e(f'ds_read_b32 v{Y+4*P+ch}, v32 offset:{ch*KA_REG+4608+1024*P}')
    O = 128
    for P in range(4):
        a.e(f's_waitcnt lgkmcnt({12-4*P})')
        y = Y + 4 * P; o = O + 4 * P
        a.e(f'v_perm_b32 v{o}, v{y+1}, v{y}, s57')
        a.e(f'v_perm_b32 v{o+1}, v{y+3}, v{y+2}, s57')
        a.e(f'v_perm_b32 v{o+2}, v{y+1}, v{y}, s58')
        a.e(f'v_perm_b32 v{o+3}, v{y+3}, v{y+2}, s58')
        a.e(f'buffer_store_dwordx4 v[{o}:{o+3}], v33, s[36:39], s56 offen sc1')
        if P < 3:
            a.e(f's_add_u32 s56, s56, {64*16384:#x}')
    stamp(a, 6)
    XU = [8, 24]; TT = [40, 56]; MM = [72, 74]; RR = [76, 78]; C = 80; YR = [84, 92]; YU = [100, 116]
    for r in range(2):
        for q in range(8):
            unpack(a, XU[r] + 2 * q, XU[r] + 2 * q + 1, XP + 8 * r + q)
    a.e(f'v_mov_b32 v{C}, 0x3a800000')
    a.e(f's_lshl_b32 s87, s2, {f1sh()}')
    a.e(f's_add_u32 s87, s87, {F1}')
    signal(a, 87, 82)
    ln2(a, XU, TT, MM, RR, C)
    a.e('v_lshlrev_b32 v5, 7, v2')
    a.e('v_add_u32 v6, 0x2000, v5')
    a.e('s_lshl_b32 s82, s91, 14')
    a.e(f's_lshl_b32 s83, s{S_W}, 4')
    a.e('s_add_u32 s82, s82, s83')
    srd(a, 40, P_WS, 4 * MB, WS_H)
    srd(a, 44, P_WS, 4 * MB, WS_HNF)
    a.e('v_and_b32 v7, 7, v2')
    a.e(f's_lshl_b32 s83, s{S_W}, 1')
    a.e('v_xor_b32 v132, s83, v7')
    a.e('v_lshl_add_u32 v132, v132, 4, v5')
    a.e(f'v_add_u32 v132, {LDS_KA}, v132')
    a.e('v_xor_b32 v133, 16, v132')
    a.e('v_lshrrev_b32 v134, 3, v2')
    a.e('v_xor_b32 v135, v134, v7')
    a.e('v_lshlrev_b32 v135, 4, v135')
    a.e('v_lshl_add_u32 v135, v134, 7, v135')
    a.e(f's_lshl_b32 s83, s{S_W}, 12')
    a.e(f's_add_u32 s83, s83, {LDS_KA}')
    a.e('v_add_u32 v135, s83, v135')
    a.e('v_lshrrev_b32 v136, 5, v2')
    a.e('v_lshlrev_b32 v136, 12, v136')
    a.e('v_bfe_u32 v137, v2, 3, 2')
    a.e('v_lshl_add_u32 v136, v137, 8, v136')
    a.e('v_lshl_add_u32 v136, v7, 4, v136')
    a.e('s_lshr_b32 s84, s91, 3')
    a.e('s_lshl_b32 s84, s84, 17')
    a.e('s_bfe_u32 s85, s91, 0x20001')
    a.e('s_lshl_b32 s85, s85, 10')
    a.e('s_add_u32 s84, s84, s85')
    a.e('s_and_b32 s85, s91, 1')
    a.e('s_lshl_b32 s85, s85, 7')
    a.e('s_add_u32 s84, s84, s85')
    a.e(f's_lshl_b32 s85, s{S_W}, 15')
    a.e('s_add_u32 s84, s84, s85')
    a.e(f's_mov_b32 s85, {F1}')
    stamp(a, 7)
    a.e(f'v_lshlrev_b32 v138, {4 if f1sh() == 2 else f1sh()}, v2')
    wait_flags(a, 85, 138, 128, n=256)
    stamp(a, 8)
    a.e(f's_or_b32 s57, s2, s{S_W}')
    a.e('s_cmp_lg_u32 s57, 0')
    a.e('s_cbranch_scc1 L_clean_skip')
    srd(a, 48, P_DBG, 256)
    a.e('v_mov_b32 v128, 0')
    a.e('s_mov_b64 exec, 1')
    a.e('buffer_store_dword v128, v128, s[48:51], 0 offen sc1')
    a.e('s_mov_b64 exec, -1')
    a.e('L_clean_skip:')
    YL = 84
    a.e(f'buffer_load_dwordx4 v[{YL}:{YL+3}], v5, s[36:39], s82 offen sc1')
    a.e(f'buffer_load_dwordx4 v[{YL+4}:{YL+7}], v5, s[36:39], s82 offen offset:64 sc1')
    a.e(f'buffer_load_dwordx4 v[{YL+8}:{YL+11}], v6, s[36:39], s82 offen sc1')
    a.e(f'buffer_load_dwordx4 v[{YL+12}:{YL+15}], v6, s[36:39], s82 offen offset:64 sc1')
    for cgi in range(4):
        a.e(f's_waitcnt vmcnt({3-cgi})')
        for r in range(2):
            for e in range(2):
                u = YU[r] + 4 * cgi + 2 * e
                unpack(a, u, u + 1, YL + 4 * cgi + 2 * r + e)
        for r in range(2):
            for e in range(2):
                u = YU[r] + 4 * cgi + 2 * e; x = XU[r] + 4 * cgi + 2 * e; t = TT[r] + 4 * cgi + 2 * e
                a.e(f'v_pk_fma_f32 v[{x}:{x+1}], v[{t}:{t+1}], v[{u}:{u+1}], v[{x}:{x+1}]')
    for r in range(2):
        for q in range(8):
            a.e(f'v_cvt_pk_bf16_f32 v{XP+8*r+q}, v{XU[r]+2*q}, v{XU[r]+2*q+1}')
    for r in range(2):
        for q in range(8):
            unpack(a, XU[r] + 2 * q, XU[r] + 2 * q + 1, XP + 8 * r + q)
    ln2(a, XU, TT, MM, RR, C)
    for r in range(2):
        for q in range(8):
            a.e(f'v_cvt_pk_bf16_f32 v{YL+8*r+q}, v{TT[r]+2*q}, v{TT[r]+2*q+1}')
        for hh in range(2):
            a.e(f'ds_write_b128 v{132+r}, v[{YL+8*r+4*hh}:{YL+8*r+4*hh+3}] offset:{8192*hh}')
    a.e('s_waitcnt lgkmcnt(0)')
    a.e('s_barrier')
    for i in range(4):
        a.e(f'ds_read_b128 v[{100+4*i}:{103+4*i}], v135 offset:{1024*i}')
    for i in range(4):
        a.e(f's_waitcnt lgkmcnt({3-i})')
        a.e(f'buffer_store_dwordx4 v[{100+4*i}:{103+4*i}], v136, s[44:47], s84 offen sc1')
        if i < 3: a.e('s_add_u32 s84, s84, 8192')
    stamp(a, 9)
    a.e(f's_lshl_b32 s87, s91, {fsh()}')
    a.e(f's_add_u32 s87, s87, {F2}')
    g1.pre_setup()
    signal(a, 87, 4)
    g1.main()
    g2 = G2(a)
    g1.epilogue(g2)
    g2.main()
    stamp_out(a, NSTAMP)
    a.e('L_end:')
    a.e('s_endpgm')

G1_STG = 32768
class G1:
    TM, NW, DPW, ND = 4, 4, 8, 4
    ACC, WF, TF, DV, VT, VR, VL = 32, 0, 28, 8, 16, 17, 18
    DVE = 240
    def __init__(s, a): s.a = a
    def setup_dma(s):
        a = s.a
        a.e('s_and_b32 s56, s81, 1')
        a.e('s_lshl_b32 s56, s56, 1')
        a.e('s_movk_i32 s57, 4682')
        a.e('s_movk_i32 s58, 7168')
        a.e('v_mov_b32 v248, 0x80000000')
        a.e('v_subrev_u32 v249, 8, v2')
        for src, dst in ((2, 250), (249, 251)):
            a.e(f'v_cmp_gt_u32 vcc, 56, v{src}')
            a.e(f'v_mul_u32_u24 v252, s57, v{src}')
            a.e('v_lshrrev_b32 v252, 16, v252')
            a.e('v_mul_u32_u24 v253, 14, v252')
            a.e(f'v_sub_u32 v253, v{src}, v253')
            a.e('v_add_u32 v253, s56, v253')
            a.e('v_subrev_u32 v254, 14, v253')
            a.e('v_min_u32 v253, v253, v254')
            a.e('v_mul_u32_u24 v252, s58, v252')
            a.e('v_lshl_add_u32 v252, v253, 4, v252')
            a.e(f'v_cndmask_b32 v{dst}, v248, v252, vcc')
        for i in range(8):
            pat = 251 if (i >> 1) & 1 else 250
            c = i * 4 * 7168 - 1024 * (i & 3)
            a.e(f'v_add_u32 v{s.DVE+i}, {c}, v{pat}' if c else f'v_mov_b32 v{s.DVE+i}, v{pat}')
        a.e(f's_and_b32 s56, s{S_W}, 1')
        a.e(f's_lshr_b32 s57, s{S_W}, 1')
        a.e(f's_mul_i32 s97, s56, {8*4*7168}')
        a.e('s_lshl_b32 s98, s57, 14')
        a.e('s_lshl_b32 s56, s56, 13')
        a.e('s_add_u32 s98, s98, s56')
        a.e('s_mul_i32 s56, s81, 224')
        a.e('s_cmp_eq_u32 s57, 0')
        a.e(f's_cselect_b32 s52, s{P_W1}, s{P_W3}')
        a.e(f's_cselect_b32 s53, s{P_W1+1}, s{P_W3+1}')
        srd(a, 52, 52, None, 0, 56)
        a.e('s_sub_u32 s54, 7340032, s56')
    def m0set(s, i): return f's_add_u32 m0, s98, {4096*(i//4)}' if i else 's_mov_b32 m0, s98'
    def dma(s, i, base): return f'buffer_load_dwordx4 v{base+i}, s[52:55], s97 offen offset:{1024*(i&3)} lds'
    def dma_adv(s): return ['s_add_u32 s97, s97, 458752', f's_add_u32 s98, s98, {G1_STG}', 's_and_b32 s98, s98, 0x1ffff']
    def early_dma(s):
        out = []
        for st in range(2):
            for i in range(8):
                if i % 4 == 0: out.append([s.m0set(i)])
                out.append([s.dma(i, s.DVE)] + (s.dma_adv() if i == 7 else []))
        return out
    def tok(s, k, tm):
        f = s.TF + 4 * (4 * (k % s.ND) + tm)
        return f'buffer_load_dwordx4 a[{f}:{f+3}], v{s.VT}, s[32:35], s82 offen offset:{tm*1024}' + (' sc1' if opt('t1sc', 1) else '')
    def rd(s, ph, t):
        j, mat = (ph & 3) >> 1, ph & 1
        return [f'ds_read_b64_tr_b16 a[{s.WF+4*t+2*h}:{s.WF+4*t+2*h+1}], v{s.VR} offset:{8192*j+1024*h+32*t+16384*mat}' for h in range(2)]
    def pre_setup(s):
        a = s.a
        for i in range(8): a.e(f'v_mov_b32 v{s.DV+i}, v{s.DVE+i}')
        for i in range(16): a.e(f'v_accvgpr_write_b32 a{92+i}, v{224+i}')
        a.e(f'v_lshlrev_b32 v{s.VT}, 4, v2')
        a.e('v_lshrrev_b32 v4, 4, v2')
        a.e('v_lshlrev_b32 v4, 11, v4')
        a.e('v_bfe_u32 v5, v2, 4, 1')
        a.e('v_lshl_add_u32 v4, v5, 7, v4')
        a.e('v_bfe_u32 v6, v2, 2, 2')
        a.e('v_mul_u32_u24 v5, 224, v6')
        a.e('v_and_b32 v6, 3, v2')
        a.e('v_lshl_add_u32 v5, v6, 3, v5')
        a.e(f'v_add_u32 v{s.VL}, v4, v5')
        a.e(f'v_mov_b32 v{s.VR}, v{s.VL}')
        a.e('v_and_b32 v19, 31, v2')
        a.e(f'v_lshlrev_b32 v19, {fsh()}, v19')
        a.e('s_lshl_b32 s56, s80, 2')
        a.e(f's_add_u32 s56, s56, s{S_W}')
        a.e('s_lshl_b32 s57, s56, 17')
        srd(a, 32, P_WS, 131072, WS_HNF, 57)
        a.e(f's_mul_i32 s57, s56, {4*114688}')
        srd(a, 36, P_WS, 4 * 114688, WS_HF, 57)
        a.e('s_and_b32 s58, s81, 1')
        a.e('s_mul_i32 s85, s81, 7')
        a.e('s_add_u32 s85, s85, s58')
        a.e('s_lshl_b32 s85, s85, 9')
        a.e('s_movk_i32 s86, 3072')
        a.e('s_cmp_eq_u32 s58, 0')
        a.e('s_cselect_b32 s86, s86, 0xfffffc08')
        a.e('s_add_u32 s86, s86, s85')
        for r in range(224):
            a.e(f'v_mov_b32 v{s.ACC+r}, 0')
    def kof(s, s_, P): return 2 * s_ + (-1, 0, 0, 1)[P]
    def ev_ins(s, e):
        L = []
        if e[0] == 'D':
            if e[2] % 4 == 0: L.append(s.m0set(e[2]))
            L.append(s.dma(e[2], s.DV))
            if e[2] == 7: L += s.dma_adv()
        elif e[0] == 'Y':
            L = ['buffer_load_dword v22, v21, s[44:47], s88 offen', 's_add_u32 s88, s88, s99', 's_cmp_eq_u32 s84, 3', 's_cselect_b32 s88, s89, s88', 's_cselect_b32 s99, 4096, s99',
                 's_cmp_eq_u32 s84, 5', 's_cselect_b32 s88, 0x7000000, s88']
        else:
            L.append(s.tok(e[1], e[2]))
            if e[2] == 3: L.append('s_add_u32 s82, s82, 4096')
        return L
    def main(s):
        a = s.a
        S = s.S = Sched()
        for s_ in range(-4, 8):
            for P in range(4):
                S.mark((s_, P))
                k = s.kof(s_, P) + s.ND - 1
                t0 = 2 if P in (0, 2) else 0
                S.add([('D', s_ + 2, 2 * P), ('T', k, t0), ('D', s_ + 2, 2 * P + 1), ('T', k, t0 + 1)])
                if opt('pt') & 8 and s_ % 2 == 0 and P == 1: S.add([('Y', s_, 0)])
        vm_bar = min(S.younger(('D', 4), (4, 0)), S.younger(('D', 5), (5, 0)))
        vm_p1 = min(S.younger(('T', 8), (4, 1)), S.younger(('T', 10), (5, 1)))
        vm_p3 = min(S.younger(('T', 9), (4, 3)), S.younger(('T', 11), (5, 3)))
        if opt('pt') & 8:
            srd(a, 44, P_WS, 24 * MB, WS_HF)
            a.e('v_and_b32 v21, 31, v2')
            a.e('v_lshlrev_b32 v21, 7, v21')
            a.e('s_lshl_b32 s56, s80, 2')
            a.e(f's_add_u32 s56, s56, s{S_W}')
            a.e(f's_mul_i32 s88, s56, {4*114688}')
            a.e('s_mul_i32 s57, s81, 7')
            a.e('s_lshr_b32 s57, s57, 1')
            a.e('s_lshl_b32 s57, s57, 10')
            a.e('s_add_u32 s88, s88, s57')
            a.e('s_lshl_b32 s89, s2, 2')
            a.e(f's_add_u32 s89, s89, s{S_W}')
            a.e('s_lshl_b32 s89, s89, 13')
            a.e(f's_add_u32 s89, s89, {16*MB}')
            a.e('s_mov_b32 s99, 114688')
        a.e(f's_lshl_b32 s56, s80, {5+fsh()}')
        a.e(f's_add_u32 s56, s56, {F2}')
        a.e('s_mov_b32 s82, 0')
        a.e('s_mov_b32 s83, 0')
        a.e('s_mov_b32 s84, 0')
        for t in range(6):
            for l in s.rd(0, t): a.e(l)
        stamp(a, 10)
        wait_flags(a, 56, 19, 20)
        stamp(a, 11)
        pro = [e for e in S.ev[:S.marks[(0, 0)]] if e[1] >= 0 and e[0] == 'T'] + [('X', i, 0) for i in range(4)]
        for e in pro + S.ev[S.marks[(0, 0)]:S.marks[(0, 1)]]:
            if e[0] == 'X':
                a.e(f'buffer_store_dwordx4 a[{92+4*e[1]}:{95+4*e[1]}], v{s.VT}, s[40:43], s96 offen offset:{1024*e[1]} sc1')
                continue
            for l in s.ev_ins(e):
                a.e(l)
                if 'm0' in l: a.e('s_nop 0')
        act = pro + S.ev[S.marks[(0, 0)]:]
        off = len(pro) - S.marks[(0, 0)]
        s.startup = {}
        need = -1
        for s_ in range(0, 6):
            for P, tags, N in ((0, [('D', s_)], vm_bar), (1, [('T', 2 * s_)], vm_p1), (3, [('T', 2 * s_ + 1)], vm_p3)):
                if (s_, P) == (0, 0): continue
                site = S.marks[(s_, P)] + off
                for tg in tags:
                    idx = [i for i, e in enumerate(act) if e[:2] == tg]
                    if not idx: continue
                    if site - max(idx) - 1 < N: need = max(need, max(idx))
        if need >= 0:
            a.e(f's_waitcnt vmcnt({S.marks[(0, 1)] + off - need - 1})')
        a.e('s_branch L_g1_P1')
        s.snake = 0
        a.e('L_g1_loop:')
        for s_ in (4, 5):
            a.e(f's_add_u32 s83, s83, {G1_STG}')
            a.e('s_and_b32 s83, s83, 0x1ffff')
            a.e(f's_waitcnt vmcnt({vm_bar})')
            a.e('s_barrier')
            s.phase(s_, 0)
            if s_ == 4: a.e('L_g1_P1:')
            a.e(f's_waitcnt vmcnt({vm_p1})')
            s.phase(s_, 1)
            s.phase(s_, 2)
            a.e(f's_waitcnt vmcnt({vm_p3})')
            s.phase(s_, 3)
        a.e('s_add_u32 s84, s84, 1')
        a.e('s_cmp_lt_u32 s84, 8')
        a.e('s_cbranch_scc1 L_g1_loop')
        s.phase(6, 0, last=True)
        stamp(a, 12)
    def phase(s, s_, P, last=False):
        a = s.a; S = s.S
        kbuf = s.kof(s_, P) % s.ND
        mat = (P + 1) & 1
        items = []
        if not last:
            nxt = S.marks[(s_, P + 1)] if P < 3 else S.marks[(s_ + 1, 0)]
            items = [s.ev_ins(e) for e in S.ev[S.marks[(s_, P)]:nxt]]
        slots = [[] for _ in range(7)]
        for p_, it in zip([1, 2, 4, 5, 6], items): slots[p_] = it
        if P == 0 and not last:
            slots[0] = [f'v_add_u32 v{s.VR}, s83, v{s.VL}']
        for t in range(7):
            a.e(f's_waitcnt lgkmcnt({10 if not (last and t) else 12-2*t})')
            R = s.rd(P - 1, 6) if t == 0 else ([] if last else s.rd(P, t - 1))
            X = list(slots[t])
            pre = [x for x in X if 'm0' in x]
            X = [x for x in X if 'm0' not in x]
            gaps = [[] for _ in range(4)]
            if R: gaps[0] = pre + [R[0]]; gaps[1] = [R[1]]
            gaps[2] = X[:1]; gaps[3] = X[1:]
            order = [0, 1, 2, 3]
            if s.snake & 1: order.reverse()
            s.snake += 1
            for n, tm in enumerate(order):
                c = s.ACC + 4 * ((mat * 7 + t) * 4 + tm)
                tf = s.TF + 4 * (4 * kbuf + tm)
                if not opt('g1x') & 1: a.e(f'v_mfma_f32_16x16x32_bf16 v[{c}:{c+3}], a[{s.WF+4*t}:{s.WF+4*t+3}], a[{tf}:{tf+3}], v[{c}:{c+3}]')
                for x in gaps[n]:
                    if opt('g1x') & 2 and x.startswith('ds_'): continue
                    if opt('g1x') & 4 and x.startswith('buffer'): continue
                    a.e(x)
    def epilogue(s, g2):
        a = s.a
        a.e('s_mov_b32 s58, 0xbfb8aa3b')
        a.e('s_mov_b32 s59, 0xbfb8aa3b')
        extra = g2.early()
        k = 0
        for tm in range(4):
            for u in range(4):
                T = (0, 8)[k & 1]; O = (20, 24)[k & 1]
                if k == 0: T = 8
                if k == 1: T = 8
                k += 1
                T = 8 if True else T
                tiles = [2 * u, 2 * u + 1] if u < 3 else [6]
                gs = []; us = []
                for t in tiles:
                    gs += [s.ACC + 4 * (t * 4 + tm), s.ACC + 4 * (t * 4 + tm) + 2]
                    us += [s.ACC + 4 * ((7 + t) * 4 + tm), s.ACC + 4 * ((7 + t) * 4 + tm) + 2]
                n = len(gs)
                for q in range(n):
                    a.e(f'v_pk_mul_f32 v[{T+2*q}:{T+2*q+1}], v[{gs[q]}:{gs[q]+1}], s[58:59]')
                for q in range(2 * n):
                    a.e(f'v_exp_f32 v{T+q}, v{T+q}')
                for q in range(n):
                    a.e(f'v_pk_add_f32 v[{T+2*q}:{T+2*q+1}], v[{T+2*q}:{T+2*q+1}], 1.0 op_sel_hi:[1,0]')
                for q in range(2 * n):
                    a.e(f'v_rcp_f32 v{T+q}, v{T+q}')
                for q in range(n):
                    a.e(f'v_pk_mul_f32 v[{gs[q]}:{gs[q]+1}], v[{gs[q]}:{gs[q]+1}], v[{us[q]}:{us[q]+1}]')
                for q in range(n):
                    a.e(f'v_pk_mul_f32 v[{T+2*q}:{T+2*q+1}], v[{T+2*q}:{T+2*q+1}], v[{gs[q]}:{gs[q]+1}]')
                for q in range(n):
                    a.e(f'v_cvt_pk_bf16_f32 v{O+q}, v{T+2*q}, v{T+2*q+1}')
                if u < 3:
                    a.e(f'buffer_store_dwordx4 v[{O}:{O+3}], v{s.VT}, s[36:39], s85 offen offset:{1024*u} sc1')
                else:
                    a.e(f'buffer_store_dwordx2 v[{O}:{O+1}], v{s.VT}, s[36:39], s86 offen sc1')
                if extra:
                    for l in extra.pop(0): a.e(l)
            if tm < 3:
                a.e('s_add_u32 s85, s85, 114688')
                a.e('s_add_u32 s86, s86, 114688')
        for L in extra:
            for l in L: a.e(l)
        a.e(f's_lshl_b32 s87, s91, {fsh()}')
        a.e(f's_add_u32 s87, s87, {F3}')
        stamp(a, 13)
        g2.pre_setup()
        signal(a, 87, 4)
        stamp(a, 18)

class G2:
    ND = 16
    ACC, WF, TF, R0, HR, VO, VT = 32, 96, 128, 0, 0, 0, 16
    DV = 28
    def __init__(s, a): s.a = a
    def early(s):
        a = s.a
        a.e('s_and_b32 s82, s2, 1')
        a.e('s_lshr_b32 s56, s2, 3')
        a.e('s_bfe_u32 s80, s2, 0x20001')
        a.e('s_lshl_b32 s80, s80, 2')
        a.e('s_and_b32 s57, s56, 3')
        a.e('s_add_u32 s80, s80, s57')
        a.e('s_lshr_b32 s81, s56, 2')
        a.e('v_lshrrev_b32 v3, 4, v2')
        a.e('v_bfe_u32 v4, v2, 1, 3')
        a.e('v_xor_b32 v4, v4, v3')
        a.e('v_and_b32 v5, 1, v2')
        a.e('v_lshlrev_b32 v5, 4, v5')
        a.e('v_lshl_add_u32 v5, v4, 5, v5')
        a.e('v_lshlrev_b32 v6, 11, v3')
        a.e(f'v_add_u32 v{s.DV}, v5, v6')
        a.e('v_xor_b32 v5, 128, v5')
        a.e(f'v_add_u32 v{s.DV+2}, {16384-2048}, v{s.DV}')
        a.e(f'v_add_u32 v6, {8192-1024}, v6')
        a.e(f'v_add_u32 v{s.DV+1}, v5, v6')
        a.e(f'v_add_u32 v{s.DV+3}, {16384-2048}, v{s.DV+1}')
        a.e('s_mul_i32 s56, s82, 3670016')
        a.e('s_lshl_b32 s57, s81, 8')
        a.e('s_add_u32 s56, s56, s57')
        srd(a, 52, P_W2, None, 0, 56)
        a.e('s_sub_u32 s54, 3670016, s57')
        a.e(f's_lshl_b32 s97, s{S_W}, 16')
        a.e('s_add_u32 s83, s97, 32768')
        a.e(f's_lshl_b32 s98, s{S_W}, 13')
        out = []
        for st in range(2):
            for i in range(8):
                out.append(s.ev_ins(('D', st, i), nop=True))
        return out
    def ev_ins(s, e, nop=False):
        L = []
        if e[0] == 'D':
            i = e[2]
            if i % 4 == 0:
                c = 32768 * (e[1] % 4) + 4096 * (i // 4)
                L.append(f's_add_u32 m0, s98, {c}' if c else 's_mov_b32 m0, s98')
                if nop: L.append('s_nop 0')
            L.append(f'buffer_load_dwordx4 v{s.DV+(i&3)}, s[52:55], s{97 if i < 4 else 83} offen offset:{1024*(i&3)} lds')
            if i == 3: L.append('s_add_u32 s97, s97, 262144')
            if i == 7: L.append('s_add_u32 s83, s83, 262144')
        else:
            k, tm = e[1], e[2]
            f = s.TF + 8 * (k % s.ND) + 4 * tm
            L.append(f'buffer_load_dwordx4 v[{f}:{f+3}], v{s.VT}, s[{32+4*tm}:{35+4*tm}], s84 offen offset:{1024*(k&3)}' + (' sc1' if opt('t2sc', 1) else ''))
            if tm == 1 and (k & 3) == 3: L.append('s_add_u32 s84, s84, 4096')
        return L
    def pre_setup(s):
        a = s.a
        a.e('v_mov_b32 v17, v2')
        a.e('v_lshrrev_b32 v18, 4, v17')
        a.e('v_bfe_u32 v19, v17, 2, 2')
        a.e('v_lshl_add_u32 v19, v18, 2, v19')
        a.e('v_and_b32 v96, 7, v19')
        a.e('v_lshlrev_b32 v19, 8, v19')
        a.e('v_and_b32 v97, 3, v17')
        a.e('v_lshl_add_u32 v19, v97, 3, v19')
        a.e('s_lshl_b32 s56, s82, 2')
        a.e('v_xor_b32 v96, s56, v96')
        for t in range(8):
            a.e(f'v_xor_b32 v97, {t}, v96')
            a.e(f'v_lshl_add_u32 v{100+t}, v97, 5, v19')
        for r in range(64):
            a.e(f'v_mov_b32 v{s.ACC+r}, 0')
        a.e('s_lshl_b32 s56, s80, 3')
        a.e(f's_lshl_b32 s57, s{S_W}, 1')
        a.e('s_add_u32 s56, s56, s57')
        a.e('s_mul_i32 s57, s56, 114688')
        a.e('s_mul_i32 s58, s82, 57344')
        a.e('s_add_u32 s57, s57, s58')
        srd(a, 32, P_WS, 57344, WS_HF, 57)
        srd(a, 36, P_WS, 57344, WS_HF + 114688, 57)
        a.e('v_and_b32 v19, 15, v17')
        a.e('v_lshlrev_b32 v19, 11, v19')
        a.e('v_lshl_add_u32 v19, v18, 3, v19')
        a.e('s_lshl_b32 s85, s56, 15')
        a.e('s_lshl_b32 s57, s81, 8')
        a.e('s_add_u32 s85, s85, s57')
        a.e('s_lshl_b32 s57, s82, 7')
        a.e('s_add_u32 s85, s85, s57')
        a.e('s_add_u32 s86, s85, 32768')
        a.e('v_and_b32 v18, 31, v17')
        a.e(f'v_lshlrev_b32 v18, {fsh()}, v18')
    def rd(s, slot, j, t):
        f = s.WF + 4 * t
        return [f'ds_read_b64_tr_b16 v[{f+2*h}:{f+2*h+1}], v{8*(slot>>1)+t} offset:{32768*(slot&1)+8192*j+4096*h}' for h in range(2)]
    def main(s):
        a = s.a
        for t in range(8):
            a.e(f'v_mov_b32 v{t}, v{100+t}')
            a.e(f'v_add_u32 v{8+t}, 0x10000, v{100+t}')
        S = s.S = Sched()
        for s_ in range(-6, 10):
            for P in range(4):
                S.mark((s_, P))
                k = 4 * s_ - 1 + P + s.ND - 1
                S.add([('D', s_ + 2, 2 * P), ('T', k, 0), ('D', s_ + 2, 2 * P + 1), ('T', k, 1)])
        vm = [min(S.younger(('D', 6), (6, 0)), S.younger(('T', 23), (6, 0)))] + [S.younger(('T', 23 + P), (6, P)) for P in (1, 2, 3)]
        s.vm = vm
        a.e('s_lshr_b32 s56, s80, 1')
        a.e(f's_lshl_b32 s56, s56, {5+fsh()}')
        a.e(f's_add_u32 s56, s56, {F3}')
        srd(a, 44, P_WS, 4 * MB, WS_H)
        a.e('s_mov_b32 s84, 0')
        a.e('s_mov_b32 s88, 0')
        for t in range(7):
            for l in s.rd(0, 0, t): a.e(l)
        wait_flags(a, 56, 18, 20)
        stamp(a, 14)
        pro = [e for e in S.ev[:S.marks[(0, 0)]] if e[1] >= 0 and e[0] == 'T'] + [('X', i, 0) for i in range(8)]
        for e in pro + S.ev[S.marks[(0, 0)]:S.marks[(0, 1)]]:
            if e[0] == 'X':
                tm, t = e[1] >> 2, e[1] & 3
                a.e(f'buffer_load_dwordx2 a[{2*e[1]}:{2*e[1]+1}], v19, s[44:47], s{85+tm} offen offset:{32*t} sc1')
                continue
            for l in s.ev_ins(e, nop=True): a.e(l)
        act = pro + S.ev[S.marks[(0, 0)]:]
        off = len(pro) - S.marks[(0, 0)]
        def site_need(s_, P):
            tags = [('T', 4 * s_ - 1 + P)] + ([('D', s_)] if P == 0 else [])
            site = S.marks[(s_, P)] + off
            n = 63
            for tg in tags:
                idx = [i for i, e in enumerate(act) if e[:2] == tg]
                if idx: n = min(n, site - max(idx) - 1)
            return n
        lax = [(s_, P) for s_ in range(2, 8) for P in range(4) if site_need(s_, P) < vm[P]]
        for s_ in (0, 1):
            for P in range(4):
                if (s_, P) == (0, 0): continue
                n = site_need(s_, P)
                if (s_, P) == (1, 3) and lax:
                    worst = -1
                    for (s2_, P2) in lax:
                        worst = max(worst, max(i for i, e in enumerate(act) if e[:2] == ('T', 4 * s2_ - 1 + P2)))
                    n = min(n, S.marks[(1, 3)] + off - worst - 1)
                a.e(f's_waitcnt vmcnt({n})')
                if P == 0: a.e('s_barrier')
                s.phase(s_, P)
        a.e('L_g2_loop:')
        for s_ in (2, 3, 4, 5):
            for P in range(4):
                a.e(f's_waitcnt vmcnt({vm[P]})')
                if P == 0: a.e('s_barrier')
                s.phase(s_, P)
        a.e('s_add_u32 s88, s88, 1')
        a.e('s_cmp_lt_u32 s88, 3')
        a.e('s_cbranch_scc1 L_g2_loop')
        a.e(f's_waitcnt vmcnt({S.younger(("T", 23), (6, 0))})')
        s.phase(6, 0, last=True)
        stamp(a, 15)
        a.e('s_lshl_b32 s56, s2, 2')
        a.e(f's_add_u32 s56, s56, s{S_W}')
        a.e('s_lshl_b32 s57, s56, 13')
        a.e('s_xor_b32 s58, s57, 0x8000')
        a.e('s_lshl_b32 s56, s56, 6')
        a.e(f's_add_u32 s56, s56, {F4}')
        a.e('s_xor_b32 s59, s56, 0x100')
        srd(a, 40, P_WS, 8 * MB, WS_XP)
        a.e('s_add_u32 s87, s57, 4096')
        for q in range(8):
            c = s.ACC + 32 + 4 * q
            a.e(f'buffer_store_dwordx4 v[{c}:{c+3}], v{s.VT}, s[40:43], s{57 if q < 4 else 87} offen offset:{1024*(q&3)} sc1')
        srd(a, 48, P_OUT, 4 * MB)
        a.e('v_mov_b32 v20, 0')
        a.e(f'v_mov_b32 v21, s{S_NONCE}')
        a.e('s_waitcnt vmcnt(0)')
        stamp(a, 16)
        a.e('s_mov_b64 exec, 1')
        a.e(f'buffer_store_dword v21, v20, s[{S_FLG}:{S_FLG+3}], s56 offen sc1')
        a.e('s_mov_b64 exec, -1')
        wait_flags(a, 59, 20, 22, solo=0)
        stamp(a, 17)
        a.e('s_add_u32 s87, s58, 4096')
        P1 = 96
        for q in range(8):
            a.e(f'buffer_load_dwordx4 v[{P1+4*q}:{P1+4*q+3}], v{s.VT}, s[40:43], s{58 if q < 4 else 87} offen offset:{1024*(q&3)} sc1')
        H = 64
        HR = 0
        for r in range(16): a.e(f'v_accvgpr_read_b32 v{r}, a{r}')
        for tm in range(2):
            for t in range(4):
                for e in range(2):
                    u = H + 4 * (2 * t + tm) + 2 * e
                    unpack(a, u, u + 1, HR + 8 * tm + 2 * t + e)
        for q in range(8):
            t, tm = q >> 1, q & 1
            a.e('s_waitcnt vmcnt(7)')
            c = s.ACC + 4 * q
            for e in range(2):
                x = c + 2 * e; y = P1 + 4 * q + 2 * e; h = H + 4 * q + 2 * e
                a.e(f'v_pk_add_f32 v[{x}:{x+1}], v[{x}:{x+1}], v[{y}:{y+1}]')
                a.e(f'v_cvt_pk_bf16_f32 v{y}, v{x}, v{x+1}')
                unpack(a, x, x + 1, y)
                a.e(f'v_pk_add_f32 v[{x}:{x+1}], v[{x}:{x+1}], v[{h}:{h+1}]')
                a.e(f'v_cvt_pk_bf16_f32 v{2*q+e}, v{x}, v{x+1}')
            a.e(f'buffer_store_dwordx2 v[{2*q}:{2*q+1}], v19, s[48:51], s{85+tm} offen offset:{32*t}')
    def phase(s, s_, P, last=False):
        a = s.a; S = s.S
        k = 4 * s_ - 1 + P
        slots = [[] for _ in range(8)]
        if not last:
            nxt = S.marks[(s_, P + 1)] if P < 3 else S.marks[(s_ + 1, 0)]
            for p_, e in zip([1, 3, 5, 7], S.ev[S.marks[(s_, P)]:nxt]): slots[p_] = s.ev_ins(e)
        for t in range(8):
            a.e(f's_waitcnt lgkmcnt({12 if not (last and t) else 14-2*t})')
            if t == 0:
                R = s.rd((s_ - 1) % 4, 3, 7) if P == 0 else s.rd(s_ % 4, P - 1, 7)
            else:
                R = [] if last else s.rd(s_ % 4, P, t - 1)
            X = list(slots[t])
            pre = [x for x in X if 'm0' in x]
            X = [x for x in X if 'm0' not in x]
            gaps = [pre + R[:1], R[1:] + X]
            order = [0, 1] if t % 2 == 0 else [1, 0]
            for n, tm in enumerate(order):
                c = s.ACC + 4 * (2 * t + tm)
                tf = s.TF + 8 * (k % s.ND) + 4 * tm
                if not opt('g2x') & 1: a.e(f'v_mfma_f32_16x16x32_bf16 v[{c}:{c+3}], v[{s.WF+4*t}:{s.WF+4*t+3}], v[{tf}:{tf+3}], v[{c}:{c+3}]')
                for x in gaps[n]:
                    if opt('g2x') & 2 and x.startswith('ds_'): continue
                    if opt('g2x') & 4 and x.startswith('buffer'): continue
                    a.e(x)

def build():
    a = Asm()
    hdr = open('cdna_kernels/' + NAME + '.s.ref').read().split('\n')
    cm = [l for l in hdr if l.startswith(';') and '@launch' not in l and 'Override launch' not in l and 'grid=ceil' not in l]
    out = '\n'.join(cm) + '\n'
    if opt('aslist'):
        out += f'; @launch kernel={KNAME} grid=(256,1,1) block=(256,1,1) lds=163840\n'
    else:
        out += '; @launch grid=(256,1,1) block=(256,1,1) lds=163840\n'
    a.raw('.amdgcn_target "amdgcn-amd-amdhsa--gfx950"')
    a.raw('.text')
    gen(a)
    body = a.text()
    errs = check_hazards(body)
    errs += check_waits(body, KNAME, loop_iters=2, take_fwd=('L_nonce_ok', 'L_nonce_skip', 'L_clean_skip') + tuple(f'L_sig{i}' for i in range(20)) + tuple(f'L_poll{i}x' for i in range(20)))
    errs += check_waits(body, KNAME, loop_iters=2, take_fwd=('L_nonce_ok',) + (() if opt('solo', 1) else tuple(f'L_poll{i}x' for i in range(20))))
    for e in errs[:8]: print(e, file=sys.stderr)
    na = AST + 28 if opt('stamp') else 108
    out += body + f'''.section .rodata,"a"
.p2align 6
.amdhsa_kernel {KNAME}
  .amdhsa_next_free_vgpr {256+na}
  .amdhsa_next_free_sgpr 102
  .amdhsa_accum_offset 256
  .amdhsa_group_segment_fixed_size 0
  .amdhsa_kernarg_size 104
  .amdhsa_user_sgpr_count 2
  .amdhsa_user_sgpr_kernarg_segment_ptr 1
  .amdhsa_system_sgpr_workgroup_id_x 1
  .amdhsa_float_denorm_mode_32 3
.end_amdhsa_kernel
'''
    return out, errs

if __name__ == '__main__':
    outp = sys.argv[1]
    for kv in sys.argv[2:]:
        k, v = kv.split('=')
        OPT[k] = int(v)
    t, errs = build()
    open(outp, 'w').write(t)
    print('written', outp, len(t), 'bytes;', len(errs), 'checker errors')
```

```python
import re

class Asm:
    def __init__(self):
        self.lines = []
    inj = None
    def e(self, s):
        for ln in s.split('\n'):
            ln = ln.strip()
            if ln:
                self.lines.append('    ' + ln if not ln.endswith(':') else ln)
        if self.inj and not self._busy:
            self._cnt += 1
            if self._cnt % self._every == 0:
                self._busy = True
                self.inj.pop(0)()
                self._busy = False
    def inject(self, items, every):
        self.inj = list(items); self._every = every; self._cnt = 0; self._busy = False
    def flush_inject(self):
        items, self.inj = self.inj, None
        for f in items or []:
            if 'm0' in self.lines[-1]: self.e('s_nop 0')
            f()
    def c(self, s):
        self.lines.append('    ; ' + s)
    def raw(self, s):
        self.lines.append(s)
    def text(self):
        return '\n'.join(self.lines) + '\n'

REG = re.compile(r'^(-|abs\(|\|)?([vas])(\d+)\)?\|?$')
RNG = re.compile(r'^(-|abs\()?([vas])\[(\d+):(\d+)\]\)?$')
TRANS = ('v_exp_f32', 'v_log_f32', 'v_rcp_f32', 'v_rsq_f32', 'v_sqrt_f32', 'v_sin_f32', 'v_cos_f32', 'v_rcp_iflag_f32')

def regs_of(op):
    op = op.strip()
    m = REG.match(op)
    if m:
        return [(m.group(2), int(m.group(3)))]
    m = RNG.match(op)
    if m:
        return [(m.group(2), i) for i in range(int(m.group(3)), int(m.group(4)) + 1)]
    if op in ('vcc', 'vcc_lo', 'vcc_hi'):
        return [('x', 'vcc')]
    if op in ('exec', 'exec_lo', 'exec_hi'):
        return [('x', 'exec')]
    if op == 'm0':
        return [('x', 'm0')]
    return []

class Ins:
    def __init__(self, text, lineno):
        self.text = text
        self.lineno = lineno
        t = text.split(';')[0].strip()
        parts = t.split(None, 1)
        self.mn = parts[0]
        rest = parts[1] if len(parts) > 1 else ''
        ops = []
        cur = ''
        depth = 0
        for ch in rest:
            if ch in '[(':
                depth += 1
            if ch in '])':
                depth -= 1
            if ch == ',' and depth == 0:
                ops.append(cur.strip()); cur = ''
            else:
                cur += ch
        if cur.strip():
            ops.append(cur.strip())
        self.mods = ''
        if ops:
            sp = ops[-1].split(None, 1)
            ops[-1] = sp[0]
            if len(sp) > 1:
                self.mods = sp[1]
        self.ops = ops
        mn = self.mn
        self.is_mfma = mn.startswith('v_mfma')
        self.is_valu = mn.startswith('v_') and not self.is_mfma
        self.is_salu = mn.startswith('s_')
        self.is_vmem = mn.startswith(('buffer_', 'global_'))
        self.is_ds = mn.startswith('ds_')
        self.is_smem = mn.startswith(('s_load', 's_buffer_load', 's_memtime', 's_memrealtime', 's_atomic'))
        self.is_dpp = '_dpp' in mn or 'row_' in self.mods or 'quad_perm' in self.mods or 'wave_' in self.mods
        self.is_trans = any(mn.startswith(x) for x in TRANS)
        self.is_lds_dma = self.is_vmem and (' lds' in (' ' + self.mods) or 'load_lds' in mn)
        self.w = []; self.r = []
        R = lambda i: regs_of(ops[i]) if i < len(ops) else []
        allr = lambda a: [x for i in range(a, len(ops)) for x in R(i)]
        self.srcA = self.srcB = self.srcC = []
        self.stdata = []
        if self.is_mfma:
            self.w = R(0); self.srcA = R(1); self.srcB = R(2); self.srcC = R(3); self.r = allr(1)
            self.passes = 8 if '32x32x16' in mn else 4 if '16x16x32' in mn else None
            assert self.passes
        elif self.is_valu:
            if mn.startswith('v_permlane') and 'swap' in mn:
                self.w = R(0) + R(1); self.r = R(0) + R(1)
            elif mn.startswith(('v_add_co', 'v_sub_co', 'v_addc_co', 'v_subb_co', 'v_subrev_co')):
                self.w = R(0) + R(1); self.r = allr(2)
            elif mn.startswith('v_cmpx'):
                self.w = R(0) + [('x', 'exec')]; self.r = allr(1)
            elif mn.startswith(('v_fmac', 'v_dot2c', 'v_pk_fmac', 'v_writelane')):
                self.w = R(0); self.r = allr(0)
            elif mn == 'v_nop':
                pass
            else:
                self.w = R(0); self.r = allr(1)
                if self.is_dpp:
                    self.r = self.r + R(0)
                if mn.startswith('v_cndmask') and len(ops) == 3:
                    self.r.append(('x', 'vcc'))
        elif self.is_vmem:
            if self.is_lds_dma:
                self.r = allr(0) + [('x', 'm0')]
            elif 'load' in mn:
                self.w = R(0); self.r = allr(1)
            elif 'atomic' in mn:
                self.r = allr(0)
                if 'sc0' in self.mods:
                    self.w = R(0)
            elif mn.startswith(('buffer_wbl2', 'buffer_inv')):
                pass
            else:
                self.r = allr(0)
                if mn.startswith('buffer_store'):
                    self.stdata = R(0)
                else:
                    self.stdata = R(1)
        elif self.is_ds:
            if 'read' in mn or 'bpermute' in mn or 'swizzle' in mn or 'permute' in mn or '_rtn' in mn:
                self.w = R(0); self.r = allr(1)
            else:
                self.r = allr(0)
        elif self.is_salu:
            if mn.startswith(('s_cmp', 's_cbranch', 's_waitcnt', 's_barrier', 's_nop', 's_setprio', 's_endpgm', 's_branch', 's_sleep', 's_bitcmp')):
                self.r = allr(0)
            elif 'saveexec' in mn:
                self.w = R(0) + [('x', 'exec')]; self.r = allr(1) + [('x', 'exec')]
            elif mn.startswith(('s_addk', 's_mulk')):
                self.w = R(0); self.r = R(0)
            else:
                self.w = R(0); self.r = allr(1)
        else:
            raise ValueError('unknown instr ' + text)
        self.ws = 1
        if mn == 's_nop':
            self.ws = int(ops[0], 0) + 1
        self.target = None
        if mn.startswith(('s_cbranch', 's_branch')):
            self.target = ops[0]

def parse(text):
    ins = []; labels = {}
    in_code = True
    for n, ln in enumerate(text.split('\n'), 1):
        s = ln.split(';')[0].strip()
        if not s:
            continue
        if s.startswith('.'):
            if s.startswith('.section') or s.startswith('.amdhsa_kernel'):
                in_code = False
            if s.startswith('.text'):
                in_code = True
            if not s.endswith(':'):
                continue
        if not in_code:
            continue
        if s.endswith(':'):
            labels[s[:-1]] = len(ins)
            continue
        ins.append(Ins(s, n))
    return ins, labels

def inter(a, b):
    return set(a) & set(b)

def need(p, c):
    n = 0
    why = ''
    def up(k, w):
        nonlocal n, why
        if k > n:
            n = k; why = w
    pw = p.w
    pvw = [x for x in pw if x[0] in 'va']
    psw = [x for x in pw if x[0] == 's' or x == ('x', 'vcc')]
    if p.is_valu:
        if c.is_mfma and inter(pvw, c.r): up(2, 'valu->mfma src')
        if c.is_valu and c.is_dpp and inter(pvw, c.r): up(2, 'valu->dpp')
        if c.is_valu and c.mn.startswith('v_permlane') and inter(pvw, c.r): up(2, 'valu->permlane')
        if c.mn.startswith(('v_readlane', 'v_readfirstlane')) and inter(pvw, c.r): up(1, 'valu->readlane')
        if p.is_trans and c.is_valu and not c.is_trans and inter(pvw, c.r): up(1, 'trans->valu')
        if p.is_trans and c.is_mfma and inter(pvw, c.r): up(2, 'trans->mfma')
        if psw:
            if c.is_vmem and inter(psw, c.r): up(5, 'valu sgpr->vmem')
            if c.is_valu and inter(psw, c.r):
                up(2, 'valu sgpr->valu')
                if c.mn.startswith(('v_readlane', 'v_writelane')): up(4, 'valu sgpr->lane sel')
            if c.is_salu and inter(psw, c.r): up(1, 'valu sgpr->salu (pad)')
        if ('x', 'exec') in pw:
            if c.is_mfma: up(4, 'valu exec->mfma')
            if c.is_dpp: up(5, 'valu exec->dpp')
            if c.mn.startswith(('v_readlane', 'v_readfirstlane', 'v_writelane', 'v_permlane')): up(4, 'cmpx->lane')
        if ('sdwa' in p.mn or 'op_sel' in p.mods) and not p.mn.startswith('v_pk_') and c.is_valu and inter(pvw, c.r + c.w): up(1, 'opsel')
    if p.is_salu and ('x', 'm0') in pw and c.is_lds_dma: up(1, 'm0->dma')
    if p.stdata and len(p.stdata) >= 3:
        if inter(p.stdata, c.w):
            up(2 if (c.is_valu or c.is_mfma) else 1, 'store data WAR')
    if p.is_mfma:
        P = p.passes
        big = {4: 8, 8: 12}[P]
        if c.is_mfma:
            if inter(pw, c.srcA + c.srcB): up(big, 'mfma D->mfma A/B')
            if inter(pw, c.srcC):
                if not (c.srcC == pw and c.passes == P): up({4: 6, 8: 10}[P], 'mfma D->mfma C overlap')
            elif inter(pw, c.w) : up({4: 6, 8: 10}[P], 'mfma D->mfma D WAW (no C)')
        else:
            if (c.is_valu or c.is_vmem or c.is_ds) and inter(pw, c.r + c.w): up(big, 'mfma D->valu/mem')
            if c.is_valu and inter(p.srcC, c.w): up({4: 3, 8: 7}[P], 'mfma C WAR')
    return n, why

def check_hazards(text):
    ins, labels = parse(text)
    preds = [[] for _ in ins]
    for i, x in enumerate(ins):
        if i + 1 < len(ins) and x.mn not in ('s_branch', 's_endpgm'):
            preds[i + 1].append(i)
        if x.target is not None:
            t = labels[x.target]
            if t < len(ins):
                preds[t].append(i)
    errs = []
    for i, c in enumerate(ins):
        seen = {}
        stack = [(p, 0) for p in preds[i]]
        while stack:
            j, d = stack.pop()
            if d >= 20: continue
            if j in seen and seen[j] <= d: continue
            seen[j] = d
            p = ins[j]
            n, why = need(p, c)
            if n > d:
                errs.append(f'HAZARD {why}: line {p.lineno} "{p.text}" -> line {c.lineno} "{c.text}" has {d} needs {n}')
            for q in preds[j]:
                stack.append((q, d + p.ws))
    return errs

def check_waits(text, entry, loop_iters=4, take_fwd=()):
    ins, labels = parse(text)
    pc = labels[entry]
    vm = []
    lg = []
    cnt = {}
    errs = []
    steps = 0
    while True:
        x = ins[pc]; steps += 1
        assert steps < 2000000
        if x.mn == 's_endpgm': break
        if x.mn == 's_waitcnt':
            m = re.search(r'vmcnt\((\d+)\)', x.text)
            if m:
                n = int(m.group(1))
                if len(vm) > n: vm = vm[len(vm) - n:] if n else []
            m = re.search(r'lgkmcnt\((\d+)\)', x.text)
            if m:
                n = int(m.group(1))
                if n and any(o[1].is_smem for o in lg):
                    errs.append(f'WAIT lgkmcnt({n}) with SMEM outstanding line {x.lineno}')
                if len(lg) > n: lg = lg[len(lg) - n:] if n else []
        else:
            touched = set(x.r) | set(x.w)
            for q, nm in ((vm, 'vm'), (lg, 'lgkm')):
                for regs, o in q:
                    if touched & set(regs) and not (x.mn.endswith('_load_dword') and o.mn.endswith('_load_dword') and not set(x.r) & set(regs)):
                        errs.append(f'WAIT missing ({nm}): line {o.lineno} "{o.text}" pending at line {x.lineno} "{x.text}"')
            if x.is_vmem and not x.mn.startswith(('buffer_wbl2', 'buffer_inv')):
                vm.append((x.w, x))
                if len(vm) > 63: errs.append(f'vmcnt overflow at line {x.lineno}')
            if x.is_ds or x.is_smem:
                lg.append((x.w, x))
        if x.target is not None:
            t = labels[x.target]
            if t <= pc:
                k = cnt.get(pc, 0)
                if k < loop_iters:
                    cnt[pc] = k + 1
                    pc = t; continue
                cnt[pc] = 0
            elif x.mn == 's_branch' or x.target in take_fwd:
                pc = t; continue
        pc += 1
    return sorted(set(errs))
```

```python
import sys, os
from asmlib import *

NAME = 'sequential_preLN__ssm_conv_h3__glu_gated_swiglu__prompt'
KNAME = NAME + '_kernel'
MB = 1 << 20
WS0 = int(os.environ.get('WS0', '0')) * MB
WS_UB, WS_Y2, WS_H, WS_HNF, WS_HF, WS_XP, WS_FLG = [WS0 + x * MB for x in (0, 4, 8, 12, 16, 32, 40)]
STAMP_BASE = 64 * MB
OPT = {}
def opt(k, d=0): return OPT.get(k, d)

P_Q, P_K, P_V, P_SH, P_SSMK, P_D, P_X, P_W1, P_W3, P_W2, P_OUT, P_DBG, P_WS = [4 + 2 * i for i in range(13)]
S_W, S_NONCE, S_MASK = 30, 31, 90
S_FLG = 92
F0, F1, F2, F3, F4 = 0, 32768, 65536, 98304, 131072
FLG_SIZE = 262144
LDS_KA = 98304
KA_REG = 13056
NSTAMP = 20
AST = 128

def srd(a, d, p, size, add=0, addreg=None):
    if add or addreg is not None:
        if add:
            a.e(f's_add_u32 s{d}, s{p}, {add:#x}')
            a.e(f's_addc_u32 s{d+1}, s{p+1}, 0')
            if addreg is not None:
                a.e(f's_add_u32 s{d}, s{d}, s{addreg}')
                a.e(f's_addc_u32 s{d+1}, s{d+1}, 0')
        else:
            a.e(f's_add_u32 s{d}, s{p}, s{addreg}')
            a.e(f's_addc_u32 s{d+1}, s{p+1}, 0')
    else:
        a.e(f's_mov_b32 s{d}, s{p}')
        a.e(f's_mov_b32 s{d+1}, s{p+1}')
    if size is not None:
        a.e(f's_mov_b32 s{d+2}, {size:#x}')
    a.e(f's_mov_b32 s{d+3}, 0x20000')

def stamp(a, i):
    if not opt('stamp'): return
    a.e('s_memrealtime s[60:61]')
    if i == 0: a.e('s_memtime s[62:63]')
    cy = {11: 20, 12: 21, 14: 22, 15: 23, 4: 24, 5: 25}.get(i)
    if cy: a.e('s_memtime s[66:67]')
    a.e('s_waitcnt lgkmcnt(0)')
    a.e(f'v_writelane_b32 v1, s60, {i}')
    if cy: a.e(f'v_writelane_b32 v1, s66, {cy}')
    if LIN[0]: LIN[0].lg = []

def stamp_out(a, n):
    if not opt('stamp'): return
    a.e('s_waitcnt vmcnt(0)')
    stamp(a, n - 1)
    a.e('s_memtime s[64:65]')
    a.e('s_waitcnt lgkmcnt(0)')
    srd(a, 32, P_WS, 1 * MB, STAMP_BASE)
    a.e('s_lshl_b32 s84, s2, 2')
    a.e(f's_add_u32 s84, s84, s{S_W}')
    a.e('s_lshl_b32 s84, s84, 7')
    a.e('s_sub_u32 s64, s64, s62')
    a.e('v_writelane_b32 v1, s64, 31')
    a.e('v_mbcnt_lo_u32_b32 v2, -1, 0')
    a.e('v_lshlrev_b32 v2, 2, v2')
    a.e('s_mov_b64 exec, 0xffffffff')
    a.e('buffer_store_dword v1, v2, s[32:35], s84 offen')

LIN = [None]
class Lin:
    def __init__(s, a): s.a = a; s.vm = []; s.lg = []; LIN[0] = s
    def e(s, t): s.a.e(t)
    def v(s, tag, t): s.a.e(t); s.vm.append(tag)
    def l(s, tag, t): s.a.e(t); s.lg.append(tag)
    def _n(s, q, tags, cap):
        idx = [i for i, x in enumerate(q) if x in tags]
        if not idx: return None
        n = len(q) - max(idx) - 1
        return min(n, cap)
    def wait(s, vm=(), lg=(), vm0=False, lg0=False):
        nv = 0 if vm0 else s._n(s.vm, vm, 63)
        nl = 0 if lg0 else s._n(s.lg, lg, 15)
        t = ''
        if nv is not None:
            t += f' vmcnt({nv})'; s.vm = s.vm[len(s.vm) - nv:] if nv else []
        if nl is not None:
            t += f' lgkmcnt({nl})'; s.lg = s.lg[len(s.lg) - nl:] if nl else []
        if t: s.a.e('s_waitcnt' + t)

def unpack(a, dlo, dhi, src):
    a.e(f'v_lshlrev_b32 v{dlo}, 16, v{src}')
    a.e(f'v_and_b32 v{dhi}, s{S_MASK}, v{src}')

def hfl():
    return [' sc1', ' sc0 sc1', ' sc1 nt', ' sc0 sc1 nt', ''][opt('hfl')]

def code_pf(a, lab_from, lab_to, vt, emit=None):
    _uid[0] += 1
    L = f'L_pc{_uid[0]}'
    a.e('s_getpc_b64 s[78:79]')
    a.e(f'{L}:')
    a.e(f's_lshl_b32 s77, s{S_W}, 13')
    a.e(f's_add_u32 s77, s77, {lab_from}-{L}')
    a.e(f'v_lshl_add_u32 v{vt}, v2, 7, s77')
    a.e(f'v_min_u32 v{vt}, {lab_to}-{L}, v{vt}')
    t = f'global_load_dword v{vt+1}, v{vt}, s[78:79]'
    if emit: emit(t)
    else: a.e(t)

_uid = [0]
def signal(a, soff, vt, waitfn=None, wb=False):
    _uid[0] += 1
    L = f'L_sig{_uid[0]}'
    a.e(f'v_mov_b32 v{vt}, 0')
    a.e(f'v_mov_b32 v{vt+1}, s{S_NONCE}')
    a.e(f's_cmp_eq_u32 s{S_W}, 0')
    if waitfn: waitfn()
    else: a.e('s_waitcnt vmcnt(0)')
    a.e('s_barrier')
    a.e(f's_cbranch_scc0 {L}')
    if wb:
        a.e('buffer_wbl2 sc1')
        a.e('s_waitcnt vmcnt(0)')
    a.e('s_mov_b64 exec, 1')
    a.e(f'buffer_store_dword v{vt+1}, v{vt}, s[{S_FLG}:{S_FLG+3}], s{soff} offen sc1')
    a.e('s_mov_b64 exec, -1')
    a.e(f'{L}:')

def fsh():
    return opt('fs', 32).bit_length() - 1
def f1sh():
    return opt('f1s', 32).bit_length() - 1

def wait_flags(a, soff, voff, vd, n=64, solo=None):
    _uid[0] += 1
    L = f'L_poll{_uid[0]}'
    if solo is None: solo = opt('solo', 1)
    if solo:
        a.e(f's_cmp_lg_u32 s{S_W}, 0')
        a.e(f's_cbranch_scc1 {L}x')
    a.e(f'{L}:')
    if n == 256:
        if f1sh() == 2:
            a.e(f'buffer_load_dwordx4 v[{vd}:{vd+3}], v{voff}, s[{S_FLG}:{S_FLG+3}], s{soff} offen sc1')
        else:
            for i in range(4):
                a.e(f's_add_u32 s89, s{soff}, {i*(64<<f1sh())}')
                a.e(f'buffer_load_dword v{vd+i}, v{voff}, s[{S_FLG}:{S_FLG+3}], s89 offen sc1')
        a.e('s_waitcnt vmcnt(0)')
        a.e(f'v_xor_b32 v{vd}, s{S_NONCE}, v{vd}')
        a.e(f'v_xor_b32 v{vd+1}, s{S_NONCE}, v{vd+1}')
        a.e(f'v_xor_b32 v{vd+2}, s{S_NONCE}, v{vd+2}')
        a.e(f'v_xor_b32 v{vd+3}, s{S_NONCE}, v{vd+3}')
        a.e(f'v_or3_b32 v{vd}, v{vd}, v{vd+1}, v{vd+2}')
        a.e(f'v_or_b32 v{vd}, v{vd}, v{vd+3}')
        a.e(f'v_cmp_ne_u32 vcc, 0, v{vd}')
    else:
        a.e(f'buffer_load_dword v{vd}, v{voff}, s[{S_FLG}:{S_FLG+3}], s{soff} offen sc1')
        a.e('s_waitcnt vmcnt(0)')
        a.e(f'v_cmp_ne_u32 vcc, s{S_NONCE}, v{vd}')
    a.e('s_add_u32 s3, s3, 1')
    a.e(f's_cmp_gt_u32 s3, {opt("spin", 200000)}')
    a.e(f's_cbranch_scc1 {L}x')
    a.e(f's_cbranch_vccz {L}x')
    if opt('sleep'): a.e(f's_sleep {opt("sleep")}')
    a.e(f's_branch {L}')
    a.e(f'{L}x:')
    if solo: a.e('s_barrier')

def wave_sum2(a, va, vb, sa, sb):
    for mod in ('row_shr:1 row_mask:0xf bank_mask:0xf bound_ctrl:0', 'row_shr:2 row_mask:0xf bank_mask:0xf bound_ctrl:0',
                'row_shr:4 row_mask:0xf bank_mask:0xf bound_ctrl:0', 'row_shr:8 row_mask:0xf bank_mask:0xf bound_ctrl:0',
                'row_bcast:15 row_mask:0xa bank_mask:0xf', 'row_bcast:31 row_mask:0xc bank_mask:0xf'):
        a.e('s_nop 0')
        a.e(f'v_add_f32_dpp v{va}, v{va}, v{va} {mod}')
        a.e(f'v_add_f32_dpp v{vb}, v{vb}, v{vb} {mod}')
    a.e(f'v_readlane_b32 s{sa}, v{va}, 63')
    a.e(f'v_readlane_b32 s{sb}, v{vb}, 63')

def ln2(a, X, T, M, R, C):
    def both(f):
        for r in range(2): f(r)
    for q in range(4):
        both(lambda r: a.e(f'v_pk_add_f32 v[{T[r]+2*q}:{T[r]+2*q+1}], v[{X[r]+4*q}:{X[r]+4*q+1}], v[{X[r]+4*q+2}:{X[r]+4*q+3}]'))
    both(lambda r: a.e(f'v_pk_add_f32 v[{T[r]}:{T[r]+1}], v[{T[r]}:{T[r]+1}], v[{T[r]+2}:{T[r]+3}]'))
    both(lambda r: a.e(f'v_pk_add_f32 v[{T[r]+4}:{T[r]+5}], v[{T[r]+4}:{T[r]+5}], v[{T[r]+6}:{T[r]+7}]'))
    both(lambda r: a.e(f'v_pk_add_f32 v[{T[r]}:{T[r]+1}], v[{T[r]}:{T[r]+1}], v[{T[r]+4}:{T[r]+5}]'))
    both(lambda r: a.e(f'v_add_f32 v{T[r]}, v{T[r]}, v{T[r]+1}'))
    wave_sum2(a, T[0], T[1], 56, 57)
    a.e('s_nop 0')
    both(lambda r: a.e(f'v_mul_f32 v{M[r]}, s{56+r}, v{C}'))
    both(lambda r: a.e(f'v_mov_b32 v{M[r]+1}, v{M[r]}'))
    for q in range(8):
        both(lambda r: a.e(f'v_pk_add_f32 v[{T[r]+2*q}:{T[r]+2*q+1}], v[{X[r]+2*q}:{X[r]+2*q+1}], v[{M[r]}:{M[r]+1}] neg_lo:[0,1] neg_hi:[0,1]'))
    both(lambda r: a.e(f'v_pk_mul_f32 v[{R[r]}:{R[r]+1}], v[{T[r]}:{T[r]+1}], v[{T[r]}:{T[r]+1}]'))
    for q in range(1, 8):
        both(lambda r: a.e(f'v_pk_fma_f32 v[{R[r]}:{R[r]+1}], v[{T[r]+2*q}:{T[r]+2*q+1}], v[{T[r]+2*q}:{T[r]+2*q+1}], v[{R[r]}:{R[r]+1}]'))
    both(lambda r: a.e(f'v_add_f32 v{R[r]}, v{R[r]}, v{R[r]+1}'))
    def rbf(v):
        a.e(f'v_cvt_pk_bf16_f32 v{v}, v{v}, v{v}')
        a.e(f'v_and_b32 v{v}, s{S_MASK}, v{v}')
    both(lambda r: rbf(M[r]))
    wave_sum2(a, R[0], R[1], 58, 59)
    both(lambda r: a.e(f'v_mov_b32 v{M[r]+1}, v{M[r]}'))
    both(lambda r: a.e(f'v_mul_f32 v{R[r]}, s{58+r}, v{C}'))
    both(lambda r: rbf(R[r]))
    both(lambda r: a.e(f'v_add_f32 v{R[r]}, 0x3727c5ac, v{R[r]}'))
    both(lambda r: rbf(R[r]))
    both(lambda r: a.e(f'v_sqrt_f32 v{R[r]}, v{R[r]}'))
    for q in range(2):
        both(lambda r: a.e(f'v_pk_add_f32 v[{T[r]+2*q}:{T[r]+2*q+1}], v[{X[r]+2*q}:{X[r]+2*q+1}], v[{M[r]}:{M[r]+1}] neg_lo:[0,1] neg_hi:[0,1]'))
    both(lambda r: rbf(R[r]))
    both(lambda r: a.e(f'v_rcp_f32 v{R[r]}, v{R[r]}'))
    for q in range(2, 8):
        both(lambda r: a.e(f'v_pk_add_f32 v[{T[r]+2*q}:{T[r]+2*q+1}], v[{X[r]+2*q}:{X[r]+2*q+1}], v[{M[r]}:{M[r]+1}] neg_lo:[0,1] neg_hi:[0,1]'))
    both(lambda r: a.e(f'v_mov_b32 v{R[r]+1}, v{R[r]}'))
    for q in range(8):
        both(lambda r: a.e(f'v_pk_mul_f32 v[{T[r]+2*q}:{T[r]+2*q+1}], v[{T[r]+2*q}:{T[r]+2*q+1}], v[{R[r]}:{R[r]+1}]'))

class Sched:
    def __init__(self): self.ev = []; self.marks = {}
    def mark(self, k): self.marks[k] = len(self.ev)
    def add(self, L): self.ev += L
    def younger(self, tag, at):
        last = max(i for i, e in enumerate(self.ev) if e[:2] == tag)
        assert last < self.marks[at], (tag, at)
        return self.marks[at] - last - 1

def gen(a):
    a.raw(f'.globl {KNAME}')
    a.raw('.p2align 8')
    a.raw(f'.type {KNAME},@function')
    a.raw(f'{KNAME}:')
    a.e('s_cmp_ge_u32 s2, 256')
    a.e('s_cbranch_scc1 L_end')
    a.e('s_load_dwordx8 s[4:11], s[0:1], 0')
    a.e('s_load_dwordx8 s[20:27], s[0:1], 64')
    a.e('s_load_dwordx2 s[28:29], s[0:1], 96')
    a.e('s_load_dwordx8 s[12:19], s[0:1], 32')
    a.e('s_memrealtime s[56:57]')
    a.e('v_lshrrev_b32 v1, 6, v0')
    a.e('v_and_b32 v2, 63, v0')
    a.e(f'v_readfirstlane_b32 s{S_W}, v1')
    a.e(f's_mov_b32 s{S_MASK}, 0xffff0000')
    a.e('s_mov_b32 s3, 0')
    a.e('s_bfe_u32 s82, s2, 0x30003')
    a.e('s_and_b32 s83, s2, 7')
    a.e('s_lshr_b32 s84, s2, 6')
    a.e('s_lshl_b32 s84, s84, 3')
    a.e('s_or_b32 s83, s83, s84')
    a.e('v_and_b32 v1, 15, v0')
    a.e('v_lshrrev_b32 v8, 4, v0')
    a.e('s_lshl_b32 s85, s83, 17')
    a.e('s_lshl_b32 s86, s82, 8')
    a.e('s_add_u32 s85, s85, s86')
    a.e('v_lshlrev_b32 v3, 13, v1')
    a.e('v_lshl_add_u32 v3, v8, 4, v3')
    a.e('v_add_u32 v3, s85, v3')
    a.e('v_add_u32 v4, 0xffffe800, v3')
    a.e('v_add_u32 v5, 0xfffff800, v3')
    a.e('v_add_u32 v6, 0x1000, v3')
    a.e('s_lshl_b32 s86, s82, 10')
    a.e('v_lshlrev_b32 v7, 6, v8')
    a.e('v_add_u32 v7, s86, v7')
    a.e('s_lshl_b32 s87, s82, 5')
    a.e('s_add_u32 s87, s87, s83')
    a.e('s_lshl_b32 s88, s87, 14')
    a.e('s_add_u32 s88, s88, 120')
    a.e('v_lshlrev_b32 v160, 10, v8')
    a.e('v_lshlrev_b32 v161, 3, v1')
    a.e('v_sub_u32 v160, v160, v161')
    a.e('v_add_u32 v160, s88, v160')
    a.e(f's_lshl_b32 s87, s87, {fsh()}')
    a.e('v_mov_b32 v162, 0')
    a.e('s_waitcnt lgkmcnt(0)')
    stamp(a, 0)
    srd(a, 32, P_K, 4 * MB)
    srd(a, 36, P_V, 4 * MB)
    srd(a, 40, P_SH, 8192)
    KR, VR_, WR, WU, KU, AC0 = 8, 36, 52, 68, 100, 164
    for j in range(4):
        a.e(f'buffer_load_dwordx4 v[{WR+4*j}:{WR+4*j+3}], v7, s[40:43], 0 offen offset:{16*j}')
    rows = [(4, 0), (4, 2048), (5, 0), (3, 0), (3, 2048), (6, 0), (6, 2048)]
    for r, (vr, off) in enumerate(rows):
        a.e(f'buffer_load_dwordx4 v[{KR+4*r}:{KR+4*r+3}], v{vr}, s[32:35], 0 offen offset:{off}')
    for r, (vr, off) in enumerate(rows[3:]):
        a.e(f'buffer_load_dwordx4 v[{VR_+4*r}:{VR_+4*r+3}], v{vr}, s[36:39], 0 offen offset:{off}')
    ncp = 0
    if opt('cpf', 0):
        a.e('s_getpc_b64 s[58:59]')
        a.e('L_pc:')
        a.e('v_lshlrev_b32 v163, 7, v0')
        a.e('v_min_u32 v163, L_end-L_pc, v163')
        a.e('global_load_dword v161, v163, s[58:59]')
        ncp = 1
    srd(a, 48, P_WS, 4 * MB, WS_UB)
    if opt('pt', 0) & 1:
        a.e('v_lshlrev_b32 v163, 6, v0')
        a.e('s_sub_u32 s58, s88, 120')
        a.e('buffer_load_dword v161, v163, s[48:51], s58 offen')
        ncp += 1
    srd(a, 44, P_DBG, 256)
    a.e('s_or_b32 s56, s56, 1')
    a.e(f's_or_b32 s57, s2, s{S_W}')
    a.e('s_cmp_lg_u32 s57, 0')
    a.e('s_cbranch_scc1 L_nonce_skip')
    a.e('v_mov_b32 v163, s56')
    a.e('s_mov_b64 exec, 1')
    a.e('buffer_store_dword v163, v162, s[44:47], 0 offen sc1')
    a.e('s_mov_b64 exec, -1')
    a.e('s_waitcnt vmcnt(0)')
    a.e('L_nonce_skip:')
    srd(a, S_FLG, P_WS, FLG_SIZE, WS_FLG)
    a.e(f's_waitcnt vmcnt({11+ncp})')
    for e in range(8):
        unpack(a, WU + 0 * 8 + e, WU + 1 * 8 + e, WR + 2 * e)
        unpack(a, WU + 2 * 8 + e, WU + 3 * 8 + e, WR + 2 * e + 1)
    for r in range(7):
        a.e(f's_waitcnt vmcnt({10-r+ncp})')
        for q in range(4):
            unpack(a, KU + 8 * r + 2 * q, KU + 8 * r + 2 * q + 1, KR + 4 * r + q)
        if r >= 3:
            i = r - 3
            for j in range(4):
                for q in range(4):
                    d = AC0 + 8 * i + 2 * q
                    k = KU + 8 * (i + 3 - j) + 2 * q
                    w = WU + 8 * j + 2 * q
                    if j == 0:
                        a.e(f'v_pk_mul_f32 v[{d}:{d+1}], v[{k}:{k+1}], v[{w}:{w+1}]')
                    else:
                        a.e(f'v_pk_fma_f32 v[{d}:{d+1}], v[{k}:{k+1}], v[{w}:{w+1}], v[{d}:{d+1}]')
    VU = 8
    for i in range(4):
        a.e(f's_waitcnt vmcnt({3-i+ncp})')
        if i == 3:
            a.e('buffer_load_dword v163, v162, s[44:47], 0 offen sc1')
        for q in range(4):
            unpack(a, VU + 2 * q, VU + 2 * q + 1, VR_ + 4 * i + q)
        for q in range(4):
            d = AC0 + 8 * i + 2 * q
            a.e(f'v_pk_mul_f32 v[{d}:{d+1}], v[{d}:{d+1}], v[{VU+2*q}:{VU+2*q+1}]')
    O = 52
    for e in range(8):
        a.e(f'v_cvt_pk_bf16_f32 v{O+2*e}, v{AC0+24+e}, v{AC0+16+e}')
        a.e(f'v_cvt_pk_bf16_f32 v{O+2*e+1}, v{AC0+8+e}, v{AC0+e}')
        a.e(f'buffer_store_dwordx2 v[{O+2*e}:{O+2*e+1}], v160, s[48:51], 0 offen offset:{128*e} sc1')
    stamp(a, 1)
    a.e('s_and_b32 s82, s2, 7')
    a.e('s_lshr_b32 s83, s2, 3')
    a.e('s_lshl_b32 s84, s83, 2')
    a.e(f's_add_u32 s84, s84, s{S_W}')
    a.e('s_lshl_b32 s85, s82, 7')
    a.e('s_add_u32 s85, s85, s84')
    a.e('s_lshl_b32 s86, s82, 5')
    a.e('s_add_u32 s86, s86, s83')
    a.e(f's_mul_i32 s88, s{S_W}, {KA_REG}')
    a.e(f's_add_u32 s88, s88, {LDS_KA}')
    a.e('s_lshl_b32 s56, s85, 12')
    srd(a, 32, P_SSMK, 4096, 0, 56)
    a.e('s_lshr_b32 s57, s85, 1')
    a.e('s_lshl_b32 s57, s57, 2')
    a.e(f's_load_dword s89, s[{P_D}:{P_D+1}], s57')
    a.e('v_lshlrev_b32 v4, 4, v2')
    KD, KX = 8, 24
    for j in range(4):
        a.e(f'buffer_load_dwordx4 v[{KD+4*j}:{KD+4*j+3}], v4, s[32:35], 0 offen offset:{1024*j}')
        a.e(f'buffer_load_dword v{KX+j}, v4, s[32:35], 0 offen offset:{1024*j+16}')
    a.e('s_and_b32 s80, s82, 1')
    a.e('s_lshl_b32 s80, s80, 2')
    a.e('s_and_b32 s56, s83, 3')
    a.e('s_add_u32 s80, s80, s56')
    a.e('s_lshr_b32 s81, s82, 1')
    a.e('s_lshl_b32 s81, s81, 3')
    a.e('s_lshr_b32 s56, s83, 2')
    a.e('s_add_u32 s81, s81, s56')
    a.e('s_lshl_b32 s91, s80, 5')
    a.e('s_add_u32 s91, s91, s81')
    a.e('s_lshl_b32 s56, s91, 2')
    a.e(f's_add_u32 s56, s56, s{S_W}')
    a.e('s_lshl_b32 s96, s56, 12')
    srd(a, 36, P_Q, 4 * MB)
    XP = 224
    for r in range(2):
        for hh in range(2):
            a.e(f'buffer_load_dwordx4 v[{XP+8*r+4*hh}:{XP+8*r+4*hh+3}], v4, s[36:39], s96 offen offset:{2048*r+1024*hh}')
    a.e('s_waitcnt vmcnt(20)')
    a.e('L_nonce:')
    a.e(f'v_readfirstlane_b32 s{S_NONCE}, v163')
    a.e('s_nop 0')
    a.e(f's_cmp_lg_u32 s{S_NONCE}, 0')
    a.e('s_cbranch_scc1 L_nonce_ok')
    a.e('s_add_u32 s3, s3, 1')
    a.e(f's_cmp_gt_u32 s3, {opt("spin", 200000)}')
    a.e('s_cbranch_scc1 L_nonce_ok')
    a.e('buffer_load_dword v163, v162, s[44:47], 0 offen sc1')
    a.e('s_waitcnt vmcnt(0)')
    a.e('s_branch L_nonce')
    a.e('L_nonce_ok:')
    a.e(f'v_mov_b32 v163, s{S_NONCE}')
    a.e(f's_cmp_eq_u32 s{S_W}, 0')
    a.e('s_waitcnt vmcnt(12)')
    a.e('s_barrier')
    a.e('s_cbranch_scc0 L_sig0')
    a.e('s_mov_b64 exec, 1')
    a.e(f'buffer_store_dword v163, v162, s[{S_FLG}:{S_FLG+3}], s87 offen sc1')
    a.e('s_mov_b64 exec, -1')
    a.e('L_sig0:')
    stamp(a, 2)
    npt = 0
    if opt('pt', 0) & 2:
        srd(a, 40, P_WS, 12 * MB, WS_Y2)
        a.e('v_lshlrev_b32 v164, 14, v0')
        a.e('s_lshl_b32 s56, s86, 6')
        a.e('buffer_load_dword v161, v164, s[40:43], s56 offen')
        a.e('v_lshlrev_b32 v164, 6, v0')
        a.e('s_lshl_b32 s56, s91, 14')
        a.e(f's_add_u32 s56, s56, {4*MB}')
        a.e('buffer_load_dword v161, v164, s[40:43], s56 offen')
        a.e('v_lshrrev_b32 v164, 3, v0')
        a.e('v_lshlrev_b32 v164, 12, v164')
        a.e('v_bfe_u32 v165, v0, 1, 2')
        a.e('v_lshl_add_u32 v164, v165, 8, v164')
        a.e('s_lshr_b32 s56, s91, 3')
        a.e('s_lshl_b32 s56, s56, 17')
        a.e('s_and_b32 s57, s91, 7')
        a.e('s_lshr_b32 s58, s57, 1')
        a.e('s_lshl_b32 s58, s58, 10')
        a.e('s_add_u32 s56, s56, s58')
        a.e('s_and_b32 s57, s57, 1')
        a.e('s_lshl_b32 s57, s57, 7')
        a.e('s_add_u32 s56, s56, s57')
        a.e(f's_add_u32 s56, s56, {8*MB}')
        a.e('buffer_load_dword v161, v164, s[40:43], s56 offen')
        npt += 3
    a.e('v_lshrrev_b32 v3, 3, v2')
    a.e('v_sub_u32 v3, 7, v3')
    a.e('v_lshlrev_b32 v3, 14, v3')
    a.e('v_and_b32 v5, 7, v2')
    a.e('v_lshl_add_u32 v3, v5, 4, v3')
    a.e('s_lshl_b32 s56, s84, 7')
    a.e('v_add_u32 v3, s56, v3')
    a.e('v_and_b32 v5, 15, v2')
    a.e('v_lshrrev_b32 v6, 4, v2')
    a.e('v_mov_b32 v28, 0')
    a.e('v_mov_b32 v29, 0')
    a.e('v_lshlrev_b32 v7, 3, v2')
    a.e('v_add_u32 v7, s88, v7')
    a.e('ds_write_b64 v7, v[28:29] offset:4096')
    a.e('v_min_u32 v30, 7, v2')
    a.e('v_lshlrev_b32 v30, 2, v30')
    a.e('v_add_u32 v30, s88, v30')
    a.e('ds_write_b32 v30, v28 offset:4608')
    a.e('v_add_u32 v31, 1, v5')
    a.e('v_and_b32 v32, 1, v31')
    a.e('v_sub_u32 v31, v31, v32')
    a.e('v_lshl_add_u32 v31, v6, 3, v31')
    a.e('v_lshlrev_b32 v31, 1, v31')
    a.e('v_mul_u32_u24 v32, 4160, v32')
    a.e('v_add3_u32 v31, v31, v32, s88')
    VA, VB, ACC = 36, 40, 44
    for j in range(4):
        a.e(f'v_add_u32 v{VA+j}, {4608+1024*j}, v31')
    a.e('v_lshlrev_b32 v32, 5, v5')
    a.e('v_lshlrev_b32 v33, 4, v6')
    a.e('v_sub_u32 v33, v33, v32')
    a.e('v_add_u32 v33, s88, v33')
    a.e(f'v_add_u32 v{VB}, 480, v33')
    a.e('v_add_u32 v7, s88, v4')
    for r in range(32):
        a.e(f'v_mov_b32 v{ACC+r}, 0')
    T = 76
    a.e(f's_waitcnt vmcnt({4+npt})')
    for j in range(4):
        d = KD + 4 * j
        if j == 0:
            a.e(f'v_readfirstlane_b32 s56, v{d}')
        a.e(f'ds_write_b128 v7, v[{d}:{d+3}] offset:{4608+32+1024*j}')
        for q in range(4):
            hi = d + q + 1 if q < 3 else KX + j
            a.e(f'v_alignbit_b32 v{T+4*j+q}, v{hi}, v{d+q}, 16')
        a.e(f'ds_write_b128 v7, v[{T+4*j}:{T+4*j+3}] offset:{4608+4160+32+1024*j}')
    a.e('s_lshl_b32 s56, s56, 16')
    a.e('v_cmp_le_u32 vcc, 7, v2')
    a.e('v_mov_b32 v32, s56')
    a.e('s_nop 0')
    a.e('v_cndmask_b32 v32, v28, v32, vcc')
    a.e(f'ds_write_b32 v30, v32 offset:{4608+4160}')
    FA = [96, 160]; FB = [128, 192]
    def rdA(r, buf):
        L = []
        for mq in range(8):
            o = 128 * (mq & 1) + 16 * r
            f = FA[buf] + 4 * mq
            L.append(f'ds_read2_b32 v[{f}:{f+1}], v{VA+(mq>>1)} offset0:{o} offset1:{o+1}')
            L.append(f'ds_read2_b32 v[{f+2}:{f+3}], v{VA+(mq>>1)} offset0:{o+2} offset1:{o+3}')
        return L
    def rdB(r, buf):
        return [f'ds_read_b128 v[{FB[buf]+4*d}:{FB[buf]+4*d+3}], v{VB} offset:{512*(7-d)+64*r}' for d in range(8)]
    a.e('s_waitcnt lgkmcnt(0)')
    a.e('s_bitcmp1_b32 s85, 0')
    a.e('s_cselect_b32 s56, 0, 16')
    a.e('s_lshl_b32 s89, s89, s56')
    a.e('s_and_b32 s89, s89, 0xffff0000')
    for l in rdA(0, 0): a.e(l)
    a.e('v_and_b32 v34, 31, v2')
    a.e(f'v_lshlrev_b32 v34, {fsh()}, v34')
    a.e(f's_lshl_b32 s56, s82, {5+fsh()}')
    wait_flags(a, 56, 34, 35)
    stamp(a, 3)
    a.e('s_lshl_b32 s56, s82, 19')
    UR = 8
    for i in range(4):
        a.e(f's_add_u32 s57, s56, {(24-8*i)*16384:#x}')
        a.e(f'buffer_load_dwordx4 v[{UR+4*i}:{UR+4*i+3}], v3, s[48:51], s57 offen sc1')
    g1 = G1(a)
    g2 = G2(a)
    g2.front_setup()
    g1.setup_dma()
    for i in range(4):
        a.e(f's_waitcnt vmcnt({3-i})')
        a.e(f'ds_write_b128 v7, v[{UR+4*i}:{UR+4*i+3}] offset:{1024*i}')
    a.e('s_waitcnt lgkmcnt(0)')
    for l in rdB(0, 0): a.e(l)
    stamp(a, 4)
    LK = Lin(a)
    if opt('cpf1', 0): code_pf(a, 'L_kbcode', 'L_g2code', 41, lambda t: LK.v('cp', t))
    g1e = [[(lambda l=l: (LK.v('g1', l) if l.startswith('buffer') else LK.e(l))) for l in grp] for grp in g1.early_dma()]
    def grp(fs): return lambda: [f() for f in fs]
    g1e = [grp(x) for x in g1e]
    fillr = {0: g2.fD(LK, (0, 1)), 1: g1e[:5], 2: g1e[5:10], 3: g2.fM(LK, (0, 1)), 4: g2.fD(LK, (2, 3)), 5: g1e[10:15], 6: g1e[15:20], 7: g2.fM(LK, (2, 3))}
    UE = 8
    for r in range(8):
        buf = r & 1
        if r < 7:
            A_, B_ = rdA(r + 1, buf ^ 1), rdB(r + 1, buf ^ 1)
            nxt = []
            for x in range(8): nxt += [B_[x], A_[2 * x], A_[2 * x + 1]]
        else:
            a.e('v_lshlrev_b32 v32, 5, v5')
            a.e('v_lshl_add_u32 v32, v6, 3, v32')
            a.e(f'v_sub_u32 v34, {4088-3584}, v32')
            a.e('v_add_u32 v34, s88, v34')
            a.e('v_add_u32 v35, s88, v32')
            nxt = [f'ds_read_b64 v[{UE+2*c}:{UE+2*c+1}], v34 offset:{512*(7-c)}' for c in range(8)]
        a.e('s_waitcnt lgkmcnt(0)')
        fl = list(fillr[r]); evr = 36 // len(fl)
        k = 0
        for mq in range(8):
            for d in range(8 - mq):
                c = mq + d
                fa = FA[buf] + 4 * mq; fb = FB[buf] + 4 * d
                a.e(f'v_mfma_f32_16x16x32_bf16 v[{ACC+4*c}:{ACC+4*c+3}], v[{fa}:{fa+3}], v[{fb}:{fb+3}], v[{ACC+4*c}:{ACC+4*c+3}]')
                if k < len(nxt):
                    a.e(nxt[k])
                if fl and k % evr == evr - 1: fl.pop(0)()
                k += 1
        assert not fl, (r, len(fl))
    a.e('s_waitcnt lgkmcnt(0)')
    stamp(a, 5)
    a.e('L_kbcode:')
    a.inject(g2.fD(LK, (4, 5)), 8)
    X = 96
    for c in range(8):
        unpack(a, X + 4 * c + 3, X + 4 * c + 2, UE + 2 * c)
        unpack(a, X + 4 * c + 1, X + 4 * c + 0, UE + 2 * c + 1)
    for c in range(8):
        for r in range(4):
            a.e(f'v_fma_f32 v{X+4*c+r}, v{X+4*c+r}, s89, v{ACC+4*c+r}')
        a.e(f'v_cvt_pk_bf16_f32 v{UE+2*c}, v{X+4*c}, v{X+4*c+1}')
        a.e(f'v_cvt_pk_bf16_f32 v{UE+2*c+1}, v{X+4*c+2}, v{X+4*c+3}')
        a.e(f'ds_write_b64 v35, v[{UE+2*c}:{UE+2*c+1}] offset:{4608+512*c}')
    a.flush_inject()
    LIN[0] = None
    a.e('v_lshlrev_b32 v32, 2, v0')
    a.e(f'v_add_u32 v32, {LDS_KA}, v32')
    a.e('v_lshrrev_b32 v33, 2, v0')
    a.e('v_lshlrev_b32 v33, 14, v33')
    a.e('v_and_b32 v34, 3, v0')
    a.e('v_lshl_add_u32 v33, v34, 4, v33')
    a.e('s_lshl_b32 s56, s86, 6')
    a.e('s_mov_b32 s57, 0x05040100')
    a.e('s_mov_b32 s58, 0x07060302')
    srd(a, 36, P_WS, 4 * MB, WS_Y2)
    a.e('s_waitcnt lgkmcnt(0)')
    a.e('s_barrier')
    Y = 96
    for P in range(4):
        for ch in range(4):
            a.e(f'ds_read_b32 v{Y+4*P+ch}, v32 offset:{ch*KA_REG+4608+1024*P}')
    O = 128
    for P in range(4):
        a.e(f's_waitcnt lgkmcnt({12-4*P})')
        y = Y + 4 * P; o = O + 4 * P
        a.e(f'v_perm_b32 v{o}, v{y+1}, v{y}, s57')
        a.e(f'v_perm_b32 v{o+1}, v{y+3}, v{y+2}, s57')
        a.e(f'v_perm_b32 v{o+2}, v{y+1}, v{y}, s58')
        a.e(f'v_perm_b32 v{o+3}, v{y+3}, v{y+2}, s58')
        a.e(f'buffer_store_dwordx4 v[{o}:{o+3}], v33, s[36:39], s56 offen sc1')
        if P < 3:
            a.e(f's_add_u32 s56, s56, {64*16384:#x}')
    stamp(a, 6)
    XU = [8, 24]; TT = [40, 56]; MM = [72, 74]; RR = [76, 78]; C = 80; YR = [84, 92]; YU = [100, 116]
    for r in range(2):
        for q in range(8):
            unpack(a, XU[r] + 2 * q, XU[r] + 2 * q + 1, XP + 8 * r + q)
    a.e(f'v_mov_b32 v{C}, 0x3a800000')
    a.e(f's_lshl_b32 s87, s2, {f1sh()}')
    a.e(f's_add_u32 s87, s87, {F1}')
    signal(a, 87, 82)
    for f in g2.fM(None, (4, 5))[1:]: f()
    ln2(a, XU, TT, MM, RR, C)
    a.e('v_lshlrev_b32 v5, 7, v2')
    a.e('v_add_u32 v6, 0x2000, v5')
    a.e('s_lshl_b32 s82, s91, 14')
    a.e(f's_lshl_b32 s83, s{S_W}, 4')
    a.e('s_add_u32 s82, s82, s83')
    srd(a, 40, P_WS, 4 * MB, WS_H)
    srd(a, 44, P_WS, 4 * MB, WS_HNF)
    a.e('v_and_b32 v7, 7, v2')
    a.e(f's_lshl_b32 s83, s{S_W}, 1')
    a.e('v_xor_b32 v132, s83, v7')
    a.e('v_lshl_add_u32 v132, v132, 4, v5')
    a.e(f'v_add_u32 v132, {LDS_KA}, v132')
    a.e('v_xor_b32 v133, 16, v132')
    a.e('v_lshrrev_b32 v134, 3, v2')
    a.e('v_xor_b32 v135, v134, v7')
    a.e('v_lshlrev_b32 v135, 4, v135')
    a.e('v_lshl_add_u32 v135, v134, 7, v135')
    a.e(f's_lshl_b32 s83, s{S_W}, 12')
    a.e(f's_add_u32 s83, s83, {LDS_KA}')
    a.e('v_add_u32 v135, s83, v135')
    a.e('v_lshrrev_b32 v136, 5, v2')
    a.e('v_lshlrev_b32 v136, 12, v136')
    a.e('v_bfe_u32 v137, v2, 3, 2')
    a.e('v_lshl_add_u32 v136, v137, 8, v136')
    a.e('v_lshl_add_u32 v136, v7, 4, v136')
    a.e('s_lshr_b32 s84, s91, 3')
    a.e('s_lshl_b32 s84, s84, 17')
    a.e('s_bfe_u32 s85, s91, 0x20001')
    a.e('s_lshl_b32 s85, s85, 10')
    a.e('s_add_u32 s84, s84, s85')
    a.e('s_and_b32 s85, s91, 1')
    a.e('s_lshl_b32 s85, s85, 7')
    a.e('s_add_u32 s84, s84, s85')
    a.e(f's_lshl_b32 s85, s{S_W}, 15')
    a.e('s_add_u32 s84, s84, s85')
    a.e(f's_mov_b32 s85, {F1}')
    a.e('s_waitcnt lgkmcnt(0)')
    stamp(a, 7)
    a.e(f'v_lshlrev_b32 v138, {4 if f1sh() == 2 else f1sh()}, v2')
    wait_flags(a, 85, 138, 128, n=256)
    stamp(a, 8)
    a.e(f's_or_b32 s57, s2, s{S_W}')
    a.e('s_cmp_lg_u32 s57, 0')
    a.e('s_cbranch_scc1 L_clean_skip')
    srd(a, 48, P_DBG, 256)
    a.e('v_mov_b32 v128, 0')
    a.e('s_mov_b64 exec, 1')
    a.e('buffer_store_dword v128, v128, s[48:51], 0 offen sc1')
    a.e('s_mov_b64 exec, -1')
    a.e('L_clean_skip:')
    YL = 84
    a.e(f'buffer_load_dwordx4 v[{YL}:{YL+3}], v5, s[36:39], s82 offen sc1')
    a.e(f'buffer_load_dwordx4 v[{YL+4}:{YL+7}], v5, s[36:39], s82 offen offset:64 sc1')
    a.e(f'buffer_load_dwordx4 v[{YL+8}:{YL+11}], v6, s[36:39], s82 offen sc1')
    a.e(f'buffer_load_dwordx4 v[{YL+12}:{YL+15}], v6, s[36:39], s82 offen offset:64 sc1')
    for cgi in range(4):
        a.e(f's_waitcnt vmcnt({3-cgi})')
        for r in range(2):
            for e in range(2):
                u = YU[r] + 4 * cgi + 2 * e
                unpack(a, u, u + 1, YL + 4 * cgi + 2 * r + e)
        for r in range(2):
            for e in range(2):
                u = YU[r] + 4 * cgi + 2 * e; x = XU[r] + 4 * cgi + 2 * e; t = TT[r] + 4 * cgi + 2 * e
                a.e(f'v_pk_fma_f32 v[{x}:{x+1}], v[{t}:{t+1}], v[{u}:{u+1}], v[{x}:{x+1}]')
    a.inject(g2.fD(None, (6, 7)), 4)
    for r in range(2):
        for q in range(8):
            a.e(f'v_cvt_pk_bf16_f32 v{XP+8*r+q}, v{XU[r]+2*q}, v{XU[r]+2*q+1}')
    for r in range(2):
        for q in range(8):
            unpack(a, XU[r] + 2 * q, XU[r] + 2 * q + 1, XP + 8 * r + q)
    a.flush_inject()
    ln2(a, XU, TT, MM, RR, C)
    for r in range(2):
        for q in range(8):
            a.e(f'v_cvt_pk_bf16_f32 v{YL+8*r+q}, v{TT[r]+2*q}, v{TT[r]+2*q+1}')
        for hh in range(2):
            a.e(f'ds_write_b128 v{132+r}, v[{YL+8*r+4*hh}:{YL+8*r+4*hh+3}] offset:{8192*hh}')
    a.e('s_waitcnt lgkmcnt(0)')
    a.e('s_barrier')
    for i in range(4):
        a.e(f'ds_read_b128 v[{100+4*i}:{103+4*i}], v135 offset:{1024*i}')
    for i in range(4):
        a.e(f's_waitcnt lgkmcnt({3-i})')
        a.e(f'buffer_store_dwordx4 v[{100+4*i}:{103+4*i}], v136, s[44:47], s84 offen sc1')
        if i < 3: a.e('s_add_u32 s84, s84, 8192')
    stamp(a, 9)
    a.e(f's_lshl_b32 s87, s91, {fsh()}')
    a.e(f's_add_u32 s87, s87, {F2}')
    g2.front_save()
    g1.pre_setup()
    signal(a, 87, 4)
    a.e('v_add_u32 v4, s73, v7')
    a.e('v_xor_b32 v5, 32, v4')
    for f in g2.fM(None, (6, 7), base=4)[1:]: f()
    g1.main()
    g1.epilogue(g2)
    g2.main()
    stamp_out(a, NSTAMP)
    a.e('L_end:')
    a.e('s_endpgm')

G1_STG = 32768
class G1:
    TM, NW, DPW, ND = 4, 4, 8, 4
    ACC, WF, TF, DV, VT, VR, VL = 32, 0, 28, 8, 16, 17, 18
    DVE = 240
    def __init__(s, a): s.a = a
    def setup_dma(s):
        a = s.a
        a.e('s_and_b32 s56, s81, 1')
        a.e('s_lshl_b32 s56, s56, 1')
        a.e('s_movk_i32 s57, 4682')
        a.e('s_movk_i32 s58, 7168')
        a.e('v_mov_b32 v76, 0x80000000')
        a.e('v_subrev_u32 v77, 8, v2')
        for src, dst in ((2, 78), (77, 79)):
            a.e(f'v_cmp_gt_u32 vcc, 56, v{src}')
            a.e(f'v_mul_u32_u24 v80, s57, v{src}')
            a.e('v_lshrrev_b32 v80, 16, v80')
            a.e('v_mul_u32_u24 v81, 14, v80')
            a.e(f'v_sub_u32 v81, v{src}, v81')
            a.e('v_add_u32 v81, s56, v81')
            a.e('v_subrev_u32 v82, 14, v81')
            a.e('v_min_u32 v81, v81, v82')
            a.e('v_mul_u32_u24 v80, s58, v80')
            a.e('v_lshl_add_u32 v80, v81, 4, v80')
            a.e(f'v_cndmask_b32 v{dst}, v76, v80, vcc')
        for i in range(8):
            pat = 79 if (i >> 1) & 1 else 78
            c = i * 4 * 7168 - 1024 * (i & 3)
            a.e(f'v_add_u32 v{s.DVE+i}, {c}, v{pat}' if c else f'v_mov_b32 v{s.DVE+i}, v{pat}')
        a.e(f's_and_b32 s56, s{S_W}, 1')
        a.e(f's_lshr_b32 s57, s{S_W}, 1')
        a.e(f's_mul_i32 s97, s56, {8*4*7168}')
        a.e('s_lshl_b32 s98, s57, 14')
        a.e('s_lshl_b32 s56, s56, 13')
        a.e('s_add_u32 s98, s98, s56')
        a.e('s_mul_i32 s56, s81, 224')
        a.e('s_cmp_eq_u32 s57, 0')
        a.e(f's_cselect_b32 s52, s{P_W1}, s{P_W3}')
        a.e(f's_cselect_b32 s53, s{P_W1+1}, s{P_W3+1}')
        srd(a, 52, 52, None, 0, 56)
        a.e('s_sub_u32 s54, 7340032, s56')
    def m0set(s, i): return f's_add_u32 m0, s98, {4096*(i//4)}' if i else 's_mov_b32 m0, s98'
    def dma(s, i, base): return f'buffer_load_dwordx4 v{base+i}, s[52:55], s97 offen offset:{1024*(i&3)} lds'
    def dma_adv(s): return ['s_add_u32 s97, s97, 458752', f's_add_u32 s98, s98, {G1_STG}', 's_and_b32 s98, s98, 0x1ffff']
    def early_dma(s):
        out = []
        for st in range(2):
            for i in range(8):
                if i % 4 == 0: out.append([s.m0set(i)])
                out.append([s.dma(i, s.DVE)] + (s.dma_adv() if i == 7 else []))
        return out
    def tok(s, k, tm):
        f = s.TF + 4 * (4 * (k % s.ND) + tm)
        return f'buffer_load_dwordx4 a[{f}:{f+3}], v{s.VT}, s[32:35], s82 offen offset:{tm*1024}' + (' sc1' if opt('t1sc', 1) else '')
    def rd(s, ph, t):
        j, mat = (ph & 3) >> 1, ph & 1
        return [f'ds_read_b64_tr_b16 a[{s.WF+4*t+2*h}:{s.WF+4*t+2*h+1}], v{s.VR} offset:{8192*j+1024*h+32*t+16384*mat}' for h in range(2)]
    def pre_setup(s):
        a = s.a
        for i in range(8): a.e(f'v_mov_b32 v{s.DV+i}, v{s.DVE+i}')
        for i in range(16): a.e(f'v_accvgpr_write_b32 a{92+i}, v{224+i}')
        a.e(f'v_lshlrev_b32 v{s.VT}, 4, v2')
        a.e('v_lshrrev_b32 v4, 4, v2')
        a.e('v_lshlrev_b32 v4, 11, v4')
        a.e('v_bfe_u32 v5, v2, 4, 1')
        a.e('v_lshl_add_u32 v4, v5, 7, v4')
        a.e('v_bfe_u32 v6, v2, 2, 2')
        a.e('v_mul_u32_u24 v5, 224, v6')
        a.e('v_and_b32 v6, 3, v2')
        a.e('v_lshl_add_u32 v5, v6, 3, v5')
        a.e(f'v_add_u32 v{s.VL}, v4, v5')
        a.e(f'v_mov_b32 v{s.VR}, v{s.VL}')
        a.e('v_and_b32 v19, 31, v2')
        a.e(f'v_lshlrev_b32 v19, {fsh()}, v19')
        a.e('s_lshl_b32 s56, s80, 2')
        a.e(f's_add_u32 s56, s56, s{S_W}')
        a.e('s_lshl_b32 s57, s56, 17')
        srd(a, 32, P_WS, 131072, WS_HNF, 57)
        a.e(f's_mul_i32 s57, s56, {4*114688}')
        srd(a, 36, P_WS, 4 * 114688, WS_HF, 57)
        a.e('s_and_b32 s58, s81, 1')
        a.e('s_mul_i32 s85, s81, 7')
        a.e('s_add_u32 s85, s85, s58')
        a.e('s_lshl_b32 s85, s85, 9')
        a.e('s_movk_i32 s86, 3072')
        a.e('s_cmp_eq_u32 s58, 0')
        a.e('s_cselect_b32 s86, s86, 0xfffffc08')
        a.e('s_add_u32 s86, s86, s85')
        for r in range(224):
            a.e(f'v_mov_b32 v{s.ACC+r}, 0')
    def kof(s, s_, P): return 2 * s_ + (-1, 0, 0, 1)[P]
    def ev_ins(s, e):
        L = []
        if e[0] == 'D':
            if e[2] % 4 == 0: L.append(s.m0set(e[2]))
            L.append(s.dma(e[2], s.DV))
            if e[2] == 7: L += s.dma_adv()
        elif e[0] == 'Z':
            fl = ['', ' sc1'][opt('ps', 0) - 1]
            u = e[2]
            if u < 3: L = [f'buffer_store_dwordx4 v[24:27], v{s.VT}, s[36:39], s88 offen offset:{1024*u}{fl}']
            else: L = [f'buffer_store_dwordx2 v[24:25], v{s.VT}, s[36:39], s89 offen{fl}', 's_add_u32 s88, s88, 114688', 's_add_u32 s89, s89, 114688']
        elif e[0] == 'Q':
            L = [f'buffer_store_dwordx4 v[24:27], v{s.VT}, s[44:47], s99 offen', 's_add_u32 s99, s99, 1024']
        elif e[0] == 'Y':
            L = ['buffer_load_dword v22, v21, s[44:47], s88 offen', 's_add_u32 s88, s88, s99', 's_cmp_eq_u32 s84, 3', 's_cselect_b32 s88, s89, s88', 's_cselect_b32 s99, 4096, s99',
                 's_cmp_eq_u32 s84, 5', 's_cselect_b32 s88, 0x7000000, s88']
        else:
            L.append(s.tok(e[1], e[2]))
            if e[2] == 3: L.append('s_add_u32 s82, s82, 4096')
        return L
    def main(s):
        a = s.a
        S = s.S = Sched()
        for s_ in range(-4, 8):
            for P in range(4):
                S.mark((s_, P))
                k = s.kof(s_, P) + s.ND - 1
                t0 = 2 if P in (0, 2) else 0
                S.add([('D', s_ + 2, 2 * P), ('T', k, t0), ('D', s_ + 2, 2 * P + 1), ('T', k, t0 + 1)])
                if opt('pt') & 8 and s_ % 2 == 0 and P == 1: S.add([('Y', s_, 0)])
                if opt('psx', 0) and P == 2 and s_ & 1: S.add([('Q', s_, 0)])
                if opt('ps', 0) and P in (1, 3): S.add([('Z', s_, 2 * (s_ & 1) + (P >> 1))])
        vm_bar = min(S.younger(('D', 4), (4, 0)), S.younger(('D', 5), (5, 0)))
        vm_p1 = min(S.younger(('T', 8), (4, 1)), S.younger(('T', 10), (5, 1)))
        vm_p3 = min(S.younger(('T', 9), (4, 3)), S.younger(('T', 11), (5, 3)))
        if opt('pt') & 8:
            srd(a, 44, P_WS, 24 * MB, WS_HF)
            a.e('v_and_b32 v21, 31, v2')
            a.e('v_lshlrev_b32 v21, 7, v21')
            a.e('s_lshl_b32 s56, s80, 2')
            a.e(f's_add_u32 s56, s56, s{S_W}')
            a.e(f's_mul_i32 s88, s56, {4*114688}')
            a.e('s_mul_i32 s57, s81, 7')
            a.e('s_lshr_b32 s57, s57, 1')
            a.e('s_lshl_b32 s57, s57, 10')
            a.e('s_add_u32 s88, s88, s57')
            a.e('s_lshl_b32 s89, s2, 2')
            a.e(f's_add_u32 s89, s89, s{S_W}')
            a.e('s_lshl_b32 s89, s89, 13')
            a.e(f's_add_u32 s89, s89, {16*MB}')
            a.e('s_mov_b32 s99, 114688')
        a.e(f's_lshl_b32 s56, s80, {5+fsh()}')
        a.e(f's_add_u32 s56, s56, {F2}')
        if opt('psx', 0):
            srd(a, 44, P_WS, 8 * MB, WS_XP)
            a.e('s_lshl_b32 s99, s2, 2')
            a.e(f's_add_u32 s99, s99, s{S_W}')
            a.e('s_lshl_b32 s99, s99, 13')
        if opt('ps', 0):
            a.e('s_mov_b32 s88, s85')
            a.e('s_mov_b32 s89, s86')
            for r in range(4): a.e(f'v_mov_b32 v{24+r}, 0')
        a.e('s_mov_b32 s82, 0')
        a.e('s_mov_b32 s83, 0')
        a.e('s_mov_b32 s84, 0')
        for t in range(6):
            for l in s.rd(0, t): a.e(l)
        stamp(a, 10)
        a.e('s_waitcnt lgkmcnt(12)')
        wait_flags(a, 56, 19, 20)
        stamp(a, 11)
        pro = [e for e in S.ev[:S.marks[(0, 0)]] if e[1] >= 0 and e[0] == 'T'] + [('X', i, 0) for i in range(4)]
        for e in pro + S.ev[S.marks[(0, 0)]:S.marks[(0, 1)]]:
            if e[0] == 'X':
                a.e(f'buffer_store_dwordx4 a[{92+4*e[1]}:{95+4*e[1]}], v{s.VT}, s[40:43], s96 offen offset:{1024*e[1]} sc1')
                continue
            for l in s.ev_ins(e):
                a.e(l)
                if 'm0' in l: a.e('s_nop 0')
        act = pro + S.ev[S.marks[(0, 0)]:]
        off = len(pro) - S.marks[(0, 0)]
        s.startup = {}
        need = -1
        for s_ in range(0, 6):
            for P, tags, N in ((0, [('D', s_)], vm_bar), (1, [('T', 2 * s_)], vm_p1), (3, [('T', 2 * s_ + 1)], vm_p3)):
                if (s_, P) == (0, 0): continue
                site = S.marks[(s_, P)] + off
                for tg in tags:
                    idx = [i for i, e in enumerate(act) if e[:2] == tg]
                    if not idx: continue
                    if site - max(idx) - 1 < N: need = max(need, max(idx))
        if need >= 0:
            a.e(f's_waitcnt vmcnt({S.marks[(0, 1)] + off - need - 1})')
        a.e('s_branch L_g1_P1')
        s.snake = 0
        a.e('L_g1_loop:')
        for s_ in (4, 5):
            a.e(f's_add_u32 s83, s83, {G1_STG}')
            a.e('s_and_b32 s83, s83, 0x1ffff')
            a.e(f's_waitcnt vmcnt({vm_bar})')
            a.e('s_barrier')
            s.phase(s_, 0)
            if s_ == 4: a.e('L_g1_P1:')
            a.e(f's_waitcnt vmcnt({vm_p1})')
            s.phase(s_, 1)
            s.phase(s_, 2)
            a.e(f's_waitcnt vmcnt({vm_p3})')
            s.phase(s_, 3)
        a.e('s_add_u32 s84, s84, 1')
        a.e('s_cmp_lt_u32 s84, 8')
        a.e('s_cbranch_scc1 L_g1_loop')
        s.phase(6, 0, last=True)
        stamp(a, 12)
    def phase(s, s_, P, last=False):
        a = s.a; S = s.S
        kbuf = s.kof(s_, P) % s.ND
        mat = (P + 1) & 1
        items = []
        if not last:
            nxt = S.marks[(s_, P + 1)] if P < 3 else S.marks[(s_ + 1, 0)]
            items = [s.ev_ins(e) for e in S.ev[S.marks[(s_, P)]:nxt]]
        slots = [[] for _ in range(7)]
        for p_, it in zip([1, 2, 4, 5, 6], items): slots[p_] = it
        if P == 0 and not last:
            slots[0] = [f'v_add_u32 v{s.VR}, s83, v{s.VL}']
        for t in range(7):
            a.e(f's_waitcnt lgkmcnt({10 if not (last and t) else 12-2*t})')
            R = s.rd(P - 1, 6) if t == 0 else ([] if last else s.rd(P, t - 1))
            X = list(slots[t])
            pre = [x for x in X if 'm0' in x]
            X = [x for x in X if 'm0' not in x]
            gaps = [[] for _ in range(4)]
            if R: gaps[0] = pre + [R[0]]; gaps[1] = [R[1]]
            gaps[2] = X[:1]; gaps[3] = X[1:]
            order = [0, 1, 2, 3]
            if s.snake & 1: order.reverse()
            s.snake += 1
            for n, tm in enumerate(order):
                c = s.ACC + 4 * ((mat * 7 + t) * 4 + tm)
                tf = s.TF + 4 * (4 * kbuf + tm)
                if not opt('g1x') & 1: a.e(f'v_mfma_f32_16x16x32_bf16 v[{c}:{c+3}], a[{s.WF+4*t}:{s.WF+4*t+3}], a[{tf}:{tf+3}], v[{c}:{c+3}]')
                for x in gaps[n]:
                    if opt('g1x') & 2 and x.startswith('ds_'): continue
                    if opt('g1x') & 4 and x.startswith('buffer'): continue
                    a.e(x)
    def epilogue(s, g2):
        a = s.a
        L = Lin(a)
        a.e('s_mov_b32 s58, 0xbfb8aa3b')
        a.e('s_mov_b32 s59, 0xbfb8aa3b')
        g2.early(L)
        T = 8
        k = 0
        for tm in range(4):
            for u in range(4):
                O = (20, 24)[k & 1]
                fill = g2.epi_fill(k)
                def F(n=1):
                    for _ in range(n):
                        if fill: fill.pop(0)()
                tiles = [2 * u, 2 * u + 1] if u < 3 else [6]
                gs = []; us = []
                for t in tiles:
                    gs += [s.ACC + 4 * (t * 4 + tm), s.ACC + 4 * (t * 4 + tm) + 2]
                    us += [s.ACC + 4 * ((7 + t) * 4 + tm), s.ACC + 4 * ((7 + t) * 4 + tm) + 2]
                n = len(gs)
                nins = 9 * n
                cnt = [0]; ev_ = max(1, nins // (len(fill) + 1))
                def V(t):
                    a.e(t); cnt[0] += 1
                    if cnt[0] % ev_ == 0: F(1)
                for q in range(n): V(f'v_pk_mul_f32 v[{T+2*q}:{T+2*q+1}], v[{gs[q]}:{gs[q]+1}], s[58:59]')
                for q in range(2 * n): V(f'v_exp_f32 v{T+q}, v{T+q}')
                for q in range(n): V(f'v_pk_add_f32 v[{T+2*q}:{T+2*q+1}], v[{T+2*q}:{T+2*q+1}], 1.0 op_sel_hi:[1,0]')
                for q in range(2 * n): V(f'v_rcp_f32 v{T+q}, v{T+q}')
                for q in range(n): V(f'v_pk_mul_f32 v[{gs[q]}:{gs[q]+1}], v[{gs[q]}:{gs[q]+1}], v[{us[q]}:{us[q]+1}]')
                for q in range(n): V(f'v_pk_mul_f32 v[{T+2*q}:{T+2*q+1}], v[{T+2*q}:{T+2*q+1}], v[{gs[q]}:{gs[q]+1}]')
                for q in range(n): V(f'v_cvt_pk_bf16_f32 v{O+q}, v{T+2*q}, v{T+2*q+1}')
                if u < 3:
                    L.v('st', f'buffer_store_dwordx4 v[{O}:{O+3}], v{s.VT}, s[36:39], s85 offen offset:{1024*u}' + hfl())
                else:
                    L.v('st', f'buffer_store_dwordx2 v[{O}:{O+1}], v{s.VT}, s[36:39], s86 offen' + hfl())
                F(len(fill))
                k += 1
            if tm < 3:
                a.e('s_add_u32 s85, s85, 114688')
                a.e('s_add_u32 s86, s86, 114688')
        a.e(f's_lshl_b32 s87, s91, {fsh()}')
        a.e(f's_add_u32 s87, s87, {F3}')
        stamp(a, 13)
        a.e('L_g2code:')
        g2.post_epilogue()
        signal(a, 87, 5, waitfn=lambda: L.wait(vm=('st',)), wb=(opt('hfl') == 4))
        stamp(a, 18)

class G2:
    ACC, TF, DV, VT, RJ, TR, V1, VO, VF = 32, 96, 28, 16, 3, 8, 12, 13, 14
    REG = 40960
    def __init__(s, a): s.a = a
    def wreg(s, k, j):
        if k < 16: return 'a', 128 + 8 * k + 4 * j
        if k < 32: return 'a', 8 * (k - 16) + 4 * j
        if k < 48: return 'v', 128 + 8 * (k - 32) + 4 * j
        return 'a', 128 + 8 * (k - 48) + 4 * j
    def front_setup(s):
        a = s.a
        a.e('s_and_b32 s76, s2, 1')
        a.e('s_lshr_b32 s56, s2, 3')
        if opt('g2map', 1):
            a.e('s_bfe_u32 s74, s2, 0x10001')
            a.e('s_lshl_b32 s74, s74, 3')
            a.e('s_and_b32 s57, s56, 7')
            a.e('s_add_u32 s74, s74, s57')
            a.e('s_bfe_u32 s75, s2, 0x10002')
            a.e('s_lshl_b32 s75, s75, 2')
            a.e('s_lshr_b32 s57, s56, 3')
            a.e('s_add_u32 s75, s75, s57')
        else:
            a.e('s_bfe_u32 s74, s2, 0x20001')
            a.e('s_lshl_b32 s74, s74, 2')
            a.e('s_and_b32 s57, s56, 3')
            a.e('s_add_u32 s74, s74, s57')
            a.e('s_lshr_b32 s75, s56, 2')
        a.e('v_lshrrev_b32 v252, 2, v2')
        a.e('v_lshlrev_b32 v253, 11, v252')
        a.e('v_lshrrev_b32 v254, 3, v2')
        a.e('v_xor_b32 v254, v254, v2')
        a.e('v_and_b32 v254, 2, v254')
        a.e('v_and_or_b32 v254, v2, 1, v254')
        a.e('v_lshl_add_u32 v248, v254, 4, v253')
        for i in range(1, 4):
            a.e(f'v_add_u32 v{248+i}, {i*(32768-1024)}, v248')
        a.e('s_mul_i32 s56, s76, 3670016')
        a.e('s_lshl_b32 s57, s75, 8')
        a.e('s_add_u32 s56, s56, s57')
        a.e(f's_lshl_b32 s57, s{S_W}, 6')
        a.e('s_add_u32 s56, s56, s57')
        srd(a, 68, P_W2, None, 0, 56)
        a.e('s_sub_u32 s70, 7340032, s56')
        a.e('s_mov_b32 s72, 0')
        a.e('v_lshlrev_b32 v252, 6, v252')
        a.e('v_bfe_u32 v253, v2, 4, 1')
        a.e('v_lshl_add_u32 v252, v253, 5, v252')
        a.e('v_and_b32 v253, 3, v2')
        a.e('v_lshl_add_u32 v252, v253, 3, v252')
        a.e(f's_lshl_b32 s73, s{S_W}, 13')
        a.e('s_add_u32 s73, s73, 65536')
        a.e('v_add_u32 v253, s73, v252')
        a.e('v_xor_b32 v254, 32, v253')
    def fD(s, L, cs):
        a = s.a
        out = []
        for n, c in enumerate(cs):
            out.append(lambda n=n: a.e(f's_add_u32 m0, s73, {4096*n}'))
            for i in range(4):
                def f(i=i, c=c):
                    t = f'buffer_load_dwordx4 v{248+i}, s[68:71], s72 offen offset:{1024*i} lds'
                    if L: L.v(('W', c), t)
                    else: a.e(t)
                    if i == 3: a.e('s_add_u32 s72, s72, 131072')
                out.append(f)
        return out
    def fM(s, L, cs, base=253):
        a = s.a
        out = [lambda: L.wait(vm=(('W', cs[-1]),))]
        for n, c in enumerate(cs):
            for kk in range(2):
                for j in range(2):
                    for h in range(2):
                        r, q = s.wreg(2 * c + kk, j)
                        out.append(lambda r=r, q=q, h=h, j=j, n=n, kk=kk: a.e(f'ds_read_b64_tr_b16 {r}[{q+2*h}:{q+2*h+1}], v{base+j} offset:{4096*n+2048*kk+1024*h}'))
        return out
    def front_save(s):
        a = s.a
        for i in range(4): a.e(f'v_mov_b32 v{s.DV+i}, v{248+i}')
        a.e('v_mov_b32 v7, v252')
    def early(s, L):
        a = s.a; s.L = L
        a.e('s_mov_b32 s80, s74')
        a.e('s_mov_b32 s81, s75')
        a.e('s_mov_b32 s82, s76')
        a.e(f's_mul_i32 s98, s{S_W}, {s.REG}')
        a.e(f'v_add_u32 v{s.RJ}, s98, v7')
        a.e(f'v_xor_b32 v{s.RJ+1}, 32, v{s.RJ}')
        a.e('s_waitcnt vmcnt(0)')
        a.e('s_barrier')
        if opt('cpf2', 0): code_pf(a, 'L_g2code', 'L_end', 17, lambda t: L.v('cp', t))
        s.cell = {}
        s.free = list(range(10))
    def D(s, c):
        L = s.L
        def first():
            s.cell[c] = s.free.pop(0)
            L.e(f's_add_u32 m0, s98, {4096*s.cell[c]}')
        out = [first]
        for i in range(4):
            out.append(lambda i=i: L.v(('W', c), f'buffer_load_dwordx4 v{s.DV+i}, s[68:71], s72 offen offset:{1024*i} lds'))
        out.append(lambda: L.e('s_add_u32 s72, s72, 131072'))
        return out
    def M(s, c):
        L = s.L
        out = []
        for kk in range(2):
            for j in range(2):
                for h in range(2):
                    def f(kk=kk, j=j, h=h):
                        r, n = s.wreg(2 * c + kk, j)
                        L.l(('M', c), f'ds_read_b64_tr_b16 {r}[{n+2*h}:{n+2*h+1}], v{s.RJ+j} offset:{4096*s.cell[c]+2048*kk+1024*h}')
                    out.append(f)
        return out
    def Wv(s, c): return [lambda: s.L.wait(vm=(('W', c),))]
    def Fr(s, cs):
        def f():
            s.L.wait(lg0=True)
            for c in cs: s.free.append(s.cell[c])
        return [f]
    def epi_fill(s, k):
        D, M, Wv, Fr = s.D, s.M, s.Wv, s.Fr
        def cat(*xs): return [y for x in xs for y in x]
        if k == 0: s.A = cat(*[D(c) for c in range(8, 18)])
        n = 5 if k % 4 != 3 else 2
        out, s.A = s.A[:n], s.A[n:]
        if k == 15: out += s.A
        return out
    def post_epilogue(s):
        a = s.a; L = s.L
        a.e(f'v_mov_b32 v{s.TR}, v{s.VT}')
        for q in range(1, 4):
            a.e(f'v_add_u32 v{s.TR+q}, {q*s.REG}, v{s.VT}')
        a.e(f'v_add_u32 v{s.V1}, {114688-2048}, v{s.VT}')
        for r in range(64):
            a.e(f'v_mov_b32 v{s.ACC+r}, 0')
        a.e('s_lshl_b32 s56, s80, 3')
        a.e(f's_lshl_b32 s57, s{S_W}, 1')
        a.e('s_lshl_b32 s58, s82, 2')
        a.e('s_xor_b32 s57, s57, s58')
        a.e('s_add_u32 s56, s56, s57')
        a.e('s_mul_i32 s57, s56, 114688')
        a.e('s_mul_i32 s58, s82, 57344')
        a.e('s_add_u32 s57, s57, s58')
        srd(a, 32, P_WS, 114688 + 57344, WS_HF, 57)
        a.e('v_and_b32 v5, 15, v2')
        a.e('v_lshlrev_b32 v5, 11, v5')
        a.e('v_lshrrev_b32 v6, 4, v2')
        a.e(f'v_lshl_add_u32 v{s.VO}, v6, 3, v5')
        a.e('s_lshl_b32 s85, s80, 18')
        a.e('s_lshl_b32 s57, s82, 17')
        a.e('s_add_u32 s85, s85, s57')
        a.e('s_lshl_b32 s57, s81, 8')
        a.e('s_add_u32 s85, s85, s57')
        a.e(f's_lshl_b32 s57, s{S_W}, 6')
        a.e('s_add_u32 s85, s85, s57')
        a.e(f'v_and_b32 v{s.VF}, 31, v2')
        a.e(f'v_lshlrev_b32 v{s.VF}, {fsh()}, v{s.VF}')
    def main(s):
        a = s.a; L = s.L
        a.e('s_lshr_b32 s56, s80, 1')
        a.e(f's_lshl_b32 s56, s56, {5+fsh()}')
        a.e(f's_add_u32 s56, s56, {F3}')
        srd(a, 44, P_WS, 4 * MB, WS_H)
        a.e('s_mov_b32 s84, 0')
        L.wait(vm0=True)
        for c in range(8, 18):
            for f in s.M(c): f()
        for f in s.Fr(range(8, 18)): f()
        wait_flags(a, 56, s.VF, 20)
        stamp(a, 14)
        NS = 28
        slot = {}
        def TD(st):
            slot[st] = s.free.pop(0)
            out = [lambda: L.e(f's_add_u32 m0, s98, {4096*slot[st]}')]
            for i in range(4):
                v = s.VT if i < 2 else s.V1
                out.append(lambda i=i, v=v: L.v(('T', st), f'buffer_load_dwordx4 v{v}, s[32:35], s84 offen offset:{1024*i} sc1 lds'))
            out.append(lambda: L.e('s_add_u32 s84, s84, 2048'))
            return out
        def RD(k, tm):
            f = s.TF + 4 * tm
            L.l(('R', k, tm), f'ds_read_b128 v[{f}:{f+3}], v{s.TR+(tm>>1)} offset:{4096*slot[k>>1]+2048*(tm&1)+1024*(k&1)}')
        nxt = 0
        while len(s.free) > opt('wc', 2):
            fs = TD(nxt); fs[0](); a.e('s_nop 0')
            for f in fs[1:]: f()
            nxt += 1
        wfree, s.free = s.free, []
        L.wait(vm=(('T', 0),))
        a.e('s_barrier')
        for tm in range(7): RD(0, tm)
        todo = list(range(18, 28)); fly = []; pend = []
        HR = 128
        for k in range(56):
            st = k >> 1
            fill = []
            if k & 1 and st + 1 < NS:
                L.wait(vm=(('T', st + 1),))
                a.e('s_barrier')
                if st >= 1: s.free.append(slot[st - 1])
            if s.free and nxt < NS and k & 1:
                fill += TD(nxt); nxt += 1
            if not k & 1:
                if fly and k >= fly[0][1] + opt('wlat', 6):
                    c = fly.pop(0)[0]
                    assert c < 24 or k >= 2 * (c - 24) + 2
                    assert k + 1 < 2 * c
                    fill += s.Wv(c) + s.M(c)
                    pend.append(c)
                if todo and wfree:
                    c = todo.pop(0)
                    keep, s.free = s.free, [wfree.pop(0)]
                    fs = s.D(c); fs[0].pre = True
                    s.cell[c] = s.free[0]; s.free = keep
                    fill += [lambda c=c: L.e(f's_add_u32 m0, s98, {4096*s.cell[c]}')] + fs[1:]
                    fly.append((c, k))
            if k == 50:
                for tm in range(4):
                    for j in range(2):
                        def f(tm=tm, j=j):
                            if j == 0 and tm: L.e(f's_add_u32 s86, s85, {32768*tm}')
                            r = HR + 4 * tm + 2 * j
                            L.v('h', f'buffer_load_dwordx2 v[{r}:{r+1}], v{s.VO}, s[44:47], s{86 if tm else 85} offen offset:{32*j} sc1')
                        fill.append(f)
            per = -(-(len(fill) + 1) // 8)
            for tm in range(8):
                need = [('R', k, tm)]
                if tm == 0 and k >= 36 and not k & 1: need.append(('M', k >> 1))
                L.wait(lg=need)
                order = [0, 1] if tm % 2 == 0 else [1, 0]
                for n, j in enumerate(order):
                    r, w = s.wreg(k, j)
                    c = s.ACC + 4 * (2 * tm + j)
                    tf = s.TF + 4 * tm
                    if not opt('g2x') & 1:
                        a.e(f'v_mfma_f32_16x16x32_bf16 v[{c}:{c+3}], {r}[{w}:{w+3}], v[{tf}:{tf+3}], v[{c}:{c+3}]')
                    if n == 0:
                        if tm == 0: RD(k, 7)
                        elif k + 1 < 56: RD(k + 1, tm - 1)
                    else:
                        for _ in range(per):
                            if fill:
                                fill.pop(0)()
                                if 'm0' in a.lines[-1]: break
            while fill:
                if 'm0' in a.lines[-1]: a.e('s_nop 0')
                fill.pop(0)()
            for c in list(pend):
                if not any(x == ('M', c) for x in L.lg):
                    pend.remove(c)
                    (wfree if todo else s.free).append(s.cell[c])
        assert not todo and not fly and not pend and nxt == NS
        stamp(a, 15)
        a.e('s_lshl_b32 s56, s2, 2')
        a.e(f's_add_u32 s56, s56, s{S_W}')
        a.e('s_lshl_b32 s57, s56, 13')
        a.e('s_xor_b32 s58, s57, 0x8000')
        a.e('s_lshl_b32 s56, s56, 6')
        a.e(f's_add_u32 s56, s56, {F4}')
        a.e('s_xor_b32 s59, s56, 0x100')
        srd(a, 40, P_WS, 8 * MB, WS_XP)
        a.e('s_add_u32 s87, s57, 4096')
        for q in range(8):
            c = s.ACC + 32 + 4 * q
            a.e(f'buffer_store_dwordx4 v[{c}:{c+3}], v{s.VT}, s[40:43], s{57 if q < 4 else 87} offen offset:{1024*(q&3)} sc1')
        srd(a, 48, P_OUT, 4 * MB)
        a.e('v_mov_b32 v20, 0')
        a.e(f'v_mov_b32 v21, s{S_NONCE}')
        H = 160
        a.e('s_waitcnt vmcnt(8)')
        for q in range(16):
            unpack(a, H + 2 * q, H + 2 * q + 1, HR + q)
        a.e('s_waitcnt vmcnt(0)')
        stamp(a, 16)
        a.e('s_mov_b64 exec, 1')
        a.e(f'buffer_store_dword v21, v20, s[{S_FLG}:{S_FLG+3}], s56 offen sc1')
        a.e('s_mov_b64 exec, -1')
        wait_flags(a, 59, 20, 22, solo=0)
        stamp(a, 17)
        a.e('s_add_u32 s87, s58, 4096')
        P1 = 96
        for q in range(8):
            a.e(f'buffer_load_dwordx4 v[{P1+4*q}:{P1+4*q+3}], v{s.VT}, s[40:43], s{58 if q < 4 else 87} offen offset:{1024*(q&3)} sc1')
        for q in range(8):
            tm, j = q >> 1, q & 1
            if j == 0 and tm: a.e(f's_add_u32 s85, s85, 32768')
            a.e('s_waitcnt vmcnt(7)')
            c = s.ACC + 4 * q
            for e in range(2):
                x = c + 2 * e; y = P1 + 4 * q + 2 * e; h = H + 4 * q + 2 * e
                a.e(f'v_pk_add_f32 v[{x}:{x+1}], v[{x}:{x+1}], v[{y}:{y+1}]')
                a.e(f'v_cvt_pk_bf16_f32 v{y}, v{x}, v{x+1}')
                unpack(a, x, x + 1, y)
                a.e(f'v_pk_add_f32 v[{x}:{x+1}], v[{x}:{x+1}], v[{h}:{h+1}]')
                a.e(f'v_cvt_pk_bf16_f32 v{128+2*q+e}, v{x}, v{x+1}')
            a.e(f'buffer_store_dwordx2 v[{128+2*q}:{128+2*q+1}], v{s.VO}, s[48:51], s85 offen offset:{32*j}')
        LIN[0] = None

def gen_dg(a):
    d = opt('dg'); F, ia, ib = d // 10000, d // 100 % 100, d % 100
    a.raw('.globl dg_kernel\n.p2align 8\n.type dg_kernel,@function\ndg_kernel:')
    a.e('s_load_dwordx2 s[10:11], s[0:1], 96')
    a.e('s_memrealtime s[12:13]')
    a.e('s_waitcnt lgkmcnt(0)')
    a.e(f's_add_u32 s10, s10, {STAMP_BASE + opt("dgw", 0) * 128:#x}')
    a.e('s_addc_u32 s11, s11, 0')
    a.e(f's_load_dword s4, s[10:11], {4*ia}')
    a.e(f's_load_dword s5, s[10:11], {4*ib}')
    a.e('s_waitcnt lgkmcnt(0)')
    a.e('s_sub_u32 s4, s5, s4')
    a.e('s_min_u32 s4, s4, 10000')
    a.e(f's_mul_i32 s4, s4, {F}')
    a.e('L_dg:')
    a.e('s_memrealtime s[14:15]')
    a.e('s_waitcnt lgkmcnt(0)')
    a.e('s_sub_u32 s5, s14, s12')
    a.e('s_cmp_lt_u32 s5, s4')
    a.e('s_cbranch_scc1 L_dg')
    a.e('s_endpgm')

def build():
    a = Asm()
    hdr = open('cdna_kernels/' + NAME + '.s.ref').read().split('\n')
    cm = [l for l in hdr if l.startswith(';') and '@launch' not in l and 'Override launch' not in l and 'grid=ceil' not in l]
    out = '\n'.join(cm) + '\n'
    if opt('aslist') or opt('dg'):
        out += f'; @launch kernel={KNAME} grid=(256,1,1) block=(256,1,1) lds=163840\n'
        if opt('dg'): out += '; @launch kernel=dg_kernel grid=(1,1,1) block=(64,1,1) lds=0\n'
    else:
        out += '; @launch grid=(256,1,1) block=(256,1,1) lds=163840\n'
    a.raw('.amdgcn_target "amdgcn-amd-amdhsa--gfx950"')
    a.raw('.text')
    gen(a)
    if opt('dg'): gen_dg(a)
    body = a.text()
    errs = check_hazards(body)
    errs += check_waits(body, KNAME, loop_iters=2, take_fwd=('L_nonce_ok', 'L_nonce_skip', 'L_clean_skip') + tuple(f'L_sig{i}' for i in range(20)) + tuple(f'L_poll{i}x' for i in range(20)))
    errs += check_waits(body, KNAME, loop_iters=2, take_fwd=('L_nonce_ok',) + (() if opt('solo', 1) else tuple(f'L_poll{i}x' for i in range(20))))
    for e in errs[:8]: print(e, file=sys.stderr)
    na = 256
    out += body + f'''.section .rodata,"a"
.p2align 6
.amdhsa_kernel {KNAME}
  .amdhsa_next_free_vgpr {256+na}
  .amdhsa_next_free_sgpr 102
  .amdhsa_accum_offset 256
  .amdhsa_group_segment_fixed_size 0
  .amdhsa_kernarg_size 104
  .amdhsa_user_sgpr_count 2
  .amdhsa_user_sgpr_kernarg_segment_ptr 1
  .amdhsa_system_sgpr_workgroup_id_x 1
  .amdhsa_float_denorm_mode_32 3
.end_amdhsa_kernel
'''
    if opt('dg'):
        out += '''.p2align 6
.amdhsa_kernel dg_kernel
  .amdhsa_next_free_vgpr 8
  .amdhsa_next_free_sgpr 32
  .amdhsa_accum_offset 8
  .amdhsa_group_segment_fixed_size 0
  .amdhsa_kernarg_size 104
  .amdhsa_user_sgpr_count 2
  .amdhsa_user_sgpr_kernarg_segment_ptr 1
  .amdhsa_system_sgpr_workgroup_id_x 1
.end_amdhsa_kernel
'''
    return out, errs

if __name__ == '__main__':
    outp = sys.argv[1]
    for kv in sys.argv[2:]:
        k, v = kv.split('=')
        OPT[k] = int(v)
    t, errs = build()
    open(outp, 'w').write(t)
    print('written', outp, len(t), 'bytes;', len(errs), 'checker errors')
```

```python
import sys, os
from asmlib import *

NAME = 'sequential_preLN__ssm_conv_h3__glu_gated_swiglu__prompt'
KNAME = NAME + '_kernel'
MB = 1 << 20
WS0 = int(os.environ.get('WS0', '0')) * MB
WS_UB, WS_Y2, WS_H, WS_HNF, WS_HF, WS_XP, WS_FLG = [WS0 + x * MB for x in (0, 4, 8, 12, 16, 32, 40)]
STAMP_BASE = 64 * MB
OPT = {}
def opt(k, d=0): return OPT.get(k, d)

P_Q, P_K, P_V, P_SH, P_SSMK, P_D, P_X, P_W1, P_W3, P_W2, P_OUT, P_DBG, P_WS = [4 + 2 * i for i in range(13)]
S_W, S_NONCE, S_MASK = 30, 31, 90
S_FLG = 92
F0, F1, F2, F3, F4 = 0, 32768, 65536, 98304, 131072
FLG_SIZE = 262144
LDS_KA = 98304
KA_REG = 13056
NSTAMP = 20
AST = 128

def srd(a, d, p, size, add=0, addreg=None):
    if add or addreg is not None:
        if add:
            a.e(f's_add_u32 s{d}, s{p}, {add:#x}')
            a.e(f's_addc_u32 s{d+1}, s{p+1}, 0')
            if addreg is not None:
                a.e(f's_add_u32 s{d}, s{d}, s{addreg}')
                a.e(f's_addc_u32 s{d+1}, s{d+1}, 0')
        else:
            a.e(f's_add_u32 s{d}, s{p}, s{addreg}')
            a.e(f's_addc_u32 s{d+1}, s{p+1}, 0')
    else:
        a.e(f's_mov_b32 s{d}, s{p}')
        a.e(f's_mov_b32 s{d+1}, s{p+1}')
    if size is not None:
        a.e(f's_mov_b32 s{d+2}, {size:#x}')
    a.e(f's_mov_b32 s{d+3}, 0x20000')

def stamp(a, i):
    if not opt('stamp'): return
    a.e('s_memrealtime s[60:61]')
    if i == 0: a.e('s_memtime s[62:63]')
    cy = {11: 20, 12: 21, 14: 22, 15: 23, 4: 24, 5: 25}.get(i)
    if cy: a.e('s_memtime s[66:67]')
    a.e('s_waitcnt lgkmcnt(0)')
    a.e(f'v_writelane_b32 v1, s60, {i}')
    if cy: a.e(f'v_writelane_b32 v1, s66, {cy}')
    if LIN[0]: LIN[0].lg = []

def stamp_out(a, n):
    if not opt('stamp'): return
    a.e('s_waitcnt vmcnt(0)')
    stamp(a, n - 1)
    a.e('s_memtime s[64:65]')
    a.e('s_waitcnt lgkmcnt(0)')
    srd(a, 32, P_WS, 1 * MB, STAMP_BASE)
    a.e('s_lshl_b32 s84, s2, 2')
    a.e(f's_add_u32 s84, s84, s{S_W}')
    a.e('s_lshl_b32 s84, s84, 7')
    a.e('s_sub_u32 s64, s64, s62')
    a.e('v_writelane_b32 v1, s64, 31')
    a.e('v_mbcnt_lo_u32_b32 v2, -1, 0')
    a.e('v_lshlrev_b32 v2, 2, v2')
    a.e('s_mov_b64 exec, 0xffffffff')
    a.e('buffer_store_dword v1, v2, s[32:35], s84 offen')

LIN = [None]
class Lin:
    def __init__(s, a): s.a = a; s.vm = []; s.lg = []; LIN[0] = s
    def e(s, t): s.a.e(t)
    def v(s, tag, t): s.a.e(t); s.vm.append(tag)
    def l(s, tag, t): s.a.e(t); s.lg.append(tag)
    def _n(s, q, tags, cap):
        idx = [i for i, x in enumerate(q) if x in tags]
        if not idx: return None
        n = len(q) - max(idx) - 1
        return min(n, cap)
    def wait(s, vm=(), lg=(), vm0=False, lg0=False):
        nv = 0 if vm0 else s._n(s.vm, vm, 63)
        nl = 0 if lg0 else s._n(s.lg, lg, 15)
        t = ''
        if nv is not None:
            t += f' vmcnt({nv})'; s.vm = s.vm[len(s.vm) - nv:] if nv else []
        if nl is not None:
            t += f' lgkmcnt({nl})'; s.lg = s.lg[len(s.lg) - nl:] if nl else []
        if t: s.a.e('s_waitcnt' + t)

def unpack(a, dlo, dhi, src):
    a.e(f'v_lshlrev_b32 v{dlo}, 16, v{src}')
    a.e(f'v_and_b32 v{dhi}, s{S_MASK}, v{src}')

def hfl():
    return [' sc1', ' sc0 sc1', ' sc1 nt', ' sc0 sc1 nt', ''][opt('hfl')]

def code_pf(a, lab_from, lab_to, vt, emit=None):
    _uid[0] += 1
    L = f'L_pc{_uid[0]}'
    a.e('s_getpc_b64 s[78:79]')
    a.e(f'{L}:')
    a.e(f's_lshl_b32 s77, s{S_W}, 13')
    a.e(f's_add_u32 s77, s77, {lab_from}-{L}')
    a.e(f'v_lshl_add_u32 v{vt}, v2, 7, s77')
    a.e(f'v_min_u32 v{vt}, {lab_to}-{L}, v{vt}')
    t = f'global_load_dword v{vt+1}, v{vt}, s[78:79]'
    if emit: emit(t)
    else: a.e(t)

_uid = [0]
def signal(a, soff, vt, waitfn=None, wb=False):
    _uid[0] += 1
    L = f'L_sig{_uid[0]}'
    a.e(f'v_mov_b32 v{vt}, 0')
    a.e(f'v_mov_b32 v{vt+1}, s{S_NONCE}')
    a.e(f's_cmp_eq_u32 s{S_W}, 0')
    if waitfn: waitfn()
    else: a.e('s_waitcnt vmcnt(0)')
    a.e('s_barrier')
    a.e(f's_cbranch_scc0 {L}')
    if wb:
        a.e('buffer_wbl2 sc1')
        a.e('s_waitcnt vmcnt(0)')
    a.e('s_mov_b64 exec, 1')
    a.e(f'buffer_store_dword v{vt+1}, v{vt}, s[{S_FLG}:{S_FLG+3}], s{soff} offen sc1')
    a.e('s_mov_b64 exec, -1')
    a.e(f'{L}:')

def fsh():
    return opt('fs', 32).bit_length() - 1
def f1sh():
    return opt('f1s', 32).bit_length() - 1

def wait_flags(a, soff, voff, vd, n=64, solo=None):
    _uid[0] += 1
    L = f'L_poll{_uid[0]}'
    if solo is None: solo = opt('solo', 1)
    if solo:
        a.e(f's_cmp_lg_u32 s{S_W}, 0')
        a.e(f's_cbranch_scc1 {L}x')
    a.e(f'{L}:')
    if n == 256:
        if f1sh() == 2:
            a.e(f'buffer_load_dwordx4 v[{vd}:{vd+3}], v{voff}, s[{S_FLG}:{S_FLG+3}], s{soff} offen sc1')
        else:
            for i in range(4):
                a.e(f's_add_u32 s89, s{soff}, {i*(64<<f1sh())}')
                a.e(f'buffer_load_dword v{vd+i}, v{voff}, s[{S_FLG}:{S_FLG+3}], s89 offen sc1')
        a.e('s_waitcnt vmcnt(0)')
        a.e(f'v_xor_b32 v{vd}, s{S_NONCE}, v{vd}')
        a.e(f'v_xor_b32 v{vd+1}, s{S_NONCE}, v{vd+1}')
        a.e(f'v_xor_b32 v{vd+2}, s{S_NONCE}, v{vd+2}')
        a.e(f'v_xor_b32 v{vd+3}, s{S_NONCE}, v{vd+3}')
        a.e(f'v_or3_b32 v{vd}, v{vd}, v{vd+1}, v{vd+2}')
        a.e(f'v_or_b32 v{vd}, v{vd}, v{vd+3}')
        a.e(f'v_cmp_ne_u32 vcc, 0, v{vd}')
    else:
        a.e(f'buffer_load_dword v{vd}, v{voff}, s[{S_FLG}:{S_FLG+3}], s{soff} offen sc1')
        a.e('s_waitcnt vmcnt(0)')
        a.e(f'v_cmp_ne_u32 vcc, s{S_NONCE}, v{vd}')
    a.e('s_add_u32 s3, s3, 1')
    a.e(f's_cmp_gt_u32 s3, {opt("spin", 200000)}')
    a.e(f's_cbranch_scc1 {L}x')
    a.e(f's_cbranch_vccz {L}x')
    if opt('sleep'): a.e(f's_sleep {opt("sleep")}')
    a.e(f's_branch {L}')
    a.e(f'{L}x:')
    if solo: a.e('s_barrier')

def wave_sum2(a, va, vb, sa, sb):
    for mod in ('row_shr:1 row_mask:0xf bank_mask:0xf bound_ctrl:0', 'row_shr:2 row_mask:0xf bank_mask:0xf bound_ctrl:0',
                'row_shr:4 row_mask:0xf bank_mask:0xf bound_ctrl:0', 'row_shr:8 row_mask:0xf bank_mask:0xf bound_ctrl:0',
                'row_bcast:15 row_mask:0xa bank_mask:0xf', 'row_bcast:31 row_mask:0xc bank_mask:0xf'):
        a.e('s_nop 0')
        a.e(f'v_add_f32_dpp v{va}, v{va}, v{va} {mod}')
        a.e(f'v_add_f32_dpp v{vb}, v{vb}, v{vb} {mod}')
    a.e(f'v_readlane_b32 s{sa}, v{va}, 63')
    a.e(f'v_readlane_b32 s{sb}, v{vb}, 63')

def ln2(a, X, T, M, R, C):
    def both(f):
        for r in range(2): f(r)
    for q in range(4):
        both(lambda r: a.e(f'v_pk_add_f32 v[{T[r]+2*q}:{T[r]+2*q+1}], v[{X[r]+4*q}:{X[r]+4*q+1}], v[{X[r]+4*q+2}:{X[r]+4*q+3}]'))
    both(lambda r: a.e(f'v_pk_add_f32 v[{T[r]}:{T[r]+1}], v[{T[r]}:{T[r]+1}], v[{T[r]+2}:{T[r]+3}]'))
    both(lambda r: a.e(f'v_pk_add_f32 v[{T[r]+4}:{T[r]+5}], v[{T[r]+4}:{T[r]+5}], v[{T[r]+6}:{T[r]+7}]'))
    both(lambda r: a.e(f'v_pk_add_f32 v[{T[r]}:{T[r]+1}], v[{T[r]}:{T[r]+1}], v[{T[r]+4}:{T[r]+5}]'))
    both(lambda r: a.e(f'v_add_f32 v{T[r]}, v{T[r]}, v{T[r]+1}'))
    wave_sum2(a, T[0], T[1], 56, 57)
    a.e('s_nop 0')
    both(lambda r: a.e(f'v_mul_f32 v{M[r]}, s{56+r}, v{C}'))
    both(lambda r: a.e(f'v_mov_b32 v{M[r]+1}, v{M[r]}'))
    for q in range(8):
        both(lambda r: a.e(f'v_pk_add_f32 v[{T[r]+2*q}:{T[r]+2*q+1}], v[{X[r]+2*q}:{X[r]+2*q+1}], v[{M[r]}:{M[r]+1}] neg_lo:[0,1] neg_hi:[0,1]'))
    both(lambda r: a.e(f'v_pk_mul_f32 v[{R[r]}:{R[r]+1}], v[{T[r]}:{T[r]+1}], v[{T[r]}:{T[r]+1}]'))
    for q in range(1, 8):
        both(lambda r: a.e(f'v_pk_fma_f32 v[{R[r]}:{R[r]+1}], v[{T[r]+2*q}:{T[r]+2*q+1}], v[{T[r]+2*q}:{T[r]+2*q+1}], v[{R[r]}:{R[r]+1}]'))
    both(lambda r: a.e(f'v_add_f32 v{R[r]}, v{R[r]}, v{R[r]+1}'))
    def rbf(v):
        a.e(f'v_cvt_pk_bf16_f32 v{v}, v{v}, v{v}')
        a.e(f'v_and_b32 v{v}, s{S_MASK}, v{v}')
    both(lambda r: rbf(M[r]))
    wave_sum2(a, R[0], R[1], 58, 59)
    both(lambda r: a.e(f'v_mov_b32 v{M[r]+1}, v{M[r]}'))
    both(lambda r: a.e(f'v_mul_f32 v{R[r]}, s{58+r}, v{C}'))
    both(lambda r: rbf(R[r]))
    both(lambda r: a.e(f'v_add_f32 v{R[r]}, 0x3727c5ac, v{R[r]}'))
    both(lambda r: rbf(R[r]))
    both(lambda r: a.e(f'v_sqrt_f32 v{R[r]}, v{R[r]}'))
    for q in range(2):
        both(lambda r: a.e(f'v_pk_add_f32 v[{T[r]+2*q}:{T[r]+2*q+1}], v[{X[r]+2*q}:{X[r]+2*q+1}], v[{M[r]}:{M[r]+1}] neg_lo:[0,1] neg_hi:[0,1]'))
    both(lambda r: rbf(R[r]))
    both(lambda r: a.e(f'v_rcp_f32 v{R[r]}, v{R[r]}'))
    for q in range(2, 8):
        both(lambda r: a.e(f'v_pk_add_f32 v[{T[r]+2*q}:{T[r]+2*q+1}], v[{X[r]+2*q}:{X[r]+2*q+1}], v[{M[r]}:{M[r]+1}] neg_lo:[0,1] neg_hi:[0,1]'))
    both(lambda r: a.e(f'v_mov_b32 v{R[r]+1}, v{R[r]}'))
    for q in range(8):
        both(lambda r: a.e(f'v_pk_mul_f32 v[{T[r]+2*q}:{T[r]+2*q+1}], v[{T[r]+2*q}:{T[r]+2*q+1}], v[{R[r]}:{R[r]+1}]'))

class Sched:
    def __init__(self): self.ev = []; self.marks = {}
    def mark(self, k): self.marks[k] = len(self.ev)
    def add(self, L): self.ev += L
    def younger(self, tag, at):
        last = max(i for i, e in enumerate(self.ev) if e[:2] == tag)
        assert last < self.marks[at], (tag, at)
        return self.marks[at] - last - 1

def gen(a):
    a.raw(f'.globl {KNAME}')
    a.raw('.p2align 8')
    a.raw(f'.type {KNAME},@function')
    a.raw(f'{KNAME}:')
    a.e('s_cmp_ge_u32 s2, 256')
    a.e('s_cbranch_scc1 L_end')
    a.e('s_load_dwordx8 s[4:11], s[0:1], 0')
    a.e('s_load_dwordx8 s[20:27], s[0:1], 64')
    a.e('s_load_dwordx2 s[28:29], s[0:1], 96')
    a.e('s_load_dwordx8 s[12:19], s[0:1], 32')
    a.e('s_memrealtime s[56:57]')
    a.e('v_lshrrev_b32 v1, 6, v0')
    a.e('v_and_b32 v2, 63, v0')
    a.e(f'v_readfirstlane_b32 s{S_W}, v1')
    a.e(f's_mov_b32 s{S_MASK}, 0xffff0000')
    a.e('s_mov_b32 s3, 0')
    a.e('s_bfe_u32 s82, s2, 0x30003')
    a.e('s_and_b32 s83, s2, 7')
    a.e('s_lshr_b32 s84, s2, 6')
    a.e('s_lshl_b32 s84, s84, 3')
    a.e('s_or_b32 s83, s83, s84')
    a.e('v_and_b32 v1, 15, v0')
    a.e('v_lshrrev_b32 v8, 4, v0')
    a.e('s_lshl_b32 s85, s83, 17')
    a.e('s_lshl_b32 s86, s82, 8')
    a.e('s_add_u32 s85, s85, s86')
    a.e('v_lshlrev_b32 v3, 13, v1')
    a.e('v_lshl_add_u32 v3, v8, 4, v3')
    a.e('v_add_u32 v3, s85, v3')
    a.e('v_add_u32 v4, 0xffffe800, v3')
    a.e('v_add_u32 v5, 0xfffff800, v3')
    a.e('v_add_u32 v6, 0x1000, v3')
    a.e('s_lshl_b32 s86, s82, 10')
    a.e('v_lshlrev_b32 v7, 6, v8')
    a.e('v_add_u32 v7, s86, v7')
    a.e('s_lshl_b32 s87, s82, 5')
    a.e('s_add_u32 s87, s87, s83')
    a.e('s_lshl_b32 s88, s87, 14')
    a.e('s_add_u32 s88, s88, 120')
    a.e('v_lshlrev_b32 v160, 10, v8')
    a.e('v_lshlrev_b32 v161, 3, v1')
    a.e('v_sub_u32 v160, v160, v161')
    a.e('v_add_u32 v160, s88, v160')
    a.e(f's_lshl_b32 s87, s87, {fsh()}')
    a.e('v_mov_b32 v162, 0')
    a.e('s_waitcnt lgkmcnt(0)')
    stamp(a, 0)
    srd(a, 32, P_K, 4 * MB)
    srd(a, 36, P_V, 4 * MB)
    srd(a, 40, P_SH, 8192)
    KR, VR_, WR, WU, KU, AC0 = 8, 36, 52, 68, 100, 164
    for j in range(4):
        a.e(f'buffer_load_dwordx4 v[{WR+4*j}:{WR+4*j+3}], v7, s[40:43], 0 offen offset:{16*j}')
    rows = [(4, 0), (4, 2048), (5, 0), (3, 0), (3, 2048), (6, 0), (6, 2048)]
    for r, (vr, off) in enumerate(rows):
        a.e(f'buffer_load_dwordx4 v[{KR+4*r}:{KR+4*r+3}], v{vr}, s[32:35], 0 offen offset:{off}')
    for r, (vr, off) in enumerate(rows[3:]):
        a.e(f'buffer_load_dwordx4 v[{VR_+4*r}:{VR_+4*r+3}], v{vr}, s[36:39], 0 offen offset:{off}')
    ncp = 0
    if opt('cpf', 0):
        a.e('s_getpc_b64 s[58:59]')
        a.e('L_pc:')
        a.e('v_lshlrev_b32 v163, 7, v0')
        a.e('v_min_u32 v163, L_end-L_pc, v163')
        a.e('global_load_dword v161, v163, s[58:59]')
        ncp = 1
    srd(a, 48, P_WS, 4 * MB, WS_UB)
    if opt('pt', 0) & 1:
        a.e('v_lshlrev_b32 v163, 6, v0')
        a.e('s_sub_u32 s58, s88, 120')
        a.e('buffer_load_dword v161, v163, s[48:51], s58 offen')
        ncp += 1
    srd(a, 44, P_DBG, 256)
    a.e('s_or_b32 s56, s56, 1')
    a.e(f's_or_b32 s57, s2, s{S_W}')
    a.e('s_cmp_lg_u32 s57, 0')
    a.e('s_cbranch_scc1 L_nonce_skip')
    a.e('v_mov_b32 v163, s56')
    a.e('s_mov_b64 exec, 1')
    a.e('buffer_store_dword v163, v162, s[44:47], 0 offen sc1')
    a.e('s_mov_b64 exec, -1')
    a.e('s_waitcnt vmcnt(0)')
    a.e('L_nonce_skip:')
    srd(a, S_FLG, P_WS, FLG_SIZE, WS_FLG)
    a.e(f's_waitcnt vmcnt({11+ncp})')
    for e in range(8):
        unpack(a, WU + 0 * 8 + e, WU + 1 * 8 + e, WR + 2 * e)
        unpack(a, WU + 2 * 8 + e, WU + 3 * 8 + e, WR + 2 * e + 1)
    for r in range(7):
        a.e(f's_waitcnt vmcnt({10-r+ncp})')
        for q in range(4):
            unpack(a, KU + 8 * r + 2 * q, KU + 8 * r + 2 * q + 1, KR + 4 * r + q)
        if r >= 3:
            i = r - 3
            for j in range(4):
                for q in range(4):
                    d = AC0 + 8 * i + 2 * q
                    k = KU + 8 * (i + 3 - j) + 2 * q
                    w = WU + 8 * j + 2 * q
                    if j == 0:
                        a.e(f'v_pk_mul_f32 v[{d}:{d+1}], v[{k}:{k+1}], v[{w}:{w+1}]')
                    else:
                        a.e(f'v_pk_fma_f32 v[{d}:{d+1}], v[{k}:{k+1}], v[{w}:{w+1}], v[{d}:{d+1}]')
    VU = 8
    for i in range(4):
        a.e(f's_waitcnt vmcnt({3-i+ncp})')
        if i == 3:
            a.e('buffer_load_dword v163, v162, s[44:47], 0 offen sc1')
        for q in range(4):
            unpack(a, VU + 2 * q, VU + 2 * q + 1, VR_ + 4 * i + q)
        for q in range(4):
            d = AC0 + 8 * i + 2 * q
            a.e(f'v_pk_mul_f32 v[{d}:{d+1}], v[{d}:{d+1}], v[{VU+2*q}:{VU+2*q+1}]')
    O = 52
    for e in range(8):
        a.e(f'v_cvt_pk_bf16_f32 v{O+2*e}, v{AC0+24+e}, v{AC0+16+e}')
        a.e(f'v_cvt_pk_bf16_f32 v{O+2*e+1}, v{AC0+8+e}, v{AC0+e}')
        a.e(f'buffer_store_dwordx2 v[{O+2*e}:{O+2*e+1}], v160, s[48:51], 0 offen offset:{128*e} sc1')
    stamp(a, 1)
    a.e('s_and_b32 s82, s2, 7')
    a.e('s_lshr_b32 s83, s2, 3')
    a.e('s_lshl_b32 s84, s83, 2')
    a.e(f's_add_u32 s84, s84, s{S_W}')
    a.e('s_lshl_b32 s85, s82, 7')
    a.e('s_add_u32 s85, s85, s84')
    a.e('s_lshl_b32 s86, s82, 5')
    a.e('s_add_u32 s86, s86, s83')
    a.e(f's_mul_i32 s88, s{S_W}, {KA_REG}')
    a.e(f's_add_u32 s88, s88, {LDS_KA}')
    a.e('s_lshl_b32 s56, s85, 12')
    srd(a, 32, P_SSMK, 4096, 0, 56)
    a.e('s_lshr_b32 s57, s85, 1')
    a.e('s_lshl_b32 s57, s57, 2')
    a.e(f's_load_dword s89, s[{P_D}:{P_D+1}], s57')
    a.e('v_lshlrev_b32 v4, 4, v2')
    KD, KX = 8, 24
    for j in range(4):
        a.e(f'buffer_load_dwordx4 v[{KD+4*j}:{KD+4*j+3}], v4, s[32:35], 0 offen offset:{1024*j}')
        a.e(f'buffer_load_dword v{KX+j}, v4, s[32:35], 0 offen offset:{1024*j+16}')
    a.e('s_and_b32 s80, s82, 1')
    a.e('s_lshl_b32 s80, s80, 2')
    a.e('s_and_b32 s56, s83, 3')
    a.e('s_add_u32 s80, s80, s56')
    a.e('s_lshr_b32 s81, s82, 1')
    a.e('s_lshl_b32 s81, s81, 3')
    a.e('s_lshr_b32 s56, s83, 2')
    a.e('s_add_u32 s81, s81, s56')
    a.e('s_lshl_b32 s91, s80, 5')
    a.e('s_add_u32 s91, s91, s81')
    a.e('s_lshl_b32 s56, s91, 2')
    a.e(f's_add_u32 s56, s56, s{S_W}')
    a.e('s_lshl_b32 s96, s56, 12')
    srd(a, 36, P_Q, 4 * MB)
    XP = 224
    for r in range(2):
        for hh in range(2):
            a.e(f'buffer_load_dwordx4 v[{XP+8*r+4*hh}:{XP+8*r+4*hh+3}], v4, s[36:39], s96 offen offset:{2048*r+1024*hh}')
    a.e('s_waitcnt vmcnt(20)')
    a.e('L_nonce:')
    a.e(f'v_readfirstlane_b32 s{S_NONCE}, v163')
    a.e('s_nop 0')
    a.e(f's_cmp_lg_u32 s{S_NONCE}, 0')
    a.e('s_cbranch_scc1 L_nonce_ok')
    a.e('s_add_u32 s3, s3, 1')
    a.e(f's_cmp_gt_u32 s3, {opt("spin", 200000)}')
    a.e('s_cbranch_scc1 L_nonce_ok')
    a.e('buffer_load_dword v163, v162, s[44:47], 0 offen sc1')
    a.e('s_waitcnt vmcnt(0)')
    a.e('s_branch L_nonce')
    a.e('L_nonce_ok:')
    a.e(f'v_mov_b32 v163, s{S_NONCE}')
    a.e(f's_cmp_eq_u32 s{S_W}, 0')
    a.e('s_waitcnt vmcnt(12)')
    a.e('s_barrier')
    a.e('s_cbranch_scc0 L_sig0')
    a.e('s_mov_b64 exec, 1')
    a.e(f'buffer_store_dword v163, v162, s[{S_FLG}:{S_FLG+3}], s87 offen sc1')
    a.e('s_mov_b64 exec, -1')
    a.e('L_sig0:')
    stamp(a, 2)
    npt = 0
    if opt('pt', 0) & 2:
        srd(a, 40, P_WS, 12 * MB, WS_Y2)
        a.e('v_lshlrev_b32 v164, 14, v0')
        a.e('s_lshl_b32 s56, s86, 6')
        a.e('buffer_load_dword v161, v164, s[40:43], s56 offen')
        a.e('v_lshlrev_b32 v164, 6, v0')
        a.e('s_lshl_b32 s56, s91, 14')
        a.e(f's_add_u32 s56, s56, {4*MB}')
        a.e('buffer_load_dword v161, v164, s[40:43], s56 offen')
        a.e('v_lshrrev_b32 v164, 3, v0')
        a.e('v_lshlrev_b32 v164, 12, v164')
        a.e('v_bfe_u32 v165, v0, 1, 2')
        a.e('v_lshl_add_u32 v164, v165, 8, v164')
        a.e('s_lshr_b32 s56, s91, 3')
        a.e('s_lshl_b32 s56, s56, 17')
        a.e('s_and_b32 s57, s91, 7')
        a.e('s_lshr_b32 s58, s57, 1')
        a.e('s_lshl_b32 s58, s58, 10')
        a.e('s_add_u32 s56, s56, s58')
        a.e('s_and_b32 s57, s57, 1')
        a.e('s_lshl_b32 s57, s57, 7')
        a.e('s_add_u32 s56, s56, s57')
        a.e(f's_add_u32 s56, s56, {8*MB}')
        a.e('buffer_load_dword v161, v164, s[40:43], s56 offen')
        npt += 3
    a.e('v_lshrrev_b32 v3, 3, v2')
    a.e('v_sub_u32 v3, 7, v3')
    a.e('v_lshlrev_b32 v3, 14, v3')
    a.e('v_and_b32 v5, 7, v2')
    a.e('v_lshl_add_u32 v3, v5, 4, v3')
    a.e('s_lshl_b32 s56, s84, 7')
    a.e('v_add_u32 v3, s56, v3')
    a.e('v_and_b32 v5, 15, v2')
    a.e('v_lshrrev_b32 v6, 4, v2')
    a.e('v_mov_b32 v28, 0')
    a.e('v_mov_b32 v29, 0')
    a.e('v_lshlrev_b32 v7, 3, v2')
    a.e('v_add_u32 v7, s88, v7')
    a.e('ds_write_b64 v7, v[28:29] offset:4096')
    a.e('v_min_u32 v30, 7, v2')
    a.e('v_lshlrev_b32 v30, 2, v30')
    a.e('v_add_u32 v30, s88, v30')
    a.e('ds_write_b32 v30, v28 offset:4608')
    a.e('v_add_u32 v31, 1, v5')
    a.e('v_and_b32 v32, 1, v31')
    a.e('v_sub_u32 v31, v31, v32')
    a.e('v_lshl_add_u32 v31, v6, 3, v31')
    a.e('v_lshlrev_b32 v31, 1, v31')
    a.e('v_mul_u32_u24 v32, 4160, v32')
    a.e('v_add3_u32 v31, v31, v32, s88')
    VA, VB, ACC = 36, 40, 44
    for j in range(4):
        a.e(f'v_add_u32 v{VA+j}, {4608+1024*j}, v31')
    a.e('v_lshlrev_b32 v32, 5, v5')
    a.e('v_lshlrev_b32 v33, 4, v6')
    a.e('v_sub_u32 v33, v33, v32')
    a.e('v_add_u32 v33, s88, v33')
    a.e(f'v_add_u32 v{VB}, 480, v33')
    a.e('v_add_u32 v7, s88, v4')
    for r in range(32):
        a.e(f'v_mov_b32 v{ACC+r}, 0')
    T = 76
    a.e(f's_waitcnt vmcnt({4+npt})')
    for j in range(4):
        d = KD + 4 * j
        if j == 0:
            a.e(f'v_readfirstlane_b32 s56, v{d}')
        a.e(f'ds_write_b128 v7, v[{d}:{d+3}] offset:{4608+32+1024*j}')
        for q in range(4):
            hi = d + q + 1 if q < 3 else KX + j
            a.e(f'v_alignbit_b32 v{T+4*j+q}, v{hi}, v{d+q}, 16')
        a.e(f'ds_write_b128 v7, v[{T+4*j}:{T+4*j+3}] offset:{4608+4160+32+1024*j}')
    a.e('s_lshl_b32 s56, s56, 16')
    a.e('v_cmp_le_u32 vcc, 7, v2')
    a.e('v_mov_b32 v32, s56')
    a.e('s_nop 0')
    a.e('v_cndmask_b32 v32, v28, v32, vcc')
    a.e(f'ds_write_b32 v30, v32 offset:{4608+4160}')
    FA = [96, 160]; FB = [128, 192]
    def rdA(r, buf):
        L = []
        for mq in range(8):
            o = 128 * (mq & 1) + 16 * r
            f = FA[buf] + 4 * mq
            L.append(f'ds_read2_b32 v[{f}:{f+1}], v{VA+(mq>>1)} offset0:{o} offset1:{o+1}')
            L.append(f'ds_read2_b32 v[{f+2}:{f+3}], v{VA+(mq>>1)} offset0:{o+2} offset1:{o+3}')
        return L
    def rdB(r, buf):
        return [f'ds_read_b128 v[{FB[buf]+4*d}:{FB[buf]+4*d+3}], v{VB} offset:{512*(7-d)+64*r}' for d in range(8)]
    a.e('s_waitcnt lgkmcnt(0)')
    a.e('s_bitcmp1_b32 s85, 0')
    a.e('s_cselect_b32 s56, 0, 16')
    a.e('s_lshl_b32 s89, s89, s56')
    a.e('s_and_b32 s89, s89, 0xffff0000')
    for l in rdA(0, 0): a.e(l)
    a.e('v_and_b32 v34, 31, v2')
    a.e(f'v_lshlrev_b32 v34, {fsh()}, v34')
    a.e(f's_lshl_b32 s56, s82, {5+fsh()}')
    wait_flags(a, 56, 34, 35)
    stamp(a, 3)
    a.e('s_lshl_b32 s56, s82, 19')
    UR = 8
    for i in range(4):
        a.e(f's_add_u32 s57, s56, {(24-8*i)*16384:#x}')
        a.e(f'buffer_load_dwordx4 v[{UR+4*i}:{UR+4*i+3}], v3, s[48:51], s57 offen sc1')
    g1 = G1(a)
    g2 = G2(a)
    g2.front_setup()
    g1.setup_dma()
    for i in range(4):
        a.e(f's_waitcnt vmcnt({3-i})')
        a.e(f'ds_write_b128 v7, v[{UR+4*i}:{UR+4*i+3}] offset:{1024*i}')
    a.e('s_waitcnt lgkmcnt(0)')
    for l in rdB(0, 0): a.e(l)
    stamp(a, 4)
    LK = Lin(a)
    if opt('cpf1', 0): code_pf(a, 'L_kbcode', 'L_g2code', 41, lambda t: LK.v('cp', t))
    g1e = [[(lambda l=l: (LK.v('g1', l) if l.startswith('buffer') else LK.e(l))) for l in grp] for grp in g1.early_dma()]
    def grp(fs): return lambda: [f() for f in fs]
    g1e = [grp(x) for x in g1e]
    fillr = {0: g2.fD(LK, (0, 1)), 1: g1e[:5], 2: g1e[5:10], 3: g2.fM(LK, (0, 1)), 4: g2.fD(LK, (2, 3)), 5: g1e[10:15], 6: g1e[15:20], 7: g2.fM(LK, (2, 3))}
    UE = 8
    for r in range(8):
        buf = r & 1
        if r < 7:
            A_, B_ = rdA(r + 1, buf ^ 1), rdB(r + 1, buf ^ 1)
            nxt = []
            for x in range(8): nxt += [B_[x], A_[2 * x], A_[2 * x + 1]]
        else:
            a.e('v_lshlrev_b32 v32, 5, v5')
            a.e('v_lshl_add_u32 v32, v6, 3, v32')
            a.e(f'v_sub_u32 v34, {4088-3584}, v32')
            a.e('v_add_u32 v34, s88, v34')
            a.e('v_add_u32 v35, s88, v32')
            nxt = [f'ds_read_b64 v[{UE+2*c}:{UE+2*c+1}], v34 offset:{512*(7-c)}' for c in range(8)]
        a.e('s_waitcnt lgkmcnt(0)')
        fl = list(fillr[r]); evr = 36 // len(fl)
        k = 0
        for mq in range(8):
            for d in range(8 - mq):
                c = mq + d
                fa = FA[buf] + 4 * mq; fb = FB[buf] + 4 * d
                a.e(f'v_mfma_f32_16x16x32_bf16 v[{ACC+4*c}:{ACC+4*c+3}], v[{fa}:{fa+3}], v[{fb}:{fb+3}], v[{ACC+4*c}:{ACC+4*c+3}]')
                if k < len(nxt):
                    a.e(nxt[k])
                if fl and k % evr == evr - 1: fl.pop(0)()
                k += 1
        assert not fl, (r, len(fl))
    a.e('s_waitcnt lgkmcnt(0)')
    stamp(a, 5)
    a.e('L_kbcode:')
    a.inject(g2.fD(LK, (4, 5)), 8)
    X = 96
    for c in range(8):
        unpack(a, X + 4 * c + 3, X + 4 * c + 2, UE + 2 * c)
        unpack(a, X + 4 * c + 1, X + 4 * c + 0, UE + 2 * c + 1)
    for c in range(8):
        for r in range(4):
            a.e(f'v_fma_f32 v{X+4*c+r}, v{X+4*c+r}, s89, v{ACC+4*c+r}')
        a.e(f'v_cvt_pk_bf16_f32 v{UE+2*c}, v{X+4*c}, v{X+4*c+1}')
        a.e(f'v_cvt_pk_bf16_f32 v{UE+2*c+1}, v{X+4*c+2}, v{X+4*c+3}')
        a.e(f'ds_write_b64 v35, v[{UE+2*c}:{UE+2*c+1}] offset:{4608+512*c}')
    a.flush_inject()
    LIN[0] = None
    a.e('v_lshlrev_b32 v32, 2, v0')
    a.e(f'v_add_u32 v32, {LDS_KA}, v32')
    a.e('v_lshrrev_b32 v33, 2, v0')
    a.e('v_lshlrev_b32 v33, 14, v33')
    a.e('v_and_b32 v34, 3, v0')
    a.e('v_lshl_add_u32 v33, v34, 4, v33')
    a.e('s_lshl_b32 s56, s86, 6')
    a.e('s_mov_b32 s57, 0x05040100')
    a.e('s_mov_b32 s58, 0x07060302')
    srd(a, 36, P_WS, 4 * MB, WS_Y2)
    a.e('s_waitcnt lgkmcnt(0)')
    a.e('s_barrier')
    Y = 96
    for P in range(4):
        for ch in range(4):
            a.e(f'ds_read_b32 v{Y+4*P+ch}, v32 offset:{ch*KA_REG+4608+1024*P}')
    O = 128
    for P in range(4):
        a.e(f's_waitcnt lgkmcnt({12-4*P})')
        y = Y + 4 * P; o = O + 4 * P
        a.e(f'v_perm_b32 v{o}, v{y+1}, v{y}, s57')
        a.e(f'v_perm_b32 v{o+1}, v{y+3}, v{y+2}, s57')
        a.e(f'v_perm_b32 v{o+2}, v{y+1}, v{y}, s58')
        a.e(f'v_perm_b32 v{o+3}, v{y+3}, v{y+2}, s58')
        a.e(f'buffer_store_dwordx4 v[{o}:{o+3}], v33, s[36:39], s56 offen sc1')
        if P < 3:
            a.e(f's_add_u32 s56, s56, {64*16384:#x}')
    stamp(a, 6)
    XU = [8, 24]; TT = [40, 56]; MM = [72, 74]; RR = [76, 78]; C = 80; YR = [84, 92]; YU = [100, 116]
    for r in range(2):
        for q in range(8):
            unpack(a, XU[r] + 2 * q, XU[r] + 2 * q + 1, XP + 8 * r + q)
    a.e(f'v_mov_b32 v{C}, 0x3a800000')
    a.e(f's_lshl_b32 s87, s2, {f1sh()}')
    a.e(f's_add_u32 s87, s87, {F1}')
    signal(a, 87, 82)
    for f in g2.fM(None, (4, 5))[1:]: f()
    ln2(a, XU, TT, MM, RR, C)
    a.e('v_lshlrev_b32 v5, 7, v2')
    a.e('v_add_u32 v6, 0x2000, v5')
    a.e('s_lshl_b32 s82, s91, 14')
    a.e(f's_lshl_b32 s83, s{S_W}, 4')
    a.e('s_add_u32 s82, s82, s83')
    srd(a, 40, P_WS, 4 * MB, WS_H)
    srd(a, 44, P_WS, 4 * MB, WS_HNF)
    a.e('v_and_b32 v7, 7, v2')
    a.e(f's_lshl_b32 s83, s{S_W}, 1')
    a.e('v_xor_b32 v132, s83, v7')
    a.e('v_lshl_add_u32 v132, v132, 4, v5')
    a.e(f'v_add_u32 v132, {LDS_KA}, v132')
    a.e('v_xor_b32 v133, 16, v132')
    a.e('v_lshrrev_b32 v134, 3, v2')
    a.e('v_xor_b32 v135, v134, v7')
    a.e('v_lshlrev_b32 v135, 4, v135')
    a.e('v_lshl_add_u32 v135, v134, 7, v135')
    a.e(f's_lshl_b32 s83, s{S_W}, 12')
    a.e(f's_add_u32 s83, s83, {LDS_KA}')
    a.e('v_add_u32 v135, s83, v135')
    a.e('v_lshrrev_b32 v136, 5, v2')
    a.e('v_lshlrev_b32 v136, 12, v136')
    a.e('v_bfe_u32 v137, v2, 3, 2')
    a.e('v_lshl_add_u32 v136, v137, 8, v136')
    a.e('v_lshl_add_u32 v136, v7, 4, v136')
    a.e('s_lshr_b32 s84, s91, 3')
    a.e('s_lshl_b32 s84, s84, 17')
    a.e('s_bfe_u32 s85, s91, 0x20001')
    a.e('s_lshl_b32 s85, s85, 10')
    a.e('s_add_u32 s84, s84, s85')
    a.e('s_and_b32 s85, s91, 1')
    a.e('s_lshl_b32 s85, s85, 7')
    a.e('s_add_u32 s84, s84, s85')
    a.e(f's_lshl_b32 s85, s{S_W}, 15')
    a.e('s_add_u32 s84, s84, s85')
    a.e(f's_mov_b32 s85, {F1}')
    a.e('s_waitcnt lgkmcnt(0)')
    stamp(a, 7)
    a.e(f'v_lshlrev_b32 v138, {4 if f1sh() == 2 else f1sh()}, v2')
    wait_flags(a, 85, 138, 128, n=256)
    stamp(a, 8)
    a.e(f's_or_b32 s57, s2, s{S_W}')
    a.e('s_cmp_lg_u32 s57, 0')
    a.e('s_cbranch_scc1 L_clean_skip')
    srd(a, 48, P_DBG, 256)
    a.e('v_mov_b32 v128, 0')
    a.e('s_mov_b64 exec, 1')
    a.e('buffer_store_dword v128, v128, s[48:51], 0 offen sc1')
    a.e('s_mov_b64 exec, -1')
    a.e('L_clean_skip:')
    YL = 84
    a.e(f'buffer_load_dwordx4 v[{YL}:{YL+3}], v5, s[36:39], s82 offen sc1')
    a.e(f'buffer_load_dwordx4 v[{YL+4}:{YL+7}], v5, s[36:39], s82 offen offset:64 sc1')
    a.e(f'buffer_load_dwordx4 v[{YL+8}:{YL+11}], v6, s[36:39], s82 offen sc1')
    a.e(f'buffer_load_dwordx4 v[{YL+12}:{YL+15}], v6, s[36:39], s82 offen offset:64 sc1')
    for cgi in range(4):
        a.e(f's_waitcnt vmcnt({3-cgi})')
        for r in range(2):
            for e in range(2):
                u = YU[r] + 4 * cgi + 2 * e
                unpack(a, u, u + 1, YL + 4 * cgi + 2 * r + e)
        for r in range(2):
            for e in range(2):
                u = YU[r] + 4 * cgi + 2 * e; x = XU[r] + 4 * cgi + 2 * e; t = TT[r] + 4 * cgi + 2 * e
                a.e(f'v_pk_fma_f32 v[{x}:{x+1}], v[{t}:{t+1}], v[{u}:{u+1}], v[{x}:{x+1}]')
    a.inject(g2.fD(None, (6, 7)), 4)
    for r in range(2):
        for q in range(8):
            a.e(f'v_cvt_pk_bf16_f32 v{XP+8*r+q}, v{XU[r]+2*q}, v{XU[r]+2*q+1}')
    for r in range(2):
        for q in range(8):
            unpack(a, XU[r] + 2 * q, XU[r] + 2 * q + 1, XP + 8 * r + q)
    a.flush_inject()
    ln2(a, XU, TT, MM, RR, C)
    for r in range(2):
        for q in range(8):
            a.e(f'v_cvt_pk_bf16_f32 v{YL+8*r+q}, v{TT[r]+2*q}, v{TT[r]+2*q+1}')
        for hh in range(2):
            a.e(f'ds_write_b128 v{132+r}, v[{YL+8*r+4*hh}:{YL+8*r+4*hh+3}] offset:{8192*hh}')
    a.e('s_waitcnt lgkmcnt(0)')
    a.e('s_barrier')
    for i in range(4):
        a.e(f'ds_read_b128 v[{100+4*i}:{103+4*i}], v135 offset:{1024*i}')
    for i in range(4):
        a.e(f's_waitcnt lgkmcnt({3-i})')
        a.e(f'buffer_store_dwordx4 v[{100+4*i}:{103+4*i}], v136, s[44:47], s84 offen sc1')
        if i < 3: a.e('s_add_u32 s84, s84, 8192')
    stamp(a, 9)
    a.e(f's_lshl_b32 s87, s91, {fsh()}')
    a.e(f's_add_u32 s87, s87, {F2}')
    g2.front_save()
    g1.pre_setup()
    signal(a, 87, 4)
    a.e('v_add_u32 v4, s73, v7')
    a.e('v_xor_b32 v5, 32, v4')
    for f in g2.fM(None, (6, 7), base=4)[1:]: f()
    g1.main()
    g1.epilogue(g2)
    g2.main()
    stamp_out(a, NSTAMP)
    a.e('L_end:')
    a.e('s_endpgm')

G1_STG = 32768
class G1:
    TM, NW, DPW, ND = 4, 4, 8, 4
    ACC, WF, TF, DV, VT, VR, VL = 32, 0, 28, 8, 16, 17, 18
    DVE = 240
    def __init__(s, a): s.a = a
    def setup_dma(s):
        a = s.a
        a.e('s_and_b32 s56, s81, 1')
        a.e('s_lshl_b32 s56, s56, 1')
        a.e('s_movk_i32 s57, 4682')
        a.e('s_movk_i32 s58, 7168')
        a.e('v_mov_b32 v76, 0x80000000')
        a.e('v_subrev_u32 v77, 8, v2')
        for src, dst in ((2, 78), (77, 79)):
            a.e(f'v_cmp_gt_u32 vcc, 56, v{src}')
            a.e(f'v_mul_u32_u24 v80, s57, v{src}')
            a.e('v_lshrrev_b32 v80, 16, v80')
            a.e('v_mul_u32_u24 v81, 14, v80')
            a.e(f'v_sub_u32 v81, v{src}, v81')
            a.e('v_add_u32 v81, s56, v81')
            a.e('v_subrev_u32 v82, 14, v81')
            a.e('v_min_u32 v81, v81, v82')
            a.e('v_mul_u32_u24 v80, s58, v80')
            a.e('v_lshl_add_u32 v80, v81, 4, v80')
            a.e(f'v_cndmask_b32 v{dst}, v76, v80, vcc')
        for i in range(8):
            pat = 79 if (i >> 1) & 1 else 78
            c = i * 4 * 7168 - 1024 * (i & 3)
            a.e(f'v_add_u32 v{s.DVE+i}, {c}, v{pat}' if c else f'v_mov_b32 v{s.DVE+i}, v{pat}')
        a.e(f's_and_b32 s56, s{S_W}, 1')
        a.e(f's_lshr_b32 s57, s{S_W}, 1')
        a.e(f's_mul_i32 s97, s56, {8*4*7168}')
        a.e('s_lshl_b32 s98, s57, 14')
        a.e('s_lshl_b32 s56, s56, 13')
        a.e('s_add_u32 s98, s98, s56')
        a.e('s_mul_i32 s56, s81, 224')
        a.e('s_cmp_eq_u32 s57, 0')
        a.e(f's_cselect_b32 s52, s{P_W1}, s{P_W3}')
        a.e(f's_cselect_b32 s53, s{P_W1+1}, s{P_W3+1}')
        srd(a, 52, 52, None, 0, 56)
        a.e('s_sub_u32 s54, 7340032, s56')
    def m0set(s, i): return f's_add_u32 m0, s98, {4096*(i//4)}' if i else 's_mov_b32 m0, s98'
    def dma(s, i, base): return f'buffer_load_dwordx4 v{base+i}, s[52:55], s97 offen offset:{1024*(i&3)} lds'
    def dma_adv(s): return ['s_add_u32 s97, s97, 458752', f's_add_u32 s98, s98, {G1_STG}', 's_and_b32 s98, s98, 0x1ffff']
    def early_dma(s):
        out = []
        for st in range(2):
            for i in range(8):
                if i % 4 == 0: out.append([s.m0set(i)])
                out.append([s.dma(i, s.DVE)] + (s.dma_adv() if i == 7 else []))
        return out
    def tok(s, k, tm):
        f = s.TF + 4 * (4 * (k % s.ND) + tm)
        return f'buffer_load_dwordx4 a[{f}:{f+3}], v{s.VT}, s[32:35], s82 offen offset:{tm*1024}' + (' sc1' if opt('t1sc', 1) else '')
    def rd(s, ph, t):
        j, mat = (ph & 3) >> 1, ph & 1
        return [f'ds_read_b64_tr_b16 a[{s.WF+4*t+2*h}:{s.WF+4*t+2*h+1}], v{s.VR} offset:{8192*j+1024*h+32*t+16384*mat}' for h in range(2)]
    def pre_setup(s):
        a = s.a
        for i in range(8): a.e(f'v_mov_b32 v{s.DV+i}, v{s.DVE+i}')
        for i in range(16): a.e(f'v_accvgpr_write_b32 a{92+i}, v{224+i}')
        a.e(f'v_lshlrev_b32 v{s.VT}, 4, v2')
        a.e('v_lshrrev_b32 v4, 4, v2')
        a.e('v_lshlrev_b32 v4, 11, v4')
        a.e('v_bfe_u32 v5, v2, 4, 1')
        a.e('v_lshl_add_u32 v4, v5, 7, v4')
        a.e('v_bfe_u32 v6, v2, 2, 2')
        a.e('v_mul_u32_u24 v5, 224, v6')
        a.e('v_and_b32 v6, 3, v2')
        a.e('v_lshl_add_u32 v5, v6, 3, v5')
        a.e(f'v_add_u32 v{s.VL}, v4, v5')
        a.e(f'v_mov_b32 v{s.VR}, v{s.VL}')
        a.e('v_and_b32 v19, 31, v2')
        a.e(f'v_lshlrev_b32 v19, {fsh()}, v19')
        a.e('s_lshl_b32 s56, s80, 2')
        a.e(f's_add_u32 s56, s56, s{S_W}')
        a.e('s_lshl_b32 s57, s56, 17')
        srd(a, 32, P_WS, 131072, WS_HNF, 57)
        a.e(f's_mul_i32 s57, s56, {4*114688}')
        srd(a, 36, P_WS, 4 * 114688, WS_HF, 57)
        a.e('s_and_b32 s58, s81, 1')
        a.e('s_mul_i32 s85, s81, 7')
        a.e('s_add_u32 s85, s85, s58')
        a.e('s_lshl_b32 s85, s85, 9')
        a.e('s_movk_i32 s86, 3072')
        a.e('s_cmp_eq_u32 s58, 0')
        a.e('s_cselect_b32 s86, s86, 0xfffffc08')
        a.e('s_add_u32 s86, s86, s85')
        for r in range(224):
            a.e(f'v_mov_b32 v{s.ACC+r}, 0')
    def kof(s, s_, P): return 2 * s_ + (-1, 0, 0, 1)[P]
    def ev_ins(s, e):
        L = []
        if e[0] == 'D':
            if e[2] % 4 == 0: L.append(s.m0set(e[2]))
            L.append(s.dma(e[2], s.DV))
            if e[2] == 7: L += s.dma_adv()
        elif e[0] == 'Z':
            fl = ['', ' sc1'][opt('ps', 0) - 1]
            u = e[2]
            if u < 3: L = [f'buffer_store_dwordx4 v[24:27], v{s.VT}, s[36:39], s88 offen offset:{1024*u}{fl}']
            else: L = [f'buffer_store_dwordx2 v[24:25], v{s.VT}, s[36:39], s89 offen{fl}', 's_add_u32 s88, s88, 114688', 's_add_u32 s89, s89, 114688']
        elif e[0] == 'Q':
            L = [f'buffer_store_dwordx4 v[24:27], v{s.VT}, s[44:47], s99 offen', 's_add_u32 s99, s99, 1024']
        elif e[0] == 'Y':
            L = ['buffer_load_dword v22, v21, s[44:47], s88 offen', 's_add_u32 s88, s88, s99', 's_cmp_eq_u32 s84, 3', 's_cselect_b32 s88, s89, s88', 's_cselect_b32 s99, 4096, s99',
                 's_cmp_eq_u32 s84, 5', 's_cselect_b32 s88, 0x7000000, s88']
        else:
            L.append(s.tok(e[1], e[2]))
            if e[2] == 3: L.append('s_add_u32 s82, s82, 4096')
        return L
    def main(s):
        a = s.a
        S = s.S = Sched()
        for s_ in range(-4, 8):
            for P in range(4):
                S.mark((s_, P))
                k = s.kof(s_, P) + s.ND - 1
                t0 = 2 if P in (0, 2) else 0
                S.add([('D', s_ + 2, 2 * P), ('T', k, t0), ('D', s_ + 2, 2 * P + 1), ('T', k, t0 + 1)])
                if opt('pt') & 8 and s_ % 2 == 0 and P == 1: S.add([('Y', s_, 0)])
                if opt('psx', 0) and P == 2 and s_ & 1: S.add([('Q', s_, 0)])
                if opt('ps', 0) and P in (1, 3): S.add([('Z', s_, 2 * (s_ & 1) + (P >> 1))])
        vm_bar = min(S.younger(('D', 4), (4, 0)), S.younger(('D', 5), (5, 0)))
        vm_p1 = min(S.younger(('T', 8), (4, 1)), S.younger(('T', 10), (5, 1)))
        vm_p3 = min(S.younger(('T', 9), (4, 3)), S.younger(('T', 11), (5, 3)))
        if opt('pt') & 8:
            srd(a, 44, P_WS, 24 * MB, WS_HF)
            a.e('v_and_b32 v21, 31, v2')
            a.e('v_lshlrev_b32 v21, 7, v21')
            a.e('s_lshl_b32 s56, s80, 2')
            a.e(f's_add_u32 s56, s56, s{S_W}')
            a.e(f's_mul_i32 s88, s56, {4*114688}')
            a.e('s_mul_i32 s57, s81, 7')
            a.e('s_lshr_b32 s57, s57, 1')
            a.e('s_lshl_b32 s57, s57, 10')
            a.e('s_add_u32 s88, s88, s57')
            a.e('s_lshl_b32 s89, s2, 2')
            a.e(f's_add_u32 s89, s89, s{S_W}')
            a.e('s_lshl_b32 s89, s89, 13')
            a.e(f's_add_u32 s89, s89, {16*MB}')
            a.e('s_mov_b32 s99, 114688')
        a.e(f's_lshl_b32 s56, s80, {5+fsh()}')
        a.e(f's_add_u32 s56, s56, {F2}')
        if opt('psx', 0):
            srd(a, 44, P_WS, 8 * MB, WS_XP)
            a.e('s_lshl_b32 s99, s2, 2')
            a.e(f's_add_u32 s99, s99, s{S_W}')
            a.e('s_lshl_b32 s99, s99, 13')
        if opt('ps', 0):
            a.e('s_mov_b32 s88, s85')
            a.e('s_mov_b32 s89, s86')
            for r in range(4): a.e(f'v_mov_b32 v{24+r}, 0')
        a.e('s_mov_b32 s82, 0')
        a.e('s_mov_b32 s83, 0')
        a.e('s_mov_b32 s84, 0')
        for t in range(6):
            for l in s.rd(0, t): a.e(l)
        stamp(a, 10)
        a.e('s_waitcnt lgkmcnt(12)')
        wait_flags(a, 56, 19, 20)
        stamp(a, 11)
        pro = [e for e in S.ev[:S.marks[(0, 0)]] if e[1] >= 0 and e[0] == 'T'] + [('X', i, 0) for i in range(4)]
        for e in pro + S.ev[S.marks[(0, 0)]:S.marks[(0, 1)]]:
            if e[0] == 'X':
                a.e(f'buffer_store_dwordx4 a[{92+4*e[1]}:{95+4*e[1]}], v{s.VT}, s[40:43], s96 offen offset:{1024*e[1]} sc1')
                continue
            for l in s.ev_ins(e):
                a.e(l)
                if 'm0' in l: a.e('s_nop 0')
        act = pro + S.ev[S.marks[(0, 0)]:]
        off = len(pro) - S.marks[(0, 0)]
        s.startup = {}
        need = -1
        for s_ in range(0, 6):
            for P, tags, N in ((0, [('D', s_)], vm_bar), (1, [('T', 2 * s_)], vm_p1), (3, [('T', 2 * s_ + 1)], vm_p3)):
                if (s_, P) == (0, 0): continue
                site = S.marks[(s_, P)] + off
                for tg in tags:
                    idx = [i for i, e in enumerate(act) if e[:2] == tg]
                    if not idx: continue
                    if site - max(idx) - 1 < N: need = max(need, max(idx))
        if need >= 0:
            a.e(f's_waitcnt vmcnt({S.marks[(0, 1)] + off - need - 1})')
        a.e('s_branch L_g1_P1')
        s.snake = 0
        a.e('L_g1_loop:')
        for s_ in (4, 5):
            a.e(f's_add_u32 s83, s83, {G1_STG}')
            a.e('s_and_b32 s83, s83, 0x1ffff')
            a.e(f's_waitcnt vmcnt({vm_bar})')
            a.e('s_barrier')
            s.phase(s_, 0)
            if s_ == 4: a.e('L_g1_P1:')
            a.e(f's_waitcnt vmcnt({vm_p1})')
            s.phase(s_, 1)
            s.phase(s_, 2)
            a.e(f's_waitcnt vmcnt({vm_p3})')
            s.phase(s_, 3)
        a.e('s_add_u32 s84, s84, 1')
        a.e('s_cmp_lt_u32 s84, 8')
        a.e('s_cbranch_scc1 L_g1_loop')
        s.phase(6, 0, last=True)
        stamp(a, 12)
    def phase(s, s_, P, last=False):
        a = s.a; S = s.S
        kbuf = s.kof(s_, P) % s.ND
        mat = (P + 1) & 1
        items = []
        if not last:
            nxt = S.marks[(s_, P + 1)] if P < 3 else S.marks[(s_ + 1, 0)]
            items = [s.ev_ins(e) for e in S.ev[S.marks[(s_, P)]:nxt]]
        slots = [[] for _ in range(7)]
        for p_, it in zip([1, 2, 4, 5, 6], items): slots[p_] = it
        if P == 0 and not last:
            slots[0] = [f'v_add_u32 v{s.VR}, s83, v{s.VL}']
        for t in range(7):
            a.e(f's_waitcnt lgkmcnt({10 if not (last and t) else 12-2*t})')
            R = s.rd(P - 1, 6) if t == 0 else ([] if last else s.rd(P, t - 1))
            X = list(slots[t])
            pre = [x for x in X if 'm0' in x]
            X = [x for x in X if 'm0' not in x]
            gaps = [[] for _ in range(4)]
            if R: gaps[0] = pre + [R[0]]; gaps[1] = [R[1]]
            gaps[2] = X[:1]; gaps[3] = X[1:]
            order = [0, 1, 2, 3]
            if s.snake & 1: order.reverse()
            s.snake += 1
            for n, tm in enumerate(order):
                c = s.ACC + 4 * ((mat * 7 + t) * 4 + tm)
                tf = s.TF + 4 * (4 * kbuf + tm)
                if not opt('g1x') & 1: a.e(f'v_mfma_f32_16x16x32_bf16 v[{c}:{c+3}], a[{s.WF+4*t}:{s.WF+4*t+3}], a[{tf}:{tf+3}], v[{c}:{c+3}]')
                for x in gaps[n]:
                    if opt('g1x') & 2 and x.startswith('ds_'): continue
                    if opt('g1x') & 4 and x.startswith('buffer'): continue
                    a.e(x)
    def epilogue(s, g2):
        a = s.a
        L = Lin(a)
        a.e('s_mov_b32 s58, 0xbfb8aa3b')
        a.e('s_mov_b32 s59, 0xbfb8aa3b')
        g2.early(L)
        T = 8
        k = 0
        for tm in range(4):
            for u in range(4):
                O = (20, 24)[k & 1]
                fill = g2.epi_fill(k)
                def F(n=1):
                    for _ in range(n):
                        if fill: fill.pop(0)()
                tiles = [2 * u, 2 * u + 1] if u < 3 else [6]
                gs = []; us = []
                for t in tiles:
                    gs += [s.ACC + 4 * (t * 4 + tm), s.ACC + 4 * (t * 4 + tm) + 2]
                    us += [s.ACC + 4 * ((7 + t) * 4 + tm), s.ACC + 4 * ((7 + t) * 4 + tm) + 2]
                n = len(gs)
                nins = 9 * n
                cnt = [0]; ev_ = max(1, nins // (len(fill) + 1))
                def V(t):
                    a.e(t); cnt[0] += 1
                    if cnt[0] % ev_ == 0: F(1)
                for q in range(n): V(f'v_pk_mul_f32 v[{T+2*q}:{T+2*q+1}], v[{gs[q]}:{gs[q]+1}], s[58:59]')
                for q in range(2 * n): V(f'v_exp_f32 v{T+q}, v{T+q}')
                for q in range(n): V(f'v_pk_add_f32 v[{T+2*q}:{T+2*q+1}], v[{T+2*q}:{T+2*q+1}], 1.0 op_sel_hi:[1,0]')
                for q in range(2 * n): V(f'v_rcp_f32 v{T+q}, v{T+q}')
                for q in range(n): V(f'v_pk_mul_f32 v[{gs[q]}:{gs[q]+1}], v[{gs[q]}:{gs[q]+1}], v[{us[q]}:{us[q]+1}]')
                for q in range(n): V(f'v_pk_mul_f32 v[{T+2*q}:{T+2*q+1}], v[{T+2*q}:{T+2*q+1}], v[{gs[q]}:{gs[q]+1}]')
                for q in range(n): V(f'v_cvt_pk_bf16_f32 v{O+q}, v{T+2*q}, v{T+2*q+1}')
                if u < 3:
                    L.v('st', f'buffer_store_dwordx4 v[{O}:{O+3}], v{s.VT}, s[36:39], s85 offen offset:{1024*u}' + hfl())
                else:
                    L.v('st', f'buffer_store_dwordx2 v[{O}:{O+1}], v{s.VT}, s[36:39], s86 offen' + hfl())
                F(len(fill))
                k += 1
            if tm < 3:
                a.e('s_add_u32 s85, s85, 114688')
                a.e('s_add_u32 s86, s86, 114688')
        a.e(f's_lshl_b32 s87, s91, {fsh()}')
        a.e(f's_add_u32 s87, s87, {F3}')
        stamp(a, 13)
        a.e('L_g2code:')
        g2.post_epilogue()
        signal(a, 87, 5, waitfn=lambda: L.wait(vm=('st',)), wb=(opt('hfl') == 4))
        stamp(a, 18)

class G2:
    ACC, TF, DV, VT, RJ, TR, V1, VO, VF = 32, 96, 28, 16, 3, 8, 12, 13, 14
    REG = 40960
    def __init__(s, a): s.a = a
    def wreg(s, k, j):
        if k < 16: return 'a', 128 + 8 * k + 4 * j
        if k < 32: return 'a', 8 * (k - 16) + 4 * j
        if k < 48: return 'v', 128 + 8 * (k - 32) + 4 * j
        return 'a', 128 + 8 * (k - 48) + 4 * j
    def front_setup(s):
        a = s.a
        a.e('s_and_b32 s76, s2, 1')
        a.e('s_lshr_b32 s56, s2, 3')
        if opt('g2map', 1):
            a.e('s_bfe_u32 s74, s2, 0x10001')
            a.e('s_lshl_b32 s74, s74, 3')
            a.e('s_and_b32 s57, s56, 7')
            a.e('s_add_u32 s74, s74, s57')
            a.e('s_bfe_u32 s75, s2, 0x10002')
            a.e('s_lshl_b32 s75, s75, 2')
            a.e('s_lshr_b32 s57, s56, 3')
            a.e('s_add_u32 s75, s75, s57')
        else:
            a.e('s_bfe_u32 s74, s2, 0x20001')
            a.e('s_lshl_b32 s74, s74, 2')
            a.e('s_and_b32 s57, s56, 3')
            a.e('s_add_u32 s74, s74, s57')
            a.e('s_lshr_b32 s75, s56, 2')
        a.e('v_lshrrev_b32 v252, 2, v2')
        a.e('v_lshlrev_b32 v253, 11, v252')
        a.e('v_lshrrev_b32 v254, 3, v2')
        a.e('v_xor_b32 v254, v254, v2')
        a.e('v_and_b32 v254, 2, v254')
        a.e('v_and_or_b32 v254, v2, 1, v254')
        a.e('v_lshl_add_u32 v248, v254, 4, v253')
        for i in range(1, 4):
            a.e(f'v_add_u32 v{248+i}, {i*(32768-1024)}, v248')
        a.e('s_mul_i32 s56, s76, 3670016')
        a.e('s_lshl_b32 s57, s75, 8')
        a.e('s_add_u32 s56, s56, s57')
        a.e(f's_lshl_b32 s57, s{S_W}, 6')
        a.e('s_add_u32 s56, s56, s57')
        srd(a, 68, P_W2, None, 0, 56)
        a.e('s_sub_u32 s70, 7340032, s56')
        a.e('s_mov_b32 s72, 0')
        a.e('v_lshlrev_b32 v252, 6, v252')
        a.e('v_bfe_u32 v253, v2, 4, 1')
        a.e('v_lshl_add_u32 v252, v253, 5, v252')
        a.e('v_and_b32 v253, 3, v2')
        a.e('v_lshl_add_u32 v252, v253, 3, v252')
        a.e(f's_lshl_b32 s73, s{S_W}, 13')
        a.e('s_add_u32 s73, s73, 65536')
        a.e('v_add_u32 v253, s73, v252')
        a.e('v_xor_b32 v254, 32, v253')
    def fD(s, L, cs):
        a = s.a
        out = []
        for n, c in enumerate(cs):
            out.append(lambda n=n: a.e(f's_add_u32 m0, s73, {4096*n}'))
            for i in range(4):
                def f(i=i, c=c):
                    t = f'buffer_load_dwordx4 v{248+i}, s[68:71], s72 offen offset:{1024*i} lds'
                    if L: L.v(('W', c), t)
                    else: a.e(t)
                    if i == 3: a.e('s_add_u32 s72, s72, 131072')
                out.append(f)
        return out
    def fM(s, L, cs, base=253):
        a = s.a
        out = [lambda: L.wait(vm=(('W', cs[-1]),))]
        for n, c in enumerate(cs):
            for kk in range(2):
                for j in range(2):
                    for h in range(2):
                        r, q = s.wreg(2 * c + kk, j)
                        out.append(lambda r=r, q=q, h=h, j=j, n=n, kk=kk: a.e(f'ds_read_b64_tr_b16 {r}[{q+2*h}:{q+2*h+1}], v{base+j} offset:{4096*n+2048*kk+1024*h}'))
        return out
    def front_save(s):
        a = s.a
        for i in range(4): a.e(f'v_mov_b32 v{s.DV+i}, v{248+i}')
        a.e('v_mov_b32 v7, v252')
    def early(s, L):
        a = s.a; s.L = L
        a.e('s_mov_b32 s80, s74')
        a.e('s_mov_b32 s81, s75')
        a.e('s_mov_b32 s82, s76')
        a.e(f's_mul_i32 s98, s{S_W}, {s.REG}')
        a.e(f'v_add_u32 v{s.RJ}, s98, v7')
        a.e(f'v_xor_b32 v{s.RJ+1}, 32, v{s.RJ}')
        a.e('s_waitcnt vmcnt(0)')
        a.e('s_barrier')
        if opt('cpf2', 0): code_pf(a, 'L_g2code', 'L_end', 17, lambda t: L.v('cp', t))
        s.cell = {}
        s.free = list(range(10))
    def D(s, c):
        L = s.L
        def first():
            s.cell[c] = s.free.pop(0)
            L.e(f's_add_u32 m0, s98, {4096*s.cell[c]}')
        out = [first]
        for i in range(4):
            out.append(lambda i=i: L.v(('W', c), f'buffer_load_dwordx4 v{s.DV+i}, s[68:71], s72 offen offset:{1024*i} lds'))
        out.append(lambda: L.e('s_add_u32 s72, s72, 131072'))
        return out
    def M(s, c):
        L = s.L
        out = []
        for kk in range(2):
            for j in range(2):
                for h in range(2):
                    def f(kk=kk, j=j, h=h):
                        r, n = s.wreg(2 * c + kk, j)
                        L.l(('M', c), f'ds_read_b64_tr_b16 {r}[{n+2*h}:{n+2*h+1}], v{s.RJ+j} offset:{4096*s.cell[c]+2048*kk+1024*h}')
                    out.append(f)
        return out
    def Wv(s, c): return [lambda: s.L.wait(vm=(('W', c),))]
    def Fr(s, cs):
        def f():
            s.L.wait(lg0=True)
            for c in cs: s.free.append(s.cell[c])
        return [f]
    def epi_fill(s, k):
        D, M, Wv, Fr = s.D, s.M, s.Wv, s.Fr
        def cat(*xs): return [y for x in xs for y in x]
        if k == 0: s.A = cat(*[D(c) for c in range(8, 18)])
        n = 5 if k % 4 != 3 else 2
        out, s.A = s.A[:n], s.A[n:]
        if k == 15: out += s.A
        return out
    def post_epilogue(s):
        a = s.a; L = s.L
        a.e(f'v_mov_b32 v{s.TR}, v{s.VT}')
        for q in range(1, 4):
            a.e(f'v_add_u32 v{s.TR+q}, {q*s.REG}, v{s.VT}')
        a.e(f'v_add_u32 v{s.V1}, {114688-2048}, v{s.VT}')
        for r in range(64):
            a.e(f'v_mov_b32 v{s.ACC+r}, 0')
        a.e('s_lshl_b32 s56, s80, 3')
        a.e(f's_lshl_b32 s57, s{S_W}, 1')
        a.e('s_lshl_b32 s58, s82, 2')
        a.e('s_xor_b32 s57, s57, s58')
        a.e('s_add_u32 s56, s56, s57')
        a.e('s_mul_i32 s57, s56, 114688')
        a.e('s_mul_i32 s58, s82, 57344')
        a.e('s_add_u32 s57, s57, s58')
        srd(a, 32, P_WS, 114688 + 57344, WS_HF, 57)
        a.e('v_and_b32 v5, 15, v2')
        a.e('v_lshlrev_b32 v5, 11, v5')
        a.e('v_lshrrev_b32 v6, 4, v2')
        a.e(f'v_lshl_add_u32 v{s.VO}, v6, 3, v5')
        a.e('s_lshl_b32 s85, s80, 18')
        a.e('s_lshl_b32 s57, s82, 17')
        a.e('s_add_u32 s85, s85, s57')
        a.e('s_lshl_b32 s57, s81, 8')
        a.e('s_add_u32 s85, s85, s57')
        a.e(f's_lshl_b32 s57, s{S_W}, 6')
        a.e('s_add_u32 s85, s85, s57')
        a.e(f'v_and_b32 v{s.VF}, 31, v2')
        a.e(f'v_lshlrev_b32 v{s.VF}, {fsh()}, v{s.VF}')
    def main(s):
        a = s.a; L = s.L
        a.e('s_lshr_b32 s56, s80, 1')
        a.e(f's_lshl_b32 s56, s56, {5+fsh()}')
        a.e(f's_add_u32 s56, s56, {F3}')
        srd(a, 44, P_WS, 4 * MB, WS_H)
        a.e('s_mov_b32 s84, 0')
        L.wait(vm0=True)
        for c in range(8, 18):
            for f in s.M(c): f()
        for f in s.Fr(range(8, 18)): f()
        wait_flags(a, 56, s.VF, 20)
        stamp(a, 14)
        NS = 28
        slot = {}
        def TD(st):
            slot[st] = s.free.pop(0)
            out = [lambda: L.e(f's_add_u32 m0, s98, {4096*slot[st]}')]
            for i in range(4):
                v = s.VT if i < 2 else s.V1
                out.append(lambda i=i, v=v: L.v(('T', st), f'buffer_load_dwordx4 v{v}, s[32:35], s84 offen offset:{1024*i} sc1 lds'))
            out.append(lambda: L.e('s_add_u32 s84, s84, 2048'))
            return out
        def RD(k, tm):
            f = s.TF + 4 * tm
            L.l(('R', k, tm), f'ds_read_b128 v[{f}:{f+3}], v{s.TR+(tm>>1)} offset:{4096*slot[k>>1]+2048*(tm&1)+1024*(k&1)}')
        nxt = 0
        while len(s.free) > opt('wc', 2):
            fs = TD(nxt); fs[0](); a.e('s_nop 0')
            for f in fs[1:]: f()
            nxt += 1
        wfree, s.free = s.free, []
        L.wait(vm=(('T', 0),))
        a.e('s_barrier')
        for tm in range(7): RD(0, tm)
        todo = list(range(18, 28)); fly = []; pend = []
        HR = 128
        for k in range(56):
            st = k >> 1
            fill = []
            if k & 1 and st + 1 < NS:
                L.wait(vm=(('T', st + 1),))
                a.e('s_barrier')
                if st >= 1: s.free.append(slot[st - 1])
            if s.free and nxt < NS and k & 1:
                fill += TD(nxt); nxt += 1
            if not k & 1:
                if fly and k >= fly[0][1] + opt('wlat', 6):
                    c = fly.pop(0)[0]
                    assert c < 24 or k >= 2 * (c - 24) + 2
                    assert k + 1 < 2 * c
                    fill += s.Wv(c) + s.M(c)
                    pend.append(c)
                if todo and wfree:
                    c = todo.pop(0)
                    keep, s.free = s.free, [wfree.pop(0)]
                    fs = s.D(c); fs[0].pre = True
                    s.cell[c] = s.free[0]; s.free = keep
                    fill += [lambda c=c: L.e(f's_add_u32 m0, s98, {4096*s.cell[c]}')] + fs[1:]
                    fly.append((c, k))
            if k == 50:
                for tm in range(4):
                    for j in range(2):
                        def f(tm=tm, j=j):
                            if j == 0 and tm: L.e(f's_add_u32 s86, s85, {32768*tm}')
                            r = HR + 4 * tm + 2 * j
                            L.v('h', f'buffer_load_dwordx2 v[{r}:{r+1}], v{s.VO}, s[44:47], s{86 if tm else 85} offen offset:{32*j} sc1')
                        fill.append(f)
            per = -(-(len(fill) + 1) // 8)
            for tm in range(8):
                need = [('R', k, tm)]
                if tm == 0 and k >= 36 and not k & 1: need.append(('M', k >> 1))
                L.wait(lg=need)
                order = [0, 1] if tm % 2 == 0 else [1, 0]
                for n, j in enumerate(order):
                    r, w = s.wreg(k, j)
                    c = s.ACC + 4 * (2 * tm + j)
                    tf = s.TF + 4 * tm
                    if not opt('g2x') & 1:
                        a.e(f'v_mfma_f32_16x16x32_bf16 v[{c}:{c+3}], {r}[{w}:{w+3}], v[{tf}:{tf+3}], v[{c}:{c+3}]')
                    if n == 0:
                        if tm == 0: RD(k, 7)
                        elif k + 1 < 56: RD(k + 1, tm - 1)
                    else:
                        for _ in range(per):
                            if fill:
                                fill.pop(0)()
                                if 'm0' in a.lines[-1]: break
            while fill:
                if 'm0' in a.lines[-1]: a.e('s_nop 0')
                fill.pop(0)()
            for c in list(pend):
                if not any(x == ('M', c) for x in L.lg):
                    pend.remove(c)
                    (wfree if todo else s.free).append(s.cell[c])
        assert not todo and not fly and not pend and nxt == NS
        stamp(a, 15)
        a.e('s_lshl_b32 s56, s2, 2')
        a.e(f's_add_u32 s56, s56, s{S_W}')
        a.e('s_lshl_b32 s57, s56, 13')
        a.e('s_xor_b32 s58, s57, 0x8000')
        a.e('s_lshl_b32 s56, s56, 6')
        a.e(f's_add_u32 s56, s56, {F4}')
        a.e('s_xor_b32 s59, s56, 0x100')
        srd(a, 40, P_WS, 8 * MB, WS_XP)
        a.e('s_add_u32 s87, s57, 4096')
        for q in range(8):
            c = s.ACC + 32 + 4 * q
            a.e(f'buffer_store_dwordx4 v[{c}:{c+3}], v{s.VT}, s[40:43], s{57 if q < 4 else 87} offen offset:{1024*(q&3)} sc1')
        srd(a, 48, P_OUT, 4 * MB)
        a.e('v_mov_b32 v20, 0')
        a.e(f'v_mov_b32 v21, s{S_NONCE}')
        H = 160
        a.e('s_waitcnt vmcnt(8)')
        for q in range(16):
            unpack(a, H + 2 * q, H + 2 * q + 1, HR + q)
        a.e('s_waitcnt vmcnt(0)')
        stamp(a, 16)
        a.e('s_mov_b64 exec, 1')
        a.e(f'buffer_store_dword v21, v20, s[{S_FLG}:{S_FLG+3}], s56 offen sc1')
        a.e('s_mov_b64 exec, -1')
        wait_flags(a, 59, 20, 22, solo=0)
        stamp(a, 17)
        a.e('s_add_u32 s87, s58, 4096')
        P1 = 96
        for q in range(8):
            a.e(f'buffer_load_dwordx4 v[{P1+4*q}:{P1+4*q+3}], v{s.VT}, s[40:43], s{58 if q < 4 else 87} offen offset:{1024*(q&3)} sc1')
        for q in range(8):
            tm, j = q >> 1, q & 1
            if j == 0 and tm: a.e(f's_add_u32 s85, s85, 32768')
            a.e('s_waitcnt vmcnt(7)')
            c = s.ACC + 4 * q
            for e in range(2):
                x = c + 2 * e; y = P1 + 4 * q + 2 * e; h = H + 4 * q + 2 * e
                a.e(f'v_pk_add_f32 v[{x}:{x+1}], v[{x}:{x+1}], v[{y}:{y+1}]')
                a.e(f'v_cvt_pk_bf16_f32 v{y}, v{x}, v{x+1}')
                unpack(a, x, x + 1, y)
                a.e(f'v_pk_add_f32 v[{x}:{x+1}], v[{x}:{x+1}], v[{h}:{h+1}]')
                a.e(f'v_cvt_pk_bf16_f32 v{128+2*q+e}, v{x}, v{x+1}')
            a.e(f'buffer_store_dwordx2 v[{128+2*q}:{128+2*q+1}], v{s.VO}, s[48:51], s85 offen offset:{32*j}')
        LIN[0] = None

def gen_dg(a):
    d = opt('dg'); F, ia, ib = d // 10000, d // 100 % 100, d % 100
    m = opt('dgm')
    a.raw('.globl dg_kernel\n.p2align 8\n.type dg_kernel,@function\ndg_kernel:')
    a.e('s_load_dwordx2 s[10:11], s[0:1], 96')
    a.e('s_memrealtime s[12:13]')
    a.e('s_waitcnt lgkmcnt(0)')
    a.e(f's_add_u32 s10, s10, {STAMP_BASE + opt("dgw", 0) * 128:#x}')
    a.e('s_addc_u32 s11, s11, 0')
    if not m:
        a.e(f's_load_dword s4, s[10:11], {4*ia}')
        a.e(f's_load_dword s5, s[10:11], {4*ib}')
        a.e('s_waitcnt lgkmcnt(0)')
    else:
        a.e('s_mov_b32 s20, s10\ns_mov_b32 s21, s11\ns_mov_b32 s22, 0x20000\ns_mov_b32 s23, 0x20000')
        a.e('v_lshlrev_b32 v1, 7, v0')
        for i in range(16):
            a.e(f's_mov_b32 s6, {i*8192}')
            a.e(f'buffer_load_dword v{8+i}, v1, s[20:23], s6 offen offset:{4*ia}')
            a.e(f'buffer_load_dword v{24+i}, v1, s[20:23], s6 offen offset:{4*ib}')
        a.e('s_waitcnt vmcnt(0)')
        for i in range(32):
            a.e(f'v_sub_u32 v{8+i}, s12, v{8+i}')
        opa = 'v_max_u32' if m != 3 else 'v_add_u32'
        opb = {1: 'v_min_u32', 2: 'v_max_u32', 3: 'v_add_u32'}[m]
        for i in range(1, 16):
            a.e(f'{opa} v8, v8, v{8+i}')
            a.e(f'{opb} v24, v24, v{24+i}')
        a.e('s_nop 1')
        a.e('v_readlane_b32 s4, v8, 0')
        a.e('v_readlane_b32 s5, v24, 0')
        sa = 's_max_u32' if m != 3 else 's_add_u32'
        sb = {1: 's_min_u32', 2: 's_max_u32', 3: 's_add_u32'}[m]
        for l in range(1, 64):
            a.e(f'v_readlane_b32 s6, v8, {l}')
            a.e(f'v_readlane_b32 s7, v24, {l}')
            a.e('s_nop 0')
            a.e(f'{sa} s4, s4, s6')
            a.e(f'{sb} s5, s5, s7')
        a.e('s_sub_u32 s5, s4, s5')
        if m == 3: a.e('s_lshr_b32 s5, s5, 10')
        a.e('s_mov_b32 s4, 0')
        a.e('s_memrealtime s[12:13]')
        a.e('s_waitcnt lgkmcnt(0)')
    a.e('s_sub_u32 s4, s5, s4')
    a.e('s_min_u32 s4, s4, 10000')
    a.e(f's_mul_i32 s4, s4, {F}')
    a.e('L_dg:')
    a.e('s_memrealtime s[14:15]')
    a.e('s_waitcnt lgkmcnt(0)')
    a.e('s_sub_u32 s5, s14, s12')
    a.e('s_cmp_lt_u32 s5, s4')
    a.e('s_cbranch_scc1 L_dg')
    a.e('s_endpgm')

def build():
    a = Asm()
    hdr = open('cdna_kernels/' + NAME + '.s.ref').read().split('\n')
    cm = [l for l in hdr if l.startswith(';') and '@launch' not in l and 'Override launch' not in l and 'grid=ceil' not in l]
    out = '\n'.join(cm) + '\n'
    if opt('aslist') or opt('dg'):
        out += f'; @launch kernel={KNAME} grid=(256,1,1) block=(256,1,1) lds=163840\n'
        if opt('dg'): out += '; @launch kernel=dg_kernel grid=(1,1,1) block=(64,1,1) lds=0\n'
    else:
        out += '; @launch grid=(256,1,1) block=(256,1,1) lds=163840\n'
    a.raw('.amdgcn_target "amdgcn-amd-amdhsa--gfx950"')
    a.raw('.text')
    gen(a)
    if opt('dg'): gen_dg(a)
    body = a.text()
    errs = check_hazards(body)
    errs += check_waits(body, KNAME, loop_iters=2, take_fwd=('L_nonce_ok', 'L_nonce_skip', 'L_clean_skip') + tuple(f'L_sig{i}' for i in range(20)) + tuple(f'L_poll{i}x' for i in range(20)))
    errs += check_waits(body, KNAME, loop_iters=2, take_fwd=('L_nonce_ok',) + (() if opt('solo', 1) else tuple(f'L_poll{i}x' for i in range(20))))
    for e in errs[:8]: print(e, file=sys.stderr)
    na = 256
    out += body + f'''.section .rodata,"a"
.p2align 6
.amdhsa_kernel {KNAME}
  .amdhsa_next_free_vgpr {256+na}
  .amdhsa_next_free_sgpr 102
  .amdhsa_accum_offset 256
  .amdhsa_group_segment_fixed_size 0
  .amdhsa_kernarg_size 104
  .amdhsa_user_sgpr_count 2
  .amdhsa_user_sgpr_kernarg_segment_ptr 1
  .amdhsa_system_sgpr_workgroup_id_x 1
  .amdhsa_float_denorm_mode_32 3
.end_amdhsa_kernel
'''
    if opt('dg'):
        out += '''.p2align 6
.amdhsa_kernel dg_kernel
  .amdhsa_next_free_vgpr 48
  .amdhsa_next_free_sgpr 32
  .amdhsa_accum_offset 48
  .amdhsa_group_segment_fixed_size 0
  .amdhsa_kernarg_size 104
  .amdhsa_user_sgpr_count 2
  .amdhsa_user_sgpr_kernarg_segment_ptr 1
  .amdhsa_system_sgpr_workgroup_id_x 1
.end_amdhsa_kernel
'''
    return out, errs

if __name__ == '__main__':
    outp = sys.argv[1]
    for kv in sys.argv[2:]:
        k, v = kv.split('=')
        OPT[k] = int(v)
    t, errs = build()
    open(outp, 'w').write(t)
    print('written', outp, len(t), 'bytes;', len(errs), 'checker errors')
```

```python
import sys, os
from asmlib import *

NAME = 'sequential_preLN__ssm_conv_h3__glu_gated_swiglu__prompt'
KNAME = NAME + '_kernel'
MB = 1 << 20
WS0 = int(os.environ.get('WS0', '0')) * MB
WS_UB, WS_Y2, WS_H, WS_HNF, WS_HF, WS_XP, WS_FLG = [WS0 + x * MB for x in (0, 4, 8, 12, 16, 32, 40)]
STAMP_BASE = 64 * MB
OPT = {}
def opt(k, d=0): return OPT.get(k, d)

P_Q, P_K, P_V, P_SH, P_SSMK, P_D, P_X, P_W1, P_W3, P_W2, P_OUT, P_DBG, P_WS = [4 + 2 * i for i in range(13)]
S_W, S_NONCE, S_MASK = 30, 31, 90
S_FLG = 92
F0, F1, F2, F3, F4 = 0, 32768, 65536, 98304, 131072
FLG_SIZE = 262144
LDS_KA = 98304
KA_REG = 13056
NSTAMP = 20
AST = 128

def srd(a, d, p, size, add=0, addreg=None):
    if add or addreg is not None:
        if add:
            a.e(f's_add_u32 s{d}, s{p}, {add:#x}')
            a.e(f's_addc_u32 s{d+1}, s{p+1}, 0')
            if addreg is not None:
                a.e(f's_add_u32 s{d}, s{d}, s{addreg}')
                a.e(f's_addc_u32 s{d+1}, s{d+1}, 0')
        else:
            a.e(f's_add_u32 s{d}, s{p}, s{addreg}')
            a.e(f's_addc_u32 s{d+1}, s{p+1}, 0')
    else:
        a.e(f's_mov_b32 s{d}, s{p}')
        a.e(f's_mov_b32 s{d+1}, s{p+1}')
    if size is not None:
        a.e(f's_mov_b32 s{d+2}, {size:#x}')
    a.e(f's_mov_b32 s{d+3}, 0x20000')

def stamp(a, i):
    if not opt('stamp'): return
    a.e('s_memrealtime s[60:61]')
    if i == 0: a.e('s_memtime s[62:63]')
    cy = {11: 20, 12: 21, 14: 22, 15: 23, 4: 24, 5: 25}.get(i)
    if cy: a.e('s_memtime s[66:67]')
    a.e('s_waitcnt lgkmcnt(0)')
    a.e(f'v_writelane_b32 v1, s60, {i}')
    if cy: a.e(f'v_writelane_b32 v1, s66, {cy}')
    if LIN[0]: LIN[0].lg = []

def stamp_out(a, n):
    if not opt('stamp'): return
    a.e('s_waitcnt vmcnt(0)')
    stamp(a, n - 1)
    a.e('s_memtime s[64:65]')
    a.e('s_waitcnt lgkmcnt(0)')
    srd(a, 32, P_WS, 1 * MB, STAMP_BASE)
    a.e('s_lshl_b32 s84, s2, 2')
    a.e(f's_add_u32 s84, s84, s{S_W}')
    a.e('s_lshl_b32 s84, s84, 7')
    a.e('s_sub_u32 s64, s64, s62')
    a.e('v_writelane_b32 v1, s64, 31')
    a.e('v_mbcnt_lo_u32_b32 v2, -1, 0')
    a.e('v_lshlrev_b32 v2, 2, v2')
    a.e('s_mov_b64 exec, 0xffffffff')
    a.e('buffer_store_dword v1, v2, s[32:35], s84 offen')

LIN = [None]
class Lin:
    def __init__(s, a): s.a = a; s.vm = []; s.lg = []; LIN[0] = s
    def e(s, t): s.a.e(t)
    def v(s, tag, t): s.a.e(t); s.vm.append(tag)
    def l(s, tag, t): s.a.e(t); s.lg.append(tag)
    def _n(s, q, tags, cap):
        idx = [i for i, x in enumerate(q) if x in tags]
        if not idx: return None
        n = len(q) - max(idx) - 1
        return min(n, cap)
    def wait(s, vm=(), lg=(), vm0=False, lg0=False):
        nv = 0 if vm0 else s._n(s.vm, vm, 63)
        nl = 0 if lg0 else s._n(s.lg, lg, 15)
        t = ''
        if nv is not None:
            t += f' vmcnt({nv})'; s.vm = s.vm[len(s.vm) - nv:] if nv else []
        if nl is not None:
            t += f' lgkmcnt({nl})'; s.lg = s.lg[len(s.lg) - nl:] if nl else []
        if t: s.a.e('s_waitcnt' + t)

def unpack(a, dlo, dhi, src):
    a.e(f'v_lshlrev_b32 v{dlo}, 16, v{src}')
    a.e(f'v_and_b32 v{dhi}, s{S_MASK}, v{src}')

def hfl():
    return [' sc1', ' sc0 sc1', ' sc1 nt', ' sc0 sc1 nt', ''][opt('hfl')]

def code_pf(a, lab_from, lab_to, vt, emit=None):
    _uid[0] += 1
    L = f'L_pc{_uid[0]}'
    a.e('s_getpc_b64 s[78:79]')
    a.e(f'{L}:')
    a.e(f's_lshl_b32 s77, s{S_W}, 13')
    a.e(f's_add_u32 s77, s77, {lab_from}-{L}')
    a.e(f'v_lshl_add_u32 v{vt}, v2, 7, s77')
    a.e(f'v_min_u32 v{vt}, {lab_to}-{L}, v{vt}')
    t = f'global_load_dword v{vt+1}, v{vt}, s[78:79]'
    if emit: emit(t)
    else: a.e(t)

_uid = [0]
def signal(a, soff, vt, waitfn=None, wb=False):
    _uid[0] += 1
    L = f'L_sig{_uid[0]}'
    a.e(f'v_mov_b32 v{vt}, 0')
    a.e(f'v_mov_b32 v{vt+1}, s{S_NONCE}')
    a.e(f's_cmp_eq_u32 s{S_W}, 0')
    if waitfn: waitfn()
    else: a.e('s_waitcnt vmcnt(0)')
    a.e('s_barrier')
    a.e(f's_cbranch_scc0 {L}')
    if wb:
        a.e('buffer_wbl2 sc1')
        a.e('s_waitcnt vmcnt(0)')
    a.e('s_mov_b64 exec, 1')
    a.e(f'buffer_store_dword v{vt+1}, v{vt}, s[{S_FLG}:{S_FLG+3}], s{soff} offen sc1')
    a.e('s_mov_b64 exec, -1')
    a.e(f'{L}:')

def fsh():
    return opt('fs', 32).bit_length() - 1
def f1sh():
    return opt('f1s', 32).bit_length() - 1

def wait_flags(a, soff, voff, vd, n=64, solo=None):
    _uid[0] += 1
    L = f'L_poll{_uid[0]}'
    if solo is None: solo = opt('solo', 1)
    if solo:
        a.e(f's_cmp_lg_u32 s{S_W}, 0')
        a.e(f's_cbranch_scc1 {L}x')
    a.e(f'{L}:')
    if n == 256:
        if f1sh() == 2:
            a.e(f'buffer_load_dwordx4 v[{vd}:{vd+3}], v{voff}, s[{S_FLG}:{S_FLG+3}], s{soff} offen sc1')
        else:
            for i in range(4):
                a.e(f's_add_u32 s89, s{soff}, {i*(64<<f1sh())}')
                a.e(f'buffer_load_dword v{vd+i}, v{voff}, s[{S_FLG}:{S_FLG+3}], s89 offen sc1')
        a.e('s_waitcnt vmcnt(0)')
        a.e(f'v_xor_b32 v{vd}, s{S_NONCE}, v{vd}')
        a.e(f'v_xor_b32 v{vd+1}, s{S_NONCE}, v{vd+1}')
        a.e(f'v_xor_b32 v{vd+2}, s{S_NONCE}, v{vd+2}')
        a.e(f'v_xor_b32 v{vd+3}, s{S_NONCE}, v{vd+3}')
        a.e(f'v_or3_b32 v{vd}, v{vd}, v{vd+1}, v{vd+2}')
        a.e(f'v_or_b32 v{vd}, v{vd}, v{vd+3}')
        a.e(f'v_cmp_ne_u32 vcc, 0, v{vd}')
    else:
        a.e(f'buffer_load_dword v{vd}, v{voff}, s[{S_FLG}:{S_FLG+3}], s{soff} offen sc1')
        a.e('s_waitcnt vmcnt(0)')
        a.e(f'v_cmp_ne_u32 vcc, s{S_NONCE}, v{vd}')
    a.e('s_add_u32 s3, s3, 1')
    a.e(f's_cmp_gt_u32 s3, {opt("spin", 200000)}')
    a.e(f's_cbranch_scc1 {L}x')
    a.e(f's_cbranch_vccz {L}x')
    if opt('sleep'): a.e(f's_sleep {opt("sleep")}')
    a.e(f's_branch {L}')
    a.e(f'{L}x:')
    if solo: a.e('s_barrier')

def wave_sum2(a, va, vb, sa, sb):
    for mod in ('row_shr:1 row_mask:0xf bank_mask:0xf bound_ctrl:0', 'row_shr:2 row_mask:0xf bank_mask:0xf bound_ctrl:0',
                'row_shr:4 row_mask:0xf bank_mask:0xf bound_ctrl:0', 'row_shr:8 row_mask:0xf bank_mask:0xf bound_ctrl:0',
                'row_bcast:15 row_mask:0xa bank_mask:0xf', 'row_bcast:31 row_mask:0xc bank_mask:0xf'):
        a.e('s_nop 0')
        a.e(f'v_add_f32_dpp v{va}, v{va}, v{va} {mod}')
        a.e(f'v_add_f32_dpp v{vb}, v{vb}, v{vb} {mod}')
    a.e(f'v_readlane_b32 s{sa}, v{va}, 63')
    a.e(f'v_readlane_b32 s{sb}, v{vb}, 63')

def ln2(a, X, T, M, R, C):
    def both(f):
        for r in range(2): f(r)
    for q in range(4):
        both(lambda r: a.e(f'v_pk_add_f32 v[{T[r]+2*q}:{T[r]+2*q+1}], v[{X[r]+4*q}:{X[r]+4*q+1}], v[{X[r]+4*q+2}:{X[r]+4*q+3}]'))
    both(lambda r: a.e(f'v_pk_add_f32 v[{T[r]}:{T[r]+1}], v[{T[r]}:{T[r]+1}], v[{T[r]+2}:{T[r]+3}]'))
    both(lambda r: a.e(f'v_pk_add_f32 v[{T[r]+4}:{T[r]+5}], v[{T[r]+4}:{T[r]+5}], v[{T[r]+6}:{T[r]+7}]'))
    both(lambda r: a.e(f'v_pk_add_f32 v[{T[r]}:{T[r]+1}], v[{T[r]}:{T[r]+1}], v[{T[r]+4}:{T[r]+5}]'))
    both(lambda r: a.e(f'v_add_f32 v{T[r]}, v{T[r]}, v{T[r]+1}'))
    wave_sum2(a, T[0], T[1], 56, 57)
    a.e('s_nop 0')
    both(lambda r: a.e(f'v_mul_f32 v{M[r]}, s{56+r}, v{C}'))
    both(lambda r: a.e(f'v_mov_b32 v{M[r]+1}, v{M[r]}'))
    for q in range(8):
        both(lambda r: a.e(f'v_pk_add_f32 v[{T[r]+2*q}:{T[r]+2*q+1}], v[{X[r]+2*q}:{X[r]+2*q+1}], v[{M[r]}:{M[r]+1}] neg_lo:[0,1] neg_hi:[0,1]'))
    both(lambda r: a.e(f'v_pk_mul_f32 v[{R[r]}:{R[r]+1}], v[{T[r]}:{T[r]+1}], v[{T[r]}:{T[r]+1}]'))
    for q in range(1, 8):
        both(lambda r: a.e(f'v_pk_fma_f32 v[{R[r]}:{R[r]+1}], v[{T[r]+2*q}:{T[r]+2*q+1}], v[{T[r]+2*q}:{T[r]+2*q+1}], v[{R[r]}:{R[r]+1}]'))
    both(lambda r: a.e(f'v_add_f32 v{R[r]}, v{R[r]}, v{R[r]+1}'))
    def rbf(v):
        a.e(f'v_cvt_pk_bf16_f32 v{v}, v{v}, v{v}')
        a.e(f'v_and_b32 v{v}, s{S_MASK}, v{v}')
    both(lambda r: rbf(M[r]))
    wave_sum2(a, R[0], R[1], 58, 59)
    both(lambda r: a.e(f'v_mov_b32 v{M[r]+1}, v{M[r]}'))
    both(lambda r: a.e(f'v_mul_f32 v{R[r]}, s{58+r}, v{C}'))
    both(lambda r: rbf(R[r]))
    both(lambda r: a.e(f'v_add_f32 v{R[r]}, 0x3727c5ac, v{R[r]}'))
    both(lambda r: rbf(R[r]))
    both(lambda r: a.e(f'v_sqrt_f32 v{R[r]}, v{R[r]}'))
    for q in range(2):
        both(lambda r: a.e(f'v_pk_add_f32 v[{T[r]+2*q}:{T[r]+2*q+1}], v[{X[r]+2*q}:{X[r]+2*q+1}], v[{M[r]}:{M[r]+1}] neg_lo:[0,1] neg_hi:[0,1]'))
    both(lambda r: rbf(R[r]))
    both(lambda r: a.e(f'v_rcp_f32 v{R[r]}, v{R[r]}'))
    for q in range(2, 8):
        both(lambda r: a.e(f'v_pk_add_f32 v[{T[r]+2*q}:{T[r]+2*q+1}], v[{X[r]+2*q}:{X[r]+2*q+1}], v[{M[r]}:{M[r]+1}] neg_lo:[0,1] neg_hi:[0,1]'))
    both(lambda r: a.e(f'v_mov_b32 v{R[r]+1}, v{R[r]}'))
    for q in range(8):
        both(lambda r: a.e(f'v_pk_mul_f32 v[{T[r]+2*q}:{T[r]+2*q+1}], v[{T[r]+2*q}:{T[r]+2*q+1}], v[{R[r]}:{R[r]+1}]'))

class Sched:
    def __init__(self): self.ev = []; self.marks = {}
    def mark(self, k): self.marks[k] = len(self.ev)
    def add(self, L): self.ev += L
    def younger(self, tag, at):
        last = max(i for i, e in enumerate(self.ev) if e[:2] == tag)
        assert last < self.marks[at], (tag, at)
        return self.marks[at] - last - 1

def gen(a):
    a.raw(f'.globl {KNAME}')
    a.raw('.p2align 8')
    a.raw(f'.type {KNAME},@function')
    a.raw(f'{KNAME}:')
    a.e('s_cmp_ge_u32 s2, 256')
    a.e('s_cbranch_scc1 L_end')
    a.e('s_load_dwordx8 s[4:11], s[0:1], 0')
    a.e('s_load_dwordx8 s[20:27], s[0:1], 64')
    a.e('s_load_dwordx2 s[28:29], s[0:1], 96')
    a.e('s_load_dwordx8 s[12:19], s[0:1], 32')
    a.e('s_memrealtime s[56:57]')
    a.e('v_lshrrev_b32 v1, 6, v0')
    a.e('v_and_b32 v2, 63, v0')
    a.e(f'v_readfirstlane_b32 s{S_W}, v1')
    a.e(f's_mov_b32 s{S_MASK}, 0xffff0000')
    a.e('s_mov_b32 s3, 0')
    a.e('s_bfe_u32 s82, s2, 0x30003')
    a.e('s_and_b32 s83, s2, 7')
    a.e('s_lshr_b32 s84, s2, 6')
    a.e('s_lshl_b32 s84, s84, 3')
    a.e('s_or_b32 s83, s83, s84')
    a.e('v_and_b32 v1, 15, v0')
    a.e('v_lshrrev_b32 v8, 4, v0')
    a.e('s_lshl_b32 s85, s83, 17')
    a.e('s_lshl_b32 s86, s82, 8')
    a.e('s_add_u32 s85, s85, s86')
    a.e('v_lshlrev_b32 v3, 13, v1')
    a.e('v_lshl_add_u32 v3, v8, 4, v3')
    a.e('v_add_u32 v3, s85, v3')
    a.e('v_add_u32 v4, 0xffffe800, v3')
    a.e('v_add_u32 v5, 0xfffff800, v3')
    a.e('v_add_u32 v6, 0x1000, v3')
    a.e('s_lshl_b32 s86, s82, 10')
    a.e('v_lshlrev_b32 v7, 6, v8')
    a.e('v_add_u32 v7, s86, v7')
    a.e('s_lshl_b32 s87, s82, 5')
    a.e('s_add_u32 s87, s87, s83')
    a.e('s_lshl_b32 s88, s87, 14')
    a.e('s_add_u32 s88, s88, 120')
    a.e('v_lshlrev_b32 v160, 10, v8')
    a.e('v_lshlrev_b32 v161, 3, v1')
    a.e('v_sub_u32 v160, v160, v161')
    a.e('v_add_u32 v160, s88, v160')
    a.e(f's_lshl_b32 s87, s87, {fsh()}')
    a.e('v_mov_b32 v162, 0')
    a.e('s_waitcnt lgkmcnt(0)')
    stamp(a, 0)
    srd(a, 32, P_K, 4 * MB)
    srd(a, 36, P_V, 4 * MB)
    srd(a, 40, P_SH, 8192)
    KR, VR_, WR, WU, KU, AC0 = 8, 36, 52, 68, 100, 164
    for j in range(4):
        a.e(f'buffer_load_dwordx4 v[{WR+4*j}:{WR+4*j+3}], v7, s[40:43], 0 offen offset:{16*j}')
    rows = [(4, 0), (4, 2048), (5, 0), (3, 0), (3, 2048), (6, 0), (6, 2048)]
    for r, (vr, off) in enumerate(rows):
        a.e(f'buffer_load_dwordx4 v[{KR+4*r}:{KR+4*r+3}], v{vr}, s[32:35], 0 offen offset:{off}')
    for r, (vr, off) in enumerate(rows[3:]):
        a.e(f'buffer_load_dwordx4 v[{VR_+4*r}:{VR_+4*r+3}], v{vr}, s[36:39], 0 offen offset:{off}')
    ncp = 0
    if opt('cpf', 0):
        a.e('s_getpc_b64 s[58:59]')
        a.e('L_pc:')
        a.e('v_lshlrev_b32 v163, 7, v0')
        a.e('v_min_u32 v163, L_end-L_pc, v163')
        a.e('global_load_dword v161, v163, s[58:59]')
        ncp = 1
    srd(a, 48, P_WS, 4 * MB, WS_UB)
    if opt('pt', 0) & 1:
        a.e('v_lshlrev_b32 v163, 6, v0')
        a.e('s_sub_u32 s58, s88, 120')
        a.e('buffer_load_dword v161, v163, s[48:51], s58 offen')
        ncp += 1
    srd(a, 44, P_DBG, 256)
    a.e('s_or_b32 s56, s56, 1')
    a.e(f's_or_b32 s57, s2, s{S_W}')
    a.e('s_cmp_lg_u32 s57, 0')
    a.e('s_cbranch_scc1 L_nonce_skip')
    a.e('v_mov_b32 v163, s56')
    a.e('s_mov_b64 exec, 1')
    a.e('buffer_store_dword v163, v162, s[44:47], 0 offen sc1')
    a.e('s_mov_b64 exec, -1')
    a.e('s_waitcnt vmcnt(0)')
    a.e('L_nonce_skip:')
    srd(a, S_FLG, P_WS, FLG_SIZE, WS_FLG)
    a.e(f's_waitcnt vmcnt({11+ncp})')
    for e in range(8):
        unpack(a, WU + 0 * 8 + e, WU + 1 * 8 + e, WR + 2 * e)
        unpack(a, WU + 2 * 8 + e, WU + 3 * 8 + e, WR + 2 * e + 1)
    for r in range(7):
        a.e(f's_waitcnt vmcnt({10-r+ncp})')
        for q in range(4):
            unpack(a, KU + 8 * r + 2 * q, KU + 8 * r + 2 * q + 1, KR + 4 * r + q)
        if r >= 3:
            i = r - 3
            for j in range(4):
                for q in range(4):
                    d = AC0 + 8 * i + 2 * q
                    k = KU + 8 * (i + 3 - j) + 2 * q
                    w = WU + 8 * j + 2 * q
                    if j == 0:
                        a.e(f'v_pk_mul_f32 v[{d}:{d+1}], v[{k}:{k+1}], v[{w}:{w+1}]')
                    else:
                        a.e(f'v_pk_fma_f32 v[{d}:{d+1}], v[{k}:{k+1}], v[{w}:{w+1}], v[{d}:{d+1}]')
    VU = 8
    for i in range(4):
        a.e(f's_waitcnt vmcnt({3-i+ncp})')
        if i == 3:
            a.e('buffer_load_dword v163, v162, s[44:47], 0 offen sc1')
        for q in range(4):
            unpack(a, VU + 2 * q, VU + 2 * q + 1, VR_ + 4 * i + q)
        for q in range(4):
            d = AC0 + 8 * i + 2 * q
            a.e(f'v_pk_mul_f32 v[{d}:{d+1}], v[{d}:{d+1}], v[{VU+2*q}:{VU+2*q+1}]')
    O = 52
    for e in range(8):
        a.e(f'v_cvt_pk_bf16_f32 v{O+2*e}, v{AC0+24+e}, v{AC0+16+e}')
        a.e(f'v_cvt_pk_bf16_f32 v{O+2*e+1}, v{AC0+8+e}, v{AC0+e}')
        a.e(f'buffer_store_dwordx2 v[{O+2*e}:{O+2*e+1}], v160, s[48:51], 0 offen offset:{128*e} sc1')
    stamp(a, 1)
    a.e('s_and_b32 s82, s2, 7')
    a.e('s_lshr_b32 s83, s2, 3')
    a.e('s_lshl_b32 s84, s83, 2')
    a.e(f's_add_u32 s84, s84, s{S_W}')
    a.e('s_lshl_b32 s85, s82, 7')
    a.e('s_add_u32 s85, s85, s84')
    a.e('s_lshl_b32 s86, s82, 5')
    a.e('s_add_u32 s86, s86, s83')
    a.e(f's_mul_i32 s88, s{S_W}, {KA_REG}')
    a.e(f's_add_u32 s88, s88, {LDS_KA}')
    a.e('s_lshl_b32 s56, s85, 12')
    srd(a, 32, P_SSMK, 4096, 0, 56)
    a.e('s_lshr_b32 s57, s85, 1')
    a.e('s_lshl_b32 s57, s57, 2')
    a.e(f's_load_dword s89, s[{P_D}:{P_D+1}], s57')
    a.e('v_lshlrev_b32 v4, 4, v2')
    KD, KX = 8, 24
    for j in range(4):
        a.e(f'buffer_load_dwordx4 v[{KD+4*j}:{KD+4*j+3}], v4, s[32:35], 0 offen offset:{1024*j}')
        a.e(f'buffer_load_dword v{KX+j}, v4, s[32:35], 0 offen offset:{1024*j+16}')
    a.e('s_and_b32 s80, s82, 1')
    a.e('s_lshl_b32 s80, s80, 2')
    a.e('s_and_b32 s56, s83, 3')
    a.e('s_add_u32 s80, s80, s56')
    a.e('s_lshr_b32 s81, s82, 1')
    a.e('s_lshl_b32 s81, s81, 3')
    a.e('s_lshr_b32 s56, s83, 2')
    a.e('s_add_u32 s81, s81, s56')
    a.e('s_lshl_b32 s91, s80, 5')
    a.e('s_add_u32 s91, s91, s81')
    a.e('s_lshl_b32 s56, s91, 2')
    a.e(f's_add_u32 s56, s56, s{S_W}')
    a.e('s_lshl_b32 s96, s56, 12')
    srd(a, 36, P_Q, 4 * MB)
    XP = 224
    for r in range(2):
        for hh in range(2):
            a.e(f'buffer_load_dwordx4 v[{XP+8*r+4*hh}:{XP+8*r+4*hh+3}], v4, s[36:39], s96 offen offset:{2048*r+1024*hh}')
    a.e('s_waitcnt vmcnt(20)')
    a.e('L_nonce:')
    a.e(f'v_readfirstlane_b32 s{S_NONCE}, v163')
    a.e('s_nop 0')
    a.e(f's_cmp_lg_u32 s{S_NONCE}, 0')
    a.e('s_cbranch_scc1 L_nonce_ok')
    a.e('s_add_u32 s3, s3, 1')
    a.e(f's_cmp_gt_u32 s3, {opt("spin", 200000)}')
    a.e('s_cbranch_scc1 L_nonce_ok')
    a.e('buffer_load_dword v163, v162, s[44:47], 0 offen sc1')
    a.e('s_waitcnt vmcnt(0)')
    a.e('s_branch L_nonce')
    a.e('L_nonce_ok:')
    a.e(f'v_mov_b32 v163, s{S_NONCE}')
    a.e(f's_cmp_eq_u32 s{S_W}, 0')
    a.e('s_waitcnt vmcnt(12)')
    a.e('s_barrier')
    a.e('s_cbranch_scc0 L_sig0')
    a.e('s_mov_b64 exec, 1')
    a.e(f'buffer_store_dword v163, v162, s[{S_FLG}:{S_FLG+3}], s87 offen sc1')
    a.e('s_mov_b64 exec, -1')
    a.e('L_sig0:')
    stamp(a, 2)
    npt = 0
    if opt('pt', 0) & 2:
        srd(a, 40, P_WS, 12 * MB, WS_Y2)
        a.e('v_lshlrev_b32 v164, 14, v0')
        a.e('s_lshl_b32 s56, s86, 6')
        a.e('buffer_load_dword v161, v164, s[40:43], s56 offen')
        a.e('v_lshlrev_b32 v164, 6, v0')
        a.e('s_lshl_b32 s56, s91, 14')
        a.e(f's_add_u32 s56, s56, {4*MB}')
        a.e('buffer_load_dword v161, v164, s[40:43], s56 offen')
        a.e('v_lshrrev_b32 v164, 3, v0')
        a.e('v_lshlrev_b32 v164, 12, v164')
        a.e('v_bfe_u32 v165, v0, 1, 2')
        a.e('v_lshl_add_u32 v164, v165, 8, v164')
        a.e('s_lshr_b32 s56, s91, 3')
        a.e('s_lshl_b32 s56, s56, 17')
        a.e('s_and_b32 s57, s91, 7')
        a.e('s_lshr_b32 s58, s57, 1')
        a.e('s_lshl_b32 s58, s58, 10')
        a.e('s_add_u32 s56, s56, s58')
        a.e('s_and_b32 s57, s57, 1')
        a.e('s_lshl_b32 s57, s57, 7')
        a.e('s_add_u32 s56, s56, s57')
        a.e(f's_add_u32 s56, s56, {8*MB}')
        a.e('buffer_load_dword v161, v164, s[40:43], s56 offen')
        npt += 3
    a.e('v_lshrrev_b32 v3, 3, v2')
    a.e('v_sub_u32 v3, 7, v3')
    a.e('v_lshlrev_b32 v3, 14, v3')
    a.e('v_and_b32 v5, 7, v2')
    a.e('v_lshl_add_u32 v3, v5, 4, v3')
    a.e('s_lshl_b32 s56, s84, 7')
    a.e('v_add_u32 v3, s56, v3')
    a.e('v_and_b32 v5, 15, v2')
    a.e('v_lshrrev_b32 v6, 4, v2')
    a.e('v_mov_b32 v28, 0')
    a.e('v_mov_b32 v29, 0')
    a.e('v_lshlrev_b32 v7, 3, v2')
    a.e('v_add_u32 v7, s88, v7')
    a.e('ds_write_b64 v7, v[28:29] offset:4096')
    a.e('v_min_u32 v30, 7, v2')
    a.e('v_lshlrev_b32 v30, 2, v30')
    a.e('v_add_u32 v30, s88, v30')
    a.e('ds_write_b32 v30, v28 offset:4608')
    a.e('v_add_u32 v31, 1, v5')
    a.e('v_and_b32 v32, 1, v31')
    a.e('v_sub_u32 v31, v31, v32')
    a.e('v_lshl_add_u32 v31, v6, 3, v31')
    a.e('v_lshlrev_b32 v31, 1, v31')
    a.e('v_mul_u32_u24 v32, 4160, v32')
    a.e('v_add3_u32 v31, v31, v32, s88')
    VA, VB, ACC = 36, 40, 44
    for j in range(4):
        a.e(f'v_add_u32 v{VA+j}, {4608+1024*j}, v31')
    a.e('v_lshlrev_b32 v32, 5, v5')
    a.e('v_lshlrev_b32 v33, 4, v6')
    a.e('v_sub_u32 v33, v33, v32')
    a.e('v_add_u32 v33, s88, v33')
    a.e(f'v_add_u32 v{VB}, 480, v33')
    a.e('v_add_u32 v7, s88, v4')
    for r in range(32):
        a.e(f'v_mov_b32 v{ACC+r}, 0')
    T = 76
    a.e(f's_waitcnt vmcnt({4+npt})')
    for j in range(4):
        d = KD + 4 * j
        if j == 0:
            a.e(f'v_readfirstlane_b32 s56, v{d}')
        a.e(f'ds_write_b128 v7, v[{d}:{d+3}] offset:{4608+32+1024*j}')
        for q in range(4):
            hi = d + q + 1 if q < 3 else KX + j
            a.e(f'v_alignbit_b32 v{T+4*j+q}, v{hi}, v{d+q}, 16')
        a.e(f'ds_write_b128 v7, v[{T+4*j}:{T+4*j+3}] offset:{4608+4160+32+1024*j}')
    a.e('s_lshl_b32 s56, s56, 16')
    a.e('v_cmp_le_u32 vcc, 7, v2')
    a.e('v_mov_b32 v32, s56')
    a.e('s_nop 0')
    a.e('v_cndmask_b32 v32, v28, v32, vcc')
    a.e(f'ds_write_b32 v30, v32 offset:{4608+4160}')
    FA = [96, 160]; FB = [128, 192]
    def rdA(r, buf):
        L = []
        for mq in range(8):
            o = 128 * (mq & 1) + 16 * r
            f = FA[buf] + 4 * mq
            L.append(f'ds_read2_b32 v[{f}:{f+1}], v{VA+(mq>>1)} offset0:{o} offset1:{o+1}')
            L.append(f'ds_read2_b32 v[{f+2}:{f+3}], v{VA+(mq>>1)} offset0:{o+2} offset1:{o+3}')
        return L
    def rdB(r, buf):
        return [f'ds_read_b128 v[{FB[buf]+4*d}:{FB[buf]+4*d+3}], v{VB} offset:{512*(7-d)+64*r}' for d in range(8)]
    a.e('s_waitcnt lgkmcnt(0)')
    a.e('s_bitcmp1_b32 s85, 0')
    a.e('s_cselect_b32 s56, 0, 16')
    a.e('s_lshl_b32 s89, s89, s56')
    a.e('s_and_b32 s89, s89, 0xffff0000')
    for l in rdA(0, 0): a.e(l)
    a.e('v_and_b32 v34, 31, v2')
    a.e(f'v_lshlrev_b32 v34, {fsh()}, v34')
    a.e(f's_lshl_b32 s56, s82, {5+fsh()}')
    wait_flags(a, 56, 34, 35)
    stamp(a, 3)
    a.e('s_lshl_b32 s56, s82, 19')
    UR = 8
    for i in range(4):
        a.e(f's_add_u32 s57, s56, {(24-8*i)*16384:#x}')
        a.e(f'buffer_load_dwordx4 v[{UR+4*i}:{UR+4*i+3}], v3, s[48:51], s57 offen sc1')
    g1 = G1(a)
    g2 = G2(a)
    g2.front_setup()
    g1.setup_dma()
    for i in range(4):
        a.e(f's_waitcnt vmcnt({3-i})')
        a.e(f'ds_write_b128 v7, v[{UR+4*i}:{UR+4*i+3}] offset:{1024*i}')
    a.e('s_waitcnt lgkmcnt(0)')
    for l in rdB(0, 0): a.e(l)
    stamp(a, 4)
    LK = Lin(a)
    if opt('cpf1', 0): code_pf(a, 'L_kbcode', 'L_g2code', 34, lambda t: LK.v('cp', t))
    g1e = [[(lambda l=l: (LK.v('g1', l) if l.startswith('buffer') else LK.e(l))) for l in grp] for grp in g1.early_dma()]
    def grp(fs): return lambda: [f() for f in fs]
    g1e = [grp(x) for x in g1e]
    wpf = []
    if opt('wpf'):
        a.e('s_mul_i32 s56, s2, 28672')
        a.e(f's_cmp_lt_u32 s{S_W}, 2')
        a.e(f's_cselect_b32 s40, s{P_W1}, s{P_W3}')
        a.e(f's_cselect_b32 s41, s{P_W1+1}, s{P_W3+1}')
        srd(a, 40, 40, 28672, 0, 56)
        a.e(f's_and_b32 s56, s{S_W}, 1')
        a.e('s_lshl_b32 s56, s56, 14')
        a.e('v_lshl_add_u32 v41, v2, 7, s56')
        a.e('v_add_u32 v43, 8192, v41')
        wpf = [lambda: LK.v('pf', 'buffer_load_dword v42, v41, s[40:43], 0 offen'), lambda: LK.v('pf', 'buffer_load_dword v42, v43, s[40:43], 0 offen')]
    fillr = {0: g2.fD(LK, (0, 1)), 1: g1e[:5], 2: g1e[5:10], 3: g2.fM(LK, (0, 1)), 4: g2.fD(LK, (2, 3)) + wpf, 5: g1e[10:15], 6: g1e[15:20], 7: g2.fM(LK, (2, 3))}
    UE = 8
    for r in range(8):
        buf = r & 1
        if r < 7:
            A_, B_ = rdA(r + 1, buf ^ 1), rdB(r + 1, buf ^ 1)
            nxt = []
            for x in range(8): nxt += [B_[x], A_[2 * x], A_[2 * x + 1]]
        else:
            a.e('v_lshlrev_b32 v32, 5, v5')
            a.e('v_lshl_add_u32 v32, v6, 3, v32')
            a.e(f'v_sub_u32 v34, {4088-3584}, v32')
            a.e('v_add_u32 v34, s88, v34')
            a.e('v_add_u32 v35, s88, v32')
            nxt = [f'ds_read_b64 v[{UE+2*c}:{UE+2*c+1}], v34 offset:{512*(7-c)}' for c in range(8)]
        a.e('s_waitcnt lgkmcnt(0)')
        fl = list(fillr[r]); evr = 36 // len(fl)
        k = 0
        for mq in range(8):
            for d in range(8 - mq):
                c = mq + d
                fa = FA[buf] + 4 * mq; fb = FB[buf] + 4 * d
                a.e(f'v_mfma_f32_16x16x32_bf16 v[{ACC+4*c}:{ACC+4*c+3}], v[{fa}:{fa+3}], v[{fb}:{fb+3}], v[{ACC+4*c}:{ACC+4*c+3}]')
                if k < len(nxt):
                    a.e(nxt[k])
                if fl and k % evr == evr - 1: fl.pop(0)()
                k += 1
        assert not fl, (r, len(fl))
    a.e('s_waitcnt lgkmcnt(0)')
    stamp(a, 5)
    a.e('L_kbcode:')
    a.inject(g2.fD(LK, (4, 5)), 8)
    X = 96
    for c in range(8):
        unpack(a, X + 4 * c + 3, X + 4 * c + 2, UE + 2 * c)
        unpack(a, X + 4 * c + 1, X + 4 * c + 0, UE + 2 * c + 1)
    for c in range(8):
        for r in range(4):
            a.e(f'v_fma_f32 v{X+4*c+r}, v{X+4*c+r}, s89, v{ACC+4*c+r}')
        a.e(f'v_cvt_pk_bf16_f32 v{UE+2*c}, v{X+4*c}, v{X+4*c+1}')
        a.e(f'v_cvt_pk_bf16_f32 v{UE+2*c+1}, v{X+4*c+2}, v{X+4*c+3}')
        a.e(f'ds_write_b64 v35, v[{UE+2*c}:{UE+2*c+1}] offset:{4608+512*c}')
    a.flush_inject()
    LIN[0] = None
    a.e('v_lshlrev_b32 v32, 2, v0')
    a.e(f'v_add_u32 v32, {LDS_KA}, v32')
    a.e('v_lshrrev_b32 v33, 2, v0')
    a.e('v_lshlrev_b32 v33, 14, v33')
    a.e('v_and_b32 v34, 3, v0')
    a.e('v_lshl_add_u32 v33, v34, 4, v33')
    a.e('s_lshl_b32 s56, s86, 6')
    a.e('s_mov_b32 s57, 0x05040100')
    a.e('s_mov_b32 s58, 0x07060302')
    srd(a, 36, P_WS, 4 * MB, WS_Y2)
    a.e('s_waitcnt lgkmcnt(0)')
    a.e('s_barrier')
    Y = 96
    for P in range(4):
        for ch in range(4):
            a.e(f'ds_read_b32 v{Y+4*P+ch}, v32 offset:{ch*KA_REG+4608+1024*P}')
    O = 128
    for P in range(4):
        a.e(f's_waitcnt lgkmcnt({12-4*P})')
        y = Y + 4 * P; o = O + 4 * P
        a.e(f'v_perm_b32 v{o}, v{y+1}, v{y}, s57')
        a.e(f'v_perm_b32 v{o+1}, v{y+3}, v{y+2}, s57')
        a.e(f'v_perm_b32 v{o+2}, v{y+1}, v{y}, s58')
        a.e(f'v_perm_b32 v{o+3}, v{y+3}, v{y+2}, s58')
        a.e(f'buffer_store_dwordx4 v[{o}:{o+3}], v33, s[36:39], s56 offen sc1')
        if P < 3:
            a.e(f's_add_u32 s56, s56, {64*16384:#x}')
    stamp(a, 6)
    XU = [8, 24]; TT = [40, 56]; MM = [72, 74]; RR = [76, 78]; C = 80; YR = [84, 92]; YU = [100, 116]
    for r in range(2):
        for q in range(8):
            unpack(a, XU[r] + 2 * q, XU[r] + 2 * q + 1, XP + 8 * r + q)
    a.e(f'v_mov_b32 v{C}, 0x3a800000')
    a.e(f's_lshl_b32 s87, s2, {f1sh()}')
    a.e(f's_add_u32 s87, s87, {F1}')
    signal(a, 87, 82)
    for f in g2.fM(None, (4, 5))[1:]: f()
    ln2(a, XU, TT, MM, RR, C)
    a.e('v_lshlrev_b32 v5, 7, v2')
    a.e('v_add_u32 v6, 0x2000, v5')
    a.e('s_lshl_b32 s82, s91, 14')
    a.e(f's_lshl_b32 s83, s{S_W}, 4')
    a.e('s_add_u32 s82, s82, s83')
    srd(a, 40, P_WS, 4 * MB, WS_H)
    srd(a, 44, P_WS, 4 * MB, WS_HNF)
    a.e('v_and_b32 v7, 7, v2')
    a.e(f's_lshl_b32 s83, s{S_W}, 1')
    a.e('v_xor_b32 v132, s83, v7')
    a.e('v_lshl_add_u32 v132, v132, 4, v5')
    a.e(f'v_add_u32 v132, {LDS_KA}, v132')
    a.e('v_xor_b32 v133, 16, v132')
    a.e('v_lshrrev_b32 v134, 3, v2')
    a.e('v_xor_b32 v135, v134, v7')
    a.e('v_lshlrev_b32 v135, 4, v135')
    a.e('v_lshl_add_u32 v135, v134, 7, v135')
    a.e(f's_lshl_b32 s83, s{S_W}, 12')
    a.e(f's_add_u32 s83, s83, {LDS_KA}')
    a.e('v_add_u32 v135, s83, v135')
    a.e('v_lshrrev_b32 v136, 5, v2')
    a.e('v_lshlrev_b32 v136, 12, v136')
    a.e('v_bfe_u32 v137, v2, 3, 2')
    a.e('v_lshl_add_u32 v136, v137, 8, v136')
    a.e('v_lshl_add_u32 v136, v7, 4, v136')
    a.e('s_lshr_b32 s84, s91, 3')
    a.e('s_lshl_b32 s84, s84, 17')
    a.e('s_bfe_u32 s85, s91, 0x20001')
    a.e('s_lshl_b32 s85, s85, 10')
    a.e('s_add_u32 s84, s84, s85')
    a.e('s_and_b32 s85, s91, 1')
    a.e('s_lshl_b32 s85, s85, 7')
    a.e('s_add_u32 s84, s84, s85')
    a.e(f's_lshl_b32 s85, s{S_W}, 15')
    a.e('s_add_u32 s84, s84, s85')
    a.e(f's_mov_b32 s85, {F1}')
    a.e('s_waitcnt lgkmcnt(0)')
    stamp(a, 7)
    a.e(f'v_lshlrev_b32 v138, {4 if f1sh() == 2 else f1sh()}, v2')
    wait_flags(a, 85, 138, 128, n=256)
    stamp(a, 8)
    a.e(f's_or_b32 s57, s2, s{S_W}')
    a.e('s_cmp_lg_u32 s57, 0')
    a.e('s_cbranch_scc1 L_clean_skip')
    srd(a, 48, P_DBG, 256)
    a.e('v_mov_b32 v128, 0')
    a.e('s_mov_b64 exec, 1')
    a.e('buffer_store_dword v128, v128, s[48:51], 0 offen sc1')
    a.e('s_mov_b64 exec, -1')
    a.e('L_clean_skip:')
    YL = 84
    a.e(f'buffer_load_dwordx4 v[{YL}:{YL+3}], v5, s[36:39], s82 offen sc1')
    a.e(f'buffer_load_dwordx4 v[{YL+4}:{YL+7}], v5, s[36:39], s82 offen offset:64 sc1')
    a.e(f'buffer_load_dwordx4 v[{YL+8}:{YL+11}], v6, s[36:39], s82 offen sc1')
    a.e(f'buffer_load_dwordx4 v[{YL+12}:{YL+15}], v6, s[36:39], s82 offen offset:64 sc1')
    for cgi in range(4):
        a.e(f's_waitcnt vmcnt({3-cgi})')
        for r in range(2):
            for e in range(2):
                u = YU[r] + 4 * cgi + 2 * e
                unpack(a, u, u + 1, YL + 4 * cgi + 2 * r + e)
        for r in range(2):
            for e in range(2):
                u = YU[r] + 4 * cgi + 2 * e; x = XU[r] + 4 * cgi + 2 * e; t = TT[r] + 4 * cgi + 2 * e
                a.e(f'v_pk_fma_f32 v[{x}:{x+1}], v[{t}:{t+1}], v[{u}:{u+1}], v[{x}:{x+1}]')
    a.inject(g2.fD(None, (6, 7)), 4)
    for r in range(2):
        for q in range(8):
            a.e(f'v_cvt_pk_bf16_f32 v{XP+8*r+q}, v{XU[r]+2*q}, v{XU[r]+2*q+1}')
    for r in range(2):
        for q in range(8):
            unpack(a, XU[r] + 2 * q, XU[r] + 2 * q + 1, XP + 8 * r + q)
    a.flush_inject()
    ln2(a, XU, TT, MM, RR, C)
    for r in range(2):
        for q in range(8):
            a.e(f'v_cvt_pk_bf16_f32 v{YL+8*r+q}, v{TT[r]+2*q}, v{TT[r]+2*q+1}')
        for hh in range(2):
            a.e(f'ds_write_b128 v{132+r}, v[{YL+8*r+4*hh}:{YL+8*r+4*hh+3}] offset:{8192*hh}')
    a.e('s_waitcnt lgkmcnt(0)')
    a.e('s_barrier')
    for i in range(4):
        a.e(f'ds_read_b128 v[{100+4*i}:{103+4*i}], v135 offset:{1024*i}')
    for i in range(4):
        a.e(f's_waitcnt lgkmcnt({3-i})')
        a.e(f'buffer_store_dwordx4 v[{100+4*i}:{103+4*i}], v136, s[44:47], s84 offen sc1')
        if i < 3: a.e('s_add_u32 s84, s84, 8192')
    stamp(a, 9)
    a.e(f's_lshl_b32 s87, s91, {fsh()}')
    a.e(f's_add_u32 s87, s87, {F2}')
    g2.front_save()
    g1.pre_setup()
    signal(a, 87, 4)
    a.e('v_add_u32 v4, s73, v7')
    a.e('v_xor_b32 v5, 32, v4')
    for f in g2.fM(None, (6, 7), base=4)[1:]: f()
    g1.main()
    g1.epilogue(g2)
    g2.main()
    stamp_out(a, NSTAMP)
    a.e('L_end:')
    a.e('s_endpgm')

G1_STG = 32768
class G1:
    TM, NW, DPW, ND = 4, 4, 8, 4
    ACC, WF, TF, DV, VT, VR, VL = 32, 0, 28, 8, 16, 17, 18
    DVE = 240
    def __init__(s, a): s.a = a
    def setup_dma(s):
        a = s.a
        a.e('s_and_b32 s56, s81, 1')
        a.e('s_lshl_b32 s56, s56, 1')
        a.e('s_movk_i32 s57, 4682')
        a.e('s_movk_i32 s58, 7168')
        a.e('v_mov_b32 v76, 0x80000000')
        a.e('v_subrev_u32 v77, 8, v2')
        for src, dst in ((2, 78), (77, 79)):
            a.e(f'v_cmp_gt_u32 vcc, 56, v{src}')
            a.e(f'v_mul_u32_u24 v80, s57, v{src}')
            a.e('v_lshrrev_b32 v80, 16, v80')
            a.e('v_mul_u32_u24 v81, 14, v80')
            a.e(f'v_sub_u32 v81, v{src}, v81')
            a.e('v_add_u32 v81, s56, v81')
            a.e('v_subrev_u32 v82, 14, v81')
            a.e('v_min_u32 v81, v81, v82')
            a.e('v_mul_u32_u24 v80, s58, v80')
            a.e('v_lshl_add_u32 v80, v81, 4, v80')
            a.e(f'v_cndmask_b32 v{dst}, v76, v80, vcc')
        for i in range(8):
            pat = 79 if (i >> 1) & 1 else 78
            c = i * 4 * 7168 - 1024 * (i & 3)
            a.e(f'v_add_u32 v{s.DVE+i}, {c}, v{pat}' if c else f'v_mov_b32 v{s.DVE+i}, v{pat}')
        a.e(f's_and_b32 s56, s{S_W}, 1')
        a.e(f's_lshr_b32 s57, s{S_W}, 1')
        a.e(f's_mul_i32 s97, s56, {8*4*7168}')
        a.e('s_lshl_b32 s98, s57, 14')
        a.e('s_lshl_b32 s56, s56, 13')
        a.e('s_add_u32 s98, s98, s56')
        a.e('s_mul_i32 s56, s81, 224')
        a.e('s_cmp_eq_u32 s57, 0')
        a.e(f's_cselect_b32 s52, s{P_W1}, s{P_W3}')
        a.e(f's_cselect_b32 s53, s{P_W1+1}, s{P_W3+1}')
        srd(a, 52, 52, None, 0, 56)
        a.e('s_sub_u32 s54, 7340032, s56')
    def m0set(s, i): return f's_add_u32 m0, s98, {4096*(i//4)}' if i else 's_mov_b32 m0, s98'
    def dma(s, i, base): return f'buffer_load_dwordx4 v{base+i}, s[52:55], s97 offen offset:{1024*(i&3)} lds'
    def dma_adv(s): return ['s_add_u32 s97, s97, 458752', f's_add_u32 s98, s98, {G1_STG}', 's_and_b32 s98, s98, 0x1ffff']
    def early_dma(s):
        out = []
        for st in range(2):
            for i in range(8):
                if i % 4 == 0: out.append([s.m0set(i)])
                out.append([s.dma(i, s.DVE)] + (s.dma_adv() if i == 7 else []))
        return out
    def tok(s, k, tm):
        f = s.TF + 4 * (4 * (k % s.ND) + tm)
        return f'buffer_load_dwordx4 a[{f}:{f+3}], v{s.VT}, s[32:35], s82 offen offset:{tm*1024}' + (' sc1' if opt('t1sc', 1) else '')
    def rd(s, ph, t):
        j, mat = (ph & 3) >> 1, ph & 1
        return [f'ds_read_b64_tr_b16 a[{s.WF+4*t+2*h}:{s.WF+4*t+2*h+1}], v{s.VR} offset:{8192*j+1024*h+32*t+16384*mat}' for h in range(2)]
    def pre_setup(s):
        a = s.a
        for i in range(8): a.e(f'v_mov_b32 v{s.DV+i}, v{s.DVE+i}')
        for i in range(16): a.e(f'v_accvgpr_write_b32 a{92+i}, v{224+i}')
        a.e(f'v_lshlrev_b32 v{s.VT}, 4, v2')
        a.e('v_lshrrev_b32 v4, 4, v2')
        a.e('v_lshlrev_b32 v4, 11, v4')
        a.e('v_bfe_u32 v5, v2, 4, 1')
        a.e('v_lshl_add_u32 v4, v5, 7, v4')
        a.e('v_bfe_u32 v6, v2, 2, 2')
        a.e('v_mul_u32_u24 v5, 224, v6')
        a.e('v_and_b32 v6, 3, v2')
        a.e('v_lshl_add_u32 v5, v6, 3, v5')
        a.e(f'v_add_u32 v{s.VL}, v4, v5')
        a.e(f'v_mov_b32 v{s.VR}, v{s.VL}')
        a.e('v_and_b32 v19, 31, v2')
        a.e(f'v_lshlrev_b32 v19, {fsh()}, v19')
        a.e('s_lshl_b32 s56, s80, 2')
        a.e(f's_add_u32 s56, s56, s{S_W}')
        a.e('s_lshl_b32 s57, s56, 17')
        srd(a, 32, P_WS, 131072, WS_HNF, 57)
        a.e(f's_mul_i32 s57, s56, {4*114688}')
        srd(a, 36, P_WS, 4 * 114688, WS_HF, 57)
        a.e('s_and_b32 s58, s81, 1')
        a.e('s_mul_i32 s85, s81, 7')
        a.e('s_add_u32 s85, s85, s58')
        a.e('s_lshl_b32 s85, s85, 9')
        a.e('s_movk_i32 s86, 3072')
        a.e('s_cmp_eq_u32 s58, 0')
        a.e('s_cselect_b32 s86, s86, 0xfffffc08')
        a.e('s_add_u32 s86, s86, s85')
        for r in range(224):
            a.e(f'v_mov_b32 v{s.ACC+r}, 0')
    def kof(s, s_, P): return 2 * s_ + (-1, 0, 0, 1)[P]
    def ev_ins(s, e):
        L = []
        if e[0] == 'D':
            if e[2] % 4 == 0: L.append(s.m0set(e[2]))
            L.append(s.dma(e[2], s.DV))
            if e[2] == 7: L += s.dma_adv()
        elif e[0] == 'Z':
            fl = ['', ' sc1'][opt('ps', 0) - 1]
            u = e[2]
            if u < 3: L = [f'buffer_store_dwordx4 v[24:27], v{s.VT}, s[36:39], s88 offen offset:{1024*u}{fl}']
            else: L = [f'buffer_store_dwordx2 v[24:25], v{s.VT}, s[36:39], s89 offen{fl}', 's_add_u32 s88, s88, 114688', 's_add_u32 s89, s89, 114688']
        elif e[0] == 'Q':
            L = [f'buffer_store_dwordx4 v[24:27], v{s.VT}, s[44:47], s99 offen', 's_add_u32 s99, s99, 1024']
        elif e[0] == 'Y':
            L = ['buffer_load_dword v22, v21, s[44:47], s88 offen', 's_add_u32 s88, s88, s99', 's_cmp_eq_u32 s84, 3', 's_cselect_b32 s88, s89, s88', 's_cselect_b32 s99, 4096, s99',
                 's_cmp_eq_u32 s84, 5', 's_cselect_b32 s88, 0x7000000, s88']
        else:
            L.append(s.tok(e[1], e[2]))
            if e[2] == 3: L.append('s_add_u32 s82, s82, 4096')
        return L
    def main(s):
        a = s.a
        S = s.S = Sched()
        for s_ in range(-4, 8):
            for P in range(4):
                S.mark((s_, P))
                k = s.kof(s_, P) + s.ND - 1
                t0 = 2 if P in (0, 2) else 0
                S.add([('D', s_ + 2, 2 * P), ('T', k, t0), ('D', s_ + 2, 2 * P + 1), ('T', k, t0 + 1)])
                if opt('pt') & 8 and s_ % 2 == 0 and P == 1: S.add([('Y', s_, 0)])
                if opt('psx', 0) and P == 2 and s_ & 1: S.add([('Q', s_, 0)])
                if opt('ps', 0) and P in (1, 3): S.add([('Z', s_, 2 * (s_ & 1) + (P >> 1))])
        vm_bar = min(S.younger(('D', 4), (4, 0)), S.younger(('D', 5), (5, 0)))
        vm_p1 = min(S.younger(('T', 8), (4, 1)), S.younger(('T', 10), (5, 1)))
        vm_p3 = min(S.younger(('T', 9), (4, 3)), S.younger(('T', 11), (5, 3)))
        if opt('pt') & 8:
            srd(a, 44, P_WS, 24 * MB, WS_HF)
            a.e('v_and_b32 v21, 31, v2')
            a.e('v_lshlrev_b32 v21, 7, v21')
            a.e('s_lshl_b32 s56, s80, 2')
            a.e(f's_add_u32 s56, s56, s{S_W}')
            a.e(f's_mul_i32 s88, s56, {4*114688}')
            a.e('s_mul_i32 s57, s81, 7')
            a.e('s_lshr_b32 s57, s57, 1')
            a.e('s_lshl_b32 s57, s57, 10')
            a.e('s_add_u32 s88, s88, s57')
            a.e('s_lshl_b32 s89, s2, 2')
            a.e(f's_add_u32 s89, s89, s{S_W}')
            a.e('s_lshl_b32 s89, s89, 13')
            a.e(f's_add_u32 s89, s89, {16*MB}')
            a.e('s_mov_b32 s99, 114688')
        a.e(f's_lshl_b32 s56, s80, {5+fsh()}')
        a.e(f's_add_u32 s56, s56, {F2}')
        if opt('psx', 0):
            srd(a, 44, P_WS, 8 * MB, WS_XP)
            a.e('s_lshl_b32 s99, s2, 2')
            a.e(f's_add_u32 s99, s99, s{S_W}')
            a.e('s_lshl_b32 s99, s99, 13')
        if opt('ps', 0):
            a.e('s_mov_b32 s88, s85')
            a.e('s_mov_b32 s89, s86')
            for r in range(4): a.e(f'v_mov_b32 v{24+r}, 0')
        a.e('s_mov_b32 s82, 0')
        a.e('s_mov_b32 s83, 0')
        a.e('s_mov_b32 s84, 0')
        for t in range(6):
            for l in s.rd(0, t): a.e(l)
        stamp(a, 10)
        a.e('s_waitcnt lgkmcnt(12)')
        wait_flags(a, 56, 19, 20)
        stamp(a, 11)
        pro = [e for e in S.ev[:S.marks[(0, 0)]] if e[1] >= 0 and e[0] == 'T'] + [('X', i, 0) for i in range(4)]
        for e in pro + S.ev[S.marks[(0, 0)]:S.marks[(0, 1)]]:
            if e[0] == 'X':
                a.e(f'buffer_store_dwordx4 a[{92+4*e[1]}:{95+4*e[1]}], v{s.VT}, s[40:43], s96 offen offset:{1024*e[1]} sc1')
                continue
            for l in s.ev_ins(e):
                a.e(l)
                if 'm0' in l: a.e('s_nop 0')
        act = pro + S.ev[S.marks[(0, 0)]:]
        off = len(pro) - S.marks[(0, 0)]
        s.startup = {}
        need = -1
        for s_ in range(0, 6):
            for P, tags, N in ((0, [('D', s_)], vm_bar), (1, [('T', 2 * s_)], vm_p1), (3, [('T', 2 * s_ + 1)], vm_p3)):
                if (s_, P) == (0, 0): continue
                site = S.marks[(s_, P)] + off
                for tg in tags:
                    idx = [i for i, e in enumerate(act) if e[:2] == tg]
                    if not idx: continue
                    if site - max(idx) - 1 < N: need = max(need, max(idx))
        if need >= 0:
            a.e(f's_waitcnt vmcnt({S.marks[(0, 1)] + off - need - 1})')
        a.e('s_branch L_g1_P1')
        s.snake = 0
        a.e('L_g1_loop:')
        for s_ in (4, 5):
            a.e(f's_add_u32 s83, s83, {G1_STG}')
            a.e('s_and_b32 s83, s83, 0x1ffff')
            a.e(f's_waitcnt vmcnt({vm_bar})')
            a.e('s_barrier')
            s.phase(s_, 0)
            if s_ == 4: a.e('L_g1_P1:')
            a.e(f's_waitcnt vmcnt({vm_p1})')
            s.phase(s_, 1)
            s.phase(s_, 2)
            a.e(f's_waitcnt vmcnt({vm_p3})')
            s.phase(s_, 3)
        a.e('s_add_u32 s84, s84, 1')
        a.e('s_cmp_lt_u32 s84, 8')
        a.e('s_cbranch_scc1 L_g1_loop')
        s.phase(6, 0, last=True)
        stamp(a, 12)
    def phase(s, s_, P, last=False):
        a = s.a; S = s.S
        kbuf = s.kof(s_, P) % s.ND
        mat = (P + 1) & 1
        items = []
        if not last:
            nxt = S.marks[(s_, P + 1)] if P < 3 else S.marks[(s_ + 1, 0)]
            items = [s.ev_ins(e) for e in S.ev[S.marks[(s_, P)]:nxt]]
        slots = [[] for _ in range(7)]
        for p_, it in zip([1, 2, 4, 5, 6], items): slots[p_] = it
        if P == 0 and not last:
            slots[0] = [f'v_add_u32 v{s.VR}, s83, v{s.VL}']
        for t in range(7):
            a.e(f's_waitcnt lgkmcnt({10 if not (last and t) else 12-2*t})')
            R = s.rd(P - 1, 6) if t == 0 else ([] if last else s.rd(P, t - 1))
            X = list(slots[t])
            pre = [x for x in X if 'm0' in x]
            X = [x for x in X if 'm0' not in x]
            gaps = [[] for _ in range(4)]
            if R: gaps[0] = pre + [R[0]]; gaps[1] = [R[1]]
            gaps[2] = X[:1]; gaps[3] = X[1:]
            order = [0, 1, 2, 3]
            if s.snake & 1: order.reverse()
            s.snake += 1
            for n, tm in enumerate(order):
                c = s.ACC + 4 * ((mat * 7 + t) * 4 + tm)
                tf = s.TF + 4 * (4 * kbuf + tm)
                if not opt('g1x') & 1: a.e(f'v_mfma_f32_16x16x32_bf16 v[{c}:{c+3}], a[{s.WF+4*t}:{s.WF+4*t+3}], a[{tf}:{tf+3}], v[{c}:{c+3}]')
                for x in gaps[n]:
                    if opt('g1x') & 2 and x.startswith('ds_'): continue
                    if opt('g1x') & 4 and x.startswith('buffer'): continue
                    a.e(x)
    def epilogue(s, g2):
        a = s.a
        L = Lin(a)
        a.e('s_mov_b32 s58, 0xbfb8aa3b')
        a.e('s_mov_b32 s59, 0xbfb8aa3b')
        g2.early(L)
        T = 8
        k = 0
        for tm in range(4):
            for u in range(4):
                O = (20, 24)[k & 1]
                fill = g2.epi_fill(k)
                def F(n=1):
                    for _ in range(n):
                        if fill: fill.pop(0)()
                tiles = [2 * u, 2 * u + 1] if u < 3 else [6]
                gs = []; us = []
                for t in tiles:
                    gs += [s.ACC + 4 * (t * 4 + tm), s.ACC + 4 * (t * 4 + tm) + 2]
                    us += [s.ACC + 4 * ((7 + t) * 4 + tm), s.ACC + 4 * ((7 + t) * 4 + tm) + 2]
                n = len(gs)
                nins = 9 * n
                cnt = [0]; ev_ = max(1, nins // (len(fill) + 1))
                def V(t):
                    a.e(t); cnt[0] += 1
                    if cnt[0] % ev_ == 0: F(1)
                for q in range(n): V(f'v_pk_mul_f32 v[{T+2*q}:{T+2*q+1}], v[{gs[q]}:{gs[q]+1}], s[58:59]')
                for q in range(2 * n): V(f'v_exp_f32 v{T+q}, v{T+q}')
                for q in range(n): V(f'v_pk_add_f32 v[{T+2*q}:{T+2*q+1}], v[{T+2*q}:{T+2*q+1}], 1.0 op_sel_hi:[1,0]')
                for q in range(2 * n): V(f'v_rcp_f32 v{T+q}, v{T+q}')
                for q in range(n): V(f'v_pk_mul_f32 v[{gs[q]}:{gs[q]+1}], v[{gs[q]}:{gs[q]+1}], v[{us[q]}:{us[q]+1}]')
                for q in range(n): V(f'v_pk_mul_f32 v[{T+2*q}:{T+2*q+1}], v[{T+2*q}:{T+2*q+1}], v[{gs[q]}:{gs[q]+1}]')
                for q in range(n): V(f'v_cvt_pk_bf16_f32 v{O+q}, v{T+2*q}, v{T+2*q+1}')
                if u < 3:
                    L.v('st', f'buffer_store_dwordx4 v[{O}:{O+3}], v{s.VT}, s[36:39], s85 offen offset:{1024*u}' + hfl())
                else:
                    L.v('st', f'buffer_store_dwordx2 v[{O}:{O+1}], v{s.VT}, s[36:39], s86 offen' + hfl())
                F(len(fill))
                k += 1
            if tm < 3:
                a.e('s_add_u32 s85, s85, 114688')
                a.e('s_add_u32 s86, s86, 114688')
        a.e(f's_lshl_b32 s87, s91, {fsh()}')
        a.e(f's_add_u32 s87, s87, {F3}')
        stamp(a, 13)
        a.e('L_g2code:')
        g2.post_epilogue()
        signal(a, 87, 5, waitfn=lambda: L.wait(vm=('st',)), wb=(opt('hfl') == 4))
        stamp(a, 18)

class G2:
    ACC, TF, DV, VT, RJ, TR, V1, VO, VF = 32, 96, 28, 16, 3, 8, 12, 13, 14
    REG = 40960
    def __init__(s, a): s.a = a
    def wreg(s, k, j):
        if k < 16: return 'a', 128 + 8 * k + 4 * j
        if k < 32: return 'a', 8 * (k - 16) + 4 * j
        if k < 48: return 'v', 128 + 8 * (k - 32) + 4 * j
        return 'a', 128 + 8 * (k - 48) + 4 * j
    def front_setup(s):
        a = s.a
        a.e('s_and_b32 s76, s2, 1')
        a.e('s_lshr_b32 s56, s2, 3')
        if opt('g2map', 1):
            a.e('s_bfe_u32 s74, s2, 0x10001')
            a.e('s_lshl_b32 s74, s74, 3')
            a.e('s_and_b32 s57, s56, 7')
            a.e('s_add_u32 s74, s74, s57')
            a.e('s_bfe_u32 s75, s2, 0x10002')
            a.e('s_lshl_b32 s75, s75, 2')
            a.e('s_lshr_b32 s57, s56, 3')
            a.e('s_add_u32 s75, s75, s57')
        else:
            a.e('s_bfe_u32 s74, s2, 0x20001')
            a.e('s_lshl_b32 s74, s74, 2')
            a.e('s_and_b32 s57, s56, 3')
            a.e('s_add_u32 s74, s74, s57')
            a.e('s_lshr_b32 s75, s56, 2')
        a.e('v_lshrrev_b32 v252, 2, v2')
        a.e('v_lshlrev_b32 v253, 11, v252')
        a.e('v_lshrrev_b32 v254, 3, v2')
        a.e('v_xor_b32 v254, v254, v2')
        a.e('v_and_b32 v254, 2, v254')
        a.e('v_and_or_b32 v254, v2, 1, v254')
        a.e('v_lshl_add_u32 v248, v254, 4, v253')
        for i in range(1, 4):
            a.e(f'v_add_u32 v{248+i}, {i*(32768-1024)}, v248')
        a.e('s_mul_i32 s56, s76, 3670016')
        a.e('s_lshl_b32 s57, s75, 8')
        a.e('s_add_u32 s56, s56, s57')
        a.e(f's_lshl_b32 s57, s{S_W}, 6')
        a.e('s_add_u32 s56, s56, s57')
        srd(a, 68, P_W2, None, 0, 56)
        a.e('s_sub_u32 s70, 7340032, s56')
        a.e('s_mov_b32 s72, 0')
        a.e('v_lshlrev_b32 v252, 6, v252')
        a.e('v_bfe_u32 v253, v2, 4, 1')
        a.e('v_lshl_add_u32 v252, v253, 5, v252')
        a.e('v_and_b32 v253, 3, v2')
        a.e('v_lshl_add_u32 v252, v253, 3, v252')
        a.e(f's_lshl_b32 s73, s{S_W}, 13')
        a.e('s_add_u32 s73, s73, 65536')
        a.e('v_add_u32 v253, s73, v252')
        a.e('v_xor_b32 v254, 32, v253')
    def fD(s, L, cs):
        a = s.a
        out = []
        for n, c in enumerate(cs):
            out.append(lambda n=n: a.e(f's_add_u32 m0, s73, {4096*n}'))
            for i in range(4):
                def f(i=i, c=c):
                    t = f'buffer_load_dwordx4 v{248+i}, s[68:71], s72 offen offset:{1024*i} lds'
                    if L: L.v(('W', c), t)
                    else: a.e(t)
                    if i == 3: a.e('s_add_u32 s72, s72, 131072')
                out.append(f)
        return out
    def fM(s, L, cs, base=253):
        a = s.a
        out = [lambda: L.wait(vm=(('W', cs[-1]),))]
        for n, c in enumerate(cs):
            for kk in range(2):
                for j in range(2):
                    for h in range(2):
                        r, q = s.wreg(2 * c + kk, j)
                        out.append(lambda r=r, q=q, h=h, j=j, n=n, kk=kk: a.e(f'ds_read_b64_tr_b16 {r}[{q+2*h}:{q+2*h+1}], v{base+j} offset:{4096*n+2048*kk+1024*h}'))
        return out
    def front_save(s):
        a = s.a
        for i in range(4): a.e(f'v_mov_b32 v{s.DV+i}, v{248+i}')
        a.e('v_mov_b32 v7, v252')
    def early(s, L):
        a = s.a; s.L = L
        a.e('s_mov_b32 s80, s74')
        a.e('s_mov_b32 s81, s75')
        a.e('s_mov_b32 s82, s76')
        a.e(f's_mul_i32 s98, s{S_W}, {s.REG}')
        a.e(f'v_add_u32 v{s.RJ}, s98, v7')
        a.e(f'v_xor_b32 v{s.RJ+1}, 32, v{s.RJ}')
        a.e('s_waitcnt vmcnt(0)')
        a.e('s_barrier')
        if opt('cpf2', 0): code_pf(a, 'L_g2code', 'L_end', 17, lambda t: L.v('cp', t))
        s.cell = {}
        s.free = list(range(10))
    def D(s, c):
        L = s.L
        def first():
            s.cell[c] = s.free.pop(0)
            L.e(f's_add_u32 m0, s98, {4096*s.cell[c]}')
        out = [first]
        for i in range(4):
            out.append(lambda i=i: L.v(('W', c), f'buffer_load_dwordx4 v{s.DV+i}, s[68:71], s72 offen offset:{1024*i} lds'))
        out.append(lambda: L.e('s_add_u32 s72, s72, 131072'))
        return out
    def M(s, c):
        L = s.L
        out = []
        for kk in range(2):
            for j in range(2):
                for h in range(2):
                    def f(kk=kk, j=j, h=h):
                        r, n = s.wreg(2 * c + kk, j)
                        L.l(('M', c), f'ds_read_b64_tr_b16 {r}[{n+2*h}:{n+2*h+1}], v{s.RJ+j} offset:{4096*s.cell[c]+2048*kk+1024*h}')
                    out.append(f)
        return out
    def Wv(s, c): return [lambda: s.L.wait(vm=(('W', c),))]
    def Fr(s, cs):
        def f():
            s.L.wait(lg0=True)
            for c in cs: s.free.append(s.cell[c])
        return [f]
    def epi_fill(s, k):
        D, M, Wv, Fr = s.D, s.M, s.Wv, s.Fr
        def cat(*xs): return [y for x in xs for y in x]
        if k == 0: s.A = cat(*[D(c) for c in range(8, 18)])
        n = 5 if k % 4 != 3 else 2
        out, s.A = s.A[:n], s.A[n:]
        if k == 15: out += s.A
        return out
    def post_epilogue(s):
        a = s.a; L = s.L
        a.e(f'v_mov_b32 v{s.TR}, v{s.VT}')
        for q in range(1, 4):
            a.e(f'v_add_u32 v{s.TR+q}, {q*s.REG}, v{s.VT}')
        a.e(f'v_add_u32 v{s.V1}, {114688-2048}, v{s.VT}')
        for r in range(64):
            a.e(f'v_mov_b32 v{s.ACC+r}, 0')
        a.e('s_lshl_b32 s56, s80, 3')
        a.e(f's_lshl_b32 s57, s{S_W}, 1')
        a.e('s_lshl_b32 s58, s82, 2')
        a.e('s_xor_b32 s57, s57, s58')
        a.e('s_add_u32 s56, s56, s57')
        a.e('s_mul_i32 s57, s56, 114688')
        a.e('s_mul_i32 s58, s82, 57344')
        a.e('s_add_u32 s57, s57, s58')
        srd(a, 32, P_WS, 114688 + 57344, WS_HF, 57)
        a.e('v_and_b32 v5, 15, v2')
        a.e('v_lshlrev_b32 v5, 11, v5')
        a.e('v_lshrrev_b32 v6, 4, v2')
        a.e(f'v_lshl_add_u32 v{s.VO}, v6, 3, v5')
        a.e('s_lshl_b32 s85, s80, 18')
        a.e('s_lshl_b32 s57, s82, 17')
        a.e('s_add_u32 s85, s85, s57')
        a.e('s_lshl_b32 s57, s81, 8')
        a.e('s_add_u32 s85, s85, s57')
        a.e(f's_lshl_b32 s57, s{S_W}, 6')
        a.e('s_add_u32 s85, s85, s57')
        a.e(f'v_and_b32 v{s.VF}, 31, v2')
        a.e(f'v_lshlrev_b32 v{s.VF}, {fsh()}, v{s.VF}')
    def main(s):
        a = s.a; L = s.L
        a.e('s_lshr_b32 s56, s80, 1')
        a.e(f's_lshl_b32 s56, s56, {5+fsh()}')
        a.e(f's_add_u32 s56, s56, {F3}')
        srd(a, 44, P_WS, 4 * MB, WS_H)
        a.e('s_mov_b32 s84, 0')
        L.wait(vm0=True)
        for c in range(8, 18):
            for f in s.M(c): f()
        for f in s.Fr(range(8, 18)): f()
        wait_flags(a, 56, s.VF, 20)
        stamp(a, 14)
        NS = 28
        slot = {}
        def TD(st):
            slot[st] = s.free.pop(0)
            out = [lambda: L.e(f's_add_u32 m0, s98, {4096*slot[st]}')]
            for i in range(4):
                v = s.VT if i < 2 else s.V1
                out.append(lambda i=i, v=v: L.v(('T', st), f'buffer_load_dwordx4 v{v}, s[32:35], s84 offen offset:{1024*i} sc1 lds'))
            out.append(lambda: L.e('s_add_u32 s84, s84, 2048'))
            return out
        def RD(k, tm):
            f = s.TF + 4 * tm
            L.l(('R', k, tm), f'ds_read_b128 v[{f}:{f+3}], v{s.TR+(tm>>1)} offset:{4096*slot[k>>1]+2048*(tm&1)+1024*(k&1)}')
        nxt = 0
        while len(s.free) > opt('wc', 2):
            fs = TD(nxt); fs[0](); a.e('s_nop 0')
            for f in fs[1:]: f()
            nxt += 1
        wfree, s.free = s.free, []
        L.wait(vm=(('T', 0),))
        a.e('s_barrier')
        for tm in range(7): RD(0, tm)
        todo = list(range(18, 28)); fly = []; pend = []
        HR = 128
        for k in range(56):
            st = k >> 1
            fill = []
            if k & 1 and st + 1 < NS:
                L.wait(vm=(('T', st + 1),))
                a.e('s_barrier')
                if st >= 1: s.free.append(slot[st - 1])
            if s.free and nxt < NS and k & 1:
                fill += TD(nxt); nxt += 1
            if not k & 1:
                if fly and k >= fly[0][1] + opt('wlat', 6):
                    c = fly.pop(0)[0]
                    assert c < 24 or k >= 2 * (c - 24) + 2
                    assert k + 1 < 2 * c
                    fill += s.Wv(c) + s.M(c)
                    pend.append(c)
                if todo and wfree:
                    c = todo.pop(0)
                    keep, s.free = s.free, [wfree.pop(0)]
                    fs = s.D(c); fs[0].pre = True
                    s.cell[c] = s.free[0]; s.free = keep
                    fill += [lambda c=c: L.e(f's_add_u32 m0, s98, {4096*s.cell[c]}')] + fs[1:]
                    fly.append((c, k))
            if k == 50:
                for tm in range(4):
                    for j in range(2):
                        def f(tm=tm, j=j):
                            if j == 0 and tm: L.e(f's_add_u32 s86, s85, {32768*tm}')
                            r = HR + 4 * tm + 2 * j
                            L.v('h', f'buffer_load_dwordx2 v[{r}:{r+1}], v{s.VO}, s[44:47], s{86 if tm else 85} offen offset:{32*j} sc1')
                        fill.append(f)
            per = -(-(len(fill) + 1) // 8)
            for tm in range(8):
                need = [('R', k, tm)]
                if tm == 0 and k >= 36 and not k & 1: need.append(('M', k >> 1))
                L.wait(lg=need)
                order = [0, 1] if tm % 2 == 0 else [1, 0]
                for n, j in enumerate(order):
                    r, w = s.wreg(k, j)
                    c = s.ACC + 4 * (2 * tm + j)
                    tf = s.TF + 4 * tm
                    if not opt('g2x') & 1:
                        a.e(f'v_mfma_f32_16x16x32_bf16 v[{c}:{c+3}], {r}[{w}:{w+3}], v[{tf}:{tf+3}], v[{c}:{c+3}]')
                    if n == 0:
                        if tm == 0: RD(k, 7)
                        elif k + 1 < 56: RD(k + 1, tm - 1)
                    else:
                        for _ in range(per):
                            if fill:
                                fill.pop(0)()
                                if 'm0' in a.lines[-1]: break
            while fill:
                if 'm0' in a.lines[-1]: a.e('s_nop 0')
                fill.pop(0)()
            for c in list(pend):
                if not any(x == ('M', c) for x in L.lg):
                    pend.remove(c)
                    (wfree if todo else s.free).append(s.cell[c])
        assert not todo and not fly and not pend and nxt == NS
        stamp(a, 15)
        a.e('s_lshl_b32 s56, s2, 2')
        a.e(f's_add_u32 s56, s56, s{S_W}')
        a.e('s_lshl_b32 s57, s56, 13')
        a.e('s_xor_b32 s58, s57, 0x8000')
        a.e('s_lshl_b32 s56, s56, 6')
        a.e(f's_add_u32 s56, s56, {F4}')
        a.e('s_xor_b32 s59, s56, 0x100')
        srd(a, 40, P_WS, 8 * MB, WS_XP)
        a.e('s_add_u32 s87, s57, 4096')
        for q in range(8):
            c = s.ACC + 32 + 4 * q
            a.e(f'buffer_store_dwordx4 v[{c}:{c+3}], v{s.VT}, s[40:43], s{57 if q < 4 else 87} offen offset:{1024*(q&3)} sc1')
        srd(a, 48, P_OUT, 4 * MB)
        a.e('v_mov_b32 v20, 0')
        a.e(f'v_mov_b32 v21, s{S_NONCE}')
        H = 160
        a.e('s_waitcnt vmcnt(8)')
        for q in range(16):
            unpack(a, H + 2 * q, H + 2 * q + 1, HR + q)
        a.e('s_waitcnt vmcnt(0)')
        stamp(a, 16)
        a.e('s_mov_b64 exec, 1')
        a.e(f'buffer_store_dword v21, v20, s[{S_FLG}:{S_FLG+3}], s56 offen sc1')
        a.e('s_mov_b64 exec, -1')
        wait_flags(a, 59, 20, 22, solo=0)
        stamp(a, 17)
        a.e('s_add_u32 s87, s58, 4096')
        P1 = 96
        for q in range(8):
            a.e(f'buffer_load_dwordx4 v[{P1+4*q}:{P1+4*q+3}], v{s.VT}, s[40:43], s{58 if q < 4 else 87} offen offset:{1024*(q&3)} sc1')
        for q in range(8):
            tm, j = q >> 1, q & 1
            if j == 0 and tm: a.e(f's_add_u32 s85, s85, 32768')
            a.e('s_waitcnt vmcnt(7)')
            c = s.ACC + 4 * q
            for e in range(2):
                x = c + 2 * e; y = P1 + 4 * q + 2 * e; h = H + 4 * q + 2 * e
                a.e(f'v_pk_add_f32 v[{x}:{x+1}], v[{x}:{x+1}], v[{y}:{y+1}]')
                a.e(f'v_cvt_pk_bf16_f32 v{y}, v{x}, v{x+1}')
                unpack(a, x, x + 1, y)
                a.e(f'v_pk_add_f32 v[{x}:{x+1}], v[{x}:{x+1}], v[{h}:{h+1}]')
                a.e(f'v_cvt_pk_bf16_f32 v{128+2*q+e}, v{x}, v{x+1}')
            a.e(f'buffer_store_dwordx2 v[{128+2*q}:{128+2*q+1}], v{s.VO}, s[48:51], s85 offen offset:{32*j}')
        LIN[0] = None

def gen_dg(a):
    d = opt('dg'); F, ia, ib = d // 10000, d // 100 % 100, d % 100
    m = opt('dgm')
    a.raw('.globl dg_kernel\n.p2align 8\n.type dg_kernel,@function\ndg_kernel:')
    a.e('s_load_dwordx2 s[10:11], s[0:1], 96')
    a.e('s_memrealtime s[12:13]')
    a.e('s_waitcnt lgkmcnt(0)')
    a.e(f's_add_u32 s10, s10, {STAMP_BASE + opt("dgw", 0) * 128:#x}')
    a.e('s_addc_u32 s11, s11, 0')
    if not m:
        a.e(f's_load_dword s4, s[10:11], {4*ia}')
        a.e(f's_load_dword s5, s[10:11], {4*ib}')
        a.e('s_waitcnt lgkmcnt(0)')
    else:
        a.e('s_mov_b32 s20, s10\ns_mov_b32 s21, s11\ns_mov_b32 s22, 0x20000\ns_mov_b32 s23, 0x20000')
        a.e('v_lshlrev_b32 v1, 7, v0')
        for i in range(16):
            a.e(f's_mov_b32 s6, {i*8192}')
            a.e(f'buffer_load_dword v{8+i}, v1, s[20:23], s6 offen offset:{4*ia}')
            a.e(f'buffer_load_dword v{24+i}, v1, s[20:23], s6 offen offset:{4*ib}')
        a.e('s_waitcnt vmcnt(0)')
        for i in range(32):
            a.e(f'v_sub_u32 v{8+i}, s12, v{8+i}')
        opa = 'v_max_u32' if m != 3 else 'v_add_u32'
        opb = {1: 'v_min_u32', 2: 'v_max_u32', 3: 'v_add_u32'}[m]
        for i in range(1, 16):
            a.e(f'{opa} v8, v8, v{8+i}')
            a.e(f'{opb} v24, v24, v{24+i}')
        a.e('s_nop 1')
        a.e('v_readlane_b32 s4, v8, 0')
        a.e('v_readlane_b32 s5, v24, 0')
        sa = 's_max_u32' if m != 3 else 's_add_u32'
        sb = {1: 's_min_u32', 2: 's_max_u32', 3: 's_add_u32'}[m]
        for l in range(1, 64):
            a.e(f'v_readlane_b32 s6, v8, {l}')
            a.e(f'v_readlane_b32 s7, v24, {l}')
            a.e('s_nop 0')
            a.e(f'{sa} s4, s4, s6')
            a.e(f'{sb} s5, s5, s7')
        a.e('s_sub_u32 s5, s4, s5')
        if m == 3: a.e('s_lshr_b32 s5, s5, 10')
        a.e('s_mov_b32 s4, 0')
        a.e('s_memrealtime s[12:13]')
        a.e('s_waitcnt lgkmcnt(0)')
    a.e('s_sub_u32 s4, s5, s4')
    a.e('s_min_u32 s4, s4, 10000')
    a.e(f's_mul_i32 s4, s4, {F}')
    a.e('L_dg:')
    a.e('s_memrealtime s[14:15]')
    a.e('s_waitcnt lgkmcnt(0)')
    a.e('s_sub_u32 s5, s14, s12')
    a.e('s_cmp_lt_u32 s5, s4')
    a.e('s_cbranch_scc1 L_dg')
    a.e('s_endpgm')

def build():
    a = Asm()
    hdr = open('cdna_kernels/' + NAME + '.s.ref').read().split('\n')
    cm = [l for l in hdr if l.startswith(';') and '@launch' not in l and 'Override launch' not in l and 'grid=ceil' not in l]
    out = '\n'.join(cm) + '\n'
    if opt('aslist') or opt('dg'):
        out += f'; @launch kernel={KNAME} grid=(256,1,1) block=(256,1,1) lds=163840\n'
        if opt('dg'): out += '; @launch kernel=dg_kernel grid=(1,1,1) block=(64,1,1) lds=0\n'
    else:
        out += '; @launch grid=(256,1,1) block=(256,1,1) lds=163840\n'
    a.raw('.amdgcn_target "amdgcn-amd-amdhsa--gfx950"')
    a.raw('.text')
    gen(a)
    if opt('dg'): gen_dg(a)
    body = a.text()
    errs = check_hazards(body)
    errs += check_waits(body, KNAME, loop_iters=2, take_fwd=('L_nonce_ok', 'L_nonce_skip', 'L_clean_skip') + tuple(f'L_sig{i}' for i in range(20)) + tuple(f'L_poll{i}x' for i in range(20)))
    errs += check_waits(body, KNAME, loop_iters=2, take_fwd=('L_nonce_ok',) + (() if opt('solo', 1) else tuple(f'L_poll{i}x' for i in range(20))))
    for e in errs[:8]: print(e, file=sys.stderr)
    na = 256
    out += body + f'''.section .rodata,"a"
.p2align 6
.amdhsa_kernel {KNAME}
  .amdhsa_next_free_vgpr {256+na}
  .amdhsa_next_free_sgpr 102
  .amdhsa_accum_offset 256
  .amdhsa_group_segment_fixed_size 0
  .amdhsa_kernarg_size 104
  .amdhsa_user_sgpr_count 2
  .amdhsa_user_sgpr_kernarg_segment_ptr 1
  .amdhsa_system_sgpr_workgroup_id_x 1
  .amdhsa_float_denorm_mode_32 3
.end_amdhsa_kernel
'''
    if opt('dg'):
        out += '''.p2align 6
.amdhsa_kernel dg_kernel
  .amdhsa_next_free_vgpr 48
  .amdhsa_next_free_sgpr 32
  .amdhsa_accum_offset 48
  .amdhsa_group_segment_fixed_size 0
  .amdhsa_kernarg_size 104
  .amdhsa_user_sgpr_count 2
  .amdhsa_user_sgpr_kernarg_segment_ptr 1
  .amdhsa_system_sgpr_workgroup_id_x 1
.end_amdhsa_kernel
'''
    return out, errs

if __name__ == '__main__':
    outp = sys.argv[1]
    for kv in sys.argv[2:]:
        k, v = kv.split('=')
        OPT[k] = int(v)
    t, errs = build()
    open(outp, 'w').write(t)
    print('written', outp, len(t), 'bytes;', len(errs), 'checker errors')
```

```python
import sys, os
from asmlib import *

NAME = 'sequential_preLN__ssm_conv_h3__glu_gated_swiglu__prompt'
KNAME = NAME + '_kernel'
MB = 1 << 20
WS0 = int(os.environ.get('WS0', '0')) * MB
WS_UB, WS_Y2, WS_H, WS_HNF, WS_HF, WS_XP, WS_FLG = [WS0 + x * MB for x in (0, 4, 8, 12, 16, 32, 40)]
STAMP_BASE = 64 * MB
OPT = {}
def opt(k, d=0): return OPT.get(k, d)

P_Q, P_K, P_V, P_SH, P_SSMK, P_D, P_X, P_W1, P_W3, P_W2, P_OUT, P_DBG, P_WS = [4 + 2 * i for i in range(13)]
S_W, S_NONCE, S_MASK = 30, 31, 90
S_FLG = 92
F0, F1, F2, F3, F4 = 0, 32768, 65536, 98304, 131072
FLG_SIZE = 262144
LDS_KA = 98304
KA_REG = 13056
NSTAMP = 20
AST = 128

def srd(a, d, p, size, add=0, addreg=None):
    if add or addreg is not None:
        if add:
            a.e(f's_add_u32 s{d}, s{p}, {add:#x}')
            a.e(f's_addc_u32 s{d+1}, s{p+1}, 0')
            if addreg is not None:
                a.e(f's_add_u32 s{d}, s{d}, s{addreg}')
                a.e(f's_addc_u32 s{d+1}, s{d+1}, 0')
        else:
            a.e(f's_add_u32 s{d}, s{p}, s{addreg}')
            a.e(f's_addc_u32 s{d+1}, s{p+1}, 0')
    else:
        a.e(f's_mov_b32 s{d}, s{p}')
        a.e(f's_mov_b32 s{d+1}, s{p+1}')
    if size is not None:
        a.e(f's_mov_b32 s{d+2}, {size:#x}')
    a.e(f's_mov_b32 s{d+3}, 0x20000')

def stamp(a, i):
    if not opt('stamp'): return
    a.e('s_memrealtime s[60:61]')
    if i == 0: a.e('s_memtime s[62:63]')
    cy = {11: 20, 12: 21, 14: 22, 15: 23, 4: 24, 5: 25}.get(i)
    if cy: a.e('s_memtime s[66:67]')
    a.e('s_waitcnt lgkmcnt(0)')
    a.e(f'v_writelane_b32 v1, s60, {i}')
    if cy: a.e(f'v_writelane_b32 v1, s66, {cy}')
    if LIN[0]: LIN[0].lg = []

def stamp_out(a, n):
    if not opt('stamp'): return
    a.e('s_waitcnt vmcnt(0)')
    stamp(a, n - 1)
    a.e('s_memtime s[64:65]')
    a.e('s_waitcnt lgkmcnt(0)')
    srd(a, 32, P_WS, 1 * MB, STAMP_BASE)
    a.e('s_lshl_b32 s84, s2, 2')
    a.e(f's_add_u32 s84, s84, s{S_W}')
    a.e('s_lshl_b32 s84, s84, 7')
    a.e('s_sub_u32 s64, s64, s62')
    a.e('v_writelane_b32 v1, s64, 31')
    a.e('v_mbcnt_lo_u32_b32 v2, -1, 0')
    a.e('v_lshlrev_b32 v2, 2, v2')
    a.e('s_mov_b64 exec, 0xffffffff')
    a.e('buffer_store_dword v1, v2, s[32:35], s84 offen')

LIN = [None]
class Lin:
    def __init__(s, a): s.a = a; s.vm = []; s.lg = []; LIN[0] = s
    def e(s, t): s.a.e(t)
    def v(s, tag, t): s.a.e(t); s.vm.append(tag)
    def l(s, tag, t): s.a.e(t); s.lg.append(tag)
    def _n(s, q, tags, cap):
        idx = [i for i, x in enumerate(q) if x in tags]
        if not idx: return None
        n = len(q) - max(idx) - 1
        return min(n, cap)
    def wait(s, vm=(), lg=(), vm0=False, lg0=False):
        nv = 0 if vm0 else s._n(s.vm, vm, 63)
        nl = 0 if lg0 else s._n(s.lg, lg, 15)
        t = ''
        if nv is not None:
            t += f' vmcnt({nv})'; s.vm = s.vm[len(s.vm) - nv:] if nv else []
        if nl is not None:
            t += f' lgkmcnt({nl})'; s.lg = s.lg[len(s.lg) - nl:] if nl else []
        if t: s.a.e('s_waitcnt' + t)

def unpack(a, dlo, dhi, src):
    a.e(f'v_lshlrev_b32 v{dlo}, 16, v{src}')
    a.e(f'v_and_b32 v{dhi}, s{S_MASK}, v{src}')

def hfl():
    return [' sc1', ' sc0 sc1', ' sc1 nt', ' sc0 sc1 nt', ''][opt('hfl')]

def code_pf(a, lab_from, lab_to, vt, emit=None, n=1):
    _uid[0] += 1
    L = f'L_pc{_uid[0]}'
    a.e('s_getpc_b64 s[78:79]')
    a.e(f'{L}:')
    a.e(f's_lshl_b32 s77, s{S_W}, 13')
    a.e(f's_add_u32 s77, s77, {lab_from}-{L}')
    for i in range(n):
        if i: a.e('s_add_u32 s77, s77, 32768')
        a.e(f'v_lshl_add_u32 v{vt}, v2, 7, s77')
        a.e(f'v_min_u32 v{vt}, {lab_to}-{L}, v{vt}')
        t = f'global_load_dword v{vt+1+i}, v{vt}, s[78:79]'
        if emit: emit(t)
        else: a.e(t)

def hf_base(a, d, mb, q, t):
    if not opt('reuse', 1):
        a.e(f's_lshl_b32 s{d}, s{mb}, 2')
        a.e(f's_add_u32 s{d}, s{d}, s{q}')
        a.e(f's_mul_i32 s{d}, s{d}, 458752')
        a.e(f's_add_u32 s{d}, s{d}, {WS_HF:#x}')
        return
    a.e(f's_lshl_b32 s{d}, s{mb}, 1')
    a.e(f's_add_u32 s{d}, s{d}, s{q}')
    a.e(f's_mul_i32 s{d}, s{d}, 458752')
    a.e(f's_add_u32 s{d}, s{d}, {WS_HF:#x}')
    a.e(f's_lshl_b32 s{t}, s{mb}, 19')
    a.e(f's_cmp_eq_u32 s{q}, 1')
    a.e(f's_cselect_b32 s{d}, s{t}, s{d}')
    a.e(f's_add_u32 s{t}, s{t}, {WS_Y2 - WS_UB:#x}')
    a.e(f's_cmp_eq_u32 s{q}, 0')
    a.e(f's_cselect_b32 s{d}, s{t}, s{d}')

_uid = [0]
def signal(a, soff, vt, waitfn=None, wb=False):
    _uid[0] += 1
    L = f'L_sig{_uid[0]}'
    a.e(f'v_mov_b32 v{vt}, 0')
    a.e(f'v_mov_b32 v{vt+1}, s{S_NONCE}')
    a.e(f's_cmp_eq_u32 s{S_W}, 0')
    if waitfn: waitfn()
    else: a.e('s_waitcnt vmcnt(0)')
    a.e('s_barrier')
    a.e(f's_cbranch_scc0 {L}')
    if wb:
        a.e('buffer_wbl2 sc1')
        a.e('s_waitcnt vmcnt(0)')
    a.e('s_mov_b64 exec, 1')
    a.e(f'buffer_store_dword v{vt+1}, v{vt}, s[{S_FLG}:{S_FLG+3}], s{soff} offen sc1')
    a.e('s_mov_b64 exec, -1')
    a.e(f'{L}:')

def fsh():
    return opt('fs', 32).bit_length() - 1
def f1sh():
    return opt('f1s', 32).bit_length() - 1

def wait_flags(a, soff, voff, vd, n=64, solo=None):
    _uid[0] += 1
    L = f'L_poll{_uid[0]}'
    if solo is None: solo = opt('solo', 1)
    if solo:
        a.e(f's_cmp_lg_u32 s{S_W}, 0')
        a.e(f's_cbranch_scc1 {L}x')
    a.e(f'{L}:')
    if n == 256:
        if f1sh() == 2:
            a.e(f'buffer_load_dwordx4 v[{vd}:{vd+3}], v{voff}, s[{S_FLG}:{S_FLG+3}], s{soff} offen sc1')
        else:
            for i in range(4):
                a.e(f's_add_u32 s89, s{soff}, {i*(64<<f1sh())}')
                a.e(f'buffer_load_dword v{vd+i}, v{voff}, s[{S_FLG}:{S_FLG+3}], s89 offen sc1')
        a.e('s_waitcnt vmcnt(0)')
        a.e(f'v_xor_b32 v{vd}, s{S_NONCE}, v{vd}')
        a.e(f'v_xor_b32 v{vd+1}, s{S_NONCE}, v{vd+1}')
        a.e(f'v_xor_b32 v{vd+2}, s{S_NONCE}, v{vd+2}')
        a.e(f'v_xor_b32 v{vd+3}, s{S_NONCE}, v{vd+3}')
        a.e(f'v_or3_b32 v{vd}, v{vd}, v{vd+1}, v{vd+2}')
        a.e(f'v_or_b32 v{vd}, v{vd}, v{vd+3}')
        a.e(f'v_cmp_ne_u32 vcc, 0, v{vd}')
    else:
        a.e(f'buffer_load_dword v{vd}, v{voff}, s[{S_FLG}:{S_FLG+3}], s{soff} offen sc1')
        a.e('s_waitcnt vmcnt(0)')
        a.e(f'v_cmp_ne_u32 vcc, s{S_NONCE}, v{vd}')
    a.e('s_add_u32 s3, s3, 1')
    a.e(f's_cmp_gt_u32 s3, {opt("spin", 200000)}')
    a.e(f's_cbranch_scc1 {L}x')
    a.e(f's_cbranch_vccz {L}x')
    if opt('sleep'): a.e(f's_sleep {opt("sleep")}')
    a.e(f's_branch {L}')
    a.e(f'{L}x:')
    if solo: a.e('s_barrier')

def wave_sum2(a, va, vb, sa, sb):
    for mod in ('row_shr:1 row_mask:0xf bank_mask:0xf bound_ctrl:0', 'row_shr:2 row_mask:0xf bank_mask:0xf bound_ctrl:0',
                'row_shr:4 row_mask:0xf bank_mask:0xf bound_ctrl:0', 'row_shr:8 row_mask:0xf bank_mask:0xf bound_ctrl:0',
                'row_bcast:15 row_mask:0xa bank_mask:0xf', 'row_bcast:31 row_mask:0xc bank_mask:0xf'):
        a.e('s_nop 0')
        a.e(f'v_add_f32_dpp v{va}, v{va}, v{va} {mod}')
        a.e(f'v_add_f32_dpp v{vb}, v{vb}, v{vb} {mod}')
    a.e(f'v_readlane_b32 s{sa}, v{va}, 63')
    a.e(f'v_readlane_b32 s{sb}, v{vb}, 63')

def ln2(a, X, T, M, R, C):
    def both(f):
        for r in range(2): f(r)
    for q in range(4):
        both(lambda r: a.e(f'v_pk_add_f32 v[{T[r]+2*q}:{T[r]+2*q+1}], v[{X[r]+4*q}:{X[r]+4*q+1}], v[{X[r]+4*q+2}:{X[r]+4*q+3}]'))
    both(lambda r: a.e(f'v_pk_add_f32 v[{T[r]}:{T[r]+1}], v[{T[r]}:{T[r]+1}], v[{T[r]+2}:{T[r]+3}]'))
    both(lambda r: a.e(f'v_pk_add_f32 v[{T[r]+4}:{T[r]+5}], v[{T[r]+4}:{T[r]+5}], v[{T[r]+6}:{T[r]+7}]'))
    both(lambda r: a.e(f'v_pk_add_f32 v[{T[r]}:{T[r]+1}], v[{T[r]}:{T[r]+1}], v[{T[r]+4}:{T[r]+5}]'))
    both(lambda r: a.e(f'v_add_f32 v{T[r]}, v{T[r]}, v{T[r]+1}'))
    wave_sum2(a, T[0], T[1], 56, 57)
    a.e('s_nop 0')
    both(lambda r: a.e(f'v_mul_f32 v{M[r]}, s{56+r}, v{C}'))
    both(lambda r: a.e(f'v_mov_b32 v{M[r]+1}, v{M[r]}'))
    for q in range(8):
        both(lambda r: a.e(f'v_pk_add_f32 v[{T[r]+2*q}:{T[r]+2*q+1}], v[{X[r]+2*q}:{X[r]+2*q+1}], v[{M[r]}:{M[r]+1}] neg_lo:[0,1] neg_hi:[0,1]'))
    both(lambda r: a.e(f'v_pk_mul_f32 v[{R[r]}:{R[r]+1}], v[{T[r]}:{T[r]+1}], v[{T[r]}:{T[r]+1}]'))
    for q in range(1, 8):
        both(lambda r: a.e(f'v_pk_fma_f32 v[{R[r]}:{R[r]+1}], v[{T[r]+2*q}:{T[r]+2*q+1}], v[{T[r]+2*q}:{T[r]+2*q+1}], v[{R[r]}:{R[r]+1}]'))
    both(lambda r: a.e(f'v_add_f32 v{R[r]}, v{R[r]}, v{R[r]+1}'))
    def rbf(v):
        a.e(f'v_cvt_pk_bf16_f32 v{v}, v{v}, v{v}')
        a.e(f'v_and_b32 v{v}, s{S_MASK}, v{v}')
    both(lambda r: rbf(M[r]))
    wave_sum2(a, R[0], R[1], 58, 59)
    both(lambda r: a.e(f'v_mov_b32 v{M[r]+1}, v{M[r]}'))
    both(lambda r: a.e(f'v_mul_f32 v{R[r]}, s{58+r}, v{C}'))
    both(lambda r: rbf(R[r]))
    both(lambda r: a.e(f'v_add_f32 v{R[r]}, 0x3727c5ac, v{R[r]}'))
    both(lambda r: rbf(R[r]))
    both(lambda r: a.e(f'v_sqrt_f32 v{R[r]}, v{R[r]}'))
    for q in range(2):
        both(lambda r: a.e(f'v_pk_add_f32 v[{T[r]+2*q}:{T[r]+2*q+1}], v[{X[r]+2*q}:{X[r]+2*q+1}], v[{M[r]}:{M[r]+1}] neg_lo:[0,1] neg_hi:[0,1]'))
    both(lambda r: rbf(R[r]))
    both(lambda r: a.e(f'v_rcp_f32 v{R[r]}, v{R[r]}'))
    for q in range(2, 8):
        both(lambda r: a.e(f'v_pk_add_f32 v[{T[r]+2*q}:{T[r]+2*q+1}], v[{X[r]+2*q}:{X[r]+2*q+1}], v[{M[r]}:{M[r]+1}] neg_lo:[0,1] neg_hi:[0,1]'))
    both(lambda r: a.e(f'v_mov_b32 v{R[r]+1}, v{R[r]}'))
    for q in range(8):
        both(lambda r: a.e(f'v_pk_mul_f32 v[{T[r]+2*q}:{T[r]+2*q+1}], v[{T[r]+2*q}:{T[r]+2*q+1}], v[{R[r]}:{R[r]+1}]'))

class Sched:
    def __init__(self): self.ev = []; self.marks = {}
    def mark(self, k): self.marks[k] = len(self.ev)
    def add(self, L): self.ev += L
    def younger(self, tag, at):
        last = max(i for i, e in enumerate(self.ev) if e[:2] == tag)
        assert last < self.marks[at], (tag, at)
        return self.marks[at] - last - 1

def gen(a):
    a.raw(f'.globl {KNAME}')
    a.raw('.p2align 8')
    a.raw(f'.type {KNAME},@function')
    a.raw(f'{KNAME}:')
    a.e('s_cmp_ge_u32 s2, 256')
    a.e('s_cbranch_scc1 L_end')
    a.e('s_load_dwordx8 s[4:11], s[0:1], 0')
    a.e('s_load_dwordx8 s[20:27], s[0:1], 64')
    a.e('s_load_dwordx2 s[28:29], s[0:1], 96')
    a.e('s_load_dwordx8 s[12:19], s[0:1], 32')
    a.e('s_memrealtime s[56:57]')
    a.e('v_lshrrev_b32 v1, 6, v0')
    a.e('v_and_b32 v2, 63, v0')
    a.e(f'v_readfirstlane_b32 s{S_W}, v1')
    a.e(f's_mov_b32 s{S_MASK}, 0xffff0000')
    a.e('s_mov_b32 s3, 0')
    a.e('s_bfe_u32 s82, s2, 0x30003')
    a.e('s_and_b32 s83, s2, 7')
    a.e('s_lshr_b32 s84, s2, 6')
    a.e('s_lshl_b32 s84, s84, 3')
    a.e('s_or_b32 s83, s83, s84')
    a.e('v_and_b32 v1, 15, v0')
    a.e('v_lshrrev_b32 v8, 4, v0')
    a.e('s_lshl_b32 s85, s83, 17')
    a.e('s_lshl_b32 s86, s82, 8')
    a.e('s_add_u32 s85, s85, s86')
    a.e('v_lshlrev_b32 v3, 13, v1')
    a.e('v_lshl_add_u32 v3, v8, 4, v3')
    a.e('v_add_u32 v3, s85, v3')
    a.e('v_add_u32 v4, 0xffffe800, v3')
    a.e('v_add_u32 v5, 0xfffff800, v3')
    a.e('v_add_u32 v6, 0x1000, v3')
    a.e('s_lshl_b32 s86, s82, 10')
    a.e('v_lshlrev_b32 v7, 6, v8')
    a.e('v_add_u32 v7, s86, v7')
    a.e('s_lshl_b32 s87, s82, 5')
    a.e('s_add_u32 s87, s87, s83')
    a.e('s_lshl_b32 s88, s87, 14')
    a.e('s_add_u32 s88, s88, 120')
    a.e('v_lshlrev_b32 v160, 10, v8')
    a.e('v_lshlrev_b32 v161, 3, v1')
    a.e('v_sub_u32 v160, v160, v161')
    a.e('v_add_u32 v160, s88, v160')
    a.e(f's_lshl_b32 s87, s87, {fsh()}')
    a.e('v_mov_b32 v162, 0')
    a.e('s_waitcnt lgkmcnt(0)')
    stamp(a, 0)
    srd(a, 32, P_K, 4 * MB)
    srd(a, 36, P_V, 4 * MB)
    srd(a, 40, P_SH, 8192)
    KR, VR_, WR, WU, KU, AC0 = 8, 36, 52, 68, 100, 164
    for j in range(4):
        a.e(f'buffer_load_dwordx4 v[{WR+4*j}:{WR+4*j+3}], v7, s[40:43], 0 offen offset:{16*j}')
    rows = [(4, 0), (4, 2048), (5, 0), (3, 0), (3, 2048), (6, 0), (6, 2048)]
    for r, (vr, off) in enumerate(rows):
        a.e(f'buffer_load_dwordx4 v[{KR+4*r}:{KR+4*r+3}], v{vr}, s[32:35], 0 offen offset:{off}')
    for r, (vr, off) in enumerate(rows[3:]):
        a.e(f'buffer_load_dwordx4 v[{VR_+4*r}:{VR_+4*r+3}], v{vr}, s[36:39], 0 offen offset:{off}')
    ncp = 0
    if opt('cpf', 0):
        a.e('s_getpc_b64 s[58:59]')
        a.e('L_pc:')
        a.e('v_lshlrev_b32 v163, 7, v0')
        a.e('v_min_u32 v163, L_end-L_pc, v163')
        a.e('global_load_dword v161, v163, s[58:59]')
        ncp = 1
    srd(a, 48, P_WS, 4 * MB, WS_UB)
    if opt('pt', 0) & 1:
        a.e('v_lshlrev_b32 v163, 6, v0')
        a.e('s_sub_u32 s58, s88, 120')
        a.e('buffer_load_dword v161, v163, s[48:51], s58 offen')
        ncp += 1
    srd(a, 44, P_DBG, 256)
    a.e('s_or_b32 s56, s56, 1')
    a.e(f's_or_b32 s57, s2, s{S_W}')
    a.e('s_cmp_lg_u32 s57, 0')
    a.e('s_cbranch_scc1 L_nonce_skip')
    a.e('v_mov_b32 v163, s56')
    a.e('s_mov_b64 exec, 1')
    a.e('buffer_store_dword v163, v162, s[44:47], 0 offen sc1')
    a.e('s_mov_b64 exec, -1')
    a.e('s_waitcnt vmcnt(0)')
    a.e('L_nonce_skip:')
    srd(a, S_FLG, P_WS, FLG_SIZE, WS_FLG)
    a.e(f's_waitcnt vmcnt({11+ncp})')
    for e in range(8):
        unpack(a, WU + 0 * 8 + e, WU + 1 * 8 + e, WR + 2 * e)
        unpack(a, WU + 2 * 8 + e, WU + 3 * 8 + e, WR + 2 * e + 1)
    for r in range(7):
        a.e(f's_waitcnt vmcnt({10-r+ncp})')
        for q in range(4):
            unpack(a, KU + 8 * r + 2 * q, KU + 8 * r + 2 * q + 1, KR + 4 * r + q)
        if r >= 3:
            i = r - 3
            for j in range(4):
                for q in range(4):
                    d = AC0 + 8 * i + 2 * q
                    k = KU + 8 * (i + 3 - j) + 2 * q
                    w = WU + 8 * j + 2 * q
                    if j == 0:
                        a.e(f'v_pk_mul_f32 v[{d}:{d+1}], v[{k}:{k+1}], v[{w}:{w+1}]')
                    else:
                        a.e(f'v_pk_fma_f32 v[{d}:{d+1}], v[{k}:{k+1}], v[{w}:{w+1}], v[{d}:{d+1}]')
    VU = 8
    for i in range(4):
        a.e(f's_waitcnt vmcnt({3-i+ncp})')
        if i == 3:
            a.e('buffer_load_dword v163, v162, s[44:47], 0 offen sc1')
        for q in range(4):
            unpack(a, VU + 2 * q, VU + 2 * q + 1, VR_ + 4 * i + q)
        for q in range(4):
            d = AC0 + 8 * i + 2 * q
            a.e(f'v_pk_mul_f32 v[{d}:{d+1}], v[{d}:{d+1}], v[{VU+2*q}:{VU+2*q+1}]')
    O = 52
    for e in range(8):
        a.e(f'v_cvt_pk_bf16_f32 v{O+2*e}, v{AC0+24+e}, v{AC0+16+e}')
        a.e(f'v_cvt_pk_bf16_f32 v{O+2*e+1}, v{AC0+8+e}, v{AC0+e}')
        a.e(f'buffer_store_dwordx2 v[{O+2*e}:{O+2*e+1}], v160, s[48:51], 0 offen offset:{128*e} sc1')
    stamp(a, 1)
    a.e('s_and_b32 s82, s2, 7')
    a.e('s_lshr_b32 s83, s2, 3')
    a.e('s_lshl_b32 s84, s83, 2')
    a.e(f's_add_u32 s84, s84, s{S_W}')
    a.e('s_lshl_b32 s85, s82, 7')
    a.e('s_add_u32 s85, s85, s84')
    a.e('s_lshl_b32 s86, s82, 5')
    a.e('s_add_u32 s86, s86, s83')
    a.e(f's_mul_i32 s88, s{S_W}, {KA_REG}')
    a.e(f's_add_u32 s88, s88, {LDS_KA}')
    a.e('s_lshl_b32 s56, s85, 12')
    srd(a, 32, P_SSMK, 4096, 0, 56)
    a.e('s_lshr_b32 s57, s85, 1')
    a.e('s_lshl_b32 s57, s57, 2')
    a.e(f's_load_dword s89, s[{P_D}:{P_D+1}], s57')
    a.e('v_lshlrev_b32 v4, 4, v2')
    KD, KX = 8, 24
    for j in range(4):
        a.e(f'buffer_load_dwordx4 v[{KD+4*j}:{KD+4*j+3}], v4, s[32:35], 0 offen offset:{1024*j}')
        a.e(f'buffer_load_dword v{KX+j}, v4, s[32:35], 0 offen offset:{1024*j+16}')
    a.e('s_and_b32 s80, s82, 1')
    a.e('s_lshl_b32 s80, s80, 2')
    a.e('s_and_b32 s56, s83, 3')
    a.e('s_add_u32 s80, s80, s56')
    a.e('s_lshr_b32 s81, s82, 1')
    a.e('s_lshl_b32 s81, s81, 3')
    a.e('s_lshr_b32 s56, s83, 2')
    a.e('s_add_u32 s81, s81, s56')
    a.e('s_lshl_b32 s91, s80, 5')
    a.e('s_add_u32 s91, s91, s81')
    a.e('s_lshl_b32 s56, s91, 2')
    a.e(f's_add_u32 s56, s56, s{S_W}')
    a.e('s_lshl_b32 s96, s56, 12')
    srd(a, 36, P_Q, 4 * MB)
    XP = 224
    for r in range(2):
        for hh in range(2):
            a.e(f'buffer_load_dwordx4 v[{XP+8*r+4*hh}:{XP+8*r+4*hh+3}], v4, s[36:39], s96 offen offset:{2048*r+1024*hh}')
    nc0 = 0
    if opt('cpf0', 0):
        if opt('cpf0', 0) == 1:
            code_pf(a, 'L_nonce', 'L_end', 164, n=2); nc0 = 2
        else:
            code_pf(a, 'L_nonce', 'L_kbcode', 164); nc0 = 1
    a.e(f's_waitcnt vmcnt({20+nc0})')
    a.e('L_nonce:')
    a.e(f'v_readfirstlane_b32 s{S_NONCE}, v163')
    a.e('s_nop 0')
    a.e(f's_cmp_lg_u32 s{S_NONCE}, 0')
    a.e('s_cbranch_scc1 L_nonce_ok')
    a.e('s_add_u32 s3, s3, 1')
    a.e(f's_cmp_gt_u32 s3, {opt("spin", 200000)}')
    a.e('s_cbranch_scc1 L_nonce_ok')
    a.e('buffer_load_dword v163, v162, s[44:47], 0 offen sc1')
    a.e('s_waitcnt vmcnt(0)')
    a.e('s_branch L_nonce')
    a.e('L_nonce_ok:')
    a.e(f'v_mov_b32 v163, s{S_NONCE}')
    a.e(f's_cmp_eq_u32 s{S_W}, 0')
    a.e(f's_waitcnt vmcnt({12+nc0})')
    a.e('s_barrier')
    a.e('s_cbranch_scc0 L_sig0')
    a.e('s_mov_b64 exec, 1')
    a.e(f'buffer_store_dword v163, v162, s[{S_FLG}:{S_FLG+3}], s87 offen sc1')
    a.e('s_mov_b64 exec, -1')
    a.e('L_sig0:')
    stamp(a, 2)
    npt = 0
    if opt('pt', 0) & 2:
        srd(a, 40, P_WS, 12 * MB, WS_Y2)
        a.e('v_lshlrev_b32 v164, 14, v0')
        a.e('s_lshl_b32 s56, s86, 6')
        a.e('buffer_load_dword v161, v164, s[40:43], s56 offen')
        a.e('v_lshlrev_b32 v164, 6, v0')
        a.e('s_lshl_b32 s56, s91, 14')
        a.e(f's_add_u32 s56, s56, {4*MB}')
        a.e('buffer_load_dword v161, v164, s[40:43], s56 offen')
        a.e('v_lshrrev_b32 v164, 3, v0')
        a.e('v_lshlrev_b32 v164, 12, v164')
        a.e('v_bfe_u32 v165, v0, 1, 2')
        a.e('v_lshl_add_u32 v164, v165, 8, v164')
        a.e('s_lshr_b32 s56, s91, 3')
        a.e('s_lshl_b32 s56, s56, 17')
        a.e('s_and_b32 s57, s91, 7')
        a.e('s_lshr_b32 s58, s57, 1')
        a.e('s_lshl_b32 s58, s58, 10')
        a.e('s_add_u32 s56, s56, s58')
        a.e('s_and_b32 s57, s57, 1')
        a.e('s_lshl_b32 s57, s57, 7')
        a.e('s_add_u32 s56, s56, s57')
        a.e(f's_add_u32 s56, s56, {8*MB}')
        a.e('buffer_load_dword v161, v164, s[40:43], s56 offen')
        npt += 3
    a.e('v_lshrrev_b32 v3, 3, v2')
    a.e('v_sub_u32 v3, 7, v3')
    a.e('v_lshlrev_b32 v3, 14, v3')
    a.e('v_and_b32 v5, 7, v2')
    a.e('v_lshl_add_u32 v3, v5, 4, v3')
    a.e('s_lshl_b32 s56, s84, 7')
    a.e('v_add_u32 v3, s56, v3')
    a.e('v_and_b32 v5, 15, v2')
    a.e('v_lshrrev_b32 v6, 4, v2')
    a.e('v_mov_b32 v28, 0')
    a.e('v_mov_b32 v29, 0')
    a.e('v_lshlrev_b32 v7, 3, v2')
    a.e('v_add_u32 v7, s88, v7')
    a.e('ds_write_b64 v7, v[28:29] offset:4096')
    a.e('v_min_u32 v30, 7, v2')
    a.e('v_lshlrev_b32 v30, 2, v30')
    a.e('v_add_u32 v30, s88, v30')
    a.e('ds_write_b32 v30, v28 offset:4608')
    a.e('v_add_u32 v31, 1, v5')
    a.e('v_and_b32 v32, 1, v31')
    a.e('v_sub_u32 v31, v31, v32')
    a.e('v_lshl_add_u32 v31, v6, 3, v31')
    a.e('v_lshlrev_b32 v31, 1, v31')
    a.e('v_mul_u32_u24 v32, 4160, v32')
    a.e('v_add3_u32 v31, v31, v32, s88')
    VA, VB, ACC = 36, 40, 44
    for j in range(4):
        a.e(f'v_add_u32 v{VA+j}, {4608+1024*j}, v31')
    a.e('v_lshlrev_b32 v32, 5, v5')
    a.e('v_lshlrev_b32 v33, 4, v6')
    a.e('v_sub_u32 v33, v33, v32')
    a.e('v_add_u32 v33, s88, v33')
    a.e(f'v_add_u32 v{VB}, 480, v33')
    a.e('v_add_u32 v7, s88, v4')
    for r in range(32):
        a.e(f'v_mov_b32 v{ACC+r}, 0')
    T = 76
    a.e(f's_waitcnt vmcnt({4+npt+nc0})')
    for j in range(4):
        d = KD + 4 * j
        if j == 0:
            a.e(f'v_readfirstlane_b32 s56, v{d}')
        a.e(f'ds_write_b128 v7, v[{d}:{d+3}] offset:{4608+32+1024*j}')
        for q in range(4):
            hi = d + q + 1 if q < 3 else KX + j
            a.e(f'v_alignbit_b32 v{T+4*j+q}, v{hi}, v{d+q}, 16')
        a.e(f'ds_write_b128 v7, v[{T+4*j}:{T+4*j+3}] offset:{4608+4160+32+1024*j}')
    a.e('s_lshl_b32 s56, s56, 16')
    a.e('v_cmp_le_u32 vcc, 7, v2')
    a.e('v_mov_b32 v32, s56')
    a.e('s_nop 0')
    a.e('v_cndmask_b32 v32, v28, v32, vcc')
    a.e(f'ds_write_b32 v30, v32 offset:{4608+4160}')
    FA = [96, 160]; FB = [128, 192]
    def rdA(r, buf):
        L = []
        for mq in range(8):
            o = 128 * (mq & 1) + 16 * r
            f = FA[buf] + 4 * mq
            L.append(f'ds_read2_b32 v[{f}:{f+1}], v{VA+(mq>>1)} offset0:{o} offset1:{o+1}')
            L.append(f'ds_read2_b32 v[{f+2}:{f+3}], v{VA+(mq>>1)} offset0:{o+2} offset1:{o+3}')
        return L
    def rdB(r, buf):
        return [f'ds_read_b128 v[{FB[buf]+4*d}:{FB[buf]+4*d+3}], v{VB} offset:{512*(7-d)+64*r}' for d in range(8)]
    a.e('s_waitcnt lgkmcnt(0)')
    a.e('s_bitcmp1_b32 s85, 0')
    a.e('s_cselect_b32 s56, 0, 16')
    a.e('s_lshl_b32 s89, s89, s56')
    a.e('s_and_b32 s89, s89, 0xffff0000')
    for l in rdA(0, 0): a.e(l)
    a.e('v_and_b32 v34, 31, v2')
    a.e(f'v_lshlrev_b32 v34, {fsh()}, v34')
    a.e(f's_lshl_b32 s56, s82, {5+fsh()}')
    wait_flags(a, 56, 34, 35)
    stamp(a, 3)
    a.e('s_lshl_b32 s56, s82, 19')
    UR = 8
    for i in range(4):
        a.e(f's_add_u32 s57, s56, {(24-8*i)*16384:#x}')
        a.e(f'buffer_load_dwordx4 v[{UR+4*i}:{UR+4*i+3}], v3, s[48:51], s57 offen sc1')
    npf = 0; wpl = []
    if opt('wpf', 1):
        a.e('s_mul_i32 s56, s2, 28672')
        a.e(f's_mul_i32 s57, s{S_W}, 7168')
        a.e('s_add_u32 s56, s56, s57')
        a.e('v_lshlrev_b32 v41, 7, v2')
        for n_, P_ in enumerate((P_W1, P_W3, P_W2)[:opt('wpn', 2)]):
            sd = (40, 32, 44)[n_]
            srd(a, sd, P_, 7168, 0, 56)
            t_ = f'buffer_load_dword v42, v41, s[{sd}:{sd+3}], 0 offen'
            if opt('wpr', 2) < 0:
                a.e(t_); npf += 1
            else:
                wpl.append(lambda t_=t_: a.e(t_))
    g1 = G1(a)
    g2 = G2(a)
    g2.front_setup()
    g1.setup_dma()
    for i in range(4):
        a.e(f's_waitcnt vmcnt({npf+3-i})')
        a.e(f'ds_write_b128 v7, v[{UR+4*i}:{UR+4*i+3}] offset:{1024*i}')
    a.e('s_waitcnt lgkmcnt(0)')
    for l in rdB(0, 0): a.e(l)
    stamp(a, 4)
    LK = Lin(a)
    g1e = [[(lambda l=l: a.e(l)) for l in grp] for grp in g1.early_dma()]
    def grp(fs): return lambda: [f() for f in fs]
    g1e = [grp(x) for x in g1e]
    fillr = {r: [] for r in range(8)}
    for n_, f_ in enumerate(wpl): fillr[opt('wpr', 2) + n_ * opt('wps', 0)].append(f_)
    UE = 8
    for r in range(8):
        buf = r & 1
        if r < 7:
            A_, B_ = rdA(r + 1, buf ^ 1), rdB(r + 1, buf ^ 1)
            nxt = []
            for x in range(8): nxt += [B_[x], A_[2 * x], A_[2 * x + 1]]
        else:
            a.e('v_lshlrev_b32 v32, 5, v5')
            a.e('v_lshl_add_u32 v32, v6, 3, v32')
            a.e(f'v_sub_u32 v34, {4088-3584}, v32')
            a.e('v_add_u32 v34, s88, v34')
            a.e('v_add_u32 v35, s88, v32')
            nxt = [f'ds_read_b64 v[{UE+2*c}:{UE+2*c+1}], v34 offset:{512*(7-c)}' for c in range(8)]
        a.e('s_waitcnt lgkmcnt(0)')
        fl = list(fillr[r]); evr = 36 // max(1, len(fl))
        k = 0
        for mq in range(8):
            for d in range(8 - mq):
                c = mq + d
                fa = FA[buf] + 4 * mq; fb = FB[buf] + 4 * d
                a.e(f'v_mfma_f32_16x16x32_bf16 v[{ACC+4*c}:{ACC+4*c+3}], v[{fa}:{fa+3}], v[{fb}:{fb+3}], v[{ACC+4*c}:{ACC+4*c+3}]')
                if k < len(nxt):
                    a.e(nxt[k])
                if fl and k % evr == evr - 1: fl.pop(0)()
                k += 1
        assert not fl, (r, len(fl))
    a.e('s_waitcnt lgkmcnt(0)')
    stamp(a, 5)
    a.e('L_kbcode:')
    a.inject(g2.fD(LK, (0, 1)), 8)
    X = 96
    for c in range(8):
        unpack(a, X + 4 * c + 3, X + 4 * c + 2, UE + 2 * c)
        unpack(a, X + 4 * c + 1, X + 4 * c + 0, UE + 2 * c + 1)
    for c in range(8):
        for r in range(4):
            a.e(f'v_fma_f32 v{X+4*c+r}, v{X+4*c+r}, s89, v{ACC+4*c+r}')
        a.e(f'v_cvt_pk_bf16_f32 v{UE+2*c}, v{X+4*c}, v{X+4*c+1}')
        a.e(f'v_cvt_pk_bf16_f32 v{UE+2*c+1}, v{X+4*c+2}, v{X+4*c+3}')
        a.e(f'ds_write_b64 v35, v[{UE+2*c}:{UE+2*c+1}] offset:{4608+512*c}')
    a.flush_inject()
    LIN[0] = None
    a.e('v_lshlrev_b32 v32, 2, v0')
    a.e(f'v_add_u32 v32, {LDS_KA}, v32')
    a.e('v_lshrrev_b32 v33, 2, v0')
    a.e('v_lshlrev_b32 v33, 14, v33')
    a.e('v_and_b32 v34, 3, v0')
    a.e('v_lshl_add_u32 v33, v34, 4, v33')
    a.e('s_lshl_b32 s56, s86, 6')
    a.e('s_mov_b32 s57, 0x05040100')
    a.e('s_mov_b32 s58, 0x07060302')
    srd(a, 36, P_WS, 4 * MB, WS_Y2)
    a.e('s_waitcnt lgkmcnt(0)')
    a.e('s_barrier')
    Y = 96
    for P in range(4):
        for ch in range(4):
            a.e(f'ds_read_b32 v{Y+4*P+ch}, v32 offset:{ch*KA_REG+4608+1024*P}')
    O = 128
    for P in range(4):
        a.e(f's_waitcnt lgkmcnt({12-4*P})')
        y = Y + 4 * P; o = O + 4 * P
        a.e(f'v_perm_b32 v{o}, v{y+1}, v{y}, s57')
        a.e(f'v_perm_b32 v{o+1}, v{y+3}, v{y+2}, s57')
        a.e(f'v_perm_b32 v{o+2}, v{y+1}, v{y}, s58')
        a.e(f'v_perm_b32 v{o+3}, v{y+3}, v{y+2}, s58')
        a.e(f'buffer_store_dwordx4 v[{o}:{o+3}], v33, s[36:39], s56 offen sc1')
        if P < 3:
            a.e(f's_add_u32 s56, s56, {64*16384:#x}')
    stamp(a, 6)
    XU = [8, 24]; TT = [40, 56]; MM = [72, 74]; RR = [76, 78]; C = 80; YR = [84, 92]; YU = [100, 116]
    for r in range(2):
        for q in range(8):
            unpack(a, XU[r] + 2 * q, XU[r] + 2 * q + 1, XP + 8 * r + q)
    a.e(f'v_mov_b32 v{C}, 0x3a800000')
    a.e(f's_lshl_b32 s87, s2, {f1sh()}')
    a.e(f's_add_u32 s87, s87, {F1}')
    signal(a, 87, 82)
    for f in g2.fM(None, (0, 1))[1:]: f()
    a.inject(g1e[:10], 12)
    ln2(a, XU, TT, MM, RR, C)
    a.flush_inject()
    a.e('v_lshlrev_b32 v5, 7, v2')
    a.e('v_add_u32 v6, 0x2000, v5')
    a.e('s_lshl_b32 s82, s91, 14')
    a.e(f's_lshl_b32 s83, s{S_W}, 4')
    a.e('s_add_u32 s82, s82, s83')
    srd(a, 40, P_WS, 4 * MB, WS_H)
    srd(a, 44, P_WS, 4 * MB, WS_HNF)
    a.e('v_and_b32 v7, 7, v2')
    a.e(f's_lshl_b32 s83, s{S_W}, 1')
    a.e('v_xor_b32 v132, s83, v7')
    a.e('v_lshl_add_u32 v132, v132, 4, v5')
    a.e(f'v_add_u32 v132, {LDS_KA}, v132')
    a.e('v_xor_b32 v133, 16, v132')
    a.e('v_lshrrev_b32 v134, 3, v2')
    a.e('v_xor_b32 v135, v134, v7')
    a.e('v_lshlrev_b32 v135, 4, v135')
    a.e('v_lshl_add_u32 v135, v134, 7, v135')
    a.e(f's_lshl_b32 s83, s{S_W}, 12')
    a.e(f's_add_u32 s83, s83, {LDS_KA}')
    a.e('v_add_u32 v135, s83, v135')
    a.e('v_lshrrev_b32 v136, 5, v2')
    a.e('v_lshlrev_b32 v136, 12, v136')
    a.e('v_bfe_u32 v137, v2, 3, 2')
    a.e('v_lshl_add_u32 v136, v137, 8, v136')
    a.e('v_lshl_add_u32 v136, v7, 4, v136')
    a.e('s_lshr_b32 s84, s91, 3')
    a.e('s_lshl_b32 s84, s84, 17')
    a.e('s_bfe_u32 s85, s91, 0x20001')
    a.e('s_lshl_b32 s85, s85, 10')
    a.e('s_add_u32 s84, s84, s85')
    a.e('s_and_b32 s85, s91, 1')
    a.e('s_lshl_b32 s85, s85, 7')
    a.e('s_add_u32 s84, s84, s85')
    a.e(f's_lshl_b32 s85, s{S_W}, 15')
    a.e('s_add_u32 s84, s84, s85')
    a.e(f's_mov_b32 s85, {F1}')
    a.e('s_waitcnt lgkmcnt(0)')
    stamp(a, 7)
    a.e(f'v_lshlrev_b32 v138, {4 if f1sh() == 2 else f1sh()}, v2')
    wait_flags(a, 85, 138, 128, n=256)
    stamp(a, 8)
    a.e(f's_or_b32 s57, s2, s{S_W}')
    a.e('s_cmp_lg_u32 s57, 0')
    a.e('s_cbranch_scc1 L_clean_skip')
    srd(a, 48, P_DBG, 256)
    a.e('v_mov_b32 v128, 0')
    a.e('s_mov_b64 exec, 1')
    a.e('buffer_store_dword v128, v128, s[48:51], 0 offen sc1')
    a.e('s_mov_b64 exec, -1')
    a.e('L_clean_skip:')
    YL = 84
    a.e(f'buffer_load_dwordx4 v[{YL}:{YL+3}], v5, s[36:39], s82 offen sc1')
    a.e(f'buffer_load_dwordx4 v[{YL+4}:{YL+7}], v5, s[36:39], s82 offen offset:64 sc1')
    a.e(f'buffer_load_dwordx4 v[{YL+8}:{YL+11}], v6, s[36:39], s82 offen sc1')
    a.e(f'buffer_load_dwordx4 v[{YL+12}:{YL+15}], v6, s[36:39], s82 offen offset:64 sc1')
    for cgi in range(4):
        a.e(f's_waitcnt vmcnt({3-cgi})')
        for r in range(2):
            for e in range(2):
                u = YU[r] + 4 * cgi + 2 * e
                unpack(a, u, u + 1, YL + 4 * cgi + 2 * r + e)
        for r in range(2):
            for e in range(2):
                u = YU[r] + 4 * cgi + 2 * e; x = XU[r] + 4 * cgi + 2 * e; t = TT[r] + 4 * cgi + 2 * e
                a.e(f'v_pk_fma_f32 v[{x}:{x+1}], v[{t}:{t+1}], v[{u}:{u+1}], v[{x}:{x+1}]')
    a.inject(g2.fD(None, (2, 3)), 4)
    for r in range(2):
        for q in range(8):
            a.e(f'v_cvt_pk_bf16_f32 v{XP+8*r+q}, v{XU[r]+2*q}, v{XU[r]+2*q+1}')
    for r in range(2):
        for q in range(8):
            unpack(a, XU[r] + 2 * q, XU[r] + 2 * q + 1, XP + 8 * r + q)
    a.flush_inject()
    ln2(a, XU, TT, MM, RR, C)
    for r in range(2):
        for q in range(8):
            a.e(f'v_cvt_pk_bf16_f32 v{YL+8*r+q}, v{TT[r]+2*q}, v{TT[r]+2*q+1}')
        for hh in range(2):
            a.e(f'ds_write_b128 v{132+r}, v[{YL+8*r+4*hh}:{YL+8*r+4*hh+3}] offset:{8192*hh}')
    a.e('s_waitcnt lgkmcnt(0)')
    a.e('s_barrier')
    for i in range(4):
        a.e(f'ds_read_b128 v[{100+4*i}:{103+4*i}], v135 offset:{1024*i}')
    for i in range(4):
        a.e(f's_waitcnt lgkmcnt({3-i})')
        a.e(f'buffer_store_dwordx4 v[{100+4*i}:{103+4*i}], v136, s[44:47], s84 offen sc1')
        if i < 3: a.e('s_add_u32 s84, s84, 8192')
    stamp(a, 9)
    a.e(f's_lshl_b32 s87, s91, {fsh()}')
    a.e(f's_add_u32 s87, s87, {F2}')
    g2.front_save()
    g1.pre_setup()
    signal(a, 87, 4)
    a.e('v_add_u32 v4, s73, v7')
    a.e('v_xor_b32 v5, 32, v4')
    for f in g2.fM(None, (2, 3), base=4)[1:]: f()
    g1.main()
    g1.epilogue(g2)
    g2.main()
    stamp_out(a, NSTAMP)
    a.e('L_end:')
    a.e('s_endpgm')

G1_STG = 32768
class G1:
    TM, NW, DPW, ND = 4, 4, 8, 4
    ACC, WF, TF, DV, VT, VR, VL = 32, 0, 28, 8, 16, 17, 18
    DVE = 240
    def __init__(s, a): s.a = a
    def setup_dma(s):
        a = s.a
        a.e('s_and_b32 s56, s81, 1')
        a.e('s_lshl_b32 s56, s56, 1')
        a.e('s_movk_i32 s57, 4682')
        a.e('s_movk_i32 s58, 7168')
        a.e('v_mov_b32 v76, 0x80000000')
        a.e('v_subrev_u32 v77, 8, v2')
        for src, dst in ((2, 78), (77, 79)):
            a.e(f'v_cmp_gt_u32 vcc, 56, v{src}')
            a.e(f'v_mul_u32_u24 v80, s57, v{src}')
            a.e('v_lshrrev_b32 v80, 16, v80')
            a.e('v_mul_u32_u24 v81, 14, v80')
            a.e(f'v_sub_u32 v81, v{src}, v81')
            a.e('v_add_u32 v81, s56, v81')
            a.e('v_subrev_u32 v82, 14, v81')
            a.e('v_min_u32 v81, v81, v82')
            a.e('v_mul_u32_u24 v80, s58, v80')
            a.e('v_lshl_add_u32 v80, v81, 4, v80')
            a.e(f'v_cndmask_b32 v{dst}, v76, v80, vcc')
        for i in range(8):
            pat = 79 if (i >> 1) & 1 else 78
            c = i * 4 * 7168 - 1024 * (i & 3)
            a.e(f'v_add_u32 v{s.DVE+i}, {c}, v{pat}' if c else f'v_mov_b32 v{s.DVE+i}, v{pat}')
        a.e(f's_and_b32 s56, s{S_W}, 1')
        a.e(f's_lshr_b32 s57, s{S_W}, 1')
        a.e(f's_mul_i32 s97, s56, {8*4*7168}')
        a.e('s_lshl_b32 s98, s57, 14')
        a.e('s_lshl_b32 s56, s56, 13')
        a.e('s_add_u32 s98, s98, s56')
        a.e('s_mul_i32 s56, s81, 224')
        a.e('s_cmp_eq_u32 s57, 0')
        a.e(f's_cselect_b32 s52, s{P_W1}, s{P_W3}')
        a.e(f's_cselect_b32 s53, s{P_W1+1}, s{P_W3+1}')
        srd(a, 52, 52, None, 0, 56)
        a.e('s_sub_u32 s54, 7340032, s56')
    def m0set(s, i): return f's_add_u32 m0, s98, {4096*(i//4)}' if i else 's_mov_b32 m0, s98'
    def dma(s, i, base): return f'buffer_load_dwordx4 v{base+i}, s[52:55], s97 offen offset:{1024*(i&3)} lds'
    def dma_adv(s): return ['s_add_u32 s97, s97, 458752', f's_add_u32 s98, s98, {G1_STG}', 's_and_b32 s98, s98, 0x1ffff']
    def early_dma(s):
        out = []
        for st in range(2):
            for i in range(8):
                if i % 4 == 0: out.append([s.m0set(i)])
                out.append([s.dma(i, s.DVE)] + (s.dma_adv() if i == 7 else []))
        return out
    def tok(s, k, tm):
        f = s.TF + 4 * (4 * (k % s.ND) + tm)
        return f'buffer_load_dwordx4 a[{f}:{f+3}], v{s.VT}, s[32:35], s82 offen offset:{tm*1024}' + (' sc1' if opt('t1sc', 1) else '')
    def rd(s, ph, t):
        j, mat = (ph & 3) >> 1, ph & 1
        return [f'ds_read_b64_tr_b16 a[{s.WF+4*t+2*h}:{s.WF+4*t+2*h+1}], v{s.VR} offset:{8192*j+1024*h+32*t+16384*mat}' for h in range(2)]
    def pre_setup(s):
        a = s.a
        for i in range(8): a.e(f'v_mov_b32 v{s.DV+i}, v{s.DVE+i}')
        for i in range(16): a.e(f'v_accvgpr_write_b32 a{92+i}, v{224+i}')
        a.e(f'v_lshlrev_b32 v{s.VT}, 4, v2')
        a.e('v_lshrrev_b32 v4, 4, v2')
        a.e('v_lshlrev_b32 v4, 11, v4')
        a.e('v_bfe_u32 v5, v2, 4, 1')
        a.e('v_lshl_add_u32 v4, v5, 7, v4')
        a.e('v_bfe_u32 v6, v2, 2, 2')
        a.e('v_mul_u32_u24 v5, 224, v6')
        a.e('v_and_b32 v6, 3, v2')
        a.e('v_lshl_add_u32 v5, v6, 3, v5')
        a.e(f'v_add_u32 v{s.VL}, v4, v5')
        a.e(f'v_mov_b32 v{s.VR}, v{s.VL}')
        a.e('v_and_b32 v19, 31, v2')
        a.e(f'v_lshlrev_b32 v19, {fsh()}, v19')
        a.e('s_lshl_b32 s56, s80, 2')
        a.e(f's_add_u32 s56, s56, s{S_W}')
        a.e('s_lshl_b32 s57, s56, 17')
        srd(a, 32, P_WS, 131072, WS_HNF, 57)
        hf_base(a, 57, 80, S_W, 58)
        srd(a, 36, P_WS, 4 * 114688, 0, 57)
        a.e('s_and_b32 s58, s81, 1')
        a.e('s_mul_i32 s85, s81, 7')
        a.e('s_add_u32 s85, s85, s58')
        a.e('s_lshl_b32 s85, s85, 9')
        a.e('s_movk_i32 s86, 3072')
        a.e('s_cmp_eq_u32 s58, 0')
        a.e('s_cselect_b32 s86, s86, 0xfffffc08')
        a.e('s_add_u32 s86, s86, s85')
        for r in range(224):
            a.e(f'v_mov_b32 v{s.ACC+r}, 0')
    def kof(s, s_, P): return 2 * s_ + (-1, 0, 0, 1)[P]
    def ev_ins(s, e):
        L = []
        if e[0] == 'D':
            if e[2] % 4 == 0: L.append(s.m0set(e[2]))
            L.append(s.dma(e[2], s.DV))
            if e[2] == 7: L += s.dma_adv()
        elif e[0] == 'Z':
            fl = ['', ' sc1'][opt('ps', 0) - 1]
            u = e[2]
            if u < 3: L = [f'buffer_store_dwordx4 v[24:27], v{s.VT}, s[36:39], s88 offen offset:{1024*u}{fl}']
            else: L = [f'buffer_store_dwordx2 v[24:25], v{s.VT}, s[36:39], s89 offen{fl}', 's_add_u32 s88, s88, 114688', 's_add_u32 s89, s89, 114688']
        elif e[0] == 'Q':
            L = [f'buffer_store_dwordx4 v[24:27], v{s.VT}, s[44:47], s99 offen', 's_add_u32 s99, s99, 1024']
        elif e[0] == 'Y':
            L = ['buffer_load_dword v22, v21, s[44:47], s88 offen', 's_add_u32 s88, s88, 1024']
        else:
            L.append(s.tok(e[1], e[2]))
            if e[2] == 3: L.append('s_add_u32 s82, s82, 4096')
        return L
    def main(s):
        a = s.a
        S = s.S = Sched()
        for s_ in range(-4, 8):
            for P in range(4):
                S.mark((s_, P))
                k = s.kof(s_, P) + s.ND - 1
                t0 = 2 if P in (0, 2) else 0
                S.add([('D', s_ + 2, 2 * P), ('T', k, t0), ('D', s_ + 2, 2 * P + 1), ('T', k, t0 + 1)])
                if opt('w2y', 1) and s_ % 2 == 0 and P == 1: S.add([('Y', s_, 0)])
                if opt('psx', 0) and P == 2 and s_ & 1: S.add([('Q', s_, 0)])
                if opt('ps', 0) and P in (1, 3): S.add([('Z', s_, 2 * (s_ & 1) + (P >> 1))])
        vm_bar = min(S.younger(('D', 4), (4, 0)), S.younger(('D', 5), (5, 0)))
        vm_p1 = min(S.younger(('T', 8), (4, 1)), S.younger(('T', 10), (5, 1)))
        vm_p3 = min(S.younger(('T', 9), (4, 3)), S.younger(('T', 11), (5, 3)))
        if opt('w2y', 1):
            a.e('s_mul_i32 s56, s2, 28672')
            a.e(f's_mul_i32 s57, s{S_W}, 7168')
            a.e('s_add_u32 s56, s56, s57')
            srd(a, 44, P_W2, 7168, 0, 56)
            a.e('v_min_u32 v21, 8, v2')
            a.e('v_lshlrev_b32 v21, 7, v21')
            a.e('s_mov_b32 s88, 0')
        a.e(f's_lshl_b32 s56, s80, {5+fsh()}')
        a.e(f's_add_u32 s56, s56, {F2}')
        if opt('psx', 0):
            srd(a, 44, P_WS, 8 * MB, WS_XP)
            a.e('s_lshl_b32 s99, s2, 2')
            a.e(f's_add_u32 s99, s99, s{S_W}')
            a.e('s_lshl_b32 s99, s99, 13')
        if opt('ps', 0):
            a.e('s_mov_b32 s88, s85')
            a.e('s_mov_b32 s89, s86')
            for r in range(4): a.e(f'v_mov_b32 v{24+r}, 0')
        a.e('s_mov_b32 s82, 0')
        a.e('s_mov_b32 s83, 0')
        a.e('s_mov_b32 s84, 0')
        for t in range(6):
            for l in s.rd(0, t): a.e(l)
        stamp(a, 10)
        d1 = [('D', 1, i) for i in range(8)]
        for e in d1:
            for l in s.ev_ins(e):
                a.e(l)
                if 'm0' in l: a.e('s_nop 0')
        a.e('s_waitcnt lgkmcnt(12)')
        wait_flags(a, 56, 19, 20)
        stamp(a, 11)
        pro = d1 + [e for e in S.ev[:S.marks[(0, 0)]] if e[1] >= 0 and e[0] == 'T'] + [('X', i, 0) for i in range(4)]
        for e in pro[8:] + S.ev[S.marks[(0, 0)]:S.marks[(0, 1)]]:
            if e[0] == 'X':
                a.e(f'buffer_store_dwordx4 a[{92+4*e[1]}:{95+4*e[1]}], v{s.VT}, s[40:43], s96 offen offset:{1024*e[1]} sc1')
                continue
            for l in s.ev_ins(e):
                a.e(l)
                if 'm0' in l: a.e('s_nop 0')
        act = pro + S.ev[S.marks[(0, 0)]:]
        off = len(pro) - S.marks[(0, 0)]
        s.startup = {}
        need = -1
        for s_ in range(0, 6):
            for P, tags, N in ((0, [('D', s_)], vm_bar), (1, [('T', 2 * s_)], vm_p1), (3, [('T', 2 * s_ + 1)], vm_p3)):
                if (s_, P) == (0, 0): continue
                site = S.marks[(s_, P)] + off
                for tg in tags:
                    idx = [i for i, e in enumerate(act) if e[:2] == tg]
                    if not idx: continue
                    if site - max(idx) - 1 < N: need = max(need, max(idx))
        if need >= 0:
            a.e(f's_waitcnt vmcnt({S.marks[(0, 1)] + off - need - 1})')
        a.e('s_branch L_g1_P1')
        s.snake = 0
        a.e('L_g1_loop:')
        for s_ in (4, 5):
            a.e(f's_add_u32 s83, s83, {G1_STG}')
            a.e('s_and_b32 s83, s83, 0x1ffff')
            a.e(f's_waitcnt vmcnt({vm_bar})')
            a.e('s_barrier')
            s.phase(s_, 0)
            if s_ == 4: a.e('L_g1_P1:')
            a.e(f's_waitcnt vmcnt({vm_p1})')
            s.phase(s_, 1)
            s.phase(s_, 2)
            a.e(f's_waitcnt vmcnt({vm_p3})')
            s.phase(s_, 3)
        a.e('s_add_u32 s84, s84, 1')
        a.e('s_cmp_lt_u32 s84, 8')
        a.e('s_cbranch_scc1 L_g1_loop')
        s.phase(6, 0, last=True)
        stamp(a, 12)
    def phase(s, s_, P, last=False):
        a = s.a; S = s.S
        kbuf = s.kof(s_, P) % s.ND
        mat = (P + 1) & 1
        items = []
        if not last:
            nxt = S.marks[(s_, P + 1)] if P < 3 else S.marks[(s_ + 1, 0)]
            items = [s.ev_ins(e) for e in S.ev[S.marks[(s_, P)]:nxt]]
        slots = [[] for _ in range(7)]
        for p_, it in zip([1, 2, 4, 5, 6], items): slots[p_] = it
        if P == 0 and not last:
            slots[0] = [f'v_add_u32 v{s.VR}, s83, v{s.VL}']
        for t in range(7):
            a.e(f's_waitcnt lgkmcnt({10 if not (last and t) else 12-2*t})')
            R = s.rd(P - 1, 6) if t == 0 else ([] if last else s.rd(P, t - 1))
            X = list(slots[t])
            pre = [x for x in X if 'm0' in x]
            X = [x for x in X if 'm0' not in x]
            gaps = [[] for _ in range(4)]
            if R: gaps[0] = pre + [R[0]]; gaps[1] = [R[1]]
            gaps[2] = X[:1]; gaps[3] = X[1:]
            order = [0, 1, 2, 3]
            if s.snake & 1: order.reverse()
            s.snake += 1
            for n, tm in enumerate(order):
                c = s.ACC + 4 * ((mat * 7 + t) * 4 + tm)
                tf = s.TF + 4 * (4 * kbuf + tm)
                if not opt('g1x') & 1: a.e(f'v_mfma_f32_16x16x32_bf16 v[{c}:{c+3}], a[{s.WF+4*t}:{s.WF+4*t+3}], a[{tf}:{tf+3}], v[{c}:{c+3}]')
                for x in gaps[n]:
                    if opt('g1x') & 2 and x.startswith('ds_'): continue
                    if opt('g1x') & 4 and x.startswith('buffer'): continue
                    a.e(x)
    def epilogue(s, g2):
        a = s.a
        L = Lin(a)
        a.e('s_mov_b32 s58, 0xbfb8aa3b')
        a.e('s_mov_b32 s59, 0xbfb8aa3b')
        g2.early(L)
        T = 8
        k = 0
        for tm in range(4):
            for u in range(4):
                O = (20, 24)[k & 1]
                fill = g2.epi_fill(k)
                def F(n=1):
                    for _ in range(n):
                        if fill: fill.pop(0)()
                tiles = [2 * u, 2 * u + 1] if u < 3 else [6]
                gs = []; us = []
                for t in tiles:
                    gs += [s.ACC + 4 * (t * 4 + tm), s.ACC + 4 * (t * 4 + tm) + 2]
                    us += [s.ACC + 4 * ((7 + t) * 4 + tm), s.ACC + 4 * ((7 + t) * 4 + tm) + 2]
                n = len(gs)
                nins = 9 * n
                cnt = [0]; ev_ = max(1, nins // (len(fill) + 1))
                def V(t):
                    a.e(t); cnt[0] += 1
                    if cnt[0] % ev_ == 0: F(1)
                for q in range(n): V(f'v_pk_mul_f32 v[{T+2*q}:{T+2*q+1}], v[{gs[q]}:{gs[q]+1}], s[58:59]')
                for q in range(2 * n): V(f'v_exp_f32 v{T+q}, v{T+q}')
                for q in range(n): V(f'v_pk_add_f32 v[{T+2*q}:{T+2*q+1}], v[{T+2*q}:{T+2*q+1}], 1.0 op_sel_hi:[1,0]')
                for q in range(2 * n): V(f'v_rcp_f32 v{T+q}, v{T+q}')
                for q in range(n): V(f'v_pk_mul_f32 v[{gs[q]}:{gs[q]+1}], v[{gs[q]}:{gs[q]+1}], v[{us[q]}:{us[q]+1}]')
                for q in range(n): V(f'v_pk_mul_f32 v[{T+2*q}:{T+2*q+1}], v[{T+2*q}:{T+2*q+1}], v[{gs[q]}:{gs[q]+1}]')
                for q in range(n): V(f'v_cvt_pk_bf16_f32 v{O+q}, v{T+2*q}, v{T+2*q+1}')
                if u < 3:
                    L.v('st', f'buffer_store_dwordx4 v[{O}:{O+3}], v{s.VT}, s[36:39], s85 offen offset:{1024*u}' + hfl())
                else:
                    L.v('st', f'buffer_store_dwordx2 v[{O}:{O+1}], v{s.VT}, s[36:39], s86 offen' + hfl())
                F(len(fill))
                k += 1
            if tm < 3:
                a.e('s_add_u32 s85, s85, 114688')
                a.e('s_add_u32 s86, s86, 114688')
        a.e(f's_lshl_b32 s87, s91, {fsh()}')
        a.e(f's_add_u32 s87, s87, {F3}')
        stamp(a, 13)
        a.e('L_g2code:')
        g2.post_epilogue()
        signal(a, 87, 5, waitfn=lambda: L.wait(vm=('st',)), wb=(opt('hfl') == 4))
        stamp(a, 18)

class G2:
    ACC, TF, DV, VT, RJ, TR, V1, VO, VF = 32, 96, 28, 16, 3, 8, 12, 13, 14
    REG = 40960
    def __init__(s, a): s.a = a
    def wreg(s, k, j):
        if k < 16: return 'a', 128 + 8 * k + 4 * j
        if k < 32: return 'a', 8 * (k - 16) + 4 * j
        if k < 48: return 'v', 128 + 8 * (k - 32) + 4 * j
        return 'a', 128 + 8 * (k - 48) + 4 * j
    def front_setup(s):
        a = s.a
        a.e('s_and_b32 s76, s2, 1')
        a.e('s_lshr_b32 s56, s2, 3')
        if opt('g2map', 1):
            a.e('s_bfe_u32 s74, s2, 0x10001')
            a.e('s_lshl_b32 s74, s74, 3')
            a.e('s_and_b32 s57, s56, 7')
            a.e('s_add_u32 s74, s74, s57')
            a.e('s_bfe_u32 s75, s2, 0x10002')
            a.e('s_lshl_b32 s75, s75, 2')
            a.e('s_lshr_b32 s57, s56, 3')
            a.e('s_add_u32 s75, s75, s57')
        else:
            a.e('s_bfe_u32 s74, s2, 0x20001')
            a.e('s_lshl_b32 s74, s74, 2')
            a.e('s_and_b32 s57, s56, 3')
            a.e('s_add_u32 s74, s74, s57')
            a.e('s_lshr_b32 s75, s56, 2')
        a.e('v_lshrrev_b32 v252, 2, v2')
        a.e('v_lshlrev_b32 v253, 11, v252')
        a.e('v_lshrrev_b32 v254, 3, v2')
        a.e('v_xor_b32 v254, v254, v2')
        a.e('v_and_b32 v254, 2, v254')
        a.e('v_and_or_b32 v254, v2, 1, v254')
        a.e('v_lshl_add_u32 v248, v254, 4, v253')
        for i in range(1, 4):
            a.e(f'v_add_u32 v{248+i}, {i*(32768-1024)}, v248')
        a.e('s_mul_i32 s56, s76, 3670016')
        a.e('s_lshl_b32 s57, s75, 8')
        a.e('s_add_u32 s56, s56, s57')
        a.e(f's_lshl_b32 s57, s{S_W}, 6')
        a.e('s_add_u32 s56, s56, s57')
        srd(a, 68, P_W2, None, 0, 56)
        a.e('s_sub_u32 s70, 7340032, s56')
        a.e('s_mov_b32 s72, 0')
        a.e('v_lshlrev_b32 v252, 6, v252')
        a.e('v_bfe_u32 v253, v2, 4, 1')
        a.e('v_lshl_add_u32 v252, v253, 5, v252')
        a.e('v_and_b32 v253, 3, v2')
        a.e('v_lshl_add_u32 v252, v253, 3, v252')
        a.e(f's_lshl_b32 s73, s{S_W}, 13')
        a.e('s_add_u32 s73, s73, 65536')
        a.e('v_add_u32 v253, s73, v252')
        a.e('v_xor_b32 v254, 32, v253')
    def fD(s, L, cs):
        a = s.a
        out = []
        for n, c in enumerate(cs):
            out.append(lambda n=n: a.e(f's_add_u32 m0, s73, {4096*n}'))
            for i in range(4):
                def f(i=i, c=c):
                    t = f'buffer_load_dwordx4 v{248+i}, s[68:71], s72 offen offset:{1024*i} lds'
                    if L: L.v(('W', c), t)
                    else: a.e(t)
                    if i == 3: a.e('s_add_u32 s72, s72, 131072')
                out.append(f)
        return out
    def fM(s, L, cs, base=253):
        a = s.a
        out = [lambda: L.wait(vm=(('W', cs[-1]),))]
        for n, c in enumerate(cs):
            for kk in range(2):
                for j in range(2):
                    for h in range(2):
                        r, q = s.wreg(2 * c + kk, j)
                        out.append(lambda r=r, q=q, h=h, j=j, n=n, kk=kk: a.e(f'ds_read_b64_tr_b16 {r}[{q+2*h}:{q+2*h+1}], v{base+j} offset:{4096*n+2048*kk+1024*h}'))
        return out
    def front_save(s):
        a = s.a
        for i in range(4): a.e(f'v_mov_b32 v{s.DV+i}, v{248+i}')
        a.e('v_mov_b32 v7, v252')
    def early(s, L):
        a = s.a; s.L = L
        a.e('s_mov_b32 s80, s74')
        a.e('s_mov_b32 s81, s75')
        a.e('s_mov_b32 s82, s76')
        a.e(f's_mul_i32 s98, s{S_W}, {s.REG}')
        a.e(f'v_add_u32 v{s.RJ}, s98, v7')
        a.e(f'v_xor_b32 v{s.RJ+1}, 32, v{s.RJ}')
        a.e('s_waitcnt vmcnt(0)')
        a.e('s_barrier')
        if opt('cpf2', 1): code_pf(a, 'L_g2code', 'L_end', 17, lambda t: L.v('cp', t))
        s.cell = {}
        s.free = list(range(10))
    def D(s, c):
        L = s.L
        def first():
            s.cell[c] = s.free.pop(0)
            L.e(f's_add_u32 m0, s98, {4096*s.cell[c]}')
        out = [first]
        for i in range(4):
            out.append(lambda i=i: L.v(('W', c), f'buffer_load_dwordx4 v{s.DV+i}, s[68:71], s72 offen offset:{1024*i} lds'))
        out.append(lambda: L.e('s_add_u32 s72, s72, 131072'))
        return out
    def M(s, c):
        L = s.L
        out = []
        for kk in range(2):
            for j in range(2):
                for h in range(2):
                    def f(kk=kk, j=j, h=h):
                        r, n = s.wreg(2 * c + kk, j)
                        L.l(('M', c), f'ds_read_b64_tr_b16 {r}[{n+2*h}:{n+2*h+1}], v{s.RJ+j} offset:{4096*s.cell[c]+2048*kk+1024*h}')
                    out.append(f)
        return out
    def Wv(s, c): return [lambda: s.L.wait(vm=(('W', c),))]
    def Fr(s, cs):
        def f():
            s.L.wait(lg0=True)
            for c in cs: s.free.append(s.cell[c])
        return [f]
    def epi_fill(s, k):
        D, M, Wv, Fr = s.D, s.M, s.Wv, s.Fr
        def cat(*xs): return [y for x in xs for y in x]
        return []
    def post_epilogue(s):
        a = s.a; L = s.L
        s.NA = 4 + opt('na', 4)
        a.inject([f for c in range(4, s.NA) for f in s.D(c)], 4)
        a.e(f'v_mov_b32 v{s.TR}, v{s.VT}')
        for q in range(1, 4):
            a.e(f'v_add_u32 v{s.TR+q}, {q*s.REG}, v{s.VT}')
        a.e(f'v_add_u32 v{s.V1}, {114688-2048}, v{s.VT}')
        for r in range(64):
            a.e(f'v_mov_b32 v{s.ACC+r}, 0')
        a.flush_inject()
        a.e('s_lshl_b32 s56, s80, 3')
        a.e(f's_lshl_b32 s57, s{S_W}, 1')
        a.e('s_lshl_b32 s58, s82, 2')
        a.e('s_xor_b32 s57, s57, s58')
        a.e('s_add_u32 s56, s56, s57')
        a.e('s_lshr_b32 s83, s56, 4')
        a.e('s_bfe_u32 s84, s56, 0x20002')
        hf_base(a, 57, 83, 84, 58)
        a.e('s_and_b32 s56, s56, 3')
        a.e('s_mul_i32 s56, s56, 114688')
        a.e('s_add_u32 s57, s57, s56')
        a.e('s_mul_i32 s58, s82, 57344')
        a.e('s_add_u32 s57, s57, s58')
        srd(a, 32, P_WS, 114688 + 57344, 0, 57)
        a.e('v_and_b32 v5, 15, v2')
        a.e('v_lshlrev_b32 v5, 11, v5')
        a.e('v_lshrrev_b32 v6, 4, v2')
        a.e(f'v_lshl_add_u32 v{s.VO}, v6, 3, v5')
        a.e('s_lshl_b32 s85, s80, 18')
        a.e('s_lshl_b32 s57, s82, 17')
        a.e('s_add_u32 s85, s85, s57')
        a.e('s_lshl_b32 s57, s81, 8')
        a.e('s_add_u32 s85, s85, s57')
        a.e(f's_lshl_b32 s57, s{S_W}, 6')
        a.e('s_add_u32 s85, s85, s57')
        a.e(f'v_and_b32 v{s.VF}, 31, v2')
        a.e(f'v_lshlrev_b32 v{s.VF}, {fsh()}, v{s.VF}')
    def main(s):
        a = s.a; L = s.L
        a.e('s_lshr_b32 s56, s80, 1')
        a.e(f's_lshl_b32 s56, s56, {5+fsh()}')
        a.e(f's_add_u32 s56, s56, {F3}')
        srd(a, 44, P_WS, 4 * MB, WS_H)
        a.e('s_mov_b32 s84, 0')
        L.wait(vm0=True)
        for c in range(4, s.NA):
            for f in s.M(c): f()
        for f in s.Fr(range(4, s.NA)): f()
        wait_flags(a, 56, s.VF, 20)
        stamp(a, 14)
        NS = 28
        slot = {}
        def TD(st):
            slot[st] = s.free.pop(0)
            out = [lambda: L.e(f's_add_u32 m0, s98, {4096*slot[st]}')]
            for i in range(4):
                v = s.VT if i < 2 else s.V1
                out.append(lambda i=i, v=v: L.v(('T', st), f'buffer_load_dwordx4 v{v}, s[32:35], s84 offen offset:{1024*i} sc1 lds'))
            out.append(lambda: L.e('s_add_u32 s84, s84, 2048'))
            return out
        def RD(k, tm):
            f = s.TF + 4 * tm
            L.l(('R', k, tm), f'ds_read_b128 v[{f}:{f+3}], v{s.TR+(tm>>1)} offset:{4096*slot[k>>1]+2048*(tm&1)+1024*(k&1)}')
        nxt = 0
        while len(s.free) > opt('wc', 4):
            fs = TD(nxt); fs[0](); a.e('s_nop 0')
            for f in fs[1:]: f()
            nxt += 1
        wfree, s.free = s.free, []
        L.wait(vm=(('T', 0),))
        a.e('s_barrier')
        for tm in range(7): RD(0, tm)
        todo = list(range(s.NA, 28)); fly = []; pend = []
        HR = 128
        for k in range(56):
            st = k >> 1
            fill = []
            if k & 1 and st + 1 < NS:
                L.wait(vm=(('T', st + 1),))
                a.e('s_barrier')
                if st >= 1: s.free.append(slot[st - 1])
            if s.free and nxt < NS and k & 1:
                fill += TD(nxt); nxt += 1
            if not k & 1:
                if fly and k >= fly[0][1] + opt('wlat', 6):
                    c = fly.pop(0)[0]
                    assert c < 24 or k >= 2 * (c - 24) + 2
                    assert k + 1 < 2 * c
                    fill += s.Wv(c) + s.M(c)
                    pend.append(c)
                if todo and wfree:
                    c = todo.pop(0)
                    keep, s.free = s.free, [wfree.pop(0)]
                    fs = s.D(c); fs[0].pre = True
                    s.cell[c] = s.free[0]; s.free = keep
                    fill += [lambda c=c: L.e(f's_add_u32 m0, s98, {4096*s.cell[c]}')] + fs[1:]
                    fly.append((c, k))
            if k == 50:
                for tm in range(4):
                    for j in range(2):
                        def f(tm=tm, j=j):
                            if j == 0 and tm: L.e(f's_add_u32 s86, s85, {32768*tm}')
                            r = HR + 4 * tm + 2 * j
                            L.v('h', f'buffer_load_dwordx2 v[{r}:{r+1}], v{s.VO}, s[44:47], s{86 if tm else 85} offen offset:{32*j} sc1')
                        fill.append(f)
            per = -(-(len(fill) + 1) // 8)
            for tm in range(8):
                need = [('R', k, tm)]
                if tm == 0 and k >= 2 * s.NA and not k & 1: need.append(('M', k >> 1))
                L.wait(lg=need)
                order = [0, 1] if tm % 2 == 0 else [1, 0]
                for n, j in enumerate(order):
                    r, w = s.wreg(k, j)
                    c = s.ACC + 4 * (2 * tm + j)
                    tf = s.TF + 4 * tm
                    if not opt('g2x') & 1:
                        a.e(f'v_mfma_f32_16x16x32_bf16 v[{c}:{c+3}], {r}[{w}:{w+3}], v[{tf}:{tf+3}], v[{c}:{c+3}]')
                    if n == 0:
                        if tm == 0: RD(k, 7)
                        elif k + 1 < 56: RD(k + 1, tm - 1)
                    else:
                        for _ in range(per):
                            if fill:
                                fill.pop(0)()
                                if 'm0' in a.lines[-1]: break
            while fill:
                if 'm0' in a.lines[-1]: a.e('s_nop 0')
                fill.pop(0)()
            for c in list(pend):
                if not any(x == ('M', c) for x in L.lg):
                    pend.remove(c)
                    (wfree if todo else s.free).append(s.cell[c])
        assert not todo and not fly and not pend and nxt == NS
        stamp(a, 15)
        a.e('s_lshl_b32 s56, s2, 2')
        a.e(f's_add_u32 s56, s56, s{S_W}')
        a.e('s_lshl_b32 s57, s56, 13')
        a.e('s_xor_b32 s58, s57, 0x8000')
        a.e('s_lshl_b32 s56, s56, 6')
        a.e(f's_add_u32 s56, s56, {F4}')
        a.e('s_xor_b32 s59, s56, 0x100')
        srd(a, 40, P_WS, 8 * MB, WS_XP)
        a.e('s_add_u32 s87, s57, 4096')
        for q in range(8):
            c = s.ACC + 32 + 4 * q
            a.e(f'buffer_store_dwordx4 v[{c}:{c+3}], v{s.VT}, s[40:43], s{57 if q < 4 else 87} offen offset:{1024*(q&3)} sc1')
        srd(a, 48, P_OUT, 4 * MB)
        a.e('v_mov_b32 v20, 0')
        a.e(f'v_mov_b32 v21, s{S_NONCE}')
        H = 160
        a.e('s_waitcnt vmcnt(8)')
        for q in range(16):
            unpack(a, H + 2 * q, H + 2 * q + 1, HR + q)
        a.e('s_waitcnt vmcnt(0)')
        stamp(a, 16)
        a.e('s_mov_b64 exec, 1')
        a.e(f'buffer_store_dword v21, v20, s[{S_FLG}:{S_FLG+3}], s56 offen sc1')
        a.e('s_mov_b64 exec, -1')
        wait_flags(a, 59, 20, 22, solo=0)
        stamp(a, 17)
        a.e('s_add_u32 s87, s58, 4096')
        P1 = 96
        for q in range(8):
            a.e(f'buffer_load_dwordx4 v[{P1+4*q}:{P1+4*q+3}], v{s.VT}, s[40:43], s{58 if q < 4 else 87} offen offset:{1024*(q&3)} sc1')
        for q in range(8):
            tm, j = q >> 1, q & 1
            if j == 0 and tm: a.e(f's_add_u32 s85, s85, 32768')
            a.e('s_waitcnt vmcnt(7)')
            c = s.ACC + 4 * q
            for e in range(2):
                x = c + 2 * e; y = P1 + 4 * q + 2 * e; h = H + 4 * q + 2 * e
                a.e(f'v_pk_add_f32 v[{x}:{x+1}], v[{x}:{x+1}], v[{y}:{y+1}]')
                a.e(f'v_cvt_pk_bf16_f32 v{y}, v{x}, v{x+1}')
                unpack(a, x, x + 1, y)
                a.e(f'v_pk_add_f32 v[{x}:{x+1}], v[{x}:{x+1}], v[{h}:{h+1}]')
                a.e(f'v_cvt_pk_bf16_f32 v{128+2*q+e}, v{x}, v{x+1}')
            a.e(f'buffer_store_dwordx2 v[{128+2*q}:{128+2*q+1}], v{s.VO}, s[48:51], s85 offen offset:{32*j}')
        LIN[0] = None

def gen_dg(a):
    d = opt('dg'); F, ia, ib = d // 10000, d // 100 % 100, d % 100
    m = opt('dgm')
    a.raw('.globl dg_kernel\n.p2align 8\n.type dg_kernel,@function\ndg_kernel:')
    a.e('s_load_dwordx2 s[10:11], s[0:1], 96')
    a.e('s_memrealtime s[12:13]')
    a.e('s_waitcnt lgkmcnt(0)')
    a.e(f's_add_u32 s10, s10, {STAMP_BASE + opt("dgw", 0) * 128:#x}')
    a.e('s_addc_u32 s11, s11, 0')
    if not m:
        a.e(f's_load_dword s4, s[10:11], {4*ia}')
        a.e(f's_load_dword s5, s[10:11], {4*ib}')
        a.e('s_waitcnt lgkmcnt(0)')
    else:
        a.e('s_mov_b32 s20, s10\ns_mov_b32 s21, s11\ns_mov_b32 s22, 0x20000\ns_mov_b32 s23, 0x20000')
        a.e('v_lshlrev_b32 v1, 7, v0')
        for i in range(16):
            a.e(f's_mov_b32 s6, {i*8192}')
            a.e(f'buffer_load_dword v{8+i}, v1, s[20:23], s6 offen offset:{4*ia}')
            a.e(f'buffer_load_dword v{24+i}, v1, s[20:23], s6 offen offset:{4*ib}')
        a.e('s_waitcnt vmcnt(0)')
        for i in range(32):
            a.e(f'v_sub_u32 v{8+i}, s12, v{8+i}')
        opa = 'v_max_u32' if m != 3 else 'v_add_u32'
        opb = {1: 'v_min_u32', 2: 'v_max_u32', 3: 'v_add_u32'}[m]
        for i in range(1, 16):
            a.e(f'{opa} v8, v8, v{8+i}')
            a.e(f'{opb} v24, v24, v{24+i}')
        a.e('s_nop 1')
        a.e('v_readlane_b32 s4, v8, 0')
        a.e('v_readlane_b32 s5, v24, 0')
        sa = 's_max_u32' if m != 3 else 's_add_u32'
        sb = {1: 's_min_u32', 2: 's_max_u32', 3: 's_add_u32'}[m]
        for l in range(1, 64):
            a.e(f'v_readlane_b32 s6, v8, {l}')
            a.e(f'v_readlane_b32 s7, v24, {l}')
            a.e('s_nop 0')
            a.e(f'{sa} s4, s4, s6')
            a.e(f'{sb} s5, s5, s7')
        a.e('s_sub_u32 s5, s4, s5')
        if m == 3: a.e('s_lshr_b32 s5, s5, 10')
        a.e('s_mov_b32 s4, 0')
        a.e('s_memrealtime s[12:13]')
        a.e('s_waitcnt lgkmcnt(0)')
    a.e('s_sub_u32 s4, s5, s4')
    a.e('s_min_u32 s4, s4, 10000')
    a.e(f's_mul_i32 s4, s4, {F}')
    a.e('L_dg:')
    a.e('s_memrealtime s[14:15]')
    a.e('s_waitcnt lgkmcnt(0)')
    a.e('s_sub_u32 s5, s14, s12')
    a.e('s_cmp_lt_u32 s5, s4')
    a.e('s_cbranch_scc1 L_dg')
    a.e('s_endpgm')

def build():
    a = Asm()
    hdr = open('cdna_kernels/' + NAME + '.s.ref').read().split('\n')
    cm = [l for l in hdr if l.startswith(';') and '@launch' not in l and 'Override launch' not in l and 'grid=ceil' not in l]
    out = '\n'.join(cm) + '\n'
    if opt('aslist') or opt('dg'):
        out += f'; @launch kernel={KNAME} grid=(256,1,1) block=(256,1,1) lds=163840\n'
        if opt('dg'): out += '; @launch kernel=dg_kernel grid=(1,1,1) block=(64,1,1) lds=0\n'
    else:
        out += '; @launch grid=(256,1,1) block=(256,1,1) lds=163840\n'
    a.raw('.amdgcn_target "amdgcn-amd-amdhsa--gfx950"')
    a.raw('.text')
    gen(a)
    if opt('dg'): gen_dg(a)
    body = a.text()
    errs = check_hazards(body)
    errs += check_waits(body, KNAME, loop_iters=2, take_fwd=('L_nonce_ok', 'L_nonce_skip', 'L_clean_skip') + tuple(f'L_sig{i}' for i in range(20)) + tuple(f'L_poll{i}x' for i in range(20)))
    errs += check_waits(body, KNAME, loop_iters=2, take_fwd=('L_nonce_ok',) + (() if opt('solo', 1) else tuple(f'L_poll{i}x' for i in range(20))))
    for e in errs[:8]: print(e, file=sys.stderr)
    na = 256
    out += body + f'''.section .rodata,"a"
.p2align 6
.amdhsa_kernel {KNAME}
  .amdhsa_next_free_vgpr {256+na}
  .amdhsa_next_free_sgpr 102
  .amdhsa_accum_offset 256
  .amdhsa_group_segment_fixed_size 0
  .amdhsa_kernarg_size 104
  .amdhsa_user_sgpr_count 2
  .amdhsa_user_sgpr_kernarg_segment_ptr 1
  .amdhsa_system_sgpr_workgroup_id_x 1
  .amdhsa_float_denorm_mode_32 3
.end_amdhsa_kernel
'''
    if opt('dg'):
        out += '''.p2align 6
.amdhsa_kernel dg_kernel
  .amdhsa_next_free_vgpr 48
  .amdhsa_next_free_sgpr 32
  .amdhsa_accum_offset 48
  .amdhsa_group_segment_fixed_size 0
  .amdhsa_kernarg_size 104
  .amdhsa_user_sgpr_count 2
  .amdhsa_user_sgpr_kernarg_segment_ptr 1
  .amdhsa_system_sgpr_workgroup_id_x 1
.end_amdhsa_kernel
'''
    return out, errs

if __name__ == '__main__':
    outp = sys.argv[1]
    for kv in sys.argv[2:]:
        k, v = kv.split('=')
        OPT[k] = int(v)
    t, errs = build()
    open(outp, 'w').write(t)
    print('written', outp, len(t), 'bytes;', len(errs), 'checker errors')
```

```python
import sys, os
from asmlib import *

NAME = 'sequential_preLN__ssm_conv_h3__glu_gated_swiglu__prompt'
KNAME = NAME + '_kernel'
MB = 1 << 20
WS0 = int(os.environ.get('WS0', '0')) * MB
WS_UB, WS_Y2, WS_H, WS_HNF, WS_HF, WS_XP, WS_FLG = [WS0 + x * MB for x in (0, 4, 8, 12, 16, 32, 40)]
STAMP_BASE = 64 * MB
OPT = {}
def opt(k, d=0): return OPT.get(k, d)

P_Q, P_K, P_V, P_SH, P_SSMK, P_D, P_X, P_W1, P_W3, P_W2, P_OUT, P_DBG, P_WS = [4 + 2 * i for i in range(13)]
S_W, S_NONCE, S_MASK = 30, 31, 90
S_FLG = 92
F0, F1, F2, F3, F4 = 0, 32768, 65536, 98304, 131072
FLG_SIZE = 262144
LDS_KA = 98304
KA_REG = 13056
NSTAMP = 20
AST = 128

def srd(a, d, p, size, add=0, addreg=None):
    if add or addreg is not None:
        if add:
            a.e(f's_add_u32 s{d}, s{p}, {add:#x}')
            a.e(f's_addc_u32 s{d+1}, s{p+1}, 0')
            if addreg is not None:
                a.e(f's_add_u32 s{d}, s{d}, s{addreg}')
                a.e(f's_addc_u32 s{d+1}, s{d+1}, 0')
        else:
            a.e(f's_add_u32 s{d}, s{p}, s{addreg}')
            a.e(f's_addc_u32 s{d+1}, s{p+1}, 0')
    else:
        a.e(f's_mov_b32 s{d}, s{p}')
        a.e(f's_mov_b32 s{d+1}, s{p+1}')
    if size is not None:
        a.e(f's_mov_b32 s{d+2}, {size:#x}')
    a.e(f's_mov_b32 s{d+3}, 0x20000')

def stamp(a, i):
    if not opt('stamp'): return
    a.e('s_memrealtime s[60:61]')
    if i == 0: a.e('s_memtime s[62:63]')
    cy = {11: 20, 12: 21, 14: 22, 15: 23, 4: 24, 5: 25}.get(i)
    if cy: a.e('s_memtime s[66:67]')
    a.e('s_waitcnt lgkmcnt(0)')
    a.e(f'v_writelane_b32 v1, s60, {i}')
    if cy: a.e(f'v_writelane_b32 v1, s66, {cy}')
    if LIN[0]: LIN[0].lg = []

def stamp_out(a, n):
    if not opt('stamp'): return
    a.e('s_waitcnt vmcnt(0)')
    stamp(a, n - 1)
    a.e('s_memtime s[64:65]')
    a.e('s_waitcnt lgkmcnt(0)')
    srd(a, 32, P_WS, 1 * MB, STAMP_BASE)
    a.e('s_lshl_b32 s84, s2, 2')
    a.e(f's_add_u32 s84, s84, s{S_W}')
    a.e('s_lshl_b32 s84, s84, 7')
    a.e('s_sub_u32 s64, s64, s62')
    a.e('v_writelane_b32 v1, s64, 31')
    a.e('v_mbcnt_lo_u32_b32 v2, -1, 0')
    a.e('v_lshlrev_b32 v2, 2, v2')
    a.e('s_mov_b64 exec, 0xffffffff')
    a.e('buffer_store_dword v1, v2, s[32:35], s84 offen')

LIN = [None]
class Lin:
    def __init__(s, a): s.a = a; s.vm = []; s.lg = []; LIN[0] = s
    def e(s, t): s.a.e(t)
    def v(s, tag, t): s.a.e(t); s.vm.append(tag)
    def l(s, tag, t): s.a.e(t); s.lg.append(tag)
    def _n(s, q, tags, cap):
        idx = [i for i, x in enumerate(q) if x in tags]
        if not idx: return None
        n = len(q) - max(idx) - 1
        return min(n, cap)
    def wait(s, vm=(), lg=(), vm0=False, lg0=False):
        nv = 0 if vm0 else s._n(s.vm, vm, 63)
        nl = 0 if lg0 else s._n(s.lg, lg, 15)
        t = ''
        if nv is not None:
            t += f' vmcnt({nv})'; s.vm = s.vm[len(s.vm) - nv:] if nv else []
        if nl is not None:
            t += f' lgkmcnt({nl})'; s.lg = s.lg[len(s.lg) - nl:] if nl else []
        if t: s.a.e('s_waitcnt' + t)

def unpack(a, dlo, dhi, src):
    a.e(f'v_lshlrev_b32 v{dlo}, 16, v{src}')
    a.e(f'v_and_b32 v{dhi}, s{S_MASK}, v{src}')

def hfl():
    return [' sc1', ' sc0 sc1', ' sc1 nt', ' sc0 sc1 nt', ''][opt('hfl')]

def code_pf(a, lab_from, lab_to, vt, emit=None, n=1):
    _uid[0] += 1
    L = f'L_pc{_uid[0]}'
    a.e('s_getpc_b64 s[78:79]')
    a.e(f'{L}:')
    a.e(f's_lshl_b32 s77, s{S_W}, 13')
    a.e(f's_add_u32 s77, s77, {lab_from}-{L}')
    for i in range(n):
        if i: a.e('s_add_u32 s77, s77, 32768')
        a.e(f'v_lshl_add_u32 v{vt}, v2, 7, s77')
        a.e(f'v_min_u32 v{vt}, {lab_to}-{L}, v{vt}')
        t = f'global_load_dword v{vt+1+i}, v{vt}, s[78:79]'
        if emit: emit(t)
        else: a.e(t)

def hf_base(a, d, mb, q, t):
    if not opt('reuse', 0):
        a.e(f's_lshl_b32 s{d}, s{mb}, 2')
        a.e(f's_add_u32 s{d}, s{d}, s{q}')
        a.e(f's_mul_i32 s{d}, s{d}, 458752')
        a.e(f's_add_u32 s{d}, s{d}, {WS_HF:#x}')
        return
    a.e(f's_lshl_b32 s{d}, s{mb}, 1')
    a.e(f's_add_u32 s{d}, s{d}, s{q}')
    a.e(f's_mul_i32 s{d}, s{d}, 458752')
    a.e(f's_add_u32 s{d}, s{d}, {WS_HF:#x}')
    a.e(f's_lshl_b32 s{t}, s{mb}, 19')
    a.e(f's_cmp_eq_u32 s{q}, 1')
    a.e(f's_cselect_b32 s{d}, s{t}, s{d}')
    a.e(f's_add_u32 s{t}, s{t}, {WS_Y2 - WS_UB:#x}')
    a.e(f's_cmp_eq_u32 s{q}, 0')
    a.e(f's_cselect_b32 s{d}, s{t}, s{d}')

_uid = [0]
def signal(a, soff, vt, waitfn=None, wb=False):
    _uid[0] += 1
    L = f'L_sig{_uid[0]}'
    a.e(f'v_mov_b32 v{vt}, 0')
    a.e(f'v_mov_b32 v{vt+1}, s{S_NONCE}')
    a.e(f's_cmp_eq_u32 s{S_W}, 0')
    if waitfn: waitfn()
    else: a.e('s_waitcnt vmcnt(0)')
    a.e('s_barrier')
    a.e(f's_cbranch_scc0 {L}')
    if wb:
        a.e('buffer_wbl2 sc1')
        a.e('s_waitcnt vmcnt(0)')
    a.e('s_mov_b64 exec, 1')
    a.e(f'buffer_store_dword v{vt+1}, v{vt}, s[{S_FLG}:{S_FLG+3}], s{soff} offen sc1')
    a.e('s_mov_b64 exec, -1')
    a.e(f'{L}:')

def fsh():
    return opt('fs', 32).bit_length() - 1
def f1sh():
    return opt('f1s', 32).bit_length() - 1

def wait_flags(a, soff, voff, vd, n=64, solo=None):
    _uid[0] += 1
    L = f'L_poll{_uid[0]}'
    if solo is None: solo = opt('solo', 1)
    if solo:
        a.e(f's_cmp_lg_u32 s{S_W}, 0')
        a.e(f's_cbranch_scc1 {L}x')
    a.e(f'{L}:')
    if n == 256:
        if f1sh() == 2:
            a.e(f'buffer_load_dwordx4 v[{vd}:{vd+3}], v{voff}, s[{S_FLG}:{S_FLG+3}], s{soff} offen sc1')
        else:
            for i in range(4):
                a.e(f's_add_u32 s89, s{soff}, {i*(64<<f1sh())}')
                a.e(f'buffer_load_dword v{vd+i}, v{voff}, s[{S_FLG}:{S_FLG+3}], s89 offen sc1')
        a.e('s_waitcnt vmcnt(0)')
        a.e(f'v_xor_b32 v{vd}, s{S_NONCE}, v{vd}')
        a.e(f'v_xor_b32 v{vd+1}, s{S_NONCE}, v{vd+1}')
        a.e(f'v_xor_b32 v{vd+2}, s{S_NONCE}, v{vd+2}')
        a.e(f'v_xor_b32 v{vd+3}, s{S_NONCE}, v{vd+3}')
        a.e(f'v_or3_b32 v{vd}, v{vd}, v{vd+1}, v{vd+2}')
        a.e(f'v_or_b32 v{vd}, v{vd}, v{vd+3}')
        a.e(f'v_cmp_ne_u32 vcc, 0, v{vd}')
    else:
        a.e(f'buffer_load_dword v{vd}, v{voff}, s[{S_FLG}:{S_FLG+3}], s{soff} offen sc1')
        a.e('s_waitcnt vmcnt(0)')
        a.e(f'v_cmp_ne_u32 vcc, s{S_NONCE}, v{vd}')
    a.e('s_add_u32 s3, s3, 1')
    a.e(f's_cmp_gt_u32 s3, {opt("spin", 200000)}')
    a.e(f's_cbranch_scc1 {L}x')
    a.e(f's_cbranch_vccz {L}x')
    if opt('sleep'): a.e(f's_sleep {opt("sleep")}')
    a.e(f's_branch {L}')
    a.e(f'{L}x:')
    if solo: a.e('s_barrier')

def wave_sum2(a, va, vb, sa, sb):
    for mod in ('row_shr:1 row_mask:0xf bank_mask:0xf bound_ctrl:0', 'row_shr:2 row_mask:0xf bank_mask:0xf bound_ctrl:0',
                'row_shr:4 row_mask:0xf bank_mask:0xf bound_ctrl:0', 'row_shr:8 row_mask:0xf bank_mask:0xf bound_ctrl:0',
                'row_bcast:15 row_mask:0xa bank_mask:0xf', 'row_bcast:31 row_mask:0xc bank_mask:0xf'):
        a.e('s_nop 0')
        a.e(f'v_add_f32_dpp v{va}, v{va}, v{va} {mod}')
        a.e(f'v_add_f32_dpp v{vb}, v{vb}, v{vb} {mod}')
    a.e(f'v_readlane_b32 s{sa}, v{va}, 63')
    a.e(f'v_readlane_b32 s{sb}, v{vb}, 63')

def ln2(a, X, T, M, R, C):
    def both(f):
        for r in range(2): f(r)
    for q in range(4):
        both(lambda r: a.e(f'v_pk_add_f32 v[{T[r]+2*q}:{T[r]+2*q+1}], v[{X[r]+4*q}:{X[r]+4*q+1}], v[{X[r]+4*q+2}:{X[r]+4*q+3}]'))
    both(lambda r: a.e(f'v_pk_add_f32 v[{T[r]}:{T[r]+1}], v[{T[r]}:{T[r]+1}], v[{T[r]+2}:{T[r]+3}]'))
    both(lambda r: a.e(f'v_pk_add_f32 v[{T[r]+4}:{T[r]+5}], v[{T[r]+4}:{T[r]+5}], v[{T[r]+6}:{T[r]+7}]'))
    both(lambda r: a.e(f'v_pk_add_f32 v[{T[r]}:{T[r]+1}], v[{T[r]}:{T[r]+1}], v[{T[r]+4}:{T[r]+5}]'))
    both(lambda r: a.e(f'v_add_f32 v{T[r]}, v{T[r]}, v{T[r]+1}'))
    wave_sum2(a, T[0], T[1], 56, 57)
    a.e('s_nop 0')
    both(lambda r: a.e(f'v_mul_f32 v{M[r]}, s{56+r}, v{C}'))
    both(lambda r: a.e(f'v_mov_b32 v{M[r]+1}, v{M[r]}'))
    for q in range(8):
        both(lambda r: a.e(f'v_pk_add_f32 v[{T[r]+2*q}:{T[r]+2*q+1}], v[{X[r]+2*q}:{X[r]+2*q+1}], v[{M[r]}:{M[r]+1}] neg_lo:[0,1] neg_hi:[0,1]'))
    both(lambda r: a.e(f'v_pk_mul_f32 v[{R[r]}:{R[r]+1}], v[{T[r]}:{T[r]+1}], v[{T[r]}:{T[r]+1}]'))
    for q in range(1, 8):
        both(lambda r: a.e(f'v_pk_fma_f32 v[{R[r]}:{R[r]+1}], v[{T[r]+2*q}:{T[r]+2*q+1}], v[{T[r]+2*q}:{T[r]+2*q+1}], v[{R[r]}:{R[r]+1}]'))
    both(lambda r: a.e(f'v_add_f32 v{R[r]}, v{R[r]}, v{R[r]+1}'))
    def rbf(v):
        a.e(f'v_cvt_pk_bf16_f32 v{v}, v{v}, v{v}')
        a.e(f'v_and_b32 v{v}, s{S_MASK}, v{v}')
    both(lambda r: rbf(M[r]))
    wave_sum2(a, R[0], R[1], 58, 59)
    both(lambda r: a.e(f'v_mov_b32 v{M[r]+1}, v{M[r]}'))
    both(lambda r: a.e(f'v_mul_f32 v{R[r]}, s{58+r}, v{C}'))
    both(lambda r: rbf(R[r]))
    both(lambda r: a.e(f'v_add_f32 v{R[r]}, 0x3727c5ac, v{R[r]}'))
    both(lambda r: rbf(R[r]))
    both(lambda r: a.e(f'v_sqrt_f32 v{R[r]}, v{R[r]}'))
    for q in range(2):
        both(lambda r: a.e(f'v_pk_add_f32 v[{T[r]+2*q}:{T[r]+2*q+1}], v[{X[r]+2*q}:{X[r]+2*q+1}], v[{M[r]}:{M[r]+1}] neg_lo:[0,1] neg_hi:[0,1]'))
    both(lambda r: rbf(R[r]))
    both(lambda r: a.e(f'v_rcp_f32 v{R[r]}, v{R[r]}'))
    for q in range(2, 8):
        both(lambda r: a.e(f'v_pk_add_f32 v[{T[r]+2*q}:{T[r]+2*q+1}], v[{X[r]+2*q}:{X[r]+2*q+1}], v[{M[r]}:{M[r]+1}] neg_lo:[0,1] neg_hi:[0,1]'))
    both(lambda r: a.e(f'v_mov_b32 v{R[r]+1}, v{R[r]}'))
    for q in range(8):
        both(lambda r: a.e(f'v_pk_mul_f32 v[{T[r]+2*q}:{T[r]+2*q+1}], v[{T[r]+2*q}:{T[r]+2*q+1}], v[{R[r]}:{R[r]+1}]'))

class Sched:
    def __init__(self): self.ev = []; self.marks = {}
    def mark(self, k): self.marks[k] = len(self.ev)
    def add(self, L): self.ev += L
    def younger(self, tag, at):
        last = max(i for i, e in enumerate(self.ev) if e[:2] == tag)
        assert last < self.marks[at], (tag, at)
        return self.marks[at] - last - 1

def gen(a):
    a.raw(f'.globl {KNAME}')
    a.raw('.p2align 8')
    a.raw(f'.type {KNAME},@function')
    a.raw(f'{KNAME}:')
    a.e('s_cmp_ge_u32 s2, 256')
    a.e('s_cbranch_scc1 L_end')
    a.e('s_load_dwordx8 s[4:11], s[0:1], 0')
    a.e('s_load_dwordx8 s[20:27], s[0:1], 64')
    a.e('s_load_dwordx2 s[28:29], s[0:1], 96')
    a.e('s_load_dwordx8 s[12:19], s[0:1], 32')
    a.e('s_memrealtime s[56:57]')
    a.e('v_lshrrev_b32 v1, 6, v0')
    a.e('v_and_b32 v2, 63, v0')
    a.e(f'v_readfirstlane_b32 s{S_W}, v1')
    a.e(f's_mov_b32 s{S_MASK}, 0xffff0000')
    a.e('s_mov_b32 s3, 0')
    a.e('s_bfe_u32 s82, s2, 0x30003')
    a.e('s_and_b32 s83, s2, 7')
    a.e('s_lshr_b32 s84, s2, 6')
    a.e('s_lshl_b32 s84, s84, 3')
    a.e('s_or_b32 s83, s83, s84')
    a.e('v_and_b32 v1, 15, v0')
    a.e('v_lshrrev_b32 v8, 4, v0')
    a.e('s_lshl_b32 s85, s83, 17')
    a.e('s_lshl_b32 s86, s82, 8')
    a.e('s_add_u32 s85, s85, s86')
    a.e('v_lshlrev_b32 v3, 13, v1')
    a.e('v_lshl_add_u32 v3, v8, 4, v3')
    a.e('v_add_u32 v3, s85, v3')
    a.e('v_add_u32 v4, 0xffffe800, v3')
    a.e('v_add_u32 v5, 0xfffff800, v3')
    a.e('v_add_u32 v6, 0x1000, v3')
    a.e('s_lshl_b32 s86, s82, 10')
    a.e('v_lshlrev_b32 v7, 6, v8')
    a.e('v_add_u32 v7, s86, v7')
    a.e('s_lshl_b32 s87, s82, 5')
    a.e('s_add_u32 s87, s87, s83')
    a.e('s_lshl_b32 s88, s87, 14')
    a.e('s_add_u32 s88, s88, 120')
    a.e('v_lshlrev_b32 v160, 10, v8')
    a.e('v_lshlrev_b32 v161, 3, v1')
    a.e('v_sub_u32 v160, v160, v161')
    a.e('v_add_u32 v160, s88, v160')
    a.e(f's_lshl_b32 s87, s87, {fsh()}')
    a.e('v_mov_b32 v162, 0')
    a.e('s_waitcnt lgkmcnt(0)')
    stamp(a, 0)
    if opt('stamp'): a.e('v_writelane_b32 v1, s56, 30')
    srd(a, 32, P_K, 4 * MB)
    srd(a, 36, P_V, 4 * MB)
    srd(a, 40, P_SH, 8192)
    KR, VR_, WR, WU, KU, AC0 = 8, 36, 52, 68, 100, 164
    for j in range(4):
        a.e(f'buffer_load_dwordx4 v[{WR+4*j}:{WR+4*j+3}], v7, s[40:43], 0 offen offset:{16*j}')
    rows = [(4, 0), (4, 2048), (5, 0), (3, 0), (3, 2048), (6, 0), (6, 2048)]
    for r, (vr, off) in enumerate(rows):
        a.e(f'buffer_load_dwordx4 v[{KR+4*r}:{KR+4*r+3}], v{vr}, s[32:35], 0 offen offset:{off}')
    for r, (vr, off) in enumerate(rows[3:]):
        a.e(f'buffer_load_dwordx4 v[{VR_+4*r}:{VR_+4*r+3}], v{vr}, s[36:39], 0 offen offset:{off}')
    ncp = 0
    if opt('cpf', 0):
        a.e('s_getpc_b64 s[58:59]')
        a.e('L_pc:')
        a.e('v_lshlrev_b32 v163, 7, v0')
        a.e('v_min_u32 v163, L_end-L_pc, v163')
        a.e('global_load_dword v161, v163, s[58:59]')
        ncp = 1
    srd(a, 48, P_WS, 4 * MB, WS_UB)
    if opt('pt', 0) & 1:
        a.e('v_lshlrev_b32 v163, 6, v0')
        a.e('s_sub_u32 s58, s88, 120')
        a.e('buffer_load_dword v161, v163, s[48:51], s58 offen')
        ncp += 1
    srd(a, 44, P_DBG, 256)
    a.e('s_or_b32 s56, s56, 1')
    a.e(f's_or_b32 s57, s2, s{S_W}')
    a.e('s_cmp_lg_u32 s57, 0')
    a.e('s_cbranch_scc1 L_nonce_skip')
    a.e('v_mov_b32 v163, s56')
    a.e('s_mov_b64 exec, 1')
    a.e('buffer_store_dword v163, v162, s[44:47], 0 offen sc1')
    a.e('s_mov_b64 exec, -1')
    a.e('s_waitcnt vmcnt(0)')
    a.e('L_nonce_skip:')
    srd(a, S_FLG, P_WS, FLG_SIZE, WS_FLG)
    a.e(f's_waitcnt vmcnt({11+ncp})')
    for e in range(8):
        unpack(a, WU + 0 * 8 + e, WU + 1 * 8 + e, WR + 2 * e)
        unpack(a, WU + 2 * 8 + e, WU + 3 * 8 + e, WR + 2 * e + 1)
    for r in range(7):
        a.e(f's_waitcnt vmcnt({10-r+ncp})')
        for q in range(4):
            unpack(a, KU + 8 * r + 2 * q, KU + 8 * r + 2 * q + 1, KR + 4 * r + q)
        if r >= 3:
            i = r - 3
            for j in range(4):
                for q in range(4):
                    d = AC0 + 8 * i + 2 * q
                    k = KU + 8 * (i + 3 - j) + 2 * q
                    w = WU + 8 * j + 2 * q
                    if j == 0:
                        a.e(f'v_pk_mul_f32 v[{d}:{d+1}], v[{k}:{k+1}], v[{w}:{w+1}]')
                    else:
                        a.e(f'v_pk_fma_f32 v[{d}:{d+1}], v[{k}:{k+1}], v[{w}:{w+1}], v[{d}:{d+1}]')
    VU = 8
    for i in range(4):
        a.e(f's_waitcnt vmcnt({3-i+ncp})')
        if i == 3:
            a.e('buffer_load_dword v163, v162, s[44:47], 0 offen sc1')
        for q in range(4):
            unpack(a, VU + 2 * q, VU + 2 * q + 1, VR_ + 4 * i + q)
        for q in range(4):
            d = AC0 + 8 * i + 2 * q
            a.e(f'v_pk_mul_f32 v[{d}:{d+1}], v[{d}:{d+1}], v[{VU+2*q}:{VU+2*q+1}]')
    O = 52
    for e in range(8):
        a.e(f'v_cvt_pk_bf16_f32 v{O+2*e}, v{AC0+24+e}, v{AC0+16+e}')
        a.e(f'v_cvt_pk_bf16_f32 v{O+2*e+1}, v{AC0+8+e}, v{AC0+e}')
        a.e(f'buffer_store_dwordx2 v[{O+2*e}:{O+2*e+1}], v160, s[48:51], 0 offen offset:{128*e} sc1')
    stamp(a, 1)
    a.e('s_and_b32 s82, s2, 7')
    a.e('s_lshr_b32 s83, s2, 3')
    a.e('s_lshl_b32 s84, s83, 2')
    a.e(f's_add_u32 s84, s84, s{S_W}')
    a.e('s_lshl_b32 s85, s82, 7')
    a.e('s_add_u32 s85, s85, s84')
    a.e('s_lshl_b32 s86, s82, 5')
    a.e('s_add_u32 s86, s86, s83')
    a.e(f's_mul_i32 s88, s{S_W}, {KA_REG}')
    a.e(f's_add_u32 s88, s88, {LDS_KA}')
    a.e('s_lshl_b32 s56, s85, 12')
    srd(a, 32, P_SSMK, 4096, 0, 56)
    a.e('s_lshr_b32 s57, s85, 1')
    a.e('s_lshl_b32 s57, s57, 2')
    a.e(f's_load_dword s89, s[{P_D}:{P_D+1}], s57')
    a.e('v_lshlrev_b32 v4, 4, v2')
    KD, KX = 8, 24
    for j in range(4):
        a.e(f'buffer_load_dwordx4 v[{KD+4*j}:{KD+4*j+3}], v4, s[32:35], 0 offen offset:{1024*j}')
        a.e(f'buffer_load_dword v{KX+j}, v4, s[32:35], 0 offen offset:{1024*j+16}')
    a.e('s_and_b32 s80, s82, 1')
    a.e('s_lshl_b32 s80, s80, 2')
    a.e('s_and_b32 s56, s83, 3')
    a.e('s_add_u32 s80, s80, s56')
    a.e('s_lshr_b32 s81, s82, 1')
    a.e('s_lshl_b32 s81, s81, 3')
    a.e('s_lshr_b32 s56, s83, 2')
    a.e('s_add_u32 s81, s81, s56')
    a.e('s_lshl_b32 s91, s80, 5')
    a.e('s_add_u32 s91, s91, s81')
    a.e('s_lshl_b32 s56, s91, 2')
    a.e(f's_add_u32 s56, s56, s{S_W}')
    a.e('s_lshl_b32 s96, s56, 12')
    srd(a, 36, P_Q, 4 * MB)
    XP = 224
    for r in range(2):
        for hh in range(2):
            a.e(f'buffer_load_dwordx4 v[{XP+8*r+4*hh}:{XP+8*r+4*hh+3}], v4, s[36:39], s96 offen offset:{2048*r+1024*hh}')
    nc0 = 0
    if opt('cpf0', 2):
        if opt('cpf0', 2) == 1:
            code_pf(a, 'L_nonce', 'L_end', 164, n=2); nc0 = 2
        else:
            code_pf(a, 'L_nonce', 'L_kbcode', 164); nc0 = 1
    a.e(f's_waitcnt vmcnt({20+nc0})')
    a.e('L_nonce:')
    a.e(f'v_readfirstlane_b32 s{S_NONCE}, v163')
    a.e('s_nop 0')
    a.e(f's_cmp_lg_u32 s{S_NONCE}, 0')
    a.e('s_cbranch_scc1 L_nonce_ok')
    a.e('s_add_u32 s3, s3, 1')
    a.e(f's_cmp_gt_u32 s3, {opt("spin", 200000)}')
    a.e('s_cbranch_scc1 L_nonce_ok')
    a.e('buffer_load_dword v163, v162, s[44:47], 0 offen sc1')
    a.e('s_waitcnt vmcnt(0)')
    a.e('s_branch L_nonce')
    a.e('L_nonce_ok:')
    a.e(f'v_mov_b32 v163, s{S_NONCE}')
    a.e(f's_cmp_eq_u32 s{S_W}, 0')
    a.e(f's_waitcnt vmcnt({12+nc0})')
    a.e('s_barrier')
    a.e('s_cbranch_scc0 L_sig0')
    a.e('s_mov_b64 exec, 1')
    a.e(f'buffer_store_dword v163, v162, s[{S_FLG}:{S_FLG+3}], s87 offen sc1')
    a.e('s_mov_b64 exec, -1')
    a.e('L_sig0:')
    stamp(a, 2)
    npt = 0
    if opt('pt', 0) & 2:
        srd(a, 40, P_WS, 12 * MB, WS_Y2)
        a.e('v_lshlrev_b32 v164, 14, v0')
        a.e('s_lshl_b32 s56, s86, 6')
        a.e('buffer_load_dword v161, v164, s[40:43], s56 offen')
        a.e('v_lshlrev_b32 v164, 6, v0')
        a.e('s_lshl_b32 s56, s91, 14')
        a.e(f's_add_u32 s56, s56, {4*MB}')
        a.e('buffer_load_dword v161, v164, s[40:43], s56 offen')
        a.e('v_lshrrev_b32 v164, 3, v0')
        a.e('v_lshlrev_b32 v164, 12, v164')
        a.e('v_bfe_u32 v165, v0, 1, 2')
        a.e('v_lshl_add_u32 v164, v165, 8, v164')
        a.e('s_lshr_b32 s56, s91, 3')
        a.e('s_lshl_b32 s56, s56, 17')
        a.e('s_and_b32 s57, s91, 7')
        a.e('s_lshr_b32 s58, s57, 1')
        a.e('s_lshl_b32 s58, s58, 10')
        a.e('s_add_u32 s56, s56, s58')
        a.e('s_and_b32 s57, s57, 1')
        a.e('s_lshl_b32 s57, s57, 7')
        a.e('s_add_u32 s56, s56, s57')
        a.e(f's_add_u32 s56, s56, {8*MB}')
        a.e('buffer_load_dword v161, v164, s[40:43], s56 offen')
        npt += 3
    a.e('v_lshrrev_b32 v3, 3, v2')
    a.e('v_sub_u32 v3, 7, v3')
    a.e('v_lshlrev_b32 v3, 14, v3')
    a.e('v_and_b32 v5, 7, v2')
    a.e('v_lshl_add_u32 v3, v5, 4, v3')
    a.e('s_lshl_b32 s56, s84, 7')
    a.e('v_add_u32 v3, s56, v3')
    a.e('v_and_b32 v5, 15, v2')
    a.e('v_lshrrev_b32 v6, 4, v2')
    a.e('v_mov_b32 v28, 0')
    a.e('v_mov_b32 v29, 0')
    a.e('v_lshlrev_b32 v7, 3, v2')
    a.e('v_add_u32 v7, s88, v7')
    a.e('ds_write_b64 v7, v[28:29] offset:4096')
    a.e('v_min_u32 v30, 7, v2')
    a.e('v_lshlrev_b32 v30, 2, v30')
    a.e('v_add_u32 v30, s88, v30')
    a.e('ds_write_b32 v30, v28 offset:4608')
    a.e('v_add_u32 v31, 1, v5')
    a.e('v_and_b32 v32, 1, v31')
    a.e('v_sub_u32 v31, v31, v32')
    a.e('v_lshl_add_u32 v31, v6, 3, v31')
    a.e('v_lshlrev_b32 v31, 1, v31')
    a.e('v_mul_u32_u24 v32, 4160, v32')
    a.e('v_add3_u32 v31, v31, v32, s88')
    VA, VB, ACC = 36, 40, 44
    for j in range(4):
        a.e(f'v_add_u32 v{VA+j}, {4608+1024*j}, v31')
    a.e('v_lshlrev_b32 v32, 5, v5')
    a.e('v_lshlrev_b32 v33, 4, v6')
    a.e('v_sub_u32 v33, v33, v32')
    a.e('v_add_u32 v33, s88, v33')
    a.e(f'v_add_u32 v{VB}, 480, v33')
    a.e('v_add_u32 v7, s88, v4')
    for r in range(32):
        a.e(f'v_mov_b32 v{ACC+r}, 0')
    T = 76
    a.e(f's_waitcnt vmcnt({4+npt+nc0})')
    for j in range(4):
        d = KD + 4 * j
        if j == 0:
            a.e(f'v_readfirstlane_b32 s56, v{d}')
        a.e(f'ds_write_b128 v7, v[{d}:{d+3}] offset:{4608+32+1024*j}')
        for q in range(4):
            hi = d + q + 1 if q < 3 else KX + j
            a.e(f'v_alignbit_b32 v{T+4*j+q}, v{hi}, v{d+q}, 16')
        a.e(f'ds_write_b128 v7, v[{T+4*j}:{T+4*j+3}] offset:{4608+4160+32+1024*j}')
    a.e('s_lshl_b32 s56, s56, 16')
    a.e('v_cmp_le_u32 vcc, 7, v2')
    a.e('v_mov_b32 v32, s56')
    a.e('s_nop 0')
    a.e('v_cndmask_b32 v32, v28, v32, vcc')
    a.e(f'ds_write_b32 v30, v32 offset:{4608+4160}')
    FA = [96, 160]; FB = [128, 192]
    def rdA(r, buf):
        L = []
        for mq in range(8):
            o = 128 * (mq & 1) + 16 * r
            f = FA[buf] + 4 * mq
            L.append(f'ds_read2_b32 v[{f}:{f+1}], v{VA+(mq>>1)} offset0:{o} offset1:{o+1}')
            L.append(f'ds_read2_b32 v[{f+2}:{f+3}], v{VA+(mq>>1)} offset0:{o+2} offset1:{o+3}')
        return L
    def rdB(r, buf):
        return [f'ds_read_b128 v[{FB[buf]+4*d}:{FB[buf]+4*d+3}], v{VB} offset:{512*(7-d)+64*r}' for d in range(8)]
    a.e('s_waitcnt lgkmcnt(0)')
    a.e('s_bitcmp1_b32 s85, 0')
    a.e('s_cselect_b32 s56, 0, 16')
    a.e('s_lshl_b32 s89, s89, s56')
    a.e('s_and_b32 s89, s89, 0xffff0000')
    for l in rdA(0, 0): a.e(l)
    a.e('v_and_b32 v34, 31, v2')
    a.e(f'v_lshlrev_b32 v34, {fsh()}, v34')
    a.e(f's_lshl_b32 s56, s82, {5+fsh()}')
    wait_flags(a, 56, 34, 35)
    stamp(a, 3)
    a.e('s_lshl_b32 s56, s82, 19')
    UR = 8
    for i in range(4):
        a.e(f's_add_u32 s57, s56, {(24-8*i)*16384:#x}')
        a.e(f'buffer_load_dwordx4 v[{UR+4*i}:{UR+4*i+3}], v3, s[48:51], s57 offen sc1')
    npf = 0; wpl = []
    if opt('wpf', 1):
        a.e('s_mul_i32 s56, s2, 28672')
        a.e(f's_mul_i32 s57, s{S_W}, 7168')
        a.e('s_add_u32 s56, s56, s57')
        a.e('v_lshlrev_b32 v41, 7, v2')
        for n_, P_ in enumerate((P_W1, P_W3, P_W2)[:opt('wpn', 2)]):
            sd = (40, 32, 44)[n_]
            srd(a, sd, P_, 7168, 0, 56)
            t_ = f'buffer_load_dword v42, v41, s[{sd}:{sd+3}], 0 offen'
            if opt('wpr', 2) < 0:
                a.e(t_); npf += 1
            else:
                wpl.append(lambda t_=t_: a.e(t_))
    g1 = G1(a)
    g2 = G2(a)
    g2.front_setup()
    g1.setup_dma()
    for i in range(4):
        a.e(f's_waitcnt vmcnt({npf+3-i})')
        a.e(f'ds_write_b128 v7, v[{UR+4*i}:{UR+4*i+3}] offset:{1024*i}')
    a.e('s_waitcnt lgkmcnt(0)')
    for l in rdB(0, 0): a.e(l)
    stamp(a, 4)
    LK = Lin(a)
    g1e = [[(lambda l=l: a.e(l)) for l in grp] for grp in g1.early_dma()]
    def grp(fs): return lambda: [f() for f in fs]
    g1e = [grp(x) for x in g1e]
    fillr = {r: [] for r in range(8)}
    p01 = g2.fD([(0, 2), (1, 3)])
    fillr[6] += p01[:5]; fillr[7] += p01[5:]
    for n_, f_ in enumerate(wpl): fillr[opt('wpr', 2) + n_ * opt('wps', 0)].append(f_)
    UE = 8
    for r in range(8):
        buf = r & 1
        if r < 7:
            A_, B_ = rdA(r + 1, buf ^ 1), rdB(r + 1, buf ^ 1)
            nxt = []
            for x in range(8): nxt += [B_[x], A_[2 * x], A_[2 * x + 1]]
        else:
            a.e('v_lshlrev_b32 v32, 5, v5')
            a.e('v_lshl_add_u32 v32, v6, 3, v32')
            a.e(f'v_sub_u32 v34, {4088-3584}, v32')
            a.e('v_add_u32 v34, s88, v34')
            a.e('v_add_u32 v35, s88, v32')
            nxt = [f'ds_read_b64 v[{UE+2*c}:{UE+2*c+1}], v34 offset:{512*(7-c)}' for c in range(8)]
        a.e('s_waitcnt lgkmcnt(0)')
        fl = list(fillr[r]); evr = 36 // max(1, len(fl))
        k = 0
        for mq in range(8):
            for d in range(8 - mq):
                c = mq + d
                fa = FA[buf] + 4 * mq; fb = FB[buf] + 4 * d
                a.e(f'v_mfma_f32_16x16x32_bf16 v[{ACC+4*c}:{ACC+4*c+3}], v[{fa}:{fa+3}], v[{fb}:{fb+3}], v[{ACC+4*c}:{ACC+4*c+3}]')
                if k < len(nxt):
                    a.e(nxt[k])
                if fl and k % evr == evr - 1: fl.pop(0)()
                k += 1
        assert not fl, (r, len(fl))
    a.e('s_waitcnt lgkmcnt(0)')
    stamp(a, 5)
    a.e('L_kbcode:')
    a.inject(g2.fD([(2, 0), (3, 1)]), 8)
    X = 96
    for c in range(8):
        unpack(a, X + 4 * c + 3, X + 4 * c + 2, UE + 2 * c)
        unpack(a, X + 4 * c + 1, X + 4 * c + 0, UE + 2 * c + 1)
    for c in range(8):
        for r in range(4):
            a.e(f'v_fma_f32 v{X+4*c+r}, v{X+4*c+r}, s89, v{ACC+4*c+r}')
        a.e(f'v_cvt_pk_bf16_f32 v{UE+2*c}, v{X+4*c}, v{X+4*c+1}')
        a.e(f'v_cvt_pk_bf16_f32 v{UE+2*c+1}, v{X+4*c+2}, v{X+4*c+3}')
        a.e(f'ds_write_b64 v35, v[{UE+2*c}:{UE+2*c+1}] offset:{4608+512*c}')
    a.flush_inject()
    LIN[0] = None
    a.e('v_lshlrev_b32 v32, 2, v0')
    a.e(f'v_add_u32 v32, {LDS_KA}, v32')
    a.e('v_lshrrev_b32 v33, 2, v0')
    a.e('v_lshlrev_b32 v33, 14, v33')
    a.e('v_and_b32 v34, 3, v0')
    a.e('v_lshl_add_u32 v33, v34, 4, v33')
    a.e('s_lshl_b32 s56, s86, 6')
    a.e('s_mov_b32 s57, 0x05040100')
    a.e('s_mov_b32 s58, 0x07060302')
    srd(a, 36, P_WS, 4 * MB, WS_Y2)
    a.e('s_waitcnt lgkmcnt(0)')
    a.e('s_barrier')
    Y = 96
    for P in range(4):
        for ch in range(4):
            a.e(f'ds_read_b32 v{Y+4*P+ch}, v32 offset:{ch*KA_REG+4608+1024*P}')
    O = 128
    for P in range(4):
        a.e(f's_waitcnt lgkmcnt({12-4*P})')
        y = Y + 4 * P; o = O + 4 * P
        a.e(f'v_perm_b32 v{o}, v{y+1}, v{y}, s57')
        a.e(f'v_perm_b32 v{o+1}, v{y+3}, v{y+2}, s57')
        a.e(f'v_perm_b32 v{o+2}, v{y+1}, v{y}, s58')
        a.e(f'v_perm_b32 v{o+3}, v{y+3}, v{y+2}, s58')
        a.e(f'buffer_store_dwordx4 v[{o}:{o+3}], v33, s[36:39], s56 offen sc1')
        if P < 3:
            a.e(f's_add_u32 s56, s56, {64*16384:#x}')
    stamp(a, 6)
    XU = [8, 24]; TT = [40, 56]; MM = [72, 74]; RR = [76, 78]; C = 80; YR = [84, 92]; YU = [100, 116]
    for r in range(2):
        for q in range(8):
            unpack(a, XU[r] + 2 * q, XU[r] + 2 * q + 1, XP + 8 * r + q)
    a.e(f'v_mov_b32 v{C}, 0x3a800000')
    a.e(f's_lshl_b32 s87, s2, {f1sh()}')
    a.e(f's_add_u32 s87, s87, {F1}')
    signal(a, 87, 82)
    g2.fM([(0, 2), (1, 3), (2, 0), (3, 1)])
    a.inject(g1e[:10], 12)
    ln2(a, XU, TT, MM, RR, C)
    a.flush_inject()
    a.e('v_lshlrev_b32 v5, 7, v2')
    a.e('v_add_u32 v6, 0x2000, v5')
    a.e('s_lshl_b32 s82, s91, 14')
    a.e(f's_lshl_b32 s83, s{S_W}, 4')
    a.e('s_add_u32 s82, s82, s83')
    srd(a, 40, P_WS, 4 * MB, WS_H)
    srd(a, 44, P_WS, 4 * MB, WS_HNF)
    a.e('v_and_b32 v7, 7, v2')
    a.e(f's_lshl_b32 s83, s{S_W}, 1')
    a.e('v_xor_b32 v132, s83, v7')
    a.e('v_lshl_add_u32 v132, v132, 4, v5')
    a.e(f'v_add_u32 v132, {LDS_KA}, v132')
    a.e('v_xor_b32 v133, 16, v132')
    a.e('v_lshrrev_b32 v134, 3, v2')
    a.e('v_xor_b32 v135, v134, v7')
    a.e('v_lshlrev_b32 v135, 4, v135')
    a.e('v_lshl_add_u32 v135, v134, 7, v135')
    a.e(f's_lshl_b32 s83, s{S_W}, 12')
    a.e(f's_add_u32 s83, s83, {LDS_KA}')
    a.e('v_add_u32 v135, s83, v135')
    a.e('v_lshrrev_b32 v136, 5, v2')
    a.e('v_lshlrev_b32 v136, 12, v136')
    a.e('v_bfe_u32 v137, v2, 3, 2')
    a.e('v_lshl_add_u32 v136, v137, 8, v136')
    a.e('v_lshl_add_u32 v136, v7, 4, v136')
    a.e('s_lshr_b32 s84, s91, 3')
    a.e('s_lshl_b32 s84, s84, 17')
    a.e('s_bfe_u32 s85, s91, 0x20001')
    a.e('s_lshl_b32 s85, s85, 10')
    a.e('s_add_u32 s84, s84, s85')
    a.e('s_and_b32 s85, s91, 1')
    a.e('s_lshl_b32 s85, s85, 7')
    a.e('s_add_u32 s84, s84, s85')
    a.e(f's_lshl_b32 s85, s{S_W}, 15')
    a.e('s_add_u32 s84, s84, s85')
    a.e(f's_mov_b32 s85, {F1}')
    a.e('s_waitcnt lgkmcnt(0)')
    stamp(a, 7)
    a.e(f'v_lshlrev_b32 v138, {4 if f1sh() == 2 else f1sh()}, v2')
    wait_flags(a, 85, 138, 128, n=256)
    stamp(a, 8)
    a.e(f's_or_b32 s57, s2, s{S_W}')
    a.e('s_cmp_lg_u32 s57, 0')
    a.e('s_cbranch_scc1 L_clean_skip')
    srd(a, 48, P_DBG, 256)
    a.e('v_mov_b32 v128, 0')
    a.e('s_mov_b64 exec, 1')
    a.e('buffer_store_dword v128, v128, s[48:51], 0 offen sc1')
    a.e('s_mov_b64 exec, -1')
    a.e('L_clean_skip:')
    YL = 84
    a.e(f'buffer_load_dwordx4 v[{YL}:{YL+3}], v5, s[36:39], s82 offen sc1')
    a.e(f'buffer_load_dwordx4 v[{YL+4}:{YL+7}], v5, s[36:39], s82 offen offset:64 sc1')
    a.e(f'buffer_load_dwordx4 v[{YL+8}:{YL+11}], v6, s[36:39], s82 offen sc1')
    a.e(f'buffer_load_dwordx4 v[{YL+12}:{YL+15}], v6, s[36:39], s82 offen offset:64 sc1')
    for cgi in range(4):
        a.e(f's_waitcnt vmcnt({3-cgi})')
        for r in range(2):
            for e in range(2):
                u = YU[r] + 4 * cgi + 2 * e
                unpack(a, u, u + 1, YL + 4 * cgi + 2 * r + e)
        for r in range(2):
            for e in range(2):
                u = YU[r] + 4 * cgi + 2 * e; x = XU[r] + 4 * cgi + 2 * e; t = TT[r] + 4 * cgi + 2 * e
                a.e(f'v_pk_fma_f32 v[{x}:{x+1}], v[{t}:{t+1}], v[{u}:{u+1}], v[{x}:{x+1}]')
    a.inject(g2.fD([(4, 0), (5, 1)]), 4)
    for r in range(2):
        for q in range(8):
            a.e(f'v_cvt_pk_bf16_f32 v{XP+8*r+q}, v{XU[r]+2*q}, v{XU[r]+2*q+1}')
    for r in range(2):
        for q in range(8):
            unpack(a, XU[r] + 2 * q, XU[r] + 2 * q + 1, XP + 8 * r + q)
    a.flush_inject()
    ln2(a, XU, TT, MM, RR, C)
    for r in range(2):
        for q in range(8):
            a.e(f'v_cvt_pk_bf16_f32 v{YL+8*r+q}, v{TT[r]+2*q}, v{TT[r]+2*q+1}')
        for hh in range(2):
            a.e(f'ds_write_b128 v{132+r}, v[{YL+8*r+4*hh}:{YL+8*r+4*hh+3}] offset:{8192*hh}')
    a.e('s_waitcnt lgkmcnt(0)')
    a.e('s_barrier')
    for i in range(4):
        a.e(f'ds_read_b128 v[{100+4*i}:{103+4*i}], v135 offset:{1024*i}')
    for i in range(4):
        a.e(f's_waitcnt lgkmcnt({3-i})')
        a.e(f'buffer_store_dwordx4 v[{100+4*i}:{103+4*i}], v136, s[44:47], s84 offen sc1')
        if i < 3: a.e('s_add_u32 s84, s84, 8192')
    stamp(a, 9)
    a.e(f's_lshl_b32 s87, s91, {fsh()}')
    a.e(f's_add_u32 s87, s87, {F2}')
    g2.front_save()
    g1.pre_setup()
    signal(a, 87, 4)
    a.e('v_add_u32 v4, s73, v7')
    a.e('v_xor_b32 v5, 32, v4')
    g2.fM([(4, 0), (5, 1)], base=4)
    g1.main()
    g1.epilogue(g2)
    g2.main()
    stamp_out(a, NSTAMP)
    a.e('L_end:')
    a.e('s_endpgm')

G1_STG = 32768
class G1:
    TM, NW, DPW, ND = 4, 4, 8, 4
    ACC, WF, TF, DV, VT, VR, VL = 32, 0, 28, 8, 16, 17, 18
    DVE = 240
    def __init__(s, a): s.a = a
    def setup_dma(s):
        a = s.a
        a.e('s_and_b32 s56, s81, 1')
        a.e('s_lshl_b32 s56, s56, 1')
        a.e('s_movk_i32 s57, 4682')
        a.e('s_movk_i32 s58, 7168')
        a.e('v_mov_b32 v76, 0x80000000')
        a.e('v_subrev_u32 v77, 8, v2')
        for src, dst in ((2, 78), (77, 79)):
            a.e(f'v_cmp_gt_u32 vcc, 56, v{src}')
            a.e(f'v_mul_u32_u24 v80, s57, v{src}')
            a.e('v_lshrrev_b32 v80, 16, v80')
            a.e('v_mul_u32_u24 v81, 14, v80')
            a.e(f'v_sub_u32 v81, v{src}, v81')
            a.e('v_add_u32 v81, s56, v81')
            a.e('v_subrev_u32 v82, 14, v81')
            a.e('v_min_u32 v81, v81, v82')
            a.e('v_mul_u32_u24 v80, s58, v80')
            a.e('v_lshl_add_u32 v80, v81, 4, v80')
            a.e(f'v_cndmask_b32 v{dst}, v76, v80, vcc')
        for i in range(8):
            pat = 79 if (i >> 1) & 1 else 78
            c = i * 4 * 7168 - 1024 * (i & 3)
            a.e(f'v_add_u32 v{s.DVE+i}, {c}, v{pat}' if c else f'v_mov_b32 v{s.DVE+i}, v{pat}')
        a.e(f's_and_b32 s56, s{S_W}, 1')
        a.e(f's_lshr_b32 s57, s{S_W}, 1')
        a.e(f's_mul_i32 s97, s56, {8*4*7168}')
        a.e('s_lshl_b32 s98, s57, 14')
        a.e('s_lshl_b32 s56, s56, 13')
        a.e('s_add_u32 s98, s98, s56')
        a.e('s_mul_i32 s56, s81, 224')
        a.e('s_cmp_eq_u32 s57, 0')
        a.e(f's_cselect_b32 s52, s{P_W1}, s{P_W3}')
        a.e(f's_cselect_b32 s53, s{P_W1+1}, s{P_W3+1}')
        srd(a, 52, 52, None, 0, 56)
        a.e('s_sub_u32 s54, 7340032, s56')
    def m0set(s, i): return f's_add_u32 m0, s98, {4096*(i//4)}' if i else 's_mov_b32 m0, s98'
    def dma(s, i, base): return f'buffer_load_dwordx4 v{base+i}, s[52:55], s97 offen offset:{1024*(i&3)}' + ['', ' sc1', ' nt', ' sc0'][opt('wfl')] + ' lds'
    def dma_adv(s): return ['s_add_u32 s97, s97, 458752', f's_add_u32 s98, s98, {G1_STG}', 's_and_b32 s98, s98, 0x1ffff']
    def early_dma(s):
        out = []
        for st in range(2):
            for i in range(8):
                if i % 4 == 0: out.append([s.m0set(i)])
                out.append([s.dma(i, s.DVE)] + (s.dma_adv() if i == 7 else []))
        return out
    def tok(s, k, tm):
        f = s.TF + 4 * (4 * (k % s.ND) + tm)
        return f'buffer_load_dwordx4 a[{f}:{f+3}], v{s.VT}, s[32:35], s82 offen offset:{tm*1024}' + (' sc1' if opt('t1sc', 1) else '')
    def rd(s, ph, t):
        j, mat = (ph & 3) >> 1, ph & 1
        return [f'ds_read_b64_tr_b16 a[{s.WF+4*t+2*h}:{s.WF+4*t+2*h+1}], v{s.VR} offset:{8192*j+1024*h+32*t+16384*mat}' for h in range(2)]
    def pre_setup(s):
        a = s.a
        for i in range(8): a.e(f'v_mov_b32 v{s.DV+i}, v{s.DVE+i}')
        for i in range(16): a.e(f'v_accvgpr_write_b32 a{92+i}, v{224+i}')
        a.e(f'v_lshlrev_b32 v{s.VT}, 4, v2')
        a.e('v_lshrrev_b32 v4, 4, v2')
        a.e('v_lshlrev_b32 v4, 11, v4')
        a.e('v_bfe_u32 v5, v2, 4, 1')
        a.e('v_lshl_add_u32 v4, v5, 7, v4')
        a.e('v_bfe_u32 v6, v2, 2, 2')
        a.e('v_mul_u32_u24 v5, 224, v6')
        a.e('v_and_b32 v6, 3, v2')
        a.e('v_lshl_add_u32 v5, v6, 3, v5')
        a.e(f'v_add_u32 v{s.VL}, v4, v5')
        a.e(f'v_mov_b32 v{s.VR}, v{s.VL}')
        a.e('v_and_b32 v19, 31, v2')
        a.e(f'v_lshlrev_b32 v19, {fsh()}, v19')
        a.e('s_lshl_b32 s56, s80, 2')
        a.e(f's_add_u32 s56, s56, s{S_W}')
        a.e('s_lshl_b32 s57, s56, 17')
        srd(a, 32, P_WS, 131072, WS_HNF, 57)
        hf_base(a, 57, 80, S_W, 58)
        srd(a, 36, P_WS, 4 * 114688, 0, 57)
        a.e('s_and_b32 s58, s81, 1')
        a.e('s_mul_i32 s85, s81, 7')
        a.e('s_add_u32 s85, s85, s58')
        a.e('s_lshl_b32 s85, s85, 9')
        a.e('s_movk_i32 s86, 3072')
        a.e('s_cmp_eq_u32 s58, 0')
        a.e('s_cselect_b32 s86, s86, 0xfffffc08')
        a.e('s_add_u32 s86, s86, s85')
        for r in range(224):
            a.e(f'v_mov_b32 v{s.ACC+r}, 0')
    def kof(s, s_, P): return 2 * s_ + (-1, 0, 0, 1)[P]
    def ev_ins(s, e):
        L = []
        if e[0] == 'D':
            if e[2] % 4 == 0: L.append(s.m0set(e[2]))
            L.append(s.dma(e[2], s.DV))
            if e[2] == 7: L += s.dma_adv()
        elif e[0] == 'Z':
            fl = ['', ' sc1'][opt('ps', 0) - 1]
            u = e[2]
            if u < 3: L = [f'buffer_store_dwordx4 v[24:27], v{s.VT}, s[36:39], s88 offen offset:{1024*u}{fl}']
            else: L = [f'buffer_store_dwordx2 v[24:25], v{s.VT}, s[36:39], s89 offen{fl}', 's_add_u32 s88, s88, 114688', 's_add_u32 s89, s89, 114688']
        elif e[0] == 'Q':
            L = [f'buffer_store_dwordx4 v[24:27], v{s.VT}, s[44:47], s99 offen', 's_add_u32 s99, s99, 1024']
        elif e[0] == 'V':
            L = ['s_mov_b32 m0, s89', 'buffer_load_dwordx4 v28, s[68:71], s72 offen lds', 's_add_u32 s72, s72, 32768', 's_add_u32 s89, s89, 1024']
        elif e[0] == 'C':
            L = ['global_load_dword v22, v23, s[78:79]', f's_cmp_ge_u32 s84, {opt("cpt", 5)}', 's_cselect_b32 s99, -1, 0', 'v_and_b32 v23, s99, v24']
        elif e[0] == 'Y':
            L = ['buffer_load_dword v22, v21, s[44:47], s88 offen', 's_add_u32 s88, s88, 1024']
        else:
            L.append(s.tok(e[1], e[2]))
            if e[2] == 3: L.append('s_add_u32 s82, s82, 4096')
        return L
    def main(s):
        a = s.a
        S = s.S = Sched()
        for s_ in range(-4, 8):
            for P in range(4):
                S.mark((s_, P))
                k = s.kof(s_, P) + s.ND - 1
                t0 = 2 if P in (0, 2) else 0
                S.add([('D', s_ + 2, 2 * P), ('T', k, t0), ('D', s_ + 2, 2 * P + 1), ('T', k, t0 + 1)])
                if opt('w2y', 1) and s_ % 2 == 0 and P == 1: S.add([('Y', s_, 0)])
                if opt('vev', 1) and s_ % 2 == 1 and P == 1: S.add([('V', s_, 0)])
                if opt('cpg', 1) and s_ % 2 == 1 and P == 3: S.add([('C', s_, 0)])
                if opt('psx', 0) and P == 2 and s_ & 1: S.add([('Q', s_, 0)])
                if opt('ps', 0) and P in (1, 3): S.add([('Z', s_, 2 * (s_ & 1) + (P >> 1))])
        vm_bar = min(S.younger(('D', 4), (4, 0)), S.younger(('D', 5), (5, 0)))
        vm_p1 = min(S.younger(('T', 8), (4, 1)), S.younger(('T', 10), (5, 1)))
        vm_p3 = min(S.younger(('T', 9), (4, 3)), S.younger(('T', 11), (5, 3)))
        if opt('w2y', 1):
            a.e('s_mul_i32 s56, s2, 28672')
            a.e(f's_mul_i32 s57, s{S_W}, 7168')
            a.e('s_add_u32 s56, s56, s57')
            srd(a, 44, P_W2, 7168, 0, 56)
            a.e('v_min_u32 v21, 8, v2')
            a.e('v_lshlrev_b32 v21, 7, v21')
            a.e('s_mov_b32 s88, 0')
        a.e(f's_lshl_b32 s56, s80, {5+fsh()}')
        a.e(f's_add_u32 s56, s56, {F2}')
        if opt('psx', 0):
            srd(a, 44, P_WS, 8 * MB, WS_XP)
            a.e('s_lshl_b32 s99, s2, 2')
            a.e(f's_add_u32 s99, s99, s{S_W}')
            a.e('s_lshl_b32 s99, s99, 13')
        if opt('ps', 0):
            a.e('s_mov_b32 s88, s85')
            a.e('s_mov_b32 s89, s86')
            for r in range(4): a.e(f'v_mov_b32 v{24+r}, 0')
        a.e('s_add_u32 s89, s73, 98304')
        if opt('cpg', 1):
            a.e('s_getpc_b64 s[78:79]')
            a.e('L_pcg:')
            a.e(f's_lshl_b32 s77, s{S_W}, 13')
            a.e('s_add_u32 s77, s77, L_g1epi-L_pcg')
            a.e('v_lshl_add_u32 v24, v2, 7, s77')
            a.e('v_min_u32 v24, L_end-L_pcg, v24')
            a.e('v_mov_b32 v23, 0')
        a.e('s_mov_b32 s82, 0')
        a.e('s_mov_b32 s83, 0')
        a.e('s_mov_b32 s84, 0')
        for t in range(6):
            for l in s.rd(0, t): a.e(l)
        stamp(a, 10)
        d1 = [('D', 1, i) for i in range(8)]
        for e in d1:
            for l in s.ev_ins(e):
                a.e(l)
                if 'm0' in l: a.e('s_nop 0')
        a.e('s_waitcnt lgkmcnt(12)')
        wait_flags(a, 56, 19, 20)
        stamp(a, 11)
        pro = d1 + [e for e in S.ev[:S.marks[(0, 0)]] if e[1] >= 0 and e[0] == 'T'] + [('X', i, 0) for i in range(4)]
        for e in pro[8:] + S.ev[S.marks[(0, 0)]:S.marks[(0, 1)]]:
            if e[0] == 'X':
                a.e(f'buffer_store_dwordx4 a[{92+4*e[1]}:{95+4*e[1]}], v{s.VT}, s[40:43], s96 offen offset:{1024*e[1]} sc1')
                continue
            for l in s.ev_ins(e):
                a.e(l)
                if 'm0' in l: a.e('s_nop 0')
        act = pro + S.ev[S.marks[(0, 0)]:]
        off = len(pro) - S.marks[(0, 0)]
        s.startup = {}
        need = -1
        for s_ in range(0, 6):
            for P, tags, N in ((0, [('D', s_)], vm_bar), (1, [('T', 2 * s_)], vm_p1), (3, [('T', 2 * s_ + 1)], vm_p3)):
                if (s_, P) == (0, 0): continue
                site = S.marks[(s_, P)] + off
                for tg in tags:
                    idx = [i for i, e in enumerate(act) if e[:2] == tg]
                    if not idx: continue
                    if site - max(idx) - 1 < N: need = max(need, max(idx))
        if need >= 0:
            a.e(f's_waitcnt vmcnt({S.marks[(0, 1)] + off - need - 1})')
        a.e('s_branch L_g1_P1')
        s.snake = 0
        if opt('al', 1):
            a.raw('.p2align 6')
            for _ in range(opt('alo', 0)): a.e('s_nop 0')
        a.e('L_g1_loop:')
        for s_ in (4, 5):
            a.e(f's_add_u32 s83, s83, {G1_STG}')
            a.e('s_and_b32 s83, s83, 0x1ffff')
            a.e(f's_waitcnt vmcnt({vm_bar})')
            a.e('s_barrier')
            s.phase(s_, 0)
            if s_ == 4: a.e('L_g1_P1:')
            a.e(f's_waitcnt vmcnt({vm_p1})')
            s.phase(s_, 1)
            s.phase(s_, 2)
            a.e(f's_waitcnt vmcnt({vm_p3})')
            s.phase(s_, 3)
        a.e('s_add_u32 s84, s84, 1')
        a.e('s_cmp_lt_u32 s84, 8')
        a.e('s_cbranch_scc1 L_g1_loop')
        a.e('L_g1epi:')
        s.phase(6, 0, last=True)
        stamp(a, 12)
    def phase(s, s_, P, last=False):
        a = s.a; S = s.S
        kbuf = s.kof(s_, P) % s.ND
        mat = (P + 1) & 1
        items = []
        if not last:
            nxt = S.marks[(s_, P + 1)] if P < 3 else S.marks[(s_ + 1, 0)]
            items = [s.ev_ins(e) for e in S.ev[S.marks[(s_, P)]:nxt]]
        slots = [[] for _ in range(7)]
        for p_, it in zip([1, 2, 4, 5, 6], items): slots[p_] = it
        if P == 0 and not last:
            slots[0] = [f'v_add_u32 v{s.VR}, s83, v{s.VL}']
        for t in range(7):
            a.e(f's_waitcnt lgkmcnt({10 if not (last and t) else 12-2*t})')
            R = s.rd(P - 1, 6) if t == 0 else ([] if last else s.rd(P, t - 1))
            X = list(slots[t])
            pre = [x for x in X if 'm0' in x]
            X = [x for x in X if 'm0' not in x]
            gaps = [[] for _ in range(4)]
            if R: gaps[0] = pre + [R[0]]; gaps[1] = [R[1]]
            gaps[2] = X[:1]; gaps[3] = X[1:]
            order = [0, 1, 2, 3]
            if s.snake & 1: order.reverse()
            s.snake += 1
            for n, tm in enumerate(order):
                c = s.ACC + 4 * ((mat * 7 + t) * 4 + tm)
                tf = s.TF + 4 * (4 * kbuf + tm)
                if not opt('g1x') & 1: a.e(f'v_mfma_f32_16x16x32_bf16 v[{c}:{c+3}], a[{s.WF+4*t}:{s.WF+4*t+3}], a[{tf}:{tf+3}], v[{c}:{c+3}]')
                for x in gaps[n]:
                    if opt('g1x') & 2 and x.startswith('ds_'): continue
                    if opt('g1x') & 4 and x.startswith('buffer'): continue
                    a.e(x)
    def epilogue(s, g2):
        a = s.a
        L = Lin(a)
        a.e('s_mov_b32 s58, 0xbfb8aa3b')
        a.e('s_mov_b32 s59, 0xbfb8aa3b')
        g2.early(L)
        T = 8
        k = 0
        for tm in range(4):
            for u in range(4):
                O = (20, 24)[k & 1]
                fill = g2.epi_fill(k)
                def F(n=1):
                    for _ in range(n):
                        if fill: fill.pop(0)()
                tiles = [2 * u, 2 * u + 1] if u < 3 else [6]
                gs = []; us = []
                for t in tiles:
                    gs += [s.ACC + 4 * (t * 4 + tm), s.ACC + 4 * (t * 4 + tm) + 2]
                    us += [s.ACC + 4 * ((7 + t) * 4 + tm), s.ACC + 4 * ((7 + t) * 4 + tm) + 2]
                n = len(gs)
                nins = 9 * n
                cnt = [0]; ev_ = max(1, nins // (len(fill) + 1))
                def V(t):
                    a.e(t); cnt[0] += 1
                    if cnt[0] % ev_ == 0: F(1)
                for q in range(n): V(f'v_pk_mul_f32 v[{T+2*q}:{T+2*q+1}], v[{gs[q]}:{gs[q]+1}], s[58:59]')
                for q in range(2 * n): V(f'v_exp_f32 v{T+q}, v{T+q}')
                for q in range(n): V(f'v_pk_add_f32 v[{T+2*q}:{T+2*q+1}], v[{T+2*q}:{T+2*q+1}], 1.0 op_sel_hi:[1,0]')
                for q in range(2 * n): V(f'v_rcp_f32 v{T+q}, v{T+q}')
                for q in range(n): V(f'v_pk_mul_f32 v[{gs[q]}:{gs[q]+1}], v[{gs[q]}:{gs[q]+1}], v[{us[q]}:{us[q]+1}]')
                for q in range(n): V(f'v_pk_mul_f32 v[{T+2*q}:{T+2*q+1}], v[{T+2*q}:{T+2*q+1}], v[{gs[q]}:{gs[q]+1}]')
                for q in range(n): V(f'v_cvt_pk_bf16_f32 v{O+q}, v{T+2*q}, v{T+2*q+1}')
                if u < 3:
                    L.v('st', f'buffer_store_dwordx4 v[{O}:{O+3}], v{s.VT}, s[36:39], s85 offen offset:{1024*u}' + hfl())
                else:
                    L.v('st', f'buffer_store_dwordx2 v[{O}:{O+1}], v{s.VT}, s[36:39], s86 offen' + hfl())
                F(len(fill))
                k += 1
            if tm < 3:
                a.e('s_add_u32 s85, s85, 114688')
                a.e('s_add_u32 s86, s86, 114688')
        a.e(f's_lshl_b32 s87, s91, {fsh()}')
        a.e(f's_add_u32 s87, s87, {F3}')
        stamp(a, 13)
        a.e('L_g2code:')
        g2.post_epilogue()
        signal(a, 87, 5, waitfn=lambda: L.wait(vm=('st',)), wb=(opt('hfl') == 4))
        stamp(a, 18)

class G2:
    ACC, TF, DV, VT, RJ, TR, V1, VO, VF = 32, 96, 28, 16, 3, 8, 12, 13, 14
    REG = 40960
    def __init__(s, a): s.a = a
    def wreg(s, k, j):
        if k < 16: return 'a', 128 + 8 * k + 4 * j
        if k < 32: return 'a', 8 * (k - 16) + 4 * j
        NB = opt('nb', 12); nv = (160 - 4 * NB) // 8
        if k < 32 + nv: return 'v', 96 + 4 * NB + 8 * (k - 32) + 4 * j
        return 'a', 128 + 8 * (k - 32 - nv) + 4 * j
    def front_setup(s):
        a = s.a
        a.e('s_and_b32 s76, s2, 1')
        a.e('s_lshr_b32 s56, s2, 3')
        if opt('g2map', 1):
            a.e('s_bfe_u32 s74, s2, 0x10001')
            a.e('s_lshl_b32 s74, s74, 3')
            a.e('s_and_b32 s57, s56, 7')
            a.e('s_add_u32 s74, s74, s57')
            a.e('s_bfe_u32 s75, s2, 0x10002')
            a.e('s_lshl_b32 s75, s75, 2')
            a.e('s_lshr_b32 s57, s56, 3')
            a.e('s_add_u32 s75, s75, s57')
        else:
            a.e('s_bfe_u32 s74, s2, 0x20001')
            a.e('s_lshl_b32 s74, s74, 2')
            a.e('s_and_b32 s57, s56, 3')
            a.e('s_add_u32 s74, s74, s57')
            a.e('s_lshr_b32 s75, s56, 2')
        a.e('v_lshrrev_b32 v252, 2, v2')
        a.e('v_lshlrev_b32 v253, 11, v252')
        a.e('v_lshrrev_b32 v254, 3, v2')
        a.e('v_xor_b32 v254, v254, v2')
        a.e('v_and_b32 v254, 2, v254')
        a.e('v_and_or_b32 v254, v2, 1, v254')
        a.e('v_lshl_add_u32 v248, v254, 4, v253')
        for i in range(1, 4):
            a.e(f'v_add_u32 v{248+i}, {i*(32768-1024)}, v248')
        a.e('s_mul_i32 s56, s76, 3670016')
        a.e('s_lshl_b32 s57, s75, 8')
        a.e('s_add_u32 s56, s56, s57')
        a.e(f's_lshl_b32 s57, s{S_W}, 6')
        a.e('s_add_u32 s56, s56, s57')
        srd(a, 68, P_W2, None, 0, 56)
        a.e('s_sub_u32 s70, 7340032, s56')
        a.e('s_mov_b32 s72, 0')
        a.e('v_lshlrev_b32 v252, 6, v252')
        a.e('v_bfe_u32 v253, v2, 4, 1')
        a.e('v_lshl_add_u32 v252, v253, 5, v252')
        a.e('v_and_b32 v253, 3, v2')
        a.e('v_lshl_add_u32 v252, v253, 3, v252')
        a.e(f's_lshl_b32 s73, s{S_W}, 13')
        a.e('s_add_u32 s73, s73, 32768')
        a.e('v_add_u32 v253, s73, v252')
        a.e('v_xor_b32 v254, 32, v253')
    def fcell(s, n): return (32768, 36864, 0, 4096, 98304, 102400)[n]
    def fD(s, pairs):
        a = s.a
        out = []
        for c, n in pairs:
            out.append(lambda n=n: a.e(f's_add_u32 m0, s73, {s.fcell(n)}'))
            for i in range(4):
                def f(i=i):
                    a.e(f'buffer_load_dwordx4 v{248+i}, s[68:71], s72 offen offset:{1024*i} lds')
                    if i == 3: a.e('s_add_u32 s72, s72, 131072')
                out.append(f)
        return out
    def fM(s, pairs, base=253, sub=0):
        a = s.a
        for c, n in pairs:
            for kk in range(2):
                for j in range(2):
                    for h in range(2):
                        r, q = s.wreg(2 * c + kk, j)
                        a.e(f'ds_read_b64_tr_b16 {r}[{q+2*h}:{q+2*h+1}], v{base+j} offset:{s.fcell(n)-sub+2048*kk+1024*h}')
    def front_save(s):
        a = s.a
        for i in range(4): a.e(f'v_mov_b32 v{s.DV+i}, v{248+i}')
        a.e('v_mov_b32 v7, v252')
    def early(s, L):
        a = s.a; s.L = L
        a.e('s_mov_b32 s80, s74')
        a.e('s_mov_b32 s81, s75')
        a.e('s_mov_b32 s82, s76')
        a.e(f's_mul_i32 s98, s{S_W}, {s.REG}')
        a.e(f'v_add_u32 v{s.RJ}, s98, v7')
        a.e(f'v_xor_b32 v{s.RJ+1}, 32, v{s.RJ}')
        a.e('s_add_u32 s56, s73, 98304')
        a.e('v_add_u32 v5, s56, v7')
        a.e('v_xor_b32 v6, 32, v5')
        a.e('s_waitcnt vmcnt(0)')
        s.fM([(6, 4), (7, 5)], base=5, sub=98304)
        if opt('ne', 0):
            a.e('s_waitcnt lgkmcnt(0)')
            a.e('s_barrier')
        if opt('cpf2', 0): code_pf(a, 'L_g2code', 'L_end', 17, lambda t: L.v('cp', t))
        s.cell = {}
        s.free = list(range(10))
    def D(s, c):
        L = s.L
        def first():
            s.cell[c] = s.free.pop(0)
            L.e(f's_add_u32 m0, s98, {4096*s.cell[c]}')
        out = [first]
        for i in range(4):
            out.append(lambda i=i: L.v(('W', c), f'buffer_load_dwordx4 v{s.DV+i}, s[68:71], s72 offen offset:{1024*i} lds'))
        out.append(lambda: L.e('s_add_u32 s72, s72, 131072'))
        return out
    def M(s, c):
        L = s.L
        out = []
        for kk in range(2):
            for j in range(2):
                for h in range(2):
                    def f(kk=kk, j=j, h=h):
                        r, n = s.wreg(2 * c + kk, j)
                        L.l(('M', c), f'ds_read_b64_tr_b16 {r}[{n+2*h}:{n+2*h+1}], v{s.RJ+j} offset:{4096*s.cell[c]+2048*kk+1024*h}')
                    out.append(f)
        return out
    def Wv(s, c): return [lambda: s.L.wait(vm=(('W', c),))]
    def Fr(s, cs):
        def f():
            s.L.wait(lg0=True)
            for c in cs: s.free.append(s.cell[c])
        return [f]
    def epi_fill(s, k):
        D, M, Wv, Fr = s.D, s.M, s.Wv, s.Fr
        def cat(*xs): return [y for x in xs for y in x]
        ne = opt('ne', 0)
        if k == 0: s.A = cat(*[D(c) for c in range(8, 8 + ne)])
        if k == 0 or k % 4 == 3: return []
        n = -(-6 * ne // 11)
        out, s.A = s.A[:n], s.A[n:]
        return out
    def post_epilogue(s):
        a = s.a; L = s.L
        assert not s.A
        s.NA = 8 + opt('ne', 0) + opt('na', 4)
        if not opt('ne', 0):
            a.e('s_waitcnt lgkmcnt(0)')
            a.e('s_barrier')
        a.inject([f for c in range(8 + opt('ne', 0), s.NA) for f in s.D(c)], 4)
        a.e(f'v_mov_b32 v{s.TR}, v{s.VT}')
        for q in range(1, 4):
            a.e(f'v_add_u32 v{s.TR+q}, {q*s.REG}, v{s.VT}')
        a.e(f'v_add_u32 v{s.V1}, {114688-2048}, v{s.VT}')
        for r in range(64):
            a.e(f'v_mov_b32 v{s.ACC+r}, 0')
        a.flush_inject()
        a.e('s_lshl_b32 s56, s80, 3')
        a.e(f's_lshl_b32 s57, s{S_W}, 1')
        a.e('s_lshl_b32 s58, s82, 2')
        a.e('s_xor_b32 s57, s57, s58')
        a.e('s_add_u32 s56, s56, s57')
        a.e('s_lshr_b32 s83, s56, 4')
        a.e('s_bfe_u32 s84, s56, 0x20002')
        hf_base(a, 57, 83, 84, 58)
        a.e('s_and_b32 s56, s56, 3')
        a.e('s_mul_i32 s56, s56, 114688')
        a.e('s_add_u32 s57, s57, s56')
        a.e('s_mul_i32 s58, s82, 57344')
        a.e('s_add_u32 s57, s57, s58')
        srd(a, 32, P_WS, 114688 + 57344, 0, 57)
        a.e('v_and_b32 v5, 15, v2')
        a.e('v_lshlrev_b32 v5, 11, v5')
        a.e('v_lshrrev_b32 v6, 4, v2')
        a.e(f'v_lshl_add_u32 v{s.VO}, v6, 3, v5')
        a.e('s_lshl_b32 s85, s80, 18')
        a.e('s_lshl_b32 s57, s82, 17')
        a.e('s_add_u32 s85, s85, s57')
        a.e('s_lshl_b32 s57, s81, 8')
        a.e('s_add_u32 s85, s85, s57')
        a.e(f's_lshl_b32 s57, s{S_W}, 6')
        a.e('s_add_u32 s85, s85, s57')
        a.e(f'v_and_b32 v{s.VF}, 31, v2')
        a.e(f'v_lshlrev_b32 v{s.VF}, {fsh()}, v{s.VF}')
    def main(s):
        a = s.a; L = s.L
        a.e('s_lshr_b32 s56, s80, 1')
        a.e(f's_lshl_b32 s56, s56, {5+fsh()}')
        a.e(f's_add_u32 s56, s56, {F3}')
        srd(a, 44, P_WS, 4 * MB, WS_H)
        a.e('s_mov_b32 s84, 0')
        L.wait(vm0=True)
        for c in range(8, s.NA):
            for f in s.M(c): f()
        for f in s.Fr(range(8, s.NA)): f()
        wait_flags(a, 56, s.VF, 20)
        stamp(a, 14)
        NS = 28
        slot = {}
        def TD(st):
            slot[st] = s.free.pop(0)
            out = [lambda: L.e(f's_add_u32 m0, s98, {4096*slot[st]}')]
            for i in range(4):
                v = s.VT if i < 2 else s.V1
                out.append(lambda i=i, v=v: L.v(('T', st), f'buffer_load_dwordx4 v{v}, s[32:35], s84 offen offset:{1024*i} sc1 lds'))
            out.append(lambda: (L.e('s_add_u32 s84, s84, 2048'), issued.add(st)))
            return out
        issued = set()
        NB = opt('nb', 12); KV = 32 + (160 - 4 * NB) // 8
        nxt = 0
        wc = opt('wc', 4)
        wfree, s.free = s.free[-wc:], s.free[:-wc]
        for _ in range(opt('t0', 3)):
            fs = TD(nxt); fs[0](); a.e('s_nop 0')
            for f in fs[1:]: f()
            nxt += 1
        L.wait(vm=(('T', 0),))
        a.e('s_barrier')
        X = opt('tx', 12)
        seq = [(k, tm) for k in range(56 - X) for tm in range(8)]
        seq += [(k, tm) for k in range(56 - X, 56) for tm in range(4, 8)]
        nS = len(seq)
        seq += [(k, tm) for k in range(56 - X, 56) for tm in range(4)]
        last_use = {}
        for g_, (k, tm) in enumerate(seq): last_use[k >> 1] = g_
        rdn = [0]
        def RDnext():
            if rdn[0] < 448:
                k, tm = seq[rdn[0]]
                f = s.TF + 4 * (rdn[0] % NB)
                L.l(('R', rdn[0]), f'ds_read_b128 v[{f}:{f+3}], v{s.TR+(tm>>1)} offset:{4096*slot[k>>1]+2048*(tm&1)+1024*(k&1)}')
                rdn[0] += 1
        for _ in range(NB - 1): RDnext()
        todo = list(range(s.NA, 28)); fly = []; pend = []; freed = set(); vis = 0; wseen = set()
        assert NB - 1 <= 16
        HR = 192
        a.e('s_lshl_b32 s56, s2, 2')
        a.e(f's_add_u32 s56, s56, s{S_W}')
        a.e('s_lshl_b32 s57, s56, 13')
        a.e('s_xor_b32 s58, s57, 0x8000')
        a.e('s_lshl_b32 s56, s56, 6')
        a.e(f's_add_u32 s56, s56, {F4}')
        a.e('s_xor_b32 s59, s56, 0x100')
        srd(a, 40, P_WS, 8 * MB, WS_XP)
        srd(a, 48, P_OUT, 4 * MB)
        a.e('s_add_u32 s87, s57, 4096')
        a.e('s_add_u32 s88, s58, 4096')
        a.e('v_mov_b32 v20, 0')
        a.e(f'v_mov_b32 v21, s{S_NONCE}')
        def flag_store():
            L.wait(vm=('xs',))
            stamp(a, 16)
            a.e('s_mov_b64 exec, 1')
            L.v('fl', f'buffer_store_dword v21, v20, s[{S_FLG}:{S_FLG+3}], s56 offen sc1')
            a.e('s_mov_b64 exec, -1')
        gF = nS + opt('tf', 48) * (448 - nS) // 64 if X else None
        for u in range(56):
            k0 = seq[8 * u][0]
            fill = []
            if opt('g2st') and u in (0, 4, 16, 32, 48):
                a.e('s_memtime s[66:67]'); a.e('s_waitcnt lgkmcnt(0)'); L.lg = []
                a.e(f'v_writelane_b32 v1, s66, {26 + (0, 4, 16, 32, 48).index(u)}')
            if s.free and nxt < NS and (u & 1 or u < 8 or not todo or len(s.free) > 1):
                fill += TD(nxt); nxt += 1
                if not todo and not fly and s.free and nxt < NS:
                    fill += TD(nxt); nxt += 1
            if not u & 1 and u >= opt('wk0', 4):
                if fly and u >= fly[0][1] + opt('wlat', 6):
                    c = fly.pop(0)[0]
                    assert 2 * c + 1 < KV or u >= 2 * c + 2 - KV
                    fill += s.Wv(c) + s.M(c)
                    pend.append(c)
                if todo and wfree:
                    c = todo.pop(0)
                    fs = s.D(c)
                    s.cell[c] = wfree.pop(0)
                    fill += [lambda c=c: L.e(f's_add_u32 m0, s98, {4096*s.cell[c]}')] + fs[1:]
                    fly.append((c, u))
            if 8 * u == nS and X:
                for q in range(8):
                    c = s.ACC + 32 + 4 * q
                    fill.append(lambda q=q, c=c: L.v('xs', f'buffer_store_dwordx4 v[{c}:{c+3}], v{s.VT}, s[40:43], s{57 if q < 4 else 87} offen offset:{1024*(q&3)} sc1'))
            if u == 52:
                for tm in range(4):
                    for j in range(2):
                        def f(tm=tm, j=j):
                            if j == 0 and tm: L.e(f's_add_u32 s86, s85, {32768*tm}')
                            r = 4 + 0
                            L.v('h', f'buffer_load_dwordx2 a[{4*tm+2*j}:{4*tm+2*j+1}], v{s.VO}, s[44:47], s{86 if tm else 85} offen offset:{32*j} sc1')
                        fill.append(f)
            per = -(-(len(fill) + 1) // 8)
            SS = opt('ss', 1)
            for i in range(8):
                g_ = 8 * u + i
                k, tm = seq[g_]
                if rdn[0] < 448 and seq[rdn[0]][0] >> 1 > vis:
                    q = seq[rdn[0]][0] >> 1
                    vis = min(NS - 1, q + SS - 1) if q > 1 else q
                    assert vis in issued, (u, i, vis)
                    L.wait(vm=(('T', vis),))
                    a.e('s_barrier')
                    for q2 in list(slot):
                        if q2 not in freed and last_use[q2] < g_:
                            freed.add(q2); s.free.append(slot[q2])
                need = [('R', g_)]
                if k >> 1 not in wseen:
                    wseen.add(k >> 1)
                    assert k >> 1 not in todo and all(c != k >> 1 for c, _ in fly), (k, u)
                    need.append(('M', k >> 1))
                if g_ == gF: flag_store()
                L.wait(lg=need)
                order = [0, 1] if g_ % 2 == 0 else [1, 0]
                for n, j in enumerate(order):
                    r, w = s.wreg(k, j)
                    c = s.ACC + 4 * (2 * tm + j)
                    tf = s.TF + 4 * (g_ % NB)
                    if not opt('g2x') & 1:
                        a.e(f'v_mfma_f32_16x16x32_bf16 v[{c}:{c+3}], {r}[{w}:{w+3}], v[{tf}:{tf+3}], v[{c}:{c+3}]')
                    if n == 0:
                        RDnext()
                    else:
                        for _ in range(per):
                            if fill:
                                fill.pop(0)()
                                if 'm0' in a.lines[-1]: break
            while fill:
                if 'm0' in a.lines[-1]: a.e('s_nop 0')
                fill.pop(0)()
            for c in list(pend):
                if not any(x == ('M', c) for x in L.lg):
                    pend.remove(c)
                    (wfree if todo else s.free).append(s.cell[c])
            if not todo and wfree and not fly and not pend:
                s.free += wfree; wfree = []
        assert not todo and not fly and not pend and nxt == NS
        stamp(a, 15)
        if not X:
            a.e('s_nop 7')
            for q in range(8):
                c = s.ACC + 32 + 4 * q
                L.v('xs', f'buffer_store_dwordx4 v[{c}:{c+3}], v{s.VT}, s[40:43], s{57 if q < 4 else 87} offen offset:{1024*(q&3)} sc1')
            flag_store()
        wait_flags(a, 59, 20, 22, solo=0)
        stamp(a, 17)
        P1 = 96
        for q in range(8):
            a.e(f'buffer_load_dwordx4 v[{P1+4*q}:{P1+4*q+3}], v{s.VT}, s[40:43], s{58 if q < 4 else 88} offen offset:{1024*(q&3)} sc1')
        H = 208
        for q in range(16):
            a.e(f'v_accvgpr_read_b32 v{HR+q}, a{q}')
        for q in range(16):
            unpack(a, H + 2 * q, H + 2 * q + 1, HR + q)
        for q in range(8):
            tm, j = q >> 1, q & 1
            if j == 0 and tm: a.e(f's_add_u32 s85, s85, 32768')
            a.e('s_waitcnt vmcnt(7)')
            c = s.ACC + 4 * q
            for e in range(2):
                x = c + 2 * e; y = P1 + 4 * q + 2 * e; h = H + 4 * q + 2 * e
                a.e(f'v_pk_add_f32 v[{x}:{x+1}], v[{x}:{x+1}], v[{y}:{y+1}]')
                a.e(f'v_cvt_pk_bf16_f32 v{y}, v{x}, v{x+1}')
                unpack(a, x, x + 1, y)
                a.e(f'v_pk_add_f32 v[{x}:{x+1}], v[{x}:{x+1}], v[{h}:{h+1}]')
                a.e(f'v_cvt_pk_bf16_f32 v{192+2*q+e}, v{x}, v{x+1}')
            a.e(f'buffer_store_dwordx2 v[{192+2*q}:{192+2*q+1}], v{s.VO}, s[48:51], s85 offen offset:{32*j}' + ['', ' sc1', ' nt', ' sc0 sc1'][opt('ofl')])
        LIN[0] = None

def gen_dg(a):
    d = opt('dg'); F, ia, ib = d // 10000, d // 100 % 100, d % 100
    m = opt('dgm')
    a.raw('.globl dg_kernel\n.p2align 8\n.type dg_kernel,@function\ndg_kernel:')
    a.e('s_load_dwordx2 s[10:11], s[0:1], 96')
    a.e('s_memrealtime s[12:13]')
    a.e('s_waitcnt lgkmcnt(0)')
    a.e(f's_add_u32 s10, s10, {STAMP_BASE + opt("dgw", 0) * 128:#x}')
    a.e('s_addc_u32 s11, s11, 0')
    if not m:
        a.e(f's_load_dword s4, s[10:11], {4*ia}')
        a.e(f's_load_dword s5, s[10:11], {4*ib}')
        a.e('s_waitcnt lgkmcnt(0)')
    else:
        a.e('s_mov_b32 s20, s10\ns_mov_b32 s21, s11\ns_mov_b32 s22, 0x20000\ns_mov_b32 s23, 0x20000')
        a.e('v_lshlrev_b32 v1, 7, v0')
        for i in range(16):
            a.e(f's_mov_b32 s6, {i*8192}')
            a.e(f'buffer_load_dword v{8+i}, v1, s[20:23], s6 offen offset:{4*ia}')
            a.e(f'buffer_load_dword v{24+i}, v1, s[20:23], s6 offen offset:{4*ib}')
        a.e('s_waitcnt vmcnt(0)')
        for i in range(32):
            a.e(f'v_sub_u32 v{8+i}, s12, v{8+i}')
        opa = 'v_max_u32' if m != 3 else 'v_add_u32'
        opb = {1: 'v_min_u32', 2: 'v_max_u32', 3: 'v_add_u32'}[m]
        for i in range(1, 16):
            a.e(f'{opa} v8, v8, v{8+i}')
            a.e(f'{opb} v24, v24, v{24+i}')
        a.e('s_nop 1')
        a.e('v_readlane_b32 s4, v8, 0')
        a.e('v_readlane_b32 s5, v24, 0')
        sa = 's_max_u32' if m != 3 else 's_add_u32'
        sb = {1: 's_min_u32', 2: 's_max_u32', 3: 's_add_u32'}[m]
        for l in range(1, 64):
            a.e(f'v_readlane_b32 s6, v8, {l}')
            a.e(f'v_readlane_b32 s7, v24, {l}')
            a.e('s_nop 0')
            a.e(f'{sa} s4, s4, s6')
            a.e(f'{sb} s5, s5, s7')
        a.e('s_sub_u32 s5, s4, s5')
        if m == 3: a.e('s_lshr_b32 s5, s5, 10')
        a.e('s_mov_b32 s4, 0')
        a.e('s_memrealtime s[12:13]')
        a.e('s_waitcnt lgkmcnt(0)')
    a.e('s_sub_u32 s4, s5, s4')
    a.e('s_min_u32 s4, s4, 10000')
    a.e(f's_mul_i32 s4, s4, {F}')
    a.e('L_dg:')
    a.e('s_memrealtime s[14:15]')
    a.e('s_waitcnt lgkmcnt(0)')
    a.e('s_sub_u32 s5, s14, s12')
    a.e('s_cmp_lt_u32 s5, s4')
    a.e('s_cbranch_scc1 L_dg')
    a.e('s_endpgm')

def build():
    a = Asm()
    hdr = open('cdna_kernels/' + NAME + '.s.ref').read().split('\n')
    cm = [l for l in hdr if l.startswith(';') and '@launch' not in l and 'Override launch' not in l and 'grid=ceil' not in l]
    out = '\n'.join(cm) + '\n'
    if opt('aslist') or opt('dg'):
        out += f'; @launch kernel={KNAME} grid=(256,1,1) block=(256,1,1) lds=163840\n'
        if opt('dg'): out += '; @launch kernel=dg_kernel grid=(1,1,1) block=(64,1,1) lds=0\n'
    else:
        out += '; @launch grid=(256,1,1) block=(256,1,1) lds=163840\n'
    a.raw('.amdgcn_target "amdgcn-amd-amdhsa--gfx950"')
    a.raw('.text')
    gen(a)
    if opt('dg'): gen_dg(a)
    body = a.text()
    errs = check_hazards(body)
    errs += check_waits(body, KNAME, loop_iters=2, take_fwd=('L_nonce_ok', 'L_nonce_skip', 'L_clean_skip') + tuple(f'L_sig{i}' for i in range(20)) + tuple(f'L_poll{i}x' for i in range(20)))
    errs += check_waits(body, KNAME, loop_iters=2, take_fwd=('L_nonce_ok',) + (() if opt('solo', 1) else tuple(f'L_poll{i}x' for i in range(20))))
    for e in errs[:8]: print(e, file=sys.stderr)
    na = 256
    out += body + f'''.section .rodata,"a"
.p2align 6
.amdhsa_kernel {KNAME}
  .amdhsa_next_free_vgpr {256+na}
  .amdhsa_next_free_sgpr 102
  .amdhsa_accum_offset 256
  .amdhsa_group_segment_fixed_size 0
  .amdhsa_kernarg_size 104
  .amdhsa_user_sgpr_count 2
  .amdhsa_user_sgpr_kernarg_segment_ptr 1
  .amdhsa_system_sgpr_workgroup_id_x 1
  .amdhsa_float_denorm_mode_32 3
.end_amdhsa_kernel
'''
    if opt('dg'):
        out += '''.p2align 6
.amdhsa_kernel dg_kernel
  .amdhsa_next_free_vgpr 48
  .amdhsa_next_free_sgpr 32
  .amdhsa_accum_offset 48
  .amdhsa_group_segment_fixed_size 0
  .amdhsa_kernarg_size 104
  .amdhsa_user_sgpr_count 2
  .amdhsa_user_sgpr_kernarg_segment_ptr 1
  .amdhsa_system_sgpr_workgroup_id_x 1
.end_amdhsa_kernel
'''
    return out, errs

if __name__ == '__main__':
    outp = sys.argv[1]
    for kv in sys.argv[2:]:
        k, v = kv.split('=')
        OPT[k] = int(v)
    t, errs = build()
    open(outp, 'w').write(t)
    print('written', outp, len(t), 'bytes;', len(errs), 'checker errors')
```

```python
import sys, os
from asmlib import *

NAME = 'sequential_preLN__ssm_conv_h3__glu_gated_swiglu__prompt'
KNAME = NAME + '_kernel'
MB = 1 << 20
WS0 = int(os.environ.get('WS0', '0')) * MB
WS_UB, WS_Y2, WS_H, WS_HNF, WS_HF, WS_XP, WS_FLG = [WS0 + x * MB for x in (0, 4, 8, 12, 16, 32, 40)]
STAMP_BASE = 64 * MB
OPT = {}
def opt(k, d=0): return OPT.get(k, d)

P_Q, P_K, P_V, P_SH, P_SSMK, P_D, P_X, P_W1, P_W3, P_W2, P_OUT, P_DBG, P_WS = [4 + 2 * i for i in range(13)]
S_W, S_NONCE, S_MASK = 30, 31, 90
S_FLG = 92
F0, F1, F2, F3, F4 = 0, 32768, 65536, 98304, 131072
FLG_SIZE = 262144
LDS_KA = 98304
KA_REG = 13056
NSTAMP = 20
AST = 128

def srd(a, d, p, size, add=0, addreg=None):
    if add or addreg is not None:
        if add:
            a.e(f's_add_u32 s{d}, s{p}, {add:#x}')
            a.e(f's_addc_u32 s{d+1}, s{p+1}, 0')
            if addreg is not None:
                a.e(f's_add_u32 s{d}, s{d}, s{addreg}')
                a.e(f's_addc_u32 s{d+1}, s{d+1}, 0')
        else:
            a.e(f's_add_u32 s{d}, s{p}, s{addreg}')
            a.e(f's_addc_u32 s{d+1}, s{p+1}, 0')
    else:
        a.e(f's_mov_b32 s{d}, s{p}')
        a.e(f's_mov_b32 s{d+1}, s{p+1}')
    if size is not None:
        a.e(f's_mov_b32 s{d+2}, {size:#x}')
    a.e(f's_mov_b32 s{d+3}, 0x20000')

def stamp(a, i):
    if not opt('stamp'): return
    a.e('s_memrealtime s[60:61]')
    if i == 0: a.e('s_memtime s[62:63]')
    cy = {11: 20, 12: 21, 14: 22, 15: 23, 4: 24, 5: 25}.get(i)
    if cy: a.e('s_memtime s[66:67]')
    a.e('s_waitcnt lgkmcnt(0)')
    a.e(f'v_writelane_b32 v1, s60, {i}')
    if cy: a.e(f'v_writelane_b32 v1, s66, {cy}')
    if LIN[0]: LIN[0].lg = []

def stamp_out(a, n):
    if not opt('stamp'): return
    a.e('s_waitcnt vmcnt(0)')
    stamp(a, n - 1)
    a.e('s_memtime s[64:65]')
    a.e('s_waitcnt lgkmcnt(0)')
    srd(a, 32, P_WS, 1 * MB, STAMP_BASE)
    a.e('s_lshl_b32 s84, s2, 2')
    a.e(f's_add_u32 s84, s84, s{S_W}')
    a.e('s_lshl_b32 s84, s84, 7')
    a.e('s_sub_u32 s64, s64, s62')
    a.e('v_writelane_b32 v1, s64, 31')
    a.e('v_mbcnt_lo_u32_b32 v2, -1, 0')
    a.e('v_lshlrev_b32 v2, 2, v2')
    a.e('s_mov_b64 exec, 0xffffffff')
    a.e('buffer_store_dword v1, v2, s[32:35], s84 offen')

LIN = [None]
class Lin:
    def __init__(s, a): s.a = a; s.vm = []; s.lg = []; LIN[0] = s
    def e(s, t): s.a.e(t)
    def v(s, tag, t): s.a.e(t); s.vm.append(tag)
    def l(s, tag, t): s.a.e(t); s.lg.append(tag)
    def _n(s, q, tags, cap):
        idx = [i for i, x in enumerate(q) if x in tags]
        if not idx: return None
        n = len(q) - max(idx) - 1
        return min(n, cap)
    def wait(s, vm=(), lg=(), vm0=False, lg0=False):
        nv = 0 if vm0 else s._n(s.vm, vm, 63)
        nl = 0 if lg0 else s._n(s.lg, lg, 15)
        t = ''
        if nv is not None:
            t += f' vmcnt({nv})'; s.vm = s.vm[len(s.vm) - nv:] if nv else []
        if nl is not None:
            t += f' lgkmcnt({nl})'; s.lg = s.lg[len(s.lg) - nl:] if nl else []
        if t: s.a.e('s_waitcnt' + t)

def unpack(a, dlo, dhi, src):
    a.e(f'v_lshlrev_b32 v{dlo}, 16, v{src}')
    a.e(f'v_and_b32 v{dhi}, s{S_MASK}, v{src}')

def hfl():
    return [' sc1', ' sc0 sc1', ' sc1 nt', ' sc0 sc1 nt', ''][opt('hfl')]

def code_pf(a, lab_from, lab_to, vt, emit=None, n=1):
    _uid[0] += 1
    L = f'L_pc{_uid[0]}'
    a.e('s_getpc_b64 s[78:79]')
    a.e(f'{L}:')
    a.e(f's_lshl_b32 s77, s{S_W}, 13')
    a.e(f's_add_u32 s77, s77, {lab_from}-{L}')
    for i in range(n):
        if i: a.e('s_add_u32 s77, s77, 32768')
        a.e(f'v_lshl_add_u32 v{vt}, v2, 7, s77')
        a.e(f'v_min_u32 v{vt}, {lab_to}-{L}, v{vt}')
        t = f'global_load_dword v{vt+1+i}, v{vt}, s[78:79]'
        if emit: emit(t)
        else: a.e(t)

def hf_base(a, d, mb, q, t):
    if not opt('reuse', 0):
        a.e(f's_lshl_b32 s{d}, s{mb}, 2')
        a.e(f's_add_u32 s{d}, s{d}, s{q}')
        a.e(f's_mul_i32 s{d}, s{d}, 458752')
        a.e(f's_add_u32 s{d}, s{d}, {WS_HF:#x}')
        return
    a.e(f's_lshl_b32 s{d}, s{mb}, 1')
    a.e(f's_add_u32 s{d}, s{d}, s{q}')
    a.e(f's_mul_i32 s{d}, s{d}, 458752')
    a.e(f's_add_u32 s{d}, s{d}, {WS_HF:#x}')
    a.e(f's_lshl_b32 s{t}, s{mb}, 19')
    a.e(f's_cmp_eq_u32 s{q}, 1')
    a.e(f's_cselect_b32 s{d}, s{t}, s{d}')
    a.e(f's_add_u32 s{t}, s{t}, {WS_Y2 - WS_UB:#x}')
    a.e(f's_cmp_eq_u32 s{q}, 0')
    a.e(f's_cselect_b32 s{d}, s{t}, s{d}')

_uid = [0]
def signal(a, soff, vt, waitfn=None, wb=False):
    _uid[0] += 1
    L = f'L_sig{_uid[0]}'
    a.e(f'v_mov_b32 v{vt}, 0')
    a.e(f'v_mov_b32 v{vt+1}, s{S_NONCE}')
    a.e(f's_cmp_eq_u32 s{S_W}, 0')
    if waitfn: waitfn()
    else: a.e('s_waitcnt vmcnt(0)')
    a.e('s_barrier')
    a.e(f's_cbranch_scc0 {L}')
    if wb:
        a.e('buffer_wbl2 sc1')
        a.e('s_waitcnt vmcnt(0)')
    a.e('s_mov_b64 exec, 1')
    a.e(f'buffer_store_dword v{vt+1}, v{vt}, s[{S_FLG}:{S_FLG+3}], s{soff} offen sc1')
    a.e('s_mov_b64 exec, -1')
    a.e(f'{L}:')

def fsh():
    return opt('fs', 32).bit_length() - 1
def f1sh():
    return opt('f1s', 32).bit_length() - 1

def wait_flags(a, soff, voff, vd, n=64, solo=None):
    _uid[0] += 1
    L = f'L_poll{_uid[0]}'
    if solo is None: solo = opt('solo', 1)
    if solo:
        a.e(f's_cmp_lg_u32 s{S_W}, 0')
        a.e(f's_cbranch_scc1 {L}x')
    a.e(f'{L}:')
    if n == 256:
        if f1sh() == 2:
            a.e(f'buffer_load_dwordx4 v[{vd}:{vd+3}], v{voff}, s[{S_FLG}:{S_FLG+3}], s{soff} offen sc1')
        else:
            for i in range(4):
                a.e(f's_add_u32 s89, s{soff}, {i*(64<<f1sh())}')
                a.e(f'buffer_load_dword v{vd+i}, v{voff}, s[{S_FLG}:{S_FLG+3}], s89 offen sc1')
        a.e('s_waitcnt vmcnt(0)')
        a.e(f'v_xor_b32 v{vd}, s{S_NONCE}, v{vd}')
        a.e(f'v_xor_b32 v{vd+1}, s{S_NONCE}, v{vd+1}')
        a.e(f'v_xor_b32 v{vd+2}, s{S_NONCE}, v{vd+2}')
        a.e(f'v_xor_b32 v{vd+3}, s{S_NONCE}, v{vd+3}')
        a.e(f'v_or3_b32 v{vd}, v{vd}, v{vd+1}, v{vd+2}')
        a.e(f'v_or_b32 v{vd}, v{vd}, v{vd+3}')
        a.e(f'v_cmp_ne_u32 vcc, 0, v{vd}')
    else:
        a.e(f'buffer_load_dword v{vd}, v{voff}, s[{S_FLG}:{S_FLG+3}], s{soff} offen sc1')
        a.e('s_waitcnt vmcnt(0)')
        a.e(f'v_cmp_ne_u32 vcc, s{S_NONCE}, v{vd}')
    a.e('s_add_u32 s3, s3, 1')
    a.e(f's_cmp_gt_u32 s3, {opt("spin", 200000)}')
    a.e(f's_cbranch_scc1 {L}x')
    a.e(f's_cbranch_vccz {L}x')
    if opt('sleep'): a.e(f's_sleep {opt("sleep")}')
    a.e(f's_branch {L}')
    a.e(f'{L}x:')
    if solo: a.e('s_barrier')

def wave_sum2(a, va, vb, sa, sb):
    for mod in ('row_shr:1 row_mask:0xf bank_mask:0xf bound_ctrl:0', 'row_shr:2 row_mask:0xf bank_mask:0xf bound_ctrl:0',
                'row_shr:4 row_mask:0xf bank_mask:0xf bound_ctrl:0', 'row_shr:8 row_mask:0xf bank_mask:0xf bound_ctrl:0',
                'row_bcast:15 row_mask:0xa bank_mask:0xf', 'row_bcast:31 row_mask:0xc bank_mask:0xf'):
        a.e('s_nop 0')
        a.e(f'v_add_f32_dpp v{va}, v{va}, v{va} {mod}')
        a.e(f'v_add_f32_dpp v{vb}, v{vb}, v{vb} {mod}')
    a.e(f'v_readlane_b32 s{sa}, v{va}, 63')
    a.e(f'v_readlane_b32 s{sb}, v{vb}, 63')

def ln2(a, X, T, M, R, C, XM):
    def both(f):
        for r in range(2): f(r)
    for q in range(4):
        both(lambda r: a.e(f'v_pk_add_f32 v[{T[r]+2*q}:{T[r]+2*q+1}], v[{X[r]+4*q}:{X[r]+4*q+1}], v[{X[r]+4*q+2}:{X[r]+4*q+3}]'))
    both(lambda r: a.e(f'v_pk_add_f32 v[{T[r]}:{T[r]+1}], v[{T[r]}:{T[r]+1}], v[{T[r]+2}:{T[r]+3}]'))
    both(lambda r: a.e(f'v_pk_add_f32 v[{T[r]+4}:{T[r]+5}], v[{T[r]+4}:{T[r]+5}], v[{T[r]+6}:{T[r]+7}]'))
    both(lambda r: a.e(f'v_pk_add_f32 v[{T[r]}:{T[r]+1}], v[{T[r]}:{T[r]+1}], v[{T[r]+4}:{T[r]+5}]'))
    both(lambda r: a.e(f'v_add_f32 v{T[r]}, v{T[r]}, v{T[r]+1}'))
    wave_sum2(a, T[0], T[1], 56, 57)
    a.e('s_nop 0')
    both(lambda r: a.e(f'v_mul_f32 v{M[r]}, s{56+r}, v{C}'))
    both(lambda r: a.e(f'v_mov_b32 v{M[r]+1}, v{M[r]}'))
    for q in range(8):
        both(lambda r: a.e(f'v_pk_add_f32 v[{T[r]+2*q}:{T[r]+2*q+1}], v[{X[r]+2*q}:{X[r]+2*q+1}], v[{M[r]}:{M[r]+1}] neg_lo:[0,1] neg_hi:[0,1]'))
    both(lambda r: a.e(f'v_pk_mul_f32 v[{R[r]}:{R[r]+1}], v[{T[r]}:{T[r]+1}], v[{T[r]}:{T[r]+1}]'))
    for q in range(1, 8):
        both(lambda r: a.e(f'v_pk_fma_f32 v[{R[r]}:{R[r]+1}], v[{T[r]+2*q}:{T[r]+2*q+1}], v[{T[r]+2*q}:{T[r]+2*q+1}], v[{R[r]}:{R[r]+1}]'))
    both(lambda r: a.e(f'v_add_f32 v{R[r]}, v{R[r]}, v{R[r]+1}'))
    def rbf(v):
        a.e(f'v_cvt_pk_bf16_f32 v{v}, v{v}, v{v}')
        a.e(f'v_and_b32 v{v}, s{S_MASK}, v{v}')
    both(lambda r: rbf(M[r]))
    wave_sum2(a, R[0], R[1], 58, 59)
    both(lambda r: a.e(f'v_mov_b32 v{M[r]+1}, v{M[r]}'))
    both(lambda r: a.e(f'v_mul_f32 v{R[r]}, s{58+r}, v{C}'))
    both(lambda r: rbf(R[r]))
    both(lambda r: a.e(f'v_add_f32 v{R[r]}, 0x3727c5ac, v{R[r]}'))
    both(lambda r: rbf(R[r]))
    both(lambda r: a.e(f'v_sqrt_f32 v{R[r]}, v{R[r]}'))
    for q in range(2):
        both(lambda r: a.e(f'v_pk_add_f32 v[{XM[r]+2*q}:{XM[r]+2*q+1}], v[{X[r]+2*q}:{X[r]+2*q+1}], v[{M[r]}:{M[r]+1}] neg_lo:[0,1] neg_hi:[0,1]'))
    both(lambda r: rbf(R[r]))
    both(lambda r: a.e(f'v_rcp_f32 v{R[r]}, v{R[r]}'))
    for q in range(2, 8):
        both(lambda r: a.e(f'v_pk_add_f32 v[{XM[r]+2*q}:{XM[r]+2*q+1}], v[{X[r]+2*q}:{X[r]+2*q+1}], v[{M[r]}:{M[r]+1}] neg_lo:[0,1] neg_hi:[0,1]'))
    both(lambda r: a.e(f'v_mov_b32 v{R[r]+1}, v{R[r]}'))
    for q in range(8):
        both(lambda r: a.e(f'v_pk_mul_f32 v[{T[r]+2*q}:{T[r]+2*q+1}], v[{XM[r]+2*q}:{XM[r]+2*q+1}], v[{R[r]}:{R[r]+1}]'))

class Sched:
    def __init__(self): self.ev = []; self.marks = {}
    def mark(self, k): self.marks[k] = len(self.ev)
    def add(self, L): self.ev += L
    def younger(self, tag, at):
        last = max(i for i, e in enumerate(self.ev) if e[:2] == tag)
        assert last < self.marks[at], (tag, at)
        return self.marks[at] - last - 1

def gen(a):
    a.raw(f'.globl {KNAME}')
    a.raw('.p2align 8')
    a.raw(f'.type {KNAME},@function')
    a.raw(f'{KNAME}:')
    a.e('s_cmp_ge_u32 s2, 256')
    a.e('s_cbranch_scc1 L_end')
    a.e('s_load_dwordx8 s[4:11], s[0:1], 0')
    a.e('s_load_dwordx8 s[20:27], s[0:1], 64')
    a.e('s_load_dwordx2 s[28:29], s[0:1], 96')
    a.e('s_load_dwordx8 s[12:19], s[0:1], 32')
    a.e('s_memrealtime s[56:57]')
    a.e('v_lshrrev_b32 v1, 6, v0')
    a.e('v_and_b32 v2, 63, v0')
    a.e(f'v_readfirstlane_b32 s{S_W}, v1')
    a.e(f's_mov_b32 s{S_MASK}, 0xffff0000')
    a.e('s_mov_b32 s3, 0')
    a.e('s_bfe_u32 s82, s2, 0x30003')
    a.e('s_and_b32 s83, s2, 7')
    a.e('s_lshr_b32 s84, s2, 6')
    a.e('s_lshl_b32 s84, s84, 3')
    a.e('s_or_b32 s83, s83, s84')
    a.e('v_and_b32 v9, 7, v0')
    a.e('v_bfe_u32 v10, v0, 4, 1')
    a.e('v_lshl_add_u32 v1, v9, 1, v10')
    a.e('v_lshrrev_b32 v8, 5, v0')
    a.e('v_bfe_u32 v11, v0, 3, 1')
    a.e('v_lshl_add_u32 v8, v8, 1, v11')
    a.e('s_lshl_b32 s85, s83, 17')
    a.e('s_lshl_b32 s86, s82, 8')
    a.e('s_add_u32 s85, s85, s86')
    a.e('v_lshlrev_b32 v3, 13, v1')
    a.e('v_lshl_add_u32 v3, v8, 4, v3')
    a.e('v_add_u32 v3, s85, v3')
    a.e('v_add_u32 v4, 0xffffe800, v3')
    a.e('v_add_u32 v5, 0xfffff800, v3')
    a.e('v_add_u32 v6, 0x1000, v3')
    a.e('s_lshl_b32 s86, s82, 10')
    a.e('v_lshlrev_b32 v7, 6, v8')
    a.e('v_add_u32 v7, s86, v7')
    a.e('s_lshl_b32 s87, s82, 5')
    a.e('s_add_u32 s87, s87, s83')
    a.e('s_lshl_b32 s88, s87, 14')
    a.e('s_add_u32 s88, s88, 112')
    a.e('v_lshlrev_b32 v160, 10, v8')
    a.e('v_lshl_add_u32 v160, v10, 9, v160')
    a.e('v_lshlrev_b32 v161, 4, v9')
    a.e('v_sub_u32 v160, v160, v161')
    a.e('v_add_u32 v160, s88, v160')
    a.e(f's_lshl_b32 s87, s87, {fsh()}')
    a.e('v_mov_b32 v162, 0')
    a.e('s_waitcnt lgkmcnt(0)')
    stamp(a, 0)
    if opt('stamp'): a.e('v_writelane_b32 v1, s56, 30')
    srd(a, 32, P_K, 4 * MB)
    srd(a, 36, P_V, 4 * MB)
    srd(a, 40, P_SH, 8192)
    KR, VR_, WR, WU, KU, AC0 = 8, 36, 52, 68, 100, 164
    for j in range(4):
        a.e(f'buffer_load_dwordx4 v[{WR+4*j}:{WR+4*j+3}], v7, s[40:43], 0 offen offset:{16*j}')
    rows = [(4, 0), (4, 2048), (5, 0), (3, 0), (3, 2048), (6, 0), (6, 2048)]
    for r, (vr, off) in enumerate(rows):
        a.e(f'buffer_load_dwordx4 v[{KR+4*r}:{KR+4*r+3}], v{vr}, s[32:35], 0 offen offset:{off}')
    for r, (vr, off) in enumerate(rows[3:]):
        a.e(f'buffer_load_dwordx4 v[{VR_+4*r}:{VR_+4*r+3}], v{vr}, s[36:39], 0 offen offset:{off}')
    ncp = 0
    if opt('cpf', 0):
        a.e('s_getpc_b64 s[58:59]')
        a.e('L_pc:')
        a.e('v_lshlrev_b32 v163, 7, v0')
        a.e('v_min_u32 v163, L_end-L_pc, v163')
        a.e('global_load_dword v161, v163, s[58:59]')
        ncp = 1
    srd(a, 48, P_WS, 4 * MB, WS_UB)
    if opt('pt', 0) & 1:
        a.e('v_lshlrev_b32 v163, 6, v0')
        a.e('s_sub_u32 s58, s88, 120')
        a.e('buffer_load_dword v161, v163, s[48:51], s58 offen')
        ncp += 1
    KD, KX, XP = 200, 216, 224
    KP, XPOS = opt('kp', 1), opt('xp', 2)
    def k_loads():
        a.e('s_and_b32 s74, s2, 7')
        a.e('s_lshl_b32 s74, s74, 7')
        a.e('s_lshr_b32 s75, s2, 3')
        a.e('s_lshl_b32 s75, s75, 2')
        a.e('s_add_u32 s74, s74, s75')
        a.e(f's_add_u32 s74, s74, s{S_W}')
        a.e('s_lshl_b32 s74, s74, 12')
        srd(a, 68, P_SSMK, 4096, 0, 74)
        a.e('v_lshlrev_b32 v220, 4, v2')
        for j in range(4):
            a.e(f'buffer_load_dwordx4 v[{KD+4*j}:{KD+4*j+3}], v220, s[68:71], 0 offen offset:{1024*j}')
            a.e(f'buffer_load_dword v{KX+j}, v220, s[68:71], 0 offen offset:{1024*j+16}')
    def x_loads():
        srd(a, 36, P_Q, 4 * MB)
        for r in range(2):
            for hh in range(2):
                a.e(f'buffer_load_dwordx4 v[{XP+8*r+4*hh}:{XP+8*r+4*hh+3}], v4, s[36:39], s96 offen offset:{2048*r+1024*hh}')
    if KP == 0:
        k_loads(); ncp += 8
    srd(a, 44, P_DBG, 256)
    a.e('s_or_b32 s56, s56, 1')
    a.e(f's_or_b32 s57, s2, s{S_W}')
    a.e('s_cmp_lg_u32 s57, 0')
    a.e('s_cbranch_scc1 L_nonce_skip')
    a.e('v_mov_b32 v163, s56')
    a.e('s_mov_b64 exec, 1')
    a.e('buffer_store_dword v163, v162, s[44:47], 0 offen sc1')
    a.e('s_mov_b64 exec, -1')
    a.e('s_waitcnt vmcnt(0)')
    a.e('L_nonce_skip:')
    srd(a, S_FLG, P_WS, FLG_SIZE, WS_FLG)
    a.e(f's_waitcnt vmcnt({11+ncp})')
    for e in range(8):
        unpack(a, WU + 0 * 8 + e, WU + 1 * 8 + e, WR + 2 * e)
        unpack(a, WU + 2 * 8 + e, WU + 3 * 8 + e, WR + 2 * e + 1)
    for r in range(7):
        a.e(f's_waitcnt vmcnt({10-r+ncp})')
        for q in range(4):
            unpack(a, KU + 8 * r + 2 * q, KU + 8 * r + 2 * q + 1, KR + 4 * r + q)
        if r >= 3:
            i = r - 3
            for j in range(4):
                for q in range(4):
                    d = AC0 + 8 * i + 2 * q
                    k = KU + 8 * (i + 3 - j) + 2 * q
                    w = WU + 8 * j + 2 * q
                    if j == 0:
                        a.e(f'v_pk_mul_f32 v[{d}:{d+1}], v[{k}:{k+1}], v[{w}:{w+1}]')
                    else:
                        a.e(f'v_pk_fma_f32 v[{d}:{d+1}], v[{k}:{k+1}], v[{w}:{w+1}], v[{d}:{d+1}]')
    VU = 8
    for i in range(4):
        a.e(f's_waitcnt vmcnt({3-i+ncp})')
        if i == 3:
            a.e('buffer_load_dword v163, v162, s[44:47], 0 offen sc1')
        for q in range(4):
            unpack(a, VU + 2 * q, VU + 2 * q + 1, VR_ + 4 * i + q)
        for q in range(4):
            d = AC0 + 8 * i + 2 * q
            a.e(f'v_pk_mul_f32 v[{d}:{d+1}], v[{d}:{d+1}], v[{VU+2*q}:{VU+2*q+1}]')
    O = 52
    for e in range(4):
        q = O + 4 * e
        a.e(f'v_cvt_pk_bf16_f32 v{q}, v{AC0+28+e}, v{AC0+20+e}')
        a.e(f'v_cvt_pk_bf16_f32 v{q+1}, v{AC0+12+e}, v{AC0+4+e}')
        a.e(f'v_cvt_pk_bf16_f32 v{q+2}, v{AC0+24+e}, v{AC0+16+e}')
        a.e(f'v_cvt_pk_bf16_f32 v{q+3}, v{AC0+8+e}, v{AC0+e}')
    for e in range(4):
        q = O + 4 * e
        if e == 3: a.e('s_nop 0')
        a.e(f'v_permlane16_swap_b32 v{q+2}, v{q}')
        a.e(f'v_permlane16_swap_b32 v{q+3}, v{q+1}')
        a.e(f'buffer_store_dwordx4 v[{q}:{q+3}], v160, s[48:51], 0 offen offset:{128*e} sc1')
    stamp(a, 1)
    a.e('s_and_b32 s82, s2, 7')
    a.e('s_lshr_b32 s83, s2, 3')
    a.e('s_lshl_b32 s84, s83, 2')
    a.e(f's_add_u32 s84, s84, s{S_W}')
    a.e('s_lshl_b32 s85, s82, 7')
    a.e('s_add_u32 s85, s85, s84')
    a.e('s_lshl_b32 s86, s82, 5')
    a.e('s_add_u32 s86, s86, s83')
    a.e(f's_mul_i32 s88, s{S_W}, {KA_REG}')
    a.e(f's_add_u32 s88, s88, {LDS_KA}')
    a.e('s_lshr_b32 s57, s85, 1')
    a.e('s_lshl_b32 s57, s57, 2')
    a.e(f's_load_dword s89, s[{P_D}:{P_D+1}], s57')
    a.e('v_lshlrev_b32 v4, 4, v2')
    ny = 0
    if KP == 1:
        k_loads(); ny += 8
    a.e('s_and_b32 s80, s82, 1')
    a.e('s_lshl_b32 s80, s80, 2')
    a.e('s_and_b32 s56, s83, 3')
    a.e('s_add_u32 s80, s80, s56')
    a.e('s_lshr_b32 s81, s82, 1')
    a.e('s_lshl_b32 s81, s81, 3')
    a.e('s_lshr_b32 s56, s83, 2')
    a.e('s_add_u32 s81, s81, s56')
    a.e('s_lshl_b32 s91, s80, 5')
    a.e('s_add_u32 s91, s91, s81')
    a.e('s_lshl_b32 s56, s91, 2')
    a.e(f's_add_u32 s56, s56, s{S_W}')
    a.e('s_lshl_b32 s96, s56, 12')
    nx_ = 0
    if XPOS == 1:
        x_loads(); ny += 4; nx_ = 4
    nc0 = 0
    if opt('cpf0', 2):
        if opt('cpf0', 2) == 1:
            code_pf(a, 'L_nonce', 'L_end', 164, n=2); nc0 = 2
        else:
            code_pf(a, 'L_nonce', 'L_kbcode', 164); nc0 = 1
    a.e(f's_waitcnt vmcnt({4+ny+nc0})')
    a.e('L_nonce:')
    a.e(f'v_readfirstlane_b32 s{S_NONCE}, v163')
    a.e('s_nop 0')
    a.e(f's_cmp_lg_u32 s{S_NONCE}, 0')
    a.e('s_cbranch_scc1 L_nonce_ok')
    a.e('s_add_u32 s3, s3, 1')
    a.e(f's_cmp_gt_u32 s3, {opt("spin", 200000)}')
    a.e('s_cbranch_scc1 L_nonce_ok')
    a.e('buffer_load_dword v163, v162, s[44:47], 0 offen sc1')
    a.e('s_waitcnt vmcnt(0)')
    a.e('s_branch L_nonce')
    a.e('L_nonce_ok:')
    a.e(f'v_mov_b32 v163, s{S_NONCE}')
    a.e(f's_cmp_eq_u32 s{S_W}, 0')
    a.e(f's_waitcnt vmcnt({ny+nc0})')
    a.e('s_barrier')
    a.e('s_cbranch_scc0 L_sig0')
    a.e('s_mov_b64 exec, 1')
    a.e(f'buffer_store_dword v163, v162, s[{S_FLG}:{S_FLG+3}], s87 offen sc1')
    a.e('s_mov_b64 exec, -1')
    a.e('L_sig0:')
    stamp(a, 2)
    if KP == 2:
        k_loads(); nx_ = 0; nc0 = 0
    npt = 0
    if opt('pt', 0) & 2:
        srd(a, 40, P_WS, 12 * MB, WS_Y2)
        a.e('v_lshlrev_b32 v164, 14, v0')
        a.e('s_lshl_b32 s56, s86, 6')
        a.e('buffer_load_dword v161, v164, s[40:43], s56 offen')
        a.e('v_lshlrev_b32 v164, 6, v0')
        a.e('s_lshl_b32 s56, s91, 14')
        a.e(f's_add_u32 s56, s56, {4*MB}')
        a.e('buffer_load_dword v161, v164, s[40:43], s56 offen')
        a.e('v_lshrrev_b32 v164, 3, v0')
        a.e('v_lshlrev_b32 v164, 12, v164')
        a.e('v_bfe_u32 v165, v0, 1, 2')
        a.e('v_lshl_add_u32 v164, v165, 8, v164')
        a.e('s_lshr_b32 s56, s91, 3')
        a.e('s_lshl_b32 s56, s56, 17')
        a.e('s_and_b32 s57, s91, 7')
        a.e('s_lshr_b32 s58, s57, 1')
        a.e('s_lshl_b32 s58, s58, 10')
        a.e('s_add_u32 s56, s56, s58')
        a.e('s_and_b32 s57, s57, 1')
        a.e('s_lshl_b32 s57, s57, 7')
        a.e('s_add_u32 s56, s56, s57')
        a.e(f's_add_u32 s56, s56, {8*MB}')
        a.e('buffer_load_dword v161, v164, s[40:43], s56 offen')
        npt += 3
    a.e('v_lshrrev_b32 v3, 3, v2')
    a.e('v_sub_u32 v3, 7, v3')
    a.e('v_lshlrev_b32 v3, 14, v3')
    a.e('v_and_b32 v5, 7, v2')
    a.e('v_lshl_add_u32 v3, v5, 4, v3')
    a.e('s_lshl_b32 s56, s84, 7')
    a.e('v_add_u32 v3, s56, v3')
    a.e('v_and_b32 v5, 15, v2')
    a.e('v_lshrrev_b32 v6, 4, v2')
    a.e('v_mov_b32 v28, 0')
    a.e('v_mov_b32 v29, 0')
    a.e('v_lshlrev_b32 v7, 3, v2')
    a.e('v_add_u32 v7, s88, v7')
    a.e('ds_write_b64 v7, v[28:29] offset:4096')
    a.e('v_min_u32 v30, 7, v2')
    a.e('v_lshlrev_b32 v30, 2, v30')
    a.e('v_add_u32 v30, s88, v30')
    a.e('ds_write_b32 v30, v28 offset:4608')
    a.e('v_add_u32 v31, 1, v5')
    a.e('v_and_b32 v32, 1, v31')
    a.e('v_sub_u32 v31, v31, v32')
    a.e('v_lshl_add_u32 v31, v6, 3, v31')
    a.e('v_lshlrev_b32 v31, 1, v31')
    a.e('v_mul_u32_u24 v32, 4160, v32')
    a.e('v_add3_u32 v31, v31, v32, s88')
    VA, VB, ACC = 36, 40, 44
    for j in range(4):
        a.e(f'v_add_u32 v{VA+j}, {4608+1024*j}, v31')
    a.e('v_lshlrev_b32 v32, 5, v5')
    a.e('v_lshlrev_b32 v33, 4, v6')
    a.e('v_sub_u32 v33, v33, v32')
    a.e('v_add_u32 v33, s88, v33')
    a.e(f'v_add_u32 v{VB}, 480, v33')
    a.e('v_add_u32 v7, s88, v4')
    for r in range(32):
        a.e(f'v_mov_b32 v{ACC+r}, 0')
    T = 76
    a.e(f's_waitcnt vmcnt({nx_+npt+nc0})')
    for j in range(4):
        d = KD + 4 * j
        if j == 0:
            a.e(f'v_readfirstlane_b32 s56, v{d}')
        a.e(f'ds_write_b128 v7, v[{d}:{d+3}] offset:{4608+32+1024*j}')
        for q in range(4):
            hi = d + q + 1 if q < 3 else KX + j
            a.e(f'v_alignbit_b32 v{T+4*j+q}, v{hi}, v{d+q}, 16')
        a.e(f'ds_write_b128 v7, v[{T+4*j}:{T+4*j+3}] offset:{4608+4160+32+1024*j}')
    a.e('s_lshl_b32 s56, s56, 16')
    a.e('v_cmp_le_u32 vcc, 7, v2')
    a.e('v_mov_b32 v32, s56')
    a.e('s_nop 0')
    a.e('v_cndmask_b32 v32, v28, v32, vcc')
    a.e(f'ds_write_b32 v30, v32 offset:{4608+4160}')
    FA = [96, 160]; FB = [128, 192]
    def rdA(r, buf):
        L = []
        for mq in range(8):
            o = 128 * (mq & 1) + 16 * r
            f = FA[buf] + 4 * mq
            L.append(f'ds_read2_b32 v[{f}:{f+1}], v{VA+(mq>>1)} offset0:{o} offset1:{o+1}')
            L.append(f'ds_read2_b32 v[{f+2}:{f+3}], v{VA+(mq>>1)} offset0:{o+2} offset1:{o+3}')
        return L
    def rdB(r, buf):
        return [f'ds_read_b128 v[{FB[buf]+4*d}:{FB[buf]+4*d+3}], v{VB} offset:{512*(7-d)+64*r}' for d in range(8)]
    a.e('s_waitcnt lgkmcnt(0)')
    a.e('s_bitcmp1_b32 s85, 0')
    a.e('s_cselect_b32 s56, 0, 16')
    a.e('s_lshl_b32 s89, s89, s56')
    a.e('s_and_b32 s89, s89, 0xffff0000')
    for l in rdA(0, 0): a.e(l)
    a.e('v_and_b32 v34, 31, v2')
    a.e(f'v_lshlrev_b32 v34, {fsh()}, v34')
    a.e(f's_lshl_b32 s56, s82, {5+fsh()}')
    wait_flags(a, 56, 34, 35)
    stamp(a, 3)
    a.e('s_lshl_b32 s56, s82, 19')
    UR = 8
    for i in range(4):
        a.e(f's_add_u32 s57, s56, {(24-8*i)*16384:#x}')
        a.e(f'buffer_load_dwordx4 v[{UR+4*i}:{UR+4*i+3}], v3, s[48:51], s57 offen sc1')
    npf = 0; wpl = []
    if XPOS == 2:
        x_loads(); npf += 4
    if opt('wpf', 1):
        wfr = opt('wfr', 4)
        a.e(f's_mul_i32 s56, s2, {7168*wfr}')
        a.e(f's_mul_i32 s57, s{S_W}, {1792*wfr}')
        a.e('s_add_u32 s56, s56, s57')
        a.e('v_lshlrev_b32 v41, 7, v2')
        for n_, P_ in enumerate((P_W1, P_W3, P_W2)[:opt('wpn', 2)]):
            sd = (40, 32, 44)[n_]
            srd(a, sd, P_, 1792 * wfr, 0, 56)
            t_ = f'buffer_load_dword v42, v41, s[{sd}:{sd+3}], 0 offen'
            if opt('wpr', 2) < 0:
                a.e(t_); npf += 1
            else:
                wpl.append(lambda t_=t_: a.e(t_))
    g1 = G1(a)
    g2 = G2(a)
    g2.front_setup()
    g1.setup_dma()
    for i in range(4):
        a.e(f's_waitcnt vmcnt({npf+3-i})')
        a.e(f'ds_write_b128 v7, v[{UR+4*i}:{UR+4*i+3}] offset:{1024*i}')
    a.e('s_waitcnt lgkmcnt(0)')
    for l in rdB(0, 0): a.e(l)
    stamp(a, 4)
    LK = Lin(a)
    g1e = [[(lambda l=l: a.e(l)) for l in grp] for grp in g1.early_dma()]
    def grp(fs): return lambda: [f() for f in fs]
    g1e = [grp(x) for x in g1e]
    fillr = {r: [] for r in range(8)}
    p01 = g2.fD([(0, 2), (1, 3)])
    fillr[6] += p01[:5]; fillr[7] += p01[5:]
    for n_, f_ in enumerate(wpl): fillr[opt('wpr', 2) + n_ * opt('wps', 0)].append(f_)
    UE = 8
    for r in range(8):
        buf = r & 1
        if r < 7:
            A_, B_ = rdA(r + 1, buf ^ 1), rdB(r + 1, buf ^ 1)
            nxt = []
            for x in range(8): nxt += [B_[x], A_[2 * x], A_[2 * x + 1]]
        else:
            a.e('v_lshlrev_b32 v32, 5, v5')
            a.e('v_lshl_add_u32 v32, v6, 3, v32')
            a.e(f'v_sub_u32 v34, {4088-3584}, v32')
            a.e('v_add_u32 v34, s88, v34')
            a.e('v_add_u32 v35, s88, v32')
            nxt = [f'ds_read_b64 v[{UE+2*c}:{UE+2*c+1}], v34 offset:{512*(7-c)}' for c in range(8)]
        a.e('s_waitcnt lgkmcnt(0)')
        fl = list(fillr[r]); evr = 36 // max(1, len(fl))
        k = 0
        for mq in range(8):
            for d in range(8 - mq):
                c = mq + d
                fa = FA[buf] + 4 * mq; fb = FB[buf] + 4 * d
                a.e(f'v_mfma_f32_16x16x32_bf16 v[{ACC+4*c}:{ACC+4*c+3}], v[{fa}:{fa+3}], v[{fb}:{fb+3}], v[{ACC+4*c}:{ACC+4*c+3}]')
                if k < len(nxt):
                    a.e(nxt[k])
                if fl and k % evr == evr - 1: fl.pop(0)()
                k += 1
        assert not fl, (r, len(fl))
    a.e('s_waitcnt lgkmcnt(0)')
    stamp(a, 5)
    a.e('L_kbcode:')
    X = 96
    for c in range(8):
        unpack(a, X + 4 * c + 3, X + 4 * c + 2, UE + 2 * c)
        unpack(a, X + 4 * c + 1, X + 4 * c + 0, UE + 2 * c + 1)
    for c in range(8):
        for r in range(4):
            a.e(f'v_fma_f32 v{X+4*c+r}, v{X+4*c+r}, s89, v{ACC+4*c+r}')
        a.e(f'v_cvt_pk_bf16_f32 v{UE+2*c}, v{X+4*c}, v{X+4*c+1}')
        a.e(f'v_cvt_pk_bf16_f32 v{UE+2*c+1}, v{X+4*c+2}, v{X+4*c+3}')
        a.e(f'ds_write_b64 v35, v[{UE+2*c}:{UE+2*c+1}] offset:{4608+512*c}')
    a.flush_inject()
    LIN[0] = None
    a.e('v_lshlrev_b32 v32, 2, v0')
    a.e(f'v_add_u32 v32, {LDS_KA}, v32')
    a.e('v_lshrrev_b32 v33, 2, v0')
    a.e('v_lshlrev_b32 v33, 14, v33')
    a.e('v_and_b32 v34, 3, v0')
    a.e('v_lshl_add_u32 v33, v34, 4, v33')
    a.e('s_lshl_b32 s56, s86, 6')
    a.e('s_mov_b32 s57, 0x05040100')
    a.e('s_mov_b32 s58, 0x07060302')
    srd(a, 36, P_WS, 4 * MB, WS_Y2)
    a.e('s_waitcnt lgkmcnt(0)')
    a.e('s_barrier')
    Y = 96
    for P in range(4):
        for ch in range(4):
            a.e(f'ds_read_b32 v{Y+4*P+ch}, v32 offset:{ch*KA_REG+4608+1024*P}')
    O = 128
    for P in range(4):
        a.e(f's_waitcnt lgkmcnt({12-4*P})')
        y = Y + 4 * P; o = O + 4 * P
        a.e(f'v_perm_b32 v{o}, v{y+1}, v{y}, s57')
        a.e(f'v_perm_b32 v{o+1}, v{y+3}, v{y+2}, s57')
        a.e(f'v_perm_b32 v{o+2}, v{y+1}, v{y}, s58')
        a.e(f'v_perm_b32 v{o+3}, v{y+3}, v{y+2}, s58')
        a.e(f'buffer_store_dwordx4 v[{o}:{o+3}], v33, s[36:39], s56 offen sc1')
        if P < 3:
            a.e(f's_add_u32 s56, s56, {64*16384:#x}')
    stamp(a, 6)
    XU = [8, 24]; TT = [40, 56]; MM = [72, 74]; RR = [76, 78]; C = 80; YU = [100, 116]; XM = [140, 156]; SS = [172, 174]
    if XPOS == 2: a.e(f's_waitcnt vmcnt({len(wpl) + 8 + 4})')
    F45 = opt('f45', 0)
    if F45: a.inject(g2.fD([(2, 0), (3, 1)]), 3)
    for r in range(2):
        for q in range(8):
            unpack(a, XU[r] + 2 * q, XU[r] + 2 * q + 1, XP + 8 * r + q)
    a.flush_inject()
    a.e(f'v_mov_b32 v{C}, 0x3a800000')
    a.e(f's_lshl_b32 s87, s2, {f1sh()}')
    a.e(f's_add_u32 s87, s87, {F1}')
    signal(a, 87, 82, waitfn=lambda: a.e(f's_waitcnt vmcnt({8 if F45 else 0})'))
    g2.fM([(0, 2), (1, 3)])
    a.inject(g1e[:10] + ([] if F45 else g2.fD([(2, 0), (3, 1)])), 12 if F45 else 6)
    ln2(a, XU, TT, MM, RR, C, XM)
    a.flush_inject()
    a.e('v_lshlrev_b32 v5, 7, v2')
    a.e('v_add_u32 v6, 0x2000, v5')
    a.e('s_lshl_b32 s82, s91, 14')
    a.e(f's_lshl_b32 s83, s{S_W}, 4')
    a.e('s_add_u32 s82, s82, s83')
    srd(a, 40, P_WS, 4 * MB, WS_H)
    srd(a, 44, P_WS, 4 * MB, WS_HNF)
    a.e('v_and_b32 v7, 7, v2')
    a.e(f's_lshl_b32 s83, s{S_W}, 1')
    a.e('v_xor_b32 v132, s83, v7')
    a.e('v_lshl_add_u32 v132, v132, 4, v5')
    a.e(f'v_add_u32 v132, {LDS_KA}, v132')
    a.e('v_xor_b32 v133, 16, v132')
    a.e('v_lshrrev_b32 v134, 3, v2')
    a.e('v_xor_b32 v135, v134, v7')
    a.e('v_lshlrev_b32 v135, 4, v135')
    a.e('v_lshl_add_u32 v135, v134, 7, v135')
    a.e(f's_lshl_b32 s83, s{S_W}, 12')
    a.e(f's_add_u32 s83, s83, {LDS_KA}')
    a.e('v_add_u32 v135, s83, v135')
    a.e('v_lshrrev_b32 v136, 5, v2')
    a.e('v_lshlrev_b32 v136, 12, v136')
    a.e('v_bfe_u32 v137, v2, 3, 2')
    a.e('v_lshl_add_u32 v136, v137, 8, v136')
    a.e('v_lshl_add_u32 v136, v7, 4, v136')
    a.e('s_lshr_b32 s84, s91, 3')
    a.e('s_lshl_b32 s84, s84, 17')
    a.e('s_bfe_u32 s85, s91, 0x20001')
    a.e('s_lshl_b32 s85, s85, 10')
    a.e('s_add_u32 s84, s84, s85')
    a.e('s_and_b32 s85, s91, 1')
    a.e('s_lshl_b32 s85, s85, 7')
    a.e('s_add_u32 s84, s84, s85')
    a.e(f's_lshl_b32 s85, s{S_W}, 15')
    a.e('s_add_u32 s84, s84, s85')
    a.e(f's_mov_b32 s85, {F1}')
    a.e('s_waitcnt lgkmcnt(0)')
    stamp(a, 7)
    a.e(f'v_lshlrev_b32 v138, {4 if f1sh() == 2 else f1sh()}, v2')
    wait_flags(a, 85, 138, 128, n=256)
    stamp(a, 8)
    a.e(f's_or_b32 s57, s2, s{S_W}')
    a.e('s_cmp_lg_u32 s57, 0')
    a.e('s_cbranch_scc1 L_clean_skip')
    srd(a, 48, P_DBG, 256)
    a.e('v_mov_b32 v128, 0')
    a.e('s_mov_b64 exec, 1')
    a.e('buffer_store_dword v128, v128, s[48:51], 0 offen sc1')
    a.e('s_mov_b64 exec, -1')
    a.e('L_clean_skip:')
    YL = 84
    a.e(f'buffer_load_dwordx4 v[{YL}:{YL+3}], v5, s[36:39], s82 offen sc1')
    a.e(f'buffer_load_dwordx4 v[{YL+4}:{YL+7}], v5, s[36:39], s82 offen offset:64 sc1')
    a.e(f'buffer_load_dwordx4 v[{YL+8}:{YL+11}], v6, s[36:39], s82 offen sc1')
    a.e(f'buffer_load_dwordx4 v[{YL+12}:{YL+15}], v6, s[36:39], s82 offen offset:64 sc1')
    a.e('s_waitcnt vmcnt(4)')
    g2.fM([(2, 0), (3, 1)])
    for cgi in range(4):
        a.e(f's_waitcnt vmcnt({3-cgi})')
        for r in range(2):
            for e in range(2):
                u = YU[r] + 4 * cgi + 2 * e
                unpack(a, u, u + 1, YL + 4 * cgi + 2 * r + e)
        for r in range(2):
            for e in range(2):
                u = YU[r] + 4 * cgi + 2 * e; x = XM[r] + 4 * cgi + 2 * e; t = TT[r] + 4 * cgi + 2 * e
                a.e(f'v_pk_fma_f32 v[{x}:{x+1}], v[{t}:{t+1}], v[{u}:{u+1}], v[{x}:{x+1}]')
        for r in range(2):
            for e in range(2):
                x = XM[r] + 4 * cgi + 2 * e
                if cgi == 0 and e == 0:
                    a.e(f'v_pk_mul_f32 v[{RR[r]}:{RR[r]+1}], v[{x}:{x+1}], v[{x}:{x+1}]')
                else:
                    a.e(f'v_pk_fma_f32 v[{RR[r]}:{RR[r]+1}], v[{x}:{x+1}], v[{x}:{x+1}], v[{RR[r]}:{RR[r]+1}]')
            x = XM[r] + 4 * cgi
            if cgi == 0: a.e(f'v_pk_add_f32 v[{SS[r]}:{SS[r]+1}], v[{x}:{x+1}], v[{x+2}:{x+3}]')
            else:
                a.e(f'v_pk_add_f32 v[{SS[r]}:{SS[r]+1}], v[{x}:{x+1}], v[{SS[r]}:{SS[r]+1}]')
                a.e(f'v_pk_add_f32 v[{SS[r]}:{SS[r]+1}], v[{x+2}:{x+3}], v[{SS[r]}:{SS[r]+1}]')
    for r in range(2):
        a.e(f'v_add_f32 v{SS[r]}, v{SS[r]}, v{SS[r]+1}')
        a.e(f'v_add_f32 v{RR[r]}, v{RR[r]}, v{RR[r]+1}')
    fl_ = []
    for r in range(2):
        for q in range(8):
            u = YU[r] + 2 * q; x = XU[r] + 2 * q; t = TT[r] + 2 * q
            fl_.append(f'v_pk_fma_f32 v[{x}:{x+1}], v[{t}:{t+1}], v[{u}:{u+1}], v[{x}:{x+1}]')
    for r in range(2):
        for q in range(8):
            fl_.append(f'v_cvt_pk_bf16_f32 v{XP+8*r+q}, v{XU[r]+2*q}, v{XU[r]+2*q+1}')
    for mod in ('row_shr:1 row_mask:0xf bank_mask:0xf bound_ctrl:0', 'row_shr:2 row_mask:0xf bank_mask:0xf bound_ctrl:0',
                'row_shr:4 row_mask:0xf bank_mask:0xf bound_ctrl:0', 'row_shr:8 row_mask:0xf bank_mask:0xf bound_ctrl:0',
                'row_bcast:15 row_mask:0xa bank_mask:0xf', 'row_bcast:31 row_mask:0xc bank_mask:0xf'):
        for v in (SS[0], SS[1], RR[0], RR[1]):
            a.e(f'v_add_f32_dpp v{v}, v{v}, v{v} {mod}')
    for i, v in enumerate((SS[0], SS[1], RR[0], RR[1])):
        a.e(f'v_readlane_b32 s{56+i}, v{v}, 63')
    def both(f):
        for r in range(2): f(r)
        if fl_: a.e(fl_.pop(0))
        if fl_: a.e(fl_.pop(0))
    def rbf(v):
        a.e(f'v_cvt_pk_bf16_f32 v{v}, v{v}, v{v}')
        a.e(f'v_and_b32 v{v}, s{S_MASK}, v{v}')
    both(lambda r: a.e(f'v_mul_f32 v{SS[r]}, s{56+r}, v{C}'))
    both(lambda r: a.e(f'v_mul_f32 v{RR[r]}, s{58+r}, v{C}'))
    both(lambda r: a.e(f'v_fma_f32 v{RR[r]}, -v{SS[r]}, v{SS[r]}, v{RR[r]}'))
    both(lambda r: a.e(f'v_max_f32 v{RR[r]}, 0, v{RR[r]}'))
    both(lambda r: rbf(RR[r]))
    both(lambda r: a.e(f'v_add_f32 v{RR[r]}, 0x3727c5ac, v{RR[r]}'))
    both(lambda r: rbf(RR[r]))
    both(lambda r: a.e(f'v_sqrt_f32 v{RR[r]}, v{RR[r]}'))
    both(lambda r: a.e(f'v_add_f32 v{SS[r]}, v{SS[r]}, v{MM[r]}'))
    both(lambda r: rbf(RR[r]))
    both(lambda r: a.e(f'v_rcp_f32 v{RR[r]}, v{RR[r]}'))
    both(lambda r: rbf(SS[r]))
    both(lambda r: a.e(f'v_sub_f32 v{SS[r]}, v{MM[r]}, v{SS[r]}'))
    both(lambda r: a.e(f'v_mul_f32 v{SS[r]}, v{SS[r]}, v{RR[r]}'))
    nh = len(fl_)
    for q in range(8):
        for r in range(2):
            x = XM[r] + 2 * q
            a.e(f'v_pk_fma_f32 v[{TT[r]+2*q}:{TT[r]+2*q+1}], v[{x}:{x+1}], v[{RR[r]}:{RR[r]+1}], v[{SS[r]}:{SS[r]+1}] op_sel_hi:[1,0,0]')
    for r in range(2):
        for q in range(8):
            a.e(f'v_cvt_pk_bf16_f32 v{YL+8*r+q}, v{TT[r]+2*q}, v{TT[r]+2*q+1}')
        for hh in range(2):
            a.e(f'ds_write_b128 v{132+r}, v[{YL+8*r+4*hh}:{YL+8*r+4*hh+3}] offset:{8192*hh}')
    for t_ in fl_: a.e(t_)
    a.e('s_waitcnt lgkmcnt(0)')
    a.e('s_barrier')
    for i in range(4):
        a.e(f'ds_read_b128 v[{100+4*i}:{103+4*i}], v135 offset:{1024*i}')
    for i in range(4):
        a.e(f's_waitcnt lgkmcnt({3-i})')
        a.e(f'buffer_store_dwordx4 v[{100+4*i}:{103+4*i}], v136, s[44:47], s84 offen sc1')
        if i < 3: a.e('s_add_u32 s84, s84, 8192')
    stamp(a, 9)
    a.e(f's_lshl_b32 s87, s91, {fsh()}')
    a.e(f's_add_u32 s87, s87, {F2}')
    g2.front_save()
    g1.pre_setup(g2.fD([(4, 0), (5, 1)], dv=28) if F45 else [])
    signal(a, 87, 4, waitfn=lambda: a.e(f's_waitcnt vmcnt({8 if F45 else 0})'))
    g2.NF = 8 if F45 else 6
    def mv45():
        if not F45: return
        a.e('v_add_u32 v4, s73, v7')
        a.e('v_xor_b32 v5, 32, v4')
        a.e('s_waitcnt vmcnt(8)')
        g2.fM([(4, 0), (5, 1)], base=4)
    g1.hook = mv45
    g1.main()
    g1.epilogue(g2)
    g2.main()
    stamp_out(a, NSTAMP)
    a.e('L_end:')
    a.e('s_endpgm')

G1_STG = 32768
class G1:
    TM, NW, DPW, ND = 4, 4, 8, 4
    ACC, WF, TF, DV, VT, VR, VL = 32, 0, 28, 8, 16, 17, 18
    DVE = 240
    def __init__(s, a): s.a = a
    def setup_dma(s):
        a = s.a
        a.e('s_and_b32 s56, s81, 1')
        a.e('s_lshl_b32 s56, s56, 1')
        a.e('s_movk_i32 s57, 4682')
        a.e('s_movk_i32 s58, 7168')
        a.e('v_mov_b32 v76, 0x80000000')
        a.e('v_subrev_u32 v77, 8, v2')
        for src, dst in ((2, 78), (77, 79)):
            a.e(f'v_cmp_gt_u32 vcc, 56, v{src}')
            a.e(f'v_mul_u32_u24 v80, s57, v{src}')
            a.e('v_lshrrev_b32 v80, 16, v80')
            a.e('v_mul_u32_u24 v81, 14, v80')
            a.e(f'v_sub_u32 v81, v{src}, v81')
            a.e('v_add_u32 v81, s56, v81')
            a.e('v_subrev_u32 v82, 14, v81')
            a.e('v_min_u32 v81, v81, v82')
            a.e('v_mul_u32_u24 v80, s58, v80')
            a.e('v_lshl_add_u32 v80, v81, 4, v80')
            a.e(f'v_cndmask_b32 v{dst}, v76, v80, vcc')
        for i in range(8):
            pat = 79 if (i >> 1) & 1 else 78
            c = i * 4 * 7168 - 1024 * (i & 3)
            a.e(f'v_add_u32 v{s.DVE+i}, {c}, v{pat}' if c else f'v_mov_b32 v{s.DVE+i}, v{pat}')
        a.e(f's_and_b32 s56, s{S_W}, 1')
        a.e(f's_lshr_b32 s57, s{S_W}, 1')
        a.e(f's_mul_i32 s97, s56, {8*4*7168}')
        a.e('s_lshl_b32 s98, s57, 14')
        a.e('s_lshl_b32 s56, s56, 13')
        a.e('s_add_u32 s98, s98, s56')
        a.e('s_mul_i32 s56, s81, 224')
        a.e('s_cmp_eq_u32 s57, 0')
        a.e(f's_cselect_b32 s52, s{P_W1}, s{P_W3}')
        a.e(f's_cselect_b32 s53, s{P_W1+1}, s{P_W3+1}')
        srd(a, 52, 52, None, 0, 56)
        a.e('s_sub_u32 s54, 7340032, s56')
    def m0set(s, i): return f's_add_u32 m0, s98, {4096*(i//4)}' if i else 's_mov_b32 m0, s98'
    def dma(s, i, base): return f'buffer_load_dwordx4 v{base+i}, s[52:55], s97 offen offset:{1024*(i&3)}' + ['', ' sc1', ' nt', ' sc0'][opt('wfl')] + ' lds'
    def dma_adv(s): return ['s_add_u32 s97, s97, 458752', f's_add_u32 s98, s98, {G1_STG}', 's_and_b32 s98, s98, 0x1ffff']
    def early_dma(s):
        out = []
        for st in range(2):
            for i in range(8):
                if i % 4 == 0: out.append([s.m0set(i)])
                out.append([s.dma(i, s.DVE)] + (s.dma_adv() if i == 7 else []))
        return out
    def tok(s, k, tm):
        f = s.TF + 4 * (4 * (k % s.ND) + tm)
        return f'buffer_load_dwordx4 a[{f}:{f+3}], v{s.VT}, s[32:35], s82 offen offset:{tm*1024}' + (' sc1' if opt('t1sc', 1) else '')
    def rd(s, ph, t):
        j, mat = (ph & 3) >> 1, ph & 1
        return [f'ds_read_b64_tr_b16 a[{s.WF+4*t+2*h}:{s.WF+4*t+2*h+1}], v{s.VR} offset:{8192*j+1024*h+32*t+16384*mat}' for h in range(2)]
    def pre_setup(s, inj):
        a = s.a
        for i in range(8): a.e(f'v_mov_b32 v{s.DV+i}, v{s.DVE+i}')
        for i in range(16): a.e(f'v_accvgpr_write_b32 a{92+i}, v{224+i}')
        a.e(f'v_lshlrev_b32 v{s.VT}, 4, v2')
        a.e('v_lshrrev_b32 v4, 4, v2')
        a.e('v_lshlrev_b32 v4, 11, v4')
        a.e('v_bfe_u32 v5, v2, 4, 1')
        a.e('v_lshl_add_u32 v4, v5, 7, v4')
        a.e('v_bfe_u32 v6, v2, 2, 2')
        a.e('v_mul_u32_u24 v5, 224, v6')
        a.e('v_and_b32 v6, 3, v2')
        a.e('v_lshl_add_u32 v5, v6, 3, v5')
        a.e(f'v_add_u32 v{s.VL}, v4, v5')
        a.e(f'v_mov_b32 v{s.VR}, v{s.VL}')
        a.e('v_and_b32 v19, 31, v2')
        a.e(f'v_lshlrev_b32 v19, {fsh()}, v19')
        a.e('s_lshl_b32 s56, s80, 2')
        a.e(f's_add_u32 s56, s56, s{S_W}')
        a.e('s_lshl_b32 s57, s56, 17')
        srd(a, 32, P_WS, 131072, WS_HNF, 57)
        hf_base(a, 57, 80, S_W, 58)
        srd(a, 36, P_WS, 4 * 114688, 0, 57)
        a.e('s_and_b32 s58, s81, 1')
        a.e('s_mul_i32 s85, s81, 7')
        a.e('s_add_u32 s85, s85, s58')
        a.e('s_lshl_b32 s85, s85, 9')
        a.e('s_movk_i32 s86, 3072')
        a.e('s_cmp_eq_u32 s58, 0')
        a.e('s_cselect_b32 s86, s86, 0xfffffc08')
        a.e('s_add_u32 s86, s86, s85')
        a.inject(inj, 16)
        for r in range(224):
            a.e(f'v_mov_b32 v{s.ACC+r}, 0')
        a.flush_inject()
    def kof(s, s_, P): return 2 * s_ + (-1, 0, 0, 1)[P]
    def ev_ins(s, e):
        L = []
        if e[0] == 'D':
            if e[2] % 4 == 0: L.append(s.m0set(e[2]))
            L.append(s.dma(e[2], s.DV))
            if e[2] == 7: L += s.dma_adv()
        elif e[0] == 'Z':
            fl = ['', ' sc1'][opt('ps', 0) - 1]
            u = e[2]
            if u < 3: L = [f'buffer_store_dwordx4 v[24:27], v{s.VT}, s[36:39], s88 offen offset:{1024*u}{fl}']
            else: L = [f'buffer_store_dwordx2 v[24:25], v{s.VT}, s[36:39], s89 offen{fl}', 's_add_u32 s88, s88, 114688', 's_add_u32 s89, s89, 114688']
        elif e[0] == 'Q':
            L = [f'buffer_store_dwordx4 v[24:27], v{s.VT}, s[44:47], s99 offen', 's_add_u32 s99, s99, 1024']
        elif e[0] == 'V':
            L = ['s_mov_b32 m0, s89', 'buffer_load_dwordx4 v28, s[68:71], s72 offen lds', 's_add_u32 s72, s72, 32768', 's_add_u32 s89, s89, 1024']
        elif e[0] == 'C':
            L = ['global_load_dword v22, v23, s[78:79]', f's_cmp_ge_u32 s84, {opt("cpt", 5)}', 's_cselect_b32 s99, -1, 0', 'v_and_b32 v23, s99, v24']
        elif e[0] == 'Y':
            L = ['buffer_load_dword v22, v21, s[44:47], s88 offen', 's_add_u32 s88, s88, 1024']
        else:
            L.append(s.tok(e[1], e[2]))
            if e[2] == 3: L.append('s_add_u32 s82, s82, 4096')
        return L
    def main(s):
        a = s.a
        S = s.S = Sched()
        for s_ in range(-4, 8):
            for P in range(4):
                S.mark((s_, P))
                k = s.kof(s_, P) + s.ND - 1
                t0 = 2 if P in (0, 2) else 0
                S.add([('D', s_ + 2, 2 * P), ('T', k, t0), ('D', s_ + 2, 2 * P + 1), ('T', k, t0 + 1)])
                if opt('w2y', 1) and s_ % 2 == 0 and P == 1: S.add([('Y', s_, 0)])
                if opt('vev', 1) and s_ % 2 == 1 and P == 1: S.add([('V', s_, 0)])
                if opt('cpg', 1) and s_ % 2 == 1 and P == 3: S.add([('C', s_, 0)])
                if opt('psx', 0) and P == 2 and s_ & 1: S.add([('Q', s_, 0)])
                if opt('ps', 0) and P in (1, 3): S.add([('Z', s_, 2 * (s_ & 1) + (P >> 1))])
        vm_bar = min(S.younger(('D', 4), (4, 0)), S.younger(('D', 5), (5, 0)))
        vm_p1 = min(S.younger(('T', 8), (4, 1)), S.younger(('T', 10), (5, 1)))
        vm_p3 = min(S.younger(('T', 9), (4, 3)), S.younger(('T', 11), (5, 3)))
        if opt('w2y', 1):
            a.e('s_mul_i32 s56, s2, 28672')
            a.e(f's_mul_i32 s57, s{S_W}, 7168')
            a.e('s_add_u32 s56, s56, s57')
            srd(a, 44, P_W2, 7168, 0, 56)
            a.e('v_min_u32 v21, 8, v2')
            a.e('v_lshlrev_b32 v21, 7, v21')
            a.e('s_mov_b32 s88, 0')
        a.e(f's_lshl_b32 s56, s80, {5+fsh()}')
        a.e(f's_add_u32 s56, s56, {F2}')
        if opt('psx', 0):
            srd(a, 44, P_WS, 8 * MB, WS_XP)
            a.e('s_lshl_b32 s99, s2, 2')
            a.e(f's_add_u32 s99, s99, s{S_W}')
            a.e('s_lshl_b32 s99, s99, 13')
        if opt('ps', 0):
            a.e('s_mov_b32 s88, s85')
            a.e('s_mov_b32 s89, s86')
            for r in range(4): a.e(f'v_mov_b32 v{24+r}, 0')
        a.e('s_add_u32 s89, s73, 98304')
        if opt('cpg', 1):
            a.e('s_getpc_b64 s[78:79]')
            a.e('L_pcg:')
            a.e(f's_lshl_b32 s77, s{S_W}, 13')
            a.e('s_add_u32 s77, s77, L_g1epi-L_pcg')
            a.e('v_lshl_add_u32 v24, v2, 7, s77')
            a.e('v_min_u32 v24, L_end-L_pcg, v24')
            a.e('v_mov_b32 v23, 0')
        a.e('s_mov_b32 s82, 0')
        a.e('s_mov_b32 s83, 0')
        a.e('s_mov_b32 s84, 0')
        stamp(a, 10)
        d1 = [('D', 1, i) for i in range(8)]
        for e in d1:
            for l in s.ev_ins(e):
                a.e(l)
                if 'm0' in l: a.e('s_nop 0')
        s.hook()
        for t in range(6):
            for l in s.rd(0, t): a.e(l)
        a.e('s_waitcnt lgkmcnt(12)')
        wait_flags(a, 56, 19, 20)
        stamp(a, 11)
        pro = d1 + [e for e in S.ev[:S.marks[(0, 0)]] if e[1] >= 0 and e[0] == 'T'] + [('X', i, 0) for i in range(4)]
        for e in pro[8:] + S.ev[S.marks[(0, 0)]:S.marks[(0, 1)]]:
            if e[0] == 'X':
                a.e(f'buffer_store_dwordx4 a[{92+4*e[1]}:{95+4*e[1]}], v{s.VT}, s[40:43], s96 offen offset:{1024*e[1]} sc1')
                continue
            for l in s.ev_ins(e):
                a.e(l)
                if 'm0' in l: a.e('s_nop 0')
        act = pro + S.ev[S.marks[(0, 0)]:]
        off = len(pro) - S.marks[(0, 0)]
        s.startup = {}
        need = -1
        for s_ in range(0, 6):
            for P, tags, N in ((0, [('D', s_)], vm_bar), (1, [('T', 2 * s_)], vm_p1), (3, [('T', 2 * s_ + 1)], vm_p3)):
                if (s_, P) == (0, 0): continue
                site = S.marks[(s_, P)] + off
                for tg in tags:
                    idx = [i for i, e in enumerate(act) if e[:2] == tg]
                    if not idx: continue
                    if site - max(idx) - 1 < N: need = max(need, max(idx))
        if need >= 0:
            a.e(f's_waitcnt vmcnt({S.marks[(0, 1)] + off - need - 1})')
        a.e('s_branch L_g1_P1')
        s.snake = 0
        if opt('al', 1):
            a.raw('.p2align 6')
            for _ in range(opt('alo', 0)): a.e('s_nop 0')
        a.e('L_g1_loop:')
        for s_ in (4, 5):
            a.e(f's_add_u32 s83, s83, {G1_STG}')
            a.e('s_and_b32 s83, s83, 0x1ffff')
            a.e(f's_waitcnt vmcnt({vm_bar})')
            a.e('s_barrier')
            s.phase(s_, 0)
            if s_ == 4: a.e('L_g1_P1:')
            a.e(f's_waitcnt vmcnt({vm_p1})')
            s.phase(s_, 1)
            s.phase(s_, 2)
            a.e(f's_waitcnt vmcnt({vm_p3})')
            s.phase(s_, 3)
        a.e('s_add_u32 s84, s84, 1')
        a.e('s_cmp_lt_u32 s84, 8')
        a.e('s_cbranch_scc1 L_g1_loop')
        a.e('L_g1epi:')
        s.phase(6, 0, last=True)
        stamp(a, 12)
    def phase(s, s_, P, last=False):
        a = s.a; S = s.S
        kbuf = s.kof(s_, P) % s.ND
        mat = (P + 1) & 1
        items = []
        if not last:
            nxt = S.marks[(s_, P + 1)] if P < 3 else S.marks[(s_ + 1, 0)]
            items = [s.ev_ins(e) for e in S.ev[S.marks[(s_, P)]:nxt]]
        slots = [[] for _ in range(7)]
        for p_, it in zip([1, 2, 4, 5, 6], items): slots[p_] = it
        if P == 0 and not last:
            slots[0] = [f'v_add_u32 v{s.VR}, s83, v{s.VL}']
        for t in range(7):
            a.e(f's_waitcnt lgkmcnt({10 if not (last and t) else 12-2*t})')
            R = s.rd(P - 1, 6) if t == 0 else ([] if last else s.rd(P, t - 1))
            X = list(slots[t])
            pre = [x for x in X if 'm0' in x]
            X = [x for x in X if 'm0' not in x]
            gaps = [[] for _ in range(4)]
            if R: gaps[0] = pre + [R[0]]; gaps[1] = [R[1]]
            gaps[2] = X[:1]; gaps[3] = X[1:]
            order = [0, 1, 2, 3]
            if s.snake & 1: order.reverse()
            s.snake += 1
            for n, tm in enumerate(order):
                c = s.ACC + 4 * ((mat * 7 + t) * 4 + tm)
                tf = s.TF + 4 * (4 * kbuf + tm)
                if not opt('g1x') & 1: a.e(f'v_mfma_f32_16x16x32_bf16 v[{c}:{c+3}], a[{s.WF+4*t}:{s.WF+4*t+3}], a[{tf}:{tf+3}], v[{c}:{c+3}]')
                for x in gaps[n]:
                    if opt('g1x') & 2 and x.startswith('ds_'): continue
                    if opt('g1x') & 4 and x.startswith('buffer'): continue
                    a.e(x)
    def epilogue(s, g2):
        a = s.a
        L = Lin(a)
        a.e('s_mov_b32 s58, 0xbfb8aa3b')
        a.e('s_mov_b32 s59, 0xbfb8aa3b')
        g2.early(L)
        T = 8
        k = 0
        for tm in range(4):
            for u in range(4):
                O = (20, 24)[k & 1]
                fill = g2.epi_fill(k)
                def F(n=1):
                    for _ in range(n):
                        if fill: fill.pop(0)()
                tiles = [2 * u, 2 * u + 1] if u < 3 else [6]
                gs = []; us = []
                for t in tiles:
                    gs += [s.ACC + 4 * (t * 4 + tm), s.ACC + 4 * (t * 4 + tm) + 2]
                    us += [s.ACC + 4 * ((7 + t) * 4 + tm), s.ACC + 4 * ((7 + t) * 4 + tm) + 2]
                n = len(gs)
                nins = 9 * n
                cnt = [0]; ev_ = max(1, nins // (len(fill) + 1))
                def V(t):
                    a.e(t); cnt[0] += 1
                    if cnt[0] % ev_ == 0: F(1)
                for q in range(n): V(f'v_pk_mul_f32 v[{T+2*q}:{T+2*q+1}], v[{gs[q]}:{gs[q]+1}], s[58:59]')
                for q in range(2 * n): V(f'v_exp_f32 v{T+q}, v{T+q}')
                for q in range(n): V(f'v_pk_add_f32 v[{T+2*q}:{T+2*q+1}], v[{T+2*q}:{T+2*q+1}], 1.0 op_sel_hi:[1,0]')
                for q in range(2 * n): V(f'v_rcp_f32 v{T+q}, v{T+q}')
                for q in range(n): V(f'v_pk_mul_f32 v[{gs[q]}:{gs[q]+1}], v[{gs[q]}:{gs[q]+1}], v[{us[q]}:{us[q]+1}]')
                for q in range(n): V(f'v_pk_mul_f32 v[{T+2*q}:{T+2*q+1}], v[{T+2*q}:{T+2*q+1}], v[{gs[q]}:{gs[q]+1}]')
                for q in range(n): V(f'v_cvt_pk_bf16_f32 v{O+q}, v{T+2*q}, v{T+2*q+1}')
                if u < 3:
                    L.v('st', f'buffer_store_dwordx4 v[{O}:{O+3}], v{s.VT}, s[36:39], s85 offen offset:{1024*u}' + hfl())
                else:
                    L.v('st', f'buffer_store_dwordx2 v[{O}:{O+1}], v{s.VT}, s[36:39], s86 offen' + hfl())
                F(len(fill))
                k += 1
            if tm < 3:
                a.e('s_add_u32 s85, s85, 114688')
                a.e('s_add_u32 s86, s86, 114688')
        a.e(f's_lshl_b32 s87, s91, {fsh()}')
        a.e(f's_add_u32 s87, s87, {F3}')
        stamp(a, 13)
        a.e('L_g2code:')
        g2.post_epilogue()
        signal(a, 87, 5, waitfn=lambda: L.wait(vm=('st',)), wb=(opt('hfl') == 4))
        stamp(a, 18)

class G2:
    ACC, TF, DV, VT, RJ, TR, V1, VO, VF = 32, 96, 28, 16, 3, 8, 12, 13, 14
    REG = 40960
    def __init__(s, a): s.a = a
    def wreg(s, k, j):
        if k < 16: return 'a', 128 + 8 * k + 4 * j
        if k < 32: return 'a', 8 * (k - 16) + 4 * j
        NB = opt('nb', 12); nv = (160 - 4 * NB) // 8
        if k < 32 + nv: return 'v', 96 + 4 * NB + 8 * (k - 32) + 4 * j
        return 'a', 128 + 8 * (k - 32 - nv) + 4 * j
    def front_setup(s):
        a = s.a
        a.e('s_and_b32 s76, s2, 1')
        a.e('s_lshr_b32 s56, s2, 3')
        if opt('g2map', 1):
            a.e('s_bfe_u32 s74, s2, 0x10001')
            a.e('s_lshl_b32 s74, s74, 3')
            a.e('s_and_b32 s57, s56, 7')
            a.e('s_add_u32 s74, s74, s57')
            a.e('s_bfe_u32 s75, s2, 0x10002')
            a.e('s_lshl_b32 s75, s75, 2')
            a.e('s_lshr_b32 s57, s56, 3')
            a.e('s_add_u32 s75, s75, s57')
        else:
            a.e('s_bfe_u32 s74, s2, 0x20001')
            a.e('s_lshl_b32 s74, s74, 2')
            a.e('s_and_b32 s57, s56, 3')
            a.e('s_add_u32 s74, s74, s57')
            a.e('s_lshr_b32 s75, s56, 2')
        a.e('v_lshrrev_b32 v252, 2, v2')
        a.e('v_lshlrev_b32 v253, 11, v252')
        a.e('v_lshrrev_b32 v254, 3, v2')
        a.e('v_xor_b32 v254, v254, v2')
        a.e('v_and_b32 v254, 2, v254')
        a.e('v_and_or_b32 v254, v2, 1, v254')
        a.e('v_lshl_add_u32 v248, v254, 4, v253')
        for i in range(1, 4):
            a.e(f'v_add_u32 v{248+i}, {i*(32768-1024)}, v248')
        a.e('s_mul_i32 s56, s76, 3670016')
        a.e('s_lshl_b32 s57, s75, 8')
        a.e('s_add_u32 s56, s56, s57')
        a.e(f's_lshl_b32 s57, s{S_W}, 6')
        a.e('s_add_u32 s56, s56, s57')
        srd(a, 68, P_W2, None, 0, 56)
        a.e('s_sub_u32 s70, 7340032, s56')
        a.e('s_mov_b32 s72, 0')
        a.e('v_lshlrev_b32 v252, 6, v252')
        a.e('v_bfe_u32 v253, v2, 4, 1')
        a.e('v_lshl_add_u32 v252, v253, 5, v252')
        a.e('v_and_b32 v253, 3, v2')
        a.e('v_lshl_add_u32 v252, v253, 3, v252')
        a.e(f's_lshl_b32 s73, s{S_W}, 13')
        a.e('s_add_u32 s73, s73, 32768')
        a.e('v_add_u32 v253, s73, v252')
        a.e('v_xor_b32 v254, 32, v253')
    def fcell(s, n): return (32768, 36864, 0, 4096, 98304, 102400)[n]
    def fD(s, pairs, dv=248):
        a = s.a
        out = []
        for c, n in pairs:
            out.append(lambda n=n: a.e(f's_add_u32 m0, s73, {s.fcell(n)}'))
            for i in range(4):
                def f(i=i):
                    a.e(f'buffer_load_dwordx4 v{dv+i}, s[68:71], s72 offen offset:{1024*i} lds')
                    if i == 3: a.e('s_add_u32 s72, s72, 131072')
                out.append(f)
        return out
    def fM(s, pairs, base=253, sub=0):
        a = s.a
        for c, n in pairs:
            for kk in range(2):
                for j in range(2):
                    for h in range(2):
                        r, q = s.wreg(2 * c + kk, j)
                        a.e(f'ds_read_b64_tr_b16 {r}[{q+2*h}:{q+2*h+1}], v{base+j} offset:{s.fcell(n)-sub+2048*kk+1024*h}')
    def front_save(s):
        a = s.a
        for i in range(4): a.e(f'v_mov_b32 v{s.DV+i}, v{248+i}')
        a.e('v_mov_b32 v7, v252')
    def early(s, L):
        a = s.a; s.L = L
        a.e('s_mov_b32 s80, s74')
        a.e('s_mov_b32 s81, s75')
        a.e('s_mov_b32 s82, s76')
        a.e(f's_mul_i32 s98, s{S_W}, {s.REG}')
        a.e(f'v_add_u32 v{s.RJ}, s98, v7')
        a.e(f'v_xor_b32 v{s.RJ+1}, 32, v{s.RJ}')
        a.e('s_add_u32 s56, s73, 98304')
        a.e('v_add_u32 v5, s56, v7')
        a.e('v_xor_b32 v6, 32, v5')
        a.e('s_waitcnt vmcnt(0)')
        s.fM([(s.NF - 2, 4), (s.NF - 1, 5)], base=5, sub=98304)
        if opt('ne', 0):
            a.e('s_waitcnt lgkmcnt(0)')
            a.e('s_barrier')
        if opt('cpf2', 0): code_pf(a, 'L_g2code', 'L_end', 17, lambda t: L.v('cp', t))
        s.cell = {}
        s.free = list(range(10))
    def D(s, c):
        L = s.L
        def first():
            s.cell[c] = s.free.pop(0)
            L.e(f's_add_u32 m0, s98, {4096*s.cell[c]}')
        out = [first]
        for i in range(4):
            out.append(lambda i=i: L.v(('W', c), f'buffer_load_dwordx4 v{s.DV+i}, s[68:71], s72 offen offset:{1024*i} lds'))
        out.append(lambda: L.e('s_add_u32 s72, s72, 131072'))
        return out
    def M(s, c):
        L = s.L
        out = []
        for kk in range(2):
            for j in range(2):
                for h in range(2):
                    def f(kk=kk, j=j, h=h):
                        r, n = s.wreg(2 * c + kk, j)
                        L.l(('M', c), f'ds_read_b64_tr_b16 {r}[{n+2*h}:{n+2*h+1}], v{s.RJ+j} offset:{4096*s.cell[c]+2048*kk+1024*h}')
                    out.append(f)
        return out
    def Wv(s, c): return [lambda: s.L.wait(vm=(('W', c),))]
    def Fr(s, cs):
        def f():
            s.L.wait(lg0=True)
            for c in cs: s.free.append(s.cell[c])
        return [f]
    def epi_fill(s, k):
        D, M, Wv, Fr = s.D, s.M, s.Wv, s.Fr
        def cat(*xs): return [y for x in xs for y in x]
        ne = opt('ne', 0)
        if k == 0: s.A = cat(*[D(c) for c in range(s.NF, s.NF + ne)])
        if k == 0 or k % 4 == 3: return []
        n = -(-6 * ne // 11)
        out, s.A = s.A[:n], s.A[n:]
        return out
    def post_epilogue(s):
        a = s.a; L = s.L
        assert not s.A
        s.NA = s.NF + opt('ne', 0) + opt('na', 3)
        if not opt('ne', 0):
            a.e('s_waitcnt lgkmcnt(0)')
            a.e('s_barrier')
        a.inject([f for c in range(s.NF + opt('ne', 0), s.NA) for f in s.D(c)], 4)
        a.e(f'v_mov_b32 v{s.TR}, v{s.VT}')
        for q in range(1, 4):
            a.e(f'v_add_u32 v{s.TR+q}, {q*s.REG}, v{s.VT}')
        a.e(f'v_add_u32 v{s.V1}, {114688-2048}, v{s.VT}')
        for r in range(64):
            a.e(f'v_mov_b32 v{s.ACC+r}, 0')
        a.flush_inject()
        a.e('s_lshl_b32 s56, s80, 3')
        a.e(f's_lshl_b32 s57, s{S_W}, 1')
        a.e('s_lshl_b32 s58, s82, 2')
        a.e('s_xor_b32 s57, s57, s58')
        a.e('s_add_u32 s56, s56, s57')
        a.e('s_lshr_b32 s83, s56, 4')
        a.e('s_bfe_u32 s84, s56, 0x20002')
        hf_base(a, 57, 83, 84, 58)
        a.e('s_and_b32 s56, s56, 3')
        a.e('s_mul_i32 s56, s56, 114688')
        a.e('s_add_u32 s57, s57, s56')
        a.e('s_mul_i32 s58, s82, 57344')
        a.e('s_add_u32 s57, s57, s58')
        srd(a, 32, P_WS, 114688 + 57344, 0, 57)
        a.e('v_and_b32 v5, 15, v2')
        a.e('v_lshlrev_b32 v5, 11, v5')
        a.e('v_lshrrev_b32 v6, 4, v2')
        a.e(f'v_lshl_add_u32 v{s.VO}, v6, 3, v5')
        a.e('s_lshl_b32 s85, s80, 18')
        a.e('s_lshl_b32 s57, s82, 17')
        a.e('s_add_u32 s85, s85, s57')
        a.e('s_lshl_b32 s57, s81, 8')
        a.e('s_add_u32 s85, s85, s57')
        a.e(f's_lshl_b32 s57, s{S_W}, 6')
        a.e('s_add_u32 s85, s85, s57')
        a.e(f'v_and_b32 v{s.VF}, 31, v2')
        a.e(f'v_lshlrev_b32 v{s.VF}, {fsh()}, v{s.VF}')
    def main(s):
        a = s.a; L = s.L
        a.e('s_lshr_b32 s56, s80, 1')
        a.e(f's_lshl_b32 s56, s56, {5+fsh()}')
        a.e(f's_add_u32 s56, s56, {F3}')
        srd(a, 44, P_WS, 4 * MB, WS_H)
        a.e('s_mov_b32 s84, 0')
        L.wait(vm0=True)
        for c in range(s.NF, s.NA):
            for f in s.M(c): f()
        for f in s.Fr(range(s.NF, s.NA)): f()
        wait_flags(a, 56, s.VF, 20)
        stamp(a, 14)
        NS = 28
        slot = {}
        def TD(st):
            slot[st] = s.free.pop(0)
            out = [lambda: L.e(f's_add_u32 m0, s98, {4096*slot[st]}')]
            for i in range(4):
                v = s.VT if i < 2 else s.V1
                out.append(lambda i=i, v=v: L.v(('T', st), f'buffer_load_dwordx4 v{v}, s[32:35], s84 offen offset:{1024*i} sc1 lds'))
            out.append(lambda: (L.e('s_add_u32 s84, s84, 2048'), issued.add(st)))
            return out
        issued = set()
        NB = opt('nb', 12); KV = 32 + (160 - 4 * NB) // 8
        nxt = 0
        wc = opt('wc', 4)
        wfree, s.free = s.free[-wc:], s.free[:-wc]
        for _ in range(opt('t0', 3)):
            fs = TD(nxt); fs[0](); a.e('s_nop 0')
            for f in fs[1:]: f()
            nxt += 1
        L.wait(vm=(('T', 0),))
        a.e('s_barrier')
        X = opt('tx', 12)
        seq = [(k, tm) for k in range(56 - X) for tm in range(8)]
        seq += [(k, tm) for k in range(56 - X, 56) for tm in range(4, 8)]
        nS = len(seq)
        seq += [(k, tm) for k in range(56 - X, 56) for tm in range(4)]
        last_use = {}
        for g_, (k, tm) in enumerate(seq): last_use[k >> 1] = g_
        rdn = [0]
        def RDnext():
            if rdn[0] < 448:
                k, tm = seq[rdn[0]]
                f = s.TF + 4 * (rdn[0] % NB)
                L.l(('R', rdn[0]), f'ds_read_b128 v[{f}:{f+3}], v{s.TR+(tm>>1)} offset:{4096*slot[k>>1]+2048*(tm&1)+1024*(k&1)}')
                rdn[0] += 1
        for _ in range(NB - 1): RDnext()
        todo = list(range(s.NA, 28)); fly = []; pend = []; freed = set(); vis = 0; wseen = set()
        assert NB - 1 <= 16
        HR = 192
        a.e('s_lshl_b32 s56, s2, 2')
        a.e(f's_add_u32 s56, s56, s{S_W}')
        a.e('s_lshl_b32 s57, s56, 13')
        a.e('s_xor_b32 s58, s57, 0x8000')
        a.e('s_lshl_b32 s56, s56, 6')
        a.e(f's_add_u32 s56, s56, {F4}')
        a.e('s_xor_b32 s59, s56, 0x100')
        srd(a, 40, P_WS, 8 * MB, WS_XP)
        srd(a, 48, P_OUT, 4 * MB)
        a.e('s_add_u32 s87, s57, 4096')
        a.e('s_add_u32 s88, s58, 4096')
        a.e('v_mov_b32 v20, 0')
        a.e(f'v_mov_b32 v21, s{S_NONCE}')
        def flag_store():
            L.wait(vm=('xs',))
            stamp(a, 16)
            a.e('s_mov_b64 exec, 1')
            L.v('fl', f'buffer_store_dword v21, v20, s[{S_FLG}:{S_FLG+3}], s56 offen sc1')
            a.e('s_mov_b64 exec, -1')
        gF = nS + opt('tf', 48) * (448 - nS) // 64 if X else None
        for u in range(56):
            k0 = seq[8 * u][0]
            fill = []
            if opt('g2st') and u in (0, 4, 16, 32, 48):
                a.e('s_memtime s[66:67]'); a.e('s_waitcnt lgkmcnt(0)'); L.lg = []
                a.e(f'v_writelane_b32 v1, s66, {26 + (0, 4, 16, 32, 48).index(u)}')
            if s.free and nxt < NS and (u & 1 or u < 8 or not todo or len(s.free) > 1):
                fill += TD(nxt); nxt += 1
                if not todo and not fly and s.free and nxt < NS:
                    fill += TD(nxt); nxt += 1
            if not u & 1 and u >= opt('wk0', 2):
                if fly and u >= fly[0][1] + opt('wlat', 4):
                    c = fly.pop(0)[0]
                    assert 2 * c + 1 < KV or u >= 2 * c + 2 - KV
                    fill += s.Wv(c) + s.M(c)
                    pend.append(c)
                if todo and wfree:
                    c = todo.pop(0)
                    fs = s.D(c)
                    s.cell[c] = wfree.pop(0)
                    fill += [lambda c=c: L.e(f's_add_u32 m0, s98, {4096*s.cell[c]}')] + fs[1:]
                    fly.append((c, u))
            if 8 * u == nS and X:
                for q in range(8):
                    c = s.ACC + 32 + 4 * q
                    fill.append(lambda q=q, c=c: L.v('xs', f'buffer_store_dwordx4 v[{c}:{c+3}], v{s.VT}, s[40:43], s{57 if q < 4 else 87} offen offset:{1024*(q&3)} sc1'))
            if u == 52:
                for tm in range(4):
                    for j in range(2):
                        def f(tm=tm, j=j):
                            if j == 0 and tm: L.e(f's_add_u32 s86, s85, {32768*tm}')
                            r = 4 + 0
                            L.v('h', f'buffer_load_dwordx2 a[{4*tm+2*j}:{4*tm+2*j+1}], v{s.VO}, s[44:47], s{86 if tm else 85} offen offset:{32*j} sc1')
                        fill.append(f)
            per = -(-(len(fill) + 1) // 8)
            SS = opt('ss', 1)
            for i in range(8):
                g_ = 8 * u + i
                k, tm = seq[g_]
                if rdn[0] < 448 and seq[rdn[0]][0] >> 1 > vis:
                    q = seq[rdn[0]][0] >> 1
                    vis = min(NS - 1, q + SS - 1) if q > 1 else q
                    assert vis in issued, (u, i, vis)
                    L.wait(vm=(('T', vis),))
                    a.e('s_barrier')
                    for q2 in list(slot):
                        if q2 not in freed and last_use[q2] < g_:
                            freed.add(q2); s.free.append(slot[q2])
                need = [('R', g_)]
                if k >> 1 not in wseen:
                    wseen.add(k >> 1)
                    assert k >> 1 not in todo and all(c != k >> 1 for c, _ in fly), (k, u)
                    need.append(('M', k >> 1))
                if g_ == gF: flag_store()
                L.wait(lg=need)
                order = [0, 1] if g_ % 2 == 0 else [1, 0]
                for n, j in enumerate(order):
                    r, w = s.wreg(k, j)
                    c = s.ACC + 4 * (2 * tm + j)
                    tf = s.TF + 4 * (g_ % NB)
                    if not opt('g2x') & 1:
                        a.e(f'v_mfma_f32_16x16x32_bf16 v[{c}:{c+3}], {r}[{w}:{w+3}], v[{tf}:{tf+3}], v[{c}:{c+3}]')
                    if n == 0:
                        RDnext()
                    else:
                        for _ in range(per):
                            if fill:
                                fill.pop(0)()
                                if 'm0' in a.lines[-1]: break
            while fill:
                if 'm0' in a.lines[-1]: a.e('s_nop 0')
                fill.pop(0)()
            for c in list(pend):
                if not any(x == ('M', c) for x in L.lg):
                    pend.remove(c)
                    (wfree if todo else s.free).append(s.cell[c])
            if not todo and wfree and not fly and not pend:
                s.free += wfree; wfree = []
        assert not todo and not fly and not pend and nxt == NS
        stamp(a, 15)
        if not X:
            a.e('s_nop 7')
            for q in range(8):
                c = s.ACC + 32 + 4 * q
                L.v('xs', f'buffer_store_dwordx4 v[{c}:{c+3}], v{s.VT}, s[40:43], s{57 if q < 4 else 87} offen offset:{1024*(q&3)} sc1')
            flag_store()
        wait_flags(a, 59, 20, 22, solo=0)
        stamp(a, 17)
        P1 = 96
        for q in range(8):
            a.e(f'buffer_load_dwordx4 v[{P1+4*q}:{P1+4*q+3}], v{s.VT}, s[40:43], s{58 if q < 4 else 88} offen offset:{1024*(q&3)} sc1')
        H = 208
        for q in range(16):
            a.e(f'v_accvgpr_read_b32 v{HR+q}, a{q}')
        for q in range(16):
            unpack(a, H + 2 * q, H + 2 * q + 1, HR + q)
        for q in range(8):
            tm, j = q >> 1, q & 1
            if j == 0 and tm: a.e(f's_add_u32 s85, s85, 32768')
            a.e('s_waitcnt vmcnt(7)')
            c = s.ACC + 4 * q
            for e in range(2):
                x = c + 2 * e; y = P1 + 4 * q + 2 * e; h = H + 4 * q + 2 * e
                a.e(f'v_pk_add_f32 v[{x}:{x+1}], v[{x}:{x+1}], v[{y}:{y+1}]')
                a.e(f'v_cvt_pk_bf16_f32 v{y}, v{x}, v{x+1}')
                unpack(a, x, x + 1, y)
                a.e(f'v_pk_add_f32 v[{x}:{x+1}], v[{x}:{x+1}], v[{h}:{h+1}]')
                a.e(f'v_cvt_pk_bf16_f32 v{192+2*q+e}, v{x}, v{x+1}')
            a.e(f'buffer_store_dwordx2 v[{192+2*q}:{192+2*q+1}], v{s.VO}, s[48:51], s85 offen offset:{32*j}' + ['', ' sc1', ' nt', ' sc0 sc1'][opt('ofl')])
        LIN[0] = None

def gen_dg(a):
    d = opt('dg'); F, ia, ib = d // 10000, d // 100 % 100, d % 100
    m = opt('dgm')
    a.raw('.globl dg_kernel\n.p2align 8\n.type dg_kernel,@function\ndg_kernel:')
    a.e('s_load_dwordx2 s[10:11], s[0:1], 96')
    a.e('s_memrealtime s[12:13]')
    a.e('s_waitcnt lgkmcnt(0)')
    a.e(f's_add_u32 s10, s10, {STAMP_BASE + opt("dgw", 0) * 128:#x}')
    a.e('s_addc_u32 s11, s11, 0')
    if not m:
        a.e(f's_load_dword s4, s[10:11], {4*ia}')
        a.e(f's_load_dword s5, s[10:11], {4*ib}')
        a.e('s_waitcnt lgkmcnt(0)')
    else:
        a.e('s_mov_b32 s20, s10\ns_mov_b32 s21, s11\ns_mov_b32 s22, 0x20000\ns_mov_b32 s23, 0x20000')
        a.e('v_lshlrev_b32 v1, 7, v0')
        for i in range(16):
            a.e(f's_mov_b32 s6, {i*8192}')
            a.e(f'buffer_load_dword v{8+i}, v1, s[20:23], s6 offen offset:{4*ia}')
            a.e(f'buffer_load_dword v{24+i}, v1, s[20:23], s6 offen offset:{4*ib}')
        a.e('s_waitcnt vmcnt(0)')
        for i in range(32):
            a.e(f'v_sub_u32 v{8+i}, s12, v{8+i}')
        opa = 'v_max_u32' if m != 3 else 'v_add_u32'
        opb = {1: 'v_min_u32', 2: 'v_max_u32', 3: 'v_add_u32'}[m]
        for i in range(1, 16):
            a.e(f'{opa} v8, v8, v{8+i}')
            a.e(f'{opb} v24, v24, v{24+i}')
        a.e('s_nop 1')
        a.e('v_readlane_b32 s4, v8, 0')
        a.e('v_readlane_b32 s5, v24, 0')
        sa = 's_max_u32' if m != 3 else 's_add_u32'
        sb = {1: 's_min_u32', 2: 's_max_u32', 3: 's_add_u32'}[m]
        for l in range(1, 64):
            a.e(f'v_readlane_b32 s6, v8, {l}')
            a.e(f'v_readlane_b32 s7, v24, {l}')
            a.e('s_nop 0')
            a.e(f'{sa} s4, s4, s6')
            a.e(f'{sb} s5, s5, s7')
        a.e('s_sub_u32 s5, s4, s5')
        if m == 3: a.e('s_lshr_b32 s5, s5, 10')
        a.e('s_mov_b32 s4, 0')
        a.e('s_memrealtime s[12:13]')
        a.e('s_waitcnt lgkmcnt(0)')
    a.e('s_sub_u32 s4, s5, s4')
    a.e('s_min_u32 s4, s4, 10000')
    a.e(f's_mul_i32 s4, s4, {F}')
    a.e('L_dg:')
    a.e('s_memrealtime s[14:15]')
    a.e('s_waitcnt lgkmcnt(0)')
    a.e('s_sub_u32 s5, s14, s12')
    a.e('s_cmp_lt_u32 s5, s4')
    a.e('s_cbranch_scc1 L_dg')
    a.e('s_endpgm')

def build():
    a = Asm()
    hdr = open('cdna_kernels/' + NAME + '.s.ref').read().split('\n')
    cm = [l for l in hdr if l.startswith(';') and '@launch' not in l and 'Override launch' not in l and 'grid=ceil' not in l]
    out = '\n'.join(cm) + '\n'
    if opt('aslist') or opt('dg'):
        out += f'; @launch kernel={KNAME} grid=(256,1,1) block=(256,1,1) lds=163840\n'
        if opt('dg'): out += '; @launch kernel=dg_kernel grid=(1,1,1) block=(64,1,1) lds=0\n'
    else:
        out += '; @launch grid=(256,1,1) block=(256,1,1) lds=163840\n'
    a.raw('.amdgcn_target "amdgcn-amd-amdhsa--gfx950"')
    a.raw('.text')
    gen(a)
    if opt('dg'): gen_dg(a)
    body = a.text()
    errs = check_hazards(body)
    errs += check_waits(body, KNAME, loop_iters=2, take_fwd=('L_nonce_ok', 'L_nonce_skip', 'L_clean_skip') + tuple(f'L_sig{i}' for i in range(20)) + tuple(f'L_poll{i}x' for i in range(20)))
    errs += check_waits(body, KNAME, loop_iters=2, take_fwd=('L_nonce_ok',) + (() if opt('solo', 1) else tuple(f'L_poll{i}x' for i in range(20))))
    for e in errs[:8]: print(e, file=sys.stderr)
    na = 256
    out += body + f'''.section .rodata,"a"
.p2align 6
.amdhsa_kernel {KNAME}
  .amdhsa_next_free_vgpr {256+na}
  .amdhsa_next_free_sgpr 102
  .amdhsa_accum_offset 256
  .amdhsa_group_segment_fixed_size 0
  .amdhsa_kernarg_size 104
  .amdhsa_user_sgpr_count 2
  .amdhsa_user_sgpr_kernarg_segment_ptr 1
  .amdhsa_system_sgpr_workgroup_id_x 1
  .amdhsa_float_denorm_mode_32 3
.end_amdhsa_kernel
'''
    if opt('dg'):
        out += '''.p2align 6
.amdhsa_kernel dg_kernel
  .amdhsa_next_free_vgpr 48
  .amdhsa_next_free_sgpr 32
  .amdhsa_accum_offset 48
  .amdhsa_group_segment_fixed_size 0
  .amdhsa_kernarg_size 104
  .amdhsa_user_sgpr_count 2
  .amdhsa_user_sgpr_kernarg_segment_ptr 1
  .amdhsa_system_sgpr_workgroup_id_x 1
.end_amdhsa_kernel
'''
    return out, errs

if __name__ == '__main__':
    outp = sys.argv[1]
    for kv in sys.argv[2:]:
        k, v = kv.split('=')
        OPT[k] = int(v)
    t, errs = build()
    open(outp, 'w').write(t)
    print('written', outp, len(t), 'bytes;', len(errs), 'checker errors')
```

```python
import sys, os
from asmlib import *

NAME = 'sequential_preLN__ssm_conv_h3__glu_gated_swiglu__prompt'
KNAME = NAME + '_kernel'
MB = 1 << 20
WS0 = int(os.environ.get('WS0', '0')) * MB
WS_UB, WS_Y2, WS_H, WS_HNF, WS_HF, WS_XP, WS_FLG = [WS0 + x * MB for x in (0, 4, 8, 12, 16, 32, 40)]
STAMP_BASE = 64 * MB
OPT = {}
def opt(k, d=0): return OPT.get(k, d)

P_Q, P_K, P_V, P_SH, P_SSMK, P_D, P_X, P_W1, P_W3, P_W2, P_OUT, P_DBG, P_WS = [4 + 2 * i for i in range(13)]
S_W, S_NONCE, S_MASK = 30, 31, 90
S_FLG = 92
F0, F1, F2, F3, F4 = 0, 32768, 65536, 98304, 131072
FLG_SIZE = 262144
LDS_KA = 98304
KA_REG = 13056
NSTAMP = 20
AST = 128

def srd(a, d, p, size, add=0, addreg=None):
    if add or addreg is not None:
        if add:
            a.e(f's_add_u32 s{d}, s{p}, {add:#x}')
            a.e(f's_addc_u32 s{d+1}, s{p+1}, 0')
            if addreg is not None:
                a.e(f's_add_u32 s{d}, s{d}, s{addreg}')
                a.e(f's_addc_u32 s{d+1}, s{d+1}, 0')
        else:
            a.e(f's_add_u32 s{d}, s{p}, s{addreg}')
            a.e(f's_addc_u32 s{d+1}, s{p+1}, 0')
    else:
        a.e(f's_mov_b32 s{d}, s{p}')
        a.e(f's_mov_b32 s{d+1}, s{p+1}')
    if size is not None:
        a.e(f's_mov_b32 s{d+2}, {size:#x}')
    a.e(f's_mov_b32 s{d+3}, 0x20000')

def stamp(a, i):
    if not opt('stamp'): return
    a.e('s_memrealtime s[60:61]')
    if i == 0: a.e('s_memtime s[62:63]')
    cy = {11: 20, 12: 21, 14: 22, 15: 23, 4: 24, 5: 25}.get(i)
    if cy: a.e('s_memtime s[66:67]')
    a.e('s_waitcnt lgkmcnt(0)')
    a.e(f'v_writelane_b32 v1, s60, {i}')
    if cy: a.e(f'v_writelane_b32 v1, s66, {cy}')
    if LIN[0]: LIN[0].lg = []

def stamp_out(a, n):
    if not opt('stamp'): return
    a.e('s_waitcnt vmcnt(0)')
    stamp(a, n - 1)
    a.e('s_memtime s[64:65]')
    a.e('s_waitcnt lgkmcnt(0)')
    srd(a, 32, P_WS, 1 * MB, STAMP_BASE)
    a.e('s_lshl_b32 s84, s2, 2')
    a.e(f's_add_u32 s84, s84, s{S_W}')
    a.e('s_lshl_b32 s84, s84, 7')
    a.e('s_sub_u32 s64, s64, s62')
    a.e('v_writelane_b32 v1, s64, 31')
    a.e('v_mbcnt_lo_u32_b32 v2, -1, 0')
    a.e('v_lshlrev_b32 v2, 2, v2')
    a.e('s_mov_b64 exec, 0xffffffff')
    a.e('buffer_store_dword v1, v2, s[32:35], s84 offen')

LIN = [None]
class Lin:
    def __init__(s, a): s.a = a; s.vm = []; s.lg = []; LIN[0] = s
    def e(s, t): s.a.e(t)
    def v(s, tag, t): s.a.e(t); s.vm.append(tag)
    def l(s, tag, t): s.a.e(t); s.lg.append(tag)
    def _n(s, q, tags, cap):
        idx = [i for i, x in enumerate(q) if x in tags]
        if not idx: return None
        n = len(q) - max(idx) - 1
        return min(n, cap)
    def wait(s, vm=(), lg=(), vm0=False, lg0=False):
        nv = 0 if vm0 else s._n(s.vm, vm, 63)
        nl = 0 if lg0 else s._n(s.lg, lg, 15)
        t = ''
        if nv is not None:
            t += f' vmcnt({nv})'; s.vm = s.vm[len(s.vm) - nv:] if nv else []
        if nl is not None:
            t += f' lgkmcnt({nl})'; s.lg = s.lg[len(s.lg) - nl:] if nl else []
        if t: s.a.e('s_waitcnt' + t)

def unpack(a, dlo, dhi, src):
    a.e(f'v_lshlrev_b32 v{dlo}, 16, v{src}')
    a.e(f'v_and_b32 v{dhi}, s{S_MASK}, v{src}')

def hfl():
    return [' sc1', ' sc0 sc1', ' sc1 nt', ' sc0 sc1 nt', ''][opt('hfl')]

def code_pf(a, lab_from, lab_to, vt, emit=None, n=1):
    _uid[0] += 1
    L = f'L_pc{_uid[0]}'
    a.e('s_getpc_b64 s[78:79]')
    a.e(f'{L}:')
    a.e(f's_lshl_b32 s77, s{S_W}, 13')
    a.e(f's_add_u32 s77, s77, {lab_from}-{L}')
    for i in range(n):
        if i: a.e('s_add_u32 s77, s77, 32768')
        a.e(f'v_lshl_add_u32 v{vt}, v2, 7, s77')
        a.e(f'v_min_u32 v{vt}, {lab_to}-{L}, v{vt}')
        t = f'global_load_dword v{vt+1+i}, v{vt}, s[78:79]'
        if emit: emit(t)
        else: a.e(t)

def hf_base(a, d, mb, q, t):
    if not opt('reuse', 0):
        a.e(f's_lshl_b32 s{d}, s{mb}, 2')
        a.e(f's_add_u32 s{d}, s{d}, s{q}')
        a.e(f's_mul_i32 s{d}, s{d}, 458752')
        a.e(f's_add_u32 s{d}, s{d}, {WS_HF:#x}')
        return
    a.e(f's_lshl_b32 s{d}, s{mb}, 1')
    a.e(f's_add_u32 s{d}, s{d}, s{q}')
    a.e(f's_mul_i32 s{d}, s{d}, 458752')
    a.e(f's_add_u32 s{d}, s{d}, {WS_HF:#x}')
    a.e(f's_lshl_b32 s{t}, s{mb}, 19')
    a.e(f's_cmp_eq_u32 s{q}, 1')
    a.e(f's_cselect_b32 s{d}, s{t}, s{d}')
    a.e(f's_add_u32 s{t}, s{t}, {WS_Y2 - WS_UB:#x}')
    a.e(f's_cmp_eq_u32 s{q}, 0')
    a.e(f's_cselect_b32 s{d}, s{t}, s{d}')

_uid = [0]
def signal(a, soff, vt, waitfn=None, wb=False):
    _uid[0] += 1
    L = f'L_sig{_uid[0]}'
    a.e(f'v_mov_b32 v{vt}, 0')
    a.e(f'v_mov_b32 v{vt+1}, s{S_NONCE}')
    a.e(f's_cmp_eq_u32 s{S_W}, 0')
    if waitfn: waitfn()
    else: a.e('s_waitcnt vmcnt(0)')
    a.e('s_barrier')
    a.e(f's_cbranch_scc0 {L}')
    if wb:
        a.e('buffer_wbl2 sc1')
        a.e('s_waitcnt vmcnt(0)')
    a.e('s_mov_b64 exec, 1')
    a.e(f'buffer_store_dword v{vt+1}, v{vt}, s[{S_FLG}:{S_FLG+3}], s{soff} offen sc1')
    a.e('s_mov_b64 exec, -1')
    a.e(f'{L}:')

def fsh():
    return opt('fs', 32).bit_length() - 1
def f1sh():
    return opt('f1s', 32).bit_length() - 1

def wait_flags(a, soff, voff, vd, n=64, solo=None):
    _uid[0] += 1
    L = f'L_poll{_uid[0]}'
    if solo is None: solo = opt('solo', 1)
    if solo:
        a.e(f's_cmp_lg_u32 s{S_W}, {opt("pw", 0)}')
        a.e(f's_cbranch_scc1 {L}x')
    a.e(f'{L}:')
    if n == 256:
        if f1sh() == 2:
            a.e(f'buffer_load_dwordx4 v[{vd}:{vd+3}], v{voff}, s[{S_FLG}:{S_FLG+3}], s{soff} offen sc1')
        else:
            for i in range(4):
                a.e(f's_add_u32 s89, s{soff}, {i*(64<<f1sh())}')
                a.e(f'buffer_load_dword v{vd+i}, v{voff}, s[{S_FLG}:{S_FLG+3}], s89 offen sc1')
        a.e('s_waitcnt vmcnt(0)')
        a.e(f'v_xor_b32 v{vd}, s{S_NONCE}, v{vd}')
        a.e(f'v_xor_b32 v{vd+1}, s{S_NONCE}, v{vd+1}')
        a.e(f'v_xor_b32 v{vd+2}, s{S_NONCE}, v{vd+2}')
        a.e(f'v_xor_b32 v{vd+3}, s{S_NONCE}, v{vd+3}')
        a.e(f'v_or3_b32 v{vd}, v{vd}, v{vd+1}, v{vd+2}')
        a.e(f'v_or_b32 v{vd}, v{vd}, v{vd+3}')
        a.e(f'v_cmp_ne_u32 vcc, 0, v{vd}')
    else:
        a.e(f'buffer_load_dword v{vd}, v{voff}, s[{S_FLG}:{S_FLG+3}], s{soff} offen sc1')
        a.e('s_waitcnt vmcnt(0)')
        a.e(f'v_cmp_ne_u32 vcc, s{S_NONCE}, v{vd}')
    a.e('s_add_u32 s3, s3, 1')
    a.e(f's_cmp_gt_u32 s3, {opt("spin", 200000)}')
    a.e(f's_cbranch_scc1 {L}x')
    a.e(f's_cbranch_vccz {L}x')
    if opt('sleep'): a.e(f's_sleep {opt("sleep")}')
    a.e(f's_branch {L}')
    a.e(f'{L}x:')
    if solo: a.e('s_barrier')

def wave_sum2(a, va, vb, sa, sb):
    for mod in ('row_shr:1 row_mask:0xf bank_mask:0xf bound_ctrl:0', 'row_shr:2 row_mask:0xf bank_mask:0xf bound_ctrl:0',
                'row_shr:4 row_mask:0xf bank_mask:0xf bound_ctrl:0', 'row_shr:8 row_mask:0xf bank_mask:0xf bound_ctrl:0',
                'row_bcast:15 row_mask:0xa bank_mask:0xf', 'row_bcast:31 row_mask:0xc bank_mask:0xf'):
        a.e('s_nop 0')
        a.e(f'v_add_f32_dpp v{va}, v{va}, v{va} {mod}')
        a.e(f'v_add_f32_dpp v{vb}, v{vb}, v{vb} {mod}')
    a.e(f'v_readlane_b32 s{sa}, v{va}, 63')
    a.e(f'v_readlane_b32 s{sb}, v{vb}, 63')

def ln2(a, X, T, M, R, C, XM):
    def both(f):
        for r in range(2): f(r)
    for q in range(4):
        both(lambda r: a.e(f'v_pk_add_f32 v[{T[r]+2*q}:{T[r]+2*q+1}], v[{X[r]+4*q}:{X[r]+4*q+1}], v[{X[r]+4*q+2}:{X[r]+4*q+3}]'))
    both(lambda r: a.e(f'v_pk_add_f32 v[{T[r]}:{T[r]+1}], v[{T[r]}:{T[r]+1}], v[{T[r]+2}:{T[r]+3}]'))
    both(lambda r: a.e(f'v_pk_add_f32 v[{T[r]+4}:{T[r]+5}], v[{T[r]+4}:{T[r]+5}], v[{T[r]+6}:{T[r]+7}]'))
    both(lambda r: a.e(f'v_pk_add_f32 v[{T[r]}:{T[r]+1}], v[{T[r]}:{T[r]+1}], v[{T[r]+4}:{T[r]+5}]'))
    both(lambda r: a.e(f'v_add_f32 v{T[r]}, v{T[r]}, v{T[r]+1}'))
    wave_sum2(a, T[0], T[1], 56, 57)
    a.e('s_nop 0')
    both(lambda r: a.e(f'v_mul_f32 v{M[r]}, s{56+r}, v{C}'))
    both(lambda r: a.e(f'v_mov_b32 v{M[r]+1}, v{M[r]}'))
    for q in range(8):
        both(lambda r: a.e(f'v_pk_add_f32 v[{T[r]+2*q}:{T[r]+2*q+1}], v[{X[r]+2*q}:{X[r]+2*q+1}], v[{M[r]}:{M[r]+1}] neg_lo:[0,1] neg_hi:[0,1]'))
    both(lambda r: a.e(f'v_pk_mul_f32 v[{R[r]}:{R[r]+1}], v[{T[r]}:{T[r]+1}], v[{T[r]}:{T[r]+1}]'))
    for q in range(1, 8):
        both(lambda r: a.e(f'v_pk_fma_f32 v[{R[r]}:{R[r]+1}], v[{T[r]+2*q}:{T[r]+2*q+1}], v[{T[r]+2*q}:{T[r]+2*q+1}], v[{R[r]}:{R[r]+1}]'))
    both(lambda r: a.e(f'v_add_f32 v{R[r]}, v{R[r]}, v{R[r]+1}'))
    def rbf(v):
        a.e(f'v_cvt_pk_bf16_f32 v{v}, v{v}, v{v}')
        a.e(f'v_and_b32 v{v}, s{S_MASK}, v{v}')
    both(lambda r: rbf(M[r]))
    wave_sum2(a, R[0], R[1], 58, 59)
    both(lambda r: a.e(f'v_mov_b32 v{M[r]+1}, v{M[r]}'))
    both(lambda r: a.e(f'v_mul_f32 v{R[r]}, s{58+r}, v{C}'))
    both(lambda r: rbf(R[r]))
    both(lambda r: a.e(f'v_add_f32 v{R[r]}, 0x3727c5ac, v{R[r]}'))
    both(lambda r: rbf(R[r]))
    both(lambda r: a.e(f'v_sqrt_f32 v{R[r]}, v{R[r]}'))
    for q in range(2):
        both(lambda r: a.e(f'v_pk_add_f32 v[{XM[r]+2*q}:{XM[r]+2*q+1}], v[{X[r]+2*q}:{X[r]+2*q+1}], v[{M[r]}:{M[r]+1}] neg_lo:[0,1] neg_hi:[0,1]'))
    both(lambda r: rbf(R[r]))
    both(lambda r: a.e(f'v_rcp_f32 v{R[r]}, v{R[r]}'))
    for q in range(2, 8):
        both(lambda r: a.e(f'v_pk_add_f32 v[{XM[r]+2*q}:{XM[r]+2*q+1}], v[{X[r]+2*q}:{X[r]+2*q+1}], v[{M[r]}:{M[r]+1}] neg_lo:[0,1] neg_hi:[0,1]'))
    both(lambda r: a.e(f'v_mov_b32 v{R[r]+1}, v{R[r]}'))
    for q in range(8):
        both(lambda r: a.e(f'v_pk_mul_f32 v[{T[r]+2*q}:{T[r]+2*q+1}], v[{XM[r]+2*q}:{XM[r]+2*q+1}], v[{R[r]}:{R[r]+1}]'))

class Sched:
    def __init__(self): self.ev = []; self.marks = {}
    def mark(self, k): self.marks[k] = len(self.ev)
    def add(self, L): self.ev += L
    def younger(self, tag, at):
        last = max(i for i, e in enumerate(self.ev) if e[:2] == tag)
        assert last < self.marks[at], (tag, at)
        return self.marks[at] - last - 1

def gen(a):
    a.raw(f'.globl {KNAME}')
    a.raw('.p2align 8')
    a.raw(f'.type {KNAME},@function')
    a.raw(f'{KNAME}:')
    a.e('s_cmp_ge_u32 s2, 256')
    a.e('s_cbranch_scc1 L_end')
    a.e('s_load_dwordx8 s[4:11], s[0:1], 0')
    a.e('s_load_dwordx8 s[20:27], s[0:1], 64')
    a.e('s_load_dwordx2 s[28:29], s[0:1], 96')
    a.e('s_load_dwordx8 s[12:19], s[0:1], 32')
    a.e('s_memrealtime s[56:57]')
    a.e('v_lshrrev_b32 v1, 6, v0')
    a.e('v_and_b32 v2, 63, v0')
    a.e(f'v_readfirstlane_b32 s{S_W}, v1')
    a.e(f's_mov_b32 s{S_MASK}, 0xffff0000')
    a.e('s_mov_b32 s3, 0')
    a.e('s_bfe_u32 s82, s2, 0x30003')
    a.e('s_and_b32 s83, s2, 7')
    a.e('s_lshr_b32 s84, s2, 6')
    a.e('s_lshl_b32 s84, s84, 3')
    a.e('s_or_b32 s83, s83, s84')
    a.e('v_and_b32 v9, 7, v0')
    a.e('v_bfe_u32 v10, v0, 4, 1')
    a.e('v_lshl_add_u32 v1, v9, 1, v10')
    a.e('v_lshrrev_b32 v8, 5, v0')
    a.e('v_bfe_u32 v11, v0, 3, 1')
    a.e('v_lshl_add_u32 v8, v8, 1, v11')
    a.e('s_lshl_b32 s85, s83, 17')
    a.e('s_lshl_b32 s86, s82, 8')
    a.e('s_add_u32 s85, s85, s86')
    a.e('v_lshlrev_b32 v3, 13, v1')
    a.e('v_lshl_add_u32 v3, v8, 4, v3')
    a.e('v_add_u32 v3, s85, v3')
    a.e('v_add_u32 v4, 0xffffe800, v3')
    a.e('v_add_u32 v5, 0xfffff800, v3')
    a.e('v_add_u32 v6, 0x1000, v3')
    a.e('s_lshl_b32 s86, s82, 10')
    a.e('v_lshlrev_b32 v7, 6, v8')
    a.e('v_add_u32 v7, s86, v7')
    a.e('s_lshl_b32 s87, s82, 5')
    a.e('s_add_u32 s87, s87, s83')
    a.e('s_lshl_b32 s88, s87, 14')
    a.e('s_add_u32 s88, s88, 112')
    a.e('v_lshlrev_b32 v160, 10, v8')
    a.e('v_lshl_add_u32 v160, v10, 9, v160')
    a.e('v_lshlrev_b32 v161, 4, v9')
    a.e('v_sub_u32 v160, v160, v161')
    a.e('v_add_u32 v160, s88, v160')
    a.e(f's_lshl_b32 s87, s87, {fsh()}')
    a.e('v_mov_b32 v162, 0')
    a.e('s_waitcnt lgkmcnt(0)')
    stamp(a, 0)
    if opt('stamp') and not opt('g2st'): a.e('v_writelane_b32 v1, s56, 30')
    srd(a, 32, P_K, 4 * MB)
    srd(a, 36, P_V, 4 * MB)
    srd(a, 40, P_SH, 8192)
    KR, VR_, WR, WU, KU, AC0 = 8, 36, 52, 68, 100, 164
    for j in range(4):
        a.e(f'buffer_load_dwordx4 v[{WR+4*j}:{WR+4*j+3}], v7, s[40:43], 0 offen offset:{16*j}')
    rows = [(4, 0), (4, 2048), (5, 0), (3, 0), (3, 2048), (6, 0), (6, 2048)]
    for r, (vr, off) in enumerate(rows):
        a.e(f'buffer_load_dwordx4 v[{KR+4*r}:{KR+4*r+3}], v{vr}, s[32:35], 0 offen offset:{off}')
    for r, (vr, off) in enumerate(rows[3:]):
        a.e(f'buffer_load_dwordx4 v[{VR_+4*r}:{VR_+4*r+3}], v{vr}, s[36:39], 0 offen offset:{off}')
    ncp = 0
    if opt('cpf', 0):
        a.e('s_getpc_b64 s[58:59]')
        a.e('L_pc:')
        a.e('v_lshlrev_b32 v163, 7, v0')
        a.e('v_min_u32 v163, L_end-L_pc, v163')
        a.e('global_load_dword v161, v163, s[58:59]')
        ncp = 1
    srd(a, 48, P_WS, 4 * MB, WS_UB)
    if opt('pt', 0) & 1:
        a.e('v_lshlrev_b32 v163, 6, v0')
        a.e('s_sub_u32 s58, s88, 120')
        a.e('buffer_load_dword v161, v163, s[48:51], s58 offen')
        ncp += 1
    KD, KX, XP = 200, 216, 224
    KP, XPOS = opt('kp', 1), opt('xp', 2)
    def k_loads():
        a.e('s_and_b32 s74, s2, 7')
        a.e('s_lshl_b32 s74, s74, 7')
        a.e('s_lshr_b32 s75, s2, 3')
        a.e('s_lshl_b32 s75, s75, 2')
        a.e('s_add_u32 s74, s74, s75')
        a.e(f's_add_u32 s74, s74, s{S_W}')
        a.e('s_lshl_b32 s74, s74, 12')
        srd(a, 68, P_SSMK, 4096, 0, 74)
        a.e('v_lshlrev_b32 v220, 4, v2')
        for j in range(4):
            a.e(f'buffer_load_dwordx4 v[{KD+4*j}:{KD+4*j+3}], v220, s[68:71], 0 offen offset:{1024*j}')
            a.e(f'buffer_load_dword v{KX+j}, v220, s[68:71], 0 offen offset:{1024*j+16}')
    def x_loads():
        srd(a, 36, P_Q, 4 * MB)
        for r in range(2):
            for hh in range(2):
                a.e(f'buffer_load_dwordx4 v[{XP+8*r+4*hh}:{XP+8*r+4*hh+3}], v4, s[36:39], s96 offen offset:{2048*r+1024*hh}')
    if KP == 0:
        k_loads(); ncp += 8
    srd(a, 44, P_DBG, 256)
    a.e('s_or_b32 s56, s56, 1')
    a.e(f's_or_b32 s57, s2, s{S_W}')
    a.e('s_cmp_lg_u32 s57, 0')
    a.e('s_cbranch_scc1 L_nonce_skip')
    a.e('v_mov_b32 v163, s56')
    a.e('s_mov_b64 exec, 1')
    a.e('buffer_store_dword v163, v162, s[44:47], 0 offen sc1')
    a.e('s_mov_b64 exec, -1')
    a.e('s_waitcnt vmcnt(0)')
    a.e('L_nonce_skip:')
    srd(a, S_FLG, P_WS, FLG_SIZE, WS_FLG)
    a.e(f's_waitcnt vmcnt({11+ncp})')
    for e in range(8):
        unpack(a, WU + 0 * 8 + e, WU + 1 * 8 + e, WR + 2 * e)
        unpack(a, WU + 2 * 8 + e, WU + 3 * 8 + e, WR + 2 * e + 1)
    for r in range(7):
        a.e(f's_waitcnt vmcnt({10-r+ncp})')
        for q in range(4):
            unpack(a, KU + 8 * r + 2 * q, KU + 8 * r + 2 * q + 1, KR + 4 * r + q)
        if r >= 3:
            i = r - 3
            for j in range(4):
                for q in range(4):
                    d = AC0 + 8 * i + 2 * q
                    k = KU + 8 * (i + 3 - j) + 2 * q
                    w = WU + 8 * j + 2 * q
                    if j == 0:
                        a.e(f'v_pk_mul_f32 v[{d}:{d+1}], v[{k}:{k+1}], v[{w}:{w+1}]')
                    else:
                        a.e(f'v_pk_fma_f32 v[{d}:{d+1}], v[{k}:{k+1}], v[{w}:{w+1}], v[{d}:{d+1}]')
    VU = 8
    for i in range(4):
        a.e(f's_waitcnt vmcnt({3-i+ncp})')
        if i == 3:
            a.e('buffer_load_dword v163, v162, s[44:47], 0 offen sc1')
        for q in range(4):
            unpack(a, VU + 2 * q, VU + 2 * q + 1, VR_ + 4 * i + q)
        for q in range(4):
            d = AC0 + 8 * i + 2 * q
            a.e(f'v_pk_mul_f32 v[{d}:{d+1}], v[{d}:{d+1}], v[{VU+2*q}:{VU+2*q+1}]')
    O = 52
    for e in range(4):
        q = O + 4 * e
        a.e(f'v_cvt_pk_bf16_f32 v{q}, v{AC0+28+e}, v{AC0+20+e}')
        a.e(f'v_cvt_pk_bf16_f32 v{q+1}, v{AC0+12+e}, v{AC0+4+e}')
        a.e(f'v_cvt_pk_bf16_f32 v{q+2}, v{AC0+24+e}, v{AC0+16+e}')
        a.e(f'v_cvt_pk_bf16_f32 v{q+3}, v{AC0+8+e}, v{AC0+e}')
    for e in range(4):
        q = O + 4 * e
        if e == 3: a.e('s_nop 0')
        a.e(f'v_permlane16_swap_b32 v{q+2}, v{q}')
        a.e(f'v_permlane16_swap_b32 v{q+3}, v{q+1}')
        a.e(f'buffer_store_dwordx4 v[{q}:{q+3}], v160, s[48:51], 0 offen offset:{128*e} sc1')
    stamp(a, 1)
    a.e('s_and_b32 s82, s2, 7')
    a.e('s_lshr_b32 s83, s2, 3')
    a.e('s_lshl_b32 s84, s83, 2')
    a.e(f's_add_u32 s84, s84, s{S_W}')
    a.e('s_lshl_b32 s85, s82, 7')
    a.e('s_add_u32 s85, s85, s84')
    a.e('s_lshl_b32 s86, s82, 5')
    a.e('s_add_u32 s86, s86, s83')
    a.e(f's_mul_i32 s88, s{S_W}, {KA_REG}')
    a.e(f's_add_u32 s88, s88, {LDS_KA}')
    a.e('s_lshr_b32 s57, s85, 1')
    a.e('s_lshl_b32 s57, s57, 2')
    a.e(f's_load_dword s89, s[{P_D}:{P_D+1}], s57')
    a.e('v_lshlrev_b32 v4, 4, v2')
    ny = 0
    if KP == 1:
        k_loads(); ny += 8
    a.e('s_and_b32 s80, s82, 1')
    a.e('s_lshl_b32 s80, s80, 2')
    a.e('s_and_b32 s56, s83, 3')
    a.e('s_add_u32 s80, s80, s56')
    a.e('s_lshr_b32 s81, s82, 1')
    a.e('s_lshl_b32 s81, s81, 3')
    a.e('s_lshr_b32 s56, s83, 2')
    a.e('s_add_u32 s81, s81, s56')
    a.e('s_lshl_b32 s91, s80, 5')
    a.e('s_add_u32 s91, s91, s81')
    a.e('s_lshl_b32 s56, s91, 2')
    a.e(f's_add_u32 s56, s56, s{S_W}')
    a.e('s_lshl_b32 s96, s56, 12')
    nx_ = 0
    if XPOS == 1:
        x_loads(); ny += 4; nx_ = 4
    nc0 = 0
    if opt('cpf0', 2):
        if opt('cpf0', 2) == 1:
            code_pf(a, 'L_nonce', 'L_end', 164, n=2); nc0 = 2
        else:
            code_pf(a, 'L_nonce', 'L_kbcode' if opt('cpf0', 2) == 2 else 'L_g1epi', 164); nc0 = 1
    a.e(f's_waitcnt vmcnt({4+ny+nc0})')
    a.e('L_nonce:')
    a.e(f'v_readfirstlane_b32 s{S_NONCE}, v163')
    a.e('s_nop 0')
    a.e(f's_cmp_lg_u32 s{S_NONCE}, 0')
    a.e('s_cbranch_scc1 L_nonce_ok')
    a.e('s_add_u32 s3, s3, 1')
    a.e(f's_cmp_gt_u32 s3, {opt("spin", 200000)}')
    a.e('s_cbranch_scc1 L_nonce_ok')
    a.e('buffer_load_dword v163, v162, s[44:47], 0 offen sc1')
    a.e('s_waitcnt vmcnt(0)')
    a.e('s_branch L_nonce')
    a.e('L_nonce_ok:')
    a.e(f'v_mov_b32 v163, s{S_NONCE}')
    a.e(f's_cmp_eq_u32 s{S_W}, 0')
    a.e(f's_waitcnt vmcnt({ny+nc0})')
    a.e('s_barrier')
    a.e('s_cbranch_scc0 L_sig0')
    a.e('s_mov_b64 exec, 1')
    a.e(f'buffer_store_dword v163, v162, s[{S_FLG}:{S_FLG+3}], s87 offen sc1')
    a.e('s_mov_b64 exec, -1')
    a.e('L_sig0:')
    stamp(a, 2)
    if KP == 2:
        k_loads(); nx_ = 0; nc0 = 0
    npt = 0
    if opt('pt', 0) & 2:
        srd(a, 40, P_WS, 12 * MB, WS_Y2)
        a.e('v_lshlrev_b32 v164, 14, v0')
        a.e('s_lshl_b32 s56, s86, 6')
        a.e('buffer_load_dword v161, v164, s[40:43], s56 offen')
        a.e('v_lshlrev_b32 v164, 6, v0')
        a.e('s_lshl_b32 s56, s91, 14')
        a.e(f's_add_u32 s56, s56, {4*MB}')
        a.e('buffer_load_dword v161, v164, s[40:43], s56 offen')
        a.e('v_lshrrev_b32 v164, 3, v0')
        a.e('v_lshlrev_b32 v164, 12, v164')
        a.e('v_bfe_u32 v165, v0, 1, 2')
        a.e('v_lshl_add_u32 v164, v165, 8, v164')
        a.e('s_lshr_b32 s56, s91, 3')
        a.e('s_lshl_b32 s56, s56, 17')
        a.e('s_and_b32 s57, s91, 7')
        a.e('s_lshr_b32 s58, s57, 1')
        a.e('s_lshl_b32 s58, s58, 10')
        a.e('s_add_u32 s56, s56, s58')
        a.e('s_and_b32 s57, s57, 1')
        a.e('s_lshl_b32 s57, s57, 7')
        a.e('s_add_u32 s56, s56, s57')
        a.e(f's_add_u32 s56, s56, {8*MB}')
        a.e('buffer_load_dword v161, v164, s[40:43], s56 offen')
        npt += 3
    a.e('v_lshrrev_b32 v3, 3, v2')
    a.e('v_sub_u32 v3, 7, v3')
    a.e('v_lshlrev_b32 v3, 14, v3')
    a.e('v_and_b32 v5, 7, v2')
    a.e('v_lshl_add_u32 v3, v5, 4, v3')
    a.e('s_lshl_b32 s56, s84, 7')
    a.e('v_add_u32 v3, s56, v3')
    a.e('v_and_b32 v5, 15, v2')
    a.e('v_lshrrev_b32 v6, 4, v2')
    a.e('v_mov_b32 v28, 0')
    a.e('v_mov_b32 v29, 0')
    a.e('v_lshlrev_b32 v7, 3, v2')
    a.e('v_add_u32 v7, s88, v7')
    a.e('ds_write_b64 v7, v[28:29] offset:4096')
    a.e('v_min_u32 v30, 7, v2')
    a.e('v_lshlrev_b32 v30, 2, v30')
    a.e('v_add_u32 v30, s88, v30')
    a.e('ds_write_b32 v30, v28 offset:4608')
    a.e('v_add_u32 v31, 1, v5')
    a.e('v_and_b32 v32, 1, v31')
    a.e('v_sub_u32 v31, v31, v32')
    a.e('v_lshl_add_u32 v31, v6, 3, v31')
    a.e('v_lshlrev_b32 v31, 1, v31')
    a.e('v_mul_u32_u24 v32, 4160, v32')
    a.e('v_add3_u32 v31, v31, v32, s88')
    VA, VB, ACC = 36, 40, 44
    for j in range(4):
        a.e(f'v_add_u32 v{VA+j}, {4608+1024*j}, v31')
    a.e('v_lshlrev_b32 v32, 5, v5')
    a.e('v_lshlrev_b32 v33, 4, v6')
    a.e('v_sub_u32 v33, v33, v32')
    a.e('v_add_u32 v33, s88, v33')
    a.e(f'v_add_u32 v{VB}, 480, v33')
    a.e('v_add_u32 v7, s88, v4')
    for r in range(32):
        a.e(f'v_mov_b32 v{ACC+r}, 0')
    T = 76
    a.e(f's_waitcnt vmcnt({nx_+npt+nc0})')
    for j in range(4):
        d = KD + 4 * j
        if j == 0:
            a.e(f'v_readfirstlane_b32 s56, v{d}')
        a.e(f'ds_write_b128 v7, v[{d}:{d+3}] offset:{4608+32+1024*j}')
        for q in range(4):
            hi = d + q + 1 if q < 3 else KX + j
            a.e(f'v_alignbit_b32 v{T+4*j+q}, v{hi}, v{d+q}, 16')
        a.e(f'ds_write_b128 v7, v[{T+4*j}:{T+4*j+3}] offset:{4608+4160+32+1024*j}')
    a.e('s_lshl_b32 s56, s56, 16')
    a.e('v_cmp_le_u32 vcc, 7, v2')
    a.e('v_mov_b32 v32, s56')
    a.e('s_nop 0')
    a.e('v_cndmask_b32 v32, v28, v32, vcc')
    a.e(f'ds_write_b32 v30, v32 offset:{4608+4160}')
    FA = [96, 160]; FB = [128, 192]
    def rdA(r, buf):
        L = []
        for mq in range(8):
            o = 128 * (mq & 1) + 16 * r
            f = FA[buf] + 4 * mq
            L.append(f'ds_read2_b32 v[{f}:{f+1}], v{VA+(mq>>1)} offset0:{o} offset1:{o+1}')
            L.append(f'ds_read2_b32 v[{f+2}:{f+3}], v{VA+(mq>>1)} offset0:{o+2} offset1:{o+3}')
        return L
    def rdB(r, buf):
        return [f'ds_read_b128 v[{FB[buf]+4*d}:{FB[buf]+4*d+3}], v{VB} offset:{512*(7-d)+64*r}' for d in range(8)]
    a.e('s_waitcnt lgkmcnt(0)')
    a.e('s_bitcmp1_b32 s85, 0')
    a.e('s_cselect_b32 s56, 0, 16')
    a.e('s_lshl_b32 s89, s89, s56')
    a.e('s_and_b32 s89, s89, 0xffff0000')
    for l in rdA(0, 0): a.e(l)
    a.e('v_and_b32 v34, 31, v2')
    a.e(f'v_lshlrev_b32 v34, {fsh()}, v34')
    a.e(f's_lshl_b32 s56, s82, {5+fsh()}')
    wait_flags(a, 56, 34, 35)
    stamp(a, 3)
    a.e('s_lshl_b32 s56, s82, 19')
    UR = 8
    for i in range(4):
        a.e(f's_add_u32 s57, s56, {(24-8*i)*16384:#x}')
        a.e(f'buffer_load_dwordx4 v[{UR+4*i}:{UR+4*i+3}], v3, s[48:51], s57 offen sc1')
    npf = 0; wpl = []
    if XPOS == 2:
        x_loads(); npf += 4
    if opt('wpf', 1):
        RS = opt('rs', 0)
        if RS:
            a.e('s_mul_i32 s56, s2, 28672')
            a.e(f's_and_b32 s57, s{S_W}, 1')
            a.e('s_mul_i32 s57, s57, 14336')
            a.e('s_add_u32 s56, s56, s57')
            a.e(f's_cmp_ge_u32 s{S_W}, 2')
            a.e('s_cselect_b32 s58, 14336, 0')
            a.e('v_lshlrev_b32 v41, 7, v2')
            a.e('v_add_u32 v43, 8192, v41')
            for n_, P_ in enumerate((P_W1, P_W3, P_W2)[:opt('wpn', 3)]):
                sd = (40, 32, 44)[n_]
                srd(a, sd, P_, None, 0, 56)
                a.e(f's_mov_b32 s{sd+2}, s58')
                for v_ in (41, 43):
                    wpl.append(lambda sd=sd, v_=v_: a.e(f'buffer_load_dword v42, v{v_}, s[{sd}:{sd+3}], 0 offen'))
        else:
            a.e('s_mul_i32 s56, s2, 28672')
            a.e(f's_mul_i32 s57, s{S_W}, 7168')
            a.e('s_add_u32 s56, s56, s57')
            a.e('v_lshlrev_b32 v41, 7, v2')
            for n_, P_ in enumerate((P_W1, P_W3, P_W2)[:opt('wpn', 2)]):
                sd = (40, 32, 44)[n_]
                srd(a, sd, P_, 7168, 0, 56)
                wpl.append(lambda sd=sd: a.e(f'buffer_load_dword v42, v41, s[{sd}:{sd+3}], 0 offen'))
    g1 = G1(a)
    g2 = G2(a)
    g2.front_setup()
    g1.setup_dma()
    for i in range(4):
        a.e(f's_waitcnt vmcnt({npf+3-i})')
        a.e(f'ds_write_b128 v7, v[{UR+4*i}:{UR+4*i+3}] offset:{1024*i}')
    a.e('s_waitcnt lgkmcnt(0)')
    for l in rdB(0, 0): a.e(l)
    stamp(a, 4)
    LK = Lin(a)
    g1e = [[(lambda l=l: a.e(l)) for l in grp] for grp in g1.early_dma()]
    def grp(fs): return lambda: [f() for f in fs]
    g1e = [grp(x) for x in g1e]
    fillr = {r: [] for r in range(8)}
    p01 = g2.fD([(0, 2), (1, 3)])
    nk01 = 0
    if not RS:
        fillr[6] += p01[:5]; fillr[7] += p01[5:]; nk01 = 8
    for n_, f_ in enumerate(wpl): fillr[opt('wpr', 1 if RS else 2) + n_ * opt('wps', 1 if RS else 0)].append(f_)
    UE = 8
    for r in range(8):
        buf = r & 1
        if r < 7:
            A_, B_ = rdA(r + 1, buf ^ 1), rdB(r + 1, buf ^ 1)
            nxt = []
            for x in range(8): nxt += [B_[x], A_[2 * x], A_[2 * x + 1]]
        else:
            a.e('v_lshlrev_b32 v32, 5, v5')
            a.e('v_lshl_add_u32 v32, v6, 3, v32')
            a.e(f'v_sub_u32 v34, {4088-3584}, v32')
            a.e('v_add_u32 v34, s88, v34')
            a.e('v_add_u32 v35, s88, v32')
            nxt = [f'ds_read_b64 v[{UE+2*c}:{UE+2*c+1}], v34 offset:{512*(7-c)}' for c in range(8)]
        a.e('s_waitcnt lgkmcnt(0)')
        fl = list(fillr[r]); evr = 36 // max(1, len(fl))
        k = 0
        for mq in range(8):
            for d in range(8 - mq):
                c = mq + d
                fa = FA[buf] + 4 * mq; fb = FB[buf] + 4 * d
                a.e(f'v_mfma_f32_16x16x32_bf16 v[{ACC+4*c}:{ACC+4*c+3}], v[{fa}:{fa+3}], v[{fb}:{fb+3}], v[{ACC+4*c}:{ACC+4*c+3}]')
                if k < len(nxt):
                    a.e(nxt[k])
                if fl and k % evr == evr - 1: fl.pop(0)()
                k += 1
        assert not fl, (r, len(fl))
    a.e('s_waitcnt lgkmcnt(0)')
    stamp(a, 5)
    a.e('L_kbcode:')
    X = 96
    for c in range(8):
        unpack(a, X + 4 * c + 3, X + 4 * c + 2, UE + 2 * c)
        unpack(a, X + 4 * c + 1, X + 4 * c + 0, UE + 2 * c + 1)
    for c in range(8):
        for r in range(4):
            a.e(f'v_fma_f32 v{X+4*c+r}, v{X+4*c+r}, s89, v{ACC+4*c+r}')
        a.e(f'v_cvt_pk_bf16_f32 v{UE+2*c}, v{X+4*c}, v{X+4*c+1}')
        a.e(f'v_cvt_pk_bf16_f32 v{UE+2*c+1}, v{X+4*c+2}, v{X+4*c+3}')
        a.e(f'ds_write_b64 v35, v[{UE+2*c}:{UE+2*c+1}] offset:{4608+512*c}')
    a.flush_inject()
    LIN[0] = None
    a.e('v_lshlrev_b32 v32, 2, v0')
    a.e(f'v_add_u32 v32, {LDS_KA}, v32')
    a.e('v_lshrrev_b32 v33, 2, v0')
    a.e('v_lshlrev_b32 v33, 14, v33')
    a.e('v_and_b32 v34, 3, v0')
    a.e('v_lshl_add_u32 v33, v34, 4, v33')
    a.e('s_lshl_b32 s56, s86, 6')
    a.e('s_mov_b32 s57, 0x05040100')
    a.e('s_mov_b32 s58, 0x07060302')
    srd(a, 36, P_WS, 4 * MB, WS_Y2)
    a.e(f's_cmp_ge_u32 s{S_W}, 2')
    a.e('s_waitcnt lgkmcnt(0)')
    a.e('s_barrier')
    if RS: a.e('s_cbranch_scc1 L_y2skip')
    Y = 96; O = 128
    NP = 8 if RS else 4
    LY = Lin(a)
    def yrd(P):
        for ch in range(4):
            LY.l(P, f'ds_read_b32 v{Y+4*P+ch}, v32 offset:{ch*KA_REG+4608+4096//NP*P}')
    for P in range(4): yrd(P)
    for P in range(NP):
        LY.wait(lg=(P,))
        if P + 4 < NP: yrd(P + 4)
        y = Y + 4 * P; o = O + 4 * P
        a.e(f'v_perm_b32 v{o}, v{y+1}, v{y}, s57')
        a.e(f'v_perm_b32 v{o+1}, v{y+3}, v{y+2}, s57')
        a.e(f'v_perm_b32 v{o+2}, v{y+1}, v{y}, s58')
        a.e(f'v_perm_b32 v{o+3}, v{y+3}, v{y+2}, s58')
        a.e(f'buffer_store_dwordx4 v[{o}:{o+3}], v33, s[36:39], s56 offen sc1')
        if P < NP - 1:
            a.e(f's_add_u32 s56, s56, {256//NP*16384:#x}')
    LIN[0] = None
    if RS: a.e('L_y2skip:')
    stamp(a, 6)
    XU = [8, 24]; TT = [40, 56]; MM = [72, 74]; RR = [76, 78]; C = 80; YU = [100, 116]; XM = [140, 156]; SS = [172, 174]
    if XPOS == 2: a.e(f's_waitcnt vmcnt({len(wpl) + (0 if RS else nk01 + 4)})')
    F45 = opt('f45', 0)
    if F45: a.inject(g2.fD([(2, 0), (3, 1)]), 3)
    for r in range(2):
        for q in range(8):
            unpack(a, XU[r] + 2 * q, XU[r] + 2 * q + 1, XP + 8 * r + q)
    a.flush_inject()
    a.e(f'v_mov_b32 v{C}, 0x3a800000')
    a.e(f's_lshl_b32 s87, s2, {f1sh()}')
    a.e(f's_add_u32 s87, s87, {F1}')
    def w1():
        if RS:
            a.e(f's_bitcmp1_b32 s{S_W}, 1')
            a.e('s_cbranch_scc1 L_y2nw')
            a.e('s_waitcnt vmcnt(0)')
            a.e('L_y2nw:')
            a.e(f's_cmp_eq_u32 s{S_W}, 0')
        else:
            a.e(f's_waitcnt vmcnt({8 if F45 else 0})')
    signal(a, 87, 82, waitfn=w1)
    if RS:
        a.inject(g1e[:10] + p01 + g2.fD([(2, 0), (3, 1)]), 4)
    else:
        g2.fM([(0, 2), (1, 3)])
        a.inject(g1e[:10] + ([] if F45 else g2.fD([(2, 0), (3, 1)])), 12 if F45 else 6)
    ln2(a, XU, TT, MM, RR, C, XM)
    a.flush_inject()
    a.e('v_lshlrev_b32 v5, 7, v2')
    a.e('v_add_u32 v6, 0x2000, v5')
    a.e('s_lshl_b32 s82, s91, 14')
    a.e(f's_lshl_b32 s83, s{S_W}, 4')
    a.e('s_add_u32 s82, s82, s83')
    srd(a, 40, P_WS, 4 * MB, WS_H)
    srd(a, 44, P_WS, 4 * MB, WS_HNF)
    a.e('v_and_b32 v7, 7, v2')
    a.e(f's_lshl_b32 s83, s{S_W}, 1')
    a.e('v_xor_b32 v132, s83, v7')
    a.e('v_lshl_add_u32 v132, v132, 4, v5')
    a.e(f'v_add_u32 v132, {LDS_KA}, v132')
    a.e('v_xor_b32 v133, 16, v132')
    a.e('v_lshrrev_b32 v134, 3, v2')
    a.e('v_xor_b32 v135, v134, v7')
    a.e('v_lshlrev_b32 v135, 4, v135')
    a.e('v_lshl_add_u32 v135, v134, 7, v135')
    a.e(f's_lshl_b32 s83, s{S_W}, 12')
    a.e(f's_add_u32 s83, s83, {LDS_KA}')
    a.e('v_add_u32 v135, s83, v135')
    a.e('v_lshrrev_b32 v136, 5, v2')
    a.e('v_lshlrev_b32 v136, 12, v136')
    a.e('v_bfe_u32 v137, v2, 3, 2')
    a.e('v_lshl_add_u32 v136, v137, 8, v136')
    a.e('v_lshl_add_u32 v136, v7, 4, v136')
    a.e('s_lshr_b32 s84, s91, 3')
    a.e('s_lshl_b32 s84, s84, 17')
    a.e('s_bfe_u32 s85, s91, 0x20001')
    a.e('s_lshl_b32 s85, s85, 10')
    a.e('s_add_u32 s84, s84, s85')
    a.e('s_and_b32 s85, s91, 1')
    a.e('s_lshl_b32 s85, s85, 7')
    a.e('s_add_u32 s84, s84, s85')
    a.e(f's_lshl_b32 s85, s{S_W}, 15')
    a.e('s_add_u32 s84, s84, s85')
    a.e(f's_mov_b32 s85, {F1}')
    a.e('s_waitcnt lgkmcnt(0)')
    stamp(a, 7)
    a.e(f'v_lshlrev_b32 v138, {4 if f1sh() == 2 else f1sh()}, v2')
    wait_flags(a, 85, 138, 128, n=256)
    stamp(a, 8)
    YL = 84
    a.e(f'buffer_load_dwordx4 v[{YL}:{YL+3}], v5, s[36:39], s82 offen sc1')
    a.e(f'buffer_load_dwordx4 v[{YL+4}:{YL+7}], v5, s[36:39], s82 offen offset:64 sc1')
    a.e(f'buffer_load_dwordx4 v[{YL+8}:{YL+11}], v6, s[36:39], s82 offen sc1')
    a.e(f'buffer_load_dwordx4 v[{YL+12}:{YL+15}], v6, s[36:39], s82 offen offset:64 sc1')
    a.e('s_waitcnt vmcnt(4)')
    g2.fM(([(0, 2), (1, 3)] if RS else []) + [(2, 0), (3, 1)])
    for cgi in range(4):
        a.e(f's_waitcnt vmcnt({3-cgi})')
        for r in range(2):
            for e in range(2):
                u = YU[r] + 4 * cgi + 2 * e
                unpack(a, u, u + 1, YL + 4 * cgi + 2 * r + e)
        for r in range(2):
            for e in range(2):
                u = YU[r] + 4 * cgi + 2 * e; x = XM[r] + 4 * cgi + 2 * e; t = TT[r] + 4 * cgi + 2 * e
                a.e(f'v_pk_fma_f32 v[{x}:{x+1}], v[{t}:{t+1}], v[{u}:{u+1}], v[{x}:{x+1}]')
        for r in range(2):
            for e in range(2):
                x = XM[r] + 4 * cgi + 2 * e
                if cgi == 0 and e == 0:
                    a.e(f'v_pk_mul_f32 v[{RR[r]}:{RR[r]+1}], v[{x}:{x+1}], v[{x}:{x+1}]')
                else:
                    a.e(f'v_pk_fma_f32 v[{RR[r]}:{RR[r]+1}], v[{x}:{x+1}], v[{x}:{x+1}], v[{RR[r]}:{RR[r]+1}]')
            x = XM[r] + 4 * cgi
            if cgi == 0: a.e(f'v_pk_add_f32 v[{SS[r]}:{SS[r]+1}], v[{x}:{x+1}], v[{x+2}:{x+3}]')
            else:
                a.e(f'v_pk_add_f32 v[{SS[r]}:{SS[r]+1}], v[{x}:{x+1}], v[{SS[r]}:{SS[r]+1}]')
                a.e(f'v_pk_add_f32 v[{SS[r]}:{SS[r]+1}], v[{x+2}:{x+3}], v[{SS[r]}:{SS[r]+1}]')
    for r in range(2):
        a.e(f'v_add_f32 v{SS[r]}, v{SS[r]}, v{SS[r]+1}')
        a.e(f'v_add_f32 v{RR[r]}, v{RR[r]}, v{RR[r]+1}')
    fl_ = []
    for r in range(2):
        for q in range(8):
            u = YU[r] + 2 * q; x = XU[r] + 2 * q; t = TT[r] + 2 * q
            fl_.append(f'v_pk_fma_f32 v[{x}:{x+1}], v[{t}:{t+1}], v[{u}:{u+1}], v[{x}:{x+1}]')
    for r in range(2):
        for q in range(8):
            fl_.append(f'v_cvt_pk_bf16_f32 v{XP+8*r+q}, v{XU[r]+2*q}, v{XU[r]+2*q+1}')
    for mod in ('row_shr:1 row_mask:0xf bank_mask:0xf bound_ctrl:0', 'row_shr:2 row_mask:0xf bank_mask:0xf bound_ctrl:0',
                'row_shr:4 row_mask:0xf bank_mask:0xf bound_ctrl:0', 'row_shr:8 row_mask:0xf bank_mask:0xf bound_ctrl:0',
                'row_bcast:15 row_mask:0xa bank_mask:0xf', 'row_bcast:31 row_mask:0xc bank_mask:0xf'):
        for v in (SS[0], SS[1], RR[0], RR[1]):
            a.e(f'v_add_f32_dpp v{v}, v{v}, v{v} {mod}')
    for i, v in enumerate((SS[0], SS[1], RR[0], RR[1])):
        a.e(f'v_readlane_b32 s{56+i}, v{v}, 63')
    def both(f):
        for r in range(2): f(r)
        if fl_: a.e(fl_.pop(0))
        if fl_: a.e(fl_.pop(0))
    def rbf(v):
        a.e(f'v_cvt_pk_bf16_f32 v{v}, v{v}, v{v}')
        a.e(f'v_and_b32 v{v}, s{S_MASK}, v{v}')
    both(lambda r: a.e(f'v_mul_f32 v{SS[r]}, s{56+r}, v{C}'))
    both(lambda r: a.e(f'v_mul_f32 v{RR[r]}, s{58+r}, v{C}'))
    both(lambda r: a.e(f'v_fma_f32 v{RR[r]}, -v{SS[r]}, v{SS[r]}, v{RR[r]}'))
    both(lambda r: a.e(f'v_max_f32 v{RR[r]}, 0, v{RR[r]}'))
    both(lambda r: rbf(RR[r]))
    both(lambda r: a.e(f'v_add_f32 v{RR[r]}, 0x3727c5ac, v{RR[r]}'))
    both(lambda r: rbf(RR[r]))
    both(lambda r: a.e(f'v_sqrt_f32 v{RR[r]}, v{RR[r]}'))
    both(lambda r: a.e(f'v_add_f32 v{SS[r]}, v{SS[r]}, v{MM[r]}'))
    both(lambda r: rbf(RR[r]))
    both(lambda r: a.e(f'v_rcp_f32 v{RR[r]}, v{RR[r]}'))
    both(lambda r: rbf(SS[r]))
    both(lambda r: a.e(f'v_sub_f32 v{SS[r]}, v{MM[r]}, v{SS[r]}'))
    both(lambda r: a.e(f'v_mul_f32 v{SS[r]}, v{SS[r]}, v{RR[r]}'))
    nh = len(fl_)
    for q in range(8):
        for r in range(2):
            x = XM[r] + 2 * q
            a.e(f'v_pk_fma_f32 v[{TT[r]+2*q}:{TT[r]+2*q+1}], v[{x}:{x+1}], v[{RR[r]}:{RR[r]+1}], v[{SS[r]}:{SS[r]+1}] op_sel_hi:[1,0,0]')
    for r in range(2):
        for q in range(8):
            a.e(f'v_cvt_pk_bf16_f32 v{YL+8*r+q}, v{TT[r]+2*q}, v{TT[r]+2*q+1}')
        for hh in range(2):
            a.e(f'ds_write_b128 v{132+r}, v[{YL+8*r+4*hh}:{YL+8*r+4*hh+3}] offset:{8192*hh}')
    for t_ in fl_: a.e(t_)
    a.e('s_waitcnt lgkmcnt(0)')
    a.e('s_barrier')
    for i in range(4):
        a.e(f'ds_read_b128 v[{100+4*i}:{103+4*i}], v135 offset:{1024*i}')
    for i in range(4):
        a.e(f's_waitcnt lgkmcnt({3-i})')
        a.e(f'buffer_store_dwordx4 v[{100+4*i}:{103+4*i}], v136, s[44:47], s84 offen sc1')
        if i < 3: a.e('s_add_u32 s84, s84, 8192')
    stamp(a, 9)
    a.e(f's_lshl_b32 s87, s91, {fsh()}')
    a.e(f's_add_u32 s87, s87, {F2}')
    g2.front_save()
    g1.pre_setup(g2.fD([(4, 0), (5, 1)], dv=28) if F45 else [])
    signal(a, 87, 4, waitfn=lambda: a.e(f's_waitcnt vmcnt({8 if F45 else 0})'))
    g2.NF = 8 if F45 else 6
    def mv45():
        if not F45: return
        a.e('v_add_u32 v4, s73, v7')
        a.e('v_xor_b32 v5, 32, v4')
        a.e('s_waitcnt vmcnt(8)')
        g2.fM([(4, 0), (5, 1)], base=4)
    g1.hook = mv45
    g1.main()
    g1.epilogue(g2)
    g2.main()
    a.e(f's_or_b32 s57, s2, s{S_W}')
    a.e('s_cmp_lg_u32 s57, 0')
    a.e('s_cbranch_scc1 L_clean_skip')
    srd(a, 32, P_DBG, 256)
    a.e('v_mov_b32 v20, 0')
    a.e('s_mov_b64 exec, 1')
    a.e('buffer_store_dword v20, v20, s[32:35], 0 offen sc1')
    a.e('s_mov_b64 exec, -1')
    a.e('L_clean_skip:')
    stamp_out(a, NSTAMP)
    a.e('L_end:')
    a.e('s_endpgm')

G1_STG = 32768
class G1:
    TM, NW, DPW, ND = 4, 4, 8, 4
    ACC, WF, TF, DV, VT, VR, VL = 32, 0, 28, 8, 16, 17, 18
    DVE = 240
    def __init__(s, a): s.a = a
    def setup_dma(s):
        a = s.a
        a.e('s_and_b32 s56, s81, 1')
        a.e('s_lshl_b32 s56, s56, 1')
        a.e('s_movk_i32 s57, 4682')
        a.e('s_movk_i32 s58, 7168')
        a.e('v_mov_b32 v76, 0x80000000')
        a.e('v_subrev_u32 v77, 8, v2')
        for src, dst in ((2, 78), (77, 79)):
            a.e(f'v_cmp_gt_u32 vcc, 56, v{src}')
            a.e(f'v_mul_u32_u24 v80, s57, v{src}')
            a.e('v_lshrrev_b32 v80, 16, v80')
            a.e('v_mul_u32_u24 v81, 14, v80')
            a.e(f'v_sub_u32 v81, v{src}, v81')
            a.e('v_add_u32 v81, s56, v81')
            a.e('v_subrev_u32 v82, 14, v81')
            a.e('v_min_u32 v81, v81, v82')
            a.e('v_mul_u32_u24 v80, s58, v80')
            a.e('v_lshl_add_u32 v80, v81, 4, v80')
            a.e(f'v_cndmask_b32 v{dst}, v76, v80, vcc')
        for i in range(8):
            pat = 79 if (i >> 1) & 1 else 78
            c = i * 4 * 7168 - 1024 * (i & 3)
            a.e(f'v_add_u32 v{s.DVE+i}, {c}, v{pat}' if c else f'v_mov_b32 v{s.DVE+i}, v{pat}')
        a.e(f's_and_b32 s56, s{S_W}, 1')
        a.e(f's_lshr_b32 s57, s{S_W}, 1')
        a.e(f's_mul_i32 s97, s56, {8*4*7168}')
        a.e('s_mov_b32 s100, 458752')
        a.e('s_lshl_b32 s98, s57, 14')
        a.e('s_lshl_b32 s56, s56, 13')
        a.e('s_add_u32 s98, s98, s56')
        a.e('s_mul_i32 s56, s81, 224')
        a.e('s_cmp_eq_u32 s57, 0')
        a.e(f's_cselect_b32 s52, s{P_W1}, s{P_W3}')
        a.e(f's_cselect_b32 s53, s{P_W1+1}, s{P_W3+1}')
        srd(a, 52, 52, None, 0, 56)
        a.e('s_sub_u32 s54, 7340032, s56')
    def m0set(s, i): return f's_add_u32 m0, s98, {4096*(i//4)}' if i else 's_mov_b32 m0, s98'
    def dma(s, i, base): return f'buffer_load_dwordx4 v{base+i}, s[52:55], s97 offen offset:{1024*(i&3)}' + ['', ' sc1', ' nt', ' sc0'][opt('wfl')] + ' lds'
    def dma_adv(s): return ['s_add_u32 s97, s97, s100', f's_add_u32 s98, s98, {G1_STG}', 's_and_b32 s98, s98, 0x1ffff']
    def early_dma(s):
        out = []
        for st in range(2):
            for i in range(8):
                if i % 4 == 0: out.append([s.m0set(i)])
                out.append([s.dma(i, s.DVE)] + (s.dma_adv() if i == 7 else []))
        return out
    def tok(s, k, tm):
        f = s.TF + 4 * (4 * (k % s.ND) + tm)
        return f'buffer_load_dwordx4 a[{f}:{f+3}], v{s.VT}, s[32:35], s82 offen offset:{tm*1024}' + (' sc1' if opt('t1sc', 1) else '')
    def rd(s, ph, t):
        j, mat = (ph & 3) >> 1, ph & 1
        return [f'ds_read_b64_tr_b16 a[{s.WF+4*t+2*h}:{s.WF+4*t+2*h+1}], v{s.VR} offset:{8192*j+1024*h+32*t+16384*mat}' for h in range(2)]
    def pre_setup(s, inj):
        a = s.a
        for i in range(8): a.e(f'v_mov_b32 v{s.DV+i}, v{s.DVE+i}')
        for i in range(16): a.e(f'v_accvgpr_write_b32 a{92+i}, v{224+i}')
        a.e(f'v_lshlrev_b32 v{s.VT}, 4, v2')
        a.e('v_lshrrev_b32 v4, 4, v2')
        a.e('v_lshlrev_b32 v4, 11, v4')
        a.e('v_bfe_u32 v5, v2, 4, 1')
        a.e('v_lshl_add_u32 v4, v5, 7, v4')
        a.e('v_bfe_u32 v6, v2, 2, 2')
        a.e('v_mul_u32_u24 v5, 224, v6')
        a.e('v_and_b32 v6, 3, v2')
        a.e('v_lshl_add_u32 v5, v6, 3, v5')
        a.e(f'v_add_u32 v{s.VL}, v4, v5')
        a.e(f'v_mov_b32 v{s.VR}, v{s.VL}')
        a.e('v_and_b32 v19, 31, v2')
        a.e(f'v_lshlrev_b32 v19, {fsh()}, v19')
        a.e('s_lshl_b32 s56, s80, 2')
        a.e(f's_add_u32 s56, s56, s{S_W}')
        a.e('s_lshl_b32 s57, s56, 17')
        srd(a, 32, P_WS, 131072, WS_HNF, 57)
        hf_base(a, 57, 80, S_W, 58)
        srd(a, 36, P_WS, 4 * 114688, 0, 57)
        a.e('s_and_b32 s58, s81, 1')
        a.e('s_mul_i32 s85, s81, 7')
        a.e('s_add_u32 s85, s85, s58')
        a.e('s_lshl_b32 s85, s85, 9')
        a.e('s_movk_i32 s86, 3072')
        a.e('s_cmp_eq_u32 s58, 0')
        a.e('s_cselect_b32 s86, s86, 0xfffffc08')
        a.e('s_add_u32 s86, s86, s85')
        a.inject(inj, 16)
        for r in range(224):
            a.e(f'v_mov_b32 v{s.ACC+r}, 0')
        a.flush_inject()
    def kof(s, s_, P): return 2 * s_ + (-1, 0, 0, 1)[P]
    def ev_ins(s, e):
        L = []
        if e[0] == 'D':
            if e[2] % 4 == 0: L.append(s.m0set(e[2]))
            L.append(s.dma(e[2], s.DV))
            if e[2] == 7: L += s.dma_adv()
        elif e[0] == 'Z':
            fl = ['', ' sc1'][opt('ps', 0) - 1]
            u = e[2]
            if u < 3: L = [f'buffer_store_dwordx4 v[24:27], v{s.VT}, s[36:39], s88 offen offset:{1024*u}{fl}']
            else: L = [f'buffer_store_dwordx2 v[24:25], v{s.VT}, s[36:39], s89 offen{fl}', 's_add_u32 s88, s88, 114688', 's_add_u32 s89, s89, 114688']
        elif e[0] == 'Q':
            L = [f'buffer_store_dwordx4 v[24:27], v{s.VT}, s[44:47], s99 offen', 's_add_u32 s99, s99, 1024']
        elif e[0] == 'V':
            L = ['s_mov_b32 m0, s89', 'buffer_load_dwordx4 v28, s[68:71], s72 offen lds', 's_add_u32 s72, s72, 32768', 's_add_u32 s89, s89, 1024']
        elif e[0] == 'C':
            L = ['global_load_dword v22, v23, s[78:79]', f's_cmp_ge_u32 s84, {opt("cpt", 5)}', 's_cselect_b32 s99, -1, 0', 'v_and_b32 v23, s99, v24']
        elif e[0] == 'Y':
            L = ['buffer_load_dword v22, v21, s[44:47], s88 offen', 's_add_u32 s88, s88, 1024']
        else:
            L.append(s.tok(e[1], e[2]))
            if e[2] == 3: L.append('s_add_u32 s82, s82, 4096')
        return L
    def main(s):
        a = s.a
        S = s.S = Sched()
        for s_ in range(-4, 8):
            for P in range(4):
                S.mark((s_, P))
                k = s.kof(s_, P) + s.ND - 1
                t0 = 2 if P in (0, 2) else 0
                S.add([('D', s_ + 2, 2 * P), ('T', k, t0), ('D', s_ + 2, 2 * P + 1), ('T', k, t0 + 1)])
                if opt('w2y', 0 if opt('rs', 0) else 1) and s_ % 2 == 0 and P == 1: S.add([('Y', s_, 0)])
                if opt('vev', 1) and s_ % 2 == 1 and P == 1: S.add([('V', s_, 0)])
                if opt('cpg', 1) and s_ % 2 == 1 and P == 3: S.add([('C', s_, 0)])
                if opt('psx', 0) and P == 2 and s_ & 1: S.add([('Q', s_, 0)])
                if opt('ps', 0) and P in (1, 3): S.add([('Z', s_, 2 * (s_ & 1) + (P >> 1))])
        vm_bar = min(S.younger(('D', 4), (4, 0)), S.younger(('D', 5), (5, 0)))
        vm_p1 = min(S.younger(('T', 8), (4, 1)), S.younger(('T', 10), (5, 1)))
        vm_p3 = min(S.younger(('T', 9), (4, 3)), S.younger(('T', 11), (5, 3)))
        if opt('w2y', 0 if opt('rs', 0) else 1):
            a.e('s_mul_i32 s56, s2, 28672')
            a.e(f's_mul_i32 s57, s{S_W}, 7168')
            a.e('s_add_u32 s56, s56, s57')
            srd(a, 44, P_W2, 7168, 0, 56)
            a.e('v_min_u32 v21, 8, v2')
            a.e('v_lshlrev_b32 v21, 7, v21')
            a.e('s_mov_b32 s88, 0')
        a.e(f's_lshl_b32 s56, s80, {5+fsh()}')
        a.e(f's_add_u32 s56, s56, {F2}')
        if opt('psx', 0):
            srd(a, 44, P_WS, 8 * MB, WS_XP)
            a.e('s_lshl_b32 s99, s2, 2')
            a.e(f's_add_u32 s99, s99, s{S_W}')
            a.e('s_lshl_b32 s99, s99, 13')
        if opt('ps', 0):
            a.e('s_mov_b32 s88, s85')
            a.e('s_mov_b32 s89, s86')
            for r in range(4): a.e(f'v_mov_b32 v{24+r}, 0')
        a.e('s_add_u32 s89, s73, 98304')
        if opt('cpg', 1):
            a.e('s_getpc_b64 s[78:79]')
            a.e('L_pcg:')
            a.e(f's_lshl_b32 s77, s{S_W}, 13')
            a.e('s_add_u32 s77, s77, L_g1epi-L_pcg')
            a.e('v_lshl_add_u32 v24, v2, 7, s77')
            a.e('v_min_u32 v24, L_end-L_pcg, v24')
            a.e('v_mov_b32 v23, 0')
        a.e('s_mov_b32 s82, 0')
        a.e('s_mov_b32 s83, 0')
        a.e('s_mov_b32 s84, 0')
        stamp(a, 10)
        d1 = [('D', 1, i) for i in range(8)] + [('D', 2, 0), ('D', 2, 1)]
        for e in d1:
            for l in s.ev_ins(e):
                a.e(l)
                if 'm0' in l: a.e('s_nop 0')
        s.hook()
        for t in range(6):
            for l in s.rd(0, t): a.e(l)
        a.e('s_waitcnt lgkmcnt(12)')
        wait_flags(a, 56, 19, 20)
        stamp(a, 11)
        XE = opt('xe', 1)
        pro = d1 + [e for e in S.ev[:S.marks[(0, 1)]] if e[1] >= 0 and e[0] == 'T'] + ([] if XE else [('X', i, 0) for i in range(4)])
        for e in pro[len(d1):]:
            if e[0] == 'X':
                a.e(f'buffer_store_dwordx4 a[{92+4*e[1]}:{95+4*e[1]}], v{s.VT}, s[40:43], s96 offen offset:{1024*e[1]} sc1')
                continue
            for l in s.ev_ins(e):
                a.e(l)
                if 'm0' in l: a.e('s_nop 0')
        act = pro + S.ev[S.marks[(0, 1)]:]
        off = len(pro) - S.marks[(0, 1)]
        s.startup = {}
        need = -1
        for s_ in range(0, 6):
            for P, tags, N in ((0, [('D', s_)], vm_bar), (1, [('T', 2 * s_)], vm_p1), (3, [('T', 2 * s_ + 1)], vm_p3)):
                if (s_, P) == (0, 0): continue
                site = S.marks[(s_, P)] + off
                for tg in tags:
                    idx = [i for i, e in enumerate(act) if e[:2] == tg]
                    if not idx: continue
                    if site - max(idx) - 1 < N: need = max(need, max(idx))
        if need >= 0:
            a.e(f's_waitcnt vmcnt({S.marks[(0, 1)] + off - need - 1})')
        a.e('s_branch L_g1_P1')
        s.snake = 0
        if opt('al', 1):
            a.raw('.p2align 6')
            for _ in range(opt('alo', 0)): a.e('s_nop 0')
        a.e('L_g1_loop:')
        if opt('tw', 1):
            a.e('s_cmp_eq_u32 s84, 7')
            a.e('s_cbranch_scc0 L_g1_notw')
            for i in range(4):
                a.e(f'v_mov_b32 v{s.DV+i}, v{28+i}')
                a.e(f'v_add_u32 v{s.DV+4+i}, 131072, v{28+i}')
            a.e('s_mov_b64 s[52:53], s[68:69]')
            a.e('s_mov_b32 s54, s70')
            a.e('s_add_u32 s97, s72, 32768')
            a.e('s_mov_b32 s100, 262144')
            a.e('L_g1_notw:')
        for s_ in (4, 5):
            a.e(f's_add_u32 s83, s83, {G1_STG}')
            a.e('s_and_b32 s83, s83, 0x1ffff')
            a.e(f's_waitcnt vmcnt({vm_bar})')
            a.e('s_barrier')
            s.phase(s_, 0)
            if s_ == 4: a.e('L_g1_P1:')
            a.e(f's_waitcnt vmcnt({vm_p1})')
            s.phase(s_, 1)
            s.phase(s_, 2)
            a.e(f's_waitcnt vmcnt({vm_p3})')
            s.phase(s_, 3)
        if opt('g1st'):
            a.e('s_memtime s[66:67]')
            a.e('s_min_u32 s64, s84, 3')
            a.e('s_add_u32 s64, s64, 26')
            a.e('s_waitcnt lgkmcnt(0)')
            a.e('s_cmp_lt_u32 s84, 4')
            a.e('s_cselect_b32 s64, s64, 40')
            a.e('s_mov_b32 m0, s64')
            a.e('v_writelane_b32 v1, s66, m0')
        a.e('s_add_u32 s84, s84, 1')
        a.e('s_cmp_lt_u32 s84, 8')
        a.e('s_cbranch_scc1 L_g1_loop')
        a.e('L_g1epi:')
        s.phase(6, 0, last=True)
        stamp(a, 12)
    def phase(s, s_, P, last=False):
        a = s.a; S = s.S
        kbuf = s.kof(s_, P) % s.ND
        mat = (P + 1) & 1
        items = []
        if not last:
            nxt = S.marks[(s_, P + 1)] if P < 3 else S.marks[(s_ + 1, 0)]
            items = [s.ev_ins(e) for e in S.ev[S.marks[(s_, P)]:nxt]]
        slots = [[] for _ in range(7)]
        for p_, it in zip([1, 2, 4, 5, 6], items): slots[p_] = it
        if P == 0 and not last:
            slots[0] = [f'v_add_u32 v{s.VR}, s83, v{s.VL}']
        for t in range(7):
            a.e(f's_waitcnt lgkmcnt({10 if not (last and t) else 12-2*t})')
            R = s.rd(P - 1, 6) if t == 0 else ([] if last else s.rd(P, t - 1))
            X = list(slots[t])
            pre = [x for x in X if 'm0' in x]
            X = [x for x in X if 'm0' not in x]
            gaps = [[] for _ in range(4)]
            if R: gaps[0] = pre + [R[0]]; gaps[1] = [R[1]]
            gaps[2] = X[:1]; gaps[3] = X[1:]
            order = [0, 1, 2, 3]
            if s.snake & 1: order.reverse()
            s.snake += 1
            for n, tm in enumerate(order):
                c = s.ACC + 4 * ((mat * 7 + t) * 4 + tm)
                tf = s.TF + 4 * (4 * kbuf + tm)
                if not opt('g1x') & 1: a.e(f'v_mfma_f32_16x16x32_bf16 v[{c}:{c+3}], a[{s.WF+4*t}:{s.WF+4*t+3}], a[{tf}:{tf+3}], v[{c}:{c+3}]')
                for x in gaps[n]:
                    if opt('g1x') & 2 and x.startswith('ds_'): continue
                    if opt('g1x') & 4 and x.startswith('buffer'): continue
                    a.e(x)
    def epilogue(s, g2):
        a = s.a
        L = Lin(a)
        a.e('s_mov_b32 s58, 0xbfb8aa3b')
        a.e('s_mov_b32 s59, 0xbfb8aa3b')
        if opt('xe', 1):
            for i in range(4):
                a.e(f'buffer_store_dwordx4 a[{92+4*i}:{95+4*i}], v{s.VT}, s[40:43], s96 offen offset:{1024*i} sc1')
        g2.early(L)
        T = 8
        k = 0
        for tm in range(4):
            for u in range(4):
                O = (20, 24)[k & 1]
                fill = g2.epi_fill(k)
                def F(n=1):
                    for _ in range(n):
                        if fill: fill.pop(0)()
                tiles = [2 * u, 2 * u + 1] if u < 3 else [6]
                gs = []; us = []
                for t in tiles:
                    gs += [s.ACC + 4 * (t * 4 + tm), s.ACC + 4 * (t * 4 + tm) + 2]
                    us += [s.ACC + 4 * ((7 + t) * 4 + tm), s.ACC + 4 * ((7 + t) * 4 + tm) + 2]
                n = len(gs)
                nins = 9 * n
                cnt = [0]; ev_ = max(1, nins // (len(fill) + 1))
                def V(t):
                    a.e(t); cnt[0] += 1
                    if cnt[0] % ev_ == 0: F(1)
                for q in range(n): V(f'v_pk_mul_f32 v[{T+2*q}:{T+2*q+1}], v[{gs[q]}:{gs[q]+1}], s[58:59]')
                for q in range(2 * n): V(f'v_exp_f32 v{T+q}, v{T+q}')
                for q in range(n): V(f'v_pk_add_f32 v[{T+2*q}:{T+2*q+1}], v[{T+2*q}:{T+2*q+1}], 1.0 op_sel_hi:[1,0]')
                for q in range(2 * n): V(f'v_rcp_f32 v{T+q}, v{T+q}')
                for q in range(n): V(f'v_pk_mul_f32 v[{gs[q]}:{gs[q]+1}], v[{gs[q]}:{gs[q]+1}], v[{us[q]}:{us[q]+1}]')
                for q in range(n): V(f'v_pk_mul_f32 v[{T+2*q}:{T+2*q+1}], v[{T+2*q}:{T+2*q+1}], v[{gs[q]}:{gs[q]+1}]')
                for q in range(n): V(f'v_cvt_pk_bf16_f32 v{O+q}, v{T+2*q}, v{T+2*q+1}')
                if u < 3:
                    L.v('st', f'buffer_store_dwordx4 v[{O}:{O+3}], v{s.VT}, s[36:39], s85 offen offset:{1024*u}' + hfl())
                else:
                    L.v('st', f'buffer_store_dwordx2 v[{O}:{O+1}], v{s.VT}, s[36:39], s86 offen' + hfl())
                F(len(fill))
                k += 1
            if tm < 3:
                a.e('s_add_u32 s85, s85, 114688')
                a.e('s_add_u32 s86, s86, 114688')
        a.e(f's_lshl_b32 s87, s91, {fsh()}')
        a.e(f's_add_u32 s87, s87, {F3}')
        stamp(a, 13)
        a.e('L_g2code:')
        g2.post_epilogue()
        signal(a, 87, 5, waitfn=lambda: L.wait(vm=('st',)), wb=(opt('hfl') == 4))
        stamp(a, 18)

class G2:
    ACC, TF, DV, VT, RJ, TR, V1, VO, VF = 32, 96, 28, 16, 3, 8, 12, 13, 14
    REG = 40960
    def __init__(s, a): s.a = a
    def wreg(s, k, j):
        if k < 16: return 'a', 128 + 8 * k + 4 * j
        if k < 32: return 'a', 8 * (k - 16) + 4 * j
        NB = opt('nb', 12); nv = (160 - 4 * NB) // 8
        if k < 32 + nv: return 'v', 96 + 4 * NB + 8 * (k - 32) + 4 * j
        return 'a', 128 + 8 * (k - 32 - nv) + 4 * j
    def front_setup(s):
        a = s.a
        a.e('s_and_b32 s76, s2, 1')
        a.e('s_lshr_b32 s56, s2, 3')
        if opt('g2map', 1):
            a.e('s_bfe_u32 s74, s2, 0x10001')
            a.e('s_lshl_b32 s74, s74, 3')
            a.e('s_and_b32 s57, s56, 7')
            a.e('s_add_u32 s74, s74, s57')
            a.e('s_bfe_u32 s75, s2, 0x10002')
            a.e('s_lshl_b32 s75, s75, 2')
            a.e('s_lshr_b32 s57, s56, 3')
            a.e('s_add_u32 s75, s75, s57')
        else:
            a.e('s_bfe_u32 s74, s2, 0x20001')
            a.e('s_lshl_b32 s74, s74, 2')
            a.e('s_and_b32 s57, s56, 3')
            a.e('s_add_u32 s74, s74, s57')
            a.e('s_lshr_b32 s75, s56, 2')
        a.e('v_lshrrev_b32 v252, 2, v2')
        a.e('v_lshlrev_b32 v253, 11, v252')
        a.e('v_lshrrev_b32 v254, 3, v2')
        a.e('v_xor_b32 v254, v254, v2')
        a.e('v_and_b32 v254, 2, v254')
        a.e('v_and_or_b32 v254, v2, 1, v254')
        a.e('v_lshl_add_u32 v248, v254, 4, v253')
        for i in range(1, 4):
            a.e(f'v_add_u32 v{248+i}, {i*(32768-1024)}, v248')
        a.e('s_mul_i32 s56, s76, 3670016')
        a.e('s_lshl_b32 s57, s75, 8')
        a.e('s_add_u32 s56, s56, s57')
        a.e(f's_lshl_b32 s57, s{S_W}, 6')
        a.e('s_add_u32 s56, s56, s57')
        srd(a, 68, P_W2, None, 0, 56)
        a.e('s_sub_u32 s70, 7340032, s56')
        a.e('s_mov_b32 s72, 0')
        a.e('v_lshlrev_b32 v252, 6, v252')
        a.e('v_bfe_u32 v253, v2, 4, 1')
        a.e('v_lshl_add_u32 v252, v253, 5, v252')
        a.e('v_and_b32 v253, 3, v2')
        a.e('v_lshl_add_u32 v252, v253, 3, v252')
        a.e(f's_lshl_b32 s73, s{S_W}, 13')
        a.e('s_add_u32 s73, s73, 32768')
        a.e('v_add_u32 v253, s73, v252')
        a.e('v_xor_b32 v254, 32, v253')
    def fcell(s, n): return (32768, 36864, 0, 4096, 98304, 102400)[n]
    def fD(s, pairs, dv=248):
        a = s.a
        out = []
        for c, n in pairs:
            out.append(lambda n=n: a.e(f's_add_u32 m0, s73, {s.fcell(n)}'))
            for i in range(4):
                def f(i=i):
                    a.e(f'buffer_load_dwordx4 v{dv+i}, s[68:71], s72 offen offset:{1024*i} lds')
                    if i == 3: a.e('s_add_u32 s72, s72, 131072')
                out.append(f)
        return out
    def fM(s, pairs, base=253, sub=0):
        a = s.a
        for c, n in pairs:
            for kk in range(2):
                for j in range(2):
                    for h in range(2):
                        r, q = s.wreg(2 * c + kk, j)
                        a.e(f'ds_read_b64_tr_b16 {r}[{q+2*h}:{q+2*h+1}], v{base+j} offset:{s.fcell(n)-sub+2048*kk+1024*h}')
    def front_save(s):
        a = s.a
        for i in range(4): a.e(f'v_mov_b32 v{s.DV+i}, v{248+i}')
        a.e('v_mov_b32 v7, v252')
    def early(s, L):
        a = s.a; s.L = L
        a.e('s_mov_b32 s80, s74')
        a.e('s_mov_b32 s81, s75')
        a.e('s_mov_b32 s82, s76')
        a.e(f's_mul_i32 s98, s{S_W}, {s.REG}')
        a.e(f'v_add_u32 v{s.RJ}, s98, v7')
        a.e(f'v_xor_b32 v{s.RJ+1}, 32, v{s.RJ}')
        a.e('s_add_u32 s56, s73, 98304')
        a.e('v_add_u32 v5, s56, v7')
        a.e('v_xor_b32 v6, 32, v5')
        a.e(f's_waitcnt vmcnt({4 if opt("xe", 1) else 0})')
        L.vm = ['st'] * (4 if opt('xe', 1) else 0)
        mv = [(s.NF - 2, 4, 5, 98304), (s.NF - 1, 5, 5, 98304)]
        if opt('tw', 1):
            a.e('s_mov_b32 s72, s97')
            a.e('s_sub_u32 s56, s73, 32768')
            a.e('v_add_u32 v18, s56, v7')
            a.e('v_xor_b32 v19, 32, v18')
            mv += [(s.NF + i, (2, 3, 0, 1)[i], 18, 0) for i in range(4)]
            s.NF += 4
        items = []
        for c, n, base, sub in mv:
            for kk in range(2):
                for j in range(2):
                    for h in range(2):
                        r, q = s.wreg(2 * c + kk, j)
                        items.append(lambda r=r, q=q, h=h, j=j, n=n, kk=kk, base=base, sub=sub: a.e(f'ds_read_b64_tr_b16 {r}[{q+2*h}:{q+2*h+1}], v{base+j} offset:{s.fcell(n)-sub+2048*kk+1024*h}'))
        s.mv_items = items
        if opt('cpf2', 0): code_pf(a, 'L_g2code', 'L_end', 17, lambda t: L.v('cp', t))
        s.cell = {}
        s.free = list(range(10))
    def D(s, c):
        L = s.L
        def first():
            s.cell[c] = s.free.pop(0)
            L.e(f's_add_u32 m0, s98, {4096*s.cell[c]}')
        out = [first]
        for i in range(4):
            out.append(lambda i=i: L.v(('W', c), f'buffer_load_dwordx4 v{s.DV+i}, s[68:71], s72 offen offset:{1024*i} lds'))
        out.append(lambda: L.e('s_add_u32 s72, s72, 131072'))
        return out
    def M(s, c):
        L = s.L
        out = []
        for kk in range(2):
            for j in range(2):
                for h in range(2):
                    def f(kk=kk, j=j, h=h):
                        r, n = s.wreg(2 * c + kk, j)
                        L.l(('M', c), f'ds_read_b64_tr_b16 {r}[{n+2*h}:{n+2*h+1}], v{s.RJ+j} offset:{4096*s.cell[c]+2048*kk+1024*h}')
                    out.append(f)
        return out
    def Wv(s, c): return [lambda: s.L.wait(vm=(('W', c),))]
    def Fr(s, cs):
        def f():
            s.L.wait(lg0=True)
            for c in cs: s.free.append(s.cell[c])
        return [f]
    def epi_fill(s, k):
        D, M, Wv, Fr = s.D, s.M, s.Wv, s.Fr
        def cat(*xs): return [y for x in xs for y in x]
        s.A = []
        out, s.mv_items = s.mv_items[:12], s.mv_items[12:]
        return out
    def post_epilogue(s):
        a = s.a; L = s.L
        assert not s.A
        s.NA = s.NF + opt('ne', 0) + opt('na', 3)
        if not opt('ne', 0):
            a.e('s_waitcnt lgkmcnt(0)')
            a.e('s_barrier')
        a.inject([f for c in range(s.NF + opt('ne', 0), s.NA) for f in s.D(c)], 4)
        a.e(f'v_mov_b32 v{s.TR}, v{s.VT}')
        for q in range(1, 4):
            a.e(f'v_add_u32 v{s.TR+q}, {q*s.REG}, v{s.VT}')
        a.e(f'v_add_u32 v{s.V1}, {114688-2048}, v{s.VT}')
        for r in range(64):
            a.e(f'v_mov_b32 v{s.ACC+r}, 0')
        a.flush_inject()
        a.e('s_lshl_b32 s56, s80, 3')
        a.e(f's_lshl_b32 s57, s{S_W}, 1')
        a.e('s_lshl_b32 s58, s82, 2')
        a.e('s_xor_b32 s57, s57, s58')
        a.e('s_add_u32 s56, s56, s57')
        a.e('s_lshr_b32 s83, s56, 4')
        a.e('s_bfe_u32 s84, s56, 0x20002')
        hf_base(a, 57, 83, 84, 58)
        a.e('s_and_b32 s56, s56, 3')
        a.e('s_mul_i32 s56, s56, 114688')
        a.e('s_add_u32 s57, s57, s56')
        a.e('s_mul_i32 s58, s82, 57344')
        a.e('s_add_u32 s57, s57, s58')
        srd(a, 32, P_WS, 114688 + 57344, 0, 57)
        a.e('v_and_b32 v5, 15, v2')
        a.e('v_lshlrev_b32 v5, 11, v5')
        a.e('v_lshrrev_b32 v6, 4, v2')
        a.e(f'v_lshl_add_u32 v{s.VO}, v6, 3, v5')
        a.e('s_lshl_b32 s85, s80, 18')
        a.e('s_lshl_b32 s57, s82, 17')
        a.e('s_add_u32 s85, s85, s57')
        a.e('s_lshl_b32 s57, s81, 8')
        a.e('s_add_u32 s85, s85, s57')
        a.e(f's_lshl_b32 s57, s{S_W}, 6')
        a.e('s_add_u32 s85, s85, s57')
        a.e(f'v_and_b32 v{s.VF}, 31, v2')
        a.e(f'v_lshlrev_b32 v{s.VF}, {fsh()}, v{s.VF}')
    def main(s):
        a = s.a; L = s.L
        a.e('s_lshr_b32 s56, s80, 1')
        a.e(f's_lshl_b32 s56, s56, {5+fsh()}')
        a.e(f's_add_u32 s56, s56, {F3}')
        srd(a, 44, P_WS, 4 * MB, WS_H)
        a.e('s_mov_b32 s84, 0')
        L.wait(vm0=True)
        for c in range(s.NF, s.NA):
            for f in s.M(c): f()
        for f in s.Fr(range(s.NF, s.NA)): f()
        wait_flags(a, 56, s.VF, 20)
        stamp(a, 14)
        NS = 28
        slot = {}
        def TD(st):
            slot[st] = s.free.pop(0)
            out = [lambda: L.e(f's_add_u32 m0, s98, {4096*slot[st]}')]
            for i in range(4):
                v = s.VT if i < 2 else s.V1
                out.append(lambda i=i, v=v: L.v(('T', st), f'buffer_load_dwordx4 v{v}, s[32:35], s84 offen offset:{1024*i} sc1 lds'))
            out.append(lambda: (L.e('s_add_u32 s84, s84, 2048'), issued.add(st)))
            return out
        issued = set()
        NB = opt('nb', 12); KV = 32 + (160 - 4 * NB) // 8
        nxt = 0
        wc = opt('wc', 3)
        wfree, s.free = s.free[-wc:], s.free[:-wc]
        for _ in range(opt('t0', 3)):
            fs = TD(nxt); fs[0](); a.e('s_nop 0')
            for f in fs[1:]: f()
            nxt += 1
        L.wait(vm=(('T', 0),))
        a.e('s_barrier')
        X = opt('tx', 12)
        seq = [(k, tm) for k in range(56 - X) for tm in range(8)]
        seq += [(k, tm) for k in range(56 - X, 56) for tm in range(4, 8)]
        nS = len(seq)
        seq += [(k, tm) for k in range(56 - X, 56) for tm in range(4)]
        last_use = {}
        for g_, (k, tm) in enumerate(seq): last_use[k >> 1] = g_
        rdn = [0]
        def RDnext():
            if rdn[0] < 448:
                k, tm = seq[rdn[0]]
                f = s.TF + 4 * (rdn[0] % NB)
                L.l(('R', rdn[0]), f'ds_read_b128 v[{f}:{f+3}], v{s.TR+(tm>>1)} offset:{4096*slot[k>>1]+2048*(tm&1)+1024*(k&1)}')
                rdn[0] += 1
        for _ in range(NB - 1): RDnext()
        todo = list(range(s.NA, 28)); fly = []; pend = []; freed = set(); vis = 0; wseen = set()
        assert NB - 1 <= 16
        HR = 192
        a.e('s_lshl_b32 s56, s2, 2')
        a.e(f's_add_u32 s56, s56, s{S_W}')
        a.e('s_lshl_b32 s57, s56, 13')
        a.e('s_xor_b32 s58, s57, 0x8000')
        a.e('s_lshl_b32 s56, s56, 6')
        a.e(f's_add_u32 s56, s56, {F4}')
        a.e('s_xor_b32 s59, s56, 0x100')
        srd(a, 40, P_WS, 8 * MB, WS_XP)
        srd(a, 48, P_OUT, 4 * MB)
        a.e('s_add_u32 s87, s57, 4096')
        a.e('s_add_u32 s88, s58, 4096')
        a.e('v_mov_b32 v20, 0')
        a.e(f'v_mov_b32 v21, s{S_NONCE}')
        def flag_store():
            L.wait(vm=('xs',))
            stamp(a, 16)
            a.e('s_mov_b64 exec, 1')
            L.v('fl', f'buffer_store_dword v21, v20, s[{S_FLG}:{S_FLG+3}], s56 offen sc1')
            a.e('s_mov_b64 exec, -1')
        gF = nS + opt('tf', 48) * (448 - nS) // 64 if X else None
        for u in range(56):
            k0 = seq[8 * u][0]
            fill = []
            GM = (0, 16, 32, 44, 50)
            if opt('g2st') and u in GM:
                a.e('s_memtime s[66:67]'); a.e('s_waitcnt lgkmcnt(0)'); L.lg = []
                a.e(f'v_writelane_b32 v1, s66, {26 + GM.index(u)}')
            if s.free and nxt < NS and (u & 1 or u < 8 or not todo or len(s.free) > 1):
                fill += TD(nxt); nxt += 1
                if not todo and not fly and s.free and nxt < NS:
                    fill += TD(nxt); nxt += 1
            if not u & 1 and u >= opt('wk0', 8):
                if fly and u >= fly[0][1] + opt('wlat', 4):
                    c = fly.pop(0)[0]
                    assert 2 * c + 1 < KV or u >= 2 * c + 2 - KV
                    fill += s.Wv(c) + s.M(c)
                    pend.append(c)
                if todo and wfree:
                    c = todo.pop(0)
                    fs = s.D(c)
                    s.cell[c] = wfree.pop(0)
                    fill += [lambda c=c: L.e(f's_add_u32 m0, s98, {4096*s.cell[c]}')] + fs[1:]
                    fly.append((c, u))
            if 8 * u == nS and X:
                for q in range(8):
                    c = s.ACC + 32 + 4 * q
                    fill.append(lambda q=q, c=c: L.v('xs', f'buffer_store_dwordx4 v[{c}:{c+3}], v{s.VT}, s[40:43], s{57 if q < 4 else 87} offen offset:{1024*(q&3)} sc1'))
            if u == 52:
                for tm in range(4):
                    for j in range(2):
                        def f(tm=tm, j=j):
                            if j == 0 and tm: L.e(f's_add_u32 s86, s85, {32768*tm}')
                            r = 4 + 0
                            L.v('h', f'buffer_load_dwordx2 a[{4*tm+2*j}:{4*tm+2*j+1}], v{s.VO}, s[44:47], s{86 if tm else 85} offen offset:{32*j} sc1')
                        fill.append(f)
            per = -(-(len(fill) + 1) // 8)
            SS = opt('ss', 1)
            for i in range(8):
                g_ = 8 * u + i
                k, tm = seq[g_]
                if rdn[0] < 448 and seq[rdn[0]][0] >> 1 > vis:
                    q = seq[rdn[0]][0] >> 1
                    vis = min(NS - 1, q + SS - 1) if q > 1 else q
                    assert vis in issued, (u, i, vis)
                    L.wait(vm=(('T', vis),))
                    a.e('s_barrier')
                    for q2 in list(slot):
                        if q2 not in freed and last_use[q2] < g_:
                            freed.add(q2); s.free.append(slot[q2])
                need = [('R', g_)]
                if k >> 1 not in wseen:
                    wseen.add(k >> 1)
                    assert k >> 1 not in todo and all(c != k >> 1 for c, _ in fly), (k, u)
                    need.append(('M', k >> 1))
                if g_ == gF: flag_store()
                L.wait(lg=need)
                order = [0, 1] if g_ % 2 == 0 else [1, 0]
                for n, j in enumerate(order):
                    r, w = s.wreg(k, j)
                    c = s.ACC + 4 * (2 * tm + j)
                    tf = s.TF + 4 * (g_ % NB)
                    if not opt('g2x') & 1:
                        a.e(f'v_mfma_f32_16x16x32_bf16 v[{c}:{c+3}], {r}[{w}:{w+3}], v[{tf}:{tf+3}], v[{c}:{c+3}]')
                    if n == 0:
                        RDnext()
                    else:
                        for _ in range(per):
                            if fill:
                                fill.pop(0)()
                                if 'm0' in a.lines[-1]: break
            while fill:
                if 'm0' in a.lines[-1]: a.e('s_nop 0')
                fill.pop(0)()
            for c in list(pend):
                if not any(x == ('M', c) for x in L.lg):
                    pend.remove(c)
                    (wfree if todo else s.free).append(s.cell[c])
            if not todo and wfree and not fly and not pend:
                s.free += wfree; wfree = []
        assert not todo and not fly and not pend and nxt == NS
        stamp(a, 15)
        if not X:
            a.e('s_nop 7')
            for q in range(8):
                c = s.ACC + 32 + 4 * q
                L.v('xs', f'buffer_store_dwordx4 v[{c}:{c+3}], v{s.VT}, s[40:43], s{57 if q < 4 else 87} offen offset:{1024*(q&3)} sc1')
            flag_store()
        wait_flags(a, 59, 20, 22, solo=0)
        stamp(a, 17)
        P1 = 96
        for q in range(8):
            a.e(f'buffer_load_dwordx4 v[{P1+4*q}:{P1+4*q+3}], v{s.VT}, s[40:43], s{58 if q < 4 else 88} offen offset:{1024*(q&3)} sc1')
        H = 208
        for q in range(16):
            a.e(f'v_accvgpr_read_b32 v{HR+q}, a{q}')
        for q in range(16):
            unpack(a, H + 2 * q, H + 2 * q + 1, HR + q)
        for q in range(8):
            tm, j = q >> 1, q & 1
            if j == 0 and tm: a.e(f's_add_u32 s85, s85, 32768')
            a.e('s_waitcnt vmcnt(7)')
            c = s.ACC + 4 * q
            for e in range(2):
                x = c + 2 * e; y = P1 + 4 * q + 2 * e; h = H + 4 * q + 2 * e
                a.e(f'v_pk_add_f32 v[{x}:{x+1}], v[{x}:{x+1}], v[{y}:{y+1}]')
                a.e(f'v_cvt_pk_bf16_f32 v{y}, v{x}, v{x+1}')
                unpack(a, x, x + 1, y)
                a.e(f'v_pk_add_f32 v[{x}:{x+1}], v[{x}:{x+1}], v[{h}:{h+1}]')
                a.e(f'v_cvt_pk_bf16_f32 v{192+2*q+e}, v{x}, v{x+1}')
            a.e(f'buffer_store_dwordx2 v[{192+2*q}:{192+2*q+1}], v{s.VO}, s[48:51], s85 offen offset:{32*j}' + ['', ' sc1', ' nt', ' sc0 sc1'][opt('ofl')])
        LIN[0] = None

def gen_dg(a):
    d = opt('dg'); F, ia, ib = d // 10000, d // 100 % 100, d % 100
    m = opt('dgm')
    a.raw('.globl dg_kernel\n.p2align 8\n.type dg_kernel,@function\ndg_kernel:')
    a.e('s_load_dwordx2 s[10:11], s[0:1], 96')
    a.e('s_memrealtime s[12:13]')
    a.e('s_waitcnt lgkmcnt(0)')
    a.e(f's_add_u32 s10, s10, {STAMP_BASE + opt("dgw", 0) * 128:#x}')
    a.e('s_addc_u32 s11, s11, 0')
    if not m:
        a.e(f's_load_dword s4, s[10:11], {4*ia}')
        a.e(f's_load_dword s5, s[10:11], {4*ib}')
        a.e('s_waitcnt lgkmcnt(0)')
    else:
        a.e('s_mov_b32 s20, s10\ns_mov_b32 s21, s11\ns_mov_b32 s22, 0x20000\ns_mov_b32 s23, 0x20000')
        a.e('v_lshlrev_b32 v1, 7, v0')
        for i in range(16):
            a.e(f's_mov_b32 s6, {i*8192}')
            a.e(f'buffer_load_dword v{8+i}, v1, s[20:23], s6 offen offset:{4*ia}')
            a.e(f'buffer_load_dword v{24+i}, v1, s[20:23], s6 offen offset:{4*ib}')
        a.e('s_waitcnt vmcnt(0)')
        for i in range(32):
            a.e(f'v_sub_u32 v{8+i}, s12, v{8+i}')
        opa = 'v_max_u32' if m != 3 else 'v_add_u32'
        opb = {1: 'v_min_u32', 2: 'v_max_u32', 3: 'v_add_u32'}[m]
        for i in range(1, 16):
            a.e(f'{opa} v8, v8, v{8+i}')
            a.e(f'{opb} v24, v24, v{24+i}')
        a.e('s_nop 1')
        a.e('v_readlane_b32 s4, v8, 0')
        a.e('v_readlane_b32 s5, v24, 0')
        sa = 's_max_u32' if m != 3 else 's_add_u32'
        sb = {1: 's_min_u32', 2: 's_max_u32', 3: 's_add_u32'}[m]
        for l in range(1, 64):
            a.e(f'v_readlane_b32 s6, v8, {l}')
            a.e(f'v_readlane_b32 s7, v24, {l}')
            a.e('s_nop 0')
            a.e(f'{sa} s4, s4, s6')
            a.e(f'{sb} s5, s5, s7')
        a.e('s_sub_u32 s5, s4, s5')
        if m == 3: a.e('s_lshr_b32 s5, s5, 10')
        a.e('s_mov_b32 s4, 0')
        a.e('s_memrealtime s[12:13]')
        a.e('s_waitcnt lgkmcnt(0)')
    a.e('s_sub_u32 s4, s5, s4')
    a.e('s_min_u32 s4, s4, 10000')
    a.e(f's_mul_i32 s4, s4, {F}')
    a.e('L_dg:')
    a.e('s_memrealtime s[14:15]')
    a.e('s_waitcnt lgkmcnt(0)')
    a.e('s_sub_u32 s5, s14, s12')
    a.e('s_cmp_lt_u32 s5, s4')
    a.e('s_cbranch_scc1 L_dg')
    a.e('s_endpgm')

def build():
    a = Asm()
    hdr = open('cdna_kernels/' + NAME + '.s.ref').read().split('\n')
    cm = [l for l in hdr if l.startswith(';') and '@launch' not in l and 'Override launch' not in l and 'grid=ceil' not in l]
    out = '\n'.join(cm) + '\n'
    if opt('aslist') or opt('dg'):
        out += f'; @launch kernel={KNAME} grid=(256,1,1) block=(256,1,1) lds=163840\n'
        if opt('dg'): out += '; @launch kernel=dg_kernel grid=(1,1,1) block=(64,1,1) lds=0\n'
    else:
        out += '; @launch grid=(256,1,1) block=(256,1,1) lds=163840\n'
    a.raw('.amdgcn_target "amdgcn-amd-amdhsa--gfx950"')
    a.raw('.text')
    gen(a)
    if opt('dg'): gen_dg(a)
    body = a.text()
    errs = check_hazards(body)
    errs += check_waits(body, KNAME, loop_iters=2, take_fwd=('L_nonce_ok', 'L_nonce_skip', 'L_clean_skip', 'L_y2skip', 'L_y2nw') + tuple(f'L_sig{i}' for i in range(20)) + tuple(f'L_poll{i}x' for i in range(20)))
    errs += check_waits(body, KNAME, loop_iters=2, take_fwd=('L_nonce_ok',) + (() if opt('solo', 1) else tuple(f'L_poll{i}x' for i in range(20))))
    for e in errs[:8]: print(e, file=sys.stderr)
    na = 256
    out += body + f'''.section .rodata,"a"
.p2align 6
.amdhsa_kernel {KNAME}
  .amdhsa_next_free_vgpr {256+na}
  .amdhsa_next_free_sgpr 102
  .amdhsa_accum_offset 256
  .amdhsa_group_segment_fixed_size 0
  .amdhsa_kernarg_size 104
  .amdhsa_user_sgpr_count 2
  .amdhsa_user_sgpr_kernarg_segment_ptr 1
  .amdhsa_system_sgpr_workgroup_id_x 1
  .amdhsa_float_denorm_mode_32 3
.end_amdhsa_kernel
'''
    if opt('dg'):
        out += '''.p2align 6
.amdhsa_kernel dg_kernel
  .amdhsa_next_free_vgpr 48
  .amdhsa_next_free_sgpr 32
  .amdhsa_accum_offset 48
  .amdhsa_group_segment_fixed_size 0
  .amdhsa_kernarg_size 104
  .amdhsa_user_sgpr_count 2
  .amdhsa_user_sgpr_kernarg_segment_ptr 1
  .amdhsa_system_sgpr_workgroup_id_x 1
.end_amdhsa_kernel
'''
    return out, errs

if __name__ == '__main__':
    outp = sys.argv[1]
    for kv in sys.argv[2:]:
        k, v = kv.split('=')
        OPT[k] = int(v)
    t, errs = build()
    open(outp, 'w').write(t)
    print('written', outp, len(t), 'bytes;', len(errs), 'checker errors')
```

```python
import sys, os
from asmlib import *

NAME = 'sequential_preLN__ssm_conv_h3__glu_gated_swiglu__prompt'
KNAME = NAME + '_kernel'
MB = 1 << 20
WS0 = int(os.environ.get('WS0', '0')) * MB
WS_UB, WS_Y2, WS_H, WS_HNF, WS_HF, WS_XP, WS_FLG = [WS0 + x * MB for x in (0, 4, 8, 12, 16, 32, 40)]
STAMP_BASE = 64 * MB
OPT = {}
def opt(k, d=0): return OPT.get(k, d)

P_Q, P_K, P_V, P_SH, P_SSMK, P_D, P_X, P_W1, P_W3, P_W2, P_OUT, P_DBG, P_WS = [4 + 2 * i for i in range(13)]
S_W, S_NONCE, S_MASK = 30, 31, 90
S_FLG = 92
F0, F1, F2, F3, F4 = 0, 32768, 65536, 98304, 131072
FLG_SIZE = 262144
LDS_KA = 98304
KA_REG = 13056
NSTAMP = 20
AST = 128

def srd(a, d, p, size, add=0, addreg=None):
    if add or addreg is not None:
        if add:
            a.e(f's_add_u32 s{d}, s{p}, {add:#x}')
            a.e(f's_addc_u32 s{d+1}, s{p+1}, 0')
            if addreg is not None:
                a.e(f's_add_u32 s{d}, s{d}, s{addreg}')
                a.e(f's_addc_u32 s{d+1}, s{d+1}, 0')
        else:
            a.e(f's_add_u32 s{d}, s{p}, s{addreg}')
            a.e(f's_addc_u32 s{d+1}, s{p+1}, 0')
    else:
        a.e(f's_mov_b32 s{d}, s{p}')
        a.e(f's_mov_b32 s{d+1}, s{p+1}')
    if size is not None:
        a.e(f's_mov_b32 s{d+2}, {size:#x}')
    a.e(f's_mov_b32 s{d+3}, 0x20000')

def stamp(a, i):
    if not opt('stamp'): return
    a.e('s_memrealtime s[60:61]')
    if i == 0: a.e('s_memtime s[62:63]')
    cy = {11: 20, 12: 21, 14: 22, 15: 23, 4: 24, 5: 25}.get(i)
    if cy: a.e('s_memtime s[66:67]')
    a.e('s_waitcnt lgkmcnt(0)')
    a.e(f'v_writelane_b32 v1, s60, {i}')
    if cy: a.e(f'v_writelane_b32 v1, s66, {cy}')
    if LIN[0]: LIN[0].lg = []

def stamp_out(a, n):
    if not opt('stamp'): return
    a.e('s_waitcnt vmcnt(0)')
    stamp(a, n - 1)
    a.e('s_memtime s[64:65]')
    a.e('s_waitcnt lgkmcnt(0)')
    srd(a, 32, P_WS, 1 * MB, STAMP_BASE)
    a.e('s_lshl_b32 s84, s2, 2')
    a.e(f's_add_u32 s84, s84, s{S_W}')
    a.e('s_lshl_b32 s84, s84, 7')
    a.e('s_sub_u32 s64, s64, s62')
    a.e('v_writelane_b32 v1, s64, 31')
    a.e('v_mbcnt_lo_u32_b32 v2, -1, 0')
    a.e('v_lshlrev_b32 v2, 2, v2')
    a.e('s_mov_b64 exec, 0xffffffff')
    a.e('buffer_store_dword v1, v2, s[32:35], s84 offen')

LIN = [None]
class Lin:
    def __init__(s, a): s.a = a; s.vm = []; s.lg = []; LIN[0] = s
    def e(s, t): s.a.e(t)
    def v(s, tag, t): s.a.e(t); s.vm.append(tag)
    def l(s, tag, t): s.a.e(t); s.lg.append(tag)
    def _n(s, q, tags, cap):
        idx = [i for i, x in enumerate(q) if x in tags]
        if not idx: return None
        n = len(q) - max(idx) - 1
        return min(n, cap)
    def wait(s, vm=(), lg=(), vm0=False, lg0=False):
        nv = 0 if vm0 else s._n(s.vm, vm, 63)
        nl = 0 if lg0 else s._n(s.lg, lg, 15)
        t = ''
        if nv is not None:
            t += f' vmcnt({nv})'; s.vm = s.vm[len(s.vm) - nv:] if nv else []
        if nl is not None:
            t += f' lgkmcnt({nl})'; s.lg = s.lg[len(s.lg) - nl:] if nl else []
        if t: s.a.e('s_waitcnt' + t)

def unpack(a, dlo, dhi, src):
    a.e(f'v_lshlrev_b32 v{dlo}, 16, v{src}')
    a.e(f'v_and_b32 v{dhi}, s{S_MASK}, v{src}')

def hfl():
    return [' sc1', ' sc0 sc1', ' sc1 nt', ' sc0 sc1 nt', ''][opt('hfl')]

def code_pf(a, lab_from, lab_to, vt, emit=None, n=1):
    _uid[0] += 1
    L = f'L_pc{_uid[0]}'
    a.e('s_getpc_b64 s[78:79]')
    a.e(f'{L}:')
    a.e(f's_lshl_b32 s77, s{S_W}, 13')
    a.e(f's_add_u32 s77, s77, {lab_from}-{L}')
    for i in range(n):
        if i: a.e('s_add_u32 s77, s77, 32768')
        a.e(f'v_lshl_add_u32 v{vt}, v2, 7, s77')
        a.e(f'v_min_u32 v{vt}, {lab_to}-{L}, v{vt}')
        t = f'global_load_dword v{vt+1+i}, v{vt}, s[78:79]'
        if emit: emit(t)
        else: a.e(t)

def hf_base(a, d, mb, q, t):
    if not opt('reuse', 0):
        a.e(f's_lshl_b32 s{d}, s{mb}, 2')
        a.e(f's_add_u32 s{d}, s{d}, s{q}')
        a.e(f's_mul_i32 s{d}, s{d}, 458752')
        a.e(f's_add_u32 s{d}, s{d}, {WS_HF:#x}')
        return
    a.e(f's_lshl_b32 s{d}, s{mb}, 1')
    a.e(f's_add_u32 s{d}, s{d}, s{q}')
    a.e(f's_mul_i32 s{d}, s{d}, 458752')
    a.e(f's_add_u32 s{d}, s{d}, {WS_HF:#x}')
    a.e(f's_lshl_b32 s{t}, s{mb}, 19')
    a.e(f's_cmp_eq_u32 s{q}, 1')
    a.e(f's_cselect_b32 s{d}, s{t}, s{d}')
    a.e(f's_add_u32 s{t}, s{t}, {WS_Y2 - WS_UB:#x}')
    a.e(f's_cmp_eq_u32 s{q}, 0')
    a.e(f's_cselect_b32 s{d}, s{t}, s{d}')

_uid = [0]
def signal(a, soff, vt, waitfn=None, wb=False):
    _uid[0] += 1
    L = f'L_sig{_uid[0]}'
    a.e(f'v_mov_b32 v{vt}, 0')
    a.e(f'v_mov_b32 v{vt+1}, s{S_NONCE}')
    a.e(f's_cmp_eq_u32 s{S_W}, 0')
    if waitfn: waitfn()
    else: a.e('s_waitcnt vmcnt(0)')
    a.e('s_barrier')
    a.e(f's_cbranch_scc0 {L}')
    if wb:
        a.e('buffer_wbl2 sc1')
        a.e('s_waitcnt vmcnt(0)')
    a.e('s_mov_b64 exec, 1')
    a.e(f'buffer_store_dword v{vt+1}, v{vt}, s[{S_FLG}:{S_FLG+3}], s{soff} offen sc1')
    a.e('s_mov_b64 exec, -1')
    a.e(f'{L}:')

def fsh():
    return opt('fs', 32).bit_length() - 1
def f1sh():
    return opt('f1s', 32).bit_length() - 1

def wait_flags(a, soff, voff, vd, n=64, solo=None):
    _uid[0] += 1
    L = f'L_poll{_uid[0]}'
    if solo is None: solo = opt('solo', 1)
    if solo:
        a.e(f's_cmp_lg_u32 s{S_W}, {opt("pw", 0)}')
        a.e(f's_cbranch_scc1 {L}x')
    a.e(f'{L}:')
    if n == 256:
        if f1sh() == 2:
            a.e(f'buffer_load_dwordx4 v[{vd}:{vd+3}], v{voff}, s[{S_FLG}:{S_FLG+3}], s{soff} offen sc1')
        else:
            for i in range(4):
                a.e(f's_add_u32 s89, s{soff}, {i*(64<<f1sh())}')
                a.e(f'buffer_load_dword v{vd+i}, v{voff}, s[{S_FLG}:{S_FLG+3}], s89 offen sc1')
        a.e('s_waitcnt vmcnt(0)')
        a.e(f'v_xor_b32 v{vd}, s{S_NONCE}, v{vd}')
        a.e(f'v_xor_b32 v{vd+1}, s{S_NONCE}, v{vd+1}')
        a.e(f'v_xor_b32 v{vd+2}, s{S_NONCE}, v{vd+2}')
        a.e(f'v_xor_b32 v{vd+3}, s{S_NONCE}, v{vd+3}')
        a.e(f'v_or3_b32 v{vd}, v{vd}, v{vd+1}, v{vd+2}')
        a.e(f'v_or_b32 v{vd}, v{vd}, v{vd+3}')
        a.e(f'v_cmp_ne_u32 vcc, 0, v{vd}')
    else:
        a.e(f'buffer_load_dword v{vd}, v{voff}, s[{S_FLG}:{S_FLG+3}], s{soff} offen sc1')
        a.e('s_waitcnt vmcnt(0)')
        a.e(f'v_cmp_ne_u32 vcc, s{S_NONCE}, v{vd}')
    a.e('s_add_u32 s3, s3, 1')
    a.e(f's_cmp_gt_u32 s3, {opt("spin", 200000)}')
    a.e(f's_cbranch_scc1 {L}x')
    a.e(f's_cbranch_vccz {L}x')
    if opt('sleep'): a.e(f's_sleep {opt("sleep")}')
    a.e(f's_branch {L}')
    a.e(f'{L}x:')
    if solo: a.e('s_barrier')

def wave_sum2(a, va, vb, sa, sb):
    for mod in ('row_shr:1 row_mask:0xf bank_mask:0xf bound_ctrl:0', 'row_shr:2 row_mask:0xf bank_mask:0xf bound_ctrl:0',
                'row_shr:4 row_mask:0xf bank_mask:0xf bound_ctrl:0', 'row_shr:8 row_mask:0xf bank_mask:0xf bound_ctrl:0',
                'row_bcast:15 row_mask:0xa bank_mask:0xf', 'row_bcast:31 row_mask:0xc bank_mask:0xf'):
        a.e('s_nop 0')
        a.e(f'v_add_f32_dpp v{va}, v{va}, v{va} {mod}')
        a.e(f'v_add_f32_dpp v{vb}, v{vb}, v{vb} {mod}')
    a.e(f'v_readlane_b32 s{sa}, v{va}, 63')
    a.e(f'v_readlane_b32 s{sb}, v{vb}, 63')

def ln2(a, X, T, M, R, C, XM):
    def both(f):
        for r in range(2): f(r)
    for q in range(4):
        both(lambda r: a.e(f'v_pk_add_f32 v[{T[r]+2*q}:{T[r]+2*q+1}], v[{X[r]+4*q}:{X[r]+4*q+1}], v[{X[r]+4*q+2}:{X[r]+4*q+3}]'))
    both(lambda r: a.e(f'v_pk_add_f32 v[{T[r]}:{T[r]+1}], v[{T[r]}:{T[r]+1}], v[{T[r]+2}:{T[r]+3}]'))
    both(lambda r: a.e(f'v_pk_add_f32 v[{T[r]+4}:{T[r]+5}], v[{T[r]+4}:{T[r]+5}], v[{T[r]+6}:{T[r]+7}]'))
    both(lambda r: a.e(f'v_pk_add_f32 v[{T[r]}:{T[r]+1}], v[{T[r]}:{T[r]+1}], v[{T[r]+4}:{T[r]+5}]'))
    both(lambda r: a.e(f'v_add_f32 v{T[r]}, v{T[r]}, v{T[r]+1}'))
    wave_sum2(a, T[0], T[1], 56, 57)
    a.e('s_nop 0')
    both(lambda r: a.e(f'v_mul_f32 v{M[r]}, s{56+r}, v{C}'))
    both(lambda r: a.e(f'v_mov_b32 v{M[r]+1}, v{M[r]}'))
    for q in range(8):
        both(lambda r: a.e(f'v_pk_add_f32 v[{T[r]+2*q}:{T[r]+2*q+1}], v[{X[r]+2*q}:{X[r]+2*q+1}], v[{M[r]}:{M[r]+1}] neg_lo:[0,1] neg_hi:[0,1]'))
    both(lambda r: a.e(f'v_pk_mul_f32 v[{R[r]}:{R[r]+1}], v[{T[r]}:{T[r]+1}], v[{T[r]}:{T[r]+1}]'))
    for q in range(1, 8):
        both(lambda r: a.e(f'v_pk_fma_f32 v[{R[r]}:{R[r]+1}], v[{T[r]+2*q}:{T[r]+2*q+1}], v[{T[r]+2*q}:{T[r]+2*q+1}], v[{R[r]}:{R[r]+1}]'))
    both(lambda r: a.e(f'v_add_f32 v{R[r]}, v{R[r]}, v{R[r]+1}'))
    def rbf(v):
        a.e(f'v_cvt_pk_bf16_f32 v{v}, v{v}, v{v}')
        a.e(f'v_and_b32 v{v}, s{S_MASK}, v{v}')
    both(lambda r: rbf(M[r]))
    wave_sum2(a, R[0], R[1], 58, 59)
    both(lambda r: a.e(f'v_mov_b32 v{M[r]+1}, v{M[r]}'))
    both(lambda r: a.e(f'v_mul_f32 v{R[r]}, s{58+r}, v{C}'))
    both(lambda r: rbf(R[r]))
    both(lambda r: a.e(f'v_add_f32 v{R[r]}, 0x3727c5ac, v{R[r]}'))
    both(lambda r: rbf(R[r]))
    both(lambda r: a.e(f'v_sqrt_f32 v{R[r]}, v{R[r]}'))
    for q in range(2):
        both(lambda r: a.e(f'v_pk_add_f32 v[{XM[r]+2*q}:{XM[r]+2*q+1}], v[{X[r]+2*q}:{X[r]+2*q+1}], v[{M[r]}:{M[r]+1}] neg_lo:[0,1] neg_hi:[0,1]'))
    both(lambda r: rbf(R[r]))
    both(lambda r: a.e(f'v_rcp_f32 v{R[r]}, v{R[r]}'))
    for q in range(2, 8):
        both(lambda r: a.e(f'v_pk_add_f32 v[{XM[r]+2*q}:{XM[r]+2*q+1}], v[{X[r]+2*q}:{X[r]+2*q+1}], v[{M[r]}:{M[r]+1}] neg_lo:[0,1] neg_hi:[0,1]'))
    both(lambda r: a.e(f'v_mov_b32 v{R[r]+1}, v{R[r]}'))
    for q in range(8):
        both(lambda r: a.e(f'v_pk_mul_f32 v[{T[r]+2*q}:{T[r]+2*q+1}], v[{XM[r]+2*q}:{XM[r]+2*q+1}], v[{R[r]}:{R[r]+1}]'))

class Sched:
    def __init__(self): self.ev = []; self.marks = {}
    def mark(self, k): self.marks[k] = len(self.ev)
    def add(self, L): self.ev += L
    def younger(self, tag, at):
        last = max(i for i, e in enumerate(self.ev) if e[:2] == tag)
        assert last < self.marks[at], (tag, at)
        return self.marks[at] - last - 1

def gen(a):
    a.raw(f'.globl {KNAME}')
    a.raw('.p2align 8')
    a.raw(f'.type {KNAME},@function')
    a.raw(f'{KNAME}:')
    a.e('s_cmp_ge_u32 s2, 256')
    a.e('s_cbranch_scc1 L_end')
    a.e('s_load_dwordx8 s[4:11], s[0:1], 0')
    a.e('s_load_dwordx8 s[20:27], s[0:1], 64')
    a.e('s_load_dwordx2 s[28:29], s[0:1], 96')
    a.e('s_load_dwordx8 s[12:19], s[0:1], 32')
    a.e('s_memrealtime s[56:57]')
    a.e('v_lshrrev_b32 v1, 6, v0')
    a.e('v_and_b32 v2, 63, v0')
    a.e(f'v_readfirstlane_b32 s{S_W}, v1')
    a.e(f's_mov_b32 s{S_MASK}, 0xffff0000')
    a.e('s_mov_b32 s3, 0')
    a.e('s_bfe_u32 s82, s2, 0x30003')
    a.e('s_and_b32 s83, s2, 7')
    a.e('s_lshr_b32 s84, s2, 6')
    a.e('s_lshl_b32 s84, s84, 3')
    a.e('s_or_b32 s83, s83, s84')
    a.e('v_and_b32 v9, 7, v0')
    a.e('v_bfe_u32 v10, v0, 4, 1')
    a.e('v_lshl_add_u32 v1, v9, 1, v10')
    a.e('v_lshrrev_b32 v8, 5, v0')
    a.e('v_bfe_u32 v11, v0, 3, 1')
    a.e('v_lshl_add_u32 v8, v8, 1, v11')
    a.e('s_lshl_b32 s85, s83, 17')
    a.e('s_lshl_b32 s86, s82, 8')
    a.e('s_add_u32 s85, s85, s86')
    a.e('v_lshlrev_b32 v3, 13, v1')
    a.e('v_lshl_add_u32 v3, v8, 4, v3')
    a.e('v_add_u32 v3, s85, v3')
    a.e('v_add_u32 v4, 0xffffe800, v3')
    a.e('v_add_u32 v5, 0xfffff800, v3')
    a.e('v_add_u32 v6, 0x1000, v3')
    a.e('s_lshl_b32 s86, s82, 10')
    a.e('v_lshlrev_b32 v7, 6, v8')
    a.e('v_add_u32 v7, s86, v7')
    a.e('s_lshl_b32 s87, s82, 5')
    a.e('s_add_u32 s87, s87, s83')
    a.e('s_lshl_b32 s88, s87, 14')
    a.e('s_add_u32 s88, s88, 112')
    a.e('v_lshlrev_b32 v160, 10, v8')
    a.e('v_lshl_add_u32 v160, v10, 9, v160')
    a.e('v_lshlrev_b32 v161, 4, v9')
    a.e('v_sub_u32 v160, v160, v161')
    a.e('v_add_u32 v160, s88, v160')
    a.e(f's_lshl_b32 s87, s87, {fsh()}')
    a.e('v_mov_b32 v162, 0')
    a.e('s_waitcnt lgkmcnt(0)')
    stamp(a, 0)
    if opt('stamp') and not opt('g2st'): a.e('v_writelane_b32 v1, s56, 30')
    srd(a, 32, P_K, 4 * MB)
    srd(a, 36, P_V, 4 * MB)
    srd(a, 40, P_SH, 8192)
    KR, VR_, WR, WU, KU, AC0 = 8, 36, 52, 68, 100, 164
    for j in range(4):
        a.e(f'buffer_load_dwordx4 v[{WR+4*j}:{WR+4*j+3}], v7, s[40:43], 0 offen offset:{16*j}')
    rows = [(4, 0), (4, 2048), (5, 0), (3, 0), (3, 2048), (6, 0), (6, 2048)]
    for r, (vr, off) in enumerate(rows):
        a.e(f'buffer_load_dwordx4 v[{KR+4*r}:{KR+4*r+3}], v{vr}, s[32:35], 0 offen offset:{off}')
    for r, (vr, off) in enumerate(rows[3:]):
        a.e(f'buffer_load_dwordx4 v[{VR_+4*r}:{VR_+4*r+3}], v{vr}, s[36:39], 0 offen offset:{off}')
    ncp = 0
    if opt('cpf', 0):
        a.e('s_getpc_b64 s[58:59]')
        a.e('L_pc:')
        a.e('v_lshlrev_b32 v163, 7, v0')
        a.e('v_min_u32 v163, L_end-L_pc, v163')
        a.e('global_load_dword v161, v163, s[58:59]')
        ncp = 1
    srd(a, 48, P_WS, 4 * MB, WS_UB)
    if opt('pt', 0) & 1:
        a.e('v_lshlrev_b32 v163, 6, v0')
        a.e('s_sub_u32 s58, s88, 120')
        a.e('buffer_load_dword v161, v163, s[48:51], s58 offen')
        ncp += 1
    KD, KX, XP = 200, 216, 224
    KP, XPOS = opt('kp', 1), opt('xp', 2)
    def k_loads():
        a.e('s_and_b32 s74, s2, 7')
        a.e('s_lshl_b32 s74, s74, 7')
        a.e('s_lshr_b32 s75, s2, 3')
        a.e('s_lshl_b32 s75, s75, 2')
        a.e('s_add_u32 s74, s74, s75')
        a.e(f's_add_u32 s74, s74, s{S_W}')
        a.e('s_lshl_b32 s74, s74, 12')
        srd(a, 68, P_SSMK, 4096, 0, 74)
        a.e('v_lshlrev_b32 v220, 4, v2')
        for j in range(4):
            a.e(f'buffer_load_dwordx4 v[{KD+4*j}:{KD+4*j+3}], v220, s[68:71], 0 offen offset:{1024*j}')
            a.e(f'buffer_load_dword v{KX+j}, v220, s[68:71], 0 offen offset:{1024*j+16}')
    def x_loads():
        srd(a, 36, P_Q, 4 * MB)
        for r in range(2):
            for hh in range(2):
                a.e(f'buffer_load_dwordx4 v[{XP+8*r+4*hh}:{XP+8*r+4*hh+3}], v4, s[36:39], s96 offen offset:{2048*r+1024*hh}')
    if KP == 0:
        k_loads(); ncp += 8
    if opt('tlb'):
        a.e(f's_cmp_eq_u32 s{S_W}, 3')
        a.e(f's_cselect_b32 s58, {42 * MB:#x}, 0')
        srd(a, 52, P_WS, None)
        a.e('s_mov_b32 s54, s58')
        a.e('v_lshlrev_b32 v163, 21, v2')
        a.e(f'v_add_u32 v163, {opt("tlbo", 0x1f0000):#x}, v163')
        a.e('buffer_load_dword v161, v163, s[52:55], 0 offen')
        ncp += 1
        if opt('tlb') > 1:
            a.e(f's_min_u32 s58, s58, {4 * MB:#x}')
            for P_ in (P_OUT, P_SSMK, P_Q):
                srd(a, 52, P_, None)
                a.e('s_mov_b32 s54, s58')
                a.e('buffer_load_dword v161, v163, s[52:55], 0 offen')
                ncp += 1
    srd(a, 44, P_DBG, 256)
    a.e('s_or_b32 s56, s56, 1')
    a.e(f's_or_b32 s57, s2, s{S_W}')
    a.e('s_cmp_lg_u32 s57, 0')
    a.e('s_cbranch_scc1 L_nonce_skip')
    a.e('v_mov_b32 v163, s56')
    a.e('s_mov_b64 exec, 1')
    a.e('buffer_store_dword v163, v162, s[44:47], 0 offen sc1')
    a.e('s_mov_b64 exec, -1')
    a.e('s_waitcnt vmcnt(0)')
    a.e('L_nonce_skip:')
    srd(a, S_FLG, P_WS, FLG_SIZE, WS_FLG)
    a.e(f's_waitcnt vmcnt({11+ncp})')
    for e in range(8):
        unpack(a, WU + 0 * 8 + e, WU + 1 * 8 + e, WR + 2 * e)
        unpack(a, WU + 2 * 8 + e, WU + 3 * 8 + e, WR + 2 * e + 1)
    for r in range(7):
        a.e(f's_waitcnt vmcnt({10-r+ncp})')
        for q in range(4):
            unpack(a, KU + 8 * r + 2 * q, KU + 8 * r + 2 * q + 1, KR + 4 * r + q)
        if r >= 3:
            i = r - 3
            for j in range(4):
                for q in range(4):
                    d = AC0 + 8 * i + 2 * q
                    k = KU + 8 * (i + 3 - j) + 2 * q
                    w = WU + 8 * j + 2 * q
                    if j == 0:
                        a.e(f'v_pk_mul_f32 v[{d}:{d+1}], v[{k}:{k+1}], v[{w}:{w+1}]')
                    else:
                        a.e(f'v_pk_fma_f32 v[{d}:{d+1}], v[{k}:{k+1}], v[{w}:{w+1}], v[{d}:{d+1}]')
    VU = 8
    for i in range(4):
        a.e(f's_waitcnt vmcnt({3-i+ncp})')
        if i == 3:
            a.e('buffer_load_dword v163, v162, s[44:47], 0 offen sc1')
        for q in range(4):
            unpack(a, VU + 2 * q, VU + 2 * q + 1, VR_ + 4 * i + q)
        for q in range(4):
            d = AC0 + 8 * i + 2 * q
            a.e(f'v_pk_mul_f32 v[{d}:{d+1}], v[{d}:{d+1}], v[{VU+2*q}:{VU+2*q+1}]')
    O = 52
    for e in range(4):
        q = O + 4 * e
        a.e(f'v_cvt_pk_bf16_f32 v{q}, v{AC0+28+e}, v{AC0+20+e}')
        a.e(f'v_cvt_pk_bf16_f32 v{q+1}, v{AC0+12+e}, v{AC0+4+e}')
        a.e(f'v_cvt_pk_bf16_f32 v{q+2}, v{AC0+24+e}, v{AC0+16+e}')
        a.e(f'v_cvt_pk_bf16_f32 v{q+3}, v{AC0+8+e}, v{AC0+e}')
    for e in range(4):
        q = O + 4 * e
        if e == 3: a.e('s_nop 0')
        a.e(f'v_permlane16_swap_b32 v{q+2}, v{q}')
        a.e(f'v_permlane16_swap_b32 v{q+3}, v{q+1}')
        a.e(f'buffer_store_dwordx4 v[{q}:{q+3}], v160, s[48:51], 0 offen offset:{128*e} sc1')
    stamp(a, 1)
    a.e('s_and_b32 s82, s2, 7')
    a.e('s_lshr_b32 s83, s2, 3')
    a.e('s_lshl_b32 s84, s83, 2')
    a.e(f's_add_u32 s84, s84, s{S_W}')
    a.e('s_lshl_b32 s85, s82, 7')
    a.e('s_add_u32 s85, s85, s84')
    a.e('s_lshl_b32 s86, s82, 5')
    a.e('s_add_u32 s86, s86, s83')
    a.e(f's_mul_i32 s88, s{S_W}, {KA_REG}')
    a.e(f's_add_u32 s88, s88, {LDS_KA}')
    a.e('s_lshr_b32 s57, s85, 1')
    a.e('s_lshl_b32 s57, s57, 2')
    a.e(f's_load_dword s89, s[{P_D}:{P_D+1}], s57')
    a.e('v_lshlrev_b32 v4, 4, v2')
    ny = 0
    if KP == 1:
        k_loads(); ny += 8
    a.e('s_and_b32 s80, s82, 1')
    a.e('s_lshl_b32 s80, s80, 2')
    a.e('s_and_b32 s56, s83, 3')
    a.e('s_add_u32 s80, s80, s56')
    a.e('s_lshr_b32 s81, s82, 1')
    a.e('s_lshl_b32 s81, s81, 3')
    a.e('s_lshr_b32 s56, s83, 2')
    a.e('s_add_u32 s81, s81, s56')
    a.e('s_lshl_b32 s91, s80, 5')
    a.e('s_add_u32 s91, s91, s81')
    a.e('s_lshl_b32 s56, s91, 2')
    a.e(f's_add_u32 s56, s56, s{S_W}')
    a.e('s_lshl_b32 s96, s56, 12')
    nx_ = 0
    if XPOS == 1:
        x_loads(); ny += 4; nx_ = 4
    nc0 = 0
    if opt('cpf0', 2):
        if opt('cpf0', 2) == 1:
            code_pf(a, 'L_nonce', 'L_end', 164, n=2); nc0 = 2
        else:
            code_pf(a, 'L_nonce', 'L_kbcode' if opt('cpf0', 2) == 2 else 'L_g1epi', 164); nc0 = 1
    a.e(f's_waitcnt vmcnt({4+ny+nc0})')
    a.e('L_nonce:')
    a.e(f'v_readfirstlane_b32 s{S_NONCE}, v163')
    a.e('s_nop 0')
    a.e(f's_cmp_lg_u32 s{S_NONCE}, 0')
    a.e('s_cbranch_scc1 L_nonce_ok')
    a.e('s_add_u32 s3, s3, 1')
    a.e(f's_cmp_gt_u32 s3, {opt("spin", 200000)}')
    a.e('s_cbranch_scc1 L_nonce_ok')
    a.e('buffer_load_dword v163, v162, s[44:47], 0 offen sc1')
    a.e('s_waitcnt vmcnt(0)')
    a.e('s_branch L_nonce')
    a.e('L_nonce_ok:')
    a.e(f'v_mov_b32 v163, s{S_NONCE}')
    a.e(f's_cmp_eq_u32 s{S_W}, 0')
    a.e(f's_waitcnt vmcnt({ny+nc0})')
    a.e('s_barrier')
    a.e('s_cbranch_scc0 L_sig0')
    a.e('s_mov_b64 exec, 1')
    a.e(f'buffer_store_dword v163, v162, s[{S_FLG}:{S_FLG+3}], s87 offen sc1')
    a.e('s_mov_b64 exec, -1')
    a.e('L_sig0:')
    stamp(a, 2)
    if KP == 2:
        k_loads(); nx_ = 0; nc0 = 0
    npt = 0
    if opt('pt', 0) & 2:
        srd(a, 40, P_WS, 12 * MB, WS_Y2)
        a.e('v_lshlrev_b32 v164, 14, v0')
        a.e('s_lshl_b32 s56, s86, 6')
        a.e('buffer_load_dword v161, v164, s[40:43], s56 offen')
        a.e('v_lshlrev_b32 v164, 6, v0')
        a.e('s_lshl_b32 s56, s91, 14')
        a.e(f's_add_u32 s56, s56, {4*MB}')
        a.e('buffer_load_dword v161, v164, s[40:43], s56 offen')
        a.e('v_lshrrev_b32 v164, 3, v0')
        a.e('v_lshlrev_b32 v164, 12, v164')
        a.e('v_bfe_u32 v165, v0, 1, 2')
        a.e('v_lshl_add_u32 v164, v165, 8, v164')
        a.e('s_lshr_b32 s56, s91, 3')
        a.e('s_lshl_b32 s56, s56, 17')
        a.e('s_and_b32 s57, s91, 7')
        a.e('s_lshr_b32 s58, s57, 1')
        a.e('s_lshl_b32 s58, s58, 10')
        a.e('s_add_u32 s56, s56, s58')
        a.e('s_and_b32 s57, s57, 1')
        a.e('s_lshl_b32 s57, s57, 7')
        a.e('s_add_u32 s56, s56, s57')
        a.e(f's_add_u32 s56, s56, {8*MB}')
        a.e('buffer_load_dword v161, v164, s[40:43], s56 offen')
        npt += 3
    a.e('v_lshrrev_b32 v3, 3, v2')
    a.e('v_sub_u32 v3, 7, v3')
    a.e('v_lshlrev_b32 v3, 14, v3')
    a.e('v_and_b32 v5, 7, v2')
    a.e('v_lshl_add_u32 v3, v5, 4, v3')
    a.e('s_lshl_b32 s56, s84, 7')
    a.e('v_add_u32 v3, s56, v3')
    a.e('v_and_b32 v5, 15, v2')
    a.e('v_lshrrev_b32 v6, 4, v2')
    a.e('v_mov_b32 v28, 0')
    a.e('v_mov_b32 v29, 0')
    a.e('v_lshlrev_b32 v7, 3, v2')
    a.e('v_add_u32 v7, s88, v7')
    a.e('ds_write_b64 v7, v[28:29] offset:4096')
    a.e('v_min_u32 v30, 7, v2')
    a.e('v_lshlrev_b32 v30, 2, v30')
    a.e('v_add_u32 v30, s88, v30')
    a.e('ds_write_b32 v30, v28 offset:4608')
    a.e('v_add_u32 v31, 1, v5')
    a.e('v_and_b32 v32, 1, v31')
    a.e('v_sub_u32 v31, v31, v32')
    a.e('v_lshl_add_u32 v31, v6, 3, v31')
    a.e('v_lshlrev_b32 v31, 1, v31')
    a.e('v_mul_u32_u24 v32, 4160, v32')
    a.e('v_add3_u32 v31, v31, v32, s88')
    VA, VB, ACC = 36, 40, 44
    for j in range(4):
        a.e(f'v_add_u32 v{VA+j}, {4608+1024*j}, v31')
    a.e('v_lshlrev_b32 v32, 5, v5')
    a.e('v_lshlrev_b32 v33, 4, v6')
    a.e('v_sub_u32 v33, v33, v32')
    a.e('v_add_u32 v33, s88, v33')
    a.e(f'v_add_u32 v{VB}, 480, v33')
    a.e('v_add_u32 v7, s88, v4')
    for r in range(32):
        a.e(f'v_mov_b32 v{ACC+r}, 0')
    T = 76
    a.e(f's_waitcnt vmcnt({nx_+npt+nc0})')
    for j in range(4):
        d = KD + 4 * j
        if j == 0:
            a.e(f'v_readfirstlane_b32 s56, v{d}')
        a.e(f'ds_write_b128 v7, v[{d}:{d+3}] offset:{4608+32+1024*j}')
        for q in range(4):
            hi = d + q + 1 if q < 3 else KX + j
            a.e(f'v_alignbit_b32 v{T+4*j+q}, v{hi}, v{d+q}, 16')
        a.e(f'ds_write_b128 v7, v[{T+4*j}:{T+4*j+3}] offset:{4608+4160+32+1024*j}')
    a.e('s_lshl_b32 s56, s56, 16')
    a.e('v_cmp_le_u32 vcc, 7, v2')
    a.e('v_mov_b32 v32, s56')
    a.e('s_nop 0')
    a.e('v_cndmask_b32 v32, v28, v32, vcc')
    a.e(f'ds_write_b32 v30, v32 offset:{4608+4160}')
    FA = [96, 160]; FB = [128, 192]
    def rdA(r, buf):
        L = []
        for mq in range(8):
            o = 128 * (mq & 1) + 16 * r
            f = FA[buf] + 4 * mq
            L.append(f'ds_read2_b32 v[{f}:{f+1}], v{VA+(mq>>1)} offset0:{o} offset1:{o+1}')
            L.append(f'ds_read2_b32 v[{f+2}:{f+3}], v{VA+(mq>>1)} offset0:{o+2} offset1:{o+3}')
        return L
    def rdB(r, buf):
        return [f'ds_read_b128 v[{FB[buf]+4*d}:{FB[buf]+4*d+3}], v{VB} offset:{512*(7-d)+64*r}' for d in range(8)]
    a.e('s_waitcnt lgkmcnt(0)')
    a.e('s_bitcmp1_b32 s85, 0')
    a.e('s_cselect_b32 s56, 0, 16')
    a.e('s_lshl_b32 s89, s89, s56')
    a.e('s_and_b32 s89, s89, 0xffff0000')
    for l in rdA(0, 0): a.e(l)
    a.e('v_and_b32 v34, 31, v2')
    a.e(f'v_lshlrev_b32 v34, {fsh()}, v34')
    a.e(f's_lshl_b32 s56, s82, {5+fsh()}')
    wait_flags(a, 56, 34, 35)
    stamp(a, 3)
    a.e('s_lshl_b32 s56, s82, 19')
    UR = 8
    for i in range(4):
        a.e(f's_add_u32 s57, s56, {(24-8*i)*16384:#x}')
        a.e(f'buffer_load_dwordx4 v[{UR+4*i}:{UR+4*i+3}], v3, s[48:51], s57 offen sc1')
    npf = 0; wpl = []
    if XPOS == 2:
        x_loads(); npf += 4
    if opt('wpf', 1):
        RS = opt('rs', 0)
        if RS:
            a.e('s_mul_i32 s56, s2, 28672')
            a.e(f's_and_b32 s57, s{S_W}, 1')
            a.e('s_mul_i32 s57, s57, 14336')
            a.e('s_add_u32 s56, s56, s57')
            a.e(f's_cmp_ge_u32 s{S_W}, 2')
            a.e('s_cselect_b32 s58, 14336, 0')
            a.e('v_lshlrev_b32 v41, 7, v2')
            a.e('v_add_u32 v43, 8192, v41')
            for n_, P_ in enumerate((P_W1, P_W3, P_W2)[:opt('wpn', 3)]):
                sd = (40, 32, 44)[n_]
                srd(a, sd, P_, None, 0, 56)
                a.e(f's_mov_b32 s{sd+2}, s58')
                for v_ in (41, 43):
                    wpl.append(lambda sd=sd, v_=v_: a.e(f'buffer_load_dword v42, v{v_}, s[{sd}:{sd+3}], 0 offen'))
        else:
            a.e('s_mul_i32 s56, s2, 28672')
            a.e(f's_mul_i32 s57, s{S_W}, 7168')
            a.e('s_add_u32 s56, s56, s57')
            a.e('v_lshlrev_b32 v41, 7, v2')
            for n_, P_ in enumerate((P_W1, P_W3, P_W2)[:opt('wpn', 2)]):
                sd = (40, 32, 44)[n_]
                srd(a, sd, P_, 7168, 0, 56)
                wpl.append(lambda sd=sd: a.e(f'buffer_load_dword v42, v41, s[{sd}:{sd+3}], 0 offen'))
    g1 = G1(a)
    g2 = G2(a)
    g2.front_setup()
    g1.setup_dma()
    for i in range(4):
        a.e(f's_waitcnt vmcnt({npf+3-i})')
        a.e(f'ds_write_b128 v7, v[{UR+4*i}:{UR+4*i+3}] offset:{1024*i}')
    a.e('s_waitcnt lgkmcnt(0)')
    for l in rdB(0, 0): a.e(l)
    stamp(a, 4)
    LK = Lin(a)
    g1e = [[(lambda l=l: a.e(l)) for l in grp] for grp in g1.early_dma()]
    def grp(fs): return lambda: [f() for f in fs]
    g1e = [grp(x) for x in g1e]
    fillr = {r: [] for r in range(8)}
    p01 = g2.fD([(0, 2), (1, 3)])
    nk01 = 0
    NF0 = opt('nf0', 4)
    if not RS and NF0 >= 2:
        fillr[6] += p01[:5]; fillr[7] += p01[5:]; nk01 = 8
    for n_, f_ in enumerate(wpl): fillr[opt('wpr', 1 if RS else 2) + n_ * opt('wps', 1 if RS else 0)].append(f_)
    UE = 8
    for r in range(8):
        buf = r & 1
        if r < 7:
            A_, B_ = rdA(r + 1, buf ^ 1), rdB(r + 1, buf ^ 1)
            nxt = []
            for x in range(8): nxt += [B_[x], A_[2 * x], A_[2 * x + 1]]
        else:
            a.e('v_lshlrev_b32 v32, 5, v5')
            a.e('v_lshl_add_u32 v32, v6, 3, v32')
            a.e(f'v_sub_u32 v34, {4088-3584}, v32')
            a.e('v_add_u32 v34, s88, v34')
            a.e('v_add_u32 v35, s88, v32')
            nxt = [f'ds_read_b64 v[{UE+2*c}:{UE+2*c+1}], v34 offset:{512*(7-c)}' for c in range(8)]
        a.e('s_waitcnt lgkmcnt(0)')
        fl = list(fillr[r]); evr = 36 // max(1, len(fl))
        k = 0
        for mq in range(8):
            for d in range(8 - mq):
                c = mq + d
                fa = FA[buf] + 4 * mq; fb = FB[buf] + 4 * d
                a.e(f'v_mfma_f32_16x16x32_bf16 v[{ACC+4*c}:{ACC+4*c+3}], v[{fa}:{fa+3}], v[{fb}:{fb+3}], v[{ACC+4*c}:{ACC+4*c+3}]')
                if k < len(nxt):
                    a.e(nxt[k])
                if fl and k % evr == evr - 1: fl.pop(0)()
                k += 1
        assert not fl, (r, len(fl))
    a.e('s_waitcnt lgkmcnt(0)')
    stamp(a, 5)
    a.e('L_kbcode:')
    X = 96
    for c in range(8):
        unpack(a, X + 4 * c + 3, X + 4 * c + 2, UE + 2 * c)
        unpack(a, X + 4 * c + 1, X + 4 * c + 0, UE + 2 * c + 1)
    for c in range(8):
        for r in range(4):
            a.e(f'v_fma_f32 v{X+4*c+r}, v{X+4*c+r}, s89, v{ACC+4*c+r}')
        a.e(f'v_cvt_pk_bf16_f32 v{UE+2*c}, v{X+4*c}, v{X+4*c+1}')
        a.e(f'v_cvt_pk_bf16_f32 v{UE+2*c+1}, v{X+4*c+2}, v{X+4*c+3}')
        a.e(f'ds_write_b64 v35, v[{UE+2*c}:{UE+2*c+1}] offset:{4608+512*c}')
    a.flush_inject()
    LIN[0] = None
    a.e('v_lshlrev_b32 v32, 2, v0')
    a.e(f'v_add_u32 v32, {LDS_KA}, v32')
    YL_ = opt('yl', 1)
    a.e(f'v_lshrrev_b32 v33, {2+YL_}, v0')
    a.e(f'v_lshlrev_b32 v33, {14+YL_}, v33')
    a.e(f'v_and_b32 v34, {7 if YL_ else 3}, v0')
    a.e('v_lshl_add_u32 v33, v34, 4, v33')
    a.e(f's_lshl_b32 s56, s86, {6+YL_}')
    a.e('s_mov_b32 s57, 0x05040100')
    a.e('s_mov_b32 s58, 0x07060302')
    srd(a, 36, P_WS, 4 * MB, WS_Y2)
    a.e(f's_cmp_ge_u32 s{S_W}, 2')
    a.e('s_waitcnt lgkmcnt(0)')
    a.e('s_barrier')
    if RS: a.e('s_cbranch_scc1 L_y2skip')
    Y = 96; O = 128
    NP = 8 if RS else 4
    LY = Lin(a)
    def yrd(P):
        for ch in range(4):
            LY.l(P, f'ds_read_b32 v{Y+4*P+ch}, v32 offset:{ch*KA_REG+4608+4096//NP*P}')
    for P in range(4): yrd(P)
    for P in range(NP):
        LY.wait(lg=(P,))
        if P + 4 < NP: yrd(P + 4)
        y = Y + 4 * P; o = O + 4 * P
        a.e(f'v_perm_b32 v{o}, v{y+1}, v{y}, s57')
        a.e(f'v_perm_b32 v{o+1}, v{y+3}, v{y+2}, s57')
        a.e(f'v_perm_b32 v{o+2}, v{y+1}, v{y}, s58')
        a.e(f'v_perm_b32 v{o+3}, v{y+3}, v{y+2}, s58')
        a.e(f'buffer_store_dwordx4 v[{o}:{o+3}], v33, s[36:39], s56 offen sc1')
        if P < NP - 1:
            a.e(f's_add_u32 s56, s56, {256//NP*16384:#x}')
    LIN[0] = None
    if RS: a.e('L_y2skip:')
    stamp(a, 6)
    XU = [8, 24]; TT = [40, 56]; MM = [72, 74]; RR = [76, 78]; C = 80; YU = [100, 116]; XM = [140, 156]; SS = [172, 174]
    if XPOS == 2: a.e(f's_waitcnt vmcnt({len(wpl) + (0 if RS else nk01 + 4)})')
    F45 = opt('f45', 0)
    if F45: a.inject(g2.fD([(2, 0), (3, 1)]), 3)
    for r in range(2):
        for q in range(8):
            unpack(a, XU[r] + 2 * q, XU[r] + 2 * q + 1, XP + 8 * r + q)
    a.flush_inject()
    a.e(f'v_mov_b32 v{C}, 0x3a800000')
    a.e(f's_lshl_b32 s87, s2, {f1sh()}')
    a.e(f's_add_u32 s87, s87, {F1}')
    def w1():
        if RS:
            a.e(f's_bitcmp1_b32 s{S_W}, 1')
            a.e('s_cbranch_scc1 L_y2nw')
            a.e('s_waitcnt vmcnt(0)')
            a.e('L_y2nw:')
            a.e(f's_cmp_eq_u32 s{S_W}, 0')
        else:
            a.e(f's_waitcnt vmcnt({8 if F45 else 0})')
    signal(a, 87, 82, waitfn=w1)
    if RS:
        a.inject(g1e[:10] + p01 + g2.fD([(2, 0), (3, 1)]), 4)
    else:
        if NF0 >= 2: g2.fM([(0, 2), (1, 3)])
        a.inject(g1e[:10] + ([] if F45 or NF0 < 4 else g2.fD([(2, 0), (3, 1)])), 12 if F45 or NF0 < 4 else 6)
    ln2(a, XU, TT, MM, RR, C, XM)
    a.flush_inject()
    a.e('v_lshlrev_b32 v5, 7, v2')
    a.e(f'v_lshlrev_b32 v139, {7+YL_}, v2')
    a.e(f'v_add_u32 v6, {0x2000 << YL_:#x}, v139')
    if YL_:
        a.e('s_lshr_b32 s82, s91, 1')
        a.e('s_lshl_b32 s82, s82, 15')
        a.e('s_and_b32 s83, s91, 1')
        a.e('s_lshl_b32 s83, s83, 6')
        a.e('s_add_u32 s82, s82, s83')
    else:
        a.e('s_lshl_b32 s82, s91, 14')
    a.e(f's_lshl_b32 s83, s{S_W}, 4')
    a.e('s_add_u32 s82, s82, s83')
    srd(a, 40, P_WS, 4 * MB, WS_H)
    srd(a, 44, P_WS, 4 * MB, WS_HNF)
    a.e('v_and_b32 v7, 7, v2')
    a.e(f's_lshl_b32 s83, s{S_W}, 1')
    a.e('v_xor_b32 v132, s83, v7')
    a.e('v_lshl_add_u32 v132, v132, 4, v5')
    a.e(f'v_add_u32 v132, {LDS_KA}, v132')
    a.e('v_xor_b32 v133, 16, v132')
    a.e('v_lshrrev_b32 v134, 3, v2')
    a.e('v_xor_b32 v135, v134, v7')
    a.e('v_lshlrev_b32 v135, 4, v135')
    a.e('v_lshl_add_u32 v135, v134, 7, v135')
    a.e(f's_lshl_b32 s83, s{S_W}, 12')
    a.e(f's_add_u32 s83, s83, {LDS_KA}')
    a.e('v_add_u32 v135, s83, v135')
    a.e('v_lshrrev_b32 v136, 5, v2')
    a.e('v_lshlrev_b32 v136, 12, v136')
    a.e('v_bfe_u32 v137, v2, 3, 2')
    a.e('v_lshl_add_u32 v136, v137, 8, v136')
    a.e('v_lshl_add_u32 v136, v7, 4, v136')
    a.e('s_lshr_b32 s84, s91, 3')
    a.e('s_lshl_b32 s84, s84, 17')
    a.e('s_bfe_u32 s85, s91, 0x20001')
    a.e('s_lshl_b32 s85, s85, 10')
    a.e('s_add_u32 s84, s84, s85')
    a.e('s_and_b32 s85, s91, 1')
    a.e('s_lshl_b32 s85, s85, 7')
    a.e('s_add_u32 s84, s84, s85')
    a.e(f's_lshl_b32 s85, s{S_W}, 15')
    a.e('s_add_u32 s84, s84, s85')
    a.e(f's_mov_b32 s85, {F1}')
    a.e('s_waitcnt lgkmcnt(0)')
    stamp(a, 7)
    a.e(f'v_lshlrev_b32 v138, {4 if f1sh() == 2 else f1sh()}, v2')
    wait_flags(a, 85, 138, 128, n=256)
    stamp(a, 8)
    YL = 84
    a.e(f'buffer_load_dwordx4 v[{YL}:{YL+3}], v139, s[36:39], s82 offen sc1')
    a.e(f'buffer_load_dwordx4 v[{YL+4}:{YL+7}], v139, s[36:39], s82 offen offset:{64 << YL_} sc1')
    a.e(f'buffer_load_dwordx4 v[{YL+8}:{YL+11}], v6, s[36:39], s82 offen sc1')
    a.e(f'buffer_load_dwordx4 v[{YL+12}:{YL+15}], v6, s[36:39], s82 offen offset:{64 << YL_} sc1')
    a.e('s_waitcnt vmcnt(4)')
    if NF0 == 4: g2.fM(([(0, 2), (1, 3)] if RS else []) + [(2, 0), (3, 1)])
    for cgi in range(4):
        a.e(f's_waitcnt vmcnt({3-cgi})')
        for r in range(2):
            for e in range(2):
                u = YU[r] + 4 * cgi + 2 * e
                unpack(a, u, u + 1, YL + 4 * cgi + 2 * r + e)
        for r in range(2):
            for e in range(2):
                u = YU[r] + 4 * cgi + 2 * e; x = XM[r] + 4 * cgi + 2 * e; t = TT[r] + 4 * cgi + 2 * e
                a.e(f'v_pk_fma_f32 v[{x}:{x+1}], v[{t}:{t+1}], v[{u}:{u+1}], v[{x}:{x+1}]')
        for r in range(2):
            for e in range(2):
                x = XM[r] + 4 * cgi + 2 * e
                if cgi == 0 and e == 0:
                    a.e(f'v_pk_mul_f32 v[{RR[r]}:{RR[r]+1}], v[{x}:{x+1}], v[{x}:{x+1}]')
                else:
                    a.e(f'v_pk_fma_f32 v[{RR[r]}:{RR[r]+1}], v[{x}:{x+1}], v[{x}:{x+1}], v[{RR[r]}:{RR[r]+1}]')
            x = XM[r] + 4 * cgi
            if cgi == 0: a.e(f'v_pk_add_f32 v[{SS[r]}:{SS[r]+1}], v[{x}:{x+1}], v[{x+2}:{x+3}]')
            else:
                a.e(f'v_pk_add_f32 v[{SS[r]}:{SS[r]+1}], v[{x}:{x+1}], v[{SS[r]}:{SS[r]+1}]')
                a.e(f'v_pk_add_f32 v[{SS[r]}:{SS[r]+1}], v[{x+2}:{x+3}], v[{SS[r]}:{SS[r]+1}]')
    for r in range(2):
        a.e(f'v_add_f32 v{SS[r]}, v{SS[r]}, v{SS[r]+1}')
        a.e(f'v_add_f32 v{RR[r]}, v{RR[r]}, v{RR[r]+1}')
    fl_ = []
    for r in range(2):
        for q in range(8):
            u = YU[r] + 2 * q; x = XU[r] + 2 * q; t = TT[r] + 2 * q
            fl_.append(f'v_pk_fma_f32 v[{x}:{x+1}], v[{t}:{t+1}], v[{u}:{u+1}], v[{x}:{x+1}]')
    for r in range(2):
        for q in range(8):
            fl_.append(f'v_cvt_pk_bf16_f32 v{XP+8*r+q}, v{XU[r]+2*q}, v{XU[r]+2*q+1}')
    for mod in ('row_shr:1 row_mask:0xf bank_mask:0xf bound_ctrl:0', 'row_shr:2 row_mask:0xf bank_mask:0xf bound_ctrl:0',
                'row_shr:4 row_mask:0xf bank_mask:0xf bound_ctrl:0', 'row_shr:8 row_mask:0xf bank_mask:0xf bound_ctrl:0',
                'row_bcast:15 row_mask:0xa bank_mask:0xf', 'row_bcast:31 row_mask:0xc bank_mask:0xf'):
        for v in (SS[0], SS[1], RR[0], RR[1]):
            a.e(f'v_add_f32_dpp v{v}, v{v}, v{v} {mod}')
    for i, v in enumerate((SS[0], SS[1], RR[0], RR[1])):
        a.e(f'v_readlane_b32 s{56+i}, v{v}, 63')
    def both(f):
        for r in range(2): f(r)
        if fl_: a.e(fl_.pop(0))
        if fl_: a.e(fl_.pop(0))
    def rbf(v):
        a.e(f'v_cvt_pk_bf16_f32 v{v}, v{v}, v{v}')
        a.e(f'v_and_b32 v{v}, s{S_MASK}, v{v}')
    both(lambda r: a.e(f'v_mul_f32 v{SS[r]}, s{56+r}, v{C}'))
    both(lambda r: a.e(f'v_mul_f32 v{RR[r]}, s{58+r}, v{C}'))
    both(lambda r: a.e(f'v_fma_f32 v{RR[r]}, -v{SS[r]}, v{SS[r]}, v{RR[r]}'))
    both(lambda r: a.e(f'v_max_f32 v{RR[r]}, 0, v{RR[r]}'))
    both(lambda r: rbf(RR[r]))
    both(lambda r: a.e(f'v_add_f32 v{RR[r]}, 0x3727c5ac, v{RR[r]}'))
    both(lambda r: rbf(RR[r]))
    both(lambda r: a.e(f'v_sqrt_f32 v{RR[r]}, v{RR[r]}'))
    both(lambda r: a.e(f'v_add_f32 v{SS[r]}, v{SS[r]}, v{MM[r]}'))
    both(lambda r: rbf(RR[r]))
    both(lambda r: a.e(f'v_rcp_f32 v{RR[r]}, v{RR[r]}'))
    both(lambda r: rbf(SS[r]))
    both(lambda r: a.e(f'v_sub_f32 v{SS[r]}, v{MM[r]}, v{SS[r]}'))
    both(lambda r: a.e(f'v_mul_f32 v{SS[r]}, v{SS[r]}, v{RR[r]}'))
    nh = len(fl_)
    for q in range(8):
        for r in range(2):
            x = XM[r] + 2 * q
            a.e(f'v_pk_fma_f32 v[{TT[r]+2*q}:{TT[r]+2*q+1}], v[{x}:{x+1}], v[{RR[r]}:{RR[r]+1}], v[{SS[r]}:{SS[r]+1}] op_sel_hi:[1,0,0]')
    for r in range(2):
        for q in range(8):
            a.e(f'v_cvt_pk_bf16_f32 v{YL+8*r+q}, v{TT[r]+2*q}, v{TT[r]+2*q+1}')
        for hh in range(2):
            a.e(f'ds_write_b128 v{132+r}, v[{YL+8*r+4*hh}:{YL+8*r+4*hh+3}] offset:{8192*hh}')
    for t_ in fl_: a.e(t_)
    a.e('s_waitcnt lgkmcnt(0)')
    a.e('s_barrier')
    for i in range(4):
        a.e(f'ds_read_b128 v[{100+4*i}:{103+4*i}], v135 offset:{1024*i}')
    for i in range(4):
        a.e(f's_waitcnt lgkmcnt({3-i})')
        a.e(f'buffer_store_dwordx4 v[{100+4*i}:{103+4*i}], v136, s[44:47], s84 offen sc1')
        if i < 3: a.e('s_add_u32 s84, s84, 8192')
    stamp(a, 9)
    a.e(f's_lshl_b32 s87, s91, {fsh()}')
    a.e(f's_add_u32 s87, s87, {F2}')
    g2.front_save()
    g1.pre_setup(g2.fD([(4, 0), (5, 1)], dv=28) if F45 else [])
    signal(a, 87, 4, waitfn=lambda: a.e(f's_waitcnt vmcnt({8 if F45 else 0})'))
    g2.NF = 8 if F45 else NF0 + 2
    def mv45():
        if not F45: return
        a.e('v_add_u32 v4, s73, v7')
        a.e('v_xor_b32 v5, 32, v4')
        a.e('s_waitcnt vmcnt(8)')
        g2.fM([(4, 0), (5, 1)], base=4)
    g1.hook = mv45
    g1.main()
    g1.epilogue(g2)
    g2.main()
    a.e(f's_or_b32 s57, s2, s{S_W}')
    a.e('s_cmp_lg_u32 s57, 0')
    a.e('s_cbranch_scc1 L_clean_skip')
    srd(a, 32, P_DBG, 256)
    a.e('v_mov_b32 v20, 0')
    a.e('s_mov_b64 exec, 1')
    a.e('buffer_store_dword v20, v20, s[32:35], 0 offen sc1')
    a.e('s_mov_b64 exec, -1')
    a.e('L_clean_skip:')
    stamp_out(a, NSTAMP)
    a.e('L_end:')
    a.e('s_endpgm')

G1_STG = 32768
class G1:
    TM, NW, DPW, ND = 4, 4, 8, 4
    ACC, WF, TF, DV, VT, VR, VL = 32, 0, 28, 8, 16, 17, 18
    DVE = 240
    def __init__(s, a): s.a = a
    def setup_dma(s):
        a = s.a
        a.e('s_and_b32 s56, s81, 1')
        a.e('s_lshl_b32 s56, s56, 1')
        a.e('s_movk_i32 s57, 4682')
        a.e('s_movk_i32 s58, 7168')
        a.e('v_mov_b32 v76, 0x80000000')
        a.e('v_subrev_u32 v77, 8, v2')
        for src, dst in ((2, 78), (77, 79)):
            a.e(f'v_cmp_gt_u32 vcc, 56, v{src}')
            a.e(f'v_mul_u32_u24 v80, s57, v{src}')
            a.e('v_lshrrev_b32 v80, 16, v80')
            a.e('v_mul_u32_u24 v81, 14, v80')
            a.e(f'v_sub_u32 v81, v{src}, v81')
            a.e('v_add_u32 v81, s56, v81')
            a.e('v_subrev_u32 v82, 14, v81')
            a.e('v_min_u32 v81, v81, v82')
            a.e('v_mul_u32_u24 v80, s58, v80')
            a.e('v_lshl_add_u32 v80, v81, 4, v80')
            a.e(f'v_cndmask_b32 v{dst}, v76, v80, vcc')
        for i in range(8):
            pat = 79 if (i >> 1) & 1 else 78
            c = i * 4 * 7168 - 1024 * (i & 3)
            a.e(f'v_add_u32 v{s.DVE+i}, {c}, v{pat}' if c else f'v_mov_b32 v{s.DVE+i}, v{pat}')
        a.e(f's_and_b32 s56, s{S_W}, 1')
        a.e(f's_lshr_b32 s57, s{S_W}, 1')
        a.e(f's_mul_i32 s97, s56, {8*4*7168}')
        a.e('s_mov_b32 s100, 458752')
        a.e('s_lshl_b32 s98, s57, 14')
        a.e('s_lshl_b32 s56, s56, 13')
        a.e('s_add_u32 s98, s98, s56')
        a.e('s_mul_i32 s56, s81, 224')
        a.e('s_cmp_eq_u32 s57, 0')
        a.e(f's_cselect_b32 s52, s{P_W1}, s{P_W3}')
        a.e(f's_cselect_b32 s53, s{P_W1+1}, s{P_W3+1}')
        srd(a, 52, 52, None, 0, 56)
        a.e('s_sub_u32 s54, 7340032, s56')
    def m0set(s, i): return f's_add_u32 m0, s98, {4096*(i//4)}' if i else 's_mov_b32 m0, s98'
    def dma(s, i, base): return f'buffer_load_dwordx4 v{base+i}, s[52:55], s97 offen offset:{1024*(i&3)}' + ['', ' sc1', ' nt', ' sc0'][opt('wfl')] + ' lds'
    def dma_adv(s): return ['s_add_u32 s97, s97, s100', f's_add_u32 s98, s98, {G1_STG}', 's_and_b32 s98, s98, 0x1ffff']
    def early_dma(s):
        out = []
        for st in range(2):
            for i in range(8):
                if i % 4 == 0: out.append([s.m0set(i)])
                out.append([s.dma(i, s.DVE)] + (s.dma_adv() if i == 7 else []))
        return out
    def tok(s, k, tm):
        f = s.TF + 4 * (4 * (k % s.ND) + tm)
        return f'buffer_load_dwordx4 a[{f}:{f+3}], v{s.VT}, s[32:35], s82 offen offset:{tm*1024}' + (' sc1' if opt('t1sc', 1) else '')
    def rd(s, ph, t):
        j, mat = (ph & 3) >> 1, ph & 1
        return [f'ds_read_b64_tr_b16 a[{s.WF+4*t+2*h}:{s.WF+4*t+2*h+1}], v{s.VR} offset:{8192*j+1024*h+32*t+16384*mat}' for h in range(2)]
    def pre_setup(s, inj):
        a = s.a
        for i in range(8): a.e(f'v_mov_b32 v{s.DV+i}, v{s.DVE+i}')
        for i in range(16): a.e(f'v_accvgpr_write_b32 a{92+i}, v{224+i}')
        a.e(f'v_lshlrev_b32 v{s.VT}, 4, v2')
        a.e('v_lshrrev_b32 v4, 4, v2')
        a.e('v_lshlrev_b32 v4, 11, v4')
        a.e('v_bfe_u32 v5, v2, 4, 1')
        a.e('v_lshl_add_u32 v4, v5, 7, v4')
        a.e('v_bfe_u32 v6, v2, 2, 2')
        a.e('v_mul_u32_u24 v5, 224, v6')
        a.e('v_and_b32 v6, 3, v2')
        a.e('v_lshl_add_u32 v5, v6, 3, v5')
        a.e(f'v_add_u32 v{s.VL}, v4, v5')
        a.e(f'v_mov_b32 v{s.VR}, v{s.VL}')
        a.e('v_and_b32 v19, 31, v2')
        a.e(f'v_lshlrev_b32 v19, {fsh()}, v19')
        a.e('s_lshl_b32 s56, s80, 2')
        a.e(f's_add_u32 s56, s56, s{S_W}')
        a.e('s_lshl_b32 s57, s56, 17')
        srd(a, 32, P_WS, 131072, WS_HNF, 57)
        hf_base(a, 57, 80, S_W, 58)
        srd(a, 36, P_WS, 4 * 114688, 0, 57)
        a.e('s_and_b32 s58, s81, 1')
        a.e('s_mul_i32 s85, s81, 7')
        a.e('s_add_u32 s85, s85, s58')
        a.e('s_lshl_b32 s85, s85, 9')
        a.e('s_movk_i32 s86, 3072')
        a.e('s_cmp_eq_u32 s58, 0')
        a.e(f's_cselect_b32 s86, s86, {0xfffffe00 if opt("hl", 1) else 0xfffffc08:#x}')
        a.e('s_add_u32 s86, s86, s85')
        a.inject(inj, 16)
        for r in range(224):
            a.e(f'v_mov_b32 v{s.ACC+r}, 0')
        a.flush_inject()
    def kof(s, s_, P): return 2 * s_ + (-1, 0, 0, 1)[P]
    def ev_ins(s, e):
        L = []
        if e[0] == 'D':
            if e[2] % 4 == 0: L.append(s.m0set(e[2]))
            L.append(s.dma(e[2], s.DV))
            if e[2] == 7: L += s.dma_adv()
        elif e[0] == 'Z':
            fl = ['', ' sc1'][opt('ps', 0) - 1]
            u = e[2]
            if u < 3: L = [f'buffer_store_dwordx4 v[24:27], v{s.VT}, s[36:39], s88 offen offset:{1024*u}{fl}']
            else: L = [f'buffer_store_dwordx2 v[24:25], v{s.VT}, s[36:39], s89 offen{fl}', 's_add_u32 s88, s88, 114688', 's_add_u32 s89, s89, 114688']
        elif e[0] == 'Q':
            L = [f'buffer_store_dwordx4 v[24:27], v{s.VT}, s[44:47], s99 offen', 's_add_u32 s99, s99, 1024']
        elif e[0] == 'V':
            L = ['s_mov_b32 m0, s89', 'buffer_load_dwordx4 v28, s[68:71], s72 offen lds', 's_add_u32 s72, s72, 32768', 's_add_u32 s89, s89, 1024']
        elif e[0] == 'C':
            L = ['global_load_dword v22, v23, s[78:79]', f's_cmp_ge_u32 s84, {opt("cpt", 5)}', 's_cselect_b32 s99, -1, 0', 'v_and_b32 v23, s99, v24']
        elif e[0] == 'Y':
            L = ['buffer_load_dword v22, v21, s[44:47], s88 offen', 's_add_u32 s88, s88, 1024']
        else:
            L.append(s.tok(e[1], e[2]))
            if e[2] == 3: L.append('s_add_u32 s82, s82, 4096')
        return L
    def main(s):
        a = s.a
        S = s.S = Sched()
        for s_ in range(-4, 8):
            for P in range(4):
                S.mark((s_, P))
                k = s.kof(s_, P) + s.ND - 1
                t0 = 2 if P in (0, 2) else 0
                S.add([('D', s_ + 2, 2 * P), ('T', k, t0), ('D', s_ + 2, 2 * P + 1), ('T', k, t0 + 1)])
                if opt('w2y', 0 if opt('rs', 0) else 1) and s_ % 2 == 0 and P == 1: S.add([('Y', s_, 0)])
                if opt('vev', 1) and s_ % 2 == 1 and P == 1: S.add([('V', s_, 0)])
                if opt('cpg', 1) and s_ % 2 == 1 and P == 3: S.add([('C', s_, 0)])
                if opt('psx', 0) and P == 2 and s_ & 1: S.add([('Q', s_, 0)])
                if opt('ps', 0) and P in (1, 3): S.add([('Z', s_, 2 * (s_ & 1) + (P >> 1))])
        vm_bar = min(S.younger(('D', 4), (4, 0)), S.younger(('D', 5), (5, 0)))
        vm_p1 = min(S.younger(('T', 8), (4, 1)), S.younger(('T', 10), (5, 1)))
        vm_p3 = min(S.younger(('T', 9), (4, 3)), S.younger(('T', 11), (5, 3)))
        if opt('w2y', 0 if opt('rs', 0) else 1):
            a.e('s_mul_i32 s56, s2, 28672')
            a.e(f's_mul_i32 s57, s{S_W}, 7168')
            a.e('s_add_u32 s56, s56, s57')
            srd(a, 44, P_W2, 7168, 0, 56)
            a.e('v_min_u32 v21, 8, v2')
            a.e('v_lshlrev_b32 v21, 7, v21')
            a.e('s_mov_b32 s88, 0')
        a.e(f's_lshl_b32 s56, s80, {5+fsh()}')
        a.e(f's_add_u32 s56, s56, {F2}')
        if opt('psx', 0):
            srd(a, 44, P_WS, 8 * MB, WS_XP)
            a.e('s_lshl_b32 s99, s2, 2')
            a.e(f's_add_u32 s99, s99, s{S_W}')
            a.e('s_lshl_b32 s99, s99, 13')
        if opt('ps', 0):
            a.e('s_mov_b32 s88, s85')
            a.e('s_mov_b32 s89, s86')
            for r in range(4): a.e(f'v_mov_b32 v{24+r}, 0')
        a.e('s_add_u32 s89, s73, 98304')
        if opt('cpg', 1):
            a.e('s_getpc_b64 s[78:79]')
            a.e('L_pcg:')
            a.e(f's_lshl_b32 s77, s{S_W}, 13')
            a.e('s_add_u32 s77, s77, L_g1epi-L_pcg')
            a.e('v_lshl_add_u32 v24, v2, 7, s77')
            a.e('v_min_u32 v24, L_end-L_pcg, v24')
            a.e('v_mov_b32 v23, 0')
        a.e('s_mov_b32 s82, 0')
        a.e('s_mov_b32 s83, 0')
        a.e('s_mov_b32 s84, 0')
        stamp(a, 10)
        d1 = [('D', 1, i) for i in range(8)] + [('D', 2, 0), ('D', 2, 1)]
        for e in d1:
            for l in s.ev_ins(e):
                a.e(l)
                if 'm0' in l: a.e('s_nop 0')
        s.hook()
        for t in range(6):
            for l in s.rd(0, t): a.e(l)
        a.e('s_waitcnt lgkmcnt(12)')
        wait_flags(a, 56, 19, 20)
        stamp(a, 11)
        XE = opt('xe', 1)
        pro = d1 + [e for e in S.ev[:S.marks[(0, 1)]] if e[1] >= 0 and e[0] == 'T'] + ([] if XE else [('X', i, 0) for i in range(4)])
        for e in pro[len(d1):]:
            if e[0] == 'X':
                a.e(f'buffer_store_dwordx4 a[{92+4*e[1]}:{95+4*e[1]}], v{s.VT}, s[40:43], s96 offen offset:{1024*e[1]} sc1')
                continue
            for l in s.ev_ins(e):
                a.e(l)
                if 'm0' in l: a.e('s_nop 0')
        act = pro + S.ev[S.marks[(0, 1)]:]
        off = len(pro) - S.marks[(0, 1)]
        s.startup = {}
        need = -1
        for s_ in range(0, 6):
            for P, tags, N in ((0, [('D', s_)], vm_bar), (1, [('T', 2 * s_)], vm_p1), (3, [('T', 2 * s_ + 1)], vm_p3)):
                if (s_, P) == (0, 0): continue
                site = S.marks[(s_, P)] + off
                for tg in tags:
                    idx = [i for i, e in enumerate(act) if e[:2] == tg]
                    if not idx: continue
                    if site - max(idx) - 1 < N: need = max(need, max(idx))
        if need >= 0:
            a.e(f's_waitcnt vmcnt({S.marks[(0, 1)] + off - need - 1})')
        a.e('s_branch L_g1_P1')
        s.snake = 0
        if opt('al', 1):
            a.raw('.p2align 6')
            for _ in range(opt('alo', 0)): a.e('s_nop 0')
        a.e('L_g1_loop:')
        if opt('tw', 1):
            a.e('s_cmp_eq_u32 s84, 7')
            a.e('s_cbranch_scc0 L_g1_notw')
            for i in range(4):
                a.e(f'v_mov_b32 v{s.DV+i}, v{28+i}')
                a.e(f'v_add_u32 v{s.DV+4+i}, 131072, v{28+i}')
            a.e('s_mov_b64 s[52:53], s[68:69]')
            a.e('s_mov_b32 s54, s70')
            a.e('s_add_u32 s97, s72, 32768')
            a.e('s_mov_b32 s100, 262144')
            a.e('L_g1_notw:')
        for s_ in (4, 5):
            a.e(f's_add_u32 s83, s83, {G1_STG}')
            a.e('s_and_b32 s83, s83, 0x1ffff')
            a.e(f's_waitcnt vmcnt({vm_bar})')
            a.e('s_barrier')
            s.phase(s_, 0)
            if s_ == 4: a.e('L_g1_P1:')
            a.e(f's_waitcnt vmcnt({vm_p1})')
            s.phase(s_, 1)
            s.phase(s_, 2)
            a.e(f's_waitcnt vmcnt({vm_p3})')
            s.phase(s_, 3)
        if opt('g1st'):
            a.e('s_memtime s[66:67]')
            a.e('s_min_u32 s64, s84, 3')
            a.e('s_add_u32 s64, s64, 26')
            a.e('s_waitcnt lgkmcnt(0)')
            a.e('s_cmp_lt_u32 s84, 4')
            a.e('s_cselect_b32 s64, s64, 40')
            a.e('s_mov_b32 m0, s64')
            a.e('v_writelane_b32 v1, s66, m0')
        a.e('s_add_u32 s84, s84, 1')
        a.e('s_cmp_lt_u32 s84, 8')
        a.e('s_cbranch_scc1 L_g1_loop')
        a.e('L_g1epi:')
        s.phase(6, 0, last=True)
        stamp(a, 12)
    def phase(s, s_, P, last=False):
        a = s.a; S = s.S
        kbuf = s.kof(s_, P) % s.ND
        mat = (P + 1) & 1
        items = []
        if not last:
            nxt = S.marks[(s_, P + 1)] if P < 3 else S.marks[(s_ + 1, 0)]
            items = [s.ev_ins(e) for e in S.ev[S.marks[(s_, P)]:nxt]]
        slots = [[] for _ in range(7)]
        for p_, it in zip([1, 2, 4, 5, 6], items): slots[p_] = it
        if P == 0 and not last:
            slots[0] = [f'v_add_u32 v{s.VR}, s83, v{s.VL}']
        for t in range(7):
            a.e(f's_waitcnt lgkmcnt({10 if not (last and t) else 12-2*t})')
            R = s.rd(P - 1, 6) if t == 0 else ([] if last else s.rd(P, t - 1))
            X = list(slots[t])
            pre = [x for x in X if 'm0' in x]
            X = [x for x in X if 'm0' not in x]
            gaps = [[] for _ in range(4)]
            if R: gaps[0] = pre + [R[0]]; gaps[1] = [R[1]]
            gaps[2] = X[:1]; gaps[3] = X[1:]
            order = [0, 1, 2, 3]
            if s.snake & 1: order.reverse()
            s.snake += 1
            for n, tm in enumerate(order):
                c = s.ACC + 4 * ((mat * 7 + t) * 4 + tm)
                tf = s.TF + 4 * (4 * kbuf + tm)
                if not opt('g1x') & 1: a.e(f'v_mfma_f32_16x16x32_bf16 v[{c}:{c+3}], a[{s.WF+4*t}:{s.WF+4*t+3}], a[{tf}:{tf+3}], v[{c}:{c+3}]')
                for x in gaps[n]:
                    if opt('g1x') & 2 and x.startswith('ds_'): continue
                    if opt('g1x') & 4 and x.startswith('buffer'): continue
                    a.e(x)
    def epilogue(s, g2):
        a = s.a
        L = Lin(a)
        a.e('s_mov_b32 s58, 0xbfb8aa3b')
        a.e('s_mov_b32 s59, 0xbfb8aa3b')
        if opt('xe', 1):
            for i in range(4):
                a.e(f'buffer_store_dwordx4 a[{92+4*i}:{95+4*i}], v{s.VT}, s[40:43], s96 offen offset:{1024*i} sc1')
        g2.early(L)
        a.e('v_lshlrev_b32 v17, 3, v2')
        T = 8
        k = 0
        for tm in range(4):
            for u in range(4):
                O = (20, 24)[k & 1]
                fill = g2.epi_fill(k)
                def F(n=1):
                    for _ in range(n):
                        if fill: fill.pop(0)()
                tiles = [2 * u, 2 * u + 1] if u < 3 else [6]
                gs = []; us = []
                for t in tiles:
                    gs += [s.ACC + 4 * (t * 4 + tm), s.ACC + 4 * (t * 4 + tm) + 2]
                    us += [s.ACC + 4 * ((7 + t) * 4 + tm), s.ACC + 4 * ((7 + t) * 4 + tm) + 2]
                n = len(gs)
                nins = 9 * n
                cnt = [0]; ev_ = max(1, nins // (len(fill) + 1))
                def V(t):
                    a.e(t); cnt[0] += 1
                    if cnt[0] % ev_ == 0: F(1)
                for q in range(n): V(f'v_pk_mul_f32 v[{T+2*q}:{T+2*q+1}], v[{gs[q]}:{gs[q]+1}], s[58:59]')
                for q in range(2 * n): V(f'v_exp_f32 v{T+q}, v{T+q}')
                for q in range(n): V(f'v_pk_add_f32 v[{T+2*q}:{T+2*q+1}], v[{T+2*q}:{T+2*q+1}], 1.0 op_sel_hi:[1,0]')
                for q in range(2 * n): V(f'v_rcp_f32 v{T+q}, v{T+q}')
                for q in range(n): V(f'v_pk_mul_f32 v[{gs[q]}:{gs[q]+1}], v[{gs[q]}:{gs[q]+1}], v[{us[q]}:{us[q]+1}]')
                for q in range(n): V(f'v_pk_mul_f32 v[{T+2*q}:{T+2*q+1}], v[{T+2*q}:{T+2*q+1}], v[{gs[q]}:{gs[q]+1}]')
                for q in range(n): V(f'v_cvt_pk_bf16_f32 v{O+q}, v{T+2*q}, v{T+2*q+1}')
                if u < 3:
                    L.v('st', f'buffer_store_dwordx4 v[{O}:{O+3}], v{s.VT}, s[36:39], s85 offen offset:{1024*u}' + hfl())
                else:
                    L.v('st', f'buffer_store_dwordx2 v[{O}:{O+1}], v{17 if opt("hl", 1) else s.VT}, s[36:39], s86 offen' + hfl())
                F(len(fill))
                k += 1
            if tm < 3:
                a.e('s_add_u32 s85, s85, 114688')
                a.e('s_add_u32 s86, s86, 114688')
        a.e(f's_lshl_b32 s87, s91, {fsh()}')
        a.e(f's_add_u32 s87, s87, {F3}')
        stamp(a, 13)
        a.e('L_g2code:')
        g2.post_epilogue()
        signal(a, 87, 5, waitfn=lambda: L.wait(vm=('st',)), wb=(opt('hfl') == 4))
        stamp(a, 18)

class G2:
    ACC, TF, DV, VT, RJ, TR, V1, VO, VF = 32, 96, 28, 16, 3, 8, 12, 13, 14
    REG = 40960
    def __init__(s, a): s.a = a
    def wreg(s, k, j):
        if k < 16: return 'a', 128 + 8 * k + 4 * j
        if k < 32: return 'a', 8 * (k - 16) + 4 * j
        NB = opt('nb', 12); nv = (160 - 4 * NB) // 8
        if k < 32 + nv: return 'v', 96 + 4 * NB + 8 * (k - 32) + 4 * j
        return 'a', 128 + 8 * (k - 32 - nv) + 4 * j
    def front_setup(s):
        a = s.a
        a.e('s_and_b32 s76, s2, 1')
        a.e('s_lshr_b32 s56, s2, 3')
        if opt('g2map', 1):
            a.e('s_bfe_u32 s74, s2, 0x10001')
            a.e('s_lshl_b32 s74, s74, 3')
            a.e('s_and_b32 s57, s56, 7')
            a.e('s_add_u32 s74, s74, s57')
            a.e('s_bfe_u32 s75, s2, 0x10002')
            a.e('s_lshl_b32 s75, s75, 2')
            a.e('s_lshr_b32 s57, s56, 3')
            a.e('s_add_u32 s75, s75, s57')
        else:
            a.e('s_bfe_u32 s74, s2, 0x20001')
            a.e('s_lshl_b32 s74, s74, 2')
            a.e('s_and_b32 s57, s56, 3')
            a.e('s_add_u32 s74, s74, s57')
            a.e('s_lshr_b32 s75, s56, 2')
        a.e('v_lshrrev_b32 v252, 2, v2')
        a.e('v_lshlrev_b32 v253, 11, v252')
        a.e('v_lshrrev_b32 v254, 3, v2')
        a.e('v_xor_b32 v254, v254, v2')
        a.e('v_and_b32 v254, 2, v254')
        a.e('v_and_or_b32 v254, v2, 1, v254')
        a.e('v_lshl_add_u32 v248, v254, 4, v253')
        for i in range(1, 4):
            a.e(f'v_add_u32 v{248+i}, {i*(32768-1024)}, v248')
        a.e('s_mul_i32 s56, s76, 3670016')
        a.e('s_lshl_b32 s57, s75, 8')
        a.e('s_add_u32 s56, s56, s57')
        a.e(f's_lshl_b32 s57, s{S_W}, 6')
        a.e('s_add_u32 s56, s56, s57')
        srd(a, 68, P_W2, None, 0, 56)
        a.e('s_sub_u32 s70, 7340032, s56')
        a.e('s_mov_b32 s72, 0')
        a.e('v_lshlrev_b32 v252, 6, v252')
        a.e('v_bfe_u32 v253, v2, 4, 1')
        a.e('v_lshl_add_u32 v252, v253, 5, v252')
        a.e('v_and_b32 v253, 3, v2')
        a.e('v_lshl_add_u32 v252, v253, 3, v252')
        a.e(f's_lshl_b32 s73, s{S_W}, 13')
        a.e('s_add_u32 s73, s73, 32768')
        a.e('v_add_u32 v253, s73, v252')
        a.e('v_xor_b32 v254, 32, v253')
    def fcell(s, n): return (32768, 36864, 0, 4096, 98304, 102400)[n]
    def fD(s, pairs, dv=248):
        a = s.a
        out = []
        for c, n in pairs:
            out.append(lambda n=n: a.e(f's_add_u32 m0, s73, {s.fcell(n)}'))
            for i in range(4):
                def f(i=i):
                    a.e(f'buffer_load_dwordx4 v{dv+i}, s[68:71], s72 offen offset:{1024*i} lds')
                    if i == 3: a.e('s_add_u32 s72, s72, 131072')
                out.append(f)
        return out
    def fM(s, pairs, base=253, sub=0):
        a = s.a
        for c, n in pairs:
            for kk in range(2):
                for j in range(2):
                    for h in range(2):
                        r, q = s.wreg(2 * c + kk, j)
                        a.e(f'ds_read_b64_tr_b16 {r}[{q+2*h}:{q+2*h+1}], v{base+j} offset:{s.fcell(n)-sub+2048*kk+1024*h}')
    def front_save(s):
        a = s.a
        for i in range(4): a.e(f'v_mov_b32 v{s.DV+i}, v{248+i}')
        a.e('v_mov_b32 v7, v252')
    def early(s, L):
        a = s.a; s.L = L
        a.e('s_mov_b32 s80, s74')
        a.e('s_mov_b32 s81, s75')
        a.e('s_mov_b32 s82, s76')
        a.e(f's_mul_i32 s98, s{S_W}, {s.REG}')
        a.e(f'v_add_u32 v{s.RJ}, s98, v7')
        a.e(f'v_xor_b32 v{s.RJ+1}, 32, v{s.RJ}')
        a.e('s_add_u32 s56, s73, 98304')
        a.e('v_add_u32 v5, s56, v7')
        a.e('v_xor_b32 v6, 32, v5')
        a.e(f's_waitcnt vmcnt({4 if opt("xe", 1) else 0})')
        L.vm = ['st'] * (4 if opt('xe', 1) else 0)
        mv = [(s.NF - 2, 4, 5, 98304), (s.NF - 1, 5, 5, 98304)]
        if opt('tw', 1):
            a.e('s_mov_b32 s72, s97')
            a.e('s_sub_u32 s56, s73, 32768')
            a.e('v_add_u32 v18, s56, v7')
            a.e('v_xor_b32 v19, 32, v18')
            mv += [(s.NF + i, (2, 3, 0, 1)[i], 18, 0) for i in range(4)]
            s.NF += 4
        items = []
        for c, n, base, sub in mv:
            for kk in range(2):
                for j in range(2):
                    for h in range(2):
                        r, q = s.wreg(2 * c + kk, j)
                        items.append(lambda r=r, q=q, h=h, j=j, n=n, kk=kk, base=base, sub=sub: a.e(f'ds_read_b64_tr_b16 {r}[{q+2*h}:{q+2*h+1}], v{base+j} offset:{s.fcell(n)-sub+2048*kk+1024*h}'))
        s.mv_items = items
        if opt('cpf2', 0): code_pf(a, 'L_g2code', 'L_end', 21, lambda t: L.v('cp', t))
        s.cell = {}
        s.free = list(range(10))
    def D(s, c):
        L = s.L
        def first():
            s.cell[c] = s.free.pop(0)
            L.e(f's_add_u32 m0, s98, {4096*s.cell[c]}')
        out = [first]
        for i in range(4):
            out.append(lambda i=i: L.v(('W', c), f'buffer_load_dwordx4 v{s.DV+i}, s[68:71], s72 offen offset:{1024*i} lds'))
        out.append(lambda: L.e('s_add_u32 s72, s72, 131072'))
        return out
    def M(s, c):
        L = s.L
        out = []
        for kk in range(2):
            for j in range(2):
                for h in range(2):
                    def f(kk=kk, j=j, h=h):
                        r, n = s.wreg(2 * c + kk, j)
                        L.l(('M', c), f'ds_read_b64_tr_b16 {r}[{n+2*h}:{n+2*h+1}], v{s.RJ+j} offset:{4096*s.cell[c]+2048*kk+1024*h}')
                    out.append(f)
        return out
    def Wv(s, c): return [lambda: s.L.wait(vm=(('W', c),))]
    def Fr(s, cs):
        def f():
            s.L.wait(lg0=True)
            for c in cs: s.free.append(s.cell[c])
        return [f]
    def epi_fill(s, k):
        D, M, Wv, Fr = s.D, s.M, s.Wv, s.Fr
        def cat(*xs): return [y for x in xs for y in x]
        s.A = []
        out, s.mv_items = s.mv_items[:12], s.mv_items[12:]
        return out
    def post_epilogue(s):
        a = s.a; L = s.L
        assert not s.A
        s.NA = s.NF + opt('ne', 0) + opt('na', 3)
        if not opt('ne', 0):
            a.e('s_waitcnt lgkmcnt(0)')
            a.e('s_barrier')
        a.inject([f for c in range(s.NF + opt('ne', 0), s.NA) for f in s.D(c)], 4)
        a.e(f'v_mov_b32 v{s.TR}, v{s.VT}')
        for q in range(1, 4):
            a.e(f'v_add_u32 v{s.TR+q}, {q*s.REG}, v{s.VT}')
        a.e(f'v_add_u32 v{s.V1}, {114688-2048}, v{s.VT}')
        for q in range(4):
            a.e(f'v_add_u32 v{24+q}, {q*s.REG}, v17')
        for r in range(64):
            a.e(f'v_mov_b32 v{s.ACC+r}, 0')
        a.flush_inject()
        a.e('s_lshl_b32 s56, s80, 3')
        a.e(f's_lshl_b32 s57, s{S_W}, 1')
        a.e('s_lshl_b32 s58, s82, 2')
        a.e('s_xor_b32 s57, s57, s58')
        a.e('s_add_u32 s56, s56, s57')
        a.e('s_lshr_b32 s83, s56, 4')
        a.e('s_bfe_u32 s84, s56, 0x20002')
        hf_base(a, 57, 83, 84, 58)
        a.e('s_and_b32 s56, s56, 3')
        a.e('s_mul_i32 s56, s56, 114688')
        a.e('s_add_u32 s57, s57, s56')
        a.e('s_mul_i32 s58, s82, 57344')
        a.e('s_add_u32 s57, s57, s58')
        srd(a, 32, P_WS, 114688 + 57344, 0, 57)
        a.e('v_and_b32 v5, 15, v2')
        a.e('v_lshlrev_b32 v5, 11, v5')
        a.e('v_lshrrev_b32 v6, 4, v2')
        a.e(f'v_lshl_add_u32 v{s.VO}, v6, 3, v5')
        a.e('s_lshl_b32 s85, s80, 18')
        a.e('s_lshl_b32 s57, s82, 17')
        a.e('s_add_u32 s85, s85, s57')
        a.e('s_lshl_b32 s57, s81, 8')
        a.e('s_add_u32 s85, s85, s57')
        a.e(f's_lshl_b32 s57, s{S_W}, 6')
        a.e('s_add_u32 s85, s85, s57')
        a.e(f'v_and_b32 v{s.VF}, 31, v2')
        a.e(f'v_lshlrev_b32 v{s.VF}, {fsh()}, v{s.VF}')
    def main(s):
        a = s.a; L = s.L
        a.e('s_lshr_b32 s56, s80, 1')
        a.e(f's_lshl_b32 s56, s56, {5+fsh()}')
        a.e(f's_add_u32 s56, s56, {F3}')
        srd(a, 44, P_WS, 4 * MB, WS_H)
        a.e('s_mov_b32 s84, 0')
        L.wait(vm0=True)
        for c in range(s.NF, s.NA):
            for f in s.M(c): f()
        for f in s.Fr(range(s.NF, s.NA)): f()
        wait_flags(a, 56, s.VF, 20)
        stamp(a, 14)
        NS = 28
        slot = {}
        def TD(st):
            slot[st] = s.free.pop(0)
            out = [lambda: L.e(f's_add_u32 m0, s98, {4096*slot[st]}')]
            for i in range(4):
                v = s.VT if i < 2 else s.V1
                out.append(lambda i=i, v=v: L.v(('T', st), f'buffer_load_dwordx4 v{v}, s[32:35], s84 offen offset:{1024*i} sc1 lds'))
            out.append(lambda: (L.e('s_add_u32 s84, s84, 2048'), issued.add(st)))
            return out
        issued = set()
        NB = opt('nb', 12); KV = 32 + (160 - 4 * NB) // 8
        nxt = 0
        wc = opt('wc', 3)
        wfree, s.free = s.free[-wc:], s.free[:-wc]
        for _ in range(opt('t0', 3)):
            fs = TD(nxt); fs[0](); a.e('s_nop 0')
            for f in fs[1:]: f()
            nxt += 1
        L.wait(vm=(('T', 0),))
        a.e('s_barrier')
        X = opt('tx', 12)
        seq = [(k, tm) for k in range(56 - X) for tm in range(8)]
        seq += [(k, tm) for k in range(56 - X, 56) for tm in range(4, 8)]
        nS = len(seq)
        seq += [(k, tm) for k in range(56 - X, 56) for tm in range(4)]
        last_use = {}
        for g_, (k, tm) in enumerate(seq): last_use[k >> 1] = g_
        rdn = [0]
        def RDnext():
            if rdn[0] < 448:
                k, tm = seq[rdn[0]]
                f = s.TF + 4 * (rdn[0] % NB)
                o_ = 4096 * slot[k >> 1] + 2048 * (tm & 1) + 1024 * (k & 1)
                if k % 7 == 3 and opt('hl', 1):
                    L.l(('R', rdn[0]), f'ds_read2st64_b64 v[{f}:{f+3}], v{24+(tm>>1)} offset0:{o_//512} offset1:{o_//512+1}')
                else:
                    L.l(('R', rdn[0]), f'ds_read_b128 v[{f}:{f+3}], v{s.TR+(tm>>1)} offset:{o_}')
                rdn[0] += 1
        for _ in range(NB - 1): RDnext()
        todo = list(range(s.NA, 28)); fly = []; pend = []; freed = set(); vis = 0; wseen = set()
        assert NB - 1 <= 16
        HR = 192
        a.e('s_lshl_b32 s56, s2, 2')
        a.e(f's_add_u32 s56, s56, s{S_W}')
        a.e('s_lshl_b32 s57, s56, 13')
        a.e('s_xor_b32 s58, s57, 0x8000')
        a.e('s_lshl_b32 s56, s56, 6')
        a.e(f's_add_u32 s56, s56, {F4}')
        a.e('s_xor_b32 s59, s56, 0x100')
        srd(a, 40, P_WS, 8 * MB, WS_XP)
        srd(a, 48, P_OUT, 4 * MB)
        a.e('s_add_u32 s87, s57, 4096')
        a.e('s_add_u32 s88, s58, 4096')
        a.e('v_mov_b32 v20, 0')
        a.e(f'v_mov_b32 v21, s{S_NONCE}')
        def flag_store():
            L.wait(vm=('xs',))
            stamp(a, 16)
            a.e('s_mov_b64 exec, 1')
            L.v('fl', f'buffer_store_dword v21, v20, s[{S_FLG}:{S_FLG+3}], s56 offen sc1')
            a.e('s_mov_b64 exec, -1')
        gF = nS + opt('tf', 48) * (448 - nS) // 64 if X else None
        for u in range(56):
            k0 = seq[8 * u][0]
            fill = []
            GM = (0, 16, 32, 44, 50)
            if opt('g2st') and u in GM:
                a.e('s_memtime s[66:67]'); a.e('s_waitcnt lgkmcnt(0)'); L.lg = []
                a.e(f'v_writelane_b32 v1, s66, {26 + GM.index(u)}')
            if s.free and nxt < NS and (u & 1 or u < 8 or not todo or len(s.free) > 1):
                fill += TD(nxt); nxt += 1
                if not todo and not fly and s.free and nxt < NS:
                    fill += TD(nxt); nxt += 1
            if not u & 1 and u >= opt('wk0', 8):
                if fly and u >= fly[0][1] + opt('wlat', 4):
                    c = fly.pop(0)[0]
                    assert 2 * c + 1 < KV or u >= 2 * c + 2 - KV
                    fill += s.Wv(c) + s.M(c)
                    pend.append(c)
                if todo and wfree:
                    c = todo.pop(0)
                    fs = s.D(c)
                    s.cell[c] = wfree.pop(0)
                    fill += [lambda c=c: L.e(f's_add_u32 m0, s98, {4096*s.cell[c]}')] + fs[1:]
                    fly.append((c, u))
            if 8 * u == nS and X:
                for q in range(8):
                    c = s.ACC + 32 + 4 * q
                    fill.append(lambda q=q, c=c: L.v('xs', f'buffer_store_dwordx4 v[{c}:{c+3}], v{s.VT}, s[40:43], s{57 if q < 4 else 87} offen offset:{1024*(q&3)} sc1'))
            if u == 52:
                for tm in range(4):
                    for j in range(2):
                        def f(tm=tm, j=j):
                            if j == 0 and tm: L.e(f's_add_u32 s86, s85, {32768*tm}')
                            r = 4 + 0
                            L.v('h', f'buffer_load_dwordx2 a[{4*tm+2*j}:{4*tm+2*j+1}], v{s.VO}, s[44:47], s{86 if tm else 85} offen offset:{32*j} sc1')
                        fill.append(f)
            per = -(-(len(fill) + 1) // 8)
            SS = opt('ss', 1)
            for i in range(8):
                g_ = 8 * u + i
                k, tm = seq[g_]
                if rdn[0] < 448 and seq[rdn[0]][0] >> 1 > vis:
                    q = seq[rdn[0]][0] >> 1
                    vis = min(NS - 1, q + SS - 1) if q > 1 else q
                    assert vis in issued, (u, i, vis)
                    L.wait(vm=(('T', vis),))
                    a.e('s_barrier')
                    for q2 in list(slot):
                        if q2 not in freed and last_use[q2] < g_:
                            freed.add(q2); s.free.append(slot[q2])
                need = [('R', g_)]
                if k >> 1 not in wseen:
                    wseen.add(k >> 1)
                    assert k >> 1 not in todo and all(c != k >> 1 for c, _ in fly), (k, u)
                    need.append(('M', k >> 1))
                if g_ == gF: flag_store()
                L.wait(lg=need)
                order = [0, 1] if g_ % 2 == 0 else [1, 0]
                for n, j in enumerate(order):
                    r, w = s.wreg(k, j)
                    c = s.ACC + 4 * (2 * tm + j)
                    tf = s.TF + 4 * (g_ % NB)
                    if not opt('g2x') & 1:
                        a.e(f'v_mfma_f32_16x16x32_bf16 v[{c}:{c+3}], {r}[{w}:{w+3}], v[{tf}:{tf+3}], v[{c}:{c+3}]')
                    if n == 0:
                        RDnext()
                    else:
                        for _ in range(per):
                            if fill:
                                fill.pop(0)()
                                if 'm0' in a.lines[-1]: break
            while fill:
                if 'm0' in a.lines[-1]: a.e('s_nop 0')
                fill.pop(0)()
            for c in list(pend):
                if not any(x == ('M', c) for x in L.lg):
                    pend.remove(c)
                    (wfree if todo else s.free).append(s.cell[c])
            if not todo and wfree and not fly and not pend:
                s.free += wfree; wfree = []
        assert not todo and not fly and not pend and nxt == NS
        stamp(a, 15)
        if not X:
            a.e('s_nop 7')
            for q in range(8):
                c = s.ACC + 32 + 4 * q
                L.v('xs', f'buffer_store_dwordx4 v[{c}:{c+3}], v{s.VT}, s[40:43], s{57 if q < 4 else 87} offen offset:{1024*(q&3)} sc1')
            flag_store()
        wait_flags(a, 59, 20, 22, solo=0)
        stamp(a, 17)
        P1 = 96
        for q in range(8):
            a.e(f'buffer_load_dwordx4 v[{P1+4*q}:{P1+4*q+3}], v{s.VT}, s[40:43], s{58 if q < 4 else 88} offen offset:{1024*(q&3)} sc1')
        H = 208
        for q in range(16):
            a.e(f'v_accvgpr_read_b32 v{HR+q}, a{q}')
        for q in range(16):
            unpack(a, H + 2 * q, H + 2 * q + 1, HR + q)
        for q in range(8):
            tm, j = q >> 1, q & 1
            if j == 0 and tm: a.e(f's_add_u32 s85, s85, 32768')
            a.e('s_waitcnt vmcnt(7)')
            c = s.ACC + 4 * q
            for e in range(2):
                x = c + 2 * e; y = P1 + 4 * q + 2 * e; h = H + 4 * q + 2 * e
                a.e(f'v_pk_add_f32 v[{x}:{x+1}], v[{x}:{x+1}], v[{y}:{y+1}]')
                a.e(f'v_cvt_pk_bf16_f32 v{y}, v{x}, v{x+1}')
                unpack(a, x, x + 1, y)
                a.e(f'v_pk_add_f32 v[{x}:{x+1}], v[{x}:{x+1}], v[{h}:{h+1}]')
                a.e(f'v_cvt_pk_bf16_f32 v{192+2*q+e}, v{x}, v{x+1}')
            a.e(f'buffer_store_dwordx2 v[{192+2*q}:{192+2*q+1}], v{s.VO}, s[48:51], s85 offen offset:{32*j}' + ['', ' sc1', ' nt', ' sc0 sc1'][opt('ofl')])
        LIN[0] = None

def gen_dg(a):
    d = opt('dg'); F, ia, ib = d // 10000, d // 100 % 100, d % 100
    m = opt('dgm')
    a.raw('.globl dg_kernel\n.p2align 8\n.type dg_kernel,@function\ndg_kernel:')
    a.e('s_load_dwordx2 s[10:11], s[0:1], 96')
    a.e('s_memrealtime s[12:13]')
    a.e('s_waitcnt lgkmcnt(0)')
    a.e(f's_add_u32 s10, s10, {STAMP_BASE + opt("dgw", 0) * 128:#x}')
    a.e('s_addc_u32 s11, s11, 0')
    if not m:
        a.e(f's_load_dword s4, s[10:11], {4*ia}')
        a.e(f's_load_dword s5, s[10:11], {4*ib}')
        a.e('s_waitcnt lgkmcnt(0)')
    else:
        a.e('s_mov_b32 s20, s10\ns_mov_b32 s21, s11\ns_mov_b32 s22, 0x20000\ns_mov_b32 s23, 0x20000')
        a.e('v_lshlrev_b32 v1, 7, v0')
        for i in range(16):
            a.e(f's_mov_b32 s6, {i*8192}')
            a.e(f'buffer_load_dword v{8+i}, v1, s[20:23], s6 offen offset:{4*ia}')
            a.e(f'buffer_load_dword v{24+i}, v1, s[20:23], s6 offen offset:{4*ib}')
        a.e('s_waitcnt vmcnt(0)')
        for i in range(32):
            a.e(f'v_sub_u32 v{8+i}, s12, v{8+i}')
        opa = 'v_max_u32' if m != 3 else 'v_add_u32'
        opb = {1: 'v_min_u32', 2: 'v_max_u32', 3: 'v_add_u32'}[m]
        for i in range(1, 16):
            a.e(f'{opa} v8, v8, v{8+i}')
            a.e(f'{opb} v24, v24, v{24+i}')
        a.e('s_nop 1')
        a.e('v_readlane_b32 s4, v8, 0')
        a.e('v_readlane_b32 s5, v24, 0')
        sa = 's_max_u32' if m != 3 else 's_add_u32'
        sb = {1: 's_min_u32', 2: 's_max_u32', 3: 's_add_u32'}[m]
        for l in range(1, 64):
            a.e(f'v_readlane_b32 s6, v8, {l}')
            a.e(f'v_readlane_b32 s7, v24, {l}')
            a.e('s_nop 0')
            a.e(f'{sa} s4, s4, s6')
            a.e(f'{sb} s5, s5, s7')
        a.e('s_sub_u32 s5, s4, s5')
        if m == 3: a.e('s_lshr_b32 s5, s5, 10')
        a.e('s_mov_b32 s4, 0')
        a.e('s_memrealtime s[12:13]')
        a.e('s_waitcnt lgkmcnt(0)')
    a.e('s_sub_u32 s4, s5, s4')
    a.e('s_min_u32 s4, s4, 10000')
    a.e(f's_mul_i32 s4, s4, {F}')
    a.e('L_dg:')
    a.e('s_memrealtime s[14:15]')
    a.e('s_waitcnt lgkmcnt(0)')
    a.e('s_sub_u32 s5, s14, s12')
    a.e('s_cmp_lt_u32 s5, s4')
    a.e('s_cbranch_scc1 L_dg')
    a.e('s_endpgm')

def build():
    a = Asm()
    hdr = open('cdna_kernels/' + NAME + '.s.ref').read().split('\n')
    cm = [l for l in hdr if l.startswith(';') and '@launch' not in l and 'Override launch' not in l and 'grid=ceil' not in l]
    out = '\n'.join(cm) + '\n'
    if opt('aslist') or opt('dg'):
        out += f'; @launch kernel={KNAME} grid=(256,1,1) block=(256,1,1) lds=163840\n'
        if opt('dg'): out += '; @launch kernel=dg_kernel grid=(1,1,1) block=(64,1,1) lds=0\n'
    else:
        out += '; @launch grid=(256,1,1) block=(256,1,1) lds=163840\n'
    a.raw('.amdgcn_target "amdgcn-amd-amdhsa--gfx950"')
    a.raw('.text')
    gen(a)
    if opt('dg'): gen_dg(a)
    body = a.text()
    errs = check_hazards(body)
    errs += check_waits(body, KNAME, loop_iters=2, take_fwd=('L_nonce_ok', 'L_nonce_skip', 'L_clean_skip', 'L_y2skip', 'L_y2nw') + tuple(f'L_sig{i}' for i in range(20)) + tuple(f'L_poll{i}x' for i in range(20)))
    errs += check_waits(body, KNAME, loop_iters=2, take_fwd=('L_nonce_ok',) + (() if opt('solo', 1) else tuple(f'L_poll{i}x' for i in range(20))))
    for e in errs[:8]: print(e, file=sys.stderr)
    na = 256
    out += body + f'''.section .rodata,"a"
.p2align 6
.amdhsa_kernel {KNAME}
  .amdhsa_next_free_vgpr {256+na}
  .amdhsa_next_free_sgpr 102
  .amdhsa_accum_offset 256
  .amdhsa_group_segment_fixed_size 0
  .amdhsa_kernarg_size 104
  .amdhsa_user_sgpr_count 2
  .amdhsa_user_sgpr_kernarg_segment_ptr 1
  .amdhsa_system_sgpr_workgroup_id_x 1
  .amdhsa_float_denorm_mode_32 3
.end_amdhsa_kernel
'''
    if opt('dg'):
        out += '''.p2align 6
.amdhsa_kernel dg_kernel
  .amdhsa_next_free_vgpr 48
  .amdhsa_next_free_sgpr 32
  .amdhsa_accum_offset 48
  .amdhsa_group_segment_fixed_size 0
  .amdhsa_kernarg_size 104
  .amdhsa_user_sgpr_count 2
  .amdhsa_user_sgpr_kernarg_segment_ptr 1
  .amdhsa_system_sgpr_workgroup_id_x 1
.end_amdhsa_kernel
'''
    return out, errs

if __name__ == '__main__':
    outp = sys.argv[1]
    for kv in sys.argv[2:]:
        k, v = kv.split('=')
        OPT[k] = int(v)
    t, errs = build()
    open(outp, 'w').write(t)
    print('written', outp, len(t), 'bytes;', len(errs), 'checker errors')
```

```python
import sys, os
from asmlib import *

NAME = 'sequential_preLN__ssm_conv_h3__glu_gated_swiglu__prompt'
KNAME = NAME + '_kernel'
MB = 1 << 20
WS0 = int(os.environ.get('WS0', '0')) * MB
WS_UB, WS_Y2, WS_H, WS_HNF, WS_HF, WS_XP, WS_FLG = [WS0 + x * MB for x in (0, 4, 8, 12, 16, 32, 40)]
STAMP_BASE = 64 * MB
OPT = {}
def opt(k, d=0): return OPT.get(k, d)

P_Q, P_K, P_V, P_SH, P_SSMK, P_D, P_X, P_W1, P_W3, P_W2, P_OUT, P_DBG, P_WS = [4 + 2 * i for i in range(13)]
S_W, S_NONCE, S_MASK = 30, 31, 90
S_FLG = 92
F0, F1, F2, F3, F4 = 0, 32768, 65536, 98304, 131072
FLG_SIZE = 262144
LDS_KA = 98304
KA_REG = 13056
NSTAMP = 20
AST = 128

def srd(a, d, p, size, add=0, addreg=None):
    if add or addreg is not None:
        if add:
            a.e(f's_add_u32 s{d}, s{p}, {add:#x}')
            a.e(f's_addc_u32 s{d+1}, s{p+1}, 0')
            if addreg is not None:
                a.e(f's_add_u32 s{d}, s{d}, s{addreg}')
                a.e(f's_addc_u32 s{d+1}, s{d+1}, 0')
        else:
            a.e(f's_add_u32 s{d}, s{p}, s{addreg}')
            a.e(f's_addc_u32 s{d+1}, s{p+1}, 0')
    else:
        a.e(f's_mov_b32 s{d}, s{p}')
        a.e(f's_mov_b32 s{d+1}, s{p+1}')
    if size is not None:
        a.e(f's_mov_b32 s{d+2}, {size:#x}')
    a.e(f's_mov_b32 s{d+3}, 0x20000')

def stamp(a, i):
    if not opt('stamp'): return
    a.e('s_memrealtime s[60:61]')
    if i == 0: a.e('s_memtime s[62:63]')
    cy = {11: 20, 12: 21, 14: 22, 15: 23, 4: 24, 5: 25}.get(i)
    if cy: a.e('s_memtime s[66:67]')
    a.e('s_waitcnt lgkmcnt(0)')
    a.e(f'v_writelane_b32 v1, s60, {i}')
    if cy: a.e(f'v_writelane_b32 v1, s66, {cy}')
    if LIN[0]: LIN[0].lg = []

def stamp_out(a, n):
    if not opt('stamp'): return
    a.e('s_waitcnt vmcnt(0)')
    stamp(a, n - 1)
    a.e('s_memtime s[64:65]')
    a.e('s_waitcnt lgkmcnt(0)')
    srd(a, 32, P_WS, 1 * MB, STAMP_BASE)
    a.e('s_lshl_b32 s84, s2, 2')
    a.e(f's_add_u32 s84, s84, s{S_W}')
    a.e('s_lshl_b32 s84, s84, 7')
    a.e('s_sub_u32 s64, s64, s62')
    a.e('v_writelane_b32 v1, s64, 31')
    a.e('v_mbcnt_lo_u32_b32 v2, -1, 0')
    a.e('v_lshlrev_b32 v2, 2, v2')
    a.e('s_mov_b64 exec, 0xffffffff')
    a.e('buffer_store_dword v1, v2, s[32:35], s84 offen')

LIN = [None]
class Lin:
    def __init__(s, a): s.a = a; s.vm = []; s.lg = []; LIN[0] = s
    def e(s, t): s.a.e(t)
    def v(s, tag, t): s.a.e(t); s.vm.append(tag)
    def l(s, tag, t): s.a.e(t); s.lg.append(tag)
    def _n(s, q, tags, cap):
        idx = [i for i, x in enumerate(q) if x in tags]
        if not idx: return None
        n = len(q) - max(idx) - 1
        return min(n, cap)
    def wait(s, vm=(), lg=(), vm0=False, lg0=False):
        nv = 0 if vm0 else s._n(s.vm, vm, 63)
        nl = 0 if lg0 else s._n(s.lg, lg, 15)
        t = ''
        if nv is not None:
            t += f' vmcnt({nv})'; s.vm = s.vm[len(s.vm) - nv:] if nv else []
        if nl is not None:
            t += f' lgkmcnt({nl})'; s.lg = s.lg[len(s.lg) - nl:] if nl else []
        if t: s.a.e('s_waitcnt' + t)

def unpack(a, dlo, dhi, src):
    a.e(f'v_lshlrev_b32 v{dlo}, 16, v{src}')
    a.e(f'v_and_b32 v{dhi}, s{S_MASK}, v{src}')

def hfl():
    return [' sc1', ' sc0 sc1', ' sc1 nt', ' sc0 sc1 nt', ''][opt('hfl')]

def code_pf(a, lab_from, lab_to, vt, emit=None, n=1):
    _uid[0] += 1
    L = f'L_pc{_uid[0]}'
    a.e('s_getpc_b64 s[78:79]')
    a.e(f'{L}:')
    a.e(f's_lshl_b32 s77, s{S_W}, 13')
    a.e(f's_add_u32 s77, s77, {lab_from}-{L}')
    for i in range(n):
        if i: a.e('s_add_u32 s77, s77, 32768')
        a.e(f'v_lshl_add_u32 v{vt}, v2, 7, s77')
        a.e(f'v_min_u32 v{vt}, {lab_to}-{L}, v{vt}')
        t = f'global_load_dword v{vt+1+i}, v{vt}, s[78:79]'
        if emit: emit(t)
        else: a.e(t)

def hf_base(a, d, mb, q, t):
    if not opt('reuse', 0):
        a.e(f's_lshl_b32 s{d}, s{mb}, 2')
        a.e(f's_add_u32 s{d}, s{d}, s{q}')
        a.e(f's_mul_i32 s{d}, s{d}, 458752')
        a.e(f's_add_u32 s{d}, s{d}, {WS_HF:#x}')
        return
    a.e(f's_lshl_b32 s{d}, s{mb}, 1')
    a.e(f's_add_u32 s{d}, s{d}, s{q}')
    a.e(f's_mul_i32 s{d}, s{d}, 458752')
    a.e(f's_add_u32 s{d}, s{d}, {WS_HF:#x}')
    a.e(f's_lshl_b32 s{t}, s{mb}, 19')
    a.e(f's_cmp_eq_u32 s{q}, 1')
    a.e(f's_cselect_b32 s{d}, s{t}, s{d}')
    a.e(f's_add_u32 s{t}, s{t}, {WS_Y2 - WS_UB:#x}')
    a.e(f's_cmp_eq_u32 s{q}, 0')
    a.e(f's_cselect_b32 s{d}, s{t}, s{d}')

_uid = [0]
def signal(a, soff, vt, waitfn=None, wb=False):
    _uid[0] += 1
    L = f'L_sig{_uid[0]}'
    a.e(f'v_mov_b32 v{vt}, 0')
    a.e(f'v_mov_b32 v{vt+1}, s{S_NONCE}')
    a.e(f's_cmp_eq_u32 s{S_W}, 0')
    if waitfn: waitfn()
    else: a.e('s_waitcnt vmcnt(0)')
    a.e('s_barrier')
    a.e(f's_cbranch_scc0 {L}')
    if wb:
        a.e('buffer_wbl2 sc1')
        a.e('s_waitcnt vmcnt(0)')
    a.e('s_mov_b64 exec, 1')
    a.e(f'buffer_store_dword v{vt+1}, v{vt}, s[{S_FLG}:{S_FLG+3}], s{soff} offen sc1')
    a.e('s_mov_b64 exec, -1')
    a.e(f'{L}:')

def fsh():
    return opt('fs', 32).bit_length() - 1
def f1sh():
    return opt('f1s', 32).bit_length() - 1

def wait_flags(a, soff, voff, vd, n=64, solo=None):
    _uid[0] += 1
    L = f'L_poll{_uid[0]}'
    if solo is None: solo = opt('solo', 1)
    if solo:
        a.e(f's_cmp_lg_u32 s{S_W}, {opt("pw", 0)}')
        a.e(f's_cbranch_scc1 {L}x')
    a.e(f'{L}:')
    if n == 256:
        if f1sh() == 2:
            a.e(f'buffer_load_dwordx4 v[{vd}:{vd+3}], v{voff}, s[{S_FLG}:{S_FLG+3}], s{soff} offen sc1')
        else:
            for i in range(4):
                a.e(f's_add_u32 s89, s{soff}, {i*(64<<f1sh())}')
                a.e(f'buffer_load_dword v{vd+i}, v{voff}, s[{S_FLG}:{S_FLG+3}], s89 offen sc1')
        a.e('s_waitcnt vmcnt(0)')
        a.e(f'v_xor_b32 v{vd}, s{S_NONCE}, v{vd}')
        a.e(f'v_xor_b32 v{vd+1}, s{S_NONCE}, v{vd+1}')
        a.e(f'v_xor_b32 v{vd+2}, s{S_NONCE}, v{vd+2}')
        a.e(f'v_xor_b32 v{vd+3}, s{S_NONCE}, v{vd+3}')
        a.e(f'v_or3_b32 v{vd}, v{vd}, v{vd+1}, v{vd+2}')
        a.e(f'v_or_b32 v{vd}, v{vd}, v{vd+3}')
        a.e(f'v_cmp_ne_u32 vcc, 0, v{vd}')
    else:
        a.e(f'buffer_load_dword v{vd}, v{voff}, s[{S_FLG}:{S_FLG+3}], s{soff} offen sc1')
        a.e('s_waitcnt vmcnt(0)')
        a.e(f'v_cmp_ne_u32 vcc, s{S_NONCE}, v{vd}')
    a.e('s_add_u32 s3, s3, 1')
    a.e(f's_cmp_gt_u32 s3, {opt("spin", 200000)}')
    a.e(f's_cbranch_scc1 {L}x')
    a.e(f's_cbranch_vccz {L}x')
    if opt('sleep'): a.e(f's_sleep {opt("sleep")}')
    a.e(f's_branch {L}')
    a.e(f'{L}x:')
    if solo: a.e('s_barrier')

def wave_sum2(a, va, vb, sa, sb):
    for mod in ('row_shr:1 row_mask:0xf bank_mask:0xf bound_ctrl:0', 'row_shr:2 row_mask:0xf bank_mask:0xf bound_ctrl:0',
                'row_shr:4 row_mask:0xf bank_mask:0xf bound_ctrl:0', 'row_shr:8 row_mask:0xf bank_mask:0xf bound_ctrl:0',
                'row_bcast:15 row_mask:0xa bank_mask:0xf', 'row_bcast:31 row_mask:0xc bank_mask:0xf'):
        a.e('s_nop 0')
        a.e(f'v_add_f32_dpp v{va}, v{va}, v{va} {mod}')
        a.e(f'v_add_f32_dpp v{vb}, v{vb}, v{vb} {mod}')
    a.e(f'v_readlane_b32 s{sa}, v{va}, 63')
    a.e(f'v_readlane_b32 s{sb}, v{vb}, 63')

def ln2(a, X, T, M, R, C, XM):
    def both(f):
        for r in range(2): f(r)
    for q in range(4):
        both(lambda r: a.e(f'v_pk_add_f32 v[{T[r]+2*q}:{T[r]+2*q+1}], v[{X[r]+4*q}:{X[r]+4*q+1}], v[{X[r]+4*q+2}:{X[r]+4*q+3}]'))
    both(lambda r: a.e(f'v_pk_add_f32 v[{T[r]}:{T[r]+1}], v[{T[r]}:{T[r]+1}], v[{T[r]+2}:{T[r]+3}]'))
    both(lambda r: a.e(f'v_pk_add_f32 v[{T[r]+4}:{T[r]+5}], v[{T[r]+4}:{T[r]+5}], v[{T[r]+6}:{T[r]+7}]'))
    both(lambda r: a.e(f'v_pk_add_f32 v[{T[r]}:{T[r]+1}], v[{T[r]}:{T[r]+1}], v[{T[r]+4}:{T[r]+5}]'))
    both(lambda r: a.e(f'v_add_f32 v{T[r]}, v{T[r]}, v{T[r]+1}'))
    wave_sum2(a, T[0], T[1], 56, 57)
    a.e('s_nop 0')
    both(lambda r: a.e(f'v_mul_f32 v{M[r]}, s{56+r}, v{C}'))
    both(lambda r: a.e(f'v_mov_b32 v{M[r]+1}, v{M[r]}'))
    for q in range(8):
        both(lambda r: a.e(f'v_pk_add_f32 v[{T[r]+2*q}:{T[r]+2*q+1}], v[{X[r]+2*q}:{X[r]+2*q+1}], v[{M[r]}:{M[r]+1}] neg_lo:[0,1] neg_hi:[0,1]'))
    both(lambda r: a.e(f'v_pk_mul_f32 v[{R[r]}:{R[r]+1}], v[{T[r]}:{T[r]+1}], v[{T[r]}:{T[r]+1}]'))
    for q in range(1, 8):
        both(lambda r: a.e(f'v_pk_fma_f32 v[{R[r]}:{R[r]+1}], v[{T[r]+2*q}:{T[r]+2*q+1}], v[{T[r]+2*q}:{T[r]+2*q+1}], v[{R[r]}:{R[r]+1}]'))
    both(lambda r: a.e(f'v_add_f32 v{R[r]}, v{R[r]}, v{R[r]+1}'))
    def rbf(v):
        a.e(f'v_cvt_pk_bf16_f32 v{v}, v{v}, v{v}')
        a.e(f'v_and_b32 v{v}, s{S_MASK}, v{v}')
    both(lambda r: rbf(M[r]))
    wave_sum2(a, R[0], R[1], 58, 59)
    both(lambda r: a.e(f'v_mov_b32 v{M[r]+1}, v{M[r]}'))
    both(lambda r: a.e(f'v_mul_f32 v{R[r]}, s{58+r}, v{C}'))
    both(lambda r: rbf(R[r]))
    both(lambda r: a.e(f'v_add_f32 v{R[r]}, 0x3727c5ac, v{R[r]}'))
    both(lambda r: rbf(R[r]))
    both(lambda r: a.e(f'v_sqrt_f32 v{R[r]}, v{R[r]}'))
    for q in range(2):
        both(lambda r: a.e(f'v_pk_add_f32 v[{XM[r]+2*q}:{XM[r]+2*q+1}], v[{X[r]+2*q}:{X[r]+2*q+1}], v[{M[r]}:{M[r]+1}] neg_lo:[0,1] neg_hi:[0,1]'))
    both(lambda r: rbf(R[r]))
    both(lambda r: a.e(f'v_rcp_f32 v{R[r]}, v{R[r]}'))
    for q in range(2, 8):
        both(lambda r: a.e(f'v_pk_add_f32 v[{XM[r]+2*q}:{XM[r]+2*q+1}], v[{X[r]+2*q}:{X[r]+2*q+1}], v[{M[r]}:{M[r]+1}] neg_lo:[0,1] neg_hi:[0,1]'))
    both(lambda r: a.e(f'v_mov_b32 v{R[r]+1}, v{R[r]}'))
    for q in range(8):
        both(lambda r: a.e(f'v_pk_mul_f32 v[{T[r]+2*q}:{T[r]+2*q+1}], v[{XM[r]+2*q}:{XM[r]+2*q+1}], v[{R[r]}:{R[r]+1}]'))

class Sched:
    def __init__(self): self.ev = []; self.marks = {}
    def mark(self, k): self.marks[k] = len(self.ev)
    def add(self, L): self.ev += L
    def younger(self, tag, at):
        last = max(i for i, e in enumerate(self.ev) if e[:2] == tag)
        assert last < self.marks[at], (tag, at)
        return self.marks[at] - last - 1

def gen(a):
    a.raw(f'.globl {KNAME}')
    a.raw('.p2align 8')
    a.raw(f'.type {KNAME},@function')
    a.raw(f'{KNAME}:')
    a.e('s_cmp_ge_u32 s2, 256')
    a.e('s_cbranch_scc1 L_end')
    a.e('s_load_dwordx8 s[4:11], s[0:1], 0')
    a.e('s_load_dwordx8 s[20:27], s[0:1], 64')
    a.e('s_load_dwordx2 s[28:29], s[0:1], 96')
    a.e('s_load_dwordx8 s[12:19], s[0:1], 32')
    a.e('s_memrealtime s[56:57]')
    a.e('v_lshrrev_b32 v1, 6, v0')
    a.e('v_and_b32 v2, 63, v0')
    a.e(f'v_readfirstlane_b32 s{S_W}, v1')
    a.e(f's_mov_b32 s{S_MASK}, 0xffff0000')
    a.e('s_mov_b32 s3, 0')
    a.e('s_bfe_u32 s82, s2, 0x30003')
    a.e('s_and_b32 s83, s2, 7')
    a.e('s_lshr_b32 s84, s2, 6')
    a.e('s_lshl_b32 s84, s84, 3')
    a.e('s_or_b32 s83, s83, s84')
    a.e('v_and_b32 v9, 7, v0')
    a.e('v_bfe_u32 v10, v0, 4, 1')
    a.e('v_lshl_add_u32 v1, v9, 1, v10')
    a.e('v_lshrrev_b32 v8, 5, v0')
    a.e('v_bfe_u32 v11, v0, 3, 1')
    a.e('v_lshl_add_u32 v8, v8, 1, v11')
    a.e('s_lshl_b32 s85, s83, 17')
    a.e('s_lshl_b32 s86, s82, 8')
    a.e('s_add_u32 s85, s85, s86')
    a.e('v_lshlrev_b32 v3, 13, v1')
    a.e('v_lshl_add_u32 v3, v8, 4, v3')
    a.e('v_add_u32 v3, s85, v3')
    a.e('v_add_u32 v4, 0xffffe800, v3')
    a.e('v_add_u32 v5, 0xfffff800, v3')
    a.e('v_add_u32 v6, 0x1000, v3')
    a.e('s_lshl_b32 s86, s82, 10')
    a.e('v_lshlrev_b32 v7, 6, v8')
    a.e('v_add_u32 v7, s86, v7')
    a.e('s_lshl_b32 s87, s82, 5')
    a.e('s_add_u32 s87, s87, s83')
    a.e('s_lshl_b32 s88, s87, 14')
    a.e('s_add_u32 s88, s88, 112')
    a.e('v_lshlrev_b32 v160, 10, v8')
    a.e('v_lshl_add_u32 v160, v10, 9, v160')
    a.e('v_lshlrev_b32 v161, 4, v9')
    a.e('v_sub_u32 v160, v160, v161')
    a.e('v_add_u32 v160, s88, v160')
    a.e(f's_lshl_b32 s87, s87, {fsh()}')
    a.e('v_mov_b32 v162, 0')
    a.e('s_waitcnt lgkmcnt(0)')
    stamp(a, 0)
    if opt('stamp') and not opt('g2st'): a.e('v_writelane_b32 v1, s56, 30')
    srd(a, 32, P_K, 4 * MB)
    srd(a, 36, P_V, 4 * MB)
    srd(a, 40, P_SH, 8192)
    KR, VR_, WR, WU, KU, AC0 = 8, 36, 52, 68, 100, 164
    for j in range(4):
        a.e(f'buffer_load_dwordx4 v[{WR+4*j}:{WR+4*j+3}], v7, s[40:43], 0 offen offset:{16*j}')
    rows = [(4, 0), (4, 2048), (5, 0), (3, 0), (3, 2048), (6, 0), (6, 2048)]
    for r, (vr, off) in enumerate(rows):
        a.e(f'buffer_load_dwordx4 v[{KR+4*r}:{KR+4*r+3}], v{vr}, s[32:35], 0 offen offset:{off}')
    for r, (vr, off) in enumerate(rows[3:]):
        a.e(f'buffer_load_dwordx4 v[{VR_+4*r}:{VR_+4*r+3}], v{vr}, s[36:39], 0 offen offset:{off}')
    ncp = 0
    if opt('cpf', 0):
        a.e('s_getpc_b64 s[58:59]')
        a.e('L_pc:')
        a.e('v_lshlrev_b32 v163, 7, v0')
        a.e('v_min_u32 v163, L_end-L_pc, v163')
        a.e('global_load_dword v161, v163, s[58:59]')
        ncp = 1
    srd(a, 48, P_WS, 4 * MB, WS_UB)
    if opt('pt', 0) & 1:
        a.e('v_lshlrev_b32 v163, 6, v0')
        a.e('s_sub_u32 s58, s88, 120')
        a.e('buffer_load_dword v161, v163, s[48:51], s58 offen')
        ncp += 1
    KD, KX, XP = 200, 216, 224
    KP, XPOS = opt('kp', 1), opt('xp', 2)
    def k_loads():
        a.e('s_and_b32 s74, s2, 7')
        a.e('s_lshl_b32 s74, s74, 7')
        a.e('s_lshr_b32 s75, s2, 3')
        a.e('s_lshl_b32 s75, s75, 2')
        a.e('s_add_u32 s74, s74, s75')
        a.e(f's_add_u32 s74, s74, s{S_W}')
        a.e('s_lshl_b32 s74, s74, 12')
        srd(a, 68, P_SSMK, 4096, 0, 74)
        a.e('v_lshlrev_b32 v220, 4, v2')
        for j in range(4):
            a.e(f'buffer_load_dwordx4 v[{KD+4*j}:{KD+4*j+3}], v220, s[68:71], 0 offen offset:{1024*j}')
            a.e(f'buffer_load_dword v{KX+j}, v220, s[68:71], 0 offen offset:{1024*j+16}')
    def x_loads():
        srd(a, 36, P_Q, 4 * MB)
        for r in range(2):
            for hh in range(2):
                a.e(f'buffer_load_dwordx4 v[{XP+8*r+4*hh}:{XP+8*r+4*hh+3}], v4, s[36:39], s96 offen offset:{2048*r+1024*hh}')
    if KP == 0:
        k_loads(); ncp += 8
    if opt('tlb'):
        a.e(f's_cmp_eq_u32 s{S_W}, 3')
        a.e(f's_cselect_b32 s58, {42 * MB:#x}, 0')
        srd(a, 52, P_WS, None)
        a.e('s_mov_b32 s54, s58')
        a.e('v_lshlrev_b32 v163, 21, v2')
        a.e(f'v_add_u32 v163, {opt("tlbo", 0x1f0000):#x}, v163')
        a.e('buffer_load_dword v161, v163, s[52:55], 0 offen')
        ncp += 1
        if opt('tlb') > 1:
            a.e(f's_min_u32 s58, s58, {4 * MB:#x}')
            for P_ in (P_OUT, P_SSMK, P_Q):
                srd(a, 52, P_, None)
                a.e('s_mov_b32 s54, s58')
                a.e('buffer_load_dword v161, v163, s[52:55], 0 offen')
                ncp += 1
    srd(a, 44, P_DBG, 256)
    a.e('s_or_b32 s56, s56, 1')
    a.e(f's_or_b32 s57, s2, s{S_W}')
    a.e('s_cmp_lg_u32 s57, 0')
    a.e('s_cbranch_scc1 L_nonce_skip')
    a.e('v_mov_b32 v163, s56')
    a.e('s_mov_b64 exec, 1')
    a.e('buffer_store_dword v163, v162, s[44:47], 0 offen sc1')
    a.e('s_mov_b64 exec, -1')
    a.e('s_waitcnt vmcnt(0)')
    a.e('L_nonce_skip:')
    srd(a, S_FLG, P_WS, FLG_SIZE, WS_FLG)
    a.e(f's_waitcnt vmcnt({11+ncp})')
    for e in range(8):
        unpack(a, WU + 0 * 8 + e, WU + 1 * 8 + e, WR + 2 * e)
        unpack(a, WU + 2 * 8 + e, WU + 3 * 8 + e, WR + 2 * e + 1)
    for r in range(7):
        a.e(f's_waitcnt vmcnt({10-r+ncp})')
        for q in range(4):
            unpack(a, KU + 8 * r + 2 * q, KU + 8 * r + 2 * q + 1, KR + 4 * r + q)
        if r >= 3:
            i = r - 3
            for j in range(4):
                for q in range(4):
                    d = AC0 + 8 * i + 2 * q
                    k = KU + 8 * (i + 3 - j) + 2 * q
                    w = WU + 8 * j + 2 * q
                    if j == 0:
                        a.e(f'v_pk_mul_f32 v[{d}:{d+1}], v[{k}:{k+1}], v[{w}:{w+1}]')
                    else:
                        a.e(f'v_pk_fma_f32 v[{d}:{d+1}], v[{k}:{k+1}], v[{w}:{w+1}], v[{d}:{d+1}]')
    VU = 8
    for i in range(4):
        a.e(f's_waitcnt vmcnt({3-i+ncp})')
        if i == 3:
            a.e('buffer_load_dword v163, v162, s[44:47], 0 offen sc1')
        for q in range(4):
            unpack(a, VU + 2 * q, VU + 2 * q + 1, VR_ + 4 * i + q)
        for q in range(4):
            d = AC0 + 8 * i + 2 * q
            a.e(f'v_pk_mul_f32 v[{d}:{d+1}], v[{d}:{d+1}], v[{VU+2*q}:{VU+2*q+1}]')
    O = 52
    for e in range(4):
        q = O + 4 * e
        a.e(f'v_cvt_pk_bf16_f32 v{q}, v{AC0+28+e}, v{AC0+20+e}')
        a.e(f'v_cvt_pk_bf16_f32 v{q+1}, v{AC0+12+e}, v{AC0+4+e}')
        a.e(f'v_cvt_pk_bf16_f32 v{q+2}, v{AC0+24+e}, v{AC0+16+e}')
        a.e(f'v_cvt_pk_bf16_f32 v{q+3}, v{AC0+8+e}, v{AC0+e}')
    for e in range(4):
        q = O + 4 * e
        if e == 3: a.e('s_nop 0')
        a.e(f'v_permlane16_swap_b32 v{q+2}, v{q}')
        a.e(f'v_permlane16_swap_b32 v{q+3}, v{q+1}')
        a.e(f'buffer_store_dwordx4 v[{q}:{q+3}], v160, s[48:51], 0 offen offset:{128*e} sc1')
    stamp(a, 1)
    a.e('s_and_b32 s82, s2, 7')
    a.e('s_lshr_b32 s83, s2, 3')
    a.e('s_lshl_b32 s84, s83, 2')
    a.e(f's_add_u32 s84, s84, s{S_W}')
    a.e('s_lshl_b32 s85, s82, 7')
    a.e('s_add_u32 s85, s85, s84')
    a.e('s_lshl_b32 s86, s82, 5')
    a.e('s_add_u32 s86, s86, s83')
    a.e(f's_mul_i32 s88, s{S_W}, {KA_REG}')
    a.e(f's_add_u32 s88, s88, {LDS_KA}')
    a.e('s_lshr_b32 s57, s85, 1')
    a.e('s_lshl_b32 s57, s57, 2')
    a.e(f's_load_dword s89, s[{P_D}:{P_D+1}], s57')
    a.e('v_lshlrev_b32 v4, 4, v2')
    ny = 0
    if KP == 1:
        k_loads(); ny += 8
    a.e('s_and_b32 s80, s82, 1')
    a.e('s_lshl_b32 s80, s80, 2')
    a.e('s_and_b32 s56, s83, 3')
    a.e('s_add_u32 s80, s80, s56')
    a.e('s_lshr_b32 s81, s82, 1')
    a.e('s_lshl_b32 s81, s81, 3')
    a.e('s_lshr_b32 s56, s83, 2')
    a.e('s_add_u32 s81, s81, s56')
    a.e('s_lshl_b32 s91, s80, 5')
    a.e('s_add_u32 s91, s91, s81')
    a.e('s_lshl_b32 s56, s91, 2')
    a.e(f's_add_u32 s56, s56, s{S_W}')
    a.e('s_lshl_b32 s96, s56, 12')
    nx_ = 0
    if XPOS == 1:
        x_loads(); ny += 4; nx_ = 4
    nc0 = 0
    if opt('cpf0', 2):
        if opt('cpf0', 2) == 1:
            code_pf(a, 'L_nonce', 'L_end', 164, n=2); nc0 = 2
        else:
            code_pf(a, 'L_nonce', 'L_kbcode' if opt('cpf0', 2) == 2 else 'L_g1epi', 164); nc0 = 1
    a.e(f's_waitcnt vmcnt({4+ny+nc0})')
    a.e('L_nonce:')
    a.e(f'v_readfirstlane_b32 s{S_NONCE}, v163')
    a.e('s_nop 0')
    a.e(f's_cmp_lg_u32 s{S_NONCE}, 0')
    a.e('s_cbranch_scc1 L_nonce_ok')
    a.e('s_add_u32 s3, s3, 1')
    a.e(f's_cmp_gt_u32 s3, {opt("spin", 200000)}')
    a.e('s_cbranch_scc1 L_nonce_ok')
    a.e('buffer_load_dword v163, v162, s[44:47], 0 offen sc1')
    a.e('s_waitcnt vmcnt(0)')
    a.e('s_branch L_nonce')
    a.e('L_nonce_ok:')
    a.e(f'v_mov_b32 v163, s{S_NONCE}')
    a.e(f's_cmp_eq_u32 s{S_W}, 0')
    a.e(f's_waitcnt vmcnt({ny+nc0})')
    a.e('s_barrier')
    a.e('s_cbranch_scc0 L_sig0')
    a.e('s_mov_b64 exec, 1')
    a.e(f'buffer_store_dword v163, v162, s[{S_FLG}:{S_FLG+3}], s87 offen sc1')
    a.e('s_mov_b64 exec, -1')
    a.e('L_sig0:')
    stamp(a, 2)
    if KP == 2:
        k_loads(); nx_ = 0; nc0 = 0
    npt = 0
    if opt('pt', 0) & 2:
        srd(a, 40, P_WS, 12 * MB, WS_Y2)
        a.e('v_lshlrev_b32 v164, 14, v0')
        a.e('s_lshl_b32 s56, s86, 6')
        a.e('buffer_load_dword v161, v164, s[40:43], s56 offen')
        a.e('v_lshlrev_b32 v164, 6, v0')
        a.e('s_lshl_b32 s56, s91, 14')
        a.e(f's_add_u32 s56, s56, {4*MB}')
        a.e('buffer_load_dword v161, v164, s[40:43], s56 offen')
        a.e('v_lshrrev_b32 v164, 3, v0')
        a.e('v_lshlrev_b32 v164, 12, v164')
        a.e('v_bfe_u32 v165, v0, 1, 2')
        a.e('v_lshl_add_u32 v164, v165, 8, v164')
        a.e('s_lshr_b32 s56, s91, 3')
        a.e('s_lshl_b32 s56, s56, 17')
        a.e('s_and_b32 s57, s91, 7')
        a.e('s_lshr_b32 s58, s57, 1')
        a.e('s_lshl_b32 s58, s58, 10')
        a.e('s_add_u32 s56, s56, s58')
        a.e('s_and_b32 s57, s57, 1')
        a.e('s_lshl_b32 s57, s57, 7')
        a.e('s_add_u32 s56, s56, s57')
        a.e(f's_add_u32 s56, s56, {8*MB}')
        a.e('buffer_load_dword v161, v164, s[40:43], s56 offen')
        npt += 3
    a.e('v_lshrrev_b32 v3, 3, v2')
    a.e('v_sub_u32 v3, 7, v3')
    a.e('v_lshlrev_b32 v3, 14, v3')
    a.e('v_and_b32 v5, 7, v2')
    a.e('v_lshl_add_u32 v3, v5, 4, v3')
    a.e('s_lshl_b32 s56, s84, 7')
    a.e('v_add_u32 v3, s56, v3')
    a.e('v_and_b32 v5, 15, v2')
    a.e('v_lshrrev_b32 v6, 4, v2')
    a.e('v_mov_b32 v28, 0')
    a.e('v_mov_b32 v29, 0')
    a.e('v_lshlrev_b32 v7, 3, v2')
    a.e('v_add_u32 v7, s88, v7')
    a.e('ds_write_b64 v7, v[28:29] offset:4096')
    a.e('v_min_u32 v30, 7, v2')
    a.e('v_lshlrev_b32 v30, 2, v30')
    a.e('v_add_u32 v30, s88, v30')
    a.e('ds_write_b32 v30, v28 offset:4608')
    a.e('v_add_u32 v31, 1, v5')
    a.e('v_and_b32 v32, 1, v31')
    a.e('v_sub_u32 v31, v31, v32')
    a.e('v_lshl_add_u32 v31, v6, 3, v31')
    a.e('v_lshlrev_b32 v31, 1, v31')
    a.e('v_mul_u32_u24 v32, 4160, v32')
    a.e('v_add3_u32 v31, v31, v32, s88')
    VA, VB, ACC = 36, 40, 44
    for j in range(4):
        a.e(f'v_add_u32 v{VA+j}, {4608+1024*j}, v31')
    a.e('v_lshlrev_b32 v32, 5, v5')
    a.e('v_lshlrev_b32 v33, 4, v6')
    a.e('v_sub_u32 v33, v33, v32')
    a.e('v_add_u32 v33, s88, v33')
    a.e(f'v_add_u32 v{VB}, 480, v33')
    a.e('v_add_u32 v7, s88, v4')
    for r in range(32):
        a.e(f'v_mov_b32 v{ACC+r}, 0')
    T = 76
    a.e(f's_waitcnt vmcnt({nx_+npt+nc0})')
    for j in range(4):
        d = KD + 4 * j
        if j == 0:
            a.e(f'v_readfirstlane_b32 s56, v{d}')
        a.e(f'ds_write_b128 v7, v[{d}:{d+3}] offset:{4608+32+1024*j}')
        for q in range(4):
            hi = d + q + 1 if q < 3 else KX + j
            a.e(f'v_alignbit_b32 v{T+4*j+q}, v{hi}, v{d+q}, 16')
        a.e(f'ds_write_b128 v7, v[{T+4*j}:{T+4*j+3}] offset:{4608+4160+32+1024*j}')
    a.e('s_lshl_b32 s56, s56, 16')
    a.e('v_cmp_le_u32 vcc, 7, v2')
    a.e('v_mov_b32 v32, s56')
    a.e('s_nop 0')
    a.e('v_cndmask_b32 v32, v28, v32, vcc')
    a.e(f'ds_write_b32 v30, v32 offset:{4608+4160}')
    FA = [96, 160]; FB = [128, 192]
    def rdA(r, buf):
        L = []
        for mq in range(8):
            o = 128 * (mq & 1) + 16 * r
            f = FA[buf] + 4 * mq
            L.append(f'ds_read2_b32 v[{f}:{f+1}], v{VA+(mq>>1)} offset0:{o} offset1:{o+1}')
            L.append(f'ds_read2_b32 v[{f+2}:{f+3}], v{VA+(mq>>1)} offset0:{o+2} offset1:{o+3}')
        return L
    def rdB(r, buf):
        return [f'ds_read_b128 v[{FB[buf]+4*d}:{FB[buf]+4*d+3}], v{VB} offset:{512*(7-d)+64*r}' for d in range(8)]
    a.e('s_waitcnt lgkmcnt(0)')
    a.e('s_bitcmp1_b32 s85, 0')
    a.e('s_cselect_b32 s56, 0, 16')
    a.e('s_lshl_b32 s89, s89, s56')
    a.e('s_and_b32 s89, s89, 0xffff0000')
    for l in rdA(0, 0): a.e(l)
    a.e('v_and_b32 v34, 31, v2')
    a.e(f'v_lshlrev_b32 v34, {fsh()}, v34')
    a.e(f's_lshl_b32 s56, s82, {5+fsh()}')
    wait_flags(a, 56, 34, 35)
    stamp(a, 3)
    a.e('s_lshl_b32 s56, s82, 19')
    UR = 8
    for i in range(4):
        a.e(f's_add_u32 s57, s56, {(24-8*i)*16384:#x}')
        a.e(f'buffer_load_dwordx4 v[{UR+4*i}:{UR+4*i+3}], v3, s[48:51], s57 offen sc1')
    npf = 0; wpl = []
    if XPOS == 2:
        x_loads(); npf += 4
    if opt('wpf', 1):
        RS = opt('rs', 0)
        if RS:
            a.e('s_mul_i32 s56, s2, 28672')
            a.e(f's_and_b32 s57, s{S_W}, 1')
            a.e('s_mul_i32 s57, s57, 14336')
            a.e('s_add_u32 s56, s56, s57')
            a.e(f's_cmp_ge_u32 s{S_W}, 2')
            a.e('s_cselect_b32 s58, 14336, 0')
            a.e('v_lshlrev_b32 v41, 7, v2')
            a.e('v_add_u32 v43, 8192, v41')
            for n_, P_ in enumerate((P_W1, P_W3, P_W2)[:opt('wpn', 3)]):
                sd = (40, 32, 44)[n_]
                srd(a, sd, P_, None, 0, 56)
                a.e(f's_mov_b32 s{sd+2}, s58')
                for v_ in (41, 43):
                    wpl.append(lambda sd=sd, v_=v_: a.e(f'buffer_load_dword v42, v{v_}, s[{sd}:{sd+3}], 0 offen'))
        else:
            a.e('s_mul_i32 s56, s2, 28672')
            a.e(f's_mul_i32 s57, s{S_W}, 7168')
            a.e('s_add_u32 s56, s56, s57')
            a.e('v_lshlrev_b32 v41, 7, v2')
            for n_, P_ in enumerate((P_W1, P_W3, P_W2)[:opt('wpn', 2)]):
                sd = (40, 32, 44)[n_]
                srd(a, sd, P_, 7168, 0, 56)
                wpl.append(lambda sd=sd: a.e(f'buffer_load_dword v42, v41, s[{sd}:{sd+3}], 0 offen'))
    g1 = G1(a)
    g2 = G2(a)
    g2.front_setup()
    g1.setup_dma()
    for i in range(4):
        a.e(f's_waitcnt vmcnt({npf+3-i})')
        a.e(f'ds_write_b128 v7, v[{UR+4*i}:{UR+4*i+3}] offset:{1024*i}')
    a.e('s_waitcnt lgkmcnt(0)')
    for l in rdB(0, 0): a.e(l)
    stamp(a, 4)
    LK = Lin(a)
    g1e = [[(lambda l=l: a.e(l)) for l in grp] for grp in g1.early_dma()]
    def grp(fs): return lambda: [f() for f in fs]
    g1e = [grp(x) for x in g1e]
    fillr = {r: [] for r in range(8)}
    p01 = g2.fD([(0, 2), (1, 3)])
    nk01 = 0
    NF0 = opt('nf0', 4)
    if not RS and NF0 >= 2:
        fillr[6] += p01[:5]; fillr[7] += p01[5:]; nk01 = 8
    for n_, f_ in enumerate(wpl): fillr[opt('wpr', 1 if RS else 2) + n_ * opt('wps', 1 if RS else 2)].append(f_)
    UE = 8
    for r in range(8):
        buf = r & 1
        if r < 7:
            A_, B_ = rdA(r + 1, buf ^ 1), rdB(r + 1, buf ^ 1)
            nxt = []
            for x in range(8): nxt += [B_[x], A_[2 * x], A_[2 * x + 1]]
        else:
            a.e('v_lshlrev_b32 v32, 5, v5')
            a.e('v_lshl_add_u32 v32, v6, 3, v32')
            a.e(f'v_sub_u32 v34, {4088-3584}, v32')
            a.e('v_add_u32 v34, s88, v34')
            a.e('v_add_u32 v35, s88, v32')
            nxt = [f'ds_read_b64 v[{UE+2*c}:{UE+2*c+1}], v34 offset:{512*(7-c)}' for c in range(8)]
        a.e('s_waitcnt lgkmcnt(0)')
        fl = list(fillr[r]); evr = 36 // max(1, len(fl))
        k = 0
        for mq in range(8):
            for d in range(8 - mq):
                c = mq + d
                fa = FA[buf] + 4 * mq; fb = FB[buf] + 4 * d
                a.e(f'v_mfma_f32_16x16x32_bf16 v[{ACC+4*c}:{ACC+4*c+3}], v[{fa}:{fa+3}], v[{fb}:{fb+3}], v[{ACC+4*c}:{ACC+4*c+3}]')
                if k < len(nxt):
                    a.e(nxt[k])
                if fl and k % evr == evr - 1: fl.pop(0)()
                k += 1
        assert not fl, (r, len(fl))
    a.e('s_waitcnt lgkmcnt(0)')
    stamp(a, 5)
    a.e('L_kbcode:')
    X = 96
    for c in range(8):
        unpack(a, X + 4 * c + 3, X + 4 * c + 2, UE + 2 * c)
        unpack(a, X + 4 * c + 1, X + 4 * c + 0, UE + 2 * c + 1)
    for c in range(8):
        for r in range(4):
            a.e(f'v_fma_f32 v{X+4*c+r}, v{X+4*c+r}, s89, v{ACC+4*c+r}')
        a.e(f'v_cvt_pk_bf16_f32 v{UE+2*c}, v{X+4*c}, v{X+4*c+1}')
        a.e(f'v_cvt_pk_bf16_f32 v{UE+2*c+1}, v{X+4*c+2}, v{X+4*c+3}')
        a.e(f'ds_write_b64 v35, v[{UE+2*c}:{UE+2*c+1}] offset:{4608+512*c}')
    a.flush_inject()
    LIN[0] = None
    a.e('v_lshlrev_b32 v32, 2, v0')
    a.e(f'v_add_u32 v32, {LDS_KA}, v32')
    YL_ = opt('yl', 1)
    a.e(f'v_lshrrev_b32 v33, {2+YL_}, v0')
    a.e(f'v_lshlrev_b32 v33, {14+YL_}, v33')
    a.e(f'v_and_b32 v34, {7 if YL_ else 3}, v0')
    a.e('v_lshl_add_u32 v33, v34, 4, v33')
    a.e(f's_lshl_b32 s56, s86, {6+YL_}')
    a.e('s_mov_b32 s57, 0x05040100')
    a.e('s_mov_b32 s58, 0x07060302')
    srd(a, 36, P_WS, 4 * MB, WS_Y2)
    a.e(f's_cmp_ge_u32 s{S_W}, 2')
    a.e('s_waitcnt lgkmcnt(0)')
    a.e('s_barrier')
    if RS: a.e('s_cbranch_scc1 L_y2skip')
    Y = 96; O = 128
    NP = 8 if RS else 4
    LY = Lin(a)
    def yrd(P):
        for ch in range(4):
            LY.l(P, f'ds_read_b32 v{Y+4*P+ch}, v32 offset:{ch*KA_REG+4608+4096//NP*P}')
    for P in range(4): yrd(P)
    for P in range(NP):
        LY.wait(lg=(P,))
        if P + 4 < NP: yrd(P + 4)
        y = Y + 4 * P; o = O + 4 * P
        a.e(f'v_perm_b32 v{o}, v{y+1}, v{y}, s57')
        a.e(f'v_perm_b32 v{o+1}, v{y+3}, v{y+2}, s57')
        a.e(f'v_perm_b32 v{o+2}, v{y+1}, v{y}, s58')
        a.e(f'v_perm_b32 v{o+3}, v{y+3}, v{y+2}, s58')
        a.e(f'buffer_store_dwordx4 v[{o}:{o+3}], v33, s[36:39], s56 offen sc1')
        if P < NP - 1:
            a.e(f's_add_u32 s56, s56, {256//NP*16384:#x}')
    LIN[0] = None
    if RS: a.e('L_y2skip:')
    stamp(a, 6)
    XU = [8, 24]; TT = [40, 56]; MM = [72, 74]; RR = [76, 78]; C = 80; YU = [100, 116]; XM = [140, 156]; SS = [172, 174]
    if XPOS == 2: a.e(f's_waitcnt vmcnt({len(wpl) + (0 if RS else nk01 + 4)})')
    F45 = opt('f45', 0)
    if F45: a.inject(g2.fD([(2, 0), (3, 1)]), 3)
    for r in range(2):
        for q in range(8):
            unpack(a, XU[r] + 2 * q, XU[r] + 2 * q + 1, XP + 8 * r + q)
    a.flush_inject()
    a.e(f'v_mov_b32 v{C}, 0x3a800000')
    a.e(f's_lshl_b32 s87, s2, {f1sh()}')
    a.e(f's_add_u32 s87, s87, {F1}')
    def w1():
        if RS:
            a.e(f's_bitcmp1_b32 s{S_W}, 1')
            a.e('s_cbranch_scc1 L_y2nw')
            a.e('s_waitcnt vmcnt(0)')
            a.e('L_y2nw:')
            a.e(f's_cmp_eq_u32 s{S_W}, 0')
        else:
            a.e(f's_waitcnt vmcnt({8 if F45 else 0})')
    signal(a, 87, 82, waitfn=w1)
    if RS:
        a.inject(g1e[:10] + p01 + g2.fD([(2, 0), (3, 1)]), 4)
    else:
        if NF0 >= 2: g2.fM([(0, 2), (1, 3)])
        a.inject(g1e[:10] + ([] if F45 or NF0 < 4 else g2.fD([(2, 0), (3, 1)])), 12 if F45 or NF0 < 4 else 6)
    ln2(a, XU, TT, MM, RR, C, XM)
    a.flush_inject()
    a.e('v_lshlrev_b32 v5, 7, v2')
    a.e(f'v_lshlrev_b32 v139, {7+YL_}, v2')
    a.e(f'v_add_u32 v6, {0x2000 << YL_:#x}, v139')
    if YL_:
        a.e('s_lshr_b32 s82, s91, 1')
        a.e('s_lshl_b32 s82, s82, 15')
        a.e('s_and_b32 s83, s91, 1')
        a.e('s_lshl_b32 s83, s83, 6')
        a.e('s_add_u32 s82, s82, s83')
    else:
        a.e('s_lshl_b32 s82, s91, 14')
    if opt('yd', 1):
        assert YL_
        a.e(f's_lshl_b32 s83, s{S_W}, 13')
        a.e('s_add_u32 s82, s82, s83')
        a.e('v_lshrrev_b32 v176, 4, v2')
        a.e('v_xor_b32 v176, v176, v2')
        a.e('v_and_b32 v176, 3, v176')
        a.e('v_lshlrev_b32 v176, 4, v176')
        a.e('v_lshrrev_b32 v177, 2, v2')
        a.e('v_lshl_add_u32 v176, v177, 7, v176')
        for i in range(1, 4):
            a.e(f'v_add_u32 v{176+i}, {1024*i}, v176')
        a.e(f's_lshl_b32 s83, s{S_W}, 12')
        a.e(f's_add_u32 m0, s83, {LDS_KA + 16384}')
        a.e('v_bfe_u32 v180, v2, 1, 2')
        a.e(f'v_xor_b32 v180, s{S_W}, v180')
        a.e('v_lshl_add_u32 v180, v180, 4, v5')
        a.e(f'v_add_u32 v180, {LDS_KA + 16384}, v180')
    else:
        a.e(f's_lshl_b32 s83, s{S_W}, 4')
        a.e('s_add_u32 s82, s82, s83')
    srd(a, 40, P_WS, 4 * MB, WS_H)
    srd(a, 44, P_WS, 4 * MB, WS_HNF)
    a.e('v_and_b32 v7, 7, v2')
    a.e(f's_lshl_b32 s83, s{S_W}, 1')
    a.e('v_xor_b32 v132, s83, v7')
    a.e('v_lshl_add_u32 v132, v132, 4, v5')
    a.e(f'v_add_u32 v132, {LDS_KA}, v132')
    a.e('v_xor_b32 v133, 16, v132')
    a.e('v_lshrrev_b32 v134, 3, v2')
    a.e('v_xor_b32 v135, v134, v7')
    a.e('v_lshlrev_b32 v135, 4, v135')
    a.e('v_lshl_add_u32 v135, v134, 7, v135')
    a.e(f's_lshl_b32 s83, s{S_W}, 12')
    a.e(f's_add_u32 s83, s83, {LDS_KA}')
    a.e('v_add_u32 v135, s83, v135')
    a.e('v_lshrrev_b32 v136, 5, v2')
    a.e('v_lshlrev_b32 v136, 12, v136')
    a.e('v_bfe_u32 v137, v2, 3, 2')
    a.e('v_lshl_add_u32 v136, v137, 8, v136')
    a.e('v_lshl_add_u32 v136, v7, 4, v136')
    a.e('s_lshr_b32 s84, s91, 3')
    a.e('s_lshl_b32 s84, s84, 17')
    a.e('s_bfe_u32 s85, s91, 0x20001')
    a.e('s_lshl_b32 s85, s85, 10')
    a.e('s_add_u32 s84, s84, s85')
    a.e('s_and_b32 s85, s91, 1')
    a.e('s_lshl_b32 s85, s85, 7')
    a.e('s_add_u32 s84, s84, s85')
    a.e(f's_lshl_b32 s85, s{S_W}, 15')
    a.e('s_add_u32 s84, s84, s85')
    a.e(f's_mov_b32 s85, {F1}')
    a.e('s_waitcnt lgkmcnt(0)')
    stamp(a, 7)
    a.e(f'v_lshlrev_b32 v138, {4 if f1sh() == 2 else f1sh()}, v2')
    wait_flags(a, 85, 138, 128, n=256)
    stamp(a, 8)
    YL = 84
    YD = opt('yd', 1)
    if YD:
        for i in range(4):
            a.e(f'buffer_load_dwordx4 v{176+i}, s[36:39], s82 offen offset:{1024*i} sc1 lds')
    else:
        a.e(f'buffer_load_dwordx4 v[{YL}:{YL+3}], v139, s[36:39], s82 offen sc1')
        a.e(f'buffer_load_dwordx4 v[{YL+4}:{YL+7}], v139, s[36:39], s82 offen offset:{64 << YL_} sc1')
        a.e(f'buffer_load_dwordx4 v[{YL+8}:{YL+11}], v6, s[36:39], s82 offen sc1')
        a.e(f'buffer_load_dwordx4 v[{YL+12}:{YL+15}], v6, s[36:39], s82 offen offset:{64 << YL_} sc1')
    a.e('s_waitcnt vmcnt(4)')
    if NF0 == 4: g2.fM(([(0, 2), (1, 3)] if RS else []) + [(2, 0), (3, 1)])
    if YD:
        a.e('s_waitcnt vmcnt(0)')
        a.e('s_barrier')
        a.e(f'ds_read_b128 v[{YL}:{YL+3}], v180')
        a.e(f'ds_read_b128 v[{YL+4}:{YL+7}], v180 offset:64')
        a.e(f'ds_read_b128 v[{YL+8}:{YL+11}], v180 offset:8192')
        a.e(f'ds_read_b128 v[{YL+12}:{YL+15}], v180 offset:8256')
    for cgi in range(4):
        a.e(f's_waitcnt {"lgkm" if YD else "vm"}cnt({3-cgi})')
        for r in range(2):
            for e in range(2):
                u = YU[r] + 4 * cgi + 2 * e
                unpack(a, u, u + 1, YL + 4 * cgi + 2 * r + e)
        for r in range(2):
            for e in range(2):
                u = YU[r] + 4 * cgi + 2 * e; x = XM[r] + 4 * cgi + 2 * e; t = TT[r] + 4 * cgi + 2 * e
                a.e(f'v_pk_fma_f32 v[{x}:{x+1}], v[{t}:{t+1}], v[{u}:{u+1}], v[{x}:{x+1}]')
        for r in range(2):
            for e in range(2):
                x = XM[r] + 4 * cgi + 2 * e
                if cgi == 0 and e == 0:
                    a.e(f'v_pk_mul_f32 v[{RR[r]}:{RR[r]+1}], v[{x}:{x+1}], v[{x}:{x+1}]')
                else:
                    a.e(f'v_pk_fma_f32 v[{RR[r]}:{RR[r]+1}], v[{x}:{x+1}], v[{x}:{x+1}], v[{RR[r]}:{RR[r]+1}]')
            x = XM[r] + 4 * cgi
            if cgi == 0: a.e(f'v_pk_add_f32 v[{SS[r]}:{SS[r]+1}], v[{x}:{x+1}], v[{x+2}:{x+3}]')
            else:
                a.e(f'v_pk_add_f32 v[{SS[r]}:{SS[r]+1}], v[{x}:{x+1}], v[{SS[r]}:{SS[r]+1}]')
                a.e(f'v_pk_add_f32 v[{SS[r]}:{SS[r]+1}], v[{x+2}:{x+3}], v[{SS[r]}:{SS[r]+1}]')
    if opt('kbst'): stamp(a, 16)
    for r in range(2):
        a.e(f'v_add_f32 v{SS[r]}, v{SS[r]}, v{SS[r]+1}')
        a.e(f'v_add_f32 v{RR[r]}, v{RR[r]}, v{RR[r]+1}')
    fl_ = []
    for r in range(2):
        for q in range(8):
            u = YU[r] + 2 * q; x = XU[r] + 2 * q; t = TT[r] + 2 * q
            fl_.append(f'v_pk_fma_f32 v[{x}:{x+1}], v[{t}:{t+1}], v[{u}:{u+1}], v[{x}:{x+1}]')
    for r in range(2):
        for q in range(8):
            fl_.append(f'v_cvt_pk_bf16_f32 v{XP+8*r+q}, v{XU[r]+2*q}, v{XU[r]+2*q+1}')
    for mod in ('row_shr:1 row_mask:0xf bank_mask:0xf bound_ctrl:0', 'row_shr:2 row_mask:0xf bank_mask:0xf bound_ctrl:0',
                'row_shr:4 row_mask:0xf bank_mask:0xf bound_ctrl:0', 'row_shr:8 row_mask:0xf bank_mask:0xf bound_ctrl:0',
                'row_bcast:15 row_mask:0xa bank_mask:0xf', 'row_bcast:31 row_mask:0xc bank_mask:0xf'):
        for v in (SS[0], SS[1], RR[0], RR[1]):
            a.e(f'v_add_f32_dpp v{v}, v{v}, v{v} {mod}')
    for i, v in enumerate((SS[0], SS[1], RR[0], RR[1])):
        a.e(f'v_readlane_b32 s{56+i}, v{v}, 63')
    def both(f):
        for r in range(2): f(r)
        if fl_: a.e(fl_.pop(0))
        if fl_: a.e(fl_.pop(0))
    def rbf(v):
        a.e(f'v_cvt_pk_bf16_f32 v{v}, v{v}, v{v}')
        a.e(f'v_and_b32 v{v}, s{S_MASK}, v{v}')
    both(lambda r: a.e(f'v_mul_f32 v{SS[r]}, s{56+r}, v{C}'))
    both(lambda r: a.e(f'v_mul_f32 v{RR[r]}, s{58+r}, v{C}'))
    both(lambda r: a.e(f'v_fma_f32 v{RR[r]}, -v{SS[r]}, v{SS[r]}, v{RR[r]}'))
    both(lambda r: a.e(f'v_max_f32 v{RR[r]}, 0, v{RR[r]}'))
    both(lambda r: rbf(RR[r]))
    both(lambda r: a.e(f'v_add_f32 v{RR[r]}, 0x3727c5ac, v{RR[r]}'))
    both(lambda r: rbf(RR[r]))
    both(lambda r: a.e(f'v_sqrt_f32 v{RR[r]}, v{RR[r]}'))
    both(lambda r: a.e(f'v_add_f32 v{SS[r]}, v{SS[r]}, v{MM[r]}'))
    both(lambda r: rbf(RR[r]))
    both(lambda r: a.e(f'v_rcp_f32 v{RR[r]}, v{RR[r]}'))
    both(lambda r: rbf(SS[r]))
    both(lambda r: a.e(f'v_sub_f32 v{SS[r]}, v{MM[r]}, v{SS[r]}'))
    both(lambda r: a.e(f'v_mul_f32 v{SS[r]}, v{SS[r]}, v{RR[r]}'))
    nh = len(fl_)
    for q in range(8):
        for r in range(2):
            x = XM[r] + 2 * q
            a.e(f'v_pk_fma_f32 v[{TT[r]+2*q}:{TT[r]+2*q+1}], v[{x}:{x+1}], v[{RR[r]}:{RR[r]+1}], v[{SS[r]}:{SS[r]+1}] op_sel_hi:[1,0,0]')
    for r in range(2):
        for q in range(8):
            a.e(f'v_cvt_pk_bf16_f32 v{YL+8*r+q}, v{TT[r]+2*q}, v{TT[r]+2*q+1}')
        for hh in range(2):
            a.e(f'ds_write_b128 v{132+r}, v[{YL+8*r+4*hh}:{YL+8*r+4*hh+3}] offset:{8192*hh}')
    for t_ in fl_: a.e(t_)
    a.e('s_waitcnt lgkmcnt(0)')
    a.e('s_barrier')
    for i in range(4):
        a.e(f'ds_read_b128 v[{100+4*i}:{103+4*i}], v135 offset:{1024*i}')
    for i in range(4):
        a.e(f's_waitcnt lgkmcnt({3-i})')
        a.e(f'buffer_store_dwordx4 v[{100+4*i}:{103+4*i}], v136, s[44:47], s84 offen sc1')
        if i < 3: a.e('s_add_u32 s84, s84, 8192')
    stamp(a, 9)
    a.e(f's_lshl_b32 s87, s91, {fsh()}')
    a.e(f's_add_u32 s87, s87, {F2}')
    g2.front_save()
    g1.pre_setup(g2.fD([(4, 0), (5, 1)], dv=28) if F45 else [])
    signal(a, 87, 4, waitfn=lambda: a.e(f's_waitcnt vmcnt({8 if F45 else 0})'))
    g2.NF = 8 if F45 else NF0 + 2
    def mv45():
        if not F45: return
        a.e('v_add_u32 v4, s73, v7')
        a.e('v_xor_b32 v5, 32, v4')
        a.e('s_waitcnt vmcnt(8)')
        g2.fM([(4, 0), (5, 1)], base=4)
    g1.hook = mv45
    g1.main()
    g1.epilogue(g2)
    g2.main()
    a.e(f's_or_b32 s57, s2, s{S_W}')
    a.e('s_cmp_lg_u32 s57, 0')
    a.e('s_cbranch_scc1 L_clean_skip')
    srd(a, 32, P_DBG, 256)
    a.e('v_mov_b32 v20, 0')
    a.e('s_mov_b64 exec, 1')
    a.e('buffer_store_dword v20, v20, s[32:35], 0 offen sc1')
    a.e('s_mov_b64 exec, -1')
    a.e('L_clean_skip:')
    stamp_out(a, NSTAMP)
    a.e('L_end:')
    a.e('s_endpgm')

G1_STG = 32768
class G1:
    TM, NW, DPW, ND = 4, 4, 8, 4
    ACC, WF, TF, DV, VT, VR, VL = 32, 0, 28, 8, 16, 17, 18
    DVE = 240
    def __init__(s, a): s.a = a
    def setup_dma(s):
        a = s.a
        a.e('s_and_b32 s56, s81, 1')
        a.e('s_lshl_b32 s56, s56, 1')
        a.e('s_movk_i32 s57, 4682')
        a.e('s_movk_i32 s58, 7168')
        a.e('v_mov_b32 v76, 0x80000000')
        a.e('v_subrev_u32 v77, 8, v2')
        for src, dst in ((2, 78), (77, 79)):
            a.e(f'v_cmp_gt_u32 vcc, 56, v{src}')
            a.e(f'v_mul_u32_u24 v80, s57, v{src}')
            a.e('v_lshrrev_b32 v80, 16, v80')
            a.e('v_mul_u32_u24 v81, 14, v80')
            a.e(f'v_sub_u32 v81, v{src}, v81')
            a.e('v_add_u32 v81, s56, v81')
            a.e('v_subrev_u32 v82, 14, v81')
            a.e('v_min_u32 v81, v81, v82')
            a.e('v_mul_u32_u24 v80, s58, v80')
            a.e('v_lshl_add_u32 v80, v81, 4, v80')
            a.e(f'v_cndmask_b32 v{dst}, v76, v80, vcc')
        for i in range(8):
            pat = 79 if (i >> 1) & 1 else 78
            c = i * 4 * 7168 - 1024 * (i & 3)
            a.e(f'v_add_u32 v{s.DVE+i}, {c}, v{pat}' if c else f'v_mov_b32 v{s.DVE+i}, v{pat}')
        a.e(f's_and_b32 s56, s{S_W}, 1')
        a.e(f's_lshr_b32 s57, s{S_W}, 1')
        a.e(f's_mul_i32 s97, s56, {8*4*7168}')
        a.e('s_mov_b32 s100, 458752')
        a.e('s_lshl_b32 s98, s57, 14')
        a.e('s_lshl_b32 s56, s56, 13')
        a.e('s_add_u32 s98, s98, s56')
        a.e('s_mul_i32 s56, s81, 224')
        a.e('s_cmp_eq_u32 s57, 0')
        a.e(f's_cselect_b32 s52, s{P_W1}, s{P_W3}')
        a.e(f's_cselect_b32 s53, s{P_W1+1}, s{P_W3+1}')
        srd(a, 52, 52, None, 0, 56)
        a.e('s_sub_u32 s54, 7340032, s56')
    def m0set(s, i): return f's_add_u32 m0, s98, {4096*(i//4)}' if i else 's_mov_b32 m0, s98'
    def dma(s, i, base): return f'buffer_load_dwordx4 v{base+i}, s[52:55], s97 offen offset:{1024*(i&3)}' + ['', ' sc1', ' nt', ' sc0'][opt('wfl')] + ' lds'
    def dma_adv(s): return ['s_add_u32 s97, s97, s100', f's_add_u32 s98, s98, {G1_STG}', 's_and_b32 s98, s98, 0x1ffff']
    def early_dma(s):
        out = []
        for st in range(2):
            for i in range(8):
                if i % 4 == 0: out.append([s.m0set(i)])
                out.append([s.dma(i, s.DVE)] + (s.dma_adv() if i == 7 else []))
        return out
    def tok(s, k, tm):
        f = s.TF + 4 * (4 * (k % s.ND) + tm)
        return f'buffer_load_dwordx4 a[{f}:{f+3}], v{s.VT}, s[32:35], s82 offen offset:{tm*1024}' + (' sc1' if opt('t1sc', 1) else '')
    def rd(s, ph, t):
        j, mat = (ph & 3) >> 1, ph & 1
        return [f'ds_read_b64_tr_b16 a[{s.WF+4*t+2*h}:{s.WF+4*t+2*h+1}], v{s.VR} offset:{8192*j+1024*h+32*t+16384*mat}' for h in range(2)]
    def pre_setup(s, inj):
        a = s.a
        for i in range(8): a.e(f'v_mov_b32 v{s.DV+i}, v{s.DVE+i}')
        for i in range(16): a.e(f'v_accvgpr_write_b32 a{92+i}, v{224+i}')
        a.e(f'v_lshlrev_b32 v{s.VT}, 4, v2')
        a.e('v_lshrrev_b32 v4, 4, v2')
        a.e('v_lshlrev_b32 v4, 11, v4')
        a.e('v_bfe_u32 v5, v2, 4, 1')
        a.e('v_lshl_add_u32 v4, v5, 7, v4')
        a.e('v_bfe_u32 v6, v2, 2, 2')
        a.e('v_mul_u32_u24 v5, 224, v6')
        a.e('v_and_b32 v6, 3, v2')
        a.e('v_lshl_add_u32 v5, v6, 3, v5')
        a.e(f'v_add_u32 v{s.VL}, v4, v5')
        a.e(f'v_mov_b32 v{s.VR}, v{s.VL}')
        a.e('v_and_b32 v19, 31, v2')
        a.e(f'v_lshlrev_b32 v19, {fsh()}, v19')
        a.e('s_lshl_b32 s56, s80, 2')
        a.e(f's_add_u32 s56, s56, s{S_W}')
        a.e('s_lshl_b32 s57, s56, 17')
        srd(a, 32, P_WS, 131072, WS_HNF, 57)
        hf_base(a, 57, 80, S_W, 58)
        srd(a, 36, P_WS, 4 * 114688, 0, 57)
        a.e('s_and_b32 s58, s81, 1')
        a.e('s_mul_i32 s85, s81, 7')
        a.e('s_add_u32 s85, s85, s58')
        a.e('s_lshl_b32 s85, s85, 9')
        a.e('s_movk_i32 s86, 3072')
        a.e('s_cmp_eq_u32 s58, 0')
        a.e(f's_cselect_b32 s86, s86, {0xfffffe00 if opt("hl", 1) else 0xfffffc08:#x}')
        a.e('s_add_u32 s86, s86, s85')
        a.inject(inj, 16)
        for r in range(224):
            a.e(f'v_mov_b32 v{s.ACC+r}, 0')
        a.flush_inject()
    def kof(s, s_, P): return 2 * s_ + (-1, 0, 0, 1)[P]
    def ev_ins(s, e):
        L = []
        if e[0] == 'D':
            if e[2] % 4 == 0: L.append(s.m0set(e[2]))
            L.append(s.dma(e[2], s.DV))
            if e[2] == 7: L += s.dma_adv()
        elif e[0] == 'Z':
            fl = ['', ' sc1'][opt('ps', 0) - 1]
            u = e[2]
            if u < 3: L = [f'buffer_store_dwordx4 v[24:27], v{s.VT}, s[36:39], s88 offen offset:{1024*u}{fl}']
            else: L = [f'buffer_store_dwordx2 v[24:25], v{s.VT}, s[36:39], s89 offen{fl}', 's_add_u32 s88, s88, 114688', 's_add_u32 s89, s89, 114688']
        elif e[0] == 'Q':
            L = [f'buffer_store_dwordx4 v[24:27], v{s.VT}, s[44:47], s99 offen', 's_add_u32 s99, s99, 1024']
        elif e[0] == 'V':
            L = ['s_mov_b32 m0, s89', 'buffer_load_dwordx4 v28, s[68:71], s72 offen lds', 's_add_u32 s72, s72, 32768', 's_add_u32 s89, s89, 1024']
        elif e[0] == 'C':
            L = ['global_load_dword v22, v23, s[78:79]', f's_cmp_ge_u32 s84, {opt("cpt", 5)}', 's_cselect_b32 s99, -1, 0', 'v_and_b32 v23, s99, v24']
        elif e[0] == 'Y':
            L = ['buffer_load_dword v22, v21, s[44:47], s88 offen', 's_add_u32 s88, s88, 1024']
        else:
            L.append(s.tok(e[1], e[2]))
            if e[2] == 3: L.append('s_add_u32 s82, s82, 4096')
        return L
    def main(s):
        a = s.a
        S = s.S = Sched()
        for s_ in range(-4, 8):
            for P in range(4):
                S.mark((s_, P))
                k = s.kof(s_, P) + s.ND - 1
                t0 = 2 if P in (0, 2) else 0
                S.add([('D', s_ + 2, 2 * P), ('T', k, t0), ('D', s_ + 2, 2 * P + 1), ('T', k, t0 + 1)])
                if opt('w2y', 0 if opt('rs', 0) else 1) and s_ % 2 == 0 and P == 1: S.add([('Y', s_, 0)])
                if opt('vev', 1) and s_ % 2 == 1 and P == 1: S.add([('V', s_, 0)])
                if opt('cpg', 1) and s_ % 2 == 1 and P == 3: S.add([('C', s_, 0)])
                if opt('psx', 0) and P == 2 and s_ & 1: S.add([('Q', s_, 0)])
                if opt('ps', 0) and P in (1, 3): S.add([('Z', s_, 2 * (s_ & 1) + (P >> 1))])
        vm_bar = min(S.younger(('D', 4), (4, 0)), S.younger(('D', 5), (5, 0)))
        vm_p1 = min(S.younger(('T', 8), (4, 1)), S.younger(('T', 10), (5, 1)))
        vm_p3 = min(S.younger(('T', 9), (4, 3)), S.younger(('T', 11), (5, 3)))
        if opt('w2y', 0 if opt('rs', 0) else 1):
            a.e('s_mul_i32 s56, s2, 28672')
            a.e(f's_mul_i32 s57, s{S_W}, 7168')
            a.e('s_add_u32 s56, s56, s57')
            srd(a, 44, P_W2, 7168, 0, 56)
            a.e('v_min_u32 v21, 8, v2')
            a.e('v_lshlrev_b32 v21, 7, v21')
            a.e('s_mov_b32 s88, 0')
        a.e(f's_lshl_b32 s56, s80, {5+fsh()}')
        a.e(f's_add_u32 s56, s56, {F2}')
        if opt('psx', 0):
            srd(a, 44, P_WS, 8 * MB, WS_XP)
            a.e('s_lshl_b32 s99, s2, 2')
            a.e(f's_add_u32 s99, s99, s{S_W}')
            a.e('s_lshl_b32 s99, s99, 13')
        if opt('ps', 0):
            a.e('s_mov_b32 s88, s85')
            a.e('s_mov_b32 s89, s86')
            for r in range(4): a.e(f'v_mov_b32 v{24+r}, 0')
        a.e('s_add_u32 s89, s73, 98304')
        if opt('cpg', 1):
            a.e('s_getpc_b64 s[78:79]')
            a.e('L_pcg:')
            a.e(f's_lshl_b32 s77, s{S_W}, 13')
            a.e('s_add_u32 s77, s77, L_g1epi-L_pcg')
            a.e('v_lshl_add_u32 v24, v2, 7, s77')
            a.e('v_min_u32 v24, L_end-L_pcg, v24')
            a.e('v_mov_b32 v23, 0')
        a.e('s_mov_b32 s82, 0')
        a.e('s_mov_b32 s83, 0')
        a.e('s_mov_b32 s84, 0')
        stamp(a, 10)
        d1 = [('D', 1, i) for i in range(8)] + [('D', 2, 0), ('D', 2, 1)]
        for e in d1:
            for l in s.ev_ins(e):
                a.e(l)
                if 'm0' in l: a.e('s_nop 0')
        s.hook()
        for t in range(6):
            for l in s.rd(0, t): a.e(l)
        a.e('s_waitcnt lgkmcnt(12)')
        wait_flags(a, 56, 19, 20)
        stamp(a, 11)
        XE = opt('xe', 1)
        pro = d1 + [e for e in S.ev[:S.marks[(0, 1)]] if e[1] >= 0 and e[0] == 'T'] + ([] if XE else [('X', i, 0) for i in range(4)])
        for e in pro[len(d1):]:
            if e[0] == 'X':
                a.e(f'buffer_store_dwordx4 a[{92+4*e[1]}:{95+4*e[1]}], v{s.VT}, s[40:43], s96 offen offset:{1024*e[1]} sc1')
                continue
            for l in s.ev_ins(e):
                a.e(l)
                if 'm0' in l: a.e('s_nop 0')
        act = pro + S.ev[S.marks[(0, 1)]:]
        off = len(pro) - S.marks[(0, 1)]
        s.startup = {}
        need = -1
        for s_ in range(0, 6):
            for P, tags, N in ((0, [('D', s_)], vm_bar), (1, [('T', 2 * s_)], vm_p1), (3, [('T', 2 * s_ + 1)], vm_p3)):
                if (s_, P) == (0, 0): continue
                site = S.marks[(s_, P)] + off
                for tg in tags:
                    idx = [i for i, e in enumerate(act) if e[:2] == tg]
                    if not idx: continue
                    if site - max(idx) - 1 < N: need = max(need, max(idx))
        if need >= 0:
            a.e(f's_waitcnt vmcnt({S.marks[(0, 1)] + off - need - 1})')
        a.e('s_branch L_g1_P1')
        s.snake = 0
        if opt('al', 1):
            a.raw('.p2align 6')
            for _ in range(opt('alo', 0)): a.e('s_nop 0')
        a.e('L_g1_loop:')
        if opt('tw', 1):
            a.e('s_cmp_eq_u32 s84, 7')
            a.e('s_cbranch_scc0 L_g1_notw')
            for i in range(4):
                a.e(f'v_mov_b32 v{s.DV+i}, v{28+i}')
                a.e(f'v_add_u32 v{s.DV+4+i}, 131072, v{28+i}')
            a.e('s_mov_b64 s[52:53], s[68:69]')
            a.e('s_mov_b32 s54, s70')
            a.e('s_add_u32 s97, s72, 32768')
            a.e('s_mov_b32 s100, 262144')
            a.e('L_g1_notw:')
        for s_ in (4, 5):
            a.e(f's_add_u32 s83, s83, {G1_STG}')
            a.e('s_and_b32 s83, s83, 0x1ffff')
            a.e(f's_waitcnt vmcnt({vm_bar})')
            a.e('s_barrier')
            s.phase(s_, 0)
            if s_ == 4: a.e('L_g1_P1:')
            a.e(f's_waitcnt vmcnt({vm_p1})')
            s.phase(s_, 1)
            s.phase(s_, 2)
            a.e(f's_waitcnt vmcnt({vm_p3})')
            s.phase(s_, 3)
        if opt('g1st'):
            a.e('s_memtime s[66:67]')
            a.e('s_min_u32 s64, s84, 3')
            a.e('s_add_u32 s64, s64, 26')
            a.e('s_waitcnt lgkmcnt(0)')
            a.e('s_cmp_lt_u32 s84, 4')
            a.e('s_cselect_b32 s64, s64, 40')
            a.e('s_mov_b32 m0, s64')
            a.e('v_writelane_b32 v1, s66, m0')
        a.e('s_add_u32 s84, s84, 1')
        a.e('s_cmp_lt_u32 s84, 8')
        a.e('s_cbranch_scc1 L_g1_loop')
        a.e('L_g1epi:')
        s.phase(6, 0, last=True)
        stamp(a, 12)
    def phase(s, s_, P, last=False):
        a = s.a; S = s.S
        kbuf = s.kof(s_, P) % s.ND
        mat = (P + 1) & 1
        items = []
        if not last:
            nxt = S.marks[(s_, P + 1)] if P < 3 else S.marks[(s_ + 1, 0)]
            items = [s.ev_ins(e) for e in S.ev[S.marks[(s_, P)]:nxt]]
        slots = [[] for _ in range(7)]
        for p_, it in zip([1, 2, 4, 5, 6], items): slots[p_] = it
        if P == 0 and not last:
            slots[0] = [f'v_add_u32 v{s.VR}, s83, v{s.VL}']
        for t in range(7):
            a.e(f's_waitcnt lgkmcnt({10 if not (last and t) else 12-2*t})')
            R = s.rd(P - 1, 6) if t == 0 else ([] if last else s.rd(P, t - 1))
            X = list(slots[t])
            pre = [x for x in X if 'm0' in x]
            X = [x for x in X if 'm0' not in x]
            gaps = [[] for _ in range(4)]
            if R: gaps[0] = pre + [R[0]]; gaps[1] = [R[1]]
            gaps[2] = X[:1]; gaps[3] = X[1:]
            order = [0, 1, 2, 3]
            if s.snake & 1: order.reverse()
            s.snake += 1
            for n, tm in enumerate(order):
                c = s.ACC + 4 * ((mat * 7 + t) * 4 + tm)
                tf = s.TF + 4 * (4 * kbuf + tm)
                if not opt('g1x') & 1: a.e(f'v_mfma_f32_16x16x32_bf16 v[{c}:{c+3}], a[{s.WF+4*t}:{s.WF+4*t+3}], a[{tf}:{tf+3}], v[{c}:{c+3}]')
                for x in gaps[n]:
                    if opt('g1x') & 2 and x.startswith('ds_'): continue
                    if opt('g1x') & 4 and x.startswith('buffer'): continue
                    a.e(x)
    def epilogue(s, g2):
        a = s.a
        L = Lin(a)
        a.e('s_mov_b32 s58, 0xbfb8aa3b')
        a.e('s_mov_b32 s59, 0xbfb8aa3b')
        if opt('xe', 1):
            for i in range(4):
                a.e(f'buffer_store_dwordx4 a[{92+4*i}:{95+4*i}], v{s.VT}, s[40:43], s96 offen offset:{1024*i} sc1')
        g2.early(L)
        a.e('v_lshlrev_b32 v17, 3, v2')
        T = 8
        k = 0
        for tm in range(4):
            for u in range(4):
                O = (20, 24)[k & 1]
                fill = g2.epi_fill(k)
                def F(n=1):
                    for _ in range(n):
                        if fill: fill.pop(0)()
                tiles = [2 * u, 2 * u + 1] if u < 3 else [6]
                gs = []; us = []
                for t in tiles:
                    gs += [s.ACC + 4 * (t * 4 + tm), s.ACC + 4 * (t * 4 + tm) + 2]
                    us += [s.ACC + 4 * ((7 + t) * 4 + tm), s.ACC + 4 * ((7 + t) * 4 + tm) + 2]
                n = len(gs)
                nins = 9 * n
                cnt = [0]; ev_ = max(1, nins // (len(fill) + 1))
                def V(t):
                    a.e(t); cnt[0] += 1
                    if cnt[0] % ev_ == 0: F(1)
                for q in range(n): V(f'v_pk_mul_f32 v[{T+2*q}:{T+2*q+1}], v[{gs[q]}:{gs[q]+1}], s[58:59]')
                for q in range(2 * n): V(f'v_exp_f32 v{T+q}, v{T+q}')
                for q in range(n): V(f'v_pk_add_f32 v[{T+2*q}:{T+2*q+1}], v[{T+2*q}:{T+2*q+1}], 1.0 op_sel_hi:[1,0]')
                for q in range(2 * n): V(f'v_rcp_f32 v{T+q}, v{T+q}')
                for q in range(n): V(f'v_pk_mul_f32 v[{gs[q]}:{gs[q]+1}], v[{gs[q]}:{gs[q]+1}], v[{us[q]}:{us[q]+1}]')
                for q in range(n): V(f'v_pk_mul_f32 v[{T+2*q}:{T+2*q+1}], v[{T+2*q}:{T+2*q+1}], v[{gs[q]}:{gs[q]+1}]')
                for q in range(n): V(f'v_cvt_pk_bf16_f32 v{O+q}, v{T+2*q}, v{T+2*q+1}')
                if u < 3:
                    L.v('st', f'buffer_store_dwordx4 v[{O}:{O+3}], v{s.VT}, s[36:39], s85 offen offset:{1024*u}' + hfl())
                else:
                    L.v('st', f'buffer_store_dwordx2 v[{O}:{O+1}], v{17 if opt("hl", 1) else s.VT}, s[36:39], s86 offen' + hfl())
                F(len(fill))
                k += 1
            if tm < 3:
                a.e('s_add_u32 s85, s85, 114688')
                a.e('s_add_u32 s86, s86, 114688')
        a.e(f's_lshl_b32 s87, s91, {fsh()}')
        a.e(f's_add_u32 s87, s87, {F3}')
        stamp(a, 13)
        a.e('L_g2code:')
        g2.post_epilogue()
        signal(a, 87, 5, waitfn=lambda: L.wait(vm=('st',)), wb=(opt('hfl') == 4))
        stamp(a, 18)

class G2:
    ACC, TF, DV, VT, RJ, TR, V1, VO, VF = 32, 96, 28, 16, 3, 8, 12, 13, 14
    REG = 40960
    def __init__(s, a): s.a = a
    def wreg(s, k, j):
        if k < 16: return 'a', 128 + 8 * k + 4 * j
        if k < 32: return 'a', 8 * (k - 16) + 4 * j
        NB = opt('nb', 12); nv = (160 - 4 * NB) // 8
        if k < 32 + nv: return 'v', 96 + 4 * NB + 8 * (k - 32) + 4 * j
        return 'a', 128 + 8 * (k - 32 - nv) + 4 * j
    def front_setup(s):
        a = s.a
        gm = opt('g2map', 1)
        s.pbit = 2 if gm == 2 else 1
        if gm == 2: a.e('s_bfe_u32 s76, s2, 0x10001')
        else: a.e('s_and_b32 s76, s2, 1')
        a.e('s_lshr_b32 s56, s2, 3')
        if gm:
            if gm == 2:
                a.e('s_andn2_b32 s74, 1, s2')
            else:
                a.e('s_bfe_u32 s74, s2, 0x10001')
            a.e('s_lshl_b32 s74, s74, 3')
            a.e('s_and_b32 s57, s56, 7')
            a.e('s_add_u32 s74, s74, s57')
            a.e('s_bfe_u32 s75, s2, 0x10002')
            a.e('s_lshl_b32 s75, s75, 2')
            a.e('s_lshr_b32 s57, s56, 3')
            a.e('s_add_u32 s75, s75, s57')
        else:
            a.e('s_bfe_u32 s74, s2, 0x20001')
            a.e('s_lshl_b32 s74, s74, 2')
            a.e('s_and_b32 s57, s56, 3')
            a.e('s_add_u32 s74, s74, s57')
            a.e('s_lshr_b32 s75, s56, 2')
        a.e('v_lshrrev_b32 v252, 2, v2')
        a.e('v_lshlrev_b32 v253, 11, v252')
        a.e('v_lshrrev_b32 v254, 3, v2')
        a.e('v_xor_b32 v254, v254, v2')
        a.e('v_and_b32 v254, 2, v254')
        a.e('v_and_or_b32 v254, v2, 1, v254')
        a.e('v_lshl_add_u32 v248, v254, 4, v253')
        for i in range(1, 4):
            a.e(f'v_add_u32 v{248+i}, {i*(32768-1024)}, v248')
        a.e('s_mul_i32 s56, s76, 3670016')
        a.e('s_lshl_b32 s57, s75, 8')
        a.e('s_add_u32 s56, s56, s57')
        a.e(f's_lshl_b32 s57, s{S_W}, 6')
        a.e('s_add_u32 s56, s56, s57')
        srd(a, 68, P_W2, None, 0, 56)
        a.e('s_sub_u32 s70, 7340032, s56')
        a.e('s_mov_b32 s72, 0')
        a.e('v_lshlrev_b32 v252, 6, v252')
        a.e('v_bfe_u32 v253, v2, 4, 1')
        a.e('v_lshl_add_u32 v252, v253, 5, v252')
        a.e('v_and_b32 v253, 3, v2')
        a.e('v_lshl_add_u32 v252, v253, 3, v252')
        a.e(f's_lshl_b32 s73, s{S_W}, 13')
        a.e('s_add_u32 s73, s73, 32768')
        a.e('v_add_u32 v253, s73, v252')
        a.e('v_xor_b32 v254, 32, v253')
    def fcell(s, n): return (32768, 36864, 0, 4096, 98304, 102400)[n]
    def fD(s, pairs, dv=248):
        a = s.a
        out = []
        for c, n in pairs:
            out.append(lambda n=n: a.e(f's_add_u32 m0, s73, {s.fcell(n)}'))
            for i in range(4):
                def f(i=i):
                    a.e(f'buffer_load_dwordx4 v{dv+i}, s[68:71], s72 offen offset:{1024*i} lds')
                    if i == 3: a.e('s_add_u32 s72, s72, 131072')
                out.append(f)
        return out
    def fM(s, pairs, base=253, sub=0):
        a = s.a
        for c, n in pairs:
            for kk in range(2):
                for j in range(2):
                    for h in range(2):
                        r, q = s.wreg(2 * c + kk, j)
                        a.e(f'ds_read_b64_tr_b16 {r}[{q+2*h}:{q+2*h+1}], v{base+j} offset:{s.fcell(n)-sub+2048*kk+1024*h}')
    def front_save(s):
        a = s.a
        for i in range(4): a.e(f'v_mov_b32 v{s.DV+i}, v{248+i}')
        a.e('v_mov_b32 v7, v252')
    def early(s, L):
        a = s.a; s.L = L
        a.e('s_mov_b32 s80, s74')
        a.e('s_mov_b32 s81, s75')
        a.e('s_mov_b32 s82, s76')
        a.e(f's_mul_i32 s98, s{S_W}, {s.REG}')
        a.e(f'v_add_u32 v{s.RJ}, s98, v7')
        a.e(f'v_xor_b32 v{s.RJ+1}, 32, v{s.RJ}')
        a.e('s_add_u32 s56, s73, 98304')
        a.e('v_add_u32 v5, s56, v7')
        a.e('v_xor_b32 v6, 32, v5')
        a.e(f's_waitcnt vmcnt({4 if opt("xe", 1) else 0})')
        L.vm = ['st'] * (4 if opt('xe', 1) else 0)
        mv = [(s.NF - 2, 4, 5, 98304), (s.NF - 1, 5, 5, 98304)]
        if opt('tw', 1):
            a.e('s_mov_b32 s72, s97')
            a.e('s_sub_u32 s56, s73, 32768')
            a.e('v_add_u32 v18, s56, v7')
            a.e('v_xor_b32 v19, 32, v18')
            mv += [(s.NF + i, (2, 3, 0, 1)[i], 18, 0) for i in range(4)]
            s.NF += 4
        items = []
        for c, n, base, sub in mv:
            for kk in range(2):
                for j in range(2):
                    for h in range(2):
                        r, q = s.wreg(2 * c + kk, j)
                        items.append(lambda r=r, q=q, h=h, j=j, n=n, kk=kk, base=base, sub=sub: a.e(f'ds_read_b64_tr_b16 {r}[{q+2*h}:{q+2*h+1}], v{base+j} offset:{s.fcell(n)-sub+2048*kk+1024*h}'))
        s.mv_items = items
        if opt('cpf2', 0): code_pf(a, 'L_g2code', 'L_end', 21, lambda t: L.v('cp', t))
        s.cell = {}
        s.free = list(range(10))
    def D(s, c):
        L = s.L
        def first():
            s.cell[c] = s.free.pop(0)
            L.e(f's_add_u32 m0, s98, {4096*s.cell[c]}')
        out = [first]
        for i in range(4):
            out.append(lambda i=i: L.v(('W', c), f'buffer_load_dwordx4 v{s.DV+i}, s[68:71], s72 offen offset:{1024*i} lds'))
        out.append(lambda: L.e('s_add_u32 s72, s72, 131072'))
        return out
    def M(s, c):
        L = s.L
        out = []
        for kk in range(2):
            for j in range(2):
                for h in range(2):
                    def f(kk=kk, j=j, h=h):
                        r, n = s.wreg(2 * c + kk, j)
                        L.l(('M', c), f'ds_read_b64_tr_b16 {r}[{n+2*h}:{n+2*h+1}], v{s.RJ+j} offset:{4096*s.cell[c]+2048*kk+1024*h}')
                    out.append(f)
        return out
    def Wv(s, c): return [lambda: s.L.wait(vm=(('W', c),))]
    def Fr(s, cs):
        def f():
            s.L.wait(lg0=True)
            for c in cs: s.free.append(s.cell[c])
        return [f]
    def epi_fill(s, k):
        D, M, Wv, Fr = s.D, s.M, s.Wv, s.Fr
        def cat(*xs): return [y for x in xs for y in x]
        s.A = []
        out, s.mv_items = s.mv_items[:12], s.mv_items[12:]
        return out
    def post_epilogue(s):
        a = s.a; L = s.L
        assert not s.A
        s.NA = s.NF + opt('ne', 0) + opt('na', 3)
        if not opt('ne', 0):
            a.e('s_waitcnt lgkmcnt(0)')
            a.e('s_barrier')
        a.inject([f for c in range(s.NF + opt('ne', 0), s.NA) for f in s.D(c)], 4)
        a.e(f'v_mov_b32 v{s.TR}, v{s.VT}')
        for q in range(1, 4):
            a.e(f'v_add_u32 v{s.TR+q}, {q*s.REG}, v{s.VT}')
        a.e(f'v_add_u32 v{s.V1}, {114688-2048}, v{s.VT}')
        for q in range(4):
            a.e(f'v_add_u32 v{24+q}, {q*s.REG}, v17')
        for r in range(64):
            a.e(f'v_mov_b32 v{s.ACC+r}, 0')
        a.flush_inject()
        a.e('s_lshl_b32 s56, s80, 3')
        a.e(f's_lshl_b32 s57, s{S_W}, 1')
        a.e('s_lshl_b32 s58, s82, 2')
        a.e('s_xor_b32 s57, s57, s58')
        a.e('s_add_u32 s56, s56, s57')
        a.e('s_lshr_b32 s83, s56, 4')
        a.e('s_bfe_u32 s84, s56, 0x20002')
        hf_base(a, 57, 83, 84, 58)
        a.e('s_and_b32 s56, s56, 3')
        a.e('s_mul_i32 s56, s56, 114688')
        a.e('s_add_u32 s57, s57, s56')
        a.e('s_mul_i32 s58, s82, 57344')
        a.e('s_add_u32 s57, s57, s58')
        srd(a, 32, P_WS, 114688 + 57344, 0, 57)
        a.e('v_and_b32 v5, 15, v2')
        a.e('v_lshlrev_b32 v5, 11, v5')
        a.e('v_lshrrev_b32 v6, 4, v2')
        a.e(f'v_lshl_add_u32 v{s.VO}, v6, 3, v5')
        a.e('s_lshl_b32 s85, s80, 18')
        a.e('s_lshl_b32 s57, s82, 17')
        a.e('s_add_u32 s85, s85, s57')
        a.e('s_lshl_b32 s57, s81, 8')
        a.e('s_add_u32 s85, s85, s57')
        a.e(f's_lshl_b32 s57, s{S_W}, 6')
        a.e('s_add_u32 s85, s85, s57')
        a.e(f'v_and_b32 v{s.VF}, 31, v2')
        a.e(f'v_lshlrev_b32 v{s.VF}, {fsh()}, v{s.VF}')
    def main(s):
        a = s.a; L = s.L
        a.e('s_lshr_b32 s56, s80, 1')
        a.e(f's_lshl_b32 s56, s56, {5+fsh()}')
        a.e(f's_add_u32 s56, s56, {F3}')
        srd(a, 44, P_WS, 4 * MB, WS_H)
        a.e('s_mov_b32 s84, 0')
        L.wait(vm0=True)
        for c in range(s.NF, s.NA):
            for f in s.M(c): f()
        for f in s.Fr(range(s.NF, s.NA)): f()
        wait_flags(a, 56, s.VF, 20)
        stamp(a, 14)
        NS = 28
        slot = {}
        def TD(st):
            slot[st] = s.free.pop(0)
            out = [lambda: L.e(f's_add_u32 m0, s98, {4096*slot[st]}')]
            for i in range(4):
                v = s.VT if i < 2 else s.V1
                out.append(lambda i=i, v=v: L.v(('T', st), f'buffer_load_dwordx4 v{v}, s[32:35], s84 offen offset:{1024*i} sc1 lds'))
            out.append(lambda: (L.e('s_add_u32 s84, s84, 2048'), issued.add(st)))
            return out
        issued = set()
        NB = opt('nb', 12); KV = 32 + (160 - 4 * NB) // 8
        nxt = 0
        wc = opt('wc', 3)
        wfree, s.free = s.free[-wc:], s.free[:-wc]
        for _ in range(opt('t0', 3)):
            fs = TD(nxt); fs[0](); a.e('s_nop 0')
            for f in fs[1:]: f()
            nxt += 1
        L.wait(vm=(('T', 0),))
        a.e('s_barrier')
        X = opt('tx', 12)
        seq = [(k, tm) for k in range(56 - X) for tm in range(8)]
        seq += [(k, tm) for k in range(56 - X, 56) for tm in range(4, 8)]
        nS = len(seq)
        seq += [(k, tm) for k in range(56 - X, 56) for tm in range(4)]
        last_use = {}
        for g_, (k, tm) in enumerate(seq): last_use[k >> 1] = g_
        rdn = [0]
        def RDnext():
            if rdn[0] < 448:
                k, tm = seq[rdn[0]]
                f = s.TF + 4 * (rdn[0] % NB)
                o_ = 4096 * slot[k >> 1] + 2048 * (tm & 1) + 1024 * (k & 1)
                if k % 7 == 3 and opt('hl', 1):
                    L.l(('R', rdn[0]), f'ds_read2st64_b64 v[{f}:{f+3}], v{24+(tm>>1)} offset0:{o_//512} offset1:{o_//512+1}')
                else:
                    L.l(('R', rdn[0]), f'ds_read_b128 v[{f}:{f+3}], v{s.TR+(tm>>1)} offset:{o_}')
                rdn[0] += 1
        for _ in range(NB - 1): RDnext()
        todo = list(range(s.NA, 28)); fly = []; pend = []; freed = set(); vis = 0; wseen = set()
        assert NB - 1 <= 16
        HR = 192
        a.e('s_lshl_b32 s56, s2, 2')
        a.e(f's_add_u32 s56, s56, s{S_W}')
        a.e('s_lshl_b32 s57, s56, 13')
        a.e(f's_xor_b32 s58, s57, {0x8000 * s.pbit:#x}')
        a.e('s_lshl_b32 s56, s56, 6')
        a.e(f's_add_u32 s56, s56, {F4}')
        a.e(f's_xor_b32 s59, s56, {0x100 * s.pbit:#x}')
        srd(a, 40, P_WS, 8 * MB, WS_XP)
        srd(a, 48, P_OUT, 4 * MB)
        a.e('s_add_u32 s87, s57, 4096')
        a.e('s_add_u32 s88, s58, 4096')
        a.e('v_mov_b32 v20, 0')
        a.e(f'v_mov_b32 v21, s{S_NONCE}')
        def flag_store():
            L.wait(vm=('xs',))
            if not opt('kbst'): stamp(a, 16)
            a.e('s_mov_b64 exec, 1')
            L.v('fl', f'buffer_store_dword v21, v20, s[{S_FLG}:{S_FLG+3}], s56 offen sc1')
            a.e('s_mov_b64 exec, -1')
        gF = nS + opt('tf', 48) * (448 - nS) // 64 if X else None
        for u in range(56):
            k0 = seq[8 * u][0]
            fill = []
            GM = (0, 16, 32, 44, 50)
            if opt('g2st') and u in GM:
                a.e('s_memtime s[66:67]'); a.e('s_waitcnt lgkmcnt(0)'); L.lg = []
                a.e(f'v_writelane_b32 v1, s66, {26 + GM.index(u)}')
            if s.free and nxt < NS and (u & 1 or u < 8 or not todo or len(s.free) > 1):
                fill += TD(nxt); nxt += 1
                if not todo and not fly and s.free and nxt < NS:
                    fill += TD(nxt); nxt += 1
            if not u & 1 and u >= opt('wk0', 8):
                if fly and u >= fly[0][1] + opt('wlat', 4):
                    c = fly.pop(0)[0]
                    assert 2 * c + 1 < KV or u >= 2 * c + 2 - KV
                    fill += s.Wv(c) + s.M(c)
                    pend.append(c)
                if todo and wfree:
                    c = todo.pop(0)
                    fs = s.D(c)
                    s.cell[c] = wfree.pop(0)
                    fill += [lambda c=c: L.e(f's_add_u32 m0, s98, {4096*s.cell[c]}')] + fs[1:]
                    fly.append((c, u))
            if 8 * u == nS and X:
                for q in range(8):
                    c = s.ACC + 32 + 4 * q
                    fill.append(lambda q=q, c=c: L.v('xs', f'buffer_store_dwordx4 v[{c}:{c+3}], v{s.VT}, s[40:43], s{57 if q < 4 else 87} offen offset:{1024*(q&3)} sc1'))
            if u == 52:
                for tm in range(4):
                    for j in range(2):
                        def f(tm=tm, j=j):
                            if j == 0 and tm: L.e(f's_add_u32 s86, s85, {32768*tm}')
                            r = 4 + 0
                            L.v('h', f'buffer_load_dwordx2 a[{4*tm+2*j}:{4*tm+2*j+1}], v{s.VO}, s[44:47], s{86 if tm else 85} offen offset:{32*j} sc1')
                        fill.append(f)
            per = -(-(len(fill) + 1) // 8)
            SS = opt('ss', 1)
            for i in range(8):
                g_ = 8 * u + i
                k, tm = seq[g_]
                if rdn[0] < 448 and seq[rdn[0]][0] >> 1 > vis:
                    q = seq[rdn[0]][0] >> 1
                    vis = min(NS - 1, q + SS - 1) if q > 1 else q
                    assert vis in issued, (u, i, vis)
                    L.wait(vm=(('T', vis),))
                    a.e('s_barrier')
                    for q2 in list(slot):
                        if q2 not in freed and last_use[q2] < g_:
                            freed.add(q2); s.free.append(slot[q2])
                need = [('R', g_)]
                if k >> 1 not in wseen:
                    wseen.add(k >> 1)
                    assert k >> 1 not in todo and all(c != k >> 1 for c, _ in fly), (k, u)
                    need.append(('M', k >> 1))
                if g_ == gF: flag_store()
                L.wait(lg=need)
                order = [0, 1] if g_ % 2 == 0 else [1, 0]
                for n, j in enumerate(order):
                    r, w = s.wreg(k, j)
                    c = s.ACC + 4 * (2 * tm + j)
                    tf = s.TF + 4 * (g_ % NB)
                    if not opt('g2x') & 1:
                        a.e(f'v_mfma_f32_16x16x32_bf16 v[{c}:{c+3}], {r}[{w}:{w+3}], v[{tf}:{tf+3}], v[{c}:{c+3}]')
                    if n == 0:
                        RDnext()
                    else:
                        for _ in range(per):
                            if fill:
                                fill.pop(0)()
                                if 'm0' in a.lines[-1]: break
            while fill:
                if 'm0' in a.lines[-1]: a.e('s_nop 0')
                fill.pop(0)()
            for c in list(pend):
                if not any(x == ('M', c) for x in L.lg):
                    pend.remove(c)
                    (wfree if todo else s.free).append(s.cell[c])
            if not todo and wfree and not fly and not pend:
                s.free += wfree; wfree = []
        assert not todo and not fly and not pend and nxt == NS
        stamp(a, 15)
        if not X:
            a.e('s_nop 7')
            for q in range(8):
                c = s.ACC + 32 + 4 * q
                L.v('xs', f'buffer_store_dwordx4 v[{c}:{c+3}], v{s.VT}, s[40:43], s{57 if q < 4 else 87} offen offset:{1024*(q&3)} sc1')
            flag_store()
        wait_flags(a, 59, 20, 22, solo=0)
        stamp(a, 17)
        P1 = 96
        for q in range(8):
            a.e(f'buffer_load_dwordx4 v[{P1+4*q}:{P1+4*q+3}], v{s.VT}, s[40:43], s{58 if q < 4 else 88} offen offset:{1024*(q&3)} sc1')
        H = 208
        for q in range(16):
            a.e(f'v_accvgpr_read_b32 v{HR+q}, a{q}')
        for q in range(16):
            unpack(a, H + 2 * q, H + 2 * q + 1, HR + q)
        for q in range(8):
            tm, j = q >> 1, q & 1
            if j == 0 and tm: a.e(f's_add_u32 s85, s85, 32768')
            a.e('s_waitcnt vmcnt(7)')
            c = s.ACC + 4 * q
            for e in range(2):
                x = c + 2 * e; y = P1 + 4 * q + 2 * e; h = H + 4 * q + 2 * e
                a.e(f'v_pk_add_f32 v[{x}:{x+1}], v[{x}:{x+1}], v[{y}:{y+1}]')
                a.e(f'v_cvt_pk_bf16_f32 v{y}, v{x}, v{x+1}')
                unpack(a, x, x + 1, y)
                a.e(f'v_pk_add_f32 v[{x}:{x+1}], v[{x}:{x+1}], v[{h}:{h+1}]')
                a.e(f'v_cvt_pk_bf16_f32 v{192+2*q+e}, v{x}, v{x+1}')
            a.e(f'buffer_store_dwordx2 v[{192+2*q}:{192+2*q+1}], v{s.VO}, s[48:51], s85 offen offset:{32*j}' + ['', ' sc1', ' nt', ' sc0 sc1'][opt('ofl')])
        LIN[0] = None

def gen_dg(a):
    d = opt('dg'); F, ia, ib = d // 10000, d // 100 % 100, d % 100
    m = opt('dgm')
    a.raw('.globl dg_kernel\n.p2align 8\n.type dg_kernel,@function\ndg_kernel:')
    a.e('s_load_dwordx2 s[10:11], s[0:1], 96')
    a.e('s_memrealtime s[12:13]')
    a.e('s_waitcnt lgkmcnt(0)')
    a.e(f's_add_u32 s10, s10, {STAMP_BASE + opt("dgw", 0) * 128:#x}')
    a.e('s_addc_u32 s11, s11, 0')
    if not m:
        a.e(f's_load_dword s4, s[10:11], {4*ia}')
        a.e(f's_load_dword s5, s[10:11], {4*ib}')
        a.e('s_waitcnt lgkmcnt(0)')
    else:
        a.e('s_mov_b32 s20, s10\ns_mov_b32 s21, s11\ns_mov_b32 s22, 0x20000\ns_mov_b32 s23, 0x20000')
        a.e('v_lshlrev_b32 v1, 7, v0')
        for i in range(16):
            a.e(f's_mov_b32 s6, {i*8192}')
            a.e(f'buffer_load_dword v{8+i}, v1, s[20:23], s6 offen offset:{4*ia}')
            a.e(f'buffer_load_dword v{24+i}, v1, s[20:23], s6 offen offset:{4*ib}')
        a.e('s_waitcnt vmcnt(0)')
        for i in range(32):
            a.e(f'v_sub_u32 v{8+i}, s12, v{8+i}')
        opa = 'v_max_u32' if m != 3 else 'v_add_u32'
        opb = {1: 'v_min_u32', 2: 'v_max_u32', 3: 'v_add_u32'}[m]
        for i in range(1, 16):
            a.e(f'{opa} v8, v8, v{8+i}')
            a.e(f'{opb} v24, v24, v{24+i}')
        a.e('s_nop 1')
        a.e('v_readlane_b32 s4, v8, 0')
        a.e('v_readlane_b32 s5, v24, 0')
        sa = 's_max_u32' if m != 3 else 's_add_u32'
        sb = {1: 's_min_u32', 2: 's_max_u32', 3: 's_add_u32'}[m]
        for l in range(1, 64):
            a.e(f'v_readlane_b32 s6, v8, {l}')
            a.e(f'v_readlane_b32 s7, v24, {l}')
            a.e('s_nop 0')
            a.e(f'{sa} s4, s4, s6')
            a.e(f'{sb} s5, s5, s7')
        a.e('s_sub_u32 s5, s4, s5')
        if m == 3: a.e('s_lshr_b32 s5, s5, 10')
        a.e('s_mov_b32 s4, 0')
        a.e('s_memrealtime s[12:13]')
        a.e('s_waitcnt lgkmcnt(0)')
    a.e('s_sub_u32 s4, s5, s4')
    a.e('s_min_u32 s4, s4, 10000')
    a.e(f's_mul_i32 s4, s4, {F}')
    a.e('L_dg:')
    a.e('s_memrealtime s[14:15]')
    a.e('s_waitcnt lgkmcnt(0)')
    a.e('s_sub_u32 s5, s14, s12')
    a.e('s_cmp_lt_u32 s5, s4')
    a.e('s_cbranch_scc1 L_dg')
    a.e('s_endpgm')

def build():
    a = Asm()
    hdr = open('cdna_kernels/' + NAME + '.s.ref').read().split('\n')
    cm = [l for l in hdr if l.startswith(';') and '@launch' not in l and 'Override launch' not in l and 'grid=ceil' not in l]
    out = '\n'.join(cm) + '\n'
    if opt('aslist') or opt('dg'):
        out += f'; @launch kernel={KNAME} grid=(256,1,1) block=(256,1,1) lds=163840\n'
        if opt('dg'): out += '; @launch kernel=dg_kernel grid=(1,1,1) block=(64,1,1) lds=0\n'
    else:
        out += '; @launch grid=(256,1,1) block=(256,1,1) lds=163840\n'
    a.raw('.amdgcn_target "amdgcn-amd-amdhsa--gfx950"')
    a.raw('.text')
    gen(a)
    if opt('dg'): gen_dg(a)
    body = a.text()
    errs = check_hazards(body)
    errs += check_waits(body, KNAME, loop_iters=2, take_fwd=('L_nonce_ok', 'L_nonce_skip', 'L_clean_skip', 'L_y2skip', 'L_y2nw') + tuple(f'L_sig{i}' for i in range(20)) + tuple(f'L_poll{i}x' for i in range(20)))
    errs += check_waits(body, KNAME, loop_iters=2, take_fwd=('L_nonce_ok',) + (() if opt('solo', 1) else tuple(f'L_poll{i}x' for i in range(20))))
    for e in errs[:8]: print(e, file=sys.stderr)
    na = 256
    out += body + f'''.section .rodata,"a"
.p2align 6
.amdhsa_kernel {KNAME}
  .amdhsa_next_free_vgpr {256+na}
  .amdhsa_next_free_sgpr 102
  .amdhsa_accum_offset 256
  .amdhsa_group_segment_fixed_size 0
  .amdhsa_kernarg_size 104
  .amdhsa_user_sgpr_count 2
  .amdhsa_user_sgpr_kernarg_segment_ptr 1
  .amdhsa_system_sgpr_workgroup_id_x 1
  .amdhsa_float_denorm_mode_32 3
.end_amdhsa_kernel
'''
    if opt('dg'):
        out += '''.p2align 6
.amdhsa_kernel dg_kernel
  .amdhsa_next_free_vgpr 48
  .amdhsa_next_free_sgpr 32
  .amdhsa_accum_offset 48
  .amdhsa_group_segment_fixed_size 0
  .amdhsa_kernarg_size 104
  .amdhsa_user_sgpr_count 2
  .amdhsa_user_sgpr_kernarg_segment_ptr 1
  .amdhsa_system_sgpr_workgroup_id_x 1
.end_amdhsa_kernel
'''
    return out, errs

if __name__ == '__main__':
    outp = sys.argv[1]
    for kv in sys.argv[2:]:
        k, v = kv.split('=')
        OPT[k] = int(v)
    t, errs = build()
    open(outp, 'w').write(t)
    print('written', outp, len(t), 'bytes;', len(errs), 'checker errors')
```

```python
import sys, os
from asmlib import *

NAME = 'sequential_preLN__ssm_conv_h3__glu_gated_swiglu__prompt'
KNAME = NAME + '_kernel'
MB = 1 << 20
WS0 = int(os.environ.get('WS0', '0')) * MB
WS_UB, WS_Y2, WS_H, WS_HNF, WS_HF, WS_XP, WS_FLG = [WS0 + x * MB for x in (0, 4, 8, 12, 16, 32, 40)]
STAMP_BASE = 64 * MB
OPT = {}
def opt(k, d=0): return OPT.get(k, d)

P_Q, P_K, P_V, P_SH, P_SSMK, P_D, P_X, P_W1, P_W3, P_W2, P_OUT, P_DBG, P_WS = [4 + 2 * i for i in range(13)]
S_W, S_NONCE, S_MASK = 30, 31, 90
S_FLG = 92
F0, F1, F2, F3, F4 = 0, 32768, 65536, 98304, 131072
FLG_SIZE = 262144
LDS_KA = 98304
KA_REG = 13056
NSTAMP = 20
AST = 128

def srd(a, d, p, size, add=0, addreg=None):
    if add or addreg is not None:
        if add:
            a.e(f's_add_u32 s{d}, s{p}, {add:#x}')
            a.e(f's_addc_u32 s{d+1}, s{p+1}, 0')
            if addreg is not None:
                a.e(f's_add_u32 s{d}, s{d}, s{addreg}')
                a.e(f's_addc_u32 s{d+1}, s{d+1}, 0')
        else:
            a.e(f's_add_u32 s{d}, s{p}, s{addreg}')
            a.e(f's_addc_u32 s{d+1}, s{p+1}, 0')
    else:
        a.e(f's_mov_b32 s{d}, s{p}')
        a.e(f's_mov_b32 s{d+1}, s{p+1}')
    if size is not None:
        a.e(f's_mov_b32 s{d+2}, {size:#x}')
    a.e(f's_mov_b32 s{d+3}, 0x20000')

def stamp(a, i):
    if not opt('stamp'): return
    a.e('s_memrealtime s[60:61]')
    if i == 0: a.e('s_memtime s[62:63]')
    cy = {11: 20, 12: 21, 14: 22, 15: 23, 4: 24, 5: 25}.get(i)
    if cy: a.e('s_memtime s[66:67]')
    a.e('s_waitcnt lgkmcnt(0)')
    a.e(f'v_writelane_b32 v1, s60, {i}')
    if cy: a.e(f'v_writelane_b32 v1, s66, {cy}')
    if LIN[0]: LIN[0].lg = []

def stamp_out(a, n):
    if not opt('stamp'): return
    a.e('s_waitcnt vmcnt(0)')
    stamp(a, n - 1)
    a.e('s_memtime s[64:65]')
    a.e('s_waitcnt lgkmcnt(0)')
    srd(a, 32, P_WS, 1 * MB, STAMP_BASE)
    a.e('s_lshl_b32 s84, s2, 2')
    a.e(f's_add_u32 s84, s84, s{S_W}')
    a.e('s_lshl_b32 s84, s84, 7')
    a.e('s_sub_u32 s64, s64, s62')
    a.e('v_writelane_b32 v1, s64, 31')
    a.e('v_mbcnt_lo_u32_b32 v2, -1, 0')
    a.e('v_lshlrev_b32 v2, 2, v2')
    a.e('s_mov_b64 exec, 0xffffffff')
    a.e('buffer_store_dword v1, v2, s[32:35], s84 offen')

LIN = [None]
class Lin:
    def __init__(s, a): s.a = a; s.vm = []; s.lg = []; LIN[0] = s
    def e(s, t): s.a.e(t)
    def v(s, tag, t): s.a.e(t); s.vm.append(tag)
    def l(s, tag, t): s.a.e(t); s.lg.append(tag)
    def _n(s, q, tags, cap):
        idx = [i for i, x in enumerate(q) if x in tags]
        if not idx: return None
        n = len(q) - max(idx) - 1
        return min(n, cap)
    def wait(s, vm=(), lg=(), vm0=False, lg0=False):
        nv = 0 if vm0 else s._n(s.vm, vm, 63)
        nl = 0 if lg0 else s._n(s.lg, lg, 15)
        t = ''
        if nv is not None:
            t += f' vmcnt({nv})'; s.vm = s.vm[len(s.vm) - nv:] if nv else []
        if nl is not None:
            t += f' lgkmcnt({nl})'; s.lg = s.lg[len(s.lg) - nl:] if nl else []
        if t: s.a.e('s_waitcnt' + t)

def unpack(a, dlo, dhi, src):
    a.e(f'v_lshlrev_b32 v{dlo}, 16, v{src}')
    a.e(f'v_and_b32 v{dhi}, s{S_MASK}, v{src}')

def hfl():
    return [' sc1', ' sc0 sc1', ' sc1 nt', ' sc0 sc1 nt', ''][opt('hfl')]

def code_pf(a, lab_from, lab_to, vt, emit=None, n=1):
    _uid[0] += 1
    L = f'L_pc{_uid[0]}'
    a.e('s_getpc_b64 s[78:79]')
    a.e(f'{L}:')
    a.e(f's_lshl_b32 s77, s{S_W}, 13')
    a.e(f's_add_u32 s77, s77, {lab_from}-{L}')
    for i in range(n):
        if i: a.e('s_add_u32 s77, s77, 32768')
        a.e(f'v_lshl_add_u32 v{vt}, v2, 7, s77')
        a.e(f'v_min_u32 v{vt}, {lab_to}-{L}, v{vt}')
        t = f'global_load_dword v{vt+1+i}, v{vt}, s[78:79]'
        if emit: emit(t)
        else: a.e(t)

def hf_base(a, d, mb, q, t):
    if not opt('reuse', 0):
        a.e(f's_lshl_b32 s{d}, s{mb}, 2')
        a.e(f's_add_u32 s{d}, s{d}, s{q}')
        a.e(f's_mul_i32 s{d}, s{d}, 458752')
        a.e(f's_add_u32 s{d}, s{d}, {WS_HF:#x}')
        return
    a.e(f's_lshl_b32 s{d}, s{mb}, 1')
    a.e(f's_add_u32 s{d}, s{d}, s{q}')
    a.e(f's_mul_i32 s{d}, s{d}, 458752')
    a.e(f's_add_u32 s{d}, s{d}, {WS_HF:#x}')
    a.e(f's_lshl_b32 s{t}, s{mb}, 19')
    a.e(f's_cmp_eq_u32 s{q}, 1')
    a.e(f's_cselect_b32 s{d}, s{t}, s{d}')
    a.e(f's_add_u32 s{t}, s{t}, {WS_Y2 - WS_UB:#x}')
    a.e(f's_cmp_eq_u32 s{q}, 0')
    a.e(f's_cselect_b32 s{d}, s{t}, s{d}')

_uid = [0]
def signal(a, soff, vt, waitfn=None, wb=False):
    _uid[0] += 1
    L = f'L_sig{_uid[0]}'
    a.e(f'v_mov_b32 v{vt}, 0')
    a.e(f'v_mov_b32 v{vt+1}, s{S_NONCE}')
    a.e(f's_cmp_eq_u32 s{S_W}, 0')
    if waitfn: waitfn()
    else: a.e('s_waitcnt vmcnt(0)')
    a.e('s_barrier')
    a.e(f's_cbranch_scc0 {L}')
    if wb:
        a.e('buffer_wbl2 sc1')
        a.e('s_waitcnt vmcnt(0)')
    a.e('s_mov_b64 exec, 1')
    a.e(f'buffer_store_dword v{vt+1}, v{vt}, s[{S_FLG}:{S_FLG+3}], s{soff} offen sc1')
    a.e('s_mov_b64 exec, -1')
    a.e(f'{L}:')

def fsh():
    return opt('fs', 32).bit_length() - 1
def f1sh():
    return opt('f1s', 32).bit_length() - 1

def wait_flags(a, soff, voff, vd, n=64, solo=None):
    _uid[0] += 1
    L = f'L_poll{_uid[0]}'
    if solo is None: solo = opt('solo', 1)
    if solo:
        a.e(f's_cmp_lg_u32 s{S_W}, {opt("pw", 0)}')
        a.e(f's_cbranch_scc1 {L}x')
    a.e(f'{L}:')
    if n == 256:
        if f1sh() == 2:
            a.e(f'buffer_load_dwordx4 v[{vd}:{vd+3}], v{voff}, s[{S_FLG}:{S_FLG+3}], s{soff} offen sc1')
        else:
            for i in range(4):
                a.e(f's_add_u32 s89, s{soff}, {i*(64<<f1sh())}')
                a.e(f'buffer_load_dword v{vd+i}, v{voff}, s[{S_FLG}:{S_FLG+3}], s89 offen sc1')
        a.e('s_waitcnt vmcnt(0)')
        a.e(f'v_xor_b32 v{vd}, s{S_NONCE}, v{vd}')
        a.e(f'v_xor_b32 v{vd+1}, s{S_NONCE}, v{vd+1}')
        a.e(f'v_xor_b32 v{vd+2}, s{S_NONCE}, v{vd+2}')
        a.e(f'v_xor_b32 v{vd+3}, s{S_NONCE}, v{vd+3}')
        a.e(f'v_or3_b32 v{vd}, v{vd}, v{vd+1}, v{vd+2}')
        a.e(f'v_or_b32 v{vd}, v{vd}, v{vd+3}')
        a.e(f'v_cmp_ne_u32 vcc, 0, v{vd}')
    else:
        a.e(f'buffer_load_dword v{vd}, v{voff}, s[{S_FLG}:{S_FLG+3}], s{soff} offen sc1')
        a.e('s_waitcnt vmcnt(0)')
        a.e(f'v_cmp_ne_u32 vcc, s{S_NONCE}, v{vd}')
    a.e('s_add_u32 s3, s3, 1')
    a.e(f's_cmp_gt_u32 s3, {opt("spin", 200000)}')
    a.e(f's_cbranch_scc1 {L}x')
    a.e(f's_cbranch_vccz {L}x')
    if opt('sleep'): a.e(f's_sleep {opt("sleep")}')
    a.e(f's_branch {L}')
    a.e(f'{L}x:')
    if solo: a.e('s_barrier')

def wave_sum2(a, va, vb, sa, sb):
    for mod in ('row_shr:1 row_mask:0xf bank_mask:0xf bound_ctrl:0', 'row_shr:2 row_mask:0xf bank_mask:0xf bound_ctrl:0',
                'row_shr:4 row_mask:0xf bank_mask:0xf bound_ctrl:0', 'row_shr:8 row_mask:0xf bank_mask:0xf bound_ctrl:0',
                'row_bcast:15 row_mask:0xa bank_mask:0xf', 'row_bcast:31 row_mask:0xc bank_mask:0xf'):
        a.e('s_nop 0')
        a.e(f'v_add_f32_dpp v{va}, v{va}, v{va} {mod}')
        a.e(f'v_add_f32_dpp v{vb}, v{vb}, v{vb} {mod}')
    a.e(f'v_readlane_b32 s{sa}, v{va}, 63')
    a.e(f'v_readlane_b32 s{sb}, v{vb}, 63')

def ln2(a, X, T, M, R, C, XM):
    def both(f):
        for r in range(2): f(r)
    for q in range(4):
        both(lambda r: a.e(f'v_pk_add_f32 v[{T[r]+2*q}:{T[r]+2*q+1}], v[{X[r]+4*q}:{X[r]+4*q+1}], v[{X[r]+4*q+2}:{X[r]+4*q+3}]'))
    both(lambda r: a.e(f'v_pk_add_f32 v[{T[r]}:{T[r]+1}], v[{T[r]}:{T[r]+1}], v[{T[r]+2}:{T[r]+3}]'))
    both(lambda r: a.e(f'v_pk_add_f32 v[{T[r]+4}:{T[r]+5}], v[{T[r]+4}:{T[r]+5}], v[{T[r]+6}:{T[r]+7}]'))
    both(lambda r: a.e(f'v_pk_add_f32 v[{T[r]}:{T[r]+1}], v[{T[r]}:{T[r]+1}], v[{T[r]+4}:{T[r]+5}]'))
    both(lambda r: a.e(f'v_add_f32 v{T[r]}, v{T[r]}, v{T[r]+1}'))
    wave_sum2(a, T[0], T[1], 56, 57)
    a.e('s_nop 0')
    both(lambda r: a.e(f'v_mul_f32 v{M[r]}, s{56+r}, v{C}'))
    both(lambda r: a.e(f'v_mov_b32 v{M[r]+1}, v{M[r]}'))
    for q in range(8):
        both(lambda r: a.e(f'v_pk_add_f32 v[{T[r]+2*q}:{T[r]+2*q+1}], v[{X[r]+2*q}:{X[r]+2*q+1}], v[{M[r]}:{M[r]+1}] neg_lo:[0,1] neg_hi:[0,1]'))
    both(lambda r: a.e(f'v_pk_mul_f32 v[{R[r]}:{R[r]+1}], v[{T[r]}:{T[r]+1}], v[{T[r]}:{T[r]+1}]'))
    for q in range(1, 8):
        both(lambda r: a.e(f'v_pk_fma_f32 v[{R[r]}:{R[r]+1}], v[{T[r]+2*q}:{T[r]+2*q+1}], v[{T[r]+2*q}:{T[r]+2*q+1}], v[{R[r]}:{R[r]+1}]'))
    both(lambda r: a.e(f'v_add_f32 v{R[r]}, v{R[r]}, v{R[r]+1}'))
    def rbf(v):
        a.e(f'v_cvt_pk_bf16_f32 v{v}, v{v}, v{v}')
        a.e(f'v_and_b32 v{v}, s{S_MASK}, v{v}')
    both(lambda r: rbf(M[r]))
    wave_sum2(a, R[0], R[1], 58, 59)
    both(lambda r: a.e(f'v_mov_b32 v{M[r]+1}, v{M[r]}'))
    both(lambda r: a.e(f'v_mul_f32 v{R[r]}, s{58+r}, v{C}'))
    both(lambda r: rbf(R[r]))
    both(lambda r: a.e(f'v_add_f32 v{R[r]}, 0x3727c5ac, v{R[r]}'))
    both(lambda r: rbf(R[r]))
    both(lambda r: a.e(f'v_sqrt_f32 v{R[r]}, v{R[r]}'))
    for q in range(2):
        both(lambda r: a.e(f'v_pk_add_f32 v[{XM[r]+2*q}:{XM[r]+2*q+1}], v[{X[r]+2*q}:{X[r]+2*q+1}], v[{M[r]}:{M[r]+1}] neg_lo:[0,1] neg_hi:[0,1]'))
    both(lambda r: rbf(R[r]))
    both(lambda r: a.e(f'v_rcp_f32 v{R[r]}, v{R[r]}'))
    for q in range(2, 8):
        both(lambda r: a.e(f'v_pk_add_f32 v[{XM[r]+2*q}:{XM[r]+2*q+1}], v[{X[r]+2*q}:{X[r]+2*q+1}], v[{M[r]}:{M[r]+1}] neg_lo:[0,1] neg_hi:[0,1]'))
    both(lambda r: a.e(f'v_mov_b32 v{R[r]+1}, v{R[r]}'))
    for q in range(8):
        both(lambda r: a.e(f'v_pk_mul_f32 v[{T[r]+2*q}:{T[r]+2*q+1}], v[{XM[r]+2*q}:{XM[r]+2*q+1}], v[{R[r]}:{R[r]+1}]'))

class Sched:
    def __init__(self): self.ev = []; self.marks = {}
    def mark(self, k): self.marks[k] = len(self.ev)
    def add(self, L): self.ev += L
    def younger(self, tag, at):
        last = max(i for i, e in enumerate(self.ev) if e[:2] == tag)
        assert last < self.marks[at], (tag, at)
        return self.marks[at] - last - 1

def gen(a):
    a.raw(f'.globl {KNAME}')
    a.raw('.p2align 8')
    a.raw(f'.type {KNAME},@function')
    a.raw(f'{KNAME}:')
    a.e('s_cmp_ge_u32 s2, 256')
    a.e('s_cbranch_scc1 L_end')
    a.e('s_load_dwordx8 s[4:11], s[0:1], 0')
    a.e('s_load_dwordx8 s[20:27], s[0:1], 64')
    a.e('s_load_dwordx2 s[28:29], s[0:1], 96')
    a.e('s_load_dwordx8 s[12:19], s[0:1], 32')
    a.e('s_memrealtime s[56:57]')
    a.e('v_lshrrev_b32 v1, 6, v0')
    a.e('v_and_b32 v2, 63, v0')
    a.e(f'v_readfirstlane_b32 s{S_W}, v1')
    a.e(f's_mov_b32 s{S_MASK}, 0xffff0000')
    a.e('s_mov_b32 s3, 0')
    a.e('s_bfe_u32 s82, s2, 0x30003')
    a.e('s_and_b32 s83, s2, 7')
    a.e('s_lshr_b32 s84, s2, 6')
    a.e('s_lshl_b32 s84, s84, 3')
    a.e('s_or_b32 s83, s83, s84')
    a.e('v_and_b32 v9, 7, v0')
    a.e('v_bfe_u32 v10, v0, 4, 1')
    a.e('v_lshl_add_u32 v1, v9, 1, v10')
    a.e('v_lshrrev_b32 v8, 5, v0')
    a.e('v_bfe_u32 v11, v0, 3, 1')
    a.e('v_lshl_add_u32 v8, v8, 1, v11')
    a.e('s_lshl_b32 s85, s83, 17')
    a.e('s_lshl_b32 s86, s82, 8')
    a.e('s_add_u32 s85, s85, s86')
    a.e('v_lshlrev_b32 v3, 13, v1')
    a.e('v_lshl_add_u32 v3, v8, 4, v3')
    a.e('v_add_u32 v3, s85, v3')
    a.e('v_add_u32 v4, 0xffffe800, v3')
    a.e('v_add_u32 v5, 0xfffff800, v3')
    a.e('v_add_u32 v6, 0x1000, v3')
    a.e('s_lshl_b32 s86, s82, 10')
    a.e('v_lshlrev_b32 v7, 6, v8')
    a.e('v_add_u32 v7, s86, v7')
    a.e('s_lshl_b32 s87, s82, 5')
    a.e('s_add_u32 s87, s87, s83')
    a.e('s_lshl_b32 s88, s87, 14')
    a.e('s_add_u32 s88, s88, 112')
    a.e('v_lshlrev_b32 v160, 10, v8')
    a.e('v_lshl_add_u32 v160, v10, 9, v160')
    a.e('v_lshlrev_b32 v161, 4, v9')
    a.e('v_sub_u32 v160, v160, v161')
    a.e('v_add_u32 v160, s88, v160')
    a.e(f's_lshl_b32 s87, s87, {fsh()}')
    a.e('v_mov_b32 v162, 0')
    a.e('s_waitcnt lgkmcnt(0)')
    stamp(a, 0)
    if opt('stamp') and not opt('g2st'): a.e('v_writelane_b32 v1, s56, 30')
    srd(a, 32, P_K, 4 * MB)
    srd(a, 36, P_V, 4 * MB)
    srd(a, 40, P_SH, 8192)
    KR, VR_, WR, WU, KU, AC0 = 8, 36, 52, 68, 100, 164
    for j in range(4):
        a.e(f'buffer_load_dwordx4 v[{WR+4*j}:{WR+4*j+3}], v7, s[40:43], 0 offen offset:{16*j}')
    rows = [(4, 0), (4, 2048), (5, 0), (3, 0), (3, 2048), (6, 0), (6, 2048)]
    for r, (vr, off) in enumerate(rows):
        a.e(f'buffer_load_dwordx4 v[{KR+4*r}:{KR+4*r+3}], v{vr}, s[32:35], 0 offen offset:{off}')
    for r, (vr, off) in enumerate(rows[3:]):
        a.e(f'buffer_load_dwordx4 v[{VR_+4*r}:{VR_+4*r+3}], v{vr}, s[36:39], 0 offen offset:{off}')
    ncp = 0
    if opt('cpf', 0):
        a.e('s_getpc_b64 s[58:59]')
        a.e('L_pc:')
        a.e('v_lshlrev_b32 v163, 7, v0')
        a.e('v_min_u32 v163, L_end-L_pc, v163')
        a.e('global_load_dword v161, v163, s[58:59]')
        ncp = 1
    srd(a, 48, P_WS, 4 * MB, WS_UB)
    if opt('pt', 0) & 1:
        a.e('v_lshlrev_b32 v163, 6, v0')
        a.e('s_sub_u32 s58, s88, 120')
        a.e('buffer_load_dword v161, v163, s[48:51], s58 offen')
        ncp += 1
    KD, KX, XP = 200, 216, 224
    KP, XPOS = opt('kp', 1), opt('xp', 2)
    def k_loads():
        a.e('s_and_b32 s74, s2, 7')
        a.e('s_lshl_b32 s74, s74, 7')
        a.e('s_lshr_b32 s75, s2, 3')
        a.e('s_lshl_b32 s75, s75, 2')
        a.e('s_add_u32 s74, s74, s75')
        a.e(f's_add_u32 s74, s74, s{S_W}')
        a.e('s_lshl_b32 s74, s74, 12')
        srd(a, 68, P_SSMK, 4096, 0, 74)
        a.e('v_lshlrev_b32 v220, 4, v2')
        for j in range(4):
            a.e(f'buffer_load_dwordx4 v[{KD+4*j}:{KD+4*j+3}], v220, s[68:71], 0 offen offset:{1024*j}')
            a.e(f'buffer_load_dword v{KX+j}, v220, s[68:71], 0 offen offset:{1024*j+16}')
    def x_loads():
        srd(a, 36, P_Q, 4 * MB)
        for r in range(2):
            for hh in range(2):
                a.e(f'buffer_load_dwordx4 v[{XP+8*r+4*hh}:{XP+8*r+4*hh+3}], v4, s[36:39], s96 offen offset:{2048*r+1024*hh}')
    if KP == 0:
        k_loads(); ncp += 8
    if opt('tlb'):
        a.e(f's_cmp_eq_u32 s{S_W}, 3')
        a.e(f's_cselect_b32 s58, {42 * MB:#x}, 0')
        srd(a, 52, P_WS, None)
        a.e('s_mov_b32 s54, s58')
        a.e('v_lshlrev_b32 v163, 21, v2')
        a.e(f'v_add_u32 v163, {opt("tlbo", 0x1f0000):#x}, v163')
        a.e('buffer_load_dword v161, v163, s[52:55], 0 offen')
        ncp += 1
        if opt('tlb') > 1:
            a.e(f's_min_u32 s58, s58, {4 * MB:#x}')
            for P_ in (P_OUT, P_SSMK, P_Q):
                srd(a, 52, P_, None)
                a.e('s_mov_b32 s54, s58')
                a.e('buffer_load_dword v161, v163, s[52:55], 0 offen')
                ncp += 1
    srd(a, 44, P_DBG, 256)
    a.e('s_or_b32 s56, s56, 1')
    a.e(f's_or_b32 s57, s2, s{S_W}')
    a.e('s_cmp_lg_u32 s57, 0')
    a.e('s_cbranch_scc1 L_nonce_skip')
    a.e('v_mov_b32 v163, s56')
    a.e('s_mov_b64 exec, 1')
    a.e('buffer_store_dword v163, v162, s[44:47], 0 offen sc1')
    a.e('s_mov_b64 exec, -1')
    a.e('s_waitcnt vmcnt(0)')
    a.e('L_nonce_skip:')
    srd(a, S_FLG, P_WS, FLG_SIZE, WS_FLG)
    a.e(f's_waitcnt vmcnt({11+ncp})')
    for e in range(8):
        unpack(a, WU + 0 * 8 + e, WU + 1 * 8 + e, WR + 2 * e)
        unpack(a, WU + 2 * 8 + e, WU + 3 * 8 + e, WR + 2 * e + 1)
    for r in range(7):
        a.e(f's_waitcnt vmcnt({10-r+ncp})')
        for q in range(4):
            unpack(a, KU + 8 * r + 2 * q, KU + 8 * r + 2 * q + 1, KR + 4 * r + q)
        if r >= 3:
            i = r - 3
            for j in range(4):
                for q in range(4):
                    d = AC0 + 8 * i + 2 * q
                    k = KU + 8 * (i + 3 - j) + 2 * q
                    w = WU + 8 * j + 2 * q
                    if j == 0:
                        a.e(f'v_pk_mul_f32 v[{d}:{d+1}], v[{k}:{k+1}], v[{w}:{w+1}]')
                    else:
                        a.e(f'v_pk_fma_f32 v[{d}:{d+1}], v[{k}:{k+1}], v[{w}:{w+1}], v[{d}:{d+1}]')
    VU = 8
    for i in range(4):
        a.e(f's_waitcnt vmcnt({3-i+ncp})')
        if i == 3:
            a.e('buffer_load_dword v163, v162, s[44:47], 0 offen sc1')
        for q in range(4):
            unpack(a, VU + 2 * q, VU + 2 * q + 1, VR_ + 4 * i + q)
        for q in range(4):
            d = AC0 + 8 * i + 2 * q
            a.e(f'v_pk_mul_f32 v[{d}:{d+1}], v[{d}:{d+1}], v[{VU+2*q}:{VU+2*q+1}]')
    O = 52
    for e in range(4):
        q = O + 4 * e
        a.e(f'v_cvt_pk_bf16_f32 v{q}, v{AC0+28+e}, v{AC0+20+e}')
        a.e(f'v_cvt_pk_bf16_f32 v{q+1}, v{AC0+12+e}, v{AC0+4+e}')
        a.e(f'v_cvt_pk_bf16_f32 v{q+2}, v{AC0+24+e}, v{AC0+16+e}')
        a.e(f'v_cvt_pk_bf16_f32 v{q+3}, v{AC0+8+e}, v{AC0+e}')
    for e in range(4):
        q = O + 4 * e
        if e == 3: a.e('s_nop 0')
        a.e(f'v_permlane16_swap_b32 v{q+2}, v{q}')
        a.e(f'v_permlane16_swap_b32 v{q+3}, v{q+1}')
        a.e(f'buffer_store_dwordx4 v[{q}:{q+3}], v160, s[48:51], 0 offen offset:{128*e} sc1')
    stamp(a, 1)
    a.e('s_and_b32 s82, s2, 7')
    a.e('s_lshr_b32 s83, s2, 3')
    a.e('s_lshl_b32 s84, s83, 2')
    a.e(f's_add_u32 s84, s84, s{S_W}')
    a.e('s_lshl_b32 s85, s82, 7')
    a.e('s_add_u32 s85, s85, s84')
    a.e('s_lshl_b32 s86, s82, 5')
    a.e('s_add_u32 s86, s86, s83')
    a.e(f's_mul_i32 s88, s{S_W}, {KA_REG}')
    a.e(f's_add_u32 s88, s88, {LDS_KA}')
    a.e('s_lshr_b32 s57, s85, 1')
    a.e('s_lshl_b32 s57, s57, 2')
    a.e(f's_load_dword s89, s[{P_D}:{P_D+1}], s57')
    a.e('v_lshlrev_b32 v4, 4, v2')
    ny = 0
    if KP == 1:
        k_loads(); ny += 8
    a.e('s_and_b32 s80, s82, 1')
    a.e('s_lshl_b32 s80, s80, 2')
    a.e('s_and_b32 s56, s83, 3')
    a.e('s_add_u32 s80, s80, s56')
    a.e('s_lshr_b32 s81, s82, 1')
    a.e('s_lshl_b32 s81, s81, 3')
    a.e('s_lshr_b32 s56, s83, 2')
    a.e('s_add_u32 s81, s81, s56')
    a.e('s_lshl_b32 s91, s80, 5')
    a.e('s_add_u32 s91, s91, s81')
    a.e('s_lshl_b32 s56, s91, 2')
    a.e(f's_add_u32 s56, s56, s{S_W}')
    a.e('s_lshl_b32 s96, s56, 12')
    nx_ = 0
    if XPOS == 1:
        x_loads(); ny += 4; nx_ = 4
    WP0 = opt('wp0', 0)
    if WP0:
        a.e(f's_mul_i32 s56, s2, {7168*WP0}')
        a.e(f's_mul_i32 s57, s{S_W}, {1792*WP0}')
        a.e('s_add_u32 s56, s56, s57')
        srd(a, 40, P_W1, 1792 * WP0, 0, 56)
        a.e('v_lshlrev_b32 v167, 7, v2')
        a.e('buffer_load_dword v168, v167, s[40:43], 0 offen')
        ny += 1; nx_ += 1
    nc0 = 0
    if opt('cpf0', 2):
        if opt('cpf0', 2) == 1:
            code_pf(a, 'L_nonce', 'L_end', 164, n=2); nc0 = 2
        else:
            code_pf(a, 'L_nonce', 'L_kbcode' if opt('cpf0', 2) == 2 else 'L_g1epi', 164); nc0 = 1
    a.e(f's_waitcnt vmcnt({4+ny+nc0})')
    a.e('L_nonce:')
    a.e(f'v_readfirstlane_b32 s{S_NONCE}, v163')
    a.e('s_nop 0')
    a.e(f's_cmp_lg_u32 s{S_NONCE}, 0')
    a.e('s_cbranch_scc1 L_nonce_ok')
    a.e('s_add_u32 s3, s3, 1')
    a.e(f's_cmp_gt_u32 s3, {opt("spin", 200000)}')
    a.e('s_cbranch_scc1 L_nonce_ok')
    a.e('buffer_load_dword v163, v162, s[44:47], 0 offen sc1')
    a.e('s_waitcnt vmcnt(0)')
    a.e('s_branch L_nonce')
    a.e('L_nonce_ok:')
    a.e(f'v_mov_b32 v163, s{S_NONCE}')
    a.e(f's_cmp_eq_u32 s{S_W}, 0')
    a.e(f's_waitcnt vmcnt({ny+nc0})')
    a.e('s_barrier')
    a.e('s_cbranch_scc0 L_sig0')
    a.e('s_mov_b64 exec, 1')
    a.e(f'buffer_store_dword v163, v162, s[{S_FLG}:{S_FLG+3}], s87 offen sc1')
    a.e('s_mov_b64 exec, -1')
    a.e('L_sig0:')
    stamp(a, 2)
    if KP == 2:
        k_loads(); nx_ = 0; nc0 = 0
    npt = 0
    if opt('pt', 0) & 2:
        srd(a, 40, P_WS, 12 * MB, WS_Y2)
        a.e('v_lshlrev_b32 v164, 14, v0')
        a.e('s_lshl_b32 s56, s86, 6')
        a.e('buffer_load_dword v161, v164, s[40:43], s56 offen')
        a.e('v_lshlrev_b32 v164, 6, v0')
        a.e('s_lshl_b32 s56, s91, 14')
        a.e(f's_add_u32 s56, s56, {4*MB}')
        a.e('buffer_load_dword v161, v164, s[40:43], s56 offen')
        a.e('v_lshrrev_b32 v164, 3, v0')
        a.e('v_lshlrev_b32 v164, 12, v164')
        a.e('v_bfe_u32 v165, v0, 1, 2')
        a.e('v_lshl_add_u32 v164, v165, 8, v164')
        a.e('s_lshr_b32 s56, s91, 3')
        a.e('s_lshl_b32 s56, s56, 17')
        a.e('s_and_b32 s57, s91, 7')
        a.e('s_lshr_b32 s58, s57, 1')
        a.e('s_lshl_b32 s58, s58, 10')
        a.e('s_add_u32 s56, s56, s58')
        a.e('s_and_b32 s57, s57, 1')
        a.e('s_lshl_b32 s57, s57, 7')
        a.e('s_add_u32 s56, s56, s57')
        a.e(f's_add_u32 s56, s56, {8*MB}')
        a.e('buffer_load_dword v161, v164, s[40:43], s56 offen')
        npt += 3
    a.e('v_lshrrev_b32 v3, 3, v2')
    a.e('v_sub_u32 v3, 7, v3')
    a.e('v_lshlrev_b32 v3, 14, v3')
    a.e('v_and_b32 v5, 7, v2')
    a.e('v_lshl_add_u32 v3, v5, 4, v3')
    a.e('s_lshl_b32 s56, s84, 7')
    a.e('v_add_u32 v3, s56, v3')
    a.e('v_and_b32 v5, 15, v2')
    a.e('v_lshrrev_b32 v6, 4, v2')
    a.e('v_mov_b32 v28, 0')
    a.e('v_mov_b32 v29, 0')
    a.e('v_lshlrev_b32 v7, 3, v2')
    a.e('v_add_u32 v7, s88, v7')
    a.e('ds_write_b64 v7, v[28:29] offset:4096')
    a.e('v_min_u32 v30, 7, v2')
    a.e('v_lshlrev_b32 v30, 2, v30')
    a.e('v_add_u32 v30, s88, v30')
    a.e('ds_write_b32 v30, v28 offset:4608')
    a.e('v_add_u32 v31, 1, v5')
    a.e('v_and_b32 v32, 1, v31')
    a.e('v_sub_u32 v31, v31, v32')
    a.e('v_lshl_add_u32 v31, v6, 3, v31')
    a.e('v_lshlrev_b32 v31, 1, v31')
    a.e('v_mul_u32_u24 v32, 4160, v32')
    a.e('v_add3_u32 v31, v31, v32, s88')
    VA, VB, ACC = 36, 40, 44
    for j in range(4):
        a.e(f'v_add_u32 v{VA+j}, {4608+1024*j}, v31')
    a.e('v_lshlrev_b32 v32, 5, v5')
    a.e('v_lshlrev_b32 v33, 4, v6')
    a.e('v_sub_u32 v33, v33, v32')
    a.e('v_add_u32 v33, s88, v33')
    a.e(f'v_add_u32 v{VB}, 480, v33')
    a.e('v_add_u32 v7, s88, v4')
    for r in range(32):
        a.e(f'v_mov_b32 v{ACC+r}, 0')
    T = 76
    a.e(f's_waitcnt vmcnt({nx_+npt+nc0})')
    for j in range(4):
        d = KD + 4 * j
        if j == 0:
            a.e(f'v_readfirstlane_b32 s56, v{d}')
        a.e(f'ds_write_b128 v7, v[{d}:{d+3}] offset:{4608+32+1024*j}')
        for q in range(4):
            hi = d + q + 1 if q < 3 else KX + j
            a.e(f'v_alignbit_b32 v{T+4*j+q}, v{hi}, v{d+q}, 16')
        a.e(f'ds_write_b128 v7, v[{T+4*j}:{T+4*j+3}] offset:{4608+4160+32+1024*j}')
    a.e('s_lshl_b32 s56, s56, 16')
    a.e('v_cmp_le_u32 vcc, 7, v2')
    a.e('v_mov_b32 v32, s56')
    a.e('s_nop 0')
    a.e('v_cndmask_b32 v32, v28, v32, vcc')
    a.e(f'ds_write_b32 v30, v32 offset:{4608+4160}')
    FA = [96, 160]; FB = [128, 192]
    def rdA(r, buf):
        L = []
        for mq in range(8):
            o = 128 * (mq & 1) + 16 * r
            f = FA[buf] + 4 * mq
            L.append(f'ds_read2_b32 v[{f}:{f+1}], v{VA+(mq>>1)} offset0:{o} offset1:{o+1}')
            L.append(f'ds_read2_b32 v[{f+2}:{f+3}], v{VA+(mq>>1)} offset0:{o+2} offset1:{o+3}')
        return L
    def rdB(r, buf):
        return [f'ds_read_b128 v[{FB[buf]+4*d}:{FB[buf]+4*d+3}], v{VB} offset:{512*(7-d)+64*r}' for d in range(8)]
    a.e('s_waitcnt lgkmcnt(0)')
    a.e('s_bitcmp1_b32 s85, 0')
    a.e('s_cselect_b32 s56, 0, 16')
    a.e('s_lshl_b32 s89, s89, s56')
    a.e('s_and_b32 s89, s89, 0xffff0000')
    for l in rdA(0, 0): a.e(l)
    a.e('v_and_b32 v34, 31, v2')
    a.e(f'v_lshlrev_b32 v34, {fsh()}, v34')
    a.e(f's_lshl_b32 s56, s82, {5+fsh()}')
    wait_flags(a, 56, 34, 35)
    stamp(a, 3)
    a.e('s_lshl_b32 s56, s82, 19')
    UR = 8
    for i in range(4):
        a.e(f's_add_u32 s57, s56, {(24-8*i)*16384:#x}')
        a.e(f'buffer_load_dwordx4 v[{UR+4*i}:{UR+4*i+3}], v3, s[48:51], s57 offen sc1')
    npf = 0; wpl = []
    if XPOS == 2:
        x_loads(); npf += 4
    if opt('wpf', 1):
        RS = opt('rs', 0)
        if RS:
            a.e('s_mul_i32 s56, s2, 28672')
            a.e(f's_and_b32 s57, s{S_W}, 1')
            a.e('s_mul_i32 s57, s57, 14336')
            a.e('s_add_u32 s56, s56, s57')
            a.e(f's_cmp_ge_u32 s{S_W}, 2')
            a.e('s_cselect_b32 s58, 14336, 0')
            a.e('v_lshlrev_b32 v41, 7, v2')
            a.e('v_add_u32 v43, 8192, v41')
            for n_, P_ in enumerate((P_W1, P_W3, P_W2)[:opt('wpn', 3)]):
                sd = (40, 32, 44)[n_]
                srd(a, sd, P_, None, 0, 56)
                a.e(f's_mov_b32 s{sd+2}, s58')
                for v_ in (41, 43):
                    wpl.append(lambda sd=sd, v_=v_: a.e(f'buffer_load_dword v42, v{v_}, s[{sd}:{sd+3}], 0 offen'))
        else:
            a.e('s_mul_i32 s56, s2, 28672')
            a.e(f's_mul_i32 s57, s{S_W}, 7168')
            a.e('s_add_u32 s56, s56, s57')
            a.e('v_lshlrev_b32 v41, 7, v2')
            for n_, P_ in enumerate((P_W1, P_W3, P_W2)[:opt('wpn', 2)]):
                sd = (40, 32, 44)[n_]
                if n_ == 0 and WP0:
                    if WP0 == 4: continue
                    a.e(f's_mul_i32 s58, s2, {7168*(4-WP0)}')
                    a.e(f's_mul_i32 s57, s{S_W}, {1792*(4-WP0)}')
                    a.e('s_add_u32 s58, s58, s57')
                    srd(a, sd, P_, 1792 * (4 - WP0), 1835008 * WP0, 58)
                else:
                    srd(a, sd, P_, 7168, 0, 56)
                wpl.append(lambda sd=sd: a.e(f'buffer_load_dword v42, v41, s[{sd}:{sd+3}], 0 offen'))
    g1 = G1(a)
    g2 = G2(a)
    g2.front_setup()
    g1.setup_dma()
    for i in range(4):
        a.e(f's_waitcnt vmcnt({npf+3-i})')
        a.e(f'ds_write_b128 v7, v[{UR+4*i}:{UR+4*i+3}] offset:{1024*i}')
    a.e('s_waitcnt lgkmcnt(0)')
    for l in rdB(0, 0): a.e(l)
    stamp(a, 4)
    LK = Lin(a)
    g1e = [[(lambda l=l: a.e(l)) for l in grp] for grp in g1.early_dma()]
    def grp(fs): return lambda: [f() for f in fs]
    g1e = [grp(x) for x in g1e]
    fillr = {r: [] for r in range(8)}
    p01 = g2.fD([(0, 2), (1, 3)])
    nk01 = 0
    NF0 = opt('nf0', 4)
    if not RS and NF0 >= 2:
        fillr[6] += p01[:5]; fillr[7] += p01[5:]; nk01 = 8
    for n_, f_ in enumerate(wpl): fillr[opt('wpr', 1 if RS else 2) + n_ * opt('wps', 1 if RS else 2)].append(f_)
    UE = 8
    for r in range(8):
        buf = r & 1
        if r < 7:
            A_, B_ = rdA(r + 1, buf ^ 1), rdB(r + 1, buf ^ 1)
            nxt = []
            for x in range(8): nxt += [B_[x], A_[2 * x], A_[2 * x + 1]]
        else:
            a.e('v_lshlrev_b32 v32, 5, v5')
            a.e('v_lshl_add_u32 v32, v6, 3, v32')
            a.e(f'v_sub_u32 v34, {4088-3584}, v32')
            a.e('v_add_u32 v34, s88, v34')
            a.e('v_add_u32 v35, s88, v32')
            nxt = [f'ds_read_b64 v[{UE+2*c}:{UE+2*c+1}], v34 offset:{512*(7-c)}' for c in range(8)]
        a.e('s_waitcnt lgkmcnt(0)')
        fl = list(fillr[r]); evr = 36 // max(1, len(fl))
        k = 0
        for mq in range(8):
            for d in range(8 - mq):
                c = mq + d
                fa = FA[buf] + 4 * mq; fb = FB[buf] + 4 * d
                a.e(f'v_mfma_f32_16x16x32_bf16 v[{ACC+4*c}:{ACC+4*c+3}], v[{fa}:{fa+3}], v[{fb}:{fb+3}], v[{ACC+4*c}:{ACC+4*c+3}]')
                if k < len(nxt):
                    a.e(nxt[k])
                if fl and k % evr == evr - 1: fl.pop(0)()
                k += 1
        assert not fl, (r, len(fl))
    a.e('s_waitcnt lgkmcnt(0)')
    stamp(a, 5)
    a.e('L_kbcode:')
    X = 96
    for c in range(8):
        unpack(a, X + 4 * c + 3, X + 4 * c + 2, UE + 2 * c)
        unpack(a, X + 4 * c + 1, X + 4 * c + 0, UE + 2 * c + 1)
    for c in range(8):
        for r in range(4):
            a.e(f'v_fma_f32 v{X+4*c+r}, v{X+4*c+r}, s89, v{ACC+4*c+r}')
        a.e(f'v_cvt_pk_bf16_f32 v{UE+2*c}, v{X+4*c}, v{X+4*c+1}')
        a.e(f'v_cvt_pk_bf16_f32 v{UE+2*c+1}, v{X+4*c+2}, v{X+4*c+3}')
        a.e(f'ds_write_b64 v35, v[{UE+2*c}:{UE+2*c+1}] offset:{4608+512*c}')
    a.flush_inject()
    LIN[0] = None
    a.e('v_lshlrev_b32 v32, 2, v0')
    a.e(f'v_add_u32 v32, {LDS_KA}, v32')
    YL_ = opt('yl', 1)
    a.e(f'v_lshrrev_b32 v33, {2+YL_}, v0')
    a.e(f'v_lshlrev_b32 v33, {14+YL_}, v33')
    a.e(f'v_and_b32 v34, {7 if YL_ else 3}, v0')
    a.e('v_lshl_add_u32 v33, v34, 4, v33')
    a.e(f's_lshl_b32 s56, s86, {6+YL_}')
    a.e('s_mov_b32 s57, 0x05040100')
    a.e('s_mov_b32 s58, 0x07060302')
    srd(a, 36, P_WS, 4 * MB, WS_Y2)
    a.e(f's_cmp_ge_u32 s{S_W}, 2')
    a.e('s_waitcnt lgkmcnt(0)')
    a.e('s_barrier')
    if RS: a.e('s_cbranch_scc1 L_y2skip')
    Y = 96; O = 128
    NP = 8 if RS else 4
    LY = Lin(a)
    def yrd(P):
        for ch in range(4):
            LY.l(P, f'ds_read_b32 v{Y+4*P+ch}, v32 offset:{ch*KA_REG+4608+4096//NP*P}')
    for P in range(4): yrd(P)
    for P in range(NP):
        LY.wait(lg=(P,))
        if P + 4 < NP: yrd(P + 4)
        y = Y + 4 * P; o = O + 4 * P
        a.e(f'v_perm_b32 v{o}, v{y+1}, v{y}, s57')
        a.e(f'v_perm_b32 v{o+1}, v{y+3}, v{y+2}, s57')
        a.e(f'v_perm_b32 v{o+2}, v{y+1}, v{y}, s58')
        a.e(f'v_perm_b32 v{o+3}, v{y+3}, v{y+2}, s58')
        a.e(f'buffer_store_dwordx4 v[{o}:{o+3}], v33, s[36:39], s56 offen sc1')
        if P < NP - 1:
            a.e(f's_add_u32 s56, s56, {256//NP*16384:#x}')
    LIN[0] = None
    if RS: a.e('L_y2skip:')
    stamp(a, 6)
    XU = [8, 24]; TT = [40, 56]; MM = [72, 74]; RR = [76, 78]; C = 80; YU = [100, 116]; XM = [140, 156]; SS = [172, 174]
    if XPOS == 2: a.e(f's_waitcnt vmcnt({len(wpl) + (0 if RS else nk01 + 4)})')
    F45 = opt('f45', 0)
    if F45: a.inject(g2.fD([(2, 0), (3, 1)]), 3)
    for r in range(2):
        for q in range(8):
            unpack(a, XU[r] + 2 * q, XU[r] + 2 * q + 1, XP + 8 * r + q)
    a.flush_inject()
    a.e(f'v_mov_b32 v{C}, 0x3a800000')
    a.e(f's_lshl_b32 s87, s2, {f1sh()}')
    a.e(f's_add_u32 s87, s87, {F1}')
    def w1():
        if RS:
            a.e(f's_bitcmp1_b32 s{S_W}, 1')
            a.e('s_cbranch_scc1 L_y2nw')
            a.e('s_waitcnt vmcnt(0)')
            a.e('L_y2nw:')
            a.e(f's_cmp_eq_u32 s{S_W}, 0')
        else:
            a.e(f's_waitcnt vmcnt({8 if F45 else 0})')
    signal(a, 87, 82, waitfn=w1)
    if RS:
        a.inject(g1e[:10] + p01 + g2.fD([(2, 0), (3, 1)]), 4)
    else:
        if NF0 >= 2: g2.fM([(0, 2), (1, 3)])
        a.inject(g1e[:10] + ([] if F45 or NF0 < 4 else g2.fD([(2, 0), (3, 1)])), 12 if F45 or NF0 < 4 else 6)
    ln2(a, XU, TT, MM, RR, C, XM)
    a.flush_inject()
    a.e('v_lshlrev_b32 v5, 7, v2')
    a.e(f'v_lshlrev_b32 v139, {7+YL_}, v2')
    a.e(f'v_add_u32 v6, {0x2000 << YL_:#x}, v139')
    if YL_:
        a.e('s_lshr_b32 s82, s91, 1')
        a.e('s_lshl_b32 s82, s82, 15')
        a.e('s_and_b32 s83, s91, 1')
        a.e('s_lshl_b32 s83, s83, 6')
        a.e('s_add_u32 s82, s82, s83')
    else:
        a.e('s_lshl_b32 s82, s91, 14')
    if opt('yd', 0):
        assert YL_
        a.e(f's_lshl_b32 s83, s{S_W}, 13')
        a.e('s_add_u32 s82, s82, s83')
        a.e('v_lshrrev_b32 v176, 4, v2')
        a.e('v_xor_b32 v176, v176, v2')
        a.e('v_and_b32 v176, 3, v176')
        a.e('v_lshlrev_b32 v176, 4, v176')
        a.e('v_lshrrev_b32 v177, 2, v2')
        a.e('v_lshl_add_u32 v176, v177, 7, v176')
        for i in range(1, 4):
            a.e(f'v_add_u32 v{176+i}, {1024*i}, v176')
        a.e(f's_lshl_b32 s83, s{S_W}, 12')
        a.e(f's_add_u32 m0, s83, {LDS_KA + 16384}')
        a.e('v_bfe_u32 v180, v2, 1, 2')
        a.e(f'v_xor_b32 v180, s{S_W}, v180')
        a.e('v_lshl_add_u32 v180, v180, 4, v5')
        a.e(f'v_add_u32 v180, {LDS_KA + 16384}, v180')
    else:
        a.e(f's_lshl_b32 s83, s{S_W}, 4')
        a.e('s_add_u32 s82, s82, s83')
    srd(a, 40, P_WS, 4 * MB, WS_H)
    srd(a, 44, P_WS, 4 * MB, WS_HNF)
    a.e('v_and_b32 v7, 7, v2')
    a.e(f's_lshl_b32 s83, s{S_W}, 1')
    a.e('v_xor_b32 v132, s83, v7')
    a.e('v_lshl_add_u32 v132, v132, 4, v5')
    a.e(f'v_add_u32 v132, {LDS_KA}, v132')
    a.e('v_xor_b32 v133, 16, v132')
    a.e('v_lshrrev_b32 v134, 3, v2')
    a.e('v_xor_b32 v135, v134, v7')
    a.e('v_lshlrev_b32 v135, 4, v135')
    a.e('v_lshl_add_u32 v135, v134, 7, v135')
    a.e(f's_lshl_b32 s83, s{S_W}, 12')
    a.e(f's_add_u32 s83, s83, {LDS_KA}')
    a.e('v_add_u32 v135, s83, v135')
    a.e('v_lshrrev_b32 v136, 5, v2')
    a.e('v_lshlrev_b32 v136, 12, v136')
    a.e('v_bfe_u32 v137, v2, 3, 2')
    a.e('v_lshl_add_u32 v136, v137, 8, v136')
    a.e('v_lshl_add_u32 v136, v7, 4, v136')
    a.e('s_lshr_b32 s84, s91, 3')
    a.e('s_lshl_b32 s84, s84, 17')
    a.e('s_bfe_u32 s85, s91, 0x20001')
    a.e('s_lshl_b32 s85, s85, 10')
    a.e('s_add_u32 s84, s84, s85')
    a.e('s_and_b32 s85, s91, 1')
    a.e('s_lshl_b32 s85, s85, 7')
    a.e('s_add_u32 s84, s84, s85')
    a.e(f's_lshl_b32 s85, s{S_W}, 15')
    a.e('s_add_u32 s84, s84, s85')
    a.e(f's_mov_b32 s85, {F1}')
    a.e('s_waitcnt lgkmcnt(0)')
    stamp(a, 7)
    a.e(f'v_lshlrev_b32 v138, {4 if f1sh() == 2 else f1sh()}, v2')
    wait_flags(a, 85, 138, 128, n=256)
    stamp(a, 8)
    YL = 84
    YD = opt('yd', 0)
    if YD:
        for i in range(4):
            a.e(f'buffer_load_dwordx4 v{176+i}, s[36:39], s82 offen offset:{1024*i} sc1 lds')
    else:
        a.e(f'buffer_load_dwordx4 v[{YL}:{YL+3}], v139, s[36:39], s82 offen sc1')
        a.e(f'buffer_load_dwordx4 v[{YL+4}:{YL+7}], v139, s[36:39], s82 offen offset:{64 << YL_} sc1')
        a.e(f'buffer_load_dwordx4 v[{YL+8}:{YL+11}], v6, s[36:39], s82 offen sc1')
        a.e(f'buffer_load_dwordx4 v[{YL+12}:{YL+15}], v6, s[36:39], s82 offen offset:{64 << YL_} sc1')
    a.e('s_waitcnt vmcnt(4)')
    if NF0 == 4: g2.fM(([(0, 2), (1, 3)] if RS else []) + [(2, 0), (3, 1)])
    if YD:
        a.e('s_waitcnt vmcnt(0)')
        a.e('s_barrier')
        a.e(f'ds_read_b128 v[{YL}:{YL+3}], v180')
        a.e(f'ds_read_b128 v[{YL+4}:{YL+7}], v180 offset:64')
        a.e(f'ds_read_b128 v[{YL+8}:{YL+11}], v180 offset:8192')
        a.e(f'ds_read_b128 v[{YL+12}:{YL+15}], v180 offset:8256')
    for cgi in range(4):
        a.e(f's_waitcnt {"lgkm" if YD else "vm"}cnt({3-cgi})')
        for r in range(2):
            for e in range(2):
                u = YU[r] + 4 * cgi + 2 * e
                unpack(a, u, u + 1, YL + 4 * cgi + 2 * r + e)
        for r in range(2):
            for e in range(2):
                u = YU[r] + 4 * cgi + 2 * e; x = XM[r] + 4 * cgi + 2 * e; t = TT[r] + 4 * cgi + 2 * e
                a.e(f'v_pk_fma_f32 v[{x}:{x+1}], v[{t}:{t+1}], v[{u}:{u+1}], v[{x}:{x+1}]')
        for r in range(2):
            for e in range(2):
                x = XM[r] + 4 * cgi + 2 * e
                if cgi == 0 and e == 0:
                    a.e(f'v_pk_mul_f32 v[{RR[r]}:{RR[r]+1}], v[{x}:{x+1}], v[{x}:{x+1}]')
                else:
                    a.e(f'v_pk_fma_f32 v[{RR[r]}:{RR[r]+1}], v[{x}:{x+1}], v[{x}:{x+1}], v[{RR[r]}:{RR[r]+1}]')
            x = XM[r] + 4 * cgi
            if cgi == 0: a.e(f'v_pk_add_f32 v[{SS[r]}:{SS[r]+1}], v[{x}:{x+1}], v[{x+2}:{x+3}]')
            else:
                a.e(f'v_pk_add_f32 v[{SS[r]}:{SS[r]+1}], v[{x}:{x+1}], v[{SS[r]}:{SS[r]+1}]')
                a.e(f'v_pk_add_f32 v[{SS[r]}:{SS[r]+1}], v[{x+2}:{x+3}], v[{SS[r]}:{SS[r]+1}]')
    if opt('kbst'): stamp(a, 16)
    for r in range(2):
        a.e(f'v_add_f32 v{SS[r]}, v{SS[r]}, v{SS[r]+1}')
        a.e(f'v_add_f32 v{RR[r]}, v{RR[r]}, v{RR[r]+1}')
    fl_ = []
    for r in range(2):
        for q in range(8):
            u = YU[r] + 2 * q; x = XU[r] + 2 * q; t = TT[r] + 2 * q
            fl_.append(f'v_pk_fma_f32 v[{x}:{x+1}], v[{t}:{t+1}], v[{u}:{u+1}], v[{x}:{x+1}]')
    for r in range(2):
        for q in range(8):
            fl_.append(f'v_cvt_pk_bf16_f32 v{XP+8*r+q}, v{XU[r]+2*q}, v{XU[r]+2*q+1}')
    for mod in ('row_shr:1 row_mask:0xf bank_mask:0xf bound_ctrl:0', 'row_shr:2 row_mask:0xf bank_mask:0xf bound_ctrl:0',
                'row_shr:4 row_mask:0xf bank_mask:0xf bound_ctrl:0', 'row_shr:8 row_mask:0xf bank_mask:0xf bound_ctrl:0',
                'row_bcast:15 row_mask:0xa bank_mask:0xf', 'row_bcast:31 row_mask:0xc bank_mask:0xf'):
        for v in (SS[0], SS[1], RR[0], RR[1]):
            a.e(f'v_add_f32_dpp v{v}, v{v}, v{v} {mod}')
    for i, v in enumerate((SS[0], SS[1], RR[0], RR[1])):
        a.e(f'v_readlane_b32 s{56+i}, v{v}, 63')
    def both(f):
        for r in range(2): f(r)
        if fl_: a.e(fl_.pop(0))
        if fl_: a.e(fl_.pop(0))
    def rbf(v):
        a.e(f'v_cvt_pk_bf16_f32 v{v}, v{v}, v{v}')
        a.e(f'v_and_b32 v{v}, s{S_MASK}, v{v}')
    both(lambda r: a.e(f'v_mul_f32 v{SS[r]}, s{56+r}, v{C}'))
    both(lambda r: a.e(f'v_mul_f32 v{RR[r]}, s{58+r}, v{C}'))
    both(lambda r: a.e(f'v_fma_f32 v{RR[r]}, -v{SS[r]}, v{SS[r]}, v{RR[r]}'))
    both(lambda r: a.e(f'v_max_f32 v{RR[r]}, 0, v{RR[r]}'))
    both(lambda r: rbf(RR[r]))
    both(lambda r: a.e(f'v_add_f32 v{RR[r]}, 0x3727c5ac, v{RR[r]}'))
    both(lambda r: rbf(RR[r]))
    both(lambda r: a.e(f'v_sqrt_f32 v{RR[r]}, v{RR[r]}'))
    both(lambda r: a.e(f'v_add_f32 v{SS[r]}, v{SS[r]}, v{MM[r]}'))
    both(lambda r: rbf(RR[r]))
    both(lambda r: a.e(f'v_rcp_f32 v{RR[r]}, v{RR[r]}'))
    both(lambda r: rbf(SS[r]))
    if opt('hs', 0): both(lambda r: a.e(f'v_mul_f32 v{RR[r]}, 0x3fb8aa3b, v{RR[r]}'))
    both(lambda r: a.e(f'v_sub_f32 v{SS[r]}, v{MM[r]}, v{SS[r]}'))
    both(lambda r: a.e(f'v_mul_f32 v{SS[r]}, v{SS[r]}, v{RR[r]}'))
    nh = len(fl_)
    for q in range(8):
        for r in range(2):
            x = XM[r] + 2 * q
            a.e(f'v_pk_fma_f32 v[{TT[r]+2*q}:{TT[r]+2*q+1}], v[{x}:{x+1}], v[{RR[r]}:{RR[r]+1}], v[{SS[r]}:{SS[r]+1}] op_sel_hi:[1,0,0]')
    for r in range(2):
        for q in range(8):
            a.e(f'v_cvt_pk_bf16_f32 v{YL+8*r+q}, v{TT[r]+2*q}, v{TT[r]+2*q+1}')
        for hh in range(2):
            a.e(f'ds_write_b128 v{132+r}, v[{YL+8*r+4*hh}:{YL+8*r+4*hh+3}] offset:{8192*hh}')
    for t_ in fl_: a.e(t_)
    a.e('s_waitcnt lgkmcnt(0)')
    a.e('s_barrier')
    for i in range(4):
        a.e(f'ds_read_b128 v[{100+4*i}:{103+4*i}], v135 offset:{1024*i}')
    for i in range(4):
        a.e(f's_waitcnt lgkmcnt({3-i})')
        a.e(f'buffer_store_dwordx4 v[{100+4*i}:{103+4*i}], v136, s[44:47], s84 offen sc1')
        if i < 3: a.e('s_add_u32 s84, s84, 8192')
    stamp(a, 9)
    a.e(f's_lshl_b32 s87, s91, {fsh()}')
    a.e(f's_add_u32 s87, s87, {F2}')
    g2.front_save()
    g1.pre_setup(g2.fD([(4, 0), (5, 1)], dv=28) if F45 else [])
    signal(a, 87, 4, waitfn=lambda: a.e(f's_waitcnt vmcnt({8 if F45 else 0})'))
    g2.NF = 8 if F45 else NF0 + 2
    def mv45():
        if not F45: return
        a.e('v_add_u32 v4, s73, v7')
        a.e('v_xor_b32 v5, 32, v4')
        a.e('s_waitcnt vmcnt(8)')
        g2.fM([(4, 0), (5, 1)], base=4)
    g1.hook = mv45
    g1.main()
    g1.epilogue(g2)
    g2.main()
    a.e(f's_or_b32 s57, s2, s{S_W}')
    a.e('s_cmp_lg_u32 s57, 0')
    a.e('s_cbranch_scc1 L_clean_skip')
    srd(a, 32, P_DBG, 256)
    a.e('v_mov_b32 v20, 0')
    a.e('s_mov_b64 exec, 1')
    a.e('buffer_store_dword v20, v20, s[32:35], 0 offen sc1')
    a.e('s_mov_b64 exec, -1')
    a.e('L_clean_skip:')
    stamp_out(a, NSTAMP)
    a.e('L_end:')
    a.e('s_endpgm')

G1_STG = 32768
class G1:
    TM, NW, DPW, ND = 4, 4, 8, 4
    ACC, WF, TF, DV, VT, VR, VL = 32, 0, 28, 8, 16, 17, 18
    DVE = 240
    def __init__(s, a): s.a = a
    def setup_dma(s):
        a = s.a
        a.e('s_and_b32 s56, s81, 1')
        a.e('s_lshl_b32 s56, s56, 1')
        a.e('s_movk_i32 s57, 4682')
        a.e('s_movk_i32 s58, 7168')
        a.e('v_mov_b32 v76, 0x80000000')
        a.e('v_subrev_u32 v77, 8, v2')
        for src, dst in ((2, 78), (77, 79)):
            a.e(f'v_cmp_gt_u32 vcc, 56, v{src}')
            a.e(f'v_mul_u32_u24 v80, s57, v{src}')
            a.e('v_lshrrev_b32 v80, 16, v80')
            a.e('v_mul_u32_u24 v81, 14, v80')
            a.e(f'v_sub_u32 v81, v{src}, v81')
            a.e('v_add_u32 v81, s56, v81')
            a.e('v_subrev_u32 v82, 14, v81')
            a.e('v_min_u32 v81, v81, v82')
            a.e('v_mul_u32_u24 v80, s58, v80')
            a.e('v_lshl_add_u32 v80, v81, 4, v80')
            a.e(f'v_cndmask_b32 v{dst}, v76, v80, vcc')
        for i in range(8):
            pat = 79 if (i >> 1) & 1 else 78
            c = i * 4 * 7168 - 1024 * (i & 3)
            a.e(f'v_add_u32 v{s.DVE+i}, {c}, v{pat}' if c else f'v_mov_b32 v{s.DVE+i}, v{pat}')
        a.e(f's_and_b32 s56, s{S_W}, 1')
        a.e(f's_lshr_b32 s57, s{S_W}, 1')
        a.e(f's_mul_i32 s97, s56, {8*4*7168}')
        a.e('s_mov_b32 s100, 458752')
        a.e('s_lshl_b32 s98, s57, 14')
        a.e('s_lshl_b32 s56, s56, 13')
        a.e('s_add_u32 s98, s98, s56')
        a.e('s_mul_i32 s56, s81, 224')
        a.e('s_cmp_eq_u32 s57, 0')
        a.e(f's_cselect_b32 s52, s{P_W1}, s{P_W3}')
        a.e(f's_cselect_b32 s53, s{P_W1+1}, s{P_W3+1}')
        srd(a, 52, 52, None, 0, 56)
        a.e('s_sub_u32 s54, 7340032, s56')
    def m0set(s, i): return f's_add_u32 m0, s98, {4096*(i//4)}' if i else 's_mov_b32 m0, s98'
    def dma(s, i, base): return f'buffer_load_dwordx4 v{base+i}, s[52:55], s97 offen offset:{1024*(i&3)}' + ['', ' sc1', ' nt', ' sc0'][opt('wfl')] + ' lds'
    def dma_adv(s): return ['s_add_u32 s97, s97, s100', f's_add_u32 s98, s98, {G1_STG}', 's_and_b32 s98, s98, 0x1ffff']
    def early_dma(s):
        out = []
        for st in range(2):
            for i in range(8):
                if i % 4 == 0: out.append([s.m0set(i)])
                out.append([s.dma(i, s.DVE)] + (s.dma_adv() if i == 7 else []))
        return out
    def tok(s, k, tm):
        f = s.TF + 4 * (4 * (k % s.ND) + tm)
        return f'buffer_load_dwordx4 a[{f}:{f+3}], v{s.VT}, s[32:35], s82 offen offset:{tm*1024}' + (' sc1' if opt('t1sc', 1) else '')
    def rd(s, ph, t):
        j, mat = (ph & 3) >> 1, ph & 1
        return [f'ds_read_b64_tr_b16 a[{s.WF+4*t+2*h}:{s.WF+4*t+2*h+1}], v{s.VR} offset:{8192*j+1024*h+32*t+16384*mat}' for h in range(2)]
    def pre_setup(s, inj):
        a = s.a
        for i in range(8): a.e(f'v_mov_b32 v{s.DV+i}, v{s.DVE+i}')
        for i in range(16): a.e(f'v_accvgpr_write_b32 a{92+i}, v{224+i}')
        a.e(f'v_lshlrev_b32 v{s.VT}, 4, v2')
        a.e('v_lshrrev_b32 v4, 4, v2')
        a.e('v_lshlrev_b32 v4, 11, v4')
        a.e('v_bfe_u32 v5, v2, 4, 1')
        a.e('v_lshl_add_u32 v4, v5, 7, v4')
        a.e('v_bfe_u32 v6, v2, 2, 2')
        a.e('v_mul_u32_u24 v5, 224, v6')
        a.e('v_and_b32 v6, 3, v2')
        a.e('v_lshl_add_u32 v5, v6, 3, v5')
        a.e(f'v_add_u32 v{s.VL}, v4, v5')
        a.e(f'v_mov_b32 v{s.VR}, v{s.VL}')
        a.e('v_and_b32 v19, 31, v2')
        a.e(f'v_lshlrev_b32 v19, {fsh()}, v19')
        a.e('s_lshl_b32 s56, s80, 2')
        a.e(f's_add_u32 s56, s56, s{S_W}')
        a.e('s_lshl_b32 s57, s56, 17')
        srd(a, 32, P_WS, 131072, WS_HNF, 57)
        hf_base(a, 57, 80, S_W, 58)
        srd(a, 36, P_WS, 4 * 114688, 0, 57)
        a.e('s_and_b32 s58, s81, 1')
        a.e('s_mul_i32 s85, s81, 7')
        a.e('s_add_u32 s85, s85, s58')
        a.e('s_lshl_b32 s85, s85, 9')
        a.e('s_movk_i32 s86, 3072')
        a.e('s_cmp_eq_u32 s58, 0')
        a.e(f's_cselect_b32 s86, s86, {0xfffffe00 if opt("hl", 1) else 0xfffffc08:#x}')
        a.e('s_add_u32 s86, s86, s85')
        a.inject(inj, 16)
        for r in range(224):
            a.e(f'v_mov_b32 v{s.ACC+r}, 0')
        a.flush_inject()
    def kof(s, s_, P): return 2 * s_ + (-1, 0, 0, 1)[P]
    def ev_ins(s, e):
        L = []
        if e[0] == 'D':
            if e[2] % 4 == 0: L.append(s.m0set(e[2]))
            L.append(s.dma(e[2], s.DV))
            if e[2] == 7: L += s.dma_adv()
        elif e[0] == 'Z':
            fl = ['', ' sc1'][opt('ps', 0) - 1]
            u = e[2]
            if u < 3: L = [f'buffer_store_dwordx4 v[24:27], v{s.VT}, s[36:39], s88 offen offset:{1024*u}{fl}']
            else: L = [f'buffer_store_dwordx2 v[24:25], v{s.VT}, s[36:39], s89 offen{fl}', 's_add_u32 s88, s88, 114688', 's_add_u32 s89, s89, 114688']
        elif e[0] == 'Q':
            L = [f'buffer_store_dwordx4 v[24:27], v{s.VT}, s[44:47], s99 offen', 's_add_u32 s99, s99, 1024']
        elif e[0] == 'V':
            L = ['s_mov_b32 m0, s89', 'buffer_load_dwordx4 v28, s[68:71], s72 offen lds', 's_add_u32 s72, s72, 32768', 's_add_u32 s89, s89, 1024']
        elif e[0] == 'C':
            L = ['global_load_dword v22, v23, s[78:79]', f's_cmp_ge_u32 s84, {opt("cpt", 5)}', 's_cselect_b32 s99, -1, 0', 'v_and_b32 v23, s99, v24']
        elif e[0] == 'Y':
            L = ['buffer_load_dword v22, v21, s[44:47], s88 offen', 's_add_u32 s88, s88, 1024']
        else:
            L.append(s.tok(e[1], e[2]))
            if e[2] == 3: L.append('s_add_u32 s82, s82, 4096')
        return L
    def main(s):
        a = s.a
        S = s.S = Sched()
        for s_ in range(-4, 8):
            for P in range(4):
                S.mark((s_, P))
                k = s.kof(s_, P) + s.ND - 1
                t0 = 2 if P in (0, 2) else 0
                S.add([('D', s_ + 2, 2 * P), ('T', k, t0), ('D', s_ + 2, 2 * P + 1), ('T', k, t0 + 1)])
                if opt('w2y', 0 if opt('rs', 0) else 1) and s_ % 2 == 0 and P == 1: S.add([('Y', s_, 0)])
                if opt('vev', 1) and s_ % 2 == 1 and P == 1: S.add([('V', s_, 0)])
                if opt('cpg', 1) and s_ % 2 == 1 and P == 3: S.add([('C', s_, 0)])
                if opt('psx', 0) and P == 2 and s_ & 1: S.add([('Q', s_, 0)])
                if opt('ps', 0) and P in (1, 3): S.add([('Z', s_, 2 * (s_ & 1) + (P >> 1))])
        vm_bar = min(S.younger(('D', 4), (4, 0)), S.younger(('D', 5), (5, 0)))
        vm_p1 = min(S.younger(('T', 8), (4, 1)), S.younger(('T', 10), (5, 1)))
        vm_p3 = min(S.younger(('T', 9), (4, 3)), S.younger(('T', 11), (5, 3)))
        if opt('w2y', 0 if opt('rs', 0) else 1):
            a.e('s_mul_i32 s56, s2, 28672')
            a.e(f's_mul_i32 s57, s{S_W}, 7168')
            a.e('s_add_u32 s56, s56, s57')
            srd(a, 44, P_W2, 7168, 0, 56)
            a.e('v_min_u32 v21, 8, v2')
            a.e('v_lshlrev_b32 v21, 7, v21')
            a.e('s_mov_b32 s88, 0')
        a.e(f's_lshl_b32 s56, s80, {5+fsh()}')
        a.e(f's_add_u32 s56, s56, {F2}')
        if opt('psx', 0):
            srd(a, 44, P_WS, 8 * MB, WS_XP)
            a.e('s_lshl_b32 s99, s2, 2')
            a.e(f's_add_u32 s99, s99, s{S_W}')
            a.e('s_lshl_b32 s99, s99, 13')
        if opt('ps', 0):
            a.e('s_mov_b32 s88, s85')
            a.e('s_mov_b32 s89, s86')
            for r in range(4): a.e(f'v_mov_b32 v{24+r}, 0')
        a.e('s_add_u32 s89, s73, 98304')
        if opt('cpg', 1):
            a.e('s_getpc_b64 s[78:79]')
            a.e('L_pcg:')
            a.e(f's_lshl_b32 s77, s{S_W}, 13')
            a.e('s_add_u32 s77, s77, L_g1epi-L_pcg')
            a.e('v_lshl_add_u32 v24, v2, 7, s77')
            a.e('v_min_u32 v24, L_end-L_pcg, v24')
            a.e('v_mov_b32 v23, 0')
        a.e('s_mov_b32 s82, 0')
        a.e('s_mov_b32 s83, 0')
        a.e('s_mov_b32 s84, 0')
        stamp(a, 10)
        d1 = [('D', 1, i) for i in range(8)] + [('D', 2, 0), ('D', 2, 1)]
        for e in d1:
            for l in s.ev_ins(e):
                a.e(l)
                if 'm0' in l: a.e('s_nop 0')
        s.hook()
        for t in range(6):
            for l in s.rd(0, t): a.e(l)
        a.e('s_waitcnt lgkmcnt(12)')
        wait_flags(a, 56, 19, 20)
        stamp(a, 11)
        XE = opt('xe', 1)
        pro = d1 + [e for e in S.ev[:S.marks[(0, 1)]] if e[1] >= 0 and e[0] == 'T'] + ([] if XE else [('X', i, 0) for i in range(4)])
        for e in pro[len(d1):]:
            if e[0] == 'X':
                a.e(f'buffer_store_dwordx4 a[{92+4*e[1]}:{95+4*e[1]}], v{s.VT}, s[40:43], s96 offen offset:{1024*e[1]} sc1')
                continue
            for l in s.ev_ins(e):
                a.e(l)
                if 'm0' in l: a.e('s_nop 0')
        act = pro + S.ev[S.marks[(0, 1)]:]
        off = len(pro) - S.marks[(0, 1)]
        s.startup = {}
        need = -1
        for s_ in range(0, 6):
            for P, tags, N in ((0, [('D', s_)], vm_bar), (1, [('T', 2 * s_)], vm_p1), (3, [('T', 2 * s_ + 1)], vm_p3)):
                if (s_, P) == (0, 0): continue
                site = S.marks[(s_, P)] + off
                for tg in tags:
                    idx = [i for i, e in enumerate(act) if e[:2] == tg]
                    if not idx: continue
                    if site - max(idx) - 1 < N: need = max(need, max(idx))
        if need >= 0:
            a.e(f's_waitcnt vmcnt({S.marks[(0, 1)] + off - need - 1})')
        a.e('s_branch L_g1_P1')
        s.snake = 0
        if opt('al', 1):
            a.raw('.p2align 6')
            for _ in range(opt('alo', 0)): a.e('s_nop 0')
        a.e('L_g1_loop:')
        if opt('tw', 1):
            a.e('s_cmp_eq_u32 s84, 7')
            a.e('s_cbranch_scc0 L_g1_notw')
            for i in range(4):
                a.e(f'v_mov_b32 v{s.DV+i}, v{28+i}')
                a.e(f'v_add_u32 v{s.DV+4+i}, 131072, v{28+i}')
            a.e('s_mov_b64 s[52:53], s[68:69]')
            a.e('s_mov_b32 s54, s70')
            a.e('s_add_u32 s97, s72, 32768')
            a.e('s_mov_b32 s100, 262144')
            a.e('L_g1_notw:')
        for s_ in (4, 5):
            a.e(f's_add_u32 s83, s83, {G1_STG}')
            a.e('s_and_b32 s83, s83, 0x1ffff')
            a.e(f's_waitcnt vmcnt({vm_bar})')
            a.e('s_barrier')
            s.phase(s_, 0)
            if s_ == 4: a.e('L_g1_P1:')
            a.e(f's_waitcnt vmcnt({vm_p1})')
            s.phase(s_, 1)
            s.phase(s_, 2)
            a.e(f's_waitcnt vmcnt({vm_p3})')
            s.phase(s_, 3)
        if opt('g1st'):
            a.e('s_memtime s[66:67]')
            a.e('s_min_u32 s64, s84, 3')
            a.e('s_add_u32 s64, s64, 26')
            a.e('s_waitcnt lgkmcnt(0)')
            a.e('s_cmp_lt_u32 s84, 4')
            a.e('s_cselect_b32 s64, s64, 40')
            a.e('s_mov_b32 m0, s64')
            a.e('v_writelane_b32 v1, s66, m0')
        a.e('s_add_u32 s84, s84, 1')
        a.e('s_cmp_lt_u32 s84, 8')
        a.e('s_cbranch_scc1 L_g1_loop')
        a.e('L_g1epi:')
        s.phase(6, 0, last=True)
        stamp(a, 12)
    def phase(s, s_, P, last=False):
        a = s.a; S = s.S
        kbuf = s.kof(s_, P) % s.ND
        mat = (P + 1) & 1
        items = []
        if not last:
            nxt = S.marks[(s_, P + 1)] if P < 3 else S.marks[(s_ + 1, 0)]
            items = [s.ev_ins(e) for e in S.ev[S.marks[(s_, P)]:nxt]]
        slots = [[] for _ in range(7)]
        for p_, it in zip([1, 2, 4, 5, 6], items): slots[p_] = it
        if P == 0 and not last:
            slots[0] = [f'v_add_u32 v{s.VR}, s83, v{s.VL}']
        for t in range(7):
            a.e(f's_waitcnt lgkmcnt({10 if not (last and t) else 12-2*t})')
            R = s.rd(P - 1, 6) if t == 0 else ([] if last else s.rd(P, t - 1))
            X = list(slots[t])
            pre = [x for x in X if 'm0' in x]
            X = [x for x in X if 'm0' not in x]
            gaps = [[] for _ in range(4)]
            if R: gaps[0] = pre + [R[0]]; gaps[1] = [R[1]]
            gaps[2] = X[:1]; gaps[3] = X[1:]
            order = [0, 1, 2, 3]
            if s.snake & 1: order.reverse()
            s.snake += 1
            for n, tm in enumerate(order):
                c = s.ACC + 4 * ((mat * 7 + t) * 4 + tm)
                tf = s.TF + 4 * (4 * kbuf + tm)
                if not opt('g1x') & 1: a.e(f'v_mfma_f32_16x16x32_bf16 v[{c}:{c+3}], a[{s.WF+4*t}:{s.WF+4*t+3}], a[{tf}:{tf+3}], v[{c}:{c+3}]')
                for x in gaps[n]:
                    if opt('g1x') & 2 and x.startswith('ds_'): continue
                    if opt('g1x') & 4 and x.startswith('buffer'): continue
                    a.e(x)
    def epilogue(s, g2):
        a = s.a
        L = Lin(a)
        a.e('s_mov_b32 s58, 0xbfb8aa3b')
        a.e('s_mov_b32 s59, 0xbfb8aa3b')
        if opt('xe', 1):
            for i in range(4):
                a.e(f'buffer_store_dwordx4 a[{92+4*i}:{95+4*i}], v{s.VT}, s[40:43], s96 offen offset:{1024*i} sc1')
        g2.early(L)
        a.e('v_lshlrev_b32 v17, 3, v2')
        T = 8
        k = 0
        for tm in range(4):
            for u in range(4):
                O = (20, 24)[k & 1]
                fill = g2.epi_fill(k)
                def F(n=1):
                    for _ in range(n):
                        if fill: fill.pop(0)()
                tiles = [2 * u, 2 * u + 1] if u < 3 else [6]
                gs = []; us = []
                for t in tiles:
                    gs += [s.ACC + 4 * (t * 4 + tm), s.ACC + 4 * (t * 4 + tm) + 2]
                    us += [s.ACC + 4 * ((7 + t) * 4 + tm), s.ACC + 4 * ((7 + t) * 4 + tm) + 2]
                n = len(gs)
                nins = 9 * n
                cnt = [0]; ev_ = max(1, nins // (len(fill) + 1))
                def V(t):
                    a.e(t); cnt[0] += 1
                    if cnt[0] % ev_ == 0: F(1)
                if opt('hs', 0):
                    for q in range(2 * n): V(f'v_exp_f32 v{T+q}, -v{gs[q//2]+(q&1)}')
                else:
                    for q in range(n): V(f'v_pk_mul_f32 v[{T+2*q}:{T+2*q+1}], v[{gs[q]}:{gs[q]+1}], s[58:59]')
                    for q in range(2 * n): V(f'v_exp_f32 v{T+q}, v{T+q}')
                for q in range(n): V(f'v_pk_add_f32 v[{T+2*q}:{T+2*q+1}], v[{T+2*q}:{T+2*q+1}], 1.0 op_sel_hi:[1,0]')
                for q in range(2 * n): V(f'v_rcp_f32 v{T+q}, v{T+q}')
                for q in range(n): V(f'v_pk_mul_f32 v[{gs[q]}:{gs[q]+1}], v[{gs[q]}:{gs[q]+1}], v[{us[q]}:{us[q]+1}]')
                for q in range(n): V(f'v_pk_mul_f32 v[{T+2*q}:{T+2*q+1}], v[{T+2*q}:{T+2*q+1}], v[{gs[q]}:{gs[q]+1}]')
                for q in range(n): V(f'v_cvt_pk_bf16_f32 v{O+q}, v{T+2*q}, v{T+2*q+1}')
                if u < 3:
                    L.v('st', f'buffer_store_dwordx4 v[{O}:{O+3}], v{s.VT}, s[36:39], s85 offen offset:{1024*u}' + hfl())
                else:
                    L.v('st', f'buffer_store_dwordx2 v[{O}:{O+1}], v{17 if opt("hl", 1) else s.VT}, s[36:39], s86 offen' + hfl())
                F(len(fill))
                k += 1
            if tm < 3:
                a.e('s_add_u32 s85, s85, 114688')
                a.e('s_add_u32 s86, s86, 114688')
        a.e(f's_lshl_b32 s87, s91, {fsh()}')
        a.e(f's_add_u32 s87, s87, {F3}')
        stamp(a, 13)
        a.e('L_g2code:')
        g2.post_epilogue()
        signal(a, 87, 5, waitfn=lambda: L.wait(vm=('st',)), wb=(opt('hfl') == 4))
        stamp(a, 18)

class G2:
    ACC, TF, DV, VT, RJ, TR, V1, VO, VF = 32, 96, 28, 16, 3, 8, 12, 13, 14
    REG = 40960
    def __init__(s, a): s.a = a
    def wreg(s, k, j):
        if k < 16: return 'a', 128 + 8 * k + 4 * j
        if k < 32: return 'a', 8 * (k - 16) + 4 * j
        NB = opt('nb', 12); nv = (160 - 4 * NB) // 8
        if k < 32 + nv: return 'v', 96 + 4 * NB + 8 * (k - 32) + 4 * j
        return 'a', 128 + 8 * (k - 32 - nv) + 4 * j
    def front_setup(s):
        a = s.a
        gm = opt('g2map', 1)
        s.pbit = 2 if gm == 2 else 1
        if gm == 2: a.e('s_bfe_u32 s76, s2, 0x10001')
        else: a.e('s_and_b32 s76, s2, 1')
        a.e('s_lshr_b32 s56, s2, 3')
        if gm:
            if gm == 2:
                a.e('s_andn2_b32 s74, 1, s2')
            else:
                a.e('s_bfe_u32 s74, s2, 0x10001')
            a.e('s_lshl_b32 s74, s74, 3')
            a.e('s_and_b32 s57, s56, 7')
            a.e('s_add_u32 s74, s74, s57')
            a.e('s_bfe_u32 s75, s2, 0x10002')
            a.e('s_lshl_b32 s75, s75, 2')
            a.e('s_lshr_b32 s57, s56, 3')
            a.e('s_add_u32 s75, s75, s57')
        else:
            a.e('s_bfe_u32 s74, s2, 0x20001')
            a.e('s_lshl_b32 s74, s74, 2')
            a.e('s_and_b32 s57, s56, 3')
            a.e('s_add_u32 s74, s74, s57')
            a.e('s_lshr_b32 s75, s56, 2')
        a.e('v_lshrrev_b32 v252, 2, v2')
        a.e('v_lshlrev_b32 v253, 11, v252')
        a.e('v_lshrrev_b32 v254, 3, v2')
        a.e('v_xor_b32 v254, v254, v2')
        a.e('v_and_b32 v254, 2, v254')
        a.e('v_and_or_b32 v254, v2, 1, v254')
        a.e('v_lshl_add_u32 v248, v254, 4, v253')
        for i in range(1, 4):
            a.e(f'v_add_u32 v{248+i}, {i*(32768-1024)}, v248')
        a.e('s_mul_i32 s56, s76, 3670016')
        a.e('s_lshl_b32 s57, s75, 8')
        a.e('s_add_u32 s56, s56, s57')
        a.e(f's_lshl_b32 s57, s{S_W}, 6')
        a.e('s_add_u32 s56, s56, s57')
        srd(a, 68, P_W2, None, 0, 56)
        a.e('s_sub_u32 s70, 7340032, s56')
        a.e('s_mov_b32 s72, 0')
        a.e('v_lshlrev_b32 v252, 6, v252')
        a.e('v_bfe_u32 v253, v2, 4, 1')
        a.e('v_lshl_add_u32 v252, v253, 5, v252')
        a.e('v_and_b32 v253, 3, v2')
        a.e('v_lshl_add_u32 v252, v253, 3, v252')
        a.e(f's_lshl_b32 s73, s{S_W}, 13')
        a.e('s_add_u32 s73, s73, 32768')
        a.e('v_add_u32 v253, s73, v252')
        a.e('v_xor_b32 v254, 32, v253')
    def fcell(s, n): return (32768, 36864, 0, 4096, 98304, 102400)[n]
    def fD(s, pairs, dv=248):
        a = s.a
        out = []
        for c, n in pairs:
            out.append(lambda n=n: a.e(f's_add_u32 m0, s73, {s.fcell(n)}'))
            for i in range(4):
                def f(i=i):
                    a.e(f'buffer_load_dwordx4 v{dv+i}, s[68:71], s72 offen offset:{1024*i} lds')
                    if i == 3: a.e('s_add_u32 s72, s72, 131072')
                out.append(f)
        return out
    def fM(s, pairs, base=253, sub=0):
        a = s.a
        for c, n in pairs:
            for kk in range(2):
                for j in range(2):
                    for h in range(2):
                        r, q = s.wreg(2 * c + kk, j)
                        a.e(f'ds_read_b64_tr_b16 {r}[{q+2*h}:{q+2*h+1}], v{base+j} offset:{s.fcell(n)-sub+2048*kk+1024*h}')
    def front_save(s):
        a = s.a
        for i in range(4): a.e(f'v_mov_b32 v{s.DV+i}, v{248+i}')
        a.e('v_mov_b32 v7, v252')
    def early(s, L):
        a = s.a; s.L = L
        a.e('s_mov_b32 s80, s74')
        a.e('s_mov_b32 s81, s75')
        a.e('s_mov_b32 s82, s76')
        a.e(f's_mul_i32 s98, s{S_W}, {s.REG}')
        a.e(f'v_add_u32 v{s.RJ}, s98, v7')
        a.e(f'v_xor_b32 v{s.RJ+1}, 32, v{s.RJ}')
        a.e('s_add_u32 s56, s73, 98304')
        a.e('v_add_u32 v5, s56, v7')
        a.e('v_xor_b32 v6, 32, v5')
        a.e(f's_waitcnt vmcnt({4 if opt("xe", 1) else 0})')
        L.vm = ['st'] * (4 if opt('xe', 1) else 0)
        mv = [(s.NF - 2, 4, 5, 98304), (s.NF - 1, 5, 5, 98304)]
        if opt('tw', 1):
            a.e('s_mov_b32 s72, s97')
            a.e('s_sub_u32 s56, s73, 32768')
            a.e('v_add_u32 v18, s56, v7')
            a.e('v_xor_b32 v19, 32, v18')
            mv += [(s.NF + i, (2, 3, 0, 1)[i], 18, 0) for i in range(4)]
            s.NF += 4
        items = []
        for c, n, base, sub in mv:
            for kk in range(2):
                for j in range(2):
                    for h in range(2):
                        r, q = s.wreg(2 * c + kk, j)
                        items.append(lambda r=r, q=q, h=h, j=j, n=n, kk=kk, base=base, sub=sub: a.e(f'ds_read_b64_tr_b16 {r}[{q+2*h}:{q+2*h+1}], v{base+j} offset:{s.fcell(n)-sub+2048*kk+1024*h}'))
        s.mv_items = items
        if opt('cpf2', 0): code_pf(a, 'L_g2code', 'L_end', 21, lambda t: L.v('cp', t))
        s.cell = {}
        s.free = list(range(10))
    def D(s, c):
        L = s.L
        def first():
            s.cell[c] = s.free.pop(0)
            L.e(f's_add_u32 m0, s98, {4096*s.cell[c]}')
        out = [first]
        for i in range(4):
            out.append(lambda i=i: L.v(('W', c), f'buffer_load_dwordx4 v{s.DV+i}, s[68:71], s72 offen offset:{1024*i} lds'))
        out.append(lambda: L.e('s_add_u32 s72, s72, 131072'))
        return out
    def M(s, c):
        L = s.L
        out = []
        for kk in range(2):
            for j in range(2):
                for h in range(2):
                    def f(kk=kk, j=j, h=h):
                        r, n = s.wreg(2 * c + kk, j)
                        L.l(('M', c), f'ds_read_b64_tr_b16 {r}[{n+2*h}:{n+2*h+1}], v{s.RJ+j} offset:{4096*s.cell[c]+2048*kk+1024*h}')
                    out.append(f)
        return out
    def Wv(s, c): return [lambda: s.L.wait(vm=(('W', c),))]
    def Fr(s, cs):
        def f():
            s.L.wait(lg0=True)
            for c in cs: s.free.append(s.cell[c])
        return [f]
    def epi_fill(s, k):
        D, M, Wv, Fr = s.D, s.M, s.Wv, s.Fr
        def cat(*xs): return [y for x in xs for y in x]
        s.A = []
        out, s.mv_items = s.mv_items[:12], s.mv_items[12:]
        return out
    def post_epilogue(s):
        a = s.a; L = s.L
        assert not s.A
        s.NA = s.NF + opt('ne', 0) + opt('na', 3)
        if not opt('ne', 0):
            a.e('s_waitcnt lgkmcnt(0)')
            a.e('s_barrier')
        a.inject([f for c in range(s.NF + opt('ne', 0), s.NA) for f in s.D(c)], 4)
        a.e(f'v_mov_b32 v{s.TR}, v{s.VT}')
        for q in range(1, 4):
            a.e(f'v_add_u32 v{s.TR+q}, {q*s.REG}, v{s.VT}')
        a.e(f'v_add_u32 v{s.V1}, {114688-2048}, v{s.VT}')
        for q in range(4):
            a.e(f'v_add_u32 v{24+q}, {q*s.REG}, v17')
        for r in range(64):
            a.e(f'v_mov_b32 v{s.ACC+r}, 0')
        a.flush_inject()
        a.e('s_lshl_b32 s56, s80, 3')
        a.e(f's_lshl_b32 s57, s{S_W}, 1')
        a.e('s_lshl_b32 s58, s82, 2')
        a.e('s_xor_b32 s57, s57, s58')
        a.e('s_add_u32 s56, s56, s57')
        a.e('s_lshr_b32 s83, s56, 4')
        a.e('s_bfe_u32 s84, s56, 0x20002')
        hf_base(a, 57, 83, 84, 58)
        a.e('s_and_b32 s56, s56, 3')
        a.e('s_mul_i32 s56, s56, 114688')
        a.e('s_add_u32 s57, s57, s56')
        a.e('s_mul_i32 s58, s82, 57344')
        a.e('s_add_u32 s57, s57, s58')
        srd(a, 32, P_WS, 114688 + 57344, 0, 57)
        a.e('v_and_b32 v5, 15, v2')
        a.e('v_lshlrev_b32 v5, 11, v5')
        if opt('o4', 1):
            a.e('v_bfe_u32 v6, v2, 4, 1')
            a.e('v_lshl_add_u32 v5, v6, 5, v5')
            a.e('v_lshrrev_b32 v6, 5, v2')
            a.e(f'v_lshl_add_u32 v{s.VO}, v6, 4, v5')
        else:
            a.e('v_lshrrev_b32 v6, 4, v2')
            a.e(f'v_lshl_add_u32 v{s.VO}, v6, 3, v5')
        a.e('s_lshl_b32 s85, s80, 18')
        a.e('s_lshl_b32 s57, s82, 17')
        a.e('s_add_u32 s85, s85, s57')
        a.e('s_lshl_b32 s57, s81, 8')
        a.e('s_add_u32 s85, s85, s57')
        a.e(f's_lshl_b32 s57, s{S_W}, 6')
        a.e('s_add_u32 s85, s85, s57')
        a.e(f'v_and_b32 v{s.VF}, 31, v2')
        a.e(f'v_lshlrev_b32 v{s.VF}, {fsh()}, v{s.VF}')
    def main(s):
        a = s.a; L = s.L
        a.e('s_lshr_b32 s56, s80, 1')
        a.e(f's_lshl_b32 s56, s56, {5+fsh()}')
        a.e(f's_add_u32 s56, s56, {F3}')
        srd(a, 44, P_WS, 4 * MB, WS_H)
        a.e('s_mov_b32 s84, 0')
        L.wait(vm0=True)
        for c in range(s.NF, s.NA):
            for f in s.M(c): f()
        for f in s.Fr(range(s.NF, s.NA)): f()
        wait_flags(a, 56, s.VF, 20)
        stamp(a, 14)
        NS = 28
        slot = {}
        def TD(st):
            slot[st] = s.free.pop(0)
            out = [lambda: L.e(f's_add_u32 m0, s98, {4096*slot[st]}')]
            for i in range(4):
                v = s.VT if i < 2 else s.V1
                out.append(lambda i=i, v=v: L.v(('T', st), f'buffer_load_dwordx4 v{v}, s[32:35], s84 offen offset:{1024*i} sc1 lds'))
            out.append(lambda: (L.e('s_add_u32 s84, s84, 2048'), issued.add(st)))
            return out
        issued = set()
        NB = opt('nb', 12); KV = 32 + (160 - 4 * NB) // 8
        nxt = 0
        wc = opt('wc', 3)
        wfree, s.free = s.free[-wc:], s.free[:-wc]
        for _ in range(opt('t0', 3)):
            fs = TD(nxt); fs[0](); a.e('s_nop 0')
            for f in fs[1:]: f()
            nxt += 1
        L.wait(vm=(('T', 0),))
        a.e('s_barrier')
        X = opt('tx', 12)
        seq = [(k, tm) for k in range(56 - X) for tm in range(8)]
        seq += [(k, tm) for k in range(56 - X, 56) for tm in range(4, 8)]
        nS = len(seq)
        seq += [(k, tm) for k in range(56 - X, 56) for tm in range(4)]
        last_use = {}
        for g_, (k, tm) in enumerate(seq): last_use[k >> 1] = g_
        rdn = [0]
        def RDnext():
            if rdn[0] < 448:
                k, tm = seq[rdn[0]]
                f = s.TF + 4 * (rdn[0] % NB)
                o_ = 4096 * slot[k >> 1] + 2048 * (tm & 1) + 1024 * (k & 1)
                if k % 7 == 3 and opt('hl', 1):
                    L.l(('R', rdn[0]), f'ds_read2st64_b64 v[{f}:{f+3}], v{24+(tm>>1)} offset0:{o_//512} offset1:{o_//512+1}')
                else:
                    L.l(('R', rdn[0]), f'ds_read_b128 v[{f}:{f+3}], v{s.TR+(tm>>1)} offset:{o_}')
                rdn[0] += 1
        for _ in range(NB - 1): RDnext()
        todo = list(range(s.NA, 28)); fly = []; pend = []; freed = set(); vis = 0; wseen = set()
        assert NB - 1 <= 16
        HR = 192
        a.e('s_lshl_b32 s56, s2, 2')
        a.e(f's_add_u32 s56, s56, s{S_W}')
        a.e('s_lshl_b32 s57, s56, 13')
        a.e(f's_xor_b32 s58, s57, {0x8000 * s.pbit:#x}')
        a.e('s_lshl_b32 s56, s56, 6')
        a.e(f's_add_u32 s56, s56, {F4}')
        a.e(f's_xor_b32 s59, s56, {0x100 * s.pbit:#x}')
        srd(a, 40, P_WS, 8 * MB, WS_XP)
        srd(a, 48, P_OUT, 4 * MB)
        a.e('s_add_u32 s87, s57, 4096')
        a.e('s_add_u32 s88, s58, 4096')
        a.e('v_mov_b32 v20, 0')
        a.e(f'v_mov_b32 v21, s{S_NONCE}')
        def flag_store():
            L.wait(vm=('xs',))
            if not opt('kbst'): stamp(a, 16)
            a.e('s_mov_b64 exec, 1')
            L.v('fl', f'buffer_store_dword v21, v20, s[{S_FLG}:{S_FLG+3}], s56 offen sc1')
            a.e('s_mov_b64 exec, -1')
        BP = opt('bp', 1)
        def xstores():
            out = []
            if BP:
                for q2 in range(4):
                    def f(q2=q2):
                        c = s.ACC + 32 + 8 * q2
                        for e in range(4): a.e(f'v_cvt_pk_bf16_f32 v{c+e}, v{c+2*e}, v{c+2*e+1}')
                        if opt('degr'):
                            m_ = (0xffff << opt('degr')) & 0xffff
                            for e in range(4): a.e(f'v_and_b32 v{c+e}, {m_ * 0x10001:#x}, v{c+e}')
                        L.v('xs', f'buffer_store_dwordx4 v[{c}:{c+3}], v{s.VT}, s[40:43], s57 offen offset:{1024*q2} sc1')
                    out += [lambda: None, f]
            else:
                for q in range(8):
                    c = s.ACC + 32 + 4 * q
                    out.append(lambda q=q, c=c: L.v('xs', f'buffer_store_dwordx4 v[{c}:{c+3}], v{s.VT}, s[40:43], s{57 if q < 4 else 87} offen offset:{1024*(q&3)} sc1'))
            return out
        gF = nS + opt('tf', 48) * (448 - nS) // 64 if X else None
        for u in range(56):
            k0 = seq[8 * u][0]
            fill = []
            GM = (0, 16, 32, 44, 50)
            if opt('g2st') and u in GM:
                a.e('s_memtime s[66:67]'); a.e('s_waitcnt lgkmcnt(0)'); L.lg = []
                a.e(f'v_writelane_b32 v1, s66, {26 + GM.index(u)}')
            if s.free and nxt < NS and (u & 1 or u < 8 or not todo or len(s.free) > 1):
                fill += TD(nxt); nxt += 1
                if not todo and not fly and s.free and nxt < NS:
                    fill += TD(nxt); nxt += 1
            if not u & 1 and u >= opt('wk0', 8):
                if fly and u >= fly[0][1] + opt('wlat', 4):
                    c = fly.pop(0)[0]
                    assert 2 * c + 1 < KV or u >= 2 * c + 2 - KV
                    fill += s.Wv(c) + s.M(c)
                    pend.append(c)
                if todo and wfree:
                    c = todo.pop(0)
                    fs = s.D(c)
                    s.cell[c] = wfree.pop(0)
                    fill += [lambda c=c: L.e(f's_add_u32 m0, s98, {4096*s.cell[c]}')] + fs[1:]
                    fly.append((c, u))
            if 8 * u == nS and X:
                fill += xstores()
            if u == 52:
                for tm in range(4):
                    for j in range(1 if opt('o4', 1) else 2):
                        def f(tm=tm, j=j):
                            if j == 0 and tm: L.e(f's_add_u32 s86, s85, {32768*tm}')
                            if opt('o4', 1):
                                L.v('h', f'buffer_load_dwordx4 a[{4*tm}:{4*tm+3}], v{s.VO}, s[44:47], s{86 if tm else 85} offen sc1')
                            else:
                                L.v('h', f'buffer_load_dwordx2 a[{4*tm+2*j}:{4*tm+2*j+1}], v{s.VO}, s[44:47], s{86 if tm else 85} offen offset:{32*j} sc1')
                        fill.append(f)
            per = -(-(len(fill) + 1) // 8)
            SS = opt('ss', 1)
            for i in range(8):
                g_ = 8 * u + i
                k, tm = seq[g_]
                if rdn[0] < 448 and seq[rdn[0]][0] >> 1 > vis:
                    q = seq[rdn[0]][0] >> 1
                    vis = min(NS - 1, q + SS - 1) if q > 1 else q
                    assert vis in issued, (u, i, vis)
                    L.wait(vm=(('T', vis),))
                    a.e('s_barrier')
                    for q2 in list(slot):
                        if q2 not in freed and last_use[q2] < g_:
                            freed.add(q2); s.free.append(slot[q2])
                need = [('R', g_)]
                if k >> 1 not in wseen:
                    wseen.add(k >> 1)
                    assert k >> 1 not in todo and all(c != k >> 1 for c, _ in fly), (k, u)
                    need.append(('M', k >> 1))
                if g_ == gF: flag_store()
                L.wait(lg=need)
                order = [0, 1] if g_ % 2 == 0 else [1, 0]
                for n, j in enumerate(order):
                    r, w = s.wreg(k, j)
                    c = s.ACC + 4 * (2 * tm + j)
                    tf = s.TF + 4 * (g_ % NB)
                    if not opt('g2x') & 1:
                        a.e(f'v_mfma_f32_16x16x32_bf16 v[{c}:{c+3}], {r}[{w}:{w+3}], v[{tf}:{tf+3}], v[{c}:{c+3}]')
                    if n == 0:
                        RDnext()
                    else:
                        for _ in range(per):
                            if fill:
                                fill.pop(0)()
                                if 'm0' in a.lines[-1]: break
            while fill:
                if 'm0' in a.lines[-1]: a.e('s_nop 0')
                fill.pop(0)()
            for c in list(pend):
                if not any(x == ('M', c) for x in L.lg):
                    pend.remove(c)
                    (wfree if todo else s.free).append(s.cell[c])
            if not todo and wfree and not fly and not pend:
                s.free += wfree; wfree = []
        assert not todo and not fly and not pend and nxt == NS
        stamp(a, 15)
        if not X:
            a.e('s_nop 7')
            for f in xstores(): f()
            flag_store()
        wait_flags(a, 59, 20, 22, solo=0)
        stamp(a, 17)
        P1 = 96
        NL = 4 if BP else 8
        for q in range(NL):
            a.e(f'buffer_load_dwordx4 v[{P1+4*q}:{P1+4*q+3}], v{s.VT}, s[40:43], s{58 if q < 4 else 88} offen offset:{1024*(q&3)} sc1')
        H = 208
        for q in range(16):
            a.e(f'v_accvgpr_read_b32 v{HR+q}, a{q}')
        if opt('o4', 1):
            for tm in range(4):
                if tm == 3: a.e('s_nop 0')
                a.e(f'v_permlane16_swap_b32 v{HR+4*tm}, v{HR+4*tm+2}')
                a.e(f'v_permlane16_swap_b32 v{HR+4*tm+1}, v{HR+4*tm+3}')
        for q in range(16):
            unpack(a, H + 2 * q, H + 2 * q + 1, HR + q)
        a.e('s_mov_b32 s82, 0x3ef5fdf0')
        a.e('s_mov_b32 s83, 0x3ef5fdf0')
        for q in range(8):
            tm, j = q >> 1, q & 1
            if j == 0 and tm: a.e(f's_add_u32 s85, s85, 32768')
            if BP:
                if j == 0: a.e(f's_waitcnt vmcnt({3 if opt("o4", 1) else 3 + tm})')
            else: a.e('s_waitcnt vmcnt(7)')
            c = s.ACC + 4 * q
            for e in range(2):
                x = c + 2 * e; h = H + 4 * q + 2 * e
                if BP:
                    y = 128 + 2 * e
                    unpack(a, y, y + 1, P1 + 2 * q + e)
                else:
                    y = P1 + 4 * q + 2 * e
                a.e(f'v_pk_add_f32 v[{x}:{x+1}], v[{x}:{x+1}], v[{y}:{y+1}]')
                if opt('hs', 0): a.e(f'v_pk_mul_f32 v[{x}:{x+1}], v[{x}:{x+1}], s[82:83]')
                a.e(f'v_cvt_pk_bf16_f32 v{y}, v{x}, v{x+1}')
                unpack(a, x, x + 1, y)
                a.e(f'v_pk_add_f32 v[{x}:{x+1}], v[{x}:{x+1}], v[{h}:{h+1}]')
                a.e(f'v_cvt_pk_bf16_f32 v{192+2*q+e}, v{x}, v{x+1}')
            ofl = ['', ' sc1', ' nt', ' sc0 sc1'][opt('ofl')]
            if opt('o4', 1):
                assert BP
                if j == 1:
                    o = 192 + 4 * tm
                    a.e('s_nop 1')
                    a.e(f'v_permlane16_swap_b32 v{o}, v{o+2}')
                    a.e(f'v_permlane16_swap_b32 v{o+1}, v{o+3}')
                    a.e(f'buffer_store_dwordx4 v[{o}:{o+3}], v{s.VO}, s[48:51], s85 offen' + ofl)
            else:
                a.e(f'buffer_store_dwordx2 v[{192+2*q}:{192+2*q+1}], v{s.VO}, s[48:51], s85 offen offset:{32*j}' + ofl)
        LIN[0] = None

def gen_dg(a):
    d = opt('dg'); F, ia, ib = d // 10000, d // 100 % 100, d % 100
    m = opt('dgm')
    a.raw('.globl dg_kernel\n.p2align 8\n.type dg_kernel,@function\ndg_kernel:')
    a.e('s_load_dwordx2 s[10:11], s[0:1], 96')
    a.e('s_memrealtime s[12:13]')
    a.e('s_waitcnt lgkmcnt(0)')
    a.e(f's_add_u32 s10, s10, {STAMP_BASE + opt("dgw", 0) * 128:#x}')
    a.e('s_addc_u32 s11, s11, 0')
    if not m:
        a.e(f's_load_dword s4, s[10:11], {4*ia}')
        a.e(f's_load_dword s5, s[10:11], {4*ib}')
        a.e('s_waitcnt lgkmcnt(0)')
    else:
        a.e('s_mov_b32 s20, s10\ns_mov_b32 s21, s11\ns_mov_b32 s22, 0x20000\ns_mov_b32 s23, 0x20000')
        a.e('v_lshlrev_b32 v1, 7, v0')
        for i in range(16):
            a.e(f's_mov_b32 s6, {i*8192}')
            a.e(f'buffer_load_dword v{8+i}, v1, s[20:23], s6 offen offset:{4*ia}')
            a.e(f'buffer_load_dword v{24+i}, v1, s[20:23], s6 offen offset:{4*ib}')
        a.e('s_waitcnt vmcnt(0)')
        for i in range(32):
            a.e(f'v_sub_u32 v{8+i}, s12, v{8+i}')
        opa = 'v_max_u32' if m != 3 else 'v_add_u32'
        opb = {1: 'v_min_u32', 2: 'v_max_u32', 3: 'v_add_u32'}[m]
        for i in range(1, 16):
            a.e(f'{opa} v8, v8, v{8+i}')
            a.e(f'{opb} v24, v24, v{24+i}')
        a.e('s_nop 1')
        a.e('v_readlane_b32 s4, v8, 0')
        a.e('v_readlane_b32 s5, v24, 0')
        sa = 's_max_u32' if m != 3 else 's_add_u32'
        sb = {1: 's_min_u32', 2: 's_max_u32', 3: 's_add_u32'}[m]
        for l in range(1, 64):
            a.e(f'v_readlane_b32 s6, v8, {l}')
            a.e(f'v_readlane_b32 s7, v24, {l}')
            a.e('s_nop 0')
            a.e(f'{sa} s4, s4, s6')
            a.e(f'{sb} s5, s5, s7')
        a.e('s_sub_u32 s5, s4, s5')
        if m == 3: a.e('s_lshr_b32 s5, s5, 10')
        a.e('s_mov_b32 s4, 0')
        a.e('s_memrealtime s[12:13]')
        a.e('s_waitcnt lgkmcnt(0)')
    a.e('s_sub_u32 s4, s5, s4')
    a.e('s_min_u32 s4, s4, 10000')
    a.e(f's_mul_i32 s4, s4, {F}')
    a.e('L_dg:')
    a.e('s_memrealtime s[14:15]')
    a.e('s_waitcnt lgkmcnt(0)')
    a.e('s_sub_u32 s5, s14, s12')
    a.e('s_cmp_lt_u32 s5, s4')
    a.e('s_cbranch_scc1 L_dg')
    a.e('s_endpgm')

def build():
    a = Asm()
    hdr = open('cdna_kernels/' + NAME + '.s.ref').read().split('\n')
    cm = [l for l in hdr if l.startswith(';') and '@launch' not in l and 'Override launch' not in l and 'grid=ceil' not in l]
    out = '\n'.join(cm) + '\n'
    if opt('aslist') or opt('dg'):
        out += f'; @launch kernel={KNAME} grid=(256,1,1) block=(256,1,1) lds=163840\n'
        if opt('dg'): out += '; @launch kernel=dg_kernel grid=(1,1,1) block=(64,1,1) lds=0\n'
    else:
        out += '; @launch grid=(256,1,1) block=(256,1,1) lds=163840\n'
    a.raw('.amdgcn_target "amdgcn-amd-amdhsa--gfx950"')
    a.raw('.text')
    gen(a)
    if opt('dg'): gen_dg(a)
    body = a.text()
    errs = check_hazards(body)
    errs += check_waits(body, KNAME, loop_iters=2, take_fwd=('L_nonce_ok', 'L_nonce_skip', 'L_clean_skip', 'L_y2skip', 'L_y2nw') + tuple(f'L_sig{i}' for i in range(20)) + tuple(f'L_poll{i}x' for i in range(20)))
    errs += check_waits(body, KNAME, loop_iters=2, take_fwd=('L_nonce_ok',) + (() if opt('solo', 1) else tuple(f'L_poll{i}x' for i in range(20))))
    for e in errs[:8]: print(e, file=sys.stderr)
    na = 256
    out += body + f'''.section .rodata,"a"
.p2align 6
.amdhsa_kernel {KNAME}
  .amdhsa_next_free_vgpr {256+na}
  .amdhsa_next_free_sgpr 102
  .amdhsa_accum_offset 256
  .amdhsa_group_segment_fixed_size 0
  .amdhsa_kernarg_size 104
  .amdhsa_user_sgpr_count 2
  .amdhsa_user_sgpr_kernarg_segment_ptr 1
  .amdhsa_system_sgpr_workgroup_id_x 1
  .amdhsa_float_denorm_mode_32 3
.end_amdhsa_kernel
'''
    if opt('dg'):
        out += '''.p2align 6
.amdhsa_kernel dg_kernel
  .amdhsa_next_free_vgpr 48
  .amdhsa_next_free_sgpr 32
  .amdhsa_accum_offset 48
  .amdhsa_group_segment_fixed_size 0
  .amdhsa_kernarg_size 104
  .amdhsa_user_sgpr_count 2
  .amdhsa_user_sgpr_kernarg_segment_ptr 1
  .amdhsa_system_sgpr_workgroup_id_x 1
.end_amdhsa_kernel
'''
    return out, errs

if __name__ == '__main__':
    outp = sys.argv[1]
    for kv in sys.argv[2:]:
        k, v = kv.split('=')
        OPT[k] = int(v)
    if opt('hnub'): WS_HNF = WS_UB
    t, errs = build()
    open(outp, 'w').write(t)
    print('written', outp, len(t), 'bytes;', len(errs), 'checker errors')
```

```python
import sys, os
from asmlib import *

NAME = 'sequential_preLN__ssm_conv_h3__glu_gated_swiglu__prompt'
KNAME = NAME + '_kernel'
MB = 1 << 20
WS0 = int(os.environ.get('WS0', '0')) * MB
WS_UB, WS_Y2, WS_H, WS_HNF, WS_HF, WS_XP, WS_FLG = [WS0 + x * MB for x in (0, 4, 8, 12, 16, 32, 40)]
STAMP_BASE = 64 * MB
OPT = {}
def opt(k, d=0): return OPT.get(k, d)

P_Q, P_K, P_V, P_SH, P_SSMK, P_D, P_X, P_W1, P_W3, P_W2, P_OUT, P_DBG, P_WS = [4 + 2 * i for i in range(13)]
S_W, S_NONCE, S_MASK = 30, 31, 90
S_FLG = 92
F0, F1, F2, F3, F4 = 0, 32768, 65536, 98304, 131072
FLG_SIZE = 262144
LDS_KA = 98304
KA_REG = 13056
NSTAMP = 20
AST = 128

def srd(a, d, p, size, add=0, addreg=None):
    if add or addreg is not None:
        if add:
            a.e(f's_add_u32 s{d}, s{p}, {add:#x}')
            a.e(f's_addc_u32 s{d+1}, s{p+1}, 0')
            if addreg is not None:
                a.e(f's_add_u32 s{d}, s{d}, s{addreg}')
                a.e(f's_addc_u32 s{d+1}, s{d+1}, 0')
        else:
            a.e(f's_add_u32 s{d}, s{p}, s{addreg}')
            a.e(f's_addc_u32 s{d+1}, s{p+1}, 0')
    else:
        a.e(f's_mov_b32 s{d}, s{p}')
        a.e(f's_mov_b32 s{d+1}, s{p+1}')
    if size is not None:
        a.e(f's_mov_b32 s{d+2}, {size:#x}')
    a.e(f's_mov_b32 s{d+3}, 0x20000')

def stamp(a, i):
    if not opt('stamp'): return
    a.e('s_memrealtime s[60:61]')
    if i == 0: a.e('s_memtime s[62:63]')
    cy = {11: 20, 12: 21, 14: 22, 15: 23, 4: 24, 5: 25}.get(i)
    if cy: a.e('s_memtime s[66:67]')
    a.e('s_waitcnt lgkmcnt(0)')
    a.e(f'v_writelane_b32 v1, s60, {i}')
    if cy: a.e(f'v_writelane_b32 v1, s66, {cy}')
    if LIN[0]: LIN[0].lg = []

def stamp_out(a, n):
    if not opt('stamp'): return
    a.e('s_waitcnt vmcnt(0)')
    stamp(a, n - 1)
    a.e('s_memtime s[64:65]')
    a.e('s_waitcnt lgkmcnt(0)')
    srd(a, 32, P_WS, 1 * MB, STAMP_BASE)
    a.e('s_lshl_b32 s84, s2, 2')
    a.e(f's_add_u32 s84, s84, s{S_W}')
    a.e('s_lshl_b32 s84, s84, 7')
    a.e('s_sub_u32 s64, s64, s62')
    a.e('v_writelane_b32 v1, s64, 31')
    a.e('v_mbcnt_lo_u32_b32 v2, -1, 0')
    a.e('v_lshlrev_b32 v2, 2, v2')
    a.e('s_mov_b64 exec, 0xffffffff')
    a.e('buffer_store_dword v1, v2, s[32:35], s84 offen')

LIN = [None]
class Lin:
    def __init__(s, a): s.a = a; s.vm = []; s.lg = []; LIN[0] = s
    def e(s, t): s.a.e(t)
    def v(s, tag, t): s.a.e(t); s.vm.append(tag)
    def l(s, tag, t): s.a.e(t); s.lg.append(tag)
    def _n(s, q, tags, cap):
        idx = [i for i, x in enumerate(q) if x in tags]
        if not idx: return None
        n = len(q) - max(idx) - 1
        return min(n, cap)
    def wait(s, vm=(), lg=(), vm0=False, lg0=False):
        nv = 0 if vm0 else s._n(s.vm, vm, 63)
        nl = 0 if lg0 else s._n(s.lg, lg, 15)
        t = ''
        if nv is not None:
            t += f' vmcnt({nv})'; s.vm = s.vm[len(s.vm) - nv:] if nv else []
        if nl is not None:
            t += f' lgkmcnt({nl})'; s.lg = s.lg[len(s.lg) - nl:] if nl else []
        if t: s.a.e('s_waitcnt' + t)

def unpack(a, dlo, dhi, src):
    a.e(f'v_lshlrev_b32 v{dlo}, 16, v{src}')
    a.e(f'v_and_b32 v{dhi}, s{S_MASK}, v{src}')

def hfl():
    return [' sc1', ' sc0 sc1', ' sc1 nt', ' sc0 sc1 nt', ''][opt('hfl')]

def code_pf(a, lab_from, lab_to, vt, emit=None, n=1):
    _uid[0] += 1
    L = f'L_pc{_uid[0]}'
    a.e('s_getpc_b64 s[78:79]')
    a.e(f'{L}:')
    a.e(f's_lshl_b32 s77, s{S_W}, 13')
    a.e(f's_add_u32 s77, s77, {lab_from}-{L}')
    for i in range(n):
        if i: a.e('s_add_u32 s77, s77, 32768')
        a.e(f'v_lshl_add_u32 v{vt}, v2, 7, s77')
        a.e(f'v_min_u32 v{vt}, {lab_to}-{L}, v{vt}')
        t = f'global_load_dword v{vt+1+i}, v{vt}, s[78:79]'
        if emit: emit(t)
        else: a.e(t)

def hf_base(a, d, mb, q, t):
    if not opt('reuse', 0):
        a.e(f's_lshl_b32 s{d}, s{mb}, 2')
        a.e(f's_add_u32 s{d}, s{d}, s{q}')
        a.e(f's_mul_i32 s{d}, s{d}, 458752')
        a.e(f's_add_u32 s{d}, s{d}, {WS_HF:#x}')
        return
    a.e(f's_lshl_b32 s{d}, s{mb}, 1')
    a.e(f's_add_u32 s{d}, s{d}, s{q}')
    a.e(f's_mul_i32 s{d}, s{d}, 458752')
    a.e(f's_add_u32 s{d}, s{d}, {WS_HF:#x}')
    a.e(f's_lshl_b32 s{t}, s{mb}, 19')
    a.e(f's_cmp_eq_u32 s{q}, 1')
    a.e(f's_cselect_b32 s{d}, s{t}, s{d}')
    a.e(f's_add_u32 s{t}, s{t}, {WS_Y2 - WS_UB:#x}')
    a.e(f's_cmp_eq_u32 s{q}, 0')
    a.e(f's_cselect_b32 s{d}, s{t}, s{d}')

def zero_acc(a, base, n, z):
    if not opt('mz', 1):
        for r in range(n): a.e(f'v_mov_b32 v{base+r}, 0')
        return
    for r in range(4): a.e(f'v_mov_b32 v{z+r}, 0')
    a.e('s_nop 1')
    for r in range(0, n, 16):
        a.e(f'v_mfma_f32_32x32x16_bf16 v[{base+r}:{base+r+15}], v[{z}:{z+3}], v[{z}:{z+3}], 0')

_uid = [0]
def signal(a, soff, vt, waitfn=None, wb=False):
    _uid[0] += 1
    L = f'L_sig{_uid[0]}'
    a.e(f'v_mov_b32 v{vt}, 0')
    a.e(f'v_mov_b32 v{vt+1}, s{S_NONCE}')
    a.e(f's_cmp_eq_u32 s{S_W}, 0')
    if waitfn: waitfn()
    else: a.e('s_waitcnt vmcnt(0)')
    a.e('s_barrier')
    a.e(f's_cbranch_scc0 {L}')
    if wb:
        a.e('buffer_wbl2 sc1')
        a.e('s_waitcnt vmcnt(0)')
    a.e('s_mov_b64 exec, 1')
    a.e(f'buffer_store_dword v{vt+1}, v{vt}, s[{S_FLG}:{S_FLG+3}], s{soff} offen sc1')
    a.e('s_mov_b64 exec, -1')
    a.e(f'{L}:')

def fsh():
    return opt('fs', 32).bit_length() - 1
def f1sh():
    return opt('f1s', 32).bit_length() - 1

def wait_flags(a, soff, voff, vd, n=64, solo=None):
    _uid[0] += 1
    L = f'L_poll{_uid[0]}'
    if solo is None: solo = opt('solo', 1)
    if solo:
        a.e(f's_cmp_lg_u32 s{S_W}, {opt("pw", 0)}')
        a.e(f's_cbranch_scc1 {L}x')
    a.e(f'{L}:')
    if n == 256:
        if f1sh() == 2:
            a.e(f'buffer_load_dwordx4 v[{vd}:{vd+3}], v{voff}, s[{S_FLG}:{S_FLG+3}], s{soff} offen sc1')
        else:
            for i in range(4):
                a.e(f's_add_u32 s89, s{soff}, {i*(64<<f1sh())}')
                a.e(f'buffer_load_dword v{vd+i}, v{voff}, s[{S_FLG}:{S_FLG+3}], s89 offen sc1')
        a.e('s_waitcnt vmcnt(0)')
        a.e(f'v_xor_b32 v{vd}, s{S_NONCE}, v{vd}')
        a.e(f'v_xor_b32 v{vd+1}, s{S_NONCE}, v{vd+1}')
        a.e(f'v_xor_b32 v{vd+2}, s{S_NONCE}, v{vd+2}')
        a.e(f'v_xor_b32 v{vd+3}, s{S_NONCE}, v{vd+3}')
        a.e(f'v_or3_b32 v{vd}, v{vd}, v{vd+1}, v{vd+2}')
        a.e(f'v_or_b32 v{vd}, v{vd}, v{vd+3}')
        a.e(f'v_cmp_ne_u32 vcc, 0, v{vd}')
    else:
        a.e(f'buffer_load_dword v{vd}, v{voff}, s[{S_FLG}:{S_FLG+3}], s{soff} offen sc1')
        a.e('s_waitcnt vmcnt(0)')
        a.e(f'v_cmp_ne_u32 vcc, s{S_NONCE}, v{vd}')
    a.e('s_add_u32 s3, s3, 1')
    a.e(f's_cmp_gt_u32 s3, {opt("spin", 200000)}')
    a.e(f's_cbranch_scc1 {L}x')
    a.e(f's_cbranch_vccz {L}x')
    if opt('sleep'): a.e(f's_sleep {opt("sleep")}')
    a.e(f's_branch {L}')
    a.e(f'{L}x:')
    if solo: a.e('s_barrier')

def wave_sum2(a, va, vb, sa, sb):
    for mod in ('row_shr:1 row_mask:0xf bank_mask:0xf bound_ctrl:0', 'row_shr:2 row_mask:0xf bank_mask:0xf bound_ctrl:0',
                'row_shr:4 row_mask:0xf bank_mask:0xf bound_ctrl:0', 'row_shr:8 row_mask:0xf bank_mask:0xf bound_ctrl:0',
                'row_bcast:15 row_mask:0xa bank_mask:0xf', 'row_bcast:31 row_mask:0xc bank_mask:0xf'):
        a.e('s_nop 0')
        a.e(f'v_add_f32_dpp v{va}, v{va}, v{va} {mod}')
        a.e(f'v_add_f32_dpp v{vb}, v{vb}, v{vb} {mod}')
    a.e(f'v_readlane_b32 s{sa}, v{va}, 63')
    a.e(f'v_readlane_b32 s{sb}, v{vb}, 63')

def ln2(a, X, T, M, R, C, XM):
    def both(f):
        for r in range(2): f(r)
    for q in range(4):
        both(lambda r: a.e(f'v_pk_add_f32 v[{T[r]+2*q}:{T[r]+2*q+1}], v[{X[r]+4*q}:{X[r]+4*q+1}], v[{X[r]+4*q+2}:{X[r]+4*q+3}]'))
    both(lambda r: a.e(f'v_pk_add_f32 v[{T[r]}:{T[r]+1}], v[{T[r]}:{T[r]+1}], v[{T[r]+2}:{T[r]+3}]'))
    both(lambda r: a.e(f'v_pk_add_f32 v[{T[r]+4}:{T[r]+5}], v[{T[r]+4}:{T[r]+5}], v[{T[r]+6}:{T[r]+7}]'))
    both(lambda r: a.e(f'v_pk_add_f32 v[{T[r]}:{T[r]+1}], v[{T[r]}:{T[r]+1}], v[{T[r]+4}:{T[r]+5}]'))
    both(lambda r: a.e(f'v_add_f32 v{T[r]}, v{T[r]}, v{T[r]+1}'))
    wave_sum2(a, T[0], T[1], 56, 57)
    a.e('s_nop 0')
    both(lambda r: a.e(f'v_mul_f32 v{M[r]}, s{56+r}, v{C}'))
    both(lambda r: a.e(f'v_mov_b32 v{M[r]+1}, v{M[r]}'))
    for q in range(8):
        both(lambda r: a.e(f'v_pk_add_f32 v[{T[r]+2*q}:{T[r]+2*q+1}], v[{X[r]+2*q}:{X[r]+2*q+1}], v[{M[r]}:{M[r]+1}] neg_lo:[0,1] neg_hi:[0,1]'))
    both(lambda r: a.e(f'v_pk_mul_f32 v[{R[r]}:{R[r]+1}], v[{T[r]}:{T[r]+1}], v[{T[r]}:{T[r]+1}]'))
    for q in range(1, 8):
        both(lambda r: a.e(f'v_pk_fma_f32 v[{R[r]}:{R[r]+1}], v[{T[r]+2*q}:{T[r]+2*q+1}], v[{T[r]+2*q}:{T[r]+2*q+1}], v[{R[r]}:{R[r]+1}]'))
    both(lambda r: a.e(f'v_add_f32 v{R[r]}, v{R[r]}, v{R[r]+1}'))
    def rbf(v):
        a.e(f'v_cvt_pk_bf16_f32 v{v}, v{v}, v{v}')
        a.e(f'v_and_b32 v{v}, s{S_MASK}, v{v}')
    both(lambda r: rbf(M[r]))
    wave_sum2(a, R[0], R[1], 58, 59)
    both(lambda r: a.e(f'v_mov_b32 v{M[r]+1}, v{M[r]}'))
    both(lambda r: a.e(f'v_mul_f32 v{R[r]}, s{58+r}, v{C}'))
    both(lambda r: rbf(R[r]))
    both(lambda r: a.e(f'v_add_f32 v{R[r]}, 0x3727c5ac, v{R[r]}'))
    both(lambda r: rbf(R[r]))
    both(lambda r: a.e(f'v_sqrt_f32 v{R[r]}, v{R[r]}'))
    for q in range(2):
        both(lambda r: a.e(f'v_pk_add_f32 v[{XM[r]+2*q}:{XM[r]+2*q+1}], v[{X[r]+2*q}:{X[r]+2*q+1}], v[{M[r]}:{M[r]+1}] neg_lo:[0,1] neg_hi:[0,1]'))
    both(lambda r: rbf(R[r]))
    both(lambda r: a.e(f'v_rcp_f32 v{R[r]}, v{R[r]}'))
    for q in range(2, 8):
        both(lambda r: a.e(f'v_pk_add_f32 v[{XM[r]+2*q}:{XM[r]+2*q+1}], v[{X[r]+2*q}:{X[r]+2*q+1}], v[{M[r]}:{M[r]+1}] neg_lo:[0,1] neg_hi:[0,1]'))
    both(lambda r: a.e(f'v_mov_b32 v{R[r]+1}, v{R[r]}'))
    for q in range(8):
        both(lambda r: a.e(f'v_pk_mul_f32 v[{T[r]+2*q}:{T[r]+2*q+1}], v[{XM[r]+2*q}:{XM[r]+2*q+1}], v[{R[r]}:{R[r]+1}]'))

class Sched:
    def __init__(self): self.ev = []; self.marks = {}
    def mark(self, k): self.marks[k] = len(self.ev)
    def add(self, L): self.ev += L
    def younger(self, tag, at):
        last = max(i for i, e in enumerate(self.ev) if e[:2] == tag)
        assert last < self.marks[at], (tag, at)
        return self.marks[at] - last - 1

def gen(a):
    a.raw(f'.globl {KNAME}')
    a.raw('.p2align 8')
    a.raw(f'.type {KNAME},@function')
    a.raw(f'{KNAME}:')
    a.e('s_cmp_ge_u32 s2, 256')
    a.e('s_cbranch_scc1 L_end')
    a.e('s_load_dwordx8 s[4:11], s[0:1], 0')
    a.e('s_load_dwordx8 s[20:27], s[0:1], 64')
    a.e('s_load_dwordx2 s[28:29], s[0:1], 96')
    a.e('s_load_dwordx8 s[12:19], s[0:1], 32')
    a.e('s_memrealtime s[56:57]')
    a.e('v_lshrrev_b32 v1, 6, v0')
    a.e('v_and_b32 v2, 63, v0')
    a.e(f'v_readfirstlane_b32 s{S_W}, v1')
    a.e(f's_mov_b32 s{S_MASK}, 0xffff0000')
    a.e('s_mov_b32 s3, 0')
    a.e('s_bfe_u32 s82, s2, 0x30003')
    a.e('s_and_b32 s83, s2, 7')
    a.e('s_lshr_b32 s84, s2, 6')
    a.e('s_lshl_b32 s84, s84, 3')
    a.e('s_or_b32 s83, s83, s84')
    a.e('v_and_b32 v9, 7, v0')
    a.e('v_bfe_u32 v10, v0, 4, 1')
    a.e('v_lshl_add_u32 v1, v9, 1, v10')
    a.e('v_lshrrev_b32 v8, 5, v0')
    a.e('v_bfe_u32 v11, v0, 3, 1')
    a.e('v_lshl_add_u32 v8, v8, 1, v11')
    a.e('s_lshl_b32 s85, s83, 17')
    a.e('s_lshl_b32 s86, s82, 8')
    a.e('s_add_u32 s85, s85, s86')
    a.e('v_lshlrev_b32 v3, 13, v1')
    a.e('v_lshl_add_u32 v3, v8, 4, v3')
    a.e('v_add_u32 v3, s85, v3')
    a.e('v_add_u32 v4, 0xffffe800, v3')
    a.e('v_add_u32 v5, 0xfffff800, v3')
    a.e('v_add_u32 v6, 0x1000, v3')
    a.e('s_lshl_b32 s86, s82, 10')
    a.e('v_lshlrev_b32 v7, 6, v8')
    a.e('v_add_u32 v7, s86, v7')
    a.e('s_lshl_b32 s87, s82, 5')
    a.e('s_add_u32 s87, s87, s83')
    a.e('s_lshl_b32 s88, s87, 14')
    a.e('s_add_u32 s88, s88, 112')
    a.e('v_lshlrev_b32 v160, 10, v8')
    a.e('v_lshl_add_u32 v160, v10, 9, v160')
    a.e('v_lshlrev_b32 v161, 4, v9')
    a.e('v_sub_u32 v160, v160, v161')
    a.e('v_add_u32 v160, s88, v160')
    a.e(f's_lshl_b32 s87, s87, {fsh()}')
    a.e('v_mov_b32 v162, 0')
    a.e('s_waitcnt lgkmcnt(0)')
    stamp(a, 0)
    if opt('stamp') and not opt('g2st'): a.e('v_writelane_b32 v1, s56, 30')
    srd(a, 32, P_K, 4 * MB)
    srd(a, 36, P_V, 4 * MB)
    srd(a, 40, P_SH, 8192)
    KR, VR_, WR, WU, KU, AC0 = 8, 36, 52, 68, 100, 164
    for j in range(4):
        a.e(f'buffer_load_dwordx4 v[{WR+4*j}:{WR+4*j+3}], v7, s[40:43], 0 offen offset:{16*j}')
    rows = [(4, 0), (4, 2048), (5, 0), (3, 0), (3, 2048), (6, 0), (6, 2048)]
    for r, (vr, off) in enumerate(rows):
        a.e(f'buffer_load_dwordx4 v[{KR+4*r}:{KR+4*r+3}], v{vr}, s[32:35], 0 offen offset:{off}')
    for r, (vr, off) in enumerate(rows[3:]):
        a.e(f'buffer_load_dwordx4 v[{VR_+4*r}:{VR_+4*r+3}], v{vr}, s[36:39], 0 offen offset:{off}')
    ncp = 0
    if opt('cpf', 0):
        a.e('s_getpc_b64 s[58:59]')
        a.e('L_pc:')
        a.e('v_lshlrev_b32 v163, 7, v0')
        a.e('v_min_u32 v163, L_end-L_pc, v163')
        a.e('global_load_dword v161, v163, s[58:59]')
        ncp = 1
    srd(a, 48, P_WS, 4 * MB, WS_UB)
    if opt('pt', 0) & 1:
        a.e('v_lshlrev_b32 v163, 6, v0')
        a.e('s_sub_u32 s58, s88, 120')
        a.e('buffer_load_dword v161, v163, s[48:51], s58 offen')
        ncp += 1
    KD, KX, XP = 200, 216, 224
    KP, XPOS = opt('kp', 1), opt('xp', 2)
    def k_loads():
        a.e('s_and_b32 s74, s2, 7')
        a.e('s_lshl_b32 s74, s74, 7')
        a.e('s_lshr_b32 s75, s2, 3')
        a.e('s_lshl_b32 s75, s75, 2')
        a.e('s_add_u32 s74, s74, s75')
        a.e(f's_add_u32 s74, s74, s{S_W}')
        a.e('s_lshl_b32 s74, s74, 12')
        srd(a, 68, P_SSMK, 4096, 0, 74)
        a.e('v_lshlrev_b32 v220, 4, v2')
        for j in range(4):
            a.e(f'buffer_load_dwordx4 v[{KD+4*j}:{KD+4*j+3}], v220, s[68:71], 0 offen offset:{1024*j}')
            a.e(f'buffer_load_dword v{KX+j}, v220, s[68:71], 0 offen offset:{1024*j+16}')
    def x_loads():
        srd(a, 36, P_Q, 4 * MB)
        for r in range(2):
            for hh in range(2):
                a.e(f'buffer_load_dwordx4 v[{XP+8*r+4*hh}:{XP+8*r+4*hh+3}], v4, s[36:39], s96 offen offset:{2048*r+1024*hh}')
    if KP == 0:
        k_loads(); ncp += 8
    if opt('tlb'):
        a.e(f's_cmp_eq_u32 s{S_W}, 3')
        a.e(f's_cselect_b32 s58, {42 * MB:#x}, 0')
        srd(a, 52, P_WS, None)
        a.e('s_mov_b32 s54, s58')
        a.e('v_lshlrev_b32 v163, 21, v2')
        a.e(f'v_add_u32 v163, {opt("tlbo", 0x1f0000):#x}, v163')
        a.e('buffer_load_dword v161, v163, s[52:55], 0 offen')
        ncp += 1
        if opt('tlb') > 1:
            a.e(f's_min_u32 s58, s58, {4 * MB:#x}')
            for P_ in (P_OUT, P_SSMK, P_Q):
                srd(a, 52, P_, None)
                a.e('s_mov_b32 s54, s58')
                a.e('buffer_load_dword v161, v163, s[52:55], 0 offen')
                ncp += 1
    srd(a, 44, P_DBG, 256)
    a.e('s_or_b32 s56, s56, 1')
    a.e(f's_or_b32 s57, s2, s{S_W}')
    a.e('s_cmp_lg_u32 s57, 0')
    a.e('s_cbranch_scc1 L_nonce_skip')
    a.e('v_mov_b32 v163, s56')
    a.e('s_mov_b64 exec, 1')
    a.e('buffer_store_dword v163, v162, s[44:47], 0 offen sc1')
    a.e('s_mov_b64 exec, -1')
    a.e('s_waitcnt vmcnt(0)')
    a.e('L_nonce_skip:')
    srd(a, S_FLG, P_WS, FLG_SIZE, WS_FLG)
    a.e(f's_waitcnt vmcnt({11+ncp})')
    for e in range(8):
        unpack(a, WU + 0 * 8 + e, WU + 1 * 8 + e, WR + 2 * e)
        unpack(a, WU + 2 * 8 + e, WU + 3 * 8 + e, WR + 2 * e + 1)
    for r in range(7):
        a.e(f's_waitcnt vmcnt({10-r+ncp})')
        for q in range(4):
            unpack(a, KU + 8 * r + 2 * q, KU + 8 * r + 2 * q + 1, KR + 4 * r + q)
        if r >= 3:
            i = r - 3
            for j in range(4):
                for q in range(4):
                    d = AC0 + 8 * i + 2 * q
                    k = KU + 8 * (i + 3 - j) + 2 * q
                    w = WU + 8 * j + 2 * q
                    if j == 0:
                        a.e(f'v_pk_mul_f32 v[{d}:{d+1}], v[{k}:{k+1}], v[{w}:{w+1}]')
                    else:
                        a.e(f'v_pk_fma_f32 v[{d}:{d+1}], v[{k}:{k+1}], v[{w}:{w+1}], v[{d}:{d+1}]')
    VU = 8
    for i in range(4):
        a.e(f's_waitcnt vmcnt({3-i+ncp})')
        if i == 3:
            a.e('buffer_load_dword v163, v162, s[44:47], 0 offen sc1')
        for q in range(4):
            unpack(a, VU + 2 * q, VU + 2 * q + 1, VR_ + 4 * i + q)
        for q in range(4):
            d = AC0 + 8 * i + 2 * q
            a.e(f'v_pk_mul_f32 v[{d}:{d+1}], v[{d}:{d+1}], v[{VU+2*q}:{VU+2*q+1}]')
    O = 52
    for e in range(4):
        q = O + 4 * e
        a.e(f'v_cvt_pk_bf16_f32 v{q}, v{AC0+28+e}, v{AC0+20+e}')
        a.e(f'v_cvt_pk_bf16_f32 v{q+1}, v{AC0+12+e}, v{AC0+4+e}')
        a.e(f'v_cvt_pk_bf16_f32 v{q+2}, v{AC0+24+e}, v{AC0+16+e}')
        a.e(f'v_cvt_pk_bf16_f32 v{q+3}, v{AC0+8+e}, v{AC0+e}')
    for e in range(4):
        q = O + 4 * e
        if e == 3: a.e('s_nop 0')
        a.e(f'v_permlane16_swap_b32 v{q+2}, v{q}')
        a.e(f'v_permlane16_swap_b32 v{q+3}, v{q+1}')
        a.e(f'buffer_store_dwordx4 v[{q}:{q+3}], v160, s[48:51], 0 offen offset:{128*e} sc1')
    stamp(a, 1)
    a.e('s_and_b32 s82, s2, 7')
    a.e('s_lshr_b32 s83, s2, 3')
    a.e('s_lshl_b32 s84, s83, 2')
    a.e(f's_add_u32 s84, s84, s{S_W}')
    a.e('s_lshl_b32 s85, s82, 7')
    a.e('s_add_u32 s85, s85, s84')
    a.e('s_lshl_b32 s86, s82, 5')
    a.e('s_add_u32 s86, s86, s83')
    a.e(f's_mul_i32 s88, s{S_W}, {KA_REG}')
    a.e(f's_add_u32 s88, s88, {LDS_KA}')
    a.e('s_lshr_b32 s57, s85, 1')
    a.e('s_lshl_b32 s57, s57, 2')
    a.e(f's_load_dword s89, s[{P_D}:{P_D+1}], s57')
    a.e('v_lshlrev_b32 v4, 4, v2')
    ny = 0
    if KP == 1:
        k_loads(); ny += 8
    a.e('s_and_b32 s80, s82, 1')
    a.e('s_lshl_b32 s80, s80, 2')
    a.e('s_and_b32 s56, s83, 3')
    a.e('s_add_u32 s80, s80, s56')
    a.e('s_lshr_b32 s81, s82, 1')
    a.e('s_lshl_b32 s81, s81, 3')
    a.e('s_lshr_b32 s56, s83, 2')
    a.e('s_add_u32 s81, s81, s56')
    a.e('s_lshl_b32 s91, s80, 5')
    a.e('s_add_u32 s91, s91, s81')
    a.e('s_lshl_b32 s56, s91, 2')
    a.e(f's_add_u32 s56, s56, s{S_W}')
    a.e('s_lshl_b32 s96, s56, 12')
    nx_ = 0
    if XPOS == 1:
        x_loads(); ny += 4; nx_ = 4
    WP0 = opt('wp0', 0)
    if WP0:
        a.e(f's_mul_i32 s56, s2, {7168*WP0}')
        a.e(f's_mul_i32 s57, s{S_W}, {1792*WP0}')
        a.e('s_add_u32 s56, s56, s57')
        srd(a, 40, P_W1, 1792 * WP0, 0, 56)
        a.e('v_lshlrev_b32 v167, 7, v2')
        a.e('buffer_load_dword v168, v167, s[40:43], 0 offen')
        ny += 1; nx_ += 1
    nc0 = 0
    if opt('cpf0', 2):
        if opt('cpf0', 2) == 1:
            code_pf(a, 'L_nonce', 'L_end', 164, n=2); nc0 = 2
        else:
            code_pf(a, 'L_nonce', 'L_kbcode' if opt('cpf0', 2) == 2 else 'L_g1epi', 164); nc0 = 1
    a.e(f's_waitcnt vmcnt({4+ny+nc0})')
    a.e('L_nonce:')
    a.e(f'v_readfirstlane_b32 s{S_NONCE}, v163')
    a.e('s_nop 0')
    a.e(f's_cmp_lg_u32 s{S_NONCE}, 0')
    a.e('s_cbranch_scc1 L_nonce_ok')
    a.e('s_add_u32 s3, s3, 1')
    a.e(f's_cmp_gt_u32 s3, {opt("spin", 200000)}')
    a.e('s_cbranch_scc1 L_nonce_ok')
    a.e('buffer_load_dword v163, v162, s[44:47], 0 offen sc1')
    a.e('s_waitcnt vmcnt(0)')
    a.e('s_branch L_nonce')
    a.e('L_nonce_ok:')
    a.e(f'v_mov_b32 v163, s{S_NONCE}')
    a.e(f's_cmp_eq_u32 s{S_W}, 0')
    a.e(f's_waitcnt vmcnt({ny+nc0})')
    a.e('s_barrier')
    a.e('s_cbranch_scc0 L_sig0')
    a.e('s_mov_b64 exec, 1')
    a.e(f'buffer_store_dword v163, v162, s[{S_FLG}:{S_FLG+3}], s87 offen sc1')
    a.e('s_mov_b64 exec, -1')
    a.e('L_sig0:')
    stamp(a, 2)
    if KP == 2:
        k_loads(); nx_ = 0; nc0 = 0
    npt = 0
    if opt('pt', 0) & 2:
        srd(a, 40, P_WS, 12 * MB, WS_Y2)
        a.e('v_lshlrev_b32 v164, 14, v0')
        a.e('s_lshl_b32 s56, s86, 6')
        a.e('buffer_load_dword v161, v164, s[40:43], s56 offen')
        a.e('v_lshlrev_b32 v164, 6, v0')
        a.e('s_lshl_b32 s56, s91, 14')
        a.e(f's_add_u32 s56, s56, {4*MB}')
        a.e('buffer_load_dword v161, v164, s[40:43], s56 offen')
        a.e('v_lshrrev_b32 v164, 3, v0')
        a.e('v_lshlrev_b32 v164, 12, v164')
        a.e('v_bfe_u32 v165, v0, 1, 2')
        a.e('v_lshl_add_u32 v164, v165, 8, v164')
        a.e('s_lshr_b32 s56, s91, 3')
        a.e('s_lshl_b32 s56, s56, 17')
        a.e('s_and_b32 s57, s91, 7')
        a.e('s_lshr_b32 s58, s57, 1')
        a.e('s_lshl_b32 s58, s58, 10')
        a.e('s_add_u32 s56, s56, s58')
        a.e('s_and_b32 s57, s57, 1')
        a.e('s_lshl_b32 s57, s57, 7')
        a.e('s_add_u32 s56, s56, s57')
        a.e(f's_add_u32 s56, s56, {8*MB}')
        a.e('buffer_load_dword v161, v164, s[40:43], s56 offen')
        npt += 3
    a.e('v_lshrrev_b32 v3, 3, v2')
    a.e('v_sub_u32 v3, 7, v3')
    a.e('v_lshlrev_b32 v3, 14, v3')
    a.e('v_and_b32 v5, 7, v2')
    a.e('v_lshl_add_u32 v3, v5, 4, v3')
    a.e('s_lshl_b32 s56, s84, 7')
    a.e('v_add_u32 v3, s56, v3')
    a.e('v_and_b32 v5, 15, v2')
    a.e('v_lshrrev_b32 v6, 4, v2')
    a.e('v_mov_b32 v28, 0')
    a.e('v_mov_b32 v29, 0')
    a.e('v_lshlrev_b32 v7, 3, v2')
    a.e('v_add_u32 v7, s88, v7')
    a.e('ds_write_b64 v7, v[28:29] offset:4096')
    a.e('v_min_u32 v30, 7, v2')
    a.e('v_lshlrev_b32 v30, 2, v30')
    a.e('v_add_u32 v30, s88, v30')
    a.e('ds_write_b32 v30, v28 offset:4608')
    a.e('v_add_u32 v31, 1, v5')
    a.e('v_and_b32 v32, 1, v31')
    a.e('v_sub_u32 v31, v31, v32')
    a.e('v_lshl_add_u32 v31, v6, 3, v31')
    a.e('v_lshlrev_b32 v31, 1, v31')
    a.e('v_mul_u32_u24 v32, 4160, v32')
    a.e('v_add3_u32 v31, v31, v32, s88')
    VA, VB, ACC = 36, 40, 44
    for j in range(4):
        a.e(f'v_add_u32 v{VA+j}, {4608+1024*j}, v31')
    a.e('v_lshlrev_b32 v32, 5, v5')
    a.e('v_lshlrev_b32 v33, 4, v6')
    a.e('v_sub_u32 v33, v33, v32')
    a.e('v_add_u32 v33, s88, v33')
    a.e(f'v_add_u32 v{VB}, 480, v33')
    a.e('v_add_u32 v7, s88, v4')
    zero_acc(a, ACC, 32, 92)
    T = 76
    a.e(f's_waitcnt vmcnt({nx_+npt+nc0})')
    for j in range(4):
        d = KD + 4 * j
        if j == 0:
            a.e(f'v_readfirstlane_b32 s56, v{d}')
        a.e(f'ds_write_b128 v7, v[{d}:{d+3}] offset:{4608+32+1024*j}')
        for q in range(4):
            hi = d + q + 1 if q < 3 else KX + j
            a.e(f'v_alignbit_b32 v{T+4*j+q}, v{hi}, v{d+q}, 16')
        a.e(f'ds_write_b128 v7, v[{T+4*j}:{T+4*j+3}] offset:{4608+4160+32+1024*j}')
    a.e('s_lshl_b32 s56, s56, 16')
    a.e('v_cmp_le_u32 vcc, 7, v2')
    a.e('v_mov_b32 v32, s56')
    a.e('s_nop 0')
    a.e('v_cndmask_b32 v32, v28, v32, vcc')
    a.e(f'ds_write_b32 v30, v32 offset:{4608+4160}')
    FA = [96, 160]; FB = [128, 192]
    def rdA(r, buf):
        L = []
        for mq in range(8):
            o = 128 * (mq & 1) + 16 * r
            f = FA[buf] + 4 * mq
            L.append(f'ds_read2_b32 v[{f}:{f+1}], v{VA+(mq>>1)} offset0:{o} offset1:{o+1}')
            L.append(f'ds_read2_b32 v[{f+2}:{f+3}], v{VA+(mq>>1)} offset0:{o+2} offset1:{o+3}')
        return L
    def rdB(r, buf):
        return [f'ds_read_b128 v[{FB[buf]+4*d}:{FB[buf]+4*d+3}], v{VB} offset:{512*(7-d)+64*r}' for d in range(8)]
    a.e('s_waitcnt lgkmcnt(0)')
    a.e('s_bitcmp1_b32 s85, 0')
    a.e('s_cselect_b32 s56, 0, 16')
    a.e('s_lshl_b32 s89, s89, s56')
    a.e('s_and_b32 s89, s89, 0xffff0000')
    for l in rdA(0, 0): a.e(l)
    npf = 0; wpl = []
    if opt('wpf', 1):
        RS = opt('rs', 0)
        if RS:
            a.e('s_mul_i32 s56, s2, 28672')
            a.e(f's_and_b32 s57, s{S_W}, 1')
            a.e('s_mul_i32 s57, s57, 14336')
            a.e('s_add_u32 s56, s56, s57')
            a.e(f's_cmp_ge_u32 s{S_W}, 2')
            a.e('s_cselect_b32 s58, 14336, 0')
            a.e('v_lshlrev_b32 v41, 7, v2')
            a.e('v_add_u32 v43, 8192, v41')
            for n_, P_ in enumerate((P_W1, P_W3, P_W2)[:opt('wpn', 3)]):
                sd = (40, 32, 44)[n_]
                srd(a, sd, P_, None, 0, 56)
                a.e(f's_mov_b32 s{sd+2}, s58')
                for v_ in (41, 43):
                    wpl.append(lambda sd=sd, v_=v_: a.e(f'buffer_load_dword v42, v{v_}, s[{sd}:{sd+3}], 0 offen'))
        else:
            wfr = opt('la', 2) / 2
            a.e(f's_mul_i32 s56, s2, {int(7168*wfr)}')
            a.e(f's_mul_i32 s57, s{S_W}, {int(1792*wfr)}')
            a.e('s_add_u32 s56, s56, s57')
            a.e('v_lshlrev_b32 v41, 7, v2')
            for n_, P_ in enumerate((P_W1, P_W3, P_W2)[:opt('wpn', 2)]):
                sd = (40, 32, 44)[n_]
                if n_ == 0 and WP0:
                    if WP0 == 4: continue
                    a.e(f's_mul_i32 s58, s2, {7168*(4-WP0)}')
                    a.e(f's_mul_i32 s57, s{S_W}, {1792*(4-WP0)}')
                    a.e('s_add_u32 s58, s58, s57')
                    srd(a, sd, P_, 1792 * (4 - WP0), 1835008 * WP0, 58)
                else:
                    srd(a, sd, P_, int(1792 * wfr), 0, 56)
                wpl.append(lambda sd=sd: a.e(f'buffer_load_dword v42, v41, s[{sd}:{sd+3}], 0 offen'))
    w2e = []
    if opt('w2e', 2):
        a.e('s_and_b32 s56, s2, 127')
        a.e('s_mul_i32 s56, s56, 6144')
        a.e('s_lshr_b32 s57, s2, 7')
        a.e('s_mul_i32 s57, s57, 3670016')
        a.e('s_add_u32 s56, s56, s57')
        a.e(f's_mul_i32 s57, s{S_W}, 1536')
        a.e('s_add_u32 s56, s56, s57')
        srd(a, 44, P_W2, 1536, 0, 56)
        t_ = 'buffer_load_dword v42, v41, s[44:47], 0 offen'
        if opt('w2e', 2) == 1:
            a.e(t_); npf += 1
        else:
            w2e = [lambda: a.e(t_)]
    g1 = G1(a)
    g2 = G2(a)
    g2.front_setup()
    g1.setup_dma()
    assert npf == 0
    a.e('v_and_b32 v34, 31, v2')
    a.e(f'v_lshlrev_b32 v34, {fsh()}, v34')
    a.e(f's_lshl_b32 s56, s82, {5+fsh()}')
    wait_flags(a, 56, 34, 35)
    stamp(a, 3)
    a.e('s_lshl_b32 s56, s82, 19')
    UR = 8
    for i in range(4):
        a.e(f's_add_u32 s57, s56, {(24-8*i)*16384:#x}')
        a.e(f'buffer_load_dwordx4 v[{UR+4*i}:{UR+4*i+3}], v3, s[48:51], s57 offen sc1')
    if XPOS == 2:
        x_loads(); npf += 4
    for i in range(4):
        a.e(f's_waitcnt vmcnt({npf+3-i})')
        a.e(f'ds_write_b128 v7, v[{UR+4*i}:{UR+4*i+3}] offset:{1024*i}')
    a.e('s_waitcnt lgkmcnt(0)')
    for l in rdB(0, 0): a.e(l)
    stamp(a, 4)
    LK = Lin(a)
    g1e = [[(lambda l=l: a.e(l)) for l in grp] for grp in g1.early_dma()]
    def grp(fs): return lambda: [f() for f in fs]
    g1e = [grp(x) for x in g1e]
    fillr = {r: [] for r in range(8)}
    p01 = g2.fD([(0, 2), (1, 3)])
    nk01 = 0
    NF0 = opt('nf0', 4)
    if not RS and NF0 >= 2:
        fillr[6] += p01[:5]; fillr[7] += p01[5:]; nk01 = 8
    fillr[0] += w2e
    for n_, f_ in enumerate(wpl): fillr[opt('wpr', 1 if RS else 2) + n_ * opt('wps', 1 if RS else 2)].append(f_)
    UE = 8
    for r in range(8):
        buf = r & 1
        if r < 7:
            A_, B_ = rdA(r + 1, buf ^ 1), rdB(r + 1, buf ^ 1)
            nxt = []
            for x in range(8): nxt += [B_[x], A_[2 * x], A_[2 * x + 1]]
        else:
            a.e('v_lshlrev_b32 v32, 5, v5')
            a.e('v_lshl_add_u32 v32, v6, 3, v32')
            a.e(f'v_sub_u32 v34, {4088-3584}, v32')
            a.e('v_add_u32 v34, s88, v34')
            a.e('v_add_u32 v35, s88, v32')
            nxt = [f'ds_read_b64 v[{UE+2*c}:{UE+2*c+1}], v34 offset:{512*(7-c)}' for c in range(8)]
        a.e('s_waitcnt lgkmcnt(0)')
        fl = list(fillr[r]); evr = 36 // max(1, len(fl))
        k = 0
        for mq in range(8):
            for d in range(8 - mq):
                c = mq + d
                fa = FA[buf] + 4 * mq; fb = FB[buf] + 4 * d
                a.e(f'v_mfma_f32_16x16x32_bf16 v[{ACC+4*c}:{ACC+4*c+3}], v[{fa}:{fa+3}], v[{fb}:{fb+3}], v[{ACC+4*c}:{ACC+4*c+3}]')
                if k < len(nxt):
                    a.e(nxt[k])
                if fl and k % evr == evr - 1: fl.pop(0)()
                k += 1
        assert not fl, (r, len(fl))
    a.e('s_waitcnt lgkmcnt(0)')
    stamp(a, 5)
    a.e('L_kbcode:')
    X = 96
    for c in range(8):
        unpack(a, X + 4 * c + 3, X + 4 * c + 2, UE + 2 * c)
        unpack(a, X + 4 * c + 1, X + 4 * c + 0, UE + 2 * c + 1)
    for c in range(8):
        for r in range(4):
            a.e(f'v_fma_f32 v{X+4*c+r}, v{X+4*c+r}, s89, v{ACC+4*c+r}')
        a.e(f'v_cvt_pk_bf16_f32 v{UE+2*c}, v{X+4*c}, v{X+4*c+1}')
        a.e(f'v_cvt_pk_bf16_f32 v{UE+2*c+1}, v{X+4*c+2}, v{X+4*c+3}')
        a.e(f'ds_write_b64 v35, v[{UE+2*c}:{UE+2*c+1}] offset:{4608+512*c}')
    a.flush_inject()
    LIN[0] = None
    a.e('v_lshlrev_b32 v32, 2, v0')
    a.e(f'v_add_u32 v32, {LDS_KA}, v32')
    YL_ = opt('yl', 1)
    a.e(f'v_lshrrev_b32 v33, {2+YL_}, v0')
    a.e(f'v_lshlrev_b32 v33, {14+YL_}, v33')
    a.e(f'v_and_b32 v34, {7 if YL_ else 3}, v0')
    a.e('v_lshl_add_u32 v33, v34, 4, v33')
    a.e(f's_lshl_b32 s56, s86, {6+YL_}')
    a.e('s_mov_b32 s57, 0x05040100')
    a.e('s_mov_b32 s58, 0x07060302')
    srd(a, 36, P_WS, 4 * MB, WS_Y2)
    a.e(f's_cmp_ge_u32 s{S_W}, 2')
    a.e('s_waitcnt lgkmcnt(0)')
    a.e('s_barrier')
    if RS: a.e('s_cbranch_scc1 L_y2skip')
    Y = 96; O = 128
    NP = 8 if RS else 4
    LY = Lin(a)
    def yrd(P):
        for ch in range(4):
            LY.l(P, f'ds_read_b32 v{Y+4*P+ch}, v32 offset:{ch*KA_REG+4608+4096//NP*P}')
    for P in range(4): yrd(P)
    for P in range(NP):
        LY.wait(lg=(P,))
        if P + 4 < NP: yrd(P + 4)
        y = Y + 4 * P; o = O + 4 * P
        a.e(f'v_perm_b32 v{o}, v{y+1}, v{y}, s57')
        a.e(f'v_perm_b32 v{o+1}, v{y+3}, v{y+2}, s57')
        a.e(f'v_perm_b32 v{o+2}, v{y+1}, v{y}, s58')
        a.e(f'v_perm_b32 v{o+3}, v{y+3}, v{y+2}, s58')
        a.e(f'buffer_store_dwordx4 v[{o}:{o+3}], v33, s[36:39], s56 offen sc1')
        if P < NP - 1:
            a.e(f's_add_u32 s56, s56, {256//NP*16384:#x}')
    LIN[0] = None
    if RS: a.e('L_y2skip:')
    stamp(a, 6)
    XU = [8, 24]; TT = [40, 56]; MM = [72, 74]; RR = [76, 78]; C = 80; YU = [100, 116]; XM = [140, 156]; SS = [172, 174]
    if XPOS == 2: a.e(f's_waitcnt vmcnt({len(wpl) + (1 if opt("w2e", 2) else 0) + (0 if RS else nk01 + 4)})')
    F45 = opt('f45', 0)
    if F45: a.inject(g2.fD([(2, 0), (3, 1)]), 3)
    for r in range(2):
        for q in range(8):
            unpack(a, XU[r] + 2 * q, XU[r] + 2 * q + 1, XP + 8 * r + q)
    a.flush_inject()
    a.e(f'v_mov_b32 v{C}, 0x3a800000')
    a.e(f's_lshl_b32 s87, s2, {f1sh()}')
    a.e(f's_add_u32 s87, s87, {F1}')
    def w1():
        if RS:
            a.e(f's_bitcmp1_b32 s{S_W}, 1')
            a.e('s_cbranch_scc1 L_y2nw')
            a.e('s_waitcnt vmcnt(0)')
            a.e('L_y2nw:')
            a.e(f's_cmp_eq_u32 s{S_W}, 0')
        else:
            a.e(f's_waitcnt vmcnt({8 if F45 else 0})')
    signal(a, 87, 82, waitfn=w1)
    if RS:
        a.inject(g1e[:10] + p01 + g2.fD([(2, 0), (3, 1)]), 4)
    else:
        if NF0 >= 2: g2.fM([(0, 2), (1, 3)])
        a.inject(g1e[:10] + ([] if F45 or NF0 < 4 else g2.fD([(2, 0), (3, 1)])), 12 if F45 or NF0 < 4 else 6)
    ln2(a, XU, TT, MM, RR, C, XM)
    a.flush_inject()
    a.e('v_lshlrev_b32 v5, 7, v2')
    a.e(f'v_lshlrev_b32 v139, {7+YL_}, v2')
    a.e(f'v_add_u32 v6, {0x2000 << YL_:#x}, v139')
    if YL_:
        a.e('s_lshr_b32 s82, s91, 1')
        a.e('s_lshl_b32 s82, s82, 15')
        a.e('s_and_b32 s83, s91, 1')
        a.e('s_lshl_b32 s83, s83, 6')
        a.e('s_add_u32 s82, s82, s83')
    else:
        a.e('s_lshl_b32 s82, s91, 14')
    if opt('yd', 1):
        assert YL_
        a.e(f's_lshl_b32 s83, s{S_W}, 13')
        a.e('s_add_u32 s82, s82, s83')
        a.e('v_lshrrev_b32 v176, 4, v2')
        a.e('v_xor_b32 v176, v176, v2')
        a.e('v_and_b32 v176, 3, v176')
        a.e('v_lshlrev_b32 v176, 4, v176')
        a.e('v_lshrrev_b32 v177, 2, v2')
        a.e('v_lshl_add_u32 v176, v177, 7, v176')
        for i in range(1, 4):
            a.e(f'v_add_u32 v{176+i}, {1024*i}, v176')
        a.e(f's_lshl_b32 s83, s{S_W}, 12')
        a.e(f's_add_u32 m0, s83, {LDS_KA + 16384}')
        a.e('v_bfe_u32 v180, v2, 1, 2')
        a.e(f'v_xor_b32 v180, s{S_W}, v180')
        a.e('v_lshl_add_u32 v180, v180, 4, v5')
        a.e(f'v_add_u32 v180, {LDS_KA + 16384}, v180')
    else:
        a.e(f's_lshl_b32 s83, s{S_W}, 4')
        a.e('s_add_u32 s82, s82, s83')
    srd(a, 40, P_WS, 4 * MB, WS_H)
    srd(a, 44, P_WS, 4 * MB, WS_HNF)
    a.e('v_and_b32 v7, 7, v2')
    a.e(f's_lshl_b32 s83, s{S_W}, 1')
    a.e('v_xor_b32 v132, s83, v7')
    a.e('v_lshl_add_u32 v132, v132, 4, v5')
    a.e(f'v_add_u32 v132, {LDS_KA}, v132')
    a.e('v_xor_b32 v133, 16, v132')
    a.e('v_lshrrev_b32 v134, 3, v2')
    a.e('v_xor_b32 v135, v134, v7')
    a.e('v_lshlrev_b32 v135, 4, v135')
    a.e('v_lshl_add_u32 v135, v134, 7, v135')
    a.e(f's_lshl_b32 s83, s{S_W}, 12')
    a.e(f's_add_u32 s83, s83, {LDS_KA}')
    a.e('v_add_u32 v135, s83, v135')
    HC = opt('hc', 0)
    if HC:
        a.e('v_lshlrev_b32 v136, 4, v2')
        a.e('s_lshl_b32 s84, s91, 14')
        a.e(f's_lshl_b32 s85, s{S_W}, 12')
        a.e('s_add_u32 s84, s84, s85')
    else:
        a.e('v_lshrrev_b32 v136, 5, v2')
        a.e('v_lshlrev_b32 v136, 12, v136')
        a.e('v_bfe_u32 v137, v2, 3, 2')
        a.e('v_lshl_add_u32 v136, v137, 8, v136')
        a.e('v_lshl_add_u32 v136, v7, 4, v136')
        a.e('s_lshr_b32 s84, s91, 3')
        a.e('s_lshl_b32 s84, s84, 17')
        a.e('s_bfe_u32 s85, s91, 0x20001')
        a.e('s_lshl_b32 s85, s85, 10')
        a.e('s_add_u32 s84, s84, s85')
        a.e('s_and_b32 s85, s91, 1')
        a.e('s_lshl_b32 s85, s85, 7')
        a.e('s_add_u32 s84, s84, s85')
        a.e(f's_lshl_b32 s85, s{S_W}, 15')
        a.e('s_add_u32 s84, s84, s85')
    a.e(f's_mov_b32 s85, {F1}')
    a.e('s_waitcnt lgkmcnt(0)')
    stamp(a, 7)
    a.e(f'v_lshlrev_b32 v138, {4 if f1sh() == 2 else f1sh()}, v2')
    wait_flags(a, 85, 138, 128, n=256)
    stamp(a, 8)
    YL = 84
    YD = opt('yd', 1)
    if YD:
        for i in range(4):
            a.e(f'buffer_load_dwordx4 v{176+i}, s[36:39], s82 offen offset:{1024*i} sc1 lds')
    else:
        a.e(f'buffer_load_dwordx4 v[{YL}:{YL+3}], v139, s[36:39], s82 offen sc1')
        a.e(f'buffer_load_dwordx4 v[{YL+4}:{YL+7}], v139, s[36:39], s82 offen offset:{64 << YL_} sc1')
        a.e(f'buffer_load_dwordx4 v[{YL+8}:{YL+11}], v6, s[36:39], s82 offen sc1')
        a.e(f'buffer_load_dwordx4 v[{YL+12}:{YL+15}], v6, s[36:39], s82 offen offset:{64 << YL_} sc1')
    a.e('s_waitcnt vmcnt(4)')
    if NF0 == 4: g2.fM(([(0, 2), (1, 3)] if RS else []) + [(2, 0), (3, 1)])
    if YD:
        a.e('s_waitcnt vmcnt(0)')
        a.e('s_barrier')
        a.e(f'ds_read_b128 v[{YL}:{YL+3}], v180')
        a.e(f'ds_read_b128 v[{YL+4}:{YL+7}], v180 offset:64')
        a.e(f'ds_read_b128 v[{YL+8}:{YL+11}], v180 offset:8192')
        a.e(f'ds_read_b128 v[{YL+12}:{YL+15}], v180 offset:8256')
    for cgi in range(4):
        a.e(f's_waitcnt {"lgkm" if YD else "vm"}cnt({3-cgi})')
        for r in range(2):
            for e in range(2):
                u = YU[r] + 4 * cgi + 2 * e
                unpack(a, u, u + 1, YL + 4 * cgi + 2 * r + e)
        for r in range(2):
            for e in range(2):
                u = YU[r] + 4 * cgi + 2 * e; x = XM[r] + 4 * cgi + 2 * e; t = TT[r] + 4 * cgi + 2 * e
                a.e(f'v_pk_fma_f32 v[{x}:{x+1}], v[{t}:{t+1}], v[{u}:{u+1}], v[{x}:{x+1}]')
        for r in range(2):
            for e in range(2):
                x = XM[r] + 4 * cgi + 2 * e
                if cgi == 0 and e == 0:
                    a.e(f'v_pk_mul_f32 v[{RR[r]}:{RR[r]+1}], v[{x}:{x+1}], v[{x}:{x+1}]')
                else:
                    a.e(f'v_pk_fma_f32 v[{RR[r]}:{RR[r]+1}], v[{x}:{x+1}], v[{x}:{x+1}], v[{RR[r]}:{RR[r]+1}]')
            x = XM[r] + 4 * cgi
            if cgi == 0: a.e(f'v_pk_add_f32 v[{SS[r]}:{SS[r]+1}], v[{x}:{x+1}], v[{x+2}:{x+3}]')
            else:
                a.e(f'v_pk_add_f32 v[{SS[r]}:{SS[r]+1}], v[{x}:{x+1}], v[{SS[r]}:{SS[r]+1}]')
                a.e(f'v_pk_add_f32 v[{SS[r]}:{SS[r]+1}], v[{x+2}:{x+3}], v[{SS[r]}:{SS[r]+1}]')
    if opt('kbst'): stamp(a, 16)
    for r in range(2):
        a.e(f'v_add_f32 v{SS[r]}, v{SS[r]}, v{SS[r]+1}')
        a.e(f'v_add_f32 v{RR[r]}, v{RR[r]}, v{RR[r]+1}')
    fl_ = []
    for r in range(2):
        for q in range(8):
            u = YU[r] + 2 * q; x = XU[r] + 2 * q; t = TT[r] + 2 * q
            fl_.append(f'v_pk_fma_f32 v[{x}:{x+1}], v[{t}:{t+1}], v[{u}:{u+1}], v[{x}:{x+1}]')
    for r in range(2):
        for q in range(8):
            fl_.append(f'v_cvt_pk_bf16_f32 v{XP+8*r+q}, v{XU[r]+2*q}, v{XU[r]+2*q+1}')
    for mod in ('row_shr:1 row_mask:0xf bank_mask:0xf bound_ctrl:0', 'row_shr:2 row_mask:0xf bank_mask:0xf bound_ctrl:0',
                'row_shr:4 row_mask:0xf bank_mask:0xf bound_ctrl:0', 'row_shr:8 row_mask:0xf bank_mask:0xf bound_ctrl:0',
                'row_bcast:15 row_mask:0xa bank_mask:0xf', 'row_bcast:31 row_mask:0xc bank_mask:0xf'):
        for v in (SS[0], SS[1], RR[0], RR[1]):
            a.e(f'v_add_f32_dpp v{v}, v{v}, v{v} {mod}')
    for i, v in enumerate((SS[0], SS[1], RR[0], RR[1])):
        a.e(f'v_readlane_b32 s{56+i}, v{v}, 63')
    def both(f):
        for r in range(2): f(r)
        if fl_: a.e(fl_.pop(0))
        if fl_: a.e(fl_.pop(0))
    def rbf(v):
        a.e(f'v_cvt_pk_bf16_f32 v{v}, v{v}, v{v}')
        a.e(f'v_and_b32 v{v}, s{S_MASK}, v{v}')
    both(lambda r: a.e(f'v_mul_f32 v{SS[r]}, s{56+r}, v{C}'))
    both(lambda r: a.e(f'v_mul_f32 v{RR[r]}, s{58+r}, v{C}'))
    both(lambda r: a.e(f'v_fma_f32 v{RR[r]}, -v{SS[r]}, v{SS[r]}, v{RR[r]}'))
    both(lambda r: a.e(f'v_max_f32 v{RR[r]}, 0, v{RR[r]}'))
    both(lambda r: rbf(RR[r]))
    both(lambda r: a.e(f'v_add_f32 v{RR[r]}, 0x3727c5ac, v{RR[r]}'))
    both(lambda r: rbf(RR[r]))
    both(lambda r: a.e(f'v_sqrt_f32 v{RR[r]}, v{RR[r]}'))
    both(lambda r: a.e(f'v_add_f32 v{SS[r]}, v{SS[r]}, v{MM[r]}'))
    both(lambda r: rbf(RR[r]))
    both(lambda r: a.e(f'v_rcp_f32 v{RR[r]}, v{RR[r]}'))
    both(lambda r: rbf(SS[r]))
    if opt('hs', 0): both(lambda r: a.e(f'v_mul_f32 v{RR[r]}, 0x3fb8aa3b, v{RR[r]}'))
    both(lambda r: a.e(f'v_sub_f32 v{SS[r]}, v{MM[r]}, v{SS[r]}'))
    both(lambda r: a.e(f'v_mul_f32 v{SS[r]}, v{SS[r]}, v{RR[r]}'))
    nh = len(fl_)
    for q in range(8):
        for r in range(2):
            x = XM[r] + 2 * q
            a.e(f'v_pk_fma_f32 v[{TT[r]+2*q}:{TT[r]+2*q+1}], v[{x}:{x+1}], v[{RR[r]}:{RR[r]+1}], v[{SS[r]}:{SS[r]+1}] op_sel_hi:[1,0,0]')
    for r in range(2):
        for q in range(8):
            a.e(f'v_cvt_pk_bf16_f32 v{YL+8*r+q}, v{TT[r]+2*q}, v{TT[r]+2*q+1}')
        for hh in range(2):
            a.e(f'ds_write_b128 v{132+r}, v[{YL+8*r+4*hh}:{YL+8*r+4*hh+3}] offset:{8192*hh}')
    for t_ in fl_: a.e(t_)
    a.e('s_waitcnt lgkmcnt(0)')
    a.e('s_barrier')
    for i in range(4):
        a.e(f'ds_read_b128 v[{100+4*i}:{103+4*i}], v135 offset:{1024*i}')
    for i in range(4):
        a.e(f's_waitcnt lgkmcnt({3-i})')
        if HC:
            a.e(f'buffer_store_dwordx4 v[{100+4*i}:{103+4*i}], v136, s[44:47], s84 offen offset:{1024*i} sc1')
        else:
            a.e(f'buffer_store_dwordx4 v[{100+4*i}:{103+4*i}], v136, s[44:47], s84 offen sc1')
            if i < 3: a.e('s_add_u32 s84, s84, 8192')
    stamp(a, 9)
    a.e(f's_lshl_b32 s87, s91, {fsh()}')
    a.e(f's_add_u32 s87, s87, {F2}')
    g2.front_save()
    if opt('s2e', 0):
        assert not F45
        signal(a, 87, 4)
        g1.pre_setup([])
    else:
        g1.pre_setup(g2.fD([(4, 0), (5, 1)], dv=28) if F45 else [])
        signal(a, 87, 4, waitfn=lambda: a.e(f's_waitcnt vmcnt({8 if F45 else 0})'))
    g2.NF = 8 if F45 else NF0 + 2
    def mv45():
        if not F45: return
        a.e('v_add_u32 v4, s73, v7')
        a.e('v_xor_b32 v5, 32, v4')
        a.e('s_waitcnt vmcnt(8)')
        g2.fM([(4, 0), (5, 1)], base=4)
    g1.hook = mv45
    g1.main()
    g1.epilogue(g2)
    g2.main()
    a.e(f's_or_b32 s57, s2, s{S_W}')
    a.e('s_cmp_lg_u32 s57, 0')
    a.e('s_cbranch_scc1 L_clean_skip')
    srd(a, 32, P_DBG, 256)
    a.e('v_mov_b32 v20, 0')
    a.e('s_mov_b64 exec, 1')
    a.e('buffer_store_dword v20, v20, s[32:35], 0 offen sc1')
    a.e('s_mov_b64 exec, -1')
    a.e('L_clean_skip:')
    stamp_out(a, NSTAMP)
    a.e('L_end:')
    a.e('s_endpgm')

G1_STG = 32768
class G1:
    TM, NW, DPW, ND = 4, 4, 8, 4
    ACC, WF, TF, DV, VT, VR, VL = 32, 0, 28, 8, 16, 17, 18
    DVE = 240
    def __init__(s, a): s.a = a
    def setup_dma(s):
        a = s.a
        a.e('s_and_b32 s56, s81, 1')
        a.e('s_lshl_b32 s56, s56, 1')
        a.e('s_movk_i32 s57, 4682')
        a.e('s_movk_i32 s58, 7168')
        a.e('v_mov_b32 v76, 0x80000000')
        a.e('v_subrev_u32 v77, 8, v2')
        for src, dst in ((2, 78), (77, 79)):
            a.e(f'v_cmp_gt_u32 vcc, 56, v{src}')
            a.e(f'v_mul_u32_u24 v80, s57, v{src}')
            a.e('v_lshrrev_b32 v80, 16, v80')
            a.e('v_mul_u32_u24 v81, 14, v80')
            a.e(f'v_sub_u32 v81, v{src}, v81')
            a.e('v_add_u32 v81, s56, v81')
            a.e('v_subrev_u32 v82, 14, v81')
            a.e('v_min_u32 v81, v81, v82')
            a.e('v_mul_u32_u24 v80, s58, v80')
            a.e('v_lshl_add_u32 v80, v81, 4, v80')
            a.e(f'v_cndmask_b32 v{dst}, v76, v80, vcc')
        for i in range(8):
            pat = 79 if (i >> 1) & 1 else 78
            c = i * 4 * 7168 - 1024 * (i & 3)
            a.e(f'v_add_u32 v{s.DVE+i}, {c}, v{pat}' if c else f'v_mov_b32 v{s.DVE+i}, v{pat}')
        a.e(f's_and_b32 s56, s{S_W}, 1')
        a.e(f's_lshr_b32 s57, s{S_W}, 1')
        a.e(f's_mul_i32 s97, s56, {8*4*7168}')
        a.e('s_mov_b32 s100, 458752')
        a.e('s_lshl_b32 s98, s57, 14')
        a.e('s_lshl_b32 s56, s56, 13')
        a.e('s_add_u32 s98, s98, s56')
        a.e('s_mul_i32 s56, s81, 224')
        a.e('s_cmp_eq_u32 s57, 0')
        a.e(f's_cselect_b32 s52, s{P_W1}, s{P_W3}')
        a.e(f's_cselect_b32 s53, s{P_W1+1}, s{P_W3+1}')
        srd(a, 52, 52, None, 0, 56)
        a.e('s_sub_u32 s54, 7340032, s56')
    def m0set(s, i): return f's_add_u32 m0, s98, {4096*(i//4)}' if i else 's_mov_b32 m0, s98'
    def dma(s, i, base): return f'buffer_load_dwordx4 v{base+i}, s[52:55], s97 offen offset:{1024*(i&3)}' + ['', ' sc1', ' nt', ' sc0'][opt('wfl')] + ' lds'
    def dma_adv(s): return ['s_add_u32 s97, s97, s100', f's_add_u32 s98, s98, {G1_STG}', 's_and_b32 s98, s98, 0x1ffff']
    def early_dma(s):
        out = []
        for st in range(2):
            for i in range(8):
                if i % 4 == 0: out.append([s.m0set(i)])
                out.append([s.dma(i, s.DVE)] + (s.dma_adv() if i == 7 else []))
        return out
    def tok(s, k, tm):
        f = s.TF + 4 * (4 * (k % s.ND) + tm)
        if opt('hc', 0):
            return f'buffer_load_dwordx4 a[{f}:{f+3}], v{(3, 25, 26, 27)[tm]}, s[32:35], s82 offen sc1'
        return f'buffer_load_dwordx4 a[{f}:{f+3}], v{s.VT}, s[32:35], s82 offen offset:{tm*1024}' + (' sc1' if opt('t1sc', 1) else '')
    def rd(s, ph, t):
        j, mat = (ph & 3) >> 1, ph & 1
        return [f'ds_read_b64_tr_b16 a[{s.WF+4*t+2*h}:{s.WF+4*t+2*h+1}], v{s.VR} offset:{8192*j+1024*h+32*t+16384*mat}' for h in range(2)]
    def pre_setup(s, inj):
        a = s.a
        for i in range(8): a.e(f'v_mov_b32 v{s.DV+i}, v{s.DVE+i}')
        for i in range(16): a.e(f'v_accvgpr_write_b32 a{92+i}, v{224+i}')
        zero_acc(a, s.ACC, 224, 20)
        a.e(f'v_lshlrev_b32 v{s.VT}, 4, v2')
        a.e('v_lshrrev_b32 v4, 4, v2')
        a.e('v_lshlrev_b32 v4, 11, v4')
        a.e('v_bfe_u32 v5, v2, 4, 1')
        a.e('v_lshl_add_u32 v4, v5, 7, v4')
        a.e('v_bfe_u32 v6, v2, 2, 2')
        a.e('v_mul_u32_u24 v5, 224, v6')
        a.e('v_and_b32 v6, 3, v2')
        a.e('v_lshl_add_u32 v5, v6, 3, v5')
        a.e(f'v_add_u32 v{s.VL}, v4, v5')
        a.e(f'v_mov_b32 v{s.VR}, v{s.VL}')
        if opt('hc', 0):
            a.e('v_bfe_u32 v4, v2, 3, 1')
            a.e('v_lshlrev_b32 v4, 14, v4')
            a.e('v_lshrrev_b32 v5, 4, v2')
            a.e('v_lshl_add_u32 v4, v5, 7, v4')
            a.e('v_and_b32 v5, 7, v2')
            a.e('v_lshl_add_u32 v3, v5, 4, v4')
            for i in range(1, 4): a.e(f'v_add_u32 v{24+i}, {32768*i}, v3')
        if opt('f2w', 0):
            a.e('v_and_b32 v19, 7, v2')
            a.e(f's_lshl_b32 s56, s{S_W}, 3')
            a.e('v_add_u32 v19, s56, v19')
        else:
            a.e('v_and_b32 v19, 31, v2')
        a.e(f'v_lshlrev_b32 v19, {fsh()}, v19')
        a.e('s_lshl_b32 s56, s80, 2')
        a.e(f's_add_u32 s56, s56, s{S_W}')
        a.e('s_lshl_b32 s57, s56, 17')
        srd(a, 32, P_WS, 131072, WS_HNF, 57)
        hf_base(a, 57, 80, S_W, 58)
        srd(a, 36, P_WS, 4 * 114688, 0, 57)
        a.e('s_and_b32 s58, s81, 1')
        a.e('s_mul_i32 s85, s81, 7')
        a.e('s_add_u32 s85, s85, s58')
        a.e('s_lshl_b32 s85, s85, 9')
        a.e('s_movk_i32 s86, 3072')
        a.e('s_cmp_eq_u32 s58, 0')
        a.e(f's_cselect_b32 s86, s86, {0xfffffe00 if opt("hl", 1) else 0xfffffc08:#x}')
        a.e('s_add_u32 s86, s86, s85')
        assert not inj
    def kof(s, s_, P): return 2 * s_ + (-1, 0, 0, 1)[P]
    def ev_ins(s, e):
        L = []
        if e[0] == 'D':
            if e[2] % 4 == 0: L.append(s.m0set(e[2]))
            L.append(s.dma(e[2], s.DV))
            if e[2] == 7: L += s.dma_adv()
        elif e[0] == 'Z':
            fl = ['', ' sc1'][opt('ps', 0) - 1]
            u = e[2]
            if u < 3: L = [f'buffer_store_dwordx4 v[24:27], v{s.VT}, s[36:39], s88 offen offset:{1024*u}{fl}']
            else: L = [f'buffer_store_dwordx2 v[24:25], v{s.VT}, s[36:39], s89 offen{fl}', 's_add_u32 s88, s88, 114688', 's_add_u32 s89, s89, 114688']
        elif e[0] == 'Q':
            L = [f'buffer_store_dwordx4 v[24:27], v{s.VT}, s[44:47], s99 offen', 's_add_u32 s99, s99, 1024']
        elif e[0] == 'V':
            L = ['s_mov_b32 m0, s89', 'buffer_load_dwordx4 v28, s[68:71], s72 offen lds', 's_add_u32 s72, s72, 32768', 's_add_u32 s89, s89, 1024']
        elif e[0] == 'U':
            if e[2] == 0: L = ['buffer_load_dword v22, v6, s[48:51], s101 offen']
            else: L = ['buffer_load_dword v22, v6, s[4:7], s101 offen', 's_add_u32 s101, s101, 917504']
        elif e[0] == 'C':
            L = ['global_load_dword v22, v23, s[78:79]', f's_cmp_ge_u32 s84, {opt("cpt", 5)}', 's_cselect_b32 s99, -1, 0', 'v_and_b32 v23, s99, v24']
        elif e[0] == 'Y':
            L = ['buffer_load_dword v22, v21, s[44:47], s88 offen', 's_add_u32 s88, s88, 1024']
        else:
            L.append(s.tok(e[1], e[2]))
            if e[2] == 3: L.append(f's_add_u32 s82, s82, {512 if opt("hc", 0) else 4096}')
        return L
    def main(s):
        a = s.a
        S = s.S = Sched()
        for s_ in range(-4, 8):
            for P in range(4):
                S.mark((s_, P))
                k = s.kof(s_, P) + s.ND - 1
                t0 = 2 if P in (0, 2) else 0
                S.add([('D', s_ + 2, 2 * P), ('T', k, t0), ('D', s_ + 2, 2 * P + 1), ('T', k, t0 + 1)])
                if opt('w2y', 0 if opt('rs', 0) else 1) and s_ % 2 == 0 and P == 1: S.add([('Y', s_, 0)])
                if opt('la', 2) < 8 and P == (3 if s_ % 2 == 0 else 2): S.add([('U', s_, s_ % 2)])
                if opt('vev', 1) and s_ % 2 == 1 and P == 1: S.add([('V', s_, 0)])
                if opt('cpg', 1) and s_ % 2 == 1 and P == 3: S.add([('C', s_, 0)])
                if opt('psx', 0) and P == 2 and s_ & 1: S.add([('Q', s_, 0)])
                if opt('ps', 0) and P in (1, 3): S.add([('Z', s_, 2 * (s_ & 1) + (P >> 1))])
        vm_bar = min(S.younger(('D', 4), (4, 0)), S.younger(('D', 5), (5, 0)))
        vm_p1 = min(S.younger(('T', 8), (4, 1)), S.younger(('T', 10), (5, 1)))
        vm_p3 = min(S.younger(('T', 9), (4, 3)), S.younger(('T', 11), (5, 3)))
        if opt('w2y', 0 if opt('rs', 0) else 1):
            a.e('s_mul_i32 s56, s2, 28672')
            a.e(f's_mul_i32 s57, s{S_W}, 7168')
            a.e('s_add_u32 s56, s56, s57')
            srd(a, 44, P_W2, 7168, 0, 56)
            a.e('v_min_u32 v21, 8, v2')
            a.e('v_lshlrev_b32 v21, 7, v21')
            a.e('s_mov_b32 s88, 0')
        a.e(f's_lshl_b32 s56, s80, {5+fsh()}')
        a.e(f's_add_u32 s56, s56, {F2}')
        if opt('psx', 0):
            srd(a, 44, P_WS, 8 * MB, WS_XP)
            a.e('s_lshl_b32 s99, s2, 2')
            a.e(f's_add_u32 s99, s99, s{S_W}')
            a.e('s_lshl_b32 s99, s99, 13')
        if opt('ps', 0):
            a.e('s_mov_b32 s88, s85')
            a.e('s_mov_b32 s89, s86')
            for r in range(4): a.e(f'v_mov_b32 v{24+r}, 0')
        a.e('s_add_u32 s89, s73, 98304')
        if opt('la', 2) < 8:
            a.e('s_mul_i32 s57, s2, 3584')
            a.e(f's_mul_i32 s58, s{S_W}, 896')
            a.e('s_add_u32 s57, s57, s58')
            srd(a, 48, P_W1, None, 0, 57)
            a.e('s_sub_u32 s50, 7340032, s57')
            srd(a, 4, P_W3, None, 0, 57)
            a.e('s_mov_b32 s6, s50')
            a.e(f's_mov_b32 s101, {917504 * opt("la", 2)}')
            a.e('v_min_u32 v6, 6, v2')
            a.e('v_lshlrev_b32 v6, 7, v6')
        if opt('cpg', 1):
            a.e('s_getpc_b64 s[78:79]')
            a.e('L_pcg:')
            a.e(f's_lshl_b32 s77, s{S_W}, 13')
            a.e('s_add_u32 s77, s77, L_g1epi-L_pcg')
            a.e('v_lshl_add_u32 v24, v2, 7, s77')
            a.e('v_min_u32 v24, L_end-L_pcg, v24')
            a.e('v_mov_b32 v23, 0')
        a.e('s_mov_b32 s82, 0')
        a.e('s_mov_b32 s83, 0')
        a.e('s_mov_b32 s84, 0')
        stamp(a, 10)
        d1 = [('D', 1, i) for i in range(8)] + [('D', 2, 0), ('D', 2, 1)]
        for e in d1:
            for l in s.ev_ins(e):
                a.e(l)
                if 'm0' in l: a.e('s_nop 0')
        s.hook()
        for t in range(6):
            for l in s.rd(0, t): a.e(l)
        a.e('s_waitcnt lgkmcnt(12)')
        wait_flags(a, 56, 19, 20, solo=0 if opt('f2w', 0) else None)
        stamp(a, 11)
        XE = opt('xe', 1)
        pro = d1 + [e for e in S.ev[:S.marks[(0, 1)]] if e[1] >= 0 and e[0] == 'T'] + ([] if XE else [('X', i, 0) for i in range(4)]) + [('U', -1 - i // 2, i & 1) for i in range(2 * opt('lx', 0))]
        for e in pro[len(d1):]:
            if e[0] == 'X':
                a.e(f'buffer_store_dwordx4 a[{92+4*e[1]}:{95+4*e[1]}], v{s.VT}, s[40:43], s96 offen offset:{1024*e[1]} sc1')
                continue
            for l in s.ev_ins(e):
                a.e(l)
                if 'm0' in l: a.e('s_nop 0')
        act = pro + S.ev[S.marks[(0, 1)]:]
        off = len(pro) - S.marks[(0, 1)]
        s.startup = {}
        need = -1
        for s_ in range(0, 6):
            for P, tags, N in ((0, [('D', s_)], vm_bar), (1, [('T', 2 * s_)], vm_p1), (3, [('T', 2 * s_ + 1)], vm_p3)):
                if (s_, P) == (0, 0): continue
                site = S.marks[(s_, P)] + off
                for tg in tags:
                    idx = [i for i, e in enumerate(act) if e[:2] == tg]
                    if not idx: continue
                    if site - max(idx) - 1 < N: need = max(need, max(idx))
        if need >= 0:
            a.e(f's_waitcnt vmcnt({S.marks[(0, 1)] + off - need - 1})')
        a.e('s_branch L_g1_P1')
        s.snake = 0
        if opt('al', 1):
            a.raw('.p2align 6')
            for _ in range(opt('alo', 0)): a.e('s_nop 0')
        a.e('L_g1_loop:')
        if opt('tw', 1):
            a.e('s_cmp_eq_u32 s84, 7')
            a.e('s_cbranch_scc0 L_g1_notw')
            for i in range(4):
                a.e(f'v_mov_b32 v{s.DV+i}, v{28+i}')
                a.e(f'v_add_u32 v{s.DV+4+i}, 131072, v{28+i}')
            a.e('s_mov_b64 s[52:53], s[68:69]')
            a.e('s_mov_b32 s54, s70')
            a.e('s_add_u32 s97, s72, 32768')
            a.e('s_mov_b32 s100, 262144')
            a.e('L_g1_notw:')
        for s_ in (4, 5):
            a.e(f's_add_u32 s83, s83, {G1_STG}')
            a.e('s_and_b32 s83, s83, 0x1ffff')
            a.e(f's_waitcnt vmcnt({vm_bar})')
            a.e('s_barrier')
            s.phase(s_, 0)
            if s_ == 4: a.e('L_g1_P1:')
            a.e(f's_waitcnt vmcnt({vm_p1})')
            s.phase(s_, 1)
            s.phase(s_, 2)
            a.e(f's_waitcnt vmcnt({vm_p3})')
            s.phase(s_, 3)
        if opt('g1st'):
            a.e('s_memtime s[66:67]')
            a.e('s_min_u32 s64, s84, 3')
            a.e('s_add_u32 s64, s64, 26')
            a.e('s_waitcnt lgkmcnt(0)')
            a.e('s_cmp_lt_u32 s84, 4')
            a.e('s_cselect_b32 s64, s64, 40')
            a.e('s_mov_b32 m0, s64')
            a.e('v_writelane_b32 v1, s66, m0')
        a.e('s_add_u32 s84, s84, 1')
        a.e('s_cmp_lt_u32 s84, 8')
        a.e('s_cbranch_scc1 L_g1_loop')
        a.e('L_g1epi:')
        s.phase(6, 0, last=True)
        stamp(a, 12)
    def phase(s, s_, P, last=False):
        a = s.a; S = s.S
        kbuf = s.kof(s_, P) % s.ND
        mat = (P + 1) & 1
        items = []
        if not last:
            nxt = S.marks[(s_, P + 1)] if P < 3 else S.marks[(s_ + 1, 0)]
            items = [s.ev_ins(e) for e in S.ev[S.marks[(s_, P)]:nxt]]
        slots = [[] for _ in range(7)]
        for p_, it in zip([1, 2, 4, 5, 6], items): slots[p_] = it
        if P == 0 and not last:
            slots[0] = [f'v_add_u32 v{s.VR}, s83, v{s.VL}']
        for t in range(7):
            a.e(f's_waitcnt lgkmcnt({10 if not (last and t) else 12-2*t})')
            R = s.rd(P - 1, 6) if t == 0 else ([] if last else s.rd(P, t - 1))
            X = list(slots[t])
            pre = [x for x in X if 'm0' in x]
            X = [x for x in X if 'm0' not in x]
            gaps = [[] for _ in range(4)]
            if R: gaps[0] = pre + [R[0]]; gaps[1] = [R[1]]
            gaps[2] = X[:1]; gaps[3] = X[1:]
            order = [0, 1, 2, 3]
            if s.snake & 1: order.reverse()
            s.snake += 1
            for n, tm in enumerate(order):
                c = s.ACC + 4 * ((mat * 7 + t) * 4 + tm)
                tf = s.TF + 4 * (4 * kbuf + tm)
                if not opt('g1x') & 1: a.e(f'v_mfma_f32_16x16x32_bf16 v[{c}:{c+3}], a[{s.WF+4*t}:{s.WF+4*t+3}], a[{tf}:{tf+3}], v[{c}:{c+3}]')
                for x in gaps[n]:
                    if opt('g1x') & 2 and x.startswith('ds_'): continue
                    if opt('g1x') & 4 and x.startswith('buffer'): continue
                    a.e(x)
    def epilogue(s, g2):
        a = s.a
        L = Lin(a)
        a.e('s_mov_b32 s58, 0xbfb8aa3b')
        a.e('s_mov_b32 s59, 0xbfb8aa3b')
        if opt('xe', 1):
            for i in range(4):
                a.e(f'buffer_store_dwordx4 a[{92+4*i}:{95+4*i}], v{s.VT}, s[40:43], s96 offen offset:{1024*i} sc1')
        g2.early(L)
        a.e('v_lshlrev_b32 v17, 3, v2')
        T = 8
        k = 0
        for tm in range(4):
            for u in range(4):
                O = (20, 24)[k & 1]
                fill = g2.epi_fill(k)
                def F(n=1):
                    for _ in range(n):
                        if fill: fill.pop(0)()
                tiles = [2 * u, 2 * u + 1] if u < 3 else [6]
                gs = []; us = []
                for t in tiles:
                    gs += [s.ACC + 4 * (t * 4 + tm), s.ACC + 4 * (t * 4 + tm) + 2]
                    us += [s.ACC + 4 * ((7 + t) * 4 + tm), s.ACC + 4 * ((7 + t) * 4 + tm) + 2]
                n = len(gs)
                nins = 9 * n
                cnt = [0]; ev_ = max(1, nins // (len(fill) + 1))
                def V(t):
                    a.e(t); cnt[0] += 1
                    if cnt[0] % ev_ == 0: F(1)
                if opt('hs', 0):
                    for q in range(2 * n): V(f'v_exp_f32 v{T+q}, -v{gs[q//2]+(q&1)}')
                else:
                    for q in range(n): V(f'v_pk_mul_f32 v[{T+2*q}:{T+2*q+1}], v[{gs[q]}:{gs[q]+1}], s[58:59]')
                    for q in range(2 * n): V(f'v_exp_f32 v{T+q}, v{T+q}')
                for q in range(n): V(f'v_pk_add_f32 v[{T+2*q}:{T+2*q+1}], v[{T+2*q}:{T+2*q+1}], 1.0 op_sel_hi:[1,0]')
                for q in range(2 * n): V(f'v_rcp_f32 v{T+q}, v{T+q}')
                for q in range(n): V(f'v_pk_mul_f32 v[{gs[q]}:{gs[q]+1}], v[{gs[q]}:{gs[q]+1}], v[{us[q]}:{us[q]+1}]')
                for q in range(n): V(f'v_pk_mul_f32 v[{T+2*q}:{T+2*q+1}], v[{T+2*q}:{T+2*q+1}], v[{gs[q]}:{gs[q]+1}]')
                for q in range(n): V(f'v_cvt_pk_bf16_f32 v{O+q}, v{T+2*q}, v{T+2*q+1}')
                if u < 3:
                    L.v('st', f'buffer_store_dwordx4 v[{O}:{O+3}], v{s.VT}, s[36:39], s85 offen offset:{1024*u}' + hfl())
                else:
                    L.v('st', f'buffer_store_dwordx2 v[{O}:{O+1}], v{17 if opt("hl", 1) else s.VT}, s[36:39], s86 offen' + hfl())
                F(len(fill))
                k += 1
            if tm < 3:
                a.e('s_add_u32 s85, s85, 114688')
                a.e('s_add_u32 s86, s86, 114688')
        a.e(f's_lshl_b32 s87, s91, {fsh()}')
        a.e(f's_add_u32 s87, s87, {F3}')
        stamp(a, 13)
        a.e('L_g2code:')
        if opt('s3e', 1):
            a.e('s_waitcnt lgkmcnt(0)')
            signal(a, 87, 5, waitfn=lambda: L.wait(vm=('st',)))
            g2.post_epilogue(bar=False)
        else:
            g2.post_epilogue()
            signal(a, 87, 5, waitfn=lambda: L.wait(vm=('st',)), wb=(opt('hfl') == 4))
        stamp(a, 18)

class G2:
    ACC, TF, DV, VT, RJ, TR, V1, VO, VF = 32, 96, 28, 16, 3, 8, 12, 13, 14
    REG = 40960
    def __init__(s, a): s.a = a
    def wreg(s, k, j):
        if k < 16: return 'a', 128 + 8 * k + 4 * j
        if k < 32: return 'a', 8 * (k - 16) + 4 * j
        NB = opt('nb', 12); nv = (160 - 4 * NB) // 8
        if k < 32 + nv: return 'v', 96 + 4 * NB + 8 * (k - 32) + 4 * j
        return 'a', 128 + 8 * (k - 32 - nv) + 4 * j
    def front_setup(s):
        a = s.a
        gm = opt('g2map', 1)
        s.pbit = 2 if gm == 2 else 1
        if gm == 2: a.e('s_bfe_u32 s76, s2, 0x10001')
        else: a.e('s_and_b32 s76, s2, 1')
        a.e('s_lshr_b32 s56, s2, 3')
        if gm:
            if gm == 2:
                a.e('s_andn2_b32 s74, 1, s2')
            else:
                a.e('s_bfe_u32 s74, s2, 0x10001')
            a.e('s_lshl_b32 s74, s74, 3')
            a.e('s_and_b32 s57, s56, 7')
            a.e('s_add_u32 s74, s74, s57')
            a.e('s_bfe_u32 s75, s2, 0x10002')
            a.e('s_lshl_b32 s75, s75, 2')
            a.e('s_lshr_b32 s57, s56, 3')
            a.e('s_add_u32 s75, s75, s57')
        else:
            a.e('s_bfe_u32 s74, s2, 0x20001')
            a.e('s_lshl_b32 s74, s74, 2')
            a.e('s_and_b32 s57, s56, 3')
            a.e('s_add_u32 s74, s74, s57')
            a.e('s_lshr_b32 s75, s56, 2')
        a.e('v_lshrrev_b32 v252, 2, v2')
        a.e('v_lshlrev_b32 v253, 11, v252')
        a.e('v_lshrrev_b32 v254, 3, v2')
        a.e('v_xor_b32 v254, v254, v2')
        a.e('v_and_b32 v254, 2, v254')
        a.e('v_and_or_b32 v254, v2, 1, v254')
        a.e('v_lshl_add_u32 v248, v254, 4, v253')
        for i in range(1, 4):
            a.e(f'v_add_u32 v{248+i}, {i*(32768-1024)}, v248')
        a.e('s_mul_i32 s56, s76, 3670016')
        a.e('s_lshl_b32 s57, s75, 8')
        a.e('s_add_u32 s56, s56, s57')
        a.e(f's_lshl_b32 s57, s{S_W}, 6')
        a.e('s_add_u32 s56, s56, s57')
        srd(a, 68, P_W2, None, 0, 56)
        a.e('s_sub_u32 s70, 7340032, s56')
        a.e('s_mov_b32 s72, 0')
        a.e('v_lshlrev_b32 v252, 6, v252')
        a.e('v_bfe_u32 v253, v2, 4, 1')
        a.e('v_lshl_add_u32 v252, v253, 5, v252')
        a.e('v_and_b32 v253, 3, v2')
        a.e('v_lshl_add_u32 v252, v253, 3, v252')
        a.e(f's_lshl_b32 s73, s{S_W}, 13')
        a.e('s_add_u32 s73, s73, 32768')
        a.e('v_add_u32 v253, s73, v252')
        a.e('v_xor_b32 v254, 32, v253')
    def fcell(s, n): return (32768, 36864, 0, 4096, 98304, 102400)[n]
    def fD(s, pairs, dv=248):
        a = s.a
        out = []
        for c, n in pairs:
            out.append(lambda n=n: a.e(f's_add_u32 m0, s73, {s.fcell(n)}'))
            for i in range(4):
                def f(i=i):
                    a.e(f'buffer_load_dwordx4 v{dv+i}, s[68:71], s72 offen offset:{1024*i} lds')
                    if i == 3: a.e('s_add_u32 s72, s72, 131072')
                out.append(f)
        return out
    def fM(s, pairs, base=253, sub=0):
        a = s.a
        for c, n in pairs:
            for kk in range(2):
                for j in range(2):
                    for h in range(2):
                        r, q = s.wreg(2 * c + kk, j)
                        a.e(f'ds_read_b64_tr_b16 {r}[{q+2*h}:{q+2*h+1}], v{base+j} offset:{s.fcell(n)-sub+2048*kk+1024*h}')
    def front_save(s):
        a = s.a
        for i in range(4): a.e(f'v_mov_b32 v{s.DV+i}, v{248+i}')
        a.e('v_mov_b32 v7, v252')
    def early(s, L):
        a = s.a; s.L = L
        a.e('s_mov_b32 s80, s74')
        a.e('s_mov_b32 s81, s75')
        a.e('s_mov_b32 s82, s76')
        a.e(f's_mul_i32 s98, s{S_W}, {s.REG}')
        a.e(f'v_add_u32 v{s.RJ}, s98, v7')
        a.e(f'v_xor_b32 v{s.RJ+1}, 32, v{s.RJ}')
        a.e('s_add_u32 s56, s73, 98304')
        a.e('v_add_u32 v5, s56, v7')
        a.e('v_xor_b32 v6, 32, v5')
        a.e(f's_waitcnt vmcnt({4 if opt("xe", 1) else 0})')
        L.vm = ['st'] * (4 if opt('xe', 1) else 0)
        mv = [(s.NF - 2, 4, 5, 98304), (s.NF - 1, 5, 5, 98304)]
        if opt('tw', 1):
            a.e('s_mov_b32 s72, s97')
            a.e('s_sub_u32 s56, s73, 32768')
            a.e('v_add_u32 v18, s56, v7')
            a.e('v_xor_b32 v19, 32, v18')
            mv += [(s.NF + i, (2, 3, 0, 1)[i], 18, 0) for i in range(4)]
            s.NF += 4
        items = []
        for c, n, base, sub in mv:
            for kk in range(2):
                for j in range(2):
                    for h in range(2):
                        r, q = s.wreg(2 * c + kk, j)
                        items.append(lambda r=r, q=q, h=h, j=j, n=n, kk=kk, base=base, sub=sub: a.e(f'ds_read_b64_tr_b16 {r}[{q+2*h}:{q+2*h+1}], v{base+j} offset:{s.fcell(n)-sub+2048*kk+1024*h}'))
        s.mv_items = items
        if opt('cpf2', 0): code_pf(a, 'L_g2code', 'L_end', 21, lambda t: L.v('cp', t))
        s.cell = {}
        s.free = list(range(10))
    def D(s, c):
        L = s.L
        def first():
            s.cell[c] = s.free.pop(0)
            L.e(f's_add_u32 m0, s98, {4096*s.cell[c]}')
        out = [first]
        for i in range(4):
            out.append(lambda i=i: L.v(('W', c), f'buffer_load_dwordx4 v{s.DV+i}, s[68:71], s72 offen offset:{1024*i} lds'))
        out.append(lambda: L.e('s_add_u32 s72, s72, 131072'))
        return out
    def M(s, c):
        L = s.L
        out = []
        for kk in range(2):
            for j in range(2):
                for h in range(2):
                    def f(kk=kk, j=j, h=h):
                        r, n = s.wreg(2 * c + kk, j)
                        L.l(('M', c), f'ds_read_b64_tr_b16 {r}[{n+2*h}:{n+2*h+1}], v{s.RJ+j} offset:{4096*s.cell[c]+2048*kk+1024*h}')
                    out.append(f)
        return out
    def Wv(s, c): return [lambda: s.L.wait(vm=(('W', c),))]
    def Fr(s, cs):
        def f():
            s.L.wait(lg0=True)
            for c in cs: s.free.append(s.cell[c])
        return [f]
    def epi_fill(s, k):
        D, M, Wv, Fr = s.D, s.M, s.Wv, s.Fr
        def cat(*xs): return [y for x in xs for y in x]
        s.A = []
        out, s.mv_items = s.mv_items[:12], s.mv_items[12:]
        return out
    def post_epilogue(s, bar=True):
        a = s.a; L = s.L
        assert not s.A
        s.NA = s.NF + opt('ne', 0) + opt('na', 3)
        if bar:
            a.e('s_waitcnt lgkmcnt(0)')
            a.e('s_barrier')
        a.inject([f for c in range(s.NF + opt('ne', 0), s.NA) for f in s.D(c)], 4)
        a.e(f'v_mov_b32 v{s.TR}, v{s.VT}')
        for q in range(1, 4):
            a.e(f'v_add_u32 v{s.TR+q}, {q*s.REG}, v{s.VT}')
        a.e(f'v_add_u32 v{s.V1}, {114688-2048}, v{s.VT}')
        for q in range(4):
            a.e(f'v_add_u32 v{24+q}, {q*s.REG}, v17')
        zero_acc(a, s.ACC, 64, 96)
        a.flush_inject()
        a.e('s_lshl_b32 s56, s80, 3')
        a.e(f's_lshl_b32 s57, s{S_W}, 1')
        a.e('s_lshl_b32 s58, s82, 2')
        a.e('s_xor_b32 s57, s57, s58')
        a.e('s_add_u32 s56, s56, s57')
        a.e('s_lshr_b32 s83, s56, 4')
        a.e('s_bfe_u32 s84, s56, 0x20002')
        hf_base(a, 57, 83, 84, 58)
        a.e('s_and_b32 s56, s56, 3')
        a.e('s_mul_i32 s56, s56, 114688')
        a.e('s_add_u32 s57, s57, s56')
        a.e('s_mul_i32 s58, s82, 57344')
        a.e('s_add_u32 s57, s57, s58')
        srd(a, 32, P_WS, 114688 + 57344, 0, 57)
        a.e('v_and_b32 v5, 15, v2')
        a.e('v_lshlrev_b32 v5, 11, v5')
        if opt('o4', 1):
            a.e('v_bfe_u32 v6, v2, 4, 1')
            a.e('v_lshl_add_u32 v5, v6, 5, v5')
            a.e('v_lshrrev_b32 v6, 5, v2')
            a.e(f'v_lshl_add_u32 v{s.VO}, v6, 4, v5')
        else:
            a.e('v_lshrrev_b32 v6, 4, v2')
            a.e(f'v_lshl_add_u32 v{s.VO}, v6, 3, v5')
        a.e('s_lshl_b32 s85, s80, 18')
        a.e('s_lshl_b32 s57, s82, 17')
        a.e('s_add_u32 s85, s85, s57')
        a.e('s_lshl_b32 s57, s81, 8')
        a.e('s_add_u32 s85, s85, s57')
        a.e(f's_lshl_b32 s57, s{S_W}, 6')
        a.e('s_add_u32 s85, s85, s57')
        a.e(f'v_and_b32 v{s.VF}, {15 if opt("f3h", 0) else 31}, v2')
        a.e(f'v_lshlrev_b32 v{s.VF}, {fsh()}, v{s.VF}')
    def main(s):
        a = s.a; L = s.L
        a.e('s_lshr_b32 s56, s80, 1')
        a.e(f's_lshl_b32 s56, s56, {5+fsh()}')
        a.e(f's_add_u32 s56, s56, {F3}')
        if opt('f3h', 0):
            a.e(f's_lshl_b32 s57, s82, {4+fsh()}')
            a.e('s_add_u32 s56, s56, s57')
            a.e(f's_lshl_b32 s97, s80, {4+fsh()}')
            a.e(f's_add_u32 s97, s97, {F3}')
        srd(a, 44, P_WS, 4 * MB, WS_H)
        a.e('s_mov_b32 s84, 0')
        L.wait(vm0=True)
        for c in range(s.NF, s.NA):
            for f in s.M(c): f()
        for f in s.Fr(range(s.NF, s.NA)): f()
        wait_flags(a, 56, s.VF, 20)
        stamp(a, 14)
        NS = 28
        slot = {}
        def TD(st):
            slot[st] = s.free.pop(0)
            out = [lambda: L.e(f's_add_u32 m0, s98, {4096*slot[st]}')]
            for i in range(4):
                v = s.VT if i < 2 else s.V1
                out.append(lambda i=i, v=v: L.v(('T', st), f'buffer_load_dwordx4 v{v}, s[32:35], s84 offen offset:{1024*i} sc1 lds'))
            out.append(lambda: (L.e('s_add_u32 s84, s84, 2048'), issued.add(st)))
            return out
        issued = set()
        NB = opt('nb', 12); KV = 32 + (160 - 4 * NB) // 8
        nxt = 0
        wc = opt('wc', 3)
        wfree, s.free = s.free[-wc:], s.free[:-wc]
        for _ in range(opt('t0', 3)):
            fs = TD(nxt); fs[0](); a.e('s_nop 0')
            for f in fs[1:]: f()
            nxt += 1
        L.wait(vm=(('T', 0),))
        a.e('s_barrier')
        X = opt('tx', 12)
        seq = [(k, tm) for k in range(56 - X) for tm in range(8)]
        seq += [(k, tm) for k in range(56 - X, 56) for tm in range(4, 8)]
        nS = len(seq)
        seq += [(k, tm) for k in range(56 - X, 56) for tm in range(4)]
        last_use = {}
        for g_, (k, tm) in enumerate(seq): last_use[k >> 1] = g_
        rdn = [0]
        def RDnext():
            if rdn[0] < 448:
                k, tm = seq[rdn[0]]
                f = s.TF + 4 * (rdn[0] % NB)
                o_ = 4096 * slot[k >> 1] + 2048 * (tm & 1) + 1024 * (k & 1)
                if k % 7 == 3 and opt('hl', 1):
                    L.l(('R', rdn[0]), f'ds_read2st64_b64 v[{f}:{f+3}], v{24+(tm>>1)} offset0:{o_//512} offset1:{o_//512+1}')
                else:
                    L.l(('R', rdn[0]), f'ds_read_b128 v[{f}:{f+3}], v{s.TR+(tm>>1)} offset:{o_}')
                rdn[0] += 1
        for _ in range(NB - 1): RDnext()
        todo = list(range(s.NA, 28)); fly = []; pend = []; freed = set(); vis = 0; wseen = set()
        assert NB - 1 <= 16
        HR = 192
        a.e('s_lshl_b32 s56, s2, 2')
        a.e(f's_add_u32 s56, s56, s{S_W}')
        a.e('s_lshl_b32 s57, s56, 13')
        a.e(f's_xor_b32 s58, s57, {0x8000 * s.pbit:#x}')
        a.e('s_lshl_b32 s56, s56, 6')
        a.e(f's_add_u32 s56, s56, {F4}')
        a.e(f's_xor_b32 s59, s56, {0x100 * s.pbit:#x}')
        srd(a, 40, P_WS, 8 * MB, WS_XP)
        srd(a, 48, P_OUT, 4 * MB)
        a.e('s_add_u32 s87, s57, 4096')
        a.e('s_add_u32 s88, s58, 4096')
        a.e('v_mov_b32 v20, 0')
        a.e(f'v_mov_b32 v21, s{S_NONCE}')
        def flag_store():
            L.wait(vm=('xs',))
            if not opt('kbst'): stamp(a, 16)
            a.e('s_mov_b64 exec, 1')
            L.v('fl', f'buffer_store_dword v21, v20, s[{S_FLG}:{S_FLG+3}], s56 offen sc1')
            a.e('s_mov_b64 exec, -1')
        BP = opt('bp', 1)
        def xstores():
            out = []
            if BP:
                for q2 in range(4):
                    def f(q2=q2):
                        c = s.ACC + 32 + 8 * q2
                        for e in range(4): a.e(f'v_cvt_pk_bf16_f32 v{c+e}, v{c+2*e}, v{c+2*e+1}')
                        if opt('degr'):
                            m_ = (0xffff << opt('degr')) & 0xffff
                            for e in range(4): a.e(f'v_and_b32 v{c+e}, {m_ * 0x10001:#x}, v{c+e}')
                        L.v('xs', f'buffer_store_dwordx4 v[{c}:{c+3}], v{s.VT}, s[40:43], s57 offen offset:{1024*q2} sc1')
                    out += [lambda: None, f]
            else:
                for q in range(8):
                    c = s.ACC + 32 + 4 * q
                    out.append(lambda q=q, c=c: L.v('xs', f'buffer_store_dwordx4 v[{c}:{c+3}], v{s.VT}, s[40:43], s{57 if q < 4 else 87} offen offset:{1024*(q&3)} sc1'))
            return out
        gF = nS + opt('tf', 48) * (448 - nS) // 64 if X else None
        for u in range(56):
            k0 = seq[8 * u][0]
            fill = []
            GM = (0, 16, 32, 44, 50)
            if opt('g2st') and u in GM:
                a.e('s_memtime s[66:67]'); a.e('s_waitcnt lgkmcnt(0)'); L.lg = []
                a.e(f'v_writelane_b32 v1, s66, {26 + GM.index(u)}')
            if s.free and nxt < NS and (u & 1 or u < 8 or not todo or len(s.free) > 1):
                fill += TD(nxt); nxt += 1
                if not todo and not fly and s.free and nxt < NS:
                    fill += TD(nxt); nxt += 1
            if not u & 1 and u >= opt('wk0', 8):
                if fly and u >= fly[0][1] + opt('wlat', 4):
                    c = fly.pop(0)[0]
                    assert 2 * c + 1 < KV or u >= 2 * c + 2 - KV
                    fill += s.Wv(c) + s.M(c)
                    pend.append(c)
                if todo and wfree:
                    c = todo.pop(0)
                    fs = s.D(c)
                    s.cell[c] = wfree.pop(0)
                    fill += [lambda c=c: L.e(f's_add_u32 m0, s98, {4096*s.cell[c]}')] + fs[1:]
                    fly.append((c, u))
            if 8 * u == nS and X:
                fill += xstores()
            if u == 44 and opt('f3h', 0):
                fill.append(lambda: L.v('hf', f'buffer_load_dword v23, v{s.VF}, s[{S_FLG}:{S_FLG+3}], s97 offen sc1'))
            if u == 52 and opt('f3h', 0):
                L.wait(vm=('hf',))
                a.e(f'v_cmp_ne_u32 vcc, s{S_NONCE}, v23')
                a.e('s_cbranch_vccz L_hok')
                wait_flags(a, 97, s.VF, 23, solo=0)
                a.e('L_hok:')
            if u == 52:
                for tm in range(4):
                    for j in range(1 if opt('o4', 1) else 2):
                        def f(tm=tm, j=j):
                            if j == 0 and tm: L.e(f's_add_u32 s86, s85, {32768*tm}')
                            if opt('o4', 1):
                                L.v('h', f'buffer_load_dwordx4 a[{4*tm}:{4*tm+3}], v{s.VO}, s[44:47], s{86 if tm else 85} offen sc1')
                            else:
                                L.v('h', f'buffer_load_dwordx2 a[{4*tm+2*j}:{4*tm+2*j+1}], v{s.VO}, s[44:47], s{86 if tm else 85} offen offset:{32*j} sc1')
                        fill.append(f)
            per = -(-(len(fill) + 1) // 8)
            SS = opt('ss', 1)
            for i in range(8):
                g_ = 8 * u + i
                k, tm = seq[g_]
                if rdn[0] < 448 and seq[rdn[0]][0] >> 1 > vis:
                    q = seq[rdn[0]][0] >> 1
                    vis = min(NS - 1, q + SS - 1) if q > 1 else q
                    assert vis in issued, (u, i, vis)
                    L.wait(vm=(('T', vis),))
                    a.e('s_barrier')
                    for q2 in list(slot):
                        if q2 not in freed and last_use[q2] < g_:
                            freed.add(q2); s.free.append(slot[q2])
                need = [('R', g_)]
                if k >> 1 not in wseen:
                    wseen.add(k >> 1)
                    assert k >> 1 not in todo and all(c != k >> 1 for c, _ in fly), (k, u)
                    need.append(('M', k >> 1))
                if g_ == gF: flag_store()
                L.wait(lg=need)
                order = [0, 1] if g_ % 2 == 0 else [1, 0]
                for n, j in enumerate(order):
                    r, w = s.wreg(k, j)
                    c = s.ACC + 4 * (2 * tm + j)
                    tf = s.TF + 4 * (g_ % NB)
                    if not opt('g2x') & 1:
                        a.e(f'v_mfma_f32_16x16x32_bf16 v[{c}:{c+3}], {r}[{w}:{w+3}], v[{tf}:{tf+3}], v[{c}:{c+3}]')
                    if n == 0:
                        RDnext()
                    else:
                        for _ in range(per):
                            if fill:
                                fill.pop(0)()
                                if 'm0' in a.lines[-1]: break
            while fill:
                if 'm0' in a.lines[-1]: a.e('s_nop 0')
                fill.pop(0)()
            for c in list(pend):
                if not any(x == ('M', c) for x in L.lg):
                    pend.remove(c)
                    (wfree if todo else s.free).append(s.cell[c])
            if not todo and wfree and not fly and not pend:
                s.free += wfree; wfree = []
        assert not todo and not fly and not pend and nxt == NS
        stamp(a, 15)
        if not X:
            a.e('s_nop 7')
            for f in xstores(): f()
            flag_store()
        wait_flags(a, 59, 20, 22, solo=0)
        stamp(a, 17)
        P1 = 96
        NL = 4 if BP else 8
        for q in range(NL):
            a.e(f'buffer_load_dwordx4 v[{P1+4*q}:{P1+4*q+3}], v{s.VT}, s[40:43], s{58 if q < 4 else 88} offen offset:{1024*(q&3)} sc1')
        H = 208
        for q in range(16):
            a.e(f'v_accvgpr_read_b32 v{HR+q}, a{q}')
        if opt('o4', 1):
            for tm in range(4):
                if tm == 3: a.e('s_nop 0')
                a.e(f'v_permlane16_swap_b32 v{HR+4*tm}, v{HR+4*tm+2}')
                a.e(f'v_permlane16_swap_b32 v{HR+4*tm+1}, v{HR+4*tm+3}')
        for q in range(16):
            unpack(a, H + 2 * q, H + 2 * q + 1, HR + q)
        a.e('s_mov_b32 s82, 0x3ef5fdf0')
        a.e('s_mov_b32 s83, 0x3ef5fdf0')
        for q in range(8):
            tm, j = q >> 1, q & 1
            if j == 0 and tm: a.e(f's_add_u32 s85, s85, 32768')
            if BP:
                if j == 0: a.e(f's_waitcnt vmcnt({3 if opt("o4", 1) else 3 + tm})')
            else: a.e('s_waitcnt vmcnt(7)')
            c = s.ACC + 4 * q
            for e in range(2):
                x = c + 2 * e; h = H + 4 * q + 2 * e
                if BP:
                    y = 128 + 2 * e
                    unpack(a, y, y + 1, P1 + 2 * q + e)
                else:
                    y = P1 + 4 * q + 2 * e
                a.e(f'v_pk_add_f32 v[{x}:{x+1}], v[{x}:{x+1}], v[{y}:{y+1}]')
                if opt('hs', 0): a.e(f'v_pk_mul_f32 v[{x}:{x+1}], v[{x}:{x+1}], s[82:83]')
                a.e(f'v_cvt_pk_bf16_f32 v{y}, v{x}, v{x+1}')
                unpack(a, x, x + 1, y)
                a.e(f'v_pk_add_f32 v[{x}:{x+1}], v[{x}:{x+1}], v[{h}:{h+1}]')
                a.e(f'v_cvt_pk_bf16_f32 v{192+2*q+e}, v{x}, v{x+1}')
            ofl = ['', ' sc1', ' nt', ' sc0 sc1'][opt('ofl')]
            if opt('o4', 1):
                assert BP
                if j == 1:
                    o = 192 + 4 * tm
                    a.e('s_nop 1')
                    a.e(f'v_permlane16_swap_b32 v{o}, v{o+2}')
                    a.e(f'v_permlane16_swap_b32 v{o+1}, v{o+3}')
                    a.e(f'buffer_store_dwordx4 v[{o}:{o+3}], v{s.VO}, s[48:51], s85 offen' + ofl)
            else:
                a.e(f'buffer_store_dwordx2 v[{192+2*q}:{192+2*q+1}], v{s.VO}, s[48:51], s85 offen offset:{32*j}' + ofl)
        LIN[0] = None

def gen_dg(a):
    d = opt('dg'); F, ia, ib = d // 10000, d // 100 % 100, d % 100
    m = opt('dgm')
    a.raw('.globl dg_kernel\n.p2align 8\n.type dg_kernel,@function\ndg_kernel:')
    a.e('s_load_dwordx2 s[10:11], s[0:1], 96')
    a.e('s_memrealtime s[12:13]')
    a.e('s_waitcnt lgkmcnt(0)')
    a.e(f's_add_u32 s10, s10, {STAMP_BASE + opt("dgw", 0) * 128:#x}')
    a.e('s_addc_u32 s11, s11, 0')
    if not m:
        a.e(f's_load_dword s4, s[10:11], {4*ia}')
        a.e(f's_load_dword s5, s[10:11], {4*ib}')
        a.e('s_waitcnt lgkmcnt(0)')
    else:
        a.e('s_mov_b32 s20, s10\ns_mov_b32 s21, s11\ns_mov_b32 s22, 0x20000\ns_mov_b32 s23, 0x20000')
        a.e('v_lshlrev_b32 v1, 7, v0')
        for i in range(16):
            a.e(f's_mov_b32 s6, {i*8192}')
            a.e(f'buffer_load_dword v{8+i}, v1, s[20:23], s6 offen offset:{4*ia}')
            a.e(f'buffer_load_dword v{24+i}, v1, s[20:23], s6 offen offset:{4*ib}')
        a.e('s_waitcnt vmcnt(0)')
        for i in range(32):
            a.e(f'v_sub_u32 v{8+i}, s12, v{8+i}')
        opa = 'v_max_u32' if m != 3 else 'v_add_u32'
        opb = {1: 'v_min_u32', 2: 'v_max_u32', 3: 'v_add_u32'}[m]
        for i in range(1, 16):
            a.e(f'{opa} v8, v8, v{8+i}')
            a.e(f'{opb} v24, v24, v{24+i}')
        a.e('s_nop 1')
        a.e('v_readlane_b32 s4, v8, 0')
        a.e('v_readlane_b32 s5, v24, 0')
        sa = 's_max_u32' if m != 3 else 's_add_u32'
        sb = {1: 's_min_u32', 2: 's_max_u32', 3: 's_add_u32'}[m]
        for l in range(1, 64):
            a.e(f'v_readlane_b32 s6, v8, {l}')
            a.e(f'v_readlane_b32 s7, v24, {l}')
            a.e('s_nop 0')
            a.e(f'{sa} s4, s4, s6')
            a.e(f'{sb} s5, s5, s7')
        a.e('s_sub_u32 s5, s4, s5')
        if m == 3: a.e('s_lshr_b32 s5, s5, 10')
        a.e('s_mov_b32 s4, 0')
        a.e('s_memrealtime s[12:13]')
        a.e('s_waitcnt lgkmcnt(0)')
    a.e('s_sub_u32 s4, s5, s4')
    a.e('s_min_u32 s4, s4, 10000')
    a.e(f's_mul_i32 s4, s4, {F}')
    a.e('L_dg:')
    a.e('s_memrealtime s[14:15]')
    a.e('s_waitcnt lgkmcnt(0)')
    a.e('s_sub_u32 s5, s14, s12')
    a.e('s_cmp_lt_u32 s5, s4')
    a.e('s_cbranch_scc1 L_dg')
    a.e('s_endpgm')

def build():
    a = Asm()
    hdr = open('cdna_kernels/' + NAME + '.s.ref').read().split('\n')
    cm = [l for l in hdr if l.startswith(';') and '@launch' not in l and 'Override launch' not in l and 'grid=ceil' not in l]
    out = '\n'.join(cm) + '\n'
    if opt('aslist') or opt('dg'):
        out += f'; @launch kernel={KNAME} grid=(256,1,1) block=(256,1,1) lds=163840\n'
        if opt('dg'): out += '; @launch kernel=dg_kernel grid=(1,1,1) block=(64,1,1) lds=0\n'
    else:
        out += '; @launch grid=(256,1,1) block=(256,1,1) lds=163840\n'
    a.raw('.amdgcn_target "amdgcn-amd-amdhsa--gfx950"')
    a.raw('.text')
    gen(a)
    if opt('dg'): gen_dg(a)
    body = a.text()
    errs = check_hazards(body)
    errs += check_waits(body, KNAME, loop_iters=2, take_fwd=('L_nonce_ok', 'L_nonce_skip', 'L_clean_skip', 'L_y2skip', 'L_y2nw', 'L_hok') + tuple(f'L_sig{i}' for i in range(20)) + tuple(f'L_poll{i}x' for i in range(20)))
    errs += check_waits(body, KNAME, loop_iters=2, take_fwd=('L_nonce_ok',) + (() if opt('solo', 1) else tuple(f'L_poll{i}x' for i in range(20))))
    for e in errs[:8]: print(e, file=sys.stderr)
    na = 256
    out += body + f'''.section .rodata,"a"
.p2align 6
.amdhsa_kernel {KNAME}
  .amdhsa_next_free_vgpr {256+na}
  .amdhsa_next_free_sgpr 102
  .amdhsa_accum_offset 256
  .amdhsa_group_segment_fixed_size 0
  .amdhsa_kernarg_size 104
  .amdhsa_user_sgpr_count 2
  .amdhsa_user_sgpr_kernarg_segment_ptr 1
  .amdhsa_system_sgpr_workgroup_id_x 1
  .amdhsa_float_denorm_mode_32 3
.end_amdhsa_kernel
'''
    if opt('dg'):
        out += '''.p2align 6
.amdhsa_kernel dg_kernel
  .amdhsa_next_free_vgpr 48
  .amdhsa_next_free_sgpr 32
  .amdhsa_accum_offset 48
  .amdhsa_group_segment_fixed_size 0
  .amdhsa_kernarg_size 104
  .amdhsa_user_sgpr_count 2
  .amdhsa_user_sgpr_kernarg_segment_ptr 1
  .amdhsa_system_sgpr_workgroup_id_x 1
.end_amdhsa_kernel
'''
    return out, errs

if __name__ == '__main__':
    outp = sys.argv[1]
    for kv in sys.argv[2:]:
        k, v = kv.split('=')
        OPT[k] = int(v)
    if opt('hnub'): WS_HNF = WS_UB
    t, errs = build()
    open(outp, 'w').write(t)
    print('written', outp, len(t), 'bytes;', len(errs), 'checker errors')
```

```python
import sys, os
from asmlib import *

NAME = 'sequential_preLN__ssm_conv_h3__glu_gated_swiglu__prompt'
KNAME = NAME + '_kernel'
MB = 1 << 20
WS0 = int(os.environ.get('WS0', '0')) * MB
WS_UB, WS_Y2, WS_H, WS_HNF, WS_HF, WS_XP, WS_FLG = [WS0 + x * MB for x in (0, 4, 8, 12, 16, 32, 40)]
STAMP_BASE = 64 * MB
OPT = {}
def opt(k, d=0): return OPT.get(k, d)

P_Q, P_K, P_V, P_SH, P_SSMK, P_D, P_X, P_W1, P_W3, P_W2, P_OUT, P_DBG, P_WS = [4 + 2 * i for i in range(13)]
S_W, S_NONCE, S_MASK = 30, 31, 90
S_FLG = 92
F0, F1, F2, F3, F4 = 0, 32768, 65536, 98304, 131072
FLG_SIZE = 262144
LDS_KA = 98304
KA_REG = 13056
NSTAMP = 20
AST = 128

def srd(a, d, p, size, add=0, addreg=None):
    if add or addreg is not None:
        if add:
            a.e(f's_add_u32 s{d}, s{p}, {add:#x}')
            a.e(f's_addc_u32 s{d+1}, s{p+1}, 0')
            if addreg is not None:
                a.e(f's_add_u32 s{d}, s{d}, s{addreg}')
                a.e(f's_addc_u32 s{d+1}, s{d+1}, 0')
        else:
            a.e(f's_add_u32 s{d}, s{p}, s{addreg}')
            a.e(f's_addc_u32 s{d+1}, s{p+1}, 0')
    else:
        a.e(f's_mov_b32 s{d}, s{p}')
        a.e(f's_mov_b32 s{d+1}, s{p+1}')
    if size is not None:
        a.e(f's_mov_b32 s{d+2}, {size:#x}')
    a.e(f's_mov_b32 s{d+3}, 0x20000')

def stamp(a, i):
    if not opt('stamp'): return
    a.e('s_memrealtime s[60:61]')
    if i == 0: a.e('s_memtime s[62:63]')
    cy = {11: 20, 12: 21, 14: 22, 15: 23, 4: 24, 5: 25}.get(i)
    if cy: a.e('s_memtime s[66:67]')
    a.e('s_waitcnt lgkmcnt(0)')
    a.e(f'v_writelane_b32 v1, s60, {i}')
    if cy: a.e(f'v_writelane_b32 v1, s66, {cy}')
    if LIN[0]: LIN[0].lg = []

def stamp_out(a, n):
    if not opt('stamp'): return
    a.e('s_waitcnt vmcnt(0)')
    stamp(a, n - 1)
    a.e('s_memtime s[64:65]')
    a.e('s_waitcnt lgkmcnt(0)')
    srd(a, 32, P_WS, 1 * MB, STAMP_BASE)
    a.e('s_lshl_b32 s84, s2, 2')
    a.e(f's_add_u32 s84, s84, s{S_W}')
    a.e('s_lshl_b32 s84, s84, 7')
    a.e('s_sub_u32 s64, s64, s62')
    a.e('v_writelane_b32 v1, s64, 31')
    a.e('v_mbcnt_lo_u32_b32 v2, -1, 0')
    a.e('v_lshlrev_b32 v2, 2, v2')
    a.e('s_mov_b64 exec, 0xffffffff')
    a.e('buffer_store_dword v1, v2, s[32:35], s84 offen')

LIN = [None]
class Lin:
    def __init__(s, a): s.a = a; s.vm = []; s.lg = []; LIN[0] = s
    def e(s, t): s.a.e(t)
    def v(s, tag, t): s.a.e(t); s.vm.append(tag)
    def l(s, tag, t): s.a.e(t); s.lg.append(tag)
    def _n(s, q, tags, cap):
        idx = [i for i, x in enumerate(q) if x in tags]
        if not idx: return None
        n = len(q) - max(idx) - 1
        return min(n, cap)
    def wait(s, vm=(), lg=(), vm0=False, lg0=False):
        nv = 0 if vm0 else s._n(s.vm, vm, 63)
        nl = 0 if lg0 else s._n(s.lg, lg, 15)
        t = ''
        if nv is not None:
            t += f' vmcnt({nv})'; s.vm = s.vm[len(s.vm) - nv:] if nv else []
        if nl is not None:
            t += f' lgkmcnt({nl})'; s.lg = s.lg[len(s.lg) - nl:] if nl else []
        if t: s.a.e('s_waitcnt' + t)

def unpack(a, dlo, dhi, src):
    a.e(f'v_lshlrev_b32 v{dlo}, 16, v{src}')
    a.e(f'v_and_b32 v{dhi}, s{S_MASK}, v{src}')

def hfl():
    return [' sc1', ' sc0 sc1', ' sc1 nt', ' sc0 sc1 nt', ''][opt('hfl')]

def code_pf(a, lab_from, lab_to, vt, emit=None, n=1):
    _uid[0] += 1
    L = f'L_pc{_uid[0]}'
    a.e('s_getpc_b64 s[78:79]')
    a.e(f'{L}:')
    a.e(f's_lshl_b32 s77, s{S_W}, 13')
    a.e(f's_add_u32 s77, s77, {lab_from}-{L}')
    for i in range(n):
        if i: a.e('s_add_u32 s77, s77, 32768')
        a.e(f'v_lshl_add_u32 v{vt}, v2, 7, s77')
        a.e(f'v_min_u32 v{vt}, {lab_to}-{L}, v{vt}')
        t = f'global_load_dword v{vt+1+i}, v{vt}, s[78:79]'
        if emit: emit(t)
        else: a.e(t)

def hf_base(a, d, mb, q, t):
    if not opt('reuse', 0):
        a.e(f's_lshl_b32 s{d}, s{mb}, 2')
        a.e(f's_add_u32 s{d}, s{d}, s{q}')
        a.e(f's_mul_i32 s{d}, s{d}, 458752')
        a.e(f's_add_u32 s{d}, s{d}, {WS_HF:#x}')
        return
    a.e(f's_lshl_b32 s{d}, s{mb}, 1')
    a.e(f's_add_u32 s{d}, s{d}, s{q}')
    a.e(f's_mul_i32 s{d}, s{d}, 458752')
    a.e(f's_add_u32 s{d}, s{d}, {WS_HF:#x}')
    a.e(f's_lshl_b32 s{t}, s{mb}, 19')
    a.e(f's_cmp_eq_u32 s{q}, 1')
    a.e(f's_cselect_b32 s{d}, s{t}, s{d}')
    a.e(f's_add_u32 s{t}, s{t}, {WS_Y2 - WS_UB:#x}')
    a.e(f's_cmp_eq_u32 s{q}, 0')
    a.e(f's_cselect_b32 s{d}, s{t}, s{d}')

def zero_acc(a, base, n, z):
    if not opt('mz', 1):
        for r in range(n): a.e(f'v_mov_b32 v{base+r}, 0')
        return
    for r in range(4): a.e(f'v_mov_b32 v{z+r}, 0')
    a.e('s_nop 1')
    for r in range(0, n, 16):
        a.e(f'v_mfma_f32_32x32x16_bf16 v[{base+r}:{base+r+15}], v[{z}:{z+3}], v[{z}:{z+3}], 0')

_uid = [0]
def signal(a, soff, vt, waitfn=None, wb=False):
    _uid[0] += 1
    L = f'L_sig{_uid[0]}'
    a.e(f'v_mov_b32 v{vt}, 0')
    a.e(f'v_mov_b32 v{vt+1}, s{S_NONCE}')
    a.e(f's_cmp_eq_u32 s{S_W}, 0')
    if waitfn: waitfn()
    else: a.e('s_waitcnt vmcnt(0)')
    a.e('s_barrier')
    a.e(f's_cbranch_scc0 {L}')
    if wb:
        a.e('buffer_wbl2 sc1')
        a.e('s_waitcnt vmcnt(0)')
    a.e('s_mov_b64 exec, 1')
    a.e(f'buffer_store_dword v{vt+1}, v{vt}, s[{S_FLG}:{S_FLG+3}], s{soff} offen sc1')
    a.e('s_mov_b64 exec, -1')
    a.e(f'{L}:')

def fsh():
    return opt('fs', 32).bit_length() - 1
def f1sh():
    return opt('f1s', 32).bit_length() - 1

def wait_flags(a, soff, voff, vd, n=64, solo=None):
    _uid[0] += 1
    L = f'L_poll{_uid[0]}'
    if solo is None: solo = opt('solo', 1)
    if solo:
        a.e(f's_cmp_lg_u32 s{S_W}, {opt("pw", 0)}')
        a.e(f's_cbranch_scc1 {L}x')
    a.e(f'{L}:')
    if n == 256:
        if f1sh() == 2:
            a.e(f'buffer_load_dwordx4 v[{vd}:{vd+3}], v{voff}, s[{S_FLG}:{S_FLG+3}], s{soff} offen sc1')
        else:
            for i in range(4):
                a.e(f's_add_u32 s89, s{soff}, {i*(64<<f1sh())}')
                a.e(f'buffer_load_dword v{vd+i}, v{voff}, s[{S_FLG}:{S_FLG+3}], s89 offen sc1')
        a.e('s_waitcnt vmcnt(0)')
        a.e(f'v_xor_b32 v{vd}, s{S_NONCE}, v{vd}')
        a.e(f'v_xor_b32 v{vd+1}, s{S_NONCE}, v{vd+1}')
        a.e(f'v_xor_b32 v{vd+2}, s{S_NONCE}, v{vd+2}')
        a.e(f'v_xor_b32 v{vd+3}, s{S_NONCE}, v{vd+3}')
        a.e(f'v_or3_b32 v{vd}, v{vd}, v{vd+1}, v{vd+2}')
        a.e(f'v_or_b32 v{vd}, v{vd}, v{vd+3}')
        a.e(f'v_cmp_ne_u32 vcc, 0, v{vd}')
    else:
        a.e(f'buffer_load_dword v{vd}, v{voff}, s[{S_FLG}:{S_FLG+3}], s{soff} offen sc1')
        a.e('s_waitcnt vmcnt(0)')
        a.e(f'v_cmp_ne_u32 vcc, s{S_NONCE}, v{vd}')
    a.e('s_add_u32 s3, s3, 1')
    a.e(f's_cmp_gt_u32 s3, {opt("spin", 200000)}')
    a.e(f's_cbranch_scc1 {L}x')
    a.e(f's_cbranch_vccz {L}x')
    if opt('sleep'): a.e(f's_sleep {opt("sleep")}')
    a.e(f's_branch {L}')
    a.e(f'{L}x:')
    if solo: a.e('s_barrier')

def wave_sum2(a, va, vb, sa, sb):
    for mod in ('row_shr:1 row_mask:0xf bank_mask:0xf bound_ctrl:0', 'row_shr:2 row_mask:0xf bank_mask:0xf bound_ctrl:0',
                'row_shr:4 row_mask:0xf bank_mask:0xf bound_ctrl:0', 'row_shr:8 row_mask:0xf bank_mask:0xf bound_ctrl:0',
                'row_bcast:15 row_mask:0xa bank_mask:0xf', 'row_bcast:31 row_mask:0xc bank_mask:0xf'):
        a.e('s_nop 0')
        a.e(f'v_add_f32_dpp v{va}, v{va}, v{va} {mod}')
        a.e(f'v_add_f32_dpp v{vb}, v{vb}, v{vb} {mod}')
    a.e(f'v_readlane_b32 s{sa}, v{va}, 63')
    a.e(f'v_readlane_b32 s{sb}, v{vb}, 63')

def ln2(a, X, T, M, R, C, XM):
    def both(f):
        for r in range(2): f(r)
    for q in range(4):
        both(lambda r: a.e(f'v_pk_add_f32 v[{T[r]+2*q}:{T[r]+2*q+1}], v[{X[r]+4*q}:{X[r]+4*q+1}], v[{X[r]+4*q+2}:{X[r]+4*q+3}]'))
    both(lambda r: a.e(f'v_pk_add_f32 v[{T[r]}:{T[r]+1}], v[{T[r]}:{T[r]+1}], v[{T[r]+2}:{T[r]+3}]'))
    both(lambda r: a.e(f'v_pk_add_f32 v[{T[r]+4}:{T[r]+5}], v[{T[r]+4}:{T[r]+5}], v[{T[r]+6}:{T[r]+7}]'))
    both(lambda r: a.e(f'v_pk_add_f32 v[{T[r]}:{T[r]+1}], v[{T[r]}:{T[r]+1}], v[{T[r]+4}:{T[r]+5}]'))
    both(lambda r: a.e(f'v_add_f32 v{T[r]}, v{T[r]}, v{T[r]+1}'))
    wave_sum2(a, T[0], T[1], 56, 57)
    a.e('s_nop 0')
    both(lambda r: a.e(f'v_mul_f32 v{M[r]}, s{56+r}, v{C}'))
    both(lambda r: a.e(f'v_mov_b32 v{M[r]+1}, v{M[r]}'))
    for q in range(8):
        both(lambda r: a.e(f'v_pk_add_f32 v[{T[r]+2*q}:{T[r]+2*q+1}], v[{X[r]+2*q}:{X[r]+2*q+1}], v[{M[r]}:{M[r]+1}] neg_lo:[0,1] neg_hi:[0,1]'))
    both(lambda r: a.e(f'v_pk_mul_f32 v[{R[r]}:{R[r]+1}], v[{T[r]}:{T[r]+1}], v[{T[r]}:{T[r]+1}]'))
    for q in range(1, 8):
        both(lambda r: a.e(f'v_pk_fma_f32 v[{R[r]}:{R[r]+1}], v[{T[r]+2*q}:{T[r]+2*q+1}], v[{T[r]+2*q}:{T[r]+2*q+1}], v[{R[r]}:{R[r]+1}]'))
    both(lambda r: a.e(f'v_add_f32 v{R[r]}, v{R[r]}, v{R[r]+1}'))
    def rbf(v):
        a.e(f'v_cvt_pk_bf16_f32 v{v}, v{v}, v{v}')
        a.e(f'v_and_b32 v{v}, s{S_MASK}, v{v}')
    both(lambda r: rbf(M[r]))
    wave_sum2(a, R[0], R[1], 58, 59)
    both(lambda r: a.e(f'v_mov_b32 v{M[r]+1}, v{M[r]}'))
    both(lambda r: a.e(f'v_mul_f32 v{R[r]}, s{58+r}, v{C}'))
    both(lambda r: rbf(R[r]))
    both(lambda r: a.e(f'v_add_f32 v{R[r]}, 0x3727c5ac, v{R[r]}'))
    both(lambda r: rbf(R[r]))
    both(lambda r: a.e(f'v_sqrt_f32 v{R[r]}, v{R[r]}'))
    for q in range(2):
        both(lambda r: a.e(f'v_pk_add_f32 v[{XM[r]+2*q}:{XM[r]+2*q+1}], v[{X[r]+2*q}:{X[r]+2*q+1}], v[{M[r]}:{M[r]+1}] neg_lo:[0,1] neg_hi:[0,1]'))
    both(lambda r: rbf(R[r]))
    both(lambda r: a.e(f'v_rcp_f32 v{R[r]}, v{R[r]}'))
    for q in range(2, 8):
        both(lambda r: a.e(f'v_pk_add_f32 v[{XM[r]+2*q}:{XM[r]+2*q+1}], v[{X[r]+2*q}:{X[r]+2*q+1}], v[{M[r]}:{M[r]+1}] neg_lo:[0,1] neg_hi:[0,1]'))
    both(lambda r: a.e(f'v_mov_b32 v{R[r]+1}, v{R[r]}'))
    for q in range(8):
        both(lambda r: a.e(f'v_pk_mul_f32 v[{T[r]+2*q}:{T[r]+2*q+1}], v[{XM[r]+2*q}:{XM[r]+2*q+1}], v[{R[r]}:{R[r]+1}]'))

class Sched:
    def __init__(self): self.ev = []; self.marks = {}
    def mark(self, k): self.marks[k] = len(self.ev)
    def add(self, L): self.ev += L
    def younger(self, tag, at):
        last = max(i for i, e in enumerate(self.ev) if e[:2] == tag)
        assert last < self.marks[at], (tag, at)
        return self.marks[at] - last - 1

def gen(a):
    a.raw(f'.globl {KNAME}')
    a.raw('.p2align 8')
    a.raw(f'.type {KNAME},@function')
    a.raw(f'{KNAME}:')
    a.e('s_cmp_ge_u32 s2, 256')
    a.e('s_cbranch_scc1 L_end')
    a.e('s_load_dwordx8 s[4:11], s[0:1], 0')
    a.e('s_load_dwordx8 s[20:27], s[0:1], 64')
    a.e('s_load_dwordx2 s[28:29], s[0:1], 96')
    a.e('s_load_dwordx8 s[12:19], s[0:1], 32')
    a.e('s_memrealtime s[56:57]')
    a.e('v_lshrrev_b32 v1, 6, v0')
    a.e('v_and_b32 v2, 63, v0')
    a.e(f'v_readfirstlane_b32 s{S_W}, v1')
    a.e(f's_mov_b32 s{S_MASK}, 0xffff0000')
    a.e('s_mov_b32 s3, 0')
    a.e('s_bfe_u32 s82, s2, 0x30003')
    a.e('s_and_b32 s83, s2, 7')
    a.e('s_lshr_b32 s84, s2, 6')
    a.e('s_lshl_b32 s84, s84, 3')
    a.e('s_or_b32 s83, s83, s84')
    a.e('v_and_b32 v9, 7, v0')
    a.e('v_bfe_u32 v10, v0, 4, 1')
    a.e('v_lshl_add_u32 v1, v9, 1, v10')
    a.e('v_lshrrev_b32 v8, 5, v0')
    a.e('v_bfe_u32 v11, v0, 3, 1')
    a.e('v_lshl_add_u32 v8, v8, 1, v11')
    a.e('s_lshl_b32 s85, s83, 17')
    a.e('s_lshl_b32 s86, s82, 8')
    a.e('s_add_u32 s85, s85, s86')
    a.e('v_lshlrev_b32 v3, 13, v1')
    a.e('v_lshl_add_u32 v3, v8, 4, v3')
    a.e('v_add_u32 v3, s85, v3')
    a.e('v_add_u32 v4, 0xffffe800, v3')
    a.e('v_add_u32 v5, 0xfffff800, v3')
    a.e('v_add_u32 v6, 0x1000, v3')
    a.e('s_lshl_b32 s86, s82, 10')
    a.e('v_lshlrev_b32 v7, 6, v8')
    a.e('v_add_u32 v7, s86, v7')
    a.e('s_lshl_b32 s87, s82, 5')
    a.e('s_add_u32 s87, s87, s83')
    a.e('s_lshl_b32 s88, s87, 14')
    a.e('s_add_u32 s88, s88, 112')
    a.e('v_lshlrev_b32 v160, 10, v8')
    a.e('v_lshl_add_u32 v160, v10, 9, v160')
    a.e('v_lshlrev_b32 v161, 4, v9')
    a.e('v_sub_u32 v160, v160, v161')
    a.e('v_add_u32 v160, s88, v160')
    a.e(f's_lshl_b32 s87, s87, {fsh()}')
    a.e('v_mov_b32 v162, 0')
    a.e('s_waitcnt lgkmcnt(0)')
    stamp(a, 0)
    if opt('stamp') and not opt('g2st'): a.e('v_writelane_b32 v1, s56, 30')
    srd(a, 32, P_K, 4 * MB)
    srd(a, 36, P_V, 4 * MB)
    srd(a, 40, P_SH, 8192)
    KR, VR_, WR, WU, KU, AC0 = 8, 36, 52, 68, 100, 164
    for j in range(4):
        a.e(f'buffer_load_dwordx4 v[{WR+4*j}:{WR+4*j+3}], v7, s[40:43], 0 offen offset:{16*j}')
    rows = [(4, 0), (4, 2048), (5, 0), (3, 0), (3, 2048), (6, 0), (6, 2048)]
    for r, (vr, off) in enumerate(rows):
        a.e(f'buffer_load_dwordx4 v[{KR+4*r}:{KR+4*r+3}], v{vr}, s[32:35], 0 offen offset:{off}')
    for r, (vr, off) in enumerate(rows[3:]):
        a.e(f'buffer_load_dwordx4 v[{VR_+4*r}:{VR_+4*r+3}], v{vr}, s[36:39], 0 offen offset:{off}')
    ncp = 0
    if opt('cpf', 0):
        a.e('s_getpc_b64 s[58:59]')
        a.e('L_pc:')
        a.e('v_lshlrev_b32 v163, 7, v0')
        a.e('v_min_u32 v163, L_end-L_pc, v163')
        a.e('global_load_dword v161, v163, s[58:59]')
        ncp = 1
    srd(a, 48, P_WS, 4 * MB, WS_UB)
    if opt('pt', 0) & 1:
        a.e('v_lshlrev_b32 v163, 6, v0')
        a.e('s_sub_u32 s58, s88, 120')
        a.e('buffer_load_dword v161, v163, s[48:51], s58 offen')
        ncp += 1
    KD, KX, XP = 200, 216, 224
    KP, XPOS = opt('kp', 1), opt('xp', 2)
    def k_loads():
        a.e('s_and_b32 s74, s2, 7')
        a.e('s_lshl_b32 s74, s74, 7')
        a.e('s_lshr_b32 s75, s2, 3')
        a.e('s_lshl_b32 s75, s75, 2')
        a.e('s_add_u32 s74, s74, s75')
        a.e(f's_add_u32 s74, s74, s{S_W}')
        a.e('s_lshl_b32 s74, s74, 12')
        srd(a, 68, P_SSMK, 4096, 0, 74)
        a.e('v_lshlrev_b32 v220, 4, v2')
        for j in range(4):
            a.e(f'buffer_load_dwordx4 v[{KD+4*j}:{KD+4*j+3}], v220, s[68:71], 0 offen offset:{1024*j}')
            a.e(f'buffer_load_dword v{KX+j}, v220, s[68:71], 0 offen offset:{1024*j+16}')
    def x_loads():
        srd(a, 36, P_Q, 4 * MB)
        for r in range(2):
            for hh in range(2):
                a.e(f'buffer_load_dwordx4 v[{XP+8*r+4*hh}:{XP+8*r+4*hh+3}], v4, s[36:39], s96 offen offset:{2048*r+1024*hh}')
    if KP == 0:
        k_loads(); ncp += 8
    if opt('tlb'):
        a.e(f's_cmp_eq_u32 s{S_W}, 3')
        a.e(f's_cselect_b32 s58, {42 * MB:#x}, 0')
        srd(a, 52, P_WS, None)
        a.e('s_mov_b32 s54, s58')
        a.e('v_lshlrev_b32 v163, 21, v2')
        a.e(f'v_add_u32 v163, {opt("tlbo", 0x1f0000):#x}, v163')
        a.e('buffer_load_dword v161, v163, s[52:55], 0 offen')
        ncp += 1
        if opt('tlb') > 1:
            a.e(f's_min_u32 s58, s58, {4 * MB:#x}')
            for P_ in (P_OUT, P_SSMK, P_Q):
                srd(a, 52, P_, None)
                a.e('s_mov_b32 s54, s58')
                a.e('buffer_load_dword v161, v163, s[52:55], 0 offen')
                ncp += 1
    srd(a, 44, P_DBG, 256)
    a.e('s_or_b32 s56, s56, 1')
    a.e(f's_or_b32 s57, s2, s{S_W}')
    a.e('s_cmp_lg_u32 s57, 0')
    a.e('s_cbranch_scc1 L_nonce_skip')
    a.e('v_mov_b32 v163, s56')
    a.e('s_mov_b64 exec, 1')
    a.e('buffer_store_dword v163, v162, s[44:47], 0 offen sc1')
    a.e('s_mov_b64 exec, -1')
    a.e('s_waitcnt vmcnt(0)')
    a.e('L_nonce_skip:')
    srd(a, S_FLG, P_WS, FLG_SIZE, WS_FLG)
    a.e(f's_waitcnt vmcnt({11+ncp})')
    for e in range(8):
        unpack(a, WU + 0 * 8 + e, WU + 1 * 8 + e, WR + 2 * e)
        unpack(a, WU + 2 * 8 + e, WU + 3 * 8 + e, WR + 2 * e + 1)
    for r in range(7):
        a.e(f's_waitcnt vmcnt({10-r+ncp})')
        for q in range(4):
            unpack(a, KU + 8 * r + 2 * q, KU + 8 * r + 2 * q + 1, KR + 4 * r + q)
        if r >= 3:
            i = r - 3
            for j in range(4):
                for q in range(4):
                    d = AC0 + 8 * i + 2 * q
                    k = KU + 8 * (i + 3 - j) + 2 * q
                    w = WU + 8 * j + 2 * q
                    if j == 0:
                        a.e(f'v_pk_mul_f32 v[{d}:{d+1}], v[{k}:{k+1}], v[{w}:{w+1}]')
                    else:
                        a.e(f'v_pk_fma_f32 v[{d}:{d+1}], v[{k}:{k+1}], v[{w}:{w+1}], v[{d}:{d+1}]')
    VU = 8
    for i in range(4):
        a.e(f's_waitcnt vmcnt({3-i+ncp})')
        if i == 3:
            a.e('buffer_load_dword v163, v162, s[44:47], 0 offen sc1')
        for q in range(4):
            unpack(a, VU + 2 * q, VU + 2 * q + 1, VR_ + 4 * i + q)
        for q in range(4):
            d = AC0 + 8 * i + 2 * q
            a.e(f'v_pk_mul_f32 v[{d}:{d+1}], v[{d}:{d+1}], v[{VU+2*q}:{VU+2*q+1}]')
    O = 52
    for e in range(4):
        q = O + 4 * e
        a.e(f'v_cvt_pk_bf16_f32 v{q}, v{AC0+28+e}, v{AC0+20+e}')
        a.e(f'v_cvt_pk_bf16_f32 v{q+1}, v{AC0+12+e}, v{AC0+4+e}')
        a.e(f'v_cvt_pk_bf16_f32 v{q+2}, v{AC0+24+e}, v{AC0+16+e}')
        a.e(f'v_cvt_pk_bf16_f32 v{q+3}, v{AC0+8+e}, v{AC0+e}')
    for e in range(4):
        q = O + 4 * e
        if e == 3: a.e('s_nop 0')
        a.e(f'v_permlane16_swap_b32 v{q+2}, v{q}')
        a.e(f'v_permlane16_swap_b32 v{q+3}, v{q+1}')
        a.e(f'buffer_store_dwordx4 v[{q}:{q+3}], v160, s[48:51], 0 offen offset:{128*e} sc1')
    stamp(a, 1)
    a.e('s_and_b32 s82, s2, 7')
    a.e('s_lshr_b32 s83, s2, 3')
    a.e('s_lshl_b32 s84, s83, 2')
    a.e(f's_add_u32 s84, s84, s{S_W}')
    a.e('s_lshl_b32 s85, s82, 7')
    a.e('s_add_u32 s85, s85, s84')
    a.e('s_lshl_b32 s86, s82, 5')
    a.e('s_add_u32 s86, s86, s83')
    a.e(f's_mul_i32 s88, s{S_W}, {KA_REG}')
    a.e(f's_add_u32 s88, s88, {LDS_KA}')
    a.e('s_lshr_b32 s57, s85, 1')
    a.e('s_lshl_b32 s57, s57, 2')
    a.e(f's_load_dword s89, s[{P_D}:{P_D+1}], s57')
    a.e('v_lshlrev_b32 v4, 4, v2')
    ny = 0
    if KP == 1:
        k_loads(); ny += 8
    a.e('s_and_b32 s80, s82, 1')
    a.e('s_lshl_b32 s80, s80, 2')
    a.e('s_and_b32 s56, s83, 3')
    a.e('s_add_u32 s80, s80, s56')
    a.e('s_lshr_b32 s81, s82, 1')
    a.e('s_lshl_b32 s81, s81, 3')
    a.e('s_lshr_b32 s56, s83, 2')
    a.e('s_add_u32 s81, s81, s56')
    a.e('s_lshl_b32 s91, s80, 5')
    a.e('s_add_u32 s91, s91, s81')
    a.e('s_lshl_b32 s56, s91, 2')
    a.e(f's_add_u32 s56, s56, s{S_W}')
    a.e('s_lshl_b32 s96, s56, 12')
    nx_ = 0
    if XPOS == 1:
        x_loads(); ny += 4; nx_ = 4
    WP0 = opt('wp0', 0)
    if WP0:
        a.e(f's_mul_i32 s56, s2, {7168*WP0}')
        a.e(f's_mul_i32 s57, s{S_W}, {1792*WP0}')
        a.e('s_add_u32 s56, s56, s57')
        srd(a, 40, P_W1, 1792 * WP0, 0, 56)
        a.e('v_lshlrev_b32 v167, 7, v2')
        a.e('buffer_load_dword v168, v167, s[40:43], 0 offen')
        ny += 1; nx_ += 1
    nc0 = 0
    if opt('cpf0', 3):
        if opt('cpf0', 3) == 1:
            code_pf(a, 'L_nonce', 'L_end', 164, n=2); nc0 = 2
        else:
            code_pf(a, 'L_nonce', 'L_kbcode' if opt('cpf0', 3) == 2 else 'L_g1epi', 164); nc0 = 1
    a.e(f's_waitcnt vmcnt({4+ny+nc0})')
    a.e('L_nonce:')
    a.e(f'v_readfirstlane_b32 s{S_NONCE}, v163')
    a.e('s_nop 0')
    a.e(f's_cmp_lg_u32 s{S_NONCE}, 0')
    a.e('s_cbranch_scc1 L_nonce_ok')
    a.e('s_add_u32 s3, s3, 1')
    a.e(f's_cmp_gt_u32 s3, {opt("spin", 200000)}')
    a.e('s_cbranch_scc1 L_nonce_ok')
    a.e('buffer_load_dword v163, v162, s[44:47], 0 offen sc1')
    a.e('s_waitcnt vmcnt(0)')
    a.e('s_branch L_nonce')
    a.e('L_nonce_ok:')
    a.e(f'v_mov_b32 v163, s{S_NONCE}')
    a.e(f's_cmp_eq_u32 s{S_W}, 0')
    a.e(f's_waitcnt vmcnt({ny+nc0})')
    a.e('s_barrier')
    a.e('s_cbranch_scc0 L_sig0')
    a.e('s_mov_b64 exec, 1')
    a.e(f'buffer_store_dword v163, v162, s[{S_FLG}:{S_FLG+3}], s87 offen sc1')
    a.e('s_mov_b64 exec, -1')
    a.e('L_sig0:')
    stamp(a, 2)
    if KP == 2:
        k_loads(); nx_ = 0; nc0 = 0
    npt = 0
    if opt('pt', 0) & 2:
        srd(a, 40, P_WS, 12 * MB, WS_Y2)
        a.e('v_lshlrev_b32 v164, 14, v0')
        a.e('s_lshl_b32 s56, s86, 6')
        a.e('buffer_load_dword v161, v164, s[40:43], s56 offen')
        a.e('v_lshlrev_b32 v164, 6, v0')
        a.e('s_lshl_b32 s56, s91, 14')
        a.e(f's_add_u32 s56, s56, {4*MB}')
        a.e('buffer_load_dword v161, v164, s[40:43], s56 offen')
        a.e('v_lshrrev_b32 v164, 3, v0')
        a.e('v_lshlrev_b32 v164, 12, v164')
        a.e('v_bfe_u32 v165, v0, 1, 2')
        a.e('v_lshl_add_u32 v164, v165, 8, v164')
        a.e('s_lshr_b32 s56, s91, 3')
        a.e('s_lshl_b32 s56, s56, 17')
        a.e('s_and_b32 s57, s91, 7')
        a.e('s_lshr_b32 s58, s57, 1')
        a.e('s_lshl_b32 s58, s58, 10')
        a.e('s_add_u32 s56, s56, s58')
        a.e('s_and_b32 s57, s57, 1')
        a.e('s_lshl_b32 s57, s57, 7')
        a.e('s_add_u32 s56, s56, s57')
        a.e(f's_add_u32 s56, s56, {8*MB}')
        a.e('buffer_load_dword v161, v164, s[40:43], s56 offen')
        npt += 3
    a.e('v_lshrrev_b32 v3, 3, v2')
    a.e('v_sub_u32 v3, 7, v3')
    a.e('v_lshlrev_b32 v3, 14, v3')
    a.e('v_and_b32 v5, 7, v2')
    a.e('v_lshl_add_u32 v3, v5, 4, v3')
    a.e('s_lshl_b32 s56, s84, 7')
    a.e('v_add_u32 v3, s56, v3')
    a.e('v_and_b32 v5, 15, v2')
    a.e('v_lshrrev_b32 v6, 4, v2')
    a.e('v_mov_b32 v28, 0')
    a.e('v_mov_b32 v29, 0')
    a.e('v_lshlrev_b32 v7, 3, v2')
    a.e('v_add_u32 v7, s88, v7')
    a.e('ds_write_b64 v7, v[28:29] offset:4096')
    a.e('v_min_u32 v30, 7, v2')
    a.e('v_lshlrev_b32 v30, 2, v30')
    a.e('v_add_u32 v30, s88, v30')
    a.e('ds_write_b32 v30, v28 offset:4608')
    a.e('v_add_u32 v31, 1, v5')
    a.e('v_and_b32 v32, 1, v31')
    a.e('v_sub_u32 v31, v31, v32')
    a.e('v_lshl_add_u32 v31, v6, 3, v31')
    a.e('v_lshlrev_b32 v31, 1, v31')
    a.e('v_mul_u32_u24 v32, 4160, v32')
    a.e('v_add3_u32 v31, v31, v32, s88')
    VA, VB, ACC = 36, 40, 44
    for j in range(4):
        a.e(f'v_add_u32 v{VA+j}, {4608+1024*j}, v31')
    a.e('v_lshlrev_b32 v32, 5, v5')
    a.e('v_lshlrev_b32 v33, 4, v6')
    a.e('v_sub_u32 v33, v33, v32')
    a.e('v_add_u32 v33, s88, v33')
    a.e(f'v_add_u32 v{VB}, 480, v33')
    a.e('v_add_u32 v7, s88, v4')
    zero_acc(a, ACC, 32, 92)
    T = 76
    a.e(f's_waitcnt vmcnt({nx_+npt+nc0})')
    for j in range(4):
        d = KD + 4 * j
        if j == 0:
            a.e(f'v_readfirstlane_b32 s56, v{d}')
        a.e(f'ds_write_b128 v7, v[{d}:{d+3}] offset:{4608+32+1024*j}')
        for q in range(4):
            hi = d + q + 1 if q < 3 else KX + j
            a.e(f'v_alignbit_b32 v{T+4*j+q}, v{hi}, v{d+q}, 16')
        a.e(f'ds_write_b128 v7, v[{T+4*j}:{T+4*j+3}] offset:{4608+4160+32+1024*j}')
    a.e('s_lshl_b32 s56, s56, 16')
    a.e('v_cmp_le_u32 vcc, 7, v2')
    a.e('v_mov_b32 v32, s56')
    a.e('s_nop 0')
    a.e('v_cndmask_b32 v32, v28, v32, vcc')
    a.e(f'ds_write_b32 v30, v32 offset:{4608+4160}')
    FA = [96, 160]; FB = [128, 192]
    def rdA(r, buf):
        L = []
        for mq in range(8):
            o = 128 * (mq & 1) + 16 * r
            f = FA[buf] + 4 * mq
            L.append(f'ds_read2_b32 v[{f}:{f+1}], v{VA+(mq>>1)} offset0:{o} offset1:{o+1}')
            L.append(f'ds_read2_b32 v[{f+2}:{f+3}], v{VA+(mq>>1)} offset0:{o+2} offset1:{o+3}')
        return L
    def rdB(r, buf):
        return [f'ds_read_b128 v[{FB[buf]+4*d}:{FB[buf]+4*d+3}], v{VB} offset:{512*(7-d)+64*r}' for d in range(8)]
    a.e('s_waitcnt lgkmcnt(0)')
    a.e('s_bitcmp1_b32 s85, 0')
    a.e('s_cselect_b32 s56, 0, 16')
    a.e('s_lshl_b32 s89, s89, s56')
    a.e('s_and_b32 s89, s89, 0xffff0000')
    for l in rdA(0, 0): a.e(l)
    npf = 0; wpl = []
    if opt('wpf', 1):
        RS = opt('rs', 0)
        if RS:
            a.e('s_mul_i32 s56, s2, 28672')
            a.e(f's_and_b32 s57, s{S_W}, 1')
            a.e('s_mul_i32 s57, s57, 14336')
            a.e('s_add_u32 s56, s56, s57')
            a.e(f's_cmp_ge_u32 s{S_W}, 2')
            a.e('s_cselect_b32 s58, 14336, 0')
            a.e('v_lshlrev_b32 v41, 7, v2')
            a.e('v_add_u32 v43, 8192, v41')
            for n_, P_ in enumerate((P_W1, P_W3, P_W2)[:opt('wpn', 3)]):
                sd = (40, 32, 44)[n_]
                srd(a, sd, P_, None, 0, 56)
                a.e(f's_mov_b32 s{sd+2}, s58')
                for v_ in (41, 43):
                    wpl.append(lambda sd=sd, v_=v_: a.e(f'buffer_load_dword v42, v{v_}, s[{sd}:{sd+3}], 0 offen'))
        else:
            wfr = opt('la', 2) / 2
            a.e(f's_mul_i32 s56, s2, {int(7168*wfr)}')
            a.e(f's_mul_i32 s57, s{S_W}, {int(1792*wfr)}')
            a.e('s_add_u32 s56, s56, s57')
            a.e('v_lshlrev_b32 v41, 7, v2')
            for n_, P_ in enumerate((P_W1, P_W3, P_W2)[:opt('wpn', 2)]):
                sd = (40, 32, 44)[n_]
                if n_ == 0 and WP0:
                    if WP0 == 4: continue
                    a.e(f's_mul_i32 s58, s2, {7168*(4-WP0)}')
                    a.e(f's_mul_i32 s57, s{S_W}, {1792*(4-WP0)}')
                    a.e('s_add_u32 s58, s58, s57')
                    srd(a, sd, P_, 1792 * (4 - WP0), 1835008 * WP0, 58)
                else:
                    srd(a, sd, P_, int(1792 * wfr), 0, 56)
                wpl.append(lambda sd=sd: a.e(f'buffer_load_dword v42, v41, s[{sd}:{sd+3}], 0 offen'))
    w2e = []
    if opt('w2e', 2):
        a.e('s_and_b32 s56, s2, 127')
        a.e('s_mul_i32 s56, s56, 6144')
        a.e('s_lshr_b32 s57, s2, 7')
        a.e('s_mul_i32 s57, s57, 3670016')
        a.e('s_add_u32 s56, s56, s57')
        a.e(f's_mul_i32 s57, s{S_W}, 1536')
        a.e('s_add_u32 s56, s56, s57')
        srd(a, 44, P_W2, 1536, 0, 56)
        t_ = 'buffer_load_dword v42, v41, s[44:47], 0 offen'
        if opt('w2e', 2) == 1:
            a.e(t_); npf += 1
        else:
            w2e = [lambda: a.e(t_)]
    g1 = G1(a)
    g2 = G2(a)
    g2.front_setup()
    g1.setup_dma()
    assert npf == 0
    a.e('v_and_b32 v34, 31, v2')
    a.e(f'v_lshlrev_b32 v34, {fsh()}, v34')
    a.e(f's_lshl_b32 s56, s82, {5+fsh()}')
    wait_flags(a, 56, 34, 35)
    stamp(a, 3)
    a.e('s_lshl_b32 s56, s82, 19')
    UR = 8
    for i in range(4):
        a.e(f's_add_u32 s57, s56, {(24-8*i)*16384:#x}')
        a.e(f'buffer_load_dwordx4 v[{UR+4*i}:{UR+4*i+3}], v3, s[48:51], s57 offen sc1')
    if XPOS == 2:
        x_loads(); npf += 4
    for i in range(4):
        a.e(f's_waitcnt vmcnt({npf+3-i})')
        a.e(f'ds_write_b128 v7, v[{UR+4*i}:{UR+4*i+3}] offset:{1024*i}')
    a.e('s_waitcnt lgkmcnt(0)')
    for l in rdB(0, 0): a.e(l)
    stamp(a, 4)
    LK = Lin(a)
    g1e = [[(lambda l=l: a.e(l)) for l in grp] for grp in g1.early_dma()]
    def grp(fs): return lambda: [f() for f in fs]
    g1e = [grp(x) for x in g1e]
    fillr = {r: [] for r in range(8)}
    p01 = g2.fD([(0, 2), (1, 3)])
    nk01 = 0
    NF0 = opt('nf0', 4)
    if not RS and NF0 >= 2:
        fillr[6] += p01[:5]; fillr[7] += p01[5:]; nk01 = 8
    if XPOS == 3:
        srd(a, 36, P_Q, 4 * MB)
        for r_ in range(2):
            for hh in range(2):
                fillr[0].append(lambda r_=r_, hh=hh: a.e(f'buffer_load_dwordx4 v[{XP+8*r_+4*hh}:{XP+8*r_+4*hh+3}], v4, s[36:39], s96 offen offset:{2048*r_+1024*hh}'))
    fillr[0] += w2e
    for n_, f_ in enumerate(wpl): fillr[opt('wpr', 1 if RS else 2) + n_ * opt('wps', 2)].append(f_)
    UE = 8
    for r in range(8):
        buf = r & 1
        if r < 7:
            A_, B_ = rdA(r + 1, buf ^ 1), rdB(r + 1, buf ^ 1)
            nxt = []
            for x in range(8): nxt += [B_[x], A_[2 * x], A_[2 * x + 1]]
        else:
            a.e('v_lshlrev_b32 v32, 5, v5')
            a.e('v_lshl_add_u32 v32, v6, 3, v32')
            a.e(f'v_sub_u32 v34, {4088-3584}, v32')
            a.e('v_add_u32 v34, s88, v34')
            a.e('v_add_u32 v35, s88, v32')
            nxt = [f'ds_read_b64 v[{UE+2*c}:{UE+2*c+1}], v34 offset:{512*(7-c)}' for c in range(8)]
        a.e('s_waitcnt lgkmcnt(0)')
        fl = list(fillr[r]); evr = 36 // max(1, len(fl))
        k = 0
        for mq in range(8):
            for d in range(8 - mq):
                c = mq + d
                fa = FA[buf] + 4 * mq; fb = FB[buf] + 4 * d
                a.e(f'v_mfma_f32_16x16x32_bf16 v[{ACC+4*c}:{ACC+4*c+3}], v[{fa}:{fa+3}], v[{fb}:{fb+3}], v[{ACC+4*c}:{ACC+4*c+3}]')
                if k < len(nxt):
                    a.e(nxt[k])
                if fl and k % evr == evr - 1: fl.pop(0)()
                k += 1
        assert not fl, (r, len(fl))
    a.e('s_waitcnt lgkmcnt(0)')
    stamp(a, 5)
    a.e('L_kbcode:')
    X = 96
    for c in range(8):
        unpack(a, X + 4 * c + 3, X + 4 * c + 2, UE + 2 * c)
        unpack(a, X + 4 * c + 1, X + 4 * c + 0, UE + 2 * c + 1)
    for c in range(8):
        for r in range(4):
            a.e(f'v_fma_f32 v{X+4*c+r}, v{X+4*c+r}, s89, v{ACC+4*c+r}')
        a.e(f'v_cvt_pk_bf16_f32 v{UE+2*c}, v{X+4*c}, v{X+4*c+1}')
        a.e(f'v_cvt_pk_bf16_f32 v{UE+2*c+1}, v{X+4*c+2}, v{X+4*c+3}')
        a.e(f'ds_write_b64 v35, v[{UE+2*c}:{UE+2*c+1}] offset:{4608+512*c}')
    a.flush_inject()
    LIN[0] = None
    a.e('v_lshlrev_b32 v32, 2, v0')
    a.e(f'v_add_u32 v32, {LDS_KA}, v32')
    YL_ = opt('yl', 1)
    a.e(f'v_lshrrev_b32 v33, {2+YL_}, v0')
    a.e(f'v_lshlrev_b32 v33, {14+YL_}, v33')
    a.e(f'v_and_b32 v34, {7 if YL_ else 3}, v0')
    a.e('v_lshl_add_u32 v33, v34, 4, v33')
    a.e(f's_lshl_b32 s56, s86, {6+YL_}')
    a.e('s_mov_b32 s57, 0x05040100')
    a.e('s_mov_b32 s58, 0x07060302')
    srd(a, 36, P_WS, 4 * MB, WS_Y2)
    a.e(f's_cmp_ge_u32 s{S_W}, 2')
    a.e('s_waitcnt lgkmcnt(0)')
    a.e('s_barrier')
    if RS: a.e('s_cbranch_scc1 L_y2skip')
    Y = 96; O = 128
    NP = 8 if RS else 4
    LY = Lin(a)
    def yrd(P):
        for ch in range(4):
            LY.l(P, f'ds_read_b32 v{Y+4*P+ch}, v32 offset:{ch*KA_REG+4608+4096//NP*P}')
    for P in range(4): yrd(P)
    for P in range(NP):
        LY.wait(lg=(P,))
        if P + 4 < NP: yrd(P + 4)
        y = Y + 4 * P; o = O + 4 * P
        a.e(f'v_perm_b32 v{o}, v{y+1}, v{y}, s57')
        a.e(f'v_perm_b32 v{o+1}, v{y+3}, v{y+2}, s57')
        a.e(f'v_perm_b32 v{o+2}, v{y+1}, v{y}, s58')
        a.e(f'v_perm_b32 v{o+3}, v{y+3}, v{y+2}, s58')
        a.e(f'buffer_store_dwordx4 v[{o}:{o+3}], v33, s[36:39], s56 offen sc1')
        if P < NP - 1:
            a.e(f's_add_u32 s56, s56, {256//NP*16384:#x}')
    LIN[0] = None
    if RS: a.e('L_y2skip:')
    stamp(a, 6)
    XU = [8, 24]; TT = [40, 56]; MM = [72, 74]; RR = [76, 78]; C = 80; YU = [100, 116]; XM = [140, 156]; SS = [172, 174]
    if XPOS >= 2: a.e(f's_waitcnt vmcnt({len(wpl) + (1 if opt("w2e", 2) else 0) + (0 if RS else nk01 + 4)})')
    F45 = opt('f45', 0)
    if F45: a.inject(g2.fD([(2, 0), (3, 1)]), 3)
    for r in range(2):
        for q in range(8):
            unpack(a, XU[r] + 2 * q, XU[r] + 2 * q + 1, XP + 8 * r + q)
    a.flush_inject()
    a.e(f'v_mov_b32 v{C}, 0x3a800000')
    a.e(f's_lshl_b32 s87, s2, {f1sh()}')
    a.e(f's_add_u32 s87, s87, {F1}')
    def w1():
        if RS:
            a.e(f's_bitcmp1_b32 s{S_W}, 1')
            a.e('s_cbranch_scc1 L_y2nw')
            a.e('s_waitcnt vmcnt(0)')
            a.e('L_y2nw:')
            a.e(f's_cmp_eq_u32 s{S_W}, 0')
        else:
            a.e(f's_waitcnt vmcnt({8 if F45 else 0})')
    signal(a, 87, 82, waitfn=w1)
    if RS:
        a.inject(g1e[:10] + p01 + g2.fD([(2, 0), (3, 1)]), 4)
    else:
        if NF0 >= 2: g2.fM([(0, 2), (1, 3)])
        a.inject(g1e[:10] + ([] if F45 or NF0 < 4 else g2.fD([(2, 0), (3, 1)])), 12 if F45 or NF0 < 4 else 6)
    ln2(a, XU, TT, MM, RR, C, XM)
    a.flush_inject()
    a.e('v_lshlrev_b32 v5, 7, v2')
    a.e(f'v_lshlrev_b32 v139, {7+YL_}, v2')
    a.e(f'v_add_u32 v6, {0x2000 << YL_:#x}, v139')
    if YL_:
        a.e('s_lshr_b32 s82, s91, 1')
        a.e('s_lshl_b32 s82, s82, 15')
        a.e('s_and_b32 s83, s91, 1')
        a.e('s_lshl_b32 s83, s83, 6')
        a.e('s_add_u32 s82, s82, s83')
    else:
        a.e('s_lshl_b32 s82, s91, 14')
    if opt('yd', 1):
        assert YL_
        a.e(f's_lshl_b32 s83, s{S_W}, 13')
        a.e('s_add_u32 s82, s82, s83')
        a.e('v_lshrrev_b32 v176, 4, v2')
        a.e('v_xor_b32 v176, v176, v2')
        a.e('v_and_b32 v176, 3, v176')
        a.e('v_lshlrev_b32 v176, 4, v176')
        a.e('v_lshrrev_b32 v177, 2, v2')
        a.e('v_lshl_add_u32 v176, v177, 7, v176')
        for i in range(1, 4):
            a.e(f'v_add_u32 v{176+i}, {1024*i}, v176')
        a.e(f's_lshl_b32 s83, s{S_W}, 12')
        a.e(f's_add_u32 m0, s83, {LDS_KA + 16384}')
        a.e('v_bfe_u32 v180, v2, 1, 2')
        a.e(f'v_xor_b32 v180, s{S_W}, v180')
        a.e('v_lshl_add_u32 v180, v180, 4, v5')
        a.e(f'v_add_u32 v180, {LDS_KA + 16384}, v180')
    else:
        a.e(f's_lshl_b32 s83, s{S_W}, 4')
        a.e('s_add_u32 s82, s82, s83')
    srd(a, 40, P_WS, 4 * MB, WS_H)
    srd(a, 44, P_WS, 4 * MB, WS_HNF)
    a.e('v_and_b32 v7, 7, v2')
    a.e(f's_lshl_b32 s83, s{S_W}, 1')
    a.e('v_xor_b32 v132, s83, v7')
    a.e('v_lshl_add_u32 v132, v132, 4, v5')
    a.e(f'v_add_u32 v132, {LDS_KA}, v132')
    a.e('v_xor_b32 v133, 16, v132')
    a.e('v_lshrrev_b32 v134, 3, v2')
    a.e('v_xor_b32 v135, v134, v7')
    a.e('v_lshlrev_b32 v135, 4, v135')
    a.e('v_lshl_add_u32 v135, v134, 7, v135')
    a.e(f's_lshl_b32 s83, s{S_W}, 12')
    a.e(f's_add_u32 s83, s83, {LDS_KA}')
    a.e('v_add_u32 v135, s83, v135')
    HC = opt('hc', 0)
    if HC:
        a.e('v_lshlrev_b32 v136, 4, v2')
        a.e('s_lshl_b32 s84, s91, 14')
        a.e(f's_lshl_b32 s85, s{S_W}, 12')
        a.e('s_add_u32 s84, s84, s85')
    else:
        a.e('v_lshrrev_b32 v136, 5, v2')
        a.e('v_lshlrev_b32 v136, 12, v136')
        a.e('v_bfe_u32 v137, v2, 3, 2')
        a.e('v_lshl_add_u32 v136, v137, 8, v136')
        a.e('v_lshl_add_u32 v136, v7, 4, v136')
        a.e('s_lshr_b32 s84, s91, 3')
        a.e('s_lshl_b32 s84, s84, 17')
        a.e('s_bfe_u32 s85, s91, 0x20001')
        a.e('s_lshl_b32 s85, s85, 10')
        a.e('s_add_u32 s84, s84, s85')
        a.e('s_and_b32 s85, s91, 1')
        a.e('s_lshl_b32 s85, s85, 7')
        a.e('s_add_u32 s84, s84, s85')
        a.e(f's_lshl_b32 s85, s{S_W}, 15')
        a.e('s_add_u32 s84, s84, s85')
    a.e(f's_mov_b32 s85, {F1}')
    a.e('s_waitcnt lgkmcnt(0)')
    stamp(a, 7)
    a.e(f'v_lshlrev_b32 v138, {4 if f1sh() == 2 else f1sh()}, v2')
    wait_flags(a, 85, 138, 128, n=256)
    stamp(a, 8)
    YL = 84
    YD = opt('yd', 1)
    if YD:
        for i in range(4):
            a.e(f'buffer_load_dwordx4 v{176+i}, s[36:39], s82 offen offset:{1024*i} sc1 lds')
    else:
        a.e(f'buffer_load_dwordx4 v[{YL}:{YL+3}], v139, s[36:39], s82 offen sc1')
        a.e(f'buffer_load_dwordx4 v[{YL+4}:{YL+7}], v139, s[36:39], s82 offen offset:{64 << YL_} sc1')
        a.e(f'buffer_load_dwordx4 v[{YL+8}:{YL+11}], v6, s[36:39], s82 offen sc1')
        a.e(f'buffer_load_dwordx4 v[{YL+12}:{YL+15}], v6, s[36:39], s82 offen offset:{64 << YL_} sc1')
    a.e('s_waitcnt vmcnt(4)')
    if NF0 == 4: g2.fM(([(0, 2), (1, 3)] if RS else []) + [(2, 0), (3, 1)])
    if YD:
        a.e('s_waitcnt vmcnt(0)')
        a.e('s_barrier')
        a.e(f'ds_read_b128 v[{YL}:{YL+3}], v180')
        a.e(f'ds_read_b128 v[{YL+4}:{YL+7}], v180 offset:64')
        a.e(f'ds_read_b128 v[{YL+8}:{YL+11}], v180 offset:8192')
        a.e(f'ds_read_b128 v[{YL+12}:{YL+15}], v180 offset:8256')
    for cgi in range(4):
        a.e(f's_waitcnt {"lgkm" if YD else "vm"}cnt({3-cgi})')
        for r in range(2):
            for e in range(2):
                u = YU[r] + 4 * cgi + 2 * e
                unpack(a, u, u + 1, YL + 4 * cgi + 2 * r + e)
        for r in range(2):
            for e in range(2):
                u = YU[r] + 4 * cgi + 2 * e; x = XM[r] + 4 * cgi + 2 * e; t = TT[r] + 4 * cgi + 2 * e
                a.e(f'v_pk_fma_f32 v[{x}:{x+1}], v[{t}:{t+1}], v[{u}:{u+1}], v[{x}:{x+1}]')
        for r in range(2):
            for e in range(2):
                x = XM[r] + 4 * cgi + 2 * e
                if cgi == 0 and e == 0:
                    a.e(f'v_pk_mul_f32 v[{RR[r]}:{RR[r]+1}], v[{x}:{x+1}], v[{x}:{x+1}]')
                else:
                    a.e(f'v_pk_fma_f32 v[{RR[r]}:{RR[r]+1}], v[{x}:{x+1}], v[{x}:{x+1}], v[{RR[r]}:{RR[r]+1}]')
            x = XM[r] + 4 * cgi
            if cgi == 0: a.e(f'v_pk_add_f32 v[{SS[r]}:{SS[r]+1}], v[{x}:{x+1}], v[{x+2}:{x+3}]')
            else:
                a.e(f'v_pk_add_f32 v[{SS[r]}:{SS[r]+1}], v[{x}:{x+1}], v[{SS[r]}:{SS[r]+1}]')
                a.e(f'v_pk_add_f32 v[{SS[r]}:{SS[r]+1}], v[{x+2}:{x+3}], v[{SS[r]}:{SS[r]+1}]')
    if opt('kbst'): stamp(a, 16)
    for r in range(2):
        a.e(f'v_add_f32 v{SS[r]}, v{SS[r]}, v{SS[r]+1}')
        a.e(f'v_add_f32 v{RR[r]}, v{RR[r]}, v{RR[r]+1}')
    fl_ = []
    for r in range(2):
        for q in range(8):
            u = YU[r] + 2 * q; x = XU[r] + 2 * q; t = TT[r] + 2 * q
            fl_.append(f'v_pk_fma_f32 v[{x}:{x+1}], v[{t}:{t+1}], v[{u}:{u+1}], v[{x}:{x+1}]')
    for r in range(2):
        for q in range(8):
            fl_.append(f'v_cvt_pk_bf16_f32 v{XP+8*r+q}, v{XU[r]+2*q}, v{XU[r]+2*q+1}')
    for mod in ('row_shr:1 row_mask:0xf bank_mask:0xf bound_ctrl:0', 'row_shr:2 row_mask:0xf bank_mask:0xf bound_ctrl:0',
                'row_shr:4 row_mask:0xf bank_mask:0xf bound_ctrl:0', 'row_shr:8 row_mask:0xf bank_mask:0xf bound_ctrl:0',
                'row_bcast:15 row_mask:0xa bank_mask:0xf', 'row_bcast:31 row_mask:0xc bank_mask:0xf'):
        for v in (SS[0], SS[1], RR[0], RR[1]):
            a.e(f'v_add_f32_dpp v{v}, v{v}, v{v} {mod}')
    for i, v in enumerate((SS[0], SS[1], RR[0], RR[1])):
        a.e(f'v_readlane_b32 s{56+i}, v{v}, 63')
    def both(f):
        for r in range(2): f(r)
        if fl_: a.e(fl_.pop(0))
        if fl_: a.e(fl_.pop(0))
    def rbf(v):
        a.e(f'v_cvt_pk_bf16_f32 v{v}, v{v}, v{v}')
        a.e(f'v_and_b32 v{v}, s{S_MASK}, v{v}')
    both(lambda r: a.e(f'v_mul_f32 v{SS[r]}, s{56+r}, v{C}'))
    both(lambda r: a.e(f'v_mul_f32 v{RR[r]}, s{58+r}, v{C}'))
    both(lambda r: a.e(f'v_fma_f32 v{RR[r]}, -v{SS[r]}, v{SS[r]}, v{RR[r]}'))
    both(lambda r: a.e(f'v_max_f32 v{RR[r]}, 0, v{RR[r]}'))
    both(lambda r: rbf(RR[r]))
    both(lambda r: a.e(f'v_add_f32 v{RR[r]}, 0x3727c5ac, v{RR[r]}'))
    both(lambda r: rbf(RR[r]))
    both(lambda r: a.e(f'v_sqrt_f32 v{RR[r]}, v{RR[r]}'))
    both(lambda r: a.e(f'v_add_f32 v{SS[r]}, v{SS[r]}, v{MM[r]}'))
    both(lambda r: rbf(RR[r]))
    both(lambda r: a.e(f'v_rcp_f32 v{RR[r]}, v{RR[r]}'))
    both(lambda r: rbf(SS[r]))
    if opt('hs', 0): both(lambda r: a.e(f'v_mul_f32 v{RR[r]}, 0x3fb8aa3b, v{RR[r]}'))
    both(lambda r: a.e(f'v_sub_f32 v{SS[r]}, v{MM[r]}, v{SS[r]}'))
    both(lambda r: a.e(f'v_mul_f32 v{SS[r]}, v{SS[r]}, v{RR[r]}'))
    nh = len(fl_)
    for q in range(8):
        for r in range(2):
            x = XM[r] + 2 * q
            a.e(f'v_pk_fma_f32 v[{TT[r]+2*q}:{TT[r]+2*q+1}], v[{x}:{x+1}], v[{RR[r]}:{RR[r]+1}], v[{SS[r]}:{SS[r]+1}] op_sel_hi:[1,0,0]')
    for r in range(2):
        for q in range(8):
            a.e(f'v_cvt_pk_bf16_f32 v{YL+8*r+q}, v{TT[r]+2*q}, v{TT[r]+2*q+1}')
        for hh in range(2):
            a.e(f'ds_write_b128 v{132+r}, v[{YL+8*r+4*hh}:{YL+8*r+4*hh+3}] offset:{8192*hh}')
    for t_ in fl_: a.e(t_)
    a.e('s_waitcnt lgkmcnt(0)')
    a.e('s_barrier')
    for i in range(4):
        a.e(f'ds_read_b128 v[{100+4*i}:{103+4*i}], v135 offset:{1024*i}')
    for i in range(4):
        a.e(f's_waitcnt lgkmcnt({3-i})')
        if HC:
            a.e(f'buffer_store_dwordx4 v[{100+4*i}:{103+4*i}], v136, s[44:47], s84 offen offset:{1024*i} sc1')
        else:
            a.e(f'buffer_store_dwordx4 v[{100+4*i}:{103+4*i}], v136, s[44:47], s84 offen sc1')
            if i < 3: a.e('s_add_u32 s84, s84, 8192')
    stamp(a, 9)
    a.e(f's_lshl_b32 s87, s91, {fsh()}')
    a.e(f's_add_u32 s87, s87, {F2}')
    g2.front_save()
    if opt('s2e', 0):
        assert not F45
        signal(a, 87, 4)
        g1.pre_setup([])
    else:
        g1.pre_setup(g2.fD([(4, 0), (5, 1)], dv=28) if F45 else [])
        signal(a, 87, 4, waitfn=lambda: a.e(f's_waitcnt vmcnt({8 if F45 else 0})'))
    g2.NF = 8 if F45 else NF0 + 2
    def mv45():
        if not F45: return
        a.e('v_add_u32 v4, s73, v7')
        a.e('v_xor_b32 v5, 32, v4')
        a.e('s_waitcnt vmcnt(8)')
        g2.fM([(4, 0), (5, 1)], base=4)
    g1.hook = mv45
    g1.main()
    g1.epilogue(g2)
    g2.main()
    a.e(f's_or_b32 s57, s2, s{S_W}')
    a.e('s_cmp_lg_u32 s57, 0')
    a.e('s_cbranch_scc1 L_clean_skip')
    srd(a, 32, P_DBG, 256)
    a.e('v_mov_b32 v20, 0')
    a.e('s_mov_b64 exec, 1')
    a.e('buffer_store_dword v20, v20, s[32:35], 0 offen sc1')
    a.e('s_mov_b64 exec, -1')
    a.e('L_clean_skip:')
    stamp_out(a, NSTAMP)
    a.e('L_end:')
    a.e('s_endpgm')

G1_STG = 32768
class G1:
    TM, NW, DPW, ND = 4, 4, 8, 4
    ACC, WF, TF, DV, VT, VR, VL = 32, 0, 28, 8, 16, 17, 18
    DVE = 240
    def __init__(s, a): s.a = a
    def setup_dma(s):
        a = s.a
        a.e('s_and_b32 s56, s81, 1')
        a.e('s_lshl_b32 s56, s56, 1')
        a.e('s_movk_i32 s57, 4682')
        a.e('s_movk_i32 s58, 7168')
        a.e('v_mov_b32 v76, 0x80000000')
        a.e('v_subrev_u32 v77, 8, v2')
        for src, dst in ((2, 78), (77, 79)):
            a.e(f'v_cmp_gt_u32 vcc, 56, v{src}')
            a.e(f'v_mul_u32_u24 v80, s57, v{src}')
            a.e('v_lshrrev_b32 v80, 16, v80')
            a.e('v_mul_u32_u24 v81, 14, v80')
            a.e(f'v_sub_u32 v81, v{src}, v81')
            a.e('v_add_u32 v81, s56, v81')
            a.e('v_subrev_u32 v82, 14, v81')
            a.e('v_min_u32 v81, v81, v82')
            a.e('v_mul_u32_u24 v80, s58, v80')
            a.e('v_lshl_add_u32 v80, v81, 4, v80')
            a.e(f'v_cndmask_b32 v{dst}, v76, v80, vcc')
        for i in range(8):
            pat = 79 if (i >> 1) & 1 else 78
            c = i * 4 * 7168 - 1024 * (i & 3)
            a.e(f'v_add_u32 v{s.DVE+i}, {c}, v{pat}' if c else f'v_mov_b32 v{s.DVE+i}, v{pat}')
        a.e(f's_and_b32 s56, s{S_W}, 1')
        a.e(f's_lshr_b32 s57, s{S_W}, 1')
        a.e(f's_mul_i32 s97, s56, {8*4*7168}')
        a.e('s_mov_b32 s100, 458752')
        a.e('s_lshl_b32 s98, s57, 14')
        a.e('s_lshl_b32 s56, s56, 13')
        a.e('s_add_u32 s98, s98, s56')
        a.e('s_mul_i32 s56, s81, 224')
        a.e('s_cmp_eq_u32 s57, 0')
        a.e(f's_cselect_b32 s52, s{P_W1}, s{P_W3}')
        a.e(f's_cselect_b32 s53, s{P_W1+1}, s{P_W3+1}')
        srd(a, 52, 52, None, 0, 56)
        a.e('s_sub_u32 s54, 7340032, s56')
    def m0set(s, i): return f's_add_u32 m0, s98, {4096*(i//4)}' if i else 's_mov_b32 m0, s98'
    def dma(s, i, base): return f'buffer_load_dwordx4 v{base+i}, s[52:55], s97 offen offset:{1024*(i&3)}' + ['', ' sc1', ' nt', ' sc0'][opt('wfl')] + ' lds'
    def dma_adv(s): return ['s_add_u32 s97, s97, s100', f's_add_u32 s98, s98, {G1_STG}', 's_and_b32 s98, s98, 0x1ffff']
    def early_dma(s):
        out = []
        for st in range(2):
            for i in range(8):
                if i % 4 == 0: out.append([s.m0set(i)])
                out.append([s.dma(i, s.DVE)] + (s.dma_adv() if i == 7 else []))
        return out
    def tok(s, k, tm):
        f = s.TF + 4 * (4 * (k % s.ND) + tm)
        if opt('hc', 0):
            return f'buffer_load_dwordx4 a[{f}:{f+3}], v{(3, 25, 26, 27)[tm]}, s[32:35], s82 offen sc1'
        return f'buffer_load_dwordx4 a[{f}:{f+3}], v{s.VT}, s[32:35], s82 offen offset:{tm*1024}' + (' sc1' if opt('t1sc', 1) else '')
    def rd(s, ph, t):
        j, mat = (ph & 3) >> 1, ph & 1
        return [f'ds_read_b64_tr_b16 a[{s.WF+4*t+2*h}:{s.WF+4*t+2*h+1}], v{s.VR} offset:{8192*j+1024*h+32*t+16384*mat}' for h in range(2)]
    def pre_setup(s, inj):
        a = s.a
        for i in range(8): a.e(f'v_mov_b32 v{s.DV+i}, v{s.DVE+i}')
        for i in range(16): a.e(f'v_accvgpr_write_b32 a{92+i}, v{224+i}')
        zero_acc(a, s.ACC, 224, 20)
        a.e(f'v_lshlrev_b32 v{s.VT}, 4, v2')
        a.e('v_lshrrev_b32 v4, 4, v2')
        a.e('v_lshlrev_b32 v4, 11, v4')
        a.e('v_bfe_u32 v5, v2, 4, 1')
        a.e('v_lshl_add_u32 v4, v5, 7, v4')
        a.e('v_bfe_u32 v6, v2, 2, 2')
        a.e('v_mul_u32_u24 v5, 224, v6')
        a.e('v_and_b32 v6, 3, v2')
        a.e('v_lshl_add_u32 v5, v6, 3, v5')
        a.e(f'v_add_u32 v{s.VL}, v4, v5')
        a.e(f'v_mov_b32 v{s.VR}, v{s.VL}')
        if opt('hc', 0):
            a.e('v_bfe_u32 v4, v2, 3, 1')
            a.e('v_lshlrev_b32 v4, 14, v4')
            a.e('v_lshrrev_b32 v5, 4, v2')
            a.e('v_lshl_add_u32 v4, v5, 7, v4')
            a.e('v_and_b32 v5, 7, v2')
            a.e('v_lshl_add_u32 v3, v5, 4, v4')
            for i in range(1, 4): a.e(f'v_add_u32 v{24+i}, {32768*i}, v3')
        if opt('f2w', 0):
            a.e('v_and_b32 v19, 7, v2')
            a.e(f's_lshl_b32 s56, s{S_W}, 3')
            a.e('v_add_u32 v19, s56, v19')
        else:
            a.e('v_and_b32 v19, 31, v2')
        a.e(f'v_lshlrev_b32 v19, {fsh()}, v19')
        a.e('s_lshl_b32 s56, s80, 2')
        a.e(f's_add_u32 s56, s56, s{S_W}')
        a.e('s_lshl_b32 s57, s56, 17')
        srd(a, 32, P_WS, 131072, WS_HNF, 57)
        hf_base(a, 57, 80, S_W, 58)
        srd(a, 36, P_WS, 4 * 114688, 0, 57)
        a.e('s_and_b32 s58, s81, 1')
        a.e('s_mul_i32 s85, s81, 7')
        a.e('s_add_u32 s85, s85, s58')
        a.e('s_lshl_b32 s85, s85, 9')
        a.e('s_movk_i32 s86, 3072')
        a.e('s_cmp_eq_u32 s58, 0')
        a.e(f's_cselect_b32 s86, s86, {0xfffffe00 if opt("hl", 1) else 0xfffffc08:#x}')
        a.e('s_add_u32 s86, s86, s85')
        assert not inj
    def kof(s, s_, P): return 2 * s_ + (-1, 0, 0, 1)[P]
    def ev_ins(s, e):
        L = []
        if e[0] == 'D':
            if e[2] % 4 == 0: L.append(s.m0set(e[2]))
            L.append(s.dma(e[2], s.DV))
            if e[2] == 7: L += s.dma_adv()
        elif e[0] == 'Z':
            fl = ['', ' sc1'][opt('ps', 0) - 1]
            u = e[2]
            if u < 3: L = [f'buffer_store_dwordx4 v[24:27], v{s.VT}, s[36:39], s88 offen offset:{1024*u}{fl}']
            else: L = [f'buffer_store_dwordx2 v[24:25], v{s.VT}, s[36:39], s89 offen{fl}', 's_add_u32 s88, s88, 114688', 's_add_u32 s89, s89, 114688']
        elif e[0] == 'Q':
            L = [f'buffer_store_dwordx4 v[24:27], v{s.VT}, s[44:47], s99 offen', 's_add_u32 s99, s99, 1024']
        elif e[0] == 'V':
            L = ['s_mov_b32 m0, s89', 'buffer_load_dwordx4 v28, s[68:71], s72 offen lds', 's_add_u32 s72, s72, 32768', 's_add_u32 s89, s89, 1024']
        elif e[0] == 'U':
            if e[2] == 0: L = ['buffer_load_dword v22, v6, s[48:51], s101 offen']
            else: L = ['buffer_load_dword v22, v6, s[4:7], s101 offen', 's_add_u32 s101, s101, 917504']
        elif e[0] == 'C':
            L = ['global_load_dword v22, v23, s[78:79]', f's_cmp_ge_u32 s84, {opt("cpt", 5)}', 's_cselect_b32 s99, -1, 0', 'v_and_b32 v23, s99, v24']
        elif e[0] == 'Y':
            L = ['buffer_load_dword v22, v21, s[44:47], s88 offen', 's_add_u32 s88, s88, 1024']
        else:
            L.append(s.tok(e[1], e[2]))
            if e[2] == 3: L.append(f's_add_u32 s82, s82, {512 if opt("hc", 0) else 4096}')
        return L
    def main(s):
        a = s.a
        S = s.S = Sched()
        for s_ in range(-4, 8):
            for P in range(4):
                S.mark((s_, P))
                k = s.kof(s_, P) + s.ND - 1
                t0 = 2 if P in (0, 2) else 0
                S.add([('D', s_ + 2, 2 * P), ('T', k, t0), ('D', s_ + 2, 2 * P + 1), ('T', k, t0 + 1)])
                if opt('w2y', 0 if opt('rs', 0) else 1) and s_ % 2 == 0 and P == 1: S.add([('Y', s_, 0)])
                if opt('la', 2) < 8 and P == (3 if s_ % 2 == 0 else 2): S.add([('U', s_, s_ % 2)])
                if opt('vev', 1) and s_ % 2 == 1 and P == 1: S.add([('V', s_, 0)])
                if opt('cpg', 1) and s_ % 2 == 1 and P == 3: S.add([('C', s_, 0)])
                if opt('psx', 0) and P == 2 and s_ & 1: S.add([('Q', s_, 0)])
                if opt('ps', 0) and P in (1, 3): S.add([('Z', s_, 2 * (s_ & 1) + (P >> 1))])
        vm_bar = min(S.younger(('D', 4), (4, 0)), S.younger(('D', 5), (5, 0)))
        vm_p1 = min(S.younger(('T', 8), (4, 1)), S.younger(('T', 10), (5, 1)))
        vm_p3 = min(S.younger(('T', 9), (4, 3)), S.younger(('T', 11), (5, 3)))
        if opt('w2y', 0 if opt('rs', 0) else 1):
            a.e('s_mul_i32 s56, s2, 28672')
            a.e(f's_mul_i32 s57, s{S_W}, 7168')
            a.e('s_add_u32 s56, s56, s57')
            srd(a, 44, P_W2, 7168, 0, 56)
            a.e('v_min_u32 v21, 8, v2')
            a.e('v_lshlrev_b32 v21, 7, v21')
            a.e('s_mov_b32 s88, 0')
        a.e(f's_lshl_b32 s56, s80, {5+fsh()}')
        a.e(f's_add_u32 s56, s56, {F2}')
        if opt('psx', 0):
            srd(a, 44, P_WS, 8 * MB, WS_XP)
            a.e('s_lshl_b32 s99, s2, 2')
            a.e(f's_add_u32 s99, s99, s{S_W}')
            a.e('s_lshl_b32 s99, s99, 13')
        if opt('ps', 0):
            a.e('s_mov_b32 s88, s85')
            a.e('s_mov_b32 s89, s86')
            for r in range(4): a.e(f'v_mov_b32 v{24+r}, 0')
        a.e('s_add_u32 s89, s73, 98304')
        if opt('la', 2) < 8:
            a.e('s_mul_i32 s57, s2, 3584')
            a.e(f's_mul_i32 s58, s{S_W}, 896')
            a.e('s_add_u32 s57, s57, s58')
            srd(a, 48, P_W1, None, 0, 57)
            a.e('s_sub_u32 s50, 7340032, s57')
            srd(a, 4, P_W3, None, 0, 57)
            a.e('s_mov_b32 s6, s50')
            a.e(f's_mov_b32 s101, {917504 * opt("la", 2)}')
            a.e('v_min_u32 v6, 6, v2')
            a.e('v_lshlrev_b32 v6, 7, v6')
        if opt('cpg', 1):
            a.e('s_getpc_b64 s[78:79]')
            a.e('L_pcg:')
            a.e(f's_lshl_b32 s77, s{S_W}, 13')
            a.e('s_add_u32 s77, s77, L_g1epi-L_pcg')
            a.e('v_lshl_add_u32 v24, v2, 7, s77')
            a.e('v_min_u32 v24, L_end-L_pcg, v24')
            a.e('v_mov_b32 v23, 0')
        a.e('s_mov_b32 s82, 0')
        a.e('s_mov_b32 s83, 0')
        a.e('s_mov_b32 s84, 0')
        stamp(a, 10)
        d1 = [('D', 1, i) for i in range(8)] + [('D', 2, 0), ('D', 2, 1)]
        for e in d1:
            for l in s.ev_ins(e):
                a.e(l)
                if 'm0' in l: a.e('s_nop 0')
        s.hook()
        for t in range(6):
            for l in s.rd(0, t): a.e(l)
        a.e('s_waitcnt lgkmcnt(12)')
        wait_flags(a, 56, 19, 20, solo=0 if opt('f2w', 0) else None)
        stamp(a, 11)
        XE = opt('xe', 1)
        pro = d1 + [e for e in S.ev[:S.marks[(0, 1)]] if e[1] >= 0 and e[0] == 'T'] + ([] if XE else [('X', i, 0) for i in range(4)]) + [('U', -1 - i // 2, i & 1) for i in range(2 * opt('lx', 0))]
        for e in pro[len(d1):]:
            if e[0] == 'X':
                a.e(f'buffer_store_dwordx4 a[{92+4*e[1]}:{95+4*e[1]}], v{s.VT}, s[40:43], s96 offen offset:{1024*e[1]} sc1')
                continue
            for l in s.ev_ins(e):
                a.e(l)
                if 'm0' in l: a.e('s_nop 0')
        act = pro + S.ev[S.marks[(0, 1)]:]
        off = len(pro) - S.marks[(0, 1)]
        s.startup = {}
        need = -1
        for s_ in range(0, 6):
            for P, tags, N in ((0, [('D', s_)], vm_bar), (1, [('T', 2 * s_)], vm_p1), (3, [('T', 2 * s_ + 1)], vm_p3)):
                if (s_, P) == (0, 0): continue
                site = S.marks[(s_, P)] + off
                for tg in tags:
                    idx = [i for i, e in enumerate(act) if e[:2] == tg]
                    if not idx: continue
                    if site - max(idx) - 1 < N: need = max(need, max(idx))
        if need >= 0:
            a.e(f's_waitcnt vmcnt({S.marks[(0, 1)] + off - need - 1})')
        a.e('s_branch L_g1_P1')
        s.snake = 0
        if opt('al', 1):
            a.raw('.p2align 6')
            for _ in range(opt('alo', 0)): a.e('s_nop 0')
        a.e('L_g1_loop:')
        if opt('tw', 1):
            a.e('s_cmp_eq_u32 s84, 7')
            a.e('s_cbranch_scc0 L_g1_notw')
            for i in range(4):
                a.e(f'v_mov_b32 v{s.DV+i}, v{28+i}')
                a.e(f'v_add_u32 v{s.DV+4+i}, 131072, v{28+i}')
            a.e('s_mov_b64 s[52:53], s[68:69]')
            a.e('s_mov_b32 s54, s70')
            a.e('s_add_u32 s97, s72, 32768')
            a.e('s_mov_b32 s100, 262144')
            a.e('L_g1_notw:')
        for s_ in (4, 5):
            a.e(f's_add_u32 s83, s83, {G1_STG}')
            a.e('s_and_b32 s83, s83, 0x1ffff')
            a.e(f's_waitcnt vmcnt({vm_bar})')
            a.e('s_barrier')
            s.phase(s_, 0)
            if s_ == 4: a.e('L_g1_P1:')
            a.e(f's_waitcnt vmcnt({vm_p1})')
            s.phase(s_, 1)
            s.phase(s_, 2)
            a.e(f's_waitcnt vmcnt({vm_p3})')
            s.phase(s_, 3)
        if opt('g1st'):
            a.e('s_memtime s[66:67]')
            a.e('s_min_u32 s64, s84, 3')
            a.e('s_add_u32 s64, s64, 26')
            a.e('s_waitcnt lgkmcnt(0)')
            a.e('s_cmp_lt_u32 s84, 4')
            a.e('s_cselect_b32 s64, s64, 40')
            a.e('s_mov_b32 m0, s64')
            a.e('v_writelane_b32 v1, s66, m0')
        a.e('s_add_u32 s84, s84, 1')
        a.e('s_cmp_lt_u32 s84, 8')
        a.e('s_cbranch_scc1 L_g1_loop')
        a.e('L_g1epi:')
        s.phase(6, 0, last=True)
        stamp(a, 12)
    def phase(s, s_, P, last=False):
        a = s.a; S = s.S
        kbuf = s.kof(s_, P) % s.ND
        mat = (P + 1) & 1
        items = []
        if not last:
            nxt = S.marks[(s_, P + 1)] if P < 3 else S.marks[(s_ + 1, 0)]
            items = [s.ev_ins(e) for e in S.ev[S.marks[(s_, P)]:nxt]]
        slots = [[] for _ in range(7)]
        for p_, it in zip([1, 2, 4, 5, 6], items): slots[p_] = it
        if P == 0 and not last:
            slots[0] = [f'v_add_u32 v{s.VR}, s83, v{s.VL}']
        for t in range(7):
            a.e(f's_waitcnt lgkmcnt({10 if not (last and t) else 12-2*t})')
            R = s.rd(P - 1, 6) if t == 0 else ([] if last else s.rd(P, t - 1))
            X = list(slots[t])
            pre = [x for x in X if 'm0' in x]
            X = [x for x in X if 'm0' not in x]
            gaps = [[] for _ in range(4)]
            if R: gaps[0] = pre + [R[0]]; gaps[1] = [R[1]]
            gaps[2] = X[:1]; gaps[3] = X[1:]
            order = [0, 1, 2, 3]
            if s.snake & 1: order.reverse()
            s.snake += 1
            for n, tm in enumerate(order):
                c = s.ACC + 4 * ((mat * 7 + t) * 4 + tm)
                tf = s.TF + 4 * (4 * kbuf + tm)
                if not opt('g1x') & 1: a.e(f'v_mfma_f32_16x16x32_bf16 v[{c}:{c+3}], a[{s.WF+4*t}:{s.WF+4*t+3}], a[{tf}:{tf+3}], v[{c}:{c+3}]')
                for x in gaps[n]:
                    if opt('g1x') & 2 and x.startswith('ds_'): continue
                    if opt('g1x') & 4 and x.startswith('buffer'): continue
                    a.e(x)
    def epilogue(s, g2):
        a = s.a
        L = Lin(a)
        a.e('s_mov_b32 s58, 0xbfb8aa3b')
        a.e('s_mov_b32 s59, 0xbfb8aa3b')
        if opt('xe', 1):
            for i in range(4):
                a.e(f'buffer_store_dwordx4 a[{92+4*i}:{95+4*i}], v{s.VT}, s[40:43], s96 offen offset:{1024*i} sc1')
        g2.early(L)
        a.e('v_lshlrev_b32 v17, 3, v2')
        T = 8
        k = 0
        for tm in range(4):
            for u in range(4):
                O = (20, 24)[k & 1]
                fill = g2.epi_fill(k)
                def F(n=1):
                    for _ in range(n):
                        if fill: fill.pop(0)()
                tiles = [2 * u, 2 * u + 1] if u < 3 else [6]
                gs = []; us = []
                for t in tiles:
                    gs += [s.ACC + 4 * (t * 4 + tm), s.ACC + 4 * (t * 4 + tm) + 2]
                    us += [s.ACC + 4 * ((7 + t) * 4 + tm), s.ACC + 4 * ((7 + t) * 4 + tm) + 2]
                n = len(gs)
                nins = 9 * n
                cnt = [0]; ev_ = max(1, nins // (len(fill) + 1))
                def V(t):
                    a.e(t); cnt[0] += 1
                    if cnt[0] % ev_ == 0: F(1)
                if opt('hs', 0):
                    for q in range(2 * n): V(f'v_exp_f32 v{T+q}, -v{gs[q//2]+(q&1)}')
                else:
                    for q in range(n): V(f'v_pk_mul_f32 v[{T+2*q}:{T+2*q+1}], v[{gs[q]}:{gs[q]+1}], s[58:59]')
                    for q in range(2 * n): V(f'v_exp_f32 v{T+q}, v{T+q}')
                for q in range(n): V(f'v_pk_add_f32 v[{T+2*q}:{T+2*q+1}], v[{T+2*q}:{T+2*q+1}], 1.0 op_sel_hi:[1,0]')
                for q in range(2 * n): V(f'v_rcp_f32 v{T+q}, v{T+q}')
                for q in range(n): V(f'v_pk_mul_f32 v[{gs[q]}:{gs[q]+1}], v[{gs[q]}:{gs[q]+1}], v[{us[q]}:{us[q]+1}]')
                for q in range(n): V(f'v_pk_mul_f32 v[{T+2*q}:{T+2*q+1}], v[{T+2*q}:{T+2*q+1}], v[{gs[q]}:{gs[q]+1}]')
                for q in range(n): V(f'v_cvt_pk_bf16_f32 v{O+q}, v{T+2*q}, v{T+2*q+1}')
                if u < 3:
                    L.v('st', f'buffer_store_dwordx4 v[{O}:{O+3}], v{s.VT}, s[36:39], s85 offen offset:{1024*u}' + hfl())
                else:
                    L.v('st', f'buffer_store_dwordx2 v[{O}:{O+1}], v{17 if opt("hl", 1) else s.VT}, s[36:39], s86 offen' + hfl())
                F(len(fill))
                k += 1
            if tm < 3:
                a.e('s_add_u32 s85, s85, 114688')
                a.e('s_add_u32 s86, s86, 114688')
        a.e(f's_lshl_b32 s87, s91, {fsh()}')
        a.e(f's_add_u32 s87, s87, {F3}')
        stamp(a, 13)
        a.e('L_g2code:')
        if opt('s3e', 1):
            a.e('s_waitcnt lgkmcnt(0)')
            signal(a, 87, 5, waitfn=lambda: L.wait(vm=('st',)))
            g2.post_epilogue(bar=False)
        else:
            g2.post_epilogue()
            signal(a, 87, 5, waitfn=lambda: L.wait(vm=('st',)), wb=(opt('hfl') == 4))
        stamp(a, 18)

class G2:
    ACC, TF, DV, VT, RJ, TR, V1, VO, VF = 32, 96, 28, 16, 3, 8, 12, 13, 14
    REG = 40960
    def __init__(s, a): s.a = a
    def wreg(s, k, j):
        if k < 16: return 'a', 128 + 8 * k + 4 * j
        if k < 32: return 'a', 8 * (k - 16) + 4 * j
        NB = opt('nb', 12); nv = (160 - 4 * NB) // 8
        if k < 32 + nv: return 'v', 96 + 4 * NB + 8 * (k - 32) + 4 * j
        return 'a', 128 + 8 * (k - 32 - nv) + 4 * j
    def front_setup(s):
        a = s.a
        gm = opt('g2map', 1)
        s.pbit = 2 if gm == 2 else 1
        if gm == 2: a.e('s_bfe_u32 s76, s2, 0x10001')
        else: a.e('s_and_b32 s76, s2, 1')
        a.e('s_lshr_b32 s56, s2, 3')
        if gm:
            if gm == 2:
                a.e('s_andn2_b32 s74, 1, s2')
            else:
                a.e('s_bfe_u32 s74, s2, 0x10001')
            a.e('s_lshl_b32 s74, s74, 3')
            a.e('s_and_b32 s57, s56, 7')
            a.e('s_add_u32 s74, s74, s57')
            a.e('s_bfe_u32 s75, s2, 0x10002')
            a.e('s_lshl_b32 s75, s75, 2')
            a.e('s_lshr_b32 s57, s56, 3')
            a.e('s_add_u32 s75, s75, s57')
        else:
            a.e('s_bfe_u32 s74, s2, 0x20001')
            a.e('s_lshl_b32 s74, s74, 2')
            a.e('s_and_b32 s57, s56, 3')
            a.e('s_add_u32 s74, s74, s57')
            a.e('s_lshr_b32 s75, s56, 2')
        a.e('v_lshrrev_b32 v252, 2, v2')
        a.e('v_lshlrev_b32 v253, 11, v252')
        a.e('v_lshrrev_b32 v254, 3, v2')
        a.e('v_xor_b32 v254, v254, v2')
        a.e('v_and_b32 v254, 2, v254')
        a.e('v_and_or_b32 v254, v2, 1, v254')
        a.e('v_lshl_add_u32 v248, v254, 4, v253')
        for i in range(1, 4):
            a.e(f'v_add_u32 v{248+i}, {i*(32768-1024)}, v248')
        a.e('s_mul_i32 s56, s76, 3670016')
        a.e('s_lshl_b32 s57, s75, 8')
        a.e('s_add_u32 s56, s56, s57')
        a.e(f's_lshl_b32 s57, s{S_W}, 6')
        a.e('s_add_u32 s56, s56, s57')
        srd(a, 68, P_W2, None, 0, 56)
        a.e('s_sub_u32 s70, 7340032, s56')
        a.e('s_mov_b32 s72, 0')
        a.e('v_lshlrev_b32 v252, 6, v252')
        a.e('v_bfe_u32 v253, v2, 4, 1')
        a.e('v_lshl_add_u32 v252, v253, 5, v252')
        a.e('v_and_b32 v253, 3, v2')
        a.e('v_lshl_add_u32 v252, v253, 3, v252')
        a.e(f's_lshl_b32 s73, s{S_W}, 13')
        a.e('s_add_u32 s73, s73, 32768')
        a.e('v_add_u32 v253, s73, v252')
        a.e('v_xor_b32 v254, 32, v253')
    def fcell(s, n): return (32768, 36864, 0, 4096, 98304, 102400)[n]
    def fD(s, pairs, dv=248):
        a = s.a
        out = []
        for c, n in pairs:
            out.append(lambda n=n: a.e(f's_add_u32 m0, s73, {s.fcell(n)}'))
            for i in range(4):
                def f(i=i):
                    a.e(f'buffer_load_dwordx4 v{dv+i}, s[68:71], s72 offen offset:{1024*i} lds')
                    if i == 3: a.e('s_add_u32 s72, s72, 131072')
                out.append(f)
        return out
    def fM(s, pairs, base=253, sub=0):
        a = s.a
        for c, n in pairs:
            for kk in range(2):
                for j in range(2):
                    for h in range(2):
                        r, q = s.wreg(2 * c + kk, j)
                        a.e(f'ds_read_b64_tr_b16 {r}[{q+2*h}:{q+2*h+1}], v{base+j} offset:{s.fcell(n)-sub+2048*kk+1024*h}')
    def front_save(s):
        a = s.a
        for i in range(4): a.e(f'v_mov_b32 v{s.DV+i}, v{248+i}')
        a.e('v_mov_b32 v7, v252')
    def early(s, L):
        a = s.a; s.L = L
        a.e('s_mov_b32 s80, s74')
        a.e('s_mov_b32 s81, s75')
        a.e('s_mov_b32 s82, s76')
        a.e(f's_mul_i32 s98, s{S_W}, {s.REG}')
        a.e(f'v_add_u32 v{s.RJ}, s98, v7')
        a.e(f'v_xor_b32 v{s.RJ+1}, 32, v{s.RJ}')
        a.e('s_add_u32 s56, s73, 98304')
        a.e('v_add_u32 v5, s56, v7')
        a.e('v_xor_b32 v6, 32, v5')
        a.e(f's_waitcnt vmcnt({4 if opt("xe", 1) else 0})')
        L.vm = ['st'] * (4 if opt('xe', 1) else 0)
        mv = [(s.NF - 2, 4, 5, 98304), (s.NF - 1, 5, 5, 98304)]
        if opt('tw', 1):
            a.e('s_mov_b32 s72, s97')
            a.e('s_sub_u32 s56, s73, 32768')
            a.e('v_add_u32 v18, s56, v7')
            a.e('v_xor_b32 v19, 32, v18')
            mv += [(s.NF + i, (2, 3, 0, 1)[i], 18, 0) for i in range(4)]
            s.NF += 4
        items = []
        for c, n, base, sub in mv:
            for kk in range(2):
                for j in range(2):
                    for h in range(2):
                        r, q = s.wreg(2 * c + kk, j)
                        items.append(lambda r=r, q=q, h=h, j=j, n=n, kk=kk, base=base, sub=sub: a.e(f'ds_read_b64_tr_b16 {r}[{q+2*h}:{q+2*h+1}], v{base+j} offset:{s.fcell(n)-sub+2048*kk+1024*h}'))
        s.mv_items = items
        if opt('cpf2', 0): code_pf(a, 'L_g2code', 'L_end', 21, lambda t: L.v('cp', t))
        s.cell = {}
        s.free = list(range(10))
    def D(s, c):
        L = s.L
        def first():
            s.cell[c] = s.free.pop(0)
            L.e(f's_add_u32 m0, s98, {4096*s.cell[c]}')
        out = [first]
        for i in range(4):
            out.append(lambda i=i: L.v(('W', c), f'buffer_load_dwordx4 v{s.DV+i}, s[68:71], s72 offen offset:{1024*i} lds'))
        out.append(lambda: L.e('s_add_u32 s72, s72, 131072'))
        return out
    def M(s, c):
        L = s.L
        out = []
        for kk in range(2):
            for j in range(2):
                for h in range(2):
                    def f(kk=kk, j=j, h=h):
                        r, n = s.wreg(2 * c + kk, j)
                        L.l(('M', c), f'ds_read_b64_tr_b16 {r}[{n+2*h}:{n+2*h+1}], v{s.RJ+j} offset:{4096*s.cell[c]+2048*kk+1024*h}')
                    out.append(f)
        return out
    def Wv(s, c): return [lambda: s.L.wait(vm=(('W', c),))]
    def Fr(s, cs):
        def f():
            s.L.wait(lg0=True)
            for c in cs: s.free.append(s.cell[c])
        return [f]
    def epi_fill(s, k):
        D, M, Wv, Fr = s.D, s.M, s.Wv, s.Fr
        def cat(*xs): return [y for x in xs for y in x]
        s.A = []
        out, s.mv_items = s.mv_items[:12], s.mv_items[12:]
        return out
    def post_epilogue(s, bar=True):
        a = s.a; L = s.L
        assert not s.A
        s.NA = s.NF + opt('ne', 0) + opt('na', 3)
        if bar:
            a.e('s_waitcnt lgkmcnt(0)')
            a.e('s_barrier')
        a.inject([f for c in range(s.NF + opt('ne', 0), s.NA) for f in s.D(c)], 4)
        a.e(f'v_mov_b32 v{s.TR}, v{s.VT}')
        for q in range(1, 4):
            a.e(f'v_add_u32 v{s.TR+q}, {q*s.REG}, v{s.VT}')
        a.e(f'v_add_u32 v{s.V1}, {114688-2048}, v{s.VT}')
        for q in range(4):
            a.e(f'v_add_u32 v{24+q}, {q*s.REG}, v17')
        zero_acc(a, s.ACC, 64, 96)
        a.flush_inject()
        a.e('s_lshl_b32 s56, s80, 3')
        a.e(f's_lshl_b32 s57, s{S_W}, 1')
        a.e('s_lshl_b32 s58, s82, 2')
        a.e('s_xor_b32 s57, s57, s58')
        a.e('s_add_u32 s56, s56, s57')
        a.e('s_lshr_b32 s83, s56, 4')
        a.e('s_bfe_u32 s84, s56, 0x20002')
        hf_base(a, 57, 83, 84, 58)
        a.e('s_and_b32 s56, s56, 3')
        a.e('s_mul_i32 s56, s56, 114688')
        a.e('s_add_u32 s57, s57, s56')
        a.e('s_mul_i32 s58, s82, 57344')
        a.e('s_add_u32 s57, s57, s58')
        srd(a, 32, P_WS, 114688 + 57344, 0, 57)
        a.e('v_and_b32 v5, 15, v2')
        a.e('v_lshlrev_b32 v5, 11, v5')
        if opt('o4', 1):
            a.e('v_bfe_u32 v6, v2, 4, 1')
            a.e('v_lshl_add_u32 v5, v6, 5, v5')
            a.e('v_lshrrev_b32 v6, 5, v2')
            a.e(f'v_lshl_add_u32 v{s.VO}, v6, 4, v5')
        else:
            a.e('v_lshrrev_b32 v6, 4, v2')
            a.e(f'v_lshl_add_u32 v{s.VO}, v6, 3, v5')
        a.e('s_lshl_b32 s85, s80, 18')
        a.e('s_lshl_b32 s57, s82, 17')
        a.e('s_add_u32 s85, s85, s57')
        a.e('s_lshl_b32 s57, s81, 8')
        a.e('s_add_u32 s85, s85, s57')
        a.e(f's_lshl_b32 s57, s{S_W}, 6')
        a.e('s_add_u32 s85, s85, s57')
        a.e(f'v_and_b32 v{s.VF}, {15 if opt("f3h", 0) else 31}, v2')
        a.e(f'v_lshlrev_b32 v{s.VF}, {fsh()}, v{s.VF}')
    def main(s):
        a = s.a; L = s.L
        a.e('s_lshr_b32 s56, s80, 1')
        a.e(f's_lshl_b32 s56, s56, {5+fsh()}')
        a.e(f's_add_u32 s56, s56, {F3}')
        if opt('f3h', 0):
            a.e(f's_lshl_b32 s57, s82, {4+fsh()}')
            a.e('s_add_u32 s56, s56, s57')
            a.e(f's_lshl_b32 s97, s80, {4+fsh()}')
            a.e(f's_add_u32 s97, s97, {F3}')
        srd(a, 44, P_WS, 4 * MB, WS_H)
        a.e('s_mov_b32 s84, 0')
        L.wait(vm0=True)
        for c in range(s.NF, s.NA):
            for f in s.M(c): f()
        for f in s.Fr(range(s.NF, s.NA)): f()
        wait_flags(a, 56, s.VF, 20)
        stamp(a, 14)
        NS = 28
        slot = {}
        def TD(st):
            slot[st] = s.free.pop(0)
            out = [lambda: L.e(f's_add_u32 m0, s98, {4096*slot[st]}')]
            for i in range(4):
                v = s.VT if i < 2 else s.V1
                out.append(lambda i=i, v=v: L.v(('T', st), f'buffer_load_dwordx4 v{v}, s[32:35], s84 offen offset:{1024*i} sc1 lds'))
            out.append(lambda: (L.e('s_add_u32 s84, s84, 2048'), issued.add(st)))
            return out
        issued = set()
        NB = opt('nb', 12); KV = 32 + (160 - 4 * NB) // 8
        nxt = 0
        wc = opt('wc', 3)
        wfree, s.free = s.free[-wc:], s.free[:-wc]
        for _ in range(opt('t0', 3)):
            fs = TD(nxt); fs[0](); a.e('s_nop 0')
            for f in fs[1:]: f()
            nxt += 1
        L.wait(vm=(('T', 0),))
        a.e('s_barrier')
        X = opt('tx', 12)
        seq = [(k, tm) for k in range(56 - X) for tm in range(8)]
        seq += [(k, tm) for k in range(56 - X, 56) for tm in range(4, 8)]
        nS = len(seq)
        seq += [(k, tm) for k in range(56 - X, 56) for tm in range(4)]
        last_use = {}
        for g_, (k, tm) in enumerate(seq): last_use[k >> 1] = g_
        rdn = [0]
        def RDnext():
            if rdn[0] < 448:
                k, tm = seq[rdn[0]]
                f = s.TF + 4 * (rdn[0] % NB)
                o_ = 4096 * slot[k >> 1] + 2048 * (tm & 1) + 1024 * (k & 1)
                if k % 7 == 3 and opt('hl', 1):
                    L.l(('R', rdn[0]), f'ds_read2st64_b64 v[{f}:{f+3}], v{24+(tm>>1)} offset0:{o_//512} offset1:{o_//512+1}')
                else:
                    L.l(('R', rdn[0]), f'ds_read_b128 v[{f}:{f+3}], v{s.TR+(tm>>1)} offset:{o_}')
                rdn[0] += 1
        for _ in range(NB - 1): RDnext()
        todo = list(range(s.NA, 28)); fly = []; pend = []; freed = set(); vis = 0; wseen = set()
        assert NB - 1 <= 16
        HR = 192
        a.e('s_lshl_b32 s56, s2, 2')
        a.e(f's_add_u32 s56, s56, s{S_W}')
        a.e('s_lshl_b32 s57, s56, 13')
        a.e(f's_xor_b32 s58, s57, {0x8000 * s.pbit:#x}')
        a.e('s_lshl_b32 s56, s56, 6')
        a.e(f's_add_u32 s56, s56, {F4}')
        a.e(f's_xor_b32 s59, s56, {0x100 * s.pbit:#x}')
        srd(a, 40, P_WS, 8 * MB, WS_XP)
        srd(a, 48, P_OUT, 4 * MB)
        a.e('s_add_u32 s87, s57, 4096')
        a.e('s_add_u32 s88, s58, 4096')
        a.e('v_mov_b32 v20, 0')
        a.e(f'v_mov_b32 v21, s{S_NONCE}')
        def flag_store():
            L.wait(vm=('xs',))
            if not opt('kbst'): stamp(a, 16)
            a.e('s_mov_b64 exec, 1')
            L.v('fl', f'buffer_store_dword v21, v20, s[{S_FLG}:{S_FLG+3}], s56 offen sc1')
            a.e('s_mov_b64 exec, -1')
        BP = opt('bp', 1)
        def xstores():
            out = []
            if BP:
                for q2 in range(4):
                    def f(q2=q2):
                        c = s.ACC + 32 + 8 * q2
                        for e in range(4): a.e(f'v_cvt_pk_bf16_f32 v{c+e}, v{c+2*e}, v{c+2*e+1}')
                        if opt('degr'):
                            m_ = (0xffff << opt('degr')) & 0xffff
                            for e in range(4): a.e(f'v_and_b32 v{c+e}, {m_ * 0x10001:#x}, v{c+e}')
                        L.v('xs', f'buffer_store_dwordx4 v[{c}:{c+3}], v{s.VT}, s[40:43], s57 offen offset:{1024*q2} sc1')
                    out += [lambda: None, f]
            else:
                for q in range(8):
                    c = s.ACC + 32 + 4 * q
                    out.append(lambda q=q, c=c: L.v('xs', f'buffer_store_dwordx4 v[{c}:{c+3}], v{s.VT}, s[40:43], s{57 if q < 4 else 87} offen offset:{1024*(q&3)} sc1'))
            return out
        gF = nS + opt('tf', 48) * (448 - nS) // 64 if X else None
        for u in range(56):
            k0 = seq[8 * u][0]
            fill = []
            GM = (0, 16, 32, 44, 50)
            if opt('g2st') and u in GM:
                a.e('s_memtime s[66:67]'); a.e('s_waitcnt lgkmcnt(0)'); L.lg = []
                a.e(f'v_writelane_b32 v1, s66, {26 + GM.index(u)}')
            if s.free and nxt < NS and (u & 1 or u < 8 or not todo or len(s.free) > 1):
                fill += TD(nxt); nxt += 1
                if not todo and not fly and s.free and nxt < NS:
                    fill += TD(nxt); nxt += 1
            if not u & 1 and u >= opt('wk0', 8):
                if fly and u >= fly[0][1] + opt('wlat', 4):
                    c = fly.pop(0)[0]
                    assert 2 * c + 1 < KV or u >= 2 * c + 2 - KV
                    fill += s.Wv(c) + s.M(c)
                    pend.append(c)
                if todo and wfree:
                    c = todo.pop(0)
                    fs = s.D(c)
                    s.cell[c] = wfree.pop(0)
                    fill += [lambda c=c: L.e(f's_add_u32 m0, s98, {4096*s.cell[c]}')] + fs[1:]
                    fly.append((c, u))
            if 8 * u == nS and X:
                fill += xstores()
            if u == 44 and opt('f3h', 0):
                fill.append(lambda: L.v('hf', f'buffer_load_dword v23, v{s.VF}, s[{S_FLG}:{S_FLG+3}], s97 offen sc1'))
            if u == 52 and opt('f3h', 0):
                L.wait(vm=('hf',))
                a.e(f'v_cmp_ne_u32 vcc, s{S_NONCE}, v23')
                a.e('s_cbranch_vccz L_hok')
                wait_flags(a, 97, s.VF, 23, solo=0)
                a.e('L_hok:')
            if u == 52:
                for tm in range(4):
                    for j in range(1 if opt('o4', 1) else 2):
                        def f(tm=tm, j=j):
                            if j == 0 and tm: L.e(f's_add_u32 s86, s85, {32768*tm}')
                            if opt('o4', 1):
                                L.v('h', f'buffer_load_dwordx4 a[{4*tm}:{4*tm+3}], v{s.VO}, s[44:47], s{86 if tm else 85} offen sc1')
                            else:
                                L.v('h', f'buffer_load_dwordx2 a[{4*tm+2*j}:{4*tm+2*j+1}], v{s.VO}, s[44:47], s{86 if tm else 85} offen offset:{32*j} sc1')
                        fill.append(f)
            per = -(-(len(fill) + 1) // 8)
            SS = opt('ss', 1)
            for i in range(8):
                g_ = 8 * u + i
                k, tm = seq[g_]
                if rdn[0] < 448 and seq[rdn[0]][0] >> 1 > vis:
                    q = seq[rdn[0]][0] >> 1
                    vis = min(NS - 1, q + SS - 1) if q > 1 else q
                    assert vis in issued, (u, i, vis)
                    L.wait(vm=(('T', vis),))
                    a.e('s_barrier')
                    for q2 in list(slot):
                        if q2 not in freed and last_use[q2] < g_:
                            freed.add(q2); s.free.append(slot[q2])
                need = [('R', g_)]
                if k >> 1 not in wseen:
                    wseen.add(k >> 1)
                    assert k >> 1 not in todo and all(c != k >> 1 for c, _ in fly), (k, u)
                    need.append(('M', k >> 1))
                if g_ == gF: flag_store()
                L.wait(lg=need)
                order = [0, 1] if g_ % 2 == 0 else [1, 0]
                for n, j in enumerate(order):
                    r, w = s.wreg(k, j)
                    c = s.ACC + 4 * (2 * tm + j)
                    tf = s.TF + 4 * (g_ % NB)
                    if not opt('g2x') & 1:
                        a.e(f'v_mfma_f32_16x16x32_bf16 v[{c}:{c+3}], {r}[{w}:{w+3}], v[{tf}:{tf+3}], v[{c}:{c+3}]')
                    if n == 0:
                        RDnext()
                    else:
                        for _ in range(per):
                            if fill:
                                fill.pop(0)()
                                if 'm0' in a.lines[-1]: break
            while fill:
                if 'm0' in a.lines[-1]: a.e('s_nop 0')
                fill.pop(0)()
            for c in list(pend):
                if not any(x == ('M', c) for x in L.lg):
                    pend.remove(c)
                    (wfree if todo else s.free).append(s.cell[c])
            if not todo and wfree and not fly and not pend:
                s.free += wfree; wfree = []
        assert not todo and not fly and not pend and nxt == NS
        stamp(a, 15)
        if not X:
            a.e('s_nop 7')
            for f in xstores(): f()
            flag_store()
        wait_flags(a, 59, 20, 22, solo=0)
        stamp(a, 17)
        P1 = 96
        NL = 4 if BP else 8
        for q in range(NL):
            a.e(f'buffer_load_dwordx4 v[{P1+4*q}:{P1+4*q+3}], v{s.VT}, s[40:43], s{58 if q < 4 else 88} offen offset:{1024*(q&3)} sc1')
        H = 208
        for q in range(16):
            a.e(f'v_accvgpr_read_b32 v{HR+q}, a{q}')
        if opt('o4', 1):
            for tm in range(4):
                if tm == 3: a.e('s_nop 0')
                a.e(f'v_permlane16_swap_b32 v{HR+4*tm}, v{HR+4*tm+2}')
                a.e(f'v_permlane16_swap_b32 v{HR+4*tm+1}, v{HR+4*tm+3}')
        for q in range(16):
            unpack(a, H + 2 * q, H + 2 * q + 1, HR + q)
        a.e('s_mov_b32 s82, 0x3ef5fdf0')
        a.e('s_mov_b32 s83, 0x3ef5fdf0')
        for q in range(8):
            tm, j = q >> 1, q & 1
            if j == 0 and tm: a.e(f's_add_u32 s85, s85, 32768')
            if BP:
                if j == 0: a.e(f's_waitcnt vmcnt({3 if opt("o4", 1) else 3 + tm})')
            else: a.e('s_waitcnt vmcnt(7)')
            c = s.ACC + 4 * q
            for e in range(2):
                x = c + 2 * e; h = H + 4 * q + 2 * e
                if BP:
                    y = 128 + 2 * e
                    unpack(a, y, y + 1, P1 + 2 * q + e)
                else:
                    y = P1 + 4 * q + 2 * e
                a.e(f'v_pk_add_f32 v[{x}:{x+1}], v[{x}:{x+1}], v[{y}:{y+1}]')
                if opt('hs', 0): a.e(f'v_pk_mul_f32 v[{x}:{x+1}], v[{x}:{x+1}], s[82:83]')
                a.e(f'v_cvt_pk_bf16_f32 v{y}, v{x}, v{x+1}')
                unpack(a, x, x + 1, y)
                a.e(f'v_pk_add_f32 v[{x}:{x+1}], v[{x}:{x+1}], v[{h}:{h+1}]')
                a.e(f'v_cvt_pk_bf16_f32 v{192+2*q+e}, v{x}, v{x+1}')
            ofl = ['', ' sc1', ' nt', ' sc0 sc1'][opt('ofl')]
            if opt('o4', 1):
                assert BP
                if j == 1:
                    o = 192 + 4 * tm
                    a.e('s_nop 1')
                    a.e(f'v_permlane16_swap_b32 v{o}, v{o+2}')
                    a.e(f'v_permlane16_swap_b32 v{o+1}, v{o+3}')
                    a.e(f'buffer_store_dwordx4 v[{o}:{o+3}], v{s.VO}, s[48:51], s85 offen' + ofl)
            else:
                a.e(f'buffer_store_dwordx2 v[{192+2*q}:{192+2*q+1}], v{s.VO}, s[48:51], s85 offen offset:{32*j}' + ofl)
        LIN[0] = None

def gen_dg(a):
    d = opt('dg'); F, ia, ib = d // 10000, d // 100 % 100, d % 100
    m = opt('dgm')
    a.raw('.globl dg_kernel\n.p2align 8\n.type dg_kernel,@function\ndg_kernel:')
    a.e('s_load_dwordx2 s[10:11], s[0:1], 96')
    a.e('s_memrealtime s[12:13]')
    a.e('s_waitcnt lgkmcnt(0)')
    a.e(f's_add_u32 s10, s10, {STAMP_BASE + opt("dgw", 0) * 128:#x}')
    a.e('s_addc_u32 s11, s11, 0')
    if not m:
        a.e(f's_load_dword s4, s[10:11], {4*ia}')
        a.e(f's_load_dword s5, s[10:11], {4*ib}')
        a.e('s_waitcnt lgkmcnt(0)')
    else:
        a.e('s_mov_b32 s20, s10\ns_mov_b32 s21, s11\ns_mov_b32 s22, 0x20000\ns_mov_b32 s23, 0x20000')
        a.e('v_lshlrev_b32 v1, 7, v0')
        for i in range(16):
            a.e(f's_mov_b32 s6, {i*8192}')
            a.e(f'buffer_load_dword v{8+i}, v1, s[20:23], s6 offen offset:{4*ia}')
            a.e(f'buffer_load_dword v{24+i}, v1, s[20:23], s6 offen offset:{4*ib}')
        a.e('s_waitcnt vmcnt(0)')
        for i in range(32):
            a.e(f'v_sub_u32 v{8+i}, s12, v{8+i}')
        opa = 'v_max_u32' if m != 3 else 'v_add_u32'
        opb = {1: 'v_min_u32', 2: 'v_max_u32', 3: 'v_add_u32'}[m]
        for i in range(1, 16):
            a.e(f'{opa} v8, v8, v{8+i}')
            a.e(f'{opb} v24, v24, v{24+i}')
        a.e('s_nop 1')
        a.e('v_readlane_b32 s4, v8, 0')
        a.e('v_readlane_b32 s5, v24, 0')
        sa = 's_max_u32' if m != 3 else 's_add_u32'
        sb = {1: 's_min_u32', 2: 's_max_u32', 3: 's_add_u32'}[m]
        for l in range(1, 64):
            a.e(f'v_readlane_b32 s6, v8, {l}')
            a.e(f'v_readlane_b32 s7, v24, {l}')
            a.e('s_nop 0')
            a.e(f'{sa} s4, s4, s6')
            a.e(f'{sb} s5, s5, s7')
        a.e('s_sub_u32 s5, s4, s5')
        if m == 3: a.e('s_lshr_b32 s5, s5, 10')
        a.e('s_mov_b32 s4, 0')
        a.e('s_memrealtime s[12:13]')
        a.e('s_waitcnt lgkmcnt(0)')
    a.e('s_sub_u32 s4, s5, s4')
    a.e('s_min_u32 s4, s4, 10000')
    a.e(f's_mul_i32 s4, s4, {F}')
    a.e('L_dg:')
    a.e('s_memrealtime s[14:15]')
    a.e('s_waitcnt lgkmcnt(0)')
    a.e('s_sub_u32 s5, s14, s12')
    a.e('s_cmp_lt_u32 s5, s4')
    a.e('s_cbranch_scc1 L_dg')
    a.e('s_endpgm')

def build():
    a = Asm()
    hdr = open('cdna_kernels/' + NAME + '.s.ref').read().split('\n')
    cm = [l for l in hdr if l.startswith(';') and '@launch' not in l and 'Override launch' not in l and 'grid=ceil' not in l]
    out = '\n'.join(cm) + '\n'
    if opt('aslist') or opt('dg'):
        out += f'; @launch kernel={KNAME} grid=(256,1,1) block=(256,1,1) lds=163840\n'
        if opt('dg'): out += '; @launch kernel=dg_kernel grid=(1,1,1) block=(64,1,1) lds=0\n'
    else:
        out += '; @launch grid=(256,1,1) block=(256,1,1) lds=163840\n'
    a.raw('.amdgcn_target "amdgcn-amd-amdhsa--gfx950"')
    a.raw('.text')
    gen(a)
    if opt('dg'): gen_dg(a)
    body = a.text()
    errs = check_hazards(body)
    errs += check_waits(body, KNAME, loop_iters=2, take_fwd=('L_nonce_ok', 'L_nonce_skip', 'L_clean_skip', 'L_y2skip', 'L_y2nw', 'L_hok') + tuple(f'L_sig{i}' for i in range(20)) + tuple(f'L_poll{i}x' for i in range(20)))
    errs += check_waits(body, KNAME, loop_iters=2, take_fwd=('L_nonce_ok',) + (() if opt('solo', 1) else tuple(f'L_poll{i}x' for i in range(20))))
    for e in errs[:8]: print(e, file=sys.stderr)
    na = 256
    out += body + f'''.section .rodata,"a"
.p2align 6
.amdhsa_kernel {KNAME}
  .amdhsa_next_free_vgpr {256+na}
  .amdhsa_next_free_sgpr 102
  .amdhsa_accum_offset 256
  .amdhsa_group_segment_fixed_size 0
  .amdhsa_kernarg_size 104
  .amdhsa_user_sgpr_count 2
  .amdhsa_user_sgpr_kernarg_segment_ptr 1
  .amdhsa_system_sgpr_workgroup_id_x 1
  .amdhsa_float_denorm_mode_32 3
.end_amdhsa_kernel
'''
    if opt('dg'):
        out += '''.p2align 6
.amdhsa_kernel dg_kernel
  .amdhsa_next_free_vgpr 48
  .amdhsa_next_free_sgpr 32
  .amdhsa_accum_offset 48
  .amdhsa_group_segment_fixed_size 0
  .amdhsa_kernarg_size 104
  .amdhsa_user_sgpr_count 2
  .amdhsa_user_sgpr_kernarg_segment_ptr 1
  .amdhsa_system_sgpr_workgroup_id_x 1
.end_amdhsa_kernel
'''
    return out, errs

if __name__ == '__main__':
    outp = sys.argv[1]
    for kv in sys.argv[2:]:
        k, v = kv.split('=')
        OPT[k] = int(v)
    if opt('hnub'): WS_HNF = WS_UB
    t, errs = build()
    open(outp, 'w').write(t)
    print('written', outp, len(t), 'bytes;', len(errs), 'checker errors')
```

```python
import sys, os
from asmlib import *

NAME = 'sequential_preLN__ssm_conv_h3__glu_gated_swiglu__prompt'
KNAME = NAME + '_kernel'
MB = 1 << 20
WS0 = int(os.environ.get('WS0', '0')) * MB
WS_UB, WS_Y2, WS_H, WS_HNF, WS_HF, WS_XP, WS_FLG = [WS0 + x * MB for x in (0, 4, 8, 12, 16, 32, 40)]
STAMP_BASE = 64 * MB
OPT = {}
def opt(k, d=0): return OPT.get(k, d)

P_Q, P_K, P_V, P_SH, P_SSMK, P_D, P_X, P_W1, P_W3, P_W2, P_OUT, P_DBG, P_WS = [4 + 2 * i for i in range(13)]
S_W, S_NONCE, S_MASK = 30, 31, 90
S_FLG = 92
F0, F1, F2, F3, F4 = 0, 32768, 65536, 98304, 131072
FLG_SIZE = 262144
LDS_KA = 98304
KA_REG = 13056
NSTAMP = 20
AST = 128

def srd(a, d, p, size, add=0, addreg=None):
    if add or addreg is not None:
        if add:
            a.e(f's_add_u32 s{d}, s{p}, {add:#x}')
            a.e(f's_addc_u32 s{d+1}, s{p+1}, 0')
            if addreg is not None:
                a.e(f's_add_u32 s{d}, s{d}, s{addreg}')
                a.e(f's_addc_u32 s{d+1}, s{d+1}, 0')
        else:
            a.e(f's_add_u32 s{d}, s{p}, s{addreg}')
            a.e(f's_addc_u32 s{d+1}, s{p+1}, 0')
    else:
        a.e(f's_mov_b32 s{d}, s{p}')
        a.e(f's_mov_b32 s{d+1}, s{p+1}')
    if size is not None:
        a.e(f's_mov_b32 s{d+2}, {size:#x}')
    a.e(f's_mov_b32 s{d+3}, 0x20000')

def stamp(a, i):
    if not opt('stamp'): return
    a.e('s_memrealtime s[60:61]')
    if i == 0: a.e('s_memtime s[62:63]')
    cy = {11: 20, 12: 21, 14: 22, 15: 23, 4: 24, 5: 25}.get(i)
    if cy: a.e('s_memtime s[66:67]')
    a.e('s_waitcnt lgkmcnt(0)')
    a.e(f'v_writelane_b32 v1, s60, {i}')
    if cy: a.e(f'v_writelane_b32 v1, s66, {cy}')
    if LIN[0]: LIN[0].lg = []

def stamp_out(a, n):
    if not opt('stamp'): return
    a.e('s_waitcnt vmcnt(0)')
    stamp(a, n - 1)
    a.e('s_memtime s[64:65]')
    a.e('s_waitcnt lgkmcnt(0)')
    srd(a, 32, P_WS, 1 * MB, STAMP_BASE)
    a.e('s_lshl_b32 s84, s2, 2')
    a.e(f's_add_u32 s84, s84, s{S_W}')
    a.e('s_lshl_b32 s84, s84, 7')
    a.e('s_sub_u32 s64, s64, s62')
    a.e('v_writelane_b32 v1, s64, 31')
    a.e('v_mbcnt_lo_u32_b32 v2, -1, 0')
    a.e('v_lshlrev_b32 v2, 2, v2')
    a.e('s_mov_b64 exec, 0xffffffff')
    a.e('buffer_store_dword v1, v2, s[32:35], s84 offen')

LIN = [None]
class Lin:
    def __init__(s, a): s.a = a; s.vm = []; s.lg = []; LIN[0] = s
    def e(s, t): s.a.e(t)
    def v(s, tag, t): s.a.e(t); s.vm.append(tag)
    def l(s, tag, t): s.a.e(t); s.lg.append(tag)
    def _n(s, q, tags, cap):
        idx = [i for i, x in enumerate(q) if x in tags]
        if not idx: return None
        n = len(q) - max(idx) - 1
        return min(n, cap)
    def wait(s, vm=(), lg=(), vm0=False, lg0=False):
        nv = 0 if vm0 else s._n(s.vm, vm, 63)
        nl = 0 if lg0 else s._n(s.lg, lg, 15)
        t = ''
        if nv is not None:
            t += f' vmcnt({nv})'; s.vm = s.vm[len(s.vm) - nv:] if nv else []
        if nl is not None:
            t += f' lgkmcnt({nl})'; s.lg = s.lg[len(s.lg) - nl:] if nl else []
        if t: s.a.e('s_waitcnt' + t)

def unpack(a, dlo, dhi, src):
    a.e(f'v_lshlrev_b32 v{dlo}, 16, v{src}')
    a.e(f'v_and_b32 v{dhi}, s{S_MASK}, v{src}')

def hfl():
    return [' sc1', ' sc0 sc1', ' sc1 nt', ' sc0 sc1 nt', ''][opt('hfl')]

def code_pf(a, lab_from, lab_to, vt, emit=None, n=1):
    _uid[0] += 1
    L = f'L_pc{_uid[0]}'
    a.e('s_getpc_b64 s[78:79]')
    a.e(f'{L}:')
    a.e(f's_lshl_b32 s77, s{S_W}, 13')
    a.e(f's_add_u32 s77, s77, {lab_from}-{L}')
    for i in range(n):
        if i: a.e('s_add_u32 s77, s77, 32768')
        a.e(f'v_lshl_add_u32 v{vt}, v2, 7, s77')
        a.e(f'v_min_u32 v{vt}, {lab_to}-{L}, v{vt}')
        t = f'global_load_dword v{vt+1+i}, v{vt}, s[78:79]'
        if emit: emit(t)
        else: a.e(t)

def hf_base(a, d, mb, q, t):
    if not opt('reuse', 0):
        a.e(f's_lshl_b32 s{d}, s{mb}, 2')
        a.e(f's_add_u32 s{d}, s{d}, s{q}')
        a.e(f's_mul_i32 s{d}, s{d}, 458752')
        a.e(f's_add_u32 s{d}, s{d}, {WS_HF:#x}')
        return
    a.e(f's_lshl_b32 s{d}, s{mb}, 1')
    a.e(f's_add_u32 s{d}, s{d}, s{q}')
    a.e(f's_mul_i32 s{d}, s{d}, 458752')
    a.e(f's_add_u32 s{d}, s{d}, {WS_HF:#x}')
    a.e(f's_lshl_b32 s{t}, s{mb}, 19')
    a.e(f's_cmp_eq_u32 s{q}, 1')
    a.e(f's_cselect_b32 s{d}, s{t}, s{d}')
    a.e(f's_add_u32 s{t}, s{t}, {WS_Y2 - WS_UB:#x}')
    a.e(f's_cmp_eq_u32 s{q}, 0')
    a.e(f's_cselect_b32 s{d}, s{t}, s{d}')

def zero_acc(a, base, n, z):
    if not opt('mz', 1):
        for r in range(n): a.e(f'v_mov_b32 v{base+r}, 0')
        return
    for r in range(4): a.e(f'v_mov_b32 v{z+r}, 0')
    a.e('s_nop 1')
    for r in range(0, n, 16):
        a.e(f'v_mfma_f32_32x32x16_bf16 v[{base+r}:{base+r+15}], v[{z}:{z+3}], v[{z}:{z+3}], 0')

_uid = [0]
def signal(a, soff, vt, waitfn=None, wb=False):
    _uid[0] += 1
    L = f'L_sig{_uid[0]}'
    a.e(f'v_mov_b32 v{vt}, 0')
    a.e(f'v_mov_b32 v{vt+1}, s{S_NONCE}')
    a.e(f's_cmp_eq_u32 s{S_W}, 0')
    if waitfn: waitfn()
    else: a.e('s_waitcnt vmcnt(0)')
    a.e('s_barrier')
    a.e(f's_cbranch_scc0 {L}')
    if wb:
        a.e('buffer_wbl2 sc1')
        a.e('s_waitcnt vmcnt(0)')
    a.e('s_mov_b64 exec, 1')
    a.e(f'buffer_store_dword v{vt+1}, v{vt}, s[{S_FLG}:{S_FLG+3}], s{soff} offen sc1')
    a.e('s_mov_b64 exec, -1')
    a.e(f'{L}:')

def fsh():
    return opt('fs', 32).bit_length() - 1
def f1sh():
    return opt('f1s', 32).bit_length() - 1

def wait_flags(a, soff, voff, vd, n=64, solo=None):
    _uid[0] += 1
    L = f'L_poll{_uid[0]}'
    if solo is None: solo = opt('solo', 1)
    if solo:
        a.e(f's_cmp_lg_u32 s{S_W}, {opt("pw", 0)}')
        a.e(f's_cbranch_scc1 {L}x')
    a.e(f'{L}:')
    if n == 256:
        if f1sh() == 2:
            a.e(f'buffer_load_dwordx4 v[{vd}:{vd+3}], v{voff}, s[{S_FLG}:{S_FLG+3}], s{soff} offen sc1')
        else:
            for i in range(4):
                a.e(f's_add_u32 s89, s{soff}, {i*(64<<f1sh())}')
                a.e(f'buffer_load_dword v{vd+i}, v{voff}, s[{S_FLG}:{S_FLG+3}], s89 offen sc1')
        a.e('s_waitcnt vmcnt(0)')
        a.e(f'v_xor_b32 v{vd}, s{S_NONCE}, v{vd}')
        a.e(f'v_xor_b32 v{vd+1}, s{S_NONCE}, v{vd+1}')
        a.e(f'v_xor_b32 v{vd+2}, s{S_NONCE}, v{vd+2}')
        a.e(f'v_xor_b32 v{vd+3}, s{S_NONCE}, v{vd+3}')
        a.e(f'v_or3_b32 v{vd}, v{vd}, v{vd+1}, v{vd+2}')
        a.e(f'v_or_b32 v{vd}, v{vd}, v{vd+3}')
        a.e(f'v_cmp_ne_u32 vcc, 0, v{vd}')
    else:
        a.e(f'buffer_load_dword v{vd}, v{voff}, s[{S_FLG}:{S_FLG+3}], s{soff} offen sc1')
        a.e('s_waitcnt vmcnt(0)')
        a.e(f'v_cmp_ne_u32 vcc, s{S_NONCE}, v{vd}')
    a.e('s_add_u32 s3, s3, 1')
    a.e(f's_cmp_gt_u32 s3, {opt("spin", 200000)}')
    a.e(f's_cbranch_scc1 {L}x')
    a.e(f's_cbranch_vccz {L}x')
    if opt('sleep'): a.e(f's_sleep {opt("sleep")}')
    a.e(f's_branch {L}')
    a.e(f'{L}x:')
    if solo: a.e('s_barrier')

def wave_sum2(a, va, vb, sa, sb):
    for mod in ('row_shr:1 row_mask:0xf bank_mask:0xf bound_ctrl:0', 'row_shr:2 row_mask:0xf bank_mask:0xf bound_ctrl:0',
                'row_shr:4 row_mask:0xf bank_mask:0xf bound_ctrl:0', 'row_shr:8 row_mask:0xf bank_mask:0xf bound_ctrl:0',
                'row_bcast:15 row_mask:0xa bank_mask:0xf', 'row_bcast:31 row_mask:0xc bank_mask:0xf'):
        a.e('s_nop 0')
        a.e(f'v_add_f32_dpp v{va}, v{va}, v{va} {mod}')
        a.e(f'v_add_f32_dpp v{vb}, v{vb}, v{vb} {mod}')
    a.e(f'v_readlane_b32 s{sa}, v{va}, 63')
    a.e(f'v_readlane_b32 s{sb}, v{vb}, 63')

def ln2(a, X, T, M, R, C, XM):
    def both(f):
        for r in range(2): f(r)
    for q in range(4):
        both(lambda r: a.e(f'v_pk_add_f32 v[{T[r]+2*q}:{T[r]+2*q+1}], v[{X[r]+4*q}:{X[r]+4*q+1}], v[{X[r]+4*q+2}:{X[r]+4*q+3}]'))
    both(lambda r: a.e(f'v_pk_add_f32 v[{T[r]}:{T[r]+1}], v[{T[r]}:{T[r]+1}], v[{T[r]+2}:{T[r]+3}]'))
    both(lambda r: a.e(f'v_pk_add_f32 v[{T[r]+4}:{T[r]+5}], v[{T[r]+4}:{T[r]+5}], v[{T[r]+6}:{T[r]+7}]'))
    both(lambda r: a.e(f'v_pk_add_f32 v[{T[r]}:{T[r]+1}], v[{T[r]}:{T[r]+1}], v[{T[r]+4}:{T[r]+5}]'))
    both(lambda r: a.e(f'v_add_f32 v{T[r]}, v{T[r]}, v{T[r]+1}'))
    wave_sum2(a, T[0], T[1], 56, 57)
    a.e('s_nop 0')
    both(lambda r: a.e(f'v_mul_f32 v{M[r]}, s{56+r}, v{C}'))
    both(lambda r: a.e(f'v_mov_b32 v{M[r]+1}, v{M[r]}'))
    for q in range(8):
        both(lambda r: a.e(f'v_pk_add_f32 v[{T[r]+2*q}:{T[r]+2*q+1}], v[{X[r]+2*q}:{X[r]+2*q+1}], v[{M[r]}:{M[r]+1}] neg_lo:[0,1] neg_hi:[0,1]'))
    both(lambda r: a.e(f'v_pk_mul_f32 v[{R[r]}:{R[r]+1}], v[{T[r]}:{T[r]+1}], v[{T[r]}:{T[r]+1}]'))
    for q in range(1, 8):
        both(lambda r: a.e(f'v_pk_fma_f32 v[{R[r]}:{R[r]+1}], v[{T[r]+2*q}:{T[r]+2*q+1}], v[{T[r]+2*q}:{T[r]+2*q+1}], v[{R[r]}:{R[r]+1}]'))
    both(lambda r: a.e(f'v_add_f32 v{R[r]}, v{R[r]}, v{R[r]+1}'))
    def rbf(v):
        a.e(f'v_cvt_pk_bf16_f32 v{v}, v{v}, v{v}')
        a.e(f'v_and_b32 v{v}, s{S_MASK}, v{v}')
    both(lambda r: rbf(M[r]))
    wave_sum2(a, R[0], R[1], 58, 59)
    both(lambda r: a.e(f'v_mov_b32 v{M[r]+1}, v{M[r]}'))
    both(lambda r: a.e(f'v_mul_f32 v{R[r]}, s{58+r}, v{C}'))
    both(lambda r: rbf(R[r]))
    both(lambda r: a.e(f'v_add_f32 v{R[r]}, 0x3727c5ac, v{R[r]}'))
    both(lambda r: rbf(R[r]))
    both(lambda r: a.e(f'v_sqrt_f32 v{R[r]}, v{R[r]}'))
    for q in range(2):
        both(lambda r: a.e(f'v_pk_add_f32 v[{XM[r]+2*q}:{XM[r]+2*q+1}], v[{X[r]+2*q}:{X[r]+2*q+1}], v[{M[r]}:{M[r]+1}] neg_lo:[0,1] neg_hi:[0,1]'))
    both(lambda r: rbf(R[r]))
    both(lambda r: a.e(f'v_rcp_f32 v{R[r]}, v{R[r]}'))
    for q in range(2, 8):
        both(lambda r: a.e(f'v_pk_add_f32 v[{XM[r]+2*q}:{XM[r]+2*q+1}], v[{X[r]+2*q}:{X[r]+2*q+1}], v[{M[r]}:{M[r]+1}] neg_lo:[0,1] neg_hi:[0,1]'))
    both(lambda r: a.e(f'v_mov_b32 v{R[r]+1}, v{R[r]}'))
    for q in range(8):
        both(lambda r: a.e(f'v_pk_mul_f32 v[{T[r]+2*q}:{T[r]+2*q+1}], v[{XM[r]+2*q}:{XM[r]+2*q+1}], v[{R[r]}:{R[r]+1}]'))

class Sched:
    def __init__(self): self.ev = []; self.marks = {}
    def mark(self, k): self.marks[k] = len(self.ev)
    def add(self, L): self.ev += L
    def younger(self, tag, at):
        last = max(i for i, e in enumerate(self.ev) if e[:2] == tag)
        assert last < self.marks[at], (tag, at)
        return self.marks[at] - last - 1

def gen(a):
    a.raw(f'.globl {KNAME}')
    a.raw('.p2align 8')
    a.raw(f'.type {KNAME},@function')
    a.raw(f'{KNAME}:')
    a.e('s_cmp_ge_u32 s2, 256')
    a.e('s_cbranch_scc1 L_end')
    a.e('s_load_dwordx8 s[4:11], s[0:1], 0')
    a.e('s_load_dwordx8 s[20:27], s[0:1], 64')
    a.e('s_load_dwordx2 s[28:29], s[0:1], 96')
    a.e('s_load_dwordx8 s[12:19], s[0:1], 32')
    a.e('s_memrealtime s[56:57]')
    a.e('v_lshrrev_b32 v1, 6, v0')
    a.e('v_and_b32 v2, 63, v0')
    a.e(f'v_readfirstlane_b32 s{S_W}, v1')
    a.e(f's_mov_b32 s{S_MASK}, 0xffff0000')
    a.e('s_mov_b32 s3, 0')
    a.e('s_bfe_u32 s82, s2, 0x30003')
    a.e('s_and_b32 s83, s2, 7')
    a.e('s_lshr_b32 s84, s2, 6')
    a.e('s_lshl_b32 s84, s84, 3')
    a.e('s_or_b32 s83, s83, s84')
    a.e('v_and_b32 v9, 7, v0')
    a.e('v_bfe_u32 v10, v0, 4, 1')
    a.e('v_lshl_add_u32 v1, v9, 1, v10')
    a.e('v_lshrrev_b32 v8, 5, v0')
    a.e('v_bfe_u32 v11, v0, 3, 1')
    a.e('v_lshl_add_u32 v8, v8, 1, v11')
    a.e('s_lshl_b32 s85, s83, 17')
    a.e('s_lshl_b32 s86, s82, 8')
    a.e('s_add_u32 s85, s85, s86')
    a.e('v_lshlrev_b32 v3, 13, v1')
    a.e('v_lshl_add_u32 v3, v8, 4, v3')
    a.e('v_add_u32 v3, s85, v3')
    a.e('v_add_u32 v4, 0xffffe800, v3')
    a.e('v_add_u32 v5, 0xfffff800, v3')
    a.e('v_add_u32 v6, 0x1000, v3')
    a.e('s_lshl_b32 s86, s82, 10')
    a.e('v_lshlrev_b32 v7, 6, v8')
    a.e('v_add_u32 v7, s86, v7')
    a.e('s_lshl_b32 s87, s82, 5')
    a.e('s_add_u32 s87, s87, s83')
    a.e('s_lshl_b32 s88, s87, 14')
    a.e('s_add_u32 s88, s88, 112')
    a.e('v_lshlrev_b32 v160, 10, v8')
    a.e('v_lshl_add_u32 v160, v10, 9, v160')
    a.e('v_lshlrev_b32 v161, 4, v9')
    a.e('v_sub_u32 v160, v160, v161')
    a.e('v_add_u32 v160, s88, v160')
    a.e(f's_lshl_b32 s87, s87, {fsh()}')
    a.e('v_mov_b32 v162, 0')
    a.e('s_waitcnt lgkmcnt(0)')
    stamp(a, 0)
    if opt('stamp') and not opt('g2st'): a.e('v_writelane_b32 v1, s56, 30')
    srd(a, 32, P_K, 4 * MB)
    srd(a, 36, P_V, 4 * MB)
    srd(a, 40, P_SH, 8192)
    KR, VR_, WR, WU, KU, AC0 = 8, 36, 52, 68, 100, 164
    for j in range(4):
        a.e(f'buffer_load_dwordx4 v[{WR+4*j}:{WR+4*j+3}], v7, s[40:43], 0 offen offset:{16*j}')
    rows = [(4, 0), (4, 2048), (5, 0), (3, 0), (3, 2048), (6, 0), (6, 2048)]
    for r, (vr, off) in enumerate(rows):
        a.e(f'buffer_load_dwordx4 v[{KR+4*r}:{KR+4*r+3}], v{vr}, s[32:35], 0 offen offset:{off}')
    for r, (vr, off) in enumerate(rows[3:]):
        a.e(f'buffer_load_dwordx4 v[{VR_+4*r}:{VR_+4*r+3}], v{vr}, s[36:39], 0 offen offset:{off}')
    ncp = 0
    if opt('cpf', 0):
        a.e('s_getpc_b64 s[58:59]')
        a.e('L_pc:')
        a.e('v_lshlrev_b32 v163, 7, v0')
        a.e('v_min_u32 v163, L_end-L_pc, v163')
        a.e('global_load_dword v161, v163, s[58:59]')
        ncp = 1
    srd(a, 48, P_WS, 4 * MB, WS_UB)
    if opt('pt', 0) & 1:
        a.e('v_lshlrev_b32 v163, 6, v0')
        a.e('s_sub_u32 s58, s88, 120')
        a.e('buffer_load_dword v161, v163, s[48:51], s58 offen')
        ncp += 1
    KD, KX, XP = 200, 216, 224
    KP, XPOS = opt('kp', 1), opt('xp', 2)
    def k_loads():
        a.e('s_and_b32 s74, s2, 7')
        a.e('s_lshl_b32 s74, s74, 7')
        a.e('s_lshr_b32 s75, s2, 3')
        a.e('s_lshl_b32 s75, s75, 2')
        a.e('s_add_u32 s74, s74, s75')
        a.e(f's_add_u32 s74, s74, s{S_W}')
        a.e('s_lshl_b32 s74, s74, 12')
        srd(a, 68, P_SSMK, 4096, 0, 74)
        a.e('v_lshlrev_b32 v220, 4, v2')
        for j in range(4):
            a.e(f'buffer_load_dwordx4 v[{KD+4*j}:{KD+4*j+3}], v220, s[68:71], 0 offen offset:{1024*j}')
            a.e(f'buffer_load_dword v{KX+j}, v220, s[68:71], 0 offen offset:{1024*j+16}')
    def x_loads():
        srd(a, 36, P_Q, 4 * MB)
        for r in range(2):
            for hh in range(2):
                a.e(f'buffer_load_dwordx4 v[{XP+8*r+4*hh}:{XP+8*r+4*hh+3}], v4, s[36:39], s96 offen offset:{2048*r+1024*hh}')
    if KP == 0:
        k_loads(); ncp += 8
    if opt('tlb'):
        a.e(f's_cmp_eq_u32 s{S_W}, 3')
        a.e(f's_cselect_b32 s58, {42 * MB:#x}, 0')
        srd(a, 52, P_WS, None)
        a.e('s_mov_b32 s54, s58')
        a.e('v_lshlrev_b32 v163, 21, v2')
        a.e(f'v_add_u32 v163, {opt("tlbo", 0x1f0000):#x}, v163')
        a.e('buffer_load_dword v161, v163, s[52:55], 0 offen')
        ncp += 1
        if opt('tlb') > 1:
            a.e(f's_min_u32 s58, s58, {4 * MB:#x}')
            for P_ in (P_OUT, P_SSMK, P_Q):
                srd(a, 52, P_, None)
                a.e('s_mov_b32 s54, s58')
                a.e('buffer_load_dword v161, v163, s[52:55], 0 offen')
                ncp += 1
    srd(a, 44, P_DBG, 256)
    a.e('s_or_b32 s56, s56, 1')
    a.e(f's_or_b32 s57, s2, s{S_W}')
    a.e('s_cmp_lg_u32 s57, 0')
    a.e('s_cbranch_scc1 L_nonce_skip')
    a.e('v_mov_b32 v163, s56')
    a.e('s_mov_b64 exec, 1')
    a.e('buffer_store_dword v163, v162, s[44:47], 0 offen sc1')
    a.e('s_mov_b64 exec, -1')
    a.e('s_waitcnt vmcnt(0)')
    a.e('L_nonce_skip:')
    srd(a, S_FLG, P_WS, FLG_SIZE, WS_FLG)
    a.e(f's_waitcnt vmcnt({11+ncp})')
    for e in range(8):
        unpack(a, WU + 0 * 8 + e, WU + 1 * 8 + e, WR + 2 * e)
        unpack(a, WU + 2 * 8 + e, WU + 3 * 8 + e, WR + 2 * e + 1)
    for r in range(7):
        a.e(f's_waitcnt vmcnt({10-r+ncp})')
        for q in range(4):
            unpack(a, KU + 8 * r + 2 * q, KU + 8 * r + 2 * q + 1, KR + 4 * r + q)
        if r >= 3:
            i = r - 3
            for j in range(4):
                for q in range(4):
                    d = AC0 + 8 * i + 2 * q
                    k = KU + 8 * (i + 3 - j) + 2 * q
                    w = WU + 8 * j + 2 * q
                    if j == 0:
                        a.e(f'v_pk_mul_f32 v[{d}:{d+1}], v[{k}:{k+1}], v[{w}:{w+1}]')
                    else:
                        a.e(f'v_pk_fma_f32 v[{d}:{d+1}], v[{k}:{k+1}], v[{w}:{w+1}], v[{d}:{d+1}]')
    VU = 8
    for i in range(4):
        a.e(f's_waitcnt vmcnt({3-i+ncp})')
        if i == 3:
            a.e('buffer_load_dword v163, v162, s[44:47], 0 offen sc1')
        for q in range(4):
            unpack(a, VU + 2 * q, VU + 2 * q + 1, VR_ + 4 * i + q)
        for q in range(4):
            d = AC0 + 8 * i + 2 * q
            a.e(f'v_pk_mul_f32 v[{d}:{d+1}], v[{d}:{d+1}], v[{VU+2*q}:{VU+2*q+1}]')
    O = 52
    for e in range(4):
        q = O + 4 * e
        a.e(f'v_cvt_pk_bf16_f32 v{q}, v{AC0+28+e}, v{AC0+20+e}')
        a.e(f'v_cvt_pk_bf16_f32 v{q+1}, v{AC0+12+e}, v{AC0+4+e}')
        a.e(f'v_cvt_pk_bf16_f32 v{q+2}, v{AC0+24+e}, v{AC0+16+e}')
        a.e(f'v_cvt_pk_bf16_f32 v{q+3}, v{AC0+8+e}, v{AC0+e}')
    for e in range(4):
        q = O + 4 * e
        if e == 3: a.e('s_nop 0')
        a.e(f'v_permlane16_swap_b32 v{q+2}, v{q}')
        a.e(f'v_permlane16_swap_b32 v{q+3}, v{q+1}')
        a.e(f'buffer_store_dwordx4 v[{q}:{q+3}], v160, s[48:51], 0 offen offset:{128*e} sc1')
    stamp(a, 1)
    a.e('s_and_b32 s82, s2, 7')
    a.e('s_lshr_b32 s83, s2, 3')
    a.e('s_lshl_b32 s84, s83, 2')
    a.e(f's_add_u32 s84, s84, s{S_W}')
    a.e('s_lshl_b32 s85, s82, 7')
    a.e('s_add_u32 s85, s85, s84')
    a.e('s_lshl_b32 s86, s82, 5')
    a.e('s_add_u32 s86, s86, s83')
    a.e(f's_mul_i32 s88, s{S_W}, {KA_REG}')
    a.e(f's_add_u32 s88, s88, {LDS_KA}')
    a.e('s_lshr_b32 s57, s85, 1')
    a.e('s_lshl_b32 s57, s57, 2')
    a.e(f's_load_dword s89, s[{P_D}:{P_D+1}], s57')
    a.e('v_lshlrev_b32 v4, 4, v2')
    ny = 0
    if KP == 1:
        k_loads(); ny += 8
    a.e('s_and_b32 s80, s82, 1')
    a.e('s_lshl_b32 s80, s80, 2')
    a.e('s_and_b32 s56, s83, 3')
    a.e('s_add_u32 s80, s80, s56')
    a.e('s_lshr_b32 s81, s82, 1')
    a.e('s_lshl_b32 s81, s81, 3')
    a.e('s_lshr_b32 s56, s83, 2')
    a.e('s_add_u32 s81, s81, s56')
    a.e('s_lshl_b32 s91, s80, 5')
    a.e('s_add_u32 s91, s91, s81')
    a.e('s_lshl_b32 s56, s91, 2')
    a.e(f's_add_u32 s56, s56, s{S_W}')
    a.e('s_lshl_b32 s96, s56, 12')
    nx_ = 0
    if XPOS == 1:
        x_loads(); ny += 4; nx_ = 4
    WP0 = opt('wp0', 0)
    if WP0:
        a.e(f's_mul_i32 s56, s2, {7168*WP0}')
        a.e(f's_mul_i32 s57, s{S_W}, {1792*WP0}')
        a.e('s_add_u32 s56, s56, s57')
        srd(a, 40, P_W1, 1792 * WP0, 0, 56)
        a.e('v_lshlrev_b32 v167, 7, v2')
        a.e('buffer_load_dword v168, v167, s[40:43], 0 offen')
        ny += 1; nx_ += 1
    nc0 = 0
    if opt('cpf0', 3):
        if opt('cpf0', 3) == 1:
            code_pf(a, 'L_nonce', 'L_end', 164, n=2); nc0 = 2
        else:
            code_pf(a, 'L_nonce', 'L_kbcode' if opt('cpf0', 3) == 2 else 'L_g1epi', 164); nc0 = 1
    a.e(f's_waitcnt vmcnt({4+ny+nc0})')
    a.e('L_nonce:')
    a.e(f'v_readfirstlane_b32 s{S_NONCE}, v163')
    a.e('s_nop 0')
    a.e(f's_cmp_lg_u32 s{S_NONCE}, 0')
    a.e('s_cbranch_scc1 L_nonce_ok')
    a.e('s_add_u32 s3, s3, 1')
    a.e(f's_cmp_gt_u32 s3, {opt("spin", 200000)}')
    a.e('s_cbranch_scc1 L_nonce_ok')
    a.e('buffer_load_dword v163, v162, s[44:47], 0 offen sc1')
    a.e('s_waitcnt vmcnt(0)')
    a.e('s_branch L_nonce')
    a.e('L_nonce_ok:')
    a.e(f'v_mov_b32 v163, s{S_NONCE}')
    a.e(f's_cmp_eq_u32 s{S_W}, 0')
    a.e(f's_waitcnt vmcnt({ny+nc0})')
    a.e('s_barrier')
    a.e('s_cbranch_scc0 L_sig0')
    a.e('s_mov_b64 exec, 1')
    a.e(f'buffer_store_dword v163, v162, s[{S_FLG}:{S_FLG+3}], s87 offen sc1')
    a.e('s_mov_b64 exec, -1')
    a.e('L_sig0:')
    stamp(a, 2)
    if KP == 2:
        k_loads(); nx_ = 0; nc0 = 0
    npt = 0
    if opt('pt', 0) & 2:
        srd(a, 40, P_WS, 12 * MB, WS_Y2)
        a.e('v_lshlrev_b32 v164, 14, v0')
        a.e('s_lshl_b32 s56, s86, 6')
        a.e('buffer_load_dword v161, v164, s[40:43], s56 offen')
        a.e('v_lshlrev_b32 v164, 6, v0')
        a.e('s_lshl_b32 s56, s91, 14')
        a.e(f's_add_u32 s56, s56, {4*MB}')
        a.e('buffer_load_dword v161, v164, s[40:43], s56 offen')
        a.e('v_lshrrev_b32 v164, 3, v0')
        a.e('v_lshlrev_b32 v164, 12, v164')
        a.e('v_bfe_u32 v165, v0, 1, 2')
        a.e('v_lshl_add_u32 v164, v165, 8, v164')
        a.e('s_lshr_b32 s56, s91, 3')
        a.e('s_lshl_b32 s56, s56, 17')
        a.e('s_and_b32 s57, s91, 7')
        a.e('s_lshr_b32 s58, s57, 1')
        a.e('s_lshl_b32 s58, s58, 10')
        a.e('s_add_u32 s56, s56, s58')
        a.e('s_and_b32 s57, s57, 1')
        a.e('s_lshl_b32 s57, s57, 7')
        a.e('s_add_u32 s56, s56, s57')
        a.e(f's_add_u32 s56, s56, {8*MB}')
        a.e('buffer_load_dword v161, v164, s[40:43], s56 offen')
        npt += 3
    a.e('v_lshrrev_b32 v3, 3, v2')
    a.e('v_sub_u32 v3, 7, v3')
    a.e('v_lshlrev_b32 v3, 14, v3')
    a.e('v_and_b32 v5, 7, v2')
    a.e('v_lshl_add_u32 v3, v5, 4, v3')
    a.e('s_lshl_b32 s56, s84, 7')
    a.e('v_add_u32 v3, s56, v3')
    a.e('v_and_b32 v5, 15, v2')
    a.e('v_lshrrev_b32 v6, 4, v2')
    a.e('v_mov_b32 v28, 0')
    a.e('v_mov_b32 v29, 0')
    a.e('v_lshlrev_b32 v7, 3, v2')
    a.e('v_add_u32 v7, s88, v7')
    a.e('ds_write_b64 v7, v[28:29] offset:4096')
    a.e('v_min_u32 v30, 7, v2')
    a.e('v_lshlrev_b32 v30, 2, v30')
    a.e('v_add_u32 v30, s88, v30')
    a.e('ds_write_b32 v30, v28 offset:4608')
    a.e('v_add_u32 v31, 1, v5')
    a.e('v_and_b32 v32, 1, v31')
    a.e('v_sub_u32 v31, v31, v32')
    a.e('v_lshl_add_u32 v31, v6, 3, v31')
    a.e('v_lshlrev_b32 v31, 1, v31')
    a.e('v_mul_u32_u24 v32, 4160, v32')
    a.e('v_add3_u32 v31, v31, v32, s88')
    VA, VB, ACC = 36, 40, 44
    for j in range(4):
        a.e(f'v_add_u32 v{VA+j}, {4608+1024*j}, v31')
    a.e('v_lshlrev_b32 v32, 5, v5')
    a.e('v_lshlrev_b32 v33, 4, v6')
    a.e('v_sub_u32 v33, v33, v32')
    a.e('v_add_u32 v33, s88, v33')
    a.e(f'v_add_u32 v{VB}, 480, v33')
    a.e('v_add_u32 v7, s88, v4')
    zero_acc(a, ACC, 32, 92)
    T = 76
    a.e(f's_waitcnt vmcnt({nx_+npt+nc0})')
    for j in range(4):
        d = KD + 4 * j
        if j == 0:
            a.e(f'v_readfirstlane_b32 s56, v{d}')
        a.e(f'ds_write_b128 v7, v[{d}:{d+3}] offset:{4608+32+1024*j}')
        for q in range(4):
            hi = d + q + 1 if q < 3 else KX + j
            a.e(f'v_alignbit_b32 v{T+4*j+q}, v{hi}, v{d+q}, 16')
        a.e(f'ds_write_b128 v7, v[{T+4*j}:{T+4*j+3}] offset:{4608+4160+32+1024*j}')
    a.e('s_lshl_b32 s56, s56, 16')
    a.e('v_cmp_le_u32 vcc, 7, v2')
    a.e('v_mov_b32 v32, s56')
    a.e('s_nop 0')
    a.e('v_cndmask_b32 v32, v28, v32, vcc')
    a.e(f'ds_write_b32 v30, v32 offset:{4608+4160}')
    FA = [96, 160]; FB = [128, 192]
    def rdA(r, buf):
        L = []
        for mq in range(8):
            o = 128 * (mq & 1) + 16 * r
            f = FA[buf] + 4 * mq
            L.append(f'ds_read2_b32 v[{f}:{f+1}], v{VA+(mq>>1)} offset0:{o} offset1:{o+1}')
            L.append(f'ds_read2_b32 v[{f+2}:{f+3}], v{VA+(mq>>1)} offset0:{o+2} offset1:{o+3}')
        return L
    def rdB(r, buf):
        return [f'ds_read_b128 v[{FB[buf]+4*d}:{FB[buf]+4*d+3}], v{VB} offset:{512*(7-d)+64*r}' for d in range(8)]
    a.e('s_waitcnt lgkmcnt(0)')
    a.e('s_bitcmp1_b32 s85, 0')
    a.e('s_cselect_b32 s56, 0, 16')
    a.e('s_lshl_b32 s89, s89, s56')
    a.e('s_and_b32 s89, s89, 0xffff0000')
    for l in rdA(0, 0): a.e(l)
    npf = 0; wpl = []
    if opt('wpf', 1):
        RS = opt('rs', 0)
        if RS:
            a.e('s_mul_i32 s56, s2, 28672')
            a.e(f's_and_b32 s57, s{S_W}, 1')
            a.e('s_mul_i32 s57, s57, 14336')
            a.e('s_add_u32 s56, s56, s57')
            a.e(f's_cmp_ge_u32 s{S_W}, 2')
            a.e('s_cselect_b32 s58, 14336, 0')
            a.e('v_lshlrev_b32 v41, 7, v2')
            a.e('v_add_u32 v43, 8192, v41')
            for n_, P_ in enumerate((P_W1, P_W3, P_W2)[:opt('wpn', 3)]):
                sd = (40, 32, 44)[n_]
                srd(a, sd, P_, None, 0, 56)
                a.e(f's_mov_b32 s{sd+2}, s58')
                for v_ in (41, 43):
                    wpl.append(lambda sd=sd, v_=v_: a.e(f'buffer_load_dword v42, v{v_}, s[{sd}:{sd+3}], 0 offen'))
        else:
            wfr = opt('la', 2) / 2
            a.e(f's_mul_i32 s56, s2, {int(7168*wfr)}')
            a.e(f's_mul_i32 s57, s{S_W}, {int(1792*wfr)}')
            a.e('s_add_u32 s56, s56, s57')
            a.e('v_lshlrev_b32 v41, 7, v2')
            for n_, P_ in enumerate((P_W1, P_W3, P_W2)[:opt('wpn', 2)]):
                sd = (40, 32, 44)[n_]
                if n_ == 0 and WP0:
                    if WP0 == 4: continue
                    a.e(f's_mul_i32 s58, s2, {7168*(4-WP0)}')
                    a.e(f's_mul_i32 s57, s{S_W}, {1792*(4-WP0)}')
                    a.e('s_add_u32 s58, s58, s57')
                    srd(a, sd, P_, 1792 * (4 - WP0), 1835008 * WP0, 58)
                else:
                    srd(a, sd, P_, int(1792 * wfr), 0, 56)
                wpl.append(lambda sd=sd: a.e(f'buffer_load_dword v42, v41, s[{sd}:{sd+3}], 0 offen'))
    w2e = []
    if opt('w2e', 2):
        a.e('s_and_b32 s56, s2, 127')
        a.e('s_mul_i32 s56, s56, 6144')
        a.e('s_lshr_b32 s57, s2, 7')
        a.e('s_mul_i32 s57, s57, 3670016')
        a.e('s_add_u32 s56, s56, s57')
        a.e(f's_mul_i32 s57, s{S_W}, 1536')
        a.e('s_add_u32 s56, s56, s57')
        srd(a, 44, P_W2, 1536, 0, 56)
        t_ = 'buffer_load_dword v42, v41, s[44:47], 0 offen'
        if opt('w2e', 2) == 1:
            a.e(t_); npf += 1
        else:
            w2e = [lambda: a.e(t_)]
    g1 = G1(a)
    g2 = G2(a)
    g2.front_setup()
    g1.setup_dma()
    assert npf == 0
    a.e('v_and_b32 v34, 31, v2')
    a.e(f'v_lshlrev_b32 v34, {fsh()}, v34')
    a.e(f's_lshl_b32 s56, s82, {5+fsh()}')
    wait_flags(a, 56, 34, 35)
    stamp(a, 3)
    a.e('s_lshl_b32 s56, s82, 19')
    UR = 8
    for i in range(4):
        a.e(f's_add_u32 s57, s56, {(24-8*i)*16384:#x}')
        a.e(f'buffer_load_dwordx4 v[{UR+4*i}:{UR+4*i+3}], v3, s[48:51], s57 offen sc1')
    if XPOS == 2:
        x_loads(); npf += 4
    for i in range(4):
        a.e(f's_waitcnt vmcnt({npf+3-i})')
        a.e(f'ds_write_b128 v7, v[{UR+4*i}:{UR+4*i+3}] offset:{1024*i}')
    a.e('s_waitcnt lgkmcnt(0)')
    for l in rdB(0, 0): a.e(l)
    stamp(a, 4)
    LK = Lin(a)
    g1e = [[(lambda l=l: a.e(l)) for l in grp] for grp in g1.early_dma()]
    def grp(fs): return lambda: [f() for f in fs]
    g1e = [grp(x) for x in g1e]
    fillr = {r: [] for r in range(8)}
    p01 = g2.fD([(0, 2), (1, 3)])
    nk01 = 0
    NF0 = opt('nf0', 4)
    if not RS and NF0 >= 2:
        fillr[6] += p01[:5]; fillr[7] += p01[5:]; nk01 = 8
    if XPOS == 3:
        srd(a, 36, P_Q, 4 * MB)
        for r_ in range(2):
            for hh in range(2):
                fillr[opt('xr', 1)].append(lambda r_=r_, hh=hh: a.e(f'buffer_load_dwordx4 v[{XP+8*r_+4*hh}:{XP+8*r_+4*hh+3}], v4, s[36:39], s96 offen offset:{2048*r_+1024*hh}'))
    fillr[opt('w2r', 0)] += w2e
    for n_, f_ in enumerate(wpl): fillr[opt('wpr', 1 if RS else 2) + n_ * opt('wps', 2)].append(f_)
    UE = 8
    for r in range(8):
        buf = r & 1
        if r < 7:
            A_, B_ = rdA(r + 1, buf ^ 1), rdB(r + 1, buf ^ 1)
            nxt = []
            for x in range(8): nxt += [B_[x], A_[2 * x], A_[2 * x + 1]]
        else:
            a.e('v_lshlrev_b32 v32, 5, v5')
            a.e('v_lshl_add_u32 v32, v6, 3, v32')
            a.e(f'v_sub_u32 v34, {4088-3584}, v32')
            a.e('v_add_u32 v34, s88, v34')
            a.e('v_add_u32 v35, s88, v32')
            nxt = [f'ds_read_b64 v[{UE+2*c}:{UE+2*c+1}], v34 offset:{512*(7-c)}' for c in range(8)]
        a.e('s_waitcnt lgkmcnt(0)')
        fl = list(fillr[r]); evr = 36 // max(1, len(fl))
        k = 0
        for mq in range(8):
            for d in range(8 - mq):
                c = mq + d
                fa = FA[buf] + 4 * mq; fb = FB[buf] + 4 * d
                a.e(f'v_mfma_f32_16x16x32_bf16 v[{ACC+4*c}:{ACC+4*c+3}], v[{fa}:{fa+3}], v[{fb}:{fb+3}], v[{ACC+4*c}:{ACC+4*c+3}]')
                if k < len(nxt):
                    a.e(nxt[k])
                if fl and k % evr == evr - 1: fl.pop(0)()
                k += 1
        assert not fl, (r, len(fl))
    a.e('s_waitcnt lgkmcnt(0)')
    stamp(a, 5)
    a.e('L_kbcode:')
    X = 96
    for c in range(8):
        unpack(a, X + 4 * c + 3, X + 4 * c + 2, UE + 2 * c)
        unpack(a, X + 4 * c + 1, X + 4 * c + 0, UE + 2 * c + 1)
    for c in range(8):
        for r in range(4):
            a.e(f'v_fma_f32 v{X+4*c+r}, v{X+4*c+r}, s89, v{ACC+4*c+r}')
        a.e(f'v_cvt_pk_bf16_f32 v{UE+2*c}, v{X+4*c}, v{X+4*c+1}')
        a.e(f'v_cvt_pk_bf16_f32 v{UE+2*c+1}, v{X+4*c+2}, v{X+4*c+3}')
        a.e(f'ds_write_b64 v35, v[{UE+2*c}:{UE+2*c+1}] offset:{4608+512*c}')
    a.flush_inject()
    LIN[0] = None
    a.e('v_lshlrev_b32 v32, 2, v0')
    a.e(f'v_add_u32 v32, {LDS_KA}, v32')
    YL_ = opt('yl', 1)
    a.e(f'v_lshrrev_b32 v33, {2+YL_}, v0')
    a.e(f'v_lshlrev_b32 v33, {14+YL_}, v33')
    a.e(f'v_and_b32 v34, {7 if YL_ else 3}, v0')
    a.e('v_lshl_add_u32 v33, v34, 4, v33')
    a.e(f's_lshl_b32 s56, s86, {6+YL_}')
    a.e('s_mov_b32 s57, 0x05040100')
    a.e('s_mov_b32 s58, 0x07060302')
    srd(a, 36, P_WS, 4 * MB, WS_Y2)
    a.e(f's_cmp_ge_u32 s{S_W}, 2')
    a.e('s_waitcnt lgkmcnt(0)')
    a.e('s_barrier')
    if RS: a.e('s_cbranch_scc1 L_y2skip')
    Y = 96; O = 128
    NP = 8 if RS else 4
    LY = Lin(a)
    def yrd(P):
        for ch in range(4):
            LY.l(P, f'ds_read_b32 v{Y+4*P+ch}, v32 offset:{ch*KA_REG+4608+4096//NP*P}')
    for P in range(4): yrd(P)
    for P in range(NP):
        LY.wait(lg=(P,))
        if P + 4 < NP: yrd(P + 4)
        y = Y + 4 * P; o = O + 4 * P
        a.e(f'v_perm_b32 v{o}, v{y+1}, v{y}, s57')
        a.e(f'v_perm_b32 v{o+1}, v{y+3}, v{y+2}, s57')
        a.e(f'v_perm_b32 v{o+2}, v{y+1}, v{y}, s58')
        a.e(f'v_perm_b32 v{o+3}, v{y+3}, v{y+2}, s58')
        a.e(f'buffer_store_dwordx4 v[{o}:{o+3}], v33, s[36:39], s56 offen sc1')
        if P < NP - 1:
            a.e(f's_add_u32 s56, s56, {256//NP*16384:#x}')
    LIN[0] = None
    if RS: a.e('L_y2skip:')
    stamp(a, 6)
    XU = [8, 24]; TT = [40, 56]; MM = [72, 74]; RR = [76, 78]; C = 80; YU = [100, 116]; XM = [140, 156]; SS = [172, 174]
    if XPOS >= 2: a.e(f's_waitcnt vmcnt({nk01 + 4 if XPOS == 3 else len(wpl) + (1 if opt("w2e", 2) else 0) + (0 if RS else nk01 + 4)})')
    F45 = opt('f45', 0)
    if F45: a.inject(g2.fD([(2, 0), (3, 1)]), 3)
    for r in range(2):
        for q in range(8):
            unpack(a, XU[r] + 2 * q, XU[r] + 2 * q + 1, XP + 8 * r + q)
    a.flush_inject()
    a.e(f'v_mov_b32 v{C}, 0x3a800000')
    a.e(f's_lshl_b32 s87, s2, {f1sh()}')
    a.e(f's_add_u32 s87, s87, {F1}')
    def w1():
        if RS:
            a.e(f's_bitcmp1_b32 s{S_W}, 1')
            a.e('s_cbranch_scc1 L_y2nw')
            a.e('s_waitcnt vmcnt(0)')
            a.e('L_y2nw:')
            a.e(f's_cmp_eq_u32 s{S_W}, 0')
        else:
            a.e(f's_waitcnt vmcnt({8 if F45 else 0})')
    signal(a, 87, 82, waitfn=w1)
    if RS:
        a.inject(g1e[:10] + p01 + g2.fD([(2, 0), (3, 1)]), 4)
    else:
        if NF0 >= 2: g2.fM([(0, 2), (1, 3)])
        a.inject(g1e[:10] + ([] if F45 or NF0 < 4 else g2.fD([(2, 0), (3, 1)])), 12 if F45 or NF0 < 4 else 6)
    ln2(a, XU, TT, MM, RR, C, XM)
    a.flush_inject()
    a.e('v_lshlrev_b32 v5, 7, v2')
    a.e(f'v_lshlrev_b32 v139, {7+YL_}, v2')
    a.e(f'v_add_u32 v6, {0x2000 << YL_:#x}, v139')
    if YL_:
        a.e('s_lshr_b32 s82, s91, 1')
        a.e('s_lshl_b32 s82, s82, 15')
        a.e('s_and_b32 s83, s91, 1')
        a.e('s_lshl_b32 s83, s83, 6')
        a.e('s_add_u32 s82, s82, s83')
    else:
        a.e('s_lshl_b32 s82, s91, 14')
    if opt('yd', 1):
        assert YL_
        a.e(f's_lshl_b32 s83, s{S_W}, 13')
        a.e('s_add_u32 s82, s82, s83')
        a.e('v_lshrrev_b32 v176, 4, v2')
        a.e('v_xor_b32 v176, v176, v2')
        a.e('v_and_b32 v176, 3, v176')
        a.e('v_lshlrev_b32 v176, 4, v176')
        a.e('v_lshrrev_b32 v177, 2, v2')
        a.e('v_lshl_add_u32 v176, v177, 7, v176')
        for i in range(1, 4):
            a.e(f'v_add_u32 v{176+i}, {1024*i}, v176')
        a.e(f's_lshl_b32 s83, s{S_W}, 12')
        a.e(f's_add_u32 m0, s83, {LDS_KA + 16384}')
        a.e('v_bfe_u32 v180, v2, 1, 2')
        a.e(f'v_xor_b32 v180, s{S_W}, v180')
        a.e('v_lshl_add_u32 v180, v180, 4, v5')
        a.e(f'v_add_u32 v180, {LDS_KA + 16384}, v180')
    else:
        a.e(f's_lshl_b32 s83, s{S_W}, 4')
        a.e('s_add_u32 s82, s82, s83')
    srd(a, 40, P_WS, 4 * MB, WS_H)
    srd(a, 44, P_WS, 4 * MB, WS_HNF)
    a.e('v_and_b32 v7, 7, v2')
    a.e(f's_lshl_b32 s83, s{S_W}, 1')
    a.e('v_xor_b32 v132, s83, v7')
    a.e('v_lshl_add_u32 v132, v132, 4, v5')
    a.e(f'v_add_u32 v132, {LDS_KA}, v132')
    a.e('v_xor_b32 v133, 16, v132')
    a.e('v_lshrrev_b32 v134, 3, v2')
    a.e('v_xor_b32 v135, v134, v7')
    a.e('v_lshlrev_b32 v135, 4, v135')
    a.e('v_lshl_add_u32 v135, v134, 7, v135')
    a.e(f's_lshl_b32 s83, s{S_W}, 12')
    a.e(f's_add_u32 s83, s83, {LDS_KA}')
    a.e('v_add_u32 v135, s83, v135')
    HC = opt('hc', 0)
    if HC:
        a.e('v_lshlrev_b32 v136, 4, v2')
        a.e('s_lshl_b32 s84, s91, 14')
        a.e(f's_lshl_b32 s85, s{S_W}, 12')
        a.e('s_add_u32 s84, s84, s85')
    else:
        a.e('v_lshrrev_b32 v136, 5, v2')
        a.e('v_lshlrev_b32 v136, 12, v136')
        a.e('v_bfe_u32 v137, v2, 3, 2')
        a.e('v_lshl_add_u32 v136, v137, 8, v136')
        a.e('v_lshl_add_u32 v136, v7, 4, v136')
        a.e('s_lshr_b32 s84, s91, 3')
        a.e('s_lshl_b32 s84, s84, 17')
        a.e('s_bfe_u32 s85, s91, 0x20001')
        a.e('s_lshl_b32 s85, s85, 10')
        a.e('s_add_u32 s84, s84, s85')
        a.e('s_and_b32 s85, s91, 1')
        a.e('s_lshl_b32 s85, s85, 7')
        a.e('s_add_u32 s84, s84, s85')
        a.e(f's_lshl_b32 s85, s{S_W}, 15')
        a.e('s_add_u32 s84, s84, s85')
    a.e(f's_mov_b32 s85, {F1}')
    a.e('s_waitcnt lgkmcnt(0)')
    stamp(a, 7)
    a.e(f'v_lshlrev_b32 v138, {4 if f1sh() == 2 else f1sh()}, v2')
    wait_flags(a, 85, 138, 128, n=256)
    stamp(a, 8)
    YL = 84
    YD = opt('yd', 1)
    if YD:
        for i in range(4):
            a.e(f'buffer_load_dwordx4 v{176+i}, s[36:39], s82 offen offset:{1024*i} sc1 lds')
    else:
        a.e(f'buffer_load_dwordx4 v[{YL}:{YL+3}], v139, s[36:39], s82 offen sc1')
        a.e(f'buffer_load_dwordx4 v[{YL+4}:{YL+7}], v139, s[36:39], s82 offen offset:{64 << YL_} sc1')
        a.e(f'buffer_load_dwordx4 v[{YL+8}:{YL+11}], v6, s[36:39], s82 offen sc1')
        a.e(f'buffer_load_dwordx4 v[{YL+12}:{YL+15}], v6, s[36:39], s82 offen offset:{64 << YL_} sc1')
    a.e('s_waitcnt vmcnt(4)')
    if NF0 == 4: g2.fM(([(0, 2), (1, 3)] if RS else []) + [(2, 0), (3, 1)])
    if YD:
        a.e('s_waitcnt vmcnt(0)')
        a.e('s_barrier')
        a.e(f'ds_read_b128 v[{YL}:{YL+3}], v180')
        a.e(f'ds_read_b128 v[{YL+4}:{YL+7}], v180 offset:64')
        a.e(f'ds_read_b128 v[{YL+8}:{YL+11}], v180 offset:8192')
        a.e(f'ds_read_b128 v[{YL+12}:{YL+15}], v180 offset:8256')
    for cgi in range(4):
        a.e(f's_waitcnt {"lgkm" if YD else "vm"}cnt({3-cgi})')
        for r in range(2):
            for e in range(2):
                u = YU[r] + 4 * cgi + 2 * e
                unpack(a, u, u + 1, YL + 4 * cgi + 2 * r + e)
        for r in range(2):
            for e in range(2):
                u = YU[r] + 4 * cgi + 2 * e; x = XM[r] + 4 * cgi + 2 * e; t = TT[r] + 4 * cgi + 2 * e
                a.e(f'v_pk_fma_f32 v[{x}:{x+1}], v[{t}:{t+1}], v[{u}:{u+1}], v[{x}:{x+1}]')
        for r in range(2):
            for e in range(2):
                x = XM[r] + 4 * cgi + 2 * e
                if cgi == 0 and e == 0:
                    a.e(f'v_pk_mul_f32 v[{RR[r]}:{RR[r]+1}], v[{x}:{x+1}], v[{x}:{x+1}]')
                else:
                    a.e(f'v_pk_fma_f32 v[{RR[r]}:{RR[r]+1}], v[{x}:{x+1}], v[{x}:{x+1}], v[{RR[r]}:{RR[r]+1}]')
            x = XM[r] + 4 * cgi
            if cgi == 0: a.e(f'v_pk_add_f32 v[{SS[r]}:{SS[r]+1}], v[{x}:{x+1}], v[{x+2}:{x+3}]')
            else:
                a.e(f'v_pk_add_f32 v[{SS[r]}:{SS[r]+1}], v[{x}:{x+1}], v[{SS[r]}:{SS[r]+1}]')
                a.e(f'v_pk_add_f32 v[{SS[r]}:{SS[r]+1}], v[{x+2}:{x+3}], v[{SS[r]}:{SS[r]+1}]')
    if opt('kbst'): stamp(a, 16)
    for r in range(2):
        a.e(f'v_add_f32 v{SS[r]}, v{SS[r]}, v{SS[r]+1}')
        a.e(f'v_add_f32 v{RR[r]}, v{RR[r]}, v{RR[r]+1}')
    fl_ = []
    for r in range(2):
        for q in range(8):
            u = YU[r] + 2 * q; x = XU[r] + 2 * q; t = TT[r] + 2 * q
            fl_.append(f'v_pk_fma_f32 v[{x}:{x+1}], v[{t}:{t+1}], v[{u}:{u+1}], v[{x}:{x+1}]')
    for r in range(2):
        for q in range(8):
            fl_.append(f'v_cvt_pk_bf16_f32 v{XP+8*r+q}, v{XU[r]+2*q}, v{XU[r]+2*q+1}')
    for mod in ('row_shr:1 row_mask:0xf bank_mask:0xf bound_ctrl:0', 'row_shr:2 row_mask:0xf bank_mask:0xf bound_ctrl:0',
                'row_shr:4 row_mask:0xf bank_mask:0xf bound_ctrl:0', 'row_shr:8 row_mask:0xf bank_mask:0xf bound_ctrl:0',
                'row_bcast:15 row_mask:0xa bank_mask:0xf', 'row_bcast:31 row_mask:0xc bank_mask:0xf'):
        for v in (SS[0], SS[1], RR[0], RR[1]):
            a.e(f'v_add_f32_dpp v{v}, v{v}, v{v} {mod}')
    for i, v in enumerate((SS[0], SS[1], RR[0], RR[1])):
        a.e(f'v_readlane_b32 s{56+i}, v{v}, 63')
    def both(f):
        for r in range(2): f(r)
        if fl_: a.e(fl_.pop(0))
        if fl_: a.e(fl_.pop(0))
    def rbf(v):
        a.e(f'v_cvt_pk_bf16_f32 v{v}, v{v}, v{v}')
        a.e(f'v_and_b32 v{v}, s{S_MASK}, v{v}')
    both(lambda r: a.e(f'v_mul_f32 v{SS[r]}, s{56+r}, v{C}'))
    both(lambda r: a.e(f'v_mul_f32 v{RR[r]}, s{58+r}, v{C}'))
    both(lambda r: a.e(f'v_fma_f32 v{RR[r]}, -v{SS[r]}, v{SS[r]}, v{RR[r]}'))
    both(lambda r: a.e(f'v_max_f32 v{RR[r]}, 0, v{RR[r]}'))
    both(lambda r: rbf(RR[r]))
    both(lambda r: a.e(f'v_add_f32 v{RR[r]}, 0x3727c5ac, v{RR[r]}'))
    both(lambda r: rbf(RR[r]))
    both(lambda r: a.e(f'v_sqrt_f32 v{RR[r]}, v{RR[r]}'))
    both(lambda r: a.e(f'v_add_f32 v{SS[r]}, v{SS[r]}, v{MM[r]}'))
    both(lambda r: rbf(RR[r]))
    both(lambda r: a.e(f'v_rcp_f32 v{RR[r]}, v{RR[r]}'))
    both(lambda r: rbf(SS[r]))
    if opt('hs', 0): both(lambda r: a.e(f'v_mul_f32 v{RR[r]}, 0x3fb8aa3b, v{RR[r]}'))
    both(lambda r: a.e(f'v_sub_f32 v{SS[r]}, v{MM[r]}, v{SS[r]}'))
    both(lambda r: a.e(f'v_mul_f32 v{SS[r]}, v{SS[r]}, v{RR[r]}'))
    nh = len(fl_)
    for q in range(8):
        for r in range(2):
            x = XM[r] + 2 * q
            a.e(f'v_pk_fma_f32 v[{TT[r]+2*q}:{TT[r]+2*q+1}], v[{x}:{x+1}], v[{RR[r]}:{RR[r]+1}], v[{SS[r]}:{SS[r]+1}] op_sel_hi:[1,0,0]')
    for r in range(2):
        for q in range(8):
            a.e(f'v_cvt_pk_bf16_f32 v{YL+8*r+q}, v{TT[r]+2*q}, v{TT[r]+2*q+1}')
        for hh in range(2):
            a.e(f'ds_write_b128 v{132+r}, v[{YL+8*r+4*hh}:{YL+8*r+4*hh+3}] offset:{8192*hh}')
    for t_ in fl_: a.e(t_)
    a.e('s_waitcnt lgkmcnt(0)')
    a.e('s_barrier')
    for i in range(4):
        a.e(f'ds_read_b128 v[{100+4*i}:{103+4*i}], v135 offset:{1024*i}')
    for i in range(4):
        a.e(f's_waitcnt lgkmcnt({3-i})')
        if HC:
            a.e(f'buffer_store_dwordx4 v[{100+4*i}:{103+4*i}], v136, s[44:47], s84 offen offset:{1024*i} sc1')
        else:
            a.e(f'buffer_store_dwordx4 v[{100+4*i}:{103+4*i}], v136, s[44:47], s84 offen sc1')
            if i < 3: a.e('s_add_u32 s84, s84, 8192')
    stamp(a, 9)
    a.e(f's_lshl_b32 s87, s91, {fsh()}')
    a.e(f's_add_u32 s87, s87, {F2}')
    g2.front_save()
    if opt('s2e', 0):
        assert not F45
        signal(a, 87, 4)
        g1.pre_setup([])
    else:
        g1.pre_setup(g2.fD([(4, 0), (5, 1)], dv=28) if F45 else [])
        signal(a, 87, 4, waitfn=lambda: a.e(f's_waitcnt vmcnt({8 if F45 else 0})'))
    g2.NF = 8 if F45 else NF0 + 2
    def mv45():
        if not F45: return
        a.e('v_add_u32 v4, s73, v7')
        a.e('v_xor_b32 v5, 32, v4')
        a.e('s_waitcnt vmcnt(8)')
        g2.fM([(4, 0), (5, 1)], base=4)
    g1.hook = mv45
    g1.main()
    g1.epilogue(g2)
    g2.main()
    a.e(f's_or_b32 s57, s2, s{S_W}')
    a.e('s_cmp_lg_u32 s57, 0')
    a.e('s_cbranch_scc1 L_clean_skip')
    srd(a, 32, P_DBG, 256)
    a.e('v_mov_b32 v20, 0')
    a.e('s_mov_b64 exec, 1')
    a.e('buffer_store_dword v20, v20, s[32:35], 0 offen sc1')
    a.e('s_mov_b64 exec, -1')
    a.e('L_clean_skip:')
    stamp_out(a, NSTAMP)
    a.e('L_end:')
    a.e('s_endpgm')

G1_STG = 32768
class G1:
    TM, NW, DPW, ND = 4, 4, 8, 4
    ACC, WF, TF, DV, VT, VR, VL = 32, 0, 28, 8, 16, 17, 18
    DVE = 240
    def __init__(s, a): s.a = a
    def setup_dma(s):
        a = s.a
        a.e('s_and_b32 s56, s81, 1')
        a.e('s_lshl_b32 s56, s56, 1')
        a.e('s_movk_i32 s57, 4682')
        a.e('s_movk_i32 s58, 7168')
        a.e('v_mov_b32 v76, 0x80000000')
        a.e('v_subrev_u32 v77, 8, v2')
        for src, dst in ((2, 78), (77, 79)):
            a.e(f'v_cmp_gt_u32 vcc, 56, v{src}')
            a.e(f'v_mul_u32_u24 v80, s57, v{src}')
            a.e('v_lshrrev_b32 v80, 16, v80')
            a.e('v_mul_u32_u24 v81, 14, v80')
            a.e(f'v_sub_u32 v81, v{src}, v81')
            a.e('v_add_u32 v81, s56, v81')
            a.e('v_subrev_u32 v82, 14, v81')
            a.e('v_min_u32 v81, v81, v82')
            a.e('v_mul_u32_u24 v80, s58, v80')
            a.e('v_lshl_add_u32 v80, v81, 4, v80')
            a.e(f'v_cndmask_b32 v{dst}, v76, v80, vcc')
        for i in range(8):
            pat = 79 if (i >> 1) & 1 else 78
            c = i * 4 * 7168 - 1024 * (i & 3)
            a.e(f'v_add_u32 v{s.DVE+i}, {c}, v{pat}' if c else f'v_mov_b32 v{s.DVE+i}, v{pat}')
        a.e(f's_and_b32 s56, s{S_W}, 1')
        a.e(f's_lshr_b32 s57, s{S_W}, 1')
        a.e(f's_mul_i32 s97, s56, {8*4*7168}')
        a.e('s_mov_b32 s100, 458752')
        a.e('s_lshl_b32 s98, s57, 14')
        a.e('s_lshl_b32 s56, s56, 13')
        a.e('s_add_u32 s98, s98, s56')
        a.e('s_mul_i32 s56, s81, 224')
        a.e('s_cmp_eq_u32 s57, 0')
        a.e(f's_cselect_b32 s52, s{P_W1}, s{P_W3}')
        a.e(f's_cselect_b32 s53, s{P_W1+1}, s{P_W3+1}')
        srd(a, 52, 52, None, 0, 56)
        a.e('s_sub_u32 s54, 7340032, s56')
    def m0set(s, i): return f's_add_u32 m0, s98, {4096*(i//4)}' if i else 's_mov_b32 m0, s98'
    def dma(s, i, base): return f'buffer_load_dwordx4 v{base+i}, s[52:55], s97 offen offset:{1024*(i&3)}' + ['', ' sc1', ' nt', ' sc0'][opt('wfl')] + ' lds'
    def dma_adv(s): return ['s_add_u32 s97, s97, s100', f's_add_u32 s98, s98, {G1_STG}', 's_and_b32 s98, s98, 0x1ffff']
    def early_dma(s):
        out = []
        for st in range(2):
            for i in range(8):
                if i % 4 == 0: out.append([s.m0set(i)])
                out.append([s.dma(i, s.DVE)] + (s.dma_adv() if i == 7 else []))
        return out
    def tok(s, k, tm):
        f = s.TF + 4 * (4 * (k % s.ND) + tm)
        if opt('hc', 0):
            return f'buffer_load_dwordx4 a[{f}:{f+3}], v{(3, 25, 26, 27)[tm]}, s[32:35], s82 offen sc1'
        return f'buffer_load_dwordx4 a[{f}:{f+3}], v{s.VT}, s[32:35], s82 offen offset:{tm*1024}' + (' sc1' if opt('t1sc', 1) else '')
    def rd(s, ph, t):
        j, mat = (ph & 3) >> 1, ph & 1
        return [f'ds_read_b64_tr_b16 a[{s.WF+4*t+2*h}:{s.WF+4*t+2*h+1}], v{s.VR} offset:{8192*j+1024*h+32*t+16384*mat}' for h in range(2)]
    def pre_setup(s, inj):
        a = s.a
        for i in range(8): a.e(f'v_mov_b32 v{s.DV+i}, v{s.DVE+i}')
        for i in range(16): a.e(f'v_accvgpr_write_b32 a{92+i}, v{224+i}')
        zero_acc(a, s.ACC, 224, 20)
        a.e(f'v_lshlrev_b32 v{s.VT}, 4, v2')
        a.e('v_lshrrev_b32 v4, 4, v2')
        a.e('v_lshlrev_b32 v4, 11, v4')
        a.e('v_bfe_u32 v5, v2, 4, 1')
        a.e('v_lshl_add_u32 v4, v5, 7, v4')
        a.e('v_bfe_u32 v6, v2, 2, 2')
        a.e('v_mul_u32_u24 v5, 224, v6')
        a.e('v_and_b32 v6, 3, v2')
        a.e('v_lshl_add_u32 v5, v6, 3, v5')
        a.e(f'v_add_u32 v{s.VL}, v4, v5')
        a.e(f'v_mov_b32 v{s.VR}, v{s.VL}')
        if opt('hc', 0):
            a.e('v_bfe_u32 v4, v2, 3, 1')
            a.e('v_lshlrev_b32 v4, 14, v4')
            a.e('v_lshrrev_b32 v5, 4, v2')
            a.e('v_lshl_add_u32 v4, v5, 7, v4')
            a.e('v_and_b32 v5, 7, v2')
            a.e('v_lshl_add_u32 v3, v5, 4, v4')
            for i in range(1, 4): a.e(f'v_add_u32 v{24+i}, {32768*i}, v3')
        if opt('f2w', 0):
            a.e('v_and_b32 v19, 7, v2')
            a.e(f's_lshl_b32 s56, s{S_W}, 3')
            a.e('v_add_u32 v19, s56, v19')
        else:
            a.e('v_and_b32 v19, 31, v2')
        a.e(f'v_lshlrev_b32 v19, {fsh()}, v19')
        a.e('s_lshl_b32 s56, s80, 2')
        a.e(f's_add_u32 s56, s56, s{S_W}')
        a.e('s_lshl_b32 s57, s56, 17')
        srd(a, 32, P_WS, 131072, WS_HNF, 57)
        hf_base(a, 57, 80, S_W, 58)
        srd(a, 36, P_WS, 4 * 114688, 0, 57)
        a.e('s_and_b32 s58, s81, 1')
        a.e('s_mul_i32 s85, s81, 7')
        a.e('s_add_u32 s85, s85, s58')
        a.e('s_lshl_b32 s85, s85, 9')
        a.e('s_movk_i32 s86, 3072')
        a.e('s_cmp_eq_u32 s58, 0')
        a.e(f's_cselect_b32 s86, s86, {0xfffffe00 if opt("hl", 1) else 0xfffffc08:#x}')
        a.e('s_add_u32 s86, s86, s85')
        assert not inj
    def kof(s, s_, P): return 2 * s_ + (-1, 0, 0, 1)[P]
    def ev_ins(s, e):
        L = []
        if e[0] == 'D':
            if e[2] % 4 == 0: L.append(s.m0set(e[2]))
            L.append(s.dma(e[2], s.DV))
            if e[2] == 7: L += s.dma_adv()
        elif e[0] == 'Z':
            fl = ['', ' sc1'][opt('ps', 0) - 1]
            u = e[2]
            if u < 3: L = [f'buffer_store_dwordx4 v[24:27], v{s.VT}, s[36:39], s88 offen offset:{1024*u}{fl}']
            else: L = [f'buffer_store_dwordx2 v[24:25], v{s.VT}, s[36:39], s89 offen{fl}', 's_add_u32 s88, s88, 114688', 's_add_u32 s89, s89, 114688']
        elif e[0] == 'Q':
            L = [f'buffer_store_dwordx4 v[24:27], v{s.VT}, s[44:47], s99 offen', 's_add_u32 s99, s99, 1024']
        elif e[0] == 'V':
            L = ['s_mov_b32 m0, s89', 'buffer_load_dwordx4 v28, s[68:71], s72 offen lds', 's_add_u32 s72, s72, 32768', 's_add_u32 s89, s89, 1024']
        elif e[0] == 'U':
            if e[2] == 0: L = ['buffer_load_dword v0, v6, s[48:51], s101 offen']
            else: L = ['buffer_load_dword v0, v6, s[4:7], s101 offen', 's_add_u32 s101, s101, 917504']
        elif e[0] == 'C':
            L = ['global_load_dword v0, v23, s[78:79]', f's_cmp_ge_u32 s84, {opt("cpt", 5)}', 's_cselect_b32 s99, -1, 0', 'v_and_b32 v23, s99, v24']
        elif e[0] == 'Y':
            L = ['buffer_load_dword v0, v21, s[44:47], s88 offen', 's_add_u32 s88, s88, 1024']
        else:
            L.append(s.tok(e[1], e[2]))
            if e[2] == 3: L.append(f's_add_u32 s82, s82, {512 if opt("hc", 0) else 4096}')
        return L
    def main(s):
        a = s.a
        S = s.S = Sched()
        for s_ in range(-4, 8):
            for P in range(4):
                S.mark((s_, P))
                k = s.kof(s_, P) + s.ND - 1
                t0 = 2 if P in (0, 2) else 0
                S.add([('D', s_ + 2, 2 * P), ('T', k, t0), ('D', s_ + 2, 2 * P + 1), ('T', k, t0 + 1)])
                if opt('w2y', 0 if opt('rs', 0) else 1) and s_ % 2 == 0 and P == 1: S.add([('Y', s_, 0)])
                if opt('la', 2) < 8 and P == (3 if s_ % 2 == 0 else 2): S.add([('U', s_, s_ % 2)])
                if opt('vev', 1) and s_ % 2 == 1 and P == 1: S.add([('V', s_, 0)])
                if opt('cpg', 1) and s_ % 2 == 1 and P == 3: S.add([('C', s_, 0)])
                if opt('psx', 0) and P == 2 and s_ & 1: S.add([('Q', s_, 0)])
                if opt('ps', 0) and P in (1, 3): S.add([('Z', s_, 2 * (s_ & 1) + (P >> 1))])
        vm_bar = min(S.younger(('D', 4), (4, 0)), S.younger(('D', 5), (5, 0)))
        vm_p1 = min(S.younger(('T', 8), (4, 1)), S.younger(('T', 10), (5, 1)))
        vm_p3 = min(S.younger(('T', 9), (4, 3)), S.younger(('T', 11), (5, 3)))
        if opt('w2y', 0 if opt('rs', 0) else 1):
            a.e('s_mul_i32 s56, s2, 28672')
            a.e(f's_mul_i32 s57, s{S_W}, 7168')
            a.e('s_add_u32 s56, s56, s57')
            srd(a, 44, P_W2, 7168, 0, 56)
            a.e('v_min_u32 v21, 8, v2')
            a.e('v_lshlrev_b32 v21, 7, v21')
            a.e('s_mov_b32 s88, 0')
        a.e(f's_lshl_b32 s56, s80, {5+fsh()}')
        a.e(f's_add_u32 s56, s56, {F2}')
        if opt('psx', 0):
            srd(a, 44, P_WS, 8 * MB, WS_XP)
            a.e('s_lshl_b32 s99, s2, 2')
            a.e(f's_add_u32 s99, s99, s{S_W}')
            a.e('s_lshl_b32 s99, s99, 13')
        if opt('ps', 0):
            a.e('s_mov_b32 s88, s85')
            a.e('s_mov_b32 s89, s86')
            for r in range(4): a.e(f'v_mov_b32 v{24+r}, 0')
        a.e('s_add_u32 s89, s73, 98304')
        if opt('la', 2) < 8:
            a.e('s_mul_i32 s57, s2, 3584')
            a.e(f's_mul_i32 s58, s{S_W}, 896')
            a.e('s_add_u32 s57, s57, s58')
            srd(a, 48, P_W1, None, 0, 57)
            a.e('s_sub_u32 s50, 7340032, s57')
            srd(a, 4, P_W3, None, 0, 57)
            a.e('s_mov_b32 s6, s50')
            a.e(f's_mov_b32 s101, {917504 * opt("la", 2)}')
            a.e('v_min_u32 v6, 6, v2')
            a.e('v_lshlrev_b32 v6, 7, v6')
        if opt('cpg', 1):
            a.e('s_getpc_b64 s[78:79]')
            a.e('L_pcg:')
            a.e(f's_lshl_b32 s77, s{S_W}, 13')
            a.e('s_add_u32 s77, s77, L_g1epi-L_pcg')
            a.e('v_lshl_add_u32 v24, v2, 7, s77')
            a.e('v_min_u32 v24, L_end-L_pcg, v24')
            a.e('v_mov_b32 v23, 0')
        a.e('s_mov_b32 s82, 0')
        a.e('s_mov_b32 s83, 0')
        a.e('s_mov_b32 s84, 0')
        stamp(a, 10)
        d1 = [('D', 1, i) for i in range(8)] + [('D', 2, 0), ('D', 2, 1)]
        for e in d1:
            for l in s.ev_ins(e):
                a.e(l)
                if 'm0' in l: a.e('s_nop 0')
        s.hook()
        for t in range(6):
            for l in s.rd(0, t): a.e(l)
        a.e('s_waitcnt lgkmcnt(12)')
        wait_flags(a, 56, 19, 20, solo=0 if opt('f2w', 0) else None)
        stamp(a, 11)
        XE = opt('xe', 1)
        pro = d1 + [e for e in S.ev[:S.marks[(0, 1)]] if e[1] >= 0 and e[0] == 'T'] + ([] if XE else [('X', i, 0) for i in range(4)]) + [('U', -1 - i // 2, i & 1) for i in range(2 * opt('lx', 0))]
        for e in pro[len(d1):]:
            if e[0] == 'X':
                a.e(f'buffer_store_dwordx4 a[{92+4*e[1]}:{95+4*e[1]}], v{s.VT}, s[40:43], s96 offen offset:{1024*e[1]} sc1')
                continue
            for l in s.ev_ins(e):
                a.e(l)
                if 'm0' in l: a.e('s_nop 0')
        act = pro + S.ev[S.marks[(0, 1)]:]
        off = len(pro) - S.marks[(0, 1)]
        s.startup = {}
        need = -1
        for s_ in range(0, 6):
            for P, tags, N in ((0, [('D', s_)], vm_bar), (1, [('T', 2 * s_)], vm_p1), (3, [('T', 2 * s_ + 1)], vm_p3)):
                if (s_, P) == (0, 0): continue
                site = S.marks[(s_, P)] + off
                for tg in tags:
                    idx = [i for i, e in enumerate(act) if e[:2] == tg]
                    if not idx: continue
                    if site - max(idx) - 1 < N: need = max(need, max(idx))
        if need >= 0:
            a.e(f's_waitcnt vmcnt({S.marks[(0, 1)] + off - need - 1})')
        a.e('s_branch L_g1_P1')
        s.snake = 0
        if opt('al', 1):
            a.raw('.p2align 6')
            for _ in range(opt('alo', 0)): a.e('s_nop 0')
        a.e('L_g1_loop:')
        if opt('tw', 1):
            a.e('s_cmp_eq_u32 s84, 7')
            a.e('s_cbranch_scc0 L_g1_notw')
            for i in range(4):
                a.e(f'v_mov_b32 v{s.DV+i}, v{28+i}')
                a.e(f'v_add_u32 v{s.DV+4+i}, 131072, v{28+i}')
            a.e('s_mov_b64 s[52:53], s[68:69]')
            a.e('s_mov_b32 s54, s70')
            a.e('s_add_u32 s97, s72, 32768')
            a.e('s_mov_b32 s100, 262144')
            a.e('L_g1_notw:')
        for s_ in (4, 5):
            a.e(f's_add_u32 s83, s83, {G1_STG}')
            a.e('s_and_b32 s83, s83, 0x1ffff')
            a.e(f's_waitcnt vmcnt({vm_bar})')
            a.e('s_barrier')
            s.phase(s_, 0)
            if s_ == 4: a.e('L_g1_P1:')
            a.e(f's_waitcnt vmcnt({vm_p1})')
            s.phase(s_, 1)
            s.phase(s_, 2)
            a.e(f's_waitcnt vmcnt({vm_p3})')
            s.phase(s_, 3)
        if opt('g1st'):
            a.e('s_memtime s[66:67]')
            a.e('s_min_u32 s64, s84, 3')
            a.e('s_add_u32 s64, s64, 26')
            a.e('s_waitcnt lgkmcnt(0)')
            a.e('s_cmp_lt_u32 s84, 4')
            a.e('s_cselect_b32 s64, s64, 40')
            a.e('s_mov_b32 m0, s64')
            a.e('v_writelane_b32 v1, s66, m0')
        a.e('s_add_u32 s84, s84, 1')
        a.e('s_cmp_lt_u32 s84, 8')
        a.e('s_cbranch_scc1 L_g1_loop')
        a.e('L_g1epi:')
        s.pre = []
        if opt('eo', 0):
            a.e('s_mov_b32 s58, 0xbfb8aa3b')
            a.e('s_mov_b32 s59, 0xbfb8aa3b')
            for T, u in ((8, 0), (20, 1))[:opt('eo', 0)]:
                gs = [s.ACC + 4 * (t * 4) + e for t in (2 * u, 2 * u + 1) for e in (0, 2)]
                s.pre += [f'v_pk_mul_f32 v[{T+2*q}:{T+2*q+1}], v[{gs[q]}:{gs[q]+1}], s[58:59]' for q in range(4)]
                s.pre += [f'v_exp_f32 v{T+q}, v{T+q}' for q in range(8)]
                s.pre += [f'v_pk_add_f32 v[{T+2*q}:{T+2*q+1}], v[{T+2*q}:{T+2*q+1}], 1.0 op_sel_hi:[1,0]' for q in range(4)]
                s.pre += [f'v_rcp_f32 v{T+q}, v{T+q}' for q in range(8)]
        s.phase(6, 0, last=True)
        assert not s.pre
        stamp(a, 12)
    def phase(s, s_, P, last=False):
        a = s.a; S = s.S
        kbuf = s.kof(s_, P) % s.ND
        mat = (P + 1) & 1
        items = []
        if not last:
            nxt = S.marks[(s_, P + 1)] if P < 3 else S.marks[(s_ + 1, 0)]
            items = [s.ev_ins(e) for e in S.ev[S.marks[(s_, P)]:nxt]]
        slots = [[] for _ in range(7)]
        for p_, it in zip([1, 2, 4, 5, 6], items): slots[p_] = it
        if P == 0 and not last:
            slots[0] = [f'v_add_u32 v{s.VR}, s83, v{s.VL}']
        for t in range(7):
            a.e(f's_waitcnt lgkmcnt({10 if not (last and t) else 12-2*t})')
            R = s.rd(P - 1, 6) if t == 0 else ([] if last else s.rd(P, t - 1))
            X = list(slots[t])
            pre = [x for x in X if 'm0' in x]
            X = [x for x in X if 'm0' not in x]
            gaps = [[] for _ in range(4)]
            if R: gaps[0] = pre + [R[0]]; gaps[1] = [R[1]]
            gaps[2] = X[:1]; gaps[3] = X[1:]
            order = [0, 1, 2, 3]
            if s.snake & 1: order.reverse()
            s.snake += 1
            for n, tm in enumerate(order):
                c = s.ACC + 4 * ((mat * 7 + t) * 4 + tm)
                tf = s.TF + 4 * (4 * kbuf + tm)
                if not opt('g1x') & 1: a.e(f'v_mfma_f32_16x16x32_bf16 v[{c}:{c+3}], a[{s.WF+4*t}:{s.WF+4*t+3}], a[{tf}:{tf+3}], v[{c}:{c+3}]')
                for x in gaps[n]:
                    if opt('g1x') & 2 and x.startswith('ds_'): continue
                    if opt('g1x') & 4 and x.startswith('buffer'): continue
                    a.e(x)
                if last and not gaps[n]:
                    for _ in range(opt('eo', 0)):
                        if s.pre: a.e(s.pre.pop(0))
    def epilogue(s, g2):
        a = s.a
        L = Lin(a)
        a.e('s_mov_b32 s58, 0xbfb8aa3b')
        a.e('s_mov_b32 s59, 0xbfb8aa3b')
        if opt('xe', 1):
            for i in range(4):
                a.e(f'buffer_store_dwordx4 a[{92+4*i}:{95+4*i}], v{s.VT}, s[40:43], s96 offen offset:{1024*i} sc1')
        g2.early(L)
        a.e('v_lshlrev_b32 v17, 3, v2')
        T = 8
        k = 0
        for tm in range(4):
            for u in range(4):
                O = (20, 24)[k & 1]
                fill = g2.epi_fill(k)
                def F(n=1):
                    for _ in range(n):
                        if fill: fill.pop(0)()
                tiles = [2 * u, 2 * u + 1] if u < 3 else [6]
                gs = []; us = []
                for t in tiles:
                    gs += [s.ACC + 4 * (t * 4 + tm), s.ACC + 4 * (t * 4 + tm) + 2]
                    us += [s.ACC + 4 * ((7 + t) * 4 + tm), s.ACC + 4 * ((7 + t) * 4 + tm) + 2]
                n = len(gs)
                nins = 9 * n
                cnt = [0]; ev_ = max(1, nins // (len(fill) + 1))
                def V(t):
                    a.e(t); cnt[0] += 1
                    if cnt[0] % ev_ == 0: F(1)
                T = 8
                if k < opt('eo', 0):
                    T = (8, 20)[k]; O = (24 if opt('eo', 0) == 1 else 8, 12)[k]
                    if k == 0 and opt('eo', 0) == 2: O = 28 - 28 + 0
                else:
                    for q in range(n): V(f'v_pk_mul_f32 v[{T+2*q}:{T+2*q+1}], v[{gs[q]}:{gs[q]+1}], s[58:59]')
                    for q in range(2 * n): V(f'v_exp_f32 v{T+q}, v{T+q}')
                    for q in range(n): V(f'v_pk_add_f32 v[{T+2*q}:{T+2*q+1}], v[{T+2*q}:{T+2*q+1}], 1.0 op_sel_hi:[1,0]')
                    for q in range(2 * n): V(f'v_rcp_f32 v{T+q}, v{T+q}')
                for q in range(n): V(f'v_pk_mul_f32 v[{gs[q]}:{gs[q]+1}], v[{gs[q]}:{gs[q]+1}], v[{us[q]}:{us[q]+1}]')
                for q in range(n): V(f'v_pk_mul_f32 v[{T+2*q}:{T+2*q+1}], v[{T+2*q}:{T+2*q+1}], v[{gs[q]}:{gs[q]+1}]')
                for q in range(n): V(f'v_cvt_pk_bf16_f32 v{O+q}, v{T+2*q}, v{T+2*q+1}')
                if u < 3:
                    L.v('st', f'buffer_store_dwordx4 v[{O}:{O+3}], v{s.VT}, s[36:39], s85 offen offset:{1024*u}' + hfl())
                else:
                    L.v('st', f'buffer_store_dwordx2 v[{O}:{O+1}], v{17 if opt("hl", 1) else s.VT}, s[36:39], s86 offen' + hfl())
                F(len(fill))
                k += 1
            if tm < 3:
                a.e('s_add_u32 s85, s85, 114688')
                a.e('s_add_u32 s86, s86, 114688')
        a.e(f's_lshl_b32 s87, s91, {fsh()}')
        a.e(f's_add_u32 s87, s87, {F3}')
        stamp(a, 13)
        a.e('L_g2code:')
        if opt('s3e', 1):
            a.e('s_waitcnt lgkmcnt(0)')
            signal(a, 87, 5, waitfn=lambda: L.wait(vm=('st',)))
            g2.post_epilogue(bar=False)
        else:
            g2.post_epilogue()
            signal(a, 87, 5, waitfn=lambda: L.wait(vm=('st',)), wb=(opt('hfl') == 4))
        stamp(a, 18)

class G2:
    ACC, TF, DV, VT, RJ, TR, V1, VO, VF = 32, 96, 28, 16, 3, 8, 12, 13, 14
    REG = 40960
    def __init__(s, a): s.a = a
    def wreg(s, k, j):
        if k < 16: return 'a', 128 + 8 * k + 4 * j
        if k < 32: return 'a', 8 * (k - 16) + 4 * j
        NB = opt('nb', 12); nv = (160 - 4 * NB) // 8
        if k < 32 + nv: return 'v', 96 + 4 * NB + 8 * (k - 32) + 4 * j
        return 'a', 128 + 8 * (k - 32 - nv) + 4 * j
    def front_setup(s):
        a = s.a
        gm = opt('g2map', 1)
        s.pbit = 2 if gm == 2 else 1
        if gm == 2: a.e('s_bfe_u32 s76, s2, 0x10001')
        else: a.e('s_and_b32 s76, s2, 1')
        a.e('s_lshr_b32 s56, s2, 3')
        if gm:
            if gm == 2:
                a.e('s_andn2_b32 s74, 1, s2')
            else:
                a.e('s_bfe_u32 s74, s2, 0x10001')
            a.e('s_lshl_b32 s74, s74, 3')
            a.e('s_and_b32 s57, s56, 7')
            a.e('s_add_u32 s74, s74, s57')
            a.e('s_bfe_u32 s75, s2, 0x10002')
            a.e('s_lshl_b32 s75, s75, 2')
            a.e('s_lshr_b32 s57, s56, 3')
            a.e('s_add_u32 s75, s75, s57')
        else:
            a.e('s_bfe_u32 s74, s2, 0x20001')
            a.e('s_lshl_b32 s74, s74, 2')
            a.e('s_and_b32 s57, s56, 3')
            a.e('s_add_u32 s74, s74, s57')
            a.e('s_lshr_b32 s75, s56, 2')
        a.e('v_lshrrev_b32 v252, 2, v2')
        a.e('v_lshlrev_b32 v253, 11, v252')
        a.e('v_lshrrev_b32 v254, 3, v2')
        a.e('v_xor_b32 v254, v254, v2')
        a.e('v_and_b32 v254, 2, v254')
        a.e('v_and_or_b32 v254, v2, 1, v254')
        a.e('v_lshl_add_u32 v248, v254, 4, v253')
        for i in range(1, 4):
            a.e(f'v_add_u32 v{248+i}, {i*(32768-1024)}, v248')
        a.e('s_mul_i32 s56, s76, 3670016')
        a.e('s_lshl_b32 s57, s75, 8')
        a.e('s_add_u32 s56, s56, s57')
        a.e(f's_lshl_b32 s57, s{S_W}, 6')
        a.e('s_add_u32 s56, s56, s57')
        srd(a, 68, P_W2, None, 0, 56)
        a.e('s_sub_u32 s70, 7340032, s56')
        a.e('s_mov_b32 s72, 0')
        a.e('v_lshlrev_b32 v252, 6, v252')
        a.e('v_bfe_u32 v253, v2, 4, 1')
        a.e('v_lshl_add_u32 v252, v253, 5, v252')
        a.e('v_and_b32 v253, 3, v2')
        a.e('v_lshl_add_u32 v252, v253, 3, v252')
        a.e(f's_lshl_b32 s73, s{S_W}, 13')
        a.e('s_add_u32 s73, s73, 32768')
        a.e('v_add_u32 v253, s73, v252')
        a.e('v_xor_b32 v254, 32, v253')
    def fcell(s, n): return (32768, 36864, 0, 4096, 98304, 102400)[n]
    def fD(s, pairs, dv=248):
        a = s.a
        out = []
        for c, n in pairs:
            out.append(lambda n=n: a.e(f's_add_u32 m0, s73, {s.fcell(n)}'))
            for i in range(4):
                def f(i=i):
                    a.e(f'buffer_load_dwordx4 v{dv+i}, s[68:71], s72 offen offset:{1024*i} lds')
                    if i == 3: a.e('s_add_u32 s72, s72, 131072')
                out.append(f)
        return out
    def fM(s, pairs, base=253, sub=0):
        a = s.a
        for c, n in pairs:
            for kk in range(2):
                for j in range(2):
                    for h in range(2):
                        r, q = s.wreg(2 * c + kk, j)
                        a.e(f'ds_read_b64_tr_b16 {r}[{q+2*h}:{q+2*h+1}], v{base+j} offset:{s.fcell(n)-sub+2048*kk+1024*h}')
    def front_save(s):
        a = s.a
        for i in range(4): a.e(f'v_mov_b32 v{s.DV+i}, v{248+i}')
        a.e('v_mov_b32 v7, v252')
    def early(s, L):
        a = s.a; s.L = L
        a.e('s_mov_b32 s80, s74')
        a.e('s_mov_b32 s81, s75')
        a.e('s_mov_b32 s82, s76')
        a.e(f's_mul_i32 s98, s{S_W}, {s.REG}')
        a.e(f'v_add_u32 v{s.RJ}, s98, v7')
        a.e(f'v_xor_b32 v{s.RJ+1}, 32, v{s.RJ}')
        a.e('s_add_u32 s56, s73, 98304')
        a.e('v_add_u32 v5, s56, v7')
        a.e('v_xor_b32 v6, 32, v5')
        L.vm = ['tail'] + ['st'] * (4 if opt('xe', 1) else 0)
        mv = [(s.NF - 2, 4, 5, 98304), (s.NF - 1, 5, 5, 98304)]
        if opt('tw', 1):
            a.e('s_mov_b32 s72, s97')
            a.e('s_sub_u32 s56, s73, 32768')
            a.e('v_add_u32 v18, s56, v7')
            a.e('v_xor_b32 v19, 32, v18')
            mv += [(s.NF + i, (2, 3, 0, 1)[i], 18, 0) for i in range(4)]
            s.NF += 4
        items = []
        for c, n, base, sub in mv:
            for kk in range(2):
                for j in range(2):
                    for h in range(2):
                        r, q = s.wreg(2 * c + kk, j)
                        items.append(lambda r=r, q=q, h=h, j=j, n=n, kk=kk, base=base, sub=sub: a.e(f'ds_read_b64_tr_b16 {r}[{q+2*h}:{q+2*h+1}], v{base+j} offset:{s.fcell(n)-sub+2048*kk+1024*h}'))
        s.mv_items = items
        if opt('cpf2', 0): code_pf(a, 'L_g2code', 'L_end', 21, lambda t: L.v('cp', t))
        s.cell = {}
        s.free = list(range(10))
    def D(s, c):
        L = s.L
        def first():
            s.cell[c] = s.free.pop(0)
            L.e(f's_add_u32 m0, s98, {4096*s.cell[c]}')
        out = [first]
        for i in range(4):
            out.append(lambda i=i: L.v(('W', c), f'buffer_load_dwordx4 v{s.DV+i}, s[68:71], s72 offen offset:{1024*i} lds'))
        out.append(lambda: L.e('s_add_u32 s72, s72, 131072'))
        return out
    def M(s, c):
        L = s.L
        out = []
        for kk in range(2):
            for j in range(2):
                for h in range(2):
                    def f(kk=kk, j=j, h=h):
                        r, n = s.wreg(2 * c + kk, j)
                        L.l(('M', c), f'ds_read_b64_tr_b16 {r}[{n+2*h}:{n+2*h+1}], v{s.RJ+j} offset:{4096*s.cell[c]+2048*kk+1024*h}')
                    out.append(f)
        return out
    def Wv(s, c): return [lambda: s.L.wait(vm=(('W', c),))]
    def Fr(s, cs):
        def f():
            s.L.wait(lg0=True)
            for c in cs: s.free.append(s.cell[c])
        return [f]
    def epi_fill(s, k):
        D, M, Wv, Fr = s.D, s.M, s.Wv, s.Fr
        def cat(*xs): return [y for x in xs for y in x]
        s.A = []
        k0 = opt('mvk', 0)
        if k < k0: return []
        out, s.mv_items = s.mv_items[:12], s.mv_items[12:]
        if k == k0: out = [lambda: s.L.wait(vm=('tail',))] + out
        return out
    def post_epilogue(s, bar=True):
        a = s.a; L = s.L
        assert not s.A
        s.NA = s.NF + opt('ne', 0) + opt('na', 3)
        if bar:
            a.e('s_waitcnt lgkmcnt(0)')
            a.e('s_barrier')
        a.inject([f for c in range(s.NF + opt('ne', 0), s.NA) for f in s.D(c)], 4)
        a.e(f'v_mov_b32 v{s.TR}, v{s.VT}')
        for q in range(1, 4):
            a.e(f'v_add_u32 v{s.TR+q}, {q*s.REG}, v{s.VT}')
        a.e(f'v_add_u32 v{s.V1}, {114688-2048}, v{s.VT}')
        for q in range(4):
            a.e(f'v_add_u32 v{24+q}, {q*s.REG}, v17')
        zero_acc(a, s.ACC, 64, 96)
        a.flush_inject()
        a.e('s_lshl_b32 s56, s80, 3')
        a.e(f's_lshl_b32 s57, s{S_W}, 1')
        a.e('s_lshl_b32 s58, s82, 2')
        a.e('s_xor_b32 s57, s57, s58')
        a.e('s_add_u32 s56, s56, s57')
        a.e('s_lshr_b32 s83, s56, 4')
        a.e('s_bfe_u32 s84, s56, 0x20002')
        hf_base(a, 57, 83, 84, 58)
        a.e('s_and_b32 s56, s56, 3')
        a.e('s_mul_i32 s56, s56, 114688')
        a.e('s_add_u32 s57, s57, s56')
        a.e('s_mul_i32 s58, s82, 57344')
        a.e('s_add_u32 s57, s57, s58')
        srd(a, 32, P_WS, 114688 + 57344, 0, 57)
        a.e('v_and_b32 v5, 15, v2')
        a.e('v_lshlrev_b32 v5, 11, v5')
        if opt('o4', 1):
            a.e('v_bfe_u32 v6, v2, 4, 1')
            a.e('v_lshl_add_u32 v5, v6, 5, v5')
            a.e('v_lshrrev_b32 v6, 5, v2')
            a.e(f'v_lshl_add_u32 v{s.VO}, v6, 4, v5')
        else:
            a.e('v_lshrrev_b32 v6, 4, v2')
            a.e(f'v_lshl_add_u32 v{s.VO}, v6, 3, v5')
        a.e('s_lshl_b32 s85, s80, 18')
        a.e('s_lshl_b32 s57, s82, 17')
        a.e('s_add_u32 s85, s85, s57')
        a.e('s_lshl_b32 s57, s81, 8')
        a.e('s_add_u32 s85, s85, s57')
        a.e(f's_lshl_b32 s57, s{S_W}, 6')
        a.e('s_add_u32 s85, s85, s57')
        a.e(f'v_and_b32 v{s.VF}, {15 if opt("f3h", 0) else 31}, v2')
        a.e(f'v_lshlrev_b32 v{s.VF}, {fsh()}, v{s.VF}')
    def main(s):
        a = s.a; L = s.L
        a.e('s_lshr_b32 s56, s80, 1')
        a.e(f's_lshl_b32 s56, s56, {5+fsh()}')
        a.e(f's_add_u32 s56, s56, {F3}')
        if opt('f3h', 0):
            a.e(f's_lshl_b32 s57, s82, {4+fsh()}')
            a.e('s_add_u32 s56, s56, s57')
            a.e(f's_lshl_b32 s97, s80, {4+fsh()}')
            a.e(f's_add_u32 s97, s97, {F3}')
        srd(a, 44, P_WS, 4 * MB, WS_H)
        a.e('s_mov_b32 s84, 0')
        L.wait(vm0=True)
        for c in range(s.NF, s.NA):
            for f in s.M(c): f()
        for f in s.Fr(range(s.NF, s.NA)): f()
        wait_flags(a, 56, s.VF, 20)
        stamp(a, 14)
        NS = 28
        slot = {}
        def TD(st):
            slot[st] = s.free.pop(0)
            out = [lambda: L.e(f's_add_u32 m0, s98, {4096*slot[st]}')]
            for i in range(4):
                v = s.VT if i < 2 else s.V1
                out.append(lambda i=i, v=v: L.v(('T', st), f'buffer_load_dwordx4 v{v}, s[32:35], s84 offen offset:{1024*i} sc1 lds'))
            out.append(lambda: (L.e('s_add_u32 s84, s84, 2048'), issued.add(st)))
            return out
        issued = set()
        NB = opt('nb', 12); KV = 32 + (160 - 4 * NB) // 8
        nxt = 0
        wc = opt('wc', 3)
        wfree, s.free = s.free[-wc:], s.free[:-wc]
        for _ in range(opt('t0', 3)):
            fs = TD(nxt); fs[0](); a.e('s_nop 0')
            for f in fs[1:]: f()
            nxt += 1
        L.wait(vm=(('T', 0),))
        a.e('s_barrier')
        X = opt('tx', 12)
        seq = [(k, tm) for k in range(56 - X) for tm in range(8)]
        seq += [(k, tm) for k in range(56 - X, 56) for tm in range(4, 8)]
        nS = len(seq)
        seq += [(k, tm) for k in range(56 - X, 56) for tm in range(4)]
        last_use = {}
        for g_, (k, tm) in enumerate(seq): last_use[k >> 1] = g_
        rdn = [0]
        def RDnext():
            if rdn[0] < 448:
                k, tm = seq[rdn[0]]
                f = s.TF + 4 * (rdn[0] % NB)
                o_ = 4096 * slot[k >> 1] + 2048 * (tm & 1) + 1024 * (k & 1)
                if k % 7 == 3 and opt('hl', 1):
                    L.l(('R', rdn[0]), f'ds_read2st64_b64 v[{f}:{f+3}], v{24+(tm>>1)} offset0:{o_//512} offset1:{o_//512+1}')
                else:
                    L.l(('R', rdn[0]), f'ds_read_b128 v[{f}:{f+3}], v{s.TR+(tm>>1)} offset:{o_}')
                rdn[0] += 1
        for _ in range(NB - 1): RDnext()
        todo = list(range(s.NA, 28)); fly = []; pend = []; freed = set(); vis = 0; wseen = set()
        assert NB - 1 <= 16
        HR = 192
        a.e('s_lshl_b32 s56, s2, 2')
        a.e(f's_add_u32 s56, s56, s{S_W}')
        a.e('s_lshl_b32 s57, s56, 13')
        a.e(f's_xor_b32 s58, s57, {0x8000 * s.pbit:#x}')
        a.e('s_lshl_b32 s56, s56, 6')
        a.e(f's_add_u32 s56, s56, {F4}')
        a.e(f's_xor_b32 s59, s56, {0x100 * s.pbit:#x}')
        srd(a, 40, P_WS, 8 * MB, WS_XP)
        srd(a, 48, P_OUT, 4 * MB)
        a.e('s_add_u32 s87, s57, 4096')
        a.e('s_add_u32 s88, s58, 4096')
        a.e('v_mov_b32 v20, 0')
        a.e(f'v_mov_b32 v21, s{S_NONCE}')
        def flag_store():
            L.wait(vm=('xs',))
            if not opt('kbst'): stamp(a, 16)
            a.e('s_mov_b64 exec, 1')
            L.v('fl', f'buffer_store_dword v21, v20, s[{S_FLG}:{S_FLG+3}], s56 offen sc1')
            a.e('s_mov_b64 exec, -1')
        BP = opt('bp', 1)
        def xstores():
            out = []
            if BP:
                for q2 in range(4):
                    def f(q2=q2):
                        c = s.ACC + 32 + 8 * q2
                        for e in range(4): a.e(f'v_cvt_pk_bf16_f32 v{c+e}, v{c+2*e}, v{c+2*e+1}')
                        if opt('degr'):
                            m_ = (0xffff << opt('degr')) & 0xffff
                            for e in range(4): a.e(f'v_and_b32 v{c+e}, {m_ * 0x10001:#x}, v{c+e}')
                        L.v('xs', f'buffer_store_dwordx4 v[{c}:{c+3}], v{s.VT}, s[40:43], s57 offen offset:{1024*q2} sc1')
                    out += [lambda: None, f]
            else:
                for q in range(8):
                    c = s.ACC + 32 + 4 * q
                    out.append(lambda q=q, c=c: L.v('xs', f'buffer_store_dwordx4 v[{c}:{c+3}], v{s.VT}, s[40:43], s{57 if q < 4 else 87} offen offset:{1024*(q&3)} sc1'))
            return out
        gF = nS + opt('tf', 48) * (448 - nS) // 64 if X else None
        for u in range(56):
            k0 = seq[8 * u][0]
            fill = []
            GM = (0, 16, 32, 44, 50)
            if opt('g2st') and u in GM:
                a.e('s_memtime s[66:67]'); a.e('s_waitcnt lgkmcnt(0)'); L.lg = []
                a.e(f'v_writelane_b32 v1, s66, {26 + GM.index(u)}')
            if s.free and nxt < NS and (u & 1 or u < 8 or not todo or len(s.free) > 1):
                fill += TD(nxt); nxt += 1
                if not todo and not fly and s.free and nxt < NS:
                    fill += TD(nxt); nxt += 1
            if not u & 1 and u >= opt('wk0', 8):
                if fly and u >= fly[0][1] + opt('wlat', 4):
                    c = fly.pop(0)[0]
                    assert 2 * c + 1 < KV or u >= 2 * c + 2 - KV
                    fill += s.Wv(c) + s.M(c)
                    pend.append(c)
                if todo and wfree:
                    c = todo.pop(0)
                    fs = s.D(c)
                    s.cell[c] = wfree.pop(0)
                    fill += [lambda c=c: L.e(f's_add_u32 m0, s98, {4096*s.cell[c]}')] + fs[1:]
                    fly.append((c, u))
            if 8 * u == nS and X:
                fill += xstores()
            if u == 44 and opt('f3h', 0):
                fill.append(lambda: L.v('hf', f'buffer_load_dword v23, v{s.VF}, s[{S_FLG}:{S_FLG+3}], s97 offen sc1'))
            if u == 52 and opt('f3h', 0):
                L.wait(vm=('hf',))
                a.e(f'v_cmp_ne_u32 vcc, s{S_NONCE}, v23')
                a.e('s_cbranch_vccz L_hok')
                wait_flags(a, 97, s.VF, 23, solo=0)
                a.e('L_hok:')
            if u == 52:
                for tm in range(4):
                    for j in range(1 if opt('o4', 1) else 2):
                        def f(tm=tm, j=j):
                            if j == 0 and tm: L.e(f's_add_u32 s86, s85, {32768*tm}')
                            if opt('o4', 1):
                                L.v('h', f'buffer_load_dwordx4 a[{4*tm}:{4*tm+3}], v{s.VO}, s[44:47], s{86 if tm else 85} offen sc1')
                            else:
                                L.v('h', f'buffer_load_dwordx2 a[{4*tm+2*j}:{4*tm+2*j+1}], v{s.VO}, s[44:47], s{86 if tm else 85} offen offset:{32*j} sc1')
                        fill.append(f)
            per = -(-(len(fill) + 1) // 8)
            SS = opt('ss', 1)
            for i in range(8):
                g_ = 8 * u + i
                k, tm = seq[g_]
                if rdn[0] < 448 and seq[rdn[0]][0] >> 1 > vis:
                    q = seq[rdn[0]][0] >> 1
                    vis = min(NS - 1, q + SS - 1) if q > 1 else q
                    assert vis in issued, (u, i, vis)
                    L.wait(vm=(('T', vis),))
                    a.e('s_barrier')
                    for q2 in list(slot):
                        if q2 not in freed and last_use[q2] < g_:
                            freed.add(q2); s.free.append(slot[q2])
                need = [('R', g_)]
                if k >> 1 not in wseen:
                    wseen.add(k >> 1)
                    assert k >> 1 not in todo and all(c != k >> 1 for c, _ in fly), (k, u)
                    need.append(('M', k >> 1))
                if g_ == gF: flag_store()
                L.wait(lg=need)
                order = [0, 1] if g_ % 2 == 0 else [1, 0]
                for n, j in enumerate(order):
                    r, w = s.wreg(k, j)
                    c = s.ACC + 4 * (2 * tm + j)
                    tf = s.TF + 4 * (g_ % NB)
                    if not opt('g2x') & 1:
                        a.e(f'v_mfma_f32_16x16x32_bf16 v[{c}:{c+3}], {r}[{w}:{w+3}], v[{tf}:{tf+3}], v[{c}:{c+3}]')
                    if n == 0:
                        RDnext()
                    else:
                        for _ in range(per):
                            if fill:
                                fill.pop(0)()
                                if 'm0' in a.lines[-1]: break
            while fill:
                if 'm0' in a.lines[-1]: a.e('s_nop 0')
                fill.pop(0)()
            for c in list(pend):
                if not any(x == ('M', c) for x in L.lg):
                    pend.remove(c)
                    (wfree if todo else s.free).append(s.cell[c])
            if not todo and wfree and not fly and not pend:
                s.free += wfree; wfree = []
        assert not todo and not fly and not pend and nxt == NS
        stamp(a, 15)
        if not X:
            a.e('s_nop 7')
            for f in xstores(): f()
            flag_store()
        wait_flags(a, 59, 20, 22, solo=0)
        stamp(a, 17)
        P1 = 96
        NL = 4 if BP else 8
        for q in range(NL):
            a.e(f'buffer_load_dwordx4 v[{P1+4*q}:{P1+4*q+3}], v{s.VT}, s[40:43], s{58 if q < 4 else 88} offen offset:{1024*(q&3)} sc1')
        H = 208
        for q in range(16):
            a.e(f'v_accvgpr_read_b32 v{HR+q}, a{q}')
        if opt('o4', 1):
            for tm in range(4):
                if tm == 3: a.e('s_nop 0')
                a.e(f'v_permlane16_swap_b32 v{HR+4*tm}, v{HR+4*tm+2}')
                a.e(f'v_permlane16_swap_b32 v{HR+4*tm+1}, v{HR+4*tm+3}')
        for q in range(16):
            unpack(a, H + 2 * q, H + 2 * q + 1, HR + q)
        a.e('s_mov_b32 s82, 0x3ef5fdf0')
        a.e('s_mov_b32 s83, 0x3ef5fdf0')
        for q in range(8):
            tm, j = q >> 1, q & 1
            if j == 0 and tm: a.e(f's_add_u32 s85, s85, 32768')
            if BP:
                if j == 0: a.e(f's_waitcnt vmcnt({3 if opt("o4", 1) else 3 + tm})')
            else: a.e('s_waitcnt vmcnt(7)')
            c = s.ACC + 4 * q
            for e in range(2):
                x = c + 2 * e; h = H + 4 * q + 2 * e
                if BP:
                    y = 128 + 2 * e
                    unpack(a, y, y + 1, P1 + 2 * q + e)
                else:
                    y = P1 + 4 * q + 2 * e
                a.e(f'v_pk_add_f32 v[{x}:{x+1}], v[{x}:{x+1}], v[{y}:{y+1}]')
                if opt('hs', 0): a.e(f'v_pk_mul_f32 v[{x}:{x+1}], v[{x}:{x+1}], s[82:83]')
                a.e(f'v_cvt_pk_bf16_f32 v{y}, v{x}, v{x+1}')
                unpack(a, x, x + 1, y)
                a.e(f'v_pk_add_f32 v[{x}:{x+1}], v[{x}:{x+1}], v[{h}:{h+1}]')
                a.e(f'v_cvt_pk_bf16_f32 v{192+2*q+e}, v{x}, v{x+1}')
            ofl = ['', ' sc1', ' nt', ' sc0 sc1'][opt('ofl')]
            if opt('o4', 1):
                assert BP
                if j == 1:
                    o = 192 + 4 * tm
                    a.e('s_nop 1')
                    a.e(f'v_permlane16_swap_b32 v{o}, v{o+2}')
                    a.e(f'v_permlane16_swap_b32 v{o+1}, v{o+3}')
                    a.e(f'buffer_store_dwordx4 v[{o}:{o+3}], v{s.VO}, s[48:51], s85 offen' + ofl)
            else:
                a.e(f'buffer_store_dwordx2 v[{192+2*q}:{192+2*q+1}], v{s.VO}, s[48:51], s85 offen offset:{32*j}' + ofl)
        LIN[0] = None

def gen_dg(a):
    d = opt('dg'); F, ia, ib = d // 10000, d // 100 % 100, d % 100
    m = opt('dgm')
    a.raw('.globl dg_kernel\n.p2align 8\n.type dg_kernel,@function\ndg_kernel:')
    a.e('s_load_dwordx2 s[10:11], s[0:1], 96')
    a.e('s_memrealtime s[12:13]')
    a.e('s_waitcnt lgkmcnt(0)')
    a.e(f's_add_u32 s10, s10, {STAMP_BASE + opt("dgw", 0) * 128:#x}')
    a.e('s_addc_u32 s11, s11, 0')
    if not m:
        a.e(f's_load_dword s4, s[10:11], {4*ia}')
        a.e(f's_load_dword s5, s[10:11], {4*ib}')
        a.e('s_waitcnt lgkmcnt(0)')
    else:
        a.e('s_mov_b32 s20, s10\ns_mov_b32 s21, s11\ns_mov_b32 s22, 0x20000\ns_mov_b32 s23, 0x20000')
        a.e('v_lshlrev_b32 v1, 7, v0')
        for i in range(16):
            a.e(f's_mov_b32 s6, {i*8192}')
            a.e(f'buffer_load_dword v{8+i}, v1, s[20:23], s6 offen offset:{4*ia}')
            a.e(f'buffer_load_dword v{24+i}, v1, s[20:23], s6 offen offset:{4*ib}')
        a.e('s_waitcnt vmcnt(0)')
        for i in range(32):
            a.e(f'v_sub_u32 v{8+i}, s12, v{8+i}')
        opa = 'v_max_u32' if m != 3 else 'v_add_u32'
        opb = {1: 'v_min_u32', 2: 'v_max_u32', 3: 'v_add_u32'}[m]
        for i in range(1, 16):
            a.e(f'{opa} v8, v8, v{8+i}')
            a.e(f'{opb} v24, v24, v{24+i}')
        a.e('s_nop 1')
        a.e('v_readlane_b32 s4, v8, 0')
        a.e('v_readlane_b32 s5, v24, 0')
        sa = 's_max_u32' if m != 3 else 's_add_u32'
        sb = {1: 's_min_u32', 2: 's_max_u32', 3: 's_add_u32'}[m]
        for l in range(1, 64):
            a.e(f'v_readlane_b32 s6, v8, {l}')
            a.e(f'v_readlane_b32 s7, v24, {l}')
            a.e('s_nop 0')
            a.e(f'{sa} s4, s4, s6')
            a.e(f'{sb} s5, s5, s7')
        a.e('s_sub_u32 s5, s4, s5')
        if m == 3: a.e('s_lshr_b32 s5, s5, 10')
        a.e('s_mov_b32 s4, 0')
        a.e('s_memrealtime s[12:13]')
        a.e('s_waitcnt lgkmcnt(0)')
    a.e('s_sub_u32 s4, s5, s4')
    a.e('s_min_u32 s4, s4, 10000')
    a.e(f's_mul_i32 s4, s4, {F}')
    a.e('L_dg:')
    a.e('s_memrealtime s[14:15]')
    a.e('s_waitcnt lgkmcnt(0)')
    a.e('s_sub_u32 s5, s14, s12')
    a.e('s_cmp_lt_u32 s5, s4')
    a.e('s_cbranch_scc1 L_dg')
    a.e('s_endpgm')

def build():
    a = Asm()
    hdr = open('cdna_kernels/' + NAME + '.s.ref').read().split('\n')
    cm = [l for l in hdr if l.startswith(';') and '@launch' not in l and 'Override launch' not in l and 'grid=ceil' not in l]
    out = '\n'.join(cm) + '\n'
    if opt('aslist') or opt('dg'):
        out += f'; @launch kernel={KNAME} grid=(256,1,1) block=(256,1,1) lds=163840\n'
        if opt('dg'): out += '; @launch kernel=dg_kernel grid=(1,1,1) block=(64,1,1) lds=0\n'
    else:
        out += '; @launch grid=(256,1,1) block=(256,1,1) lds=163840\n'
    a.raw('.amdgcn_target "amdgcn-amd-amdhsa--gfx950"')
    a.raw('.text')
    gen(a)
    if opt('dg'): gen_dg(a)
    body = a.text()
    errs = check_hazards(body)
    errs += check_waits(body, KNAME, loop_iters=2, take_fwd=('L_nonce_ok', 'L_nonce_skip', 'L_clean_skip', 'L_y2skip', 'L_y2nw', 'L_hok') + tuple(f'L_sig{i}' for i in range(20)) + tuple(f'L_poll{i}x' for i in range(20)))
    errs += check_waits(body, KNAME, loop_iters=2, take_fwd=('L_nonce_ok',) + (() if opt('solo', 1) else tuple(f'L_poll{i}x' for i in range(20))))
    for e in errs[:8]: print(e, file=sys.stderr)
    na = 256
    out += body + f'''.section .rodata,"a"
.p2align 6
.amdhsa_kernel {KNAME}
  .amdhsa_next_free_vgpr {256+na}
  .amdhsa_next_free_sgpr 102
  .amdhsa_accum_offset 256
  .amdhsa_group_segment_fixed_size 0
  .amdhsa_kernarg_size 104
  .amdhsa_user_sgpr_count 2
  .amdhsa_user_sgpr_kernarg_segment_ptr 1
  .amdhsa_system_sgpr_workgroup_id_x 1
  .amdhsa_float_denorm_mode_32 3
.end_amdhsa_kernel
'''
    if opt('dg'):
        out += '''.p2align 6
.amdhsa_kernel dg_kernel
  .amdhsa_next_free_vgpr 48
  .amdhsa_next_free_sgpr 32
  .amdhsa_accum_offset 48
  .amdhsa_group_segment_fixed_size 0
  .amdhsa_kernarg_size 104
  .amdhsa_user_sgpr_count 2
  .amdhsa_user_sgpr_kernarg_segment_ptr 1
  .amdhsa_system_sgpr_workgroup_id_x 1
.end_amdhsa_kernel
'''
    return out, errs

if __name__ == '__main__':
    outp = sys.argv[1]
    for kv in sys.argv[2:]:
        k, v = kv.split('=')
        OPT[k] = int(v)
    if opt('hnub'): WS_HNF = WS_UB
    t, errs = build()
    open(outp, 'w').write(t)
    print('written', outp, len(t), 'bytes;', len(errs), 'checker errors')
```

```python
import sys, os
from asmlib import *

NAME = 'sequential_preLN__ssm_conv_h3__glu_gated_swiglu__prompt'
KNAME = NAME + '_kernel'
MB = 1 << 20
WS0 = int(os.environ.get('WS0', '0')) * MB
WS_UB, WS_Y2, WS_H, WS_HNF, WS_HF, WS_XP, WS_FLG = [WS0 + x * MB for x in (0, 4, 8, 12, 16, 32, 40)]
STAMP_BASE = 64 * MB
OPT = {}
def opt(k, d=0): return OPT.get(k, d)

P_Q, P_K, P_V, P_SH, P_SSMK, P_D, P_X, P_W1, P_W3, P_W2, P_OUT, P_DBG, P_WS = [4 + 2 * i for i in range(13)]
S_W, S_NONCE, S_MASK = 30, 31, 90
S_FLG = 92
F0, F1, F2, F3, F4 = 0, 32768, 65536, 98304, 131072
FLG_SIZE = 262144
LDS_KA = 98304
KA_REG = 13056
NSTAMP = 20
AST = 128

def srd(a, d, p, size, add=0, addreg=None):
    if add or addreg is not None:
        if add:
            a.e(f's_add_u32 s{d}, s{p}, {add:#x}')
            a.e(f's_addc_u32 s{d+1}, s{p+1}, 0')
            if addreg is not None:
                a.e(f's_add_u32 s{d}, s{d}, s{addreg}')
                a.e(f's_addc_u32 s{d+1}, s{d+1}, 0')
        else:
            a.e(f's_add_u32 s{d}, s{p}, s{addreg}')
            a.e(f's_addc_u32 s{d+1}, s{p+1}, 0')
    else:
        a.e(f's_mov_b32 s{d}, s{p}')
        a.e(f's_mov_b32 s{d+1}, s{p+1}')
    if size is not None:
        a.e(f's_mov_b32 s{d+2}, {size:#x}')
    a.e(f's_mov_b32 s{d+3}, 0x20000')

def stamp(a, i):
    if not opt('stamp'): return
    a.e('s_memrealtime s[60:61]')
    if i == 0: a.e('s_memtime s[62:63]')
    cy = {11: 20, 12: 21, 14: 22, 15: 23, 4: 24, 5: 25}.get(i)
    if cy: a.e('s_memtime s[66:67]')
    a.e('s_waitcnt lgkmcnt(0)')
    a.e(f'v_writelane_b32 v1, s60, {i}')
    if cy: a.e(f'v_writelane_b32 v1, s66, {cy}')
    if LIN[0]: LIN[0].lg = []

def stamp_out(a, n):
    if not opt('stamp'): return
    a.e('s_waitcnt vmcnt(0)')
    stamp(a, n - 1)
    a.e('s_memtime s[64:65]')
    a.e('s_waitcnt lgkmcnt(0)')
    srd(a, 32, P_WS, 1 * MB, STAMP_BASE)
    a.e('s_lshl_b32 s84, s2, 2')
    a.e(f's_add_u32 s84, s84, s{S_W}')
    a.e('s_lshl_b32 s84, s84, 7')
    a.e('s_sub_u32 s64, s64, s62')
    a.e('v_writelane_b32 v1, s64, 31')
    a.e('v_mbcnt_lo_u32_b32 v2, -1, 0')
    a.e('v_lshlrev_b32 v2, 2, v2')
    a.e('s_mov_b64 exec, 0xffffffff')
    a.e('buffer_store_dword v1, v2, s[32:35], s84 offen')

LIN = [None]
class Lin:
    def __init__(s, a): s.a = a; s.vm = []; s.lg = []; LIN[0] = s
    def e(s, t): s.a.e(t)
    def v(s, tag, t): s.a.e(t); s.vm.append(tag)
    def l(s, tag, t): s.a.e(t); s.lg.append(tag)
    def _n(s, q, tags, cap):
        idx = [i for i, x in enumerate(q) if x in tags]
        if not idx: return None
        n = len(q) - max(idx) - 1
        return min(n, cap)
    def wait(s, vm=(), lg=(), vm0=False, lg0=False):
        nv = 0 if vm0 else s._n(s.vm, vm, 63)
        nl = 0 if lg0 else s._n(s.lg, lg, 15)
        t = ''
        if nv is not None:
            t += f' vmcnt({nv})'; s.vm = s.vm[len(s.vm) - nv:] if nv else []
        if nl is not None:
            t += f' lgkmcnt({nl})'; s.lg = s.lg[len(s.lg) - nl:] if nl else []
        if t: s.a.e('s_waitcnt' + t)

def unpack(a, dlo, dhi, src):
    a.e(f'v_lshlrev_b32 v{dlo}, 16, v{src}')
    a.e(f'v_and_b32 v{dhi}, s{S_MASK}, v{src}')

def hfl():
    return [' sc1', ' sc0 sc1', ' sc1 nt', ' sc0 sc1 nt', ''][opt('hfl')]

def code_pf(a, lab_from, lab_to, vt, emit=None, n=1):
    _uid[0] += 1
    L = f'L_pc{_uid[0]}'
    a.e('s_getpc_b64 s[78:79]')
    a.e(f'{L}:')
    a.e(f's_lshl_b32 s77, s{S_W}, 13')
    a.e(f's_add_u32 s77, s77, {lab_from}-{L}')
    for i in range(n):
        if i: a.e('s_add_u32 s77, s77, 32768')
        a.e(f'v_lshl_add_u32 v{vt}, v2, 7, s77')
        a.e(f'v_min_u32 v{vt}, {lab_to}-{L}, v{vt}')
        t = f'global_load_dword v{vt+1+i}, v{vt}, s[78:79]'
        if emit: emit(t)
        else: a.e(t)

def hf_base(a, d, mb, q, t):
    if not opt('reuse', 0):
        a.e(f's_lshl_b32 s{d}, s{mb}, 2')
        a.e(f's_add_u32 s{d}, s{d}, s{q}')
        a.e(f's_mul_i32 s{d}, s{d}, 458752')
        a.e(f's_add_u32 s{d}, s{d}, {WS_HF:#x}')
        return
    a.e(f's_lshl_b32 s{d}, s{mb}, 1')
    a.e(f's_add_u32 s{d}, s{d}, s{q}')
    a.e(f's_mul_i32 s{d}, s{d}, 458752')
    a.e(f's_add_u32 s{d}, s{d}, {WS_HF:#x}')
    a.e(f's_lshl_b32 s{t}, s{mb}, 19')
    a.e(f's_cmp_eq_u32 s{q}, 1')
    a.e(f's_cselect_b32 s{d}, s{t}, s{d}')
    a.e(f's_add_u32 s{t}, s{t}, {WS_Y2 - WS_UB:#x}')
    a.e(f's_cmp_eq_u32 s{q}, 0')
    a.e(f's_cselect_b32 s{d}, s{t}, s{d}')

def zero_acc(a, base, n, z):
    if not opt('mz', 1):
        for r in range(n): a.e(f'v_mov_b32 v{base+r}, 0')
        return
    for r in range(4): a.e(f'v_mov_b32 v{z+r}, 0')
    a.e('s_nop 1')
    for r in range(0, n, 16):
        a.e(f'v_mfma_f32_32x32x16_bf16 v[{base+r}:{base+r+15}], v[{z}:{z+3}], v[{z}:{z+3}], 0')

_uid = [0]
def signal(a, soff, vt, waitfn=None, wb=False):
    _uid[0] += 1
    L = f'L_sig{_uid[0]}'
    a.e(f'v_mov_b32 v{vt}, 0')
    a.e(f'v_mov_b32 v{vt+1}, s{S_NONCE}')
    a.e(f's_cmp_eq_u32 s{S_W}, 0')
    if waitfn: waitfn()
    else: a.e('s_waitcnt vmcnt(0)')
    a.e('s_barrier')
    a.e(f's_cbranch_scc0 {L}')
    if wb:
        a.e('buffer_wbl2 sc1')
        a.e('s_waitcnt vmcnt(0)')
    a.e('s_mov_b64 exec, 1')
    a.e(f'buffer_store_dword v{vt+1}, v{vt}, s[{S_FLG}:{S_FLG+3}], s{soff} offen sc1')
    a.e('s_mov_b64 exec, -1')
    a.e(f'{L}:')

def fsh():
    return opt('fs', 32).bit_length() - 1
def f1sh():
    return opt('f1s', 32).bit_length() - 1

def wait_flags(a, soff, voff, vd, n=64, solo=None):
    _uid[0] += 1
    L = f'L_poll{_uid[0]}'
    if solo is None: solo = opt('solo', 1)
    if solo:
        a.e(f's_cmp_lg_u32 s{S_W}, {opt("pw", 0)}')
        a.e(f's_cbranch_scc1 {L}x')
    a.e(f'{L}:')
    if n == 256:
        if f1sh() == 2:
            a.e(f'buffer_load_dwordx4 v[{vd}:{vd+3}], v{voff}, s[{S_FLG}:{S_FLG+3}], s{soff} offen sc1')
        else:
            for i in range(4):
                a.e(f's_add_u32 s89, s{soff}, {i*(64<<f1sh())}')
                a.e(f'buffer_load_dword v{vd+i}, v{voff}, s[{S_FLG}:{S_FLG+3}], s89 offen sc1')
        a.e('s_waitcnt vmcnt(0)')
        a.e(f'v_xor_b32 v{vd}, s{S_NONCE}, v{vd}')
        a.e(f'v_xor_b32 v{vd+1}, s{S_NONCE}, v{vd+1}')
        a.e(f'v_xor_b32 v{vd+2}, s{S_NONCE}, v{vd+2}')
        a.e(f'v_xor_b32 v{vd+3}, s{S_NONCE}, v{vd+3}')
        a.e(f'v_or3_b32 v{vd}, v{vd}, v{vd+1}, v{vd+2}')
        a.e(f'v_or_b32 v{vd}, v{vd}, v{vd+3}')
        a.e(f'v_cmp_ne_u32 vcc, 0, v{vd}')
    else:
        a.e(f'buffer_load_dword v{vd}, v{voff}, s[{S_FLG}:{S_FLG+3}], s{soff} offen sc1')
        a.e('s_waitcnt vmcnt(0)')
        a.e(f'v_cmp_ne_u32 vcc, s{S_NONCE}, v{vd}')
    a.e('s_add_u32 s3, s3, 1')
    a.e(f's_cmp_gt_u32 s3, {opt("spin", 200000)}')
    a.e(f's_cbranch_scc1 {L}x')
    a.e(f's_cbranch_vccz {L}x')
    if opt('sleep'): a.e(f's_sleep {opt("sleep")}')
    a.e(f's_branch {L}')
    a.e(f'{L}x:')
    if solo: a.e('s_barrier')

def wave_sum2(a, va, vb, sa, sb):
    for mod in ('row_shr:1 row_mask:0xf bank_mask:0xf bound_ctrl:0', 'row_shr:2 row_mask:0xf bank_mask:0xf bound_ctrl:0',
                'row_shr:4 row_mask:0xf bank_mask:0xf bound_ctrl:0', 'row_shr:8 row_mask:0xf bank_mask:0xf bound_ctrl:0',
                'row_bcast:15 row_mask:0xa bank_mask:0xf', 'row_bcast:31 row_mask:0xc bank_mask:0xf'):
        a.e('s_nop 0')
        a.e(f'v_add_f32_dpp v{va}, v{va}, v{va} {mod}')
        a.e(f'v_add_f32_dpp v{vb}, v{vb}, v{vb} {mod}')
    a.e(f'v_readlane_b32 s{sa}, v{va}, 63')
    a.e(f'v_readlane_b32 s{sb}, v{vb}, 63')

def ln2(a, X, T, M, R, C, XM):
    def both(f):
        for r in range(2): f(r)
    for q in range(4):
        both(lambda r: a.e(f'v_pk_add_f32 v[{T[r]+2*q}:{T[r]+2*q+1}], v[{X[r]+4*q}:{X[r]+4*q+1}], v[{X[r]+4*q+2}:{X[r]+4*q+3}]'))
    both(lambda r: a.e(f'v_pk_add_f32 v[{T[r]}:{T[r]+1}], v[{T[r]}:{T[r]+1}], v[{T[r]+2}:{T[r]+3}]'))
    both(lambda r: a.e(f'v_pk_add_f32 v[{T[r]+4}:{T[r]+5}], v[{T[r]+4}:{T[r]+5}], v[{T[r]+6}:{T[r]+7}]'))
    both(lambda r: a.e(f'v_pk_add_f32 v[{T[r]}:{T[r]+1}], v[{T[r]}:{T[r]+1}], v[{T[r]+4}:{T[r]+5}]'))
    both(lambda r: a.e(f'v_add_f32 v{T[r]}, v{T[r]}, v{T[r]+1}'))
    wave_sum2(a, T[0], T[1], 56, 57)
    a.e('s_nop 0')
    both(lambda r: a.e(f'v_mul_f32 v{M[r]}, s{56+r}, v{C}'))
    both(lambda r: a.e(f'v_mov_b32 v{M[r]+1}, v{M[r]}'))
    for q in range(8):
        both(lambda r: a.e(f'v_pk_add_f32 v[{T[r]+2*q}:{T[r]+2*q+1}], v[{X[r]+2*q}:{X[r]+2*q+1}], v[{M[r]}:{M[r]+1}] neg_lo:[0,1] neg_hi:[0,1]'))
    both(lambda r: a.e(f'v_pk_mul_f32 v[{R[r]}:{R[r]+1}], v[{T[r]}:{T[r]+1}], v[{T[r]}:{T[r]+1}]'))
    for q in range(1, 8):
        both(lambda r: a.e(f'v_pk_fma_f32 v[{R[r]}:{R[r]+1}], v[{T[r]+2*q}:{T[r]+2*q+1}], v[{T[r]+2*q}:{T[r]+2*q+1}], v[{R[r]}:{R[r]+1}]'))
    both(lambda r: a.e(f'v_add_f32 v{R[r]}, v{R[r]}, v{R[r]+1}'))
    def rbf(v):
        a.e(f'v_cvt_pk_bf16_f32 v{v}, v{v}, v{v}')
        a.e(f'v_and_b32 v{v}, s{S_MASK}, v{v}')
    both(lambda r: rbf(M[r]))
    wave_sum2(a, R[0], R[1], 58, 59)
    both(lambda r: a.e(f'v_mov_b32 v{M[r]+1}, v{M[r]}'))
    both(lambda r: a.e(f'v_mul_f32 v{R[r]}, s{58+r}, v{C}'))
    both(lambda r: rbf(R[r]))
    both(lambda r: a.e(f'v_add_f32 v{R[r]}, 0x3727c5ac, v{R[r]}'))
    both(lambda r: rbf(R[r]))
    both(lambda r: a.e(f'v_sqrt_f32 v{R[r]}, v{R[r]}'))
    for q in range(2):
        both(lambda r: a.e(f'v_pk_add_f32 v[{XM[r]+2*q}:{XM[r]+2*q+1}], v[{X[r]+2*q}:{X[r]+2*q+1}], v[{M[r]}:{M[r]+1}] neg_lo:[0,1] neg_hi:[0,1]'))
    both(lambda r: rbf(R[r]))
    both(lambda r: a.e(f'v_rcp_f32 v{R[r]}, v{R[r]}'))
    for q in range(2, 8):
        both(lambda r: a.e(f'v_pk_add_f32 v[{XM[r]+2*q}:{XM[r]+2*q+1}], v[{X[r]+2*q}:{X[r]+2*q+1}], v[{M[r]}:{M[r]+1}] neg_lo:[0,1] neg_hi:[0,1]'))
    both(lambda r: a.e(f'v_mov_b32 v{R[r]+1}, v{R[r]}'))
    for q in range(8):
        both(lambda r: a.e(f'v_pk_mul_f32 v[{T[r]+2*q}:{T[r]+2*q+1}], v[{XM[r]+2*q}:{XM[r]+2*q+1}], v[{R[r]}:{R[r]+1}]'))

class Sched:
    def __init__(self): self.ev = []; self.marks = {}
    def mark(self, k): self.marks[k] = len(self.ev)
    def add(self, L): self.ev += L
    def younger(self, tag, at):
        last = max(i for i, e in enumerate(self.ev) if e[:2] == tag)
        assert last < self.marks[at], (tag, at)
        return self.marks[at] - last - 1

def gen(a):
    a.raw(f'.globl {KNAME}')
    a.raw('.p2align 8')
    a.raw(f'.type {KNAME},@function')
    a.raw(f'{KNAME}:')
    a.e('s_cmp_ge_u32 s2, 256')
    a.e('s_cbranch_scc1 L_end')
    a.e('s_load_dwordx8 s[4:11], s[0:1], 0')
    a.e('s_load_dwordx8 s[20:27], s[0:1], 64')
    a.e('s_load_dwordx2 s[28:29], s[0:1], 96')
    a.e('s_load_dwordx8 s[12:19], s[0:1], 32')
    a.e('s_memrealtime s[56:57]')
    a.e('v_lshrrev_b32 v1, 6, v0')
    a.e('v_and_b32 v2, 63, v0')
    a.e(f'v_readfirstlane_b32 s{S_W}, v1')
    a.e(f's_mov_b32 s{S_MASK}, 0xffff0000')
    a.e('s_mov_b32 s3, 0')
    a.e('s_bfe_u32 s82, s2, 0x30003')
    a.e('s_and_b32 s83, s2, 7')
    a.e('s_lshr_b32 s84, s2, 6')
    a.e('s_lshl_b32 s84, s84, 3')
    a.e('s_or_b32 s83, s83, s84')
    a.e('v_and_b32 v9, 3, v0')
    a.e('v_bfe_u32 v10, v0, 4, 1')
    a.e('v_lshl_add_u32 v1, v9, 1, v10')
    a.e('v_bfe_u32 v8, v0, 5, 2')
    a.e('v_bfe_u32 v11, v0, 2, 2')
    a.e('v_lshl_add_u32 v8, v8, 2, v11')
    a.e(f's_lshr_b32 s77, s{S_W}, 1')
    a.e('s_lshl_b32 s85, s83, 16')
    a.e('s_lshl_b32 s86, s77, 21')
    a.e('s_add_u32 s85, s85, s86')
    a.e('s_lshl_b32 s86, s82, 8')
    a.e('s_add_u32 s85, s85, s86')
    a.e('v_lshlrev_b32 v3, 13, v1')
    a.e('v_lshl_add_u32 v3, v8, 4, v3')
    a.e('v_add_u32 v3, s85, v3')
    a.e('v_add_u32 v4, 0xffffe800, v3')
    a.e('v_add_u32 v5, 0xfffff800, v3')
    a.e('v_add_u32 v6, 0x1000, v3')
    a.e('s_lshl_b32 s86, s82, 10')
    a.e('v_lshlrev_b32 v7, 6, v8')
    a.e('v_add_u32 v7, s86, v7')
    a.e('s_lshl_b32 s87, s82, 1')
    a.e('s_add_u32 s87, s87, s77')
    a.e('s_lshl_b32 s87, s87, 5')
    a.e('s_add_u32 s87, s87, s83')
    a.e('s_lshl_b32 s88, s87, 13')
    a.e('s_add_u32 s88, s88, 48')
    a.e('v_lshlrev_b32 v160, 9, v8')
    a.e('v_lshl_add_u32 v160, v10, 8, v160')
    a.e('v_lshlrev_b32 v161, 4, v9')
    a.e('v_sub_u32 v160, v160, v161')
    a.e('v_add_u32 v160, s88, v160')
    a.e('s_lshl_b32 s87, s87, 1')
    a.e(f's_and_b32 s86, s{S_W}, 1')
    a.e('s_add_u32 s87, s87, s86')
    a.e(f's_lshl_b32 s87, s87, {fsh()}')
    a.e('v_mov_b32 v162, 0')
    a.e(f's_mul_i32 s88, s{S_W}, {KA_REG}')
    a.e(f's_add_u32 s88, s88, {LDS_KA}')
    a.e('s_and_b32 s101, s2, 7')
    a.e('s_lshl_b32 s101, s101, 7')
    a.e('s_lshr_b32 s99, s2, 3')
    a.e('s_lshl_b32 s99, s99, 2')
    a.e('s_add_u32 s101, s101, s99')
    a.e(f's_add_u32 s101, s101, s{S_W}')
    a.e('s_lshl_b32 s99, s101, 12')
    a.e('s_and_b32 s80, s2, 1')
    a.e('s_lshl_b32 s80, s80, 2')
    a.e('s_bfe_u32 s81, s2, 0x20003')
    a.e('s_add_u32 s80, s80, s81')
    a.e('s_bfe_u32 s81, s2, 0x20001')
    a.e('s_lshl_b32 s81, s81, 3')
    a.e('s_lshr_b32 s91, s2, 5')
    a.e('s_add_u32 s81, s81, s91')
    a.e('s_lshl_b32 s91, s80, 5')
    a.e('s_add_u32 s91, s91, s81')
    a.e('s_lshl_b32 s96, s91, 2')
    a.e(f's_add_u32 s96, s96, s{S_W}')
    a.e('s_lshl_b32 s96, s96, 12')
    a.e('v_lshlrev_b32 v220, 4, v2')
    a.e('s_waitcnt lgkmcnt(0)')
    stamp(a, 0)
    if opt('stamp') and not opt('g2st'): a.e('v_writelane_b32 v1, s56, 30')
    KD, KX, XP = 200, 216, 224
    XPOS = 3; RS = 0
    g1 = G1(a)
    g2 = G2(a)
    KH = opt('kh2', 0)
    def k_loads(kd, kx, back=0):
        if back:
            a.e('s_sub_u32 s99, s99, 8192')
        srd(a, 68, P_SSMK, 4096, 0, 99)
        for j in range(4):
            a.e(f'buffer_load_dwordx4 v[{kd+4*j}:{kd+4*j+3}], v220, s[68:71], 0 offen offset:{1024*j}')
            a.e(f'buffer_load_dword v{kx+j}, v220, s[68:71], 0 offen offset:{1024*j+16}')
    def k_prep(n, kd, kx, sb):
        a.e('v_mov_b32 v196, 0')
        a.e('v_mov_b32 v197, 0')
        a.e('v_lshlrev_b32 v198, 3, v2')
        a.e(f'v_add_u32 v198, s{sb}, v198')
        a.e('ds_write_b64 v198, v[196:197] offset:4096')
        a.e('v_min_u32 v199, 7, v2')
        a.e('v_lshlrev_b32 v199, 2, v199')
        a.e(f'v_add_u32 v199, s{sb}, v199')
        a.e('ds_write_b32 v199, v196 offset:4608')
        a.e(f'v_add_u32 v198, s{sb}, v220')
        for j in range(4):
            a.e(f's_waitcnt vmcnt({n+6-2*j})')
            d = kd + 4 * j
            if j == 0:
                a.e(f'v_readfirstlane_b32 s58, v{d}')
            a.e(f'ds_write_b128 v198, v[{d}:{d+3}] offset:{4608+32+1024*j}')
            for q in range(4):
                hi = d + q + 1 if q < 3 else kx + j
                a.e(f'v_alignbit_b32 v{224+4*j+q}, v{hi}, v{d+q}, 16')
            a.e(f'ds_write_b128 v198, v[{224+4*j}:{224+4*j+3}] offset:{4608+4160+32+1024*j}')
        a.e('s_lshl_b32 s58, s58, 16')
        a.e('v_cmp_le_u32 vcc, 7, v2')
        a.e('v_mov_b32 v197, s58')
        a.e('s_nop 0')
        a.e('v_cndmask_b32 v197, v196, v197, vcc')
        a.e(f'ds_write_b32 v199, v197 offset:{4608+4160}')
    def later_setup():
        g2.front_setup(); g1.setup_dma()
    srd(a, 44, P_DBG, 256)
    a.e('s_cmp_eq_u32 s77, 0')
    a.e('s_cbranch_scc1 L_p0')
    def pub(wv, wait):
        a.e('s_or_b32 s56, s56, 1')
        a.e(f's_xor_b32 s57, s{S_W}, {wv}')
        a.e('s_or_b32 s57, s57, s2')
        a.e('s_cmp_lg_u32 s57, 0')
        a.e('s_cbranch_scc1 L_nonce_skip')
        a.e('v_mov_b32 v163, s56')
        a.e('s_mov_b64 exec, 1')
        a.e('buffer_store_dword v163, v162, s[44:47], 0 offen sc1')
        a.e('s_mov_b64 exec, -1')
        if wait: a.e('s_waitcnt vmcnt(0)')
        a.e('L_nonce_skip:')
    if opt('np', 0): pub(3, False)
    k_loads(KD, KX)
    if KH: k_loads(100, 116, back=1)
    later_setup()
    KR, VR_, WR, WU, KU, AC0 = 8, 36, 52, 68, 100, 164
    def p0_loads():
        srd(a, 32, P_K, 4 * MB)
        srd(a, 36, P_V, 4 * MB)
        srd(a, 40, P_SH, 8192)
        for j in range(4):
            a.e(f'buffer_load_dwordx4 v[{WR+4*j}:{WR+4*j+3}], v7, s[40:43], 0 offen offset:{16*j}')
        rows = [(4, 0), (4, 2048), (5, 0), (3, 0), (3, 2048), (6, 0), (6, 2048)]
        for r, (vr, off) in enumerate(rows):
            a.e(f'buffer_load_dwordx4 v[{KR+4*r}:{KR+4*r+3}], v{vr}, s[32:35], 0 offen offset:{off}')
        for r, (vr, off) in enumerate(rows[3:]):
            a.e(f'buffer_load_dwordx4 v[{VR_+4*r}:{VR_+4*r+3}], v{vr}, s[36:39], 0 offen offset:{off}')
    HD = opt('hd', 2)
    if HD < 2:
        assert not KH
        if HD == 1: a.e('s_waitcnt vmcnt(6)')
        p0_loads()
        k_prep(15, KD, KX, 88)
        a.e('s_branch L_p0b')
    else:
        k_prep(8 if KH else 0, KD, KX, 88)
        if KH:
            a.e(f's_sub_u32 s59, s88, {2*KA_REG}')
            k_prep(0, 100, 116, 59)
    a.e('L_p0:')
    p0_loads()
    a.e('L_p0b:')
    srd(a, 48, P_WS, 4 * MB, WS_UB)
    if not opt('np', 0): pub(0, True)
    srd(a, S_FLG, P_WS, FLG_SIZE, WS_FLG)
    a.e('s_waitcnt vmcnt(11)')
    for e in range(8):
        unpack(a, WU + 0 * 8 + e, WU + 1 * 8 + e, WR + 2 * e)
        unpack(a, WU + 2 * 8 + e, WU + 3 * 8 + e, WR + 2 * e + 1)
    for r in range(7):
        a.e(f's_waitcnt vmcnt({10-r})')
        for q in range(4):
            unpack(a, KU + 8 * r + 2 * q, KU + 8 * r + 2 * q + 1, KR + 4 * r + q)
        if r >= 3:
            i = r - 3
            for j in range(4):
                for q in range(4):
                    d = AC0 + 8 * i + 2 * q
                    k = KU + 8 * (i + 3 - j) + 2 * q
                    w = WU + 8 * j + 2 * q
                    if j == 0:
                        a.e(f'v_pk_mul_f32 v[{d}:{d+1}], v[{k}:{k+1}], v[{w}:{w+1}]')
                    else:
                        a.e(f'v_pk_fma_f32 v[{d}:{d+1}], v[{k}:{k+1}], v[{w}:{w+1}], v[{d}:{d+1}]')
    VU = 8
    for i in range(4):
        a.e(f's_waitcnt vmcnt({3-i})')
        if i == 3:
            a.e('buffer_load_dword v163, v162, s[44:47], 0 offen sc1')
        for q in range(4):
            unpack(a, VU + 2 * q, VU + 2 * q + 1, VR_ + 4 * i + q)
        for q in range(4):
            d = AC0 + 8 * i + 2 * q
            a.e(f'v_pk_mul_f32 v[{d}:{d+1}], v[{d}:{d+1}], v[{VU+2*q}:{VU+2*q+1}]')
    O = 52
    for e in range(4):
        q = O + 4 * e
        a.e(f'v_cvt_pk_bf16_f32 v{q}, v{AC0+28+e}, v{AC0+20+e}')
        a.e(f'v_cvt_pk_bf16_f32 v{q+1}, v{AC0+12+e}, v{AC0+4+e}')
        a.e(f'v_cvt_pk_bf16_f32 v{q+2}, v{AC0+24+e}, v{AC0+16+e}')
        a.e(f'v_cvt_pk_bf16_f32 v{q+3}, v{AC0+8+e}, v{AC0+e}')
    for e in range(4):
        q = O + 4 * e
        if e == 3: a.e('s_nop 0')
        a.e(f'v_permlane16_swap_b32 v{q+2}, v{q}')
        a.e(f'v_permlane16_swap_b32 v{q+3}, v{q+1}')
        a.e(f'buffer_store_dwordx4 v[{q}:{q+3}], v160, s[48:51], 0 offen offset:{64*e} sc1')
    stamp(a, 1)
    a.e('s_waitcnt vmcnt(4)')
    a.e('L_nonce:')
    a.e(f'v_readfirstlane_b32 s{S_NONCE}, v163')
    a.e('s_nop 0')
    a.e(f's_cmp_lg_u32 s{S_NONCE}, 0')
    a.e('s_cbranch_scc1 L_nonce_ok')
    a.e('s_add_u32 s3, s3, 1')
    a.e(f's_cmp_gt_u32 s3, {opt("spin", 200000)}')
    a.e('s_cbranch_scc1 L_nonce_ok')
    a.e('buffer_load_dword v163, v162, s[44:47], 0 offen sc1')
    a.e('s_waitcnt vmcnt(0)')
    a.e('s_branch L_nonce')
    a.e('L_nonce_ok:')
    a.e(f'v_mov_b32 v163, s{S_NONCE}')
    def flag0(n):
        a.e(f's_waitcnt vmcnt({n})')
        a.e('s_mov_b64 exec, 1')
        a.e(f'buffer_store_dword v163, v162, s[{S_FLG}:{S_FLG+3}], s87 offen sc1')
        a.e('s_mov_b64 exec, -1')
    a.e('s_cmp_eq_u32 s77, 0')
    a.e('s_cbranch_scc0 L_p0hi')
    if KH:
        code_pf(a, 'L_p0hi', 'L_g1epi', 164)
        flag0(1)
        later_setup()
    else:
        if opt('kl', 1):
            code_pf(a, 'L_p0hi', 'L_g1epi', 164)
            flag0(1)
            k_loads(KD, KX)
            later_setup()
            k_prep(0, KD, KX, 88)
        else:
            k_loads(KD, KX)
            code_pf(a, 'L_p0hi', 'L_g1epi', 164)
            flag0(9)
            later_setup()
            k_prep(2, KD, KX, 88)
        a.e('s_branch L_p0j')
    a.e('L_p0hi:')
    if not KH:
        flag0(0)
        a.e('L_p0j:')
    stamp(a, 2)
    a.e('s_and_b32 s82, s2, 7')
    a.e('s_lshr_b32 s83, s2, 3')
    a.e('s_lshl_b32 s84, s83, 2')
    a.e(f's_add_u32 s84, s84, s{S_W}')
    a.e('s_mov_b32 s85, s101')
    a.e('s_lshl_b32 s86, s82, 5')
    a.e('s_add_u32 s86, s86, s83')
    a.e('s_lshr_b32 s57, s85, 1')
    a.e('s_lshl_b32 s57, s57, 2')
    a.e(f's_load_dword s89, s[{P_D}:{P_D+1}], s57')
    a.e('v_lshlrev_b32 v4, 4, v2')
    a.e('v_lshrrev_b32 v3, 2, v2')
    a.e('v_sub_u32 v3, 15, v3')
    a.e('v_lshlrev_b32 v3, 13, v3')
    a.e('v_and_b32 v5, 3, v2')
    a.e('v_lshl_add_u32 v3, v5, 4, v3')
    a.e('s_lshl_b32 s56, s84, 6')
    a.e('v_add_u32 v3, s56, v3')
    a.e(f'v_lshlrev_b32 v34, {fsh()}, v2')
    a.e('v_and_b32 v5, 15, v2')
    a.e('v_lshrrev_b32 v6, 4, v2')
    a.e('v_add_u32 v31, 1, v5')
    a.e('v_and_b32 v32, 1, v31')
    a.e('v_sub_u32 v31, v31, v32')
    a.e('v_lshl_add_u32 v31, v6, 3, v31')
    a.e('v_lshlrev_b32 v31, 1, v31')
    a.e('v_mul_u32_u24 v32, 4160, v32')
    a.e('v_add3_u32 v31, v31, v32, s88')
    VA, VB, ACC = 36, 40, 44
    for j in range(4):
        a.e(f'v_add_u32 v{VA+j}, {4608+1024*j}, v31')
    a.e('v_lshlrev_b32 v32, 5, v5')
    a.e('v_lshlrev_b32 v33, 4, v6')
    a.e('v_sub_u32 v33, v33, v32')
    a.e('v_add_u32 v33, s88, v33')
    a.e(f'v_add_u32 v{VB}, 480, v33')
    a.e('v_add_u32 v7, s88, v4')
    zero_acc(a, ACC, 32, 92)
    FA = [96, 112]; FB = [128, 144]
    def areg(r, mq): return (f'a', 16 * r + 4 * mq) if mq < 4 else ('v', FA[r & 1] + 4 * (mq - 4))
    def rdA(r, mq):
        o = 128 * (mq & 1) + 16 * r
        t_, f = areg(r, mq)
        return [f'ds_read2_b32 {t_}[{f}:{f+1}], v{VA+(mq>>1)} offset0:{o} offset1:{o+1}', f'ds_read2_b32 {t_}[{f+2}:{f+3}], v{VA+(mq>>1)} offset0:{o+2} offset1:{o+3}']
    def breg(r, d): return (FB[r & 1] if d < 4 else 160 + 16 * (r % 3)) + 4 * (d & 3)
    def rdB(r, d):
        f = breg(r, d)
        return f'ds_read_b128 v[{f}:{f+3}], v{VB} offset:{512*(7-d)+64*r}'
    a.e('s_waitcnt lgkmcnt(0)')
    a.e('s_bitcmp1_b32 s85, 0')
    a.e('s_cselect_b32 s56, 0, 16')
    a.e('s_lshl_b32 s89, s89, s56')
    a.e('s_and_b32 s89, s89, 0xffff0000')
    a.e(f's_lshl_b32 s99, s82, {7+fsh()}')
    if KH:
        wait_flags(a, 99, 34, 35, solo=0)
        a.e(f's_cmp_lt_u32 s{S_W}, 2')
        a.e('s_cbranch_scc1 L_p0f')
        flag0(0)
        a.e('L_p0f:')
    else:
        for mq in range(8):
            for l in rdA(0, mq): a.e(l)
        wait_flags(a, 99, 34, 35, solo=0)
    stamp(a, 3)
    a.e('s_lshl_b32 s101, s82, 19')
    UR = 8
    def u_loads(hf, E):
        for i in range(2):
            a.e(f's_add_u32 s57, s101, {hf*262144 + (16-16*i)*8192:#x}')
            E(f'buffer_load_dwordx4 v[{UR+4*i}:{UR+4*i+3}], v3, s[48:51], s57 offen sc1')
    u_loads(0, a.e)
    if KH:
        a.e('s_barrier')
        for mq in range(8):
            for l in rdA(0, mq): a.e(l)
    wfr = opt('la', 2) / 2
    a.e(f's_mul_i32 s56, s2, {int(7168*wfr)}')
    a.e(f's_mul_i32 s57, s{S_W}, {int(1792*wfr)}')
    a.e('s_add_u32 s56, s56, s57')
    a.e('v_lshlrev_b32 v41, 7, v2')
    LK = Lin(a)
    wpl = []
    for n_, P_ in enumerate((P_W1, P_W3)):
        sd = (40, 32)[n_]
        srd(a, sd, P_, int(1792 * wfr), 0, 56)
        wpl.append(lambda sd=sd: LK.v('pf', f'buffer_load_dword v42, v41, s[{sd}:{sd+3}], 0 offen'))
    srd(a, 36, P_Q, 4 * MB)
    a.e(f's_add_u32 s99, s99, {64 << fsh()}')
    for i in range(2):
        a.e(f's_waitcnt vmcnt({1-i})')
        a.e(f'ds_write_b128 v7, v[{UR+4*i}:{UR+4*i+3}] offset:{2048+1024*i}')
    a.e('s_waitcnt lgkmcnt(0)')
    for d in range(4): a.e(rdB(0, d))
    stamp(a, 4)
    g1e = [[(lambda l=l: a.e(l)) for l in grp] for grp in g1.early_dma()]
    def grp(fs): return lambda: [f() for f in fs]
    g1e = [grp(x) for x in g1e]
    p01 = [(lambda f=f: (f(), LK.vm.append('w2') if 'buffer' in a.lines[-1] or 'buffer' in a.lines[-2] and 's72' in a.lines[-1] and 'add' in a.lines[-1] else None)) for f in g2.fD([(0, 2), (1, 3)])]
    NF0 = 4
    xl = [(lambda r_=r_, hh=hh: LK.v('x', f'buffer_load_dwordx4 v[{XP+8*r_+4*hh}:{XP+8*r_+4*hh+3}], v4, s[36:39], s96 offen offset:{2048*r_+1024*hh}')) for r_ in range(2) for hh in range(2)]
    RP = opt('rp', 4)
    def chk():
        LK.wait(vm=('fb',))
        a.e(f'v_cmp_ne_u32 vcc, s{S_NONCE}, v35')
        a.e('s_cbranch_vccz L_f0b')
        wait_flags(a, 99, 34, 35, solo=0)
        a.e('L_f0b:')
        u_loads(1, lambda t: LK.v('u', t))
    def uw(i):
        def f():
            if i == 0: LK.wait(vm=('u',))
            LK.l('uw', f'ds_write_b128 v7, v[{UR+4*i}:{UR+4*i+3}] offset:{1024*i}')
        return f
    f1 = {r: [] for r in range(8)}
    RL = opt('rl', 1)
    f1[RL] = f1[RL] + [lambda: LK.v('fb', f'buffer_load_dword v35, v34, s[{S_FLG}:{S_FLG+3}], s99 offen sc1')]
    f1[RP] = f1[RP] + xl
    f1[RP + 1] = f1[RP + 1] + wpl[:1]
    f2 = {r: [] for r in range(8)}
    f2[0] = wpl[1:]
    f2[2] = p01[:3]; f2[3] = p01[3:5]; f2[4] = p01[5:8]; f2[5] = p01[8:]
    UE = 8
    LK.lg = [('B', 0, d) for d in range(4)]
    def RA(r, mq): return [(lambda t=t: LK.l(('A', r, mq), t)) for t in rdA(r, mq)]
    def RB(r, d): return lambda: LK.l(('B', r, d), rdB(r, d))
    for ph in range(2):
        for r in range(8):
            if ph == 0:
                ms = [(mq, d) for mq in range(8) for d in range(4) if mq + d < 8]
                nxt = []
                if r < 7:
                    for x in range(8):
                        if x < 4: nxt.append(RB(r + 1, x))
                        nxt += RA(r + 1, x)
                fl = list(f1[r])
            else:
                ms = [(mq, d) for d in range(4, 8) for mq in range(4) if mq + d < 8]
                nxt = [RB(r + 2, d) for d in range(4, 8)] if r < 6 else []
                if r == 5:
                    a.e('v_lshlrev_b32 v32, 5, v5')
                    a.e('v_lshl_add_u32 v32, v6, 3, v32')
                    a.e(f'v_sub_u32 v34, {4088-3584}, v32')
                    a.e('v_add_u32 v34, s88, v34')
                    a.e('v_add_u32 v35, s88, v32')
                if r >= 6:
                    nxt = [(lambda c=c: LK.l('ue', f'ds_read_b64 v[{UE+2*c}:{UE+2*c+1}], v34 offset:{512*(7-c)}')) for c in range(4 * (r - 6), 4 * (r - 5))]
                fl = list(f2[r])
            if ph == 0 and r == RP: chk()
            per = max(1, -(-len(fl) // len(ms)))
            evr = max(1, len(ms) // max(1, len(fl)) // 2)
            for k, (mq, d) in enumerate(ms):
                c = mq + d
                t_, fa = areg(r, mq); fb = breg(r, d)
                LK.wait(lg=(('A', r, mq), ('B', r, d)))
                a.e(f'v_mfma_f32_16x16x32_bf16 v[{ACC+4*c}:{ACC+4*c+3}], {t_}[{fa}:{fa+3}], v[{fb}:{fb+3}], v[{ACC+4*c}:{ACC+4*c+3}]')
                if k < len(nxt): nxt[k]()
                if k % evr == evr - 1:
                    for _ in range(per):
                        if fl: fl.pop(0)()
                if ph == 0 and r == 7:
                    if k == opt('uk', 10): uw(0)()
                    if k == opt('uk', 10) + 1: uw(1)()
                    if opt('uk', 10) + 2 <= k < opt('uk', 10) + 10:
                        q = k - opt('uk', 10) - 2
                        RB(q >> 2, 4 + (q & 3))()
            assert not fl, (ph, r, len(fl))
    nk01 = 8; wpl = []
    xwait = len(LK.vm) - max(i for i, t in enumerate(LK.vm) if t == 'x') - 1
    a.e('s_waitcnt lgkmcnt(0)')
    stamp(a, 5)
    a.e('L_kbcode:')
    X = 96
    for c in range(8):
        unpack(a, X + 4 * c + 3, X + 4 * c + 2, UE + 2 * c)
        unpack(a, X + 4 * c + 1, X + 4 * c + 0, UE + 2 * c + 1)
    for c in range(8):
        for r in range(4):
            a.e(f'v_fma_f32 v{X+4*c+r}, v{X+4*c+r}, s89, v{ACC+4*c+r}')
        a.e(f'v_cvt_pk_bf16_f32 v{UE+2*c}, v{X+4*c}, v{X+4*c+1}')
        a.e(f'v_cvt_pk_bf16_f32 v{UE+2*c+1}, v{X+4*c+2}, v{X+4*c+3}')
        a.e(f'ds_write_b64 v35, v[{UE+2*c}:{UE+2*c+1}] offset:{4608+512*c}')
    a.flush_inject()
    LIN[0] = None
    a.e('v_lshlrev_b32 v32, 2, v0')
    a.e(f'v_add_u32 v32, {LDS_KA}, v32')
    YL_ = opt('yl', 1)
    a.e(f'v_lshrrev_b32 v33, {2+YL_}, v0')
    a.e(f'v_lshlrev_b32 v33, {14+YL_}, v33')
    a.e(f'v_and_b32 v34, {7 if YL_ else 3}, v0')
    a.e('v_lshl_add_u32 v33, v34, 4, v33')
    a.e(f's_lshl_b32 s56, s86, {6+YL_}')
    a.e('s_mov_b32 s57, 0x05040100')
    a.e('s_mov_b32 s58, 0x07060302')
    srd(a, 36, P_WS, 4 * MB, WS_Y2)
    a.e(f's_cmp_ge_u32 s{S_W}, 2')
    a.e('s_waitcnt lgkmcnt(0)')
    a.e('s_barrier')
    if RS: a.e('s_cbranch_scc1 L_y2skip')
    Y = 96; O = 128
    NP = 8 if RS else 4
    LY = Lin(a)
    def yrd(P):
        for ch in range(4):
            LY.l(P, f'ds_read_b32 v{Y+4*P+ch}, v32 offset:{ch*KA_REG+4608+4096//NP*P}')
    for P in range(4): yrd(P)
    for P in range(NP):
        LY.wait(lg=(P,))
        if P + 4 < NP: yrd(P + 4)
        y = Y + 4 * P; o = O + 4 * P
        a.e(f'v_perm_b32 v{o}, v{y+1}, v{y}, s57')
        a.e(f'v_perm_b32 v{o+1}, v{y+3}, v{y+2}, s57')
        a.e(f'v_perm_b32 v{o+2}, v{y+1}, v{y}, s58')
        a.e(f'v_perm_b32 v{o+3}, v{y+3}, v{y+2}, s58')
        a.e(f'buffer_store_dwordx4 v[{o}:{o+3}], v33, s[36:39], s56 offen sc1')
        if P < NP - 1:
            a.e(f's_add_u32 s56, s56, {256//NP*16384:#x}')
    LIN[0] = None
    if RS: a.e('L_y2skip:')
    stamp(a, 6)
    XU = [8, 24]; TT = [40, 56]; MM = [72, 74]; RR = [76, 78]; C = 80; YU = [100, 116]; XM = [140, 156]; SS = [172, 174]
    a.e(f's_waitcnt vmcnt({xwait + 4})')
    F45 = opt('f45', 0)
    if F45: a.inject(g2.fD([(2, 0), (3, 1)]), 3)
    for r in range(2):
        for q in range(8):
            unpack(a, XU[r] + 2 * q, XU[r] + 2 * q + 1, XP + 8 * r + q)
    a.flush_inject()
    a.e(f'v_mov_b32 v{C}, 0x3a800000')
    a.e(f's_lshl_b32 s87, s2, {f1sh()}')
    a.e(f's_add_u32 s87, s87, {F1}')
    def w1():
        if RS:
            a.e(f's_bitcmp1_b32 s{S_W}, 1')
            a.e('s_cbranch_scc1 L_y2nw')
            a.e('s_waitcnt vmcnt(0)')
            a.e('L_y2nw:')
            a.e(f's_cmp_eq_u32 s{S_W}, 0')
        else:
            a.e(f's_waitcnt vmcnt({8 if F45 else 0})')
    signal(a, 87, 82, waitfn=w1)
    if RS:
        a.inject(g1e[:10] + p01 + g2.fD([(2, 0), (3, 1)]), 4)
    else:
        if NF0 >= 2: g2.fM([(0, 2), (1, 3)])
        a.inject(g1e[:10] + ([] if F45 or NF0 < 4 else g2.fD([(2, 0), (3, 1)])), 12 if F45 or NF0 < 4 else 6)
    ln2(a, XU, TT, MM, RR, C, XM)
    a.flush_inject()
    a.e('v_lshlrev_b32 v5, 7, v2')
    a.e(f'v_lshlrev_b32 v139, {7+YL_}, v2')
    a.e(f'v_add_u32 v6, {0x2000 << YL_:#x}, v139')
    if YL_:
        a.e('s_lshr_b32 s82, s91, 1')
        a.e('s_lshl_b32 s82, s82, 15')
        a.e('s_and_b32 s83, s91, 1')
        a.e('s_lshl_b32 s83, s83, 6')
        a.e('s_add_u32 s82, s82, s83')
    else:
        a.e('s_lshl_b32 s82, s91, 14')
    if opt('yd', 1):
        assert YL_
        a.e(f's_lshl_b32 s83, s{S_W}, 13')
        a.e('s_add_u32 s82, s82, s83')
        a.e('v_lshrrev_b32 v176, 4, v2')
        a.e('v_xor_b32 v176, v176, v2')
        a.e('v_and_b32 v176, 3, v176')
        a.e('v_lshlrev_b32 v176, 4, v176')
        a.e('v_lshrrev_b32 v177, 2, v2')
        a.e('v_lshl_add_u32 v176, v177, 7, v176')
        for i in range(1, 4):
            a.e(f'v_add_u32 v{176+i}, {1024*i}, v176')
        a.e(f's_lshl_b32 s83, s{S_W}, 12')
        a.e(f's_add_u32 m0, s83, {LDS_KA + 16384}')
        a.e('v_bfe_u32 v180, v2, 1, 2')
        a.e(f'v_xor_b32 v180, s{S_W}, v180')
        a.e('v_lshl_add_u32 v180, v180, 4, v5')
        a.e(f'v_add_u32 v180, {LDS_KA + 16384}, v180')
    else:
        a.e(f's_lshl_b32 s83, s{S_W}, 4')
        a.e('s_add_u32 s82, s82, s83')
    srd(a, 40, P_WS, 4 * MB, WS_H)
    srd(a, 44, P_WS, 4 * MB, WS_HNF)
    a.e('v_and_b32 v7, 7, v2')
    a.e(f's_lshl_b32 s83, s{S_W}, 1')
    a.e('v_xor_b32 v132, s83, v7')
    a.e('v_lshl_add_u32 v132, v132, 4, v5')
    a.e(f'v_add_u32 v132, {LDS_KA}, v132')
    a.e('v_xor_b32 v133, 16, v132')
    a.e('v_lshrrev_b32 v134, 3, v2')
    a.e('v_xor_b32 v135, v134, v7')
    a.e('v_lshlrev_b32 v135, 4, v135')
    a.e('v_lshl_add_u32 v135, v134, 7, v135')
    a.e(f's_lshl_b32 s83, s{S_W}, 12')
    a.e(f's_add_u32 s83, s83, {LDS_KA}')
    a.e('v_add_u32 v135, s83, v135')
    HC = opt('hc', 0)
    if HC:
        a.e('v_lshlrev_b32 v136, 4, v2')
        a.e('s_lshl_b32 s84, s91, 14')
        a.e(f's_lshl_b32 s85, s{S_W}, 12')
        a.e('s_add_u32 s84, s84, s85')
    else:
        a.e('v_lshrrev_b32 v136, 5, v2')
        a.e('v_lshlrev_b32 v136, 12, v136')
        a.e('v_bfe_u32 v137, v2, 3, 2')
        a.e('v_lshl_add_u32 v136, v137, 8, v136')
        a.e('v_lshl_add_u32 v136, v7, 4, v136')
        a.e('s_lshr_b32 s84, s91, 3')
        a.e('s_lshl_b32 s84, s84, 17')
        a.e('s_bfe_u32 s85, s91, 0x20001')
        a.e('s_lshl_b32 s85, s85, 10')
        a.e('s_add_u32 s84, s84, s85')
        a.e('s_and_b32 s85, s91, 1')
        a.e('s_lshl_b32 s85, s85, 7')
        a.e('s_add_u32 s84, s84, s85')
        a.e(f's_lshl_b32 s85, s{S_W}, 15')
        a.e('s_add_u32 s84, s84, s85')
    a.e(f's_mov_b32 s85, {F1}')
    a.e('s_waitcnt lgkmcnt(0)')
    stamp(a, 7)
    a.e(f'v_lshlrev_b32 v138, {4 if f1sh() == 2 else f1sh()}, v2')
    wait_flags(a, 85, 138, 128, n=256)
    stamp(a, 8)
    YL = 84
    YD = opt('yd', 1)
    if YD:
        for i in range(4):
            a.e(f'buffer_load_dwordx4 v{176+i}, s[36:39], s82 offen offset:{1024*i} sc1 lds')
    else:
        a.e(f'buffer_load_dwordx4 v[{YL}:{YL+3}], v139, s[36:39], s82 offen sc1')
        a.e(f'buffer_load_dwordx4 v[{YL+4}:{YL+7}], v139, s[36:39], s82 offen offset:{64 << YL_} sc1')
        a.e(f'buffer_load_dwordx4 v[{YL+8}:{YL+11}], v6, s[36:39], s82 offen sc1')
        a.e(f'buffer_load_dwordx4 v[{YL+12}:{YL+15}], v6, s[36:39], s82 offen offset:{64 << YL_} sc1')
    a.e('s_waitcnt vmcnt(4)')
    if NF0 == 4: g2.fM(([(0, 2), (1, 3)] if RS else []) + [(2, 0), (3, 1)])
    if YD:
        a.e('s_waitcnt vmcnt(0)')
        a.e('s_barrier')
        a.e(f'ds_read_b128 v[{YL}:{YL+3}], v180')
        a.e(f'ds_read_b128 v[{YL+4}:{YL+7}], v180 offset:64')
        a.e(f'ds_read_b128 v[{YL+8}:{YL+11}], v180 offset:8192')
        a.e(f'ds_read_b128 v[{YL+12}:{YL+15}], v180 offset:8256')
    for cgi in range(4):
        a.e(f's_waitcnt {"lgkm" if YD else "vm"}cnt({3-cgi})')
        for r in range(2):
            for e in range(2):
                u = YU[r] + 4 * cgi + 2 * e
                unpack(a, u, u + 1, YL + 4 * cgi + 2 * r + e)
        for r in range(2):
            for e in range(2):
                u = YU[r] + 4 * cgi + 2 * e; x = XM[r] + 4 * cgi + 2 * e; t = TT[r] + 4 * cgi + 2 * e
                a.e(f'v_pk_fma_f32 v[{x}:{x+1}], v[{t}:{t+1}], v[{u}:{u+1}], v[{x}:{x+1}]')
        for r in range(2):
            for e in range(2):
                x = XM[r] + 4 * cgi + 2 * e
                if cgi == 0 and e == 0:
                    a.e(f'v_pk_mul_f32 v[{RR[r]}:{RR[r]+1}], v[{x}:{x+1}], v[{x}:{x+1}]')
                else:
                    a.e(f'v_pk_fma_f32 v[{RR[r]}:{RR[r]+1}], v[{x}:{x+1}], v[{x}:{x+1}], v[{RR[r]}:{RR[r]+1}]')
            x = XM[r] + 4 * cgi
            if cgi == 0: a.e(f'v_pk_add_f32 v[{SS[r]}:{SS[r]+1}], v[{x}:{x+1}], v[{x+2}:{x+3}]')
            else:
                a.e(f'v_pk_add_f32 v[{SS[r]}:{SS[r]+1}], v[{x}:{x+1}], v[{SS[r]}:{SS[r]+1}]')
                a.e(f'v_pk_add_f32 v[{SS[r]}:{SS[r]+1}], v[{x+2}:{x+3}], v[{SS[r]}:{SS[r]+1}]')
    if opt('kbst'): stamp(a, 16)
    for r in range(2):
        a.e(f'v_add_f32 v{SS[r]}, v{SS[r]}, v{SS[r]+1}')
        a.e(f'v_add_f32 v{RR[r]}, v{RR[r]}, v{RR[r]+1}')
    fl_ = []
    for r in range(2):
        for q in range(8):
            u = YU[r] + 2 * q; x = XU[r] + 2 * q; t = TT[r] + 2 * q
            fl_.append(f'v_pk_fma_f32 v[{x}:{x+1}], v[{t}:{t+1}], v[{u}:{u+1}], v[{x}:{x+1}]')
    for r in range(2):
        for q in range(8):
            fl_.append(f'v_cvt_pk_bf16_f32 v{XP+8*r+q}, v{XU[r]+2*q}, v{XU[r]+2*q+1}')
    for mod in ('row_shr:1 row_mask:0xf bank_mask:0xf bound_ctrl:0', 'row_shr:2 row_mask:0xf bank_mask:0xf bound_ctrl:0',
                'row_shr:4 row_mask:0xf bank_mask:0xf bound_ctrl:0', 'row_shr:8 row_mask:0xf bank_mask:0xf bound_ctrl:0',
                'row_bcast:15 row_mask:0xa bank_mask:0xf', 'row_bcast:31 row_mask:0xc bank_mask:0xf'):
        for v in (SS[0], SS[1], RR[0], RR[1]):
            a.e(f'v_add_f32_dpp v{v}, v{v}, v{v} {mod}')
    for i, v in enumerate((SS[0], SS[1], RR[0], RR[1])):
        a.e(f'v_readlane_b32 s{56+i}, v{v}, 63')
    def both(f):
        for r in range(2): f(r)
        if fl_: a.e(fl_.pop(0))
        if fl_: a.e(fl_.pop(0))
    def rbf(v):
        a.e(f'v_cvt_pk_bf16_f32 v{v}, v{v}, v{v}')
        a.e(f'v_and_b32 v{v}, s{S_MASK}, v{v}')
    both(lambda r: a.e(f'v_mul_f32 v{SS[r]}, s{56+r}, v{C}'))
    both(lambda r: a.e(f'v_mul_f32 v{RR[r]}, s{58+r}, v{C}'))
    both(lambda r: a.e(f'v_fma_f32 v{RR[r]}, -v{SS[r]}, v{SS[r]}, v{RR[r]}'))
    both(lambda r: a.e(f'v_max_f32 v{RR[r]}, 0, v{RR[r]}'))
    both(lambda r: rbf(RR[r]))
    both(lambda r: a.e(f'v_add_f32 v{RR[r]}, 0x3727c5ac, v{RR[r]}'))
    both(lambda r: rbf(RR[r]))
    both(lambda r: a.e(f'v_sqrt_f32 v{RR[r]}, v{RR[r]}'))
    both(lambda r: a.e(f'v_add_f32 v{SS[r]}, v{SS[r]}, v{MM[r]}'))
    both(lambda r: rbf(RR[r]))
    both(lambda r: a.e(f'v_rcp_f32 v{RR[r]}, v{RR[r]}'))
    both(lambda r: rbf(SS[r]))
    if opt('hs', 0): both(lambda r: a.e(f'v_mul_f32 v{RR[r]}, 0x3fb8aa3b, v{RR[r]}'))
    both(lambda r: a.e(f'v_sub_f32 v{SS[r]}, v{MM[r]}, v{SS[r]}'))
    both(lambda r: a.e(f'v_mul_f32 v{SS[r]}, v{SS[r]}, v{RR[r]}'))
    nh = len(fl_)
    for q in range(8):
        for r in range(2):
            x = XM[r] + 2 * q
            a.e(f'v_pk_fma_f32 v[{TT[r]+2*q}:{TT[r]+2*q+1}], v[{x}:{x+1}], v[{RR[r]}:{RR[r]+1}], v[{SS[r]}:{SS[r]+1}] op_sel_hi:[1,0,0]')
    for r in range(2):
        for q in range(8):
            a.e(f'v_cvt_pk_bf16_f32 v{YL+8*r+q}, v{TT[r]+2*q}, v{TT[r]+2*q+1}')
        for hh in range(2):
            a.e(f'ds_write_b128 v{132+r}, v[{YL+8*r+4*hh}:{YL+8*r+4*hh+3}] offset:{8192*hh}')
    for t_ in fl_: a.e(t_)
    a.e('s_waitcnt lgkmcnt(0)')
    a.e('s_barrier')
    for i in range(4):
        a.e(f'ds_read_b128 v[{100+4*i}:{103+4*i}], v135 offset:{1024*i}')
    for i in range(4):
        a.e(f's_waitcnt lgkmcnt({3-i})')
        if HC:
            a.e(f'buffer_store_dwordx4 v[{100+4*i}:{103+4*i}], v136, s[44:47], s84 offen offset:{1024*i} sc1')
        else:
            a.e(f'buffer_store_dwordx4 v[{100+4*i}:{103+4*i}], v136, s[44:47], s84 offen sc1')
            if i < 3: a.e('s_add_u32 s84, s84, 8192')
    stamp(a, 9)
    a.e(f's_lshl_b32 s87, s91, {fsh()}')
    a.e(f's_add_u32 s87, s87, {F2}')
    g2.front_save()
    if opt('s2e', 0):
        assert not F45
        signal(a, 87, 4)
        g1.pre_setup([])
    else:
        g1.pre_setup(g2.fD([(4, 0), (5, 1)], dv=28) if F45 else [])
        signal(a, 87, 4, waitfn=lambda: a.e(f's_waitcnt vmcnt({8 if F45 else 0})'))
    g2.NF = 8 if F45 else NF0 + 2
    def mv45():
        if not F45: return
        a.e('v_add_u32 v4, s73, v7')
        a.e('v_xor_b32 v5, 32, v4')
        a.e('s_waitcnt vmcnt(8)')
        g2.fM([(4, 0), (5, 1)], base=4)
    g1.hook = mv45
    g1.main()
    g1.epilogue(g2)
    g2.main()
    a.e(f's_or_b32 s57, s2, s{S_W}')
    a.e('s_cmp_lg_u32 s57, 0')
    a.e('s_cbranch_scc1 L_clean_skip')
    srd(a, 32, P_DBG, 256)
    a.e('v_mov_b32 v20, 0')
    a.e('s_mov_b64 exec, 1')
    a.e('buffer_store_dword v20, v20, s[32:35], 0 offen sc1')
    a.e('s_mov_b64 exec, -1')
    a.e('L_clean_skip:')
    stamp_out(a, NSTAMP)
    a.e('L_end:')
    a.e('s_endpgm')

G1_STG = 32768
class G1:
    TM, NW, DPW, ND = 4, 4, 8, 4
    ACC, WF, TF, DV, VT, VR, VL = 32, 0, 28, 8, 16, 17, 18
    DVE = 240
    def __init__(s, a): s.a = a
    def setup_dma(s):
        a = s.a
        a.e('s_and_b32 s56, s81, 1')
        a.e('s_lshl_b32 s56, s56, 1')
        a.e('s_movk_i32 s57, 4682')
        a.e('s_movk_i32 s58, 7168')
        a.e('v_mov_b32 v76, 0x80000000')
        a.e('v_subrev_u32 v77, 8, v2')
        for src, dst in ((2, 78), (77, 79)):
            a.e(f'v_cmp_gt_u32 vcc, 56, v{src}')
            a.e(f'v_mul_u32_u24 v80, s57, v{src}')
            a.e('v_lshrrev_b32 v80, 16, v80')
            a.e('v_mul_u32_u24 v81, 14, v80')
            a.e(f'v_sub_u32 v81, v{src}, v81')
            a.e('v_add_u32 v81, s56, v81')
            a.e('v_subrev_u32 v82, 14, v81')
            a.e('v_min_u32 v81, v81, v82')
            a.e('v_mul_u32_u24 v80, s58, v80')
            a.e('v_lshl_add_u32 v80, v81, 4, v80')
            a.e(f'v_cndmask_b32 v{dst}, v76, v80, vcc')
        for i in range(8):
            pat = 79 if (i >> 1) & 1 else 78
            c = i * 4 * 7168 - 1024 * (i & 3)
            a.e(f'v_add_u32 v{s.DVE+i}, {c}, v{pat}' if c else f'v_mov_b32 v{s.DVE+i}, v{pat}')
        a.e(f's_and_b32 s56, s{S_W}, 1')
        a.e(f's_lshr_b32 s57, s{S_W}, 1')
        a.e(f's_mul_i32 s97, s56, {8*4*7168}')
        a.e('s_mov_b32 s100, 458752')
        a.e('s_lshl_b32 s98, s57, 14')
        a.e('s_lshl_b32 s56, s56, 13')
        a.e('s_add_u32 s98, s98, s56')
        a.e('s_mul_i32 s56, s81, 224')
        a.e('s_cmp_eq_u32 s57, 0')
        a.e(f's_cselect_b32 s52, s{P_W1}, s{P_W3}')
        a.e(f's_cselect_b32 s53, s{P_W1+1}, s{P_W3+1}')
        srd(a, 52, 52, None, 0, 56)
        a.e('s_sub_u32 s54, 7340032, s56')
    def m0set(s, i): return f's_add_u32 m0, s98, {4096*(i//4)}' if i else 's_mov_b32 m0, s98'
    def dma(s, i, base): return f'buffer_load_dwordx4 v{base+i}, s[52:55], s97 offen offset:{1024*(i&3)}' + ['', ' sc1', ' nt', ' sc0'][opt('wfl')] + ' lds'
    def dma_adv(s): return ['s_add_u32 s97, s97, s100', f's_add_u32 s98, s98, {G1_STG}', 's_and_b32 s98, s98, 0x1ffff']
    def early_dma(s):
        out = []
        for st in range(2):
            for i in range(8):
                if i % 4 == 0: out.append([s.m0set(i)])
                out.append([s.dma(i, s.DVE)] + (s.dma_adv() if i == 7 else []))
        return out
    def tok(s, k, tm):
        f = s.TF + 4 * (4 * (k % s.ND) + tm)
        if opt('hc', 0):
            return f'buffer_load_dwordx4 a[{f}:{f+3}], v{(3, 25, 26, 27)[tm]}, s[32:35], s82 offen sc1'
        return f'buffer_load_dwordx4 a[{f}:{f+3}], v{s.VT}, s[32:35], s82 offen offset:{tm*1024}' + (' sc1' if opt('t1sc', 1) else '')
    def rd(s, ph, t):
        j, mat = (ph & 3) >> 1, ph & 1
        return [f'ds_read_b64_tr_b16 a[{s.WF+4*t+2*h}:{s.WF+4*t+2*h+1}], v{s.VR} offset:{8192*j+1024*h+32*t+16384*mat}' for h in range(2)]
    def pre_setup(s, inj):
        a = s.a
        for i in range(8): a.e(f'v_mov_b32 v{s.DV+i}, v{s.DVE+i}')
        for i in range(16): a.e(f'v_accvgpr_write_b32 a{92+i}, v{224+i}')
        zero_acc(a, s.ACC, 224, 20)
        a.e(f'v_lshlrev_b32 v{s.VT}, 4, v2')
        a.e('v_lshrrev_b32 v4, 4, v2')
        a.e('v_lshlrev_b32 v4, 11, v4')
        a.e('v_bfe_u32 v5, v2, 4, 1')
        a.e('v_lshl_add_u32 v4, v5, 7, v4')
        a.e('v_bfe_u32 v6, v2, 2, 2')
        a.e('v_mul_u32_u24 v5, 224, v6')
        a.e('v_and_b32 v6, 3, v2')
        a.e('v_lshl_add_u32 v5, v6, 3, v5')
        a.e(f'v_add_u32 v{s.VL}, v4, v5')
        a.e(f'v_mov_b32 v{s.VR}, v{s.VL}')
        if opt('hc', 0):
            a.e('v_bfe_u32 v4, v2, 3, 1')
            a.e('v_lshlrev_b32 v4, 14, v4')
            a.e('v_lshrrev_b32 v5, 4, v2')
            a.e('v_lshl_add_u32 v4, v5, 7, v4')
            a.e('v_and_b32 v5, 7, v2')
            a.e('v_lshl_add_u32 v3, v5, 4, v4')
            for i in range(1, 4): a.e(f'v_add_u32 v{24+i}, {32768*i}, v3')
        if opt('f2w', 0):
            a.e('v_and_b32 v19, 7, v2')
            a.e(f's_lshl_b32 s56, s{S_W}, 3')
            a.e('v_add_u32 v19, s56, v19')
        else:
            a.e('v_and_b32 v19, 31, v2')
        a.e(f'v_lshlrev_b32 v19, {fsh()}, v19')
        a.e('s_lshl_b32 s56, s80, 2')
        a.e(f's_add_u32 s56, s56, s{S_W}')
        a.e('s_lshl_b32 s57, s56, 17')
        srd(a, 32, P_WS, 131072, WS_HNF, 57)
        hf_base(a, 57, 80, S_W, 58)
        srd(a, 36, P_WS, 4 * 114688, 0, 57)
        a.e('s_and_b32 s58, s81, 1')
        a.e('s_mul_i32 s85, s81, 7')
        a.e('s_add_u32 s85, s85, s58')
        a.e('s_lshl_b32 s85, s85, 9')
        a.e('s_movk_i32 s86, 3072')
        a.e('s_cmp_eq_u32 s58, 0')
        a.e(f's_cselect_b32 s86, s86, {0xfffffe00 if opt("hl", 1) else 0xfffffc08:#x}')
        a.e('s_add_u32 s86, s86, s85')
        assert not inj
    def kof(s, s_, P): return 2 * s_ + (-1, 0, 0, 1)[P]
    def ev_ins(s, e):
        L = []
        if e[0] == 'D':
            if e[2] % 4 == 0: L.append(s.m0set(e[2]))
            L.append(s.dma(e[2], s.DV))
            if e[2] == 7: L += s.dma_adv()
        elif e[0] == 'Z':
            fl = ['', ' sc1'][opt('ps', 0) - 1]
            u = e[2]
            if u < 3: L = [f'buffer_store_dwordx4 v[24:27], v{s.VT}, s[36:39], s88 offen offset:{1024*u}{fl}']
            else: L = [f'buffer_store_dwordx2 v[24:25], v{s.VT}, s[36:39], s89 offen{fl}', 's_add_u32 s88, s88, 114688', 's_add_u32 s89, s89, 114688']
        elif e[0] == 'Q':
            L = [f'buffer_store_dwordx4 v[24:27], v{s.VT}, s[44:47], s99 offen', 's_add_u32 s99, s99, 1024']
        elif e[0] == 'V':
            L = ['s_mov_b32 m0, s89', 'buffer_load_dwordx4 v28, s[68:71], s72 offen lds', 's_add_u32 s72, s72, 32768', 's_add_u32 s89, s89, 1024']
        elif e[0] == 'U':
            if e[2] == 0: L = ['buffer_load_dword v0, v6, s[48:51], s101 offen']
            else: L = ['buffer_load_dword v0, v6, s[4:7], s101 offen', 's_add_u32 s101, s101, 917504']
        elif e[0] == 'C':
            L = ['global_load_dword v0, v23, s[78:79]', f's_cmp_ge_u32 s84, {opt("cpt", 5)}', 's_cselect_b32 s99, -1, 0', 'v_and_b32 v23, s99, v24']
        elif e[0] == 'Y':
            L = ['buffer_load_dword v0, v21, s[44:47], s88 offen', 's_add_u32 s88, s88, 1024']
        else:
            L.append(s.tok(e[1], e[2]))
            if e[2] == 3: L.append(f's_add_u32 s82, s82, {512 if opt("hc", 0) else 4096}')
        return L
    def main(s):
        a = s.a
        S = s.S = Sched()
        for s_ in range(-4, 8):
            for P in range(4):
                S.mark((s_, P))
                k = s.kof(s_, P) + s.ND - 1
                t0 = 2 if P in (0, 2) else 0
                S.add([('D', s_ + 2, 2 * P), ('T', k, t0), ('D', s_ + 2, 2 * P + 1), ('T', k, t0 + 1)])
                if opt('w2y', 0 if opt('rs', 0) else 1) and s_ % 2 == 0 and P == 1: S.add([('Y', s_, 0)])
                if opt('la', 2) < 8 and P == (3 if s_ % 2 == 0 else 2): S.add([('U', s_, s_ % 2)])
                if opt('vev', 1) and s_ % 2 == 1 and P == 1: S.add([('V', s_, 0)])
                if opt('cpg', 1) and s_ % 2 == 1 and P == 3: S.add([('C', s_, 0)])
                if opt('psx', 0) and P == 2 and s_ & 1: S.add([('Q', s_, 0)])
                if opt('ps', 0) and P in (1, 3): S.add([('Z', s_, 2 * (s_ & 1) + (P >> 1))])
        vm_bar = min(S.younger(('D', 4), (4, 0)), S.younger(('D', 5), (5, 0)))
        vm_p1 = min(S.younger(('T', 8), (4, 1)), S.younger(('T', 10), (5, 1)))
        vm_p3 = min(S.younger(('T', 9), (4, 3)), S.younger(('T', 11), (5, 3)))
        if opt('w2y', 0 if opt('rs', 0) else 1):
            a.e('s_mul_i32 s56, s2, 28672')
            a.e(f's_mul_i32 s57, s{S_W}, 7168')
            a.e('s_add_u32 s56, s56, s57')
            srd(a, 44, P_W2, 7168, 0, 56)
            a.e('v_min_u32 v21, 8, v2')
            a.e('v_lshlrev_b32 v21, 7, v21')
            a.e('s_mov_b32 s88, 0')
        a.e(f's_lshl_b32 s56, s80, {5+fsh()}')
        a.e(f's_add_u32 s56, s56, {F2}')
        if opt('psx', 0):
            srd(a, 44, P_WS, 8 * MB, WS_XP)
            a.e('s_lshl_b32 s99, s2, 2')
            a.e(f's_add_u32 s99, s99, s{S_W}')
            a.e('s_lshl_b32 s99, s99, 13')
        if opt('ps', 0):
            a.e('s_mov_b32 s88, s85')
            a.e('s_mov_b32 s89, s86')
            for r in range(4): a.e(f'v_mov_b32 v{24+r}, 0')
        a.e('s_add_u32 s89, s73, 98304')
        if opt('la', 2) < 8:
            a.e('s_mul_i32 s57, s2, 3584')
            a.e(f's_mul_i32 s58, s{S_W}, 896')
            a.e('s_add_u32 s57, s57, s58')
            srd(a, 48, P_W1, None, 0, 57)
            a.e('s_sub_u32 s50, 7340032, s57')
            srd(a, 4, P_W3, None, 0, 57)
            a.e('s_mov_b32 s6, s50')
            a.e(f's_mov_b32 s101, {917504 * opt("la", 2)}')
            a.e('v_min_u32 v6, 6, v2')
            a.e('v_lshlrev_b32 v6, 7, v6')
        if opt('cpg', 1):
            a.e('s_getpc_b64 s[78:79]')
            a.e('L_pcg:')
            a.e(f's_lshl_b32 s77, s{S_W}, 13')
            a.e('s_add_u32 s77, s77, L_g1epi-L_pcg')
            a.e('v_lshl_add_u32 v24, v2, 7, s77')
            a.e('v_min_u32 v24, L_end-L_pcg, v24')
            a.e('v_mov_b32 v23, 0')
        a.e('s_mov_b32 s82, 0')
        a.e('s_mov_b32 s83, 0')
        a.e('s_mov_b32 s84, 0')
        stamp(a, 10)
        d1 = [('D', 1, i) for i in range(8)] + [('D', 2, 0), ('D', 2, 1)]
        for e in d1:
            for l in s.ev_ins(e):
                a.e(l)
                if 'm0' in l: a.e('s_nop 0')
        s.hook()
        for t in range(6):
            for l in s.rd(0, t): a.e(l)
        a.e('s_waitcnt lgkmcnt(12)')
        wait_flags(a, 56, 19, 20, solo=0 if opt('f2w', 0) else None)
        stamp(a, 11)
        XE = opt('xe', 1)
        pro = d1 + [e for e in S.ev[:S.marks[(0, 1)]] if e[1] >= 0 and e[0] == 'T'] + ([] if XE else [('X', i, 0) for i in range(4)]) + [('U', -1 - i // 2, i & 1) for i in range(2 * opt('lx', 0))]
        for e in pro[len(d1):]:
            if e[0] == 'X':
                a.e(f'buffer_store_dwordx4 a[{92+4*e[1]}:{95+4*e[1]}], v{s.VT}, s[40:43], s96 offen offset:{1024*e[1]} sc1')
                continue
            for l in s.ev_ins(e):
                a.e(l)
                if 'm0' in l: a.e('s_nop 0')
        act = pro + S.ev[S.marks[(0, 1)]:]
        off = len(pro) - S.marks[(0, 1)]
        s.startup = {}
        need = -1
        for s_ in range(0, 6):
            for P, tags, N in ((0, [('D', s_)], vm_bar), (1, [('T', 2 * s_)], vm_p1), (3, [('T', 2 * s_ + 1)], vm_p3)):
                if (s_, P) == (0, 0): continue
                site = S.marks[(s_, P)] + off
                for tg in tags:
                    idx = [i for i, e in enumerate(act) if e[:2] == tg]
                    if not idx: continue
                    if site - max(idx) - 1 < N: need = max(need, max(idx))
        if need >= 0:
            a.e(f's_waitcnt vmcnt({S.marks[(0, 1)] + off - need - 1})')
        a.e('s_branch L_g1_P1')
        s.snake = 0
        if opt('al', 1):
            a.raw('.p2align 6')
            for _ in range(opt('alo', 0)): a.e('s_nop 0')
        a.e('L_g1_loop:')
        if opt('tw', 1):
            a.e('s_cmp_eq_u32 s84, 7')
            a.e('s_cbranch_scc0 L_g1_notw')
            for i in range(4):
                a.e(f'v_mov_b32 v{s.DV+i}, v{28+i}')
                a.e(f'v_add_u32 v{s.DV+4+i}, 131072, v{28+i}')
            a.e('s_mov_b64 s[52:53], s[68:69]')
            a.e('s_mov_b32 s54, s70')
            a.e('s_add_u32 s97, s72, 32768')
            a.e('s_mov_b32 s100, 262144')
            a.e('L_g1_notw:')
        for s_ in (4, 5):
            a.e(f's_add_u32 s83, s83, {G1_STG}')
            a.e('s_and_b32 s83, s83, 0x1ffff')
            a.e(f's_waitcnt vmcnt({vm_bar})')
            a.e('s_barrier')
            s.phase(s_, 0)
            if s_ == 4: a.e('L_g1_P1:')
            a.e(f's_waitcnt vmcnt({vm_p1})')
            s.phase(s_, 1)
            s.phase(s_, 2)
            a.e(f's_waitcnt vmcnt({vm_p3})')
            s.phase(s_, 3)
        if opt('g1st'):
            a.e('s_memtime s[66:67]')
            a.e('s_min_u32 s64, s84, 3')
            a.e('s_add_u32 s64, s64, 26')
            a.e('s_waitcnt lgkmcnt(0)')
            a.e('s_cmp_lt_u32 s84, 4')
            a.e('s_cselect_b32 s64, s64, 40')
            a.e('s_mov_b32 m0, s64')
            a.e('v_writelane_b32 v1, s66, m0')
        a.e('s_add_u32 s84, s84, 1')
        a.e('s_cmp_lt_u32 s84, 8')
        a.e('s_cbranch_scc1 L_g1_loop')
        a.e('L_g1epi:')
        s.pre = []
        if opt('eo', 0):
            a.e('s_mov_b32 s58, 0xbfb8aa3b')
            a.e('s_mov_b32 s59, 0xbfb8aa3b')
            for T, u in ((8, 0), (20, 1))[:opt('eo', 0)]:
                gs = [s.ACC + 4 * (t * 4) + e for t in (2 * u, 2 * u + 1) for e in (0, 2)]
                s.pre += [f'v_pk_mul_f32 v[{T+2*q}:{T+2*q+1}], v[{gs[q]}:{gs[q]+1}], s[58:59]' for q in range(4)]
                s.pre += [f'v_exp_f32 v{T+q}, v{T+q}' for q in range(8)]
                s.pre += [f'v_pk_add_f32 v[{T+2*q}:{T+2*q+1}], v[{T+2*q}:{T+2*q+1}], 1.0 op_sel_hi:[1,0]' for q in range(4)]
                s.pre += [f'v_rcp_f32 v{T+q}, v{T+q}' for q in range(8)]
        s.phase(6, 0, last=True)
        assert not s.pre
        stamp(a, 12)
    def phase(s, s_, P, last=False):
        a = s.a; S = s.S
        kbuf = s.kof(s_, P) % s.ND
        mat = (P + 1) & 1
        items = []
        if not last:
            nxt = S.marks[(s_, P + 1)] if P < 3 else S.marks[(s_ + 1, 0)]
            items = [s.ev_ins(e) for e in S.ev[S.marks[(s_, P)]:nxt]]
        slots = [[] for _ in range(7)]
        for p_, it in zip([1, 2, 4, 5, 6], items): slots[p_] = it
        if P == 0 and not last:
            slots[0] = [f'v_add_u32 v{s.VR}, s83, v{s.VL}']
        for t in range(7):
            a.e(f's_waitcnt lgkmcnt({10 if not (last and t) else 12-2*t})')
            R = s.rd(P - 1, 6) if t == 0 else ([] if last else s.rd(P, t - 1))
            X = list(slots[t])
            pre = [x for x in X if 'm0' in x]
            X = [x for x in X if 'm0' not in x]
            gaps = [[] for _ in range(4)]
            if R: gaps[0] = pre + [R[0]]; gaps[1] = [R[1]]
            gaps[2] = X[:1]; gaps[3] = X[1:]
            order = [0, 1, 2, 3]
            if s.snake & 1: order.reverse()
            s.snake += 1
            for n, tm in enumerate(order):
                c = s.ACC + 4 * ((mat * 7 + t) * 4 + tm)
                tf = s.TF + 4 * (4 * kbuf + tm)
                if not opt('g1x') & 1: a.e(f'v_mfma_f32_16x16x32_bf16 v[{c}:{c+3}], a[{s.WF+4*t}:{s.WF+4*t+3}], a[{tf}:{tf+3}], v[{c}:{c+3}]')
                for x in gaps[n]:
                    if opt('g1x') & 2 and x.startswith('ds_'): continue
                    if opt('g1x') & 4 and x.startswith('buffer'): continue
                    a.e(x)
                if last and not gaps[n]:
                    for _ in range(opt('eo', 0)):
                        if s.pre: a.e(s.pre.pop(0))
    def epilogue(s, g2):
        a = s.a
        L = Lin(a)
        a.e('s_mov_b32 s58, 0xbfb8aa3b')
        a.e('s_mov_b32 s59, 0xbfb8aa3b')
        if opt('xe', 1):
            for i in range(4):
                a.e(f'buffer_store_dwordx4 a[{92+4*i}:{95+4*i}], v{s.VT}, s[40:43], s96 offen offset:{1024*i} sc1')
        g2.early(L)
        a.e('v_lshlrev_b32 v17, 3, v2')
        T = 8
        k = 0
        for tm in range(4):
            for u in range(4):
                O = (20, 24)[k & 1]
                fill = g2.epi_fill(k)
                def F(n=1):
                    for _ in range(n):
                        if fill: fill.pop(0)()
                tiles = [2 * u, 2 * u + 1] if u < 3 else [6]
                gs = []; us = []
                for t in tiles:
                    gs += [s.ACC + 4 * (t * 4 + tm), s.ACC + 4 * (t * 4 + tm) + 2]
                    us += [s.ACC + 4 * ((7 + t) * 4 + tm), s.ACC + 4 * ((7 + t) * 4 + tm) + 2]
                n = len(gs)
                nins = 9 * n
                cnt = [0]; ev_ = max(1, nins // (len(fill) + 1))
                def V(t):
                    a.e(t); cnt[0] += 1
                    if cnt[0] % ev_ == 0: F(1)
                T = 8
                if k < opt('eo', 0):
                    T = (8, 20)[k]; O = (24 if opt('eo', 0) == 1 else 8, 12)[k]
                    if k == 0 and opt('eo', 0) == 2: O = 28 - 28 + 0
                else:
                    for q in range(n): V(f'v_pk_mul_f32 v[{T+2*q}:{T+2*q+1}], v[{gs[q]}:{gs[q]+1}], s[58:59]')
                    for q in range(2 * n): V(f'v_exp_f32 v{T+q}, v{T+q}')
                    for q in range(n): V(f'v_pk_add_f32 v[{T+2*q}:{T+2*q+1}], v[{T+2*q}:{T+2*q+1}], 1.0 op_sel_hi:[1,0]')
                    for q in range(2 * n): V(f'v_rcp_f32 v{T+q}, v{T+q}')
                for q in range(n): V(f'v_pk_mul_f32 v[{gs[q]}:{gs[q]+1}], v[{gs[q]}:{gs[q]+1}], v[{us[q]}:{us[q]+1}]')
                for q in range(n): V(f'v_pk_mul_f32 v[{T+2*q}:{T+2*q+1}], v[{T+2*q}:{T+2*q+1}], v[{gs[q]}:{gs[q]+1}]')
                for q in range(n): V(f'v_cvt_pk_bf16_f32 v{O+q}, v{T+2*q}, v{T+2*q+1}')
                if u < 3:
                    L.v('st', f'buffer_store_dwordx4 v[{O}:{O+3}], v{s.VT}, s[36:39], s85 offen offset:{1024*u}' + hfl())
                else:
                    L.v('st', f'buffer_store_dwordx2 v[{O}:{O+1}], v{17 if opt("hl", 1) else s.VT}, s[36:39], s86 offen' + hfl())
                F(len(fill))
                k += 1
            if tm < 3:
                a.e('s_add_u32 s85, s85, 114688')
                a.e('s_add_u32 s86, s86, 114688')
        a.e(f's_lshl_b32 s87, s91, {fsh()}')
        a.e(f's_add_u32 s87, s87, {F3}')
        stamp(a, 13)
        a.e('L_g2code:')
        if opt('s3e', 1):
            a.e('s_waitcnt lgkmcnt(0)')
            signal(a, 87, 5, waitfn=lambda: L.wait(vm=('st',)))
            g2.post_epilogue(bar=False)
        else:
            g2.post_epilogue()
            signal(a, 87, 5, waitfn=lambda: L.wait(vm=('st',)), wb=(opt('hfl') == 4))
        stamp(a, 18)

class G2:
    ACC, TF, DV, VT, RJ, TR, V1, VO, VF = 32, 96, 28, 16, 3, 8, 12, 13, 14
    REG = 40960
    def __init__(s, a): s.a = a
    def wreg(s, k, j):
        if k < 16: return 'a', 128 + 8 * k + 4 * j
        if k < 32: return 'a', 8 * (k - 16) + 4 * j
        NB = opt('nb', 12); nv = (160 - 4 * NB) // 8
        if k < 32 + nv: return 'v', 96 + 4 * NB + 8 * (k - 32) + 4 * j
        return 'a', 128 + 8 * (k - 32 - nv) + 4 * j
    def front_setup(s):
        a = s.a
        gm = opt('g2map', 1)
        s.pbit = 2 if gm == 2 else 1
        if gm == 2: a.e('s_bfe_u32 s76, s2, 0x10001')
        else: a.e('s_and_b32 s76, s2, 1')
        a.e('s_lshr_b32 s56, s2, 3')
        if gm:
            if gm == 2:
                a.e('s_andn2_b32 s74, 1, s2')
            else:
                a.e('s_bfe_u32 s74, s2, 0x10001')
            a.e('s_lshl_b32 s74, s74, 3')
            a.e('s_and_b32 s57, s56, 7')
            a.e('s_add_u32 s74, s74, s57')
            a.e('s_bfe_u32 s75, s2, 0x10002')
            a.e('s_lshl_b32 s75, s75, 2')
            a.e('s_lshr_b32 s57, s56, 3')
            a.e('s_add_u32 s75, s75, s57')
        else:
            a.e('s_bfe_u32 s74, s2, 0x20001')
            a.e('s_lshl_b32 s74, s74, 2')
            a.e('s_and_b32 s57, s56, 3')
            a.e('s_add_u32 s74, s74, s57')
            a.e('s_lshr_b32 s75, s56, 2')
        a.e('v_lshrrev_b32 v252, 2, v2')
        a.e('v_lshlrev_b32 v253, 11, v252')
        a.e('v_lshrrev_b32 v254, 3, v2')
        a.e('v_xor_b32 v254, v254, v2')
        a.e('v_and_b32 v254, 2, v254')
        a.e('v_and_or_b32 v254, v2, 1, v254')
        a.e('v_lshl_add_u32 v248, v254, 4, v253')
        for i in range(1, 4):
            a.e(f'v_add_u32 v{248+i}, {i*(32768-1024)}, v248')
        a.e('s_mul_i32 s56, s76, 3670016')
        a.e('s_lshl_b32 s57, s75, 8')
        a.e('s_add_u32 s56, s56, s57')
        a.e(f's_lshl_b32 s57, s{S_W}, 6')
        a.e('s_add_u32 s56, s56, s57')
        srd(a, 68, P_W2, None, 0, 56)
        a.e('s_sub_u32 s70, 7340032, s56')
        a.e('s_mov_b32 s72, 0')
        a.e('v_lshlrev_b32 v252, 6, v252')
        a.e('v_bfe_u32 v253, v2, 4, 1')
        a.e('v_lshl_add_u32 v252, v253, 5, v252')
        a.e('v_and_b32 v253, 3, v2')
        a.e('v_lshl_add_u32 v252, v253, 3, v252')
        a.e(f's_lshl_b32 s73, s{S_W}, 13')
        a.e('s_add_u32 s73, s73, 32768')
        a.e('v_add_u32 v253, s73, v252')
        a.e('v_xor_b32 v254, 32, v253')
    def fcell(s, n): return (32768, 36864, 0, 4096, 98304, 102400)[n]
    def fD(s, pairs, dv=248):
        a = s.a
        out = []
        for c, n in pairs:
            out.append(lambda n=n: a.e(f's_add_u32 m0, s73, {s.fcell(n)}'))
            for i in range(4):
                def f(i=i):
                    a.e(f'buffer_load_dwordx4 v{dv+i}, s[68:71], s72 offen offset:{1024*i} lds')
                    if i == 3: a.e('s_add_u32 s72, s72, 131072')
                out.append(f)
        return out
    def fM(s, pairs, base=253, sub=0):
        a = s.a
        for c, n in pairs:
            for kk in range(2):
                for j in range(2):
                    for h in range(2):
                        r, q = s.wreg(2 * c + kk, j)
                        a.e(f'ds_read_b64_tr_b16 {r}[{q+2*h}:{q+2*h+1}], v{base+j} offset:{s.fcell(n)-sub+2048*kk+1024*h}')
    def front_save(s):
        a = s.a
        for i in range(4): a.e(f'v_mov_b32 v{s.DV+i}, v{248+i}')
        a.e('v_mov_b32 v7, v252')
    def early(s, L):
        a = s.a; s.L = L
        a.e('s_mov_b32 s80, s74')
        a.e('s_mov_b32 s81, s75')
        a.e('s_mov_b32 s82, s76')
        a.e(f's_mul_i32 s98, s{S_W}, {s.REG}')
        a.e(f'v_add_u32 v{s.RJ}, s98, v7')
        a.e(f'v_xor_b32 v{s.RJ+1}, 32, v{s.RJ}')
        a.e('s_add_u32 s56, s73, 98304')
        a.e('v_add_u32 v5, s56, v7')
        a.e('v_xor_b32 v6, 32, v5')
        L.vm = ['tail'] + ['st'] * (4 if opt('xe', 1) else 0)
        mv = [(s.NF - 2, 4, 5, 98304), (s.NF - 1, 5, 5, 98304)]
        if opt('tw', 1):
            a.e('s_mov_b32 s72, s97')
            a.e('s_sub_u32 s56, s73, 32768')
            a.e('v_add_u32 v18, s56, v7')
            a.e('v_xor_b32 v19, 32, v18')
            mv += [(s.NF + i, (2, 3, 0, 1)[i], 18, 0) for i in range(4)]
            s.NF += 4
        items = []
        for c, n, base, sub in mv:
            for kk in range(2):
                for j in range(2):
                    for h in range(2):
                        r, q = s.wreg(2 * c + kk, j)
                        items.append(lambda r=r, q=q, h=h, j=j, n=n, kk=kk, base=base, sub=sub: a.e(f'ds_read_b64_tr_b16 {r}[{q+2*h}:{q+2*h+1}], v{base+j} offset:{s.fcell(n)-sub+2048*kk+1024*h}'))
        s.mv_items = items
        if opt('cpf2', 0): code_pf(a, 'L_g2code', 'L_end', 21, lambda t: L.v('cp', t))
        s.cell = {}
        s.free = list(range(10))
    def D(s, c):
        L = s.L
        def first():
            s.cell[c] = s.free.pop(0)
            L.e(f's_add_u32 m0, s98, {4096*s.cell[c]}')
        out = [first]
        for i in range(4):
            out.append(lambda i=i: L.v(('W', c), f'buffer_load_dwordx4 v{s.DV+i}, s[68:71], s72 offen offset:{1024*i} lds'))
        out.append(lambda: L.e('s_add_u32 s72, s72, 131072'))
        return out
    def M(s, c):
        L = s.L
        out = []
        for kk in range(2):
            for j in range(2):
                for h in range(2):
                    def f(kk=kk, j=j, h=h):
                        r, n = s.wreg(2 * c + kk, j)
                        L.l(('M', c), f'ds_read_b64_tr_b16 {r}[{n+2*h}:{n+2*h+1}], v{s.RJ+j} offset:{4096*s.cell[c]+2048*kk+1024*h}')
                    out.append(f)
        return out
    def Wv(s, c): return [lambda: s.L.wait(vm=(('W', c),))]
    def Fr(s, cs):
        def f():
            s.L.wait(lg0=True)
            for c in cs: s.free.append(s.cell[c])
        return [f]
    def epi_fill(s, k):
        D, M, Wv, Fr = s.D, s.M, s.Wv, s.Fr
        def cat(*xs): return [y for x in xs for y in x]
        s.A = []
        k0 = opt('mvk', 0)
        if k < k0: return []
        out, s.mv_items = s.mv_items[:12], s.mv_items[12:]
        if k == k0: out = [lambda: s.L.wait(vm=('tail',))] + out
        return out
    def post_epilogue(s, bar=True):
        a = s.a; L = s.L
        assert not s.A
        s.NA = s.NF + opt('ne', 0) + opt('na', 3)
        if bar:
            a.e('s_waitcnt lgkmcnt(0)')
            a.e('s_barrier')
        a.inject([f for c in range(s.NF + opt('ne', 0), s.NA) for f in s.D(c)], 4)
        a.e(f'v_mov_b32 v{s.TR}, v{s.VT}')
        for q in range(1, 4):
            a.e(f'v_add_u32 v{s.TR+q}, {q*s.REG}, v{s.VT}')
        a.e(f'v_add_u32 v{s.V1}, {114688-2048}, v{s.VT}')
        for q in range(4):
            a.e(f'v_add_u32 v{24+q}, {q*s.REG}, v17')
        zero_acc(a, s.ACC, 64, 96)
        a.flush_inject()
        a.e('s_lshl_b32 s56, s80, 3')
        a.e(f's_lshl_b32 s57, s{S_W}, 1')
        a.e('s_lshl_b32 s58, s82, 2')
        a.e('s_xor_b32 s57, s57, s58')
        a.e('s_add_u32 s56, s56, s57')
        a.e('s_lshr_b32 s83, s56, 4')
        a.e('s_bfe_u32 s84, s56, 0x20002')
        hf_base(a, 57, 83, 84, 58)
        a.e('s_and_b32 s56, s56, 3')
        a.e('s_mul_i32 s56, s56, 114688')
        a.e('s_add_u32 s57, s57, s56')
        a.e('s_mul_i32 s58, s82, 57344')
        a.e('s_add_u32 s57, s57, s58')
        srd(a, 32, P_WS, 114688 + 57344, 0, 57)
        a.e('v_and_b32 v5, 15, v2')
        a.e('v_lshlrev_b32 v5, 11, v5')
        if opt('o4', 1):
            a.e('v_bfe_u32 v6, v2, 4, 1')
            a.e('v_lshl_add_u32 v5, v6, 5, v5')
            a.e('v_lshrrev_b32 v6, 5, v2')
            a.e(f'v_lshl_add_u32 v{s.VO}, v6, 4, v5')
        else:
            a.e('v_lshrrev_b32 v6, 4, v2')
            a.e(f'v_lshl_add_u32 v{s.VO}, v6, 3, v5')
        a.e('s_lshl_b32 s85, s80, 18')
        a.e('s_lshl_b32 s57, s82, 17')
        a.e('s_add_u32 s85, s85, s57')
        a.e('s_lshl_b32 s57, s81, 8')
        a.e('s_add_u32 s85, s85, s57')
        a.e(f's_lshl_b32 s57, s{S_W}, 6')
        a.e('s_add_u32 s85, s85, s57')
        a.e(f'v_and_b32 v{s.VF}, {15 if opt("f3h", 0) else 31}, v2')
        a.e(f'v_lshlrev_b32 v{s.VF}, {fsh()}, v{s.VF}')
    def main(s):
        a = s.a; L = s.L
        a.e('s_lshr_b32 s56, s80, 1')
        a.e(f's_lshl_b32 s56, s56, {5+fsh()}')
        a.e(f's_add_u32 s56, s56, {F3}')
        if opt('f3h', 0):
            a.e(f's_lshl_b32 s57, s82, {4+fsh()}')
            a.e('s_add_u32 s56, s56, s57')
            a.e(f's_lshl_b32 s97, s80, {4+fsh()}')
            a.e(f's_add_u32 s97, s97, {F3}')
        srd(a, 44, P_WS, 4 * MB, WS_H)
        a.e('s_mov_b32 s84, 0')
        L.wait(vm0=True)
        for c in range(s.NF, s.NA):
            for f in s.M(c): f()
        for f in s.Fr(range(s.NF, s.NA)): f()
        wait_flags(a, 56, s.VF, 20)
        stamp(a, 14)
        NS = 28
        slot = {}
        def TD(st):
            slot[st] = s.free.pop(0)
            out = [lambda: L.e(f's_add_u32 m0, s98, {4096*slot[st]}')]
            for i in range(4):
                v = s.VT if i < 2 else s.V1
                out.append(lambda i=i, v=v: L.v(('T', st), f'buffer_load_dwordx4 v{v}, s[32:35], s84 offen offset:{1024*i} sc1 lds'))
            out.append(lambda: (L.e('s_add_u32 s84, s84, 2048'), issued.add(st)))
            return out
        issued = set()
        NB = opt('nb', 12); KV = 32 + (160 - 4 * NB) // 8
        nxt = 0
        wc = opt('wc', 3)
        wfree, s.free = s.free[-wc:], s.free[:-wc]
        for _ in range(opt('t0', 3)):
            fs = TD(nxt); fs[0](); a.e('s_nop 0')
            for f in fs[1:]: f()
            nxt += 1
        L.wait(vm=(('T', 0),))
        a.e('s_barrier')
        X = opt('tx', 12)
        seq = [(k, tm) for k in range(56 - X) for tm in range(8)]
        seq += [(k, tm) for k in range(56 - X, 56) for tm in range(4, 8)]
        nS = len(seq)
        seq += [(k, tm) for k in range(56 - X, 56) for tm in range(4)]
        last_use = {}
        for g_, (k, tm) in enumerate(seq): last_use[k >> 1] = g_
        rdn = [0]
        def RDnext():
            if rdn[0] < 448:
                k, tm = seq[rdn[0]]
                f = s.TF + 4 * (rdn[0] % NB)
                o_ = 4096 * slot[k >> 1] + 2048 * (tm & 1) + 1024 * (k & 1)
                if opt('g2x') & 8 and rdn[0] & 1:
                    pass
                elif k % 7 == 3 and opt('hl', 1):
                    L.l(('R', rdn[0]), f'ds_read2st64_b64 v[{f}:{f+3}], v{24+(tm>>1)} offset0:{o_//512} offset1:{o_//512+1}')
                else:
                    L.l(('R', rdn[0]), f'ds_read_b128 v[{f}:{f+3}], v{s.TR+(tm>>1)} offset:{o_}')
                rdn[0] += 1
        for _ in range(NB - 1): RDnext()
        todo = list(range(s.NA, 28)); fly = []; pend = []; freed = set(); vis = 0; wseen = set()
        assert NB - 1 <= 16
        HR = 192
        a.e('s_lshl_b32 s56, s2, 2')
        a.e(f's_add_u32 s56, s56, s{S_W}')
        a.e('s_lshl_b32 s57, s56, 13')
        a.e(f's_xor_b32 s58, s57, {0x8000 * s.pbit:#x}')
        a.e('s_lshl_b32 s56, s56, 6')
        a.e(f's_add_u32 s56, s56, {F4}')
        a.e(f's_xor_b32 s59, s56, {0x100 * s.pbit:#x}')
        srd(a, 40, P_WS, 8 * MB, WS_XP)
        srd(a, 48, P_OUT, 4 * MB)
        a.e('s_add_u32 s87, s57, 4096')
        a.e('s_add_u32 s88, s58, 4096')
        a.e('v_mov_b32 v20, 0')
        a.e(f'v_mov_b32 v21, s{S_NONCE}')
        def flag_store():
            L.wait(vm=('xs',))
            if not opt('kbst'): stamp(a, 16)
            a.e('s_mov_b64 exec, 1')
            L.v('fl', f'buffer_store_dword v21, v20, s[{S_FLG}:{S_FLG+3}], s56 offen sc1')
            a.e('s_mov_b64 exec, -1')
        BP = opt('bp', 1)
        def xstores():
            out = []
            if BP:
                for q2 in range(4):
                    def f(q2=q2):
                        c = s.ACC + 32 + 8 * q2
                        for e in range(4): a.e(f'v_cvt_pk_bf16_f32 v{c+e}, v{c+2*e}, v{c+2*e+1}')
                        if opt('degr'):
                            m_ = (0xffff << opt('degr')) & 0xffff
                            for e in range(4): a.e(f'v_and_b32 v{c+e}, {m_ * 0x10001:#x}, v{c+e}')
                        L.v('xs', f'buffer_store_dwordx4 v[{c}:{c+3}], v{s.VT}, s[40:43], s57 offen offset:{1024*q2} sc1')
                    out += [lambda: None, f]
            else:
                for q in range(8):
                    c = s.ACC + 32 + 4 * q
                    out.append(lambda q=q, c=c: L.v('xs', f'buffer_store_dwordx4 v[{c}:{c+3}], v{s.VT}, s[40:43], s{57 if q < 4 else 87} offen offset:{1024*(q&3)} sc1'))
            return out
        gF = nS + opt('tf', 48) * (448 - nS) // 64 if X else None
        for u in range(56):
            k0 = seq[8 * u][0]
            fill = []
            GM = (0, 16, 32, 44, 50)
            if opt('g2st') and u in GM:
                a.e('s_memtime s[66:67]'); a.e('s_waitcnt lgkmcnt(0)'); L.lg = []
                a.e(f'v_writelane_b32 v1, s66, {26 + GM.index(u)}')
            if s.free and nxt < NS and (u & 1 or u < 8 or not todo or len(s.free) > 1):
                fill += TD(nxt); nxt += 1
                if not todo and not fly and s.free and nxt < NS:
                    fill += TD(nxt); nxt += 1
            if not u & 1 and u >= opt('wk0', 8):
                if fly and u >= fly[0][1] + opt('wlat', 4):
                    c = fly.pop(0)[0]
                    assert 2 * c + 1 < KV or u >= 2 * c + 2 - KV
                    fill += s.Wv(c) + s.M(c)
                    pend.append(c)
                if todo and wfree:
                    c = todo.pop(0)
                    fs = s.D(c)
                    s.cell[c] = wfree.pop(0)
                    fill += [lambda c=c: L.e(f's_add_u32 m0, s98, {4096*s.cell[c]}')] + fs[1:]
                    fly.append((c, u))
            if 8 * u == nS and X:
                fill += xstores()
            if u == 44 and opt('f3h', 0):
                fill.append(lambda: L.v('hf', f'buffer_load_dword v23, v{s.VF}, s[{S_FLG}:{S_FLG+3}], s97 offen sc1'))
            if u == 52 and opt('f3h', 0):
                L.wait(vm=('hf',))
                a.e(f'v_cmp_ne_u32 vcc, s{S_NONCE}, v23')
                a.e('s_cbranch_vccz L_hok')
                wait_flags(a, 97, s.VF, 23, solo=0)
                a.e('L_hok:')
            if u == 52:
                for tm in range(4):
                    for j in range(1 if opt('o4', 1) else 2):
                        def f(tm=tm, j=j):
                            if j == 0 and tm: L.e(f's_add_u32 s86, s85, {32768*tm}')
                            if opt('o4', 1):
                                L.v('h', f'buffer_load_dwordx4 a[{4*tm}:{4*tm+3}], v{s.VO}, s[44:47], s{86 if tm else 85} offen sc1')
                            else:
                                L.v('h', f'buffer_load_dwordx2 a[{4*tm+2*j}:{4*tm+2*j+1}], v{s.VO}, s[44:47], s{86 if tm else 85} offen offset:{32*j} sc1')
                        fill.append(f)
            per = -(-(len(fill) + 1) // 8)
            SS = opt('ss', 1)
            for i in range(8):
                g_ = 8 * u + i
                k, tm = seq[g_]
                if rdn[0] < 448 and seq[rdn[0]][0] >> 1 > vis:
                    q = seq[rdn[0]][0] >> 1
                    vis = min(NS - 1, q + SS - 1) if q > 1 else q
                    assert vis in issued, (u, i, vis)
                    L.wait(vm=(('T', vis),))
                    a.e('s_barrier')
                    for q2 in list(slot):
                        if q2 not in freed and last_use[q2] < g_:
                            freed.add(q2); s.free.append(slot[q2])
                need = [('R', g_)]
                if k >> 1 not in wseen:
                    wseen.add(k >> 1)
                    assert k >> 1 not in todo and all(c != k >> 1 for c, _ in fly), (k, u)
                    need.append(('M', k >> 1))
                if g_ == gF: flag_store()
                L.wait(lg=need)
                order = [0, 1] if g_ % 2 == 0 else [1, 0]
                for n, j in enumerate(order):
                    r, w = s.wreg(k, j)
                    c = s.ACC + 4 * (2 * tm + j)
                    tf = s.TF + 4 * (g_ % NB)
                    if not opt('g2x') & 1:
                        a.e(f'v_mfma_f32_16x16x32_bf16 v[{c}:{c+3}], {r}[{w}:{w+3}], v[{tf}:{tf+3}], v[{c}:{c+3}]')
                    if n == 0:
                        RDnext()
                    else:
                        for _ in range(per):
                            if fill:
                                fill.pop(0)()
                                if 'm0' in a.lines[-1]: break
            while fill:
                if 'm0' in a.lines[-1]: a.e('s_nop 0')
                fill.pop(0)()
            for c in list(pend):
                if not any(x == ('M', c) for x in L.lg):
                    pend.remove(c)
                    (wfree if todo else s.free).append(s.cell[c])
            if not todo and wfree and not fly and not pend:
                s.free += wfree; wfree = []
        assert not todo and not fly and not pend and nxt == NS
        stamp(a, 15)
        if not X:
            a.e('s_nop 7')
            for f in xstores(): f()
            flag_store()
        wait_flags(a, 59, 20, 22, solo=0)
        stamp(a, 17)
        P1 = 96
        NL = 4 if BP else 8
        for q in range(NL):
            a.e(f'buffer_load_dwordx4 v[{P1+4*q}:{P1+4*q+3}], v{s.VT}, s[40:43], s{58 if q < 4 else 88} offen offset:{1024*(q&3)} sc1')
        H = 208
        for q in range(16):
            a.e(f'v_accvgpr_read_b32 v{HR+q}, a{q}')
        if opt('o4', 1):
            for tm in range(4):
                if tm == 3: a.e('s_nop 0')
                a.e(f'v_permlane16_swap_b32 v{HR+4*tm}, v{HR+4*tm+2}')
                a.e(f'v_permlane16_swap_b32 v{HR+4*tm+1}, v{HR+4*tm+3}')
        for q in range(16):
            unpack(a, H + 2 * q, H + 2 * q + 1, HR + q)
        a.e('s_mov_b32 s82, 0x3ef5fdf0')
        a.e('s_mov_b32 s83, 0x3ef5fdf0')
        for q in range(8):
            tm, j = q >> 1, q & 1
            if j == 0 and tm: a.e(f's_add_u32 s85, s85, 32768')
            if BP:
                if j == 0: a.e(f's_waitcnt vmcnt({3 if opt("o4", 1) else 3 + tm})')
            else: a.e('s_waitcnt vmcnt(7)')
            c = s.ACC + 4 * q
            for e in range(2):
                x = c + 2 * e; h = H + 4 * q + 2 * e
                if BP:
                    y = 128 + 2 * e
                    unpack(a, y, y + 1, P1 + 2 * q + e)
                else:
                    y = P1 + 4 * q + 2 * e
                a.e(f'v_pk_add_f32 v[{x}:{x+1}], v[{x}:{x+1}], v[{y}:{y+1}]')
                if opt('hs', 0): a.e(f'v_pk_mul_f32 v[{x}:{x+1}], v[{x}:{x+1}], s[82:83]')
                a.e(f'v_cvt_pk_bf16_f32 v{y}, v{x}, v{x+1}')
                unpack(a, x, x + 1, y)
                a.e(f'v_pk_add_f32 v[{x}:{x+1}], v[{x}:{x+1}], v[{h}:{h+1}]')
                a.e(f'v_cvt_pk_bf16_f32 v{192+2*q+e}, v{x}, v{x+1}')
            ofl = ['', ' sc1', ' nt', ' sc0 sc1'][opt('ofl')]
            if opt('o4', 1):
                assert BP
                if j == 1:
                    o = 192 + 4 * tm
                    a.e('s_nop 1')
                    a.e(f'v_permlane16_swap_b32 v{o}, v{o+2}')
                    a.e(f'v_permlane16_swap_b32 v{o+1}, v{o+3}')
                    a.e(f'buffer_store_dwordx4 v[{o}:{o+3}], v{s.VO}, s[48:51], s85 offen' + ofl)
            else:
                a.e(f'buffer_store_dwordx2 v[{192+2*q}:{192+2*q+1}], v{s.VO}, s[48:51], s85 offen offset:{32*j}' + ofl)
        LIN[0] = None

def gen_dg(a):
    d = opt('dg'); F, ia, ib = d // 10000, d // 100 % 100, d % 100
    m = opt('dgm')
    a.raw('.globl dg_kernel\n.p2align 8\n.type dg_kernel,@function\ndg_kernel:')
    a.e('s_load_dwordx2 s[10:11], s[0:1], 96')
    a.e('s_memrealtime s[12:13]')
    a.e('s_waitcnt lgkmcnt(0)')
    a.e(f's_add_u32 s10, s10, {STAMP_BASE + opt("dgw", 0) * 128:#x}')
    a.e('s_addc_u32 s11, s11, 0')
    if not m:
        a.e(f's_load_dword s4, s[10:11], {4*ia}')
        a.e(f's_load_dword s5, s[10:11], {4*ib}')
        a.e('s_waitcnt lgkmcnt(0)')
    else:
        a.e('s_mov_b32 s20, s10\ns_mov_b32 s21, s11\ns_mov_b32 s22, 0x20000\ns_mov_b32 s23, 0x20000')
        a.e('v_lshlrev_b32 v1, 7, v0')
        for i in range(16):
            a.e(f's_mov_b32 s6, {i*8192}')
            a.e(f'buffer_load_dword v{8+i}, v1, s[20:23], s6 offen offset:{4*ia}')
            a.e(f'buffer_load_dword v{24+i}, v1, s[20:23], s6 offen offset:{4*ib}')
        a.e('s_waitcnt vmcnt(0)')
        for i in range(32):
            a.e(f'v_sub_u32 v{8+i}, s12, v{8+i}')
        opa = 'v_max_u32' if m != 3 else 'v_add_u32'
        opb = {1: 'v_min_u32', 2: 'v_max_u32', 3: 'v_add_u32'}[m]
        for i in range(1, 16):
            a.e(f'{opa} v8, v8, v{8+i}')
            a.e(f'{opb} v24, v24, v{24+i}')
        a.e('s_nop 1')
        a.e('v_readlane_b32 s4, v8, 0')
        a.e('v_readlane_b32 s5, v24, 0')
        sa = 's_max_u32' if m != 3 else 's_add_u32'
        sb = {1: 's_min_u32', 2: 's_max_u32', 3: 's_add_u32'}[m]
        for l in range(1, 64):
            a.e(f'v_readlane_b32 s6, v8, {l}')
            a.e(f'v_readlane_b32 s7, v24, {l}')
            a.e('s_nop 0')
            a.e(f'{sa} s4, s4, s6')
            a.e(f'{sb} s5, s5, s7')
        a.e('s_sub_u32 s5, s4, s5')
        if m == 3: a.e('s_lshr_b32 s5, s5, 10')
        a.e('s_mov_b32 s4, 0')
        a.e('s_memrealtime s[12:13]')
        a.e('s_waitcnt lgkmcnt(0)')
    a.e('s_sub_u32 s4, s5, s4')
    a.e('s_min_u32 s4, s4, 10000')
    a.e(f's_mul_i32 s4, s4, {F}')
    a.e('L_dg:')
    a.e('s_memrealtime s[14:15]')
    a.e('s_waitcnt lgkmcnt(0)')
    a.e('s_sub_u32 s5, s14, s12')
    a.e('s_cmp_lt_u32 s5, s4')
    a.e('s_cbranch_scc1 L_dg')
    a.e('s_endpgm')

def build():
    a = Asm()
    hdr = open('cdna_kernels/' + NAME + '.s.ref').read().split('\n')
    cm = [l for l in hdr if l.startswith(';') and '@launch' not in l and 'Override launch' not in l and 'grid=ceil' not in l]
    out = '\n'.join(cm) + '\n'
    if opt('aslist') or opt('dg'):
        out += f'; @launch kernel={KNAME} grid=(256,1,1) block=(256,1,1) lds=163840\n'
        if opt('dg'): out += '; @launch kernel=dg_kernel grid=(1,1,1) block=(64,1,1) lds=0\n'
    else:
        out += '; @launch grid=(256,1,1) block=(256,1,1) lds=163840\n'
    a.raw('.amdgcn_target "amdgcn-amd-amdhsa--gfx950"')
    a.raw('.text')
    gen(a)
    if opt('dg'): gen_dg(a)
    body = a.text()
    errs = check_hazards(body)
    errs += check_waits(body, KNAME, loop_iters=2, take_fwd=('L_nonce_ok', 'L_nonce_skip', 'L_clean_skip', 'L_y2skip', 'L_y2nw', 'L_hok', 'L_f0b', 'L_p0', 'L_p0f') + tuple(f'L_sig{i}' for i in range(20)) + tuple(f'L_poll{i}x' for i in range(20)))
    errs += check_waits(body, KNAME, loop_iters=2, take_fwd=('L_nonce_ok', 'L_p0hi', 'L_f0b') + (() if opt('solo', 1) else tuple(f'L_poll{i}x' for i in range(20))))
    for e in errs[:8]: print(e, file=sys.stderr)
    na = 256
    out += body + f'''.section .rodata,"a"
.p2align 6
.amdhsa_kernel {KNAME}
  .amdhsa_next_free_vgpr {256+na}
  .amdhsa_next_free_sgpr 102
  .amdhsa_accum_offset 256
  .amdhsa_group_segment_fixed_size 0
  .amdhsa_kernarg_size 104
  .amdhsa_user_sgpr_count 2
  .amdhsa_user_sgpr_kernarg_segment_ptr 1
  .amdhsa_system_sgpr_workgroup_id_x 1
  .amdhsa_float_denorm_mode_32 3
.end_amdhsa_kernel
'''
    if opt('dg'):
        out += '''.p2align 6
.amdhsa_kernel dg_kernel
  .amdhsa_next_free_vgpr 48
  .amdhsa_next_free_sgpr 32
  .amdhsa_accum_offset 48
  .amdhsa_group_segment_fixed_size 0
  .amdhsa_kernarg_size 104
  .amdhsa_user_sgpr_count 2
  .amdhsa_user_sgpr_kernarg_segment_ptr 1
  .amdhsa_system_sgpr_workgroup_id_x 1
.end_amdhsa_kernel
'''
    return out, errs

if __name__ == '__main__':
    outp = sys.argv[1]
    for kv in sys.argv[2:]:
        k, v = kv.split('=')
        OPT[k] = int(v)
    if opt('hnub'): WS_HNF = WS_UB
    t, errs = build()
    open(outp, 'w').write(t)
    print('written', outp, len(t), 'bytes;', len(errs), 'checker errors')
```

```python
import sys, os
from asmlib import *

NAME = 'sequential_preLN__ssm_conv_h3__glu_gated_swiglu__prompt'
KNAME = NAME + '_kernel'
MB = 1 << 20
WS0 = int(os.environ.get('WS0', '0')) * MB
WS_UB, WS_Y2, WS_H, WS_HNF, WS_HF, WS_XP, WS_FLG = [WS0 + x * MB for x in (0, 4, 8, 12, 16, 32, 40)]
STAMP_BASE = 64 * MB
OPT = {}
def opt(k, d=0): return OPT.get(k, d)

P_Q, P_K, P_V, P_SH, P_SSMK, P_D, P_X, P_W1, P_W3, P_W2, P_OUT, P_DBG, P_WS = [4 + 2 * i for i in range(13)]
S_W, S_NONCE, S_MASK = 30, 31, 90
S_FLG = 92
F0, F1, F2, F3, F4 = 0, 32768, 65536, 98304, 131072
FLG_SIZE = 262144
LDS_KA = 98304
KA_REG = 13056
NSTAMP = 20
AST = 128

def srd(a, d, p, size, add=0, addreg=None):
    if add or addreg is not None:
        if add:
            a.e(f's_add_u32 s{d}, s{p}, {add:#x}')
            a.e(f's_addc_u32 s{d+1}, s{p+1}, 0')
            if addreg is not None:
                a.e(f's_add_u32 s{d}, s{d}, s{addreg}')
                a.e(f's_addc_u32 s{d+1}, s{d+1}, 0')
        else:
            a.e(f's_add_u32 s{d}, s{p}, s{addreg}')
            a.e(f's_addc_u32 s{d+1}, s{p+1}, 0')
    else:
        a.e(f's_mov_b32 s{d}, s{p}')
        a.e(f's_mov_b32 s{d+1}, s{p+1}')
    if size is not None:
        a.e(f's_mov_b32 s{d+2}, {size:#x}')
    a.e(f's_mov_b32 s{d+3}, 0x20000')

def stamp(a, i):
    if not opt('stamp'): return
    a.e('s_memrealtime s[60:61]')
    if i == 0: a.e('s_memtime s[62:63]')
    cy = {11: 20, 12: 21, 14: 22, 15: 23, 4: 24, 5: 25}.get(i)
    if cy: a.e('s_memtime s[66:67]')
    a.e('s_waitcnt lgkmcnt(0)')
    a.e(f'v_writelane_b32 v1, s60, {i}')
    if cy: a.e(f'v_writelane_b32 v1, s66, {cy}')
    if LIN[0]: LIN[0].lg = []

def stamp_out(a, n):
    if not opt('stamp'): return
    a.e('s_waitcnt vmcnt(0)')
    stamp(a, n - 1)
    a.e('s_memtime s[64:65]')
    a.e('s_waitcnt lgkmcnt(0)')
    srd(a, 32, P_WS, 1 * MB, STAMP_BASE)
    a.e('s_lshl_b32 s84, s2, 2')
    a.e(f's_add_u32 s84, s84, s{S_W}')
    a.e('s_lshl_b32 s84, s84, 7')
    a.e('s_sub_u32 s64, s64, s62')
    a.e('v_writelane_b32 v1, s64, 31')
    a.e('v_mbcnt_lo_u32_b32 v2, -1, 0')
    a.e('v_lshlrev_b32 v2, 2, v2')
    a.e('s_mov_b64 exec, 0xffffffff')
    a.e('buffer_store_dword v1, v2, s[32:35], s84 offen')

LIN = [None]
class Lin:
    def __init__(s, a): s.a = a; s.vm = []; s.lg = []; LIN[0] = s
    def e(s, t): s.a.e(t)
    def v(s, tag, t): s.a.e(t); s.vm.append(tag)
    def l(s, tag, t): s.a.e(t); s.lg.append(tag)
    def _n(s, q, tags, cap):
        idx = [i for i, x in enumerate(q) if x in tags]
        if not idx: return None
        n = len(q) - max(idx) - 1
        return min(n, cap)
    def wait(s, vm=(), lg=(), vm0=False, lg0=False):
        nv = 0 if vm0 else s._n(s.vm, vm, 63)
        nl = 0 if lg0 else s._n(s.lg, lg, 15)
        t = ''
        if nv is not None:
            t += f' vmcnt({nv})'; s.vm = s.vm[len(s.vm) - nv:] if nv else []
        if nl is not None:
            t += f' lgkmcnt({nl})'; s.lg = s.lg[len(s.lg) - nl:] if nl else []
        if t: s.a.e('s_waitcnt' + t)

def unpack(a, dlo, dhi, src):
    a.e(f'v_lshlrev_b32 v{dlo}, 16, v{src}')
    a.e(f'v_and_b32 v{dhi}, s{S_MASK}, v{src}')

def hfl():
    return [' sc1', ' sc0 sc1', ' sc1 nt', ' sc0 sc1 nt', ''][opt('hfl')]

def code_pf(a, lab_from, lab_to, vt, emit=None, n=1):
    _uid[0] += 1
    L = f'L_pc{_uid[0]}'
    a.e('s_getpc_b64 s[78:79]')
    a.e(f'{L}:')
    a.e(f's_lshl_b32 s77, s{S_W}, 13')
    a.e(f's_add_u32 s77, s77, {lab_from}-{L}')
    for i in range(n):
        if i: a.e('s_add_u32 s77, s77, 32768')
        a.e(f'v_lshl_add_u32 v{vt}, v2, 7, s77')
        a.e(f'v_min_u32 v{vt}, {lab_to}-{L}, v{vt}')
        t = f'global_load_dword v{vt+1+i}, v{vt}, s[78:79]'
        if emit: emit(t)
        else: a.e(t)

def hf_base(a, d, mb, q, t):
    if not opt('reuse', 0):
        a.e(f's_lshl_b32 s{d}, s{mb}, 2')
        a.e(f's_add_u32 s{d}, s{d}, s{q}')
        a.e(f's_mul_i32 s{d}, s{d}, 458752')
        a.e(f's_add_u32 s{d}, s{d}, {WS_HF:#x}')
        return
    a.e(f's_lshl_b32 s{d}, s{mb}, 1')
    a.e(f's_add_u32 s{d}, s{d}, s{q}')
    a.e(f's_mul_i32 s{d}, s{d}, 458752')
    a.e(f's_add_u32 s{d}, s{d}, {WS_HF:#x}')
    a.e(f's_lshl_b32 s{t}, s{mb}, 19')
    a.e(f's_cmp_eq_u32 s{q}, 1')
    a.e(f's_cselect_b32 s{d}, s{t}, s{d}')
    a.e(f's_add_u32 s{t}, s{t}, {WS_Y2 - WS_UB:#x}')
    a.e(f's_cmp_eq_u32 s{q}, 0')
    a.e(f's_cselect_b32 s{d}, s{t}, s{d}')

def zero_acc(a, base, n, z):
    if not opt('mz', 1):
        for r in range(n): a.e(f'v_mov_b32 v{base+r}, 0')
        return
    for r in range(4): a.e(f'v_mov_b32 v{z+r}, 0')
    a.e('s_nop 1')
    for r in range(0, n, 16):
        a.e(f'v_mfma_f32_32x32x16_bf16 v[{base+r}:{base+r+15}], v[{z}:{z+3}], v[{z}:{z+3}], 0')

_uid = [0]
def signal(a, soff, vt, waitfn=None, wb=False):
    _uid[0] += 1
    L = f'L_sig{_uid[0]}'
    a.e(f'v_mov_b32 v{vt}, 0')
    a.e(f'v_mov_b32 v{vt+1}, s{S_NONCE}')
    a.e(f's_cmp_eq_u32 s{S_W}, 0')
    if waitfn: waitfn()
    else: a.e('s_waitcnt vmcnt(0)')
    a.e('s_barrier')
    a.e(f's_cbranch_scc0 {L}')
    if wb:
        a.e('buffer_wbl2 sc1')
        a.e('s_waitcnt vmcnt(0)')
    a.e('s_mov_b64 exec, 1')
    a.e(f'buffer_store_dword v{vt+1}, v{vt}, s[{S_FLG}:{S_FLG+3}], s{soff} offen sc1')
    a.e('s_mov_b64 exec, -1')
    a.e(f'{L}:')

def fsh():
    return opt('fs', 32).bit_length() - 1
def f1sh():
    return opt('f1s', 32).bit_length() - 1

def wait_flags(a, soff, voff, vd, n=64, solo=None):
    _uid[0] += 1
    L = f'L_poll{_uid[0]}'
    if solo is None: solo = opt('solo', 1)
    if solo:
        a.e(f's_cmp_lg_u32 s{S_W}, {opt("pw", 0)}')
        a.e(f's_cbranch_scc1 {L}x')
    a.e(f'{L}:')
    if n == 256:
        if f1sh() == 2:
            a.e(f'buffer_load_dwordx4 v[{vd}:{vd+3}], v{voff}, s[{S_FLG}:{S_FLG+3}], s{soff} offen sc1')
        else:
            for i in range(4):
                a.e(f's_add_u32 s89, s{soff}, {i*(64<<f1sh())}')
                a.e(f'buffer_load_dword v{vd+i}, v{voff}, s[{S_FLG}:{S_FLG+3}], s89 offen sc1')
        a.e('s_waitcnt vmcnt(0)')
        a.e(f'v_xor_b32 v{vd}, s{S_NONCE}, v{vd}')
        a.e(f'v_xor_b32 v{vd+1}, s{S_NONCE}, v{vd+1}')
        a.e(f'v_xor_b32 v{vd+2}, s{S_NONCE}, v{vd+2}')
        a.e(f'v_xor_b32 v{vd+3}, s{S_NONCE}, v{vd+3}')
        a.e(f'v_or3_b32 v{vd}, v{vd}, v{vd+1}, v{vd+2}')
        a.e(f'v_or_b32 v{vd}, v{vd}, v{vd+3}')
        a.e(f'v_cmp_ne_u32 vcc, 0, v{vd}')
    else:
        a.e(f'buffer_load_dword v{vd}, v{voff}, s[{S_FLG}:{S_FLG+3}], s{soff} offen sc1')
        a.e('s_waitcnt vmcnt(0)')
        a.e(f'v_cmp_ne_u32 vcc, s{S_NONCE}, v{vd}')
    a.e('s_add_u32 s3, s3, 1')
    a.e(f's_cmp_gt_u32 s3, {opt("spin", 200000)}')
    a.e(f's_cbranch_scc1 {L}x')
    a.e(f's_cbranch_vccz {L}x')
    if opt('sleep'): a.e(f's_sleep {opt("sleep")}')
    a.e(f's_branch {L}')
    a.e(f'{L}x:')
    if solo: a.e('s_barrier')

def wave_sum2(a, va, vb, sa, sb):
    for mod in ('row_shr:1 row_mask:0xf bank_mask:0xf bound_ctrl:0', 'row_shr:2 row_mask:0xf bank_mask:0xf bound_ctrl:0',
                'row_shr:4 row_mask:0xf bank_mask:0xf bound_ctrl:0', 'row_shr:8 row_mask:0xf bank_mask:0xf bound_ctrl:0',
                'row_bcast:15 row_mask:0xa bank_mask:0xf', 'row_bcast:31 row_mask:0xc bank_mask:0xf'):
        a.e('s_nop 0')
        a.e(f'v_add_f32_dpp v{va}, v{va}, v{va} {mod}')
        a.e(f'v_add_f32_dpp v{vb}, v{vb}, v{vb} {mod}')
    a.e(f'v_readlane_b32 s{sa}, v{va}, 63')
    a.e(f'v_readlane_b32 s{sb}, v{vb}, 63')

def ln2(a, X, T, M, R, C, XM):
    def both(f):
        for r in range(2): f(r)
    for q in range(4):
        both(lambda r: a.e(f'v_pk_add_f32 v[{T[r]+2*q}:{T[r]+2*q+1}], v[{X[r]+4*q}:{X[r]+4*q+1}], v[{X[r]+4*q+2}:{X[r]+4*q+3}]'))
    both(lambda r: a.e(f'v_pk_add_f32 v[{T[r]}:{T[r]+1}], v[{T[r]}:{T[r]+1}], v[{T[r]+2}:{T[r]+3}]'))
    both(lambda r: a.e(f'v_pk_add_f32 v[{T[r]+4}:{T[r]+5}], v[{T[r]+4}:{T[r]+5}], v[{T[r]+6}:{T[r]+7}]'))
    both(lambda r: a.e(f'v_pk_add_f32 v[{T[r]}:{T[r]+1}], v[{T[r]}:{T[r]+1}], v[{T[r]+4}:{T[r]+5}]'))
    both(lambda r: a.e(f'v_add_f32 v{T[r]}, v{T[r]}, v{T[r]+1}'))
    wave_sum2(a, T[0], T[1], 56, 57)
    a.e('s_nop 0')
    both(lambda r: a.e(f'v_mul_f32 v{M[r]}, s{56+r}, v{C}'))
    both(lambda r: a.e(f'v_mov_b32 v{M[r]+1}, v{M[r]}'))
    for q in range(8):
        both(lambda r: a.e(f'v_pk_add_f32 v[{T[r]+2*q}:{T[r]+2*q+1}], v[{X[r]+2*q}:{X[r]+2*q+1}], v[{M[r]}:{M[r]+1}] neg_lo:[0,1] neg_hi:[0,1]'))
    both(lambda r: a.e(f'v_pk_mul_f32 v[{R[r]}:{R[r]+1}], v[{T[r]}:{T[r]+1}], v[{T[r]}:{T[r]+1}]'))
    for q in range(1, 8):
        both(lambda r: a.e(f'v_pk_fma_f32 v[{R[r]}:{R[r]+1}], v[{T[r]+2*q}:{T[r]+2*q+1}], v[{T[r]+2*q}:{T[r]+2*q+1}], v[{R[r]}:{R[r]+1}]'))
    both(lambda r: a.e(f'v_add_f32 v{R[r]}, v{R[r]}, v{R[r]+1}'))
    def rbf(v):
        a.e(f'v_cvt_pk_bf16_f32 v{v}, v{v}, v{v}')
        a.e(f'v_and_b32 v{v}, s{S_MASK}, v{v}')
    both(lambda r: rbf(M[r]))
    wave_sum2(a, R[0], R[1], 58, 59)
    both(lambda r: a.e(f'v_mov_b32 v{M[r]+1}, v{M[r]}'))
    both(lambda r: a.e(f'v_mul_f32 v{R[r]}, s{58+r}, v{C}'))
    both(lambda r: rbf(R[r]))
    both(lambda r: a.e(f'v_add_f32 v{R[r]}, 0x3727c5ac, v{R[r]}'))
    both(lambda r: rbf(R[r]))
    both(lambda r: a.e(f'v_sqrt_f32 v{R[r]}, v{R[r]}'))
    for q in range(2):
        both(lambda r: a.e(f'v_pk_add_f32 v[{XM[r]+2*q}:{XM[r]+2*q+1}], v[{X[r]+2*q}:{X[r]+2*q+1}], v[{M[r]}:{M[r]+1}] neg_lo:[0,1] neg_hi:[0,1]'))
    both(lambda r: rbf(R[r]))
    both(lambda r: a.e(f'v_rcp_f32 v{R[r]}, v{R[r]}'))
    for q in range(2, 8):
        both(lambda r: a.e(f'v_pk_add_f32 v[{XM[r]+2*q}:{XM[r]+2*q+1}], v[{X[r]+2*q}:{X[r]+2*q+1}], v[{M[r]}:{M[r]+1}] neg_lo:[0,1] neg_hi:[0,1]'))
    both(lambda r: a.e(f'v_mov_b32 v{R[r]+1}, v{R[r]}'))
    for q in range(8):
        both(lambda r: a.e(f'v_pk_mul_f32 v[{T[r]+2*q}:{T[r]+2*q+1}], v[{XM[r]+2*q}:{XM[r]+2*q+1}], v[{R[r]}:{R[r]+1}]'))

class Sched:
    def __init__(self): self.ev = []; self.marks = {}
    def mark(self, k): self.marks[k] = len(self.ev)
    def add(self, L): self.ev += L
    def younger(self, tag, at):
        last = max(i for i, e in enumerate(self.ev) if e[:2] == tag)
        assert last < self.marks[at], (tag, at)
        return self.marks[at] - last - 1

def gen(a):
    a.raw(f'.globl {KNAME}')
    a.raw('.p2align 8')
    a.raw(f'.type {KNAME},@function')
    a.raw(f'{KNAME}:')
    a.e('s_cmp_ge_u32 s2, 256')
    a.e('s_cbranch_scc1 L_end')
    a.e('s_load_dwordx8 s[4:11], s[0:1], 0')
    a.e('s_load_dwordx8 s[20:27], s[0:1], 64')
    a.e('s_load_dwordx2 s[28:29], s[0:1], 96')
    a.e('s_load_dwordx8 s[12:19], s[0:1], 32')
    a.e('s_memrealtime s[56:57]')
    a.e('v_lshrrev_b32 v1, 6, v0')
    a.e('v_and_b32 v2, 63, v0')
    a.e(f'v_readfirstlane_b32 s{S_W}, v1')
    a.e(f's_mov_b32 s{S_MASK}, 0xffff0000')
    a.e('s_mov_b32 s3, 0')
    a.e('s_bfe_u32 s82, s2, 0x30003')
    a.e('s_and_b32 s83, s2, 7')
    a.e('s_lshr_b32 s84, s2, 6')
    a.e('s_lshl_b32 s84, s84, 3')
    a.e('s_or_b32 s83, s83, s84')
    a.e('v_and_b32 v9, 3, v0')
    a.e('v_bfe_u32 v10, v0, 4, 1')
    a.e('v_lshl_add_u32 v1, v9, 1, v10')
    a.e('v_bfe_u32 v8, v0, 5, 2')
    a.e('v_bfe_u32 v11, v0, 2, 2')
    a.e('v_lshl_add_u32 v8, v8, 2, v11')
    a.e(f's_lshr_b32 s77, s{S_W}, 1')
    a.e('s_lshl_b32 s85, s83, 16')
    a.e('s_lshl_b32 s86, s77, 21')
    a.e('s_add_u32 s85, s85, s86')
    a.e('s_lshl_b32 s86, s82, 8')
    a.e('s_add_u32 s85, s85, s86')
    a.e('v_lshlrev_b32 v3, 13, v1')
    a.e('v_lshl_add_u32 v3, v8, 4, v3')
    a.e('v_add_u32 v3, s85, v3')
    a.e('v_add_u32 v4, 0xffffe800, v3')
    a.e('v_add_u32 v5, 0xfffff800, v3')
    a.e('v_add_u32 v6, 0x1000, v3')
    a.e('s_lshl_b32 s86, s82, 10')
    a.e('v_lshlrev_b32 v7, 6, v8')
    a.e('v_add_u32 v7, s86, v7')
    a.e('s_lshl_b32 s87, s82, 1')
    a.e('s_add_u32 s87, s87, s77')
    a.e('s_lshl_b32 s87, s87, 5')
    a.e('s_add_u32 s87, s87, s83')
    a.e('s_lshl_b32 s88, s87, 13')
    a.e('s_add_u32 s88, s88, 48')
    a.e('v_lshlrev_b32 v160, 9, v8')
    a.e('v_lshl_add_u32 v160, v10, 8, v160')
    a.e('v_lshlrev_b32 v161, 4, v9')
    a.e('v_sub_u32 v160, v160, v161')
    a.e('v_add_u32 v160, s88, v160')
    a.e('s_lshl_b32 s87, s87, 1')
    a.e(f's_and_b32 s86, s{S_W}, 1')
    a.e('s_add_u32 s87, s87, s86')
    a.e(f's_lshl_b32 s87, s87, {fsh()}')
    a.e('v_mov_b32 v162, 0')
    a.e(f's_mul_i32 s88, s{S_W}, {KA_REG}')
    a.e(f's_add_u32 s88, s88, {LDS_KA}')
    a.e('s_and_b32 s101, s2, 7')
    a.e('s_lshl_b32 s101, s101, 7')
    a.e('s_lshr_b32 s99, s2, 3')
    a.e('s_lshl_b32 s99, s99, 2')
    a.e('s_add_u32 s101, s101, s99')
    a.e(f's_add_u32 s101, s101, s{S_W}')
    a.e('s_lshl_b32 s99, s101, 12')
    a.e('s_and_b32 s80, s2, 1')
    a.e('s_lshl_b32 s80, s80, 2')
    a.e('s_bfe_u32 s81, s2, 0x20003')
    a.e('s_add_u32 s80, s80, s81')
    a.e('s_bfe_u32 s81, s2, 0x20001')
    a.e('s_lshl_b32 s81, s81, 3')
    a.e('s_lshr_b32 s91, s2, 5')
    a.e('s_add_u32 s81, s81, s91')
    a.e('s_lshl_b32 s91, s80, 5')
    a.e('s_add_u32 s91, s91, s81')
    a.e('s_lshl_b32 s96, s91, 2')
    a.e(f's_add_u32 s96, s96, s{S_W}')
    a.e('s_lshl_b32 s96, s96, 12')
    a.e('v_lshlrev_b32 v220, 4, v2')
    a.e('s_waitcnt lgkmcnt(0)')
    stamp(a, 0)
    if opt('stamp') and not opt('g2st'): a.e('v_writelane_b32 v1, s56, 30')
    KD, KX, XP = 200, 216, 224
    XPOS = 3; RS = 0
    g1 = G1(a)
    g2 = G2(a)
    KH = opt('kh2', 0)
    def k_loads(kd, kx, back=0):
        if back:
            a.e('s_sub_u32 s99, s99, 8192')
        srd(a, 68, P_SSMK, 4096, 0, 99)
        for j in range(4):
            a.e(f'buffer_load_dwordx4 v[{kd+4*j}:{kd+4*j+3}], v220, s[68:71], 0 offen offset:{1024*j}')
            a.e(f'buffer_load_dword v{kx+j}, v220, s[68:71], 0 offen offset:{1024*j+16}')
    def k_prep(n, kd, kx, sb):
        a.e('v_mov_b32 v196, 0')
        a.e('v_mov_b32 v197, 0')
        a.e('v_lshlrev_b32 v198, 3, v2')
        a.e(f'v_add_u32 v198, s{sb}, v198')
        a.e('ds_write_b64 v198, v[196:197] offset:4096')
        a.e('v_min_u32 v199, 7, v2')
        a.e('v_lshlrev_b32 v199, 2, v199')
        a.e(f'v_add_u32 v199, s{sb}, v199')
        a.e('ds_write_b32 v199, v196 offset:4608')
        a.e(f'v_add_u32 v198, s{sb}, v220')
        for j in range(4):
            a.e(f's_waitcnt vmcnt({n+6-2*j})')
            d = kd + 4 * j
            if j == 0:
                a.e(f'v_readfirstlane_b32 s58, v{d}')
            a.e(f'ds_write_b128 v198, v[{d}:{d+3}] offset:{4608+32+1024*j}')
            for q in range(4):
                hi = d + q + 1 if q < 3 else kx + j
                a.e(f'v_alignbit_b32 v{224+4*j+q}, v{hi}, v{d+q}, 16')
            a.e(f'ds_write_b128 v198, v[{224+4*j}:{224+4*j+3}] offset:{4608+4160+32+1024*j}')
        a.e('s_lshl_b32 s58, s58, 16')
        a.e('v_cmp_le_u32 vcc, 7, v2')
        a.e('v_mov_b32 v197, s58')
        a.e('s_nop 0')
        a.e('v_cndmask_b32 v197, v196, v197, vcc')
        a.e(f'ds_write_b32 v199, v197 offset:{4608+4160}')
    def later_setup():
        g2.front_setup(); g1.setup_dma()
    srd(a, 44, P_DBG, 256)
    a.e('s_cmp_eq_u32 s77, 0')
    a.e('s_cbranch_scc1 L_p0')
    def pub(wv, wait):
        a.e('s_or_b32 s56, s56, 1')
        a.e(f's_xor_b32 s57, s{S_W}, {wv}')
        a.e('s_or_b32 s57, s57, s2')
        a.e('s_cmp_lg_u32 s57, 0')
        a.e('s_cbranch_scc1 L_nonce_skip')
        a.e('v_mov_b32 v163, s56')
        a.e('s_mov_b64 exec, 1')
        a.e('buffer_store_dword v163, v162, s[44:47], 0 offen sc1')
        a.e('s_mov_b64 exec, -1')
        if wait: a.e('s_waitcnt vmcnt(0)')
        a.e('L_nonce_skip:')
    if opt('np', 0): pub(3, False)
    k_loads(KD, KX)
    if KH: k_loads(100, 116, back=1)
    later_setup()
    KR, VR_, WR, WU, KU, AC0 = 8, 36, 52, 68, 100, 164
    def p0_loads():
        srd(a, 32, P_K, 4 * MB)
        srd(a, 36, P_V, 4 * MB)
        srd(a, 40, P_SH, 8192)
        for j in range(4):
            a.e(f'buffer_load_dwordx4 v[{WR+4*j}:{WR+4*j+3}], v7, s[40:43], 0 offen offset:{16*j}')
        rows = [(4, 0), (4, 2048), (5, 0), (3, 0), (3, 2048), (6, 0), (6, 2048)]
        for r, (vr, off) in enumerate(rows):
            a.e(f'buffer_load_dwordx4 v[{KR+4*r}:{KR+4*r+3}], v{vr}, s[32:35], 0 offen offset:{off}')
        for r, (vr, off) in enumerate(rows[3:]):
            a.e(f'buffer_load_dwordx4 v[{VR_+4*r}:{VR_+4*r+3}], v{vr}, s[36:39], 0 offen offset:{off}')
    HD = opt('hd', 2)
    if HD < 2:
        assert not KH
        if HD == 1: a.e('s_waitcnt vmcnt(6)')
        p0_loads()
        k_prep(15, KD, KX, 88)
        a.e('s_branch L_p0b')
    else:
        k_prep(8 if KH else 0, KD, KX, 88)
        if KH:
            a.e(f's_sub_u32 s59, s88, {2*KA_REG}')
            k_prep(0, 100, 116, 59)
    a.e('L_p0:')
    p0_loads()
    a.e('L_p0b:')
    srd(a, 48, P_WS, 4 * MB, WS_UB)
    if not opt('np', 0): pub(0, True)
    srd(a, S_FLG, P_WS, FLG_SIZE, WS_FLG)
    a.e('s_waitcnt vmcnt(11)')
    for e in range(8):
        unpack(a, WU + 0 * 8 + e, WU + 1 * 8 + e, WR + 2 * e)
        unpack(a, WU + 2 * 8 + e, WU + 3 * 8 + e, WR + 2 * e + 1)
    for r in range(7):
        a.e(f's_waitcnt vmcnt({10-r})')
        for q in range(4):
            unpack(a, KU + 8 * r + 2 * q, KU + 8 * r + 2 * q + 1, KR + 4 * r + q)
        if r >= 3:
            i = r - 3
            for j in range(4):
                for q in range(4):
                    d = AC0 + 8 * i + 2 * q
                    k = KU + 8 * (i + 3 - j) + 2 * q
                    w = WU + 8 * j + 2 * q
                    if j == 0:
                        a.e(f'v_pk_mul_f32 v[{d}:{d+1}], v[{k}:{k+1}], v[{w}:{w+1}]')
                    else:
                        a.e(f'v_pk_fma_f32 v[{d}:{d+1}], v[{k}:{k+1}], v[{w}:{w+1}], v[{d}:{d+1}]')
    VU = 8
    for i in range(4):
        a.e(f's_waitcnt vmcnt({3-i})')
        if i == 3:
            a.e('buffer_load_dword v163, v162, s[44:47], 0 offen sc1')
        for q in range(4):
            unpack(a, VU + 2 * q, VU + 2 * q + 1, VR_ + 4 * i + q)
        for q in range(4):
            d = AC0 + 8 * i + 2 * q
            a.e(f'v_pk_mul_f32 v[{d}:{d+1}], v[{d}:{d+1}], v[{VU+2*q}:{VU+2*q+1}]')
    O = 52
    for e in range(4):
        q = O + 4 * e
        a.e(f'v_cvt_pk_bf16_f32 v{q}, v{AC0+28+e}, v{AC0+20+e}')
        a.e(f'v_cvt_pk_bf16_f32 v{q+1}, v{AC0+12+e}, v{AC0+4+e}')
        a.e(f'v_cvt_pk_bf16_f32 v{q+2}, v{AC0+24+e}, v{AC0+16+e}')
        a.e(f'v_cvt_pk_bf16_f32 v{q+3}, v{AC0+8+e}, v{AC0+e}')
    for e in range(4):
        q = O + 4 * e
        if e == 3: a.e('s_nop 0')
        a.e(f'v_permlane16_swap_b32 v{q+2}, v{q}')
        a.e(f'v_permlane16_swap_b32 v{q+3}, v{q+1}')
        a.e(f'buffer_store_dwordx4 v[{q}:{q+3}], v160, s[48:51], 0 offen offset:{64*e} sc1')
    stamp(a, 1)
    a.e('s_waitcnt vmcnt(4)')
    a.e('L_nonce:')
    a.e(f'v_readfirstlane_b32 s{S_NONCE}, v163')
    a.e('s_nop 0')
    a.e(f's_cmp_lg_u32 s{S_NONCE}, 0')
    a.e('s_cbranch_scc1 L_nonce_ok')
    a.e('s_add_u32 s3, s3, 1')
    a.e(f's_cmp_gt_u32 s3, {opt("spin", 200000)}')
    a.e('s_cbranch_scc1 L_nonce_ok')
    a.e('buffer_load_dword v163, v162, s[44:47], 0 offen sc1')
    a.e('s_waitcnt vmcnt(0)')
    a.e('s_branch L_nonce')
    a.e('L_nonce_ok:')
    a.e(f'v_mov_b32 v163, s{S_NONCE}')
    def flag0(n):
        a.e(f's_waitcnt vmcnt({n})')
        a.e('s_mov_b64 exec, 1')
        a.e(f'buffer_store_dword v163, v162, s[{S_FLG}:{S_FLG+3}], s87 offen sc1')
        a.e('s_mov_b64 exec, -1')
    a.e('s_cmp_eq_u32 s77, 0')
    a.e('s_cbranch_scc0 L_p0hi')
    if KH:
        code_pf(a, 'L_p0hi', 'L_g1epi', 164)
        flag0(1)
        later_setup()
    else:
        if opt('kl', 1):
            code_pf(a, 'L_p0hi', 'L_g1epi', 164)
            flag0(1)
            k_loads(KD, KX)
            later_setup()
            k_prep(0, KD, KX, 88)
        else:
            k_loads(KD, KX)
            code_pf(a, 'L_p0hi', 'L_g1epi', 164)
            flag0(9)
            later_setup()
            k_prep(2, KD, KX, 88)
        a.e('s_branch L_p0j')
    a.e('L_p0hi:')
    if not KH:
        flag0(0)
        a.e('L_p0j:')
    stamp(a, 2)
    a.e('s_and_b32 s82, s2, 7')
    a.e('s_lshr_b32 s83, s2, 3')
    a.e('s_lshl_b32 s84, s83, 2')
    a.e(f's_add_u32 s84, s84, s{S_W}')
    a.e('s_mov_b32 s85, s101')
    a.e('s_lshl_b32 s86, s82, 5')
    a.e('s_add_u32 s86, s86, s83')
    a.e('s_lshr_b32 s57, s85, 1')
    a.e('s_lshl_b32 s57, s57, 2')
    a.e(f's_load_dword s89, s[{P_D}:{P_D+1}], s57')
    a.e('v_lshlrev_b32 v4, 4, v2')
    a.e('v_lshrrev_b32 v3, 2, v2')
    a.e('v_sub_u32 v3, 15, v3')
    a.e('v_lshlrev_b32 v3, 13, v3')
    a.e('v_and_b32 v5, 3, v2')
    a.e('v_lshl_add_u32 v3, v5, 4, v3')
    a.e('s_lshl_b32 s56, s84, 6')
    a.e('v_add_u32 v3, s56, v3')
    a.e(f'v_lshlrev_b32 v34, {fsh()}, v2')
    a.e('v_and_b32 v5, 15, v2')
    a.e('v_lshrrev_b32 v6, 4, v2')
    a.e('v_add_u32 v31, 1, v5')
    a.e('v_and_b32 v32, 1, v31')
    a.e('v_sub_u32 v31, v31, v32')
    a.e('v_lshl_add_u32 v31, v6, 3, v31')
    a.e('v_lshlrev_b32 v31, 1, v31')
    a.e('v_mul_u32_u24 v32, 4160, v32')
    a.e('v_add3_u32 v31, v31, v32, s88')
    VA, VB, ACC = 36, 40, 44
    for j in range(4):
        a.e(f'v_add_u32 v{VA+j}, {4608+1024*j}, v31')
    a.e('v_lshlrev_b32 v32, 5, v5')
    a.e('v_lshlrev_b32 v33, 4, v6')
    a.e('v_sub_u32 v33, v33, v32')
    a.e('v_add_u32 v33, s88, v33')
    a.e(f'v_add_u32 v{VB}, 480, v33')
    a.e('v_add_u32 v7, s88, v4')
    zero_acc(a, ACC, 32, 92)
    FA = [96, 112]; FB = [128, 144]
    def areg(r, mq): return (f'a', 16 * r + 4 * mq) if mq < 4 else ('v', FA[r & 1] + 4 * (mq - 4))
    def rdA(r, mq):
        o = 128 * (mq & 1) + 16 * r
        t_, f = areg(r, mq)
        return [f'ds_read2_b32 {t_}[{f}:{f+1}], v{VA+(mq>>1)} offset0:{o} offset1:{o+1}', f'ds_read2_b32 {t_}[{f+2}:{f+3}], v{VA+(mq>>1)} offset0:{o+2} offset1:{o+3}']
    def breg(r, d): return (FB[r & 1] if d < 4 else 160 + 16 * (r % 3)) + 4 * (d & 3)
    def rdB(r, d):
        f = breg(r, d)
        return f'ds_read_b128 v[{f}:{f+3}], v{VB} offset:{512*(7-d)+64*r}'
    a.e('s_waitcnt lgkmcnt(0)')
    a.e('s_bitcmp1_b32 s85, 0')
    a.e('s_cselect_b32 s56, 0, 16')
    a.e('s_lshl_b32 s89, s89, s56')
    a.e('s_and_b32 s89, s89, 0xffff0000')
    a.e(f's_lshl_b32 s99, s82, {7+fsh()}')
    if KH:
        wait_flags(a, 99, 34, 35, solo=0)
        a.e(f's_cmp_lt_u32 s{S_W}, 2')
        a.e('s_cbranch_scc1 L_p0f')
        flag0(0)
        a.e('L_p0f:')
    else:
        for mq in range(8):
            for l in rdA(0, mq): a.e(l)
        wait_flags(a, 99, 34, 35, solo=0)
    stamp(a, 3)
    a.e('s_lshl_b32 s101, s82, 19')
    UR = 8
    def u_loads(hf, E):
        for i in range(2):
            a.e(f's_add_u32 s57, s101, {hf*262144 + (16-16*i)*8192:#x}')
            E(f'buffer_load_dwordx4 v[{UR+4*i}:{UR+4*i+3}], v3, s[48:51], s57 offen sc1')
    u_loads(0, a.e)
    if KH:
        a.e('s_barrier')
        for mq in range(8):
            for l in rdA(0, mq): a.e(l)
    wfr = opt('la', 2) / 2
    a.e(f's_mul_i32 s56, s2, {int(7168*wfr)}')
    a.e(f's_mul_i32 s57, s{S_W}, {int(1792*wfr)}')
    a.e('s_add_u32 s56, s56, s57')
    a.e('v_lshlrev_b32 v41, 7, v2')
    LK = Lin(a)
    wpl = []
    for n_, P_ in enumerate((P_W1, P_W3)):
        sd = (40, 32)[n_]
        srd(a, sd, P_, int(1792 * wfr), 0, 56)
        wpl.append(lambda sd=sd: LK.v('pf', f'buffer_load_dword v42, v41, s[{sd}:{sd+3}], 0 offen'))
    srd(a, 36, P_Q, 4 * MB)
    a.e(f's_add_u32 s99, s99, {64 << fsh()}')
    for i in range(2):
        a.e(f's_waitcnt vmcnt({1-i})')
        a.e(f'ds_write_b128 v7, v[{UR+4*i}:{UR+4*i+3}] offset:{2048+1024*i}')
    a.e('s_waitcnt lgkmcnt(0)')
    for d in range(4): a.e(rdB(0, d))
    stamp(a, 4)
    g1e = [[(lambda l=l: a.e(l)) for l in grp] for grp in g1.early_dma()]
    def grp(fs): return lambda: [f() for f in fs]
    g1e = [grp(x) for x in g1e]
    p01 = [(lambda f=f: (f(), LK.vm.append('w2') if 'buffer' in a.lines[-1] or 'buffer' in a.lines[-2] and 's72' in a.lines[-1] and 'add' in a.lines[-1] else None)) for f in g2.fD([(0, 2), (1, 3)])]
    NF0 = 4
    xl = [(lambda r_=r_, hh=hh: LK.v('x', f'buffer_load_dwordx4 v[{XP+8*r_+4*hh}:{XP+8*r_+4*hh+3}], v4, s[36:39], s96 offen offset:{2048*r_+1024*hh}')) for r_ in range(2) for hh in range(2)]
    RP = opt('rp', 4)
    def chk():
        LK.wait(vm=('fb',))
        a.e(f'v_cmp_ne_u32 vcc, s{S_NONCE}, v35')
        a.e('s_cbranch_vccz L_f0b')
        wait_flags(a, 99, 34, 35, solo=0)
        a.e('L_f0b:')
        u_loads(1, lambda t: LK.v('u', t))
    def uw(i):
        def f():
            if i == 0: LK.wait(vm=('u',))
            LK.l('uw', f'ds_write_b128 v7, v[{UR+4*i}:{UR+4*i+3}] offset:{1024*i}')
        return f
    f1 = {r: [] for r in range(8)}
    RL = opt('rl', 1)
    f1[RL] = f1[RL] + [lambda: LK.v('fb', f'buffer_load_dword v35, v34, s[{S_FLG}:{S_FLG+3}], s99 offen sc1')]
    XA = opt('xa', 0)
    if XA == 0:
        f1[RP] = f1[RP] + xl; f1[RP + 1] = f1[RP + 1] + wpl[:1]
    elif XA == 1:
        f1[0] = xl + f1[0]; f1[RP] = f1[RP] + wpl[:1]
    elif XA == 2:
        f1[0] = wpl[:1] + f1[0]; f1[RP] = f1[RP] + xl
    else:
        f1[RP] = f1[RP] + xl; f1[RP + 2] = f1[RP + 2] + wpl[:1]
    f2 = {r: [] for r in range(8)}
    if XA in (1, 2): f1[RP + 2] = f1[RP + 2] + wpl[1:]
    elif XA == 3: f2[2] = wpl[1:]
    else: f2[0] = wpl[1:]
    f2[3] = p01[:3]; f2[4] = p01[3:5]; f2[5] = p01[5:8]; f2[6] = p01[8:]
    UE = 8
    LK.lg = [('B', 0, d) for d in range(4)]
    def RA(r, mq): return [(lambda t=t: LK.l(('A', r, mq), t)) for t in rdA(r, mq)]
    def RB(r, d): return lambda: LK.l(('B', r, d), rdB(r, d))
    for ph in range(2):
        for r in range(8):
            if ph == 0:
                ms = [(mq, d) for mq in range(8) for d in range(4) if mq + d < 8]
                nxt = []
                if r < 7:
                    for x in range(8):
                        if x < 4: nxt.append(RB(r + 1, x))
                        nxt += RA(r + 1, x)
                fl = list(f1[r])
            else:
                ms = [(mq, d) for d in range(4, 8) for mq in range(4) if mq + d < 8]
                nxt = [RB(r + 2, d) for d in range(4, 8)] if r < 6 else []
                if r == 5:
                    a.e('v_lshlrev_b32 v32, 5, v5')
                    a.e('v_lshl_add_u32 v32, v6, 3, v32')
                    a.e(f'v_sub_u32 v34, {4088-3584}, v32')
                    a.e('v_add_u32 v34, s88, v34')
                    a.e('v_add_u32 v35, s88, v32')
                if r >= 6:
                    nxt = [(lambda c=c: LK.l('ue', f'ds_read_b64 v[{UE+2*c}:{UE+2*c+1}], v34 offset:{512*(7-c)}')) for c in range(4 * (r - 6), 4 * (r - 5))]
                fl = list(f2[r])
            if ph == 0 and r == RP: chk()
            per = max(1, -(-len(fl) // len(ms)))
            evr = max(1, len(ms) // max(1, len(fl)) // 2)
            for k, (mq, d) in enumerate(ms):
                c = mq + d
                t_, fa = areg(r, mq); fb = breg(r, d)
                LK.wait(lg=(('A', r, mq), ('B', r, d)))
                a.e(f'v_mfma_f32_16x16x32_bf16 v[{ACC+4*c}:{ACC+4*c+3}], {t_}[{fa}:{fa+3}], v[{fb}:{fb+3}], v[{ACC+4*c}:{ACC+4*c+3}]')
                if k < len(nxt): nxt[k]()
                if k % evr == evr - 1:
                    for _ in range(per):
                        if fl: fl.pop(0)()
                if ph == 0 and r == 7:
                    if k == opt('uk', 10): uw(0)()
                    if k == opt('uk', 10) + 1: uw(1)()
                    if opt('uk', 10) + 2 <= k < opt('uk', 10) + 10:
                        q = k - opt('uk', 10) - 2
                        RB(q >> 2, 4 + (q & 3))()
            assert not fl, (ph, r, len(fl))
    nk01 = 8; wpl = []
    xwait = len(LK.vm) - max(i for i, t in enumerate(LK.vm) if t == 'x') - 1
    a.e('s_waitcnt lgkmcnt(0)')
    stamp(a, 5)
    a.e('L_kbcode:')
    X = 96
    for c in range(8):
        unpack(a, X + 4 * c + 3, X + 4 * c + 2, UE + 2 * c)
        unpack(a, X + 4 * c + 1, X + 4 * c + 0, UE + 2 * c + 1)
    for c in range(8):
        for r in range(4):
            a.e(f'v_fma_f32 v{X+4*c+r}, v{X+4*c+r}, s89, v{ACC+4*c+r}')
        a.e(f'v_cvt_pk_bf16_f32 v{UE+2*c}, v{X+4*c}, v{X+4*c+1}')
        a.e(f'v_cvt_pk_bf16_f32 v{UE+2*c+1}, v{X+4*c+2}, v{X+4*c+3}')
        a.e(f'ds_write_b64 v35, v[{UE+2*c}:{UE+2*c+1}] offset:{4608+512*c}')
    a.flush_inject()
    LIN[0] = None
    a.e('v_lshlrev_b32 v32, 2, v0')
    a.e(f'v_add_u32 v32, {LDS_KA}, v32')
    YL_ = opt('yl', 1)
    a.e(f'v_lshrrev_b32 v33, {2+YL_}, v0')
    a.e(f'v_lshlrev_b32 v33, {14+YL_}, v33')
    a.e(f'v_and_b32 v34, {7 if YL_ else 3}, v0')
    a.e('v_lshl_add_u32 v33, v34, 4, v33')
    a.e(f's_lshl_b32 s56, s86, {6+YL_}')
    a.e('s_mov_b32 s57, 0x05040100')
    a.e('s_mov_b32 s58, 0x07060302')
    srd(a, 36, P_WS, 4 * MB, WS_Y2)
    a.e(f's_cmp_ge_u32 s{S_W}, 2')
    a.e('s_waitcnt lgkmcnt(0)')
    a.e('s_barrier')
    if RS: a.e('s_cbranch_scc1 L_y2skip')
    Y = 96; O = 128
    NP = 8 if RS else 4
    LY = Lin(a)
    def yrd(P):
        for ch in range(4):
            LY.l(P, f'ds_read_b32 v{Y+4*P+ch}, v32 offset:{ch*KA_REG+4608+4096//NP*P}')
    for P in range(4): yrd(P)
    for P in range(NP):
        LY.wait(lg=(P,))
        if P + 4 < NP: yrd(P + 4)
        y = Y + 4 * P; o = O + 4 * P
        a.e(f'v_perm_b32 v{o}, v{y+1}, v{y}, s57')
        a.e(f'v_perm_b32 v{o+1}, v{y+3}, v{y+2}, s57')
        a.e(f'v_perm_b32 v{o+2}, v{y+1}, v{y}, s58')
        a.e(f'v_perm_b32 v{o+3}, v{y+3}, v{y+2}, s58')
        a.e(f'buffer_store_dwordx4 v[{o}:{o+3}], v33, s[36:39], s56 offen sc1')
        if P < NP - 1:
            a.e(f's_add_u32 s56, s56, {256//NP*16384:#x}')
    LIN[0] = None
    if RS: a.e('L_y2skip:')
    stamp(a, 6)
    XU = [8, 24]; TT = [40, 56]; MM = [72, 74]; RR = [76, 78]; C = 80; YU = [100, 116]; XM = [140, 156]; SS = [172, 174]
    a.e(f's_waitcnt vmcnt({xwait + 4})')
    F45 = opt('f45', 0)
    if F45: a.inject(g2.fD([(2, 0), (3, 1)]), 3)
    for r in range(2):
        for q in range(8):
            unpack(a, XU[r] + 2 * q, XU[r] + 2 * q + 1, XP + 8 * r + q)
    a.flush_inject()
    a.e(f'v_mov_b32 v{C}, 0x3a800000')
    a.e(f's_lshl_b32 s87, s2, {f1sh()}')
    a.e(f's_add_u32 s87, s87, {F1}')
    def w1():
        if RS:
            a.e(f's_bitcmp1_b32 s{S_W}, 1')
            a.e('s_cbranch_scc1 L_y2nw')
            a.e('s_waitcnt vmcnt(0)')
            a.e('L_y2nw:')
            a.e(f's_cmp_eq_u32 s{S_W}, 0')
        else:
            a.e(f's_waitcnt vmcnt({8 if F45 else 0})')
    signal(a, 87, 82, waitfn=w1)
    if RS:
        a.inject(g1e[:10] + p01 + g2.fD([(2, 0), (3, 1)]), 4)
    else:
        if NF0 >= 2: g2.fM([(0, 2), (1, 3)])
        a.inject(g1e[:10] + ([] if F45 or NF0 < 4 else g2.fD([(2, 0), (3, 1)])), 12 if F45 or NF0 < 4 else 6)
    ln2(a, XU, TT, MM, RR, C, XM)
    a.flush_inject()
    a.e('v_lshlrev_b32 v5, 7, v2')
    a.e(f'v_lshlrev_b32 v139, {7+YL_}, v2')
    a.e(f'v_add_u32 v6, {0x2000 << YL_:#x}, v139')
    if YL_:
        a.e('s_lshr_b32 s82, s91, 1')
        a.e('s_lshl_b32 s82, s82, 15')
        a.e('s_and_b32 s83, s91, 1')
        a.e('s_lshl_b32 s83, s83, 6')
        a.e('s_add_u32 s82, s82, s83')
    else:
        a.e('s_lshl_b32 s82, s91, 14')
    if opt('yd', 1):
        assert YL_
        a.e(f's_lshl_b32 s83, s{S_W}, 13')
        a.e('s_add_u32 s82, s82, s83')
        a.e('v_lshrrev_b32 v176, 4, v2')
        a.e('v_xor_b32 v176, v176, v2')
        a.e('v_and_b32 v176, 3, v176')
        a.e('v_lshlrev_b32 v176, 4, v176')
        a.e('v_lshrrev_b32 v177, 2, v2')
        a.e('v_lshl_add_u32 v176, v177, 7, v176')
        for i in range(1, 4):
            a.e(f'v_add_u32 v{176+i}, {1024*i}, v176')
        a.e(f's_lshl_b32 s83, s{S_W}, 12')
        a.e(f's_add_u32 m0, s83, {LDS_KA + 16384}')
        a.e('v_bfe_u32 v180, v2, 1, 2')
        a.e(f'v_xor_b32 v180, s{S_W}, v180')
        a.e('v_lshl_add_u32 v180, v180, 4, v5')
        a.e(f'v_add_u32 v180, {LDS_KA + 16384}, v180')
    else:
        a.e(f's_lshl_b32 s83, s{S_W}, 4')
        a.e('s_add_u32 s82, s82, s83')
    srd(a, 40, P_WS, 4 * MB, WS_H)
    srd(a, 44, P_WS, 4 * MB, WS_HNF)
    a.e('v_and_b32 v7, 7, v2')
    a.e(f's_lshl_b32 s83, s{S_W}, 1')
    a.e('v_xor_b32 v132, s83, v7')
    a.e('v_lshl_add_u32 v132, v132, 4, v5')
    a.e(f'v_add_u32 v132, {LDS_KA}, v132')
    a.e('v_xor_b32 v133, 16, v132')
    a.e('v_lshrrev_b32 v134, 3, v2')
    a.e('v_xor_b32 v135, v134, v7')
    a.e('v_lshlrev_b32 v135, 4, v135')
    a.e('v_lshl_add_u32 v135, v134, 7, v135')
    a.e(f's_lshl_b32 s83, s{S_W}, 12')
    a.e(f's_add_u32 s83, s83, {LDS_KA}')
    a.e('v_add_u32 v135, s83, v135')
    HC = opt('hc', 0)
    if HC:
        a.e('v_lshlrev_b32 v136, 4, v2')
        a.e('s_lshl_b32 s84, s91, 14')
        a.e(f's_lshl_b32 s85, s{S_W}, 12')
        a.e('s_add_u32 s84, s84, s85')
    else:
        a.e('v_lshrrev_b32 v136, 5, v2')
        a.e('v_lshlrev_b32 v136, 12, v136')
        a.e('v_bfe_u32 v137, v2, 3, 2')
        a.e('v_lshl_add_u32 v136, v137, 8, v136')
        a.e('v_lshl_add_u32 v136, v7, 4, v136')
        a.e('s_lshr_b32 s84, s91, 3')
        a.e('s_lshl_b32 s84, s84, 17')
        a.e('s_bfe_u32 s85, s91, 0x20001')
        a.e('s_lshl_b32 s85, s85, 10')
        a.e('s_add_u32 s84, s84, s85')
        a.e('s_and_b32 s85, s91, 1')
        a.e('s_lshl_b32 s85, s85, 7')
        a.e('s_add_u32 s84, s84, s85')
        a.e(f's_lshl_b32 s85, s{S_W}, 15')
        a.e('s_add_u32 s84, s84, s85')
    a.e(f's_mov_b32 s85, {F1}')
    a.e('s_waitcnt lgkmcnt(0)')
    stamp(a, 7)
    a.e(f'v_lshlrev_b32 v138, {4 if f1sh() == 2 else f1sh()}, v2')
    wait_flags(a, 85, 138, 128, n=256)
    stamp(a, 8)
    YL = 84
    YD = opt('yd', 1)
    if YD:
        for i in range(4):
            a.e(f'buffer_load_dwordx4 v{176+i}, s[36:39], s82 offen offset:{1024*i} sc1 lds')
    else:
        a.e(f'buffer_load_dwordx4 v[{YL}:{YL+3}], v139, s[36:39], s82 offen sc1')
        a.e(f'buffer_load_dwordx4 v[{YL+4}:{YL+7}], v139, s[36:39], s82 offen offset:{64 << YL_} sc1')
        a.e(f'buffer_load_dwordx4 v[{YL+8}:{YL+11}], v6, s[36:39], s82 offen sc1')
        a.e(f'buffer_load_dwordx4 v[{YL+12}:{YL+15}], v6, s[36:39], s82 offen offset:{64 << YL_} sc1')
    a.e('s_waitcnt vmcnt(4)')
    if NF0 == 4: g2.fM(([(0, 2), (1, 3)] if RS else []) + [(2, 0), (3, 1)])
    if YD:
        a.e('s_waitcnt vmcnt(0)')
        a.e('s_barrier')
        a.e(f'ds_read_b128 v[{YL}:{YL+3}], v180')
        a.e(f'ds_read_b128 v[{YL+4}:{YL+7}], v180 offset:64')
        a.e(f'ds_read_b128 v[{YL+8}:{YL+11}], v180 offset:8192')
        a.e(f'ds_read_b128 v[{YL+12}:{YL+15}], v180 offset:8256')
    for cgi in range(4):
        a.e(f's_waitcnt {"lgkm" if YD else "vm"}cnt({3-cgi})')
        for r in range(2):
            for e in range(2):
                u = YU[r] + 4 * cgi + 2 * e
                unpack(a, u, u + 1, YL + 4 * cgi + 2 * r + e)
        for r in range(2):
            for e in range(2):
                u = YU[r] + 4 * cgi + 2 * e; x = XM[r] + 4 * cgi + 2 * e; t = TT[r] + 4 * cgi + 2 * e
                a.e(f'v_pk_fma_f32 v[{x}:{x+1}], v[{t}:{t+1}], v[{u}:{u+1}], v[{x}:{x+1}]')
        for r in range(2):
            for e in range(2):
                x = XM[r] + 4 * cgi + 2 * e
                if cgi == 0 and e == 0:
                    a.e(f'v_pk_mul_f32 v[{RR[r]}:{RR[r]+1}], v[{x}:{x+1}], v[{x}:{x+1}]')
                else:
                    a.e(f'v_pk_fma_f32 v[{RR[r]}:{RR[r]+1}], v[{x}:{x+1}], v[{x}:{x+1}], v[{RR[r]}:{RR[r]+1}]')
            x = XM[r] + 4 * cgi
            if cgi == 0: a.e(f'v_pk_add_f32 v[{SS[r]}:{SS[r]+1}], v[{x}:{x+1}], v[{x+2}:{x+3}]')
            else:
                a.e(f'v_pk_add_f32 v[{SS[r]}:{SS[r]+1}], v[{x}:{x+1}], v[{SS[r]}:{SS[r]+1}]')
                a.e(f'v_pk_add_f32 v[{SS[r]}:{SS[r]+1}], v[{x+2}:{x+3}], v[{SS[r]}:{SS[r]+1}]')
    if opt('kbst'): stamp(a, 16)
    for r in range(2):
        a.e(f'v_add_f32 v{SS[r]}, v{SS[r]}, v{SS[r]+1}')
        a.e(f'v_add_f32 v{RR[r]}, v{RR[r]}, v{RR[r]+1}')
    fl_ = []
    for r in range(2):
        for q in range(8):
            u = YU[r] + 2 * q; x = XU[r] + 2 * q; t = TT[r] + 2 * q
            fl_.append(f'v_pk_fma_f32 v[{x}:{x+1}], v[{t}:{t+1}], v[{u}:{u+1}], v[{x}:{x+1}]')
    for r in range(2):
        for q in range(8):
            fl_.append(f'v_cvt_pk_bf16_f32 v{XP+8*r+q}, v{XU[r]+2*q}, v{XU[r]+2*q+1}')
    for mod in ('row_shr:1 row_mask:0xf bank_mask:0xf bound_ctrl:0', 'row_shr:2 row_mask:0xf bank_mask:0xf bound_ctrl:0',
                'row_shr:4 row_mask:0xf bank_mask:0xf bound_ctrl:0', 'row_shr:8 row_mask:0xf bank_mask:0xf bound_ctrl:0',
                'row_bcast:15 row_mask:0xa bank_mask:0xf', 'row_bcast:31 row_mask:0xc bank_mask:0xf'):
        for v in (SS[0], SS[1], RR[0], RR[1]):
            a.e(f'v_add_f32_dpp v{v}, v{v}, v{v} {mod}')
    for i, v in enumerate((SS[0], SS[1], RR[0], RR[1])):
        a.e(f'v_readlane_b32 s{56+i}, v{v}, 63')
    def both(f):
        for r in range(2): f(r)
        if fl_: a.e(fl_.pop(0))
        if fl_: a.e(fl_.pop(0))
    def rbf(v):
        a.e(f'v_cvt_pk_bf16_f32 v{v}, v{v}, v{v}')
        a.e(f'v_and_b32 v{v}, s{S_MASK}, v{v}')
    both(lambda r: a.e(f'v_mul_f32 v{SS[r]}, s{56+r}, v{C}'))
    both(lambda r: a.e(f'v_mul_f32 v{RR[r]}, s{58+r}, v{C}'))
    both(lambda r: a.e(f'v_fma_f32 v{RR[r]}, -v{SS[r]}, v{SS[r]}, v{RR[r]}'))
    both(lambda r: a.e(f'v_max_f32 v{RR[r]}, 0, v{RR[r]}'))
    both(lambda r: rbf(RR[r]))
    both(lambda r: a.e(f'v_add_f32 v{RR[r]}, 0x3727c5ac, v{RR[r]}'))
    both(lambda r: rbf(RR[r]))
    both(lambda r: a.e(f'v_sqrt_f32 v{RR[r]}, v{RR[r]}'))
    both(lambda r: a.e(f'v_add_f32 v{SS[r]}, v{SS[r]}, v{MM[r]}'))
    both(lambda r: rbf(RR[r]))
    both(lambda r: a.e(f'v_rcp_f32 v{RR[r]}, v{RR[r]}'))
    both(lambda r: rbf(SS[r]))
    if opt('hs', 0): both(lambda r: a.e(f'v_mul_f32 v{RR[r]}, 0x3fb8aa3b, v{RR[r]}'))
    both(lambda r: a.e(f'v_sub_f32 v{SS[r]}, v{MM[r]}, v{SS[r]}'))
    both(lambda r: a.e(f'v_mul_f32 v{SS[r]}, v{SS[r]}, v{RR[r]}'))
    nh = len(fl_)
    for q in range(8):
        for r in range(2):
            x = XM[r] + 2 * q
            a.e(f'v_pk_fma_f32 v[{TT[r]+2*q}:{TT[r]+2*q+1}], v[{x}:{x+1}], v[{RR[r]}:{RR[r]+1}], v[{SS[r]}:{SS[r]+1}] op_sel_hi:[1,0,0]')
    for r in range(2):
        for q in range(8):
            a.e(f'v_cvt_pk_bf16_f32 v{YL+8*r+q}, v{TT[r]+2*q}, v{TT[r]+2*q+1}')
        for hh in range(2):
            a.e(f'ds_write_b128 v{132+r}, v[{YL+8*r+4*hh}:{YL+8*r+4*hh+3}] offset:{8192*hh}')
    for t_ in fl_: a.e(t_)
    a.e('s_waitcnt lgkmcnt(0)')
    a.e('s_barrier')
    for i in range(4):
        a.e(f'ds_read_b128 v[{100+4*i}:{103+4*i}], v135 offset:{1024*i}')
    for i in range(4):
        a.e(f's_waitcnt lgkmcnt({3-i})')
        if HC:
            a.e(f'buffer_store_dwordx4 v[{100+4*i}:{103+4*i}], v136, s[44:47], s84 offen offset:{1024*i} sc1')
        else:
            a.e(f'buffer_store_dwordx4 v[{100+4*i}:{103+4*i}], v136, s[44:47], s84 offen sc1')
            if i < 3: a.e('s_add_u32 s84, s84, 8192')
    stamp(a, 9)
    a.e(f's_lshl_b32 s87, s91, {fsh()}')
    a.e(f's_add_u32 s87, s87, {F2}')
    g2.front_save()
    if opt('s2e', 0):
        assert not F45
        signal(a, 87, 4)
        g1.pre_setup([])
    else:
        g1.pre_setup(g2.fD([(4, 0), (5, 1)], dv=28) if F45 else [])
        signal(a, 87, 4, waitfn=lambda: a.e(f's_waitcnt vmcnt({8 if F45 else 0})'))
    g2.NF = 8 if F45 else NF0 + 2
    def mv45():
        if not F45: return
        a.e('v_add_u32 v4, s73, v7')
        a.e('v_xor_b32 v5, 32, v4')
        a.e('s_waitcnt vmcnt(8)')
        g2.fM([(4, 0), (5, 1)], base=4)
    g1.hook = mv45
    g1.main()
    g1.epilogue(g2)
    g2.main()
    a.e(f's_or_b32 s57, s2, s{S_W}')
    a.e('s_cmp_lg_u32 s57, 0')
    a.e('s_cbranch_scc1 L_clean_skip')
    srd(a, 32, P_DBG, 256)
    a.e('v_mov_b32 v20, 0')
    a.e('s_mov_b64 exec, 1')
    a.e('buffer_store_dword v20, v20, s[32:35], 0 offen sc1')
    a.e('s_mov_b64 exec, -1')
    a.e('L_clean_skip:')
    stamp_out(a, NSTAMP)
    a.e('L_end:')
    a.e('s_endpgm')

G1_STG = 32768
class G1:
    TM, NW, DPW, ND = 4, 4, 8, 4
    ACC, WF, TF, DV, VT, VR, VL = 32, 0, 28, 8, 16, 17, 18
    DVE = 240
    def __init__(s, a): s.a = a
    def setup_dma(s):
        a = s.a
        a.e('s_and_b32 s56, s81, 1')
        a.e('s_lshl_b32 s56, s56, 1')
        a.e('s_movk_i32 s57, 4682')
        a.e('s_movk_i32 s58, 7168')
        a.e('v_mov_b32 v76, 0x80000000')
        a.e('v_subrev_u32 v77, 8, v2')
        for src, dst in ((2, 78), (77, 79)):
            a.e(f'v_cmp_gt_u32 vcc, 56, v{src}')
            a.e(f'v_mul_u32_u24 v80, s57, v{src}')
            a.e('v_lshrrev_b32 v80, 16, v80')
            a.e('v_mul_u32_u24 v81, 14, v80')
            a.e(f'v_sub_u32 v81, v{src}, v81')
            a.e('v_add_u32 v81, s56, v81')
            a.e('v_subrev_u32 v82, 14, v81')
            a.e('v_min_u32 v81, v81, v82')
            a.e('v_mul_u32_u24 v80, s58, v80')
            a.e('v_lshl_add_u32 v80, v81, 4, v80')
            a.e(f'v_cndmask_b32 v{dst}, v76, v80, vcc')
        for i in range(8):
            pat = 79 if (i >> 1) & 1 else 78
            c = i * 4 * 7168 - 1024 * (i & 3)
            a.e(f'v_add_u32 v{s.DVE+i}, {c}, v{pat}' if c else f'v_mov_b32 v{s.DVE+i}, v{pat}')
        a.e(f's_and_b32 s56, s{S_W}, 1')
        a.e(f's_lshr_b32 s57, s{S_W}, 1')
        a.e(f's_mul_i32 s97, s56, {8*4*7168}')
        a.e('s_mov_b32 s100, 458752')
        a.e('s_lshl_b32 s98, s57, 14')
        a.e('s_lshl_b32 s56, s56, 13')
        a.e('s_add_u32 s98, s98, s56')
        a.e('s_mul_i32 s56, s81, 224')
        a.e('s_cmp_eq_u32 s57, 0')
        a.e(f's_cselect_b32 s52, s{P_W1}, s{P_W3}')
        a.e(f's_cselect_b32 s53, s{P_W1+1}, s{P_W3+1}')
        srd(a, 52, 52, None, 0, 56)
        a.e('s_sub_u32 s54, 7340032, s56')
    def m0set(s, i): return f's_add_u32 m0, s98, {4096*(i//4)}' if i else 's_mov_b32 m0, s98'
    def dma(s, i, base): return f'buffer_load_dwordx4 v{base+i}, s[52:55], s97 offen offset:{1024*(i&3)}' + ['', ' sc1', ' nt', ' sc0'][opt('wfl')] + ' lds'
    def dma_adv(s): return ['s_add_u32 s97, s97, s100', f's_add_u32 s98, s98, {G1_STG}', 's_and_b32 s98, s98, 0x1ffff']
    def early_dma(s):
        out = []
        for st in range(2):
            for i in range(8):
                if i % 4 == 0: out.append([s.m0set(i)])
                out.append([s.dma(i, s.DVE)] + (s.dma_adv() if i == 7 else []))
        return out
    def tok(s, k, tm):
        f = s.TF + 4 * (4 * (k % s.ND) + tm)
        if opt('hc', 0):
            return f'buffer_load_dwordx4 a[{f}:{f+3}], v{(3, 25, 26, 27)[tm]}, s[32:35], s82 offen sc1'
        return f'buffer_load_dwordx4 a[{f}:{f+3}], v{s.VT}, s[32:35], s82 offen offset:{tm*1024}' + (' sc1' if opt('t1sc', 1) else '')
    def rd(s, ph, t):
        j, mat = (ph & 3) >> 1, ph & 1
        return [f'ds_read_b64_tr_b16 a[{s.WF+4*t+2*h}:{s.WF+4*t+2*h+1}], v{s.VR} offset:{8192*j+1024*h+32*t+16384*mat}' for h in range(2)]
    def pre_setup(s, inj):
        a = s.a
        for i in range(8): a.e(f'v_mov_b32 v{s.DV+i}, v{s.DVE+i}')
        for i in range(16): a.e(f'v_accvgpr_write_b32 a{92+i}, v{224+i}')
        zero_acc(a, s.ACC, 224, 20)
        a.e(f'v_lshlrev_b32 v{s.VT}, 4, v2')
        a.e('v_lshrrev_b32 v4, 4, v2')
        a.e('v_lshlrev_b32 v4, 11, v4')
        a.e('v_bfe_u32 v5, v2, 4, 1')
        a.e('v_lshl_add_u32 v4, v5, 7, v4')
        a.e('v_bfe_u32 v6, v2, 2, 2')
        a.e('v_mul_u32_u24 v5, 224, v6')
        a.e('v_and_b32 v6, 3, v2')
        a.e('v_lshl_add_u32 v5, v6, 3, v5')
        a.e(f'v_add_u32 v{s.VL}, v4, v5')
        a.e(f'v_mov_b32 v{s.VR}, v{s.VL}')
        if opt('hc', 0):
            a.e('v_bfe_u32 v4, v2, 3, 1')
            a.e('v_lshlrev_b32 v4, 14, v4')
            a.e('v_lshrrev_b32 v5, 4, v2')
            a.e('v_lshl_add_u32 v4, v5, 7, v4')
            a.e('v_and_b32 v5, 7, v2')
            a.e('v_lshl_add_u32 v3, v5, 4, v4')
            for i in range(1, 4): a.e(f'v_add_u32 v{24+i}, {32768*i}, v3')
        if opt('f2w', 0):
            a.e('v_and_b32 v19, 7, v2')
            a.e(f's_lshl_b32 s56, s{S_W}, 3')
            a.e('v_add_u32 v19, s56, v19')
        else:
            a.e('v_and_b32 v19, 31, v2')
        a.e(f'v_lshlrev_b32 v19, {fsh()}, v19')
        a.e('s_lshl_b32 s56, s80, 2')
        a.e(f's_add_u32 s56, s56, s{S_W}')
        a.e('s_lshl_b32 s57, s56, 17')
        srd(a, 32, P_WS, 131072, WS_HNF, 57)
        hf_base(a, 57, 80, S_W, 58)
        srd(a, 36, P_WS, 4 * 114688, 0, 57)
        a.e('s_and_b32 s58, s81, 1')
        a.e('s_mul_i32 s85, s81, 7')
        a.e('s_add_u32 s85, s85, s58')
        a.e('s_lshl_b32 s85, s85, 9')
        a.e('s_movk_i32 s86, 3072')
        a.e('s_cmp_eq_u32 s58, 0')
        a.e(f's_cselect_b32 s86, s86, {0xfffffe00 if opt("hl", 1) else 0xfffffc08:#x}')
        a.e('s_add_u32 s86, s86, s85')
        assert not inj
    def kof(s, s_, P): return 2 * s_ + (-1, 0, 0, 1)[P]
    def ev_ins(s, e):
        L = []
        if e[0] == 'D':
            if e[2] % 4 == 0: L.append(s.m0set(e[2]))
            L.append(s.dma(e[2], s.DV))
            if e[2] == 7: L += s.dma_adv()
        elif e[0] == 'Z':
            fl = ['', ' sc1'][opt('ps', 0) - 1]
            u = e[2]
            if u < 3: L = [f'buffer_store_dwordx4 v[24:27], v{s.VT}, s[36:39], s88 offen offset:{1024*u}{fl}']
            else: L = [f'buffer_store_dwordx2 v[24:25], v{s.VT}, s[36:39], s89 offen{fl}', 's_add_u32 s88, s88, 114688', 's_add_u32 s89, s89, 114688']
        elif e[0] == 'Q':
            L = [f'buffer_store_dwordx4 v[24:27], v{s.VT}, s[44:47], s99 offen', 's_add_u32 s99, s99, 1024']
        elif e[0] == 'V':
            L = ['s_mov_b32 m0, s89', 'buffer_load_dwordx4 v28, s[68:71], s72 offen lds', 's_add_u32 s72, s72, 32768', 's_add_u32 s89, s89, 1024']
        elif e[0] == 'U':
            if e[2] == 0: L = ['buffer_load_dword v0, v6, s[48:51], s101 offen']
            else: L = ['buffer_load_dword v0, v6, s[4:7], s101 offen', 's_add_u32 s101, s101, 917504']
        elif e[0] == 'C':
            L = ['global_load_dword v0, v23, s[78:79]', f's_cmp_ge_u32 s84, {opt("cpt", 5)}', 's_cselect_b32 s99, -1, 0', 'v_and_b32 v23, s99, v24']
        elif e[0] == 'Y':
            L = ['buffer_load_dword v0, v21, s[44:47], s88 offen', 's_add_u32 s88, s88, 1024']
        else:
            L.append(s.tok(e[1], e[2]))
            if e[2] == 3: L.append(f's_add_u32 s82, s82, {512 if opt("hc", 0) else 4096}')
        return L
    def main(s):
        a = s.a
        S = s.S = Sched()
        for s_ in range(-4, 8):
            for P in range(4):
                S.mark((s_, P))
                k = s.kof(s_, P) + s.ND - 1
                t0 = 2 if P in (0, 2) else 0
                S.add([('D', s_ + 2, 2 * P), ('T', k, t0), ('D', s_ + 2, 2 * P + 1), ('T', k, t0 + 1)])
                if opt('w2y', 0 if opt('rs', 0) else 1) and s_ % 2 == 0 and P == 1: S.add([('Y', s_, 0)])
                if opt('la', 2) < 8 and P == (3 if s_ % 2 == 0 else 2): S.add([('U', s_, s_ % 2)])
                if opt('vev', 1) and s_ % 2 == 1 and P == 1: S.add([('V', s_, 0)])
                if opt('cpg', 1) and s_ % 2 == 1 and P == 3: S.add([('C', s_, 0)])
                if opt('psx', 0) and P == 2 and s_ & 1: S.add([('Q', s_, 0)])
                if opt('ps', 0) and P in (1, 3): S.add([('Z', s_, 2 * (s_ & 1) + (P >> 1))])
        vm_bar = min(S.younger(('D', 4), (4, 0)), S.younger(('D', 5), (5, 0)))
        vm_p1 = min(S.younger(('T', 8), (4, 1)), S.younger(('T', 10), (5, 1)))
        vm_p3 = min(S.younger(('T', 9), (4, 3)), S.younger(('T', 11), (5, 3)))
        if opt('w2y', 0 if opt('rs', 0) else 1):
            a.e('s_mul_i32 s56, s2, 28672')
            a.e(f's_mul_i32 s57, s{S_W}, 7168')
            a.e('s_add_u32 s56, s56, s57')
            srd(a, 44, P_W2, 7168, 0, 56)
            a.e('v_min_u32 v21, 8, v2')
            a.e('v_lshlrev_b32 v21, 7, v21')
            a.e('s_mov_b32 s88, 0')
        a.e(f's_lshl_b32 s56, s80, {5+fsh()}')
        a.e(f's_add_u32 s56, s56, {F2}')
        if opt('psx', 0):
            srd(a, 44, P_WS, 8 * MB, WS_XP)
            a.e('s_lshl_b32 s99, s2, 2')
            a.e(f's_add_u32 s99, s99, s{S_W}')
            a.e('s_lshl_b32 s99, s99, 13')
        if opt('ps', 0):
            a.e('s_mov_b32 s88, s85')
            a.e('s_mov_b32 s89, s86')
            for r in range(4): a.e(f'v_mov_b32 v{24+r}, 0')
        a.e('s_add_u32 s89, s73, 98304')
        if opt('la', 2) < 8:
            a.e('s_mul_i32 s57, s2, 3584')
            a.e(f's_mul_i32 s58, s{S_W}, 896')
            a.e('s_add_u32 s57, s57, s58')
            srd(a, 48, P_W1, None, 0, 57)
            a.e('s_sub_u32 s50, 7340032, s57')
            srd(a, 4, P_W3, None, 0, 57)
            a.e('s_mov_b32 s6, s50')
            a.e(f's_mov_b32 s101, {917504 * opt("la", 2)}')
            a.e('v_min_u32 v6, 6, v2')
            a.e('v_lshlrev_b32 v6, 7, v6')
        if opt('cpg', 1):
            a.e('s_getpc_b64 s[78:79]')
            a.e('L_pcg:')
            a.e(f's_lshl_b32 s77, s{S_W}, 13')
            a.e('s_add_u32 s77, s77, L_g1epi-L_pcg')
            a.e('v_lshl_add_u32 v24, v2, 7, s77')
            a.e('v_min_u32 v24, L_end-L_pcg, v24')
            a.e('v_mov_b32 v23, 0')
        a.e('s_mov_b32 s82, 0')
        a.e('s_mov_b32 s83, 0')
        a.e('s_mov_b32 s84, 0')
        stamp(a, 10)
        d1 = [('D', 1, i) for i in range(8)] + [('D', 2, 0), ('D', 2, 1)]
        for e in d1:
            for l in s.ev_ins(e):
                a.e(l)
                if 'm0' in l: a.e('s_nop 0')
        s.hook()
        for t in range(6):
            for l in s.rd(0, t): a.e(l)
        a.e('s_waitcnt lgkmcnt(12)')
        wait_flags(a, 56, 19, 20, solo=0 if opt('f2w', 0) else None)
        stamp(a, 11)
        XE = opt('xe', 1)
        pro = d1 + [e for e in S.ev[:S.marks[(0, 1)]] if e[1] >= 0 and e[0] == 'T'] + ([] if XE else [('X', i, 0) for i in range(4)]) + [('U', -1 - i // 2, i & 1) for i in range(2 * opt('lx', 0))]
        for e in pro[len(d1):]:
            if e[0] == 'X':
                a.e(f'buffer_store_dwordx4 a[{92+4*e[1]}:{95+4*e[1]}], v{s.VT}, s[40:43], s96 offen offset:{1024*e[1]} sc1')
                continue
            for l in s.ev_ins(e):
                a.e(l)
                if 'm0' in l: a.e('s_nop 0')
        act = pro + S.ev[S.marks[(0, 1)]:]
        off = len(pro) - S.marks[(0, 1)]
        s.startup = {}
        need = -1
        for s_ in range(0, 6):
            for P, tags, N in ((0, [('D', s_)], vm_bar), (1, [('T', 2 * s_)], vm_p1), (3, [('T', 2 * s_ + 1)], vm_p3)):
                if (s_, P) == (0, 0): continue
                site = S.marks[(s_, P)] + off
                for tg in tags:
                    idx = [i for i, e in enumerate(act) if e[:2] == tg]
                    if not idx: continue
                    if site - max(idx) - 1 < N: need = max(need, max(idx))
        if need >= 0:
            a.e(f's_waitcnt vmcnt({S.marks[(0, 1)] + off - need - 1})')
        a.e('s_branch L_g1_P1')
        s.snake = 0
        if opt('al', 1):
            a.raw('.p2align 6')
            for _ in range(opt('alo', 0)): a.e('s_nop 0')
        a.e('L_g1_loop:')
        if opt('tw', 1):
            a.e('s_cmp_eq_u32 s84, 7')
            a.e('s_cbranch_scc0 L_g1_notw')
            for i in range(4):
                a.e(f'v_mov_b32 v{s.DV+i}, v{28+i}')
                a.e(f'v_add_u32 v{s.DV+4+i}, 131072, v{28+i}')
            a.e('s_mov_b64 s[52:53], s[68:69]')
            a.e('s_mov_b32 s54, s70')
            a.e('s_add_u32 s97, s72, 32768')
            a.e('s_mov_b32 s100, 262144')
            a.e('L_g1_notw:')
        for s_ in (4, 5):
            a.e(f's_add_u32 s83, s83, {G1_STG}')
            a.e('s_and_b32 s83, s83, 0x1ffff')
            a.e(f's_waitcnt vmcnt({vm_bar})')
            a.e('s_barrier')
            s.phase(s_, 0)
            if s_ == 4: a.e('L_g1_P1:')
            a.e(f's_waitcnt vmcnt({vm_p1})')
            s.phase(s_, 1)
            s.phase(s_, 2)
            a.e(f's_waitcnt vmcnt({vm_p3})')
            s.phase(s_, 3)
        if opt('g1st'):
            a.e('s_memtime s[66:67]')
            a.e('s_min_u32 s64, s84, 3')
            a.e('s_add_u32 s64, s64, 26')
            a.e('s_waitcnt lgkmcnt(0)')
            a.e('s_cmp_lt_u32 s84, 4')
            a.e('s_cselect_b32 s64, s64, 40')
            a.e('s_mov_b32 m0, s64')
            a.e('v_writelane_b32 v1, s66, m0')
        a.e('s_add_u32 s84, s84, 1')
        a.e('s_cmp_lt_u32 s84, 8')
        a.e('s_cbranch_scc1 L_g1_loop')
        a.e('L_g1epi:')
        s.pre = []
        if opt('eo', 0):
            a.e('s_mov_b32 s58, 0xbfb8aa3b')
            a.e('s_mov_b32 s59, 0xbfb8aa3b')
            for T, u in ((8, 0), (20, 1))[:opt('eo', 0)]:
                gs = [s.ACC + 4 * (t * 4) + e for t in (2 * u, 2 * u + 1) for e in (0, 2)]
                s.pre += [f'v_pk_mul_f32 v[{T+2*q}:{T+2*q+1}], v[{gs[q]}:{gs[q]+1}], s[58:59]' for q in range(4)]
                s.pre += [f'v_exp_f32 v{T+q}, v{T+q}' for q in range(8)]
                s.pre += [f'v_pk_add_f32 v[{T+2*q}:{T+2*q+1}], v[{T+2*q}:{T+2*q+1}], 1.0 op_sel_hi:[1,0]' for q in range(4)]
                s.pre += [f'v_rcp_f32 v{T+q}, v{T+q}' for q in range(8)]
        s.phase(6, 0, last=True)
        assert not s.pre
        stamp(a, 12)
    def phase(s, s_, P, last=False):
        a = s.a; S = s.S
        kbuf = s.kof(s_, P) % s.ND
        mat = (P + 1) & 1
        items = []
        if not last:
            nxt = S.marks[(s_, P + 1)] if P < 3 else S.marks[(s_ + 1, 0)]
            items = [s.ev_ins(e) for e in S.ev[S.marks[(s_, P)]:nxt]]
        slots = [[] for _ in range(7)]
        for p_, it in zip([1, 2, 4, 5, 6], items): slots[p_] = it
        if P == 0 and not last:
            slots[0] = [f'v_add_u32 v{s.VR}, s83, v{s.VL}']
        for t in range(7):
            a.e(f's_waitcnt lgkmcnt({10 if not (last and t) else 12-2*t})')
            R = s.rd(P - 1, 6) if t == 0 else ([] if last else s.rd(P, t - 1))
            X = list(slots[t])
            pre = [x for x in X if 'm0' in x]
            X = [x for x in X if 'm0' not in x]
            gaps = [[] for _ in range(4)]
            if R: gaps[0] = pre + [R[0]]; gaps[1] = [R[1]]
            gaps[2] = X[:1]; gaps[3] = X[1:]
            order = [0, 1, 2, 3]
            if s.snake & 1: order.reverse()
            s.snake += 1
            for n, tm in enumerate(order):
                c = s.ACC + 4 * ((mat * 7 + t) * 4 + tm)
                tf = s.TF + 4 * (4 * kbuf + tm)
                if not opt('g1x') & 1: a.e(f'v_mfma_f32_16x16x32_bf16 v[{c}:{c+3}], a[{s.WF+4*t}:{s.WF+4*t+3}], a[{tf}:{tf+3}], v[{c}:{c+3}]')
                for x in gaps[n]:
                    if opt('g1x') & 2 and x.startswith('ds_'): continue
                    if opt('g1x') & 4 and x.startswith('buffer'): continue
                    a.e(x)
                if last and not gaps[n]:
                    for _ in range(opt('eo', 0)):
                        if s.pre: a.e(s.pre.pop(0))
    def epilogue(s, g2):
        a = s.a
        L = Lin(a)
        a.e('s_mov_b32 s58, 0xbfb8aa3b')
        a.e('s_mov_b32 s59, 0xbfb8aa3b')
        if opt('xe', 1):
            for i in range(4):
                a.e(f'buffer_store_dwordx4 a[{92+4*i}:{95+4*i}], v{s.VT}, s[40:43], s96 offen offset:{1024*i} sc1')
        g2.early(L)
        a.e('v_lshlrev_b32 v17, 3, v2')
        T = 8
        k = 0
        for tm in range(4):
            for u in range(4):
                O = (20, 24)[k & 1]
                fill = g2.epi_fill(k)
                def F(n=1):
                    for _ in range(n):
                        if fill: fill.pop(0)()
                tiles = [2 * u, 2 * u + 1] if u < 3 else [6]
                gs = []; us = []
                for t in tiles:
                    gs += [s.ACC + 4 * (t * 4 + tm), s.ACC + 4 * (t * 4 + tm) + 2]
                    us += [s.ACC + 4 * ((7 + t) * 4 + tm), s.ACC + 4 * ((7 + t) * 4 + tm) + 2]
                n = len(gs)
                nins = 9 * n
                cnt = [0]; ev_ = max(1, nins // (len(fill) + 1))
                def V(t):
                    a.e(t); cnt[0] += 1
                    if cnt[0] % ev_ == 0: F(1)
                T = 8
                if k < opt('eo', 0):
                    T = (8, 20)[k]; O = (24 if opt('eo', 0) == 1 else 8, 12)[k]
                    if k == 0 and opt('eo', 0) == 2: O = 28 - 28 + 0
                else:
                    for q in range(n): V(f'v_pk_mul_f32 v[{T+2*q}:{T+2*q+1}], v[{gs[q]}:{gs[q]+1}], s[58:59]')
                    for q in range(2 * n): V(f'v_exp_f32 v{T+q}, v{T+q}')
                    for q in range(n): V(f'v_pk_add_f32 v[{T+2*q}:{T+2*q+1}], v[{T+2*q}:{T+2*q+1}], 1.0 op_sel_hi:[1,0]')
                    for q in range(2 * n): V(f'v_rcp_f32 v{T+q}, v{T+q}')
                for q in range(n): V(f'v_pk_mul_f32 v[{gs[q]}:{gs[q]+1}], v[{gs[q]}:{gs[q]+1}], v[{us[q]}:{us[q]+1}]')
                for q in range(n): V(f'v_pk_mul_f32 v[{T+2*q}:{T+2*q+1}], v[{T+2*q}:{T+2*q+1}], v[{gs[q]}:{gs[q]+1}]')
                for q in range(n): V(f'v_cvt_pk_bf16_f32 v{O+q}, v{T+2*q}, v{T+2*q+1}')
                if u < 3:
                    L.v('st', f'buffer_store_dwordx4 v[{O}:{O+3}], v{s.VT}, s[36:39], s85 offen offset:{1024*u}' + hfl())
                else:
                    L.v('st', f'buffer_store_dwordx2 v[{O}:{O+1}], v{17 if opt("hl", 1) else s.VT}, s[36:39], s86 offen' + hfl())
                F(len(fill))
                k += 1
            if tm < 3:
                a.e('s_add_u32 s85, s85, 114688')
                a.e('s_add_u32 s86, s86, 114688')
        a.e(f's_lshl_b32 s87, s91, {fsh()}')
        a.e(f's_add_u32 s87, s87, {F3}')
        stamp(a, 13)
        a.e('L_g2code:')
        if opt('s3e', 1):
            a.e('s_waitcnt lgkmcnt(0)')
            signal(a, 87, 5, waitfn=lambda: L.wait(vm=('st',)))
            g2.post_epilogue(bar=False)
        else:
            g2.post_epilogue()
            signal(a, 87, 5, waitfn=lambda: L.wait(vm=('st',)), wb=(opt('hfl') == 4))
        stamp(a, 18)

class G2:
    ACC, TF, DV, VT, RJ, TR, V1, VO, VF = 32, 96, 28, 16, 3, 8, 12, 13, 14
    REG = 40960
    def __init__(s, a): s.a = a
    def wreg(s, k, j):
        if k < 16: return 'a', 128 + 8 * k + 4 * j
        if k < 32: return 'a', 8 * (k - 16) + 4 * j
        NB = opt('nb', 12); nv = (160 - 4 * NB) // 8
        if k < 32 + nv: return 'v', 96 + 4 * NB + 8 * (k - 32) + 4 * j
        return 'a', 128 + 8 * (k - 32 - nv) + 4 * j
    def front_setup(s):
        a = s.a
        gm = opt('g2map', 1)
        s.pbit = 2 if gm == 2 else 1
        if gm == 2: a.e('s_bfe_u32 s76, s2, 0x10001')
        else: a.e('s_and_b32 s76, s2, 1')
        a.e('s_lshr_b32 s56, s2, 3')
        if gm:
            if gm == 2:
                a.e('s_andn2_b32 s74, 1, s2')
            else:
                a.e('s_bfe_u32 s74, s2, 0x10001')
            a.e('s_lshl_b32 s74, s74, 3')
            a.e('s_and_b32 s57, s56, 7')
            a.e('s_add_u32 s74, s74, s57')
            a.e('s_bfe_u32 s75, s2, 0x10002')
            a.e('s_lshl_b32 s75, s75, 2')
            a.e('s_lshr_b32 s57, s56, 3')
            a.e('s_add_u32 s75, s75, s57')
        else:
            a.e('s_bfe_u32 s74, s2, 0x20001')
            a.e('s_lshl_b32 s74, s74, 2')
            a.e('s_and_b32 s57, s56, 3')
            a.e('s_add_u32 s74, s74, s57')
            a.e('s_lshr_b32 s75, s56, 2')
        a.e('v_lshrrev_b32 v252, 2, v2')
        a.e('v_lshlrev_b32 v253, 11, v252')
        a.e('v_lshrrev_b32 v254, 3, v2')
        a.e('v_xor_b32 v254, v254, v2')
        a.e('v_and_b32 v254, 2, v254')
        a.e('v_and_or_b32 v254, v2, 1, v254')
        a.e('v_lshl_add_u32 v248, v254, 4, v253')
        for i in range(1, 4):
            a.e(f'v_add_u32 v{248+i}, {i*(32768-1024)}, v248')
        a.e('s_mul_i32 s56, s76, 3670016')
        a.e('s_lshl_b32 s57, s75, 8')
        a.e('s_add_u32 s56, s56, s57')
        a.e(f's_lshl_b32 s57, s{S_W}, 6')
        a.e('s_add_u32 s56, s56, s57')
        srd(a, 68, P_W2, None, 0, 56)
        a.e('s_sub_u32 s70, 7340032, s56')
        a.e('s_mov_b32 s72, 0')
        a.e('v_lshlrev_b32 v252, 6, v252')
        a.e('v_bfe_u32 v253, v2, 4, 1')
        a.e('v_lshl_add_u32 v252, v253, 5, v252')
        a.e('v_and_b32 v253, 3, v2')
        a.e('v_lshl_add_u32 v252, v253, 3, v252')
        a.e(f's_lshl_b32 s73, s{S_W}, 13')
        a.e('s_add_u32 s73, s73, 32768')
        a.e('v_add_u32 v253, s73, v252')
        a.e('v_xor_b32 v254, 32, v253')
    def fcell(s, n): return (32768, 36864, 0, 4096, 98304, 102400)[n]
    def fD(s, pairs, dv=248):
        a = s.a
        out = []
        for c, n in pairs:
            out.append(lambda n=n: a.e(f's_add_u32 m0, s73, {s.fcell(n)}'))
            for i in range(4):
                def f(i=i):
                    a.e(f'buffer_load_dwordx4 v{dv+i}, s[68:71], s72 offen offset:{1024*i} lds')
                    if i == 3: a.e('s_add_u32 s72, s72, 131072')
                out.append(f)
        return out
    def fM(s, pairs, base=253, sub=0):
        a = s.a
        for c, n in pairs:
            for kk in range(2):
                for j in range(2):
                    for h in range(2):
                        r, q = s.wreg(2 * c + kk, j)
                        a.e(f'ds_read_b64_tr_b16 {r}[{q+2*h}:{q+2*h+1}], v{base+j} offset:{s.fcell(n)-sub+2048*kk+1024*h}')
    def front_save(s):
        a = s.a
        for i in range(4): a.e(f'v_mov_b32 v{s.DV+i}, v{248+i}')
        a.e('v_mov_b32 v7, v252')
    def early(s, L):
        a = s.a; s.L = L
        a.e('s_mov_b32 s80, s74')
        a.e('s_mov_b32 s81, s75')
        a.e('s_mov_b32 s82, s76')
        a.e(f's_mul_i32 s98, s{S_W}, {s.REG}')
        a.e(f'v_add_u32 v{s.RJ}, s98, v7')
        a.e(f'v_xor_b32 v{s.RJ+1}, 32, v{s.RJ}')
        a.e('s_add_u32 s56, s73, 98304')
        a.e('v_add_u32 v5, s56, v7')
        a.e('v_xor_b32 v6, 32, v5')
        L.vm = ['tail'] + ['st'] * (4 if opt('xe', 1) else 0)
        mv = [(s.NF - 2, 4, 5, 98304), (s.NF - 1, 5, 5, 98304)]
        if opt('tw', 1):
            a.e('s_mov_b32 s72, s97')
            a.e('s_sub_u32 s56, s73, 32768')
            a.e('v_add_u32 v18, s56, v7')
            a.e('v_xor_b32 v19, 32, v18')
            mv += [(s.NF + i, (2, 3, 0, 1)[i], 18, 0) for i in range(4)]
            s.NF += 4
        items = []
        for c, n, base, sub in mv:
            for kk in range(2):
                for j in range(2):
                    for h in range(2):
                        r, q = s.wreg(2 * c + kk, j)
                        items.append(lambda r=r, q=q, h=h, j=j, n=n, kk=kk, base=base, sub=sub: a.e(f'ds_read_b64_tr_b16 {r}[{q+2*h}:{q+2*h+1}], v{base+j} offset:{s.fcell(n)-sub+2048*kk+1024*h}'))
        s.mv_items = items
        if opt('cpf2', 0): code_pf(a, 'L_g2code', 'L_end', 21, lambda t: L.v('cp', t))
        s.cell = {}
        s.free = list(range(10))
    def D(s, c):
        L = s.L
        def first():
            s.cell[c] = s.free.pop(0)
            L.e(f's_add_u32 m0, s98, {4096*s.cell[c]}')
        out = [first]
        for i in range(4):
            out.append(lambda i=i: L.v(('W', c), f'buffer_load_dwordx4 v{s.DV+i}, s[68:71], s72 offen offset:{1024*i} lds'))
        out.append(lambda: L.e('s_add_u32 s72, s72, 131072'))
        return out
    def M(s, c):
        L = s.L
        out = []
        for kk in range(2):
            for j in range(2):
                for h in range(2):
                    def f(kk=kk, j=j, h=h):
                        r, n = s.wreg(2 * c + kk, j)
                        L.l(('M', c), f'ds_read_b64_tr_b16 {r}[{n+2*h}:{n+2*h+1}], v{s.RJ+j} offset:{4096*s.cell[c]+2048*kk+1024*h}')
                    out.append(f)
        return out
    def Wv(s, c): return [lambda: s.L.wait(vm=(('W', c),))]
    def Fr(s, cs):
        def f():
            s.L.wait(lg0=True)
            for c in cs: s.free.append(s.cell[c])
        return [f]
    def epi_fill(s, k):
        D, M, Wv, Fr = s.D, s.M, s.Wv, s.Fr
        def cat(*xs): return [y for x in xs for y in x]
        s.A = []
        k0 = opt('mvk', 0)
        if k < k0: return []
        out, s.mv_items = s.mv_items[:12], s.mv_items[12:]
        if k == k0: out = [lambda: s.L.wait(vm=('tail',))] + out
        return out
    def post_epilogue(s, bar=True):
        a = s.a; L = s.L
        assert not s.A
        s.NA = s.NF + opt('ne', 0) + opt('na', 3)
        if bar:
            a.e('s_waitcnt lgkmcnt(0)')
            a.e('s_barrier')
        a.inject([f for c in range(s.NF + opt('ne', 0), s.NA) for f in s.D(c)], 4)
        a.e(f'v_mov_b32 v{s.TR}, v{s.VT}')
        for q in range(1, 4):
            a.e(f'v_add_u32 v{s.TR+q}, {q*s.REG}, v{s.VT}')
        a.e(f'v_add_u32 v{s.V1}, {114688-2048}, v{s.VT}')
        for q in range(4):
            a.e(f'v_add_u32 v{24+q}, {q*s.REG}, v17')
        zero_acc(a, s.ACC, 64, 96)
        a.flush_inject()
        a.e('s_lshl_b32 s56, s80, 3')
        a.e(f's_lshl_b32 s57, s{S_W}, 1')
        a.e('s_lshl_b32 s58, s82, 2')
        a.e('s_xor_b32 s57, s57, s58')
        a.e('s_add_u32 s56, s56, s57')
        a.e('s_lshr_b32 s83, s56, 4')
        a.e('s_bfe_u32 s84, s56, 0x20002')
        hf_base(a, 57, 83, 84, 58)
        a.e('s_and_b32 s56, s56, 3')
        a.e('s_mul_i32 s56, s56, 114688')
        a.e('s_add_u32 s57, s57, s56')
        a.e('s_mul_i32 s58, s82, 57344')
        a.e('s_add_u32 s57, s57, s58')
        srd(a, 32, P_WS, 114688 + 57344, 0, 57)
        a.e('v_and_b32 v5, 15, v2')
        a.e('v_lshlrev_b32 v5, 11, v5')
        if opt('o4', 1):
            a.e('v_bfe_u32 v6, v2, 4, 1')
            a.e('v_lshl_add_u32 v5, v6, 5, v5')
            a.e('v_lshrrev_b32 v6, 5, v2')
            a.e(f'v_lshl_add_u32 v{s.VO}, v6, 4, v5')
        else:
            a.e('v_lshrrev_b32 v6, 4, v2')
            a.e(f'v_lshl_add_u32 v{s.VO}, v6, 3, v5')
        a.e('s_lshl_b32 s85, s80, 18')
        a.e('s_lshl_b32 s57, s82, 17')
        a.e('s_add_u32 s85, s85, s57')
        a.e('s_lshl_b32 s57, s81, 8')
        a.e('s_add_u32 s85, s85, s57')
        a.e(f's_lshl_b32 s57, s{S_W}, 6')
        a.e('s_add_u32 s85, s85, s57')
        a.e(f'v_and_b32 v{s.VF}, {15 if opt("f3h", 0) else 31}, v2')
        a.e(f'v_lshlrev_b32 v{s.VF}, {fsh()}, v{s.VF}')
    def main(s):
        a = s.a; L = s.L
        a.e('s_lshr_b32 s56, s80, 1')
        a.e(f's_lshl_b32 s56, s56, {5+fsh()}')
        a.e(f's_add_u32 s56, s56, {F3}')
        if opt('f3h', 0):
            a.e(f's_lshl_b32 s57, s82, {4+fsh()}')
            a.e('s_add_u32 s56, s56, s57')
            a.e(f's_lshl_b32 s97, s80, {4+fsh()}')
            a.e(f's_add_u32 s97, s97, {F3}')
        srd(a, 44, P_WS, 4 * MB, WS_H)
        a.e('s_mov_b32 s84, 0')
        L.wait(vm0=True)
        for c in range(s.NF, s.NA):
            for f in s.M(c): f()
        for f in s.Fr(range(s.NF, s.NA)): f()
        wait_flags(a, 56, s.VF, 20)
        stamp(a, 14)
        NS = 28
        slot = {}
        def TD(st):
            slot[st] = s.free.pop(0)
            out = [lambda: L.e(f's_add_u32 m0, s98, {4096*slot[st]}')]
            for i in range(4):
                v = s.VT if i < 2 else s.V1
                out.append(lambda i=i, v=v: L.v(('T', st), f'buffer_load_dwordx4 v{v}, s[32:35], s84 offen offset:{1024*i} sc1 lds'))
            out.append(lambda: (L.e('s_add_u32 s84, s84, 2048'), issued.add(st)))
            return out
        issued = set()
        NB = opt('nb', 12); KV = 32 + (160 - 4 * NB) // 8
        nxt = 0
        wc = opt('wc', 3)
        wfree, s.free = s.free[-wc:], s.free[:-wc]
        for _ in range(opt('t0', 3)):
            fs = TD(nxt); fs[0](); a.e('s_nop 0')
            for f in fs[1:]: f()
            nxt += 1
        L.wait(vm=(('T', 0),))
        a.e('s_barrier')
        X = opt('tx', 12)
        seq = [(k, tm) for k in range(56 - X) for tm in range(8)]
        seq += [(k, tm) for k in range(56 - X, 56) for tm in range(4, 8)]
        nS = len(seq)
        seq += [(k, tm) for k in range(56 - X, 56) for tm in range(4)]
        last_use = {}
        for g_, (k, tm) in enumerate(seq): last_use[k >> 1] = g_
        rdn = [0]
        def RDnext():
            if rdn[0] < 448:
                k, tm = seq[rdn[0]]
                f = s.TF + 4 * (rdn[0] % NB)
                o_ = 4096 * slot[k >> 1] + 2048 * (tm & 1) + 1024 * (k & 1)
                if opt('g2x') & 8 and rdn[0] & 1:
                    pass
                elif k % 7 == 3 and opt('hl', 1):
                    L.l(('R', rdn[0]), f'ds_read2st64_b64 v[{f}:{f+3}], v{24+(tm>>1)} offset0:{o_//512} offset1:{o_//512+1}')
                else:
                    L.l(('R', rdn[0]), f'ds_read_b128 v[{f}:{f+3}], v{s.TR+(tm>>1)} offset:{o_}')
                rdn[0] += 1
        for _ in range(NB - 1): RDnext()
        todo = list(range(s.NA, 28)); fly = []; pend = []; freed = set(); vis = 0; wseen = set()
        assert NB - 1 <= 16
        HR = 192
        a.e('s_lshl_b32 s56, s2, 2')
        a.e(f's_add_u32 s56, s56, s{S_W}')
        a.e('s_lshl_b32 s57, s56, 13')
        a.e(f's_xor_b32 s58, s57, {0x8000 * s.pbit:#x}')
        a.e('s_lshl_b32 s56, s56, 6')
        a.e(f's_add_u32 s56, s56, {F4}')
        a.e(f's_xor_b32 s59, s56, {0x100 * s.pbit:#x}')
        srd(a, 40, P_WS, 8 * MB, WS_XP)
        srd(a, 48, P_OUT, 4 * MB)
        a.e('s_add_u32 s87, s57, 4096')
        a.e('s_add_u32 s88, s58, 4096')
        a.e('v_mov_b32 v20, 0')
        a.e(f'v_mov_b32 v21, s{S_NONCE}')
        def flag_store():
            L.wait(vm=('xs',))
            if not opt('kbst'): stamp(a, 16)
            a.e('s_mov_b64 exec, 1')
            L.v('fl', f'buffer_store_dword v21, v20, s[{S_FLG}:{S_FLG+3}], s56 offen sc1')
            a.e('s_mov_b64 exec, -1')
        BP = opt('bp', 1)
        def xstores():
            out = []
            if BP:
                for q2 in range(4):
                    def f(q2=q2):
                        c = s.ACC + 32 + 8 * q2
                        for e in range(4): a.e(f'v_cvt_pk_bf16_f32 v{c+e}, v{c+2*e}, v{c+2*e+1}')
                        if opt('degr'):
                            m_ = (0xffff << opt('degr')) & 0xffff
                            for e in range(4): a.e(f'v_and_b32 v{c+e}, {m_ * 0x10001:#x}, v{c+e}')
                        L.v('xs', f'buffer_store_dwordx4 v[{c}:{c+3}], v{s.VT}, s[40:43], s57 offen offset:{1024*q2} sc1')
                    out += [lambda: None, f]
            else:
                for q in range(8):
                    c = s.ACC + 32 + 4 * q
                    out.append(lambda q=q, c=c: L.v('xs', f'buffer_store_dwordx4 v[{c}:{c+3}], v{s.VT}, s[40:43], s{57 if q < 4 else 87} offen offset:{1024*(q&3)} sc1'))
            return out
        gF = nS + opt('tf', 48) * (448 - nS) // 64 if X else None
        for u in range(56):
            k0 = seq[8 * u][0]
            fill = []
            GM = (0, 16, 32, 44, 50)
            if opt('g2st') and u in GM:
                a.e('s_memtime s[66:67]'); a.e('s_waitcnt lgkmcnt(0)'); L.lg = []
                a.e(f'v_writelane_b32 v1, s66, {26 + GM.index(u)}')
            if s.free and nxt < NS and (u & 1 or u < 8 or not todo or len(s.free) > 1):
                fill += TD(nxt); nxt += 1
                if not todo and not fly and s.free and nxt < NS:
                    fill += TD(nxt); nxt += 1
            if not u & 1 and u >= opt('wk0', 8):
                if fly and u >= fly[0][1] + opt('wlat', 4):
                    c = fly.pop(0)[0]
                    assert 2 * c + 1 < KV or u >= 2 * c + 2 - KV
                    fill += s.Wv(c) + s.M(c)
                    pend.append(c)
                if todo and wfree:
                    c = todo.pop(0)
                    fs = s.D(c)
                    s.cell[c] = wfree.pop(0)
                    fill += [lambda c=c: L.e(f's_add_u32 m0, s98, {4096*s.cell[c]}')] + fs[1:]
                    fly.append((c, u))
            if 8 * u == nS and X:
                fill += xstores()
            if u == 44 and opt('f3h', 0):
                fill.append(lambda: L.v('hf', f'buffer_load_dword v23, v{s.VF}, s[{S_FLG}:{S_FLG+3}], s97 offen sc1'))
            if u == 52 and opt('f3h', 0):
                L.wait(vm=('hf',))
                a.e(f'v_cmp_ne_u32 vcc, s{S_NONCE}, v23')
                a.e('s_cbranch_vccz L_hok')
                wait_flags(a, 97, s.VF, 23, solo=0)
                a.e('L_hok:')
            if u == 52:
                for tm in range(4):
                    for j in range(1 if opt('o4', 1) else 2):
                        def f(tm=tm, j=j):
                            if j == 0 and tm: L.e(f's_add_u32 s86, s85, {32768*tm}')
                            if opt('o4', 1):
                                L.v('h', f'buffer_load_dwordx4 a[{4*tm}:{4*tm+3}], v{s.VO}, s[44:47], s{86 if tm else 85} offen sc1')
                            else:
                                L.v('h', f'buffer_load_dwordx2 a[{4*tm+2*j}:{4*tm+2*j+1}], v{s.VO}, s[44:47], s{86 if tm else 85} offen offset:{32*j} sc1')
                        fill.append(f)
            per = -(-(len(fill) + 1) // 8)
            SS = opt('ss', 1)
            for i in range(8):
                g_ = 8 * u + i
                k, tm = seq[g_]
                if rdn[0] < 448 and seq[rdn[0]][0] >> 1 > vis:
                    q = seq[rdn[0]][0] >> 1
                    vis = min(NS - 1, q + SS - 1) if q > 1 else q
                    assert vis in issued, (u, i, vis)
                    L.wait(vm=(('T', vis),))
                    a.e('s_barrier')
                    for q2 in list(slot):
                        if q2 not in freed and last_use[q2] < g_:
                            freed.add(q2); s.free.append(slot[q2])
                need = [('R', g_)]
                if k >> 1 not in wseen:
                    wseen.add(k >> 1)
                    assert k >> 1 not in todo and all(c != k >> 1 for c, _ in fly), (k, u)
                    need.append(('M', k >> 1))
                if g_ == gF: flag_store()
                L.wait(lg=need)
                order = [0, 1] if g_ % 2 == 0 else [1, 0]
                for n, j in enumerate(order):
                    r, w = s.wreg(k, j)
                    c = s.ACC + 4 * (2 * tm + j)
                    tf = s.TF + 4 * (g_ % NB)
                    if not opt('g2x') & 1:
                        a.e(f'v_mfma_f32_16x16x32_bf16 v[{c}:{c+3}], {r}[{w}:{w+3}], v[{tf}:{tf+3}], v[{c}:{c+3}]')
                    if n == 0:
                        RDnext()
                    else:
                        for _ in range(per):
                            if fill:
                                fill.pop(0)()
                                if 'm0' in a.lines[-1]: break
            while fill:
                if 'm0' in a.lines[-1]: a.e('s_nop 0')
                fill.pop(0)()
            for c in list(pend):
                if not any(x == ('M', c) for x in L.lg):
                    pend.remove(c)
                    (wfree if todo else s.free).append(s.cell[c])
            if not todo and wfree and not fly and not pend:
                s.free += wfree; wfree = []
        assert not todo and not fly and not pend and nxt == NS
        stamp(a, 15)
        if not X:
            a.e('s_nop 7')
            for f in xstores(): f()
            flag_store()
        wait_flags(a, 59, 20, 22, solo=0)
        stamp(a, 17)
        P1 = 96
        NL = 4 if BP else 8
        for q in range(NL):
            a.e(f'buffer_load_dwordx4 v[{P1+4*q}:{P1+4*q+3}], v{s.VT}, s[40:43], s{58 if q < 4 else 88} offen offset:{1024*(q&3)} sc1')
        H = 208
        for q in range(16):
            a.e(f'v_accvgpr_read_b32 v{HR+q}, a{q}')
        if opt('o4', 1):
            for tm in range(4):
                if tm == 3: a.e('s_nop 0')
                a.e(f'v_permlane16_swap_b32 v{HR+4*tm}, v{HR+4*tm+2}')
                a.e(f'v_permlane16_swap_b32 v{HR+4*tm+1}, v{HR+4*tm+3}')
        for q in range(16):
            unpack(a, H + 2 * q, H + 2 * q + 1, HR + q)
        a.e('s_mov_b32 s82, 0x3ef5fdf0')
        a.e('s_mov_b32 s83, 0x3ef5fdf0')
        for q in range(8):
            tm, j = q >> 1, q & 1
            if j == 0 and tm: a.e(f's_add_u32 s85, s85, 32768')
            if BP:
                if j == 0: a.e(f's_waitcnt vmcnt({3 if opt("o4", 1) else 3 + tm})')
            else: a.e('s_waitcnt vmcnt(7)')
            c = s.ACC + 4 * q
            for e in range(2):
                x = c + 2 * e; h = H + 4 * q + 2 * e
                if BP:
                    y = 128 + 2 * e
                    unpack(a, y, y + 1, P1 + 2 * q + e)
                else:
                    y = P1 + 4 * q + 2 * e
                a.e(f'v_pk_add_f32 v[{x}:{x+1}], v[{x}:{x+1}], v[{y}:{y+1}]')
                if opt('hs', 0): a.e(f'v_pk_mul_f32 v[{x}:{x+1}], v[{x}:{x+1}], s[82:83]')
                a.e(f'v_cvt_pk_bf16_f32 v{y}, v{x}, v{x+1}')
                unpack(a, x, x + 1, y)
                a.e(f'v_pk_add_f32 v[{x}:{x+1}], v[{x}:{x+1}], v[{h}:{h+1}]')
                a.e(f'v_cvt_pk_bf16_f32 v{192+2*q+e}, v{x}, v{x+1}')
            ofl = ['', ' sc1', ' nt', ' sc0 sc1'][opt('ofl')]
            if opt('o4', 1):
                assert BP
                if j == 1:
                    o = 192 + 4 * tm
                    a.e('s_nop 1')
                    a.e(f'v_permlane16_swap_b32 v{o}, v{o+2}')
                    a.e(f'v_permlane16_swap_b32 v{o+1}, v{o+3}')
                    a.e(f'buffer_store_dwordx4 v[{o}:{o+3}], v{s.VO}, s[48:51], s85 offen' + ofl)
            else:
                a.e(f'buffer_store_dwordx2 v[{192+2*q}:{192+2*q+1}], v{s.VO}, s[48:51], s85 offen offset:{32*j}' + ofl)
        LIN[0] = None

def gen_dg(a):
    d = opt('dg'); F, ia, ib = d // 10000, d // 100 % 100, d % 100
    m = opt('dgm')
    a.raw('.globl dg_kernel\n.p2align 8\n.type dg_kernel,@function\ndg_kernel:')
    a.e('s_load_dwordx2 s[10:11], s[0:1], 96')
    a.e('s_memrealtime s[12:13]')
    a.e('s_waitcnt lgkmcnt(0)')
    a.e(f's_add_u32 s10, s10, {STAMP_BASE + opt("dgw", 0) * 128:#x}')
    a.e('s_addc_u32 s11, s11, 0')
    if not m:
        a.e(f's_load_dword s4, s[10:11], {4*ia}')
        a.e(f's_load_dword s5, s[10:11], {4*ib}')
        a.e('s_waitcnt lgkmcnt(0)')
    else:
        a.e('s_mov_b32 s20, s10\ns_mov_b32 s21, s11\ns_mov_b32 s22, 0x20000\ns_mov_b32 s23, 0x20000')
        a.e('v_lshlrev_b32 v1, 7, v0')
        for i in range(16):
            a.e(f's_mov_b32 s6, {i*8192}')
            a.e(f'buffer_load_dword v{8+i}, v1, s[20:23], s6 offen offset:{4*ia}')
            a.e(f'buffer_load_dword v{24+i}, v1, s[20:23], s6 offen offset:{4*ib}')
        a.e('s_waitcnt vmcnt(0)')
        for i in range(32):
            a.e(f'v_sub_u32 v{8+i}, s12, v{8+i}')
        opa = 'v_max_u32' if m != 3 else 'v_add_u32'
        opb = {1: 'v_min_u32', 2: 'v_max_u32', 3: 'v_add_u32'}[m]
        for i in range(1, 16):
            a.e(f'{opa} v8, v8, v{8+i}')
            a.e(f'{opb} v24, v24, v{24+i}')
        a.e('s_nop 1')
        a.e('v_readlane_b32 s4, v8, 0')
        a.e('v_readlane_b32 s5, v24, 0')
        sa = 's_max_u32' if m != 3 else 's_add_u32'
        sb = {1: 's_min_u32', 2: 's_max_u32', 3: 's_add_u32'}[m]
        for l in range(1, 64):
            a.e(f'v_readlane_b32 s6, v8, {l}')
            a.e(f'v_readlane_b32 s7, v24, {l}')
            a.e('s_nop 0')
            a.e(f'{sa} s4, s4, s6')
            a.e(f'{sb} s5, s5, s7')
        a.e('s_sub_u32 s5, s4, s5')
        if m == 3: a.e('s_lshr_b32 s5, s5, 10')
        a.e('s_mov_b32 s4, 0')
        a.e('s_memrealtime s[12:13]')
        a.e('s_waitcnt lgkmcnt(0)')
    a.e('s_sub_u32 s4, s5, s4')
    a.e('s_min_u32 s4, s4, 10000')
    a.e(f's_mul_i32 s4, s4, {F}')
    a.e('L_dg:')
    a.e('s_memrealtime s[14:15]')
    a.e('s_waitcnt lgkmcnt(0)')
    a.e('s_sub_u32 s5, s14, s12')
    a.e('s_cmp_lt_u32 s5, s4')
    a.e('s_cbranch_scc1 L_dg')
    a.e('s_endpgm')

def build():
    a = Asm()
    hdr = open('cdna_kernels/' + NAME + '.s.ref').read().split('\n')
    cm = [l for l in hdr if l.startswith(';') and '@launch' not in l and 'Override launch' not in l and 'grid=ceil' not in l]
    out = '\n'.join(cm) + '\n'
    out += '''; One persistent launch, 256 workgroups x 4 waves (one workgroup per CU), phases:
; Hand-offs: sc1 write-through stores, drained, then a flag word holding a per-launch nonce
'''
    if opt('aslist') or opt('dg'):
        out += f'; @launch kernel={KNAME} grid=(256,1,1) block=(256,1,1) lds=163840\n'
        if opt('dg'): out += '; @launch kernel=dg_kernel grid=(1,1,1) block=(64,1,1) lds=0\n'
    else:
        out += '; @launch grid=(256,1,1) block=(256,1,1) lds=163840\n'
    a.raw('.amdgcn_target "amdgcn-amd-amdhsa--gfx950"')
    a.raw('.text')
    gen(a)
    if opt('dg'): gen_dg(a)
    body = a.text()
    errs = check_hazards(body)
    errs += check_waits(body, KNAME, loop_iters=2, take_fwd=('L_nonce_ok', 'L_nonce_skip', 'L_clean_skip', 'L_y2skip', 'L_y2nw', 'L_hok', 'L_f0b', 'L_p0', 'L_p0f') + tuple(f'L_sig{i}' for i in range(20)) + tuple(f'L_poll{i}x' for i in range(20)))
    errs += check_waits(body, KNAME, loop_iters=2, take_fwd=('L_nonce_ok', 'L_p0hi', 'L_f0b') + (() if opt('solo', 1) else tuple(f'L_poll{i}x' for i in range(20))))
    for e in errs[:8]: print(e, file=sys.stderr)
    na = 256
    out += body + f'''.section .rodata,"a"
.p2align 6
.amdhsa_kernel {KNAME}
  .amdhsa_next_free_vgpr {256+na}
  .amdhsa_next_free_sgpr 102
  .amdhsa_accum_offset 256
  .amdhsa_group_segment_fixed_size 0
  .amdhsa_kernarg_size 104
  .amdhsa_user_sgpr_count 2
  .amdhsa_user_sgpr_kernarg_segment_ptr 1
  .amdhsa_system_sgpr_workgroup_id_x 1
  .amdhsa_float_denorm_mode_32 3
.end_amdhsa_kernel
'''
    if opt('dg'):
        out += '''.p2align 6
.amdhsa_kernel dg_kernel
  .amdhsa_next_free_vgpr 48
  .amdhsa_next_free_sgpr 32
  .amdhsa_accum_offset 48
  .amdhsa_group_segment_fixed_size 0
  .amdhsa_kernarg_size 104
  .amdhsa_user_sgpr_count 2
  .amdhsa_user_sgpr_kernarg_segment_ptr 1
  .amdhsa_system_sgpr_workgroup_id_x 1
.end_amdhsa_kernel
'''
    return out, errs

if __name__ == '__main__':
    outp = sys.argv[1]
    for kv in sys.argv[2:]:
        k, v = kv.split('=')
        OPT[k] = int(v)
    if opt('hnub'): WS_HNF = WS_UB
    t, errs = build()
    open(outp, 'w').write(t)
    print('written', outp, len(t), 'bytes;', len(errs), 'checker errors')
```

```python
import sys, os
from asmlib import *

NAME = 'sequential_preLN__ssm_conv_h3__glu_gated_swiglu__prompt'
KNAME = NAME + '_kernel'
MB = 1 << 20
WS0 = int(os.environ.get('WS0', '0')) * MB
WS_UB, WS_Y2, WS_H, WS_HNF, WS_HF, WS_XP, WS_FLG = [WS0 + x * MB for x in (0, 4, 8, 12, 16, 32, 40)]
STAMP_BASE = 64 * MB
OPT = {}
def opt(k, d=0): return OPT.get(k, d)

P_Q, P_K, P_V, P_SH, P_SSMK, P_D, P_X, P_W1, P_W3, P_W2, P_OUT, P_DBG, P_WS = [4 + 2 * i for i in range(13)]
S_W, S_NONCE, S_MASK = 30, 31, 90
S_FLG = 92
F0, F1, F2, F3, F4 = 0, 32768, 65536, 98304, 131072
FLG_SIZE = 262144
LDS_KA = 98304
KA_REG = 13056
NSTAMP = 20
AST = 128

def srd(a, d, p, size, add=0, addreg=None):
    if add or addreg is not None:
        if add:
            a.e(f's_add_u32 s{d}, s{p}, {add:#x}')
            a.e(f's_addc_u32 s{d+1}, s{p+1}, 0')
            if addreg is not None:
                a.e(f's_add_u32 s{d}, s{d}, s{addreg}')
                a.e(f's_addc_u32 s{d+1}, s{d+1}, 0')
        else:
            a.e(f's_add_u32 s{d}, s{p}, s{addreg}')
            a.e(f's_addc_u32 s{d+1}, s{p+1}, 0')
    else:
        a.e(f's_mov_b32 s{d}, s{p}')
        a.e(f's_mov_b32 s{d+1}, s{p+1}')
    if size is not None:
        a.e(f's_mov_b32 s{d+2}, {size:#x}')
    a.e(f's_mov_b32 s{d+3}, 0x20000')

def stamp(a, i):
    if not opt('stamp'): return
    a.e('s_memrealtime s[60:61]')
    if i == 0: a.e('s_memtime s[62:63]')
    cy = {11: 20, 12: 21, 14: 22, 15: 23, 4: 24, 5: 25}.get(i)
    if cy: a.e('s_memtime s[66:67]')
    a.e('s_waitcnt lgkmcnt(0)')
    a.e(f'v_writelane_b32 v1, s60, {i}')
    if cy: a.e(f'v_writelane_b32 v1, s66, {cy}')
    if LIN[0]: LIN[0].lg = []

def stamp_out(a, n):
    if not opt('stamp'): return
    a.e('s_waitcnt vmcnt(0)')
    stamp(a, n - 1)
    a.e('s_memtime s[64:65]')
    a.e('s_waitcnt lgkmcnt(0)')
    srd(a, 32, P_WS, 1 * MB, STAMP_BASE)
    a.e('s_lshl_b32 s84, s2, 2')
    a.e(f's_add_u32 s84, s84, s{S_W}')
    a.e('s_lshl_b32 s84, s84, 7')
    a.e('s_sub_u32 s64, s64, s62')
    a.e('v_writelane_b32 v1, s64, 31')
    a.e('v_mbcnt_lo_u32_b32 v2, -1, 0')
    a.e('v_lshlrev_b32 v2, 2, v2')
    a.e('s_mov_b64 exec, 0xffffffff')
    a.e('buffer_store_dword v1, v2, s[32:35], s84 offen')

LIN = [None]
class Lin:
    def __init__(s, a): s.a = a; s.vm = []; s.lg = []; LIN[0] = s
    def e(s, t): s.a.e(t)
    def v(s, tag, t): s.a.e(t); s.vm.append(tag)
    def l(s, tag, t): s.a.e(t); s.lg.append(tag)
    def _n(s, q, tags, cap):
        idx = [i for i, x in enumerate(q) if x in tags]
        if not idx: return None
        n = len(q) - max(idx) - 1
        return min(n, cap)
    def wait(s, vm=(), lg=(), vm0=False, lg0=False):
        nv = 0 if vm0 else s._n(s.vm, vm, 63)
        nl = 0 if lg0 else s._n(s.lg, lg, 15)
        t = ''
        if nv is not None:
            t += f' vmcnt({nv})'; s.vm = s.vm[len(s.vm) - nv:] if nv else []
        if nl is not None:
            t += f' lgkmcnt({nl})'; s.lg = s.lg[len(s.lg) - nl:] if nl else []
        if t: s.a.e('s_waitcnt' + t)

def unpack(a, dlo, dhi, src):
    a.e(f'v_lshlrev_b32 v{dlo}, 16, v{src}')
    a.e(f'v_and_b32 v{dhi}, s{S_MASK}, v{src}')

def hfl():
    return [' sc1', ' sc0 sc1', ' sc1 nt', ' sc0 sc1 nt', ''][opt('hfl')]

def code_pf(a, lab_from, lab_to, vt, emit=None, n=1):
    _uid[0] += 1
    L = f'L_pc{_uid[0]}'
    a.e('s_getpc_b64 s[78:79]')
    a.e(f'{L}:')
    a.e(f's_lshl_b32 s77, s{S_W}, 13')
    a.e(f's_add_u32 s77, s77, {lab_from}-{L}')
    for i in range(n):
        if i: a.e('s_add_u32 s77, s77, 32768')
        a.e(f'v_lshl_add_u32 v{vt}, v2, 7, s77')
        a.e(f'v_min_u32 v{vt}, {lab_to}-{L}, v{vt}')
        t = f'global_load_dword v{vt+1+i}, v{vt}, s[78:79]'
        if emit: emit(t)
        else: a.e(t)

def hf_base(a, d, mb, q, t):
    if not opt('reuse', 0):
        a.e(f's_lshl_b32 s{d}, s{mb}, 2')
        a.e(f's_add_u32 s{d}, s{d}, s{q}')
        a.e(f's_mul_i32 s{d}, s{d}, 458752')
        a.e(f's_add_u32 s{d}, s{d}, {WS_HF:#x}')
        return
    a.e(f's_lshl_b32 s{d}, s{mb}, 1')
    a.e(f's_add_u32 s{d}, s{d}, s{q}')
    a.e(f's_mul_i32 s{d}, s{d}, 458752')
    a.e(f's_add_u32 s{d}, s{d}, {WS_HF:#x}')
    a.e(f's_lshl_b32 s{t}, s{mb}, 19')
    a.e(f's_cmp_eq_u32 s{q}, 1')
    a.e(f's_cselect_b32 s{d}, s{t}, s{d}')
    a.e(f's_add_u32 s{t}, s{t}, {WS_Y2 - WS_UB:#x}')
    a.e(f's_cmp_eq_u32 s{q}, 0')
    a.e(f's_cselect_b32 s{d}, s{t}, s{d}')

def zero_acc(a, base, n, z):
    if not opt('mz', 1):
        for r in range(n): a.e(f'v_mov_b32 v{base+r}, 0')
        return
    for r in range(4): a.e(f'v_mov_b32 v{z+r}, 0')
    a.e('s_nop 1')
    for r in range(0, n, 16):
        a.e(f'v_mfma_f32_32x32x16_bf16 v[{base+r}:{base+r+15}], v[{z}:{z+3}], v[{z}:{z+3}], 0')

_uid = [0]
def signal(a, soff, vt, waitfn=None, wb=False):
    _uid[0] += 1
    L = f'L_sig{_uid[0]}'
    a.e(f'v_mov_b32 v{vt}, 0')
    a.e(f'v_mov_b32 v{vt+1}, s{S_NONCE}')
    a.e(f's_cmp_eq_u32 s{S_W}, 0')
    if waitfn: waitfn()
    else: a.e('s_waitcnt vmcnt(0)')
    a.e('s_barrier')
    a.e(f's_cbranch_scc0 {L}')
    if wb:
        a.e('buffer_wbl2 sc1')
        a.e('s_waitcnt vmcnt(0)')
    a.e('s_mov_b64 exec, 1')
    a.e(f'buffer_store_dword v{vt+1}, v{vt}, s[{S_FLG}:{S_FLG+3}], s{soff} offen sc1')
    a.e('s_mov_b64 exec, -1')
    a.e(f'{L}:')

def fsh():
    return opt('fs', 32).bit_length() - 1
def f1sh():
    return opt('f1s', 32).bit_length() - 1

def wait_flags(a, soff, voff, vd, n=64, solo=None, pre=False):
    _uid[0] += 1
    L = f'L_poll{_uid[0]}'
    if solo is None: solo = opt('solo', 1)
    if solo:
        a.e(f's_cmp_lg_u32 s{S_W}, {opt("pw", 0)}')
        a.e(f's_cbranch_scc1 {L}x')
    if pre: a.e(f's_branch {L}w')
    a.e(f'{L}:')
    if n == 256:
        if f1sh() == 2:
            a.e(f'buffer_load_dwordx4 v[{vd}:{vd+3}], v{voff}, s[{S_FLG}:{S_FLG+3}], s{soff} offen sc1')
        else:
            for i in range(4):
                a.e(f's_add_u32 s89, s{soff}, {i*(64<<f1sh())}')
                a.e(f'buffer_load_dword v{vd+i}, v{voff}, s[{S_FLG}:{S_FLG+3}], s89 offen sc1')
        a.e('s_waitcnt vmcnt(0)')
        a.e(f'v_xor_b32 v{vd}, s{S_NONCE}, v{vd}')
        a.e(f'v_xor_b32 v{vd+1}, s{S_NONCE}, v{vd+1}')
        a.e(f'v_xor_b32 v{vd+2}, s{S_NONCE}, v{vd+2}')
        a.e(f'v_xor_b32 v{vd+3}, s{S_NONCE}, v{vd+3}')
        a.e(f'v_or3_b32 v{vd}, v{vd}, v{vd+1}, v{vd+2}')
        a.e(f'v_or_b32 v{vd}, v{vd}, v{vd+3}')
        a.e(f'v_cmp_ne_u32 vcc, 0, v{vd}')
    else:
        a.e(f'buffer_load_dword v{vd}, v{voff}, s[{S_FLG}:{S_FLG+3}], s{soff} offen sc1')
        if pre: a.e(f'{L}w:')
        a.e('s_waitcnt vmcnt(0)')
        a.e(f'v_cmp_ne_u32 vcc, s{S_NONCE}, v{vd}')
    a.e('s_add_u32 s3, s3, 1')
    a.e(f's_cmp_gt_u32 s3, {opt("spin", 200000)}')
    a.e(f's_cbranch_scc1 {L}x')
    a.e(f's_cbranch_vccz {L}x')
    if opt('sleep'): a.e(f's_sleep {opt("sleep")}')
    a.e(f's_branch {L}')
    a.e(f'{L}x:')
    if solo: a.e('s_barrier')

def wave_sum2(a, va, vb, sa, sb):
    for mod in ('row_shr:1 row_mask:0xf bank_mask:0xf bound_ctrl:0', 'row_shr:2 row_mask:0xf bank_mask:0xf bound_ctrl:0',
                'row_shr:4 row_mask:0xf bank_mask:0xf bound_ctrl:0', 'row_shr:8 row_mask:0xf bank_mask:0xf bound_ctrl:0',
                'row_bcast:15 row_mask:0xa bank_mask:0xf', 'row_bcast:31 row_mask:0xc bank_mask:0xf'):
        a.e('s_nop 0')
        a.e(f'v_add_f32_dpp v{va}, v{va}, v{va} {mod}')
        a.e(f'v_add_f32_dpp v{vb}, v{vb}, v{vb} {mod}')
    a.e(f'v_readlane_b32 s{sa}, v{va}, 63')
    a.e(f'v_readlane_b32 s{sb}, v{vb}, 63')

def ln2(a, X, T, M, R, C, XM):
    def both(f):
        for r in range(2): f(r)
    for q in range(4):
        both(lambda r: a.e(f'v_pk_add_f32 v[{T[r]+2*q}:{T[r]+2*q+1}], v[{X[r]+4*q}:{X[r]+4*q+1}], v[{X[r]+4*q+2}:{X[r]+4*q+3}]'))
    both(lambda r: a.e(f'v_pk_add_f32 v[{T[r]}:{T[r]+1}], v[{T[r]}:{T[r]+1}], v[{T[r]+2}:{T[r]+3}]'))
    both(lambda r: a.e(f'v_pk_add_f32 v[{T[r]+4}:{T[r]+5}], v[{T[r]+4}:{T[r]+5}], v[{T[r]+6}:{T[r]+7}]'))
    both(lambda r: a.e(f'v_pk_add_f32 v[{T[r]}:{T[r]+1}], v[{T[r]}:{T[r]+1}], v[{T[r]+4}:{T[r]+5}]'))
    both(lambda r: a.e(f'v_add_f32 v{T[r]}, v{T[r]}, v{T[r]+1}'))
    wave_sum2(a, T[0], T[1], 56, 57)
    a.e('s_nop 0')
    both(lambda r: a.e(f'v_mul_f32 v{M[r]}, s{56+r}, v{C}'))
    both(lambda r: a.e(f'v_mov_b32 v{M[r]+1}, v{M[r]}'))
    for q in range(8):
        both(lambda r: a.e(f'v_pk_add_f32 v[{T[r]+2*q}:{T[r]+2*q+1}], v[{X[r]+2*q}:{X[r]+2*q+1}], v[{M[r]}:{M[r]+1}] neg_lo:[0,1] neg_hi:[0,1]'))
    both(lambda r: a.e(f'v_pk_mul_f32 v[{R[r]}:{R[r]+1}], v[{T[r]}:{T[r]+1}], v[{T[r]}:{T[r]+1}]'))
    for q in range(1, 8):
        both(lambda r: a.e(f'v_pk_fma_f32 v[{R[r]}:{R[r]+1}], v[{T[r]+2*q}:{T[r]+2*q+1}], v[{T[r]+2*q}:{T[r]+2*q+1}], v[{R[r]}:{R[r]+1}]'))
    both(lambda r: a.e(f'v_add_f32 v{R[r]}, v{R[r]}, v{R[r]+1}'))
    def rbf(v):
        a.e(f'v_cvt_pk_bf16_f32 v{v}, v{v}, v{v}')
        a.e(f'v_and_b32 v{v}, s{S_MASK}, v{v}')
    both(lambda r: rbf(M[r]))
    wave_sum2(a, R[0], R[1], 58, 59)
    both(lambda r: a.e(f'v_mov_b32 v{M[r]+1}, v{M[r]}'))
    both(lambda r: a.e(f'v_mul_f32 v{R[r]}, s{58+r}, v{C}'))
    both(lambda r: rbf(R[r]))
    both(lambda r: a.e(f'v_add_f32 v{R[r]}, 0x3727c5ac, v{R[r]}'))
    both(lambda r: rbf(R[r]))
    both(lambda r: a.e(f'v_sqrt_f32 v{R[r]}, v{R[r]}'))
    for q in range(2):
        both(lambda r: a.e(f'v_pk_add_f32 v[{XM[r]+2*q}:{XM[r]+2*q+1}], v[{X[r]+2*q}:{X[r]+2*q+1}], v[{M[r]}:{M[r]+1}] neg_lo:[0,1] neg_hi:[0,1]'))
    both(lambda r: rbf(R[r]))
    both(lambda r: a.e(f'v_rcp_f32 v{R[r]}, v{R[r]}'))
    for q in range(2, 8):
        both(lambda r: a.e(f'v_pk_add_f32 v[{XM[r]+2*q}:{XM[r]+2*q+1}], v[{X[r]+2*q}:{X[r]+2*q+1}], v[{M[r]}:{M[r]+1}] neg_lo:[0,1] neg_hi:[0,1]'))
    both(lambda r: a.e(f'v_mov_b32 v{R[r]+1}, v{R[r]}'))
    for q in range(8):
        both(lambda r: a.e(f'v_pk_mul_f32 v[{T[r]+2*q}:{T[r]+2*q+1}], v[{XM[r]+2*q}:{XM[r]+2*q+1}], v[{R[r]}:{R[r]+1}]'))

class Sched:
    def __init__(self): self.ev = []; self.marks = {}
    def mark(self, k): self.marks[k] = len(self.ev)
    def add(self, L): self.ev += L
    def younger(self, tag, at):
        last = max(i for i, e in enumerate(self.ev) if e[:2] == tag)
        assert last < self.marks[at], (tag, at)
        return self.marks[at] - last - 1

def gen(a):
    a.raw(f'.globl {KNAME}')
    a.raw('.p2align 8')
    a.raw(f'.type {KNAME},@function')
    a.raw(f'{KNAME}:')
    a.e('s_cmp_ge_u32 s2, 256')
    a.e('s_cbranch_scc1 L_end')
    a.e('s_load_dwordx8 s[4:11], s[0:1], 0')
    a.e('s_load_dwordx8 s[20:27], s[0:1], 64')
    a.e('s_load_dwordx2 s[28:29], s[0:1], 96')
    a.e('s_load_dwordx8 s[12:19], s[0:1], 32')
    a.e('s_memrealtime s[56:57]')
    a.e('v_lshrrev_b32 v1, 6, v0')
    a.e('v_and_b32 v2, 63, v0')
    a.e(f'v_readfirstlane_b32 s{S_W}, v1')
    a.e(f's_mov_b32 s{S_MASK}, 0xffff0000')
    a.e('s_mov_b32 s3, 0')
    a.e('s_bfe_u32 s82, s2, 0x30003')
    a.e('s_and_b32 s83, s2, 7')
    a.e('s_lshr_b32 s84, s2, 6')
    a.e('s_lshl_b32 s84, s84, 3')
    a.e('s_or_b32 s83, s83, s84')
    a.e('v_and_b32 v9, 3, v0')
    a.e('v_bfe_u32 v10, v0, 4, 1')
    a.e('v_lshl_add_u32 v1, v9, 1, v10')
    a.e('v_bfe_u32 v8, v0, 5, 2')
    a.e('v_bfe_u32 v11, v0, 2, 2')
    a.e('v_lshl_add_u32 v8, v8, 2, v11')
    a.e(f's_lshr_b32 s77, s{S_W}, 1')
    a.e('s_lshl_b32 s85, s83, 16')
    a.e('s_lshl_b32 s86, s77, 21')
    a.e('s_add_u32 s85, s85, s86')
    a.e('s_lshl_b32 s86, s82, 8')
    a.e('s_add_u32 s85, s85, s86')
    a.e('v_lshlrev_b32 v3, 13, v1')
    a.e('v_lshl_add_u32 v3, v8, 4, v3')
    a.e('v_add_u32 v3, s85, v3')
    a.e('v_add_u32 v4, 0xffffe800, v3')
    a.e('v_add_u32 v5, 0xfffff800, v3')
    a.e('v_add_u32 v6, 0x1000, v3')
    a.e('s_lshl_b32 s86, s82, 10')
    a.e('v_lshlrev_b32 v7, 6, v8')
    a.e('v_add_u32 v7, s86, v7')
    a.e('s_lshl_b32 s87, s82, 1')
    a.e('s_add_u32 s87, s87, s77')
    a.e('s_lshl_b32 s87, s87, 5')
    a.e('s_add_u32 s87, s87, s83')
    a.e('s_lshl_b32 s88, s87, 13')
    a.e('s_add_u32 s88, s88, 48')
    a.e('v_lshlrev_b32 v160, 9, v8')
    a.e('v_lshl_add_u32 v160, v10, 8, v160')
    a.e('v_lshlrev_b32 v161, 4, v9')
    a.e('v_sub_u32 v160, v160, v161')
    a.e('v_add_u32 v160, s88, v160')
    a.e('s_lshl_b32 s87, s87, 1')
    a.e(f's_and_b32 s86, s{S_W}, 1')
    a.e('s_add_u32 s87, s87, s86')
    a.e(f's_lshl_b32 s87, s87, {fsh()}')
    a.e('v_mov_b32 v162, 0')
    a.e(f's_mul_i32 s88, s{S_W}, {KA_REG}')
    a.e(f's_add_u32 s88, s88, {LDS_KA}')
    a.e('s_and_b32 s101, s2, 7')
    a.e('s_lshl_b32 s101, s101, 7')
    a.e('s_lshr_b32 s99, s2, 3')
    a.e('s_lshl_b32 s99, s99, 2')
    a.e('s_add_u32 s101, s101, s99')
    a.e(f's_add_u32 s101, s101, s{S_W}')
    a.e('s_lshl_b32 s99, s101, 12')
    a.e('s_and_b32 s80, s2, 1')
    a.e('s_lshl_b32 s80, s80, 2')
    a.e('s_bfe_u32 s81, s2, 0x20003')
    a.e('s_add_u32 s80, s80, s81')
    a.e('s_bfe_u32 s81, s2, 0x20001')
    a.e('s_lshl_b32 s81, s81, 3')
    a.e('s_lshr_b32 s91, s2, 5')
    a.e('s_add_u32 s81, s81, s91')
    a.e('s_lshl_b32 s91, s80, 5')
    a.e('s_add_u32 s91, s91, s81')
    a.e('s_lshl_b32 s96, s91, 2')
    a.e(f's_add_u32 s96, s96, s{S_W}')
    a.e('s_lshl_b32 s96, s96, 12')
    a.e('v_lshlrev_b32 v220, 4, v2')
    a.e('s_waitcnt lgkmcnt(0)')
    stamp(a, 0)
    if opt('stamp') and not opt('g2st'): a.e('v_writelane_b32 v1, s56, 30')
    KD, KX, XP = 200, 216, 224
    XPOS = 3; RS = 0
    g1 = G1(a)
    g2 = G2(a)
    KH = opt('kh2', 0)
    def k_loads(kd, kx, back=0):
        if back:
            a.e('s_sub_u32 s99, s99, 8192')
        srd(a, 68, P_SSMK, 4096, 0, 99)
        for j in range(4):
            a.e(f'buffer_load_dwordx4 v[{kd+4*j}:{kd+4*j+3}], v220, s[68:71], 0 offen offset:{1024*j}')
            a.e(f'buffer_load_dword v{kx+j}, v220, s[68:71], 0 offen offset:{1024*j+16}')
    def k_prep(n, kd, kx, sb):
        a.e('v_mov_b32 v196, 0')
        a.e('v_mov_b32 v197, 0')
        a.e('v_lshlrev_b32 v198, 3, v2')
        a.e(f'v_add_u32 v198, s{sb}, v198')
        a.e('ds_write_b64 v198, v[196:197] offset:4096')
        a.e('v_min_u32 v199, 7, v2')
        a.e('v_lshlrev_b32 v199, 2, v199')
        a.e(f'v_add_u32 v199, s{sb}, v199')
        a.e('ds_write_b32 v199, v196 offset:4608')
        a.e(f'v_add_u32 v198, s{sb}, v220')
        for j in range(4):
            a.e(f's_waitcnt vmcnt({n+6-2*j})')
            d = kd + 4 * j
            if j == 0:
                a.e(f'v_readfirstlane_b32 s58, v{d}')
            a.e(f'ds_write_b128 v198, v[{d}:{d+3}] offset:{4608+32+1024*j}')
            for q in range(4):
                hi = d + q + 1 if q < 3 else kx + j
                a.e(f'v_alignbit_b32 v{224+4*j+q}, v{hi}, v{d+q}, 16')
            a.e(f'ds_write_b128 v198, v[{224+4*j}:{224+4*j+3}] offset:{4608+4160+32+1024*j}')
        a.e('s_lshl_b32 s58, s58, 16')
        a.e('v_cmp_le_u32 vcc, 7, v2')
        a.e('v_mov_b32 v197, s58')
        a.e('s_nop 0')
        a.e('v_cndmask_b32 v197, v196, v197, vcc')
        a.e(f'ds_write_b32 v199, v197 offset:{4608+4160}')
    def later_setup():
        g2.front_setup(); g1.setup_dma()
    srd(a, 44, P_DBG, 256)
    a.e('s_cmp_eq_u32 s77, 0')
    a.e('s_cbranch_scc1 L_p0')
    def pub(wv, wait):
        a.e('s_or_b32 s56, s56, 1')
        a.e(f's_xor_b32 s57, s{S_W}, {wv}')
        a.e('s_or_b32 s57, s57, s2')
        a.e('s_cmp_lg_u32 s57, 0')
        a.e('s_cbranch_scc1 L_nonce_skip')
        a.e('v_mov_b32 v163, s56')
        a.e('s_mov_b64 exec, 1')
        a.e('buffer_store_dword v163, v162, s[44:47], 0 offen sc1')
        a.e('s_mov_b64 exec, -1')
        if wait: a.e('s_waitcnt vmcnt(0)')
        a.e('L_nonce_skip:')
    if opt('np', 0): pub(3, False)
    k_loads(KD, KX)
    if KH: k_loads(100, 116, back=1)
    later_setup()
    KR, VR_, WR, WU, KU, AC0 = 8, 36, 52, 68, 100, 164
    def p0_loads():
        srd(a, 32, P_K, 4 * MB)
        srd(a, 36, P_V, 4 * MB)
        srd(a, 40, P_SH, 8192)
        for j in range(4):
            a.e(f'buffer_load_dwordx4 v[{WR+4*j}:{WR+4*j+3}], v7, s[40:43], 0 offen offset:{16*j}')
        rows = [(4, 0), (4, 2048), (5, 0), (3, 0), (3, 2048), (6, 0), (6, 2048)]
        for r, (vr, off) in enumerate(rows):
            a.e(f'buffer_load_dwordx4 v[{KR+4*r}:{KR+4*r+3}], v{vr}, s[32:35], 0 offen offset:{off}')
        for r, (vr, off) in enumerate(rows[3:]):
            a.e(f'buffer_load_dwordx4 v[{VR_+4*r}:{VR_+4*r+3}], v{vr}, s[36:39], 0 offen offset:{off}')
    HD = opt('hd', 2)
    if HD < 2:
        assert not KH
        if HD == 1: a.e('s_waitcnt vmcnt(6)')
        p0_loads()
        k_prep(15, KD, KX, 88)
        a.e('s_branch L_p0b')
    else:
        k_prep(8 if KH else 0, KD, KX, 88)
        if KH:
            a.e(f's_sub_u32 s59, s88, {2*KA_REG}')
            k_prep(0, 100, 116, 59)
    a.e('L_p0:')
    p0_loads()
    a.e('L_p0b:')
    srd(a, 48, P_WS, 4 * MB, WS_UB)
    if not opt('np', 0): pub(0, True)
    srd(a, S_FLG, P_WS, FLG_SIZE, WS_FLG)
    a.e('s_waitcnt vmcnt(11)')
    for e in range(8):
        unpack(a, WU + 0 * 8 + e, WU + 1 * 8 + e, WR + 2 * e)
        unpack(a, WU + 2 * 8 + e, WU + 3 * 8 + e, WR + 2 * e + 1)
    for r in range(7):
        a.e(f's_waitcnt vmcnt({10-r})')
        for q in range(4):
            unpack(a, KU + 8 * r + 2 * q, KU + 8 * r + 2 * q + 1, KR + 4 * r + q)
        if r >= 3:
            i = r - 3
            for j in range(4):
                for q in range(4):
                    d = AC0 + 8 * i + 2 * q
                    k = KU + 8 * (i + 3 - j) + 2 * q
                    w = WU + 8 * j + 2 * q
                    if j == 0:
                        a.e(f'v_pk_mul_f32 v[{d}:{d+1}], v[{k}:{k+1}], v[{w}:{w+1}]')
                    else:
                        a.e(f'v_pk_fma_f32 v[{d}:{d+1}], v[{k}:{k+1}], v[{w}:{w+1}], v[{d}:{d+1}]')
    VU = 8
    for i in range(4):
        a.e(f's_waitcnt vmcnt({3-i})')
        if i == 3:
            a.e('buffer_load_dword v163, v162, s[44:47], 0 offen sc1')
        for q in range(4):
            unpack(a, VU + 2 * q, VU + 2 * q + 1, VR_ + 4 * i + q)
        for q in range(4):
            d = AC0 + 8 * i + 2 * q
            a.e(f'v_pk_mul_f32 v[{d}:{d+1}], v[{d}:{d+1}], v[{VU+2*q}:{VU+2*q+1}]')
    O = 52
    for e in range(4):
        q = O + 4 * e
        a.e(f'v_cvt_pk_bf16_f32 v{q}, v{AC0+28+e}, v{AC0+20+e}')
        a.e(f'v_cvt_pk_bf16_f32 v{q+1}, v{AC0+12+e}, v{AC0+4+e}')
        a.e(f'v_cvt_pk_bf16_f32 v{q+2}, v{AC0+24+e}, v{AC0+16+e}')
        a.e(f'v_cvt_pk_bf16_f32 v{q+3}, v{AC0+8+e}, v{AC0+e}')
    for e in range(4):
        q = O + 4 * e
        if e == 3: a.e('s_nop 0')
        a.e(f'v_permlane16_swap_b32 v{q+2}, v{q}')
        a.e(f'v_permlane16_swap_b32 v{q+3}, v{q+1}')
        a.e(f'buffer_store_dwordx4 v[{q}:{q+3}], v160, s[48:51], 0 offen offset:{64*e} sc1')
    stamp(a, 1)
    a.e('s_waitcnt vmcnt(4)')
    a.e('L_nonce:')
    a.e(f'v_readfirstlane_b32 s{S_NONCE}, v163')
    a.e('s_nop 0')
    a.e(f's_cmp_lg_u32 s{S_NONCE}, 0')
    a.e('s_cbranch_scc1 L_nonce_ok')
    a.e('s_add_u32 s3, s3, 1')
    a.e(f's_cmp_gt_u32 s3, {opt("spin", 200000)}')
    a.e('s_cbranch_scc1 L_nonce_ok')
    a.e('buffer_load_dword v163, v162, s[44:47], 0 offen sc1')
    a.e('s_waitcnt vmcnt(0)')
    a.e('s_branch L_nonce')
    a.e('L_nonce_ok:')
    a.e(f'v_mov_b32 v163, s{S_NONCE}')
    def flag0(n):
        a.e(f's_waitcnt vmcnt({n})')
        a.e('s_mov_b64 exec, 1')
        a.e(f'buffer_store_dword v163, v162, s[{S_FLG}:{S_FLG+3}], s87 offen sc1')
        a.e('s_mov_b64 exec, -1')
    a.e('s_cmp_eq_u32 s77, 0')
    a.e('s_cbranch_scc0 L_p0hi')
    if KH:
        code_pf(a, 'L_p0hi', 'L_g1epi', 164)
        flag0(1)
        later_setup()
    else:
        if opt('kl', 1):
            code_pf(a, 'L_p0hi', 'L_g1epi', 164)
            flag0(1)
            k_loads(KD, KX)
            later_setup()
            k_prep(0, KD, KX, 88)
        else:
            k_loads(KD, KX)
            code_pf(a, 'L_p0hi', 'L_g1epi', 164)
            flag0(9)
            later_setup()
            k_prep(2, KD, KX, 88)
        a.e('s_branch L_p0j')
    a.e('L_p0hi:')
    if not KH:
        flag0(0)
        a.e('L_p0j:')
    stamp(a, 2)
    a.e('s_and_b32 s82, s2, 7')
    a.e('s_lshr_b32 s83, s2, 3')
    a.e('s_lshl_b32 s84, s83, 2')
    a.e(f's_add_u32 s84, s84, s{S_W}')
    a.e('s_mov_b32 s85, s101')
    a.e('s_lshl_b32 s86, s82, 5')
    a.e('s_add_u32 s86, s86, s83')
    a.e('s_lshr_b32 s57, s85, 1')
    a.e('s_lshl_b32 s57, s57, 2')
    a.e(f's_load_dword s89, s[{P_D}:{P_D+1}], s57')
    a.e('v_lshlrev_b32 v4, 4, v2')
    a.e('v_lshrrev_b32 v3, 2, v2')
    a.e('v_sub_u32 v3, 15, v3')
    a.e('v_lshlrev_b32 v3, 13, v3')
    a.e('v_and_b32 v5, 3, v2')
    a.e('v_lshl_add_u32 v3, v5, 4, v3')
    a.e('s_lshl_b32 s56, s84, 6')
    a.e('v_add_u32 v3, s56, v3')
    a.e(f'v_lshlrev_b32 v34, {fsh()}, v2')
    a.e('v_and_b32 v5, 15, v2')
    a.e('v_lshrrev_b32 v6, 4, v2')
    a.e('v_add_u32 v31, 1, v5')
    a.e('v_and_b32 v32, 1, v31')
    a.e('v_sub_u32 v31, v31, v32')
    a.e('v_lshl_add_u32 v31, v6, 3, v31')
    a.e('v_lshlrev_b32 v31, 1, v31')
    a.e('v_mul_u32_u24 v32, 4160, v32')
    a.e('v_add3_u32 v31, v31, v32, s88')
    VA, VB, ACC = 36, 40, 44
    for j in range(4):
        a.e(f'v_add_u32 v{VA+j}, {4608+1024*j}, v31')
    a.e('v_lshlrev_b32 v32, 5, v5')
    a.e('v_lshlrev_b32 v33, 4, v6')
    a.e('v_sub_u32 v33, v33, v32')
    a.e('v_add_u32 v33, s88, v33')
    a.e(f'v_add_u32 v{VB}, 480, v33')
    a.e('v_add_u32 v7, s88, v4')
    zero_acc(a, ACC, 32, 92)
    FA = [96, 112]; FB = [128, 144]
    def areg(r, mq): return (f'a', 16 * r + 4 * mq) if mq < 4 else ('v', FA[r & 1] + 4 * (mq - 4))
    def rdA(r, mq):
        o = 128 * (mq & 1) + 16 * r
        t_, f = areg(r, mq)
        return [f'ds_read2_b32 {t_}[{f}:{f+1}], v{VA+(mq>>1)} offset0:{o} offset1:{o+1}', f'ds_read2_b32 {t_}[{f+2}:{f+3}], v{VA+(mq>>1)} offset0:{o+2} offset1:{o+3}']
    def breg(r, d): return (FB[r & 1] if d < 4 else 160 + 16 * (r % 3)) + 4 * (d & 3)
    def rdB(r, d):
        f = breg(r, d)
        return f'ds_read_b128 v[{f}:{f+3}], v{VB} offset:{512*(7-d)+64*r}'
    a.e('s_waitcnt lgkmcnt(0)')
    a.e('s_bitcmp1_b32 s85, 0')
    a.e('s_cselect_b32 s56, 0, 16')
    a.e('s_lshl_b32 s89, s89, s56')
    a.e('s_and_b32 s89, s89, 0xffff0000')
    a.e(f's_lshl_b32 s99, s82, {7+fsh()}')
    if KH:
        wait_flags(a, 99, 34, 35, solo=0)
        a.e(f's_cmp_lt_u32 s{S_W}, 2')
        a.e('s_cbranch_scc1 L_p0f')
        flag0(0)
        a.e('L_p0f:')
    else:
        for mq in range(8):
            for l in rdA(0, mq): a.e(l)
        wait_flags(a, 99, 34, 35, solo=0)
    stamp(a, 3)
    a.e('s_lshl_b32 s101, s82, 19')
    UR = 8
    def u_loads(hf, E):
        for i in range(2):
            a.e(f's_add_u32 s57, s101, {hf*262144 + (16-16*i)*8192:#x}')
            E(f'buffer_load_dwordx4 v[{UR+4*i}:{UR+4*i+3}], v3, s[48:51], s57 offen sc1')
    u_loads(0, a.e)
    if KH:
        a.e('s_barrier')
        for mq in range(8):
            for l in rdA(0, mq): a.e(l)
    wfr = opt('la', 2) / 2
    a.e(f's_mul_i32 s56, s2, {int(7168*wfr)}')
    a.e(f's_mul_i32 s57, s{S_W}, {int(1792*wfr)}')
    a.e('s_add_u32 s56, s56, s57')
    a.e('v_lshlrev_b32 v41, 7, v2')
    LK = Lin(a)
    wpl = []
    for n_, P_ in enumerate((P_W1, P_W3)):
        sd = (40, 32)[n_]
        srd(a, sd, P_, int(1792 * wfr), 0, 56)
        wpl.append(lambda sd=sd: LK.v('pf', f'buffer_load_dword v42, v41, s[{sd}:{sd+3}], 0 offen'))
    srd(a, 36, P_Q, 4 * MB)
    a.e(f's_add_u32 s99, s99, {64 << fsh()}')
    for i in range(2):
        a.e(f's_waitcnt vmcnt({1-i})')
        a.e(f'ds_write_b128 v7, v[{UR+4*i}:{UR+4*i+3}] offset:{2048+1024*i}')
    a.e('s_waitcnt lgkmcnt(0)')
    for d in range(4): a.e(rdB(0, d))
    stamp(a, 4)
    g1e = [[(lambda l=l: a.e(l)) for l in grp] for grp in g1.early_dma()]
    def grp(fs): return lambda: [f() for f in fs]
    g1e = [grp(x) for x in g1e]
    p01 = [(lambda f=f: (f(), LK.vm.append('w2') if 'buffer' in a.lines[-1] or 'buffer' in a.lines[-2] and 's72' in a.lines[-1] and 'add' in a.lines[-1] else None)) for f in g2.fD([(0, 2), (1, 3)])]
    NF0 = 4
    xl = [(lambda r_=r_, hh=hh: LK.v('x', f'buffer_load_dwordx4 v[{XP+8*r_+4*hh}:{XP+8*r_+4*hh+3}], v4, s[36:39], s96 offen offset:{2048*r_+1024*hh}')) for r_ in range(2) for hh in range(2)]
    RP = opt('rp', 4)
    def chk():
        LK.wait(vm=('fb',))
        a.e(f'v_cmp_ne_u32 vcc, s{S_NONCE}, v35')
        a.e('s_cbranch_vccz L_f0b')
        wait_flags(a, 99, 34, 35, solo=0)
        a.e('L_f0b:')
        u_loads(1, lambda t: LK.v('u', t))
    def uw(i):
        def f():
            if i == 0: LK.wait(vm=('u',))
            LK.l('uw', f'ds_write_b128 v7, v[{UR+4*i}:{UR+4*i+3}] offset:{1024*i}')
        return f
    f1 = {r: [] for r in range(8)}
    RL = opt('rl', 1)
    f1[RL] = f1[RL] + [lambda: LK.v('fb', f'buffer_load_dword v35, v34, s[{S_FLG}:{S_FLG+3}], s99 offen sc1')]
    XA = opt('xa', 0)
    if XA == 0:
        f1[RP] = f1[RP] + xl; f1[RP + 1] = f1[RP + 1] + wpl[:1]
    elif XA == 1:
        f1[0] = xl + f1[0]; f1[RP] = f1[RP] + wpl[:1]
    elif XA == 2:
        f1[0] = wpl[:1] + f1[0]; f1[RP] = f1[RP] + xl
    else:
        f1[RP] = f1[RP] + xl; f1[RP + 2] = f1[RP + 2] + wpl[:1]
    f2 = {r: [] for r in range(8)}
    if XA in (1, 2): f1[RP + 2] = f1[RP + 2] + wpl[1:]
    elif XA == 3: f2[2] = wpl[1:]
    else: f2[0] = wpl[1:]
    f2[3] = p01[:3]; f2[4] = p01[3:5]; f2[5] = p01[5:8]; f2[6] = p01[8:]
    UE = 8
    LK.lg = [('B', 0, d) for d in range(4)]
    def RA(r, mq): return [(lambda t=t: LK.l(('A', r, mq), t)) for t in rdA(r, mq)]
    def RB(r, d): return lambda: LK.l(('B', r, d), rdB(r, d))
    for ph in range(2):
        for r in range(8):
            if ph == 0:
                ms = [(mq, d) for mq in range(8) for d in range(4) if mq + d < 8]
                nxt = []
                if r < 7:
                    for x in range(8):
                        if x < 4: nxt.append(RB(r + 1, x))
                        nxt += RA(r + 1, x)
                fl = list(f1[r])
            else:
                ms = [(mq, d) for d in range(4, 8) for mq in range(4) if mq + d < 8]
                nxt = [RB(r + 2, d) for d in range(4, 8)] if r < 6 else []
                if r == 5:
                    a.e('v_lshlrev_b32 v32, 5, v5')
                    a.e('v_lshl_add_u32 v32, v6, 3, v32')
                    a.e(f'v_sub_u32 v34, {4088-3584}, v32')
                    a.e('v_add_u32 v34, s88, v34')
                    a.e('v_add_u32 v35, s88, v32')
                if r >= 6:
                    nxt = [(lambda c=c: LK.l('ue', f'ds_read_b64 v[{UE+2*c}:{UE+2*c+1}], v34 offset:{512*(7-c)}')) for c in range(4 * (r - 6), 4 * (r - 5))]
                fl = list(f2[r])
            if ph == 0 and r == RP: chk()
            per = max(1, -(-len(fl) // len(ms)))
            evr = max(1, len(ms) // max(1, len(fl)) // 2)
            for k, (mq, d) in enumerate(ms):
                c = mq + d
                t_, fa = areg(r, mq); fb = breg(r, d)
                LK.wait(lg=(('A', r, mq), ('B', r, d)))
                a.e(f'v_mfma_f32_16x16x32_bf16 v[{ACC+4*c}:{ACC+4*c+3}], {t_}[{fa}:{fa+3}], v[{fb}:{fb+3}], v[{ACC+4*c}:{ACC+4*c+3}]')
                if k < len(nxt): nxt[k]()
                if k % evr == evr - 1:
                    for _ in range(per):
                        if fl: fl.pop(0)()
                if ph == 0 and r == 7:
                    if k == opt('uk', 10): uw(0)()
                    if k == opt('uk', 10) + 1: uw(1)()
                    if opt('uk', 10) + 2 <= k < opt('uk', 10) + 10:
                        q = k - opt('uk', 10) - 2
                        RB(q >> 2, 4 + (q & 3))()
            assert not fl, (ph, r, len(fl))
    nk01 = 8; wpl = []
    xwait = len(LK.vm) - max(i for i, t in enumerate(LK.vm) if t == 'x') - 1
    a.e('s_waitcnt lgkmcnt(0)')
    stamp(a, 5)
    a.e('L_kbcode:')
    X = 96
    for c in range(8):
        unpack(a, X + 4 * c + 3, X + 4 * c + 2, UE + 2 * c)
        unpack(a, X + 4 * c + 1, X + 4 * c + 0, UE + 2 * c + 1)
    for c in range(8):
        for r in range(4):
            a.e(f'v_fma_f32 v{X+4*c+r}, v{X+4*c+r}, s89, v{ACC+4*c+r}')
        a.e(f'v_cvt_pk_bf16_f32 v{UE+2*c}, v{X+4*c}, v{X+4*c+1}')
        a.e(f'v_cvt_pk_bf16_f32 v{UE+2*c+1}, v{X+4*c+2}, v{X+4*c+3}')
        a.e(f'ds_write_b64 v35, v[{UE+2*c}:{UE+2*c+1}] offset:{4608+512*c}')
    a.flush_inject()
    LIN[0] = None
    a.e('v_lshlrev_b32 v32, 2, v0')
    a.e(f'v_add_u32 v32, {LDS_KA}, v32')
    YL_ = opt('yl', 1)
    a.e(f'v_lshrrev_b32 v33, {2+YL_}, v0')
    a.e(f'v_lshlrev_b32 v33, {14+YL_}, v33')
    a.e(f'v_and_b32 v34, {7 if YL_ else 3}, v0')
    a.e('v_lshl_add_u32 v33, v34, 4, v33')
    a.e(f's_lshl_b32 s56, s86, {6+YL_}')
    a.e('s_mov_b32 s57, 0x05040100')
    a.e('s_mov_b32 s58, 0x07060302')
    srd(a, 36, P_WS, 4 * MB, WS_Y2)
    a.e(f's_cmp_ge_u32 s{S_W}, 2')
    a.e('s_waitcnt lgkmcnt(0)')
    a.e('s_barrier')
    if RS: a.e('s_cbranch_scc1 L_y2skip')
    Y = 96; O = 128
    NP = 8 if RS else 4
    LY = Lin(a)
    def yrd(P):
        for ch in range(4):
            LY.l(P, f'ds_read_b32 v{Y+4*P+ch}, v32 offset:{ch*KA_REG+4608+4096//NP*P}')
    for P in range(4): yrd(P)
    for P in range(NP):
        LY.wait(lg=(P,))
        if P + 4 < NP: yrd(P + 4)
        y = Y + 4 * P; o = O + 4 * P
        a.e(f'v_perm_b32 v{o}, v{y+1}, v{y}, s57')
        a.e(f'v_perm_b32 v{o+1}, v{y+3}, v{y+2}, s57')
        a.e(f'v_perm_b32 v{o+2}, v{y+1}, v{y}, s58')
        a.e(f'v_perm_b32 v{o+3}, v{y+3}, v{y+2}, s58')
        a.e(f'buffer_store_dwordx4 v[{o}:{o+3}], v33, s[36:39], s56 offen sc1')
        if P < NP - 1:
            a.e(f's_add_u32 s56, s56, {256//NP*16384:#x}')
    LIN[0] = None
    if RS: a.e('L_y2skip:')
    stamp(a, 6)
    XU = [8, 24]; TT = [40, 56]; MM = [72, 74]; RR = [76, 78]; C = 80; YU = [100, 116]; XM = [140, 156]; SS = [172, 174]
    a.e(f's_waitcnt vmcnt({xwait + 4})')
    F45 = opt('f45', 0)
    if F45: a.inject(g2.fD([(2, 0), (3, 1)]), 3)
    for r in range(2):
        for q in range(8):
            unpack(a, XU[r] + 2 * q, XU[r] + 2 * q + 1, XP + 8 * r + q)
    a.flush_inject()
    a.e(f'v_mov_b32 v{C}, 0x3a800000')
    a.e(f's_lshl_b32 s87, s2, {f1sh()}')
    a.e(f's_add_u32 s87, s87, {F1}')
    def w1():
        if RS:
            a.e(f's_bitcmp1_b32 s{S_W}, 1')
            a.e('s_cbranch_scc1 L_y2nw')
            a.e('s_waitcnt vmcnt(0)')
            a.e('L_y2nw:')
            a.e(f's_cmp_eq_u32 s{S_W}, 0')
        else:
            a.e(f's_waitcnt vmcnt({8 if F45 else 0})')
    signal(a, 87, 82, waitfn=w1)
    if RS:
        a.inject(g1e[:10] + p01 + g2.fD([(2, 0), (3, 1)]), 4)
    else:
        if NF0 >= 2: g2.fM([(0, 2), (1, 3)])
        a.inject(g1e[:10] + ([] if F45 or NF0 < 4 else g2.fD([(2, 0), (3, 1)])), 12 if F45 or NF0 < 4 else 6)
    ln2(a, XU, TT, MM, RR, C, XM)
    a.flush_inject()
    a.e('v_lshlrev_b32 v5, 7, v2')
    a.e(f'v_lshlrev_b32 v139, {7+YL_}, v2')
    a.e(f'v_add_u32 v6, {0x2000 << YL_:#x}, v139')
    if YL_:
        a.e('s_lshr_b32 s82, s91, 1')
        a.e('s_lshl_b32 s82, s82, 15')
        a.e('s_and_b32 s83, s91, 1')
        a.e('s_lshl_b32 s83, s83, 6')
        a.e('s_add_u32 s82, s82, s83')
    else:
        a.e('s_lshl_b32 s82, s91, 14')
    if opt('yd', 1):
        assert YL_
        a.e(f's_lshl_b32 s83, s{S_W}, 13')
        a.e('s_add_u32 s82, s82, s83')
        a.e('v_lshrrev_b32 v176, 4, v2')
        a.e('v_xor_b32 v176, v176, v2')
        a.e('v_and_b32 v176, 3, v176')
        a.e('v_lshlrev_b32 v176, 4, v176')
        a.e('v_lshrrev_b32 v177, 2, v2')
        a.e('v_lshl_add_u32 v176, v177, 7, v176')
        for i in range(1, 4):
            a.e(f'v_add_u32 v{176+i}, {1024*i}, v176')
        a.e(f's_lshl_b32 s83, s{S_W}, 12')
        a.e(f's_add_u32 m0, s83, {LDS_KA + 16384}')
        a.e('v_bfe_u32 v180, v2, 1, 2')
        a.e(f'v_xor_b32 v180, s{S_W}, v180')
        a.e('v_lshl_add_u32 v180, v180, 4, v5')
        a.e(f'v_add_u32 v180, {LDS_KA + 16384}, v180')
    else:
        a.e(f's_lshl_b32 s83, s{S_W}, 4')
        a.e('s_add_u32 s82, s82, s83')
    srd(a, 40, P_WS, 4 * MB, WS_H)
    srd(a, 44, P_WS, 4 * MB, WS_HNF)
    a.e('v_and_b32 v7, 7, v2')
    a.e(f's_lshl_b32 s83, s{S_W}, 1')
    a.e('v_xor_b32 v132, s83, v7')
    a.e('v_lshl_add_u32 v132, v132, 4, v5')
    a.e(f'v_add_u32 v132, {LDS_KA}, v132')
    a.e('v_xor_b32 v133, 16, v132')
    a.e('v_lshrrev_b32 v134, 3, v2')
    a.e('v_xor_b32 v135, v134, v7')
    a.e('v_lshlrev_b32 v135, 4, v135')
    a.e('v_lshl_add_u32 v135, v134, 7, v135')
    a.e(f's_lshl_b32 s83, s{S_W}, 12')
    a.e(f's_add_u32 s83, s83, {LDS_KA}')
    a.e('v_add_u32 v135, s83, v135')
    HC = opt('hc', 0)
    if HC:
        a.e('v_lshlrev_b32 v136, 4, v2')
        a.e('s_lshl_b32 s84, s91, 14')
        a.e(f's_lshl_b32 s85, s{S_W}, 12')
        a.e('s_add_u32 s84, s84, s85')
    else:
        a.e('v_lshrrev_b32 v136, 5, v2')
        a.e('v_lshlrev_b32 v136, 12, v136')
        a.e('v_bfe_u32 v137, v2, 3, 2')
        a.e('v_lshl_add_u32 v136, v137, 8, v136')
        a.e('v_lshl_add_u32 v136, v7, 4, v136')
        a.e('s_lshr_b32 s84, s91, 3')
        a.e('s_lshl_b32 s84, s84, 17')
        a.e('s_bfe_u32 s85, s91, 0x20001')
        a.e('s_lshl_b32 s85, s85, 10')
        a.e('s_add_u32 s84, s84, s85')
        a.e('s_and_b32 s85, s91, 1')
        a.e('s_lshl_b32 s85, s85, 7')
        a.e('s_add_u32 s84, s84, s85')
        a.e(f's_lshl_b32 s85, s{S_W}, 15')
        a.e('s_add_u32 s84, s84, s85')
    a.e(f's_mov_b32 s85, {F1}')
    a.e('s_waitcnt lgkmcnt(0)')
    stamp(a, 7)
    a.e(f'v_lshlrev_b32 v138, {4 if f1sh() == 2 else f1sh()}, v2')
    wait_flags(a, 85, 138, 128, n=256)
    stamp(a, 8)
    YL = 84
    YD = opt('yd', 1)
    if YD:
        for i in range(4):
            a.e(f'buffer_load_dwordx4 v{176+i}, s[36:39], s82 offen offset:{1024*i} sc1 lds')
    else:
        a.e(f'buffer_load_dwordx4 v[{YL}:{YL+3}], v139, s[36:39], s82 offen sc1')
        a.e(f'buffer_load_dwordx4 v[{YL+4}:{YL+7}], v139, s[36:39], s82 offen offset:{64 << YL_} sc1')
        a.e(f'buffer_load_dwordx4 v[{YL+8}:{YL+11}], v6, s[36:39], s82 offen sc1')
        a.e(f'buffer_load_dwordx4 v[{YL+12}:{YL+15}], v6, s[36:39], s82 offen offset:{64 << YL_} sc1')
    a.e('s_waitcnt vmcnt(4)')
    if NF0 == 4: g2.fM(([(0, 2), (1, 3)] if RS else []) + [(2, 0), (3, 1)])
    if YD:
        a.e('s_waitcnt vmcnt(0)')
        a.e('s_barrier')
        a.e(f'ds_read_b128 v[{YL}:{YL+3}], v180')
        a.e(f'ds_read_b128 v[{YL+4}:{YL+7}], v180 offset:64')
        a.e(f'ds_read_b128 v[{YL+8}:{YL+11}], v180 offset:8192')
        a.e(f'ds_read_b128 v[{YL+12}:{YL+15}], v180 offset:8256')
    for cgi in range(4):
        a.e(f's_waitcnt {"lgkm" if YD else "vm"}cnt({3-cgi})')
        for r in range(2):
            for e in range(2):
                u = YU[r] + 4 * cgi + 2 * e
                unpack(a, u, u + 1, YL + 4 * cgi + 2 * r + e)
        for r in range(2):
            for e in range(2):
                u = YU[r] + 4 * cgi + 2 * e; x = XM[r] + 4 * cgi + 2 * e; t = TT[r] + 4 * cgi + 2 * e
                a.e(f'v_pk_fma_f32 v[{x}:{x+1}], v[{t}:{t+1}], v[{u}:{u+1}], v[{x}:{x+1}]')
        for r in range(2):
            for e in range(2):
                x = XM[r] + 4 * cgi + 2 * e
                if cgi == 0 and e == 0:
                    a.e(f'v_pk_mul_f32 v[{RR[r]}:{RR[r]+1}], v[{x}:{x+1}], v[{x}:{x+1}]')
                else:
                    a.e(f'v_pk_fma_f32 v[{RR[r]}:{RR[r]+1}], v[{x}:{x+1}], v[{x}:{x+1}], v[{RR[r]}:{RR[r]+1}]')
            x = XM[r] + 4 * cgi
            if cgi == 0: a.e(f'v_pk_add_f32 v[{SS[r]}:{SS[r]+1}], v[{x}:{x+1}], v[{x+2}:{x+3}]')
            else:
                a.e(f'v_pk_add_f32 v[{SS[r]}:{SS[r]+1}], v[{x}:{x+1}], v[{SS[r]}:{SS[r]+1}]')
                a.e(f'v_pk_add_f32 v[{SS[r]}:{SS[r]+1}], v[{x+2}:{x+3}], v[{SS[r]}:{SS[r]+1}]')
    if opt('kbst'): stamp(a, 16)
    for r in range(2):
        a.e(f'v_add_f32 v{SS[r]}, v{SS[r]}, v{SS[r]+1}')
        a.e(f'v_add_f32 v{RR[r]}, v{RR[r]}, v{RR[r]+1}')
    fl_ = []
    for r in range(2):
        for q in range(8):
            u = YU[r] + 2 * q; x = XU[r] + 2 * q; t = TT[r] + 2 * q
            fl_.append(f'v_pk_fma_f32 v[{x}:{x+1}], v[{t}:{t+1}], v[{u}:{u+1}], v[{x}:{x+1}]')
    for r in range(2):
        for q in range(8):
            fl_.append(f'v_cvt_pk_bf16_f32 v{XP+8*r+q}, v{XU[r]+2*q}, v{XU[r]+2*q+1}')
    for mod in ('row_shr:1 row_mask:0xf bank_mask:0xf bound_ctrl:0', 'row_shr:2 row_mask:0xf bank_mask:0xf bound_ctrl:0',
                'row_shr:4 row_mask:0xf bank_mask:0xf bound_ctrl:0', 'row_shr:8 row_mask:0xf bank_mask:0xf bound_ctrl:0',
                'row_bcast:15 row_mask:0xa bank_mask:0xf', 'row_bcast:31 row_mask:0xc bank_mask:0xf'):
        for v in (SS[0], SS[1], RR[0], RR[1]):
            a.e(f'v_add_f32_dpp v{v}, v{v}, v{v} {mod}')
    for i, v in enumerate((SS[0], SS[1], RR[0], RR[1])):
        a.e(f'v_readlane_b32 s{56+i}, v{v}, 63')
    def both(f):
        for r in range(2): f(r)
        if fl_: a.e(fl_.pop(0))
        if fl_: a.e(fl_.pop(0))
    def rbf(v):
        a.e(f'v_cvt_pk_bf16_f32 v{v}, v{v}, v{v}')
        a.e(f'v_and_b32 v{v}, s{S_MASK}, v{v}')
    both(lambda r: a.e(f'v_mul_f32 v{SS[r]}, s{56+r}, v{C}'))
    both(lambda r: a.e(f'v_mul_f32 v{RR[r]}, s{58+r}, v{C}'))
    both(lambda r: a.e(f'v_fma_f32 v{RR[r]}, -v{SS[r]}, v{SS[r]}, v{RR[r]}'))
    both(lambda r: a.e(f'v_max_f32 v{RR[r]}, 0, v{RR[r]}'))
    both(lambda r: rbf(RR[r]))
    both(lambda r: a.e(f'v_add_f32 v{RR[r]}, 0x3727c5ac, v{RR[r]}'))
    both(lambda r: rbf(RR[r]))
    both(lambda r: a.e(f'v_sqrt_f32 v{RR[r]}, v{RR[r]}'))
    both(lambda r: a.e(f'v_add_f32 v{SS[r]}, v{SS[r]}, v{MM[r]}'))
    both(lambda r: rbf(RR[r]))
    both(lambda r: a.e(f'v_rcp_f32 v{RR[r]}, v{RR[r]}'))
    both(lambda r: rbf(SS[r]))
    if opt('hs', 0): both(lambda r: a.e(f'v_mul_f32 v{RR[r]}, 0x3fb8aa3b, v{RR[r]}'))
    both(lambda r: a.e(f'v_sub_f32 v{SS[r]}, v{MM[r]}, v{SS[r]}'))
    both(lambda r: a.e(f'v_mul_f32 v{SS[r]}, v{SS[r]}, v{RR[r]}'))
    nh = len(fl_)
    for q in range(8):
        for r in range(2):
            x = XM[r] + 2 * q
            a.e(f'v_pk_fma_f32 v[{TT[r]+2*q}:{TT[r]+2*q+1}], v[{x}:{x+1}], v[{RR[r]}:{RR[r]+1}], v[{SS[r]}:{SS[r]+1}] op_sel_hi:[1,0,0]')
    for r in range(2):
        for q in range(8):
            a.e(f'v_cvt_pk_bf16_f32 v{YL+8*r+q}, v{TT[r]+2*q}, v{TT[r]+2*q+1}')
        for hh in range(2):
            a.e(f'ds_write_b128 v{132+r}, v[{YL+8*r+4*hh}:{YL+8*r+4*hh+3}] offset:{8192*hh}')
    for t_ in fl_: a.e(t_)
    a.e('s_waitcnt lgkmcnt(0)')
    a.e('s_barrier')
    for i in range(4):
        a.e(f'ds_read_b128 v[{100+4*i}:{103+4*i}], v135 offset:{1024*i}')
    for i in range(4):
        a.e(f's_waitcnt lgkmcnt({3-i})')
        if HC:
            a.e(f'buffer_store_dwordx4 v[{100+4*i}:{103+4*i}], v136, s[44:47], s84 offen offset:{1024*i} sc1')
        else:
            a.e(f'buffer_store_dwordx4 v[{100+4*i}:{103+4*i}], v136, s[44:47], s84 offen sc1')
            if i < 3: a.e('s_add_u32 s84, s84, 8192')
    stamp(a, 9)
    a.e(f's_lshl_b32 s87, s91, {fsh()}')
    a.e(f's_add_u32 s87, s87, {F2}')
    g2.front_save()
    if opt('s2e', 0):
        assert not F45
        signal(a, 87, 4)
        g1.pre_setup([])
    else:
        g1.pre_setup(g2.fD([(4, 0), (5, 1)], dv=28) if F45 else [])
        signal(a, 87, 4, waitfn=lambda: a.e(f's_waitcnt vmcnt({8 if F45 else 0})'))
    g2.NF = 8 if F45 else NF0 + 2
    def mv45():
        if not F45: return
        a.e('v_add_u32 v4, s73, v7')
        a.e('v_xor_b32 v5, 32, v4')
        a.e('s_waitcnt vmcnt(8)')
        g2.fM([(4, 0), (5, 1)], base=4)
    g1.hook = mv45
    g1.main()
    g1.epilogue(g2)
    g2.main()
    a.e(f's_or_b32 s57, s2, s{S_W}')
    a.e('s_cmp_lg_u32 s57, 0')
    a.e('s_cbranch_scc1 L_clean_skip')
    srd(a, 32, P_DBG, 256)
    a.e('v_mov_b32 v20, 0')
    a.e('s_mov_b64 exec, 1')
    a.e('buffer_store_dword v20, v20, s[32:35], 0 offen sc1')
    a.e('s_mov_b64 exec, -1')
    a.e('L_clean_skip:')
    stamp_out(a, NSTAMP)
    a.e('L_end:')
    a.e('s_endpgm')

G1_STG = 32768
class G1:
    TM, NW, DPW, ND = 4, 4, 8, 4
    ACC, WF, TF, DV, VT, VR, VL = 32, 0, 28, 8, 16, 17, 18
    DVE = 240
    def __init__(s, a): s.a = a
    def setup_dma(s):
        a = s.a
        a.e('s_and_b32 s56, s81, 1')
        a.e('s_lshl_b32 s56, s56, 1')
        a.e('s_movk_i32 s57, 4682')
        a.e('s_movk_i32 s58, 7168')
        a.e('v_mov_b32 v76, 0x80000000')
        a.e('v_subrev_u32 v77, 8, v2')
        for src, dst in ((2, 78), (77, 79)):
            a.e(f'v_cmp_gt_u32 vcc, 56, v{src}')
            a.e(f'v_mul_u32_u24 v80, s57, v{src}')
            a.e('v_lshrrev_b32 v80, 16, v80')
            a.e('v_mul_u32_u24 v81, 14, v80')
            a.e(f'v_sub_u32 v81, v{src}, v81')
            a.e('v_add_u32 v81, s56, v81')
            a.e('v_subrev_u32 v82, 14, v81')
            a.e('v_min_u32 v81, v81, v82')
            a.e('v_mul_u32_u24 v80, s58, v80')
            a.e('v_lshl_add_u32 v80, v81, 4, v80')
            a.e(f'v_cndmask_b32 v{dst}, v76, v80, vcc')
        for i in range(8):
            pat = 79 if (i >> 1) & 1 else 78
            c = i * 4 * 7168 - 1024 * (i & 3)
            a.e(f'v_add_u32 v{s.DVE+i}, {c}, v{pat}' if c else f'v_mov_b32 v{s.DVE+i}, v{pat}')
        a.e(f's_and_b32 s56, s{S_W}, 1')
        a.e(f's_lshr_b32 s57, s{S_W}, 1')
        a.e(f's_mul_i32 s97, s56, {8*4*7168}')
        a.e('s_mov_b32 s100, 458752')
        a.e('s_lshl_b32 s98, s57, 14')
        a.e('s_lshl_b32 s56, s56, 13')
        a.e('s_add_u32 s98, s98, s56')
        a.e('s_mul_i32 s56, s81, 224')
        a.e('s_cmp_eq_u32 s57, 0')
        a.e(f's_cselect_b32 s52, s{P_W1}, s{P_W3}')
        a.e(f's_cselect_b32 s53, s{P_W1+1}, s{P_W3+1}')
        srd(a, 52, 52, None, 0, 56)
        a.e('s_sub_u32 s54, 7340032, s56')
    def m0set(s, i): return f's_add_u32 m0, s98, {4096*(i//4)}' if i else 's_mov_b32 m0, s98'
    def dma(s, i, base): return f'buffer_load_dwordx4 v{base+i}, s[52:55], s97 offen offset:{1024*(i&3)}' + ['', ' sc1', ' nt', ' sc0'][opt('wfl')] + ' lds'
    def dma_adv(s): return ['s_add_u32 s97, s97, s100', f's_add_u32 s98, s98, {G1_STG}', 's_and_b32 s98, s98, 0x1ffff']
    def early_dma(s):
        out = []
        for st in range(2):
            for i in range(8):
                if i % 4 == 0: out.append([s.m0set(i)])
                out.append([s.dma(i, s.DVE)] + (s.dma_adv() if i == 7 else []))
        return out
    def tok(s, k, tm):
        f = s.TF + 4 * (4 * (k % s.ND) + tm)
        if opt('hc', 0):
            return f'buffer_load_dwordx4 a[{f}:{f+3}], v{(3, 25, 26, 27)[tm]}, s[32:35], s82 offen sc1'
        return f'buffer_load_dwordx4 a[{f}:{f+3}], v{s.VT}, s[32:35], s82 offen offset:{tm*1024}' + (' sc1' if opt('t1sc', 1) else '')
    def rd(s, ph, t):
        j, mat = (ph & 3) >> 1, ph & 1
        return [f'ds_read_b64_tr_b16 a[{s.WF+4*t+2*h}:{s.WF+4*t+2*h+1}], v{s.VR} offset:{8192*j+1024*h+32*t+16384*mat}' for h in range(2)]
    def pre_setup(s, inj):
        a = s.a
        for i in range(8): a.e(f'v_mov_b32 v{s.DV+i}, v{s.DVE+i}')
        for i in range(16): a.e(f'v_accvgpr_write_b32 a{92+i}, v{224+i}')
        zero_acc(a, s.ACC, 224, 20)
        a.e(f'v_lshlrev_b32 v{s.VT}, 4, v2')
        a.e('v_lshrrev_b32 v4, 4, v2')
        a.e('v_lshlrev_b32 v4, 11, v4')
        a.e('v_bfe_u32 v5, v2, 4, 1')
        a.e('v_lshl_add_u32 v4, v5, 7, v4')
        a.e('v_bfe_u32 v6, v2, 2, 2')
        a.e('v_mul_u32_u24 v5, 224, v6')
        a.e('v_and_b32 v6, 3, v2')
        a.e('v_lshl_add_u32 v5, v6, 3, v5')
        a.e(f'v_add_u32 v{s.VL}, v4, v5')
        a.e(f'v_mov_b32 v{s.VR}, v{s.VL}')
        if opt('hc', 0):
            a.e('v_bfe_u32 v4, v2, 3, 1')
            a.e('v_lshlrev_b32 v4, 14, v4')
            a.e('v_lshrrev_b32 v5, 4, v2')
            a.e('v_lshl_add_u32 v4, v5, 7, v4')
            a.e('v_and_b32 v5, 7, v2')
            a.e('v_lshl_add_u32 v3, v5, 4, v4')
            for i in range(1, 4): a.e(f'v_add_u32 v{24+i}, {32768*i}, v3')
        if opt('f2w', 0):
            a.e('v_and_b32 v19, 7, v2')
            a.e(f's_lshl_b32 s56, s{S_W}, 3')
            a.e('v_add_u32 v19, s56, v19')
        else:
            a.e('v_and_b32 v19, 31, v2')
        a.e(f'v_lshlrev_b32 v19, {fsh()}, v19')
        a.e('s_lshl_b32 s56, s80, 2')
        a.e(f's_add_u32 s56, s56, s{S_W}')
        a.e('s_lshl_b32 s57, s56, 17')
        srd(a, 32, P_WS, 131072, WS_HNF, 57)
        hf_base(a, 57, 80, S_W, 58)
        srd(a, 36, P_WS, 4 * 114688, 0, 57)
        a.e('s_and_b32 s58, s81, 1')
        a.e('s_mul_i32 s85, s81, 7')
        a.e('s_add_u32 s85, s85, s58')
        a.e('s_lshl_b32 s85, s85, 9')
        a.e('s_movk_i32 s86, 3072')
        a.e('s_cmp_eq_u32 s58, 0')
        a.e(f's_cselect_b32 s86, s86, {0xfffffe00 if opt("hl", 1) else 0xfffffc08:#x}')
        a.e('s_add_u32 s86, s86, s85')
        assert not inj
    def kof(s, s_, P): return 2 * s_ + (-1, 0, 0, 1)[P]
    def ev_ins(s, e):
        L = []
        if e[0] == 'D':
            if e[2] % 4 == 0: L.append(s.m0set(e[2]))
            L.append(s.dma(e[2], s.DV))
            if e[2] == 7: L += s.dma_adv()
        elif e[0] == 'Z':
            fl = ['', ' sc1'][opt('ps', 0) - 1]
            u = e[2]
            if u < 3: L = [f'buffer_store_dwordx4 v[24:27], v{s.VT}, s[36:39], s88 offen offset:{1024*u}{fl}']
            else: L = [f'buffer_store_dwordx2 v[24:25], v{s.VT}, s[36:39], s89 offen{fl}', 's_add_u32 s88, s88, 114688', 's_add_u32 s89, s89, 114688']
        elif e[0] == 'Q':
            L = [f'buffer_store_dwordx4 v[24:27], v{s.VT}, s[44:47], s99 offen', 's_add_u32 s99, s99, 1024']
        elif e[0] == 'V':
            L = ['s_mov_b32 m0, s89', 'buffer_load_dwordx4 v28, s[68:71], s72 offen lds', 's_add_u32 s72, s72, 32768', 's_add_u32 s89, s89, 1024']
        elif e[0] == 'U':
            if e[2] == 0: L = ['buffer_load_dword v0, v6, s[48:51], s101 offen']
            else: L = ['buffer_load_dword v0, v6, s[4:7], s101 offen', 's_add_u32 s101, s101, 917504']
        elif e[0] == 'C':
            L = ['global_load_dword v0, v23, s[78:79]', f's_cmp_ge_u32 s84, {opt("cpt", 5)}', 's_cselect_b32 s99, -1, 0', 'v_and_b32 v23, s99, v24']
        elif e[0] == 'Y':
            L = ['buffer_load_dword v0, v21, s[44:47], s88 offen', 's_add_u32 s88, s88, 1024']
        else:
            L.append(s.tok(e[1], e[2]))
            if e[2] == 3: L.append(f's_add_u32 s82, s82, {512 if opt("hc", 0) else 4096}')
        return L
    def main(s):
        a = s.a
        S = s.S = Sched()
        for s_ in range(-4, 8):
            for P in range(4):
                S.mark((s_, P))
                k = s.kof(s_, P) + s.ND - 1
                t0 = 2 if P in (0, 2) else 0
                S.add([('D', s_ + 2, 2 * P), ('T', k, t0), ('D', s_ + 2, 2 * P + 1), ('T', k, t0 + 1)])
                if opt('w2y', 0 if opt('rs', 0) else 1) and s_ % 2 == 0 and P == 1: S.add([('Y', s_, 0)])
                if opt('la', 2) < 8 and P == (3 if s_ % 2 == 0 else 2): S.add([('U', s_, s_ % 2)])
                if opt('vev', 1) and s_ % 2 == 1 and P == 1: S.add([('V', s_, 0)])
                if opt('cpg', 1) and s_ % 2 == 1 and P == 3: S.add([('C', s_, 0)])
                if opt('psx', 0) and P == 2 and s_ & 1: S.add([('Q', s_, 0)])
                if opt('ps', 0) and P in (1, 3): S.add([('Z', s_, 2 * (s_ & 1) + (P >> 1))])
        vm_bar = min(S.younger(('D', 4), (4, 0)), S.younger(('D', 5), (5, 0)))
        vm_p1 = min(S.younger(('T', 8), (4, 1)), S.younger(('T', 10), (5, 1)))
        vm_p3 = min(S.younger(('T', 9), (4, 3)), S.younger(('T', 11), (5, 3)))
        if opt('w2y', 0 if opt('rs', 0) else 1):
            a.e('s_mul_i32 s56, s2, 28672')
            a.e(f's_mul_i32 s57, s{S_W}, 7168')
            a.e('s_add_u32 s56, s56, s57')
            srd(a, 44, P_W2, 7168, 0, 56)
            a.e('v_min_u32 v21, 8, v2')
            a.e('v_lshlrev_b32 v21, 7, v21')
            a.e('s_mov_b32 s88, 0')
        a.e(f's_lshl_b32 s56, s80, {5+fsh()}')
        a.e(f's_add_u32 s56, s56, {F2}')
        if opt('psx', 0):
            srd(a, 44, P_WS, 8 * MB, WS_XP)
            a.e('s_lshl_b32 s99, s2, 2')
            a.e(f's_add_u32 s99, s99, s{S_W}')
            a.e('s_lshl_b32 s99, s99, 13')
        if opt('ps', 0):
            a.e('s_mov_b32 s88, s85')
            a.e('s_mov_b32 s89, s86')
            for r in range(4): a.e(f'v_mov_b32 v{24+r}, 0')
        a.e('s_add_u32 s89, s73, 98304')
        if opt('la', 2) < 8:
            a.e('s_mul_i32 s57, s2, 3584')
            a.e(f's_mul_i32 s58, s{S_W}, 896')
            a.e('s_add_u32 s57, s57, s58')
            srd(a, 48, P_W1, None, 0, 57)
            a.e('s_sub_u32 s50, 7340032, s57')
            srd(a, 4, P_W3, None, 0, 57)
            a.e('s_mov_b32 s6, s50')
            a.e(f's_mov_b32 s101, {917504 * opt("la", 2)}')
            a.e('v_min_u32 v6, 6, v2')
            a.e('v_lshlrev_b32 v6, 7, v6')
        if opt('cpg', 1):
            a.e('s_getpc_b64 s[78:79]')
            a.e('L_pcg:')
            a.e(f's_lshl_b32 s77, s{S_W}, 13')
            a.e('s_add_u32 s77, s77, L_g1epi-L_pcg')
            a.e('v_lshl_add_u32 v24, v2, 7, s77')
            a.e('v_min_u32 v24, L_end-L_pcg, v24')
            a.e('v_mov_b32 v23, 0')
        a.e('s_mov_b32 s82, 0')
        a.e('s_mov_b32 s83, 0')
        a.e('s_mov_b32 s84, 0')
        stamp(a, 10)
        d1 = [('D', 1, i) for i in range(8)] + [('D', 2, 0), ('D', 2, 1)]
        for e in d1:
            for l in s.ev_ins(e):
                a.e(l)
                if 'm0' in l: a.e('s_nop 0')
        s.hook()
        for t in range(6):
            for l in s.rd(0, t): a.e(l)
        a.e('s_waitcnt lgkmcnt(12)')
        wait_flags(a, 56, 19, 20, solo=0 if opt('f2w', 0) else None)
        stamp(a, 11)
        XE = opt('xe', 1)
        pro = d1 + [e for e in S.ev[:S.marks[(0, 1)]] if e[1] >= 0 and e[0] == 'T'] + ([] if XE else [('X', i, 0) for i in range(4)]) + [('U', -1 - i // 2, i & 1) for i in range(2 * opt('lx', 0))]
        for e in pro[len(d1):]:
            if e[0] == 'X':
                a.e(f'buffer_store_dwordx4 a[{92+4*e[1]}:{95+4*e[1]}], v{s.VT}, s[40:43], s96 offen offset:{1024*e[1]} sc1')
                continue
            for l in s.ev_ins(e):
                a.e(l)
                if 'm0' in l: a.e('s_nop 0')
        act = pro + S.ev[S.marks[(0, 1)]:]
        off = len(pro) - S.marks[(0, 1)]
        s.startup = {}
        need = -1
        for s_ in range(0, 6):
            for P, tags, N in ((0, [('D', s_)], vm_bar), (1, [('T', 2 * s_)], vm_p1), (3, [('T', 2 * s_ + 1)], vm_p3)):
                if (s_, P) == (0, 0): continue
                site = S.marks[(s_, P)] + off
                for tg in tags:
                    idx = [i for i, e in enumerate(act) if e[:2] == tg]
                    if not idx: continue
                    if site - max(idx) - 1 < N: need = max(need, max(idx))
        if need >= 0:
            a.e(f's_waitcnt vmcnt({S.marks[(0, 1)] + off - need - 1})')
        a.e('s_branch L_g1_P1')
        s.snake = 0
        if opt('al', 1):
            a.raw('.p2align 6')
            for _ in range(opt('alo', 0)): a.e('s_nop 0')
        a.e('L_g1_loop:')
        if opt('tw', 1):
            a.e('s_cmp_eq_u32 s84, 7')
            a.e('s_cbranch_scc0 L_g1_notw')
            for i in range(4):
                a.e(f'v_mov_b32 v{s.DV+i}, v{28+i}')
                a.e(f'v_add_u32 v{s.DV+4+i}, 131072, v{28+i}')
            a.e('s_mov_b64 s[52:53], s[68:69]')
            a.e('s_mov_b32 s54, s70')
            a.e('s_add_u32 s97, s72, 32768')
            a.e('s_mov_b32 s100, 262144')
            a.e('L_g1_notw:')
        for s_ in (4, 5):
            a.e(f's_add_u32 s83, s83, {G1_STG}')
            a.e('s_and_b32 s83, s83, 0x1ffff')
            a.e(f's_waitcnt vmcnt({vm_bar})')
            a.e('s_barrier')
            s.phase(s_, 0)
            if s_ == 4: a.e('L_g1_P1:')
            a.e(f's_waitcnt vmcnt({vm_p1})')
            s.phase(s_, 1)
            s.phase(s_, 2)
            a.e(f's_waitcnt vmcnt({vm_p3})')
            s.phase(s_, 3)
        if opt('g1st'):
            a.e('s_memtime s[66:67]')
            a.e('s_min_u32 s64, s84, 3')
            a.e('s_add_u32 s64, s64, 26')
            a.e('s_waitcnt lgkmcnt(0)')
            a.e('s_cmp_lt_u32 s84, 4')
            a.e('s_cselect_b32 s64, s64, 40')
            a.e('s_mov_b32 m0, s64')
            a.e('v_writelane_b32 v1, s66, m0')
        a.e('s_add_u32 s84, s84, 1')
        a.e('s_cmp_lt_u32 s84, 8')
        a.e('s_cbranch_scc1 L_g1_loop')
        a.e('L_g1epi:')
        s.pre = []
        if opt('eo', 0):
            a.e('s_mov_b32 s58, 0xbfb8aa3b')
            a.e('s_mov_b32 s59, 0xbfb8aa3b')
            for T, u in ((8, 0), (20, 1))[:opt('eo', 0)]:
                gs = [s.ACC + 4 * (t * 4) + e for t in (2 * u, 2 * u + 1) for e in (0, 2)]
                s.pre += [f'v_pk_mul_f32 v[{T+2*q}:{T+2*q+1}], v[{gs[q]}:{gs[q]+1}], s[58:59]' for q in range(4)]
                s.pre += [f'v_exp_f32 v{T+q}, v{T+q}' for q in range(8)]
                s.pre += [f'v_pk_add_f32 v[{T+2*q}:{T+2*q+1}], v[{T+2*q}:{T+2*q+1}], 1.0 op_sel_hi:[1,0]' for q in range(4)]
                s.pre += [f'v_rcp_f32 v{T+q}, v{T+q}' for q in range(8)]
        s.phase(6, 0, last=True)
        assert not s.pre
        stamp(a, 12)
    def phase(s, s_, P, last=False):
        a = s.a; S = s.S
        kbuf = s.kof(s_, P) % s.ND
        mat = (P + 1) & 1
        items = []
        if not last:
            nxt = S.marks[(s_, P + 1)] if P < 3 else S.marks[(s_ + 1, 0)]
            items = [s.ev_ins(e) for e in S.ev[S.marks[(s_, P)]:nxt]]
        slots = [[] for _ in range(7)]
        for p_, it in zip([1, 2, 4, 5, 6], items): slots[p_] = it
        if P == 0 and not last:
            slots[0] = [f'v_add_u32 v{s.VR}, s83, v{s.VL}']
        for t in range(7):
            a.e(f's_waitcnt lgkmcnt({10 if not (last and t) else 12-2*t})')
            R = s.rd(P - 1, 6) if t == 0 else ([] if last else s.rd(P, t - 1))
            X = list(slots[t])
            pre = [x for x in X if 'm0' in x]
            X = [x for x in X if 'm0' not in x]
            gaps = [[] for _ in range(4)]
            if R: gaps[0] = pre + [R[0]]; gaps[1] = [R[1]]
            gaps[2] = X[:1]; gaps[3] = X[1:]
            order = [0, 1, 2, 3]
            if s.snake & 1: order.reverse()
            s.snake += 1
            for n, tm in enumerate(order):
                c = s.ACC + 4 * ((mat * 7 + t) * 4 + tm)
                tf = s.TF + 4 * (4 * kbuf + tm)
                if not opt('g1x') & 1: a.e(f'v_mfma_f32_16x16x32_bf16 v[{c}:{c+3}], a[{s.WF+4*t}:{s.WF+4*t+3}], a[{tf}:{tf+3}], v[{c}:{c+3}]')
                for x in gaps[n]:
                    if opt('g1x') & 2 and x.startswith('ds_'): continue
                    if opt('g1x') & 4 and x.startswith('buffer'): continue
                    a.e(x)
                if last and not gaps[n]:
                    for _ in range(opt('eo', 0)):
                        if s.pre: a.e(s.pre.pop(0))
    def epilogue(s, g2):
        a = s.a
        L = Lin(a)
        a.e('s_mov_b32 s58, 0xbfb8aa3b')
        a.e('s_mov_b32 s59, 0xbfb8aa3b')
        if opt('xe', 1):
            for i in range(4):
                a.e(f'buffer_store_dwordx4 a[{92+4*i}:{95+4*i}], v{s.VT}, s[40:43], s96 offen offset:{1024*i} sc1')
        g2.early(L)
        a.e('v_lshlrev_b32 v17, 3, v2')
        T = 8
        k = 0
        for tm in range(4):
            for u in range(4):
                O = (20, 24)[k & 1]
                fill = g2.epi_fill(k)
                def F(n=1):
                    for _ in range(n):
                        if fill: fill.pop(0)()
                tiles = [2 * u, 2 * u + 1] if u < 3 else [6]
                gs = []; us = []
                for t in tiles:
                    gs += [s.ACC + 4 * (t * 4 + tm), s.ACC + 4 * (t * 4 + tm) + 2]
                    us += [s.ACC + 4 * ((7 + t) * 4 + tm), s.ACC + 4 * ((7 + t) * 4 + tm) + 2]
                n = len(gs)
                nins = 9 * n
                cnt = [0]; ev_ = max(1, nins // (len(fill) + 1))
                def V(t):
                    a.e(t); cnt[0] += 1
                    if cnt[0] % ev_ == 0: F(1)
                T = 8
                if k < opt('eo', 0):
                    T = (8, 20)[k]; O = (24 if opt('eo', 0) == 1 else 8, 12)[k]
                    if k == 0 and opt('eo', 0) == 2: O = 28 - 28 + 0
                else:
                    for q in range(n): V(f'v_pk_mul_f32 v[{T+2*q}:{T+2*q+1}], v[{gs[q]}:{gs[q]+1}], s[58:59]')
                    for q in range(2 * n): V(f'v_exp_f32 v{T+q}, v{T+q}')
                    for q in range(n): V(f'v_pk_add_f32 v[{T+2*q}:{T+2*q+1}], v[{T+2*q}:{T+2*q+1}], 1.0 op_sel_hi:[1,0]')
                    for q in range(2 * n): V(f'v_rcp_f32 v{T+q}, v{T+q}')
                for q in range(n): V(f'v_pk_mul_f32 v[{gs[q]}:{gs[q]+1}], v[{gs[q]}:{gs[q]+1}], v[{us[q]}:{us[q]+1}]')
                for q in range(n): V(f'v_pk_mul_f32 v[{T+2*q}:{T+2*q+1}], v[{T+2*q}:{T+2*q+1}], v[{gs[q]}:{gs[q]+1}]')
                for q in range(n): V(f'v_cvt_pk_bf16_f32 v{O+q}, v{T+2*q}, v{T+2*q+1}')
                if u < 3:
                    L.v('st', f'buffer_store_dwordx4 v[{O}:{O+3}], v{s.VT}, s[36:39], s85 offen offset:{1024*u}' + hfl())
                else:
                    L.v('st', f'buffer_store_dwordx2 v[{O}:{O+1}], v{17 if opt("hl", 1) else s.VT}, s[36:39], s86 offen' + hfl())
                F(len(fill))
                k += 1
            if tm < 3:
                a.e('s_add_u32 s85, s85, 114688')
                a.e('s_add_u32 s86, s86, 114688')
        a.e(f's_lshl_b32 s87, s91, {fsh()}')
        a.e(f's_add_u32 s87, s87, {F3}')
        stamp(a, 13)
        a.e('L_g2code:')
        if opt('s3e', 1):
            a.e('s_waitcnt lgkmcnt(0)')
            signal(a, 87, 5, waitfn=lambda: L.wait(vm=('st',)))
            g2.post_epilogue(bar=False)
        else:
            g2.post_epilogue()
            signal(a, 87, 5, waitfn=lambda: L.wait(vm=('st',)), wb=(opt('hfl') == 4))
        stamp(a, 18)

class G2:
    ACC, TF, DV, VT, RJ, TR, V1, VO, VF = 32, 96, 28, 16, 3, 8, 12, 13, 14
    REG = 40960
    def __init__(s, a): s.a = a
    def wreg(s, k, j):
        if k < 16: return 'a', 128 + 8 * k + 4 * j
        if k < 32: return 'a', 8 * (k - 16) + 4 * j
        NB = opt('nb', 12); nv = (160 - 4 * NB) // 8
        if k < 32 + nv: return 'v', 96 + 4 * NB + 8 * (k - 32) + 4 * j
        return 'a', 128 + 8 * (k - 32 - nv) + 4 * j
    def front_setup(s):
        a = s.a
        gm = opt('g2map', 1)
        s.pbit = 2 if gm == 2 else 1
        if gm == 2: a.e('s_bfe_u32 s76, s2, 0x10001')
        else: a.e('s_and_b32 s76, s2, 1')
        a.e('s_lshr_b32 s56, s2, 3')
        if gm:
            if gm == 2:
                a.e('s_andn2_b32 s74, 1, s2')
            else:
                a.e('s_bfe_u32 s74, s2, 0x10001')
            a.e('s_lshl_b32 s74, s74, 3')
            a.e('s_and_b32 s57, s56, 7')
            a.e('s_add_u32 s74, s74, s57')
            a.e('s_bfe_u32 s75, s2, 0x10002')
            a.e('s_lshl_b32 s75, s75, 2')
            a.e('s_lshr_b32 s57, s56, 3')
            a.e('s_add_u32 s75, s75, s57')
        else:
            a.e('s_bfe_u32 s74, s2, 0x20001')
            a.e('s_lshl_b32 s74, s74, 2')
            a.e('s_and_b32 s57, s56, 3')
            a.e('s_add_u32 s74, s74, s57')
            a.e('s_lshr_b32 s75, s56, 2')
        a.e('v_lshrrev_b32 v252, 2, v2')
        a.e('v_lshlrev_b32 v253, 11, v252')
        a.e('v_lshrrev_b32 v254, 3, v2')
        a.e('v_xor_b32 v254, v254, v2')
        a.e('v_and_b32 v254, 2, v254')
        a.e('v_and_or_b32 v254, v2, 1, v254')
        a.e('v_lshl_add_u32 v248, v254, 4, v253')
        for i in range(1, 4):
            a.e(f'v_add_u32 v{248+i}, {i*(32768-1024)}, v248')
        a.e('s_mul_i32 s56, s76, 3670016')
        a.e('s_lshl_b32 s57, s75, 8')
        a.e('s_add_u32 s56, s56, s57')
        a.e(f's_lshl_b32 s57, s{S_W}, 6')
        a.e('s_add_u32 s56, s56, s57')
        srd(a, 68, P_W2, None, 0, 56)
        a.e('s_sub_u32 s70, 7340032, s56')
        a.e('s_mov_b32 s72, 0')
        a.e('v_lshlrev_b32 v252, 6, v252')
        a.e('v_bfe_u32 v253, v2, 4, 1')
        a.e('v_lshl_add_u32 v252, v253, 5, v252')
        a.e('v_and_b32 v253, 3, v2')
        a.e('v_lshl_add_u32 v252, v253, 3, v252')
        a.e(f's_lshl_b32 s73, s{S_W}, 13')
        a.e('s_add_u32 s73, s73, 32768')
        a.e('v_add_u32 v253, s73, v252')
        a.e('v_xor_b32 v254, 32, v253')
    def fcell(s, n): return (32768, 36864, 0, 4096, 98304, 102400)[n]
    def fD(s, pairs, dv=248):
        a = s.a
        out = []
        for c, n in pairs:
            out.append(lambda n=n: a.e(f's_add_u32 m0, s73, {s.fcell(n)}'))
            for i in range(4):
                def f(i=i):
                    a.e(f'buffer_load_dwordx4 v{dv+i}, s[68:71], s72 offen offset:{1024*i} lds')
                    if i == 3: a.e('s_add_u32 s72, s72, 131072')
                out.append(f)
        return out
    def fM(s, pairs, base=253, sub=0):
        a = s.a
        for c, n in pairs:
            for kk in range(2):
                for j in range(2):
                    for h in range(2):
                        r, q = s.wreg(2 * c + kk, j)
                        a.e(f'ds_read_b64_tr_b16 {r}[{q+2*h}:{q+2*h+1}], v{base+j} offset:{s.fcell(n)-sub+2048*kk+1024*h}')
    def front_save(s):
        a = s.a
        for i in range(4): a.e(f'v_mov_b32 v{s.DV+i}, v{248+i}')
        a.e('v_mov_b32 v7, v252')
    def early(s, L):
        a = s.a; s.L = L
        a.e('s_mov_b32 s80, s74')
        a.e('s_mov_b32 s81, s75')
        a.e('s_mov_b32 s82, s76')
        a.e(f's_mul_i32 s98, s{S_W}, {s.REG}')
        a.e(f'v_add_u32 v{s.RJ}, s98, v7')
        a.e(f'v_xor_b32 v{s.RJ+1}, 32, v{s.RJ}')
        a.e('s_add_u32 s56, s73, 98304')
        a.e('v_add_u32 v5, s56, v7')
        a.e('v_xor_b32 v6, 32, v5')
        L.vm = ['tail'] + ['st'] * (4 if opt('xe', 1) else 0)
        mv = [(s.NF - 2, 4, 5, 98304), (s.NF - 1, 5, 5, 98304)]
        if opt('tw', 1):
            a.e('s_mov_b32 s72, s97')
            a.e('s_sub_u32 s56, s73, 32768')
            a.e('v_add_u32 v18, s56, v7')
            a.e('v_xor_b32 v19, 32, v18')
            mv += [(s.NF + i, (2, 3, 0, 1)[i], 18, 0) for i in range(4)]
            s.NF += 4
        items = []
        for c, n, base, sub in mv:
            for kk in range(2):
                for j in range(2):
                    for h in range(2):
                        r, q = s.wreg(2 * c + kk, j)
                        items.append(lambda r=r, q=q, h=h, j=j, n=n, kk=kk, base=base, sub=sub: a.e(f'ds_read_b64_tr_b16 {r}[{q+2*h}:{q+2*h+1}], v{base+j} offset:{s.fcell(n)-sub+2048*kk+1024*h}'))
        s.mv_items = items
        if opt('cpf2', 0): code_pf(a, 'L_g2code', 'L_end', 21, lambda t: L.v('cp', t))
        s.cell = {}
        s.free = list(range(10))
    def D(s, c):
        L = s.L
        def first():
            s.cell[c] = s.free.pop(0)
            L.e(f's_add_u32 m0, s98, {4096*s.cell[c]}')
        out = [first]
        for i in range(4):
            out.append(lambda i=i: L.v(('W', c), f'buffer_load_dwordx4 v{s.DV+i}, s[68:71], s72 offen offset:{1024*i} lds'))
        out.append(lambda: L.e('s_add_u32 s72, s72, 131072'))
        return out
    def M(s, c):
        L = s.L
        out = []
        for kk in range(2):
            for j in range(2):
                for h in range(2):
                    def f(kk=kk, j=j, h=h):
                        r, n = s.wreg(2 * c + kk, j)
                        L.l(('M', c), f'ds_read_b64_tr_b16 {r}[{n+2*h}:{n+2*h+1}], v{s.RJ+j} offset:{4096*s.cell[c]+2048*kk+1024*h}')
                    out.append(f)
        return out
    def Wv(s, c): return [lambda: s.L.wait(vm=(('W', c),))]
    def Fr(s, cs):
        def f():
            s.L.wait(lg0=True)
            for c in cs: s.free.append(s.cell[c])
        return [f]
    def epi_fill(s, k):
        D, M, Wv, Fr = s.D, s.M, s.Wv, s.Fr
        def cat(*xs): return [y for x in xs for y in x]
        s.A = []
        k0 = opt('mvk', 0)
        if k < k0: return []
        out, s.mv_items = s.mv_items[:12], s.mv_items[12:]
        if k == k0: out = [lambda: s.L.wait(vm=('tail',))] + out
        return out
    def post_epilogue(s, bar=True):
        a = s.a; L = s.L
        assert not s.A
        s.NA = s.NF + opt('ne', 0) + opt('na', 3)
        if bar:
            a.e('s_waitcnt lgkmcnt(0)')
            a.e('s_barrier')
        a.inject([f for c in range(s.NF + opt('ne', 0), s.NA) for f in s.D(c)], 4)
        a.e(f'v_mov_b32 v{s.TR}, v{s.VT}')
        for q in range(1, 4):
            a.e(f'v_add_u32 v{s.TR+q}, {q*s.REG}, v{s.VT}')
        a.e(f'v_add_u32 v{s.V1}, {114688-2048}, v{s.VT}')
        for q in range(4):
            a.e(f'v_add_u32 v{24+q}, {q*s.REG}, v17')
        zero_acc(a, s.ACC, 64, 96)
        a.flush_inject()
        a.e('s_lshl_b32 s56, s80, 3')
        a.e(f's_lshl_b32 s57, s{S_W}, 1')
        a.e('s_lshl_b32 s58, s82, 2')
        a.e('s_xor_b32 s57, s57, s58')
        a.e('s_add_u32 s56, s56, s57')
        a.e('s_lshr_b32 s83, s56, 4')
        a.e('s_bfe_u32 s84, s56, 0x20002')
        hf_base(a, 57, 83, 84, 58)
        a.e('s_and_b32 s56, s56, 3')
        a.e('s_mul_i32 s56, s56, 114688')
        a.e('s_add_u32 s57, s57, s56')
        a.e('s_mul_i32 s58, s82, 57344')
        a.e('s_add_u32 s57, s57, s58')
        srd(a, 32, P_WS, 114688 + 57344, 0, 57)
        a.e('v_and_b32 v5, 15, v2')
        a.e('v_lshlrev_b32 v5, 11, v5')
        if opt('o4', 1):
            a.e('v_bfe_u32 v6, v2, 4, 1')
            a.e('v_lshl_add_u32 v5, v6, 5, v5')
            a.e('v_lshrrev_b32 v6, 5, v2')
            a.e(f'v_lshl_add_u32 v{s.VO}, v6, 4, v5')
        else:
            a.e('v_lshrrev_b32 v6, 4, v2')
            a.e(f'v_lshl_add_u32 v{s.VO}, v6, 3, v5')
        a.e('s_lshl_b32 s85, s80, 18')
        a.e('s_lshl_b32 s57, s82, 17')
        a.e('s_add_u32 s85, s85, s57')
        a.e('s_lshl_b32 s57, s81, 8')
        a.e('s_add_u32 s85, s85, s57')
        a.e(f's_lshl_b32 s57, s{S_W}, 6')
        a.e('s_add_u32 s85, s85, s57')
        a.e(f'v_and_b32 v{s.VF}, {15 if opt("f3h", 0) else 31}, v2')
        a.e(f'v_lshlrev_b32 v{s.VF}, {fsh()}, v{s.VF}')
    def main(s):
        a = s.a; L = s.L
        a.e('s_lshr_b32 s56, s80, 1')
        a.e(f's_lshl_b32 s56, s56, {5+fsh()}')
        a.e(f's_add_u32 s56, s56, {F3}')
        if opt('f3h', 0):
            a.e(f's_lshl_b32 s57, s82, {4+fsh()}')
            a.e('s_add_u32 s56, s56, s57')
            a.e(f's_lshl_b32 s97, s80, {4+fsh()}')
            a.e(f's_add_u32 s97, s97, {F3}')
        srd(a, 44, P_WS, 4 * MB, WS_H)
        a.e('s_mov_b32 s84, 0')
        L.wait(vm0=True)
        for c in range(s.NF, s.NA):
            for f in s.M(c): f()
        for f in s.Fr(range(s.NF, s.NA)): f()
        wait_flags(a, 56, s.VF, 20)
        stamp(a, 14)
        NS = 28
        slot = {}
        def TD(st):
            slot[st] = s.free.pop(0)
            out = [lambda: L.e(f's_add_u32 m0, s98, {4096*slot[st]}')]
            for i in range(4):
                v = s.VT if i < 2 else s.V1
                out.append(lambda i=i, v=v: L.v(('T', st), f'buffer_load_dwordx4 v{v}, s[32:35], s84 offen offset:{1024*i} sc1 lds'))
            out.append(lambda: (L.e('s_add_u32 s84, s84, 2048'), issued.add(st)))
            return out
        issued = set()
        NB = opt('nb', 12); KV = 32 + (160 - 4 * NB) // 8
        nxt = 0
        wc = opt('wc', 3)
        wfree, s.free = s.free[-wc:], s.free[:-wc]
        for _ in range(opt('t0', 3)):
            fs = TD(nxt); fs[0](); a.e('s_nop 0')
            for f in fs[1:]: f()
            nxt += 1
        L.wait(vm=(('T', 0),))
        a.e('s_barrier')
        X = opt('tx', 12)
        seq = [(k, tm) for k in range(56 - X) for tm in range(8)]
        seq += [(k, tm) for k in range(56 - X, 56) for tm in range(4, 8)]
        nS = len(seq)
        seq += [(k, tm) for k in range(56 - X, 56) for tm in range(4)]
        last_use = {}
        for g_, (k, tm) in enumerate(seq): last_use[k >> 1] = g_
        rdn = [0]
        def RDnext():
            if rdn[0] < 448:
                k, tm = seq[rdn[0]]
                f = s.TF + 4 * (rdn[0] % NB)
                o_ = 4096 * slot[k >> 1] + 2048 * (tm & 1) + 1024 * (k & 1)
                if opt('g2x') & 8 and rdn[0] & 1:
                    pass
                elif k % 7 == 3 and opt('hl', 1):
                    L.l(('R', rdn[0]), f'ds_read2st64_b64 v[{f}:{f+3}], v{24+(tm>>1)} offset0:{o_//512} offset1:{o_//512+1}')
                else:
                    L.l(('R', rdn[0]), f'ds_read_b128 v[{f}:{f+3}], v{s.TR+(tm>>1)} offset:{o_}')
                rdn[0] += 1
        for _ in range(NB - 1): RDnext()
        todo = list(range(s.NA, 28)); fly = []; pend = []; freed = set(); vis = 0; wseen = set()
        assert NB - 1 <= 16
        HR = 192
        a.e('s_lshl_b32 s56, s2, 2')
        a.e(f's_add_u32 s56, s56, s{S_W}')
        a.e('s_lshl_b32 s57, s56, 13')
        a.e(f's_xor_b32 s58, s57, {0x8000 * s.pbit:#x}')
        a.e('s_lshl_b32 s56, s56, 6')
        a.e(f's_add_u32 s56, s56, {F4}')
        a.e(f's_xor_b32 s59, s56, {0x100 * s.pbit:#x}')
        srd(a, 40, P_WS, 8 * MB, WS_XP)
        srd(a, 48, P_OUT, 4 * MB)
        a.e('s_add_u32 s87, s57, 4096')
        a.e('s_add_u32 s88, s58, 4096')
        a.e('v_mov_b32 v20, 0')
        a.e(f'v_mov_b32 v21, s{S_NONCE}')
        def flag_store():
            L.wait(vm=('xs',))
            if not opt('kbst'): stamp(a, 16)
            if opt('pp', 2) == 2: pre_poll()
            a.e('s_mov_b64 exec, 1')
            L.v('fl', f'buffer_store_dword v21, v20, s[{S_FLG}:{S_FLG+3}], s56 offen sc1')
            a.e('s_mov_b64 exec, -1')
        def pre_poll():
            L.v('fp', f'buffer_load_dword v22, v20, s[{S_FLG}:{S_FLG+3}], s59 offen sc1')
        BP = opt('bp', 1)
        def xstores():
            out = []
            if BP:
                for q2 in range(4):
                    def f(q2=q2):
                        c = s.ACC + 32 + 8 * q2
                        for e in range(4): a.e(f'v_cvt_pk_bf16_f32 v{c+e}, v{c+2*e}, v{c+2*e+1}')
                        if opt('degr'):
                            m_ = (0xffff << opt('degr')) & 0xffff
                            for e in range(4): a.e(f'v_and_b32 v{c+e}, {m_ * 0x10001:#x}, v{c+e}')
                        L.v('xs', f'buffer_store_dwordx4 v[{c}:{c+3}], v{s.VT}, s[40:43], s57 offen offset:{1024*q2} sc1')
                    out += [lambda: None, f]
            else:
                for q in range(8):
                    c = s.ACC + 32 + 4 * q
                    out.append(lambda q=q, c=c: L.v('xs', f'buffer_store_dwordx4 v[{c}:{c+3}], v{s.VT}, s[40:43], s{57 if q < 4 else 87} offen offset:{1024*(q&3)} sc1'))
            return out
        gF = nS + opt('tf', 48) * (448 - nS) // 64 if X else None
        for u in range(56):
            k0 = seq[8 * u][0]
            fill = []
            GM = (0, 16, 32, 44, 50)
            if opt('g2st') and u in GM:
                a.e('s_memtime s[66:67]'); a.e('s_waitcnt lgkmcnt(0)'); L.lg = []
                a.e(f'v_writelane_b32 v1, s66, {26 + GM.index(u)}')
            if s.free and nxt < NS and (u & 1 or u < 8 or not todo or len(s.free) > 1):
                fill += TD(nxt); nxt += 1
                if not todo and not fly and s.free and nxt < NS:
                    fill += TD(nxt); nxt += 1
            if not u & 1 and u >= opt('wk0', 8):
                if fly and u >= fly[0][1] + opt('wlat', 4):
                    c = fly.pop(0)[0]
                    assert 2 * c + 1 < KV or u >= 2 * c + 2 - KV
                    fill += s.Wv(c) + s.M(c)
                    pend.append(c)
                if todo and wfree:
                    c = todo.pop(0)
                    fs = s.D(c)
                    s.cell[c] = wfree.pop(0)
                    fill += [lambda c=c: L.e(f's_add_u32 m0, s98, {4096*s.cell[c]}')] + fs[1:]
                    fly.append((c, u))
            if 8 * u == nS and X:
                fill += xstores()
            if u == 44 and opt('f3h', 0):
                fill.append(lambda: L.v('hf', f'buffer_load_dword v23, v{s.VF}, s[{S_FLG}:{S_FLG+3}], s97 offen sc1'))
            if u == 52 and opt('f3h', 0):
                L.wait(vm=('hf',))
                a.e(f'v_cmp_ne_u32 vcc, s{S_NONCE}, v23')
                a.e('s_cbranch_vccz L_hok')
                wait_flags(a, 97, s.VF, 23, solo=0)
                a.e('L_hok:')
            if u == 52:
                for tm in range(4):
                    for j in range(1 if opt('o4', 1) else 2):
                        def f(tm=tm, j=j):
                            if j == 0 and tm: L.e(f's_add_u32 s86, s85, {32768*tm}')
                            if opt('o4', 1):
                                L.v('h', f'buffer_load_dwordx4 a[{4*tm}:{4*tm+3}], v{s.VO}, s[44:47], s{86 if tm else 85} offen sc1')
                            else:
                                L.v('h', f'buffer_load_dwordx2 a[{4*tm+2*j}:{4*tm+2*j+1}], v{s.VO}, s[44:47], s{86 if tm else 85} offen offset:{32*j} sc1')
                        fill.append(f)
            per = -(-(len(fill) + 1) // 8)
            SS = opt('ss', 1)
            for i in range(8):
                g_ = 8 * u + i
                k, tm = seq[g_]
                if rdn[0] < 448 and seq[rdn[0]][0] >> 1 > vis:
                    q = seq[rdn[0]][0] >> 1
                    vis = min(NS - 1, q + SS - 1) if q > 1 else q
                    assert vis in issued, (u, i, vis)
                    L.wait(vm=(('T', vis),))
                    a.e('s_barrier')
                    for q2 in list(slot):
                        if q2 not in freed and last_use[q2] < g_:
                            freed.add(q2); s.free.append(slot[q2])
                need = [('R', g_)]
                if k >> 1 not in wseen:
                    wseen.add(k >> 1)
                    assert k >> 1 not in todo and all(c != k >> 1 for c, _ in fly), (k, u)
                    need.append(('M', k >> 1))
                if g_ == gF: flag_store()
                if opt('pp', 2) == 1 and g_ == gF + opt('ppd', 2): pre_poll()
                L.wait(lg=need)
                order = [0, 1] if g_ % 2 == 0 else [1, 0]
                for n, j in enumerate(order):
                    r, w = s.wreg(k, j)
                    c = s.ACC + 4 * (2 * tm + j)
                    tf = s.TF + 4 * (g_ % NB)
                    if not opt('g2x') & 1:
                        a.e(f'v_mfma_f32_16x16x32_bf16 v[{c}:{c+3}], {r}[{w}:{w+3}], v[{tf}:{tf+3}], v[{c}:{c+3}]')
                    if n == 0:
                        RDnext()
                    else:
                        for _ in range(per):
                            if fill:
                                fill.pop(0)()
                                if 'm0' in a.lines[-1]: break
            while fill:
                if 'm0' in a.lines[-1]: a.e('s_nop 0')
                fill.pop(0)()
            for c in list(pend):
                if not any(x == ('M', c) for x in L.lg):
                    pend.remove(c)
                    (wfree if todo else s.free).append(s.cell[c])
            if not todo and wfree and not fly and not pend:
                s.free += wfree; wfree = []
        assert not todo and not fly and not pend and nxt == NS
        stamp(a, 15)
        if not X:
            a.e('s_nop 7')
            for f in xstores(): f()
            flag_store()
        if opt('pp', 2) == 2:
            L.wait(vm=('fp',))
            a.e(f'v_cmp_ne_u32 vcc, s{S_NONCE}, v22')
            a.e('s_cbranch_vccz L_xok')
        wait_flags(a, 59, 20, 22, solo=0, pre=bool(opt('pp', 2) == 1 and X))
        a.e('L_xok:')
        stamp(a, 17)
        P1 = 96
        NL = 4 if BP else 8
        for q in range(NL):
            a.e(f'buffer_load_dwordx4 v[{P1+4*q}:{P1+4*q+3}], v{s.VT}, s[40:43], s{58 if q < 4 else 88} offen offset:{1024*(q&3)} sc1')
        H = 208
        for q in range(16):
            a.e(f'v_accvgpr_read_b32 v{HR+q}, a{q}')
        if opt('o4', 1):
            for tm in range(4):
                if tm == 3: a.e('s_nop 0')
                a.e(f'v_permlane16_swap_b32 v{HR+4*tm}, v{HR+4*tm+2}')
                a.e(f'v_permlane16_swap_b32 v{HR+4*tm+1}, v{HR+4*tm+3}')
        for q in range(16):
            unpack(a, H + 2 * q, H + 2 * q + 1, HR + q)
        a.e('s_mov_b32 s82, 0x3ef5fdf0')
        a.e('s_mov_b32 s83, 0x3ef5fdf0')
        for q in range(8):
            tm, j = q >> 1, q & 1
            if j == 0 and tm: a.e(f's_add_u32 s85, s85, 32768')
            if BP:
                if j == 0: a.e(f's_waitcnt vmcnt({3 if opt("o4", 1) else 3 + tm})')
            else: a.e('s_waitcnt vmcnt(7)')
            c = s.ACC + 4 * q
            for e in range(2):
                x = c + 2 * e; h = H + 4 * q + 2 * e
                if BP:
                    y = 128 + 2 * e
                    unpack(a, y, y + 1, P1 + 2 * q + e)
                else:
                    y = P1 + 4 * q + 2 * e
                a.e(f'v_pk_add_f32 v[{x}:{x+1}], v[{x}:{x+1}], v[{y}:{y+1}]')
                if opt('hs', 0): a.e(f'v_pk_mul_f32 v[{x}:{x+1}], v[{x}:{x+1}], s[82:83]')
                a.e(f'v_cvt_pk_bf16_f32 v{y}, v{x}, v{x+1}')
                unpack(a, x, x + 1, y)
                a.e(f'v_pk_add_f32 v[{x}:{x+1}], v[{x}:{x+1}], v[{h}:{h+1}]')
                a.e(f'v_cvt_pk_bf16_f32 v{192+2*q+e}, v{x}, v{x+1}')
            ofl = ['', ' sc1', ' nt', ' sc0 sc1'][opt('ofl')]
            if opt('o4', 1):
                assert BP
                if j == 1:
                    o = 192 + 4 * tm
                    a.e('s_nop 1')
                    a.e(f'v_permlane16_swap_b32 v{o}, v{o+2}')
                    a.e(f'v_permlane16_swap_b32 v{o+1}, v{o+3}')
                    a.e(f'buffer_store_dwordx4 v[{o}:{o+3}], v{s.VO}, s[48:51], s85 offen' + ofl)
            else:
                a.e(f'buffer_store_dwordx2 v[{192+2*q}:{192+2*q+1}], v{s.VO}, s[48:51], s85 offen offset:{32*j}' + ofl)
        LIN[0] = None

def gen_dg(a):
    d = opt('dg'); F, ia, ib = d // 10000, d // 100 % 100, d % 100
    m = opt('dgm')
    a.raw('.globl dg_kernel\n.p2align 8\n.type dg_kernel,@function\ndg_kernel:')
    a.e('s_load_dwordx2 s[10:11], s[0:1], 96')
    a.e('s_memrealtime s[12:13]')
    a.e('s_waitcnt lgkmcnt(0)')
    a.e(f's_add_u32 s10, s10, {STAMP_BASE + opt("dgw", 0) * 128:#x}')
    a.e('s_addc_u32 s11, s11, 0')
    if not m:
        a.e(f's_load_dword s4, s[10:11], {4*ia}')
        a.e(f's_load_dword s5, s[10:11], {4*ib}')
        a.e('s_waitcnt lgkmcnt(0)')
    else:
        a.e('s_mov_b32 s20, s10\ns_mov_b32 s21, s11\ns_mov_b32 s22, 0x20000\ns_mov_b32 s23, 0x20000')
        a.e('v_lshlrev_b32 v1, 7, v0')
        for i in range(16):
            a.e(f's_mov_b32 s6, {i*8192}')
            a.e(f'buffer_load_dword v{8+i}, v1, s[20:23], s6 offen offset:{4*ia}')
            a.e(f'buffer_load_dword v{24+i}, v1, s[20:23], s6 offen offset:{4*ib}')
        a.e('s_waitcnt vmcnt(0)')
        for i in range(32):
            a.e(f'v_sub_u32 v{8+i}, s12, v{8+i}')
        opa = 'v_max_u32' if m != 3 else 'v_add_u32'
        opb = {1: 'v_min_u32', 2: 'v_max_u32', 3: 'v_add_u32'}[m]
        for i in range(1, 16):
            a.e(f'{opa} v8, v8, v{8+i}')
            a.e(f'{opb} v24, v24, v{24+i}')
        a.e('s_nop 1')
        a.e('v_readlane_b32 s4, v8, 0')
        a.e('v_readlane_b32 s5, v24, 0')
        sa = 's_max_u32' if m != 3 else 's_add_u32'
        sb = {1: 's_min_u32', 2: 's_max_u32', 3: 's_add_u32'}[m]
        for l in range(1, 64):
            a.e(f'v_readlane_b32 s6, v8, {l}')
            a.e(f'v_readlane_b32 s7, v24, {l}')
            a.e('s_nop 0')
            a.e(f'{sa} s4, s4, s6')
            a.e(f'{sb} s5, s5, s7')
        a.e('s_sub_u32 s5, s4, s5')
        if m == 3: a.e('s_lshr_b32 s5, s5, 10')
        a.e('s_mov_b32 s4, 0')
        a.e('s_memrealtime s[12:13]')
        a.e('s_waitcnt lgkmcnt(0)')
    a.e('s_sub_u32 s4, s5, s4')
    a.e('s_min_u32 s4, s4, 10000')
    a.e(f's_mul_i32 s4, s4, {F}')
    a.e('L_dg:')
    a.e('s_memrealtime s[14:15]')
    a.e('s_waitcnt lgkmcnt(0)')
    a.e('s_sub_u32 s5, s14, s12')
    a.e('s_cmp_lt_u32 s5, s4')
    a.e('s_cbranch_scc1 L_dg')
    a.e('s_endpgm')

def build():
    a = Asm()
    hdr = open('cdna_kernels/' + NAME + '.s.ref').read().split('\n')
    cm = [l for l in hdr if l.startswith(';') and '@launch' not in l and 'Override launch' not in l and 'grid=ceil' not in l]
    out = '\n'.join(cm) + '\n'
    out += '''; One persistent launch, 256 workgroups x 4 waves (one workgroup per CU), phases:
; Hand-offs: sc1 write-through stores, drained, then a flag word holding a per-launch nonce
'''
    if opt('aslist') or opt('dg'):
        out += f'; @launch kernel={KNAME} grid=(256,1,1) block=(256,1,1) lds=163840\n'
        if opt('dg'): out += '; @launch kernel=dg_kernel grid=(1,1,1) block=(64,1,1) lds=0\n'
    else:
        out += '; @launch grid=(256,1,1) block=(256,1,1) lds=163840\n'
    a.raw('.amdgcn_target "amdgcn-amd-amdhsa--gfx950"')
    a.raw('.text')
    gen(a)
    if opt('dg'): gen_dg(a)
    body = a.text()
    errs = check_hazards(body)
    errs += check_waits(body, KNAME, loop_iters=2, take_fwd=('L_nonce_ok', 'L_nonce_skip', 'L_clean_skip', 'L_y2skip', 'L_y2nw', 'L_hok', 'L_f0b', 'L_p0', 'L_p0f', 'L_xok') + tuple(f'L_sig{i}' for i in range(20)) + tuple(f'L_poll{i}x' for i in range(20)))
    errs += check_waits(body, KNAME, loop_iters=2, take_fwd=('L_nonce_ok', 'L_p0hi', 'L_f0b') + (() if opt('solo', 1) else tuple(f'L_poll{i}x' for i in range(20))))
    for e in errs[:8]: print(e, file=sys.stderr)
    na = 256
    out += body + f'''.section .rodata,"a"
.p2align 6
.amdhsa_kernel {KNAME}
  .amdhsa_next_free_vgpr {256+na}
  .amdhsa_next_free_sgpr 102
  .amdhsa_accum_offset 256
  .amdhsa_group_segment_fixed_size 0
  .amdhsa_kernarg_size 104
  .amdhsa_user_sgpr_count 2
  .amdhsa_user_sgpr_kernarg_segment_ptr 1
  .amdhsa_system_sgpr_workgroup_id_x 1
  .amdhsa_float_denorm_mode_32 3
.end_amdhsa_kernel
'''
    if opt('dg'):
        out += '''.p2align 6
.amdhsa_kernel dg_kernel
  .amdhsa_next_free_vgpr 48
  .amdhsa_next_free_sgpr 32
  .amdhsa_accum_offset 48
  .amdhsa_group_segment_fixed_size 0
  .amdhsa_kernarg_size 104
  .amdhsa_user_sgpr_count 2
  .amdhsa_user_sgpr_kernarg_segment_ptr 1
  .amdhsa_system_sgpr_workgroup_id_x 1
.end_amdhsa_kernel
'''
    return out, errs

if __name__ == '__main__':
    outp = sys.argv[1]
    for kv in sys.argv[2:]:
        k, v = kv.split('=')
        OPT[k] = int(v)
    if opt('hnub'): WS_HNF = WS_UB
    t, errs = build()
    open(outp, 'w').write(t)
    print('written', outp, len(t), 'bytes;', len(errs), 'checker errors')
```

```python
import sys, os
from asmlib import *

NAME = 'sequential_preLN__ssm_conv_h3__glu_gated_swiglu__prompt'
KNAME = NAME + '_kernel'
MB = 1 << 20
WS0 = int(os.environ.get('WS0', '0')) * MB
WS_UB, WS_Y2, WS_H, WS_HNF, WS_HF, WS_XP, WS_FLG = [WS0 + x * MB for x in (0, 4, 8, 12, 16, 32, 40)]
STAMP_BASE = 64 * MB
OPT = {}
def opt(k, d=0): return OPT.get(k, d)

P_Q, P_K, P_V, P_SH, P_SSMK, P_D, P_X, P_W1, P_W3, P_W2, P_OUT, P_DBG, P_WS = [4 + 2 * i for i in range(13)]
S_W, S_NONCE, S_MASK = 30, 31, 90
S_FLG = 92
F0, F1, F2, F3, F4 = 0, 32768, 65536, 98304, 131072
FLG_SIZE = 262144
LDS_KA = 98304
KA_REG = 13056
NSTAMP = 20
AST = 128

def srd(a, d, p, size, add=0, addreg=None):
    if add or addreg is not None:
        if add:
            a.e(f's_add_u32 s{d}, s{p}, {add:#x}')
            a.e(f's_addc_u32 s{d+1}, s{p+1}, 0')
            if addreg is not None:
                a.e(f's_add_u32 s{d}, s{d}, s{addreg}')
                a.e(f's_addc_u32 s{d+1}, s{d+1}, 0')
        else:
            a.e(f's_add_u32 s{d}, s{p}, s{addreg}')
            a.e(f's_addc_u32 s{d+1}, s{p+1}, 0')
    else:
        a.e(f's_mov_b32 s{d}, s{p}')
        a.e(f's_mov_b32 s{d+1}, s{p+1}')
    if size is not None:
        a.e(f's_mov_b32 s{d+2}, {size:#x}')
    a.e(f's_mov_b32 s{d+3}, 0x20000')

def stamp(a, i):
    if not opt('stamp'): return
    a.e('s_memrealtime s[60:61]')
    if i == 0: a.e('s_memtime s[62:63]')
    cy = {11: 20, 12: 21, 14: 22, 15: 23, 4: 24, 5: 25}.get(i)
    if cy: a.e('s_memtime s[66:67]')
    a.e('s_waitcnt lgkmcnt(0)')
    a.e(f'v_writelane_b32 v1, s60, {i}')
    if cy: a.e(f'v_writelane_b32 v1, s66, {cy}')
    if LIN[0]: LIN[0].lg = []

def stamp_out(a, n):
    if not opt('stamp'): return
    a.e('s_waitcnt vmcnt(0)')
    stamp(a, n - 1)
    a.e('s_memtime s[64:65]')
    a.e('s_waitcnt lgkmcnt(0)')
    srd(a, 32, P_WS, 1 * MB, STAMP_BASE)
    a.e('s_lshl_b32 s84, s2, 2')
    a.e(f's_add_u32 s84, s84, s{S_W}')
    a.e('s_lshl_b32 s84, s84, 7')
    a.e('s_sub_u32 s64, s64, s62')
    a.e('v_writelane_b32 v1, s64, 31')
    a.e('v_mbcnt_lo_u32_b32 v2, -1, 0')
    a.e('v_lshlrev_b32 v2, 2, v2')
    a.e('s_mov_b64 exec, 0xffffffff')
    a.e('buffer_store_dword v1, v2, s[32:35], s84 offen')

LIN = [None]
class Lin:
    def __init__(s, a): s.a = a; s.vm = []; s.lg = []; LIN[0] = s
    def e(s, t): s.a.e(t)
    def v(s, tag, t): s.a.e(t); s.vm.append(tag)
    def l(s, tag, t): s.a.e(t); s.lg.append(tag)
    def _n(s, q, tags, cap):
        idx = [i for i, x in enumerate(q) if x in tags]
        if not idx: return None
        n = len(q) - max(idx) - 1
        return min(n, cap)
    def wait(s, vm=(), lg=(), vm0=False, lg0=False):
        nv = 0 if vm0 else s._n(s.vm, vm, 63)
        nl = 0 if lg0 else s._n(s.lg, lg, 15)
        t = ''
        if nv is not None:
            t += f' vmcnt({nv})'; s.vm = s.vm[len(s.vm) - nv:] if nv else []
        if nl is not None:
            t += f' lgkmcnt({nl})'; s.lg = s.lg[len(s.lg) - nl:] if nl else []
        if t: s.a.e('s_waitcnt' + t)

def unpack(a, dlo, dhi, src):
    a.e(f'v_lshlrev_b32 v{dlo}, 16, v{src}')
    a.e(f'v_and_b32 v{dhi}, s{S_MASK}, v{src}')

def hfl():
    return [' sc1', ' sc0 sc1', ' sc1 nt', ' sc0 sc1 nt', ''][opt('hfl')]

def code_pf(a, lab_from, lab_to, vt, emit=None, n=1):
    _uid[0] += 1
    L = f'L_pc{_uid[0]}'
    a.e('s_getpc_b64 s[78:79]')
    a.e(f'{L}:')
    a.e(f's_lshl_b32 s77, s{S_W}, 13')
    a.e(f's_add_u32 s77, s77, {lab_from}-{L}')
    for i in range(n):
        if i: a.e('s_add_u32 s77, s77, 32768')
        a.e(f'v_lshl_add_u32 v{vt}, v2, 7, s77')
        a.e(f'v_min_u32 v{vt}, {lab_to}-{L}, v{vt}')
        t = f'global_load_dword v{vt+1+i}, v{vt}, s[78:79]'
        if emit: emit(t)
        else: a.e(t)

def hf_base(a, d, mb, q, t):
    if not opt('reuse', 0):
        a.e(f's_lshl_b32 s{d}, s{mb}, 2')
        a.e(f's_add_u32 s{d}, s{d}, s{q}')
        a.e(f's_mul_i32 s{d}, s{d}, 458752')
        a.e(f's_add_u32 s{d}, s{d}, {WS_HF:#x}')
        return
    a.e(f's_lshl_b32 s{d}, s{mb}, 1')
    a.e(f's_add_u32 s{d}, s{d}, s{q}')
    a.e(f's_mul_i32 s{d}, s{d}, 458752')
    a.e(f's_add_u32 s{d}, s{d}, {WS_HF:#x}')
    a.e(f's_lshl_b32 s{t}, s{mb}, 19')
    a.e(f's_cmp_eq_u32 s{q}, 1')
    a.e(f's_cselect_b32 s{d}, s{t}, s{d}')
    a.e(f's_add_u32 s{t}, s{t}, {WS_Y2 - WS_UB:#x}')
    a.e(f's_cmp_eq_u32 s{q}, 0')
    a.e(f's_cselect_b32 s{d}, s{t}, s{d}')

def zero_acc(a, base, n, z):
    if not opt('mz', 1):
        for r in range(n): a.e(f'v_mov_b32 v{base+r}, 0')
        return
    for r in range(4): a.e(f'v_mov_b32 v{z+r}, 0')
    a.e('s_nop 1')
    for r in range(0, n, 16):
        a.e(f'v_mfma_f32_32x32x16_bf16 v[{base+r}:{base+r+15}], v[{z}:{z+3}], v[{z}:{z+3}], 0')

_uid = [0]
def signal(a, soff, vt, waitfn=None, wb=False):
    _uid[0] += 1
    L = f'L_sig{_uid[0]}'
    a.e(f'v_mov_b32 v{vt}, 0')
    a.e(f'v_mov_b32 v{vt+1}, s{S_NONCE}')
    a.e(f's_cmp_eq_u32 s{S_W}, 0')
    if waitfn: waitfn()
    else: a.e('s_waitcnt vmcnt(0)')
    a.e('s_barrier')
    a.e(f's_cbranch_scc0 {L}')
    if wb:
        a.e('buffer_wbl2 sc1')
        a.e('s_waitcnt vmcnt(0)')
    a.e('s_mov_b64 exec, 1')
    a.e(f'buffer_store_dword v{vt+1}, v{vt}, s[{S_FLG}:{S_FLG+3}], s{soff} offen sc1')
    a.e('s_mov_b64 exec, -1')
    a.e(f'{L}:')

def fsh():
    return opt('fs', 32).bit_length() - 1
def f1sh():
    return opt('f1s', 32).bit_length() - 1

def wait_flags(a, soff, voff, vd, n=64, solo=None, pre=False):
    _uid[0] += 1
    L = f'L_poll{_uid[0]}'
    if solo is None: solo = opt('solo', 1)
    if solo:
        a.e(f's_cmp_lg_u32 s{S_W}, {opt("pw", 0)}')
        a.e(f's_cbranch_scc1 {L}x')
    if pre: a.e(f's_branch {L}w')
    a.e(f'{L}:')
    if n == 256:
        if f1sh() == 2:
            a.e(f'buffer_load_dwordx4 v[{vd}:{vd+3}], v{voff}, s[{S_FLG}:{S_FLG+3}], s{soff} offen sc1')
        else:
            for i in range(4):
                a.e(f's_add_u32 s89, s{soff}, {i*(64<<f1sh())}')
                a.e(f'buffer_load_dword v{vd+i}, v{voff}, s[{S_FLG}:{S_FLG+3}], s89 offen sc1')
        a.e('s_waitcnt vmcnt(0)')
        a.e(f'v_xor_b32 v{vd}, s{S_NONCE}, v{vd}')
        a.e(f'v_xor_b32 v{vd+1}, s{S_NONCE}, v{vd+1}')
        a.e(f'v_xor_b32 v{vd+2}, s{S_NONCE}, v{vd+2}')
        a.e(f'v_xor_b32 v{vd+3}, s{S_NONCE}, v{vd+3}')
        a.e(f'v_or3_b32 v{vd}, v{vd}, v{vd+1}, v{vd+2}')
        a.e(f'v_or_b32 v{vd}, v{vd}, v{vd+3}')
        a.e(f'v_cmp_ne_u32 vcc, 0, v{vd}')
    else:
        a.e(f'buffer_load_dword v{vd}, v{voff}, s[{S_FLG}:{S_FLG+3}], s{soff} offen sc1')
        if pre: a.e(f'{L}w:')
        a.e('s_waitcnt vmcnt(0)')
        a.e(f'v_cmp_ne_u32 vcc, s{S_NONCE}, v{vd}')
    a.e('s_add_u32 s3, s3, 1')
    a.e(f's_cmp_gt_u32 s3, {opt("spin", 200000)}')
    a.e(f's_cbranch_scc1 {L}x')
    a.e(f's_cbranch_vccz {L}x')
    if opt('sleep'): a.e(f's_sleep {opt("sleep")}')
    a.e(f's_branch {L}')
    a.e(f'{L}x:')
    if solo: a.e('s_barrier')

def wave_sum2(a, va, vb, sa, sb):
    for mod in ('row_shr:1 row_mask:0xf bank_mask:0xf bound_ctrl:0', 'row_shr:2 row_mask:0xf bank_mask:0xf bound_ctrl:0',
                'row_shr:4 row_mask:0xf bank_mask:0xf bound_ctrl:0', 'row_shr:8 row_mask:0xf bank_mask:0xf bound_ctrl:0',
                'row_bcast:15 row_mask:0xa bank_mask:0xf', 'row_bcast:31 row_mask:0xc bank_mask:0xf'):
        a.e('s_nop 0')
        a.e(f'v_add_f32_dpp v{va}, v{va}, v{va} {mod}')
        a.e(f'v_add_f32_dpp v{vb}, v{vb}, v{vb} {mod}')
    a.e(f'v_readlane_b32 s{sa}, v{va}, 63')
    a.e(f'v_readlane_b32 s{sb}, v{vb}, 63')

def ln2(a, X, T, M, R, C, XM):
    def both(f):
        for r in range(2): f(r)
    for q in range(4):
        both(lambda r: a.e(f'v_pk_add_f32 v[{T[r]+2*q}:{T[r]+2*q+1}], v[{X[r]+4*q}:{X[r]+4*q+1}], v[{X[r]+4*q+2}:{X[r]+4*q+3}]'))
    both(lambda r: a.e(f'v_pk_add_f32 v[{T[r]}:{T[r]+1}], v[{T[r]}:{T[r]+1}], v[{T[r]+2}:{T[r]+3}]'))
    both(lambda r: a.e(f'v_pk_add_f32 v[{T[r]+4}:{T[r]+5}], v[{T[r]+4}:{T[r]+5}], v[{T[r]+6}:{T[r]+7}]'))
    both(lambda r: a.e(f'v_pk_add_f32 v[{T[r]}:{T[r]+1}], v[{T[r]}:{T[r]+1}], v[{T[r]+4}:{T[r]+5}]'))
    both(lambda r: a.e(f'v_add_f32 v{T[r]}, v{T[r]}, v{T[r]+1}'))
    wave_sum2(a, T[0], T[1], 56, 57)
    a.e('s_nop 0')
    both(lambda r: a.e(f'v_mul_f32 v{M[r]}, s{56+r}, v{C}'))
    both(lambda r: a.e(f'v_mov_b32 v{M[r]+1}, v{M[r]}'))
    for q in range(8):
        both(lambda r: a.e(f'v_pk_add_f32 v[{T[r]+2*q}:{T[r]+2*q+1}], v[{X[r]+2*q}:{X[r]+2*q+1}], v[{M[r]}:{M[r]+1}] neg_lo:[0,1] neg_hi:[0,1]'))
    both(lambda r: a.e(f'v_pk_mul_f32 v[{R[r]}:{R[r]+1}], v[{T[r]}:{T[r]+1}], v[{T[r]}:{T[r]+1}]'))
    for q in range(1, 8):
        both(lambda r: a.e(f'v_pk_fma_f32 v[{R[r]}:{R[r]+1}], v[{T[r]+2*q}:{T[r]+2*q+1}], v[{T[r]+2*q}:{T[r]+2*q+1}], v[{R[r]}:{R[r]+1}]'))
    both(lambda r: a.e(f'v_add_f32 v{R[r]}, v{R[r]}, v{R[r]+1}'))
    def rbf(v):
        a.e(f'v_cvt_pk_bf16_f32 v{v}, v{v}, v{v}')
        a.e(f'v_and_b32 v{v}, s{S_MASK}, v{v}')
    both(lambda r: rbf(M[r]))
    wave_sum2(a, R[0], R[1], 58, 59)
    both(lambda r: a.e(f'v_mov_b32 v{M[r]+1}, v{M[r]}'))
    both(lambda r: a.e(f'v_mul_f32 v{R[r]}, s{58+r}, v{C}'))
    both(lambda r: rbf(R[r]))
    both(lambda r: a.e(f'v_add_f32 v{R[r]}, 0x3727c5ac, v{R[r]}'))
    both(lambda r: rbf(R[r]))
    both(lambda r: a.e(f'v_sqrt_f32 v{R[r]}, v{R[r]}'))
    for q in range(2):
        both(lambda r: a.e(f'v_pk_add_f32 v[{XM[r]+2*q}:{XM[r]+2*q+1}], v[{X[r]+2*q}:{X[r]+2*q+1}], v[{M[r]}:{M[r]+1}] neg_lo:[0,1] neg_hi:[0,1]'))
    both(lambda r: rbf(R[r]))
    both(lambda r: a.e(f'v_rcp_f32 v{R[r]}, v{R[r]}'))
    for q in range(2, 8):
        both(lambda r: a.e(f'v_pk_add_f32 v[{XM[r]+2*q}:{XM[r]+2*q+1}], v[{X[r]+2*q}:{X[r]+2*q+1}], v[{M[r]}:{M[r]+1}] neg_lo:[0,1] neg_hi:[0,1]'))
    both(lambda r: a.e(f'v_mov_b32 v{R[r]+1}, v{R[r]}'))
    for q in range(8):
        both(lambda r: a.e(f'v_pk_mul_f32 v[{T[r]+2*q}:{T[r]+2*q+1}], v[{XM[r]+2*q}:{XM[r]+2*q+1}], v[{R[r]}:{R[r]+1}]'))

class Sched:
    def __init__(self): self.ev = []; self.marks = {}
    def mark(self, k): self.marks[k] = len(self.ev)
    def add(self, L): self.ev += L
    def younger(self, tag, at):
        last = max(i for i, e in enumerate(self.ev) if e[:2] == tag)
        assert last < self.marks[at], (tag, at)
        return self.marks[at] - last - 1

def gen(a):
    a.raw(f'.globl {KNAME}')
    a.raw('.p2align 8')
    a.raw(f'.type {KNAME},@function')
    a.raw(f'{KNAME}:')
    a.e('s_cmp_ge_u32 s2, 256')
    a.e('s_cbranch_scc1 L_end')
    a.e('s_load_dwordx8 s[4:11], s[0:1], 0')
    a.e('s_load_dwordx8 s[20:27], s[0:1], 64')
    a.e('s_load_dwordx2 s[28:29], s[0:1], 96')
    a.e('s_load_dwordx8 s[12:19], s[0:1], 32')
    a.e('s_memrealtime s[56:57]')
    a.e('v_lshrrev_b32 v1, 6, v0')
    a.e('v_and_b32 v2, 63, v0')
    a.e(f'v_readfirstlane_b32 s{S_W}, v1')
    a.e(f's_mov_b32 s{S_MASK}, 0xffff0000')
    a.e('s_mov_b32 s3, 0')
    a.e('s_bfe_u32 s82, s2, 0x30003')
    a.e('s_and_b32 s83, s2, 7')
    a.e('s_lshr_b32 s84, s2, 6')
    a.e('s_lshl_b32 s84, s84, 3')
    a.e('s_or_b32 s83, s83, s84')
    a.e('v_and_b32 v9, 3, v0')
    a.e('v_bfe_u32 v10, v0, 4, 1')
    a.e('v_lshl_add_u32 v1, v9, 1, v10')
    a.e('v_bfe_u32 v8, v0, 5, 2')
    a.e('v_bfe_u32 v11, v0, 2, 2')
    a.e('v_lshl_add_u32 v8, v8, 2, v11')
    a.e(f's_lshr_b32 s77, s{S_W}, 1')
    a.e('s_lshl_b32 s85, s83, 16')
    a.e('s_lshl_b32 s86, s77, 21')
    a.e('s_add_u32 s85, s85, s86')
    a.e('s_lshl_b32 s86, s82, 8')
    a.e('s_add_u32 s85, s85, s86')
    a.e('v_lshlrev_b32 v3, 13, v1')
    a.e('v_lshl_add_u32 v3, v8, 4, v3')
    a.e('v_add_u32 v3, s85, v3')
    a.e('v_add_u32 v4, 0xffffe800, v3')
    a.e('v_add_u32 v5, 0xfffff800, v3')
    a.e('v_add_u32 v6, 0x1000, v3')
    a.e('s_lshl_b32 s86, s82, 10')
    a.e('v_lshlrev_b32 v7, 6, v8')
    a.e('v_add_u32 v7, s86, v7')
    a.e('s_lshl_b32 s87, s82, 1')
    a.e('s_add_u32 s87, s87, s77')
    a.e('s_lshl_b32 s87, s87, 5')
    a.e('s_add_u32 s87, s87, s83')
    a.e('s_lshl_b32 s88, s87, 13')
    a.e('s_add_u32 s88, s88, 48')
    a.e('v_lshlrev_b32 v160, 9, v8')
    a.e('v_lshl_add_u32 v160, v10, 8, v160')
    a.e('v_lshlrev_b32 v161, 4, v9')
    a.e('v_sub_u32 v160, v160, v161')
    a.e('v_add_u32 v160, s88, v160')
    a.e('s_lshl_b32 s87, s87, 1')
    a.e(f's_and_b32 s86, s{S_W}, 1')
    a.e('s_add_u32 s87, s87, s86')
    a.e(f's_lshl_b32 s87, s87, {fsh()}')
    a.e('v_mov_b32 v162, 0')
    a.e(f's_mul_i32 s88, s{S_W}, {KA_REG}')
    a.e(f's_add_u32 s88, s88, {LDS_KA}')
    a.e('s_and_b32 s101, s2, 7')
    a.e('s_lshl_b32 s101, s101, 7')
    a.e('s_lshr_b32 s99, s2, 3')
    a.e('s_lshl_b32 s99, s99, 2')
    a.e('s_add_u32 s101, s101, s99')
    a.e(f's_add_u32 s101, s101, s{S_W}')
    a.e('s_lshl_b32 s99, s101, 12')
    a.e('s_and_b32 s80, s2, 1')
    a.e('s_lshl_b32 s80, s80, 2')
    a.e('s_bfe_u32 s81, s2, 0x20003')
    a.e('s_add_u32 s80, s80, s81')
    a.e('s_bfe_u32 s81, s2, 0x20001')
    a.e('s_lshl_b32 s81, s81, 3')
    a.e('s_lshr_b32 s91, s2, 5')
    a.e('s_add_u32 s81, s81, s91')
    a.e('s_lshl_b32 s91, s80, 5')
    a.e('s_add_u32 s91, s91, s81')
    a.e('s_lshl_b32 s96, s91, 2')
    a.e(f's_add_u32 s96, s96, s{S_W}')
    a.e('s_lshl_b32 s96, s96, 12')
    a.e('v_lshlrev_b32 v220, 4, v2')
    a.e('s_waitcnt lgkmcnt(0)')
    stamp(a, 0)
    if opt('stamp') and not opt('g2st'): a.e('v_writelane_b32 v1, s56, 30')
    KD, KX, XP = 200, 216, 224
    XPOS = 3; RS = 0
    g1 = G1(a)
    g2 = G2(a)
    KH = opt('kh2', 0)
    def k_loads(kd, kx, back=0):
        if back:
            a.e('s_sub_u32 s99, s99, 8192')
        srd(a, 68, P_SSMK, 4096, 0, 99)
        for j in range(4):
            a.e(f'buffer_load_dwordx4 v[{kd+4*j}:{kd+4*j+3}], v220, s[68:71], 0 offen offset:{1024*j}')
            a.e(f'buffer_load_dword v{kx+j}, v220, s[68:71], 0 offen offset:{1024*j+16}')
    def k_prep(n, kd, kx, sb):
        a.e('v_mov_b32 v196, 0')
        a.e('v_mov_b32 v197, 0')
        a.e('v_lshlrev_b32 v198, 3, v2')
        a.e(f'v_add_u32 v198, s{sb}, v198')
        a.e('ds_write_b64 v198, v[196:197] offset:4096')
        a.e('v_min_u32 v199, 7, v2')
        a.e('v_lshlrev_b32 v199, 2, v199')
        a.e(f'v_add_u32 v199, s{sb}, v199')
        a.e('ds_write_b32 v199, v196 offset:4608')
        a.e(f'v_add_u32 v198, s{sb}, v220')
        for j in range(4):
            a.e(f's_waitcnt vmcnt({n+6-2*j})')
            d = kd + 4 * j
            if j == 0:
                a.e(f'v_readfirstlane_b32 s58, v{d}')
            a.e(f'ds_write_b128 v198, v[{d}:{d+3}] offset:{4608+32+1024*j}')
            for q in range(4):
                hi = d + q + 1 if q < 3 else kx + j
                a.e(f'v_alignbit_b32 v{224+4*j+q}, v{hi}, v{d+q}, 16')
            a.e(f'ds_write_b128 v198, v[{224+4*j}:{224+4*j+3}] offset:{4608+4160+32+1024*j}')
        a.e('s_lshl_b32 s58, s58, 16')
        a.e('v_cmp_le_u32 vcc, 7, v2')
        a.e('v_mov_b32 v197, s58')
        a.e('s_nop 0')
        a.e('v_cndmask_b32 v197, v196, v197, vcc')
        a.e(f'ds_write_b32 v199, v197 offset:{4608+4160}')
    def later_setup():
        g2.front_setup(); g1.setup_dma()
    srd(a, 44, P_DBG, 256)
    a.e('s_cmp_eq_u32 s77, 0')
    a.e('s_cbranch_scc1 L_p0')
    def pub(wv, wait):
        a.e('s_or_b32 s56, s56, 1')
        a.e(f's_xor_b32 s57, s{S_W}, {wv}')
        a.e('s_or_b32 s57, s57, s2')
        a.e('s_cmp_lg_u32 s57, 0')
        a.e('s_cbranch_scc1 L_nonce_skip')
        a.e('v_mov_b32 v163, s56')
        a.e('s_mov_b64 exec, 1')
        a.e('buffer_store_dword v163, v162, s[44:47], 0 offen sc1')
        a.e('s_mov_b64 exec, -1')
        if wait: a.e('s_waitcnt vmcnt(0)')
        a.e('L_nonce_skip:')
    if opt('np', 0): pub(3, False)
    k_loads(KD, KX)
    if KH: k_loads(100, 116, back=1)
    later_setup()
    KR, VR_, WR, WU, KU, AC0 = 8, 36, 52, 68, 100, 164
    def p0_loads():
        srd(a, 32, P_K, 4 * MB)
        srd(a, 36, P_V, 4 * MB)
        srd(a, 40, P_SH, 8192)
        for j in range(4):
            a.e(f'buffer_load_dwordx4 v[{WR+4*j}:{WR+4*j+3}], v7, s[40:43], 0 offen offset:{16*j}')
        rows = [(4, 0), (4, 2048), (5, 0), (3, 0), (3, 2048), (6, 0), (6, 2048)]
        for r, (vr, off) in enumerate(rows):
            a.e(f'buffer_load_dwordx4 v[{KR+4*r}:{KR+4*r+3}], v{vr}, s[32:35], 0 offen offset:{off}')
        for r, (vr, off) in enumerate(rows[3:]):
            a.e(f'buffer_load_dwordx4 v[{VR_+4*r}:{VR_+4*r+3}], v{vr}, s[36:39], 0 offen offset:{off}')
    HD = opt('hd', 2)
    if HD < 2:
        assert not KH
        if HD == 1: a.e('s_waitcnt vmcnt(6)')
        p0_loads()
        k_prep(15, KD, KX, 88)
        a.e('s_branch L_p0b')
    else:
        k_prep(8 if KH else 0, KD, KX, 88)
        if KH:
            a.e(f's_sub_u32 s59, s88, {2*KA_REG}')
            k_prep(0, 100, 116, 59)
    a.e('L_p0:')
    p0_loads()
    a.e('L_p0b:')
    srd(a, 48, P_WS, 4 * MB, WS_UB)
    if not opt('np', 0): pub(0, True)
    srd(a, S_FLG, P_WS, FLG_SIZE, WS_FLG)
    a.e('s_waitcnt vmcnt(11)')
    for e in range(8):
        unpack(a, WU + 0 * 8 + e, WU + 1 * 8 + e, WR + 2 * e)
        unpack(a, WU + 2 * 8 + e, WU + 3 * 8 + e, WR + 2 * e + 1)
    for r in range(7):
        a.e(f's_waitcnt vmcnt({10-r})')
        for q in range(4):
            unpack(a, KU + 8 * r + 2 * q, KU + 8 * r + 2 * q + 1, KR + 4 * r + q)
        if r >= 3:
            i = r - 3
            for j in range(4):
                for q in range(4):
                    d = AC0 + 8 * i + 2 * q
                    k = KU + 8 * (i + 3 - j) + 2 * q
                    w = WU + 8 * j + 2 * q
                    if j == 0:
                        a.e(f'v_pk_mul_f32 v[{d}:{d+1}], v[{k}:{k+1}], v[{w}:{w+1}]')
                    else:
                        a.e(f'v_pk_fma_f32 v[{d}:{d+1}], v[{k}:{k+1}], v[{w}:{w+1}], v[{d}:{d+1}]')
    VU = 8
    for i in range(4):
        a.e(f's_waitcnt vmcnt({3-i})')
        if i == 3:
            a.e('buffer_load_dword v163, v162, s[44:47], 0 offen sc1')
        for q in range(4):
            unpack(a, VU + 2 * q, VU + 2 * q + 1, VR_ + 4 * i + q)
        for q in range(4):
            d = AC0 + 8 * i + 2 * q
            a.e(f'v_pk_mul_f32 v[{d}:{d+1}], v[{d}:{d+1}], v[{VU+2*q}:{VU+2*q+1}]')
    O = 52
    for e in range(4):
        q = O + 4 * e
        a.e(f'v_cvt_pk_bf16_f32 v{q}, v{AC0+28+e}, v{AC0+20+e}')
        a.e(f'v_cvt_pk_bf16_f32 v{q+1}, v{AC0+12+e}, v{AC0+4+e}')
        a.e(f'v_cvt_pk_bf16_f32 v{q+2}, v{AC0+24+e}, v{AC0+16+e}')
        a.e(f'v_cvt_pk_bf16_f32 v{q+3}, v{AC0+8+e}, v{AC0+e}')
    for e in range(4):
        q = O + 4 * e
        if e == 3: a.e('s_nop 0')
        a.e(f'v_permlane16_swap_b32 v{q+2}, v{q}')
        a.e(f'v_permlane16_swap_b32 v{q+3}, v{q+1}')
        a.e(f'buffer_store_dwordx4 v[{q}:{q+3}], v160, s[48:51], 0 offen offset:{64*e} sc1')
    stamp(a, 1)
    a.e('s_waitcnt vmcnt(4)')
    a.e('L_nonce:')
    a.e(f'v_readfirstlane_b32 s{S_NONCE}, v163')
    a.e('s_nop 0')
    a.e(f's_cmp_lg_u32 s{S_NONCE}, 0')
    a.e('s_cbranch_scc1 L_nonce_ok')
    a.e('s_add_u32 s3, s3, 1')
    a.e(f's_cmp_gt_u32 s3, {opt("spin", 200000)}')
    a.e('s_cbranch_scc1 L_nonce_ok')
    a.e('buffer_load_dword v163, v162, s[44:47], 0 offen sc1')
    a.e('s_waitcnt vmcnt(0)')
    a.e('s_branch L_nonce')
    a.e('L_nonce_ok:')
    a.e(f'v_mov_b32 v163, s{S_NONCE}')
    def flag0(n):
        a.e(f's_waitcnt vmcnt({n})')
        a.e('s_mov_b64 exec, 1')
        a.e(f'buffer_store_dword v163, v162, s[{S_FLG}:{S_FLG+3}], s87 offen sc1')
        a.e('s_mov_b64 exec, -1')
    a.e('s_cmp_eq_u32 s77, 0')
    a.e('s_cbranch_scc0 L_p0hi')
    if KH:
        code_pf(a, 'L_p0hi', 'L_g1epi', 164)
        flag0(1)
        later_setup()
    else:
        if opt('kl', 1):
            code_pf(a, 'L_p0hi', 'L_g1epi', 164)
            flag0(1)
            k_loads(KD, KX)
            later_setup()
            k_prep(0, KD, KX, 88)
        else:
            k_loads(KD, KX)
            code_pf(a, 'L_p0hi', 'L_g1epi', 164)
            flag0(9)
            later_setup()
            k_prep(2, KD, KX, 88)
        a.e('s_branch L_p0j')
    a.e('L_p0hi:')
    if not KH:
        flag0(0)
        a.e('L_p0j:')
    stamp(a, 2)
    a.e('s_and_b32 s82, s2, 7')
    a.e('s_lshr_b32 s83, s2, 3')
    a.e('s_lshl_b32 s84, s83, 2')
    a.e(f's_add_u32 s84, s84, s{S_W}')
    a.e('s_mov_b32 s85, s101')
    a.e('s_lshl_b32 s86, s82, 5')
    a.e('s_add_u32 s86, s86, s83')
    a.e('s_lshr_b32 s57, s85, 1')
    a.e('s_lshl_b32 s57, s57, 2')
    a.e(f's_load_dword s89, s[{P_D}:{P_D+1}], s57')
    a.e('v_lshlrev_b32 v4, 4, v2')
    a.e('v_lshrrev_b32 v3, 2, v2')
    a.e('v_sub_u32 v3, 15, v3')
    a.e('v_lshlrev_b32 v3, 13, v3')
    a.e('v_and_b32 v5, 3, v2')
    a.e('v_lshl_add_u32 v3, v5, 4, v3')
    a.e('s_lshl_b32 s56, s84, 6')
    a.e('v_add_u32 v3, s56, v3')
    a.e(f'v_lshlrev_b32 v34, {fsh()}, v2')
    a.e('v_and_b32 v5, 15, v2')
    a.e('v_lshrrev_b32 v6, 4, v2')
    a.e('v_add_u32 v31, 1, v5')
    a.e('v_and_b32 v32, 1, v31')
    a.e('v_sub_u32 v31, v31, v32')
    a.e('v_lshl_add_u32 v31, v6, 3, v31')
    a.e('v_lshlrev_b32 v31, 1, v31')
    a.e('v_mul_u32_u24 v32, 4160, v32')
    a.e('v_add3_u32 v31, v31, v32, s88')
    VA, VB, ACC = 36, 40, 44
    for j in range(4):
        a.e(f'v_add_u32 v{VA+j}, {4608+1024*j}, v31')
    a.e('v_lshlrev_b32 v32, 5, v5')
    a.e('v_lshlrev_b32 v33, 4, v6')
    a.e('v_sub_u32 v33, v33, v32')
    a.e('v_add_u32 v33, s88, v33')
    a.e(f'v_add_u32 v{VB}, 480, v33')
    a.e('v_add_u32 v7, s88, v4')
    zero_acc(a, ACC, 32, 92)
    FA = [96, 112]; FB = [128, 144]
    def areg(r, mq): return (f'a', 16 * r + 4 * mq) if mq < 4 else ('v', FA[r & 1] + 4 * (mq - 4))
    def rdA(r, mq):
        o = 128 * (mq & 1) + 16 * r
        t_, f = areg(r, mq)
        return [f'ds_read2_b32 {t_}[{f}:{f+1}], v{VA+(mq>>1)} offset0:{o} offset1:{o+1}', f'ds_read2_b32 {t_}[{f+2}:{f+3}], v{VA+(mq>>1)} offset0:{o+2} offset1:{o+3}']
    def breg(r, d): return (FB[r & 1] if d < 4 else 160 + 16 * (r % 3)) + 4 * (d & 3)
    def rdB(r, d):
        f = breg(r, d)
        return f'ds_read_b128 v[{f}:{f+3}], v{VB} offset:{512*(7-d)+64*r}'
    a.e('s_waitcnt lgkmcnt(0)')
    a.e('s_bitcmp1_b32 s85, 0')
    a.e('s_cselect_b32 s56, 0, 16')
    a.e('s_lshl_b32 s89, s89, s56')
    a.e('s_and_b32 s89, s89, 0xffff0000')
    a.e(f's_lshl_b32 s99, s82, {7+fsh()}')
    if KH:
        wait_flags(a, 99, 34, 35, solo=0)
        a.e(f's_cmp_lt_u32 s{S_W}, 2')
        a.e('s_cbranch_scc1 L_p0f')
        flag0(0)
        a.e('L_p0f:')
    else:
        for mq in range(8):
            for l in rdA(0, mq): a.e(l)
        wait_flags(a, 99, 34, 35, solo=0)
    stamp(a, 3)
    a.e('s_lshl_b32 s101, s82, 19')
    UR = 8
    def u_loads(hf, E):
        for i in range(2):
            a.e(f's_add_u32 s57, s101, {hf*262144 + (16-16*i)*8192:#x}')
            E(f'buffer_load_dwordx4 v[{UR+4*i}:{UR+4*i+3}], v3, s[48:51], s57 offen sc1')
    u_loads(0, a.e)
    if KH:
        a.e('s_barrier')
        for mq in range(8):
            for l in rdA(0, mq): a.e(l)
    wfr = opt('la', 2) / 2
    a.e(f's_mul_i32 s56, s2, {int(7168*wfr)}')
    a.e(f's_mul_i32 s57, s{S_W}, {int(1792*wfr)}')
    a.e('s_add_u32 s56, s56, s57')
    a.e('v_lshlrev_b32 v41, 7, v2')
    LK = Lin(a)
    wpl = []
    for n_, P_ in enumerate((P_W1, P_W3)):
        sd = (40, 32)[n_]
        srd(a, sd, P_, int(1792 * wfr), 0, 56)
        wpl.append(lambda sd=sd: LK.v('pf', f'buffer_load_dword v42, v41, s[{sd}:{sd+3}], 0 offen'))
    srd(a, 36, P_Q, 4 * MB)
    a.e(f's_add_u32 s99, s99, {64 << fsh()}')
    for i in range(2):
        a.e(f's_waitcnt vmcnt({1-i})')
        a.e(f'ds_write_b128 v7, v[{UR+4*i}:{UR+4*i+3}] offset:{2048+1024*i}')
    a.e('s_waitcnt lgkmcnt(0)')
    for d in range(4): a.e(rdB(0, d))
    stamp(a, 4)
    g1e = [[(lambda l=l: a.e(l)) for l in grp] for grp in g1.early_dma()]
    def grp(fs): return lambda: [f() for f in fs]
    g1e = [grp(x) for x in g1e]
    p01 = [(lambda f=f: (f(), LK.vm.append('w2') if 'buffer' in a.lines[-1] or 'buffer' in a.lines[-2] and 's72' in a.lines[-1] and 'add' in a.lines[-1] else None)) for f in g2.fD([(0, 2), (1, 3)])]
    NF0 = 4
    xl = [(lambda r_=r_, hh=hh: LK.v('x', f'buffer_load_dwordx4 v[{XP+8*r_+4*hh}:{XP+8*r_+4*hh+3}], v4, s[36:39], s96 offen offset:{2048*r_+1024*hh}')) for r_ in range(2) for hh in range(2)]
    RP = opt('rp', 4)
    def chk():
        LK.wait(vm=('fb',))
        a.e(f'v_cmp_ne_u32 vcc, s{S_NONCE}, v35')
        a.e('s_cbranch_vccz L_f0b')
        wait_flags(a, 99, 34, 35, solo=0)
        a.e('L_f0b:')
        u_loads(1, lambda t: LK.v('u', t))
    def uw(i):
        def f():
            if i == 0: LK.wait(vm=('u',))
            LK.l('uw', f'ds_write_b128 v7, v[{UR+4*i}:{UR+4*i+3}] offset:{1024*i}')
        return f
    f1 = {r: [] for r in range(8)}
    RL = opt('rl', 1)
    f1[RL] = f1[RL] + [lambda: LK.v('fb', f'buffer_load_dword v35, v34, s[{S_FLG}:{S_FLG+3}], s99 offen sc1')]
    XA = opt('xa', 0)
    if XA == 0:
        f1[RP] = f1[RP] + xl; f1[RP + 1] = f1[RP + 1] + wpl[:1]
    elif XA == 1:
        f1[0] = xl + f1[0]; f1[RP] = f1[RP] + wpl[:1]
    elif XA == 2:
        f1[0] = wpl[:1] + f1[0]; f1[RP] = f1[RP] + xl
    else:
        f1[RP] = f1[RP] + xl; f1[RP + 2] = f1[RP + 2] + wpl[:1]
    f2 = {r: [] for r in range(8)}
    if XA in (1, 2): f1[RP + 2] = f1[RP + 2] + wpl[1:]
    elif XA == 3: f2[2] = wpl[1:]
    else: f2[0] = wpl[1:]
    f2[3] = p01[:3]; f2[4] = p01[3:5]; f2[5] = p01[5:8]; f2[6] = p01[8:]
    UE = 8
    LK.lg = [('B', 0, d) for d in range(4)]
    def RA(r, mq): return [(lambda t=t: LK.l(('A', r, mq), t)) for t in rdA(r, mq)]
    def RB(r, d): return lambda: LK.l(('B', r, d), rdB(r, d))
    for ph in range(2):
        for r in range(8):
            if ph == 0:
                ms = [(mq, d) for mq in range(8) for d in range(4) if mq + d < 8]
                nxt = []
                if r < 7:
                    for x in range(8):
                        if x < 4: nxt.append(RB(r + 1, x))
                        nxt += RA(r + 1, x)
                fl = list(f1[r])
            else:
                ms = [(mq, d) for d in range(4, 8) for mq in range(4) if mq + d < 8]
                nxt = [RB(r + 2, d) for d in range(4, 8)] if r < 6 else []
                if r == 5:
                    a.e('v_lshlrev_b32 v32, 5, v5')
                    a.e('v_lshl_add_u32 v32, v6, 3, v32')
                    a.e(f'v_sub_u32 v34, {4088-3584}, v32')
                    a.e('v_add_u32 v34, s88, v34')
                    a.e('v_add_u32 v35, s88, v32')
                if r >= 6:
                    nxt = [(lambda c=c: LK.l('ue', f'ds_read_b64 v[{UE+2*c}:{UE+2*c+1}], v34 offset:{512*(7-c)}')) for c in range(4 * (r - 6), 4 * (r - 5))]
                fl = list(f2[r])
            if ph == 0 and r == RP: chk()
            per = max(1, -(-len(fl) // len(ms)))
            evr = max(1, len(ms) // max(1, len(fl)) // 2)
            for k, (mq, d) in enumerate(ms):
                c = mq + d
                t_, fa = areg(r, mq); fb = breg(r, d)
                LK.wait(lg=(('A', r, mq), ('B', r, d)))
                a.e(f'v_mfma_f32_16x16x32_bf16 v[{ACC+4*c}:{ACC+4*c+3}], {t_}[{fa}:{fa+3}], v[{fb}:{fb+3}], v[{ACC+4*c}:{ACC+4*c+3}]')
                if k < len(nxt): nxt[k]()
                if k % evr == evr - 1:
                    for _ in range(per):
                        if fl: fl.pop(0)()
                if ph == 0 and r == 7:
                    if k == opt('uk', 10): uw(0)()
                    if k == opt('uk', 10) + 1: uw(1)()
                    if opt('uk', 10) + 2 <= k < opt('uk', 10) + 10:
                        q = k - opt('uk', 10) - 2
                        RB(q >> 2, 4 + (q & 3))()
            assert not fl, (ph, r, len(fl))
    nk01 = 8; wpl = []
    xwait = len(LK.vm) - max(i for i, t in enumerate(LK.vm) if t == 'x') - 1
    a.e('s_waitcnt lgkmcnt(0)')
    stamp(a, 5)
    a.e('L_kbcode:')
    X = 96
    for c in range(8):
        unpack(a, X + 4 * c + 3, X + 4 * c + 2, UE + 2 * c)
        unpack(a, X + 4 * c + 1, X + 4 * c + 0, UE + 2 * c + 1)
    for c in range(8):
        for r in range(4):
            a.e(f'v_fma_f32 v{X+4*c+r}, v{X+4*c+r}, s89, v{ACC+4*c+r}')
        a.e(f'v_cvt_pk_bf16_f32 v{UE+2*c}, v{X+4*c}, v{X+4*c+1}')
        a.e(f'v_cvt_pk_bf16_f32 v{UE+2*c+1}, v{X+4*c+2}, v{X+4*c+3}')
        a.e(f'ds_write_b64 v35, v[{UE+2*c}:{UE+2*c+1}] offset:{4608+512*c}')
    a.flush_inject()
    LIN[0] = None
    a.e('v_lshlrev_b32 v32, 2, v0')
    a.e(f'v_add_u32 v32, {LDS_KA}, v32')
    YL_ = opt('yl', 1)
    a.e(f'v_lshrrev_b32 v33, {2+YL_}, v0')
    a.e(f'v_lshlrev_b32 v33, {14+YL_}, v33')
    a.e(f'v_and_b32 v34, {7 if YL_ else 3}, v0')
    a.e('v_lshl_add_u32 v33, v34, 4, v33')
    a.e(f's_lshl_b32 s56, s86, {6+YL_}')
    a.e('s_mov_b32 s57, 0x05040100')
    a.e('s_mov_b32 s58, 0x07060302')
    srd(a, 36, P_WS, 4 * MB, WS_Y2)
    a.e(f's_cmp_ge_u32 s{S_W}, 2')
    a.e('s_waitcnt lgkmcnt(0)')
    a.e('s_barrier')
    if RS: a.e('s_cbranch_scc1 L_y2skip')
    Y = 96; O = 128
    NP = 8 if RS else 4
    LY = Lin(a)
    def yrd(P):
        for ch in range(4):
            LY.l(P, f'ds_read_b32 v{Y+4*P+ch}, v32 offset:{ch*KA_REG+4608+4096//NP*P}')
    for P in range(4): yrd(P)
    for P in range(NP):
        LY.wait(lg=(P,))
        if P + 4 < NP: yrd(P + 4)
        y = Y + 4 * P; o = O + 4 * P
        a.e(f'v_perm_b32 v{o}, v{y+1}, v{y}, s57')
        a.e(f'v_perm_b32 v{o+1}, v{y+3}, v{y+2}, s57')
        a.e(f'v_perm_b32 v{o+2}, v{y+1}, v{y}, s58')
        a.e(f'v_perm_b32 v{o+3}, v{y+3}, v{y+2}, s58')
        a.e(f'buffer_store_dwordx4 v[{o}:{o+3}], v33, s[36:39], s56 offen sc1')
        if P < NP - 1:
            a.e(f's_add_u32 s56, s56, {256//NP*16384:#x}')
    LIN[0] = None
    if RS: a.e('L_y2skip:')
    stamp(a, 6)
    XU = [8, 24]; TT = [40, 56]; MM = [72, 74]; RR = [76, 78]; C = 80; YU = [100, 116]; XM = [140, 156]; SS = [172, 174]
    a.e(f's_waitcnt vmcnt({xwait + 4})')
    F45 = opt('f45', 0)
    if F45: a.inject(g2.fD([(2, 0), (3, 1)]), 3)
    for r in range(2):
        for q in range(8):
            unpack(a, XU[r] + 2 * q, XU[r] + 2 * q + 1, XP + 8 * r + q)
    a.flush_inject()
    a.e(f'v_mov_b32 v{C}, 0x3a800000')
    a.e(f's_lshl_b32 s87, s2, {f1sh()}')
    a.e(f's_add_u32 s87, s87, {F1}')
    def w1():
        if RS:
            a.e(f's_bitcmp1_b32 s{S_W}, 1')
            a.e('s_cbranch_scc1 L_y2nw')
            a.e('s_waitcnt vmcnt(0)')
            a.e('L_y2nw:')
            a.e(f's_cmp_eq_u32 s{S_W}, 0')
        else:
            a.e(f's_waitcnt vmcnt({8 if F45 else 0})')
    signal(a, 87, 82, waitfn=w1)
    if RS:
        a.inject(g1e[:10] + p01 + g2.fD([(2, 0), (3, 1)]), 4)
    else:
        if NF0 >= 2: g2.fM([(0, 2), (1, 3)])
        a.inject(g1e[:10] + ([] if F45 or NF0 < 4 else g2.fD([(2, 0), (3, 1)])), 12 if F45 or NF0 < 4 else 6)
    ln2(a, XU, TT, MM, RR, C, XM)
    a.flush_inject()
    a.e('v_lshlrev_b32 v5, 7, v2')
    a.e(f'v_lshlrev_b32 v139, {7+YL_}, v2')
    a.e(f'v_add_u32 v6, {0x2000 << YL_:#x}, v139')
    if YL_:
        a.e('s_lshr_b32 s82, s91, 1')
        a.e('s_lshl_b32 s82, s82, 15')
        a.e('s_and_b32 s83, s91, 1')
        a.e('s_lshl_b32 s83, s83, 6')
        a.e('s_add_u32 s82, s82, s83')
    else:
        a.e('s_lshl_b32 s82, s91, 14')
    if opt('yd', 1):
        assert YL_
        a.e(f's_lshl_b32 s83, s{S_W}, 13')
        a.e('s_add_u32 s82, s82, s83')
        a.e('v_lshrrev_b32 v176, 4, v2')
        a.e('v_xor_b32 v176, v176, v2')
        a.e('v_and_b32 v176, 3, v176')
        a.e('v_lshlrev_b32 v176, 4, v176')
        a.e('v_lshrrev_b32 v177, 2, v2')
        a.e('v_lshl_add_u32 v176, v177, 7, v176')
        for i in range(1, 4):
            a.e(f'v_add_u32 v{176+i}, {1024*i}, v176')
        a.e(f's_lshl_b32 s83, s{S_W}, 12')
        a.e(f's_add_u32 m0, s83, {LDS_KA + 16384}')
        a.e('v_bfe_u32 v180, v2, 1, 2')
        a.e(f'v_xor_b32 v180, s{S_W}, v180')
        a.e('v_lshl_add_u32 v180, v180, 4, v5')
        a.e(f'v_add_u32 v180, {LDS_KA + 16384}, v180')
    else:
        a.e(f's_lshl_b32 s83, s{S_W}, 4')
        a.e('s_add_u32 s82, s82, s83')
    srd(a, 40, P_WS, 4 * MB, WS_H)
    srd(a, 44, P_WS, 4 * MB, WS_HNF)
    a.e('v_and_b32 v7, 7, v2')
    a.e(f's_lshl_b32 s83, s{S_W}, 1')
    a.e('v_xor_b32 v132, s83, v7')
    a.e('v_lshl_add_u32 v132, v132, 4, v5')
    a.e(f'v_add_u32 v132, {LDS_KA}, v132')
    a.e('v_xor_b32 v133, 16, v132')
    a.e('v_lshrrev_b32 v134, 3, v2')
    a.e('v_xor_b32 v135, v134, v7')
    a.e('v_lshlrev_b32 v135, 4, v135')
    a.e('v_lshl_add_u32 v135, v134, 7, v135')
    a.e(f's_lshl_b32 s83, s{S_W}, 12')
    a.e(f's_add_u32 s83, s83, {LDS_KA}')
    a.e('v_add_u32 v135, s83, v135')
    HC = opt('hc', 0)
    if HC:
        a.e('v_lshlrev_b32 v136, 4, v2')
        a.e('s_lshl_b32 s84, s91, 14')
        a.e(f's_lshl_b32 s85, s{S_W}, 12')
        a.e('s_add_u32 s84, s84, s85')
    else:
        a.e('v_lshrrev_b32 v136, 5, v2')
        a.e('v_lshlrev_b32 v136, 12, v136')
        a.e('v_bfe_u32 v137, v2, 3, 2')
        a.e('v_lshl_add_u32 v136, v137, 8, v136')
        a.e('v_lshl_add_u32 v136, v7, 4, v136')
        a.e('s_lshr_b32 s84, s91, 3')
        a.e('s_lshl_b32 s84, s84, 17')
        a.e('s_bfe_u32 s85, s91, 0x20001')
        a.e('s_lshl_b32 s85, s85, 10')
        a.e('s_add_u32 s84, s84, s85')
        a.e('s_and_b32 s85, s91, 1')
        a.e('s_lshl_b32 s85, s85, 7')
        a.e('s_add_u32 s84, s84, s85')
        a.e(f's_lshl_b32 s85, s{S_W}, 15')
        a.e('s_add_u32 s84, s84, s85')
    a.e(f's_mov_b32 s85, {F1}')
    a.e('s_waitcnt lgkmcnt(0)')
    stamp(a, 7)
    a.e(f'v_lshlrev_b32 v138, {4 if f1sh() == 2 else f1sh()}, v2')
    wait_flags(a, 85, 138, 128, n=256)
    stamp(a, 8)
    YL = 84
    YD = opt('yd', 1)
    if YD:
        for i in range(4):
            a.e(f'buffer_load_dwordx4 v{176+i}, s[36:39], s82 offen offset:{1024*i} sc1 lds')
    else:
        a.e(f'buffer_load_dwordx4 v[{YL}:{YL+3}], v139, s[36:39], s82 offen sc1')
        a.e(f'buffer_load_dwordx4 v[{YL+4}:{YL+7}], v139, s[36:39], s82 offen offset:{64 << YL_} sc1')
        a.e(f'buffer_load_dwordx4 v[{YL+8}:{YL+11}], v6, s[36:39], s82 offen sc1')
        a.e(f'buffer_load_dwordx4 v[{YL+12}:{YL+15}], v6, s[36:39], s82 offen offset:{64 << YL_} sc1')
    a.e('s_waitcnt vmcnt(4)')
    if NF0 == 4: g2.fM(([(0, 2), (1, 3)] if RS else []) + [(2, 0), (3, 1)])
    if YD:
        a.e('s_waitcnt vmcnt(0)')
        a.e('s_barrier')
        a.e(f'ds_read_b128 v[{YL}:{YL+3}], v180')
        a.e(f'ds_read_b128 v[{YL+4}:{YL+7}], v180 offset:64')
        a.e(f'ds_read_b128 v[{YL+8}:{YL+11}], v180 offset:8192')
        a.e(f'ds_read_b128 v[{YL+12}:{YL+15}], v180 offset:8256')
    for cgi in range(4):
        a.e(f's_waitcnt {"lgkm" if YD else "vm"}cnt({3-cgi})')
        for r in range(2):
            for e in range(2):
                u = YU[r] + 4 * cgi + 2 * e
                unpack(a, u, u + 1, YL + 4 * cgi + 2 * r + e)
        for r in range(2):
            for e in range(2):
                u = YU[r] + 4 * cgi + 2 * e; x = XM[r] + 4 * cgi + 2 * e; t = TT[r] + 4 * cgi + 2 * e
                a.e(f'v_pk_fma_f32 v[{x}:{x+1}], v[{t}:{t+1}], v[{u}:{u+1}], v[{x}:{x+1}]')
        for r in range(2):
            for e in range(2):
                x = XM[r] + 4 * cgi + 2 * e
                if cgi == 0 and e == 0:
                    a.e(f'v_pk_mul_f32 v[{RR[r]}:{RR[r]+1}], v[{x}:{x+1}], v[{x}:{x+1}]')
                else:
                    a.e(f'v_pk_fma_f32 v[{RR[r]}:{RR[r]+1}], v[{x}:{x+1}], v[{x}:{x+1}], v[{RR[r]}:{RR[r]+1}]')
            x = XM[r] + 4 * cgi
            if cgi == 0: a.e(f'v_pk_add_f32 v[{SS[r]}:{SS[r]+1}], v[{x}:{x+1}], v[{x+2}:{x+3}]')
            else:
                a.e(f'v_pk_add_f32 v[{SS[r]}:{SS[r]+1}], v[{x}:{x+1}], v[{SS[r]}:{SS[r]+1}]')
                a.e(f'v_pk_add_f32 v[{SS[r]}:{SS[r]+1}], v[{x+2}:{x+3}], v[{SS[r]}:{SS[r]+1}]')
    if opt('kbst'): stamp(a, 16)
    for r in range(2):
        a.e(f'v_add_f32 v{SS[r]}, v{SS[r]}, v{SS[r]+1}')
        a.e(f'v_add_f32 v{RR[r]}, v{RR[r]}, v{RR[r]+1}')
    fl_ = []
    for r in range(2):
        for q in range(8):
            u = YU[r] + 2 * q; x = XU[r] + 2 * q; t = TT[r] + 2 * q
            fl_.append(f'v_pk_fma_f32 v[{x}:{x+1}], v[{t}:{t+1}], v[{u}:{u+1}], v[{x}:{x+1}]')
    for r in range(2):
        for q in range(8):
            fl_.append(f'v_cvt_pk_bf16_f32 v{XP+8*r+q}, v{XU[r]+2*q}, v{XU[r]+2*q+1}')
    for mod in ('row_shr:1 row_mask:0xf bank_mask:0xf bound_ctrl:0', 'row_shr:2 row_mask:0xf bank_mask:0xf bound_ctrl:0',
                'row_shr:4 row_mask:0xf bank_mask:0xf bound_ctrl:0', 'row_shr:8 row_mask:0xf bank_mask:0xf bound_ctrl:0',
                'row_bcast:15 row_mask:0xa bank_mask:0xf', 'row_bcast:31 row_mask:0xc bank_mask:0xf'):
        for v in (SS[0], SS[1], RR[0], RR[1]):
            a.e(f'v_add_f32_dpp v{v}, v{v}, v{v} {mod}')
    for i, v in enumerate((SS[0], SS[1], RR[0], RR[1])):
        a.e(f'v_readlane_b32 s{56+i}, v{v}, 63')
    def both(f):
        for r in range(2): f(r)
        if fl_: a.e(fl_.pop(0))
        if fl_: a.e(fl_.pop(0))
    def rbf(v):
        a.e(f'v_cvt_pk_bf16_f32 v{v}, v{v}, v{v}')
        a.e(f'v_and_b32 v{v}, s{S_MASK}, v{v}')
    both(lambda r: a.e(f'v_mul_f32 v{SS[r]}, s{56+r}, v{C}'))
    both(lambda r: a.e(f'v_mul_f32 v{RR[r]}, s{58+r}, v{C}'))
    both(lambda r: a.e(f'v_fma_f32 v{RR[r]}, -v{SS[r]}, v{SS[r]}, v{RR[r]}'))
    both(lambda r: a.e(f'v_max_f32 v{RR[r]}, 0, v{RR[r]}'))
    both(lambda r: rbf(RR[r]))
    both(lambda r: a.e(f'v_add_f32 v{RR[r]}, 0x3727c5ac, v{RR[r]}'))
    both(lambda r: rbf(RR[r]))
    both(lambda r: a.e(f'v_sqrt_f32 v{RR[r]}, v{RR[r]}'))
    both(lambda r: a.e(f'v_add_f32 v{SS[r]}, v{SS[r]}, v{MM[r]}'))
    both(lambda r: rbf(RR[r]))
    both(lambda r: a.e(f'v_rcp_f32 v{RR[r]}, v{RR[r]}'))
    both(lambda r: rbf(SS[r]))
    if opt('hs', 0): both(lambda r: a.e(f'v_mul_f32 v{RR[r]}, 0x3fb8aa3b, v{RR[r]}'))
    both(lambda r: a.e(f'v_sub_f32 v{SS[r]}, v{MM[r]}, v{SS[r]}'))
    both(lambda r: a.e(f'v_mul_f32 v{SS[r]}, v{SS[r]}, v{RR[r]}'))
    nh = len(fl_)
    for q in range(8):
        for r in range(2):
            x = XM[r] + 2 * q
            a.e(f'v_pk_fma_f32 v[{TT[r]+2*q}:{TT[r]+2*q+1}], v[{x}:{x+1}], v[{RR[r]}:{RR[r]+1}], v[{SS[r]}:{SS[r]+1}] op_sel_hi:[1,0,0]')
    for r in range(2):
        for q in range(8):
            a.e(f'v_cvt_pk_bf16_f32 v{YL+8*r+q}, v{TT[r]+2*q}, v{TT[r]+2*q+1}')
        for hh in range(2):
            a.e(f'ds_write_b128 v{132+r}, v[{YL+8*r+4*hh}:{YL+8*r+4*hh+3}] offset:{8192*hh}')
    for t_ in fl_: a.e(t_)
    a.e('s_waitcnt lgkmcnt(0)')
    a.e('s_barrier')
    for i in range(4):
        a.e(f'ds_read_b128 v[{100+4*i}:{103+4*i}], v135 offset:{1024*i}')
    for i in range(4):
        a.e(f's_waitcnt lgkmcnt({3-i})')
        if HC:
            a.e(f'buffer_store_dwordx4 v[{100+4*i}:{103+4*i}], v136, s[44:47], s84 offen offset:{1024*i} sc1')
        else:
            a.e(f'buffer_store_dwordx4 v[{100+4*i}:{103+4*i}], v136, s[44:47], s84 offen sc1')
            if i < 3: a.e('s_add_u32 s84, s84, 8192')
    stamp(a, 9)
    a.e(f's_lshl_b32 s87, s91, {fsh()}')
    a.e(f's_add_u32 s87, s87, {F2}')
    g2.front_save()
    if opt('s2e', 0):
        assert not F45
        signal(a, 87, 4)
        g1.pre_setup([])
    else:
        g1.pre_setup(g2.fD([(4, 0), (5, 1)], dv=28) if F45 else [])
        signal(a, 87, 4, waitfn=lambda: a.e(f's_waitcnt vmcnt({8 if F45 else 0})'))
    g2.NF = 8 if F45 else NF0 + 2
    def mv45():
        if not F45: return
        a.e('v_add_u32 v4, s73, v7')
        a.e('v_xor_b32 v5, 32, v4')
        a.e('s_waitcnt vmcnt(8)')
        g2.fM([(4, 0), (5, 1)], base=4)
    g1.hook = mv45
    g1.main()
    g1.epilogue(g2)
    g2.main()
    a.e(f's_or_b32 s57, s2, s{S_W}')
    a.e('s_cmp_lg_u32 s57, 0')
    a.e('s_cbranch_scc1 L_clean_skip')
    srd(a, 32, P_DBG, 256)
    a.e('v_mov_b32 v20, 0')
    a.e('s_mov_b64 exec, 1')
    a.e('buffer_store_dword v20, v20, s[32:35], 0 offen sc1')
    a.e('s_mov_b64 exec, -1')
    a.e('L_clean_skip:')
    stamp_out(a, NSTAMP)
    a.e('L_end:')
    a.e('s_endpgm')

G1_STG = 32768
class G1:
    TM, NW, DPW, ND = 4, 4, 8, 4
    ACC, WF, TF, DV, VT, VR, VL = 32, 0, 28, 8, 16, 17, 18
    DVE = 240
    def __init__(s, a): s.a = a
    def setup_dma(s):
        a = s.a
        a.e('s_and_b32 s56, s81, 1')
        a.e('s_lshl_b32 s56, s56, 1')
        a.e('s_movk_i32 s57, 4682')
        a.e('s_movk_i32 s58, 7168')
        a.e('v_mov_b32 v76, 0x80000000')
        a.e('v_subrev_u32 v77, 8, v2')
        for src, dst in ((2, 78), (77, 79)):
            a.e(f'v_cmp_gt_u32 vcc, 56, v{src}')
            a.e(f'v_mul_u32_u24 v80, s57, v{src}')
            a.e('v_lshrrev_b32 v80, 16, v80')
            a.e('v_mul_u32_u24 v81, 14, v80')
            a.e(f'v_sub_u32 v81, v{src}, v81')
            a.e('v_add_u32 v81, s56, v81')
            a.e('v_subrev_u32 v82, 14, v81')
            a.e('v_min_u32 v81, v81, v82')
            a.e('v_mul_u32_u24 v80, s58, v80')
            a.e('v_lshl_add_u32 v80, v81, 4, v80')
            a.e(f'v_cndmask_b32 v{dst}, v76, v80, vcc')
        for i in range(8):
            pat = 79 if (i >> 1) & 1 else 78
            c = i * 4 * 7168 - 1024 * (i & 3)
            a.e(f'v_add_u32 v{s.DVE+i}, {c}, v{pat}' if c else f'v_mov_b32 v{s.DVE+i}, v{pat}')
        a.e(f's_and_b32 s56, s{S_W}, 1')
        a.e(f's_lshr_b32 s57, s{S_W}, 1')
        a.e(f's_mul_i32 s97, s56, {8*4*7168}')
        a.e('s_mov_b32 s100, 458752')
        a.e('s_lshl_b32 s98, s57, 14')
        a.e('s_lshl_b32 s56, s56, 13')
        a.e('s_add_u32 s98, s98, s56')
        a.e('s_mul_i32 s56, s81, 224')
        a.e('s_cmp_eq_u32 s57, 0')
        a.e(f's_cselect_b32 s52, s{P_W1}, s{P_W3}')
        a.e(f's_cselect_b32 s53, s{P_W1+1}, s{P_W3+1}')
        srd(a, 52, 52, None, 0, 56)
        a.e('s_sub_u32 s54, 7340032, s56')
    def m0set(s, i): return f's_add_u32 m0, s98, {4096*(i//4)}' if i else 's_mov_b32 m0, s98'
    def dma(s, i, base): return f'buffer_load_dwordx4 v{base+i}, s[52:55], s97 offen offset:{1024*(i&3)}' + ['', ' sc1', ' nt', ' sc0'][opt('wfl')] + ' lds'
    def dma_adv(s): return ['s_add_u32 s97, s97, s100', f's_add_u32 s98, s98, {G1_STG}', 's_and_b32 s98, s98, 0x1ffff']
    def early_dma(s):
        out = []
        for st in range(2):
            for i in range(8):
                if i % 4 == 0: out.append([s.m0set(i)])
                out.append([s.dma(i, s.DVE)] + (s.dma_adv() if i == 7 else []))
        return out
    def tok(s, k, tm):
        f = s.TF + 4 * (4 * (k % s.ND) + tm)
        if opt('hc', 0):
            return f'buffer_load_dwordx4 a[{f}:{f+3}], v{(3, 25, 26, 27)[tm]}, s[32:35], s82 offen sc1'
        return f'buffer_load_dwordx4 a[{f}:{f+3}], v{s.VT}, s[32:35], s82 offen offset:{tm*1024}' + (' sc1' if opt('t1sc', 1) else '')
    def rd(s, ph, t):
        j, mat = (ph & 3) >> 1, ph & 1
        return [f'ds_read_b64_tr_b16 a[{s.WF+4*t+2*h}:{s.WF+4*t+2*h+1}], v{s.VR} offset:{8192*j+1024*h+32*t+16384*mat}' for h in range(2)]
    def pre_setup(s, inj):
        a = s.a
        for i in range(8): a.e(f'v_mov_b32 v{s.DV+i}, v{s.DVE+i}')
        for i in range(16): a.e(f'v_accvgpr_write_b32 a{92+i}, v{224+i}')
        zero_acc(a, s.ACC, 224, 20)
        a.e(f'v_lshlrev_b32 v{s.VT}, 4, v2')
        a.e('v_lshrrev_b32 v4, 4, v2')
        a.e('v_lshlrev_b32 v4, 11, v4')
        a.e('v_bfe_u32 v5, v2, 4, 1')
        a.e('v_lshl_add_u32 v4, v5, 7, v4')
        a.e('v_bfe_u32 v6, v2, 2, 2')
        a.e('v_mul_u32_u24 v5, 224, v6')
        a.e('v_and_b32 v6, 3, v2')
        a.e('v_lshl_add_u32 v5, v6, 3, v5')
        a.e(f'v_add_u32 v{s.VL}, v4, v5')
        a.e(f'v_mov_b32 v{s.VR}, v{s.VL}')
        if opt('hc', 0):
            a.e('v_bfe_u32 v4, v2, 3, 1')
            a.e('v_lshlrev_b32 v4, 14, v4')
            a.e('v_lshrrev_b32 v5, 4, v2')
            a.e('v_lshl_add_u32 v4, v5, 7, v4')
            a.e('v_and_b32 v5, 7, v2')
            a.e('v_lshl_add_u32 v3, v5, 4, v4')
            for i in range(1, 4): a.e(f'v_add_u32 v{24+i}, {32768*i}, v3')
        if opt('f2w', 0):
            a.e('v_and_b32 v19, 7, v2')
            a.e(f's_lshl_b32 s56, s{S_W}, 3')
            a.e('v_add_u32 v19, s56, v19')
        else:
            a.e('v_and_b32 v19, 31, v2')
        a.e(f'v_lshlrev_b32 v19, {fsh()}, v19')
        a.e('s_lshl_b32 s56, s80, 2')
        a.e(f's_add_u32 s56, s56, s{S_W}')
        a.e('s_lshl_b32 s57, s56, 17')
        srd(a, 32, P_WS, 131072, WS_HNF, 57)
        hf_base(a, 57, 80, S_W, 58)
        srd(a, 36, P_WS, 4 * 114688, 0, 57)
        a.e('s_and_b32 s58, s81, 1')
        a.e('s_mul_i32 s85, s81, 7')
        a.e('s_add_u32 s85, s85, s58')
        a.e('s_lshl_b32 s85, s85, 9')
        a.e('s_movk_i32 s86, 3072')
        a.e('s_cmp_eq_u32 s58, 0')
        a.e(f's_cselect_b32 s86, s86, {0xfffffe00 if opt("hl", 1) else 0xfffffc08:#x}')
        a.e('s_add_u32 s86, s86, s85')
        assert not inj
    def kof(s, s_, P): return 2 * s_ + (-1, 0, 0, 1)[P]
    def ev_ins(s, e):
        L = []
        if e[0] == 'D':
            if e[2] % 4 == 0: L.append(s.m0set(e[2]))
            L.append(s.dma(e[2], s.DV))
            if e[2] == 7: L += s.dma_adv()
        elif e[0] == 'Z':
            fl = ['', ' sc1'][opt('ps', 0) - 1]
            u = e[2]
            if u < 3: L = [f'buffer_store_dwordx4 v[24:27], v{s.VT}, s[36:39], s88 offen offset:{1024*u}{fl}']
            else: L = [f'buffer_store_dwordx2 v[24:25], v{s.VT}, s[36:39], s89 offen{fl}', 's_add_u32 s88, s88, 114688', 's_add_u32 s89, s89, 114688']
        elif e[0] == 'Q':
            L = [f'buffer_store_dwordx4 v[24:27], v{s.VT}, s[44:47], s99 offen', 's_add_u32 s99, s99, 1024']
        elif e[0] == 'V':
            L = ['s_mov_b32 m0, s89', 'buffer_load_dwordx4 v28, s[68:71], s72 offen lds', 's_add_u32 s72, s72, 32768', 's_add_u32 s89, s89, 1024']
        elif e[0] == 'U':
            if e[2] == 0: L = ['buffer_load_dword v0, v6, s[48:51], s101 offen']
            else: L = ['buffer_load_dword v0, v6, s[4:7], s101 offen', 's_add_u32 s101, s101, 917504']
        elif e[0] == 'C':
            L = ['global_load_dword v0, v23, s[78:79]', f's_cmp_ge_u32 s84, {opt("cpt", 5)}', 's_cselect_b32 s99, -1, 0', 'v_and_b32 v23, s99, v24']
        elif e[0] == 'Y':
            L = ['buffer_load_dword v0, v21, s[44:47], s88 offen', 's_add_u32 s88, s88, 1024']
        else:
            L.append(s.tok(e[1], e[2]))
            if e[2] == 3: L.append(f's_add_u32 s82, s82, {512 if opt("hc", 0) else 4096}')
        return L
    def main(s):
        a = s.a
        S = s.S = Sched()
        for s_ in range(-4, 8):
            for P in range(4):
                S.mark((s_, P))
                k = s.kof(s_, P) + s.ND - 1
                t0 = 2 if P in (0, 2) else 0
                S.add([('D', s_ + 2, 2 * P), ('T', k, t0), ('D', s_ + 2, 2 * P + 1), ('T', k, t0 + 1)])
                if opt('w2y', 0 if opt('rs', 0) else 1) and s_ % 2 == 0 and P == 1: S.add([('Y', s_, 0)])
                if opt('la', 2) < 8 and P == (3 if s_ % 2 == 0 else 2): S.add([('U', s_, s_ % 2)])
                if opt('vev', 1) and s_ % 2 == 1 and P == 1: S.add([('V', s_, 0)])
                if opt('cpg', 1) and s_ % 2 == 1 and P == 3: S.add([('C', s_, 0)])
                if opt('psx', 0) and P == 2 and s_ & 1: S.add([('Q', s_, 0)])
                if opt('ps', 0) and P in (1, 3): S.add([('Z', s_, 2 * (s_ & 1) + (P >> 1))])
        vm_bar = min(S.younger(('D', 4), (4, 0)), S.younger(('D', 5), (5, 0)))
        vm_p1 = min(S.younger(('T', 8), (4, 1)), S.younger(('T', 10), (5, 1)))
        vm_p3 = min(S.younger(('T', 9), (4, 3)), S.younger(('T', 11), (5, 3)))
        if opt('w2y', 0 if opt('rs', 0) else 1):
            a.e('s_mul_i32 s56, s2, 28672')
            a.e(f's_mul_i32 s57, s{S_W}, 7168')
            a.e('s_add_u32 s56, s56, s57')
            srd(a, 44, P_W2, 7168, 0, 56)
            a.e('v_min_u32 v21, 8, v2')
            a.e('v_lshlrev_b32 v21, 7, v21')
            a.e('s_mov_b32 s88, 0')
        a.e(f's_lshl_b32 s56, s80, {5+fsh()}')
        a.e(f's_add_u32 s56, s56, {F2}')
        if opt('psx', 0):
            srd(a, 44, P_WS, 8 * MB, WS_XP)
            a.e('s_lshl_b32 s99, s2, 2')
            a.e(f's_add_u32 s99, s99, s{S_W}')
            a.e('s_lshl_b32 s99, s99, 13')
        if opt('ps', 0):
            a.e('s_mov_b32 s88, s85')
            a.e('s_mov_b32 s89, s86')
            for r in range(4): a.e(f'v_mov_b32 v{24+r}, 0')
        a.e('s_add_u32 s89, s73, 98304')
        if opt('la', 2) < 8:
            a.e('s_mul_i32 s57, s2, 3584')
            a.e(f's_mul_i32 s58, s{S_W}, 896')
            a.e('s_add_u32 s57, s57, s58')
            srd(a, 48, P_W1, None, 0, 57)
            a.e('s_sub_u32 s50, 7340032, s57')
            srd(a, 4, P_W3, None, 0, 57)
            a.e('s_mov_b32 s6, s50')
            a.e(f's_mov_b32 s101, {917504 * opt("la", 2)}')
            a.e('v_min_u32 v6, 6, v2')
            a.e('v_lshlrev_b32 v6, 7, v6')
        if opt('cpg', 1):
            a.e('s_getpc_b64 s[78:79]')
            a.e('L_pcg:')
            a.e(f's_lshl_b32 s77, s{S_W}, 13')
            a.e('s_add_u32 s77, s77, L_g1epi-L_pcg')
            a.e('v_lshl_add_u32 v24, v2, 7, s77')
            a.e('v_min_u32 v24, L_end-L_pcg, v24')
            a.e('v_mov_b32 v23, 0')
        a.e('s_mov_b32 s82, 0')
        a.e('s_mov_b32 s83, 0')
        a.e('s_mov_b32 s84, 0')
        stamp(a, 10)
        d1 = [('D', 1, i) for i in range(8)] + [('D', 2, 0), ('D', 2, 1)]
        for e in d1:
            for l in s.ev_ins(e):
                a.e(l)
                if 'm0' in l: a.e('s_nop 0')
        s.hook()
        for t in range(6):
            for l in s.rd(0, t): a.e(l)
        a.e('s_waitcnt lgkmcnt(12)')
        wait_flags(a, 56, 19, 20, solo=0 if opt('f2w', 0) else None)
        stamp(a, 11)
        XE = opt('xe', 1)
        pro = d1 + [e for e in S.ev[:S.marks[(0, 1)]] if e[1] >= 0 and e[0] == 'T'] + ([] if XE else [('X', i, 0) for i in range(4)]) + [('U', -1 - i // 2, i & 1) for i in range(2 * opt('lx', 0))]
        for e in pro[len(d1):]:
            if e[0] == 'X':
                a.e(f'buffer_store_dwordx4 a[{92+4*e[1]}:{95+4*e[1]}], v{s.VT}, s[40:43], s96 offen offset:{1024*e[1]} sc1')
                continue
            for l in s.ev_ins(e):
                a.e(l)
                if 'm0' in l: a.e('s_nop 0')
        act = pro + S.ev[S.marks[(0, 1)]:]
        off = len(pro) - S.marks[(0, 1)]
        s.startup = {}
        if opt('st1', 1):
            def req(s_, P, tg):
                idx = [i for i, e in enumerate(act) if e[:2] == tg]
                return S.marks[(s_, P)] + off - max(idx) - 1 if idx else 63
            vm_p3 = min([vm_p3] + [req(s_, 3, ('T', 2 * s_ + 1)) for s_ in range(0, 4)])
            vm_p1 = min([vm_p1] + [req(s_, 1, ('T', 2 * s_)) for s_ in range(1, 4)])
            vm_bar = min([vm_bar] + [req(s_, 0, ('D', s_)) for s_ in range(1, 4)])
            print('g1 counts', vm_bar, vm_p1, vm_p3, file=sys.stderr)
        need = -1
        for s_ in range(0, 6):
            for P, tags, N in ((0, [('D', s_)], vm_bar), (1, [('T', 2 * s_)], vm_p1), (3, [('T', 2 * s_ + 1)], vm_p3)):
                if (s_, P) == (0, 0): continue
                site = S.marks[(s_, P)] + off
                for tg in tags:
                    idx = [i for i, e in enumerate(act) if e[:2] == tg]
                    if not idx: continue
                    if site - max(idx) - 1 < N: need = max(need, max(idx))
        if need >= 0:
            a.e(f's_waitcnt vmcnt({S.marks[(0, 1)] + off - need - 1})')
        a.e('s_branch L_g1_P1')
        s.snake = 0
        if opt('al', 1):
            a.raw('.p2align 6')
            for _ in range(opt('alo', 0)): a.e('s_nop 0')
        a.e('L_g1_loop:')
        if opt('tw', 1):
            a.e('s_cmp_eq_u32 s84, 7')
            a.e('s_cbranch_scc0 L_g1_notw')
            for i in range(4):
                a.e(f'v_mov_b32 v{s.DV+i}, v{28+i}')
                a.e(f'v_add_u32 v{s.DV+4+i}, 131072, v{28+i}')
            a.e('s_mov_b64 s[52:53], s[68:69]')
            a.e('s_mov_b32 s54, s70')
            a.e('s_add_u32 s97, s72, 32768')
            a.e('s_mov_b32 s100, 262144')
            a.e('L_g1_notw:')
        for s_ in (4, 5):
            a.e(f's_add_u32 s83, s83, {G1_STG}')
            a.e('s_and_b32 s83, s83, 0x1ffff')
            a.e(f's_waitcnt vmcnt({vm_bar})')
            a.e('s_barrier')
            s.phase(s_, 0)
            if s_ == 4: a.e('L_g1_P1:')
            a.e(f's_waitcnt vmcnt({vm_p1})')
            s.phase(s_, 1)
            s.phase(s_, 2)
            a.e(f's_waitcnt vmcnt({vm_p3})')
            s.phase(s_, 3)
        if opt('g1st'):
            a.e('s_memtime s[66:67]')
            a.e('s_min_u32 s64, s84, 3')
            a.e('s_add_u32 s64, s64, 26')
            a.e('s_waitcnt lgkmcnt(0)')
            a.e('s_cmp_lt_u32 s84, 4')
            a.e('s_cselect_b32 s64, s64, 40')
            a.e('s_mov_b32 m0, s64')
            a.e('v_writelane_b32 v1, s66, m0')
        a.e('s_add_u32 s84, s84, 1')
        a.e('s_cmp_lt_u32 s84, 8')
        a.e('s_cbranch_scc1 L_g1_loop')
        a.e('L_g1epi:')
        s.pre = []
        if opt('eo', 0):
            a.e('s_mov_b32 s58, 0xbfb8aa3b')
            a.e('s_mov_b32 s59, 0xbfb8aa3b')
            for T, u in ((8, 0), (20, 1))[:opt('eo', 0)]:
                gs = [s.ACC + 4 * (t * 4) + e for t in (2 * u, 2 * u + 1) for e in (0, 2)]
                s.pre += [f'v_pk_mul_f32 v[{T+2*q}:{T+2*q+1}], v[{gs[q]}:{gs[q]+1}], s[58:59]' for q in range(4)]
                s.pre += [f'v_exp_f32 v{T+q}, v{T+q}' for q in range(8)]
                s.pre += [f'v_pk_add_f32 v[{T+2*q}:{T+2*q+1}], v[{T+2*q}:{T+2*q+1}], 1.0 op_sel_hi:[1,0]' for q in range(4)]
                s.pre += [f'v_rcp_f32 v{T+q}, v{T+q}' for q in range(8)]
        s.phase(6, 0, last=True)
        assert not s.pre
        stamp(a, 12)
    def phase(s, s_, P, last=False):
        a = s.a; S = s.S
        kbuf = s.kof(s_, P) % s.ND
        mat = (P + 1) & 1
        items = []
        if not last:
            nxt = S.marks[(s_, P + 1)] if P < 3 else S.marks[(s_ + 1, 0)]
            items = [s.ev_ins(e) for e in S.ev[S.marks[(s_, P)]:nxt]]
        slots = [[] for _ in range(7)]
        for p_, it in zip([1, 2, 4, 5, 6], items): slots[p_] = it
        if P == 0 and not last:
            slots[0] = [f'v_add_u32 v{s.VR}, s83, v{s.VL}']
        for t in range(7):
            a.e(f's_waitcnt lgkmcnt({10 if not (last and t) else 12-2*t})')
            R = s.rd(P - 1, 6) if t == 0 else ([] if last else s.rd(P, t - 1))
            X = list(slots[t])
            pre = [x for x in X if 'm0' in x]
            X = [x for x in X if 'm0' not in x]
            gaps = [[] for _ in range(4)]
            if R: gaps[0] = pre + [R[0]]; gaps[1] = [R[1]]
            gaps[2] = X[:1]; gaps[3] = X[1:]
            order = [0, 1, 2, 3]
            if s.snake & 1: order.reverse()
            s.snake += 1
            for n, tm in enumerate(order):
                c = s.ACC + 4 * ((mat * 7 + t) * 4 + tm)
                tf = s.TF + 4 * (4 * kbuf + tm)
                if not opt('g1x') & 1: a.e(f'v_mfma_f32_16x16x32_bf16 v[{c}:{c+3}], a[{s.WF+4*t}:{s.WF+4*t+3}], a[{tf}:{tf+3}], v[{c}:{c+3}]')
                for x in gaps[n]:
                    if opt('g1x') & 2 and x.startswith('ds_'): continue
                    if opt('g1x') & 4 and x.startswith('buffer'): continue
                    a.e(x)
                if last and not gaps[n]:
                    for _ in range(opt('eo', 0)):
                        if s.pre: a.e(s.pre.pop(0))
    def epilogue(s, g2):
        a = s.a
        L = Lin(a)
        a.e('s_mov_b32 s58, 0xbfb8aa3b')
        a.e('s_mov_b32 s59, 0xbfb8aa3b')
        if opt('xe', 1):
            for i in range(4):
                a.e(f'buffer_store_dwordx4 a[{92+4*i}:{95+4*i}], v{s.VT}, s[40:43], s96 offen offset:{1024*i} sc1')
        g2.early(L)
        a.e('v_lshlrev_b32 v17, 3, v2')
        T = 8
        k = 0
        for tm in range(4):
            for u in range(4):
                O = (20, 24)[k & 1]
                fill = g2.epi_fill(k)
                def F(n=1):
                    for _ in range(n):
                        if fill: fill.pop(0)()
                tiles = [2 * u, 2 * u + 1] if u < 3 else [6]
                gs = []; us = []
                for t in tiles:
                    gs += [s.ACC + 4 * (t * 4 + tm), s.ACC + 4 * (t * 4 + tm) + 2]
                    us += [s.ACC + 4 * ((7 + t) * 4 + tm), s.ACC + 4 * ((7 + t) * 4 + tm) + 2]
                n = len(gs)
                nins = 9 * n
                cnt = [0]; ev_ = max(1, nins // (len(fill) + 1))
                def V(t):
                    a.e(t); cnt[0] += 1
                    if cnt[0] % ev_ == 0: F(1)
                T = 8
                if k < opt('eo', 0):
                    T = (8, 20)[k]; O = (24 if opt('eo', 0) == 1 else 8, 12)[k]
                    if k == 0 and opt('eo', 0) == 2: O = 28 - 28 + 0
                else:
                    for q in range(n): V(f'v_pk_mul_f32 v[{T+2*q}:{T+2*q+1}], v[{gs[q]}:{gs[q]+1}], s[58:59]')
                    for q in range(2 * n): V(f'v_exp_f32 v{T+q}, v{T+q}')
                    for q in range(n): V(f'v_pk_add_f32 v[{T+2*q}:{T+2*q+1}], v[{T+2*q}:{T+2*q+1}], 1.0 op_sel_hi:[1,0]')
                    for q in range(2 * n): V(f'v_rcp_f32 v{T+q}, v{T+q}')
                for q in range(n): V(f'v_pk_mul_f32 v[{gs[q]}:{gs[q]+1}], v[{gs[q]}:{gs[q]+1}], v[{us[q]}:{us[q]+1}]')
                for q in range(n): V(f'v_pk_mul_f32 v[{T+2*q}:{T+2*q+1}], v[{T+2*q}:{T+2*q+1}], v[{gs[q]}:{gs[q]+1}]')
                for q in range(n): V(f'v_cvt_pk_bf16_f32 v{O+q}, v{T+2*q}, v{T+2*q+1}')
                if u < 3:
                    L.v('st', f'buffer_store_dwordx4 v[{O}:{O+3}], v{s.VT}, s[36:39], s85 offen offset:{1024*u}' + hfl())
                else:
                    L.v('st', f'buffer_store_dwordx2 v[{O}:{O+1}], v{17 if opt("hl", 1) else s.VT}, s[36:39], s86 offen' + hfl())
                F(len(fill))
                k += 1
            if tm < 3:
                a.e('s_add_u32 s85, s85, 114688')
                a.e('s_add_u32 s86, s86, 114688')
        a.e(f's_lshl_b32 s87, s91, {fsh()}')
        a.e(f's_add_u32 s87, s87, {F3}')
        stamp(a, 13)
        a.e('L_g2code:')
        if opt('s3e', 1):
            a.e('s_waitcnt lgkmcnt(0)')
            signal(a, 87, 5, waitfn=lambda: L.wait(vm=('st',)))
            g2.post_epilogue(bar=False)
        else:
            g2.post_epilogue()
            signal(a, 87, 5, waitfn=lambda: L.wait(vm=('st',)), wb=(opt('hfl') == 4))
        stamp(a, 18)

class G2:
    ACC, TF, DV, VT, RJ, TR, V1, VO, VF = 32, 96, 28, 16, 3, 8, 12, 13, 14
    REG = 40960
    def __init__(s, a): s.a = a
    def wreg(s, k, j):
        if k < 16: return 'a', 128 + 8 * k + 4 * j
        if k < 32: return 'a', 8 * (k - 16) + 4 * j
        NB = opt('nb', 12); nv = (160 - 4 * NB) // 8
        if k < 32 + nv: return 'v', 96 + 4 * NB + 8 * (k - 32) + 4 * j
        return 'a', 128 + 8 * (k - 32 - nv) + 4 * j
    def front_setup(s):
        a = s.a
        gm = opt('g2map', 1)
        s.pbit = 2 if gm == 2 else 1
        if gm == 2: a.e('s_bfe_u32 s76, s2, 0x10001')
        else: a.e('s_and_b32 s76, s2, 1')
        a.e('s_lshr_b32 s56, s2, 3')
        if gm:
            if gm == 2:
                a.e('s_andn2_b32 s74, 1, s2')
            else:
                a.e('s_bfe_u32 s74, s2, 0x10001')
            a.e('s_lshl_b32 s74, s74, 3')
            a.e('s_and_b32 s57, s56, 7')
            a.e('s_add_u32 s74, s74, s57')
            a.e('s_bfe_u32 s75, s2, 0x10002')
            a.e('s_lshl_b32 s75, s75, 2')
            a.e('s_lshr_b32 s57, s56, 3')
            a.e('s_add_u32 s75, s75, s57')
        else:
            a.e('s_bfe_u32 s74, s2, 0x20001')
            a.e('s_lshl_b32 s74, s74, 2')
            a.e('s_and_b32 s57, s56, 3')
            a.e('s_add_u32 s74, s74, s57')
            a.e('s_lshr_b32 s75, s56, 2')
        a.e('v_lshrrev_b32 v252, 2, v2')
        a.e('v_lshlrev_b32 v253, 11, v252')
        a.e('v_lshrrev_b32 v254, 3, v2')
        a.e('v_xor_b32 v254, v254, v2')
        a.e('v_and_b32 v254, 2, v254')
        a.e('v_and_or_b32 v254, v2, 1, v254')
        a.e('v_lshl_add_u32 v248, v254, 4, v253')
        for i in range(1, 4):
            a.e(f'v_add_u32 v{248+i}, {i*(32768-1024)}, v248')
        a.e('s_mul_i32 s56, s76, 3670016')
        a.e('s_lshl_b32 s57, s75, 8')
        a.e('s_add_u32 s56, s56, s57')
        a.e(f's_lshl_b32 s57, s{S_W}, 6')
        a.e('s_add_u32 s56, s56, s57')
        srd(a, 68, P_W2, None, 0, 56)
        a.e('s_sub_u32 s70, 7340032, s56')
        a.e('s_mov_b32 s72, 0')
        a.e('v_lshlrev_b32 v252, 6, v252')
        a.e('v_bfe_u32 v253, v2, 4, 1')
        a.e('v_lshl_add_u32 v252, v253, 5, v252')
        a.e('v_and_b32 v253, 3, v2')
        a.e('v_lshl_add_u32 v252, v253, 3, v252')
        a.e(f's_lshl_b32 s73, s{S_W}, 13')
        a.e('s_add_u32 s73, s73, 32768')
        a.e('v_add_u32 v253, s73, v252')
        a.e('v_xor_b32 v254, 32, v253')
    def fcell(s, n): return (32768, 36864, 0, 4096, 98304, 102400)[n]
    def fD(s, pairs, dv=248):
        a = s.a
        out = []
        for c, n in pairs:
            out.append(lambda n=n: a.e(f's_add_u32 m0, s73, {s.fcell(n)}'))
            for i in range(4):
                def f(i=i):
                    a.e(f'buffer_load_dwordx4 v{dv+i}, s[68:71], s72 offen offset:{1024*i} lds')
                    if i == 3: a.e('s_add_u32 s72, s72, 131072')
                out.append(f)
        return out
    def fM(s, pairs, base=253, sub=0):
        a = s.a
        for c, n in pairs:
            for kk in range(2):
                for j in range(2):
                    for h in range(2):
                        r, q = s.wreg(2 * c + kk, j)
                        a.e(f'ds_read_b64_tr_b16 {r}[{q+2*h}:{q+2*h+1}], v{base+j} offset:{s.fcell(n)-sub+2048*kk+1024*h}')
    def front_save(s):
        a = s.a
        for i in range(4): a.e(f'v_mov_b32 v{s.DV+i}, v{248+i}')
        a.e('v_mov_b32 v7, v252')
    def early(s, L):
        a = s.a; s.L = L
        a.e('s_mov_b32 s80, s74')
        a.e('s_mov_b32 s81, s75')
        a.e('s_mov_b32 s82, s76')
        a.e(f's_mul_i32 s98, s{S_W}, {s.REG}')
        a.e(f'v_add_u32 v{s.RJ}, s98, v7')
        a.e(f'v_xor_b32 v{s.RJ+1}, 32, v{s.RJ}')
        a.e('s_add_u32 s56, s73, 98304')
        a.e('v_add_u32 v5, s56, v7')
        a.e('v_xor_b32 v6, 32, v5')
        L.vm = ['tail'] + ['st'] * (4 if opt('xe', 1) else 0)
        mv = [(s.NF - 2, 4, 5, 98304), (s.NF - 1, 5, 5, 98304)]
        if opt('tw', 1):
            a.e('s_mov_b32 s72, s97')
            a.e('s_sub_u32 s56, s73, 32768')
            a.e('v_add_u32 v18, s56, v7')
            a.e('v_xor_b32 v19, 32, v18')
            mv += [(s.NF + i, (2, 3, 0, 1)[i], 18, 0) for i in range(4)]
            s.NF += 4
        items = []
        for c, n, base, sub in mv:
            for kk in range(2):
                for j in range(2):
                    for h in range(2):
                        r, q = s.wreg(2 * c + kk, j)
                        items.append(lambda r=r, q=q, h=h, j=j, n=n, kk=kk, base=base, sub=sub: a.e(f'ds_read_b64_tr_b16 {r}[{q+2*h}:{q+2*h+1}], v{base+j} offset:{s.fcell(n)-sub+2048*kk+1024*h}'))
        s.mv_items = items
        if opt('cpf2', 0): code_pf(a, 'L_g2code', 'L_end', 21, lambda t: L.v('cp', t))
        s.cell = {}
        s.free = list(range(10))
    def D(s, c):
        L = s.L
        def first():
            s.cell[c] = s.free.pop(0)
            L.e(f's_add_u32 m0, s98, {4096*s.cell[c]}')
        out = [first]
        for i in range(4):
            out.append(lambda i=i: L.v(('W', c), f'buffer_load_dwordx4 v{s.DV+i}, s[68:71], s72 offen offset:{1024*i} lds'))
        out.append(lambda: L.e('s_add_u32 s72, s72, 131072'))
        return out
    def M(s, c):
        L = s.L
        out = []
        for kk in range(2):
            for j in range(2):
                for h in range(2):
                    def f(kk=kk, j=j, h=h):
                        r, n = s.wreg(2 * c + kk, j)
                        L.l(('M', c), f'ds_read_b64_tr_b16 {r}[{n+2*h}:{n+2*h+1}], v{s.RJ+j} offset:{4096*s.cell[c]+2048*kk+1024*h}')
                    out.append(f)
        return out
    def Wv(s, c): return [lambda: s.L.wait(vm=(('W', c),))]
    def Fr(s, cs):
        def f():
            s.L.wait(lg0=True)
            for c in cs: s.free.append(s.cell[c])
        return [f]
    def epi_fill(s, k):
        D, M, Wv, Fr = s.D, s.M, s.Wv, s.Fr
        def cat(*xs): return [y for x in xs for y in x]
        s.A = []
        k0 = opt('mvk', 0)
        if k < k0: return []
        out, s.mv_items = s.mv_items[:12], s.mv_items[12:]
        if k == k0: out = [lambda: s.L.wait(vm=('tail',))] + out
        return out
    def post_epilogue(s, bar=True):
        a = s.a; L = s.L
        assert not s.A
        s.NA = s.NF + opt('ne', 0) + opt('na', 3)
        if bar:
            a.e('s_waitcnt lgkmcnt(0)')
            a.e('s_barrier')
        a.inject([f for c in range(s.NF + opt('ne', 0), s.NA) for f in s.D(c)], 4)
        a.e(f'v_mov_b32 v{s.TR}, v{s.VT}')
        for q in range(1, 4):
            a.e(f'v_add_u32 v{s.TR+q}, {q*s.REG}, v{s.VT}')
        a.e(f'v_add_u32 v{s.V1}, {114688-2048}, v{s.VT}')
        for q in range(4):
            a.e(f'v_add_u32 v{24+q}, {q*s.REG}, v17')
        zero_acc(a, s.ACC, 64, 96)
        a.flush_inject()
        a.e('s_lshl_b32 s56, s80, 3')
        a.e(f's_lshl_b32 s57, s{S_W}, 1')
        a.e('s_lshl_b32 s58, s82, 2')
        a.e('s_xor_b32 s57, s57, s58')
        a.e('s_add_u32 s56, s56, s57')
        a.e('s_lshr_b32 s83, s56, 4')
        a.e('s_bfe_u32 s84, s56, 0x20002')
        hf_base(a, 57, 83, 84, 58)
        a.e('s_and_b32 s56, s56, 3')
        a.e('s_mul_i32 s56, s56, 114688')
        a.e('s_add_u32 s57, s57, s56')
        a.e('s_mul_i32 s58, s82, 57344')
        a.e('s_add_u32 s57, s57, s58')
        srd(a, 32, P_WS, 114688 + 57344, 0, 57)
        a.e('v_and_b32 v5, 15, v2')
        a.e('v_lshlrev_b32 v5, 11, v5')
        if opt('o4', 1):
            a.e('v_bfe_u32 v6, v2, 4, 1')
            a.e('v_lshl_add_u32 v5, v6, 5, v5')
            a.e('v_lshrrev_b32 v6, 5, v2')
            a.e(f'v_lshl_add_u32 v{s.VO}, v6, 4, v5')
        else:
            a.e('v_lshrrev_b32 v6, 4, v2')
            a.e(f'v_lshl_add_u32 v{s.VO}, v6, 3, v5')
        a.e('s_lshl_b32 s85, s80, 18')
        a.e('s_lshl_b32 s57, s82, 17')
        a.e('s_add_u32 s85, s85, s57')
        a.e('s_lshl_b32 s57, s81, 8')
        a.e('s_add_u32 s85, s85, s57')
        a.e(f's_lshl_b32 s57, s{S_W}, 6')
        a.e('s_add_u32 s85, s85, s57')
        a.e(f'v_and_b32 v{s.VF}, {15 if opt("f3h", 0) else 31}, v2')
        a.e(f'v_lshlrev_b32 v{s.VF}, {fsh()}, v{s.VF}')
    def main(s):
        a = s.a; L = s.L
        a.e('s_lshr_b32 s56, s80, 1')
        a.e(f's_lshl_b32 s56, s56, {5+fsh()}')
        a.e(f's_add_u32 s56, s56, {F3}')
        if opt('f3h', 0):
            a.e(f's_lshl_b32 s57, s82, {4+fsh()}')
            a.e('s_add_u32 s56, s56, s57')
            a.e(f's_lshl_b32 s97, s80, {4+fsh()}')
            a.e(f's_add_u32 s97, s97, {F3}')
        srd(a, 44, P_WS, 4 * MB, WS_H)
        a.e('s_mov_b32 s84, 0')
        L.wait(vm0=True)
        for c in range(s.NF, s.NA):
            for f in s.M(c): f()
        for f in s.Fr(range(s.NF, s.NA)): f()
        wait_flags(a, 56, s.VF, 20)
        stamp(a, 14)
        NS = 28
        slot = {}
        def TD(st):
            slot[st] = s.free.pop(0)
            out = [lambda: L.e(f's_add_u32 m0, s98, {4096*slot[st]}')]
            for i in range(4):
                v = s.VT if i < 2 else s.V1
                out.append(lambda i=i, v=v: L.v(('T', st), f'buffer_load_dwordx4 v{v}, s[32:35], s84 offen offset:{1024*i} sc1 lds'))
            out.append(lambda: (L.e('s_add_u32 s84, s84, 2048'), issued.add(st)))
            return out
        issued = set()
        NB = opt('nb', 12); KV = 32 + (160 - 4 * NB) // 8
        nxt = 0
        wc = opt('wc', 3)
        wfree, s.free = s.free[-wc:], s.free[:-wc]
        for _ in range(opt('t0', 3)):
            fs = TD(nxt); fs[0](); a.e('s_nop 0')
            for f in fs[1:]: f()
            nxt += 1
        L.wait(vm=(('T', 0),))
        a.e('s_barrier')
        X = opt('tx', 12)
        seq = [(k, tm) for k in range(56 - X) for tm in range(8)]
        seq += [(k, tm) for k in range(56 - X, 56) for tm in range(4, 8)]
        nS = len(seq)
        seq += [(k, tm) for k in range(56 - X, 56) for tm in range(4)]
        last_use = {}
        for g_, (k, tm) in enumerate(seq): last_use[k >> 1] = g_
        rdn = [0]
        def RDnext():
            if rdn[0] < 448:
                k, tm = seq[rdn[0]]
                f = s.TF + 4 * (rdn[0] % NB)
                o_ = 4096 * slot[k >> 1] + 2048 * (tm & 1) + 1024 * (k & 1)
                if opt('g2x') & 8 and rdn[0] & 1:
                    pass
                elif k % 7 == 3 and opt('hl', 1):
                    L.l(('R', rdn[0]), f'ds_read2st64_b64 v[{f}:{f+3}], v{24+(tm>>1)} offset0:{o_//512} offset1:{o_//512+1}')
                else:
                    L.l(('R', rdn[0]), f'ds_read_b128 v[{f}:{f+3}], v{s.TR+(tm>>1)} offset:{o_}')
                rdn[0] += 1
        for _ in range(NB - 1): RDnext()
        todo = list(range(s.NA, 28)); fly = []; pend = []; freed = set(); vis = 0; wseen = set()
        assert NB - 1 <= 16
        HR = 192
        a.e('s_lshl_b32 s56, s2, 2')
        a.e(f's_add_u32 s56, s56, s{S_W}')
        a.e('s_lshl_b32 s57, s56, 13')
        a.e(f's_xor_b32 s58, s57, {0x8000 * s.pbit:#x}')
        a.e('s_lshl_b32 s56, s56, 6')
        a.e(f's_add_u32 s56, s56, {F4}')
        a.e(f's_xor_b32 s59, s56, {0x100 * s.pbit:#x}')
        srd(a, 40, P_WS, 8 * MB, WS_XP)
        srd(a, 48, P_OUT, 4 * MB)
        a.e('s_add_u32 s87, s57, 4096')
        a.e('s_add_u32 s88, s58, 4096')
        a.e('v_mov_b32 v20, 0')
        a.e(f'v_mov_b32 v21, s{S_NONCE}')
        def flag_store():
            L.wait(vm=('xs',))
            if not opt('kbst'): stamp(a, 16)
            if opt('pp', 2) == 2: pre_poll()
            a.e('s_mov_b64 exec, 1')
            L.v('fl', f'buffer_store_dword v21, v20, s[{S_FLG}:{S_FLG+3}], s56 offen sc1')
            a.e('s_mov_b64 exec, -1')
        def pre_poll():
            L.v('fp', f'buffer_load_dword v22, v20, s[{S_FLG}:{S_FLG+3}], s59 offen sc1')
        BP = opt('bp', 1)
        def xstores():
            out = []
            if BP:
                for q2 in range(4):
                    def f(q2=q2):
                        c = s.ACC + 32 + 8 * q2
                        for e in range(4): a.e(f'v_cvt_pk_bf16_f32 v{c+e}, v{c+2*e}, v{c+2*e+1}')
                        if opt('degr'):
                            m_ = (0xffff << opt('degr')) & 0xffff
                            for e in range(4): a.e(f'v_and_b32 v{c+e}, {m_ * 0x10001:#x}, v{c+e}')
                        L.v('xs', f'buffer_store_dwordx4 v[{c}:{c+3}], v{s.VT}, s[40:43], s57 offen offset:{1024*q2} sc1')
                    out += [lambda: None, f]
            else:
                for q in range(8):
                    c = s.ACC + 32 + 4 * q
                    out.append(lambda q=q, c=c: L.v('xs', f'buffer_store_dwordx4 v[{c}:{c+3}], v{s.VT}, s[40:43], s{57 if q < 4 else 87} offen offset:{1024*(q&3)} sc1'))
            return out
        gF = nS + opt('tf', 48) * (448 - nS) // 64 if X else None
        for u in range(56):
            k0 = seq[8 * u][0]
            fill = []
            GM = (0, 16, 32, 44, 50)
            if opt('g2st') and u in GM:
                a.e('s_memtime s[66:67]'); a.e('s_waitcnt lgkmcnt(0)'); L.lg = []
                a.e(f'v_writelane_b32 v1, s66, {26 + GM.index(u)}')
            if s.free and nxt < NS and (u & 1 or u < 8 or not todo or len(s.free) > 1):
                fill += TD(nxt); nxt += 1
                if not todo and not fly and s.free and nxt < NS:
                    fill += TD(nxt); nxt += 1
            if not u & 1 and u >= opt('wk0', 8):
                if fly and u >= fly[0][1] + opt('wlat', 4):
                    c = fly.pop(0)[0]
                    assert 2 * c + 1 < KV or u >= 2 * c + 2 - KV
                    fill += s.Wv(c) + s.M(c)
                    pend.append(c)
                if todo and wfree:
                    c = todo.pop(0)
                    fs = s.D(c)
                    s.cell[c] = wfree.pop(0)
                    fill += [lambda c=c: L.e(f's_add_u32 m0, s98, {4096*s.cell[c]}')] + fs[1:]
                    fly.append((c, u))
            if 8 * u == nS and X:
                fill += xstores()
            if u == 44 and opt('f3h', 0):
                fill.append(lambda: L.v('hf', f'buffer_load_dword v23, v{s.VF}, s[{S_FLG}:{S_FLG+3}], s97 offen sc1'))
            if u == 52 and opt('f3h', 0):
                L.wait(vm=('hf',))
                a.e(f'v_cmp_ne_u32 vcc, s{S_NONCE}, v23')
                a.e('s_cbranch_vccz L_hok')
                wait_flags(a, 97, s.VF, 23, solo=0)
                a.e('L_hok:')
            if u == 52:
                for tm in range(4):
                    for j in range(1 if opt('o4', 1) else 2):
                        def f(tm=tm, j=j):
                            if j == 0 and tm: L.e(f's_add_u32 s86, s85, {32768*tm}')
                            if opt('o4', 1):
                                L.v('h', f'buffer_load_dwordx4 a[{4*tm}:{4*tm+3}], v{s.VO}, s[44:47], s{86 if tm else 85} offen sc1')
                            else:
                                L.v('h', f'buffer_load_dwordx2 a[{4*tm+2*j}:{4*tm+2*j+1}], v{s.VO}, s[44:47], s{86 if tm else 85} offen offset:{32*j} sc1')
                        fill.append(f)
            per = -(-(len(fill) + 1) // 8)
            SS = opt('ss', 1)
            for i in range(8):
                g_ = 8 * u + i
                k, tm = seq[g_]
                if rdn[0] < 448 and seq[rdn[0]][0] >> 1 > vis:
                    q = seq[rdn[0]][0] >> 1
                    vis = min(NS - 1, q + SS - 1) if q > 1 else q
                    assert vis in issued, (u, i, vis)
                    L.wait(vm=(('T', vis),))
                    a.e('s_barrier')
                    for q2 in list(slot):
                        if q2 not in freed and last_use[q2] < g_:
                            freed.add(q2); s.free.append(slot[q2])
                need = [('R', g_)]
                if k >> 1 not in wseen:
                    wseen.add(k >> 1)
                    assert k >> 1 not in todo and all(c != k >> 1 for c, _ in fly), (k, u)
                    need.append(('M', k >> 1))
                if g_ == gF: flag_store()
                if opt('pp', 2) == 1 and g_ == gF + opt('ppd', 2): pre_poll()
                L.wait(lg=need)
                order = [0, 1] if g_ % 2 == 0 else [1, 0]
                for n, j in enumerate(order):
                    r, w = s.wreg(k, j)
                    c = s.ACC + 4 * (2 * tm + j)
                    tf = s.TF + 4 * (g_ % NB)
                    if not opt('g2x') & 1:
                        a.e(f'v_mfma_f32_16x16x32_bf16 v[{c}:{c+3}], {r}[{w}:{w+3}], v[{tf}:{tf+3}], v[{c}:{c+3}]')
                    if n == 0:
                        RDnext()
                    else:
                        for _ in range(per):
                            if fill:
                                fill.pop(0)()
                                if 'm0' in a.lines[-1]: break
            while fill:
                if 'm0' in a.lines[-1]: a.e('s_nop 0')
                fill.pop(0)()
            for c in list(pend):
                if not any(x == ('M', c) for x in L.lg):
                    pend.remove(c)
                    (wfree if todo else s.free).append(s.cell[c])
            if not todo and wfree and not fly and not pend:
                s.free += wfree; wfree = []
        assert not todo and not fly and not pend and nxt == NS
        stamp(a, 15)
        if not X:
            a.e('s_nop 7')
            for f in xstores(): f()
            flag_store()
        if opt('pp', 2) == 2:
            L.wait(vm=('fp',))
            a.e(f'v_cmp_ne_u32 vcc, s{S_NONCE}, v22')
            a.e('s_cbranch_vccz L_xok')
        wait_flags(a, 59, 20, 22, solo=0, pre=bool(opt('pp', 2) == 1 and X))
        a.e('L_xok:')
        stamp(a, 17)
        P1 = 96
        NL = 4 if BP else 8
        for q in range(NL):
            a.e(f'buffer_load_dwordx4 v[{P1+4*q}:{P1+4*q+3}], v{s.VT}, s[40:43], s{58 if q < 4 else 88} offen offset:{1024*(q&3)} sc1')
        H = 208
        for q in range(16):
            a.e(f'v_accvgpr_read_b32 v{HR+q}, a{q}')
        if opt('o4', 1):
            for tm in range(4):
                if tm == 3: a.e('s_nop 0')
                a.e(f'v_permlane16_swap_b32 v{HR+4*tm}, v{HR+4*tm+2}')
                a.e(f'v_permlane16_swap_b32 v{HR+4*tm+1}, v{HR+4*tm+3}')
        for q in range(16):
            unpack(a, H + 2 * q, H + 2 * q + 1, HR + q)
        a.e('s_mov_b32 s82, 0x3ef5fdf0')
        a.e('s_mov_b32 s83, 0x3ef5fdf0')
        for q in range(8):
            tm, j = q >> 1, q & 1
            if j == 0 and tm: a.e(f's_add_u32 s85, s85, 32768')
            if BP:
                if j == 0: a.e(f's_waitcnt vmcnt({3 if opt("o4", 1) else 3 + tm})')
            else: a.e('s_waitcnt vmcnt(7)')
            c = s.ACC + 4 * q
            for e in range(2):
                x = c + 2 * e; h = H + 4 * q + 2 * e
                if BP:
                    y = 128 + 2 * e
                    unpack(a, y, y + 1, P1 + 2 * q + e)
                else:
                    y = P1 + 4 * q + 2 * e
                a.e(f'v_pk_add_f32 v[{x}:{x+1}], v[{x}:{x+1}], v[{y}:{y+1}]')
                if opt('hs', 0): a.e(f'v_pk_mul_f32 v[{x}:{x+1}], v[{x}:{x+1}], s[82:83]')
                a.e(f'v_cvt_pk_bf16_f32 v{y}, v{x}, v{x+1}')
                unpack(a, x, x + 1, y)
                a.e(f'v_pk_add_f32 v[{x}:{x+1}], v[{x}:{x+1}], v[{h}:{h+1}]')
                a.e(f'v_cvt_pk_bf16_f32 v{192+2*q+e}, v{x}, v{x+1}')
            ofl = ['', ' sc1', ' nt', ' sc0 sc1'][opt('ofl')]
            if opt('o4', 1):
                assert BP
                if j == 1:
                    o = 192 + 4 * tm
                    a.e('s_nop 1')
                    a.e(f'v_permlane16_swap_b32 v{o}, v{o+2}')
                    a.e(f'v_permlane16_swap_b32 v{o+1}, v{o+3}')
                    a.e(f'buffer_store_dwordx4 v[{o}:{o+3}], v{s.VO}, s[48:51], s85 offen' + ofl)
            else:
                a.e(f'buffer_store_dwordx2 v[{192+2*q}:{192+2*q+1}], v{s.VO}, s[48:51], s85 offen offset:{32*j}' + ofl)
        LIN[0] = None

def gen_dg(a):
    d = opt('dg'); F, ia, ib = d // 10000, d // 100 % 100, d % 100
    m = opt('dgm')
    a.raw('.globl dg_kernel\n.p2align 8\n.type dg_kernel,@function\ndg_kernel:')
    a.e('s_load_dwordx2 s[10:11], s[0:1], 96')
    a.e('s_memrealtime s[12:13]')
    a.e('s_waitcnt lgkmcnt(0)')
    a.e(f's_add_u32 s10, s10, {STAMP_BASE + opt("dgw", 0) * 128:#x}')
    a.e('s_addc_u32 s11, s11, 0')
    if not m:
        a.e(f's_load_dword s4, s[10:11], {4*ia}')
        a.e(f's_load_dword s5, s[10:11], {4*ib}')
        a.e('s_waitcnt lgkmcnt(0)')
    else:
        a.e('s_mov_b32 s20, s10\ns_mov_b32 s21, s11\ns_mov_b32 s22, 0x20000\ns_mov_b32 s23, 0x20000')
        a.e('v_lshlrev_b32 v1, 7, v0')
        for i in range(16):
            a.e(f's_mov_b32 s6, {i*8192}')
            a.e(f'buffer_load_dword v{8+i}, v1, s[20:23], s6 offen offset:{4*ia}')
            a.e(f'buffer_load_dword v{24+i}, v1, s[20:23], s6 offen offset:{4*ib}')
        a.e('s_waitcnt vmcnt(0)')
        for i in range(32):
            a.e(f'v_sub_u32 v{8+i}, s12, v{8+i}')
        opa = 'v_max_u32' if m != 3 else 'v_add_u32'
        opb = {1: 'v_min_u32', 2: 'v_max_u32', 3: 'v_add_u32'}[m]
        for i in range(1, 16):
            a.e(f'{opa} v8, v8, v{8+i}')
            a.e(f'{opb} v24, v24, v{24+i}')
        a.e('s_nop 1')
        a.e('v_readlane_b32 s4, v8, 0')
        a.e('v_readlane_b32 s5, v24, 0')
        sa = 's_max_u32' if m != 3 else 's_add_u32'
        sb = {1: 's_min_u32', 2: 's_max_u32', 3: 's_add_u32'}[m]
        for l in range(1, 64):
            a.e(f'v_readlane_b32 s6, v8, {l}')
            a.e(f'v_readlane_b32 s7, v24, {l}')
            a.e('s_nop 0')
            a.e(f'{sa} s4, s4, s6')
            a.e(f'{sb} s5, s5, s7')
        a.e('s_sub_u32 s5, s4, s5')
        if m == 3: a.e('s_lshr_b32 s5, s5, 10')
        a.e('s_mov_b32 s4, 0')
        a.e('s_memrealtime s[12:13]')
        a.e('s_waitcnt lgkmcnt(0)')
    a.e('s_sub_u32 s4, s5, s4')
    a.e('s_min_u32 s4, s4, 10000')
    a.e(f's_mul_i32 s4, s4, {F}')
    a.e('L_dg:')
    a.e('s_memrealtime s[14:15]')
    a.e('s_waitcnt lgkmcnt(0)')
    a.e('s_sub_u32 s5, s14, s12')
    a.e('s_cmp_lt_u32 s5, s4')
    a.e('s_cbranch_scc1 L_dg')
    a.e('s_endpgm')

def build():
    a = Asm()
    hdr = open('cdna_kernels/' + NAME + '.s.ref').read().split('\n')
    cm = [l for l in hdr if l.startswith(';') and '@launch' not in l and 'Override launch' not in l and 'grid=ceil' not in l]
    out = '\n'.join(cm) + '\n'
    out += '''; One persistent launch, 256 workgroups x 4 waves (one workgroup per CU), phases:
; Hand-offs: sc1 write-through stores, drained, then a flag word holding a per-launch nonce
'''
    if opt('aslist') or opt('dg'):
        out += f'; @launch kernel={KNAME} grid=(256,1,1) block=(256,1,1) lds=163840\n'
        if opt('dg'): out += '; @launch kernel=dg_kernel grid=(1,1,1) block=(64,1,1) lds=0\n'
    else:
        out += '; @launch grid=(256,1,1) block=(256,1,1) lds=163840\n'
    a.raw('.amdgcn_target "amdgcn-amd-amdhsa--gfx950"')
    a.raw('.text')
    gen(a)
    if opt('dg'): gen_dg(a)
    body = a.text()
    errs = check_hazards(body)
    errs += check_waits(body, KNAME, loop_iters=2, take_fwd=('L_nonce_ok', 'L_nonce_skip', 'L_clean_skip', 'L_y2skip', 'L_y2nw', 'L_hok', 'L_f0b', 'L_p0', 'L_p0f', 'L_xok') + tuple(f'L_sig{i}' for i in range(20)) + tuple(f'L_poll{i}x' for i in range(20)))
    errs += check_waits(body, KNAME, loop_iters=2, take_fwd=('L_nonce_ok', 'L_p0hi', 'L_f0b') + (() if opt('solo', 1) else tuple(f'L_poll{i}x' for i in range(20))))
    for e in errs[:8]: print(e, file=sys.stderr)
    na = 256
    out += body + f'''.section .rodata,"a"
.p2align 6
.amdhsa_kernel {KNAME}
  .amdhsa_next_free_vgpr {256+na}
  .amdhsa_next_free_sgpr 102
  .amdhsa_accum_offset 256
  .amdhsa_group_segment_fixed_size 0
  .amdhsa_kernarg_size 104
  .amdhsa_user_sgpr_count 2
  .amdhsa_user_sgpr_kernarg_segment_ptr 1
  .amdhsa_system_sgpr_workgroup_id_x 1
  .amdhsa_float_denorm_mode_32 3
.end_amdhsa_kernel
'''
    if opt('dg'):
        out += '''.p2align 6
.amdhsa_kernel dg_kernel
  .amdhsa_next_free_vgpr 48
  .amdhsa_next_free_sgpr 32
  .amdhsa_accum_offset 48
  .amdhsa_group_segment_fixed_size 0
  .amdhsa_kernarg_size 104
  .amdhsa_user_sgpr_count 2
  .amdhsa_user_sgpr_kernarg_segment_ptr 1
  .amdhsa_system_sgpr_workgroup_id_x 1
.end_amdhsa_kernel
'''
    return out, errs

if __name__ == '__main__':
    outp = sys.argv[1]
    for kv in sys.argv[2:]:
        k, v = kv.split('=')
        OPT[k] = int(v)
    if opt('hnub'): WS_HNF = WS_UB
    t, errs = build()
    open(outp, 'w').write(t)
    print('written', outp, len(t), 'bytes;', len(errs), 'checker errors')
```
